```python
import torch

def _softmax(x, axis=-1):
    return torch.softmax(x, dim=axis)

def _gelu(x):
    return torch.nn.functional.gelu(x, approximate='tanh')

def _silu(x):
    return torch.nn.functional.silu(x)

def _sigmoid(x):
    return torch.sigmoid(x)

def _layernorm(x, axis=-1, eps=1e-05):
    m = x.mean(dim=axis, keepdim=True)
    v = x.var(dim=axis, keepdim=True, unbiased=False)
    return (x - m) / torch.sqrt(v + eps)

def _scatter_add(tgt, idx, src, axis=0):
    return tgt.clone().index_add_(axis, idx, src)

def _segment_sum(src, seg, n):
    out = torch.zeros((n,) + src.shape[1:], dtype=src.dtype)
    return out.index_add_(0, seg, src)

def _pad(x, pw):
    flat = tuple((v for pair in reversed(pw) for v in pair))
    return torch.nn.functional.pad(x, flat)
kernel_name = 'interleave_layers__memory_aug_recurrent_mem_tr__moe_arch_mod__prompt'

def setup_inputs():

    _w = lambda a: (lambda t: t.to(torch.bfloat16) if t.is_floating_point() else t)(torch.as_tensor(a))

    def _A_setup():
        B, S, Dm = (1, 2048, 512)
        H, Dh = (32, 128)
        M, seg = (8, 32)
        seg = min(seg, S)
        S = S // seg * seg
        return {'x': _w((lambda *s: torch.randn(*s, dtype=torch.bfloat16) * 0.05)(B, S, Dm)), 'mem0': _w((lambda *s: torch.randn(*s, dtype=torch.bfloat16) * 0.8)(B, M, Dm)), 'Wq': _w((lambda *s: torch.randn(*s, dtype=torch.bfloat16) * 0.8)(Dm, H, Dh) * Dm ** (-0.5)), 'Wk': _w((lambda *s: torch.randn(*s, dtype=torch.bfloat16) * 0.8)(Dm, H, Dh) * Dm ** (-0.5)), 'Wv': _w((lambda *s: torch.randn(*s, dtype=torch.bfloat16) * 0.8)(Dm, H, Dh) * Dm ** (-0.5)), 'Wo': _w((lambda *s: torch.randn(*s, dtype=torch.bfloat16) * 0.8)(H, Dh, Dm) * (H * Dh) ** (-0.5)), 'seg_len': seg}
    _A_in = _A_setup()

    def _B_setup():
        B, S, D, F, C = (1, 2048, 512, 1792, 1)
        return {'x': _w((lambda *s: torch.randn(*s, dtype=torch.bfloat16) * 0.05)(B, S, D)), 'w_r': _w((lambda *s: torch.randn(*s, dtype=torch.bfloat16) * 0.05)(D)), 'w_gate': _w((lambda *s: torch.randn(*s, dtype=torch.bfloat16) * 0.05)(D, F)), 'w_up': _w((lambda *s: torch.randn(*s, dtype=torch.bfloat16) * 0.05)(D, F)), 'w_down': _w((lambda *s: torch.randn(*s, dtype=torch.bfloat16) * 0.05)(F, D))}
    _B_in = _B_setup()
    return {'A_x': _A_in['x'], 'A_mem0': _A_in['mem0'], 'A_Wq': _A_in['Wq'], 'A_Wk': _A_in['Wk'], 'A_Wv': _A_in['Wv'], 'A_Wo': _A_in['Wo'], 'A_seg_len': _A_in['seg_len'], 'B_x': _B_in['x'], 'B_w_r': _B_in['w_r'], 'B_w_gate': _B_in['w_gate'], 'B_w_up': _B_in['w_up'], 'B_w_down': _B_in['w_down']}

def reference(A_x, A_mem0, A_Wq, A_Wk, A_Wv, A_Wo, A_seg_len, B_x, B_w_r, B_w_gate, B_w_up, B_w_down):

    def _A_ref(x, mem0, Wq, Wk, Wv, Wo, seg_len):
        B, S, Dm = x.shape
        H, Dh = (Wq.shape[1], Wq.shape[2])
        M = mem0.shape[1]
        scale = Dh ** (-0.5)
        n_seg = S // seg_len
        L = M + seg_len
        idx = torch.arange(L)
        mask = (idx[:, None] < M) | (idx[:, None] >= idx[None, :])
        mem = mem0
        outs = []
        for s in range(n_seg):
            xs = x[:, s * seg_len:(s + 1) * seg_len, :].clone()
            h = torch.concatenate([mem, xs], axis=1)
            q = torch.einsum('btd,dhe->bhte', h, Wq)
            k = torch.einsum('btd,dhe->bhte', h, Wk)
            v = torch.einsum('btd,dhe->bhte', h, Wv)
            scores = torch.einsum('bhqe,bhke->bhqk', q, k) * scale
            scores = torch.where(mask[None, None], scores, -1000000000.0)
            p = _softmax(scores, axis=-1)
            o = torch.einsum('bhqk,bhke->bhqe', p, v)
            o = torch.einsum('bhte,hed->btd', o, Wo)
            mem = o[:, :M, :].clone()
            outs.append(o[:, M:, :])
        return torch.concatenate(outs, axis=1)

    def _B_ref(x, w_r, w_gate, w_up, w_down):
        B, S, D = x.shape
        C = 1
        r = x @ w_r
        idx = torch.argsort(-r, axis=-1)[:, :C]
        idx_e = (lambda x, n, axis: torch.repeat_interleave(x, n, dim=axis))(idx.reshape(B, C, 1), D, axis=2)
        x_sel = (lambda x, i, axis: torch.take_along_dim(x, i, dim=axis))(x, idx_e, axis=1)
        g = _silu(x_sel @ w_gate)
        u = x_sel @ w_up
        y = g * u @ w_down
        r_sel = _sigmoid((lambda x, i, axis: torch.take_along_dim(x, i, dim=axis))(r, idx, axis=1))
        y = y * r_sel.reshape(B, C, 1)
        b_off = (torch.arange(B) * S).reshape(B, 1)
        flat_idx = (idx + b_off).reshape(B * C)
        zero = (x * 0.0).reshape(B * S, D)
        upd = _scatter_add(zero, flat_idx, y.reshape(B * C, D), axis=0)
        return x + upd.reshape(B, S, D)
    x = A_x
    x = x + _A_ref(_layernorm(x, axis=-1), A_mem0, A_Wq, A_Wk, A_Wv, A_Wo, A_seg_len)
    x = x + _B_ref(_layernorm(x, axis=-1), B_w_r, B_w_gate, B_w_up, B_w_down)
    x = x + _A_ref(_layernorm(x, axis=-1), A_mem0, A_Wq, A_Wk, A_Wv, A_Wo, A_seg_len)
    x = x + _B_ref(_layernorm(x, axis=-1), B_w_r, B_w_gate, B_w_up, B_w_down)
    return x
```

```python
import re

TRANS = ("v_exp_f32", "v_log_f32", "v_rcp_f32", "v_rsq_f32", "v_sqrt_f32", "v_sin_f32", "v_cos_f32",
         "v_rcp_iflag_f32")

def regs_of(tok):
    tok = tok.strip()
    tok = re.sub(r"^-", "", tok)
    tok = re.sub(r"^abs\((.*)\)$", r"\1", tok)
    tok = re.sub(r"^\|(.*)\|$", r"\1", tok)
    m = re.fullmatch(r"([vas])(\d+)", tok)
    if m:
        return {(m.group(1), int(m.group(2)))}
    m = re.fullmatch(r"([vas])\[(\d+):(\d+)\]", tok)
    if m:
        return {(m.group(1), i) for i in range(int(m.group(2)), int(m.group(3)) + 1)}
    if tok in ("vcc", "vcc_lo", "vcc_hi"):
        return {("vcc", 0)}
    if tok in ("exec", "exec_lo", "exec_hi"):
        return {("exec", 0)}
    if tok == "m0":
        return {("m0", 0)}
    return set()

def split_ops(s):
    out, depth, cur = [], 0, ""
    for ch in s:
        if ch in "[(":
            depth += 1
        if ch in "])":
            depth -= 1
        if ch == "," and depth == 0:
            out.append(cur.strip()); cur = ""
        else:
            cur += ch
    if cur.strip():
        out.append(cur.strip())
    return out

class Ins:
    def __init__(self, text):
        self.text = text
        t = text.split(";")[0].strip()
        sp = t.split(None, 1)
        self.op = sp[0]
        rest = sp[1] if len(sp) > 1 else ""
        ops = split_ops(rest)
        self.mods = ""
        if ops:
            last = ops[-1].split(None, 1)
            ops[-1] = last[0]
            self.mods = last[1] if len(last) > 1 else ""
        self.ops = ops
        op = self.op
        self.kind = "salu"
        self.w, self.r = set(), set()
        self.srcC = set(); self.srcAB = set(); self.stdata = set()
        R = [regs_of(o) for o in ops]
        allr = lambda lst: set().union(*lst) if lst else set()
        if op.startswith("v_mfma") or op.startswith("v_smfmac"):
            self.kind = "mfma"
            self.w = R[0]
            if op.startswith("v_smfmac"):
                self.srcC = R[0]; self.srcAB = R[1] | R[2] | R[3]
            else:
                self.srcC = R[3]; self.srcAB = R[1] | R[2]
            self.r = self.srcC | self.srcAB
            self.passes = 8 if "32x32" in op else 4
        elif op.startswith("v_"):
            self.kind = "valu"
            if op.startswith("v_cmpx"):
                self.w = R[0] | {("exec", 0)}; self.r = allr(R[1:])
            elif op.startswith("v_cmp"):
                self.w = R[0]; self.r = allr(R[1:])
            elif "permlane" in op and "swap" in op:
                self.w = R[0] | R[1]; self.r = R[0] | R[1]
            elif op.startswith(("v_add_co", "v_sub_co", "v_addc_co", "v_subb_co", "v_subrev_co", "v_div_scale", "v_mad_u64")):
                self.w = R[0] | R[1]; self.r = allr(R[2:])
            elif op == "v_nop":
                pass
            else:
                self.w = R[0]; self.r = allr(R[1:])
                if op.startswith(("v_fmac", "v_dot2c", "v_pk_fmac", "v_writelane")) or "dpp" in op or "row_" in self.mods or "quad_perm" in self.mods:
                    self.r |= R[0]
                if op.startswith("v_cndmask") and len(ops) == 3:
                    self.r |= {("vcc", 0)}
            self.dpp = ("dpp" in op) or ("row_" in self.mods) or ("quad_perm" in self.mods)
        elif op.startswith(("global_", "buffer_", "flat_")):
            self.kind = "vmem"
            lds = re.search(r"\blds\b", self.mods) or "load_lds" in op
            if op in ("buffer_inv", "buffer_wbl2"):
                pass
            elif "load" in op:
                if lds:
                    self.r = allr(R) | {("m0", 0)}
                else:
                    self.w = R[0]; self.r = allr(R[1:])
            elif "store" in op:
                self.r = allr(R)
                self.stdata = R[1] if op.startswith("global_") else R[0]
                if not (op.endswith("x4") or op.endswith("x3")):
                    self.stdata = set()
            elif "atomic" in op:
                self.r = allr(R)
                if "sc0" in self.mods:
                    self.w = R[0]
        elif op.startswith("ds_"):
            self.kind = "ds"
            if "read" in op or "bpermute" in op or "permute" in op or "swizzle" in op or "rtn" in op:
                self.w = R[0]; self.r = allr(R[1:])
            else:
                self.r = allr(R)
        else:
            self.kind = "salu"
            if op.startswith(("s_cmp", "s_cbranch", "s_branch", "s_waitcnt", "s_nop", "s_barrier", "s_endpgm", "s_sleep", "s_setprio", "s_bitcmp", "s_setpc")):
                self.r = allr(R)
            else:
                self.w = R[0] if R else set(); self.r = allr(R[1:])
                if "saveexec" in op:
                    self.w |= {("exec", 0)}
    def states(self):
        if self.op == "s_nop":
            return int(self.ops[0], 0) + 1
        return 1

def vg(s):
    return {x for x in s if x[0] in ("v", "a")}
def sg(s):
    return {x for x in s if x[0] in ("s", "vcc")}

def need(p, c):
    n = 0
    if p.kind == "valu":
        wv = vg(p.w); ws = sg(p.w)
        if c.kind == "mfma" and wv & c.r:
            n = max(n, 2)
        if c.kind == "mfma" and ("exec", 0) in p.w:
            n = max(n, 4)
        if c.kind == "valu":
            if "permlane" in c.op and wv & c.r:
                n = max(n, 2)
            if c.dpp and wv & c.r:
                n = max(n, 2)
            if c.dpp and ("exec", 0) in p.w:
                n = max(n, 5)
            if c.op.startswith(("v_readlane", "v_readfirstlane")) and wv & c.r:
                n = max(n, 1)
            if p.op.startswith(TRANS) and wv & c.r:
                n = max(n, 1)
            if ws & c.r:
                n = max(n, 4 if c.op.startswith(("v_readlane", "v_writelane", "v_div_fmas")) else 2)
            if ("exec", 0) in p.w and c.op.startswith(("v_readlane", "v_readfirstlane", "v_writelane", "v_permlane")):
                n = max(n, 4)
            if ("sdwa" in p.op or "op_sel" in p.mods or "dst_sel" in p.mods) and wv & (c.r | c.w):
                n = max(n, 1)
        if c.kind == "vmem" and ws & c.r:
            n = max(n, 5)
    if p.kind == "mfma":
        big = p.passes == 8
        if c.kind == "mfma":
            if p.w & c.srcAB:
                n = max(n, 12 if big else 8)
            if p.w & c.srcC:
                if not (p.w == c.srcC and p.op == c.op):
                    n = max(n, 10 if big else 6)
            elif p.w & c.w:
                n = max(n, 10 if big else 6)
        elif c.kind == "valu":
            if p.w & (c.r | c.w):
                n = max(n, 12 if big else 8)
            if p.srcC & c.w:
                n = max(n, 7 if big else 3)
        elif c.kind in ("vmem", "ds"):
            if p.w & (c.r | c.w):
                n = max(n, 12 if big else 8)
    if p.kind == "vmem" and p.stdata:
        if p.stdata & c.w:
            n = max(n, 2 if c.kind in ("valu", "mfma") else 1)
    if p.kind == "salu" and ("m0", 0) in p.w and ("m0", 0) in c.r and c.kind in ("vmem", "ds"):
        n = max(n, 1)
    return n

class K:
    def __init__(self):
        self.lines = []
        self.uid = 0
    def __call__(self, s):
        for ln in s.split("\n"):
            ln = ln.strip()
            if ln:
                self.lines.append(ln)
    def label(self, name):
        self.lines.append(name + ":")
    def newlabel(self, base="L"):
        self.uid += 1
        return "%s_%d" % (base, self.uid)
    def fence(self):
        self.lines.append("s_nop 11")
    def finalize(self, report=False):
        out = []
        hist = []
        now = 0
        mf_free = 0
        for ln in self.lines:
            t = ln.split(";")[0].strip()
            if not t or t.endswith(":") or t.startswith("."):
                out.append(ln if (t.endswith(":") or t.startswith(".")) else "    " + ln)
                continue
            c = Ins(ln)
            pad = 0
            for i in range(len(hist) - 1, -1, -1):
                p = hist[i]
                n = need(p, c)
                if n == 0:
                    continue
                tt = 0; lastm = None
                for q in hist[i:] + [c]:
                    if q.kind == "mfma" and lastm is not None:
                        tt = max(tt, lastm)
                    if q is c:
                        break
                    if q.kind == "mfma":
                        lastm = tt + 4 * q.passes
                    tt += 4 * q.states()
                if tt < 4 * (n + 1):
                    seq = 0; lastm = None
                    for q in hist[i:]:
                        if q.kind == "mfma" and lastm is not None:
                            seq = max(seq, lastm)
                        if q.kind == "mfma":
                            lastm = seq + 4 * q.passes
                        seq += 4 * q.states()
                    pad = max(pad, (4 * (n + 1) - seq + 3) // 4)
            if pad > 0:
                out.append("    s_nop %d" % (pad - 1))
                hist.append(Ins("s_nop %d" % (pad - 1)))
            out.append("    " + ln)
            hist.append(c)
            if c.op in ("s_branch", "s_endpgm", "s_setpc_b64"):
                hist = []
            if len(hist) > 14:
                hist = hist[-14:]
        return "\n".join(out) + "\n"

def vr(a, n=1):
    return "v%d" % a if n == 1 else "v[%d:%d]" % (a, a + n - 1)
def ar(a, n=1):
    return "a%d" % a if n == 1 else "a[%d:%d]" % (a, a + n - 1)
def sr(a, n=1):
    return "s%d" % a if n == 1 else "s[%d:%d]" % (a, a + n - 1)
```

```python
KB = 1024; MB = 1024 * 1024
NSEG = 64; NH = 32
H_OFF   = [0 * MB, 2 * MB]
X1_OFF  = [4 * MB, 6 * MB]
X2_OFF  = 8 * MB
R_OFF   = [10 * MB, 10 * MB + 8 * KB]
FLG_OFF = 10 * MB + 64 * KB
FLG_SIZE = 192 * KB
MEM_OFF = [11 * MB, 12 * MB, 13 * MB]
PC_OFF  = [14 * MB, 15 * MB, 16 * MB]
MOE_OFF = 17 * MB
STAMP_OFF = 18 * MB
PT_OFF  = 20 * MB
KVM_OFF = [40 * MB, 56 * MB, 72 * MB]
QKV_OFF = [96 * MB, 144 * MB]
WS_SIZE = 256 * MB
FT_OFF  = 0
FM_OFF  = 16 * KB
L_WO = 0
L_KX = 128 * KB
L_VX = 136 * KB
L_QK = 144 * KB
L_O  = 148 * KB
L_TO = 128 * KB
L_ROW = 136 * KB
L_MOE = 144 * KB
L_MISC = 156 * KB
LDS_SIZE = 160 * KB
```

```python
import sys, math
from asmlib import K, vr, ar, sr
from layout import *

NAME = "interleave_layers__memory_aug_recurrent_mem_tr__moe_arch_mod__prompt"

SRD_A = 4
SRD_WS = 8
SRD_DBG = 12
P_X, P_MEM0, P_WQ, P_WK, P_WV, P_WO = 16, 18, 20, 22, 24, 26
P_WR, P_WG, P_WU, P_WD, P_OUT, P_DBG, P_WS = 32, 34, 36, 38, 40, 42, 44
S_W, S_H, S_G, S_BUD = 46, 47, 48, 49
S_BAR = 50
S_SEG, S_LAY, S_CNT = 51, 52, 53
S_T = 56
S_C = 80
WS = sr(SRD_WS, 4); SA = sr(SRD_A, 4); DBG = sr(SRD_DBG, 4)

SCALE_LOG2E = (128 ** -0.5) * math.log2(math.e)
def f32(x):
    import struct
    return "0x%08x" % struct.unpack("<I", struct.pack("<f", x))[0]
NEGBIG = f32(-1e30)

def wq(ks, t, half=None):
    b = (ks * 2 + t) * 8
    return ar(b, 8) if half is None else ar(b + 4 * half, 4)
def wk(ks, t, half=None):
    b = 128 + (ks * 2 + t) * 8
    return ar(b, 8) if half is None else ar(b + 4 * half, 4)
def wv(ks, t, half=None):
    b = 128 + (ks * 2 + t) * 8
    return vr(b, 8) if half is None else vr(b + 4 * half, 4)

V_L16 = 0
V_LANE = 1

class Gen:
    def __init__(self, fast=True, stop=None, stamps=False):
        self.k = K()
        self.fast = fast
        self.loc = "" if fast else " sc1"
        self.stop = stop
        self.stamps = stamps

    def srd(self, ptr, nbytes):
        k = self.k
        k(f"""s_mov_b32 s{SRD_A}, s{ptr}
              s_mov_b32 s{SRD_A+1}, s{ptr+1}
              s_mov_b32 s{SRD_A+2}, {nbytes}
              s_mov_b32 s{SRD_A+3}, 0x20000""")

    def budget(self, retry):
        self.k(f"""s_sub_u32 s{S_BUD}, s{S_BUD}, 1
                   s_cmp_gt_i32 s{S_BUD}, 0
                   s_cbranch_scc1 {retry}
                   s_branch L_abort""")

    def wsum(self, x, t):
        k = self.k
        for r in (8, 4, 2, 1):
            k(f"v_add_f32_dpp v{x}, v{x}, v{x} row_ror:{r} row_mask:0xf bank_mask:0xf")
        k(f"""v_mov_b32 v{t}, v{x}
              v_permlane16_swap_b32 v{x}, v{t}
              v_add_f32 v{x}, v{x}, v{t}
              v_mov_b32 v{t}, v{x}
              v_permlane32_swap_b32 v{x}, v{t}
              v_add_f32 v{x}, v{x}, v{t}""")

    def unpack8(self, dst, src):
        k = self.k
        for q in range(4):
            k(f"v_lshlrev_b32 v{dst+2*q}, 16, v{src+q}")
            k(f"v_and_b32 v{dst+2*q+1}, 0xffff0000, v{src+q}")

    def pack8(self, dst, src):
        for q in range(4):
            self.k(f"v_cvt_pk_bf16_f32 v{dst+q}, v{src+2*q}, v{src+2*q+1}")

    def round1(self, x):
        self.k(f"""v_cvt_pk_bf16_f32 v{x}, v{x}, v{x}
                   v_and_b32 v{x}, 0xffff0000, v{x}""")

    def layernorm(self, x, ypk, tmp):
        k = self.k
        d = tmp; s = tmp + 8; t = tmp + 9; m = tmp + 10; q = tmp + 11
        k(f"v_add_f32 v{s}, v{x}, v{x+1}")
        k(f"v_add_f32 v{t}, v{x+2}, v{x+3}")
        k(f"v_add_f32 v{m}, v{x+4}, v{x+5}")
        k(f"v_add_f32 v{q}, v{x+6}, v{x+7}")
        k(f"v_add_f32 v{s}, v{s}, v{t}")
        k(f"v_add_f32 v{m}, v{m}, v{q}")
        k(f"v_add_f32 v{s}, v{s}, v{m}")
        self.wsum(s, t)
        k(f"v_mul_f32 v{m}, {f32(1.0/512)}, v{s}")
        for j in range(8):
            k(f"v_sub_f32 v{d+j}, v{x+j}, v{m}")
        k(f"v_mul_f32 v{s}, v{d}, v{d}")
        k(f"v_mul_f32 v{q}, v{d+1}, v{d+1}")
        for j in range(2, 8, 2):
            k(f"v_fmac_f32 v{s}, v{d+j}, v{d+j}")
            k(f"v_fmac_f32 v{q}, v{d+j+1}, v{d+j+1}")
        k(f"v_add_f32 v{s}, v{s}, v{q}")
        self.round1(m)
        self.wsum(s, t)
        k(f"v_mul_f32 v{s}, {f32(1.0/512)}, v{s}")
        self.round1(s)
        k(f"v_add_f32 v{s}, {f32(1e-5)}, v{s}")
        self.round1(s)
        k(f"v_sqrt_f32 v{s}, v{s}")
        for j in range(8):
            k(f"v_sub_f32 v{d+j}, v{x+j}, v{m}")
        self.round1(s)
        k(f"v_rcp_f32 v{s}, v{s}")
        self.pack8(ypk, d)
        self.unpack8(d, ypk)
        for j in range(8):
            k(f"v_mul_f32 v{d+j}, v{d+j}, v{s}")
        self.pack8(ypk, d)

    def gbarrier(self):
        k = self.k
        L = k.newlabel("L_gb"); D = k.newlabel("L_gbd")
        k(f"""s_waitcnt vmcnt(0) lgkmcnt(0)
              s_barrier
              s_add_u32 s{S_BAR}, s{S_BAR}, 256
              s_cmp_lg_u32 s{S_W}, 0
              s_cbranch_scc1 {D}
              v_mov_b32 v124, 128
              v_mov_b32 v125, 1
              s_mov_b64 exec, 1
              buffer_atomic_add v125, v124, {DBG}, 0 offen
              s_mov_b64 exec, -1""")
        k.label(L)
        k(f"""buffer_load_dword v125, v124, {DBG}, 0 offen sc1
              s_waitcnt vmcnt(0)
              v_readfirstlane_b32 s{S_T}, v125
              s_cmp_ge_u32 s{S_T}, s{S_BAR}
              s_cbranch_scc1 {D}
              s_sleep 4""")
        self.budget(L)
        k.label(D)
        k("s_barrier")

    def stamp(self, idx):
        if self.stamps:
            self.k(f"s_memtime s[{84+2*idx}:{85+2*idx}]")

    def prologue(self):
        k = self.k
        k(f"""s_cmp_ge_u32 s2, 256
              s_cbranch_scc1 L_abort
              s_load_dwordx16 s[16:31], s[0:1], 0
              s_load_dwordx8 s[32:39], s[0:1], 64
              s_load_dwordx4 s[40:43], s[0:1], 96
              s_load_dwordx2 s[44:45], s[0:1], 112
              v_lshrrev_b32 v2, 6, v0
              v_and_b32 v{V_LANE}, 63, v0
              v_readfirstlane_b32 s{S_W}, v2
              v_lshlrev_b32 v{V_L16}, 4, v{V_LANE}
              s_getreg_b32 s{S_G}, hwreg(HW_REG_XCC_ID)
              s_and_b32 s{S_G}, s{S_G}, 7
              s_mov_b32 s{S_BUD}, 100000
              s_mov_b32 s{S_BAR}, 0
              s_mov_b32 s{S_C}, {f32(SCALE_LOG2E)}
              s_waitcnt lgkmcnt(0)
              s_mov_b32 s{SRD_WS}, s{P_WS}
              s_mov_b32 s{SRD_WS+1}, s{P_WS+1}
              s_mov_b32 s{SRD_WS+2}, {WS_SIZE}
              s_mov_b32 s{SRD_WS+3}, 0x20000
              s_mov_b32 s{SRD_DBG}, s{P_DBG}
              s_mov_b32 s{SRD_DBG+1}, s{P_DBG+1}
              s_mov_b32 s{SRD_DBG+2}, 256
              s_mov_b32 s{SRD_DBG+3}, 0x20000""")
        T = k.newlabel("L_tk")
        k(f"""s_cmp_lg_u32 s{S_W}, 0
              s_cbranch_scc1 {T}
              s_lshl_b32 s{S_T}, s{S_G}, 2
              v_mov_b32 v2, s{S_T}
              v_mov_b32 v3, 1
              s_mov_b64 exec, 1
              buffer_atomic_add v3, v2, {DBG}, 0 offen sc0
              s_waitcnt vmcnt(0)
              v_mov_b32 v4, {L_MISC}
              ds_write_b32 v4, v3
              s_mov_b64 exec, -1
              s_waitcnt lgkmcnt(0)""")
        k.label(T)
        k(f"""s_barrier
              v_mov_b32 v4, {L_MISC}
              ds_read_b32 v3, v4
              s_waitcnt lgkmcnt(0)
              v_readfirstlane_b32 s{S_H}, v3
              s_and_b32 s{S_H}, s{S_H}, 31""")

    def init_ws(self):
        k = self.k
        k(f"""s_lshl_b32 s{S_T}, s2, 12
              s_lshl_b32 s{S_T+1}, s{S_W}, 10
              s_add_u32 s{S_T}, s{S_T}, s{S_T+1}
              v_add_u32 v2, s{S_T}, v{V_L16}
              v_mov_b32 v4, -1
              v_mov_b32 v5, -1
              v_mov_b32 v6, -1
              v_mov_b32 v7, -1
              v_mov_b32 v8, 0
              v_mov_b32 v9, 0
              v_mov_b32 v10, 0
              v_mov_b32 v11, 0""")
        k(f"""v_cmp_gt_u32 vcc, {512*KB}, v2
              v_mov_b32 v3, {PC_OFF[0] - 512*KB}
              v_mov_b32 v12, {MEM_OFF[0] + 8*KB}
              v_cndmask_b32 v3, v3, v12, vcc
              v_add_u32 v3, v3, v2""")
        for c in range(3):
            k(f"s_mov_b32 s{S_T}, {c*MB}")
            k(f"buffer_store_dwordx4 v[4:7], v3, {WS}, s{S_T} offen sc1")
        k(f"""v_cmp_gt_u32 vcc, {FLG_SIZE}, v2
              v_add_u32 v3, {FLG_OFF}, v2
              v_mov_b32 v12, 0x80000000
              v_cndmask_b32 v3, v12, v3, vcc
              buffer_store_dwordx4 v[8:11], v3, {WS}, 0 offen sc1""")
        self.srd(P_X, 2048 * 1024)
        k(f"""s_lshl_b32 s{S_T}, s2, 3
              s_lshl_b32 s{S_T+1}, s{S_W}, 1
              s_add_u32 s{S_T}, s{S_T}, s{S_T+1}
              s_lshl_b32 s{S_T+1}, s{S_T}, 10
              buffer_load_dwordx4 v[24:27], v{V_L16}, {SA}, s{S_T+1} offen
              buffer_load_dwordx4 v[28:31], v{V_L16}, {SA}, s{S_T+1} offen offset:1024""")
        self.hfrag_voff(2, 3)
        k(f"""s_lshr_b32 s{S_T+1}, s{S_T}, 5
              s_lshl_b32 s{S_T+1}, s{S_T+1}, 15
              s_bfe_u32 s{S_T+2}, s{S_T}, 0x10004
              s_lshl_b32 s{S_T+2}, s{S_T+2}, 10
              s_add_u32 s{S_T+1}, s{S_T+1}, s{S_T+2}
              s_and_b32 s{S_T+2}, s{S_T}, 15
              s_lshl_b32 s{S_T+2}, s{S_T+2}, 4
              s_add_u32 s{S_T+1}, s{S_T+1}, s{S_T+2}
              s_add_u32 s{S_T+1}, s{S_T+1}, {H_OFF[0]}
              s_waitcnt vmcnt(0)""")
        for i in range(2):
            self.unpack8(32, 24 + 4 * i)
            self.layernorm(32, 40 + 4 * i, 48)
            k(f"buffer_store_dwordx4 {vr(40+4*i,4)}, v2, {WS}, s{S_T+1} offen offset:{16*i} sc1")
        D = k.newlabel("L_m0")
        self.srd(P_MEM0, 8192)
        k(f"""s_cmp_ge_u32 s2, 2
              s_cbranch_scc1 {D}
              s_lshl_b32 s{S_T}, s2, 2
              s_add_u32 s{S_T}, s{S_T}, s{S_W}          ; ks
              v_and_b32 v2, 7, v{V_LANE}
              v_lshlrev_b32 v2, 10, v2                   ; m*1024
              v_lshrrev_b32 v3, 4, v{V_LANE}
              v_lshl_add_u32 v2, v3, 5, v2               ; + ga*32
              s_lshl_b32 s{S_T+1}, s{S_T}, 7             ; ks*128
              buffer_load_dwordx4 v[24:27], v2, {SA}, s{S_T+1} offen
              buffer_load_dwordx4 v[28:31], v2, {SA}, s{S_T+1} offen offset:16
              v_and_b32 v3, 8, v{V_LANE}
              v_cmp_eq_u32 vcc, 0, v3
              v_mov_b32 v4, 0x07060302
              v_mov_b32 v5, 0x05040100
              v_cndmask_b32 v4, v4, v5, vcc
              s_lshl_b32 s{S_T+1}, s{S_T}, 10
              s_waitcnt vmcnt(0)""")
        for q in range(4):
            k(f"v_perm_b32 v{32+q}, v{25+2*q}, v{24+2*q}, v4")
        for c in range(3):
            k(f"s_add_u32 s{S_T+2}, s{S_T+1}, {MEM_OFF[c]}")
            k(f"buffer_store_dwordx4 v[32:35], v{V_L16}, {WS}, s{S_T+2} offen sc1")
        k.label(D)

    def hfrag_voff(self, dst, t):
        self.k(f"""v_lshrrev_b32 v{dst}, 2, v{V_LANE}
                   v_lshlrev_b32 v{dst}, 11, v{dst}
                   v_and_b32 v{t}, 3, v{V_LANE}
                   v_lshl_add_u32 v{dst}, v{t}, 8, v{dst}""")

    def load_weights(self):
        k = self.k
        NB = 7
        TB = 24
        k(f"""v_and_b32 v2, 15, v{V_LANE}
              v_lshlrev_b32 v2, 2, v2                    ; c*4
              v_lshrrev_b32 v3, 4, v{V_LANE}
              v_lshl_add_u32 v4, v3, 16, v2              ; g*8 rows*8192 + c*4
              v_lshl_add_u32 v5, v3, 13, v2              ; g*8 rows*1024 + c*4
              s_lshl_b32 s{S_T+2}, s{S_H}, 8
              s_lshl_b32 s{S_T+1}, s{S_W}, 6
              s_add_u32 s{S_T+2}, s{S_T+2}, s{S_T+1}     ; h*256 + w*64
              s_lshl_b32 s{S_T+3}, s{S_H}, 17
              s_add_u32 s{S_T+3}, s{S_T+3}, s{S_T+1}     ; h*128KB + w*64
              s_lshl_b32 s{S_T+4}, s{S_W}, 15
              v_add_u32 v6, s{S_T+4}, v{V_L16}
              s_mov_b32 s{S_T+5}, 0x05040100
              s_mov_b32 s{S_T+6}, 0x07060302""")
        groups = []
        for m, ptr in (("k", P_WK), ("v", P_WV), ("q", P_WQ)):
            for kk in range(16):
                groups.append((m, ptr, kk, None))
        for u in range(4):
            for kk in range(4):
                groups.append(("o", P_WO, kk, u))
        def issue(i):
            m, ptr, kk, u = groups[i]
            b = TB + (i % NB) * 8
            if i == 0 or groups[i - 1][0] != m:
                self.srd(ptr, 4 * MB)
            for j in range(8):
                if m != "o":
                    k(f"s_add_u32 s{S_T}, s{S_T+2}, {(32*kk+j)*8192}")
                    k(f"buffer_load_dword v{b+j}, v4, {SA}, s{S_T} offen")
                else:
                    if j % 4 == 0:
                        k(f"s_add_u32 s{S_T}, s{S_T+3}, {(32*kk+j)*1024 + 256*u}")
                    k(f"buffer_load_dword v{b+j}, v5, {SA}, s{S_T} offen offset:{(j%4)*1024}")
        def consume(i):
            m, ptr, kk, u = groups[i]
            b = TB + (i % NB) * 8
            for t in range(2):
                for q in range(4):
                    sel = f"s{S_T+5+t}"
                    if m == "v":
                        d = 128 + ((kk >> 1) * 2 + t) * 8 + 4 * (kk & 1) + q
                        k(f"v_perm_b32 v{d}, v{b+2*q+1}, v{b+2*q}, {sel}")
                    else:
                        k(f"v_perm_b32 v{80+4*t+q}, v{b+2*q+1}, v{b+2*q}, {sel}")
            if m in "qk":
                for t in range(2):
                    for q in range(4):
                        d = (128 if m == "k" else 0) + ((kk >> 1) * 2 + t) * 8 + 4 * (kk & 1) + q
                        k(f"v_accvgpr_write_b32 a{d}, v{80+4*t+q}")
            if m == "o":
                for t in range(2):
                    k(f"ds_write_b128 v6, {vr(80+4*t,4)} offset:{((u*2+t)*4+kk)*1024}")
                k("s_waitcnt lgkmcnt(0)")
        n = len(groups)
        for i in range(NB):
            issue(i)
        for i in range(n):
            left = min(n - 1 - i, NB - 1)
            k(f"s_waitcnt vmcnt({left*8})")
            consume(i)
            if i + NB < n:
                issue(i + NB)

    def qkv_base(self, dst):
        self.k(f"""s_lshl_b32 s{dst}, s{S_SEG}, 5
                   s_add_u32 s{dst}, s{dst}, s{S_H}
                   s_mul_i32 s{dst}, s{dst}, {24*KB}
                   s_mul_i32 s{dst+1}, s{S_LAY}, {QKV_OFF[1]-QKV_OFF[0]}
                   s_add_u32 s{dst}, s{dst}, s{dst+1}
                   s_add_u32 s{dst}, s{dst}, {QKV_OFF[0]}""")

    def t1(self):
        k = self.k
        ACC = 24; HB = 72; ND = 7
        aq = lambda t, u: ACC + (t * 2 + u) * 4
        ak = lambda t, u: ACC + 16 + (t * 2 + u) * 4
        av = lambda t, u: ACC + 32 + (t * 2 + u) * 4
        k(f"""s_lshl_b32 s{S_T}, s{S_SEG}, 15
              s_lshl_b32 s{S_T+1}, s{S_LAY}, 21
              s_add_u32 s{S_T}, s{S_T}, s{S_T+1}""")
        assert H_OFF[0] == 0 and H_OFF[1] == 2 * MB
        def issue(kk):
            b = HB + (kk % ND) * 8
            if kk % 2 == 0 and kk > 0:
                k(f"s_add_u32 s{S_T}, s{S_T}, 4096")
            for u in range(2):
                k(f"buffer_load_dwordx4 {vr(b+4*u,4)}, v{V_L16}, {WS}, s{S_T} offen offset:{(kk%2)*2048+u*1024} sc1")
        for kk in range(ND):
            issue(kk)
        self.qkv_base(S_T + 2)
        k(f"""s_lshl_b32 s{S_T+4}, s{S_W}, 10
              s_add_u32 s{S_T+5}, s{S_T+2}, s{S_T+4}     ; K u0
              s_add_u32 s{S_T+6}, s{S_T+5}, 4096         ; K u1
              s_add_u32 s{S_T+7}, s{S_T+5}, {16*KB}      ; Q u0
              s_add_u32 s{S_T+8}, s{S_T+5}, {20*KB}      ; Q u1
              s_add_u32 s{S_T+9}, s{S_T+5}, s{S_T+4}
              s_add_u32 s{S_T+9}, s{S_T+9}, {8*KB}       ; V""")
        for kk in range(16):
            b = HB + (kk % ND) * 8
            left = min(15 - kk, ND - 1)
            k(f"s_waitcnt vmcnt({2*left})")
            ks, hf = kk >> 1, kk & 1
            for t in range(2):
                for u in range(2):
                    h = vr(b + 4 * u, 4)
                    for acc, w, tr in ((ak, wk, True), (av, wv, False), (aq, wq, True)):
                        d = vr(acc(t, u), 4)
                        c = "0" if kk == 0 else d
                        a_, b_ = (w(ks, t, hf), h) if tr else (h, w(ks, t, hf))
                        k(f"v_mfma_f32_16x16x32_bf16 {d}, {a_}, {b_}, {c}")
            if kk + ND < 16:
                issue(kk + ND)
        P = HB
        for i, (acc, so) in enumerate(((ak, S_T + 5), (aq, S_T + 7))):
            for u in range(2):
                p = P + (i * 2 + u) * 4
                for r in range(4):
                    k(f"v_cvt_pk_bf16_f32 v{p+r}, v{acc(0,u)+r}, v{acc(1,u)+r}")
                k(f"buffer_store_dwordx4 {vr(p,4)}, v{V_L16}, {WS}, s{so+u} offen sc1")
            if i == 0:
                for t in range(2):
                    p = P + 16 + t * 4
                    for u in range(2):
                        k(f"v_cvt_pk_bf16_f32 v{p+2*u}, v{av(t,u)}, v{av(t,u)+1}")
                        k(f"v_cvt_pk_bf16_f32 v{p+2*u+1}, v{av(t,u)+2}, v{av(t,u)+3}")
                    k(f"buffer_store_dwordx4 {vr(p,4)}, v{V_L16}, {WS}, s{S_T+9} offen offset:{t*1024} sc1")

    def make_sel(self, dst, t):
        k = self.k
        k(f"""v_and_b32 v{t}, 15, v{V_LANE}
              v_and_b32 v{t+1}, 1, v{V_LANE}
              v_lshlrev_b32 v{t+1}, 4, v{t+1}
              v_mov_b32 v{t+2}, 0x3f80
              v_lshlrev_b32 v{t+2}, v{t+1}, v{t+2}
              v_lshrrev_b32 v{t}, 1, v{t}""")
        for q in range(4):
            k(f"v_cmp_eq_u32 vcc, {q}, v{t}")
            k(f"v_cndmask_b32 v{dst+q}, 0, v{t+2}, vcc")

    def make_maskc(self, dst):
        k = self.k
        k(f"""v_cmp_gt_u32 vcc, 32, v{V_LANE}
              v_mov_b32 v{dst+1}, {NEGBIG}
              v_cndmask_b32 v{dst}, 0, v{dst+1}, vcc
              v_mov_b32 v{dst+1}, v{dst}
              v_mov_b32 v{dst+2}, v{dst}
              v_mov_b32 v{dst+3}, v{dst}""")

    def softmax(self, S, P, t):
        k = self.k
        k(f"""v_max3_f32 v{t}, v{S}, v{S+1}, v{S+2}
              v_max3_f32 v{t+1}, v{S+3}, v{S+4}, v{S+5}
              v_max3_f32 v{t}, v{S+6}, v{S+7}, v{t}
              v_max3_f32 v{t+1}, v{S+8}, v{S+9}, v{t+1}
              v_max3_f32 v{t}, v{S+10}, v{S+11}, v{t}
              v_max_f32 v{t}, v{t}, v{t+1}
              v_mov_b32 v{t+1}, v{t}
              v_permlane16_swap_b32 v{t}, v{t+1}
              v_max_f32 v{t}, v{t}, v{t+1}
              v_mov_b32 v{t+1}, v{t}
              v_permlane32_swap_b32 v{t}, v{t+1}
              v_max_f32 v{t}, v{t}, v{t+1}
              v_mul_f32 v{t}, s{S_C}, v{t}""")
        order = [8, 9, 10, 11, 0, 1, 2, 3, 4, 5, 6, 7]
        k(f"v_fma_f32 v{S+order[0]}, v{S+order[0]}, s{S_C}, -v{t}")
        for n, i in enumerate(order):
            if n + 1 < 12:
                j = order[n + 1]
                k(f"v_fma_f32 v{S+j}, v{S+j}, s{S_C}, -v{t}")
            k(f"v_exp_f32 v{S+i}, v{S+i}")
            if n == 4:
                k(f"""v_cvt_pk_bf16_f32 v{P+4}, v{S+8}, v{S+9}
                      v_cvt_pk_bf16_f32 v{P+5}, v{S+10}, v{S+11}
                      v_cvt_pk_bf16_f32 v{P+6}, v{S+8}, v{S+9}
                      v_cvt_pk_bf16_f32 v{P+7}, v{S+10}, v{S+11}""")
            if n == 6:
                k(f"""v_permlane32_swap_b32 v{P+6}, v{P+4}
                      v_permlane32_swap_b32 v{P+7}, v{P+5}""")
        for q in range(4):
            k(f"v_cvt_pk_bf16_f32 v{P+q}, v{S+2*q}, v{S+2*q+1}")

    def chain(self, c):
        k = self.k
        IDX, QKW, QKR0, QKR1, OW, PST, MST, WOB, OB = 2, 3, 4, 5, 6, 7, 8, 9, 10
        HALF = 11
        SEL, MASKC, ONES = 12, 16, 20
        M, KX, VX, QK, VA, T = 24, 56, 88, 96, 112, 120
        sMEM, sPC, sRD, sKV, sKVM, sRST = S_T + 8, S_T + 9, S_T + 10, S_T + 11, S_T + 12, S_T + 13
        k(f"""v_and_b32 v{T}, 15, v{V_LANE}          ; c
              v_lshrrev_b32 v{T+1}, 4, v{V_LANE}     ; g
              v_and_b32 v{T+2}, 8, v{V_LANE}
              v_cmp_eq_u32 vcc, 0, v{T+2}
              v_mov_b32 v{IDX}, 0xdddd
              v_mov_b32 v{T+3}, 0x8888
              v_cndmask_b32 v{IDX}, v{IDX}, v{T+3}, vcc""")
        k(f"""v_lshrrev_b32 v{T+2}, 1, v{T}           ; b
              v_bfe_u32 v{T+3}, v{T}, 2, 1
              v_xor_b32 v{T+3}, v{T+3}, v{T+2}
              v_lshlrev_b32 v{QKW}, 7, v{T+3}
              v_and_b32 v{T+3}, 1, v{T}
              v_lshl_add_u32 v{QKW}, v{T+3}, 6, v{QKW}
              v_xor_b32 v{T+3}, v{T+1}, v{T+2}
              v_and_b32 v{T+3}, 3, v{T+3}
              v_lshl_add_u32 v{QKW}, v{T+3}, 4, v{QKW}
              s_lshl_b32 s{S_T}, s{S_W}, 10
              s_add_u32 s{S_T}, s{S_T}, {L_QK}
              v_add_u32 v{QKW}, s{S_T}, v{QKW}""")
        for hh, R in ((0, QKR0), (1, QKR1)):
            k(f"""v_lshlrev_b32 v{T+2}, 1, v{T+1}
                  v_add_u32 v{T+2}, {hh}, v{T+2}          ; b
                  v_and_b32 v{T+3}, 1, v{T+1}
                  v_xor_b32 v{T+3}, v{T+3}, v{T+2}
                  v_lshlrev_b32 v{R}, 7, v{T+3}
                  v_bfe_u32 v{T+3}, v{T}, 3, 1
                  v_lshl_add_u32 v{R}, v{T+3}, 6, v{R}
                  v_xor_b32 v{T+3}, v{T}, v{T+2}
                  v_and_b32 v{T+3}, 3, v{T+3}
                  v_lshl_add_u32 v{R}, v{T+3}, 4, v{R}
                  v_bfe_u32 v{T+3}, v{T}, 2, 1
                  v_lshl_add_u32 v{R}, v{T+3}, 3, v{R}
                  v_add_u32 v{R}, {L_QK}, v{R}""")
        k(f"""v_lshrrev_b32 v{T+2}, 1, v{T+1}
              v_lshlrev_b32 v{OW}, 8, v{T+2}
              v_and_b32 v{T+2}, 7, v{T}
              v_lshl_add_u32 v{OW}, v{T+2}, 4, v{OW}
              v_and_b32 v{T+2}, 1, v{T+1}
              v_lshl_add_u32 v{OW}, v{T+2}, 3, v{OW}
              v_and_b32 v{T+2}, 8, v{T}
              v_lshl_add_u32 v{OW}, v{T+2}, 8, v{OW}
              s_lshl_b32 s{S_T}, s{S_W}, 9
              s_add_u32 s{S_T}, s{S_T}, {L_O}
              v_add_u32 v{OW}, s{S_T}, v{OW}""")
        k(f"""v_lshrrev_b32 v{T+2}, 1, v{T+1}
              v_lshlrev_b32 v{PST}, 13, v{T+2}
              v_and_b32 v{T+2}, 1, v{T+1}
              v_lshl_add_u32 v{PST}, v{T+2}, 7, v{PST}
              v_bfe_u32 v{T+2}, v{T}, 3, 1
              v_lshl_add_u32 v{PST}, v{T+2}, 6, v{PST}
              v_and_b32 v{T+2}, 3, v{T}
              v_lshl_add_u32 v{PST}, v{T+2}, 4, v{PST}
              v_bfe_u32 v{T+2}, v{T}, 2, 1
              v_lshl_add_u32 v{PST}, v{T+2}, 3, v{PST}
              s_lshl_b32 s{S_T}, s{S_W}, 14
              s_lshl_b32 s{S_T+1}, s{S_H}, 8
              s_add_u32 s{S_T}, s{S_T}, s{S_T+1}
              v_add_u32 v{PST}, s{S_T}, v{PST}""")
        k(f"""v_and_b32 v{T+2}, 1, v{T+1}
              v_lshlrev_b32 v{MST}, 8, v{T+2}
              v_lshrrev_b32 v{T+2}, 1, v{T+1}
              v_lshl_add_u32 v{MST}, v{T+2}, 6, v{MST}
              v_and_b32 v{T+2}, 3, v{T}
              v_lshl_add_u32 v{MST}, v{T+2}, 4, v{MST}
              v_bfe_u32 v{T+2}, v{T}, 2, 1
              v_lshl_add_u32 v{MST}, v{T+2}, 3, v{MST}
              v_and_b32 v{T+2}, 8, v{T}
              v_lshl_add_u32 v{MST}, v{T+2}, 28, v{MST}
              s_lshr_b32 s{S_T}, s{S_H}, 1
              s_lshl_b32 s{S_T}, s{S_T}, 9
              s_and_b32 s{S_T+1}, s{S_H}, 1
              s_lshl_b32 s{S_T+1}, s{S_T+1}, 7
              s_add_u32 s{S_T}, s{S_T}, s{S_T+1}
              v_add_u32 v{MST}, s{S_T}, v{MST}
              s_lshl_b32 s{S_T}, s{S_W}, 15
              v_add_u32 v{WOB}, s{S_T}, v{V_L16}
              v_add_u32 v{OB}, {L_KX}, v{V_L16}""")
        self.make_sel(SEL, T)
        self.make_maskc(MASKC)
        for q in range(4):
            k(f"v_mov_b32 v{ONES+q}, 0x3f803f80")
        k(f"""s_mov_b32 s{S_SEG}, 0
              s_mov_b32 s{sMEM}, {MEM_OFF[c]}
              s_mov_b32 s{sPC}, {PC_OFF[c]}
              s_lshl_b32 s{sKVM}, s{S_H}, 13
              s_lshl_b32 s{S_T}, s{S_W}, 10
              s_add_u32 s{sKVM}, s{sKVM}, s{S_T}
              s_add_u32 s{sKVM}, s{sKVM}, {KVM_OFF[c]}""")
        self.qkv_base(S_T)
        k(f"""s_lshl_b32 s{S_T+1}, s{S_W}, 11
              s_add_u32 s{sKV}, s{S_T}, s{S_T+1}""")
        def dma():
            k(f"""s_lshl_b32 s{S_T}, s{S_W}, 11
                  s_add_u32 m0, s{S_T}, {L_KX}
                  s_add_u32 s{S_T+1}, s{sKV}, {8*KB}
                  buffer_load_dwordx4 v{V_L16}, {WS}, s{sKV} offen sc1 lds
                  buffer_load_dwordx4 v{V_L16}, {WS}, s{sKV} offen offset:1024 sc1 lds
                  s_add_u32 m0, s{S_T}, {L_VX}
                  s_add_u32 s{sKV}, s{sKV}, {32*24*KB}
                  buffer_load_dwordx4 v{V_L16}, {WS}, s{S_T+1} offen sc1 lds
                  buffer_load_dwordx4 v{V_L16}, {WS}, s{S_T+1} offen offset:1024 sc1 lds""")
        dma()
        LOOP = k.newlabel("L_chain"); POLL = k.newlabel("L_cpoll"); END = k.newlabel("L_cend")
        RP = k.newlabel("L_crp"); NR = k.newlabel("L_cnr"); PB = k.newlabel("L_cpb"); RB = k.newlabel("L_crb")
        k.label(LOOP)
        k("s_waitcnt vmcnt(0)")
        k("s_barrier")
        self.stamp(0)
        for i in range(8):
            k(f"ds_read_b128 {vr(KX+4*i,4)}, v{OB} offset:{i*1024}")
        k(f"s_lshl_b32 s{S_T}, s{S_W}, 11")
        k(f"v_add_u32 v{T}, s{S_T}, v{OB}")
        for t in range(2):
            k(f"ds_read_b128 {vr(VX+4*t,4)}, v{T} offset:{L_VX-L_KX+t*1024}")
        for i in range(24):
            k(f"v_mov_b32 v{QK+i}, 0")
        k(f"s_add_u32 s{S_T}, s{sMEM}, 4096")
        k.label(POLL)
        for i in range(8):
            k(f"buffer_load_dwordx4 {vr(M+4*i,4)}, v{V_L16}, {WS}, s{sMEM if i < 4 else S_T} offen offset:{(i%4)*1024} sc1")
        k("s_waitcnt vmcnt(0)")
        k(f"v_max_u32 v{T}, v{M}, v{M+2}")
        for i in range(1, 8):
            k(f"v_max3_u32 v{T}, v{M+4*i}, v{M+4*i+2}, v{T}")
        k(f"v_cmp_eq_u32 vcc, -1, v{T}")
        k(f"s_cbranch_vccnz {PB}")
        self.stamp(1)
        q_ = lambda t: QK + 8 * t
        k_ = lambda t: QK + 8 * t + 4
        for ks in range(8):
            for t in range(2):
                k(f"v_smfmac_f32_16x16x64_bf16 {vr(q_(t),4)}, {vr(M+4*ks,4)}, {wq(ks,t)}, v{IDX}")
                k(f"v_smfmac_f32_16x16x64_bf16 {vr(k_(t),4)}, {vr(M+4*ks,4)}, {wk(ks,t)}, v{IDX}")
        vlist = [(ks, t) for ks in range(8) for t in range(2)]
        def vs(n):
            for _ in range(n):
                ks, t = vlist.pop(0)
                k(f"v_smfmac_f32_16x16x64_bf16 {vr(VA+4*t,4)}, {vr(M+4*ks,4)}, {wv(ks,t)}, v{IDX}")
        vs(2)
        for t in range(2):
            for r in range(4):
                k(f"v_permlane32_swap_b32 v{q_(t)+r}, v{k_(t)+r}")
            k(f"v_pk_add_f32 {vr(q_(t),2)}, {vr(q_(t),2)}, {vr(k_(t),2)}")
            k(f"v_pk_add_f32 {vr(q_(t)+2,2)}, {vr(q_(t)+2,2)}, {vr(k_(t)+2,2)}")
            k(f"v_cvt_pk_bf16_f32 v{T+2*t}, v{q_(t)}, v{q_(t)+1}")
            k(f"v_cvt_pk_bf16_f32 v{T+2*t+1}, v{q_(t)+2}, v{q_(t)+3}")
        k(f"ds_write_b128 v{QKW}, {vr(T,4)}")
        vs(4)
        k("s_waitcnt lgkmcnt(0)")
        k("s_barrier")
        self.stamp(2)
        F = QK
        for kk in range(4):
            k(f"ds_read_b64_tr_b16 {vr(F+4*kk,2)}, v{QKR0} offset:{kk*1024}")
            k(f"ds_read_b64_tr_b16 {vr(F+4*kk+2,2)}, v{QKR1} offset:{kk*1024}")
        vs(4)
        S = M
        for kk in range(4):
            k(f"s_waitcnt lgkmcnt({6-2*kk})")
            f = vr(F + 4 * kk, 4)
            k(f"v_mfma_f32_16x16x32_bf16 {vr(S,4)}, {vr(KX+4*kk,4)}, {f}, {'0' if kk == 0 else vr(S,4)}")
            k(f"v_mfma_f32_16x16x32_bf16 {vr(S+4,4)}, {vr(KX+16+4*kk,4)}, {f}, {'0' if kk == 0 else vr(S+4,4)}")
            k(f"v_mfma_f32_16x16x32_bf16 {vr(S+8,4)}, {f}, {f}, {vr(MASKC,4) if kk == 0 else vr(S+8,4)}")
        vs(6)
        self.stamp(3)
        k(f"""s_xor_b32 s{sRST}, s{sPC}, {256*KB}
              s_lshl_b32 s{S_T}, s{S_H}, 13
              s_add_u32 s{sRST}, s{sRST}, s{S_T}
              s_add_u32 s{sRD}, s{sPC}, s{S_T}
              s_lshl_b32 s{S_T}, s{S_W}, 11
              s_add_u32 s{sRST}, s{sRST}, s{S_T}""")
        for q in range(4):
            k(f"v_mov_b32 v{T+q}, -1")
        k(f"buffer_store_dwordx4 {vr(T,4)}, v{V_L16}, {WS}, s{sRST} offen{self.loc}")
        k(f"buffer_store_dwordx4 {vr(T,4)}, v{V_L16}, {WS}, s{sRST} offen offset:1024{self.loc}")
        dma()
        slots = [KX, KX + 8, KX + 16, KX + 24, F, F + 8, M + 16, M + 24]
        def wo_read(u, sl):
            for t in range(2):
                for ks in range(2):
                    b = sl[t * 2 + ks]
                    for hf in range(2):
                        k(f"ds_read_b128 {vr(b+4*hf,4)}, v{WOB} offset:{((u*2+t)*4+ks*2+hf)*1024}")
        wo_read(0, slots[0:4])
        P = T
        self.softmax(S, P, M + 12)
        self.stamp(4)
        VM = M + 12
        for t in range(2):
            k(f"v_cvt_pk_bf16_f32 v{VM+2*t}, v{VA+4*t}, v{VA+4*t+1}")
            k(f"v_cvt_pk_bf16_f32 v{VM+2*t+1}, v{VA+4*t+2}, v{VA+4*t+3}")
        k(f"v_mov_b32 v{P+6}, 0x3f003f00")
        k(f"v_mov_b32 v{P+7}, 0x3f003f00")
        O = S; Lr = S + 8
        k(f"v_mfma_f32_16x16x32_bf16 {vr(Lr,4)}, {vr(ONES,4)}, {vr(P,4)}, 0")
        for t in range(2):
            k(f"v_mfma_f32_16x16x32_bf16 {vr(O+4*t,4)}, {vr(VX+4*t,4)}, {vr(P,4)}, 0")
        k(f"v_mfma_f32_16x16x16_bf16 {vr(Lr,4)}, {vr(P+6,2)}, {vr(P+4,2)}, {vr(Lr,4)}")
        for t in range(2):
            k(f"v_mfma_f32_16x16x16_bf16 {vr(O+4*t,4)}, {vr(VM+2*t,2)}, {vr(P+4,2)}, {vr(O+4*t,4)}")
        k(f"s_add_u32 s{S_T}, s{sKVM}, 4096")
        k(f"buffer_store_dwordx4 {vr(VM,4)}, v{V_L16}, {WS}, s{S_T} offen sc1")
        k(f"v_rcp_f32 v{Lr}, v{Lr}")
        k(f"v_mov_b32 v{Lr+1}, v{Lr}")
        for t in range(2):
            k(f"v_pk_mul_f32 {vr(O+4*t,2)}, {vr(O+4*t,2)}, {vr(Lr,2)}")
            k(f"v_pk_mul_f32 {vr(O+4*t+2,2)}, {vr(O+4*t+2,2)}, {vr(Lr,2)}")
            k(f"v_cvt_pk_bf16_f32 v{T+2*t}, v{O+4*t}, v{O+4*t+1}")
            k(f"v_cvt_pk_bf16_f32 v{T+2*t+1}, v{O+4*t+2}, v{O+4*t+3}")
        k(f"ds_write2_b64 v{OW}, {vr(T,2)}, {vr(T+2,2)} offset0:0 offset1:16")
        k(f"""s_lshl_b32 s{S_T}, s{S_W}, 10
              v_add_u32 v{T+4}, s{S_T}, v{QKR0}
              v_add_u32 v{T+5}, s{S_T}, v{QKR1}
              ds_read_b64_tr_b16 {vr(VX,2)}, v{T+4}
              ds_read_b64_tr_b16 {vr(VX+2,2)}, v{T+5}""")
        acc = [VA, M, M + 8, VX]
        for b in acc[:2]:
            for i in range(8):
                k(f"v_mov_b32 v{b+i}, 0")
        k("s_waitcnt lgkmcnt(0) vmcnt(5)")
        k("s_barrier")
        self.stamp(5)
        OA = T
        for ks in range(2):
            k(f"ds_read_b128 {vr(OA+4*ks,4)}, v{OB} offset:{L_O-L_KX+ks*1024}")
        k(f"buffer_store_dwordx4 {vr(VX,4)}, v{V_L16}, {WS}, s{sKVM} offen sc1")
        k(f"s_cmp_eq_u32 s{S_SEG}, 63")
        k(f"s_cbranch_scc1 {END}")
        wo_read(1, slots[4:8])
        for b in acc[2:]:
            for i in range(8):
                k(f"v_mov_b32 v{b+i}, 0")
        def wo_mm(u):
            sl = slots[(u & 1) * 4:(u & 1) * 4 + 4]
            for ks in range(2):
                for t in range(2):
                    k(f"v_smfmac_f32_16x16x64_bf16 {vr(acc[u]+4*t,4)}, {vr(OA+4*ks,4)}, {vr(sl[t*2+ks],8)}, v{IDX}")
        def wo_out(u):
            a = acc[u]
            for r in range(4):
                k(f"v_permlane32_swap_b32 v{a+r}, v{a+4+r}")
            k(f"v_pk_add_f32 {vr(a,2)}, {vr(a,2)}, {vr(a+4,2)}")
            k(f"v_pk_add_f32 {vr(a+2,2)}, {vr(a+2,2)}, {vr(a+6,2)}")
            k(f"v_cvt_pk_bf16_f32 v{a}, v{a}, v{a+1}")
            k(f"v_cvt_pk_bf16_f32 v{a+1}, v{a+2}, v{a+3}")
            k(f"s_add_u32 s{S_T}, s{sPC}, {u*64*KB}")
            k(f"buffer_store_dwordx2 {vr(a,2)}, v{PST}, {WS}, s{S_T} offen{self.loc}")
        k("s_waitcnt lgkmcnt(8)")
        wo_mm(0)
        wo_read(2, slots[0:4])
        k("s_waitcnt lgkmcnt(8)")
        wo_mm(1)
        wo_out(0)
        wo_read(3, slots[4:8])
        k("s_waitcnt lgkmcnt(8)")
        wo_mm(2)
        wo_out(1)
        k("s_waitcnt lgkmcnt(0)")
        wo_mm(3)
        wo_out(2)
        wo_out(3)
        self.stamp(6)
        k(f"""s_add_u32 s{sMEM}, s{sMEM}, 8192
              s_add_u32 s{sKVM}, s{sKVM}, {32*8*KB}
              s_add_u32 s{S_SEG}, s{S_SEG}, 1
              s_xor_b32 s{sPC}, s{sPC}, {256*KB}
              s_cmp_lg_u32 s{S_W}, 0
              s_cbranch_scc1 {NR}
              s_add_u32 s{S_T}, s{sRD}, 4096""")
        k.label(RP)
        for i in range(8):
            k(f"buffer_load_dwordx4 {vr(KX+4*i,4)}, v{V_L16}, {WS}, s{sRD if i < 4 else S_T} offen offset:{(i%4)*1024} sc1")
        for i in range(8):
            k(f"s_waitcnt vmcnt({7-i})")
            k(f"v_mfma_f32_16x16x32_bf16 {vr(T,4)}, {vr(KX+4*i,4)}, {vr(SEL,4)}, {'0' if i == 0 else vr(T,4)}")
        k(f"""v_cvt_pk_bf16_f32 v{T+4}, v{T}, v{T+1}
              v_cvt_pk_bf16_f32 v{T+5}, v{T+2}, v{T+3}
              v_add_f32 v{T}, v{T}, v{T+1}
              v_add_f32 v{T+2}, v{T+2}, v{T+3}
              v_cmp_u_f32 vcc, v{T}, v{T+2}
              s_cbranch_vccnz {RB}
              buffer_store_dwordx2 {vr(T+4,2)}, v{MST}, {WS}, s{sMEM} offen{self.loc}""")
        k.label(NR)
        self.stamp(7)
        if self.stamps:
            self.dump_stamps(8)
        k(f"s_branch {LOOP}")
        k.label(PB)
        self.budget(POLL)
        k.label(RB)
        self.budget(RP)
        k.label(END)
        k.fence()

    def dump_stamps(self, n):
        k = self.k
        k(f"""s_waitcnt lgkmcnt(0)
              s_lshl_b32 s{S_T}, s{S_SEG}, 5
              s_add_u32 s{S_T}, s{S_T}, s{S_H}
              s_lshl_b32 s{S_T}, s{S_T}, 2
              s_add_u32 s{S_T}, s{S_T}, s{S_W}
              s_lshl_b32 s{S_T}, s{S_T}, 6
              s_add_u32 s{S_T}, s{S_T}, {STAMP_OFF}
              v_mov_b32 v126, 0""")
        for i in range(n):
            k(f"v_writelane_b32 v126, s{84+2*i}, {i}")
        k(f"""v_lshlrev_b32 v127, 2, v{V_LANE}
              s_mov_b64 exec, 0xffff
              buffer_store_dword v126, v127, {WS}, s{S_T} offen
              s_mov_b64 exec, -1""")

    def tok_consts(self):
        k = self.k
        self.TMC, self.TX0, self.TX1 = 4, 8, 12
        self.TOW, self.TOB, self.TWO, self.TPT, self.THF, self.TRW, self.TRL = 16, 17, 18, 19, 20, 21, 22
        T = 120
        self.make_maskc(self.TMC)
        k(f"""v_and_b32 v{T}, 15, v{V_LANE}
              v_lshrrev_b32 v{T+1}, 4, v{V_LANE}
              v_lshlrev_b32 v{T+2}, 2, v{T+1}
              v_mov_b32 v{T+3}, {NEGBIG}
              s_and_b32 s{S_T}, s{S_W}, 1
              s_lshl_b32 s{S_T}, s{S_T}, 4
              v_add_u32 v{T+4}, s{S_T}, v{T}""")
        for u in range(2):
            for r in range(4):
                k(f"v_add_u32 v{T+5}, {16*u+r}, v{T+2}")
                k(f"v_cmp_gt_u32 vcc, v{T+5}, v{T+4}")
                k(f"v_cndmask_b32 v{(self.TX0,self.TX1)[u]+r}, 0, v{T+3}, vcc")
        k(f"""s_and_b32 s{S_T}, s{S_W}, 1
              s_lshl_b32 s{S_T}, s{S_T}, 12
              s_lshr_b32 s{S_T+1}, s{S_W}, 1
              s_lshl_b32 s{S_T+1}, s{S_T+1}, 11
              s_add_u32 s{S_T}, s{S_T}, s{S_T+1}
              s_add_u32 s{S_T}, s{S_T}, {L_TO}
              v_add_u32 v{self.TOW}, s{S_T}, v{V_L16}
              v_add_u32 v{self.TOB}, {L_TO}, v{V_L16}
              s_lshl_b32 s{S_T}, s{S_W}, 15
              v_add_u32 v{self.TWO}, s{S_T}, v{V_L16}
              v_lshlrev_b32 v{self.TPT}, 15, v{T}
              v_lshl_add_u32 v{self.TPT}, v{T+1}, 4, v{self.TPT}
              s_lshl_b32 s{S_T}, s{S_W}, 6
              v_add_u32 v{self.TPT}, s{S_T}, v{self.TPT}""")
        self.hfrag_voff(self.THF, T + 5)
        k(f"""v_lshlrev_b32 v{self.TRW}, 5, v{T}
              v_and_b32 v{T+5}, 1, v{T+1}
              v_lshl_add_u32 v{self.TRW}, v{T+5}, 4, v{self.TRW}
              v_lshrrev_b32 v{T+5}, 1, v{T+1}
              v_lshl_add_u32 v{self.TRW}, v{T+5}, 11, v{self.TRW}
              s_lshl_b32 s{S_T}, s{S_W}, 9
              s_add_u32 s{S_T}, s{S_T}, {L_ROW}
              v_add_u32 v{self.TRW}, s{S_T}, v{self.TRW}
              v_lshlrev_b32 v{self.TRL}, 4, v{T}
              v_lshl_add_u32 v{self.TRL}, v{T+1}, 10, v{self.TRL}
              s_lshl_b32 s{S_T}, s{S_W}, 8
              v_add_u32 v{self.TRL}, s{S_T}, v{self.TRL}""")

    def t23(self, s_kvm_chain_base, s_slot):
        k = self.k
        Q, KK, F, V, VM, S, T = 24, 40, 72, 88, 104, 112, 124
        self.qkv_base(S_T)
        k(f"""s_and_b32 s{S_T+1}, s{S_W}, 1
              s_lshl_b32 s{S_T+1}, s{S_T+1}, 12
              s_add_u32 s{S_T+2}, s{S_T}, s{S_T+1}
              s_add_u32 s{S_T+2}, s{S_T+2}, {16*KB}       ; Q[u]
              s_add_u32 s{S_T+3}, s{S_T}, 4096            ; K u1
              s_lshr_b32 s{S_T+1}, s{S_W}, 1
              s_lshl_b32 s{S_T+4}, s{S_T+1}, 12
              s_add_u32 s{S_T+4}, s{S_T+4}, s{S_T}
              s_add_u32 s{S_T+4}, s{S_T+4}, {8*KB}        ; V[2eh..]
              s_lshl_b32 s{S_T+5}, s{S_SEG}, 5
              s_add_u32 s{S_T+5}, s{S_T+5}, s{S_H}
              s_lshl_b32 s{S_T+5}, s{S_T+5}, 13
              s_add_u32 s{S_T+5}, s{S_T+5}, s{s_kvm_chain_base}   ; F
              s_lshl_b32 s{S_T+6}, s{S_T+1}, 11
              s_add_u32 s{S_T+6}, s{S_T+6}, s{S_T+5}
              s_add_u32 s{S_T+6}, s{S_T+6}, 4096          ; vm[2eh..]""")
        ld = lambda d, so, off: k(f"buffer_load_dwordx4 {vr(d,4)}, v{V_L16}, {WS}, s{so} offen offset:{off} sc1")
        for kk in range(4):
            ld(Q + 4 * kk, S_T + 2, kk * 1024)
            ld(KK + 4 * kk, S_T, kk * 1024)
            ld(KK + 16 + 4 * kk, S_T + 3, kk * 1024)
            ld(F + 4 * kk, S_T + 5, kk * 1024)
        for i in range(4):
            ld(V + 4 * i, S_T + 4, i * 1024)
        for i in range(2):
            ld(VM + 4 * i, S_T + 6, i * 1024)
        for kk in range(4):
            k(f"s_waitcnt vmcnt({18-4*kk})")
            q = vr(Q + 4 * kk, 4)
            k(f"v_mfma_f32_16x16x32_bf16 {vr(S,4)}, {vr(KK+4*kk,4)}, {q}, {vr(self.TX0,4) if kk == 0 else vr(S,4)}")
            k(f"v_mfma_f32_16x16x32_bf16 {vr(S+4,4)}, {vr(KK+16+4*kk,4)}, {q}, {vr(self.TX1,4) if kk == 0 else vr(S+4,4)}")
            k(f"v_mfma_f32_16x16x32_bf16 {vr(S+8,4)}, {vr(F+4*kk,4)}, {q}, {vr(self.TMC,4) if kk == 0 else vr(S+8,4)}")
        AR = 56
        def a_read(p, i):
            kk, t = i >> 1, i & 1
            k(f"ds_read_b128 {vr(AR+4*i,4)}, v{self.TWO} offset:{((p*2+t)*4+kk)*1024}")
        for i in range(8):
            a_read(0, i)
        P = 44; ONES = 52; O = 24; Lr = 40
        self.softmax(S, P, T)
        for q in range(4):
            k(f"v_mov_b32 v{ONES+q}, 0x3f803f80")
        k(f"v_mov_b32 v{P+6}, 0x3f003f00")
        k(f"v_mov_b32 v{P+7}, 0x3f003f00")
        k("s_waitcnt vmcnt(0)")
        k(f"v_mfma_f32_16x16x32_bf16 {vr(Lr,4)}, {vr(ONES,4)}, {vr(P,4)}, 0")
        for i in range(4):
            k(f"v_mfma_f32_16x16x32_bf16 {vr(O+4*i,4)}, {vr(V+4*i,4)}, {vr(P,4)}, 0")
        k(f"v_mfma_f32_16x16x16_bf16 {vr(Lr,4)}, {vr(P+6,2)}, {vr(P+4,2)}, {vr(Lr,4)}")
        for i in range(4):
            k(f"v_mfma_f32_16x16x16_bf16 {vr(O+4*i,4)}, {vr(VM+2*i,2)}, {vr(P+4,2)}, {vr(O+4*i,4)}")
        k(f"v_rcp_f32 v{Lr}, v{Lr}")
        k(f"v_mov_b32 v{Lr+1}, v{Lr}")
        for i in range(2):
            for e in range(0, 8, 2):
                k(f"v_pk_mul_f32 {vr(O+8*i+e,2)}, {vr(O+8*i+e,2)}, {vr(Lr,2)}")
            for r in range(4):
                k(f"v_cvt_pk_bf16_f32 v{S+4*i+r}, v{O+8*i+r}, v{O+8*i+4+r}")
            k(f"ds_write_b128 v{self.TOW}, {vr(S+4*i,4)} offset:{i*1024}")
        k(f"""s_lshl_b32 s{S_T}, s{S_H}, 10
              s_add_u32 s{S_T}, s{S_T}, s{s_slot}
              s_add_u32 s{S_T+1}, s{S_T}, {16*32*KB}
              s_waitcnt lgkmcnt(0)
              s_barrier""")
        B = 24
        for kk in range(4):
            for u in range(2):
                k(f"ds_read_b128 {vr(B+(kk*2+u)*4,4)}, v{self.TOB} offset:{(u*4+kk)*1024}")
        ACC = 88; PK = 120
        def out(p):
            a = ACC + (p & 1) * 16
            for u in range(2):
                for r in range(4):
                    k(f"v_cvt_pk_bf16_f32 v{PK+4*u+r}, v{a+4*u+r}, v{a+8+4*u+r}")
                k(f"buffer_store_dwordx4 {vr(PK+4*u,4)}, v{self.TPT}, {WS}, s{S_T+u} offen offset:{p*256}{self.loc}")
        for p in range(4):
            a = ACC + (p & 1) * 16
            for i in range(8):
                kk, t = i >> 1, i & 1
                if p == 0:
                    if t == 0:
                        k(f"s_waitcnt lgkmcnt({6 - 2*kk + i})")
                elif p < 3:
                    k("s_waitcnt lgkmcnt(7)")
                else:
                    k(f"s_waitcnt lgkmcnt({7-i})")
                for u in range(2):
                    d = vr(a + t * 8 + u * 4, 4)
                    k(f"v_mfma_f32_16x16x32_bf16 {d}, {vr(AR+4*i,4)}, {vr(B+(kk*2+u)*4,4)}, {'0' if kk == 0 else d}")
                if p < 3:
                    a_read(p + 1, i)
                if i == 3 and p > 0:
                    out(p - 1)
        out(3)

    def flag_set(self, s_off, loc):
        k = self.k
        D = k.newlabel("L_fs")
        k(f"""s_waitcnt vmcnt(0)
              s_barrier
              s_cmp_lg_u32 s{S_W}, 0
              s_cbranch_scc1 {D}
              v_mov_b32 v124, 0
              v_mov_b32 v125, 1
              s_mov_b64 exec, 1
              buffer_store_dword v125, v124, {WS}, s{s_off} offen{loc}
              s_mov_b64 exec, -1""")
        k.label(D)

    def flags_wait32(self, s_off):
        k = self.k
        L = k.newlabel("L_fw"); D = k.newlabel("L_fwd")
        k(f"""v_and_b32 v124, 31, v{V_LANE}
              v_lshlrev_b32 v124, 2, v124""")
        k.label(L)
        k(f"""buffer_load_dword v125, v124, {WS}, s{s_off} offen sc1
              s_waitcnt vmcnt(0)
              v_cmp_eq_u32 vcc, 0, v125
              s_cbranch_vccz {D}""")
        self.budget(L)
        k.label(D)

    def reduce32(self, s_base):
        k = self.k
        D = 24; SEL = 56; A = 60
        for i in range(8):
            k(f"s_add_u32 s{S_T+7}, s{s_base}, {i*4096}")
            k(f"buffer_load_dwordx4 {vr(D+4*i,4)}, v{self.TRL}, {WS}, s{S_T+7} offen sc1")
        self.make_sel(SEL, 64)
        for i in range(8):
            k(f"s_waitcnt vmcnt({7-i})")
            k(f"v_mfma_f32_16x16x32_bf16 {vr(A,4)}, {vr(SEL,4)}, {vr(D+4*i,4)}, {'0' if i == 0 else vr(A,4)}")
        k(f"""ds_write_b128 v{self.TRW}, {vr(A,4)}
              s_waitcnt lgkmcnt(0)
              s_barrier""")

    def row_addr(self, s_row):
        self.k(f"""s_lshl_b32 s{S_T}, s{s_row}, 10
              s_lshr_b32 s{S_T+1}, s{s_row}, 5
              s_lshl_b32 s{S_T+1}, s{S_T+1}, 15
              s_bfe_u32 s{S_T+2}, s{s_row}, 0x10004
              s_lshl_b32 s{S_T+2}, s{S_T+2}, 10
              s_add_u32 s{S_T+1}, s{S_T+1}, s{S_T+2}
              s_and_b32 s{S_T+2}, s{s_row}, 15
              s_lshl_b32 s{S_T+2}, s{S_T+2}, 4
              s_add_u32 s{S_T+1}, s{S_T+1}, s{S_T+2}
              s_add_u32 s{S_T+1}, s{S_T+1}, {H_OFF[1]}""")

    def finish_row(self, layer, X, PK, tmp):
        k = self.k
        if layer == 0:
            k(f"s_add_u32 s{S_T+2}, s{S_T}, {X2_OFF}")
            k(f"buffer_store_dwordx4 {vr(PK,4)}, v{V_L16}, {WS}, s{S_T+2} offen sc1")
            self.layernorm(X, PK + 4, tmp)
            k(f"buffer_store_dwordx4 {vr(PK+4,4)}, v{self.THF}, {WS}, s{S_T+1} offen sc1")
        else:
            self.srd(P_OUT, 2048 * 1024)
            k(f"buffer_store_dwordx4 {vr(PK,4)}, v{V_L16}, {SA}, s{S_T} offen sc1")

    def t4(self, layer, s_slot):
        k = self.k
        sROW = S_T + 8
        XI, WR = 64 + 8, 64 + 12
        k(f"""s_lshl_b32 s{sROW}, s{S_SEG}, 5
              s_add_u32 s{sROW}, s{sROW}, s{S_H}""")
        self.row_addr(sROW)
        if layer == 0:
            self.srd(P_X, 2048 * 1024)
            k(f"buffer_load_dwordx4 {vr(XI,4)}, v{V_L16}, {SA}, s{S_T} offen")
        else:
            k(f"s_add_u32 s{S_T+2}, s{S_T}, {X2_OFF}")
            k(f"buffer_load_dwordx4 {vr(XI,4)}, v{V_L16}, {WS}, s{S_T+2} offen sc1")
        self.srd(P_WR, 1024)
        k(f"buffer_load_dwordx4 {vr(WR,4)}, v{V_L16}, {SA}, 0 offen")
        k(f"""s_lshl_b32 s{S_T+3}, s{S_SEG}, 7
              s_add_u32 s{S_T+3}, s{S_T+3}, {FLG_OFF + FT_OFF + layer*8*KB}""")
        self.flags_wait32(S_T + 3)
        k(f"""s_lshl_b32 s{S_T+4}, s{S_H}, 15
              s_add_u32 s{S_T+4}, s{S_T+4}, s{s_slot}""")
        self.reduce32(S_T + 4)
        D = k.newlabel("L_t4d")
        k(f"""s_cmp_lg_u32 s{S_W}, 0
              s_cbranch_scc1 {D}""")
        A, X, PK, Y, TM = 24, 32, 40, 48, 56
        k(f"""v_lshlrev_b32 v{TM}, 5, v{V_LANE}
              v_add_u32 v{TM}, {L_ROW}, v{TM}
              ds_read_b128 {vr(A,4)}, v{TM}
              ds_read_b128 {vr(A+4,4)}, v{TM} offset:16""")
        self.unpack8(X, XI)
        k("s_waitcnt lgkmcnt(0)")
        self.pack8(PK, A)
        self.unpack8(A, PK)
        for j in range(8):
            k(f"v_add_f32 v{X+j}, v{X+j}, v{A+j}")
        self.pack8(PK, X)
        k(f"s_add_u32 s{S_T+2}, s{S_T}, {X1_OFF[layer]}")
        k(f"buffer_store_dwordx4 {vr(PK,4)}, v{V_L16}, {WS}, s{S_T+2} offen sc1")
        self.unpack8(X, PK)
        self.layernorm(X, PK + 4, TM)
        self.unpack8(Y, PK + 4)
        self.unpack8(A, WR)
        k(f"v_mul_f32 v{TM}, v{Y}, v{A}")
        for j in range(1, 8):
            k(f"v_fmac_f32 v{TM}, v{Y+j}, v{A+j}")
        for j in range(8):
            k(f"v_add_f32 v{X+j}, v{X+j}, v{Y+j}")
        self.wsum(TM, TM + 1)
        self.round1(TM)
        k(f"""v_ashrrev_i32 v{TM+1}, 31, v{TM}
              v_or_b32 v{TM+1}, 0x80000000, v{TM+1}
              v_xor_b32 v{TM}, v{TM}, v{TM+1}
              v_and_b32 v{TM}, 0xffff0000, v{TM}
              s_sub_u32 s{S_T+2}, 2047, s{sROW}
              v_or_b32 v{TM}, s{S_T+2}, v{TM}
              s_lshl_b32 s{S_T+2}, s{sROW}, 2
              s_add_u32 s{S_T+2}, s{S_T+2}, {R_OFF[layer]}
              v_mov_b32 v{TM+1}, 0
              s_mov_b64 exec, 1
              buffer_store_dword v{TM}, v{TM+1}, {WS}, s{S_T+2} offen sc1
              s_mov_b64 exec, -1""")
        PK2 = 80
        self.pack8(PK2, X)
        self.unpack8(X, PK2)
        self.finish_row(layer, X, PK2, TM + 2)
        k.label(D)

    def moe(self, layer):
        k = self.k
        sKEY, sROW = S_T + 10, S_T + 8
        k(f"s_mov_b32 s{S_T}, {R_OFF[layer]}")
        k(f"s_mov_b32 s{S_T+1}, {R_OFF[layer]+4096}")
        for i in range(8):
            k(f"buffer_load_dwordx4 {vr(24+4*i,4)}, v{V_L16}, {WS}, s{S_T+(i>>2)} offen offset:{(i&3)*1024} sc1")
        k("s_waitcnt vmcnt(0)")
        k("v_max_u32 v24, v24, v25")
        for i in range(26, 56, 2):
            k(f"v_max3_u32 v24, v{i}, v{i+1}, v24")
        for r in (8, 4, 2, 1):
            k(f"v_max_u32_dpp v24, v24, v24 row_ror:{r} row_mask:0xf bank_mask:0xf")
        k(f"""v_mov_b32 v25, v24
              v_permlane16_swap_b32 v24, v25
              v_max_u32 v24, v24, v25
              v_mov_b32 v25, v24
              v_permlane32_swap_b32 v24, v25
              v_max_u32 v24, v24, v25
              v_readfirstlane_b32 s{sKEY}, v24
              s_and_b32 s{sROW}, s{sKEY}, 0x7ff
              s_sub_u32 s{sROW}, 2047, s{sROW}""")
        self.row_addr(sROW)
        X, YP, TM = 96, 104, 108
        k(f"""s_add_u32 s{S_T+2}, s{S_T}, {X1_OFF[layer]}
              buffer_load_dwordx4 v[24:27], v{V_L16}, {WS}, s{S_T+2} offen sc1
              s_waitcnt vmcnt(0)""")
        self.unpack8(X, 24)
        self.layernorm(X, YP, TM)
        TAB = L_MOE
        k(f"""s_mov_b32 s{S_T+2}, 0x01000100
              s_mov_b32 s{S_T+3}, 0x03020302""")
        for q in range(4):
            k(f"v_perm_b32 v{24+2*q}, v{YP+q}, v{YP+q}, s{S_T+2}")
            k(f"v_perm_b32 v{25+2*q}, v{YP+q}, v{YP+q}, s{S_T+3}")
        k(f"""v_lshlrev_b32 v32, 5, v{V_LANE}
              s_lshl_b32 s{S_T+2}, s{S_W}, 11
              s_add_u32 s{S_T+2}, s{S_T+2}, {TAB}
              v_add_u32 v32, s{S_T+2}, v32
              ds_write_b128 v32, v[24:27]
              ds_write_b128 v32, v[28:31] offset:16""")
        MK = 120
        k(f"""v_and_b32 v33, 15, v{V_LANE}
              v_lshrrev_b32 v34, 4, v{V_LANE}
              v_and_b32 v35, 1, v{V_LANE}
              v_lshlrev_b32 v35, 4, v35
              v_mov_b32 v36, 0xffff
              v_lshlrev_b32 v36, v35, v36
              v_lshrrev_b32 v35, 1, v33""")
        for q in range(4):
            k(f"v_cmp_eq_u32 vcc, {q}, v35")
            k(f"v_cndmask_b32 v{MK+q}, 0, v36, vcc")
        k(f"""s_lshl_b32 s{S_T+3}, s{S_W}, 9
              s_add_u32 s{S_T+2}, s{S_T+2}, s{S_T+3}
              v_lshlrev_b32 v32, 7, v34
              v_add_u32 v32, s{S_T+2}, v32
              s_min_u32 s{S_T+4}, s{S_H}, 27
              s_lshl_b32 s{S_T+4}, s{S_T+4}, 7            ; 64 cols * 2B
              s_mul_i32 s{S_T+3}, s{S_W}, {128*3584}
              s_add_u32 s{S_T+4}, s{S_T+4}, s{S_T+3}
              v_mul_u32_u24 v36, {32*3584}, v34
              v_and_b32 v35, 7, v33
              v_lshl_add_u32 v36, v35, 4, v36
              v_add_u32 v36, s{S_T+4}, v36
              v_cmp_gt_u32 vcc, 8, v33
              v_mov_b32 v38, s{P_WU}
              v_mov_b32 v39, s{P_WU+1}
              v_mov_b32 v40, s{P_WG}
              v_mov_b32 v41, s{P_WG+1}
              v_cndmask_b32 v38, v38, v40, vcc
              v_cndmask_b32 v39, v39, v41, vcc
              v_add_co_u32 v38, vcc, v38, v36
              v_addc_co_u32 v39, vcc, 0, v39, vcc""")
        XB, LD, AF, ACC = 24, 44, 124, 116
        ND = 12
        def issue(i):
            k(f"global_load_dwordx4 {vr(LD+(i%ND)*4,4)}, v[38:39], off")
            k(f"v_add_co_u32 v38, vcc, 3584, v38")
            k(f"v_addc_co_u32 v39, vcc, 0, v39, vcc")
        for i in range(ND):
            issue(i)
        for i in range(32):
            if i % 8 == 0:
                k(f"""ds_read_b128 {vr(XB,4)}, v32 offset:{i*4}
                      ds_read_b128 {vr(XB+4,4)}, v32 offset:{i*4+16}
                      s_waitcnt lgkmcnt(0)""")
            for q in range(4):
                k(f"v_and_b32 v{AF+q}, v{MK+q}, v{XB+i%8}")
            k(f"s_waitcnt vmcnt({min(31-i, ND-1)})")
            k(f"v_mfma_f32_16x16x32_bf16 {vr(ACC,4)}, {vr(AF,4)}, {vr(LD+(i%ND)*4,4)}, {'0' if i == 0 else vr(ACC,4)}")
            if i + ND < 32:
                issue(i + ND)
        self.srd(P_WD, 1792 * 1024)
        k(f"""v_lshlrev_b32 v36, 14, v34
              v_lshl_add_u32 v36, v33, 4, v36
              s_lshl_b32 s{S_T+3}, s{S_H}, 16
              s_lshl_b32 s{S_T+4}, s{S_W}, 8
              s_add_u32 s{S_T+3}, s{S_T+3}, s{S_T+4}""")
        def issue_d(i):
            if i % 4 == 0 and i > 0:
                k(f"s_add_u32 s{S_T+3}, s{S_T+3}, 4096")
            k(f"buffer_load_dwordx4 {vr(LD+(i%ND)*4,4)}, v36, {SA}, s{S_T+3} offen offset:{(i%4)*1024}")
        for i in range(ND):
            issue_d(i)
        RED = L_MOE + 8 * KB
        k(f"""v_lshlrev_b32 v37, 5, v33
              v_and_b32 v35, 1, v34
              v_lshl_add_u32 v37, v35, 4, v37
              v_lshrrev_b32 v35, 1, v34
              v_lshl_add_u32 v37, v35, 11, v37
              s_lshl_b32 s{S_T+4}, s{S_W}, 9
              s_add_u32 s{S_T+4}, s{S_T+4}, {RED}
              v_add_u32 v37, s{S_T+4}, v37
              ds_write_b128 v37, {vr(ACC,4)}
              v_lshlrev_b32 v37, 2, v{V_LANE}
              v_add_u32 v37, {RED}, v37
              s_waitcnt lgkmcnt(0)
              s_barrier""")
        for w in range(4):
            k(f"ds_read2st64_b32 {vr(24+2*w,2)}, v37 offset0:{2*w} offset1:{2*w+1}")
        k("s_waitcnt lgkmcnt(0)")
        k(f"""v_pk_add_f32 v[24:25], v[24:25], v[26:27]
              v_pk_add_f32 v[28:29], v[28:29], v[30:31]
              v_pk_add_f32 v[24:25], v[24:25], v[28:29]""")
        self.round1(24)
        self.round1(25)
        k(f"""v_mul_f32 v26, {f32(-math.log2(math.e))}, v24
              v_exp_f32 v26, v26
              v_add_f32 v26, 1.0, v26
              v_rcp_f32 v26, v26
              v_mul_f32 v24, v24, v26""")
        self.round1(24)
        k(f"""v_mul_f32 v24, v24, v25
              v_cvt_pk_bf16_f32 v24, v24, v24
              v_lshlrev_b32 v37, 2, v{V_LANE}
              s_lshl_b32 s{S_T+4}, s{S_W}, 11
              s_add_u32 s{S_T+4}, s{S_T+4}, {TAB}
              v_add_u32 v37, s{S_T+4}, v37
              ds_write_b32 v37, v24
              v_lshlrev_b32 v32, 6, v34
              v_add_u32 v32, s{S_T+4}, v32""")
        for i in range(16):
            if i % 8 == 0:
                k(f"""ds_read_b128 {vr(XB,4)}, v32 offset:{i*4}
                      ds_read_b128 {vr(XB+4,4)}, v32 offset:{i*4+16}
                      s_waitcnt lgkmcnt(0)""")
            for q in range(4):
                k(f"v_and_b32 v{AF+q}, v{MK+q}, v{XB+i%8}")
            k(f"s_waitcnt vmcnt({min(15-i, ND-1)})")
            k(f"v_mfma_f32_16x16x32_bf16 {vr(ACC,4)}, {vr(AF,4)}, {vr(LD+(i%ND)*4,4)}, {'0' if i == 0 else vr(ACC,4)}")
            if i + ND < 16:
                issue_d(i + ND)
        k(f"""v_lshlrev_b32 v37, 4, v33
              v_and_b32 v35, 1, v34
              v_lshl_add_u32 v37, v35, 3, v37
              v_and_b32 v35, 2, v34
              v_lshl_add_u32 v37, v35, 30, v37
              s_lshl_b32 s{S_T+3}, s{S_H}, 10
              s_lshl_b32 s{S_T+4}, s{S_W}, 8
              s_add_u32 s{S_T+3}, s{S_T+3}, s{S_T+4}
              s_add_u32 s{S_T+3}, s{S_T+3}, {MOE_OFF + layer*32*KB}
              v_cvt_pk_bf16_f32 v24, v{ACC}, v{ACC+1}
              v_cvt_pk_bf16_f32 v25, v{ACC+2}, v{ACC+3}
              buffer_store_dwordx2 v[24:25], v37, {WS}, s{S_T+3} offen{self.loc}
              s_lshl_b32 s{S_T+3}, s{S_H}, 2
              s_add_u32 s{S_T+3}, s{S_T+3}, {FLG_OFF + FM_OFF + layer*128}""")
        self.flag_set(S_T + 3, self.loc)
        D = k.newlabel("L_moed")
        k(f"""s_cmp_lg_u32 s{S_H}, 0
              s_cbranch_scc1 {D}
              s_mov_b32 s{S_T+3}, {FLG_OFF + FM_OFF + layer*128}""")
        self.flags_wait32(S_T + 3)
        k(f"s_mov_b32 s{S_T+4}, {MOE_OFF + layer*32*KB}")
        self.reduce32(S_T + 4)
        k(f"""s_cmp_lg_u32 s{S_W}, 0
              s_cbranch_scc1 {D}""")
        A, PK, Y, TM = 24, 40, 48, 56
        k(f"""v_lshlrev_b32 v{TM}, 5, v{V_LANE}
              v_add_u32 v{TM}, {L_ROW}, v{TM}
              ds_read_b128 {vr(A,4)}, v{TM}
              ds_read_b128 {vr(A+4,4)}, v{TM} offset:16
              s_and_b32 s{S_T+3}, s{sKEY}, 0xffff0000
              s_xor_b32 s{S_T+4}, s{S_T+3}, 0x80000000
              s_xor_b32 s{S_T+5}, s{S_T+3}, 0xffff0000
              s_cmp_lt_i32 s{S_T+3}, 0
              s_cselect_b32 s{S_T+3}, s{S_T+4}, s{S_T+5}
              v_mov_b32 v{TM}, s{S_T+3}
              v_mul_f32 v{TM}, {f32(-math.log2(math.e))}, v{TM}
              v_exp_f32 v{TM}, v{TM}
              v_add_f32 v{TM}, 1.0, v{TM}
              v_rcp_f32 v{TM}, v{TM}""")
        self.round1(TM)
        self.unpack8(Y, YP)
        k("s_waitcnt lgkmcnt(0)")
        self.pack8(PK, A)
        self.unpack8(A, PK)
        for j in range(8):
            k(f"v_mul_f32 v{A+j}, v{A+j}, v{TM}")
        self.pack8(PK, A)
        self.unpack8(A, PK)
        for j in range(8):
            k(f"v_add_f32 v{A+j}, v{A+j}, v{Y+j}")
        self.pack8(PK, A)
        self.unpack8(A, PK)
        for j in range(8):
            k(f"v_add_f32 v{X+j}, v{X+j}, v{A+j}")
        self.pack8(80, X)
        self.unpack8(X, 80)
        self.finish_row(layer, X, 80, TM + 2)
        k.label(D)

    def program_v1(self):
        k = self.k
        stop = self.stop
        self.prologue()
        self.init_ws()
        self.load_weights()
        self.gbarrier()
        phase = 0
        sSLOT, sKVMB = 54, 55
        for layer in range(2):
            k(f"s_mov_b32 s{S_LAY}, {layer}")
            L = k.newlabel("L_t1")
            k(f"s_mov_b32 s{S_SEG}, s{S_G}")
            k.label(L)
            self.t1()
            k(f"""s_add_u32 s{S_SEG}, s{S_SEG}, 8
                  s_cmp_lt_u32 s{S_SEG}, 64
                  s_cbranch_scc1 {L}""")
            self.gbarrier()
            if stop == (layer, "t1"): break
            D = k.newlabel("L_nc")
            k(f"""s_cmp_lg_u32 s{S_G}, 0
                  s_cbranch_scc1 {D}""")
            self.chain(layer)
            k.label(D)
            self.gbarrier()
            if stop == (layer, "chain"): break
            self.tok_consts()
            k(f"""s_mov_b32 s{S_SEG}, s{S_G}
                  s_lshl_b32 s{sSLOT}, s{S_G}, 21
                  s_add_u32 s{sSLOT}, s{sSLOT}, {PT_OFF}
                  s_mov_b32 s{sKVMB}, {KVM_OFF[layer]}""")
            L = k.newlabel("L_t2")
            k.label(L)
            self.t23(sKVMB, sSLOT)
            k(f"""s_lshl_b32 s{S_T+3}, s{S_SEG}, 5
                  s_add_u32 s{S_T+3}, s{S_T+3}, s{S_H}
                  s_lshl_b32 s{S_T+3}, s{S_T+3}, 2
                  s_add_u32 s{S_T+3}, s{S_T+3}, {FLG_OFF + FT_OFF + layer*8*KB}""")
            self.flag_set(S_T + 3, self.loc)
            self.t4(layer, sSLOT)
            k(f"""s_xor_b32 s{sSLOT}, s{sSLOT}, {MB}
                  s_add_u32 s{S_SEG}, s{S_SEG}, 8
                  s_cmp_lt_u32 s{S_SEG}, 64
                  s_cbranch_scc1 {L}""")
            self.gbarrier()
            if stop == (layer, "t4"): break
            D = k.newlabel("L_nm")
            k(f"""s_cmp_lg_u32 s{S_G}, 0
                  s_cbranch_scc1 {D}""")
            self.moe(layer)
            k.label(D)
            if layer == 0:
                self.gbarrier()
            if stop == (layer, "moe"): break
        k.label("L_abort")
        k("s_endpgm")

HEADER = open(__file__.rsplit("/", 1)[0] + "/header.txt").read() if "/" in __file__ else open("header.txt").read()

def build(**kw):
    g = Gen(**kw)
    g.program_v1()
    body = g.k.finalize()
    return (HEADER + f"; @launch grid=(256,1,1) block=(256,1,1) lds={LDS_SIZE}\n"
        + f""".amdgcn_target "amdgcn-amd-amdhsa--gfx950"
.text
.globl {NAME}_kernel
.p2align 8
.type {NAME}_kernel,@function
{NAME}_kernel:
""" + body + f""".section .rodata,"a"
.p2align 6
.amdhsa_kernel {NAME}_kernel
  .amdhsa_next_free_vgpr 512
  .amdhsa_next_free_sgpr 102
  .amdhsa_accum_offset 256
  .amdhsa_group_segment_fixed_size 0
  .amdhsa_kernarg_size 120
  .amdhsa_user_sgpr_count 2
  .amdhsa_user_sgpr_kernarg_segment_ptr 1
  .amdhsa_system_sgpr_workgroup_id_x 1
  .amdhsa_float_denorm_mode_32 3
.end_amdhsa_kernel
""")

if __name__ == "__main__":
    import argparse
    ap = argparse.ArgumentParser()
    ap.add_argument("-o", default=f"/code/{NAME}.s")
    ap.add_argument("--stop", default=None)
    ap.add_argument("--stamps", action="store_true")
    ap.add_argument("--slow", action="store_true")
    a = ap.parse_args()
    stop = None
    if a.stop:
        l, p = a.stop.split(":"); stop = (int(l), p)
    open(a.o, "w").write(build(fast=not a.slow, stop=stop, stamps=a.stamps))
```

```python
import re

TRANS = ("v_exp_f32", "v_log_f32", "v_rcp_f32", "v_rsq_f32", "v_sqrt_f32", "v_sin_f32", "v_cos_f32",
         "v_rcp_iflag_f32")

def regs_of(tok):
    tok = tok.strip()
    tok = re.sub(r"^-", "", tok)
    tok = re.sub(r"^abs\((.*)\)$", r"\1", tok)
    tok = re.sub(r"^\|(.*)\|$", r"\1", tok)
    m = re.fullmatch(r"([vas])(\d+)", tok)
    if m:
        return {(m.group(1), int(m.group(2)))}
    m = re.fullmatch(r"([vas])\[(\d+):(\d+)\]", tok)
    if m:
        return {(m.group(1), i) for i in range(int(m.group(2)), int(m.group(3)) + 1)}
    if tok in ("vcc", "vcc_lo", "vcc_hi"):
        return {("vcc", 0)}
    if tok in ("exec", "exec_lo", "exec_hi"):
        return {("exec", 0)}
    if tok == "m0":
        return {("m0", 0)}
    return set()

def split_ops(s):
    out, depth, cur = [], 0, ""
    for ch in s:
        if ch in "[(":
            depth += 1
        if ch in "])":
            depth -= 1
        if ch == "," and depth == 0:
            out.append(cur.strip()); cur = ""
        else:
            cur += ch
    if cur.strip():
        out.append(cur.strip())
    return out

class Ins:
    def __init__(self, text):
        self.text = text
        t = text.split(";")[0].strip()
        sp = t.split(None, 1)
        self.op = sp[0]
        rest = sp[1] if len(sp) > 1 else ""
        ops = split_ops(rest)
        self.mods = ""
        if ops:
            last = ops[-1].split(None, 1)
            ops[-1] = last[0]
            self.mods = last[1] if len(last) > 1 else ""
        self.ops = ops
        op = self.op
        self.kind = "salu"
        self.w, self.r = set(), set()
        self.srcC = set(); self.srcAB = set(); self.stdata = set()
        R = [regs_of(o) for o in ops]
        allr = lambda lst: set().union(*lst) if lst else set()
        if op.startswith("v_mfma") or op.startswith("v_smfmac"):
            self.kind = "mfma"
            self.w = R[0]
            if op.startswith("v_smfmac"):
                self.srcC = R[0]; self.srcAB = R[1] | R[2] | R[3]
            else:
                self.srcC = R[3]; self.srcAB = R[1] | R[2]
            self.r = self.srcC | self.srcAB
            self.passes = 8 if "32x32" in op else 4
        elif op.startswith("v_"):
            self.kind = "valu"
            if op.startswith("v_cmpx"):
                self.w = R[0] | {("exec", 0)}; self.r = allr(R[1:])
            elif op.startswith("v_cmp"):
                self.w = R[0]; self.r = allr(R[1:])
            elif "swap" in op:
                self.w = R[0] | R[1]; self.r = R[0] | R[1]
            elif op.startswith(("v_add_co", "v_sub_co", "v_addc_co", "v_subb_co", "v_subrev_co", "v_div_scale", "v_mad_u64")):
                self.w = R[0] | R[1]; self.r = allr(R[2:])
            elif op == "v_nop":
                pass
            else:
                self.w = R[0]; self.r = allr(R[1:])
                if op.startswith(("v_fmac", "v_dot2c", "v_pk_fmac", "v_writelane")) or "dpp" in op or "row_" in self.mods or "quad_perm" in self.mods:
                    self.r |= R[0]
                if op.startswith("v_cndmask") and len(ops) == 3:
                    self.r |= {("vcc", 0)}
            self.dpp = ("dpp" in op) or ("row_" in self.mods) or ("quad_perm" in self.mods)
            self.dppsrc = R[1] if self.dpp else set()
        elif op.startswith(("global_", "buffer_", "flat_")):
            self.kind = "vmem"
            lds = re.search(r"\blds\b", self.mods) or "load_lds" in op
            if op in ("buffer_inv", "buffer_wbl2"):
                pass
            elif "load" in op:
                if lds:
                    self.r = allr(R) | {("m0", 0)}
                else:
                    self.w = R[0]; self.r = allr(R[1:])
            elif "store" in op:
                self.r = allr(R)
                self.stdata = R[1] if op.startswith("global_") else R[0]
                if not (op.endswith("x4") or op.endswith("x3")):
                    self.stdata = set()
            elif "atomic" in op:
                self.r = allr(R)
                if "sc0" in self.mods:
                    self.w = R[0]
        elif op.startswith("ds_"):
            self.kind = "ds"
            if "read" in op or "bpermute" in op or "permute" in op or "swizzle" in op or "rtn" in op:
                self.w = R[0]; self.r = allr(R[1:])
            else:
                self.r = allr(R)
        else:
            self.kind = "salu"
            if op.startswith(("s_cmp", "s_cbranch", "s_branch", "s_waitcnt", "s_nop", "s_barrier", "s_endpgm", "s_sleep", "s_setprio", "s_bitcmp", "s_setpc")):
                self.r = allr(R)
            else:
                self.w = R[0] if R else set(); self.r = allr(R[1:])
                if "saveexec" in op:
                    self.w |= {("exec", 0)}
    def states(self):
        if self.op == "s_nop":
            return int(self.ops[0], 0) + 1
        return 1

def vg(s):
    return {x for x in s if x[0] in ("v", "a")}
def sg(s):
    return {x for x in s if x[0] in ("s", "vcc")}

def need(p, c):
    n = 0
    if p.kind == "valu":
        wv = vg(p.w); ws = sg(p.w)
        if c.kind == "mfma" and wv & c.r:
            n = max(n, 2)
        if c.kind == "mfma" and ("exec", 0) in p.w:
            n = max(n, 4)
        if c.kind == "valu":
            if "permlane" in c.op and wv & c.r:
                n = max(n, 2)
            if c.dpp and wv & c.dppsrc:
                n = max(n, 2)
            if c.dpp and ("exec", 0) in p.w:
                n = max(n, 5)
            if c.op.startswith(("v_readlane", "v_readfirstlane")) and wv & c.r:
                n = max(n, 1)
            if p.op.startswith(TRANS) and wv & c.r:
                n = max(n, 1)
            if ws & c.r:
                n = max(n, 4 if c.op.startswith(("v_readlane", "v_writelane", "v_div_fmas")) else 2)
            if ("exec", 0) in p.w and c.op.startswith(("v_readlane", "v_readfirstlane", "v_writelane", "v_permlane")):
                n = max(n, 4)
            if ("sdwa" in p.op or "op_sel" in p.mods or "dst_sel" in p.mods) and wv & (c.r | c.w):
                n = max(n, 1)
        if c.kind == "vmem" and ws & c.r:
            n = max(n, 5)
    if p.kind == "mfma":
        big = p.passes == 8
        if c.kind == "mfma":
            if p.w & c.srcAB:
                n = max(n, 12 if big else 8)
            if p.w & c.srcC:
                if not (p.w == c.srcC and p.op == c.op):
                    n = max(n, 10 if big else 6)
            elif p.w & c.w:
                n = max(n, 10 if big else 6)
        elif c.kind == "valu":
            if p.w & (c.r | c.w):
                n = max(n, 12 if big else 8)
            if p.srcC & c.w:
                n = max(n, 7 if big else 3)
        elif c.kind in ("vmem", "ds"):
            if p.w & (c.r | c.w):
                n = max(n, 12 if big else 8)
    if p.kind == "vmem" and p.stdata:
        if p.stdata & c.w:
            n = max(n, 2 if c.kind in ("valu", "mfma") else 1)
    if p.kind == "salu" and ("m0", 0) in p.w and ("m0", 0) in c.r and c.kind in ("vmem", "ds"):
        n = max(n, 1)
    return n

class K:
    def __init__(self):
        self.lines = []
        self.uid = 0
    def __call__(self, s):
        for ln in s.split("\n"):
            ln = ln.strip()
            if ln:
                self.lines.append(ln)
    def label(self, name):
        self.lines.append(name + ":")
    def newlabel(self, base="L"):
        self.uid += 1
        return "%s_%d" % (base, self.uid)
    def fence(self):
        self.lines.append("s_nop 11")
    def finalize(self, report=False):
        out = []
        hist = []
        now = 0
        mf_free = 0
        for ln in self.lines:
            t = ln.split(";")[0].strip()
            if not t or t.endswith(":") or t.startswith("."):
                out.append(ln)
                continue
            c = Ins(ln)
            pad = 0
            for i in range(len(hist) - 1, -1, -1):
                p = hist[i]
                n = need(p, c)
                if n == 0:
                    continue
                tt = 0; lastm = None
                for q in hist[i:] + [c]:
                    if q.kind == "mfma" and lastm is not None:
                        tt = max(tt, lastm)
                    if q is c:
                        break
                    if q.kind == "mfma":
                        lastm = tt + 4 * q.passes
                    tt += 4 * q.states()
                if tt < 4 * (n + 1):
                    seq = 0; lastm = None
                    for q in hist[i:]:
                        if q.kind == "mfma" and lastm is not None:
                            seq = max(seq, lastm)
                        if q.kind == "mfma":
                            lastm = seq + 4 * q.passes
                        seq += 4 * q.states()
                    pad = max(pad, (4 * (n + 1) - seq + 3) // 4)
            if pad > 0:
                out.append("s_nop %d" % (pad - 1))
                hist.append(Ins("s_nop %d" % (pad - 1)))
            out.append(t.replace(", ", ","))
            hist.append(c)
            if c.op in ("s_branch", "s_endpgm", "s_setpc_b64"):
                hist = []
            if len(hist) > 14:
                hist = hist[-14:]
        return "\n".join(out) + "\n"

def vr(a, n=1):
    return "v%d" % a if n == 1 else "v[%d:%d]" % (a, a + n - 1)
def ar(a, n=1):
    return "a%d" % a if n == 1 else "a[%d:%d]" % (a, a + n - 1)
def sr(a, n=1):
    return "s%d" % a if n == 1 else "s[%d:%d]" % (a, a + n - 1)
```

```python
KB = 1024; MB = 1024 * 1024
NSEG = 64; NH = 32
H_OFF   = [0 * MB, 2 * MB]
X1_OFF  = [4 * MB, 6 * MB]
X2_OFF  = 8 * MB
PG_OFF  = 10 * MB
NPAGES  = 72
MEM_OFF = [11 * MB, 12 * MB, 13 * MB]
PC_OFF  = [14 * MB, 15 * MB, 16 * MB]
MEMX_OFF = 17 * MB
STAMP_OFF = 18 * MB
PT_OFF  = 20 * MB
HP_OFF  = 94 * MB
X2P_OFF = 10 * MB + 768 * KB
KVM_OFF = [40 * MB, 56 * MB, 72 * MB]
MOE_OFF = 88 * MB
QKV_OFF = [96 * MB, 144 * MB, 192 * MB]
WS_SIZE = 256 * MB
F_KV  = [0, 128, 256]
F_Q   = [0, 384, 1920]
F_KM  = [None, 512, 640]
F_M   = 1152
F_REC = 1280
F_RK  = [1408, 1536, 768]
F_HX  = 1792
F_FIN = 1664
F_CW  = 896
F_CR  = 1024
L_WO = 0
L_KX = 128 * KB
L_VX = 136 * KB
L_QK = 144 * KB
L_O  = 148 * KB
L_TO = 128 * KB
L_H = 128 * KB
L_ROW = 152 * KB
L_MOE = 136 * KB
L_MISC = 156 * KB
LDS_SIZE = 160 * KB
```

```python
import sys, math
from asmlib import K, vr, ar, sr
from layout import *

NAME = "interleave_layers__memory_aug_recurrent_mem_tr__moe_arch_mod__prompt"

SRD_A = 4
SRD_WS = 8
SRD_DBG = 12
P_X, P_MEM0, P_WQ, P_WK, P_WV, P_WO = 16, 18, 20, 22, 24, 26
P_WR, P_WG, P_WU, P_WD, P_OUT, P_DBG, P_WS = 32, 34, 36, 38, 40, 42, 44
S_W, S_H, S_G, S_BUD = 46, 47, 48, 49
S_SLOW = 3
S_LW = 50
S_SEG, S_OOB, S_CNT = 51, 52, 53
S_T = 56
S_C = 80
S_EV = 81
S_ONE = 28
S_A, S_B = 30, 31
LOOK = 3
WS = sr(SRD_WS, 4); SA = sr(SRD_A, 4); DBG = sr(SRD_DBG, 4)

SCALE_LOG2E = (128 ** -0.5) * math.log2(math.e)
def f32(x):
    import struct
    return "0x%08x" % struct.unpack("<I", struct.pack("<f", x))[0]
NEGBIG = f32(-1e30)

def wq(ks, t, half=None):
    b = (ks * 2 + t) * 8
    return ar(b, 8) if half is None else ar(b + 4 * half, 4)
def wk(ks, t, half=None):
    b = 128 + (ks * 2 + t) * 8
    return ar(b, 8) if half is None else ar(b + 4 * half, 4)
def wv(ks, t, half=None):
    b = 128 + (ks * 2 + t) * 8
    return vr(b, 8) if half is None else vr(b + 4 * half, 4)

V_L16 = 0
V_LANE = 1

class Gen:
    def __init__(self, fast=True, stop=None, stamps=False, opt=None):
        self.opt = opt or {}
        self.LH = L_H
        self.pend = []
        self.mk = 0
        self.k = K()
        self.fast = fast
        self.loc = "" if fast else " sc1"
        self.stop = stop
        self.abort = "L_abort"
        self.stamps = stamps

    def srd(self, ptr, nbytes):
        k = self.k
        k(f"""s_mov_b32 s{SRD_A}, s{ptr}
              s_mov_b32 s{SRD_A+1}, s{ptr+1}
              s_mov_b32 s{SRD_A+2}, {nbytes}
              s_mov_b32 s{SRD_A+3}, 0x20000""")

    def budget(self, retry):
        self.k(f"""s_sub_u32 s{S_BUD}, s{S_BUD}, 1
                   s_cmp_gt_i32 s{S_BUD}, 0
                   s_cbranch_scc1 {retry}
                   s_branch {self.abort}""")

    def spend(self, inc=None, cnt=None):
        if self.stamps and inc:
            self.k(f"s_add_u32 s{cnt}, s{cnt}, {inc}")
        self.k(f"""s_sub_u32 s{S_BUD}, s{S_BUD}, 1
                   s_cbranch_scc1 {self.abort}""")

    def wsum(self, x, t):
        k = self.k
        for r in (8, 4, 2, 1):
            k(f"v_add_f32_dpp v{x}, v{x}, v{x} row_ror:{r} row_mask:0xf bank_mask:0xf")
        k(f"""v_mov_b32 v{t}, v{x}
              v_permlane16_swap_b32 v{x}, v{t}
              v_add_f32 v{x}, v{x}, v{t}
              v_mov_b32 v{t}, v{x}
              v_permlane32_swap_b32 v{x}, v{t}
              v_add_f32 v{x}, v{x}, v{t}""")

    def unpack8(self, dst, src):
        k = self.k
        for q in range(4):
            k(f"v_lshlrev_b32 v{dst+2*q}, 16, v{src+q}")
            k(f"v_and_b32 v{dst+2*q+1}, 0xffff0000, v{src+q}")

    def pack8(self, dst, src):
        for q in range(4):
            self.k(f"v_cvt_pk_bf16_f32 v{dst+q}, v{src+2*q}, v{src+2*q+1}")

    def round1(self, x):
        self.k(f"""v_cvt_pk_bf16_f32 v{x}, v{x}, v{x}
                   v_and_b32 v{x}, 0xffff0000, v{x}""")

    def layernorm(self, x, ypk, tmp):
        k = self.k
        d = tmp; s = tmp + 8; q = tmp + 10; t = tmp + 12
        c = S_T + 22
        k(f"v_readfirstlane_b32 s{c}, v{x}")
        for j in range(0, 8, 2):
            k(f"v_pk_add_f32 {vr(d+j,2)}, {vr(x+j,2)}, {sr(c,2)} op_sel_hi:[1,0] neg_lo:[0,1] neg_hi:[0,1]")
        k(f"""v_pk_add_f32 {vr(s,2)}, {vr(d,2)}, {vr(d+2,2)}
              v_pk_mul_f32 {vr(q,2)}, {vr(d,2)}, {vr(d,2)}
              v_pk_add_f32 {vr(t,2)}, {vr(d+4,2)}, {vr(d+6,2)}
              v_pk_fma_f32 {vr(q,2)}, {vr(d+2,2)}, {vr(d+2,2)}, {vr(q,2)}
              v_pk_add_f32 {vr(s,2)}, {vr(s,2)}, {vr(t,2)}
              v_pk_fma_f32 {vr(q,2)}, {vr(d+4,2)}, {vr(d+4,2)}, {vr(q,2)}
              v_add_f32 v{s}, v{s}, v{s+1}
              v_pk_fma_f32 {vr(q,2)}, {vr(d+6,2)}, {vr(d+6,2)}, {vr(q,2)}
              v_add_f32 v{q}, v{q}, v{q+1}""")
        k(f"""v_permlane32_swap_b32 v{s}, v{q}
              v_add_f32 v{s}, v{s}, v{q}""")
        for r in (8, 4, 2, 1):
            k(f"v_add_f32_dpp v{s}, v{s}, v{s} row_ror:{r} row_mask:0xf bank_mask:0xf")
        k(f"""v_mov_b32 v{q}, v{s}
              v_permlane16_swap_b32 v{s}, v{q}
              v_add_f32 v{s}, v{s}, v{q}
              v_mul_f32 v{s}, {f32(1.0/512)}, v{s}
              v_mov_b32 v{q}, v{s}
              v_permlane32_swap_b32 v{s}, v{q}
              v_fma_f32 v{q}, -v{s}, v{s}, v{q}
              v_add_f32 v{s}, s{c}, v{s}
              v_max_f32 v{q}, 0, v{q}
              v_cvt_pk_bf16_f32 v{q}, v{s}, v{q}
              v_lshlrev_b32 v{s}, 16, v{q}
              v_and_b32 v{q}, 0xffff0000, v{q}
              v_add_f32 v{q}, {f32(1e-5)}, v{q}""")
        self.round1(q)
        k(f"v_sqrt_f32 v{q}, v{q}")
        for j in range(0, 8, 2):
            k(f"v_pk_add_f32 {vr(d+j,2)}, {vr(x+j,2)}, {vr(s,2)} op_sel_hi:[1,0] neg_lo:[0,1] neg_hi:[0,1]")
        self.round1(q)
        k(f"v_rcp_f32 v{q}, v{q}")
        self.pack8(ypk, d)
        self.unpack8(d, ypk)
        for j in range(0, 8, 2):
            k(f"v_pk_mul_f32 {vr(d+j,2)}, {vr(d+j,2)}, {vr(q,2)} op_sel_hi:[1,0]")
        self.pack8(ypk, d)

    def add8(self, x, y):
        for j in range(0, 8, 2):
            self.k(f"v_pk_add_f32 {vr(x+j,2)}, {vr(x+j,2)}, {vr(y+j,2)}")

    def arrive(self):
        k = self.k
        D = k.newlabel("L_ar")
        k(f"""s_waitcnt vmcnt(0) lgkmcnt(0)
              s_barrier
              s_cmp_lg_u32 s{S_W}, 0
              s_cbranch_scc1 {D}
              v_mov_b32 v124, 128
              v_mov_b32 v125, s{S_CNT}
              s_mov_b64 exec, 1
              buffer_atomic_add v125, v124, {DBG}, 0 offen
              s_mov_b64 exec, -1""")
        k.label(D)

    def wait_all(self):
        k = self.k
        L = k.newlabel("L_gb"); D = k.newlabel("L_gbd")
        k(f"""v_mov_b32 v123, {L_MISC}
              s_cmp_lg_u32 s{S_W}, 0
              s_cbranch_scc1 {D}
              v_mov_b32 v124, 128""")
        k.label(L)
        k(f"""buffer_load_dword v125, v124, {DBG}, 0 offen sc1
              s_waitcnt vmcnt(0)
              v_readfirstlane_b32 s{S_T}, v125
              ds_write_b32 v123, v125
              s_bitcmp1_b32 s{S_T}, 8
              s_cbranch_scc1 {D}
              s_sleep 4""")
        self.budget(L)
        k.label(D)
        k(f"""s_waitcnt lgkmcnt(0)
              s_barrier
              ds_read_b32 v125, v123
              s_waitcnt lgkmcnt(0)
              v_readfirstlane_b32 s{S_T}, v125
              s_barrier
              s_lshr_b32 s{S_T}, s{S_T}, 16
              s_andn2_b32 s{S_T}, s{S_T}, s{S_SLOW}
              s_cbranch_scc1 L_spread""")

    def page(self, dst, off, seg=S_SEG, head=True):
        k = self.k
        k(f"s_lshl_b32 s{dst}, s{seg}, 13")
        if head:
            k(f"s_lshl2_add_u32 s{dst}, s{S_H}, s{dst}")
        k(f"s_add_u32 s{dst}, s{dst}, {PG_OFF + off}")

    def word_wait(self, s_off, s_val, va=125, sleep=0, quick=False):
        k = self.k
        L, D = k.newlabel("L_ww"), k.newlabel("L_wwd")
        if quick:
            k(f"""s_buffer_load_dword s{s_val}, {WS}, s{s_off} glc
                  s_waitcnt lgkmcnt(0)
                  s_cmp_lg_u32 s{s_val}, 0
                  s_cbranch_scc1 {D}""")
        k.label(L)
        if sleep:
            k(f"s_sleep {sleep}")
        k(f"buffer_load_dword v{va}, off, {WS}, s{s_off} sc1")
        self.spend()
        k(f"""s_waitcnt vmcnt(0)
              v_readfirstlane_b32 s{s_val}, v{va}
              s_cmp_eq_u32 s{s_val}, 0
              s_cbranch_scc1 {L}""")
        k.label(D)

    def stamp(self, name):
        pts = self.opt.get("pts", [0, 1, 2, 3, 4, 5, 6, 7])
        if self.stamps > 1 and name in pts:
            i = pts.index(name)
            self.k(f"s_memtime s[{84+2*i}:{85+2*i}]")

    def ev(self, tag, va=126):
        if not self.stamps:
            return
        k = self.k
        D = k.newlabel("L_ps")
        k(f"""s_cmp_lg_u32 s{S_W}, 0
              s_cbranch_scc1 {D}
              s_memrealtime s[82:83]
              s_or_b32 s100, s{S_SEG}, {tag << 8}
              s_waitcnt lgkmcnt(0)
              s_mov_b64 exec, 1
              v_mov_b32 v{va}, s82
              v_mov_b32 v{va+1}, s100
              buffer_store_dwordx2 {vr(va,2)}, off, {WS}, s{S_EV}
              s_mov_b64 exec, -1
              s_add_u32 s{S_EV}, s{S_EV}, 8""")
        k.label(D)

    def mark(self, tag):
        if self.stamps != 1 or tag not in self.opt.get("marks", ()):
            return
        i = len(self.pend); assert i < 6
        self.pend.append(tag)
        self.k(f"s_memrealtime s[{88+2*i}:{89+2*i}]")

    def flush(self, va=126):
        if not self.pend:
            return
        k = self.k
        D = k.newlabel("L_fl")
        k(f"""s_cmp_lg_u32 s{S_W}, 0
              s_cbranch_scc1 {D}
              s_waitcnt lgkmcnt(0)
              s_mov_b64 exec, 1""")
        for i, tag in enumerate(self.pend):
            k(f"""s_or_b32 s100, s{S_SEG}, {tag << 8}
                  v_mov_b32 v{va}, s{88+2*i}
                  v_mov_b32 v{va+1}, s100
                  buffer_store_dwordx2 {vr(va,2)}, off, {WS}, s{S_EV}
                  s_add_u32 s{S_EV}, s{S_EV}, 8""")
        k("s_mov_b64 exec, -1")
        k.label(D)
        self.pend = []

    def prologue(self):
        k = self.k
        k(f"""s_cmp_ge_u32 s2, 256
              s_cbranch_scc1 L_abort
              s_load_dwordx16 s[16:31], s[0:1], 0
              s_load_dwordx8 s[32:39], s[0:1], 64
              s_load_dwordx4 s[40:43], s[0:1], 96
              s_load_dwordx2 s[44:45], s[0:1], 112
              v_lshrrev_b32 v2, 6, v0
              v_and_b32 v{V_LANE}, 63, v0
              v_readfirstlane_b32 s{S_W}, v2
              v_lshlrev_b32 v{V_L16}, 4, v{V_LANE}
              s_getreg_b32 s{S_G}, hwreg(HW_REG_XCC_ID)
              s_and_b32 s{S_G}, s{S_G}, 7
              s_lshl_b32 s{S_G}, s{S_G}, 2
              s_lshr_b32 s{S_G}, {sum(g << (4*x) for x, g in enumerate(self.opt.get("map", (0, 6, 2, 4, 1, 7, 3, 5))))}, s{S_G}
              s_and_b32 s{S_G}, s{S_G}, 7
              s_mov_b32 s{S_BUD}, 100000
              s_mov_b32 s{S_C}, {f32(SCALE_LOG2E)}
              s_waitcnt lgkmcnt(0)
              s_mov_b32 s{SRD_WS}, s{P_WS}
              s_mov_b32 s{SRD_WS+1}, s{P_WS+1}
              s_mov_b32 s{SRD_WS+2}, {WS_SIZE}
              s_mov_b32 s{SRD_WS+3}, 0x20000
              s_mov_b32 s{SRD_DBG}, s{P_DBG}
              s_mov_b32 s{SRD_DBG+1}, s{P_DBG+1}
              s_mov_b32 s{SRD_DBG+2}, 256
              s_mov_b32 s{SRD_DBG+3}, 0x20000""")
        T = k.newlabel("L_tk")
        k(f"""s_cmp_lg_u32 s{S_W}, 0
              s_cbranch_scc1 {T}
              s_lshl_b32 s{S_T}, s{S_G}, 2
              v_mov_b32 v2, s{S_T}
              v_mov_b32 v3, 1
              s_mov_b64 exec, 1
              buffer_atomic_add v3, v2, {DBG}, 0 offen sc0
              s_waitcnt vmcnt(0)
              v_mov_b32 v4, {L_MISC}
              ds_write_b32 v4, v3
              s_mov_b64 exec, -1
              s_waitcnt lgkmcnt(0)""")
        k.label(T)
        k(f"""s_barrier
              v_mov_b32 v4, {L_MISC}
              ds_read_b32 v3, v4
              s_waitcnt lgkmcnt(0)
              v_readfirstlane_b32 s{S_H}, v3
              s_mov_b32 s{S_SLOW}, 0
              s_cmp_ge_u32 s{S_H}, 32
              s_cselect_b32 s{S_CNT}, 0x10001, 1
              s_and_b32 s{S_H}, s{S_H}, 31
              s_lshl_b32 s{S_LW}, s{S_W}, 10
              s_cmp_eq_u32 s{S_W}, 0
              s_cselect_b32 s{S_OOB}, 0, 0x80000000
              s_mov_b32 s{S_ONE}, 0x3f803f80
              s_mov_b32 s{S_ONE+1}, 0x3f803f80
              s_mov_b32 s{S_SEG}, 0""")
        if self.stamps:
            k(f"""s_lshl_b32 s{S_EV}, s{S_G}, 5
                  s_add_u32 s{S_EV}, s{S_EV}, s{S_H}
                  s_lshl_b32 s{S_EV}, s{S_EV}, 12
                  s_add_u32 s{S_EV}, s{S_EV}, {STAMP_OFF + MB}""")

    def init_ws(self):
        k = self.k
        k(f"""s_lshl_b32 s{S_T}, s2, 12
              s_lshl_b32 s{S_T+1}, s{S_W}, 10
              s_add_u32 s{S_T}, s{S_T}, s{S_T+1}
              v_add_u32 v2, s{S_T}, v{V_L16}
              v_mov_b32 v4, -1
              v_mov_b32 v5, -1
              v_mov_b32 v6, -1
              v_mov_b32 v7, -1
              v_mov_b32 v8, 0
              v_mov_b32 v9, 0
              v_mov_b32 v10, 0
              v_mov_b32 v11, 0""")
        k(f"""v_cmp_gt_u32 vcc, {512*KB}, v2
              v_mov_b32 v3, {PC_OFF[0] - 512*KB}
              v_mov_b32 v12, {MEM_OFF[0] + 8*KB}
              v_cndmask_b32 v3, v3, v12, vcc
              v_add_u32 v3, v3, v2""")
        for c in range(3):
            k(f"s_mov_b32 s{S_T}, {c*MB}")
            k(f"buffer_store_dwordx4 v[4:7], v3, {WS}, s{S_T} offen sc1")
        for i in range(2):
            k(f"s_mov_b32 s{S_T}, {X1_OFF[0] + i*MB}")
            k(f"buffer_store_dwordx4 v[4:7], v2, {WS}, s{S_T} offen sc1")
        k(f"""v_add_u32 v3, {MEMX_OFF + 8*KB - 512*KB}, v2
              v_mov_b32 v12, 0x80000000
              v_cndmask_b32 v3, v3, v12, vcc
              buffer_store_dwordx4 v[4:7], v3, {WS}, 0 offen sc1
              v_cmp_gt_u32 vcc, {NPAGES*2*KB}, v2
              v_lshrrev_b32 v3, 11, v2
              v_lshlrev_b32 v3, 13, v3
              v_and_b32 v13, 0x7ff, v2
              v_add_u32 v3, v3, v13
              v_add_u32 v3, {PG_OFF}, v3
              v_cndmask_b32 v3, v12, v3, vcc
              buffer_store_dwordx4 v[8:11], v3, {WS}, 0 offen sc1""")
        self.srd(P_X, 2048 * 1024)
        k(f"""s_lshl_b32 s{S_T}, s2, 3
              s_lshl_b32 s{S_T+1}, s{S_W}, 1
              s_add_u32 s{S_T}, s{S_T}, s{S_T+1}
              s_lshl_b32 s{S_T+1}, s{S_T}, 10
              buffer_load_dwordx4 v[24:27], v{V_L16}, {SA}, s{S_T+1} offen
              buffer_load_dwordx4 v[28:31], v{V_L16}, {SA}, s{S_T+1} offen offset:1024""")
        k("s_waitcnt vmcnt(0)")
        assert H_OFF[0] == 0
        for i in range(2):
            self.unpack8(32, 24 + 4 * i)
            self.layernorm(32, 40 + 4 * i, 48)
            k(f"buffer_store_dwordx4 {vr(40+4*i,4)}, v{V_L16}, {WS}, s{S_T+1} offen offset:{1024*i} sc1")
        D = k.newlabel("L_m0")
        self.srd(P_MEM0, 8192)
        k(f"""s_cmp_ge_u32 s2, 2
              s_cbranch_scc1 {D}
              s_lshl_b32 s{S_T}, s2, 2
              s_add_u32 s{S_T}, s{S_T}, s{S_W}          ; ks
              v_bfe_u32 v2, v{V_LANE}, 2, 2
              v_and_b32 v3, 1, v{V_LANE}
              v_lshl_add_u32 v2, v2, 1, v3               ; m
              v_lshlrev_b32 v2, 10, v2
              v_lshrrev_b32 v3, 4, v{V_LANE}
              v_lshl_add_u32 v2, v3, 5, v2               ; + ga*32
              v_and_b32 v3, 2, v{V_LANE}
              v_lshl_add_u32 v2, v3, 1, v2               ; + hi*4
              s_lshl_b32 s{S_T+1}, s{S_T}, 7             ; ks*128""")
        for q in range(4):
            k(f"buffer_load_dword v{32+q}, v2, {SA}, s{S_T+1} offen offset:{8*q}")
        self.mfrag_voff(2, 3)
        k(f"""s_and_b32 s{S_T+1}, s{S_T}, 1
              s_lshl_b32 s{S_T+1}, s{S_T+1}, 8
              s_and_b32 s{S_T+2}, s{S_T}, 2
              s_lshl_b32 s{S_T+2}, s{S_T+2}, 6
              s_add_u32 s{S_T+1}, s{S_T+1}, s{S_T+2}
              s_and_b32 s{S_T+2}, s{S_T}, 4
              s_lshl_b32 s{S_T+2}, s{S_T+2}, 10
              s_add_u32 s{S_T+1}, s{S_T+1}, s{S_T+2}
              s_waitcnt vmcnt(0)""")
        for off in (MEM_OFF[0], MEM_OFF[1], MEMX_OFF):
            k(f"s_add_u32 s{S_T+2}, s{S_T+1}, {off}")
            k(f"buffer_store_dwordx4 v[32:35], v2, {WS}, s{S_T+2} offen sc1")
        k.label(D)

    def mfrag_voff(self, dst, t):
        self.k(f"""v_lshrrev_b32 v{dst}, 3, v{V_LANE}
                   v_lshlrev_b32 v{dst}, 9, v{dst}
                   v_and_b32 v{t}, 7, v{V_LANE}
                   v_lshl_add_u32 v{dst}, v{t}, 4, v{dst}""")

    def load_weights(self, qkv, wo, base=2):
        chain_wo = wo == 'chain'
        k = self.k
        NB = 7
        TB = 24
        k(f"""v_and_b32 v{base+0}, 15, v{V_LANE}
              v_lshlrev_b32 v{base+0}, 2, v{base+0}                    ; c*4
              v_lshrrev_b32 v{base+1}, 4, v{V_LANE}
              v_lshl_add_u32 v{base+2}, v{base+1}, 16, v{base+0}              ; g*8 rows*8192 + c*4
              v_lshl_add_u32 v{base+3}, v{base+1}, {12 if chain_wo else 13}, v{base+0}   ; g*(4|8) rows*1024 + c*4
              s_lshl_b32 s{S_T+2}, s{S_H}, 8
              s_lshl_b32 s{S_T+1}, s{S_W}, 6
              s_add_u32 s{S_T+2}, s{S_T+2}, s{S_T+1}     ; h*256 + w*64
              s_lshl_b32 s{S_T+3}, s{S_H}, 17
              s_add_u32 s{S_T+3}, s{S_T+3}, s{S_T+1}     ; h*128KB + w*64
              s_lshl_b32 s{S_T+4}, s{S_W}, 15
              v_add_u32 v{base+4}, s{S_T+4}, v{V_L16}
              s_mov_b32 s{S_T+5}, 0x05040100
              s_mov_b32 s{S_T+6}, 0x07060302
              s_lshl_b32 s{S_T+7}, s{S_W}, 19
              s_cmp_lt_u32 s{S_G}, 3
              s_cselect_b32 s{S_T+7}, s{S_T+7}, 0""")
        groups = []
        for m, ptr in (("k", P_WK), ("v", P_WV), ("q", P_WQ)) if qkv else ():
            for kk in range(16):
                groups.append((m, ptr, kk, None))
        for u in range(4 if wo else 0):
            for kk in range(4):
                groups.append(("o", P_WO, kk, u))
        def issue(i):
            m, ptr, kk, u = groups[i]
            b = TB + (i % NB) * 8
            if i == 0 or groups[i - 1][0] != m:
                self.srd(ptr, 4 * MB)
            for j in range(8):
                if m != "o":
                    if j == 0:
                        k(f"s_xor_b32 s{S_T}, s{S_T+7}, {32*kk*8192}")
                        k(f"s_add_u32 s{S_T}, s{S_T}, s{S_T+2}")
                    else:
                        k(f"s_add_u32 s{S_T}, s{S_T}, 8192")
                    k(f"buffer_load_dword v{b+j}, v{base+2}, {SA}, s{S_T} offen")
                else:
                    if j % 4 == 0:
                        k(f"s_add_u32 s{S_T}, s{S_T+3}, {(32*kk+(4*j if chain_wo else j))*1024 + 256*u}")
                    k(f"buffer_load_dword v{b+j}, v{base+3}, {SA}, s{S_T} offen offset:{(j%4)*1024}")
        def consume(i):
            m, ptr, kk, u = groups[i]
            b = TB + (i % NB) * 8
            if m == "o" and chain_wo:
                for hf in range(2):
                    k(f"ds_write_b128 v{base+4}, {vr(b+4*hf,4)} offset:{((u*4+kk)*2+hf)*1024}")
                k("s_waitcnt lgkmcnt(0)")
                return
            for t in range(2):
                for q in range(4):
                    sel = f"s{S_T+5+t}"
                    if m == "v":
                        d = 128 + ((kk >> 1) * 2 + t) * 8 + 4 * (kk & 1) + q
                        k(f"v_perm_b32 v{d}, v{b+2*q+1}, v{b+2*q}, {sel}")
                    else:
                        k(f"v_perm_b32 v{80+4*t+q}, v{b+2*q+1}, v{b+2*q}, {sel}")
            if m in "qk":
                for t in range(2):
                    for q in range(4):
                        d = (128 if m == "k" else 0) + ((kk >> 1) * 2 + t) * 8 + 4 * (kk & 1) + q
                        k(f"v_accvgpr_write_b32 a{d}, v{80+4*t+q}")
            if m == "o":
                for t in range(2):
                    k(f"ds_write_b128 v{base+4}, {vr(80+4*t,4)} offset:{((u*2+t)*4+kk)*1024}")
                k("s_waitcnt lgkmcnt(0)")
        n = len(groups)
        for i in range(NB):
            issue(i)
        for i in range(n):
            left = min(n - 1 - i, NB - 1)
            k(f"s_waitcnt vmcnt({left*8})")
            consume(i)
            if i + NB < n:
                issue(i + NB)

    def qkv_base(self, dst, which):
        self.k(f"""s_lshl_b32 s{dst}, s{S_SEG}, 5
                   s_add_u32 s{dst}, s{dst}, s{S_H}
                   s_mul_i32 s{dst}, s{dst}, {24*KB}
                   s_add_u32 s{dst}, s{dst}, {QKV_OFF[which] if isinstance(which, int) else which}""")

    def t1_dma(self, s_h, quarters, voff=None, reg=0):
        voff = voff or (self.THD, self.THD)
        out = []
        for qi in quarters:
            for u in range(2):
                out.append(f"s_add_u32 m0, s{S_LW}, {self.LH + reg*32*KB + qi*8192 + u*4096 - qi*256}")
                out.append(f"buffer_load_dwordx4 v{voff[u]}, {WS}, s{s_h+u} offen offset:{qi*256} sc1 lds")
        return out

    def t1_src(self, dst, seg, hreg):
        self.k(f"""s_lshl_b32 s{dst}, s{seg}, 15
                   s_add_u32 s{dst}, s{dst}, {H_OFF[hreg]}
                   s_add_u32 s{dst+1}, s{dst}, {16*KB}""")

    def flag_store(self, s_off, loc):
        self.k(f"""s_or_b32 s{s_off}, s{s_off}, s{S_OOB}
                   buffer_store_dword v{self.TOB}, off, {WS}, s{s_off}{loc}""")

    def t1(self, which, s_h, voff=None, pre=0, nxt=None, s_flag=None, extra=(), x_flag=None, qloc=False, s_keep=0, rot=False):
        k = self.k
        ACC = 24; RING = (72, 80, 108)
        aq = lambda t, u: ACC + (t * 2 + u) * 4
        ak = lambda t, u: ACC + 16 + (t * 2 + u) * 4
        av = lambda t, u: ACC + 32 + (t * 2 + u) * 4
        first, later = ((0, 1), (2, 3)) if rot else ((0, 1, 2), (3,))
        if not pre:
            for x in self.t1_dma(s_h, first, voff):
                k(x)
        self.qkv_base(S_T + 2, which)
        k(f"""s_add_u32 s{S_T+5}, s{S_T+2}, s{S_LW}      ; K u0
              s_add_u32 s{S_T+6}, s{S_T+5}, 4096         ; K u1
              s_add_u32 s{S_T+7}, s{S_T+5}, {16*KB}      ; Q u0
              s_add_u32 s{S_T+8}, s{S_T+5}, {20*KB}      ; Q u1
              s_add_u32 s{S_T+9}, s{S_T+5}, s{S_LW}
              s_add_u32 s{S_T+9}, s{S_T+9}, {8*KB}       ; V""")
        if rot:
            rd = lambda kk: [f"ds_read_b128 {vr(RING[kk%3]+4*u,4)}, v{self.THR+(kk&7)} offset:{(kk>>3)*16384+u*4096}" for u in range(2)]
        else:
            rd = lambda kk: [f"ds_read_b128 {vr(RING[kk%3]+4*u,4)}, v{self.THR+(kk&3)} offset:{(kk>>2)*8192+u*4096}" for u in range(2)]
        k(f"s_waitcnt vmcnt({(0 if rot else 4) + pre})")
        k("s_barrier")
        self.mark(self.mk + 0)
        for x in rd(0) + rd(1):
            k(x)
        for x in self.t1_dma(s_h, later, voff):
            k(x)
        for x in extra:
            k(x)
        ne = len(extra); nl = 2 * len(later)
        side = []
        for kk in range(16):
            b = RING[kk % 3]
            n = kk + 2
            last_q = (n == 8) if rot else (n == 12)
            if last_q:
                k(f"s_waitcnt vmcnt({1 if (s_flag and not rot) else 0})")
                k("s_barrier")
                if x_flag:
                    self.flag_store(x_flag, " sc1")
                if s_flag and rot:
                    self.flag_store(s_flag, " sc1")
            elif not rot and n in (4, 8):
                k(f"s_waitcnt vmcnt({(2 if n == 4 else 0) + pre + nl + ne})")
                k("s_barrier")
            if kk == 7 and s_flag and not rot:
                assert not extra
                k(f"s_waitcnt vmcnt({nl + s_keep})")
                k("s_barrier")
                self.flag_store(s_flag, " sc1")
            if kk == 12 and nxt:
                k("s_barrier")
                side = list(nxt)
            k(f"s_waitcnt lgkmcnt({2 if kk < 15 else 0})")
            ks, hf = kk >> 1, kk & 1
            fill = rd(n) if n < 16 else []
            i = 0
            for t in range(2):
                for u in range(2):
                    h = vr(b + 4 * u, 4)
                    for acc, w, tr in ((ak, wk, True), (av, wv, False), (aq, wq, True)):
                        d = vr(acc(t, u), 4)
                        c = "0" if kk == 0 else d
                        a_, b_ = (w(ks, t, hf), h) if tr else (h, w(ks, t, hf))
                        k(f"v_mfma_f32_16x16x32_bf16 {d}, {a_}, {b_}, {c}")
                        i += 1
                        if fill and i % 2 == 1:
                            k(fill.pop(0))
                        elif side:
                            k(side.pop(0))
        assert not side
        self.mark(self.mk + 3)
        if which == 0:
            k(f"""s_lshl_b32 s{S_T}, s{S_SEG}, 5
                  s_add_u32 s{S_T}, s{S_T}, s{S_H}
                  s_lshl_b32 s{S_T}, s{S_T}, 13
                  s_add_u32 s{S_T}, s{S_T}, s{S_LW}
                  s_add_u32 s{S_T}, s{S_T}, {KVM_OFF[0]}
                  s_add_u32 s{S_T+1}, s{S_T}, 4096
                  v_mov_b64 v[120:121], -1
                  v_mov_b64 v[122:123], -1
                  buffer_store_dwordx4 v[120:123], v{V_L16}, {WS}, s{S_T} offen sc1
                  buffer_store_dwordx4 v[120:123], v{V_L16}, {WS}, s{S_T+1} offen sc1""")
        for i, (acc, so) in enumerate(((ak, S_T + 5), (aq, S_T + 7))):
            for u in range(2):
                p = RING[2 * i] + u * 4
                for r in range(4):
                    k(f"v_cvt_pk_bf16_f32 v{p+r}, v{acc(0,u)+r}, v{acc(1,u)+r}")
                k(f"buffer_store_dwordx4 {vr(p,4)}, v{V_L16}, {WS}, s{so+u} offen{'' if (i == 1 and qloc) else ' sc1'}")
            if i == 0:
                for t in range(2):
                    p = RING[1] + t * 4
                    for u in range(2):
                        k(f"v_cvt_pk_bf16_f32 v{p+2*u}, v{av(t,u)}, v{av(t,u)+1}")
                        k(f"v_cvt_pk_bf16_f32 v{p+2*u+1}, v{av(t,u)+2}, v{av(t,u)+3}")
                    k(f"buffer_store_dwordx4 {vr(p,4)}, v{V_L16}, {WS}, s{S_T+9} offen offset:{t*1024} sc1")

    def t1b(self, which, s_h, landed=False, reg=0, s_flag=None, voff=None, nxt=(), early=True):
        k = self.k
        HB = 104; ND = 3
        aq = lambda t, u: 88 + (t * 2 + u) * 4
        ak = lambda t, u: 24 + (t * 2 + u) * 4
        av = lambda t, u: 40 + (t * 2 + u) * 4
        big = self.LH != L_H
        if not landed:
            for x in self.t1_dma(s_h, (0, 1, 2, 3) if big else (0, 1, 2), voff, reg):
                k(x)
        self.qkv_base(S_T + 2, which)
        k(f"""s_add_u32 s{S_T+5}, s{S_T+2}, s{S_LW}      ; K u0
              s_add_u32 s{S_T+6}, s{S_T+5}, 4096         ; K u1
              s_add_u32 s{S_T+7}, s{S_T+5}, {16*KB}      ; Q u0
              s_add_u32 s{S_T+8}, s{S_T+5}, {20*KB}      ; Q u1
              s_add_u32 s{S_T+9}, s{S_T+5}, s{S_LW}
              s_add_u32 s{S_T+9}, s{S_T+9}, {8*KB}       ; V""")
        rd = lambda n: [f"ds_read_b128 {vr(HB+(n%ND)*8+4*u,4)}, v{self.THR+(n&3)} offset:{reg*32*KB+((n&15)>>2)*8192+u*4096}" for u in range(2)]
        if not landed:
            k(f"s_waitcnt vmcnt({6 if big else 4})")
            k("s_barrier")
        self.mark(self.mk + 0)
        for x in rd(0) + rd(1):
            k(x)
        if not landed and not big:
            for x in self.t1_dma(s_h, (3,), voff, reg):
                k(x)
        first = []
        if which == 0:
            first += [f"s_lshl_b32 s{S_T}, s{S_SEG}, 5", f"s_add_u32 s{S_T}, s{S_T}, s{S_H}", f"s_lshl_b32 s{S_T}, s{S_T}, 13",
                      f"s_add_u32 s{S_T}, s{S_T}, s{S_LW}", f"s_add_u32 s{S_T}, s{S_T}, {KVM_OFF[0]}", f"s_add_u32 s{S_T+1}, s{S_T}, 4096",
                      "v_mov_b64 v[72:73], -1", "v_mov_b64 v[74:75], -1",
                      f"buffer_store_dwordx4 v[72:75], v{V_L16}, {WS}, s{S_T} offen sc1",
                      f"buffer_store_dwordx4 v[72:75], v{V_L16}, {WS}, s{S_T+1} offen sc1"]
        first = list(nxt) + first
        side = []
        P = 56
        for u in range(2):
            for r in range(4):
                side.append(f"v_cvt_pk_bf16_f32 v{P+4*u+r}, v{ak(0,u)+r}, v{ak(1,u)+r}")
            side.append(f"buffer_store_dwordx4 {vr(P+4*u,4)}, v{V_L16}, {WS}, s{S_T+5+u} offen sc1")
        for t in range(2):
            p = P + 8 + t * 4
            for u in range(2):
                side.append(f"v_cvt_pk_bf16_f32 v{p+2*u}, v{av(t,u)}, v{av(t,u)+1}")
                side.append(f"v_cvt_pk_bf16_f32 v{p+2*u+1}, v{av(t,u)+2}, v{av(t,u)+3}")
            side.append(f"buffer_store_dwordx4 {vr(p,4)}, v{V_L16}, {WS}, s{S_T+9} offen offset:{t*1024} sc1")
        for n in range(32):
            kk = n & 15
            b = HB + (n % ND) * 8
            m = n + 2
            if m in (4, 8, 12) and (not landed or (m == 12 and s_flag)):
                k(f"s_waitcnt vmcnt({(12 - m) // 2})")
                k("s_barrier")
                if m == 12 and s_flag:
                    self.flag_store(s_flag, " sc1")
            if n == 16:
                self.mark(self.mk + 1)
            k(f"s_waitcnt lgkmcnt({2 if n < 31 else 0})")
            ks, hf = kk >> 1, kk & 1
            fill = rd(m) if m < 32 else []
            i = 0
            cur = first if 10 <= n < 16 else (side if n > 16 else [])
            for t in range(2):
                for u in range(2):
                    h = vr(b + 4 * u, 4)
                    for acc, w, tr in (((ak, wk, True), (av, wv, False)) if n < 16 else ((aq, wq, True),)):
                        d = vr(acc(t, u), 4)
                        c = "0" if kk == 0 else d
                        a_, b_ = (w(ks, t, hf), h) if tr else (h, w(ks, t, hf))
                        k(f"v_mfma_f32_16x16x32_bf16 {d}, {a_}, {b_}, {c}")
                        i += 1
                        if fill and i % 2 == 1:
                            k(fill.pop(0))
                        else:
                            for _ in range(1 if n < 16 else 2):
                                if cur:
                                    k(cur.pop(0))
        assert not first and not side, (len(first), len(side))
        self.mark(self.mk + 3)
        for u in range(2):
            for r in range(4):
                k(f"v_cvt_pk_bf16_f32 v{HB+4*u+r}, v{aq(0,u)+r}, v{aq(1,u)+r}")
        for u in range(2):
            k(f"buffer_store_dwordx4 {vr(HB+4*u,4)}, v{V_L16}, {WS}, s{S_T+7+u} offen sc1")
        if early:
            self.page(S_T + 3, F_KV[which])
            self.flag_set(S_T + 3, " sc1", keep=2)
        else:
            k("s_waitcnt vmcnt(6)")
            k("s_barrier")

    def make_sel(self, dst, t):
        k = self.k
        k(f"""v_and_b32 v{t}, 15, v{V_LANE}
              v_and_b32 v{t+1}, 1, v{V_LANE}
              v_lshlrev_b32 v{t+1}, 4, v{t+1}
              v_mov_b32 v{t+2}, 0x3f80
              v_lshlrev_b32 v{t+2}, v{t+1}, v{t+2}
              v_lshrrev_b32 v{t}, 1, v{t}""")
        for q in range(4):
            k(f"v_cmp_eq_u32 vcc, {q}, v{t}")
            k(f"v_cndmask_b32 v{dst+q}, 0, v{t+2}, vcc")

    def softmax(self, S, P, t, fill=None, half=False):
        k = self.k
        fill = list(fill or [])
        def f(n=1):
            for _ in range(n):
                if fill:
                    k(fill.pop(0))
        if half:
            k(f"""v_max3_f32 v{t}, v{S}, v{S+1}, v{S+2}
                  v_max3_f32 v{t+1}, v{S+3}, v{S+10}, v{S+11}""")
        else:
            k(f"""v_max3_f32 v{t}, v{S}, v{S+1}, v{S+2}
                  v_max3_f32 v{t+1}, v{S+3}, v{S+4}, v{S+5}
                  v_max3_f32 v{t}, v{S+6}, v{S+7}, v{t}
                  v_max3_f32 v{t+1}, v{S+10}, v{S+11}, v{t+1}""")
        k(f"""v_max_f32 v{t}, v{t}, v{t+1}
              v_max_f32 v{t+1}, v{t}, v{t+1}""")
        f()
        k(f"""v_permlane16_swap_b32 v{t}, v{t+1}
              v_max_f32 v{t}, v{t}, v{t+1}
              v_max_f32 v{t+1}, v{t}, v{t+1}""")
        f()
        k(f"""v_permlane32_swap_b32 v{t}, v{t+1}
              v_max_f32 v{t}, v{t}, v{t+1}
              v_mul_f32 v{t}, s{S_C}, v{t}""")
        order = [0, 1, 2, 3, 10, 11] if half else [0, 1, 2, 3, 4, 5, 6, 7, 10, 11]
        k(f"v_fma_f32 v{S+order[0]}, v{S+order[0]}, s{S_C}, -v{t}")
        for n, i in enumerate(order):
            if n + 1 < len(order):
                j = order[n + 1]
                k(f"v_fma_f32 v{S+j}, v{S+j}, s{S_C}, -v{t}")
            k(f"v_exp_f32 v{S+i}, v{S+i}")
        for q in range(2 if half else 4):
            k(f"v_cvt_pk_bf16_f32 v{P+q}, v{S+2*q}, v{S+2*q+1}")
        k(f"v_cvt_pk_bf16_f32 v{P+4}, v{S+10}, v{S+11}")
        f(len(fill))

    def chain(self, c):
        k = self.k
        opt = self.opt
        IDX, IDX2, QKW, QKR0, QKR1, OW, OR, PST, MST, WOB, OB, MV = 2, 3, 4, 5, 6, 7, 8, 9, 10, 11, 1, 13
        CK = 12
        MX = 14
        SEL, TCH, STS = 18, 22, 23
        M, KX, VX, QK, VA, T = 24, 56, 88, 96, 112, 120
        sMEM, sPC, sRD, sKV, sKVM, sRST, sM2, sU, sNAN, sW2, sFAIL, sPG, sOK, sREC, sFK, sFKB = (S_T + i for i in range(8, 24))
        sMX, sMXB = S_A, S_B
        reg = min(c, 1)
        k(f"""v_and_b32 v{T}, 15, v{V_LANE}          ; c
              v_lshrrev_b32 v{T+1}, 4, v{V_LANE}     ; g
              v_and_b32 v{T+2}, 2, v{V_LANE}
              v_cmp_eq_u32 vcc, 0, v{T+2}
              v_mov_b32 v{IDX}, 0xeeee
              v_mov_b32 v{T+3}, 0x4444
              v_cndmask_b32 v{IDX}, v{IDX}, v{T+3}, vcc
              v_and_b32 v{T+2}, 1, v{V_LANE}
              v_cmp_eq_u32 vcc, 0, v{T+2}
              v_mov_b32 v{IDX2}, 0xdddd
              v_mov_b32 v{T+3}, 0x8888
              v_cndmask_b32 v{IDX2}, v{IDX2}, v{T+3}, vcc""")
        k(f"""v_lshrrev_b32 v{T+2}, 1, v{T}           ; b
              v_bfe_u32 v{T+3}, v{T}, 2, 1
              v_xor_b32 v{T+3}, v{T+3}, v{T+2}
              v_lshlrev_b32 v{QKW}, 7, v{T+3}
              v_and_b32 v{T+3}, 1, v{T}
              v_lshl_add_u32 v{QKW}, v{T+3}, 6, v{QKW}
              v_xor_b32 v{T+3}, v{T+1}, v{T+2}
              v_and_b32 v{T+3}, 3, v{T+3}
              v_lshl_add_u32 v{QKW}, v{T+3}, 4, v{QKW}
              s_lshl_b32 s{S_T}, s{S_W}, 10
              s_add_u32 s{S_T}, s{S_T}, {L_QK}
              v_add_u32 v{QKW}, s{S_T}, v{QKW}""")
        for hh, R in ((0, QKR0), (1, QKR1)):
            k(f"""v_lshlrev_b32 v{T+2}, 1, v{T+1}
                  v_add_u32 v{T+2}, {hh}, v{T+2}          ; b
                  v_and_b32 v{T+3}, 1, v{T+1}
                  v_xor_b32 v{T+3}, v{T+3}, v{T+2}
                  v_lshlrev_b32 v{R}, 7, v{T+3}
                  v_bfe_u32 v{T+3}, v{T}, 3, 1
                  v_lshl_add_u32 v{R}, v{T+3}, 6, v{R}
                  v_xor_b32 v{T+3}, v{T}, v{T+2}
                  v_and_b32 v{T+3}, 3, v{T+3}
                  v_lshl_add_u32 v{R}, v{T+3}, 4, v{R}
                  v_bfe_u32 v{T+3}, v{T}, 2, 1
                  v_lshl_add_u32 v{R}, v{T+3}, 3, v{R}
                  v_add_u32 v{R}, {L_QK}, v{R}""")
        k(f"""v_lshlrev_b32 v{OW}, 7, v{T+1}
              v_lshrrev_b32 v{T+2}, 1, v{T}
              v_lshl_add_u32 v{OR}, v{T+2}, 4, v{OW}
              v_add_u32 v{OR}, {L_O}, v{OR}
              v_lshrrev_b32 v{T+2}, 2, v{T}
              v_lshl_add_u32 v{OW}, v{T+2}, 5, v{OW}
              v_and_b32 v{T+2}, 1, v{T}
              v_lshl_add_u32 v{OW}, v{T+2}, 4, v{OW}
              v_and_b32 v{T+2}, 2, v{T}
              v_lshl_add_u32 v{OW}, v{T+2}, 10, v{OW}
              s_lshl_b32 s{S_T}, s{S_W}, 9
              s_add_u32 s{S_T}, s{S_T}, {L_O}
              v_add_u32 v{OW}, s{S_T}, v{OW}""")
        k(f"""v_lshrrev_b32 v{T+2}, 3, v{V_LANE}
              v_lshlrev_b32 v{PST}, 11, v{T+2}
              v_and_b32 v{T+2}, 7, v{V_LANE}
              v_lshl_add_u32 v{PST}, v{T+2}, 3, v{PST}
              s_lshl_b32 s{S_T}, s{S_W}, 14
              s_lshl_b32 s{S_T+1}, s{S_H}, 6
              s_add_u32 s{S_T}, s{S_T}, s{S_T+1}
              v_add_u32 v{PST}, s{S_T}, v{PST}""")
        k(f"""s_lshl_b32 s{sU}, s{S_H}, 2
              s_add_u32 s{sU}, s{sU}, s{S_W}
              s_bfe_u32 s{S_T}, s{sU}, 0x10003
              s_lshl_b32 s{S_T}, s{S_T}, 11              ; ((U>>3)&1)*4 lines*512
              s_and_b32 s{S_T+1}, s{sU}, 1
              s_lshl_b32 s{S_T+1}, s{S_T+1}, 10          ; (U&1)*2 lines
              s_add_u32 s{S_T}, s{S_T}, s{S_T+1}
              s_bfe_u32 s{S_T+1}, s{sU}, 0x10002
              s_lshl_b32 s{S_T+1}, s{S_T+1}, 9
              s_add_u32 s{S_T}, s{S_T}, s{S_T+1}
              s_bfe_u32 s{S_T+1}, s{sU}, 0x10001
              s_lshl_b32 s{S_T+1}, s{S_T+1}, 6
              s_add_u32 s{S_T}, s{S_T}, s{S_T+1}
              s_bfe_u32 s{S_T+1}, s{sU}, 0x10004
              s_lshl_b32 s{S_T+1}, s{S_T+1}, 8
              s_add_u32 s{S_T}, s{S_T}, s{S_T+1}
              s_bfe_u32 s{S_T+1}, s{sU}, 0x10005
              s_lshl_b32 s{S_T+1}, s{S_T+1}, 7
              s_add_u32 s{S_T}, s{S_T}, s{S_T+1}
              s_bfe_u32 s{S_T+1}, s{sU}, 0x10006
              s_lshl_b32 s{S_T+1}, s{S_T+1}, 12
              s_add_u32 s{S_T}, s{S_T}, s{S_T+1}
              v_and_b32 v{T+2}, 3, v{T}
              v_lshlrev_b32 v{MST}, 2, v{T+2}
              v_bfe_u32 v{T+2}, v{T}, 3, 1
              v_lshl_add_u32 v{MST}, v{T+2}, 4, v{MST}
              v_and_b32 v{T+2}, 1, v{T+1}
              v_lshl_add_u32 v{MST}, v{T+2}, 5, v{MST}
              v_add_u32 v{MST}, s{S_T}, v{MST}
              v_and_b32 v{T+3}, 36, v{V_LANE}
              v_mov_b32 v{T+2}, 0x80000000
              v_cmp_eq_u32 vcc, 0, v{T+3}
              v_cndmask_b32 v{MST}, v{T+2}, v{MST}, vcc
              s_lshl_b32 s{S_T}, s{S_W}, 15
              v_add_u32 v{WOB}, s{S_T}, v{V_L16}
              s_lshl_b32 s{sU}, s{sU}, 11
              s_lshl_b32 s{sW2}, s{S_W}, 11
              s_mov_b32 s{sNAN}, 0xffc00000
              s_mov_b32 s{sFAIL}, 0""")
        self.mfrag_voff(MV, T + 2)
        self.make_sel(SEL, T + 2)
        k(f"""s_and_b32 s{S_T}, s{S_W}, 1
              s_lshl_b32 s{S_T}, s{S_T}, 8
              s_and_b32 s{S_T+1}, s{S_W}, 2
              s_lshl_b32 s{S_T+1}, s{S_T+1}, 6
              s_add_u32 s{S_T}, s{S_T}, s{S_T+1}
              v_add_u32 v{MV}, s{S_T}, v{MV}""")
        for i in range(4):
            k(f"""s_xor_b32 s{S_T}, s{S_W}, {i}
                  s_lshl_b32 s{S_T}, s{S_T}, 10
                  s_add_u32 s{S_T}, s{S_T}, {L_QK}
                  v_add_u32 v{MX+i}, s{S_T}, v{V_L16}""")
        k(f"""v_add_u32 v{TCH}, {MEM_OFF[c] + 2*8192}, v{MST}
              s_lshl_b32 s{S_T}, s{S_H}, 2
              s_add_u32 s{S_T}, s{S_T}, {PG_OFF + 2*8192 + F_KV[reg]}
              v_writelane_b32 v{TCH}, s{S_T}, 4
              s_mov_b32 s{S_T}, {PG_OFF + (1+LOOK)*8192 + F_REC}
              v_writelane_b32 v{TCH}, s{S_T}, 5
              v_add_u32 v{OB}, {L_KX}, v{V_L16}
              s_mov_b32 s{sPC}, {PC_OFF[c]}
              s_add_u32 s{sRD}, s{sU}, {PC_OFF[c]}
              s_add_u32 s{sRST}, s{sU}, {PC_OFF[c] + 256*KB}
              s_lshl_b32 s{sFKB}, s{S_H}, 2
              s_add_u32 s{sFKB}, s{sFKB}, {PG_OFF + (F_KM[c] or 0)}
              s_cmp_eq_u32 s{S_W}, 0
              s_cselect_b32 s{sFKB}, s{sFKB}, 0x80000000
              s_cmp_eq_u32 s{S_H}, 0
              s_cselect_b32 s{sMXB}, {MEMX_OFF}, -1
              s_and_b32 s{sMXB}, s{sMXB}, 0x8fffffff
              s_mov_b32 s{S_SEG}, 0""")
        dma = [f"s_add_u32 m0, s{sW2}, {L_KX}",
               f"s_add_u32 s{S_T+1}, s{sKV}, {8*KB}",
               f"buffer_load_dwordx4 v{V_L16}, {WS}, s{sKV} offen sc1 lds",
               f"buffer_load_dwordx4 v{V_L16}, {WS}, s{sKV} offen offset:1024 sc1 lds",
               f"s_add_u32 m0, s{sW2}, {L_VX}",
               f"s_add_u32 s{sKV}, s{sKV}, {32*24*KB}",
               f"buffer_load_dwordx4 v{V_L16}, {WS}, s{S_T+1} offen sc1 lds",
               f"buffer_load_dwordx4 v{V_L16}, {WS}, s{S_T+1} offen offset:1024 sc1 lds"]
        def kv_read(extra=None, pos=0):
            for i in range(8):
                if extra and i == pos:
                    k(extra)
                k(f"ds_read_b128 {vr(KX+4*i,4)}, v{OB} offset:{((i&1)*4+(i>>1))*1024}")
            k(f"v_add_u32 v{CK}, s{sW2}, v{OB}")
            for t in range(2):
                k(f"ds_read_b128 {vr(VX+4*t,4)}, v{CK} offset:{L_VX-L_KX+t*1024}")
        def zero(b, n):
            for i in range(0, n, 2):
                k(f"v_mov_b64 {vr(b+i,2)}, 0")
        def mload(hf):
            return f"buffer_load_dwordx4 {vr(M+16*hf,4)}, v{MV}, {WS}, s{sM2 if hf else sMEM} offen sc1"
        def chk(hf):
            b = M + 16 * hf
            return [f"v_max3_u32 v{CK}, v{b}, v{b+1}, v{b+2}", f"v_max_u32 v{CK}, v{b+3}, v{CK}",
                    f"v_cmp_le_u32 vcc, s{sNAN}, v{CK}"]
        mwrite = lambda hf: f"ds_write_b128 v{MX}, {vr(M+16*hf,4)} offset:{hf*4096}"
        mread = lambda hf, i: f"ds_read_b128 {vr(M+16*hf+4*i,4)}, v{MX+i} offset:{hf*4096}"
        assert L_O == L_QK + 4096
        START, KVW, KVB, JW, JUMP = (k.newlabel(x) for x in ("L_cst", "L_ckw", "L_ckb", "L_cjw", "L_cjump"))
        k.label(START)
        if c == 2:
            SC, SD = k.newlabel("L_csc"), k.newlabel("L_csd")
            k(f"s_mov_b32 s{S_T+4}, s{S_SEG}")
            k.label(SC)
            k(f"""s_add_u32 s{S_T+4}, s{S_T+4}, 1
                  s_add_u32 s{S_T+5}, s{S_SEG}, {LOOK}
                  s_min_u32 s{S_T+5}, s{S_T+5}, 63
                  s_cmp_gt_u32 s{S_T+4}, s{S_T+5}
                  s_cbranch_scc1 {SD}""")
            self.page(S_T + 3, F_REC, seg=S_T + 4, head=False)
            self.word_wait(S_T + 3, S_T + 5, va=T)
            k(f"""s_cmp_eq_u32 s{S_T+5}, 2
                  s_cselect_b32 s{S_SEG}, s{S_T+4}, s{S_SEG}
                  s_branch {SC}""")
            k.label(SD)
        first = 2 if c == 2 else reg
        self.ev(40 + c, va=T)
        self.page(S_T + 3, F_KV[first])
        self.word_wait(S_T + 3, S_T + 5, va=T)
        self.qkv_base(S_T, first)
        k(f"s_add_u32 s{sKV}, s{S_T}, s{sW2}")
        for d in dma:
            k(d)
        k(f"""s_lshl_b32 s{sPG}, s{S_SEG}, 13
              s_add_u32 s{sMEM}, s{sPG}, {MEMX_OFF if c == 2 else MEM_OFF[c]}
              s_add_u32 s{sM2}, s{sMEM}, 4096
              s_lshl_b32 s{sKVM}, s{S_SEG}, 5
              s_add_u32 s{sKVM}, s{sKVM}, s{S_H}
              s_lshl_b32 s{sKVM}, s{sKVM}, 13
              s_lshl_b32 s{S_T}, s{S_W}, 10
              s_add_u32 s{sKVM}, s{sKVM}, s{S_T}
              s_add_u32 s{sKVM}, s{sKVM}, {KVM_OFF[c]}
              s_sub_u32 s{sKV}, s{sKV}, {QKV_OFF[first] - QKV_OFF[reg]}
              s_mov_b32 s{sFK}, 0x80000000
              s_cmp_eq_u32 s{S_SEG}, 63
              s_cselect_b32 s{sOK}, 1, 0
              s_waitcnt vmcnt(0)
              s_barrier""")
        kv_read()
        zero(QK, 24)
        LOOP, PA, PAB, END, GO = (k.newlabel(x) for x in ("L_chain", "L_cpa", "L_cpab", "L_cend", "L_cgo"))
        RP, RB, PB, PBB, BACK = (k.newlabel(x) for x in ("L_crp", "L_crb", "L_cpb", "L_cpbb", "L_cback"))
        q_ = lambda t: QK + 8 * t
        k_ = lambda t: QK + 8 * t + 4
        sq = lambda ks, t: f"v_smfmac_f32_16x16x64_bf16 {vr(q_(t),4)}, {vr(M+4*ks,4)}, {wq(ks,t)}, v{IDX}"
        sk = lambda ks, t: f"v_smfmac_f32_16x16x64_bf16 {vr(k_(t),4)}, {vr(M+4*ks,4)}, {wk(ks,t)}, v{IDX}"
        sv = lambda ks, t: f"v_smfmac_f32_16x16x64_bf16 {vr(VA+4*t,4)}, {vr(M+4*ks,4)}, {wv(ks,t)}, v{IDX}"
        qk4 = lambda ks: [sq(ks, 0), sk(ks, 0), sq(ks, 1), sk(ks, 1)]
        vlist = [(ks, t) for ks in range(8) for t in range(2)]
        def vs(n):
            for _ in range(n):
                if vlist:
                    k(sv(*vlist.pop(0)))
        def weave(mm, other):
            other = list(other)
            for o in mm:
                k(o)
                if other:
                    k(other.pop(0))
            for o in other:
                k(o)
        k(mload(0))
        k.label(LOOP)
        self.stamp(0)
        k.label(PA)
        k(mload(0))
        self.spend(0x10000, sFAIL)
        k("s_waitcnt vmcnt(1)")
        for x in chk(0):
            k(x)
        k(f"s_cbranch_vccnz {PA}")
        k.label(GO)
        self.stamp(1)
        k(mwrite(0))
        k(mload(1))
        weave(qk4(0), [dma[0], dma[1]] + ([f"s_add_u32 s{sMX}, s{sMXB}, s{sPG}", f"s_add_u32 s{S_T+2}, s{sMX}, 4096"] if c == 1 else []))
        k("s_waitcnt lgkmcnt(0)")
        k("s_barrier")
        self.stamp("xa")
        for i in range(1, 4):
            k(mread(0, i))
        vs(2)
        k("s_waitcnt lgkmcnt(2)")
        c1 = chk(1)
        weave(qk4(1), [f"s_lshl_b32 s{S_T}, s{S_W}, 10"])
        k("s_waitcnt lgkmcnt(1) vmcnt(0)")
        self.stamp("xb")
        weave(qk4(2), c1)
        k(f"s_cbranch_vccnz {PB}")
        k.label(BACK)
        k("s_waitcnt lgkmcnt(0)")
        k(mwrite(1))
        weave(qk4(3), [f"v_mov_b64 {vr(T,2)}, -1", f"v_mov_b64 {vr(T+2,2)}, -1",
                       f"v_add_u32 v{T+4}, s{S_T}, v{QKR0}", f"v_add_u32 v{T+6}, s{S_T}, v{QKR1}"])
        k("s_waitcnt lgkmcnt(0)")
        k("s_barrier")
        self.stamp("xc")
        weave(qk4(4), [mread(1, i) for i in range(1, 4)])
        rst = [f"buffer_store_dwordx4 {vr(T,4)}, v{V_L16}, {WS}, s{sRST} offen{self.loc}",
               f"buffer_store_dwordx4 {vr(T,4)}, v{V_L16}, {WS}, s{sRST} offen offset:1024{self.loc}"]
        k(f"s_cmp_eq_u32 s{sOK}, 0")
        k(f"s_cbranch_scc1 {KVW}")
        k.label(KVB)
        k("s_waitcnt lgkmcnt(2)")
        weave(qk4(5), dma[2:5] + ["s_waitcnt lgkmcnt(1)"])
        weave(qk4(6), dma[5:8] + ["s_waitcnt lgkmcnt(0)"])
        weave(qk4(7), [f"buffer_load_dword v{STS}, v{TCH}, {WS}, s{sPG} offen sc1"]
              + ([f"buffer_store_dword v{IDX}, off, {WS}, s{sFK} sc1"] if c else []) + rst)
        if c == 1:
            k(f"buffer_store_dwordx4 {vr(M,4)}, v{MV}, {WS}, s{sMX} offen sc1")
            k(f"buffer_store_dwordx4 {vr(M+16,4)}, v{MV}, {WS}, s{S_T+2} offen sc1")
        vs(2)
        self.stamp("back")
        for t in range(2):
            k(f"v_pk_add_f32 {vr(q_(t),2)}, {vr(q_(t),2)}, {vr(q_(t)+2,2)}")
            k(f"v_pk_add_f32 {vr(k_(t),2)}, {vr(k_(t),2)}, {vr(k_(t)+2,2)}")
            k(f"v_cvt_pk_bf16_f32 v{T+2*t}, v{q_(t)}, v{q_(t)+1}")
            k(f"v_cvt_pk_bf16_f32 v{T+2*t+1}, v{k_(t)}, v{k_(t)+1}")
        k(f"ds_write_b128 v{QKW}, {vr(T,4)}")
        vs(4)
        self.stamp("w0")
        k("s_waitcnt lgkmcnt(0)")
        self.stamp("w1")
        k("s_barrier")
        self.stamp(2)
        F = QK
        for kk in range(4):
            k(f"ds_read_b64_tr_b16 {vr(F+4*kk,2)}, v{QKR0} offset:{kk*1024}")
            k(f"ds_read_b64_tr_b16 {vr(F+4*kk+2,2)}, v{QKR1} offset:{kk*1024}")
        k(f"ds_read_b64_tr_b16 {vr(T+4,2)}, v{T+4}")
        k(f"ds_read_b64_tr_b16 {vr(T+6,2)}, v{T+6}")
        vs(opt.get("v3", 2))
        S = M
        slots = [KX, KX + 8, KX + 16, KX + 24, F, F + 8, M + 16, M + 24]
        def wo_reads(u):
            return [f"ds_read_b128 {vr(slots[(u&1)*4+kk]+4*hf,4)}, v{WOB} offset:{((u*4+kk)*2+hf)*1024}"
                    for kk in range(4) for hf in range(2)]
        stage = wo_reads(0) + wo_reads(1)
        for kk in range(4):
            k(f"s_waitcnt lgkmcnt({8 - 2*kk + 2*max(0, kk-1)})")
            f = vr(F + 4 * kk, 4)
            k(f"v_mfma_f32_16x16x32_bf16 {vr(S,4)}, {vr(KX+8*kk,4)}, {f}, {'0' if kk == 0 else vr(S,4)}")
            if kk: k(stage.pop(0))
            k(f"v_mfma_f32_16x16x32_bf16 {vr(S+4,4)}, {vr(KX+8*kk+4,4)}, {f}, {'0' if kk == 0 else vr(S+4,4)}")
            if kk: k(stage.pop(0))
            k(f"v_mfma_f32_16x16x32_bf16 {vr(S+8,4)}, {f}, {f}, {'0' if kk == 0 else vr(S+8,4)}")
        k("s_waitcnt lgkmcnt(6)")
        vs(1)
        if not opt.get("nopub"):
            k(f"buffer_store_dwordx4 {vr(T+4,4)}, v{V_L16}, {WS}, s{sKVM} offen sc1")
        vs(len(vlist))
        self.stamp(3)
        P = T
        k(f"v_mov_b32 v{T+5}, 0")
        ON4 = M + 28
        k(f"v_mov_b64 {vr(ON4,2)}, {sr(S_ONE,2)}")
        k(f"v_mov_b64 {vr(ON4+2,2)}, {sr(S_ONE,2)}")
        self.softmax(S, P, M + 12, fill=[stage.pop(0), stage.pop(0)])
        self.stamp(4)
        VM = M + 12
        O = S; Lr = S + 8
        k(f"v_mfma_f32_16x16x32_bf16 {vr(Lr,4)}, {vr(ON4,4)}, {vr(P,4)}, 0")
        k(f"v_pk_add_f32 {vr(VA,2)}, {vr(VA,2)}, {vr(VA+2,2)}")
        k(f"v_pk_add_f32 {vr(VA+4,2)}, {vr(VA+4,2)}, {vr(VA+6,2)}")
        k(f"v_mfma_f32_16x16x32_bf16 {vr(O,4)}, {vr(VX,4)}, {vr(P,4)}, 0")
        k(f"v_cvt_pk_bf16_f32 v{VM}, v{VA}, v{VA+1}")
        k(f"v_cvt_pk_bf16_f32 v{VM+1}, v{VA+4}, v{VA+5}")
        k(f"v_mfma_f32_16x16x32_bf16 {vr(O+4,4)}, {vr(VX+4,4)}, {vr(P,4)}, 0")
        k(f"v_cvt_pk_bf16_f32 v{VM+2}, v{VA+4}, v{VA+5}")
        k(f"v_mov_b32 v{VM+3}, 0")
        k(f"v_mfma_f32_16x16x16_bf16 {vr(Lr,4)}, {vr(ON4,2)}, {vr(P+4,2)}, {vr(Lr,4)}")
        k(f"s_add_u32 s{S_T}, s{sKVM}, 4096")
        if not opt.get("nopub"):
            k(f"buffer_store_dwordx4 {vr(VM,4)}, v{V_L16}, {WS}, s{S_T} offen sc1")
        for t in range(2):
            k(f"v_mfma_f32_16x16x16_bf16 {vr(O+4*t,4)}, {vr(VM+2*t,2)}, {vr(P+4,2)}, {vr(O+4*t,4)}")
            k(stage.pop(0))
        k(f"v_rcp_f32 v{Lr}, v{Lr}")
        acc = [VA, VA + 4, VX, VX + 4]
        zero(VA, 4)
        for e in range(0, 8, 2):
            k(f"v_pk_mul_f32 {vr(O+e,2)}, {vr(O+e,2)}, {vr(Lr,2)} op_sel_hi:[1,0]")
            if e == 2:
                zero(VA + 4, 4)
        for r in range(4):
            k(f"v_cvt_pk_bf16_f32 v{T+r}, v{O+r}, v{O+4+r}")
        k(f"ds_write_b128 v{OW}, {vr(T,4)}")
        npre = opt.get("npre", 4)
        for _ in range(npre):
            k(stage.pop(0))
        k(f"s_waitcnt lgkmcnt({npre})")
        k("s_barrier")
        self.stamp(5)
        OA = M
        for kk in range(4):
            k(f"ds_read_b128 {vr(OA+4*kk,4)}, v{OR} offset:{kk*512}")
        n_st = len(stage)
        for x in stage:
            k(x)
        def wo_mm(u, kk):
            k(f"v_smfmac_f32_16x16x64_bf16 {vr(acc[u],4)}, {vr(OA+4*kk,4)}, {vr(slots[(u&1)*4+kk],8)}, v{IDX2}")
        def wo_out(u):
            a = acc[u]
            k(f"v_cvt_pk_bf16_f32 v{a}, v{a}, v{a+1}")
            k(f"v_cvt_pk_bf16_f32 v{a+1}, v{a+2}, v{a+3}")
            if u:
                k(f"s_add_u32 s{S_T}, s{sPC}, {u*64*KB}")
            k(f"buffer_store_dwordx2 {vr(a,2)}, v{PST}, {WS}, s{S_T if u else sPC} offen{self.loc}")
        r2 = wo_reads(2); r3 = wo_reads(3)
        zero(VX, 8)
        for kk in range(4):
            k(f"s_waitcnt lgkmcnt({3 - kk + n_st + 2*kk})")
            wo_mm(0, kk)
            k(r2[2*kk]); k(r2[2*kk+1])
        k("s_waitcnt lgkmcnt(8)")
        for kk in range(4):
            wo_mm(1, kk)
            if kk == 1:
                wo_out(0)
            if kk == 3:
                k("s_waitcnt lgkmcnt(12)")
            k(r3[2*kk]); k(r3[2*kk+1])
        for kk in range(4):
            k(f"s_waitcnt lgkmcnt({14-2*kk})")
            wo_mm(2, kk)
            if kk == 0:
                wo_out(1)
        R = T; RA = KX
        def rloads():
            for i in range(2):
                k(f"buffer_load_dwordx4 {vr(R+4*i,4)}, v{V_L16}, {WS}, s{sRD} offen offset:{i*1024} sc1")
        def reduce(RA, w0, w1, retry):
            k(f"s_waitcnt vmcnt({w0})")
            self.stamp("r2")
            k(f"v_mfma_f32_16x16x32_bf16 {vr(RA,4)}, {vr(SEL,4)}, {vr(R,4)}, 0")
            k(f"s_waitcnt vmcnt({w1})")
            k(f"v_mfma_f32_16x16x32_bf16 {vr(RA,4)}, {vr(SEL,4)}, {vr(R+4,4)}, {vr(RA,4)}")
            k(f"""v_cmp_u_f32 vcc, v{RA}, v{RA}
                  v_add_f32_dpp v{RA+4}, v{RA}, v{RA} row_ror:8 row_mask:0xf bank_mask:0x3
                  v_add_f32_dpp v{RA+5}, v{RA+1}, v{RA+1} row_ror:8 row_mask:0xf bank_mask:0x3
                  v_add_f32_dpp v{RA+4}, v{RA+2}, v{RA+2} row_ror:8 row_mask:0xf bank_mask:0xc
                  v_add_f32_dpp v{RA+5}, v{RA+3}, v{RA+3} row_ror:8 row_mask:0xf bank_mask:0xc
                  v_add_f32_dpp v{RA+4}, v{RA+4}, v{RA+4} row_shl:4 row_mask:0xf bank_mask:0x5
                  v_add_f32_dpp v{RA+5}, v{RA+5}, v{RA+5} row_shl:4 row_mask:0xf bank_mask:0x5
                  s_cbranch_vccnz {retry}
                  v_cvt_pk_bf16_f32 v{RA+6}, v{RA+4}, v{RA+5}
                  buffer_store_dword v{RA+6}, v{MST}, {WS}, s{sMEM} offen{self.loc}""")
        for kk in range(4):
            k(f"s_waitcnt lgkmcnt({6-2*kk})")
            wo_mm(3, kk)
            if kk == 1:
                wo_out(2)
        k(f"""s_add_u32 s{sFK}, s{sFKB}, s{sPG}
              s_add_u32 s{sPG}, s{sPG}, 8192
              s_add_u32 s{sMEM}, s{sPG}, {MEM_OFF[c]}
              s_add_u32 s{sM2}, s{sMEM}, 4096
              s_add_u32 s{sKVM}, s{sKVM}, {32*8*KB}
              s_add_u32 s{S_SEG}, s{S_SEG}, 1""")
        wo_out(3)
        self.stamp(6)
        RA = M + 4
        npub = 0 if opt.get("nopub") else 2
        EARLY, R1 = k.newlabel("L_cea"), k.newlabel("L_cr1")
        k(f"""s_xor_b32 s{sPC}, s{sPC}, {256*KB}
              s_cmp_eq_u32 s{S_SEG}, 64
              s_cbranch_scc1 {END}
              s_cmp_lt_u32 s{S_H}, 16
              s_waitcnt vmcnt({opt.get("ea", 2)})
              s_cbranch_scc1 {EARLY}""")
        def status():
            k(f"""v_readlane_b32 s{sOK}, v{STS}, 4
                  s_cmp_ge_u32 s{S_SEG}, 63
                  s_cselect_b32 s{sOK}, 1, s{sOK}""")
            if c == 2:
                k(f"""v_readlane_b32 s{sREC}, v{STS}, 5
                      s_cmp_gt_u32 s{S_SEG}, {63 - LOOK}
                      s_cselect_b32 s{sREC}, 1, s{sREC}""")
        def tail():
            if self.stamps > 1:
                NX = k.newlabel("L_cnx")
                k(f"""s_and_b32 s{S_T}, s{S_SEG}, 7
                      s_cmp_lg_u32 s{S_T}, 7
                      s_cbranch_scc1 {NX}""")
                if c == opt.get("stc", 0):
                    self.dump_stamps(8, sFAIL)
                k.label(NX)
            self.ev(50 + c, va=M + 12)
            if c == 2:
                k(f"""s_cmp_lg_u32 s{sREC}, 1
                      s_cbranch_scc1 {JW}""")
            k(f"s_branch {LOOP}")
        k("s_barrier")
        kv_read()
        zero(QK, 24)
        status()
        k("s_waitcnt vmcnt(0)")
        k.label(RP)
        rloads()
        self.spend(0x100, sFAIL)
        reduce(RA, 1, 0, RP)
        k(f"""s_mov_b32 s{sRST}, s{sRD}
              s_xor_b32 s{sRD}, s{sRD}, {256*KB}""")
        self.stamp(7)
        k(mload(0))
        tail()
        k.label(EARLY)
        rloads()
        zero(QK, 24)
        status()
        k(f"s_branch {R1}")
        k.label(RB)
        rloads()
        k.label(R1)
        self.spend(0x100, sFAIL)
        reduce(RA, 1, 0, RB)
        k(f"""s_mov_b32 s{sRST}, s{sRD}
              s_xor_b32 s{sRD}, s{sRD}, {256*KB}""")
        self.stamp(7)
        k("s_barrier")
        kv_read(mload(0), opt.get("mpos", 4))
        tail()
        k.label(KVW)
        k(f"""s_lshl2_add_u32 s{S_T+3}, s{S_H}, s{sPG}
              s_add_u32 s{S_T+3}, s{S_T+3}, {PG_OFF + 8192 + F_KV[reg]}""")
        self.word_wait(S_T + 3, sOK, va=STS)
        k(f"s_branch {KVB}")
        if c == 2:
            k.label(JW)
            k(f"s_add_u32 s{S_T+3}, s{sPG}, {PG_OFF + LOOK*8192 + F_REC}")
            self.word_wait(S_T + 3, sREC, va=T)
            k(f"""s_cmp_eq_u32 s{sREC}, 1
                  s_cbranch_scc1 {LOOP}""")
            k.label(JUMP)
            k(mload(0)); k(mload(1))
            self.spend()
            k("s_waitcnt vmcnt(0)")
            k(chk(0)[0]); k(chk(0)[1])
            k(f"""v_max3_u32 v{CK}, v{M+16}, v{M+17}, v{CK}
                  v_max3_u32 v{CK}, v{M+18}, v{M+19}, v{CK}
                  v_cmp_le_u32 vcc, s{sNAN}, v{CK}
                  s_cbranch_vccnz {JUMP}
                  s_waitcnt lgkmcnt(0)
                  s_barrier
                  s_add_u32 s{S_SEG}, s{S_SEG}, {LOOK}
                  s_branch {START}""")
        k.label(PB)
        if self.stamps:
            k(f"s_add_u32 s{sFAIL}, s{sFAIL}, 1")
        k(mload(1))
        k("s_waitcnt vmcnt(0)")
        for x in chk(1):
            k(x)
        k(f"s_cbranch_vccz {BACK}")
        self.budget(PB)
        k.label(END)
        k("s_waitcnt vmcnt(0)")
        k("s_barrier")
        if c:
            k(f"buffer_store_dword v{IDX}, off, {WS}, s{sFK} sc1")
        k.fence()
        k(f"v_lshrrev_b32 v{V_LANE}, 4, v{V_L16}")

    def dump_stamps(self, n, extra=None):
        k = self.k
        k(f"""s_waitcnt lgkmcnt(0)
              s_lshl_b32 s{S_T}, s{S_SEG}, 5
              s_add_u32 s{S_T}, s{S_T}, s{S_H}
              s_lshl_b32 s{S_T}, s{S_T}, 2
              s_add_u32 s{S_T}, s{S_T}, s{S_W}
              s_lshl_b32 s{S_T}, s{S_T}, 6
              s_add_u32 s{S_T}, s{S_T}, {STAMP_OFF}
              v_mov_b32 v36, 0""")
        for i in range(n):
            k(f"v_writelane_b32 v36, s{84+2*i}, {i}")
        if extra is not None:
            k(f"v_writelane_b32 v36, s{extra}, 8")
            k(f"s_mov_b32 s{extra}, 0")
        k(f"""v_lshrrev_b32 v37, 2, v{V_L16}
              s_mov_b64 exec, 0xffff
              buffer_store_dword v36, v37, {WS}, s{S_T} offen
              s_mov_b64 exec, -1""")

    def proj_consts(self):
        k = self.k
        self.THR, self.TOB, self.TWO, self.THD, self.TRW, self.TRL = 4, 17, 18, 20, 21, 22
        T = 120
        k(f"""v_and_b32 v{T}, 15, v{V_LANE}
              v_lshrrev_b32 v{T+1}, 4, v{V_LANE}
              v_mov_b32 v{self.TOB}, 1
              s_lshl_b32 s{S_T}, s{S_W}, 15
              v_add_u32 v{self.TWO}, s{S_T}, v{V_L16}
              s_lshl_b32 s{S_T}, s{S_W}, 2
              v_add_u32 v{T+5}, s{S_T}, v{T+1}            ; row 4w+g
              v_xor_b32 v{T+6}, v{T+5}, v{T}
              v_lshlrev_b32 v{T+6}, 4, v{T+6}
              v_lshl_add_u32 v{self.THD}, v{T+5}, 10, v{T+6}""")
        for kq in range(4):
            k(f"""v_add_u32 v{T+5}, {4*kq}, v{T+1}
                  v_xor_b32 v{T+5}, v{T+5}, v{T}
                  v_lshlrev_b32 v{T+5}, 4, v{T+5}
                  v_lshl_add_u32 v{T+5}, v{T}, 8, v{T+5}
                  v_add_u32 v{self.THR+kq}, {self.LH}, v{T+5}""")
        k(f"""v_lshlrev_b32 v{self.TRW}, 5, v{T}
              v_and_b32 v{T+5}, 1, v{T+1}
              v_lshl_add_u32 v{self.TRW}, v{T+5}, 4, v{self.TRW}
              s_lshl_b32 s{S_T}, s{S_W}, 9
              v_lshrrev_b32 v{T+5}, 1, v{T+1}
              v_lshl_add_u32 v{self.TRW}, v{T+5}, 11, v{self.TRW}
              s_add_u32 s{S_T}, s{S_T}, {L_ROW}
              v_add_u32 v{self.TRW}, s{S_T}, v{self.TRW}
              v_lshlrev_b32 v{self.TRL}, 4, v{T}
              v_lshl_add_u32 v{self.TRL}, v{T+1}, 10, v{self.TRL}
              s_lshl_b32 s{S_T}, s{S_W}, 8
              v_add_u32 v{self.TRL}, s{S_T}, v{self.TRL}""")

    def flag_set(self, s_off, loc, keep=0):
        self.k(f"""s_waitcnt vmcnt({keep})
                   s_barrier""")
        self.flag_store(s_off, loc)

    def flags_wait32(self, s_off):
        k = self.k
        L = k.newlabel("L_fw")
        k(f"""v_and_b32 v124, 31, v{V_LANE}
              v_lshlrev_b32 v124, 2, v124""")
        k.label(L)
        k(f"buffer_load_dword v125, v124, {WS}, s{s_off} offen sc1")
        self.spend()
        k(f"""s_waitcnt vmcnt(0)
              v_cmp_eq_u32 vcc, 0, v125
              s_cbranch_vccnz {L}""")

    def reduce32(self, s_base, natural):
        k = self.k
        D = 24; SEL = 56; A = 60
        for i in range(8):
            k(f"s_add_u32 s{S_T+7}, s{s_base}, {i*4096}")
            k(f"buffer_load_dwordx4 {vr(D+4*i,4)}, v{self.TRL}, {WS}, s{S_T+7} offen sc1")
        self.make_sel(SEL, 64)
        for i in range(8):
            k(f"s_waitcnt vmcnt({7-i})")
            k(f"v_mfma_f32_16x16x32_bf16 {vr(A,4)}, {vr(SEL,4)}, {vr(D+4*i,4)}, {'0' if i == 0 else vr(A,4)}")
        if natural:
            k(f"ds_write_b128 v{self.TRW}, {vr(A,4)}")
        else:
            k(f"ds_write2_b64 v{self.TRW}, {vr(A,2)}, {vr(A+2,2)} offset0:0 offset1:64")
        k(f"""s_waitcnt lgkmcnt(0)
              s_barrier""")

    def one_lane_store(self, v, s_off, fl):
        self.k(f"""s_mov_b64 exec, 1
                   buffer_store_dword v{v}, off, {WS}, s{s_off}{fl}
                   s_mov_b64 exec, -1""")

    def wmax_u32(self, x, t):
        k = self.k
        for r in (8, 4, 2, 1):
            k(f"v_max_u32_dpp v{x}, v{x}, v{x} row_ror:{r} row_mask:0xf bank_mask:0xf")
        k(f"""v_mov_b32 v{t}, v{x}
              v_permlane16_swap_b32 v{x}, v{t}
              v_max_u32 v{x}, v{x}, v{t}
              v_mov_b32 v{t}, v{x}
              v_permlane32_swap_b32 v{x}, v{t}
              v_max_u32 v{x}, v{x}, v{t}""")

    def load_gate_up(self):
        k = self.k
        k(f"""v_and_b32 v33, 15, v{V_LANE}
              v_lshrrev_b32 v34, 4, v{V_LANE}
              s_min_u32 s{S_T+4}, s{S_H}, 27
              s_lshl_b32 s{S_T+4}, s{S_T+4}, 7            ; 64 cols * 2B
              s_mul_i32 s{S_T+3}, s{S_W}, {128*3584}
              s_add_u32 s{S_T+4}, s{S_T+4}, s{S_T+3}
              v_mul_u32_u24 v36, {32*3584}, v34
              v_and_b32 v35, 7, v33
              v_lshl_add_u32 v36, v35, 4, v36
              v_add_u32 v36, s{S_T+4}, v36
              v_cmp_gt_u32 vcc, 8, v33
              v_mov_b32 v38, s{P_WU}
              v_mov_b32 v39, s{P_WU+1}
              v_mov_b32 v40, s{P_WG}
              v_mov_b32 v41, s{P_WG+1}
              v_cndmask_b32 v38, v38, v40, vcc
              v_cndmask_b32 v39, v39, v41, vcc
              v_add_co_u32 v38, vcc, v38, v36
              v_addc_co_u32 v39, vcc, 0, v39, vcc
              s_lshl_b32 s{S_T}, s{S_W}, 15
              v_add_u32 v37, s{S_T}, v{V_L16}""")
        for half in range(2):
            for i in range(16):
                k(f"global_load_dwordx4 {vr(44+4*i,4)}, v[38:39], off")
                k(f"v_add_co_u32 v38, vcc, 3584, v38")
                k(f"v_addc_co_u32 v39, vcc, 0, v39, vcc")
            for i in range(16):
                k(f"s_waitcnt vmcnt({15-i})")
                k(f"ds_write_b128 v37, {vr(44+4*i,4)} offset:{(16*half+i)*1024}")
                if i % 8 == 7:
                    k("s_waitcnt lgkmcnt(0)")

    def moe(self, layer, sKEY):
        k = self.k
        sROW = S_T + 8
        LD = 24
        X, YP, TM = 96, 104, 108
        XB, AF, ACC, MK, G = 88, 124, 116, 12, 108
        A0, A1, A2 = 8, 9, 10
        k(f"""s_and_b32 s{sROW}, s{sKEY}, 0x7ff
              s_sub_u32 s{sROW}, 2047, s{sROW}""")
        k(f"s_lshl_b32 s{S_T}, s{sROW}, 10")
        k(f"""s_add_u32 s{S_T+2}, s{S_T}, {X1_OFF[layer]}
              buffer_load_dwordx4 {vr(XB,4)}, v{V_L16}, {WS}, s{S_T+2} offen sc1""")
        self.srd(P_WD, 1792 * 1024)
        k(f"""v_and_b32 v{A1}, 15, v{V_LANE}
              v_lshrrev_b32 v{A2}, 4, v{V_LANE}
              v_lshlrev_b32 v{A0}, 14, v{A2}
              v_lshl_add_u32 v{A0}, v{A1}, 4, v{A0}
              s_lshl_b32 s{S_T+3}, s{S_H}, 16
              s_lshl_b32 s{S_T+4}, s{S_W}, 8
              s_add_u32 s{S_T+3}, s{S_T+3}, s{S_T+4}""")
        for i in range(16):
            if i % 4 == 0 and i > 0:
                k(f"s_add_u32 s{S_T+3}, s{S_T+3}, 4096")
            k(f"buffer_load_dwordx4 {vr(LD+i*4,4)}, v{A0}, {SA}, s{S_T+3} offen offset:{(i%4)*1024}")
        k(f"""v_and_b32 v{AF}, 1, v{V_LANE}
              v_lshlrev_b32 v{AF}, 4, v{AF}
              v_mov_b32 v{AF+1}, 0xffff
              v_lshlrev_b32 v{AF+1}, v{AF}, v{AF+1}
              v_lshrrev_b32 v{AF}, 1, v{A1}""")
        for q in range(4):
            k(f"v_cmp_eq_u32 vcc, {q}, v{AF}")
            k(f"v_cndmask_b32 v{MK+q}, 0, v{AF+1}, vcc")
        k("s_waitcnt vmcnt(16)")
        if layer == 0:
            XL, XD = k.newlabel("L_mx"), k.newlabel("L_mxd")
            k.label(XL)
            k(f"""v_max3_u32 v{AF}, v{XB}, v{XB+1}, v{XB+2}
                  v_max_u32 v{AF}, v{XB+3}, v{AF}
                  v_cmp_eq_u32 vcc, -1, v{AF}
                  s_cbranch_vccz {XD}
                  buffer_load_dwordx4 {vr(XB,4)}, v{V_L16}, {WS}, s{S_T+2} offen sc1""")
            self.spend()
            k(f"""s_waitcnt vmcnt(0)
                  s_branch {XL}""")
            k.label(XD)
        self.unpack8(X, XB)
        self.layernorm(X, YP, TM)
        TAB = L_MOE
        k(f"""s_mov_b32 s{S_T+2}, 0x01000100
              s_mov_b32 s{S_T+3}, 0x03020302""")
        for q in range(4):
            k(f"v_perm_b32 v{XB+2*q}, v{YP+q}, v{YP+q}, s{S_T+2}")
            k(f"v_perm_b32 v{XB+1+2*q}, v{YP+q}, v{YP+q}, s{S_T+3}")
        k(f"""v_lshlrev_b32 v{A0}, 5, v{V_LANE}
              s_lshl_b32 s{S_T+2}, s{S_W}, 11
              s_add_u32 s{S_T+2}, s{S_T+2}, {TAB}
              v_add_u32 v{A0}, s{S_T+2}, v{A0}
              ds_write_b128 v{A0}, {vr(XB,4)}
              ds_write_b128 v{A0}, {vr(XB+4,4)} offset:16
              s_lshl_b32 s{S_T+3}, s{S_W}, 9
              s_add_u32 s{S_T+3}, s{S_T+2}, s{S_T+3}
              v_lshlrev_b32 v{A0}, 7, v{A2}
              v_add_u32 v{A0}, s{S_T+3}, v{A0}
              s_waitcnt lgkmcnt(0)""")
        gread = lambda i: k(f"ds_read_b128 {vr(G+4*(i&1),4)}, v{self.TWO} offset:{i*1024}")
        gread(0)
        for i in range(32):
            if i % 8 == 0:
                k(f"""ds_read_b128 {vr(XB,4)}, v{A0} offset:{i*4}
                      ds_read_b128 {vr(XB+4,4)}, v{A0} offset:{i*4+16}""")
            if i + 1 < 32:
                gread(i + 1)
            k(f"s_waitcnt lgkmcnt({1 if i + 1 < 32 else 0})")
            for q in range(4):
                k(f"v_and_b32 v{AF+q}, v{MK+q}, v{XB+i%8}")
            k(f"v_mfma_f32_16x16x32_bf16 {vr(ACC,4)}, {vr(AF,4)}, {vr(G+4*(i&1),4)}, {'0' if i == 0 else vr(ACC,4)}")
        RED = L_MOE + 8 * KB
        k(f"""v_lshlrev_b32 v{A0}, 5, v{A1}
              v_and_b32 v{AF}, 1, v{A2}
              v_lshl_add_u32 v{A0}, v{AF}, 4, v{A0}
              v_lshrrev_b32 v{AF}, 1, v{A2}
              v_lshl_add_u32 v{A0}, v{AF}, 11, v{A0}
              s_lshl_b32 s{S_T+4}, s{S_W}, 9
              s_add_u32 s{S_T+4}, s{S_T+4}, {RED}
              v_add_u32 v{A0}, s{S_T+4}, v{A0}
              ds_write_b128 v{A0}, {vr(ACC,4)}
              v_lshlrev_b32 v{A0}, 2, v{V_LANE}
              v_add_u32 v{A0}, {RED}, v{A0}
              s_waitcnt lgkmcnt(0)
              s_barrier""")
        for w in range(4):
            k(f"ds_read2st64_b32 {vr(XB+2*w,2)}, v{A0} offset0:{2*w} offset1:{2*w+1}")
        k("s_waitcnt lgkmcnt(0)")
        k(f"""v_pk_add_f32 {vr(XB,2)}, {vr(XB,2)}, {vr(XB+2,2)}
              v_pk_add_f32 {vr(XB+4,2)}, {vr(XB+4,2)}, {vr(XB+6,2)}
              v_pk_add_f32 {vr(XB,2)}, {vr(XB,2)}, {vr(XB+4,2)}""")
        self.round1(XB)
        self.round1(XB + 1)
        k(f"""v_mul_f32 v{XB+2}, {f32(-math.log2(math.e))}, v{XB}
              v_exp_f32 v{XB+2}, v{XB+2}
              v_add_f32 v{XB+2}, 1.0, v{XB+2}
              v_rcp_f32 v{XB+2}, v{XB+2}
              v_mul_f32 v{XB}, v{XB}, v{XB+2}""")
        self.round1(XB)
        k(f"""v_mul_f32 v{XB}, v{XB}, v{XB+1}
              v_cvt_pk_bf16_f32 v{XB}, v{XB}, v{XB}
              v_lshlrev_b32 v{A0}, 2, v{V_LANE}
              v_add_u32 v{A0}, s{S_T+2}, v{A0}
              ds_write_b32 v{A0}, v{XB}
              v_lshlrev_b32 v{A0}, 6, v{A2}
              v_add_u32 v{A0}, s{S_T+2}, v{A0}
              s_waitcnt lgkmcnt(0)
              ds_read_b128 {vr(XB,4)}, v{A0}
              ds_read_b128 {vr(XB+4,4)}, v{A0} offset:16
              ds_read_b128 {vr(G,4)}, v{A0} offset:32
              ds_read_b128 {vr(G+4,4)}, v{A0} offset:48
              s_waitcnt vmcnt(0) lgkmcnt(0)""")
        for i in range(16):
            for q in range(4):
                k(f"v_and_b32 v{AF+q}, v{MK+q}, v{(XB if i < 8 else G)+i%8}")
            k(f"v_mfma_f32_16x16x32_bf16 {vr(ACC,4)}, {vr(AF,4)}, {vr(LD+i*4,4)}, {'0' if i == 0 else vr(ACC,4)}")
        k(f"""v_lshlrev_b32 v{A0}, 4, v{A1}
              v_and_b32 v{AF}, 1, v{A2}
              v_lshl_add_u32 v{A0}, v{AF}, 3, v{A0}
              v_and_b32 v{AF}, 2, v{A2}
              v_lshl_add_u32 v{A0}, v{AF}, 30, v{A0}
              s_lshl_b32 s{S_T+9}, s{S_SEG}, 15
              s_add_u32 s{S_T+9}, s{S_T+9}, {MOE_OFF}
              s_lshl_b32 s{S_T+3}, s{S_H}, 10
              s_lshl_b32 s{S_T+4}, s{S_W}, 8
              s_add_u32 s{S_T+3}, s{S_T+3}, s{S_T+4}
              s_add_u32 s{S_T+3}, s{S_T+3}, s{S_T+9}
              v_cvt_pk_bf16_f32 v24, v{ACC}, v{ACC+1}
              v_cvt_pk_bf16_f32 v25, v{ACC+2}, v{ACC+3}
              buffer_store_dwordx2 v[24:25], v{A0}, {WS}, s{S_T+3} offen{self.loc}""")
        self.page(S_T + 3, F_M)
        self.flag_set(S_T + 3, self.loc)
        D = k.newlabel("L_moed")
        if layer == 1:
            k(f"""s_cmp_lg_u32 s{S_H}, 0
                  s_cbranch_scc1 {D}""")
        self.page(S_T + 3, F_M, head=False)
        self.flags_wait32(S_T + 3)
        self.reduce32(S_T + 9, True)
        k(f"""s_cmp_lg_u32 s{S_W}, 0
              s_cbranch_scc1 {D}""")
        A, PK, Y, TM = 24, 40, 48, 56
        k(f"""v_lshlrev_b32 v{TM}, 5, v{V_LANE}
              v_add_u32 v{TM}, {L_ROW}, v{TM}
              ds_read_b128 {vr(A,4)}, v{TM}
              ds_read_b128 {vr(A+4,4)}, v{TM} offset:16
              s_and_b32 s{S_T+3}, s{sKEY}, 0xffff0000
              s_xor_b32 s{S_T+4}, s{S_T+3}, 0x80000000
              s_xor_b32 s{S_T+5}, s{S_T+3}, 0xffff0000
              s_cmp_lt_i32 s{S_T+3}, 0
              s_cselect_b32 s{S_T+3}, s{S_T+4}, s{S_T+5}
              v_mov_b32 v{TM}, s{S_T+3}
              v_mul_f32 v{TM}, {f32(-math.log2(math.e))}, v{TM}
              v_exp_f32 v{TM}, v{TM}
              v_add_f32 v{TM}, 1.0, v{TM}
              v_rcp_f32 v{TM}, v{TM}""")
        self.round1(TM)
        self.unpack8(Y, YP)
        k("s_waitcnt lgkmcnt(0)")
        self.pack8(PK, A)
        self.unpack8(A, PK)
        for j in range(8):
            k(f"v_mul_f32 v{A+j}, v{A+j}, v{TM}")
        self.pack8(PK, A)
        self.unpack8(A, PK)
        for j in range(8):
            k(f"v_add_f32 v{A+j}, v{A+j}, v{Y+j}")
        self.pack8(PK, A)
        self.unpack8(A, PK)
        for j in range(8):
            k(f"v_add_f32 v{X+j}, v{X+j}, v{A+j}")
        self.pack8(80, X)
        if layer == 0:
            k(f"""s_lshl_b32 s{S_T+2}, s{S_SEG}, 10
                  s_add_u32 s{S_T+2}, s{S_T+2}, {X2P_OFF}
                  buffer_store_dwordx4 v[80:83], v{V_L16}, {WS}, s{S_T+2} offen sc1""")
            self.unpack8(X, 80)
            self.layernorm(X, 84, TM + 2)
            k(f"s_add_u32 s{S_T+1}, s{S_T}, {HP_OFF}")
            k(f"buffer_store_dwordx4 v[84:87], v{V_L16}, {WS}, s{S_T+1} offen sc1")
        else:
            self.srd(P_OUT, 2048 * 1024)
            k(f"buffer_store_dwordx4 v[80:83], v{V_L16}, {SA}, s{S_T} offen sc1")
        k.label(D)

    def a_plan(self):
        o = self.opt
        n1, n2, up = o.get("n1", 4), o.get("n2", 6), o.get("up", 3)
        own = [[0, 2, 4, 6], [1, 3, 5, 7], list(range(8 + n1 + n2, 8 + n1 + n2 + up))]
        pat = o.get("pat", (0, 1, 2))
        for i, x in enumerate(range(8 + n1 + n2 + up, 64)):
            own[pat[i % len(pat)]].append(x)
        return n1, n2, up, [sum(1 << x for x in w) for w in own]

    def pop_next(self, dst, mask):
        self.k(f"""s_ff1_i32_b64 s{dst}, {sr(mask,2)}
                   s_bitset0_b64 {sr(mask,2)}, s{dst}
                   s_min_u32 s{dst}, s{dst}, 127""")

    def spec(self):
        o = self.opt
        return o.get("delta", 8), o.get("th", 28)

    def role_moe(self):
        k = self.k
        o = self.opt
        sMAX, sKEY = 54, 55
        self.proj_consts()
        _, _, UP, own = self.a_plan()
        JD, MINL, MAXL = o.get("jd", 3), o.get("minl", 8), o.get("maxl", 22)
        sNA, sSC = S_A, S_B
        sH, sN, sF, sDEBT, sOWN, sKA, sGR = S_T + 12, S_T + 14, S_T + 16, S_T + 17, S_T + 18, S_T + 20, S_T + 21
        sR, sPK = 84, 86
        L, AL, NF, KW, NJ, NA, NR, FN = (k.newlabel("L_mo") for _ in range(8))
        k(f"""s_mov_b32 s{sMAX}, 0
              s_mov_b32 s{sSC}, 0
              s_mov_b32 s{S_CNT}, {UP}
              s_mov_b32 s{sF}, 0x80000000
              s_mov_b32 s{sDEBT}, 0
              s_mov_b32 s{sGR}, -1
              s_mov_b64 {sr(sR,2)}, 0
              s_mov_b32 s{sOWN}, {own[2] & 0xffffffff}
              s_mov_b32 s{sOWN+1}, {own[2] >> 32}""")
        self.pop_next(sNA, sOWN)
        self.t1_src(sN, sNA, 0)
        for x in self.t1_dma(sN, (0, 1, 2)):
            k(x)
        k(f"""v_and_b32 v23, 31, v{V_LANE}
              v_lshlrev_b32 v23, 2, v23
              s_waitcnt vmcnt(0)""")
        k.label(AL)
        k(f"""s_mov_b32 s{S_SEG}, s{sNA}
              s_mov_b64 {sr(sH,2)}, {sr(sN,2)}""")
        self.pop_next(sNA, sOWN)
        self.t1_src(sN, sNA, 0)
        self.page(sKA, F_RK[0], seg=sSC, head=False)
        self.t1(0, sH, pre=9, s_flag=sF, nxt=self.t1_dma(sN, (0, 1, 2)) + [f"buffer_load_dword v125, v23, {WS}, s{sKA} offen sc1"])
        self.ev(17)
        self.page(sF, F_KV[0])
        k(f"""s_sub_u32 s{S_CNT}, s{S_CNT}, 1
              s_cmp_gt_i32 s{S_CNT}, 0
              s_cbranch_scc1 {AL}
              s_add_u32 s{sDEBT}, s{sDEBT}, 1
              s_waitcnt vmcnt(8)
              v_cmp_eq_u32 vcc, 0, v125
              s_cbranch_vccz {KW}""")
        k.label(L)
        self.page(S_T + 3, F_RK[0], seg=sSC, head=False)
        self.flags_wait32(S_T + 3)
        k.label(KW)
        self.wmax_u32(125, 124)
        k(f"""v_readfirstlane_b32 s{sKEY}, v125
              s_sub_u32 s{sDEBT}, s{sDEBT}, 1
              s_max_i32 s{sDEBT}, s{sDEBT}, 0
              s_sub_u32 s{sGR}, s{sGR}, 1
              s_min_u32 s{S_T+5}, s{sDEBT}, {LOOK}
              s_cmp_gt_u32 s{sKEY}, s{sMAX}
              s_cselect_b32 s{S_T+4}, 2, 1
              s_cselect_b32 s{sGR}, s{S_T+5}, s{sGR}
              s_cselect_b32 s{sMAX}, s{sKEY}, s{sMAX}
              s_cbranch_scc0 {NR}
              s_bitset1_b64 {sr(sR,2)}, s{sSC}""")
        k.label(NR)
        DL, TH = self.spec()
        k(f"""s_cmp_lg_u32 s{sSC}, 63
              s_cbranch_scc1 {FN}
              s_min_i32 s{sGR}, s{sGR}, 0""")
        t = 88
        k(f"s_lshr_b64 {sr(t,2)}, {sr(sR,2)}, 1")
        for i in range(2, DL - 4 + 1):
            k(f"""s_lshr_b64 {sr(t+2,2)}, {sr(sR,2)}, {i}
                  s_or_b64 {sr(t,2)}, {sr(t,2)}, {sr(t+2,2)}""")
        low = (1 << TH) - 1
        late = ((1 << 64) - 1) ^ ((1 << max(64 - DL, 0)) - 1)
        k(f"""s_or_b32 s{t}, s{t}, {low & 0xffffffff}
              s_or_b32 s{t+1}, s{t+1}, {low >> 32}
              s_flbit_i32_b64 s{S_T+5}, {sr(sR,2)}
              s_sub_u32 s{S_T+5}, 63, s{S_T+5}
              s_bfm_b64 {sr(t+2,2)}, s{S_T+5}, 0
              s_xor_b64 {sr(sR,2)}, {sr(t,2)}, {sr(t+2,2)}
              s_or_b32 s{sR}, s{sR}, {late & 0xffffffff}
              s_or_b32 s{sR+1}, s{sR+1}, {late >> 32}""")
        k.label(FN)
        k(f"""s_or_b32 s{S_T+5}, s{S_H}, s{S_W}
              s_cmp_lg_u32 s{S_T+5}, 0
              s_cbranch_scc1 {NF}
              v_mov_b32 v125, s{S_T+4}""")
        self.page(S_T + 3, F_REC, seg=sSC, head=False)
        k(f"""buffer_store_dword v125, off, {WS}, s{S_T+3} sc1
              s_cmp_lg_u32 s{sSC}, 63
              s_cbranch_scc1 {NF}
              s_and_b32 s{S_T+6}, s{sMAX}, 0x7ff
              s_sub_u32 s{S_T+6}, 2048, s{S_T+6}
              v_mov_b32 v120, s{S_T+6}""")
        for i in range(3):
            k(f"""s_lshr_b64 {sr(t,2)}, {sr(sR,2)}, {22*i}
                  s_and_b32 s{t}, s{t}, 0x3fffff
                  s_bitset1_b32 s{t}, 31
                  v_mov_b32 v{121+i}, s{t}""")
        k(f"""s_mov_b32 s{S_T+3}, {PG_OFF + 64*8192 + F_FIN}
              buffer_store_dwordx4 v[120:123], off, {WS}, s{S_T+3} sc1""")
        k.label(NF)
        k(f"""s_add_u32 s{sSC}, s{sSC}, 1
              s_cmp_gt_i32 s{sGR}, 0
              s_cbranch_scc1 {L}
              s_cmp_lg_u32 s{sGR}, 0
              s_cbranch_scc1 {NJ}""")
        self.flag_set(sF, " sc1")
        k(f"""s_mov_b32 s{sF}, 0x80000000
              s_and_b32 s{S_SEG}, s{sMAX}, 0x7ff
              s_sub_u32 s{S_SEG}, 2047, s{S_SEG}
              s_lshr_b32 s{S_SEG}, s{S_SEG}, 5
              s_add_u32 s{sDEBT}, s{sDEBT}, {JD}""")
        self.ev(30)
        self.moe(0, sMAX)
        self.ev(31)
        k(f"""s_and_b32 s{S_T}, s{sMAX}, 31
              s_sub_u32 s{S_T}, 31, s{S_T}
              v_lshrrev_b32 v2, 10, v{self.THD}
              v_add_u32 v3, 16, v2
              v_add_u32 v8, {HP_OFF - H_OFF[1]}, v{self.THD}
              v_cmp_eq_u32 vcc, s{S_T}, v2
              v_cndmask_b32 v2, v{self.THD}, v8, vcc
              v_cmp_eq_u32 vcc, s{S_T}, v3
              v_cndmask_b32 v3, v{self.THD}, v8, vcc""")
        self.page(S_T + 3, F_HX, head=False)
        self.flags_wait32(S_T + 3)
        k("s_barrier")
        self.t1_src(S_T + 10, S_SEG, 1)
        self.t1b(2, S_T + 10, voff=(2, 3))
        self.ev(32)
        for x in self.t1_dma(sN, (0, 1, 2)):
            k(x)
        self.page(S_T + 3, F_Q[2])
        self.flag_set(S_T + 3, " sc1")
        k.label(NJ)
        k(f"""s_mov_b32 s{sGR}, -1
              s_sub_u32 s{S_T}, s{sNA}, s{sSC}
              s_cmp_eq_u32 s{sDEBT}, 0
              s_cselect_b32 s{S_T+1}, {MAXL}, {MINL}
              s_add_u32 s{S_T+1}, s{S_T+1}, s{sDEBT}
              s_min_u32 s{S_T+1}, s{S_T+1}, 60
              s_cmp_lt_i32 s{S_T}, s{S_T+1}
              s_cbranch_scc1 {AL}""")
        self.flag_set(sF, " sc1")
        k(f"""s_mov_b32 s{sF}, 0x80000000
              s_cmp_lt_u32 s{sSC}, 64
              s_cbranch_scc1 {L}
              s_mov_b32 s{S_SEG}, 64""")
        W = k.newlabel("L_mw")
        k(f"""v_lshrrev_b32 v2, 3, v{V_LANE}
              v_and_b32 v3, 7, v{V_LANE}
              v_lshlrev_b32 v3, 4, v3
              v_lshl_add_u32 v3, v2, 13, v3""")
        for i in range(8):
            k(f"""s_lshr_b64 {sr(t,2)}, {sr(sR,2)}, {8*i}
                  v_lshrrev_b32 v{60+i}, v2, s{t}
                  v_and_b32 v{60+i}, 1, v{60+i}
                  v_mul_u32_u24 v{60+i}, {F_RK[1] - F_RK[2]}, v{60+i}
                  v_sub_u32 v{60+i}, v3, v{60+i}
                  v_add_u32 v{60+i}, {PG_OFF + F_RK[1] + i*8*8192}, v{60+i}""")
        k.label(W)
        k("s_sleep 2")
        for i in range(8):
            k(f"buffer_load_dwordx4 {vr(24+4*i,4)}, v{60+i}, {WS}, 0 offen sc1")
        self.spend()
        k("s_waitcnt vmcnt(0)")
        k("v_min_u32 v56, v24, v25")
        for i in range(26, 56, 2):
            k(f"v_min3_u32 v56, v{i}, v{i+1}, v56")
        k(f"""v_cmp_eq_u32 vcc, 0, v56
              s_cbranch_vccnz {W}""")
        k("v_max_u32 v24, v24, v25")
        for i in range(26, 56, 2):
            k(f"v_max3_u32 v24, v{i}, v{i+1}, v24")
        self.wmax_u32(24, 25)
        k(f"v_readfirstlane_b32 s{sKEY}, v24")
        self.ev(33)
        self.moe(1, sKEY)
        self.ev(34)

    def role_proj(self):
        k = self.k
        self.LH = 64 * KB
        self.proj_consts()
        own = self.a_plan()[3]
        MAXL = self.opt.get("pmaxl", 20)
        sCUR, sNA = 54, 55
        sH, sN, sF, sOWN = S_T + 10, S_T + 12, S_T + 14, S_T + 16
        allq = (0, 1, 2, 3)
        k(f"""s_sub_u32 s{sCUR}, s{S_G}, 4
              s_cmp_eq_u32 s{sCUR}, 0
              s_mov_b32 s{sOWN}, {own[1] & 0xffffffff}
              s_mov_b32 s{sOWN+1}, {own[1] >> 32}
              s_cmov_b32 s{sOWN}, {own[0] & 0xffffffff}
              s_cmov_b32 s{sOWN+1}, {own[0] >> 32}
              s_mov_b32 s{sF}, 0x80000000
              s_mov_b32 s{S_CNT}, 2""")
        self.pop_next(sNA, sOWN)
        self.t1_src(sN, sNA, 0)
        for x in self.t1_dma(sN, allq, reg=1):
            k(x)
        k("""s_waitcnt vmcnt(0)
             s_barrier""")
        U, L, NOA = k.newlabel("L_pu"), k.newlabel("L_pl"), k.newlabel("L_pn")
        k.label(U)
        for reg in (1, 0):
            k(f"s_mov_b32 s{S_SEG}, s{sNA}")
            self.pop_next(sNA, sOWN)
            self.t1_src(sN, sNA, 0)
            self.t1b(0, None, landed=True, reg=reg, s_flag=sF, nxt=self.t1_dma(sN, allq, reg=1 - reg), early=False)
            self.ev(17)
            self.page(sF, F_KV[0])
        k(f"""s_sub_u32 s{S_CNT}, s{S_CNT}, 1
              s_cmp_gt_u32 s{S_CNT}, 0
              s_cbranch_scc1 {U}""")
        self.flag_set(sF, " sc1")
        k(f"s_mov_b32 s{sF}, 0x80000000")
        k.label(L)
        k(f"s_mov_b32 s{S_SEG}, s{sCUR}")
        self.t1_src(sH, sCUR, 1)
        self.page(S_T + 3, F_HX, head=False)
        self.flags_wait32(S_T + 3)
        self.ev(13)
        self.mk = 24
        self.t1b(1, sH, reg=0, s_flag=sF, nxt=self.t1_dma(sN, allq, reg=1))
        self.mk = 0
        self.flush()
        self.ev(14)
        self.page(sF, F_Q[1])
        k(f"""s_sub_u32 s{S_T}, s{sNA}, s{sCUR}
              s_cmp_ge_i32 s{S_T}, {MAXL}
              s_cbranch_scc1 {NOA}
              s_mov_b32 s{S_SEG}, s{sNA}""")
        self.pop_next(sNA, sOWN)
        self.t1_src(sN, sNA, 0)
        self.t1b(0, None, landed=True, reg=1, s_flag=sF, early=False)
        self.ev(17)
        self.page(sF, F_KV[0])
        k.label(NOA)
        k(f"""s_add_u32 s{sCUR}, s{sCUR}, 2
              s_cmp_lt_u32 s{sCUR}, 64
              s_cbranch_scc1 {L}""")
        self.flag_set(sF, " sc1")
        self.LH = L_H

    def chain_helps(self):
        k = self.k
        n1, n2 = self.a_plan()[:2]
        sH, sN, sF = S_T + 12, S_T + 14, S_T + 16
        T = 120
        D, L = k.newlabel("L_chd"), k.newlabel("L_chl")
        self.THR, self.THD, self.TOB = 4, 20, 17
        k(f"""s_cmp_eq_u32 s{S_G}, 0
              s_cbranch_scc1 {D}
              v_and_b32 v{T}, 15, v{V_LANE}
              v_lshrrev_b32 v{T+1}, 4, v{V_LANE}
              v_mov_b32 v{self.TOB}, 1
              s_lshl_b32 s{S_T}, s{S_W}, 2
              v_add_u32 v{T+5}, s{S_T}, v{T+1}            ; row 4w+g
              v_xor_b32 v{T+6}, v{T+5}, v{T}
              v_lshlrev_b32 v{T+6}, 4, v{T+6}
              v_lshl_add_u32 v{self.THD}, v{T+5}, 10, v{T+6}""")
        for i in range(8):
            k(f"""s_lshl_b32 s{S_T}, s{S_W}, 1
                  s_xor_b32 s{S_T}, s{S_T}, {i}
                  s_and_b32 s{S_T+1}, s{S_T}, 3
                  s_lshl_b32 s{S_T+1}, s{S_T+1}, 2
                  s_lshr_b32 s{S_T}, s{S_T}, 2
                  s_lshl_b32 s{S_T}, s{S_T}, 13
                  s_add_u32 s{S_T}, s{S_T}, {L_H}
                  v_add_u32 v{T+5}, s{S_T+1}, v{T+1}
                  v_xor_b32 v{T+5}, v{T+5}, v{T}
                  v_lshlrev_b32 v{T+5}, 4, v{T+5}
                  v_lshl_add_u32 v{T+5}, v{T}, 8, v{T+5}
                  v_add_u32 v{self.THR+i}, s{S_T}, v{T+5}""")
        k(f"""s_cmp_eq_u32 s{S_G}, 1
              s_cselect_b32 s{S_SEG}, 8, {8 + n1}
              s_cselect_b32 s{S_CNT}, {n1}, {n2}
              s_mov_b32 s{sF}, 0x80000000""")
        self.t1_src(sN, S_SEG, 0)
        for x in self.t1_dma(sN, (0, 1)):
            k(x)
        k("s_waitcnt vmcnt(0)")
        k.label(L)
        k(f"""s_mov_b64 {sr(sH,2)}, {sr(sN,2)}
              s_add_u32 s{sN}, s{sN}, {32*KB}
              s_add_u32 s{sN+1}, s{sN+1}, {32*KB}""")
        self.t1(0, sH, pre=8, s_flag=sF, nxt=self.t1_dma(sN, (0, 1)), rot=True)
        self.page(sF, F_KV[0])
        k(f"""s_add_u32 s{S_SEG}, s{S_SEG}, 1
              s_sub_u32 s{S_CNT}, s{S_CNT}, 1
              s_cmp_gt_u32 s{S_CNT}, 0
              s_cbranch_scc1 {L}""")
        self.flag_set(sF, " sc1")
        self.ev(18)
        k.label(D)

    def load_wo2(self):
        k = self.k
        self.srd(P_WO, 4 * MB)
        k(f"""v_and_b32 v2, 15, v{V_LANE}
              v_lshlrev_b32 v2, 4, v2
              v_lshrrev_b32 v3, 4, v{V_LANE}
              v_lshl_add_u32 v2, v3, 13, v2
              s_and_b32 s{S_T}, s{S_H}, 15
              s_lshl_b32 s{S_T}, s{S_T}, 18
              s_lshl_b32 s{S_T+1}, s{S_W}, 8
              s_add_u32 s{S_T}, s{S_T}, s{S_T+1}
              s_mov_b32 s{S_T+5}, 0x05040100
              s_mov_b32 s{S_T+6}, 0x07060302""")
        NB = 6
        def issue(g):
            b = 24 + (g % NB) * 32
            for j in range(8):
                if j % 4 == 0:
                    k(f"s_add_u32 s{S_T+1}, s{S_T}, {(32*g+j)*1024}")
                k(f"buffer_load_dwordx4 {vr(b+4*j,4)}, v2, {SA}, s{S_T+1} offen offset:{(j%4)*1024}")
        for g in range(NB):
            issue(g)
        for g in range(8):
            b = 24 + (g % NB) * 32
            k(f"s_waitcnt vmcnt({min(7-g, NB-1)*8})")
            for t in range(8):
                for q in range(4):
                    k(f"v_perm_b32 v{216+q}, v{b+4*(2*q+1)+(t>>1)}, v{b+4*(2*q)+(t>>1)}, s{S_T+5+(t&1)}")
                for q in range(4):
                    k(f"v_accvgpr_write_b32 a{(g*8+t)*4+q}, v{216+q}")
            if g + NB < 8:
                issue(g + NB)

    def role_att(self, steady):
        k = self.k
        opt = self.opt
        DL, TH = self.spec()
        NW = 6
        sWK, sSEL = 54, 55
        sCNT, sBUF, sHD, sPT, sNQ, sNK, sLATE, sDF, sCUR, sMAXK, sFM, sNX = (S_T + i for i in range(10, 22))
        sTODO, sKO, sCW, sX = 84, 86, 87, S_A
        OX, ROWS = 128 * KB, 144 * KB
        RK, OW_, OB_, PT_, RW_, RL_ = 2, 3, 4, 5, 6, 7
        TX0, TX1 = 8, 12
        L4, FL, ST, SA_, DF, KA = 16, 17, 18, 19, 20, 21
        Q, KK, F, V, VM, S = 24, 40, 72, 88, 120, 128
        P, Lr, ONES, SEL, O = 140, 148, 152, 156, 24
        B, ACC, PK = 24, 160, 88
        XI, WR, KEY, TT = 224, 228, 236, 238
        T = TT
        self.make_sel(SEL, TT)
        self.srd(P_WR, 1024)
        k(f"""buffer_load_dwordx4 {vr(XI,4)}, v{V_L16}, {SA}, 0 offen
              v_and_b32 v{T}, 15, v{V_LANE}
              v_lshrrev_b32 v{T+1}, 4, v{V_LANE}
              v_lshlrev_b32 v{T+2}, 2, v{T+1}
              v_mov_b32 v{T+3}, {NEGBIG}
              s_and_b32 s{S_T}, s{S_W}, 1
              s_lshl_b32 s{S_T}, s{S_T}, 4
              v_add_u32 v{T+4}, s{S_T}, v{T}""")
        for u in range(2):
            for r in range(4):
                k(f"v_add_u32 v{T+5}, {16*u+r}, v{T+2}")
                k(f"v_cmp_gt_u32 vcc, v{T+5}, v{T+4}")
                k(f"v_cndmask_b32 v{(TX0,TX1)[u]+r}, 0, v{T+3}, vcc")
        k(f"""v_mov_b64 {vr(ONES,2)}, {sr(S_ONE,2)}
              v_mov_b64 {vr(ONES+2,2)}, {sr(S_ONE,2)}
              v_mov_b32 v{P+5}, 0
              v_mov_b32 v{P+6}, 0
              s_lshl_b32 s{S_T}, s{S_W}, 12
              s_add_u32 s{S_T}, s{S_T}, {OX}
              v_add_u32 v{OW_}, s{S_T}, v{V_L16}
              v_add_u32 v{OB_}, {OX}, v{V_L16}
              s_lshl_b32 s{S_T}, s{S_W}, 8
              v_lshlrev_b32 v{RL_}, 4, v{T}
              v_add_u32 v{RL_}, s{S_T}, v{RL_}
              v_lshl_add_u32 v{PT_}, v{T+1}, 16, v{RL_}
              v_lshlrev_b32 v{RW_}, 1, v{RL_}
              v_lshl_add_u32 v{RL_}, v{T+1}, 10, v{RL_}
              v_and_b32 v{T+5}, 1, v{T+1}
              v_lshl_add_u32 v{RW_}, v{T+5}, 4, v{RW_}
              v_lshrrev_b32 v{T+5}, 1, v{T+1}
              v_lshl_add_u32 v{RW_}, v{T+5}, 12, v{RW_}
              v_add_u32 v{RW_}, {ROWS}, v{RW_}
              v_lshlrev_b32 v{L4}, 2, v{T}
              v_lshlrev_b32 v{KA}, 3, v{T}
              s_and_b32 s{sHD}, s{S_H}, 15
              s_lshl_b32 s{sPT}, s{sWK}, 19
              s_add_u32 s{sPT}, s{sPT}, {PT_OFF}
              s_lshl_b32 s{sCW}, s{sWK}, 13
              s_add_u32 s{sCW}, s{sCW}, {PG_OFF + F_CW}
              s_lshl_b32 s{sHD}, s{sHD}, 1
              s_lshr_b32 s{S_T}, s{S_W}, 1
              s_add_u32 s{sHD}, s{sHD}, s{S_T}
              s_mov_b32 s{sCNT}, 0
              s_mov_b32 s{sBUF}, 0
              s_mov_b32 s{sDF}, 0x80000000
              s_mov_b32 s{sMAXK}, 0
              s_waitcnt vmcnt(0)""")
        self.unpack8(WR, XI)

        def capture(fn, *a):
            n0 = len(k.lines); fn(*a); out = k.lines[n0:]; del k.lines[n0:]; return out
        def hpage(dst, off, seg):
            k(f"""s_lshl_b32 s{dst}, s{seg}, 13
                  s_lshl2_add_u32 s{dst}, s{sHD}, s{dst}
                  s_add_u32 s{dst}, s{dst}, {PG_OFF + off}""")
        def spin(v, reload, cmp):
            A_, B_ = k.newlabel("L_aw"), k.newlabel("L_awd")
            k.label(A_)
            k(f"""{cmp}
                  s_cbranch_vccz {B_}
                  {reload}""")
            self.spend()
            k(f"""s_waitcnt vmcnt(0)
                  s_branch {A_}""")
            k.label(B_)
        st_load = f"buffer_load_dword v{ST}, v{SA_}, {WS}, 0 offen sc1"
        def plan_next(layer, s_rec=None):
            k(f"""s_lshl_b32 s{S_T}, s{sNX}, 5
                  s_add_u32 s{S_T}, s{S_T}, s{sHD}
                  s_mul_i32 s{sNQ}, s{S_T}, {24*KB}
                  s_lshl_b32 s{sNK}, s{S_T}, 13""")
            if layer == 0:
                k(f"""s_add_u32 s{sNQ}, s{sNQ}, {QKV_OFF[0]}
                      s_add_u32 s{sNK}, s{sNK}, {KVM_OFF[0]}""")
                hpage(S_T + 3, F_Q[0], sNX)
                k(f"v_mov_b32 v{SA_}, s{S_T+3}")
            else:
                hpage(S_T + 3, 0, sNX)
                k(f"""s_cmp_lt_u32 s{sNX}, s{s_rec}
                      s_cselect_b32 s{S_T+1}, 0, {KVM_OFF[2] - KVM_OFF[1]}
                      s_cselect_b32 s{S_T+4}, 0, {F_KM[2] - F_KM[1]}
                      s_add_u32 s{sNK}, s{sNK}, s{S_T+1}
                      s_add_u32 s{sNK}, s{sNK}, {KVM_OFF[1]}
                      s_add_u32 s{S_T+4}, s{S_T+4}, s{S_T+3}
                      s_add_u32 s{S_T+4}, s{S_T+4}, {F_KM[1]}
                      s_cmp_eq_u32 s{sNX}, s{s_rec}
                      s_cselect_b32 s{S_T+1}, {QKV_OFF[2] - QKV_OFF[1]}, 0
                      s_cselect_b32 s{S_T+2}, {F_Q[2] - F_Q[1]}, 0
                      s_add_u32 s{sNQ}, s{sNQ}, s{S_T+1}
                      s_add_u32 s{sNQ}, s{sNQ}, {QKV_OFF[1]}
                      s_add_u32 s{S_T+3}, s{S_T+3}, s{S_T+2}
                      s_add_u32 s{S_T+3}, s{S_T+3}, {F_Q[1]}
                      v_mov_b32 v{SA_}, s{S_T+3}
                      v_writelane_b32 v{SA_}, s{S_T+4}, 1""")
            k(st_load)
        def fetch_ops(q, kv):
            out = [f"s_and_b32 s{S_T+1}, s{S_W}, 1", f"s_mul_i32 s{S_T+2}, s{S_T+1}, {12*KB}",
                   f"s_add_u32 s{q}, s{q}, s{S_T+2}", f"s_lshl_b32 s{S_T+1}, s{S_T+1}, 12", f"s_add_u32 s{kv}, s{kv}, s{S_T+1}",
                   f"s_and_b32 s{S_T+3}, s{S_LW}, 2048", f"s_lshl_b32 s{S_T+3}, s{S_T+3}, 4",
                   f"s_xor_b32 s{S_T+4}, s{sBUF}, {64*KB}", f"s_add_u32 s{S_T+3}, s{S_T+3}, s{S_T+4}",
                   f"s_add_u32 s{S_T+2}, s{S_T+2}, s{S_T+3}", f"s_add_u32 s{S_T+1}, s{S_T+1}, s{S_T+3}"]
            for i in range(3):
                out.append(f"s_add_u32 m0, s{S_T+2}, {i*4096}")
                if i:
                    out.append(f"s_add_u32 s{q}, s{q}, 4096")
                out += [f"buffer_load_dwordx4 v{V_L16}, {WS}, s{q} offen offset:{c*1024} sc1 lds" for c in range(4)]
            out.append(f"s_add_u32 m0, s{S_T+1}, {24*KB}")
            out += [f"buffer_load_dwordx4 v{V_L16}, {WS}, s{kv} offen offset:{c*1024} sc1 lds" for c in range(4)]
            return out
        sLAY, sNS = S_B, S_CNT
        VOTE = ROWS + 8 * KB
        RD, RA = 160, 192
        A, PKr, Y, TM, X = 160, 168, 176, 184, 200
        KY = 242
        pub = [f"buffer_store_dword v{DF}, off, {WS}, s{sDF} sc1", f"s_mov_b32 s{sDF}, 0x80000000"]
        def flush_pub():
            k("s_waitcnt vmcnt(0)")
            for x in pub:
                k(x)
        def look():
            k(f"s_add_u32 s{S_T+6}, s{sFM}, 4096")
            for kk in range(4):
                k(f"buffer_load_dwordx4 {vr(F+4*kk,4)}, v{V_L16}, {WS}, s{sFM} offen offset:{kk*1024} sc1")
            for i in range(4):
                k(f"buffer_load_dwordx2 {vr(VM+2*i,2)}, v{V_L16}, {WS}, s{S_T+6} offen offset:{i*1024} sc1")
        key_load = f"buffer_load_dwordx2 {vr(KY,2)}, v{KY+2}, {WS}, 0 offen sc1"
        def keys_issue():
            k(f"""v_lshrrev_b32 v{KY+2}, 4, v{V_LANE}
                  s_sub_u32 s{S_T}, s{sNS}, 7
                  v_add_u32 v{KY+2}, s{S_T}, v{KY+2}
                  v_max_i32 v{KY+2}, 0, v{KY+2}
                  v_lshl_add_u32 v{KY+2}, v{KY+2}, 13, v{KA}
                  {key_load}""")
        def pre(layer):
            k(f"""s_xor_b32 s{sBUF}, s{sBUF}, {64*KB}
                  s_and_b32 s{S_T}, s{S_LW}, 2048
                  s_lshl_b32 s{S_T}, s{S_T}, 4
                  s_add_u32 s{S_T}, s{S_T}, s{sBUF}
                  v_add_u32 v{RK}, s{S_T}, v{V_L16}
                  s_and_b32 s{S_T}, s{S_LW}, 1024
                  s_lshl_b32 s{S_T}, s{S_T}, 2
                  v_add_u32 v{TT}, s{S_T}, v{RK}
                  s_mov_b32 s{sFM}, s{sNK}
                  s_mov_b32 s{sNS}, s{sNX}""")
            for kk in range(4):
                k(f"ds_read_b128 {vr(Q+4*kk,4)}, v{TT} offset:{16*KB + kk*1024}")
                k(f"ds_read_b128 {vr(KK+4*kk,4)}, v{RK} offset:{kk*1024}")
                k(f"ds_read_b128 {vr(KK+16+4*kk,4)}, v{RK} offset:{4096 + kk*1024}")
            late = []
            if layer:
                late += [f"ds_read_b128 {vr(F+4*i,4)}, v{RK} offset:{24*KB + i*1024}" for i in range(4)]
            late += [f"ds_read_b128 {vr(V+4*i,4)}, v{RK} offset:{8*KB + i*1024}" for i in range(8)]
            if layer:
                late += [f"ds_read_b64 {vr(VM+2*i,2)}, v{RK} offset:{28*KB + i*1024}" for i in range(4)]
            for kk in range(4):
                k(f"s_waitcnt lgkmcnt({9 - 3*kk + 2*kk})")
                q = vr(Q + 4 * kk, 4)
                k(f"v_mfma_f32_16x16x32_bf16 {vr(S,4)}, {vr(KK+4*kk,4)}, {q}, {vr(TX0,4) if kk == 0 else vr(S,4)}")
                k(late.pop(0))
                k(f"v_mfma_f32_16x16x32_bf16 {vr(S+4,4)}, {vr(KK+16+4*kk,4)}, {q}, {vr(TX1,4) if kk == 0 else vr(S+4,4)}")
                k(late.pop(0))
            if layer:
                k("s_waitcnt lgkmcnt(4)")
                for kk in range(4):
                    k(f"v_mfma_f32_16x16x32_bf16 {vr(S+8,4)}, {vr(F+4*kk,4)}, {vr(Q+4*kk,4)}, {'0' if kk == 0 else vr(S+8,4)}")
                    k(late.pop(0)); k(late.pop(0))
        def post():
            self.softmax(S, P, TT)
            k(f"""v_mov_b32 v{P+7}, v{P+4}
                  s_waitcnt lgkmcnt(0)""")
            k(f"v_mfma_f32_16x16x32_bf16 {vr(Lr,4)}, {vr(ONES,4)}, {vr(P,4)}, 0")
            for i in range(2):
                k(f"v_mfma_f32_16x16x32_bf16 {vr(O+4*i,4)}, {vr(V+4*i,4)}, {vr(P,4)}, 0")
            k(f"v_mfma_f32_16x16x16_bf16 {vr(Lr,4)}, {vr(ONES,2)}, {vr(P+4,2)}, {vr(Lr,4)}")
            for i in range(2, 8):
                k(f"v_mfma_f32_16x16x32_bf16 {vr(O+4*i,4)}, {vr(V+4*i,4)}, {vr(P,4)}, 0")
            k(f"v_rcp_f32 v{Lr}, v{Lr}")
            def fin(i):
                out = [f"v_pk_mul_f32 {vr(O+8*i+e,2)}, {vr(O+8*i+e,2)}, {vr(Lr,2)} op_sel_hi:[1,0]" for e in range(0, 8, 2)]
                out += [f"v_cvt_pk_bf16_f32 v{F+4*i+r}, v{O+8*i+r}, v{O+8*i+4+r}" for r in range(4)]
                out += [f"ds_write_b128 v{OW_}, {vr(F+4*i,4)} offset:{i*1024}"]
                return out
            side = fin(0)
            for i in range(8):
                k(f"v_mfma_f32_16x16x16_bf16 {vr(O+4*i,4)}, {vr(VM+2*(i>>1),2)}, {vr(P+4+2*(i&1),2)}, {vr(O+4*i,4)}")
                if i >= 4:
                    k(side.pop(0)); k(side.pop(0))
            for x in side + fin(1) + fin(2) + fin(3):
                k(x)
        def vote():
            k(f"""v_cmp_eq_u32 vcc, 0, v{ST}
                  s_lshl_b32 s{S_T}, s{S_W}, 2
                  s_add_u32 s{S_T}, s{S_T}, {VOTE}
                  v_mov_b32 v{TT}, s{S_T}
                  s_cmp_lg_u64 vcc, 0
                  s_cselect_b32 s{sLATE}, 1, 0
                  s_cmp_ge_u32 s{sNX}, 64
                  s_cselect_b32 s{sLATE}, 1, s{sLATE}
                  v_mov_b32 v{TT+1}, s{sLATE}
                  ds_write_b32 v{TT}, v{TT+1}""")
        def pop_todo(n):
            for _ in range(n):
                k(f"""s_ff1_i32_b64 s{sNX}, {sr(sTODO,2)}
                      s_bitset0_b64 {sr(sTODO,2)}, s{sNX}""")
            k(f"s_min_u32 s{sNX}, s{sNX}, 64")
        def plan_after_d():
            F_, J_ = k.newlabel("L_ae"), k.newlabel("L_af")
            k(f"""s_cmp_lg_u32 s{sKO}, {F_RK[1]}
                  s_cbranch_scc1 {F_}
                  s_add_u32 s{sNX}, s{sNS}, {DL + 4}
                  s_mov_b32 s{sX}, 0""")
            plan_next(0)
            k(f"s_branch {J_}")
            k.label(F_)
            pop_todo(NW)
            k(f"s_lshr_b32 s{S_T+5}, s{sSEL}, 5")
            plan_next(1, S_T + 5)
            k.label(J_)
        def plan_after_b():
            NB_, J_ = k.newlabel("L_ab"), k.newlabel("L_aj")
            k(f"""s_cmp_lt_u32 s{sNS}, 4
                  s_cbranch_scc1 {NB_}""")
            spin(KY, key_load, f"v_min_u32 v{TT}, v{KY}, v{KY+1}\nv_cmp_eq_u32 vcc, 0, v{TT}")
            k(f"v_max_u32 v{KY}, v{KY}, v{KY+1}")
            self.wmax_u32(KY, KY + 1)
            k(f"""v_readfirstlane_b32 s{S_T}, v{KY}
                  s_max_u32 s{sMAXK}, s{sMAXK}, s{S_T}
                  s_cmp_lt_u32 s{sNS}, {DL}
                  s_cbranch_scc1 {NB_}
                  s_sub_u32 s{sNX}, s{sNS}, {DL}
                  s_and_b32 s{sSEL}, s{sMAXK}, 0x7ff
                  s_sub_u32 s{sSEL}, 2047, s{sSEL}
                  s_cmp_lt_u32 s{sNX}, {TH}
                  s_cselect_b32 s{sSEL}, 4095, s{sSEL}
                  s_lshr_b32 s{S_T+5}, s{sSEL}, 5
                  s_mov_b32 s{sX}, 1""")
            plan_next(1, S_T + 5)
            k(f"s_branch {J_}")
            k.label(NB_)
            k(f"""s_add_u32 s{sNX}, s{sNS}, 4
                  s_mov_b32 s{sX}, 0""")
            plan_next(0)
            k.label(J_)
        def exch1():
            k(f"""s_add_u32 s{sCNT}, s{sCNT}, 1
                  v_mov_b32 v{CN}, s{sCNT}
                  s_waitcnt vmcnt(0)
                  s_barrier
                  buffer_store_dword v{CN}, off, {WS}, s{sCUR}{self.loc}""")
            self.mark(36)
        def exch2(mid=None, nmid=0, voting=False):
            WL = k.newlabel("L_aq")
            k(f"""s_lshr_b32 s{S_T+4}, s{sHD}, 1
                  s_lshl_b32 s{S_T+4}, s{S_T+4}, 15
                  s_add_u32 s{S_T+4}, s{S_T+4}, s{sPT}""")
            k.label(WL)
            k(f"buffer_load_dword v{FL}, v{L4}, {WS}, s{sCW} offen sc1")
            self.spend()
            k(f"""s_waitcnt vmcnt(0)
                  v_cmp_gt_u32 vcc, s{sCNT}, v{FL}
                  s_cbranch_vccnz {WL}""")
            self.mark(37)
            for i in range(8):
                if i:
                    k(f"s_add_u32 s{S_T+4}, s{S_T+4}, 4096")
                k(f"buffer_load_dwordx4 {vr(RD+4*i,4)}, v{RL_}, {WS}, s{S_T+4} offen sc1")
            if mid:
                mid()
            if voting:
                vote()
            self.unpack8(X, XI)
            k(f"s_add_u32 s{S_T+3}, s{sCUR}, {F_CR - F_CW}")
            for i in range(8):
                d = vr(RA + 4 * (i >> 2), 4)
                k(f"s_waitcnt vmcnt({7 - i + nmid})")
                k(f"v_mfma_f32_16x16x32_bf16 {d}, {vr(SEL,4)}, {vr(RD+4*i,4)}, {'0' if i % 4 == 0 else d}")
                if i == 6:
                    k(f"ds_write_b128 v{RW_}, {vr(RA,4)}")
            k(f"""ds_write_b128 v{RW_}, {vr(RA+4,4)} offset:2048
                  s_waitcnt lgkmcnt(0)
                  s_barrier
                  buffer_store_dword v{CN}, off, {WS}, s{S_T+3}{self.loc}""")
            self.mark(38)
        def row(layer, D):
            W1 = k.newlabel("L_ak")
            if layer:
                k(f"""s_bitcmp1_b32 s{S_W}, 0
                      s_cbranch_scc1 {D}""")
            k(f"""ds_read_b128 {vr(A,4)}, v{RR_}
                  ds_read_b128 {vr(A+4,4)}, v{RR_} offset:16
                  s_lshl_b32 s{S_T+8}, s{S_SEG}, 5
                  s_add_u32 s{S_T+8}, s{S_T+8}, s{sHD}
                  s_lshl_b32 s{S_T+7}, s{S_T+8}, 10
                  s_add_u32 s{S_T+2}, s{S_T+7}, {X1_OFF[layer]}""")
            if layer == 0:
                k(f"""s_lshl_b32 s{S_T+1}, s{S_W}, 31
                      s_xor_b32 s{S_T+1}, s{S_T+1}, 0x80000000
                      s_or_b32 s{S_T+2}, s{S_T+2}, s{S_T+1}""")
            else:
                NG_ = k.newlabel("L_ag")
                k(f"""v_readfirstlane_b32 s{S_T+5}, v{GK}
                      s_cmp_lg_u32 s{S_T+5}, 0
                      s_cbranch_scc1 {NG_}
                      s_cmp_eq_u32 s{sKO}, {F_RK[1]}
                      s_cbranch_scc1 {NG_}
                      s_cmp_ge_i32 s{S_SEG}, {64 - DL}
                      s_cbranch_scc1 {NG_}""")
                hpage(S_T + 4, F_RK[1], S_SEG)
                self.word_wait(S_T + 4, S_T + 5, va=GK)
                k.label(NG_)
            k("s_waitcnt lgkmcnt(0)")
            self.pack8(PKr, A)
            self.unpack8(A, PKr)
            self.add8(X, A)
            self.pack8(PKr, X)
            k(f"buffer_store_dwordx4 {vr(PKr,4)}, v{V_L16}, {WS}, s{S_T+2} offen sc1")
            self.unpack8(X, PKr)
            self.layernorm(X, PKr + 4, TM)
            self.unpack8(Y, PKr + 4)
            if layer == 0:
                k(f"""s_bitcmp1_b32 s{S_W}, 0
                      s_cbranch_scc1 {W1}""")
            self.add8(X, Y)
            self.pack8(A, X)
            if layer == 0:
                k(f"""s_add_u32 s{S_T+2}, s{S_T+7}, {X2_OFF}
                      buffer_store_dwordx4 {vr(A,4)}, v{V_L16}, {WS}, s{S_T+2} offen sc1""")
                self.unpack8(X, A)
                self.layernorm(X, A + 4, TM)
                k(f"""s_add_u32 s{S_T+2}, s{S_T+7}, {H_OFF[1]}
                      buffer_store_dwordx4 {vr(A+4,4)}, v{V_L16}, {WS}, s{S_T+2} offen sc1
                      v_mov_b32 v{DF}, 1""")
                hpage(sDF, F_HX, S_SEG)
                k(f"s_branch {D}")
                k.label(W1)
            else:
                self.srd(P_OUT, 2048 * 1024)
                k(f"buffer_store_dwordx4 {vr(A,4)}, v{V_L16}, {SA}, s{S_T+7} offen sc1")
            k(f"v_pk_mul_f32 {vr(KEY,2)}, {vr(Y,2)}, {vr(WR,2)}")
            for j in range(2, 8, 2):
                k(f"v_pk_fma_f32 {vr(KEY,2)}, {vr(Y+j,2)}, {vr(WR+j,2)}, {vr(KEY,2)}")
            k(f"v_add_f32 v{KEY}, v{KEY}, v{KEY+1}")
            self.wsum(KEY, KEY + 1)
            self.round1(KEY)
            k(f"""v_ashrrev_i32 v{KEY+1}, 31, v{KEY}
                  v_or_b32 v{KEY+1}, 0x80000000, v{KEY+1}
                  v_xor_b32 v{KEY}, v{KEY}, v{KEY+1}
                  v_and_b32 v{KEY}, 0xffff0000, v{KEY}
                  s_sub_u32 s{S_T+2}, {2047 + 2048}, s{S_T+8}
                  v_or_b32 v{DF}, s{S_T+2}, v{KEY}""")
            if layer == 0:
                hpage(S_T + 2, F_RK[0], S_SEG)
                k(f"buffer_store_dword v{DF}, off, {WS}, s{S_T+2} sc1")
            else:
                hpage(sDF, 0, S_SEG)
                k(f"s_add_u32 s{sDF}, s{sDF}, s{sKO}")

        CN, RR_, GK = 22, 23, 246
        FINAL, T3, NXB, LATE, ROWS_, R1, RD_, GOB, GOD, SLOW, SLB, FIN2, PL, PC = (k.newlabel("L_aa") for _ in range(14))
        sMODE = 88 if not self.stamps else 101
        k(f"""v_add_u32 v{KA}, {PG_OFF + F_RK[0]}, v{KA}
              v_mov_b32 v{KY+2}, v{KA}
              s_and_b32 s{S_T}, s{S_LW}, 2048
              s_add_u32 s{S_T}, s{S_T}, {ROWS}
              v_lshlrev_b32 v{RR_}, 5, v{V_LANE}
              v_add_u32 v{RR_}, s{S_T}, v{RR_}
              s_lshr_b32 s{S_T}, s{sHD}, 1
              s_lshl2_add_u32 s{sCUR}, s{S_T}, s{sCW}
              s_or_b32 s{sCUR}, s{sCUR}, s{S_OOB}
              s_cmp_lt_u32 s{sWK}, 2
              s_cbranch_scc1 {FINAL}
              s_sub_u32 s{sNX}, s{sWK}, 2
              s_mov_b32 s{sX}, 0
              s_mov_b32 s{sKO}, {F_RK[1]}""")
        plan_next(0)
        k(f"s_branch {SLOW}")

        k.label(T3)
        self.mark(34)
        bread = lambda u: [f"ds_read_b128 {vr(B+u*32+4*g,4)}, v{OB_} offset:{((g>>2)*2+u)*4096 + (g&3)*1024}" for g in range(8)]
        for x in bread(0):
            k(x)
        def head():
            k(f"""s_add_u32 s{S_T+7}, s{sCW}, {F_CR - F_CW}
                  buffer_load_dword v{FL}, v{L4}, {WS}, s{S_T+7} offen sc1
                  s_lshl_b32 s{S_T+5}, s{S_SEG}, 5
                  s_add_u32 s{S_T+5}, s{S_T+5}, s{sHD}
                  s_lshl_b32 s{S_T+2}, s{S_T+5}, 10
                  s_add_u32 s{S_T+4}, s{S_T+2}, {X2_OFF}
                  s_lshl_b32 s{S_T+3}, s{S_SEG}, 10
                  s_add_u32 s{S_T+3}, s{S_T+3}, {X2P_OFF}
                  s_cmp_eq_u32 s{S_T+5}, s{sSEL}
                  s_cselect_b32 s{S_T+4}, s{S_T+3}, s{S_T+4}
                  s_cmp_eq_u32 s{sLAY}, 0
                  s_cselect_b32 s{S_T+4}, s{S_T+2}, s{S_T+4}
                  s_cselect_b64 {sr(SRD_A,2)}, {sr(P_X,2)}, {sr(P_WS,2)}
                  s_mov_b32 s{SRD_A+2}, {WS_SIZE}
                  s_cmov_b32 s{SRD_A+2}, {2048*1024}
                  s_mov_b32 s{SRD_A+3}, 0x20000
                  buffer_load_dwordx4 {vr(XI,4)}, v{V_L16}, {SA}, s{S_T+4} offen sc1""")
            hpage(S_T + 4, F_RK[1], S_SEG)
            k(f"""buffer_load_dword v{GK}, off, {WS}, s{S_T+4} sc1
                  s_cmp_eq_u32 s{sX}, 0
                  s_cselect_b32 s{S_T+9}, 0x80000000, s{sNK}
                  s_lshl_b32 s{S_T}, s{sLATE}, 31
                  s_or_b32 s{S_T+8}, s{sNQ}, s{S_T}
                  s_or_b32 s{S_T+9}, s{S_T+9}, s{S_T}
                  s_lshr_b32 s{S_T+6}, s{sHD}, 1
                  s_lshl_b32 s{S_T+5}, s{S_T+6}, 10
                  s_add_u32 s{S_T+5}, s{S_T+5}, s{sPT}
                  v_mov_b32 v{TT}, {VOTE}""")
        def pack(u):
            out = []
            for r in range(4):
                for p in range(4):
                    a_ = ACC + u * 32 + p * 8
                    out.append(f"v_cvt_pk_bf16_f32 v{PK+u*16+r*4+p}, v{a_+r}, v{a_+4+r}")
                out.append(f"s_add_u32 s{S_T+6}, s{S_T+5}, {(16*u+r)*16*KB}")
                out.append(f"buffer_store_dwordx4 {vr(PK+u*16+r*4,4)}, v{PT_}, {WS}, s{S_T+6} offen{self.loc}")
            return out
        hd = capture(head)
        fo = fetch_ops(S_T + 8, S_T + 9)
        GAP = opt.get("gap", 4)
        PUBAT = opt.get("pubat", 40)
        nv = 0
        last_copy = -99
        b1 = bread(1) + [f"ds_read_b128 {vr(S,4)}, v{TT}"]
        pk0 = pack(0)
        n_after_copy = 0
        for m in range(128):
            u, g, t = m >> 6, (m >> 3) & 7, m & 7
            if t == 0 and u == 0 and g < 4:
                k(f"s_waitcnt lgkmcnt({7 - g if g < 3 else 0})")
            if m == PUBAT:
                k(f"s_waitcnt vmcnt({nv})")
                k(pub[0]); k(pub[1]); nv += 1
            if m == 64:
                k(f"s_waitcnt vmcnt({nv - 1}) lgkmcnt(0)")
                spin(FL, f"buffer_load_dword v{FL}, v{L4}, {WS}, s{S_T+7} offen sc1", f"v_cmp_gt_u32 vcc, s{sCNT}, v{FL}")
                pk0 = [f"v_or3_b32 v{S}, v{S}, v{S+1}, v{S+2}", f"v_or_b32 v{S}, v{S}, v{S+3}", "s_nop 0",
                       f"v_readfirstlane_b32 s{sLATE}, v{S}"] + pk0
            d = vr(ACC + u * 32 + t * 4, 4)
            k(f"v_mfma_f32_16x16x32_bf16 {d}, {vr(B+u*32+4*g,4)}, {ar((g*8+t)*4,4)}, {'0' if g == 0 else d}")
            n = 0
            while n < 2:
                if hd:
                    x = hd.pop(0)
                elif fo and (not fo[0].startswith("buffer") or m - last_copy >= GAP):
                    x = fo.pop(0)
                    if x.startswith("buffer"):
                        last_copy = m; n_after_copy = -1
                elif b1 and m >= 24:
                    x = b1.pop(0)
                elif pk0 and m >= 64:
                    x = pk0.pop(0)
                else:
                    break
                k(x)
                if x.startswith("buffer"):
                    nv += 1; n_after_copy += 1
                n += 2 if x.startswith(("buffer", "ds_")) else 1
            if m == 63:
                assert not b1 and not hd
        assert not fo and not pk0
        self.mark(35)
        for x in pack(1):
            k(x)
        n_after_copy += 4
        k(f"""s_cmp_lg_u32 s{sLATE}, 0
              s_cbranch_scc1 {LATE}
              s_waitcnt vmcnt({n_after_copy})
              s_barrier
              s_cmp_eq_u32 s{sX}, 0
              s_cbranch_scc1 {NXB}""")
        p0 = list(self.pend)
        pre(1)
        exch1()
        plan_after_d()
        post()
        exch2(voting=True)
        k(f"""s_mov_b32 s{sMODE}, 1
              s_branch {ROWS_}""")
        k.label(NXB)
        self.pend = list(p0)
        pre(0)
        exch1()
        exch2(mid=lambda: (look(), keys_issue()), nmid=9)
        k(f"""s_mov_b32 s{sMODE}, 0
              s_branch {ROWS_}""")
        k.label(LATE)
        self.pend = list(p0)
        exch1()
        exch2()
        k(f"s_mov_b32 s{sMODE}, 2")
        k.label(ROWS_)
        k(f"""s_cmp_lg_u32 s{sLAY}, 0
              s_cbranch_scc1 {R1}""")
        row(0, RD_)
        k(f"s_branch {RD_}")
        k.label(R1)
        row(1, RD_)
        k.label(RD_)
        self.flush(va=240)
        if self.stamps:
            E1, E2 = k.newlabel("L_ev"), k.newlabel("L_ev")
            k(f"s_cmp_lg_u32 s{sLAY}, 0\ns_cbranch_scc1 {E1}")
            self.ev(12, va=240)
            k(f"s_branch {E2}")
            k.label(E1)
            self.ev(22, va=240)
            k.label(E2)
        k(f"""s_cmp_eq_u32 s{sMODE}, 1
              s_cbranch_scc1 {GOD}
              s_cmp_eq_u32 s{sMODE}, 0
              s_cbranch_scc1 {GOB}
              s_cmp_ge_u32 s{sNX}, 64
              s_cbranch_scc1 {FIN2}""")
        k.label(SLOW)
        flush_pub()
        spin(ST, st_load, f"v_cmp_eq_u32 vcc, 0, v{ST}")
        k(f"""s_mov_b32 s{S_T+8}, s{sNQ}
              s_cmp_eq_u32 s{sX}, 0
              s_cselect_b32 s{S_T+9}, 0x80000000, s{sNK}""")
        for x in fetch_ops(S_T + 8, S_T + 9):
            k(x)
        k(f"""s_waitcnt vmcnt(0)
              s_barrier
              s_cmp_eq_u32 s{sX}, 0
              s_cbranch_scc1 {SLB}""")
        self.ev(20, va=240)
        pre(1)
        plan_after_d()
        post()
        k("s_waitcnt vmcnt(0)")
        vote()
        k("""s_waitcnt lgkmcnt(0)
             s_barrier""")
        k.label(GOD)
        k(f"""s_mov_b32 s{S_SEG}, s{sNS}
              s_mov_b32 s{sLAY}, 1
              s_branch {T3}""")
        k.label(SLB)
        pre(0)
        look()
        keys_issue()
        k(f"s_mov_b32 s{sLAY}, 0")
        k.label(GOB)
        NFL = k.newlabel("L_an")
        k(f"""s_mov_b32 s{S_SEG}, s{sNS}
              s_waitcnt vmcnt(3)
              s_bitcmp1_b32 s{S_W}, 0
              s_cselect_b32 s{S_T}, 0, s{sLAY}
              s_cmp_lg_u32 s{S_T}, 0
              s_cbranch_scc1 {NFL}""")
        flush_pub()
        k.label(NFL)
        k(f"s_mov_b32 s{sLAY}, 0")
        plan_after_b()
        self.ev(15, va=240)
        def check(w):
            for kk in range(4):
                if w:
                    k(f"s_waitcnt vmcnt({7-kk})")
                k(f"v_mfma_f32_16x16x32_bf16 {vr(S+8,4)}, {vr(F+4*kk,4)}, {vr(Q+4*kk,4)}, {'0' if kk == 0 else vr(S+8,4)}")
                f = F + 4 * kk
                k(f"v_max3_u32 v{TT}, v{f}, v{f+1}, v{TT if kk else f+2}")
                k(f"v_max3_u32 v{TT}, v{f+2}, v{f+3}, v{TT}")
            if w:
                k("s_waitcnt vmcnt(0)")
            for i in range(4):
                k(f"v_max3_u32 v{TT}, v{VM+2*i}, v{VM+2*i+1}, v{TT}")
            k(f"v_cmp_eq_u32 vcc, -1, v{TT}")
        check(False)
        k(f"s_cbranch_vccz {PC}")
        k.label(PL)
        look()
        self.spend()
        check(True)
        k(f"s_cbranch_vccnz {PL}")
        k.label(PC)
        self.ev(10, va=240)
        post()
        k("s_waitcnt vmcnt(0)")
        vote()
        k(f"""s_waitcnt lgkmcnt(0)
              s_barrier
              s_branch {T3}""")
        k.label(FIN2)
        DONE = k.newlabel("L_az")
        k(f"""s_cmp_lg_u32 s{sKO}, {F_RK[1]}
              s_cbranch_scc1 {DONE}""")
        k.label(FINAL)
        flush_pub()
        k(f"""s_mov_b32 s{S_T+3}, {PG_OFF + 64*8192 + F_FIN}
              v_and_b32 v{TT}, 12, v{L4}
              v_mov_b32 v{TT+1}, 0""")
        self.ev(14, va=240)
        spin(TT + 1, f"s_sleep 2\nbuffer_load_dword v{TT+1}, v{TT}, {WS}, s{S_T+3} offen sc1", f"v_cmp_eq_u32 vcc, 0, v{TT+1}")
        k(f"""v_readlane_b32 s{sSEL}, v{TT+1}, 0
              v_readlane_b32 s{sTODO}, v{TT+1}, 1
              v_readlane_b32 s{S_T}, v{TT+1}, 2
              v_readlane_b32 s{S_T+2}, v{TT+1}, 3
              s_sub_u32 s{sSEL}, s{sSEL}, 1
              s_bitset0_b32 s{sTODO}, 31
              s_bitset0_b32 s{S_T}, 31
              s_mov_b32 s{S_T+1}, 0
              s_lshl_b64 {sr(S_T,2)}, {sr(S_T,2)}, 22
              s_or_b32 s{sTODO}, s{sTODO}, s{S_T}
              s_lshl_b32 s{S_T+2}, s{S_T+2}, 12
              s_or_b32 s{sTODO+1}, s{S_T+1}, s{S_T+2}
              s_mov_b32 s{sKO}, {F_RK[2]}
              s_mov_b32 s{sX}, 1
              s_mov_b32 s{S_T+9}, s{sWK}""")
        SK = k.newlabel("L_as")
        k.label(SK)
        pop_todo(1)
        k(f"""s_sub_u32 s{S_T+9}, s{S_T+9}, 1
              s_cbranch_scc0 {SK}
              s_lshr_b32 s{S_T+5}, s{sSEL}, 5""")
        plan_next(1, S_T + 5)
        k(f"""s_cmp_lt_u32 s{sNX}, 64
              s_cbranch_scc1 {SLOW}""")
        k.label(DONE)
        flush_pub()
        self.ev(23, va=240)

    def both(self, fn, name):
        self.k(f"""s_cmp_lg_u32 s{S_SLOW}, 0
                   s_cbranch_scc1 {name}""")
        fn()
        self.later.append((fn, name))

    def program(self):
        k = self.k
        self.later = []
        self.prologue()
        self.ev(0)
        self.init_ws()
        self.arrive()
        self.ev(1)
        LCH, LM, LA, LA2, C1, C2 = (k.newlabel(x) for x in ("L_rch", "L_rm", "L_ra", "L_rb", "L_rc1", "L_rc2"))
        k.label("L_roles")
        k(f"""s_cmp_ge_u32 s{S_G}, 6
              s_cbranch_scc1 {LA}""")
        self.load_weights(True, None)
        self.ev(2)
        k(f"""s_cmp_lt_u32 s{S_G}, 3
              s_cbranch_scc1 {LCH}
              s_cmp_eq_u32 s{S_G}, 3
              s_cbranch_scc1 {LM}""")
        self.wait_all()
        self.ev(3)
        self.role_proj()
        k("s_endpgm")
        k.label(LM)
        self.load_gate_up()
        self.wait_all()
        self.ev(3)
        def moe():
            self.role_moe()
            k("s_endpgm")
        self.both(moe, "L_wm")
        k.label("L_abort")
        k("s_endpgm")
        k.label("L_spread")
        k(f"""s_mov_b32 s{S_SLOW}, -1
              s_lshr_b32 s{S_G}, s2, 5
              s_and_b32 s{S_H}, s2, 31""")
        if self.stamps:
            k(f"""s_lshl_b32 s{S_EV}, s2, 12
                  s_add_u32 s{S_EV}, s{S_EV}, {STAMP_OFF + MB}""")
            self.ev(0); self.ev(1)
        k("s_branch L_roles")
        k.label(LA)
        self.ev(2)
        self.load_wo2()
        self.wait_all()
        self.ev(3)
        k(f"""s_max_u32 s54, s{S_G}, 5
              s_sub_u32 s54, s54, 5
              s_lshl_b32 s54, s54, 1
              s_lshr_b32 s{S_T}, s{S_H}, 4
              s_add_u32 s54, s54, s{S_T}""")
        def att():
            self.role_att(None)
            k("s_endpgm")
        self.both(att, "L_wa")
        k.label(LCH)
        self.load_weights(False, "chain")
        self.wait_all()
        self.ev(3)
        self.chain_helps()
        def chains():
            C1, C2 = k.newlabel("L_rc1"), k.newlabel("L_rc2")
            k(f"""s_cmp_eq_u32 s{S_G}, 1
                  s_cbranch_scc1 {C1}
                  s_cmp_eq_u32 s{S_G}, 2
                  s_cbranch_scc1 {C2}""")
            self.chain(0)
            k(f"s_branch {LA}")
            k.label(C1)
            self.chain(1)
            k("s_endpgm")
            k.label(C2)
            self.chain(2)
            k("s_endpgm")
        self.both(chains, "L_wc")
        self.loc = " sc1"
        self.abort = "L_abort2"
        k.label("L_abort2")
        k("s_endpgm")
        for fn, name in reversed(self.later):
            k.label(name)
            k.fence()
            fn()

HEADER = open(__file__.rsplit("/", 1)[0] + "/header.txt").read() if "/" in __file__ else open("header.txt").read()

def build(**kw):
    g = Gen(**kw)
    g.program()
    body = g.k.finalize()
    return (HEADER + f"; @launch grid=(256,1,1) block=(256,1,1) lds={LDS_SIZE}\n"
        + f""".amdgcn_target "amdgcn-amd-amdhsa--gfx950"
.text
.globl {NAME}_kernel
.p2align 8
.type {NAME}_kernel,@function
{NAME}_kernel:
""" + body + f""".section .rodata,"a"
.p2align 6
.amdhsa_kernel {NAME}_kernel
  .amdhsa_next_free_vgpr 512
  .amdhsa_next_free_sgpr 102
  .amdhsa_accum_offset 256
  .amdhsa_group_segment_fixed_size 0
  .amdhsa_kernarg_size 120
  .amdhsa_user_sgpr_count 2
  .amdhsa_user_sgpr_kernarg_segment_ptr 1
  .amdhsa_system_sgpr_workgroup_id_x 1
  .amdhsa_float_denorm_mode_32 3
.end_amdhsa_kernel
""")

if __name__ == "__main__":
    import argparse
    ap = argparse.ArgumentParser()
    ap.add_argument("-o", default=f"/code/{NAME}.s")
    ap.add_argument("--stop", default=None)
    ap.add_argument("--stamps", type=int, default=0)
    ap.add_argument("--slow", action="store_true")
    ap.add_argument("--opt", default="{}")
    a = ap.parse_args()
    stop = None
    if a.stop:
        l, p = a.stop.split(":"); stop = (int(l), p)
    open(a.o, "w").write(build(fast=not a.slow, stop=stop, stamps=a.stamps, opt=eval(a.opt)))
```

```python
KB = 1024; MB = 1024 * 1024
NSEG = 64; NH = 32
H_OFF   = [0 * MB, 2 * MB]
X1_OFF  = [4 * MB, 6 * MB]
X2_OFF  = 8 * MB
PG_OFF  = 10 * MB
NPAGES  = 72
MEM_OFF = [11 * MB, 12 * MB, 13 * MB]
PC_OFF  = [14 * MB, 15 * MB, 16 * MB]
MEMX_OFF = 17 * MB
STAMP_OFF = 18 * MB
PT_OFF  = 20 * MB
HP_OFF  = 94 * MB
X2P_OFF = 10 * MB + 768 * KB
HPS_OFF = 10 * MB + 832 * KB
KVM_OFF = [40 * MB, 56 * MB, 72 * MB]
MOE_OFF = 88 * MB
QKV_OFF = [96 * MB, 144 * MB, 192 * MB]
WS_SIZE = 256 * MB
F_KV  = [0, 128, 256]
F_Q   = [0, 384, 1920]
F_KM  = [None, 512, 640]
F_M   = 1152
F_REC = 1280
F_RK  = [1408, 1536, 768]
F_RKU = 256
F_RKM = 1280
F_HX  = 1792
F_FIN = 512
F_CW  = 512
F_DEC = 0
F_RM  = 1024
F_J   = 1664
F_CR  = 1024
L_WO = 0
L_KX = 128 * KB
L_VX = 136 * KB
L_QK = 144 * KB
L_O  = 148 * KB
L_MB = 152 * KB
L_TO = 128 * KB
L_H = 128 * KB
L_ROW = 152 * KB
L_MOE = 136 * KB
L_MISC = 156 * KB
LDS_SIZE = 160 * KB
```

```python
import sys, math
from asmlib import K, vr, ar, sr, Ins, need
from layout import *

NAME = "interleave_layers__memory_aug_recurrent_mem_tr__moe_arch_mod__prompt"

SRD_A = 4
SRD_WS = 8
SRD_DBG = 12
P_X, P_MEM0, P_WQ, P_WK, P_WV, P_WO = 16, 18, 20, 22, 24, 26
P_WR, P_WG, P_WU, P_WD, P_OUT, P_DBG, P_WS = 32, 34, 36, 38, 40, 42, 44
S_W, S_H, S_G, S_BUD = 46, 47, 48, 49
S_SLOW = 3
S_LW = 50
S_SEG, S_OOB, S_CNT = 51, 52, 53
S_T = 56
S_C = 80
S_EV = 81
S_ONE = 28
S_A, S_B = 30, 31
LOOK = 2
WS = sr(SRD_WS, 4); SA = sr(SRD_A, 4); DBG = sr(SRD_DBG, 4)

SCALE_LOG2E = (128 ** -0.5) * math.log2(math.e)
def f32(x):
    import struct
    return "0x%08x" % struct.unpack("<I", struct.pack("<f", x))[0]
NEGBIG = f32(-1e30)

def wq(ks, t, half=None):
    b = (ks * 2 + t) * 8
    return ar(b, 8) if half is None else ar(b + 4 * half, 4)
def wk(ks, t, half=None):
    b = 128 + (ks * 2 + t) * 8
    return ar(b, 8) if half is None else ar(b + 4 * half, 4)
def wv(ks, t, half=None):
    b = 128 + (ks * 2 + t) * 8
    return vr(b, 8) if half is None else vr(b + 4 * half, 4)

def unpk(x):
    import re
    if not isinstance(x, str) or not x.startswith("v_pk_"):
        return [x]
    ins = Ins(x)
    mod = lambda nm, d: [int(c) for c in re.search(nm + r":\[([01,]+)\]", ins.mods).group(1).split(",")] if re.search(nm + r":\[", ins.mods) else d
    n = len(ins.ops) - 1
    lo, hi = mod(r"op_sel", [0] * n), mod("op_sel_hi", [1] * n)
    if "op_sel:" not in ins.mods:
        lo = [0] * n
    ng = mod("neg_lo", [0] * n)
    base = [re.match(r"([vs])\[(\d+):", o).groups() for o in ins.ops]
    out = []
    for h, sel in enumerate((lo, hi)):
        src = [("-" if ng[i] else "") + base[i+1][0] + str(int(base[i+1][1]) + sel[i]) for i in range(n)]
        out.append(f"{ins.op.replace('v_pk_', 'v_')} v{int(base[0][1]) + h}, " + ", ".join(src))
    return out

V_L16 = 0
V_LANE = 1

class Gen:
    def __init__(self, fast=True, stop=None, stamps=False, opt=None):
        self.opt = opt or {}
        self.LH = L_H
        self.pend = []
        self.mk = 0
        self.k = K()
        self.fast = fast
        self.loc = "" if fast else " sc1"
        self.stop = stop
        self.abort = "L_abort"
        self.stamps = stamps

    def srd(self, ptr, nbytes):
        k = self.k
        k(f"""s_mov_b32 s{SRD_A}, s{ptr}
              s_mov_b32 s{SRD_A+1}, s{ptr+1}
              s_mov_b32 s{SRD_A+2}, {nbytes}
              s_mov_b32 s{SRD_A+3}, 0x20000""")

    def budget(self, retry):
        self.k(f"""s_sub_u32 s{S_BUD}, s{S_BUD}, 1
                   s_cmp_gt_i32 s{S_BUD}, 0
                   s_cbranch_scc1 {retry}
                   s_branch {self.abort}""")

    def spend(self, inc=None, cnt=None):
        if self.stamps and inc:
            self.k(f"s_add_u32 s{cnt}, s{cnt}, {inc}")
        self.k(f"""s_sub_u32 s{S_BUD}, s{S_BUD}, 1
                   s_cbranch_scc1 {self.abort}""")

    def wsum(self, x, t):
        k = self.k
        for r in (8, 4, 2, 1):
            k(f"v_add_f32_dpp v{x}, v{x}, v{x} row_ror:{r} row_mask:0xf bank_mask:0xf")
        k(f"""v_mov_b32 v{t}, v{x}
              v_permlane16_swap_b32 v{x}, v{t}
              v_add_f32 v{x}, v{x}, v{t}
              v_mov_b32 v{t}, v{x}
              v_permlane32_swap_b32 v{x}, v{t}
              v_add_f32 v{x}, v{x}, v{t}""")

    def unpack8(self, dst, src):
        k = self.k
        for q in range(4):
            k(f"v_lshlrev_b32 v{dst+2*q}, 16, v{src+q}")
            k(f"v_and_b32 v{dst+2*q+1}, 0xffff0000, v{src+q}")

    def pack8(self, dst, src):
        for q in range(4):
            self.k(f"v_cvt_pk_bf16_f32 v{dst+q}, v{src+2*q}, v{src+2*q+1}")

    def round1(self, x):
        self.k(f"""v_cvt_pk_bf16_f32 v{x}, v{x}, v{x}
                   v_and_b32 v{x}, 0xffff0000, v{x}""")

    def layernorm(self, x, ypk, tmp):
        k = self.k
        d = tmp; s = tmp + 8; q = tmp + 10; t = tmp + 12
        c = S_T + 22
        k(f"v_readfirstlane_b32 s{c}, v{x}")
        for j in range(0, 8, 2):
            k(f"v_pk_add_f32 {vr(d+j,2)}, {vr(x+j,2)}, {sr(c,2)} op_sel_hi:[1,0] neg_lo:[0,1] neg_hi:[0,1]")
        k(f"""v_pk_add_f32 {vr(s,2)}, {vr(d,2)}, {vr(d+2,2)}
              v_pk_mul_f32 {vr(q,2)}, {vr(d,2)}, {vr(d,2)}
              v_pk_add_f32 {vr(t,2)}, {vr(d+4,2)}, {vr(d+6,2)}
              v_pk_fma_f32 {vr(q,2)}, {vr(d+2,2)}, {vr(d+2,2)}, {vr(q,2)}
              v_pk_add_f32 {vr(s,2)}, {vr(s,2)}, {vr(t,2)}
              v_pk_fma_f32 {vr(q,2)}, {vr(d+4,2)}, {vr(d+4,2)}, {vr(q,2)}
              v_add_f32 v{s}, v{s}, v{s+1}
              v_pk_fma_f32 {vr(q,2)}, {vr(d+6,2)}, {vr(d+6,2)}, {vr(q,2)}
              v_add_f32 v{q}, v{q}, v{q+1}""")
        k(f"""v_permlane32_swap_b32 v{s}, v{q}
              v_add_f32 v{s}, v{s}, v{q}""")
        for r in (8, 4, 2, 1):
            k(f"v_add_f32_dpp v{s}, v{s}, v{s} row_ror:{r} row_mask:0xf bank_mask:0xf")
        k(f"""v_mov_b32 v{q}, v{s}
              v_permlane16_swap_b32 v{s}, v{q}
              v_add_f32 v{s}, v{s}, v{q}
              v_mul_f32 v{s}, {f32(1.0/512)}, v{s}
              v_mov_b32 v{q}, v{s}
              v_permlane32_swap_b32 v{s}, v{q}
              v_fma_f32 v{q}, -v{s}, v{s}, v{q}
              v_add_f32 v{s}, s{c}, v{s}
              v_max_f32 v{q}, 0, v{q}
              v_cvt_pk_bf16_f32 v{q}, v{s}, v{q}
              v_lshlrev_b32 v{s}, 16, v{q}
              v_and_b32 v{q}, 0xffff0000, v{q}
              v_add_f32 v{q}, {f32(1e-5)}, v{q}""")
        self.round1(q)
        k(f"v_sqrt_f32 v{q}, v{q}")
        for j in range(0, 8, 2):
            k(f"v_pk_add_f32 {vr(d+j,2)}, {vr(x+j,2)}, {vr(s,2)} op_sel_hi:[1,0] neg_lo:[0,1] neg_hi:[0,1]")
        self.round1(q)
        k(f"v_rcp_f32 v{q}, v{q}")
        self.pack8(ypk, d)
        self.unpack8(d, ypk)
        for j in range(0, 8, 2):
            k(f"v_pk_mul_f32 {vr(d+j,2)}, {vr(d+j,2)}, {vr(q,2)} op_sel_hi:[1,0]")
        self.pack8(ypk, d)

    def add8(self, x, y):
        for j in range(0, 8, 2):
            self.k(f"v_pk_add_f32 {vr(x+j,2)}, {vr(x+j,2)}, {vr(y+j,2)}")

    def arrive(self):
        k = self.k
        D = k.newlabel("L_ar")
        k(f"""s_barrier
              s_cmp_lg_u32 s{S_W}, 0
              s_cbranch_scc1 {D}
              v_mov_b32 v8, 128
              v_mov_b32 v9, s{S_CNT}
              s_mov_b64 exec, 1
              buffer_atomic_add v9, v8, {DBG}, 0 offen
              s_mov_b64 exec, -1""")
        k.label(D)
        k(f"s_mov_b32 s{S_CNT}, 0")
        self.ev(1, va=10)

    def wait_all(self):
        k = self.k
        L = k.newlabel("L_gb"); D = k.newlabel("L_gbd")
        k(f"""v_mov_b32 v123, {L_MISC}
              s_cmp_lg_u32 s{S_W}, 0
              s_cbranch_scc1 {D}
              v_mov_b32 v124, 128""")
        k.label(L)
        k(f"""buffer_load_dword v125, v124, {DBG}, 0 offen sc1
              s_waitcnt vmcnt(0)
              v_readfirstlane_b32 s{S_T}, v125
              ds_write_b32 v123, v125
              s_bitcmp1_b32 s{S_T}, 8
              s_cbranch_scc1 {D}
              s_sleep 4""")
        self.budget(L)
        k.label(D)
        k(f"""s_waitcnt lgkmcnt(0)
              s_barrier
              ds_read_b32 v125, v123
              s_waitcnt lgkmcnt(0)
              v_readfirstlane_b32 s{S_T}, v125
              s_barrier
              s_lshr_b32 s{S_T}, s{S_T}, 16
              s_andn2_b32 s{S_T}, s{S_T}, s{S_SLOW}
              s_cbranch_scc1 L_spread""")

    def page(self, dst, off, seg=S_SEG, head=True):
        k = self.k
        k(f"s_lshl_b32 s{dst}, s{seg}, 13")
        if head:
            k(f"s_lshl2_add_u32 s{dst}, s{S_H}, s{dst}")
        k(f"s_add_u32 s{dst}, s{dst}, {PG_OFF + off}")

    def word_wait(self, s_off, s_val, va=125, sleep=0, quick=False):
        k = self.k
        L, D = k.newlabel("L_ww"), k.newlabel("L_wwd")
        if quick:
            k(f"""s_buffer_load_dword s{s_val}, {WS}, s{s_off} glc
                  s_waitcnt lgkmcnt(0)
                  s_cmp_lg_u32 s{s_val}, 0
                  s_cbranch_scc1 {D}""")
        k.label(L)
        if sleep:
            k(f"s_sleep {sleep}")
        k(f"buffer_load_dword v{va}, off, {WS}, s{s_off} sc1")
        self.spend()
        k(f"""s_waitcnt vmcnt(0)
              v_readfirstlane_b32 s{s_val}, v{va}
              s_cmp_eq_u32 s{s_val}, 0
              s_cbranch_scc1 {L}""")
        k.label(D)

    def stamp(self, name):
        pts = self.opt.get("pts", [0, 1, 2, 3, 4, 5, 6, 7])
        if self.stamps > 1 and name in pts:
            i = pts.index(name)
            self.k(f"s_memtime s[{84+2*i}:{85+2*i}]")

    def ev(self, tag, va=126, clk="s_memrealtime"):
        if not self.stamps:
            return
        k = self.k
        D = k.newlabel("L_ps")
        k(f"""s_cmp_lg_u32 s{S_W}, 0
              s_cbranch_scc1 {D}
              {clk} s[82:83]
              s_or_b32 s100, s{S_SEG}, {tag << 8}
              s_waitcnt lgkmcnt(0)
              s_mov_b64 exec, 1
              v_mov_b32 v{va}, s82
              v_mov_b32 v{va+1}, s100
              buffer_store_dwordx2 {vr(va,2)}, off, {WS}, s{S_EV}
              s_mov_b64 exec, -1
              s_add_u32 s{S_EV}, s{S_EV}, 8""")
        k.label(D)

    def mark(self, tag):
        if self.stamps != 1 or tag not in self.opt.get("marks", ()):
            return
        i = len(self.pend); assert i < 6
        self.pend.append(tag)
        self.k(f"{'s_memtime' if self.opt.get('mt') else 's_memrealtime'} s[{88+2*i}:{89+2*i}]")

    def flush(self, va=126):
        if not self.pend:
            return
        k = self.k
        D = k.newlabel("L_fl")
        k(f"""s_cmp_lg_u32 s{S_W}, 0
              s_cbranch_scc1 {D}
              s_waitcnt lgkmcnt(0)
              s_mov_b64 exec, 1""")
        for i, tag in enumerate(self.pend):
            k(f"""s_or_b32 s100, s{S_SEG}, {tag << 8}
                  v_mov_b32 v{va}, s{88+2*i}
                  v_mov_b32 v{va+1}, s100
                  buffer_store_dwordx2 {vr(va,2)}, off, {WS}, s{S_EV}
                  s_add_u32 s{S_EV}, s{S_EV}, 8""")
        k("s_mov_b64 exec, -1")
        k.label(D)
        self.pend = []

    def prologue(self):
        k = self.k
        k(f"""s_cmp_ge_u32 s2, 256
              s_cbranch_scc1 L_abort
              s_load_dwordx16 s[16:31], s[0:1], 0
              s_load_dwordx8 s[32:39], s[0:1], 64
              s_load_dwordx4 s[40:43], s[0:1], 96
              s_load_dwordx2 s[44:45], s[0:1], 112
              v_lshrrev_b32 v2, 6, v0
              v_and_b32 v{V_LANE}, 63, v0
              v_readfirstlane_b32 s{S_W}, v2
              v_lshlrev_b32 v{V_L16}, 4, v{V_LANE}
              s_getreg_b32 s{S_G}, hwreg(HW_REG_XCC_ID)
              s_and_b32 s{S_G}, s{S_G}, 7
              s_lshl_b32 s{S_G}, s{S_G}, 2
              s_lshr_b32 s{S_G}, {sum(g << (4*x) for x, g in enumerate(self.opt.get("map", (0, 6, 2, 4, 1, 7, 3, 5))))}, s{S_G}
              s_and_b32 s{S_G}, s{S_G}, 7
              s_mov_b32 s{S_BUD}, 100000
              s_mov_b32 s{S_C}, {f32(SCALE_LOG2E)}
              s_waitcnt lgkmcnt(0)
              s_mov_b32 s{SRD_WS}, s{P_WS}
              s_mov_b32 s{SRD_WS+1}, s{P_WS+1}
              s_mov_b32 s{SRD_WS+2}, {WS_SIZE}
              s_mov_b32 s{SRD_WS+3}, 0x20000
              s_mov_b32 s{SRD_DBG}, s{P_DBG}
              s_mov_b32 s{SRD_DBG+1}, s{P_DBG+1}
              s_mov_b32 s{SRD_DBG+2}, 256
              s_mov_b32 s{SRD_DBG+3}, 0x20000""")
        T = k.newlabel("L_tk")
        k(f"""s_cmp_lg_u32 s{S_W}, 0
              s_cbranch_scc1 {T}
              s_lshl_b32 s{S_T}, s{S_G}, 2
              v_mov_b32 v14, s{S_T}
              v_mov_b32 v15, 1
              s_mov_b64 exec, 1
              buffer_atomic_add v15, v14, {DBG}, 0 offen sc0
              s_mov_b64 exec, -1""")
        k.label(T)
        self.init_ws()
        T = k.newlabel("L_tk")
        k(f"""s_cmp_lg_u32 s{S_W}, 0
              s_cbranch_scc1 {T}
              s_mov_b64 exec, 1
              v_mov_b32 v4, {L_MISC}
              ds_write_b32 v4, v15
              s_mov_b64 exec, -1
              s_waitcnt lgkmcnt(0)""")
        k.label(T)
        k(f"""s_barrier
              v_mov_b32 v4, {L_MISC}
              ds_read_b32 v3, v4
              s_waitcnt lgkmcnt(0)
              v_readfirstlane_b32 s{S_H}, v3
              s_mov_b32 s{S_SLOW}, 0
              s_cmp_ge_u32 s{S_H}, 32
              s_cselect_b32 s{S_CNT}, 0x10001, 1
              s_and_b32 s{S_H}, s{S_H}, 31
              s_lshl_b32 s{S_LW}, s{S_W}, 10
              s_cmp_eq_u32 s{S_W}, 0
              s_cselect_b32 s{S_OOB}, 0, 0x80000000
              s_mov_b32 s{S_ONE}, 0x3f803f80
              s_mov_b32 s{S_ONE+1}, 0x3f803f80
              s_mov_b32 s{S_SEG}, 0""")
        if self.opt.get("mix", 1):
            k(f"""s_bfe_u32 s{S_T}, s{S_G}, 0x10001
                  s_and_b32 s{S_T+1}, s{S_G}, 1
                  s_add_u32 s{S_T+2}, s{S_T}, 6
                  s_sub_u32 s{S_T+3}, 5, s{S_T+1}
                  s_cmp_ge_u32 s{S_H}, 16
                  s_cselect_b32 s{S_T+2}, s{S_T+2}, s{S_T+3}
                  s_cselect_b32 s{S_T+1}, s{S_T+1}, s{S_T}
                  s_and_b32 s{S_T+3}, s{S_H}, 15
                  s_lshl4_add_u32 s{S_T+1}, s{S_T+1}, s{S_T+3}
                  s_cmp_ge_u32 s{S_G}, 4
                  s_cselect_b32 s{S_G}, s{S_T+2}, s{S_G}
                  s_cselect_b32 s{S_H}, s{S_T+1}, s{S_H}""")
        if self.stamps:
            k(f"""s_lshl_b32 s{S_EV}, s{S_G}, 5
                  s_add_u32 s{S_EV}, s{S_EV}, s{S_H}
                  s_lshl_b32 s{S_EV}, s{S_EV}, 12
                  s_add_u32 s{S_EV}, s{S_EV}, {STAMP_OFF + MB}""")

    def init_ws(self):
        k = self.k
        self.srd(P_X, 2048 * 1024)
        k(f"""s_lshl_b32 s{S_T}, s2, 3
              s_lshl_b32 s{S_T+3}, s{S_W}, 1
              s_add_u32 s{S_T}, s{S_T}, s{S_T+3}
              s_lshl_b32 s{S_T+3}, s{S_T}, 10
              buffer_load_dwordx4 v[24:27], v{V_L16}, {SA}, s{S_T+3} offen
              buffer_load_dwordx4 v[28:31], v{V_L16}, {SA}, s{S_T+3} offen offset:1024""")
        k(f"""s_lshl_b32 s{S_T}, s2, 12
              s_lshl_b32 s{S_T+1}, s{S_W}, 10
              s_add_u32 s{S_T}, s{S_T}, s{S_T+1}
              v_add_u32 v2, s{S_T}, v{V_L16}
              v_mov_b32 v4, -1
              v_mov_b32 v5, -1
              v_mov_b32 v6, -1
              v_mov_b32 v7, -1
              v_mov_b32 v8, 0
              v_mov_b32 v9, 0
              v_mov_b32 v10, 0
              v_mov_b32 v11, 0""")
        k(f"""v_cmp_gt_u32 vcc, {512*KB}, v2
              v_mov_b32 v3, {PC_OFF[0] - 512*KB}
              v_mov_b32 v12, {MEM_OFF[0] + 8*KB}
              v_cndmask_b32 v3, v3, v12, vcc
              v_add_u32 v3, v3, v2""")
        for c in range(3):
            k(f"s_mov_b32 s{S_T}, {c*MB}")
            k(f"buffer_store_dwordx4 v[4:7], v3, {WS}, s{S_T} offen sc1")
        for i in range(2):
            k(f"s_mov_b32 s{S_T}, {X1_OFF[0] + i*MB}")
            k(f"buffer_store_dwordx4 v[4:7], v2, {WS}, s{S_T} offen sc1")
        k(f"""v_add_u32 v3, {MEMX_OFF + 8*KB - 512*KB}, v2
              v_mov_b32 v12, 0x80000000
              v_cndmask_b32 v3, v3, v12, vcc
              buffer_store_dwordx4 v[4:7], v3, {WS}, 0 offen sc1
              v_cmp_gt_u32 vcc, {NPAGES*2*KB}, v2
              v_lshrrev_b32 v3, 11, v2
              v_lshlrev_b32 v3, 13, v3
              v_and_b32 v13, 0x7ff, v2
              v_add_u32 v3, v3, v13
              v_add_u32 v3, {PG_OFF}, v3
              v_cndmask_b32 v3, v12, v3, vcc
              buffer_store_dwordx4 v[8:11], v3, {WS}, 0 offen sc1
              v_add_u32 v3, {HPS_OFF - 256*KB}, v2
              v_lshrrev_b32 v13, 16, v2
              v_cmp_eq_u32 vcc, 4, v13
              v_cndmask_b32 v3, v12, v3, vcc
              buffer_store_dwordx4 v[4:7], v3, {WS}, 0 offen sc1""")
        k("s_waitcnt vmcnt(8)")
        assert H_OFF[0] == 0
        for i in range(2):
            self.unpack8(32, 24 + 4 * i)
            self.layernorm(32, 40 + 4 * i, 48)
            k(f"buffer_store_dwordx4 {vr(40+4*i,4)}, v{V_L16}, {WS}, s{S_T+3} offen offset:{1024*i} sc1")
        D = k.newlabel("L_m0")
        self.srd(P_MEM0, 8192)
        k(f"""s_cmp_ge_u32 s2, 2
              s_cbranch_scc1 {D}
              s_lshl_b32 s{S_T}, s2, 2
              s_add_u32 s{S_T}, s{S_T}, s{S_W}          ; ks
              v_bfe_u32 v2, v{V_LANE}, 2, 2
              v_and_b32 v3, 1, v{V_LANE}
              v_lshl_add_u32 v2, v2, 1, v3               ; m
              v_lshlrev_b32 v2, 10, v2
              v_lshrrev_b32 v3, 4, v{V_LANE}
              v_lshl_add_u32 v2, v3, 5, v2               ; + ga*32
              v_and_b32 v3, 2, v{V_LANE}
              v_lshl_add_u32 v2, v3, 1, v2               ; + hi*4
              s_lshl_b32 s{S_T+1}, s{S_T}, 7             ; ks*128""")
        for q in range(4):
            k(f"buffer_load_dword v{32+q}, v2, {SA}, s{S_T+1} offen offset:{8*q}")
        self.mfrag_voff(2, 3)
        k(f"""s_and_b32 s{S_T+1}, s{S_T}, 1
              s_lshl_b32 s{S_T+1}, s{S_T+1}, 8
              s_and_b32 s{S_T+2}, s{S_T}, 2
              s_lshl_b32 s{S_T+2}, s{S_T+2}, 6
              s_add_u32 s{S_T+1}, s{S_T+1}, s{S_T+2}
              s_and_b32 s{S_T+2}, s{S_T}, 4
              s_lshl_b32 s{S_T+2}, s{S_T+2}, 10
              s_add_u32 s{S_T+1}, s{S_T+1}, s{S_T+2}
              s_waitcnt vmcnt(0)""")
        for off in (MEM_OFF[0], MEM_OFF[1], MEMX_OFF):
            k(f"s_add_u32 s{S_T+2}, s{S_T+1}, {off}")
            k(f"buffer_store_dwordx4 v[32:35], v2, {WS}, s{S_T+2} offen sc1")
        k.label(D)

    def mfrag_voff(self, dst, t):
        self.k(f"""v_lshrrev_b32 v{dst}, 3, v{V_LANE}
                   v_lshlrev_b32 v{dst}, 9, v{dst}
                   v_and_b32 v{t}, 7, v{V_LANE}
                   v_lshl_add_u32 v{dst}, v{t}, 4, v{dst}""")

    def load_weights(self, qkv, wo, base=2):
        chain_wo = wo == 'chain'
        k = self.k
        NB = 7
        TB = 24
        k(f"""v_and_b32 v{base+0}, 15, v{V_LANE}
              v_lshlrev_b32 v{base+0}, 2, v{base+0}                    ; c*4
              v_lshrrev_b32 v{base+1}, 4, v{V_LANE}
              v_lshl_add_u32 v{base+2}, v{base+1}, 16, v{base+0}              ; g*8 rows*8192 + c*4
              v_lshl_add_u32 v{base+3}, v{base+1}, {12 if chain_wo else 13}, v{base+0}   ; g*(4|8) rows*1024 + c*4
              s_lshl_b32 s{S_T+2}, s{S_H}, 8
              s_lshl_b32 s{S_T+1}, s{S_W}, 6
              s_add_u32 s{S_T+2}, s{S_T+2}, s{S_T+1}     ; h*256 + w*64
              s_lshl_b32 s{S_T+3}, s{S_H}, 17
              s_add_u32 s{S_T+3}, s{S_T+3}, s{S_T+1}     ; h*128KB + w*64
              s_lshl_b32 s{S_T+4}, s{S_W}, 15
              v_add_u32 v{base+4}, s{S_T+4}, v{V_L16}
              s_mov_b32 s{S_T+5}, 0x05040100
              s_mov_b32 s{S_T+6}, 0x07060302
              s_lshl_b32 s{S_T+7}, s{S_W}, 19
              s_cmp_lt_u32 s{S_G}, 3
              s_cselect_b32 s{S_T+7}, s{S_T+7}, 0""")
        groups = []
        for m, ptr in (("k", P_WK), ("v", P_WV), ("q", P_WQ)) if qkv else ():
            for kk in range(16):
                groups.append((m, ptr, kk, None))
        for u in range(4 if wo else 0):
            for kk in range(4):
                groups.append(("o", P_WO, kk, u))
        def issue(i):
            m, ptr, kk, u = groups[i]
            b = TB + (i % NB) * 8
            if i == 0 or groups[i - 1][0] != m:
                self.srd(ptr, 4 * MB)
            for j in range(8):
                if m != "o":
                    if j == 0:
                        k(f"s_xor_b32 s{S_T}, s{S_T+7}, {32*kk*8192}")
                        k(f"s_add_u32 s{S_T}, s{S_T}, s{S_T+2}")
                    else:
                        k(f"s_add_u32 s{S_T}, s{S_T}, 8192")
                    k(f"buffer_load_dword v{b+j}, v{base+2}, {SA}, s{S_T} offen")
                else:
                    if j % 4 == 0:
                        k(f"s_add_u32 s{S_T}, s{S_T+3}, {(32*kk+(4*j if chain_wo else j))*1024 + 256*u}")
                    k(f"buffer_load_dword v{b+j}, v{base+3}, {SA}, s{S_T} offen offset:{(j%4)*1024}")
        def consume(i):
            m, ptr, kk, u = groups[i]
            b = TB + (i % NB) * 8
            if m == "o" and chain_wo:
                for hf in range(2):
                    k(f"ds_write_b128 v{base+4}, {vr(b+4*hf,4)} offset:{((u*4+kk)*2+hf)*1024}")
                k("s_waitcnt lgkmcnt(0)")
                return
            for t in range(2):
                for q in range(4):
                    sel = f"s{S_T+5+t}"
                    if m == "v":
                        d = 128 + ((kk >> 1) * 2 + t) * 8 + 4 * (kk & 1) + q
                        k(f"v_perm_b32 v{d}, v{b+2*q+1}, v{b+2*q}, {sel}")
                    else:
                        k(f"v_perm_b32 v{80+4*t+q}, v{b+2*q+1}, v{b+2*q}, {sel}")
            if m in "qk":
                for t in range(2):
                    for q in range(4):
                        d = (128 if m == "k" else 0) + ((kk >> 1) * 2 + t) * 8 + 4 * (kk & 1) + q
                        k(f"v_accvgpr_write_b32 a{d}, v{80+4*t+q}")
            if m == "o":
                for t in range(2):
                    k(f"ds_write_b128 v{base+4}, {vr(80+4*t,4)} offset:{((u*2+t)*4+kk)*1024}")
                k("s_waitcnt lgkmcnt(0)")
        n = len(groups)
        for i in range(NB):
            issue(i)
        for i in range(n):
            left = min(n - 1 - i, NB - 1)
            k(f"s_waitcnt vmcnt({left*8})")
            consume(i)
            if i + NB < n:
                issue(i + NB)
            if i == 0 and qkv:
                self.arrive()

    def qkv_base(self, dst, which):
        self.k(f"""s_lshl_b32 s{dst}, s{S_SEG}, 5
                   s_add_u32 s{dst}, s{dst}, s{S_H}
                   s_mul_i32 s{dst}, s{dst}, {24*KB}
                   s_add_u32 s{dst}, s{dst}, {QKV_OFF[which] if isinstance(which, int) else which}""")

    def t1_dma(self, s_h, quarters, voff=None, reg=0, sb=S_LW):
        voff = voff or (self.THD, self.THD)
        out = []
        for qi in quarters:
            for u in range(2):
                out.append(f"s_add_u32 m0, s{sb}, {self.LH + reg*32*KB + qi*8192 + u*4096 - qi*256}")
                out.append(f"buffer_load_dwordx4 v{voff[u]}, {WS}, s{s_h+u} offen offset:{qi*256} sc1 lds")
        return out

    def t1_src(self, dst, seg, hreg):
        self.k(f"""s_lshl_b32 s{dst}, s{seg}, 15
                   s_add_u32 s{dst}, s{dst}, {H_OFF[hreg]}
                   s_add_u32 s{dst+1}, s{dst}, {16*KB}""")

    def flag_store(self, s_off, loc):
        self.k(f"""s_or_b32 s{s_off}, s{s_off}, s{S_OOB}
                   buffer_store_dword v{self.TOB}, off, {WS}, s{s_off}{loc}""")

    def t1(self, which, s_h, voff=None, pre=0, nxt=None, s_flag=None, extra=(), x_flag=None, qloc=False, s_keep=0, rot=False):
        k = self.k
        ACC = 24; RING = (72, 80, 108)
        aq = lambda t, u: ACC + (t * 2 + u) * 4
        ak = lambda t, u: ACC + 16 + (t * 2 + u) * 4
        av = lambda t, u: ACC + 32 + (t * 2 + u) * 4
        first, later = ((0, 1), (2, 3)) if rot else ((0, 1, 2), (3,))
        if not pre:
            for x in self.t1_dma(s_h, first, voff):
                k(x)
        self.qkv_base(S_T + 2, which)
        k(f"""s_add_u32 s{S_T+5}, s{S_T+2}, s{S_LW}      ; K u0
              s_add_u32 s{S_T+6}, s{S_T+5}, 4096         ; K u1
              s_add_u32 s{S_T+7}, s{S_T+5}, {16*KB}      ; Q u0
              s_add_u32 s{S_T+8}, s{S_T+5}, {20*KB}      ; Q u1
              s_add_u32 s{S_T+9}, s{S_T+5}, s{S_LW}
              s_add_u32 s{S_T+9}, s{S_T+9}, {8*KB}       ; V""")
        if rot:
            rd = lambda kk: [f"ds_read_b128 {vr(RING[kk%3]+4*u,4)}, v{self.THR+(kk&7)} offset:{(kk>>3)*16384+u*4096}" for u in range(2)]
        else:
            rd = lambda kk: [f"ds_read_b128 {vr(RING[kk%3]+4*u,4)}, v{self.THR+(kk&3)} offset:{(kk>>2)*8192+u*4096}" for u in range(2)]
        k(f"s_waitcnt vmcnt({(0 if rot else 4) + pre})")
        k("s_barrier")
        self.mark(self.mk + 0)
        for x in rd(0) + rd(1):
            k(x)
        for x in self.t1_dma(s_h, later, voff):
            k(x)
        for x in extra:
            k(x)
        ne = len(extra); nl = 2 * len(later)
        side = []
        for kk in range(16):
            b = RING[kk % 3]
            n = kk + 2
            last_q = (n == 8) if rot else (n == 12)
            if last_q:
                k(f"s_waitcnt vmcnt({1 if (s_flag and not rot) else 0})")
                k("s_barrier")
                if x_flag:
                    self.flag_store(x_flag, " sc1")
                if s_flag and rot:
                    self.flag_store(s_flag, " sc1")
            elif not rot and n in (4, 8):
                k(f"s_waitcnt vmcnt({(2 if n == 4 else 0) + pre + nl + ne})")
                k("s_barrier")
            if kk == 7 and s_flag and not rot:
                assert not extra
                k(f"s_waitcnt vmcnt({nl + s_keep})")
                k("s_barrier")
                self.flag_store(s_flag, " sc1")
            if kk == 12 and nxt:
                k("s_barrier")
                side = list(nxt)
            k(f"s_waitcnt lgkmcnt({2 if kk < 15 else 0})")
            ks, hf = kk >> 1, kk & 1
            fill = rd(n) if n < 16 else []
            i = 0
            for t in range(2):
                for u in range(2):
                    h = vr(b + 4 * u, 4)
                    for acc, w, tr in ((ak, wk, True), (av, wv, False), (aq, wq, True)):
                        d = vr(acc(t, u), 4)
                        c = "0" if kk == 0 else d
                        a_, b_ = (w(ks, t, hf), h) if tr else (h, w(ks, t, hf))
                        k(f"v_mfma_f32_16x16x32_bf16 {d}, {a_}, {b_}, {c}")
                        i += 1
                        if fill and i % 2 == 1:
                            k(fill.pop(0))
                        elif side:
                            k(side.pop(0))
        assert not side
        self.mark(self.mk + 3)
        if which == 0:
            k(f"""s_lshl_b32 s{S_T}, s{S_SEG}, 5
                  s_add_u32 s{S_T}, s{S_T}, s{S_H}
                  s_lshl_b32 s{S_T}, s{S_T}, 12
                  s_add_u32 s{S_T}, s{S_T}, s{S_LW}
                  s_add_u32 s{S_T}, s{S_T}, {KVM_OFF[0]}
                  v_mov_b64 v[120:121], -1
                  v_mov_b64 v[122:123], -1
                  buffer_store_dwordx4 v[120:123], v{V_L16}, {WS}, s{S_T} offen sc1""")
        for i, (acc, so) in enumerate(((ak, S_T + 5), (aq, S_T + 7))):
            for u in range(2):
                p = RING[2 * i] + u * 4
                for r in range(4):
                    k(f"v_cvt_pk_bf16_f32 v{p+r}, v{acc(0,u)+r}, v{acc(1,u)+r}")
                k(f"buffer_store_dwordx4 {vr(p,4)}, v{V_L16}, {WS}, s{so+u} offen{'' if (i == 1 and qloc) else ' sc1'}")
            if i == 0:
                for t in range(2):
                    p = RING[1] + t * 4
                    for u in range(2):
                        k(f"v_cvt_pk_bf16_f32 v{p+2*u}, v{av(t,u)}, v{av(t,u)+1}")
                        k(f"v_cvt_pk_bf16_f32 v{p+2*u+1}, v{av(t,u)+2}, v{av(t,u)+3}")
                    k(f"buffer_store_dwordx4 {vr(p,4)}, v{V_L16}, {WS}, s{S_T+9} offen offset:{t*1024} sc1")

    def t1b(self, which, s_h, landed=False, reg=0, s_flag=None, voff=None, nxt=(), early=True, sb=S_LW, peek=None):
        k = self.k
        HB = 104; ND = 3
        aq = lambda t, u: 88 + (t * 2 + u) * 4
        ak = lambda t, u: 24 + (t * 2 + u) * 4
        av = lambda t, u: 40 + (t * 2 + u) * 4
        big = self.LH != L_H
        if not landed:
            for x in self.t1_dma(s_h, (0, 1, 2, 3) if big else (0, 1, 2), voff, reg, sb):
                k(x)
        np_ = 0
        pk0 = []
        if peek and landed:
            pk0 = [x.strip() for x in peek[0].split("\n")]
        elif peek:
            k(peek[0]); np_ = 1
        self.qkv_base(S_T + 2, which)
        k(f"""s_add_u32 s{S_T+5}, s{S_T+2}, s{S_LW}      ; K u0
              s_add_u32 s{S_T+6}, s{S_T+5}, 4096         ; K u1
              s_add_u32 s{S_T+7}, s{S_T+5}, {16*KB}      ; Q u0
              s_add_u32 s{S_T+8}, s{S_T+5}, {20*KB}      ; Q u1
              s_add_u32 s{S_T+9}, s{S_T+5}, s{S_LW}
              s_add_u32 s{S_T+9}, s{S_T+9}, {8*KB}       ; V""")
        rd = lambda n: [f"ds_read_b128 {vr(HB+(n%ND)*8+4*u,4)}, v{self.THR+(n&3)} offset:{reg*32*KB+((n&15)>>2)*8192+u*4096}" for u in range(2)]
        if not landed:
            k(f"s_waitcnt vmcnt({(6 if big else 4) + np_})")
            k("s_barrier")
        self.mark(self.mk + 0)
        for x in rd(0) + rd(1):
            k(x)
        if not landed and not big:
            for x in self.t1_dma(s_h, (3,), voff, reg):
                k(x)
        first = []
        if which == 0:
            first += [f"s_lshl_b32 s{S_T}, s{S_SEG}, 5\ns_add_u32 s{S_T}, s{S_T}, s{S_H}\ns_lshl_b32 s{S_T}, s{S_T}, 12",
                      f"s_add_u32 s{S_T}, s{S_T}, s{S_LW}\ns_add_u32 s{S_T}, s{S_T}, {KVM_OFF[0]}"]
            first += [f"v_mov_b64 v[72:73], -1\nv_mov_b64 v[74:75], -1"]
            first += [f"buffer_store_dwordx4 v[72:75], v{V_L16}, {WS}, s{S_T} offen sc1"]
        first = ((first + [""] * 6)[:max(6, len(first))] + list(nxt)) if peek else list(nxt) + first
        look = list(peek[1]) if peek else []
        side = []
        P = 56
        for u in range(2):
            for r in range(4):
                side.append(f"v_cvt_pk_bf16_f32 v{P+4*u+r}, v{ak(0,u)+r}, v{ak(1,u)+r}")
            side.append(f"buffer_store_dwordx4 {vr(P+4*u,4)}, v{V_L16}, {WS}, s{S_T+5+u} offen sc1")
        for t in range(2):
            p = P + 8 + t * 4
            for u in range(2):
                side.append(f"v_cvt_pk_bf16_f32 v{p+2*u}, v{av(t,u)}, v{av(t,u)+1}")
                side.append(f"v_cvt_pk_bf16_f32 v{p+2*u+1}, v{av(t,u)+2}, v{av(t,u)+3}")
            side.append(f"buffer_store_dwordx4 {vr(p,4)}, v{V_L16}, {WS}, s{S_T+9} offen offset:{t*1024} sc1")
        for n in range(32):
            kk = n & 15
            b = HB + (n % ND) * 8
            m = n + 2
            if m in (4, 8, 12) and (not landed or (m == 12 and s_flag)):
                k(f"s_waitcnt vmcnt({(12 - m) // 2 + np_})" if m < 12 else "s_waitcnt vmcnt(0) lgkmcnt(0)" if peek else "s_waitcnt vmcnt(0)")
                k("s_barrier")
                if m == 12 and s_flag:
                    self.flag_store(s_flag, " sc1")
                if m == 12 and peek:
                    k(peek[2])
            if n == 16:
                self.mark(self.mk + 1)
            if not (peek and m == 12):
                k(f"s_waitcnt lgkmcnt({2 if n < 31 else 0})")
            ks, hf = kk >> 1, kk & 1
            fill = rd(m) if m < 32 else []
            i = 0
            cur = first if 10 <= n < 16 else (side if n > 16 else look if n == 9 else pk0 if n == self.opt.get("pkat", 5) else [])
            for t in range(2):
                for u in range(2):
                    h = vr(b + 4 * u, 4)
                    for acc, w, tr in (((ak, wk, True), (av, wv, False)) if n < 16 else ((aq, wq, True),)):
                        d = vr(acc(t, u), 4)
                        c = "0" if kk == 0 else d
                        a_, b_ = (w(ks, t, hf), h) if tr else (h, w(ks, t, hf))
                        k(f"v_mfma_f32_16x16x32_bf16 {d}, {a_}, {b_}, {c}")
                        i += 1
                        if fill and i % 2 == 1:
                            k(fill.pop(0))
                        else:
                            for _ in range(1 if n < 16 else 2):
                                if cur:
                                    k(cur.pop(0))
        assert not first and not side and not look, (len(first), len(side))
        self.mark(self.mk + 3)
        for u in range(2):
            for r in range(4):
                k(f"v_cvt_pk_bf16_f32 v{HB+4*u+r}, v{aq(0,u)+r}, v{aq(1,u)+r}")
        for u in range(2):
            k(f"buffer_store_dwordx4 {vr(HB+4*u,4)}, v{V_L16}, {WS}, s{S_T+7+u} offen sc1")
        if early:
            self.page(S_T + 3, F_KV[which])
            self.flag_set(S_T + 3, " sc1", keep=2)
        else:
            k("s_waitcnt vmcnt(6)")
            k("s_barrier")

    def make_sel(self, dst, t):
        k = self.k
        k(f"""v_and_b32 v{t}, 15, v{V_LANE}
              v_and_b32 v{t+1}, 1, v{V_LANE}
              v_lshlrev_b32 v{t+1}, 4, v{t+1}
              v_mov_b32 v{t+2}, 0x3f80
              v_lshlrev_b32 v{t+2}, v{t+1}, v{t+2}
              v_lshrrev_b32 v{t}, 1, v{t}""")
        for q in range(4):
            k(f"v_cmp_eq_u32 vcc, {q}, v{t}")
            k(f"v_cndmask_b32 v{dst+q}, 0, v{t+2}, vcc")

    def softmax(self, S, P, t, fill=None, half=False):
        k = self.k
        fill = list(fill or [])
        def f(n=1):
            for _ in range(n):
                if fill:
                    k(fill.pop(0))
        if half:
            k(f"""v_max3_f32 v{t}, v{S}, v{S+1}, v{S+2}
                  v_max3_f32 v{t+1}, v{S+3}, v{S+10}, v{S+11}""")
        else:
            k(f"""v_max3_f32 v{t}, v{S}, v{S+1}, v{S+2}
                  v_max3_f32 v{t+1}, v{S+3}, v{S+4}, v{S+5}
                  v_max3_f32 v{t}, v{S+6}, v{S+7}, v{t}
                  v_max3_f32 v{t+1}, v{S+10}, v{S+11}, v{t+1}""")
        k(f"""v_max_f32 v{t}, v{t}, v{t+1}
              v_max_f32 v{t+1}, v{t}, v{t+1}""")
        f()
        k(f"""v_permlane16_swap_b32 v{t}, v{t+1}
              v_max_f32 v{t}, v{t}, v{t+1}
              v_max_f32 v{t+1}, v{t}, v{t+1}""")
        f()
        k(f"""v_permlane32_swap_b32 v{t}, v{t+1}
              v_max_f32 v{t}, v{t}, v{t+1}
              v_mul_f32 v{t}, s{S_C}, v{t}""")
        order = [0, 1, 2, 3, 10, 11] if half else [0, 1, 2, 3, 4, 5, 6, 7, 10, 11]
        k(f"v_fma_f32 v{S+order[0]}, v{S+order[0]}, s{S_C}, -v{t}")
        for n, i in enumerate(order):
            if n + 1 < len(order):
                j = order[n + 1]
                k(f"v_fma_f32 v{S+j}, v{S+j}, s{S_C}, -v{t}")
            k(f"v_exp_f32 v{S+i}, v{S+i}")
        for q in range(2 if half else 4):
            k(f"v_cvt_pk_bf16_f32 v{P+q}, v{S+2*q}, v{S+2*q+1}")
        k(f"v_cvt_pk_bf16_f32 v{P+4}, v{S+10}, v{S+11}")
        f(len(fill))

    def chain(self, c):
        k = self.k
        opt = self.opt
        IDX, IDX2, QKW, QKR0, QKR1, OW, OR, PST, MST, WOB, OB, MV = 2, 3, 4, 5, 6, 7, 8, 9, 10, 11, 55, 13
        MX, CK = 12, 123
        SEL, TCH, STS = 18, 22, 23
        M, KX, VX, QK, VA, T = 24, 56, 88, 96, 112, 120
        sMEM, sPC, sRD, sKV, sKVM, sRST, sM2, sU, sNAN, sW2, sFAIL, sPG, sOK, sREC, sFK, sFKB = (S_T + i for i in range(8, 24))
        sMX, sMXB = S_A, S_B
        sKF, sOK2, sJ = 18, 19, 20
        sPUB, sFK1 = 54, 55
        reg = min(c, 1)
        k(f"""v_and_b32 v{T}, 15, v{V_LANE}          ; c
              v_lshrrev_b32 v{T+1}, 4, v{V_LANE}     ; g
              v_and_b32 v{T+2}, 2, v{V_LANE}
              v_cmp_eq_u32 vcc, 0, v{T+2}
              v_mov_b32 v{IDX}, 0xeeee
              v_mov_b32 v{T+3}, 0x4444
              v_cndmask_b32 v{IDX}, v{IDX}, v{T+3}, vcc
              v_and_b32 v{T+2}, 1, v{V_LANE}
              v_cmp_eq_u32 vcc, 0, v{T+2}
              v_mov_b32 v{IDX2}, 0xdddd
              v_mov_b32 v{T+3}, 0x8888
              v_cndmask_b32 v{IDX2}, v{IDX2}, v{T+3}, vcc""")
        k(f"""v_lshrrev_b32 v{T+2}, 1, v{T}           ; b
              v_bfe_u32 v{T+3}, v{T}, 2, 1
              v_xor_b32 v{T+3}, v{T+3}, v{T+2}
              v_lshlrev_b32 v{QKW}, 7, v{T+3}
              v_and_b32 v{T+3}, 1, v{T}
              v_lshl_add_u32 v{QKW}, v{T+3}, 6, v{QKW}
              v_xor_b32 v{T+3}, v{T+1}, v{T+2}
              v_and_b32 v{T+3}, 3, v{T+3}
              v_lshl_add_u32 v{QKW}, v{T+3}, 4, v{QKW}
              s_lshl_b32 s{S_T}, s{S_W}, 10
              s_add_u32 s{S_T}, s{S_T}, {L_QK}
              v_add_u32 v{QKW}, s{S_T}, v{QKW}""")
        for hh, R in ((0, QKR0), (1, QKR1)):
            k(f"""v_lshlrev_b32 v{T+2}, 1, v{T+1}
                  v_add_u32 v{T+2}, {hh}, v{T+2}          ; b
                  v_and_b32 v{T+3}, 1, v{T+1}
                  v_xor_b32 v{T+3}, v{T+3}, v{T+2}
                  v_lshlrev_b32 v{R}, 7, v{T+3}
                  v_bfe_u32 v{T+3}, v{T}, 3, 1
                  v_lshl_add_u32 v{R}, v{T+3}, 6, v{R}
                  v_xor_b32 v{T+3}, v{T}, v{T+2}
                  v_and_b32 v{T+3}, 3, v{T+3}
                  v_lshl_add_u32 v{R}, v{T+3}, 4, v{R}
                  v_bfe_u32 v{T+3}, v{T}, 2, 1
                  v_lshl_add_u32 v{R}, v{T+3}, 3, v{R}
                  v_add_u32 v{R}, {L_QK}, v{R}""")
        k(f"""v_lshlrev_b32 v{OW}, 7, v{T+1}
              v_lshrrev_b32 v{T+2}, 1, v{T}
              v_lshl_add_u32 v{OR}, v{T+2}, 4, v{OW}
              v_add_u32 v{OR}, {L_O}, v{OR}
              v_lshrrev_b32 v{T+2}, 2, v{T}
              v_lshl_add_u32 v{OW}, v{T+2}, 5, v{OW}
              v_and_b32 v{T+2}, 1, v{T}
              v_lshl_add_u32 v{OW}, v{T+2}, 4, v{OW}
              v_and_b32 v{T+2}, 2, v{T}
              v_cmp_eq_u32 vcc, 0, v{T+2}
              s_lshl_b32 s{S_T}, s{S_W}, 9
              v_mov_b32 v{T+2}, 2048
              v_mov_b32 v{T+3}, s{S_T}
              v_cndmask_b32 v{T+2}, v{T+2}, v{T+3}, vcc
              v_add_u32 v{OW}, v{T+2}, v{OW}
              v_add_u32 v{OW}, {L_O}, v{OW}""")
        k(f"""v_lshrrev_b32 v{T+2}, 3, v{V_LANE}
              v_lshlrev_b32 v{PST}, 11, v{T+2}
              v_and_b32 v{T+2}, 7, v{V_LANE}
              v_lshl_add_u32 v{PST}, v{T+2}, 3, v{PST}
              s_lshl_b32 s{S_T}, s{S_W}, 14
              s_lshl_b32 s{S_T+1}, s{S_H}, 6
              s_add_u32 s{S_T}, s{S_T}, s{S_T+1}
              v_add_u32 v{PST}, s{S_T}, v{PST}""")
        k(f"""s_lshl_b32 s{sU}, s{S_H}, 2
              s_add_u32 s{sU}, s{sU}, s{S_W}
              s_bfe_u32 s{S_T}, s{sU}, 0x10003
              s_lshl_b32 s{S_T}, s{S_T}, 11              ; ((U>>3)&1)*4 lines*512
              s_and_b32 s{S_T+1}, s{sU}, 1
              s_lshl_b32 s{S_T+1}, s{S_T+1}, 10          ; (U&1)*2 lines
              s_add_u32 s{S_T}, s{S_T}, s{S_T+1}
              s_bfe_u32 s{S_T+1}, s{sU}, 0x10002
              s_lshl_b32 s{S_T+1}, s{S_T+1}, 9
              s_add_u32 s{S_T}, s{S_T}, s{S_T+1}
              s_bfe_u32 s{S_T+1}, s{sU}, 0x10001
              s_lshl_b32 s{S_T+1}, s{S_T+1}, 6
              s_add_u32 s{S_T}, s{S_T}, s{S_T+1}
              s_bfe_u32 s{S_T+1}, s{sU}, 0x10004
              s_lshl_b32 s{S_T+1}, s{S_T+1}, 8
              s_add_u32 s{S_T}, s{S_T}, s{S_T+1}
              s_bfe_u32 s{S_T+1}, s{sU}, 0x10005
              s_lshl_b32 s{S_T+1}, s{S_T+1}, 7
              s_add_u32 s{S_T}, s{S_T}, s{S_T+1}
              s_bfe_u32 s{S_T+1}, s{sU}, 0x10006
              s_lshl_b32 s{S_T+1}, s{S_T+1}, 12
              s_add_u32 s{S_T}, s{S_T}, s{S_T+1}
              v_and_b32 v{T+2}, 3, v{T}
              v_lshlrev_b32 v{MST}, 2, v{T+2}
              v_bfe_u32 v{T+2}, v{T}, 3, 1
              v_lshl_add_u32 v{MST}, v{T+2}, 4, v{MST}
              v_and_b32 v{T+2}, 1, v{T+1}
              v_lshl_add_u32 v{MST}, v{T+2}, 5, v{MST}
              v_add_u32 v{MST}, s{S_T}, v{MST}
              v_and_b32 v{T+3}, 36, v{V_LANE}
              v_mov_b32 v{T+2}, 0x80000000
              v_cmp_eq_u32 vcc, 0, v{T+3}
              v_cndmask_b32 v{MST}, v{T+2}, v{MST}, vcc
              s_lshl_b32 s{S_T}, s{S_W}, 15
              v_add_u32 v{WOB}, s{S_T}, v{V_L16}
              s_lshl_b32 s{sU}, s{sU}, 11
              s_lshl_b32 s{sW2}, s{S_W}, 11
              s_mov_b32 s{sNAN}, 0xffc00000
              s_mov_b32 s{sFAIL}, 0""")
        self.mfrag_voff(MV, T + 2)
        self.make_sel(SEL, T + 2)
        k(f"""s_and_b32 s{S_T}, s{S_W}, 1
              s_lshl_b32 s{S_T}, s{S_T}, 8
              s_and_b32 s{S_T+1}, s{S_W}, 2
              s_lshl_b32 s{S_T+1}, s{S_T+1}, 6
              s_add_u32 s{S_T}, s{S_T}, s{S_T+1}
              v_add_u32 v{MV}, s{S_T}, v{MV}""")
        k(f"""s_add_u32 s{S_T}, s{S_LW}, {L_MB}
              v_add_u32 v{MX}, s{S_T}, v{V_L16}
              v_mov_b64 v[14:15], {sr(S_ONE,2)}
              v_mov_b64 v[16:17], {sr(S_ONE,2)}""")
        k(f"""v_add_u32 v{TCH}, {MEM_OFF[c] + 2*8192}, v{MST}
              s_lshl_b32 s{sKF}, s{S_H}, 2
              s_add_u32 s{sKF}, s{sKF}, {PG_OFF + 8192 + F_KV[reg]}
              v_mov_b32 v1, s{S_C}
              s_mov_b32 s{sPC}, {PC_OFF[c]}
              s_add_u32 s{sRD}, s{sU}, {PC_OFF[c]}
              s_add_u32 s{sRST}, s{sU}, {PC_OFF[c] + 256*KB}
              s_lshl_b32 s{sFKB}, s{S_H}, 2
              s_add_u32 s{sFKB}, s{sFKB}, {PG_OFF + (F_KM[c] or 0)}
              s_cmp_eq_u32 s{S_W}, 0
              s_cselect_b32 s{sFKB}, s{sFKB}, 0x80000000
              s_mov_b32 s{sMX}, 0x40000000
              s_mov_b32 s{S_SEG}, 0""")
        sMK, sSCN = S_A, S_B
        if c == 2:
            k(f"""v_lshrrev_b32 v{T}, 2, v{V_L16}
                  v_add_u32 v{T}, {PG_OFF + (1+LOOK)*8192 + F_RKU - 128}, v{T}
                  v_or_b32 v{T}, s{S_OOB}, v{T}
                  s_mov_b64 vcc, -1
                  s_mov_b32 vcc_lo, 0
                  v_cndmask_b32 v{TCH}, v{TCH}, v{T}, vcc
                  s_or_b32 s{S_T}, s{S_OOB}, {PG_OFF + 8192 + F_J}
                  v_writelane_b32 v{TCH}, s{S_T}, 4
                  s_or_b32 s{S_T}, s{S_H}, s{S_W}
                  s_mov_b32 s{S_T}, {PG_OFF + F_RM}
                  s_cmov_b32 s{S_T}, 0x80000000
                  v_writelane_b32 v{TCH}, s{S_T}, 5
                  s_mov_b32 s{sMK}, 0
                  s_mov_b32 s{sSCN}, 0""")
        def keys_wait(seg, va):
            L_ = k.newlabel("L_ckk")
            self.page(S_T + 3, F_RKU, seg=seg, head=False)
            k(f"""v_lshrrev_b32 v{va+1}, 2, v{V_L16}
                  v_and_b32 v{va+1}, 127, v{va+1}""")
            k.label(L_)
            k(f"""s_sleep {opt.get("slu", 1)}
                  buffer_load_dword v{va}, v{va+1}, {WS}, s{S_T+3} offen sc1""")
            self.spend()
            k(f"""s_waitcnt vmcnt(0)
                  v_cmp_eq_u32 vcc, 0, v{va}
                  s_cbranch_vccnz {L_}""")
        dma = [f"s_add_u32 m0, s{sW2}, {L_KX}",
               f"s_add_u32 s{S_T+1}, s{sKV}, {8*KB}",
               f"buffer_load_dwordx4 v{V_L16}, {WS}, s{sKV} offen sc1 lds",
               f"buffer_load_dwordx4 v{V_L16}, {WS}, s{sKV} offen offset:1024 sc1 lds",
               f"s_add_u32 m0, s{sW2}, {L_VX}",
               f"s_add_u32 s{sKV}, s{sKV}, {32*24*KB}",
               f"buffer_load_dwordx4 v{V_L16}, {WS}, s{S_T+1} offen sc1 lds",
               f"buffer_load_dwordx4 v{V_L16}, {WS}, s{S_T+1} offen offset:1024 sc1 lds"]
        def kv_read(extra=None, pos=0):
            k(f"v_add_u32 v{OB}, {L_KX}, v{V_L16}")
            for i in range(8):
                if extra and i == pos:
                    k(extra)
                k(f"ds_read_b128 {vr(KX+4*i,4)}, v{OB} offset:{((i&1)*4+(i>>1))*1024}")
            k(f"v_add_u32 v{CK}, s{sW2}, v{OB}")
            for t in range(2):
                k(f"ds_read_b128 {vr(VX+4*t,4)}, v{CK} offset:{L_VX-L_KX+t*1024}")
        def zero(b, n):
            for i in range(0, n, 2):
                k(f"v_mov_b64 {vr(b+i,2)}, 0")
        def mload(hf):
            return f"buffer_load_dwordx4 {vr(M+16*hf,4)}, v{MV}, {WS}, s{sM2 if hf else sMEM} offen sc1"
        chk2 = [f"v_max3_u32 v{CK}, v{M}, v{M+1}, v{M+2}", f"v_max3_u32 v{CK}, v{M+3}, v{M+16}, v{CK}",
                f"v_max3_u32 v{CK}, v{M+17}, v{M+18}, v{CK}", f"v_max_u32 v{CK}, v{M+19}, v{CK}",
                f"v_cmp_le_u32 vcc, s{sNAN}, v{CK}"]
        mwrite = lambda hf: f"ds_write_b128 v{MX}, {vr(M+16*hf,4)} offset:{hf*4096}"
        mread = lambda hf, i: f"ds_read_b128 {vr(M+16*hf+4*i,4)}, v{T+i-1} offset:{hf*4096}"
        LEAD, LEADB, JS = (k.newlabel(x) for x in ("L_cld", "L_clb", "L_cjs"))
        START, KVW, KVB, JW, JUMP = (k.newlabel(x) for x in ("L_cst", "L_ckw", "L_ckb", "L_cjw", "L_cjump"))
        first = reg
        if opt.get("pcwarm", 1) and not self.loc:
            for i, r_ in enumerate((sRD, sRST)):
                for j in range(2):
                    k(f"buffer_load_dwordx4 {vr(KX+8*i+4*j,4)}, v{V_L16}, {WS}, s{r_} offen offset:{j*1024}")
            k("s_waitcnt vmcnt(0)")
        SW = k.newlabel("L_csw")
        WO_ = 3072 - 512
        k.label(START)
        k(f"""s_cmp_lg_u32 s{S_W}, 0
              s_cbranch_scc1 {SW}""")
        if c == 2:
            keys_wait(sSCN, T)
            self.wmax_u32(T, T + 1)
            k(f"""v_readfirstlane_b32 s{S_T+5}, v{T}
                  s_max_u32 s{sMK}, s{sMK}, s{S_T+5}
                  s_add_u32 s{sSCN}, s{sSCN}, 1
                  s_andn2_b32 s{S_SEG}, 0x7ff, s{sMK}
                  s_lshr_b32 s{S_SEG}, s{S_SEG}, 5
                  s_add_u32 s{S_T+5}, s{S_SEG}, {LOOK}
                  s_min_u32 s{S_T+5}, s{S_T+5}, 63
                  s_cmp_le_u32 s{sSCN}, s{S_T+5}
                  s_cbranch_scc1 {START}
                  v_mov_b32 v{T}, 0
                  v_mov_b32 v{T+1}, s{sMK}
                  ds_write_b32 v{OR}, v{T} offset:{WO_}
                  ds_write_b32 v{OR}, v{T+1} offset:{WO_ + 512}""")
        self.ev(40 + c, va=T + 2)
        self.page(S_T + 3, F_KV[first])
        self.word_wait(S_T + 3, S_T + 5, va=T + 2, sleep=1)
        k.label(SW)
        k("""s_waitcnt lgkmcnt(0)
             s_barrier""")
        if c == 2:
            k(f"""ds_read_b32 v{T}, v{OR} offset:{WO_ + 512}
                  s_waitcnt lgkmcnt(0)
                  v_readfirstlane_b32 s{sMK}, v{T}
                  s_andn2_b32 s{S_SEG}, 0x7ff, s{sMK}
                  s_lshr_b32 s{S_SEG}, s{S_SEG}, 5""")
        self.qkv_base(S_T, first)
        k(f"s_add_u32 s{sKV}, s{S_T}, s{sW2}")
        for d in dma:
            k(d)
        k(f"""s_lshl_b32 s{sPG}, s{S_SEG}, 13
              s_add_u32 s{S_T}, s{sPG}, {MEM_OFF[c] + 8192}
              buffer_load_dword v{STS}, v{MST}, {WS}, s{S_T} offen sc1
              s_add_u32 s{sMEM}, s{sPG}, {MEMX_OFF if c == 2 else MEM_OFF[c]}
              s_add_u32 s{sM2}, s{sMEM}, 4096
              s_lshl_b32 s{sKVM}, s{S_SEG}, 5
              s_add_u32 s{sKVM}, s{sKVM}, s{S_H}
              s_lshl_b32 s{sKVM}, s{sKVM}, 12
              s_lshl_b32 s{S_T}, s{S_W}, 10
              s_add_u32 s{sKVM}, s{sKVM}, s{S_T}
              s_add_u32 s{sKVM}, s{sKVM}, {KVM_OFF[c]}
              s_mov_b32 s{sFK}, 0x80000000
              s_mov_b32 s{sFK1}, 0x80000000
              s_mov_b32 s{sPUB}, 0x80000000
              s_mov_b32 s{sREC}, 0
              s_mov_b32 s{sOK2}, 0
              s_cmp_eq_u32 s{S_SEG}, 63
              s_cselect_b32 s{sOK}, 1, s{S_W}
              s_cmp_eq_u32 s{sOK}, 0
              s_cselect_b32 s{sOK}, 1, 0""")
        q_ = lambda t: QK + 8 * t
        k_ = lambda t: QK + 8 * t + 4
        sq = lambda ks, t: f"v_smfmac_f32_16x16x64_bf16 {vr(q_(t),4)}, {vr(M+4*ks,4)}, {wq(ks,t)}, v{IDX}"
        sk = lambda ks, t: f"v_smfmac_f32_16x16x64_bf16 {vr(k_(t),4)}, {vr(M+4*ks,4)}, {wk(ks,t)}, v{IDX}"
        sv = lambda ks, t: f"v_smfmac_f32_16x16x64_bf16 {vr(VA+4*t,4)}, {vr(M+4*ks,4)}, {wv(ks,t)}, v{IDX}"
        zero(QK, 24)
        if c == 2:
            HL, HD = k.newlabel("L_chp"), k.newlabel("L_chd")
            A_ = KX
            k(f"""v_lshrrev_b32 v{A_}, 8, v{V_L16}
                  v_lshlrev_b32 v{A_}, 5, v{A_}
                  v_bfe_u32 v{A_+1}, v{V_L16}, 5, 1
                  v_lshl_add_u32 v{A_}, v{A_+1}, 2, v{A_}
                  s_lshl_b32 s{S_T}, s{S_W}, 7
                  s_add_u32 s{S_T}, s{S_T}, {L_MB}
                  v_add_u32 v{A_}, s{S_T}, v{A_}
                  v_xor_b32 v{A_+1}, 128, v{A_}
                  v_xor_b32 v{A_+2}, 256, v{A_}
                  v_xor_b32 v{A_+3}, 384, v{A_}
                  s_andn2_b32 s{S_T}, 31, s{sMK}
                  s_lshr_b32 s{S_T+1}, s{S_T}, 4
                  s_lshl_b32 s{S_T+2}, s{S_T+1}, 12
                  s_and_b32 s{S_T+3}, s{S_T}, 15
                  s_lshl4_add_u32 s{S_T+2}, s{S_T+3}, s{S_T+2}
                  s_add_u32 s{S_T+2}, s{S_T+2}, s{S_LW}
                  s_add_u32 s{S_T+2}, s{S_T+2}, {L_KX}
                  v_bfe_u32 v{A_+4}, v{V_L16}, 6, 2
                  v_lshlrev_b32 v{A_+4}, 8, v{A_+4}
                  v_bfe_u32 v{A_+5}, v{V_L16}, 4, 2
                  v_lshl_add_u32 v{A_+4}, v{A_+5}, 2, v{A_+4}
                  v_add_u32 v{A_+4}, s{S_T+2}, v{A_+4}
                  s_lshr_b32 s{S_T+2}, s{S_T+3}, 2
                  s_lshl_b32 s{S_T+2}, s{S_T+2}, 8
                  s_lshl3_add_u32 s{S_T+2}, s{S_T+1}, s{S_T+2}
                  s_and_b32 s{S_T+3}, s{S_T}, 3
                  s_lshl1_add_u32 s{S_T+2}, s{S_T+3}, s{S_T+2}
                  s_add_u32 s{S_T+2}, s{S_T+2}, s{sW2}
                  s_add_u32 s{S_T+2}, s{S_T+2}, {L_VX}
                  v_and_b32 v{A_+5}, 255, v{V_L16}
                  v_add_u32 v{A_+5}, s{S_T+2}, v{A_+5}
                  s_cmp_lg_u32 s{S_W}, 0
                  s_cbranch_scc1 {HD}
                  s_lshl_b32 s{S_T+3}, s{S_SEG}, 10
                  s_add_u32 s{S_T+3}, s{S_T+3}, {HPS_OFF}""")
            k.label(HL)
            k(f"buffer_load_dwordx4 {vr(T,4)}, v{V_L16}, {WS}, s{S_T+3} offen sc1")
            self.spend()
            k(f"""s_waitcnt vmcnt(0)
                  v_max3_u32 v{T+4}, v{T}, v{T+1}, v{T+2}
                  v_max_u32 v{T+4}, v{T+3}, v{T+4}
                  v_cmp_eq_u32 vcc, -1, v{T+4}
                  s_cbranch_vccnz {HL}
                  ds_write_b128 v{MX}, {vr(T,4)}""")
            k.label(HD)
            k("""s_waitcnt vmcnt(0) lgkmcnt(0)
                 s_barrier""")
            for i in range(8):
                for hq in range(2):
                    o_ = (i >> 2) * 128 + 4 * hq
                    k(f"ds_read2_b32 {vr(M+4*i+2*hq,2)}, v{A_+(i&3)} offset0:{o_} offset1:{o_+2}")
                if i == 3:
                    k("s_waitcnt lgkmcnt(4)")
            for i in range(8):
                k(f"s_waitcnt lgkmcnt({min(14 - 2*i, 12)})")
                for x in (sk(i, 0), sv(i, 0), sk(i, 1), sv(i, 1)):
                    k(x)
            for a_ in (k_(0), VA, k_(1), VA + 4):
                k(f"v_add_f32 v{a_}, v{a_}, v{a_+2}")
            k(f"""v_cvt_pk_bf16_f32 v{T}, v{k_(0)}, v{k_(1)}
                  v_cvt_pk_bf16_f32 v{T+1}, v{VA}, v{VA+4}
                  ds_write_b32 v{A_+4}, v{T}
                  ds_write_b16 v{A_+5}, v{T+1}
                  ds_write_b16_d16_hi v{A_+5}, v{T+1} offset:1024""")
            zero(QK, 24)
        k("""s_waitcnt vmcnt(0) lgkmcnt(0)
             s_barrier""")
        kv_read()
        LOOP, PA, PAB, END, GO = (k.newlabel(x) for x in ("L_chain", "L_cpa", "L_cpab", "L_cend", "L_cgo"))
        RP, RB, PB, PBB, BACK = (k.newlabel(x) for x in ("L_crp", "L_crb", "L_cpb", "L_cpbb", "L_cback"))
        qk4 = lambda ks: [sq(ks, 0), sk(ks, 0), sq(ks, 1), sk(ks, 1)]
        vlist = [(ks, t) for ks in (0, 4, 1, 2, 3, 5, 6, 7) for t in range(2)]
        def vs(n):
            for _ in range(n):
                if vlist:
                    k(sv(*vlist.pop(0)))
        def weave(mm, other):
            other = list(other)
            for o in mm:
                k(o)
                if other:
                    k(other.pop(0))
            for o in other:
                k(o)
        ONES = 14
        PT_ = M + 28
        pub = [f"v_add_u32 v{PT_}, s{S_LW}, v{QKR0}", f"v_add_u32 v{PT_+2}, s{S_LW}, v{QKR1}",
               f"ds_read_b64_tr_b16 {vr(PT_,2)}, v{PT_}", f"ds_read_b64_tr_b16 {vr(PT_+2,2)}, v{PT_+2}",
               f"v_mov_b32_dpp v{T+4}, v{T+6} quad_perm:[2,3,2,3] row_mask:0xf bank_mask:0xf",
               f"v_mov_b32_dpp v{T+5}, v{T+7} quad_perm:[2,3,2,3] row_mask:0xf bank_mask:0xf",
               f"s_mov_b32 vcc_lo, 0xcccccccc", f"s_mov_b32 vcc_hi, 0xcccccccc", None]
        pub += [f"v_cndmask_b32 v{T+4+i}, v{T+4+i}, v{PT_+i}, vcc" for i in range(4)]
        pub += [f"buffer_store_dwordx4 {vr(T+4,4)}, v{V_L16}, {WS}, s{sPUB} offen sc1"]
        XT = T
        def xaddr():
            for i in range(1, 4):
                k(f"v_xor_b32 v{XT+i-1}, {i*1024}, v{MX}")
        xaddr()
        pipe = opt.get("pipe", 1)
        if pipe:
            k(mload(0)); k(mload(1))
        k.label(LOOP)
        self.stamp(0)
        k.label(PA)
        k(mload(0)); k(mload(1))
        self.spend(0x10000, sFAIL)
        k(f"s_waitcnt vmcnt({2 if pipe else 0})")
        for x in chk2:
            k(x)
        k(f"s_cbranch_vccnz {PA}")
        self.stamp(1)
        k(mwrite(0)); k(mwrite(1))
        own = qk4(0) + qk4(4)
        nb = opt.get("nbar", 4)
        cpy = f"buffer_store_dword v{M+30}, v{MST}, {WS}, s{sMX} offen sc1\n" if c == 1 else ""
        weave(own[:nb], [pub[-1], cpy + dma[0] + "\n" + dma[1]])
        k(f"""s_waitcnt lgkmcnt(0)
              s_cmp_lt_u32 s{sOK2}, s{sOK}
              s_cbranch_scc1 {KVW}""")
        k.label(KVB)
        k("s_barrier")
        self.stamp("xa")
        rd6 = [mread(hf, i) for hf in range(2) for i in range(1, 4)]
        if c == 2:
            k(f"ds_read_b32 v{CK}, v{OR} offset:{WO_}")
        k(rd6.pop(0)); k(rd6.pop(0))
        weave(own[nb:] + [sv(*vlist.pop(0)) for _ in range(4)], rd6 + [dma[2], "", dma[3]])
        self.stamp("xb")
        side = {0: [dma[4]], 1: [dma[6]], 2: [dma[5]], 4: [dma[7]],
                7: [f"buffer_load_dword v{STS}, v{TCH}, {WS}, s{sPG} offen sc1"],
                8: [f"v_mov_b32 v{T+5}, 0"]}
        if c == 2:
            side[3] = [f"v_readfirstlane_b32 s{S_T+2}, v{CK}"]
            side[5] = [f"s_cmp_lg_u32 s{S_T+2}, 0", f"s_cbranch_scc1 {JUMP}"]
        if c:
            side[10] = [f"buffer_store_dword v{IDX}, off, {WS}, s{sFK} sc1"]
        packt = lambda t: [x for a_, d_ in ((q_(t), T + 2 * t), (k_(t), T + 2 * t + 1)) for x in
                           (f"v_add_f32 v{a_}, v{a_}, v{a_+2}", f"v_add_f32 v{a_+1}, v{a_+1}, v{a_+3}",
                            f"v_cvt_pk_bf16_f32 v{d_}, v{a_}, v{a_+1}")]
        mm = qk4(1) + qk4(2) + qk4(3) + [f(ks, t) for t in range(2) for ks in (5, 6, 7) for f in (sq, sk)]
        mm += [sv(*vlist.pop(0)) for _ in range(2)]
        waits = {0: 5, 4: 4, 8: 3, 12: 0}
        for i_, x in enumerate(packt(0)):
            side[20 + i_] = [x]
        for n, o in enumerate(mm):
            if n in waits:
                k(f"s_waitcnt lgkmcnt({waits[n]})")
            k(o)
            for x in side.get(n, []):
                k(x)
        self.stamp("back")
        for x in packt(1):
            k(x)
        k(f"ds_write_b128 v{QKW}, {vr(T,4)}")
        vs(4)
        self.stamp("w0")
        k(f"s_waitcnt vmcnt({6 + (1 if c else 0) + (1 if c == 1 else 0)}) lgkmcnt(0)")
        self.stamp("w1")
        k("s_barrier")
        self.stamp(2)
        F = QK
        tr = [f"ds_read_b64_tr_b16 {vr(F+4*kk+2*hh,2)}, v{(QKR0, QKR1)[hh]} offset:{kk*1024}" for kk in range(4) for hh in range(2)]
        S = M
        slots = [KX, KX + 8, KX + 16, KX + 24, F, F + 8, M + 16, M + 24]
        def wo_reads(u):
            return [f"ds_read_b128 {vr(slots[(u&1)*4+kk]+4*hf,4)}, v{WOB} offset:{((u*4+kk)*2+hf)*1024}"
                    for kk in range(4) for hf in range(2)]
        st_ = wo_reads(0) + wo_reads(1)
        nv3 = opt.get("v3", 4)
        lq = []
        def ld(x):
            k(x); lq.append(x)
        def lwait(x):
            k(f"s_waitcnt lgkmcnt({len(lq) - 1 - lq.index(x)})")
        for x in tr[:6 - nv3]:
            ld(x)
        for x in tr[6 - nv3:6]:
            vs(1); ld(x)
        shadow = [tr[6], tr[7], st_[12]] + [st_[i] for i in (0, 1, 8, 2, 3, 9, 4, 5, 10, 6, 7, 11, 13, 14, 15)]
        for kk in range(4):
            lwait(tr[2 * kk + 1])
            f = vr(F + 4 * kk, 4)
            for a_, d_ in ((vr(KX + 8 * kk, 4), S), (vr(KX + 8 * kk + 4, 4), S + 4), (f, S + 8)):
                k(f"v_mfma_f32_16x16x32_bf16 {vr(d_,4)}, {a_}, {f}, {'0' if kk == 0 else vr(d_,4)}")
                ld(shadow.pop(0))
        while vlist:
            vs(1)
            if len(shadow) > 2:
                ld(shadow.pop(0))
        self.stamp(3)
        P = T
        t0 = T + 6
        VM, VM1 = T + 6, M + 12
        O = VA; Lr = S + 8
        sub = lambda i: f"v_pk_add_f32 {vr(S+i,2)}, {vr(S+i,2)}, {vr(t0,2)} op_sel_hi:[1,0] neg_lo:[0,1] neg_hi:[0,1]"
        mul = lambda i: f"v_pk_mul_f32 {vr(S+i,2)}, {vr(S+i,2)}, v[0:1] op_sel:[0,1]"
        ex = lambda i: f"v_exp_f32 v{S+i}, v{S+i}"
        sh = lambda: shadow.pop(0) if shadow else ""
        k(f"""v_max3_f32 v{t0}, v{S}, v{S+1}, v{S+2}
              v_max3_f32 v{t0+1}, v{S+3}, v{S+4}, v{S+5}
              v_max3_f32 v{t0}, v{S+6}, v{S+7}, v{t0}
              v_max3_f32 v{t0+1}, v{S+10}, v{S+11}, v{t0+1}
              v_max_f32 v{t0}, v{t0}, v{t0+1}
              v_max_f32 v{t0+1}, v{t0}, v{t0+1}
              {mul(10)}
              {mul(0)}
              v_permlane16_swap_b32 v{t0}, v{t0+1}
              v_max_f32 v{t0}, v{t0}, v{t0+1}
              v_max_f32 v{t0+1}, v{t0}, v{t0+1}
              {mul(2)}
              {mul(4)}
              v_permlane32_swap_b32 v{t0}, v{t0+1}
              v_max_f32 v{t0}, v{t0}, v{t0+1}
              v_mul_f32 v{t0}, v1, v{t0}
              {mul(6)}
              {sub(10)}
              v_pk_add_f32 {vr(VA,2)}, {vr(VA,2)}, {vr(VA+2,2)}
              v_pk_add_f32 {vr(VA+4,2)}, {vr(VA+4,2)}, {vr(VA+6,2)}
              {sub(0)}
              {sub(2)}
              {sub(4)}
              {sub(6)}
              {ex(10)}
              {ex(11)}
              v_cvt_pk_bf16_f32 v{VM}, v{VA}, v{VA+1}
              v_cvt_pk_bf16_f32 v{P+4}, v{S+10}, v{S+11}
              v_cvt_pk_bf16_f32 v{VM+1}, v{VA+4}, v{VA+5}
              v_cvt_pk_bf16_f32 v{VM1}, v{VA+4}, v{VA+5}
              v_mfma_f32_16x16x16_bf16 {vr(Lr,4)}, {vr(ONES,2)}, {vr(P+4,2)}, 0
              {sh()}
              {ex(0)}
              v_mfma_f32_16x16x16_bf16 {vr(O,4)}, {vr(VM,2)}, {vr(P+4,2)}, 0
              {sh()}
              {ex(1)}
              v_mfma_f32_16x16x16_bf16 {vr(O+4,4)}, {vr(VM1,2)}, {vr(P+4,2)}, 0
              {sh()}
              {ex(2)}""")
        for i in range(3, 8):
            k(ex(i))
            if i & 1:
                k(f"v_cvt_pk_bf16_f32 v{P+(i>>1)-1}, v{S+i-3}, v{S+i-2}")
        k(f"v_cvt_pk_bf16_f32 v{P+3}, v{S+6}, v{S+7}")
        self.stamp(4)
        k(f"""s_mov_b32 s{sFK}, s{sFK1}
              s_add_u32 s{sFK1}, s{sFKB}, s{sPG}
              v_mfma_f32_16x16x32_bf16 {vr(Lr,4)}, {vr(ONES,4)}, {vr(P,4)}, {vr(Lr,4)}
              {sh()}
              v_mfma_f32_16x16x32_bf16 {vr(O,4)}, {vr(VX,4)}, {vr(P,4)}, {vr(O,4)}
              ds_read_b128 {vr(VX,4)}, v{WOB} offset:{16*1024}
              v_mfma_f32_16x16x32_bf16 {vr(O+4,4)}, {vr(VX+4,4)}, {vr(P,4)}, {vr(O+4,4)}
              ds_read_b128 {vr(VX+4,4)}, v{WOB} offset:{17*1024}
              v_rcp_f32 v{Lr}, v{Lr}""")
        assert not shadow
        acc = [VA, VA + 4, T, VA]
        k(f"""v_mov_b64 {vr(S,2)}, -1
              v_mov_b64 {vr(S+2,2)}, -1
              s_mov_b32 s{sPUB}, s{sKVM}
              s_add_u32 s{sPG}, s{sPG}, 8192""")
        for e in range(0, 8, 2):
            k(f"v_pk_mul_f32 {vr(O+e,2)}, {vr(O+e,2)}, {vr(Lr,2)} op_sel_hi:[1,0]")
        for r in range(4):
            k(f"v_cvt_pk_bf16_f32 v{T+r}, v{O+r}, v{O+4+r}")
        k(f"ds_write_b128 v{OW}, {vr(T,4)}")
        k(f"""buffer_store_dwordx4 {vr(S,4)}, v{V_L16}, {WS}, s{sRST} offen{self.loc}
              buffer_store_dwordx4 {vr(S,4)}, v{V_L16}, {WS}, s{sRST} offen offset:1024{self.loc}""")
        k("s_waitcnt lgkmcnt(0)")
        k("s_barrier")
        self.stamp(5)
        OA = M
        lq[:] = []
        ord_ = [f"ds_read_b128 {vr(OA+4*kk,4)}, v{OR} offset:{kk*512}" for kk in range(4)]
        for x in ord_:
            ld(x)
        zero(VA, 8)
        zero(T, 4)
        if c == 1:
            k(f"s_add_u32 s{sMX}, s{sPG}, {MEMX_OFF}")
        k(f"""s_add_u32 s{sMEM}, s{sPG}, {MEM_OFF[c]}
              s_add_u32 s{sM2}, s{sMEM}, 4096
              s_add_u32 s{sKVM}, s{sKVM}, {32*4*KB}
              s_add_u32 s{S_SEG}, s{S_SEG}, 1
              s_cmp_eq_u32 s{S_SEG}, 64
              s_cbranch_scc1 {END}""")
        where = slots + [VX] + slots[:7]
        stream = [f"ds_read_b128 {vr(where[i]+4*hf,4)}, v{WOB} offset:{(i*2+hf)*1024}" for i in range(9, 16) for hf in range(2)]
        def wo_out(u):
            a = acc[u]
            return [f"v_cvt_pk_bf16_f32 v{a}, v{a}, v{a+1}", f"v_cvt_pk_bf16_f32 v{a+1}, v{a+2}, v{a+3}",
                    f"buffer_store_dwordx2 {vr(a,2)}, v{PST}, {WS}, s{S_T+u if u else sPC} offen{self.loc}"]
        oth = {0: [f"s_add_u32 s{S_T+1}, s{sPC}, {64*KB}"], 1: [f"s_add_u32 s{S_T+2}, s{sPC}, {128*KB}"],
               2: [f"s_add_u32 s{S_T+3}, s{sPC}, {192*KB}"]}
        for u in range(3):
            o_ = wo_out(u)
            oth[4 * u + 5] = o_[:1]
            oth[4 * u + 6] = o_[1:]
        oth[7] = [f"v_mov_b64 {vr(VA,2)}, 0"]
        oth[8] = [f"v_mov_b64 {vr(VA+2,2)}, 0"]
        todo = list(stream)
        dbl = opt.get("wdbl", (8, 10))
        for i in range(16):
            if i < 4:
                lwait(ord_[i])
            if i >= 9:
                lwait(stream[2 * (i - 9) + 1])
            k(f"v_smfmac_f32_16x16x64_bf16 {vr(acc[i>>2],4)}, {vr(OA+4*(i&3),4)}, {vr(where[i],8)}, v{IDX2}")
            self.stamp("o%d" % i)
            for _ in range(2 if i in dbl else 1):
                if todo:
                    ld(todo.pop(0))
            for x in oth.get(i, []):
                k(x)
        zero(VA + 4, 4)
        k(f"s_xor_b32 s{sPC}, s{sPC}, {256*KB}")
        for x in pub[:2] + pub[4:6] + wo_out(3):
            k(x)
        self.stamp(6)
        RS = (M + 8, M + 20); RA = M + 4; RT = M + 28
        def rloads(R):
            for i in range(2):
                k(f"buffer_load_dwordx4 {vr(R+4*i,4)}, v{V_L16}, {WS}, s{sRD} offen offset:{i*1024} sc1")
        def reduce(R, fill=()):
            k(f"s_waitcnt vmcnt({3 if opt.get('two') else 1})")
            self.stamp("r2")
            k(f"v_mfma_f32_16x16x32_bf16 {vr(RA,4)}, {vr(SEL,4)}, {vr(R,4)}, 0")
            k(f"s_waitcnt vmcnt({2 if opt.get('two') else 0})")
            k(f"v_mfma_f32_16x16x32_bf16 {vr(RA,4)}, {vr(SEL,4)}, {vr(R+4,4)}, {vr(RA,4)}")
            for x in fill:
                k(x)
            k(f"""v_cmp_u_f32 vcc, v{RA}, v{RA}
                  v_add_f32_dpp v{RT}, v{RA}, v{RA} row_ror:8 row_mask:0xf bank_mask:0x3
                  v_add_f32_dpp v{RT+1}, v{RA+1}, v{RA+1} row_ror:8 row_mask:0xf bank_mask:0x3
                  v_add_f32_dpp v{RT}, v{RA+2}, v{RA+2} row_ror:8 row_mask:0xf bank_mask:0xc
                  v_add_f32_dpp v{RT+1}, v{RA+3}, v{RA+3} row_ror:8 row_mask:0xf bank_mask:0xc
                  v_add_f32_dpp v{RT}, v{RT}, v{RT} row_shl:4 row_mask:0xf bank_mask:0x5
                  v_add_f32_dpp v{RT+1}, v{RT+1}, v{RT+1} row_shl:4 row_mask:0xf bank_mask:0x5""")
        kvr = [f"ds_read_b128 {vr(KX+4*i,4)}, v{OB} offset:{((i&1)*4+(i>>1))*1024}" for i in range(8)]
        kvr += [f"ds_read_b128 {vr(VX+4*t,4)}, v{CK} offset:{L_VX-L_KX+t*1024}" for t in range(2)]
        work = pub[2:4] + pub[6:8] + [f"v_mov_b64 {vr(QK+i,2)}, 0" for i in range(0, 20, 2)] + ["s_waitcnt lgkmcnt(0)"] + pub[9:13] \
            + [f"s_add_u32 s{S_T}, s{sKF}, s{sPG}", f"s_buffer_load_dword s{sOK2}, {WS}, s{S_T}"] \
            + [f"v_add_u32 v{OB}, {L_KX}, v{V_L16}", f"v_add_u32 v{CK}, s{sW2}, v{OB}"]
        for x in work:
            k(x)
        xaddr()
        two = opt.get("two", 0)
        k(f"s_waitcnt vmcnt({opt.get('ea', 0)})")
        self.stamp("ea")
        rloads(RS[0])
        blate = opt.get("blate", 1)
        if not blate:
            k("s_barrier")
        kp = opt.get("kvpos", 0)
        for i, x in enumerate(kvr[:kp]):
            if two and i == two:
                rloads(RS[1])
            k(x)
        k(f"""s_cmp_ge_u32 s{S_SEG}, 63
              s_cselect_b32 s{sOK}, 0, 1""")
        if c == 2:
            k(f"""v_readlane_b32 s{S_T}, v{STS}, 5
                  v_readlane_b32 s{sJ}, v{STS}, 4
                  v_add_u32 v{STS}, -1, v{STS}
                  v_cmp_le_u32 vcc, s{sMK}, v{STS}
                  s_cmp_gt_u32 s{S_SEG}, {63 - LOOK}
                  s_cselect_b32 s{sREC}, 0, vcc_hi
                  s_cmp_gt_u32 s{sJ}, s{sMK}
                  s_cselect_b32 s{sREC}, 1, s{sREC}
                  s_cmp_lg_u32 s{sREC}, 0
                  s_cselect_b32 s{sOK}, 2, s{sOK}
                  s_cmp_gt_u32 s{S_T}, s{sMK}
                  s_cbranch_scc1 {LEAD}""")
            k.label(LEADB)
        k(f"""s_cmp_eq_u32 s{S_W}, 0
              s_cselect_b32 s{sOK}, s{sOK}, 0""")
        OKR = k.newlabel("L_cok")
        reduce(RS[0])
        k(f"s_cbranch_vccnz {RP}")
        k.label(OKR)
        k(f"""v_cvt_pk_bf16_f32 v{RT+2}, v{RT}, v{RT+1}
              buffer_store_dword v{RT+2}, v{MST}, {WS}, s{sMEM} offen{self.loc}
              s_mov_b32 s{sRST}, s{sRD}
              s_xor_b32 s{sRD}, s{sRD}, {256*KB}""")
        self.stamp(7)
        if blate:
            k("s_barrier")
        mp = opt.get("mpos", 2)
        for x in kvr[kp:mp] + ([mload(0), mload(1)] if pipe else []) + kvr[mp:]:
            k(x)
        if opt.get("mack"):
            k(f"s_waitcnt vmcnt({2 if pipe else 0})")
        if self.stamps > 1:
            NX = k.newlabel("L_cnx")
            k(f"""s_and_b32 s{S_T}, s{S_SEG}, 7
                  s_cmp_lg_u32 s{S_T}, 7
                  s_cbranch_scc1 {NX}""")
            if c == opt.get("stc", 0):
                self.dump_stamps(8, sFAIL, M + 4)
            k.label(NX)
        if self.stamps:
            NE = k.newlabel("L_cne")
            k(f"""s_and_b32 s{S_T}, s{S_SEG}, 7
                  s_cmp_lg_u32 s{S_T}, 1
                  s_cbranch_scc1 {NE}""")
            self.ev(50 + c, va=M + 4)
            self.ev(56 + c, va=M + 4, clk="s_memtime")
            k.label(NE)
        k(f"s_branch {LOOP}")
        k.label(RP)
        st_, self.stamps = self.stamps, min(self.stamps, 1)
        for i in (0, 1) if two else (0,):
            rloads(RS[i])
            self.spend(0x100, sFAIL)
            reduce(RS[1 - i if two else 0])
            k(f"s_cbranch_vccz {OKR}")
        k(f"s_branch {RP}")
        self.stamps = st_
        k.label(KVW)
        if c == 2:
            k(f"""s_cmp_eq_u32 s{sREC}, 0
                  s_cbranch_scc1 {JW}
                  s_andn2_b32 s{sSCN}, 0x7ff, s{sJ}
                  s_lshr_b32 s{sSCN}, s{sSCN}, 5
                  s_cmp_gt_u32 s{sJ}, s{sMK}
                  s_cbranch_scc1 {JS}
                  s_add_u32 s{sSCN}, s{S_SEG}, {LOOK}""")
            keys_wait(sSCN, M + 4)
            k(f"""v_cmp_lt_u32 vcc, s{sMK}, v{M+4}
                  s_cbranch_vccz {JW}""")
            k.label(JS)
            k(f"""ds_write_b32 v{OR}, v{IDX} offset:{WO_}
                  s_waitcnt lgkmcnt(0)
                  s_branch {KVB}""")
            k.label(LEAD)
            k(f"""v_mov_b32 v{STS}, s{S_T}
                  s_add_u32 s{S_T}, s{sPG}, {PG_OFF + 8192 + F_J}
                  buffer_store_dword v{STS}, off, {WS}, s{S_T}{self.loc}
                  s_waitcnt vmcnt(0)
                  s_branch {LEADB}""")
            k.label(JW)
            k(f"""s_cmp_lg_u32 s{sOK2}, 0
                  s_cbranch_scc1 {KVB}""")
        k(f"s_add_u32 s{S_T+3}, s{sKF}, s{sPG}")
        self.ev(44, va=M + 4)
        self.word_wait(S_T + 3, sOK, va=STS, sleep=opt.get("slk", 1))
        self.ev(45, va=M + 4)
        k(f"s_branch {KVB}")
        if c == 2:
            k.label(JUMP)
            k(f"""s_waitcnt vmcnt(0) lgkmcnt(0)
                  s_barrier
                  s_branch {START}""")
        k.label(END)
        self.ev(50 + c, va=M + 4)
        for x in pub:
            k(x or "s_waitcnt lgkmcnt(0)")
        k("s_waitcnt vmcnt(0)")
        k("s_barrier")
        if c:
            k(f"buffer_store_dword v{IDX}, off, {WS}, s{sFK} sc1")
            k(f"buffer_store_dword v{IDX}, off, {WS}, s{sFK1} sc1")
        k.fence()
        k(f"v_lshrrev_b32 v{V_LANE}, 4, v{V_L16}")

    def dump_stamps(self, n, extra=None, va=36):
        k = self.k
        k(f"""s_waitcnt lgkmcnt(0)
              s_lshl_b32 s{S_T}, s{S_SEG}, 5
              s_add_u32 s{S_T}, s{S_T}, s{S_H}
              s_lshl_b32 s{S_T}, s{S_T}, 2
              s_add_u32 s{S_T}, s{S_T}, s{S_W}
              s_lshl_b32 s{S_T}, s{S_T}, 6
              s_add_u32 s{S_T}, s{S_T}, {STAMP_OFF}
              v_mov_b32 v{va}, 0""")
        for i in range(n):
            k(f"v_writelane_b32 v{va}, s{84+2*i}, {i}")
        if extra is not None:
            k(f"v_writelane_b32 v{va}, s{extra}, 8")
            k(f"s_mov_b32 s{extra}, 0")
        k(f"""v_lshrrev_b32 v{va+1}, 2, v{V_L16}
              s_mov_b64 exec, 0xffff
              buffer_store_dword v{va}, v{va+1}, {WS}, s{S_T} offen
              s_mov_b64 exec, -1""")

    def proj_consts(self):
        k = self.k
        self.THR, self.TOB, self.TWO, self.THD, self.TRW, self.TRL = 4, 17, 18, 20, 21, 22
        T = 120
        k(f"""v_and_b32 v{T}, 15, v{V_LANE}
              v_lshrrev_b32 v{T+1}, 4, v{V_LANE}
              v_mov_b32 v{self.TOB}, 1
              s_lshl_b32 s{S_T}, s{S_W}, 15
              v_add_u32 v{self.TWO}, s{S_T}, v{V_L16}
              s_lshl_b32 s{S_T}, s{S_W}, 2
              v_add_u32 v{T+5}, s{S_T}, v{T+1}            ; row 4w+g
              v_xor_b32 v{T+6}, v{T+5}, v{T}
              v_lshlrev_b32 v{T+6}, 4, v{T+6}
              v_lshl_add_u32 v{self.THD}, v{T+5}, 10, v{T+6}""")
        for kq in range(4):
            k(f"""v_add_u32 v{T+5}, {4*kq}, v{T+1}
                  v_xor_b32 v{T+5}, v{T+5}, v{T}
                  v_lshlrev_b32 v{T+5}, 4, v{T+5}
                  v_lshl_add_u32 v{T+5}, v{T}, 8, v{T+5}
                  v_add_u32 v{self.THR+kq}, {self.LH}, v{T+5}""")
        k(f"""v_lshlrev_b32 v{self.TRW}, 5, v{T}
              v_and_b32 v{T+5}, 1, v{T+1}
              v_lshl_add_u32 v{self.TRW}, v{T+5}, 4, v{self.TRW}
              s_lshl_b32 s{S_T}, s{S_W}, 9
              v_lshrrev_b32 v{T+5}, 1, v{T+1}
              v_lshl_add_u32 v{self.TRW}, v{T+5}, 11, v{self.TRW}
              s_add_u32 s{S_T}, s{S_T}, {L_ROW}
              v_add_u32 v{self.TRW}, s{S_T}, v{self.TRW}
              v_lshlrev_b32 v{self.TRL}, 4, v{T}
              v_lshl_add_u32 v{self.TRL}, v{T+1}, 10, v{self.TRL}
              s_lshl_b32 s{S_T}, s{S_W}, 8
              v_add_u32 v{self.TRL}, s{S_T}, v{self.TRL}""")

    def flag_set(self, s_off, loc, keep=0):
        self.k(f"""s_waitcnt vmcnt({keep})
                   s_barrier""")
        self.flag_store(s_off, loc)

    def flags_wait32(self, s_off, one=False, sleep=0):
        k = self.k
        L, D, F = k.newlabel("L_fw"), k.newlabel("L_fd"), k.newlabel("L_ff")
        if one:
            k(f"""s_cmp_lg_u32 s{S_W}, 0
                  s_cbranch_scc1 {D}""")
        k(f"""v_and_b32 v124, 31, v{V_LANE}
              v_lshlrev_b32 v124, 2, v124""")
        if sleep:
            k(f"s_branch {F}")
        k.label(L)
        if sleep:
            k(f"s_sleep {sleep}")
            k.label(F)
        k(f"buffer_load_dword v125, v124, {WS}, s{s_off} offen sc1")
        self.spend()
        k(f"""s_waitcnt vmcnt(0)
              v_cmp_eq_u32 vcc, 0, v125
              s_cbranch_vccnz {L}""")
        if one:
            k.label(D)
            k("s_barrier")

    def reduce32(self, s_base, natural):
        k = self.k
        D = 24; SEL = 56; A = 60
        for i in range(8):
            k(f"s_add_u32 s{S_T+7}, s{s_base}, {i*4096}")
            k(f"buffer_load_dwordx4 {vr(D+4*i,4)}, v{self.TRL}, {WS}, s{S_T+7} offen sc1")
        self.make_sel(SEL, 64)
        for i in range(8):
            k(f"s_waitcnt vmcnt({7-i})")
            k(f"v_mfma_f32_16x16x32_bf16 {vr(A,4)}, {vr(SEL,4)}, {vr(D+4*i,4)}, {'0' if i == 0 else vr(A,4)}")
        if natural:
            k(f"ds_write_b128 v{self.TRW}, {vr(A,4)}")
        else:
            k(f"ds_write2_b64 v{self.TRW}, {vr(A,2)}, {vr(A+2,2)} offset0:0 offset1:64")
        k(f"""s_waitcnt lgkmcnt(0)
              s_barrier""")

    def one_lane_store(self, v, s_off, fl):
        self.k(f"""s_mov_b64 exec, 1
                   buffer_store_dword v{v}, off, {WS}, s{s_off}{fl}
                   s_mov_b64 exec, -1""")

    def wmax_u32(self, x, t):
        k = self.k
        for r in (8, 4, 2, 1):
            k(f"v_max_u32_dpp v{x}, v{x}, v{x} row_ror:{r} row_mask:0xf bank_mask:0xf")
        k(f"""v_mov_b32 v{t}, v{x}
              v_permlane16_swap_b32 v{x}, v{t}
              v_max_u32 v{x}, v{x}, v{t}
              v_mov_b32 v{t}, v{x}
              v_permlane32_swap_b32 v{x}, v{t}
              v_max_u32 v{x}, v{x}, v{t}""")

    def load_gate_up(self):
        k = self.k
        k(f"""v_and_b32 v33, 15, v{V_LANE}
              v_lshrrev_b32 v34, 4, v{V_LANE}
              s_min_u32 s{S_T+4}, s{S_H}, 27
              s_lshl_b32 s{S_T+4}, s{S_T+4}, 7            ; 64 cols * 2B
              s_mul_i32 s{S_T+3}, s{S_W}, {128*3584}
              s_add_u32 s{S_T+4}, s{S_T+4}, s{S_T+3}
              v_mul_u32_u24 v36, {32*3584}, v34
              v_and_b32 v35, 7, v33
              v_lshl_add_u32 v36, v35, 4, v36
              v_add_u32 v36, s{S_T+4}, v36                ; byte offset inside gate / up
              v_cmp_gt_u32 vcc, 8, v33
              v_mov_b32 v38, s{P_WU}
              v_mov_b32 v39, s{P_WU+1}
              v_mov_b32 v40, s{P_WG}
              v_mov_b32 v41, s{P_WG+1}
              v_cndmask_b32 v38, v38, v40, vcc
              v_cndmask_b32 v39, v39, v41, vcc
              v_add_co_u32 v38, vcc, v38, v36
              v_addc_co_u32 v39, vcc, 0, v39, vcc
              s_lshl_b32 s{S_T}, s{S_W}, 15
              v_add_u32 v37, s{S_T}, v{V_L16}""")
        for half in range(2):
            for i in range(16):
                k(f"global_load_dwordx4 {vr(44+4*i,4)}, v[38:39], off")
                k(f"v_add_co_u32 v38, vcc, 3584, v38")
                k(f"v_addc_co_u32 v39, vcc, 0, v39, vcc")
            for i in range(16):
                k(f"s_waitcnt vmcnt({15-i})")
                k(f"ds_write_b128 v37, {vr(44+4*i,4)} offset:{(16*half+i)*1024}")
                if i % 8 == 7:
                    k("s_waitcnt lgkmcnt(0)")

    def moe(self, layer, sKEY):
        k = self.k
        sROW = S_T + 8
        LD = 24
        X, YP, TM = 96, 104, 108
        XB, AF, ACC, MK, G = 88, 124, 116, 12, 108
        A0, A1, A2 = 8, 9, 10
        k(f"""s_and_b32 s{sROW}, s{sKEY}, 0x7ff
              s_sub_u32 s{sROW}, 2047, s{sROW}""")
        k(f"s_lshl_b32 s{S_T}, s{sROW}, 10")
        k(f"""s_add_u32 s{S_T+2}, s{S_T}, {X1_OFF[layer]}
              buffer_load_dwordx4 {vr(XB,4)}, v{V_L16}, {WS}, s{S_T+2} offen sc1""")
        self.srd(P_WD, 1792 * 1024)
        k(f"""v_and_b32 v{A1}, 15, v{V_LANE}
              v_lshrrev_b32 v{A2}, 4, v{V_LANE}
              v_lshlrev_b32 v{A0}, 14, v{A2}
              v_lshl_add_u32 v{A0}, v{A1}, 4, v{A0}
              s_lshl_b32 s{S_T+3}, s{S_H}, 16
              s_lshl_b32 s{S_T+4}, s{S_W}, 8
              s_add_u32 s{S_T+3}, s{S_T+3}, s{S_T+4}""")
        for i in range(16):
            if i % 4 == 0 and i > 0:
                k(f"s_add_u32 s{S_T+3}, s{S_T+3}, 4096")
            k(f"buffer_load_dwordx4 {vr(LD+i*4,4)}, v{A0}, {SA}, s{S_T+3} offen offset:{(i%4)*1024}")
        k(f"""v_and_b32 v{AF}, 1, v{V_LANE}
              v_lshlrev_b32 v{AF}, 4, v{AF}
              v_mov_b32 v{AF+1}, 0xffff
              v_lshlrev_b32 v{AF+1}, v{AF}, v{AF+1}
              v_lshrrev_b32 v{AF}, 1, v{A1}""")
        for q in range(4):
            k(f"v_cmp_eq_u32 vcc, {q}, v{AF}")
            k(f"v_cndmask_b32 v{MK+q}, 0, v{AF+1}, vcc")
        k("s_waitcnt vmcnt(16)")
        if layer == 0:
            XL, XD = k.newlabel("L_mx"), k.newlabel("L_mxd")
            k.label(XL)
            k(f"""v_max3_u32 v{AF}, v{XB}, v{XB+1}, v{XB+2}
                  v_max_u32 v{AF}, v{XB+3}, v{AF}
                  v_cmp_eq_u32 vcc, -1, v{AF}
                  s_cbranch_vccz {XD}
                  buffer_load_dwordx4 {vr(XB,4)}, v{V_L16}, {WS}, s{S_T+2} offen sc1""")
            self.spend()
            k(f"""s_waitcnt vmcnt(0)
                  s_branch {XL}""")
            k.label(XD)
        self.unpack8(X, XB)
        self.layernorm(X, YP, TM)
        TAB = L_MOE
        k(f"""s_mov_b32 s{S_T+2}, 0x01000100
              s_mov_b32 s{S_T+3}, 0x03020302""")
        for q in range(4):
            k(f"v_perm_b32 v{XB+2*q}, v{YP+q}, v{YP+q}, s{S_T+2}")
            k(f"v_perm_b32 v{XB+1+2*q}, v{YP+q}, v{YP+q}, s{S_T+3}")
        k(f"""v_lshlrev_b32 v{A0}, 5, v{V_LANE}
              s_lshl_b32 s{S_T+2}, s{S_W}, 11
              s_add_u32 s{S_T+2}, s{S_T+2}, {TAB}
              v_add_u32 v{A0}, s{S_T+2}, v{A0}
              ds_write_b128 v{A0}, {vr(XB,4)}
              ds_write_b128 v{A0}, {vr(XB+4,4)} offset:16
              s_lshl_b32 s{S_T+3}, s{S_W}, 9
              s_add_u32 s{S_T+3}, s{S_T+2}, s{S_T+3}
              v_lshlrev_b32 v{A0}, 7, v{A2}
              v_add_u32 v{A0}, s{S_T+3}, v{A0}
              s_waitcnt lgkmcnt(0)""")
        gread = lambda i: k(f"ds_read_b128 {vr(G+4*(i&1),4)}, v{self.TWO} offset:{i*1024}")
        gread(0)
        for i in range(32):
            if i % 8 == 0:
                k(f"""ds_read_b128 {vr(XB,4)}, v{A0} offset:{i*4}
                      ds_read_b128 {vr(XB+4,4)}, v{A0} offset:{i*4+16}""")
            if i + 1 < 32:
                gread(i + 1)
            k(f"s_waitcnt lgkmcnt({1 if i + 1 < 32 else 0})")
            for q in range(4):
                k(f"v_and_b32 v{AF+q}, v{MK+q}, v{XB+i%8}")
            k(f"v_mfma_f32_16x16x32_bf16 {vr(ACC,4)}, {vr(AF,4)}, {vr(G+4*(i&1),4)}, {'0' if i == 0 else vr(ACC,4)}")
        RED = L_MOE + 8 * KB
        k(f"""v_lshlrev_b32 v{A0}, 5, v{A1}
              v_and_b32 v{AF}, 1, v{A2}
              v_lshl_add_u32 v{A0}, v{AF}, 4, v{A0}
              v_lshrrev_b32 v{AF}, 1, v{A2}
              v_lshl_add_u32 v{A0}, v{AF}, 11, v{A0}
              s_lshl_b32 s{S_T+4}, s{S_W}, 9
              s_add_u32 s{S_T+4}, s{S_T+4}, {RED}
              v_add_u32 v{A0}, s{S_T+4}, v{A0}
              ds_write_b128 v{A0}, {vr(ACC,4)}
              v_lshlrev_b32 v{A0}, 2, v{V_LANE}
              v_add_u32 v{A0}, {RED}, v{A0}
              s_waitcnt lgkmcnt(0)
              s_barrier""")
        for w in range(4):
            k(f"ds_read2st64_b32 {vr(XB+2*w,2)}, v{A0} offset0:{2*w} offset1:{2*w+1}")
        k("s_waitcnt lgkmcnt(0)")
        k(f"""v_pk_add_f32 {vr(XB,2)}, {vr(XB,2)}, {vr(XB+2,2)}
              v_pk_add_f32 {vr(XB+4,2)}, {vr(XB+4,2)}, {vr(XB+6,2)}
              v_pk_add_f32 {vr(XB,2)}, {vr(XB,2)}, {vr(XB+4,2)}""")
        self.round1(XB)
        self.round1(XB + 1)
        k(f"""v_mul_f32 v{XB+2}, {f32(-math.log2(math.e))}, v{XB}
              v_exp_f32 v{XB+2}, v{XB+2}
              v_add_f32 v{XB+2}, 1.0, v{XB+2}
              v_rcp_f32 v{XB+2}, v{XB+2}
              v_mul_f32 v{XB}, v{XB}, v{XB+2}""")
        self.round1(XB)
        k(f"""v_mul_f32 v{XB}, v{XB}, v{XB+1}
              v_cvt_pk_bf16_f32 v{XB}, v{XB}, v{XB}
              v_lshlrev_b32 v{A0}, 2, v{V_LANE}
              v_add_u32 v{A0}, s{S_T+2}, v{A0}
              ds_write_b32 v{A0}, v{XB}
              v_lshlrev_b32 v{A0}, 6, v{A2}
              v_add_u32 v{A0}, s{S_T+2}, v{A0}
              s_waitcnt lgkmcnt(0)
              ds_read_b128 {vr(XB,4)}, v{A0}
              ds_read_b128 {vr(XB+4,4)}, v{A0} offset:16
              ds_read_b128 {vr(G,4)}, v{A0} offset:32
              ds_read_b128 {vr(G+4,4)}, v{A0} offset:48
              s_waitcnt vmcnt(0) lgkmcnt(0)""")
        for i in range(16):
            for q in range(4):
                k(f"v_and_b32 v{AF+q}, v{MK+q}, v{(XB if i < 8 else G)+i%8}")
            k(f"v_mfma_f32_16x16x32_bf16 {vr(ACC,4)}, {vr(AF,4)}, {vr(LD+i*4,4)}, {'0' if i == 0 else vr(ACC,4)}")
        k(f"""v_lshlrev_b32 v{A0}, 4, v{A1}
              v_and_b32 v{AF}, 1, v{A2}
              v_lshl_add_u32 v{A0}, v{AF}, 3, v{A0}
              v_and_b32 v{AF}, 2, v{A2}
              v_lshl_add_u32 v{A0}, v{AF}, 30, v{A0}
              s_lshl_b32 s{S_T+9}, s{S_SEG}, 15
              s_add_u32 s{S_T+9}, s{S_T+9}, {MOE_OFF}
              s_lshl_b32 s{S_T+3}, s{S_H}, 10
              s_lshl_b32 s{S_T+4}, s{S_W}, 8
              s_add_u32 s{S_T+3}, s{S_T+3}, s{S_T+4}
              s_add_u32 s{S_T+3}, s{S_T+3}, s{S_T+9}
              v_cvt_pk_bf16_f32 v24, v{ACC}, v{ACC+1}
              v_cvt_pk_bf16_f32 v25, v{ACC+2}, v{ACC+3}
              buffer_store_dwordx2 v[24:25], v{A0}, {WS}, s{S_T+3} offen{self.loc}""")
        self.page(S_T + 3, F_M)
        self.flag_set(S_T + 3, self.loc)
        D = k.newlabel("L_moed")
        if layer == 1:
            k(f"""s_cmp_lg_u32 s{S_H}, 0
                  s_cbranch_scc1 {D}""")
        self.page(S_T + 3, F_M, head=False)
        self.flags_wait32(S_T + 3)
        self.reduce32(S_T + 9, True)
        k(f"""s_cmp_lg_u32 s{S_W}, 0
              s_cbranch_scc1 {D}""")
        A, PK, Y, TM = 24, 40, 48, 56
        k(f"""v_lshlrev_b32 v{TM}, 5, v{V_LANE}
              v_add_u32 v{TM}, {L_ROW}, v{TM}
              ds_read_b128 {vr(A,4)}, v{TM}
              ds_read_b128 {vr(A+4,4)}, v{TM} offset:16
              s_and_b32 s{S_T+3}, s{sKEY}, 0xffff0000
              s_xor_b32 s{S_T+4}, s{S_T+3}, 0x80000000
              s_xor_b32 s{S_T+5}, s{S_T+3}, 0xffff0000
              s_cmp_lt_i32 s{S_T+3}, 0
              s_cselect_b32 s{S_T+3}, s{S_T+4}, s{S_T+5}
              v_mov_b32 v{TM}, s{S_T+3}
              v_mul_f32 v{TM}, {f32(-math.log2(math.e))}, v{TM}
              v_exp_f32 v{TM}, v{TM}
              v_add_f32 v{TM}, 1.0, v{TM}
              v_rcp_f32 v{TM}, v{TM}""")
        self.round1(TM)
        self.unpack8(Y, YP)
        k("s_waitcnt lgkmcnt(0)")
        self.pack8(PK, A)
        self.unpack8(A, PK)
        for j in range(8):
            k(f"v_mul_f32 v{A+j}, v{A+j}, v{TM}")
        self.pack8(PK, A)
        self.unpack8(A, PK)
        for j in range(8):
            k(f"v_add_f32 v{A+j}, v{A+j}, v{Y+j}")
        self.pack8(PK, A)
        self.unpack8(A, PK)
        for j in range(8):
            k(f"v_add_f32 v{X+j}, v{X+j}, v{A+j}")
        self.pack8(80, X)
        if layer == 0:
            self.unpack8(X, 80)
            self.layernorm(X, 84, TM + 2)
            k(f"""s_lshl_b32 s{S_T+2}, s{S_SEG}, 10
                  s_add_u32 s{S_T+2}, s{S_T+2}, {X2P_OFF}
                  s_add_u32 s{S_T+3}, s{S_T+2}, {HPS_OFF - X2P_OFF}
                  s_cmp_eq_u32 s{S_H}, 0
                  s_cselect_b32 s{S_T+3}, s{S_T+3}, 0x80000000
                  s_add_u32 s{S_T+1}, s{S_T}, {HP_OFF}
                  buffer_store_dwordx4 v[84:87], v{V_L16}, {WS}, s{S_T+3} offen sc1
                  buffer_store_dwordx4 v[80:83], v{V_L16}, {WS}, s{S_T+2} offen sc1
                  buffer_store_dwordx4 v[84:87], v{V_L16}, {WS}, s{S_T+1} offen sc1""")
        else:
            self.srd(P_OUT, 2048 * 1024)
            k(f"buffer_store_dwordx4 v[80:83], v{V_L16}, {SA}, s{S_T} offen sc1")
        k.label(D)

    def a_plan(self):
        o = self.opt
        n1, n2, up = o.get("n1", 4), o.get("n2", 5), o.get("up", 3)
        p0 = self.P0 = o.get("p0", 16)
        own = [list(range(0, p0, 2)), list(range(1, p0, 2)), list(range(p0 + n1 + n2, p0 + n1 + n2 + up))]
        pat = o.get("pat", (0, 1, 2))
        for i, x in enumerate(range(p0 + n1 + n2 + up, 64)):
            own[pat[i % len(pat)]].append(x)
        return n1, n2, up, [sum(1 << x for x in w) for w in own]

    def pop_next(self, dst, mask):
        self.k(f"""s_ff1_i32_b64 s{dst}, {sr(mask,2)}
                   s_bitset0_b64 {sr(mask,2)}, s{dst}
                   s_min_u32 s{dst}, s{dst}, 127""")

    def spec(self):
        o = self.opt
        return o.get("delta", 11), o.get("th", 28), o.get("kb", 5)

    def words_wait64(self, s_off, t, sleep):
        k = self.k
        L = k.newlabel("L_fp")
        k.label(L)
        k(f"""s_sleep {sleep}
              buffer_load_dword v{t+1}, v{t}, {WS}, s{s_off} offen sc1""")
        self.spend()
        k(f"""s_waitcnt vmcnt(0)
              v_cmp_eq_u32 vcc, 0, v{t+1}
              s_cbranch_vccnz {L}""")

    def todo_mask(self, sTODO, t):
        self.k(f"""v_cmp_le_u32 vcc, s{S_T+5}, v{V_LANE}
                   v_cndmask_b32 v{t}, 1, 2, vcc
                   v_cmp_ne_u32 {sr(sTODO,2)}, v{t}, v{t+1}""")

    def role_moe(self):
        k = self.k
        o = self.opt
        sMAX, sKEY = 54, 55
        self.proj_consts()
        _, _, UP, own = self.a_plan()
        JD, MINL, MAXL = o.get("jd", 2), o.get("minl", 12), o.get("maxl", 26)
        sNA, sSC = S_A, S_B
        sH, sN, sF, sDEBT, sOWN, sKA, sGR = S_T + 12, S_T + 14, S_T + 16, S_T + 17, S_T + 18, S_T + 20, S_T + 21
        sR, sPT, sALT, sFR, sPF = 84, 86, 87, 18, 19
        t = 20
        sQ = 22
        PR, NR = k.newlabel("L_mp"), k.newlabel("L_mr")
        L, AL, AL2, NF, NJ, FN, T1P, LK, P_, BC, WR_, L2, GOT, EN = (k.newlabel("L_mo") for _ in range(14))
        k(f"""s_mov_b32 s{sMAX}, 0
              s_mov_b32 s{sSC}, 0
              s_mov_b32 s{S_CNT}, {UP}
              s_mov_b32 s{sF}, 0x80000000
              s_mov_b32 s{sDEBT}, 0
              s_mov_b32 s{sGR}, -1
              s_mov_b32 s{sPT}, 0
              s_mov_b32 s{sPF}, 0
              s_mov_b32 s{sOWN}, {own[2] & 0xffffffff}
              s_mov_b32 s{sOWN+1}, {own[2] >> 32}
              v_and_b32 v23, 15, v{V_LANE}
              v_lshlrev_b32 v23, 3, v23
              v_lshrrev_b32 v16, 4, v{V_LANE}
              v_lshl_add_u32 v23, v16, 13, v23
              v_mov_b32 v19, {L_MISC}
              v_lshl_add_u32 v16, v16, 2, v19""")
        kload = f"buffer_load_dwordx2 v[124:125], v23, {WS}, s{sKA} offen sc1"
        self.pop_next(sNA, sOWN)
        self.t1_src(sN, sNA, 0)
        k.label(AL)
        k(f"""s_cmp_lg_u32 s{sPF}, 0
              s_cbranch_scc1 {AL2}""")
        for x in self.t1_dma(sN, (0, 1, 2)):
            k(x)
        k(f"""s_mov_b32 s{sPF}, 1
              s_waitcnt vmcnt(0)""")
        k.label(AL2)
        k(f"""s_mov_b32 s{S_SEG}, s{sNA}
              s_mov_b64 {sr(sH,2)}, {sr(sN,2)}""")
        self.pop_next(sNA, sOWN)
        self.t1_src(sN, sNA, 0)
        self.page(sKA, F_RKM, seg=sSC, head=False)
        self.t1(0, sH, pre=8, s_flag=sF, nxt=self.t1_dma(sN, (0, 1, 2)) + [kload])
        self.ev(17)
        self.page(sF, F_KV[0])
        k(f"""s_sub_u32 s{S_CNT}, s{S_CNT}, 1
              s_cmp_gt_i32 s{S_CNT}, 0
              s_cbranch_scc1 {AL2}
              s_mov_b32 s{sALT}, 3
              s_mov_b32 s{sFR}, 0
              s_waitcnt vmcnt(7)
              s_branch {LK}""")
        k.label(L)
        k(f"""s_mov_b32 s{sKEY}, s{sQ}
              s_mov_b32 s{sQ}, s{sQ+1}
              s_mov_b32 s{sQ+1}, s{sQ+2}
              s_mov_b32 s{sQ+2}, -1
              s_cmp_lg_u32 s{sKEY}, -1
              s_cbranch_scc1 {PR}
              s_sub_u32 s{S_T}, s{sNA}, s{sSC}
              s_cmp_gt_i32 s{sGR}, 0
              s_cselect_b32 s{S_T+1}, 6, {MINL}
              s_cmp_lt_i32 s{S_T}, s{S_T+1}
              s_cbranch_scc1 {AL}
              s_cmp_lt_i32 s{S_T}, {MAXL}
              s_cselect_b32 s{sALT}, s{sFR}, 0
              s_cmp_ge_u32 s{sSC}, {o.get("tnow", 56)}
              s_cselect_b32 s{S_T}, 1, s{sFR}
              s_and_b32 s{S_T}, s{S_T}, s{sPT}
              s_cselect_b32 s{sALT}, 2, s{sALT}
              s_mul_i32 s{S_T}, s{sALT}, s{sFR}
              s_cmp_lg_u32 s{S_T}, 0
              s_cbranch_scc1 {FN}
              s_mov_b32 s{sFR}, 0
              s_lshr_b32 s{S_T}, s{sF}, 31
              s_or_b32 s{S_T}, s{S_T}, s{sALT}
              s_cbranch_scc1 {L2}""")
        self.flag_set(sF, " sc1")
        k(f"s_mov_b32 s{sF}, 0x80000000")
        k.label(L2)
        k(f"""s_cmp_lg_u32 s{S_W}, 0
              s_cbranch_scc1 {BC}""")
        self.page(sKA, F_RKM, seg=sSC, head=False)
        k.label(P_)
        k(kload)
        self.spend()
        k("s_waitcnt vmcnt(0)")
        k.label(LK)
        k(f"""v_min_u32 v123, v124, v125
              v_max_u32 v125, v124, v125
              v_cmp_eq_u32 vcc, 0, v123
              v_cndmask_b32 v125, v125, -1, vcc
              s_and_b32 s{S_T}, vcc_lo, 0xffff
              s_cbranch_scc0 {GOT}
              s_cmp_lg_u32 s{sALT}, 0
              s_cbranch_scc1 {GOT}
              s_mov_b32 s{sFR}, 1
              s_sleep {o.get("slm", 2)}
              s_branch {P_}""")
        k.label(GOT)
        for r in (8, 4, 2, 1):
            k(f"v_max_u32_dpp v125, v125, v125 row_ror:{r} row_mask:0xf bank_mask:0xf")
        k.label(BC)
        self.spend()
        k(f"""v_mov_b32 v124, s{sFR}
              s_barrier
              s_cmp_lg_u32 s{S_W}, 0
              s_cbranch_scc1 {WR_}
              ds_write_b32 v16, v125
              ds_write_b32 v19, v124 offset:16
              s_waitcnt lgkmcnt(0)""")
        k.label(WR_)
        k(f"""s_barrier
              ds_read_b128 v[120:123], v19
              ds_read_b32 v124, v19 offset:16
              s_waitcnt lgkmcnt(0)
              v_readfirstlane_b32 s{sKEY}, v120
              v_readfirstlane_b32 s{sQ}, v121
              v_readfirstlane_b32 s{sQ+1}, v122
              v_readfirstlane_b32 s{sQ+2}, v123
              v_readfirstlane_b32 s{sFR}, v124
              s_cmp_lg_u32 s{sKEY}, -1
              s_cbranch_scc1 {PR}
              {FN}:
              s_mov_b32 s{sQ}, -1
              s_cmp_eq_u32 s{sALT}, 1
              s_cbranch_scc1 {AL}
              s_cmp_eq_u32 s{sALT}, 2
              s_cbranch_scc1 {T1P}
              s_branch {L}""")
        k.label(PR)
        k(f"""s_sub_u32 s{sDEBT}, s{sDEBT}, 1
              s_max_i32 s{sDEBT}, s{sDEBT}, 0
              s_sub_u32 s{sGR}, s{sGR}, 1
              s_min_u32 s{S_T+5}, s{sDEBT}, {LOOK}
              s_cmp_lt_u32 s{sSC}, {o.get("early", 5)}
              s_cselect_b32 s{S_T+5}, {LOOK}, s{S_T+5}
              s_cmp_le_u32 s{sKEY}, s{sMAX}
              s_cbranch_scc1 {NR}
              s_mov_b32 s{sGR}, s{S_T+5}
              s_mov_b32 s{sMAX}, s{sKEY}
              s_mov_b32 s{sPT}, 0
              s_or_b32 s{S_T+5}, s{S_H}, s{S_W}
              s_cbranch_scc1 {NR}
              v_mov_b32 v120, s{sMAX}
              v_lshlrev_b32 v121, 13, v{V_LANE}
              s_mov_b32 s{S_T+5}, {PG_OFF + F_RM}
              buffer_store_dword v120, v121, {WS}, s{S_T+5} offen sc1
              {NR}:
              s_cmp_lg_u32 s{sSC}, 63
              s_cbranch_scc1 {NF}
              s_min_i32 s{sGR}, s{sGR}, 0
              s_or_b32 s{S_T+5}, s{S_H}, s{S_W}
              s_cbranch_scc1 {NF}
              s_mov_b32 s{S_T+3}, {PG_OFF + 65*8192 + F_DEC}
              v_lshlrev_b32 v120, 2, v{V_LANE}""")
        self.words_wait64(S_T + 3, 120, 0)
        k(f"""s_andn2_b32 s{S_T+6}, 0x7ff, s{sMAX}
              v_lshl_or_b32 v121, s{S_T+6}, 8, v121""")
        for w in range(6):
            k(f"""s_add_u32 s{S_T+3}, s{S_T+3}, 8192
                  buffer_store_dword v121, v120, {WS}, s{S_T+3} offen sc1""")
        k.label(NF)
        k(f"""s_add_u32 s{sSC}, s{sSC}, 1
              s_cmp_gt_i32 s{sGR}, 0
              s_cmov_b32 s{sFR}, 0
              s_cbranch_scc1 {L}
              s_cmp_lg_u32 s{sGR}, 0
              s_cbranch_scc1 {NJ}""")
        k(f"""s_andn2_b32 s{S_SEG}, 0x7ff, s{sMAX}
              s_lshr_b32 s{S_SEG}, s{S_SEG}, 5
              s_add_u32 s{sDEBT}, s{sDEBT}, {JD}
              s_mov_b32 s{sPT}, 1
              s_mov_b32 s{sPF}, 0
              s_mov_b32 s{sFR}, 0
              s_waitcnt vmcnt(8)
              s_barrier""")
        self.ev(30)
        self.moe(0, sMAX)
        self.ev(31)
        k("s_barrier")
        k.label(NJ)
        k(f"""s_mov_b32 s{sGR}, -1
              s_cmp_lt_u32 s{sSC}, 64
              s_cbranch_scc1 {L}
              s_cmp_eq_u32 s{sPT}, 0
              s_cbranch_scc1 {EN}""")
        k.label(T1P)
        k(f"""s_andn2_b32 s{S_SEG}, 0x7ff, s{sMAX}
              s_lshr_b32 s{S_SEG}, s{S_SEG}, 5
              s_andn2_b32 s{S_T}, 31, s{sMAX}
              v_lshrrev_b32 v2, 10, v{self.THD}
              v_add_u32 v3, 16, v2
              v_add_u32 v8, {HP_OFF - H_OFF[1]}, v{self.THD}
              v_cmp_eq_u32 vcc, s{S_T}, v2
              v_cndmask_b32 v2, v{self.THD}, v8, vcc
              v_cmp_eq_u32 vcc, s{S_T}, v3
              v_cndmask_b32 v3, v{self.THD}, v8, vcc
              s_waitcnt vmcnt(0)""")
        self.page(S_T + 3, F_HX, head=False)
        self.flags_wait32(S_T + 3, one=True, sleep=2)
        self.flag_store(sF, " sc1")
        self.t1_src(S_T + 10, S_SEG, 1)
        self.t1b(2, S_T + 10, voff=(2, 3), early=False)
        self.ev(32)
        for x in self.t1_dma(sN, (0, 1, 2)):
            k(x)
        self.page(S_T + 3, F_Q[2])
        self.flag_set(S_T + 3, " sc1")
        k(f"""s_mov_b32 s{sF}, 0x80000000
              s_mov_b32 s{sPT}, 0
              s_mov_b32 s{sPF}, 1
              s_mov_b32 s{sFR}, 0
              s_cmp_lt_u32 s{sSC}, 64
              s_cbranch_scc1 {L}""")
        k.label(EN)
        k(f"s_mov_b32 s{S_SEG}, 64")
        W = k.newlabel("L_mw")
        k(f"""s_and_b32 s{S_T+5}, s{sMAX}, 0x7ff
              s_sub_u32 s{S_T+5}, 2047, s{S_T+5}
              s_lshr_b32 s{S_T+5}, s{S_T+5}, 5""")
        k(f"""s_cmp_lg_u32 s{S_W}, 0
              s_cbranch_scc1 {W}
              s_mov_b32 s{S_T+3}, {PG_OFF + 65*8192 + F_DEC}
              v_lshlrev_b32 v2, 2, v{V_LANE}""")
        self.words_wait64(S_T + 3, 2, 2)
        self.todo_mask(sR, 2)
        k(f"""s_lshl_b32 s{S_T}, s{S_H}, 1
              s_lshr_b64 {sr(t,2)}, {sr(sR,2)}, s{S_T}
              v_lshrrev_b32 v2, 5, v{V_LANE}
              v_lshrrev_b32 v3, v2, s{t}
              v_and_b32 v3, 1, v3
              v_mul_u32_u24 v3, {F_RK[1] - F_RK[2]}, v3
              v_lshlrev_b32 v2, 13, v2
              v_sub_u32 v2, v2, v3
              v_and_b32 v3, 31, v{V_LANE}
              v_lshl_add_u32 v2, v3, 2, v2
              v_add_u32 v2, {F_RK[1]}, v2
              s_lshl_b32 s{S_T+3}, s{S_H}, 14
              s_add_u32 s{S_T+3}, s{S_T+3}, {PG_OFF}""")
        self.words_wait64(S_T + 3, 2, 1)
        self.wmax_u32(3, 2)
        self.page(S_T + 3, F_FIN)
        k(f"buffer_store_dword v3, off, {WS}, s{S_T+3}{self.loc}")
        k.label(W)
        k("s_barrier")
        self.page(S_T + 3, F_FIN, head=False)
        self.flags_wait32(S_T + 3, sleep=1)
        self.wmax_u32(125, 124)
        k(f"v_readfirstlane_b32 s{sKEY}, v125")
        self.ev(33)
        self.moe(1, sKEY)
        self.ev(34)

    def role_proj(self):
        k = self.k
        self.LH = 64 * KB
        self.proj_consts()
        own = self.a_plan()[3]
        MAXL, MINL = self.opt.get("pmaxl", 36), self.opt.get("pminl", 12)
        sCUR, sNA = 54, 55
        sH, sN, sF, sOWN, sLB, sNB, sNXT = S_T + 10, S_T + 12, S_T + 14, S_T + 16, S_T + 18, S_T + 19, S_T + 20
        allq = (0, 1, 2, 3)
        FA, FV, VA_ = 23, 76, 19
        k(f"""s_sub_u32 s{sCUR}, s{S_G}, 4
              s_cmp_eq_u32 s{sCUR}, 0
              s_mov_b32 s{sOWN}, {own[1] & 0xffffffff}
              s_mov_b32 s{sOWN+1}, {own[1] >> 32}
              s_cmov_b32 s{sOWN}, {own[0] & 0xffffffff}
              s_cmov_b32 s{sOWN+1}, {own[0] >> 32}
              s_mov_b32 s{sF}, 0x80000000
              s_mov_b32 s{S_CNT}, {self.opt.get("pup", 7)}
              s_mov_b32 s{sLB}, s{S_LW}
              s_xor_b32 s{sNB}, s{sLB}, {32*KB}
              v_and_b32 v{FA}, 31, v{V_LANE}
              v_lshlrev_b32 v{FA}, 2, v{FA}
              v_mov_b32 v{VA_}, s{S_LW}
              v_mov_b32 v16, 0""")
        self.pop_next(sNA, sOWN)
        self.t1_src(sN, sNA, 0)
        for x in self.t1_dma(sN, allq, sb=sNB):
            k(x)
        k("""s_waitcnt vmcnt(0)
             s_barrier""")
        def peek():
            return (f"""s_lshl_b32 s{S_T}, s{sCUR}, 13
                        s_add_u32 s{S_T}, s{S_T}, {PG_OFF + F_HX}
                        s_or_b32 s{S_T}, s{S_T}, s{S_OOB}
                        buffer_load_dword v{FV}, v{FA}, {WS}, s{S_T} offen sc1""",
                    ["s_waitcnt vmcnt(0)", f"v_cmp_eq_u32 vcc, 0, v{FV}", f"v_mov_b32 v{FV}, vcc_lo", f"ds_write_b32 v{VA_}, v{FV}"],
                    f"ds_read_b32 v{FV}, v16")
        def choose(after_a):
            out = [f"v_readfirstlane_b32 s{S_T+1}, v{FV}",
                   f"s_sub_u32 s{S_T+3}, s{sNA}, s{sCUR}\ns_cmp_lt_i32 s{S_T+3}, {MAXL}\ns_cselect_b32 s{sNXT}, 2, 0"]
            if after_a:
                out.append(f"s_cmp_gt_i32 s{S_CNT}, 0\ns_cselect_b32 s{sNXT}, s{sNXT}, 0")
            out += [f"s_cmp_eq_u32 s{S_T+1}, 0\ns_cselect_b32 s{sNXT}, 1, s{sNXT}",
                    f"s_cmp_lt_i32 s{S_T+3}, {MINL}\ns_cselect_b32 s{sNXT}, 2, s{sNXT}\ns_add_u32 s{S_T+1}, s{sCUR}, {H_OFF[1] >> 15}",
                    f"s_cmp_eq_u32 s{sNXT}, 1\ns_cselect_b32 s{sN}, s{S_T+1}, s{sNA}\ns_lshl_b32 s{sN}, s{sN}, 15",
                    f"s_cmp_eq_u32 s{sNXT}, 0\ns_cselect_b32 s{sN}, 0x80000000, s{sN}\ns_add_u32 s{sN+1}, s{sN}, {16*KB}"]
            return out + self.t1_dma(sN, allq, sb=sNB)
        def flip():
            k(f"""s_mov_b32 s{sNB}, s{sLB}
                  s_xor_b32 s{sLB}, s{sLB}, {32*KB}""")
            for i in range(4):
                k(f"v_xor_b32 v{self.THR+i}, {32*KB}, v{self.THR+i}")
        LA_, LC, DSP, EN = (k.newlabel("L_p") for _ in range(4))
        k.label(LA_)
        flip()
        k(f"""s_mov_b32 s{S_SEG}, s{sNA}
              s_sub_u32 s{S_CNT}, s{S_CNT}, 1""")
        self.pop_next(sNA, sOWN)
        self.t1b(0, None, landed=True, s_flag=sF, nxt=choose(True), early=False, peek=peek())
        self.ev(17)
        self.page(sF, F_KV[0])
        k(f"""s_cmp_ge_u32 s{S_SEG}, 2
              s_cbranch_scc1 {DSP}""")
        self.flag_set(sF, " sc1")
        k.label(DSP)
        k(f"""s_cmp_eq_u32 s{sNXT}, 2
              s_cbranch_scc1 {LA_}
              s_mov_b32 s{S_CNT}, 0
              s_mov_b32 s{S_SEG}, s{sCUR}
              s_add_u32 s{sCUR}, s{sCUR}, 2
              s_cmp_eq_u32 s{sNXT}, 1
              s_cbranch_scc1 {LC}""")
        self.flag_set(sF, " sc1")
        k(f"""s_mov_b32 s{sF}, 0x80000000
              s_cmp_ge_u32 s{S_SEG}, 64
              s_cbranch_scc1 {EN}""")
        self.t1_src(sH, S_SEG, 1)
        self.page(S_T + 3, F_HX, head=False)
        self.flags_wait32(S_T + 3, one=True, sleep=self.opt.get("slp", 2))
        self.ev(13)
        self.t1b(1, sH, s_flag=sF, nxt=choose(False), sb=sLB, peek=peek())
        self.ev(14)
        self.page(sF, F_Q[1])
        k(f"s_branch {DSP}")
        k.label(LC)
        flip()
        self.t1b(1, None, landed=True, s_flag=sF, nxt=choose(self.opt.get("calm", 1)), peek=peek())
        self.ev(16)
        self.page(sF, F_Q[1])
        k(f"s_branch {DSP}")
        k.label(EN)
        self.LH = L_H

    def chain_helps(self):
        k = self.k
        n1, n2 = self.a_plan()[:2]
        sH, sN, sF = S_T + 12, S_T + 14, S_T + 16
        T = 120
        D, L = k.newlabel("L_chd"), k.newlabel("L_chl")
        self.THR, self.THD, self.TOB = 4, 20, 17
        k(f"""s_cmp_eq_u32 s{S_G}, 0
              s_cbranch_scc1 {D}
              v_and_b32 v{T}, 15, v{V_LANE}
              v_lshrrev_b32 v{T+1}, 4, v{V_LANE}
              v_mov_b32 v{self.TOB}, 1
              s_lshl_b32 s{S_T}, s{S_W}, 2
              v_add_u32 v{T+5}, s{S_T}, v{T+1}            ; row 4w+g
              v_xor_b32 v{T+6}, v{T+5}, v{T}
              v_lshlrev_b32 v{T+6}, 4, v{T+6}
              v_lshl_add_u32 v{self.THD}, v{T+5}, 10, v{T+6}""")
        for i in range(8):
            k(f"""s_lshl_b32 s{S_T}, s{S_W}, 1
                  s_xor_b32 s{S_T}, s{S_T}, {i}
                  s_and_b32 s{S_T+1}, s{S_T}, 3
                  s_lshl_b32 s{S_T+1}, s{S_T+1}, 2
                  s_lshr_b32 s{S_T}, s{S_T}, 2
                  s_lshl_b32 s{S_T}, s{S_T}, 13
                  s_add_u32 s{S_T}, s{S_T}, {L_H}
                  v_add_u32 v{T+5}, s{S_T+1}, v{T+1}
                  v_xor_b32 v{T+5}, v{T+5}, v{T}
                  v_lshlrev_b32 v{T+5}, 4, v{T+5}
                  v_lshl_add_u32 v{T+5}, v{T}, 8, v{T+5}
                  v_add_u32 v{self.THR+i}, s{S_T}, v{T+5}""")
        k(f"""s_cmp_eq_u32 s{S_G}, 1
              s_cselect_b32 s{S_SEG}, {self.P0}, {self.P0 + n1}
              s_cselect_b32 s{S_CNT}, {n1}, {n2}
              s_mov_b32 s{sF}, 0x80000000""")
        self.t1_src(sN, S_SEG, 0)
        for x in self.t1_dma(sN, (0, 1)):
            k(x)
        k("s_waitcnt vmcnt(0)")
        k.label(L)
        k(f"""s_mov_b64 {sr(sH,2)}, {sr(sN,2)}
              s_add_u32 s{sN}, s{sN}, {32*KB}
              s_add_u32 s{sN+1}, s{sN+1}, {32*KB}""")
        self.t1(0, sH, pre=7, s_flag=sF, nxt=self.t1_dma(sN, (0, 1)), rot=True)
        self.page(sF, F_KV[0])
        k(f"""s_add_u32 s{S_SEG}, s{S_SEG}, 1
              s_sub_u32 s{S_CNT}, s{S_CNT}, 1
              s_cmp_gt_u32 s{S_CNT}, 0
              s_cbranch_scc1 {L}""")
        self.flag_set(sF, " sc1")
        self.ev(18)
        k.label(D)

    def warm(self):
        k = self.k
        k(f"""s_and_b32 s{S_T}, s{S_G}, 1
              s_lshl_b32 s{S_T}, s{S_T}, 12
              s_add_u32 s{S_T}, s{S_T}, s{S_LW}
              s_and_b32 s{S_T+1}, s{S_H}, 15
              s_lshl_b32 s{S_T+1}, s{S_T+1}, 13
              s_add_u32 s{S_T}, s{S_T}, s{S_T+1}""")
        n = 0
        for ptr in (P_WK, P_WV, P_WQ):
            self.srd(ptr, 4 * MB)
            for i in range(32):
                if n >= self.opt.get("wdepth", 10):
                    k(f"s_waitcnt vmcnt({self.opt.get('wdepth', 10) - 1})")
                k(f"""s_add_u32 s{S_T+1}, s{S_T}, {i*16*8192}
                      buffer_load_dwordx4 v[24:27], v{V_L16}, {SA}, s{S_T+1} offen""")
                n += 1
                if n == self.opt.get("wdepth", 10) + 1:
                    self.arrive()

    def load_wo2(self):
        k = self.k
        self.srd(P_WO, 4 * MB)
        k(f"""v_and_b32 v2, 15, v{V_LANE}
              v_lshlrev_b32 v2, 4, v2
              v_lshrrev_b32 v3, 4, v{V_LANE}
              v_lshl_add_u32 v2, v3, 13, v2
              s_and_b32 s{S_T}, s{S_H}, 15
              s_lshl_b32 s{S_T}, s{S_T}, 18
              s_lshl_b32 s{S_T+1}, s{S_W}, 8
              s_add_u32 s{S_T}, s{S_T}, s{S_T+1}
              s_mov_b32 s{S_T+5}, 0x05040100
              s_mov_b32 s{S_T+6}, 0x07060302""")
        NB = 6
        def issue(g):
            b = 24 + (g % NB) * 32
            for j in range(8):
                if j % 4 == 0:
                    k(f"s_add_u32 s{S_T+1}, s{S_T}, {(32*g+j)*1024}")
                k(f"buffer_load_dwordx4 {vr(b+4*j,4)}, v2, {SA}, s{S_T+1} offen offset:{(j%4)*1024}")
        for g in range(NB):
            issue(g)
        for g in range(8):
            b = 24 + (g % NB) * 32
            k(f"s_waitcnt vmcnt({min(7-g, NB-1)*8})")
            for t in range(8):
                for q in range(4):
                    k(f"v_perm_b32 v{216+q}, v{b+4*(2*q+1)+(t>>1)}, v{b+4*(2*q)+(t>>1)}, s{S_T+5+(t&1)}")
                for q in range(4):
                    k(f"v_accvgpr_write_b32 a{(g*8+t)*4+q}, v{216+q}")
            if g + NB < 8:
                issue(g + NB)
            if g == 0:
                self.arrive()

    def role_att(self, steady):
        k = self.k
        opt = self.opt
        DL, TH, KB_ = self.spec()
        NW = 6
        over = self.loc == "" and opt.get("over", 1)
        PTX = 0 if opt.get("pt1") else 512 * KB
        sWK, sSEL = 54, 55
        sCNT, sBUF, sHD, sPT, sNQ, sNK, sLATE, sDF, sCUR, sMAXK, sFM, sNX = (S_T + i for i in range(10, 22))
        sTODO, sKO, sCW, sX = 84, 86, 87, S_A
        R_, sPS, sMODE, sST, sRB = 18, 26, 27, 32, 34
        sBN, sD, sVB, sHAD = 35, 36, 37, 38
        DEC = PG_OFF + 65 * 8192 + F_DEC
        OUT = DBG
        OX, ROWS = 128 * KB, 144 * KB
        RK, OW_, OB_, PT_, RW_, RL_ = 2, 3, 4, 5, 6, 7
        TX0, TX1 = 8, 12
        L4, FL, ST, SA_, DF, KA = 16, 17, 18, 19, 20, 21
        Q, KK, F, V, VM, S = 24, 40, 72, 88, 120, 128
        P, Lr, ONES, SEL, O = 140, 148, 152, 156, 24
        B, ACC, PK = 24, 160, 24
        XI, WR, KEY, TT = 224, 228, 236, 238
        CN, RR_, GK, VR, VW, VT, VO, KR = 22, 23, 246, 245, 247, 248, 253, 254
        KY = 242
        VOTE = ROWS + 8 * KB
        T = TT
        self.make_sel(SEL, TT)
        self.srd(P_WR, 1024)
        k(f"""buffer_load_dwordx4 {vr(XI,4)}, v{V_L16}, {SA}, 0 offen
              v_and_b32 v{T}, 15, v{V_LANE}
              v_lshrrev_b32 v{T+1}, 4, v{V_LANE}
              v_lshlrev_b32 v{T+2}, 2, v{T+1}
              v_mov_b32 v{T+3}, {NEGBIG}
              s_and_b32 s{S_T}, s{S_W}, 1
              s_lshl_b32 s{S_T}, s{S_T}, 4
              v_add_u32 v{T+4}, s{S_T}, v{T}""")
        for u in range(2):
            for r in range(4):
                k(f"v_add_u32 v{T+5}, {16*u+r}, v{T+2}")
                k(f"v_cmp_gt_u32 vcc, v{T+5}, v{T+4}")
                k(f"v_cndmask_b32 v{(TX0,TX1)[u]+r}, 0, v{T+3}, vcc")
        k(f"""v_mov_b64 {vr(ONES,2)}, {sr(S_ONE,2)}
              v_mov_b64 {vr(ONES+2,2)}, {sr(S_ONE,2)}
              v_mov_b32 v{P+5}, 0
              v_mov_b32 v{P+6}, 0
              s_lshl_b32 s{S_T}, s{S_W}, 12
              s_add_u32 s{S_T}, s{S_T}, {OX}
              v_add_u32 v{OW_}, s{S_T}, v{V_L16}
              v_add_u32 v{OB_}, {OX}, v{V_L16}
              s_lshl_b32 s{S_T}, s{S_W}, 8
              v_lshlrev_b32 v{RL_}, 4, v{T}
              v_add_u32 v{RL_}, s{S_T}, v{RL_}
              v_lshl_add_u32 v{PT_}, v{T+1}, 16, v{RL_}
              v_lshlrev_b32 v{RW_}, 1, v{RL_}
              v_lshl_add_u32 v{RL_}, v{T+1}, 10, v{RL_}
              v_and_b32 v{T+5}, 1, v{T+1}
              v_lshl_add_u32 v{RW_}, v{T+5}, 4, v{RW_}
              v_lshrrev_b32 v{T+5}, 1, v{T+1}
              v_lshl_add_u32 v{RW_}, v{T+5}, 12, v{RW_}
              v_add_u32 v{RW_}, {ROWS}, v{RW_}
              v_lshlrev_b32 v{L4}, 2, v{T}
              v_lshlrev_b32 v{KA}, 3, v{T}
              s_and_b32 s{sHD}, s{S_H}, 15
              s_lshl_b32 s{S_T}, s{sHD}, 10
              v_add_u32 v{PT_}, s{S_T}, v{PT_}
              s_lshl_b32 s{S_T}, s{sHD}, 15
              v_add_u32 v{RL_}, s{S_T}, v{RL_}
              s_lshl_b32 s{sPT}, s{sWK}, 20
              s_add_u32 s{sPT}, s{sPT}, {PT_OFF}
              s_lshl_b32 s{sCW}, s{sWK}, 13
              s_add_u32 s{sCW}, s{sCW}, {PG_OFF + F_CW}
              s_lshl2_add_u32 s{sCUR}, s{sHD}, s{sCW}
              s_or_b32 s{sCUR}, s{sCUR}, s{S_OOB}
              s_lshl_b32 s{sHD}, s{sHD}, 1
              s_lshr_b32 s{S_T}, s{S_W}, 1
              s_add_u32 s{sHD}, s{sHD}, s{S_T}
              s_mov_b32 s{sCNT}, 0
              s_mov_b32 s{sBUF}, 0
              s_mov_b32 s{sDF}, 0x80000000
              s_mov_b32 s{sMAXK}, 0
              s_mov_b32 s{sVB}, 0
              s_mov_b64 {sr(sHAD,2)}, 0
              s_sub_u32 s{sD}, s{sWK}, {2 + DL}
              s_and_b32 s{sD}, s{sD}, 3
              s_mov_b32 s{SRD_DBG}, s{P_OUT}
              s_mov_b32 s{SRD_DBG+1}, s{P_OUT+1}
              s_mov_b32 s{SRD_DBG+2}, {2048*1024}
              s_mov_b32 s{SRD_DBG+3}, 0x20000
              v_add_u32 v{KA}, {PG_OFF + F_RK[0]}, v{KA}
              v_mov_b32 v{KY+2}, v{KA}
              s_and_b32 s{S_T}, s{S_LW}, 2048
              s_add_u32 s{S_T}, s{S_T}, {ROWS}
              v_lshlrev_b32 v{RR_}, 5, v{V_LANE}
              v_add_u32 v{RR_}, s{S_T}, v{RR_}
              v_and_b32 v{VO}, 32, v{V_L16}
              v_lshrrev_b32 v{VR}, 2, v{VO}
              v_add_u32 v{VO}, v{VO}, v{VR}
              v_sub_u32 v{VO}, v{V_L16}, v{VO}
              v_add_u32 v{VO}, 8, v{VO}                     ; v_m of a lane: (lane & ~2)*16 + (lane & 2 ? 0 : 8)
              v_mov_b32 v{KR}, 0x80000000
              s_mov_b32 s{S_T}, {F_RK[0]}
              v_writelane_b32 v{KR}, s{S_T}, 0
              s_mov_b32 s{S_T}, {F_RKU}
              v_writelane_b32 v{KR}, s{S_T}, 1
              s_mov_b32 s{S_T}, {F_RKM}
              v_writelane_b32 v{KR}, s{S_T}, 2
              v_mov_b32 v{VR}, {VOTE}
              s_lshl_b32 s{S_T}, s{S_W}, 2
              v_add_u32 v{VW}, s{S_T}, v{VR}
              s_waitcnt vmcnt(0)""")
        self.unpack8(WR, XI)
        TH_ = 255
        k(f"v_mul_f32 v{TH_}, v{WR}, v{WR}")
        for j in range(1, 8):
            k(f"v_fma_f32 v{TH_}, v{WR+j}, v{WR+j}, v{TH_}")
        self.wsum(TH_, TT)
        k(f"""v_sqrt_f32 v{TH_}, v{TH_}
              v_sub_u32 v{TT}, {63 + KB_}, v{V_LANE}
              v_cvt_f32_u32 v{TT}, v{TT}
              v_log_f32 v{TT}, v{TT}
              v_mov_b32 v{TT+1}, {f32(opt.get("za", 1.95))}
              v_fmac_f32 v{TT+1}, {f32(opt.get("zb", 0.32) * math.log(2))}, v{TT}
              v_mul_f32 v{TH_}, v{TH_}, v{TT+1}
              v_or_b32 v{TH_}, 0x80000000, v{TH_}""")

        def capture(fn, *a):
            n0 = len(k.lines); fn(*a); out = k.lines[n0:]; del k.lines[n0:]; return out
        def hpage(dst, off, seg):
            k(f"""s_lshl_b32 s{dst}, s{seg}, 13
                  s_lshl2_add_u32 s{dst}, s{sHD}, s{dst}
                  s_add_u32 s{dst}, s{dst}, {PG_OFF + off}""")
        def spin(v, reload, cmp):
            A_, B_ = k.newlabel("L_aw"), k.newlabel("L_awd")
            k.label(A_)
            k(f"""{cmp}
                  s_cbranch_vccz {B_}
                  {reload}""")
            self.spend()
            k(f"""s_waitcnt vmcnt(0)
                  s_branch {A_}""")
            k.label(B_)
        GL = " glc" if opt.get("glc") else ""
        stubs = []
        st_load = f"buffer_load_dword v{ST}, v{SA_}, {WS}, 0 offen sc1"
        def plan_next(layer, s_rec=None, vec=False):
            out = capture(plan_next_, layer, s_rec)
            for x in out:
                if not (vec and x.startswith("s_buffer_load")):
                    k(x)
        def plan_next_(layer, s_rec):
            k(f"""s_lshl_b32 s{S_T}, s{sNX}, 5
                  s_add_u32 s{S_T}, s{S_T}, s{sHD}
                  s_mul_i32 s{sNQ}, s{S_T}, {24*KB}
                  s_lshl_b32 s{sNK}, s{S_T}, 12""")
            if layer == 0:
                hpage(S_T + 3, F_Q[0], sNX)
                k(f"""s_buffer_load_dword s{sST}, {WS}, s{S_T+3}{GL}
                      s_mov_b32 s{sST+1}, 1
                      s_add_u32 s{sNQ}, s{sNQ}, {QKV_OFF[0]}
                      s_add_u32 s{sNK}, s{sNK}, {KVM_OFF[0]}
                      v_mov_b32 v{SA_}, s{S_T+3}""")
            else:
                hpage(S_T + 3, F_Q[1], sNX)
                k(f"""s_cmp_lt_u32 s{sNX}, s{s_rec}
                      s_cselect_b32 s{S_T+1}, 0, {KVM_OFF[2] - KVM_OFF[1]}
                      s_cselect_b32 s{S_T+4}, 0, {F_KM[2] - F_KM[1]}
                      s_add_u32 s{S_T+4}, s{S_T+4}, s{S_T+3}
                      s_add_u32 s{S_T+4}, s{S_T+4}, {F_KM[1] - F_Q[1]}
                      s_buffer_load_dword s{sST+1}, {WS}, s{S_T+4}{GL}
                      s_add_u32 s{sNK}, s{sNK}, s{S_T+1}
                      s_add_u32 s{sNK}, s{sNK}, {KVM_OFF[1]}
                      s_cmp_eq_u32 s{sNX}, s{s_rec}
                      s_cselect_b32 s{S_T+1}, {QKV_OFF[2] - QKV_OFF[1]}, 0
                      s_cselect_b32 s{S_T+2}, {F_Q[2] - F_Q[1]}, 0
                      s_add_u32 s{S_T+3}, s{S_T+3}, s{S_T+2}
                      s_buffer_load_dword s{sST}, {WS}, s{S_T+3}{GL}
                      s_add_u32 s{sNQ}, s{sNQ}, s{S_T+1}
                      s_add_u32 s{sNQ}, s{sNQ}, {QKV_OFF[1]}
                      v_mov_b32 v{SA_}, s{S_T+3}
                      v_writelane_b32 v{SA_}, s{S_T+4}, 1""")
        NT = " nt" if opt.get("nt") else ""
        LP = opt.get("lp", "sc1")
        def fetch_ops(q, kv):
            out = [f"s_and_b32 s{S_T+1}, s{S_W}, 1", f"s_mul_i32 s{S_T+2}, s{S_T+1}, {12*KB}",
                   f"s_add_u32 s{q}, s{q}, s{S_T+2}", f"s_lshl_b32 s{S_T+1}, s{S_T+1}, 11", f"s_add_u32 s{kv}, s{kv}, s{S_T+1}",
                   f"s_and_b32 s{S_T+3}, s{S_LW}, 2048", f"s_lshl_b32 s{S_T+3}, s{S_T+3}, 4",
                   f"s_xor_b32 s{S_T+4}, s{sBUF}, {64*KB}", f"s_add_u32 s{S_T+3}, s{S_T+3}, s{S_T+4}",
                   f"s_add_u32 s{S_T+2}, s{S_T+2}, s{S_T+3}", f"s_add_u32 s{S_T+1}, s{S_T+1}, s{S_T+3}"]
            for i in range(3):
                out.append(f"s_add_u32 m0, s{S_T+2}, {i*4096}")
                if i:
                    out.append(f"s_add_u32 s{q}, s{q}, 4096")
                out += [f"buffer_load_dwordx4 v{V_L16}, {WS}, s{q} offen offset:{c*1024} sc1{NT} lds" for c in range(4)]
            out.append(f"s_add_u32 m0, s{S_T+1}, {24*KB}")
            out += [f"buffer_load_dwordx4 v{V_L16}, {WS}, s{kv} offen offset:{c*1024} {LP} lds" for c in range(2)]
            return out
        sLAY, sNS = S_B, S_CNT
        pub = [f"buffer_store_dword v{DF}, off, {WS}, s{sDF} sc1", f"s_mov_b32 s{sDF}, 0x80000000"]
        def flush_pub():
            k("s_waitcnt vmcnt(0)")
            for x in pub:
                k(x)
        def look():
            for kk in range(4):
                k(f"buffer_load_dwordx4 {vr(F+4*kk,4)}, v{V_L16}, {WS}, s{sFM} offen offset:{kk*1024} {LP}")
            for i in range(4):
                k(f"buffer_load_dwordx2 {vr(VM+2*i,2)}, v{VO}, {WS}, s{sFM} offen offset:{i*1024} {LP}")
        key_load = f"buffer_load_dwordx2 {vr(KY,2)}, v{KY+2}, {WS}, 0 offen sc1"
        def keys_issue(t):
            k(f"""v_lshrrev_b32 v{KY+2}, 4, v{V_LANE}
                  s_sub_u32 s{t}, s{sNX}, {KB_ + 3}
                  v_add_u32 v{KY+2}, s{t}, v{KY+2}
                  v_max_i32 v{KY+2}, 0, v{KY+2}
                  v_lshl_add_u32 v{KY+2}, v{KY+2}, 13, v{KA}
                  {key_load}""")
        def fcheck():
            out = []
            for kk in range(4):
                f = F + 4 * kk
                out.append(f"v_max3_u32 v{TT}, v{f}, v{f+1}, v{TT if kk else f+2}")
                out.append(f"v_max3_u32 v{TT}, v{f+2}, v{f+3}, v{TT}")
            return out
        def vcheck():
            for i in range(4):
                k(f"v_max3_u32 v{TT}, v{VM+2*i}, v{VM+2*i+1}, v{TT}")
            k(f"v_cmp_eq_u32 vcc, -1, v{TT}")
        def pre():
            k(f"""s_xor_b32 s{sBUF}, s{sBUF}, {64*KB}
                  s_and_b32 s{S_T}, s{S_LW}, 2048
                  s_lshl_b32 s{S_T}, s{S_T}, 4
                  s_add_u32 s{S_T}, s{S_T}, s{sBUF}
                  v_add_u32 v{RK}, s{S_T}, v{V_L16}
                  v_add_u32 v{TT+1}, s{S_T}, v{VO}
                  s_and_b32 s{S_T}, s{S_LW}, 1024
                  s_lshl_b32 s{S_T}, s{S_T}, 2
                  v_add_u32 v{TT}, s{S_T}, v{RK}
                  s_mov_b32 s{sFM}, s{sNK}
                  s_mov_b32 s{sNS}, s{sNX}""")
            for kk in range(4):
                k(f"ds_read_b128 {vr(Q+4*kk,4)}, v{TT} offset:{16*KB + kk*1024}")
                k(f"ds_read_b128 {vr(KK+4*kk,4)}, v{RK} offset:{kk*1024}")
                k(f"ds_read_b128 {vr(KK+16+4*kk,4)}, v{RK} offset:{4096 + kk*1024}")
            late = [f"ds_read_b128 {vr(F+4*i,4)}, v{RK} offset:{24*KB + i*1024}" for i in range(4)]
            late += [f"ds_read_b64 {vr(VM+2*i,2)}, v{TT+1} offset:{24*KB + i*1024}" for i in range(4)]
            late += [f"ds_read_b128 {vr(V+4*i,4)}, v{RK} offset:{8*KB + i*1024}" for i in range(8)]
            for kk in range(4):
                k(f"s_waitcnt lgkmcnt({9 - 3*kk + 2*kk})")
                q = vr(Q + 4 * kk, 4)
                k(f"v_mfma_f32_16x16x32_bf16 {vr(S,4)}, {vr(KK+4*kk,4)}, {q}, {vr(TX0,4) if kk == 0 else vr(S,4)}")
                k(late.pop(0))
                k(f"v_mfma_f32_16x16x32_bf16 {vr(S+4,4)}, {vr(KK+16+4*kk,4)}, {q}, {vr(TX1,4) if kk == 0 else vr(S+4,4)}")
                k(late.pop(0))
            k("s_waitcnt lgkmcnt(4)")
            for kk in range(4):
                k(f"v_mfma_f32_16x16x32_bf16 {vr(S+8,4)}, {vr(F+4*kk,4)}, {vr(Q+4*kk,4)}, {'0' if kk == 0 else vr(S+8,4)}")
                k(late.pop(0)); k(late.pop(0))
        poll = f"buffer_load_dword v{FL}, v{L4}, {WS}, s{sCW} offen sc1"
        pcmp = f"v_cmp_gt_u32 vcc, s{sCNT}, v{FL}"
        def rloads(RD):
            out = [f"s_xor_b32 s{sRB}, s{sPT}, {PTX}"]
            for i in range(8):
                if i:
                    out.append(f"s_add_u32 s{sRB}, s{sRB}, 4096")
                out.append(f"buffer_load_dwordx4 {vr(RD+4*i,4)}, v{RL_}, {WS}, s{sRB} offen sc1")
            return out
        RD2 = 192
        def skip_test(t):
            return [f"s_bfe_u32 s{S_T}, s{sCNT}, 0x10002", f"v_lshrrev_b32 v{t}, s{S_T}, v{FL}", f"v_and_b32 v{t}, 1, v{t}",
                    f"v_cmp_ne_u32 vcc, 0, v{t}"]
        def post(fetch=False, tail=None, skip=None):
            self.softmax(S, P, TT)
            k(f"v_mov_b32 v{P+7}, v{P+4}")
            if fetch:
                k(poll)
            k(f"v_mfma_f32_16x16x32_bf16 {vr(Lr,4)}, {vr(ONES,4)}, {vr(P,4)}, 0")
            for i in range(2):
                k(f"v_mfma_f32_16x16x32_bf16 {vr(O+4*i,4)}, {vr(V+4*i,4)}, {vr(P,4)}, 0")
            k(f"v_mfma_f32_16x16x16_bf16 {vr(Lr,4)}, {vr(ONES,2)}, {vr(P+4,2)}, {vr(Lr,4)}")
            for i in range(2, 8):
                k(f"v_mfma_f32_16x16x32_bf16 {vr(O+4*i,4)}, {vr(V+4*i,4)}, {vr(P,4)}, 0")
            k(f"v_rcp_f32 v{Lr}, v{Lr}")
            def fin(i):
                out = [f"v_pk_mul_f32 {vr(O+8*i+e,2)}, {vr(O+8*i+e,2)}, {vr(Lr,2)} op_sel_hi:[1,0]" for e in range(0, 8, 2)]
                out += [f"v_cvt_pk_bf16_f32 v{F+4*i+r}, v{O+8*i+r}, v{O+8*i+4+r}" for r in range(4)]
                out += [f"ds_write_b128 v{OW_}, {vr(F+4*i,4)} offset:{i*1024}"]
                return out
            side = fin(0)
            for i in range(8):
                k(f"v_mfma_f32_16x16x16_bf16 {vr(O+4*i,4)}, {vr(VM+2*(i>>1),2)}, {vr(P+4+2*(i&1),2)}, {vr(O+4*i,4)}")
                if i >= 4:
                    k(side.pop(0)); k(side.pop(0))
            rest = side + fin(1) + fin(2) + fin(3)
            if fetch:
                n0 = opt.get("pollat", 10)
                for x in rest[:n0]:
                    k(x)
                rest = rest[n0:]
                RT_, BK = k.newlabel("L_ap"), k.newlabel("L_apb")
                k(f"""s_waitcnt vmcnt(0)
                      {pcmp}""")
                for x in rest[:4]:
                    k(x)
                rest = rest[4:]
                k(f"s_cbranch_vccnz {RT_}")
                k.label(BK)
                def stub():
                    k.label(RT_)
                    spin(FL, poll, pcmp)
                    k(f"s_branch {BK}")
                stubs.append(stub)
                self.mark(37)
                if skip:
                    for x in skip_test(TT) + rest[:3]:
                        k(x)
                    rest = rest[3:]
                    k(f"""s_cbranch_vccnz {skip}
                          s_add_u32 s{sD}, s{sD}, 4""")
                rl = rloads(RD2)
                while rl or rest:
                    for _ in range(2):
                        if rl: k(rl.pop(0))
                    for _ in range(2):
                        if rest: k(rest.pop(0))
            for x in rest:
                k(x)
            if tail:
                k(tail)
            k("""s_waitcnt lgkmcnt(0)
                 s_barrier""")
        def pop_todo(n):
            for _ in range(n):
                k(f"""s_ff1_i32_b64 s{sNX}, {sr(sTODO,2)}
                      s_bitset0_b64 {sr(sTODO,2)}, s{sNX}""")
            k(f"s_min_u32 s{sNX}, s{sNX}, 64")
        DLAST = opt.get("dlast", 62)
        def no_more():
            k(f"""v_subrev_u32 v{VT}, s{sD}, v{V_LANE}
                  v_and_b32 v{VT}, 0x80000003, v{VT}
                  v_cmp_eq_u32 vcc, 0, v{VT}
                  v_lshlrev_b32 v{VT}, 2, v{V_LANE}
                  v_mov_b32 v{VT+1}, 0x40000000
                  v_cndmask_b32 v{VT}, v{VT+1}, v{VT}, vcc
                  v_mov_b32 v{VT+1}, 3
                  s_or_b32 s{S_T+3}, s{sHD}, s{S_W}
                  s_mov_b32 s{S_T+3}, {DEC}
                  s_cmov_b32 s{S_T+3}, 0x80000000
                  buffer_store_dword v{VT+1}, v{VT}, {WS}, s{S_T+3} offen sc1""")
        def plan_after_d():
            F_, J_ = k.newlabel("L_ae"), k.newlabel("L_af")
            k(f"""s_cmp_lg_u32 s{sKO}, {F_RK[1]}
                  s_cbranch_scc1 {F_}
                  s_mov_b32 s{sNX}, s{sBN}
                  s_mov_b32 s{sX}, 0""")
            plan_next(0)
            k(f"s_branch {J_}")
            k.label(F_)
            pop_todo(1)
            k(f"s_lshr_b32 s{S_T+5}, s{sSEL}, 5")
            plan_next(1, S_T + 5)
            k.label(J_)
        def plan_after_b(vec=False):
            NB_, J_ = k.newlabel("L_ab"), k.newlabel("L_aj")
            NM_ = k.newlabel("L_am")
            k(f"""s_add_u32 s{sBN}, s{sNS}, 4
                  s_cmp_lt_u32 s{sNS}, {KB_}
                  s_cbranch_scc1 {NB_}
                  s_cmp_ge_u32 s{sNS}, {DLAST}
                  s_cbranch_scc1 {NM_}""")
            def stub():
                k.label(NM_)
                no_more()
                k(f"s_branch {NB_}")
            stubs.append(stub)
            spin(KY, f"s_sleep {opt.get('slt', 4)}\n" + key_load, f"v_min_u32 v{TT+1}, v{KY}, v{KY+1}\nv_cmp_eq_u32 vcc, 0, v{TT+1}")
            k(f"v_max_u32 v{KY}, v{KY}, v{KY+1}")
            self.wmax_u32(KY, KY + 1)
            k(f"""v_readfirstlane_b32 s{S_T}, v{KY}
                  v_readlane_b32 s{S_T+1}, v{TH_}, s{sNS}
                  s_max_u32 s{sMAXK}, s{sMAXK}, s{S_T}
                  s_cmp_lt_u32 s{sNS}, {DL}
                  s_cbranch_scc1 {NB_}
                  s_mov_b32 s{sNX}, s{sD}
                  s_and_b32 s{sSEL}, s{sMAXK}, 0x7ff
                  s_sub_u32 s{sSEL}, 2047, s{sSEL}
                  s_cmp_lt_u32 s{sMAXK}, s{S_T+1}
                  s_cselect_b32 s{sSEL}, 4095, s{sSEL}
                  s_lshr_b32 s{S_T+5}, s{sSEL}, 5
                  s_mov_b32 s{sX}, 1""")
            plan_next(1, S_T + 5, vec)
            k(f"s_branch {J_}")
            k.label(NB_)
            k(f"""s_mov_b32 s{sNX}, s{sBN}
                  s_mov_b32 s{sX}, 0""")
            plan_next(0, None, vec)
            k.label(J_)
        def exch1(vote=0):
            k(f"""s_add_u32 s{sCNT}, s{sCNT}, 4
                  s_bfe_u32 s{S_T}, s{sCNT}, 0x10002
                  s_bitset{vote}_b32 s{sVB}, s{S_T}
                  s_or_b32 s{S_T}, s{sVB}, s{sCNT}
                  v_mov_b32 v{CN}, s{S_T}
                  s_xor_b32 s{sPT}, s{sPT}, {PTX}
                  s_waitcnt vmcnt(0) lgkmcnt(0)
                  s_barrier
                  buffer_store_dword v{CN}, off, {WS}, s{sCUR}{self.loc}""")
            for x in pub:
                k(x)
            self.mark(36)
        def reduce_items(RD, RA):
            out = []
            for i in range(8):
                d = vr(RA + 4 * (i >> 2), 4)
                out.append(("wv", "RD%d" % i))
                out.append(f"v_mfma_f32_16x16x32_bf16 {d}, {vr(SEL,4)}, {vr(RD+4*i,4)}, {'0' if i % 4 == 0 else d}")
                if i == 6:
                    out.append(f"ds_write_b128 v{RW_}, {vr(RA,4)}")
            out.append(("gap", 2))
            out.append(f"ds_write_b128 v{RW_}, {vr(RA+4,4)} offset:2048")
            return out
        def reduce_now(RD, RA, nmid=0):
            i = 0
            for x in reduce_items(RD, RA):
                if isinstance(x, str):
                    k(x)
                elif x[0] == "wv":
                    k(f"s_waitcnt vmcnt({7 - i + nmid})"); i += 1
            k(f"""s_waitcnt lgkmcnt(0)
                  s_barrier""")
            self.mark(38)
        def exch2(mid=None, nmid=0):
            WL = k.newlabel("L_aq")
            k.label(WL)
            k(poll)
            self.spend()
            k(f"""s_waitcnt vmcnt(0)
                  {pcmp}
                  s_cbranch_vccnz {WL}""")
            self.mark(37)
            for x in rloads(160):
                k(x)
            if mid:
                mid()
            reduce_now(160, 192, nmid)
        def row(layer, odd, regs, seg):
            A, PKr, Y, TM, X = regs
            if layer and odd:
                return [], [("mark", "xi")], []
            rd_ = [f"ds_read_b128 {vr(A,4)}, v{RR_}", ("t", "A", f"ds_read_b128 {vr(A+4,4)}, v{RR_} offset:16")]
            out = capture(self.unpack8, X, XI)
            if layer:
                NG_, BK = k.newlabel("L_ag"), k.newlabel("L_agb")
                out.append(f"v_readfirstlane_b32 s{R_+4}, v{GK}")
                out.append(f"s_cmp_eq_u32 s{R_+4}, 0\ns_cbranch_scc1 {NG_}\n{BK}:")
                def stub():
                    k.label(NG_)
                    hpage(R_ + 3, F_RK[1], seg)
                    self.word_wait(R_ + 3, R_ + 4, va=GK)
                    k(f"s_branch {BK}")
                stubs.append(stub)
            out.append(("mark", "xi"))
            out += [f"s_lshl_b32 s{R_}, s{seg}, 5", f"s_add_u32 s{R_}, s{R_}, s{sHD}", f"s_lshl_b32 s{R_+1}, s{R_}, 10",
                    f"s_add_u32 s{R_+2}, s{R_+1}, {X1_OFF[layer] if layer or odd else X2_OFF}", ("mark", "early")]
            def body():
                self.pack8(PKr, A)
                self.unpack8(A, PKr)
                self.add8(X, A)
                self.pack8(PKr, X)
                if layer or odd:
                    k(f"buffer_store_dwordx4 {vr(PKr,4)}, v{V_L16}, {WS}, s{R_+2} offen sc1")
                self.unpack8(X, PKr)
                self.layernorm(X, PKr + 4, TM)
                self.unpack8(Y, PKr + 4)
                if not odd:
                    self.add8(X, Y)
                    self.pack8(A, X)
                    if layer == 0:
                        k(f"buffer_store_dwordx4 {vr(A,4)}, v{V_L16}, {WS}, s{R_+2} offen sc1")
                        self.unpack8(X, A)
                        self.layernorm(X, A + 4, TM)
                        k(f"""s_add_u32 s{R_+2}, s{R_+1}, {H_OFF[1]}
                              buffer_store_dwordx4 {vr(A+4,4)}, v{V_L16}, {WS}, s{R_+2} offen sc1
                              v_mov_b32 v{DF}, 1""")
                        hpage(sDF, F_HX, seg)
                        return
                    k(f"buffer_store_dwordx4 {vr(A,4)}, v{V_L16}, {OUT}, s{R_+1} offen sc1")
                k(f"v_pk_mul_f32 {vr(KEY,2)}, {vr(Y,2)}, {vr(WR,2)}")
                for j in range(2, 8, 2):
                    k(f"v_pk_fma_f32 {vr(KEY,2)}, {vr(Y+j,2)}, {vr(WR+j,2)}, {vr(KEY,2)}")
                k(f"v_add_f32 v{KEY}, v{KEY}, v{KEY+1}")
                self.wsum(KEY, KEY + 1)
                self.round1(KEY)
                k(f"""v_ashrrev_i32 v{KEY+1}, 31, v{KEY}
                      v_or_b32 v{KEY+1}, 0x80000000, v{KEY+1}
                      v_xor_b32 v{KEY}, v{KEY}, v{KEY+1}
                      v_and_b32 v{KEY}, 0xffff0000, v{KEY}
                      s_sub_u32 s{R_+2}, {2047 + 2048}, s{R_}
                      v_or_b32 v{DF}, s{R_+2}, v{KEY}""")
                if layer == 0:
                    hpage(R_ + 2, 0, seg)
                    k(f"buffer_store_dword v{DF}, v{KR}, {WS}, s{R_+2} offen sc1")
                else:
                    hpage(sDF, 0, seg)
                    k(f"s_add_u32 s{sDF}, s{sDF}, s{sKO}")
            return rd_, out, [("wl", "A")] + capture(body)

        FINAL, T3, NXB, LATE, DRAIN, ROWS_, RD_, GOB, SLOW, SLB, FIN2, PL, PC, T3E, T3X = (k.newlabel("L_aa") for _ in range(15))
        if opt.get("ptwarm", 1) and not self.loc:
            for _ in range(2):
                for x in rloads(160):
                    k(x.replace(" sc1", ""))
                k(f"s_xor_b32 s{sPT}, s{sPT}, {PTX}")
        k(f"""s_cmp_lt_u32 s{sWK}, 2
              s_cbranch_scc1 {FINAL}
              s_sub_u32 s{sNX}, s{sWK}, 2
              s_mov_b32 s{sX}, 0
              s_mov_b32 s{sKO}, {F_RK[1]}""")
        plan_next(0)
        k(f"s_branch {SLOW}")

        bread = lambda u: [("t", "B%d%d" % (u, g), f"ds_read_b128 {vr(B+u*32+4*g,4)}, v{OB_} offset:{((g>>2)*2+u)*4096 + (g&3)*1024}") for g in range(8)]
        def head():
            h = R_ + 5
            return [("need", "xi"),
                    f"s_lshl_b32 s{h}, s{S_SEG}, 5", f"s_add_u32 s{h}, s{h}, s{sHD}", f"s_lshl_b32 s{h+1}, s{h}, 10",
                    f"s_lshl_b32 s{h+2}, s{S_SEG}, 10", f"s_add_u32 s{h+2}, s{h+2}, {X2P_OFF - X2_OFF}",
                    f"s_cmp_eq_u32 s{h}, s{sSEL}\ns_cselect_b32 s{h+2}, s{h+2}, s{h+1}",
                    f"s_add_u32 s{h+2}, s{h+2}, {X2_OFF}",
                    f"s_mov_b32 s{SRD_A+2}, {WS_SIZE}",
                    f"""s_cmp_eq_u32 s{sLAY}, 0
                        s_cselect_b32 s{h+2}, s{h+1}, s{h+2}
                        s_cselect_b64 {sr(SRD_A,2)}, {sr(P_X,2)}, {sr(P_WS,2)}
                        s_cmov_b32 s{SRD_A+2}, {2048*1024}""",
                    f"buffer_load_dwordx4 {vr(XI,4)}, v{V_L16}, {SA}, s{h+2} offen sc1",
                    f"s_lshr_b32 s{h+1}, s{sSEL}, 5",
                    f"s_cmp_lt_u32 s{S_SEG}, s{h+1}\ns_cselect_b32 s{h+1}, 1, 2",
                    f"v_mov_b32 v{VT+4}, s{h+1}",
                    f"s_lshl2_add_u32 s{h+2}, s{S_SEG}, {DEC}",
                    f"s_lshl_b32 s{h+1}, s{sHD}, 16", f"s_add_u32 s{h+1}, s{h+1}, s{sLAY}", f"s_add_u32 s{h+1}, s{h+1}, s{sKO}",
                    f"s_cmp_eq_u32 s{h+1}, {F_RK[1] + 1}\ns_cselect_b32 s{h+2}, s{h+2}, 0x80000000",
                    f"buffer_store_dword v{VT+4}, off, {WS}, s{h+2} sc1",
                    f"s_bitcmp1_b64 {sr(sHAD,2)}, s{S_SEG}\ns_cselect_b32 s{h+1}, {F_RK[1] - F_RK[0]}, 0"] \
                + capture(hpage, h, F_RK[0], S_SEG) \
                + [f"s_add_u32 s{h}, s{h}, s{h+1}", f"buffer_load_dword v{GK}, off, {WS}, s{h} sc1"] + capture(keys_issue, h)
        def pack(u):
            out = []
            for r in range(4):
                for p in range(4):
                    a_ = ACC + u * 32 + p * 8
                    out.append(f"v_cvt_pk_bf16_f32 v{PK+u*16+r*4+p}, v{a_+r}, v{a_+4+r}")
                out.append(f"s_add_u32 s{S_T+6}, s{sPT}, {(16*u+r)*16*KB}")
                out.append(f"buffer_store_dwordx4 {vr(PK+u*16+r*4,4)}, v{PT_}, {WS}, s{S_T+6} offen{self.loc}")
            return out
        GAP = opt.get("gap", 4)
        vote_rd = [f"ds_read_b128 {vr(VT,4)}, v{VR}", ("gap", 6), "s_waitcnt lgkmcnt(0)",
                   f"v_or3_b32 v{VT}, v{VT}, v{VT+1}, v{VT+2}", f"v_or_b32 v{VT}, v{VT}, v{VT+3}", ("gap", 1),
                   f"v_readfirstlane_b32 s{sLATE}, v{VT}"]
        def t3(pend):
            vm = ["RD%d" % i for i in range(8)] if pend else ["old"]
            lg = []
            seen = set()
            def emit(x):
                tag = None
                if not isinstance(x, str):
                    if x[0] == "mark":
                        seen.add(x[1]); return 0
                    if x[0] in ("wv", "wl"):
                        q_ = vm if x[0] == "wv" else lg
                        n = len(q_) - 1 - max(i for i, t in enumerate(q_) if t == x[1])
                        k(f"s_waitcnt {'vmcnt' if x[0] == 'wv' else 'lgkmcnt'}({min(n, 63 if x[0] == 'wv' else 15)})")
                        return 1
                    tag, x = x[1], x[2]
                c = 0
                for ln in x.split("\n"):
                    ln = ln.strip()
                    k(ln)
                    if ln.startswith("buffer"):
                        vm.append("copy" if ln.endswith("lds") else tag); c += 2
                    elif ln.startswith("ds_"):
                        lg.append(tag); c += 2
                    elif ln.startswith("v_mfma"):
                        c += 2
                    elif not ln.endswith(":"):
                        c += 1
                return c
            self.mark(34)
            n_start = len(k.lines)
            b0 = bread(0)
            for x in b0[:2]:
                emit(x)
            fo = fetch_ops(S_T + 8, S_T + 9)
            k(f"""s_min_u32 s{S_T}, s{sST}, s{sST+1}
                  s_cmp_lt_u32 s{sNX}, 64
                  s_cselect_b32 s{S_T}, s{S_T}, 0
                  s_cmp_eq_u32 s{S_T}, 0
                  s_cselect_b32 s{sLATE}, 0x80000000, 0
                  v_mov_b32 v{VT}, s{sLATE}
                  s_or_b32 s{S_T+8}, s{sNQ}, s{sLATE}
                  s_or_b32 s{S_T+9}, s{sNK}, s{sLATE}""")
            for _ in range(4):
                k(fo.pop(0))
            if pend:
                qx = [("at", opt.get("redat", 6))]
                for x in reduce_items(RD2, S):
                    qx += [x, ("gap", 1)] if isinstance(x, str) and x.startswith("v_mfma") else [x]
                r0, early, r1 = row(pend[0], pend[1], (96, 104, 112, 120, 88), sPS)
                qx += [("gap", 4), ("need", "W"), "s_waitcnt lgkmcnt(0)\ns_barrier"] + r0 + [("mark", "bar"), ("gap", 5)] + r1
            else:
                early = []
                qx = [("mark", "xi"), ("need", "b1"), ("gap", 4), "s_waitcnt lgkmcnt(0)\ns_barrier", ("mark", "bar"),
                      ("at", opt.get("pubat", 36)), ("wv", "old")] + pub
            if opt.get("unpk", 1):
                qx = [y for x in qx for y in unpk(x)]
            pk0 = pack(0)
            cv0 = [x for x in pk0 if x.startswith("v_")]
            st0 = [y for x in pk0 if not x.startswith("v_") for y in ((x, ("gap", opt.get("stgap", 3))) if x.startswith("buffer") else (x,))]
            queues = [fo, b0[2:] + [f"ds_write_b32 v{VW}, v{VT}", ("mark", "W")] + bread(1) + [("mark", "b1")], [("need", "bar")] + list(vote_rd),
                      early + head(), [("at", 66)] + cv0 + [("at", opt.get("stat", 92))] + st0, qx]
            order = [5, 0, 1, 2, 3, 4]
            def kind_of(x):
                x = x if isinstance(x, str) else (x[2] if x[0] == "t" else "s_")
                return "m" if x.startswith("v_mfma") else "v" if x.startswith("v_") else "x" if x.startswith(("ds_", "buffer")) else "s"
            def stalls(x):
                x = x if isinstance(x, str) else (x[2] if x[0] == "t" else None)
                if x is None:
                    return False
                c = Ins(x.split("\n")[0].strip())
                d = 1 if k.lines[-1].startswith("v_mfma") else 0
                for ln in reversed(k.lines[-4:]):
                    if ln.endswith(":"):
                        continue
                    if need(Ins(ln), c) > d:
                        return True
                    d += 1
                return False
            hold = [0] * len(queues)
            b1_before_bar = False
            cost = lambda x: 0 if not isinstance(x, str) and x[0] != "t" else 1.3
            for m in range(128):
                u, g, t = m >> 6, (m >> 3) & 7, m & 7
                if t == 0 and ("bar" not in seen or not b1_before_bar):
                    emit(("wl", "B%d%d" % (u, g)))
                if m in (32, 64, 96):
                    self.mark(39 + m // 32)
                d = vr(ACC + u * 32 + t * 4, 4)
                k(f"v_mfma_f32_16x16x32_bf16 {d}, {vr(B+u*32+4*g,4)}, {ar((g*8+t)*4,4)}, {'0' if g == 0 else d}")
                left = sum(kind_of(x) == "v" for q_ in queues for x in q_)
                bud = 3 if left <= 2 * (opt.get("rowend", 116) - m) or "bar" not in seen else 4
                n = 0
                def pick(kinds):
                    for qi in order:
                        q_ = queues[qi]
                        while q_ and not isinstance(q_[0], str) and q_[0][0] in ("at", "gap", "need", "mark") and hold[qi] <= m:
                            kind, val = q_[0]
                            if kind == "need" and val not in seen:
                                break
                            if kind == "at": hold[qi] = val
                            if kind == "gap": hold[qi] = m + val
                            if kind == "mark": seen.add(val)
                            q_.pop(0)
                        if q_ and hold[qi] <= m and not (not isinstance(q_[0], str) and q_[0][0] == "need") \
                                and kind_of(q_[0]) in kinds and not stalls(q_[0]):
                            x = q_.pop(0)
                            if isinstance(x, str) and x.endswith("lds"):
                                hold[qi] = m + GAP
                            emit(x)
                            return kind_of(x), (x.count("\n") + 1 if isinstance(x, str) else 1)
                    return None
                if "b1" in seen and not any(isinstance(l_, str) and l_ == "s_barrier" for l_ in k.lines[n_start:]):
                    b1_before_bar = True
                if "bar" in seen:
                    order = [0, 1, 2, 3, 5, 4] if m < 84 else [0, 1, 2, 3, 4, 5]
                r_ = pick("x") or pick("s")
                n = r_[1] if r_ else 1
                while n < bud:
                    r_ = pick("vsm")
                    if not r_:
                        break
                    if r_[0] == "m":
                        r_ = pick("x") or pick("s")
                        n = r_[1] if r_ else 1
                        continue
                    n += r_[1]
                if m == 63:
                    assert "b1" in seen and "bar" in seen
                if "bar" in seen and pend and not (pend[0] and pend[1]):
                    assert "early" in seen
            assert not any(queues[:4]), [len(q_) for q_ in queues]
            self.t3left = getattr(self, "t3left", []) + [(pend, len(queues[4]), len(queues[5]))]
            self.mark(35)
            pk1 = queues[4] + pack(1)
            while pk1 or qx:
                for q_ in (pk1, qx):
                    if q_:
                        x = q_.pop(0)
                        if isinstance(x, str) or x[0] not in ("at", "gap"):
                            emit(x)
            k(f"""s_cmp_lg_u32 s{sLATE}, 0
                  s_cbranch_scc1 {LATE}""")
            emit(("wv", "copy"))
        p00 = list(self.pend)
        V1 = k.newlabel("L_av")
        k.label(T3X)
        k(f"""s_bitcmp1_b32 s{S_W}, 0
              s_cbranch_scc1 {V1}""")
        for i in range(2):
            if i:
                k.label(V1)
            self.pend = list(p00)
            t3((1, i))
            if self.stamps and i == 0:
                k(f"s_mov_b32 s101, s{S_SEG}\ns_mov_b32 s{S_SEG}, s{sPS}")
                self.ev(22, va=240)
                k(f"s_mov_b32 s{S_SEG}, s101")
            k(f"s_branch {T3E}")
        k.label(T3)
        self.pend = list(p00)
        t3(None)
        k.label(T3E)
        k("s_barrier")
        pre()
        k(f"""s_cmp_eq_u32 s{sX}, 0
              s_cbranch_scc1 {NXB}""")
        p0 = list(self.pend)
        LATE2, SKIP = k.newlabel("L_al"), k.newlabel("L_ak")
        exch1()
        plan_after_d()
        BD = k.newlabel("L_ah")
        post(True, skip=SKIP, tail=f"""s_cmp_eq_u32 s{sLAY}, 0
                                       s_cbranch_scc1 {BD}""")
        p2 = list(self.pend)
        self.flush(va=240)
        k(f"""s_mov_b32 s{sPS}, s{S_SEG}
              s_mov_b32 s{S_SEG}, s{sNS}
              s_branch {T3X}""")
        k.label(BD)
        self.pend = p2
        reduce_now(RD2, 160)
        k(f"""s_mov_b32 s{sMODE}, 1
              s_branch {ROWS_}""")
        k.label(NXB)
        self.pend = list(p0)
        exch1()
        p1 = list(self.pend)
        k(f"""s_cmp_eq_u32 s{sLAY}, 0
              s_cbranch_scc1 {DRAIN}
              s_mov_b32 s{sPS}, s{S_SEG}
              s_mov_b32 s{sMODE}, 3""")
        self.flush(va=240)
        k(f"s_branch {SLB}")
        k.label(DRAIN)
        self.pend = list(p1)
        exch2(mid=look, nmid=8)
        k(f"""s_mov_b32 s{sMODE}, 0
              s_branch {ROWS_}""")
        k.label(LATE)
        self.pend = list(p0)
        k(f"""s_add_u32 s{S_T}, s{sX}, s{sKO}
              s_cmp_lg_u32 s{S_T}, {F_RK[1] + 1}
              s_cbranch_scc1 {LATE2}""")
        exch1(1)
        plan_after_d()
        k(f"s_branch {SKIP}")
        k.label(LATE2)
        self.pend = list(p0)
        exch1()
        k.label(SKIP)
        exch2()
        k(f"s_mov_b32 s{sMODE}, 2")
        k.label(ROWS_)
        RV = [k.newlabel("L_ar") for _ in range(3)]
        k(f"""s_cmp_lg_u32 s{sLAY}, 0
              s_cbranch_scc1 {RV[2]}
              s_bitcmp1_b32 s{S_W}, 0
              s_cbranch_scc1 {RV[1]}""")
        for i in range(3):
            k.label(RV[i])
            if i == 2:
                k(f"""s_bitcmp1_b32 s{S_W}, 0
                      s_cbranch_scc1 {RD_}""")
            for x in sum(row(i >> 1, i & 1, (160, 168, 176, 184, 200), S_SEG), []):
                if isinstance(x, str):
                    k(x)
                elif x[0] == "t":
                    k(x[2])
                elif x[0] == "wl":
                    k("s_waitcnt lgkmcnt(0)")
            if i < 2:
                k(f"s_branch {RD_}")
        k.label(RD_)
        self.flush(va=240)
        if self.stamps:
            E1, E2 = k.newlabel("L_ev"), k.newlabel("L_ev")
            k(f"s_cmp_lg_u32 s{sLAY}, 0\ns_cbranch_scc1 {E1}")
            self.ev(12, va=240)
            k(f"s_branch {E2}")
            k.label(E1)
            self.ev(22, va=240)
            k.label(E2)
        GOD = k.newlabel("L_ad")
        k(f"""s_cmp_eq_u32 s{sMODE}, 1
              s_cbranch_scc1 {GOD}
              s_cmp_eq_u32 s{sMODE}, 0
              s_cbranch_scc1 {GOB}
              s_cmp_ge_u32 s{sNX}, 64
              s_cbranch_scc1 {FIN2}""")
        k.label(SLOW)
        flush_pub()
        k(f"""v_mov_b32 v{ST}, 0
              s_mov_b32 s{sMODE}, 0""")
        spin(ST, st_load, f"v_cmp_eq_u32 vcc, 0, v{ST}")
        k(f"""s_mov_b32 s{S_T+8}, s{sNQ}
              s_mov_b32 s{S_T+9}, s{sNK}""")
        for x in fetch_ops(S_T + 8, S_T + 9):
            k(x)
        keys_issue(S_T)
        k(f"""s_waitcnt vmcnt(0) lgkmcnt(0)
              s_barrier""")
        self.ev(20, va=240)
        pre()
        k(f"""s_waitcnt lgkmcnt(0)
              s_cmp_eq_u32 s{sX}, 0
              s_cbranch_scc1 {SLB}""")
        plan_after_d()
        post()
        k.label(GOD)
        k(f"""s_mov_b32 s{S_SEG}, s{sNS}
              s_mov_b32 s{sLAY}, 1
              s_branch {T3}""")
        k.label(GOB)
        flush_pub()
        k.label(SLB)
        k(f"""s_mov_b32 s{S_SEG}, s{sNS}
              s_mov_b32 s{sLAY}, 0""")
        plan_after_b(True)
        k(st_load)
        self.ev(15, va=240)
        def check(w):
            fc = fcheck()
            for kk in range(4):
                if w:
                    k(f"s_waitcnt vmcnt({8-kk})")
                k(f"v_mfma_f32_16x16x32_bf16 {vr(S+8,4)}, {vr(F+4*kk,4)}, {vr(Q+4*kk,4)}, {'0' if kk == 0 else vr(S+8,4)}")
                k(fc.pop(0)); k(fc.pop(0))
            if w:
                k("s_waitcnt vmcnt(1)")
            vcheck()
        check(False)
        k(f"s_cbranch_vccz {PC}")
        k.label(PL)
        if opt.get("sll"):
            k(f"s_sleep {opt['sll']}")
        look()
        k(st_load)
        self.spend()
        check(True)
        k(f"s_cbranch_vccnz {PL}")
        k.label(PC)
        self.ev(10, va=240)
        NP = k.newlabel("L_ai")
        rl_ = f"""v_readlane_b32 s{sST}, v{ST}, 0
                  v_readlane_b32 s{sST+1}, v{ST}, 1"""
        k(f"""s_cmp_lg_u32 s{sMODE}, 3
              s_cbranch_scc1 {NP}""")
        mk_, self.opt["marks"] = self.opt.get("marks", ()), ()
        post(True, tail=rl_)
        self.opt["marks"] = mk_
        k(f"s_branch {T3X}")
        k.label(NP)
        post(tail="s_waitcnt vmcnt(0)\n" + rl_)
        k(f"s_branch {T3}")
        k.label(FIN2)
        DONE = k.newlabel("L_az")
        k(f"""s_cmp_lg_u32 s{sKO}, {F_RK[1]}
              s_cbranch_scc1 {DONE}""")
        NN = k.newlabel("L_an")
        k(f"""s_cmp_ge_u32 s{sBN}, {DLAST + 4}
              s_cbranch_scc1 {FINAL}""")
        no_more()
        k.label(FINAL)
        flush_pub()
        self.ev(14, va=240)
        k(f"""v_lshlrev_b32 v{TT}, 2, v{V_LANE}
              v_add_u32 v{VT}, {VOTE + 64}, v{TT}
              s_cmp_lg_u32 s{S_W}, 0
              s_cbranch_scc1 {NN}
              s_lshl_b32 s{S_T+3}, s{sWK}, 13
              s_add_u32 s{S_T+3}, s{S_T+3}, {DEC + 8192}""")
        self.words_wait64(S_T + 3, TT, 1)
        k(f"""ds_write_b32 v{VT}, v{TT+1}
              s_waitcnt lgkmcnt(0)""")
        k.label(NN)
        k(f"""s_barrier
              ds_read_b32 v{TT+1}, v{VT}
              s_mov_b32 s{sKO}, {F_RK[2]}
              s_mov_b32 s{sX}, 1
              s_waitcnt lgkmcnt(0)
              v_readfirstlane_b32 s{sSEL}, v{TT+1}
              v_and_b32 v{TT+1}, 255, v{TT+1}
              s_lshr_b32 s{sSEL}, s{sSEL}, 8
              s_lshr_b32 s{S_T+5}, s{sSEL}, 5
              v_cmp_ne_u32 {sr(sHAD,2)}, 3, v{TT+1}""")
        self.todo_mask(sTODO, TT)
        k(f"""s_bcnt1_i32_b64 s{S_T}, {sr(sTODO,2)}
              v_mbcnt_lo_u32_b32 v{TT}, s{sTODO}, 0
              v_mbcnt_hi_u32_b32 v{TT}, s{sTODO+1}, v{TT}
              s_mul_i32 s{S_T}, s{S_T}, {opt.get("share", 14)}
              s_add_u32 s{S_T}, s{S_T}, {opt.get("shr", 48)}
              s_lshr_b32 s{S_T}, s{S_T}, 7
              s_lshl_b32 s{S_T}, s{S_T}, 1
              v_cmp_gt_u32 vcc, s{S_T}, v{TT}
              v_and_b32 v{TT+1}, 1, v{TT}
              v_and_b32 v{TT}, 3, v{TT}
              v_add_u32 v{TT}, 2, v{TT}
              v_cndmask_b32 v{TT}, v{TT}, v{TT+1}, vcc
              v_cmp_eq_u32 vcc, s{sWK}, v{TT}
              s_and_b64 {sr(sTODO,2)}, {sr(sTODO,2)}, vcc""")
        pop_todo(1)
        plan_next(1, S_T + 5)
        k(f"""s_cmp_lt_u32 s{sNX}, 64
              s_cbranch_scc1 {SLOW}""")
        k.label(DONE)
        flush_pub()
        self.ev(23, va=240)
        k("s_endpgm")
        for st in stubs:
            st()

    def both(self, fn, name):
        self.k(f"""s_cmp_lg_u32 s{S_SLOW}, 0
                   s_cbranch_scc1 {name}""")
        fn()
        self.later.append((fn, name))

    def program(self):
        k = self.k
        self.later = []
        self.prologue()
        self.ev(0)
        LCH, LM, LA, LA2, C1, C2 = (k.newlabel(x) for x in ("L_rch", "L_rm", "L_ra", "L_rb", "L_rc1", "L_rc2"))
        k.label("L_roles")
        if self.opt.get("xdelay"):
            X = k.newlabel("L_x")
            k(f"""s_lshl_b32 s{S_T}, 1, s{S_G}
                  s_and_b32 s{S_T}, s{S_T}, {self.opt["xdelay"][0]}
                  s_cbranch_scc0 {X}
                  s_waitcnt vmcnt(0)""")
            self.arrive()
            for _ in range(self.opt["xdelay"][1]):
                k("s_sleep 32")
            k.label(X)
        k(f"""s_cmp_ge_u32 s{S_G}, 6
              s_cbranch_scc1 {LA}""")
        self.load_weights(True, None)
        self.ev(2)
        k(f"""s_cmp_lt_u32 s{S_G}, 3
              s_cbranch_scc1 {LCH}
              s_cmp_eq_u32 s{S_G}, 3
              s_cbranch_scc1 {LM}""")
        self.wait_all()
        self.ev(3)
        self.role_proj()
        k("s_endpgm")
        k.label(LM)
        self.load_gate_up()
        self.wait_all()
        self.ev(3)
        def moe():
            self.role_moe()
            k("s_endpgm")
        self.both(moe, "L_wm")
        k.label("L_abort")
        k("s_endpgm")
        k.label("L_spread")
        k(f"""s_mov_b32 s{S_SLOW}, -1
              s_lshr_b32 s{S_G}, s2, 5
              s_and_b32 s{S_H}, s2, 31""")
        if self.stamps:
            k(f"""s_lshl_b32 s{S_EV}, s2, 12
                  s_add_u32 s{S_EV}, s{S_EV}, {STAMP_OFF + MB}""")
            self.ev(0)
        k("s_branch L_roles")
        k.label(LA)
        if self.opt.get("warm", 1):
            self.warm()
        k.label(LA2)
        self.ev(2)
        self.load_wo2()
        self.wait_all()
        self.ev(3)
        k(f"""s_max_u32 s54, s{S_G}, 5
              s_sub_u32 s54, s54, 5
              s_lshl_b32 s54, s54, 1
              s_lshr_b32 s{S_T}, s{S_H}, 4
              s_add_u32 s54, s54, s{S_T}""")
        def att():
            self.role_att(None)
            k("s_endpgm")
        self.both(att, "L_wa")
        k.label(LCH)
        self.load_weights(False, "chain")
        self.wait_all()
        self.ev(3)
        self.chain_helps()
        def chains():
            C1, C2 = k.newlabel("L_rc1"), k.newlabel("L_rc2")
            k(f"""s_cmp_eq_u32 s{S_G}, 1
                  s_cbranch_scc1 {C1}
                  s_cmp_eq_u32 s{S_G}, 2
                  s_cbranch_scc1 {C2}""")
            self.chain(0)
            k(f"""s_mov_b32 s{S_CNT}, 0
                  s_branch {LA2}""")
            k.label(C1)
            self.chain(1)
            k("s_endpgm")
            k.label(C2)
            self.chain(2)
            k("s_endpgm")
        self.both(chains, "L_wc")
        self.loc = " sc1"
        self.abort = "L_abort2"
        k.label("L_abort2")
        k("s_endpgm")
        for fn, name in reversed(self.later):
            k.label(name)
            k.fence()
            if self.opt.get("noslow"):
                k("s_endpgm")
            else:
                fn()

HEADER = open(__file__.rsplit("/", 1)[0] + "/header.txt").read() if "/" in __file__ else open("header.txt").read()

def build(**kw):
    g = Gen(**kw)
    g.program()
    print("t3 leftovers", getattr(g, "t3left", None), file=sys.stderr)
    body = g.k.finalize()
    return (HEADER + f"; @launch grid=(256,1,1) block=(256,1,1) lds={LDS_SIZE}\n"
        + f""".amdgcn_target "amdgcn-amd-amdhsa--gfx950"
.text
.globl {NAME}_kernel
.p2align 8
.type {NAME}_kernel,@function
{NAME}_kernel:
""" + body + f""".section .rodata,"a"
.p2align 6
.amdhsa_kernel {NAME}_kernel
  .amdhsa_next_free_vgpr 512
  .amdhsa_next_free_sgpr 102
  .amdhsa_accum_offset 256
  .amdhsa_group_segment_fixed_size 0
  .amdhsa_kernarg_size 120
  .amdhsa_user_sgpr_count 2
  .amdhsa_user_sgpr_kernarg_segment_ptr 1
  .amdhsa_system_sgpr_workgroup_id_x 1
  .amdhsa_float_denorm_mode_32 3
.end_amdhsa_kernel
""")

if __name__ == "__main__":
    import argparse
    ap = argparse.ArgumentParser()
    ap.add_argument("-o", default=f"/code/{NAME}.s")
    ap.add_argument("--stop", default=None)
    ap.add_argument("--stamps", type=int, default=0)
    ap.add_argument("--slow", action="store_true")
    ap.add_argument("--opt", default="{}")
    a = ap.parse_args()
    stop = None
    if a.stop:
        l, p = a.stop.split(":"); stop = (int(l), p)
    open(a.o, "w").write(build(fast=not a.slow, stop=stop, stamps=a.stamps, opt=eval(a.opt)))
```

```python
import sys, math
from asmlib import K, vr, ar, sr, Ins, need
from layout import *

NAME = "interleave_layers__memory_aug_recurrent_mem_tr__moe_arch_mod__prompt"

SRD_A = 4
SRD_WS = 8
SRD_DBG = 12
P_X, P_MEM0, P_WQ, P_WK, P_WV, P_WO = 16, 18, 20, 22, 24, 26
P_WR, P_WG, P_WU, P_WD, P_OUT, P_DBG, P_WS = 32, 34, 36, 38, 40, 42, 44
S_W, S_H, S_G, S_BUD = 46, 47, 48, 49
S_SLOW = 3
S_LW = 50
S_SEG, S_OOB, S_CNT = 51, 52, 53
S_T = 56
S_C = 80
S_EV = 81
S_ONE = 28
S_A, S_B = 30, 31
LOOK = 2
WS = sr(SRD_WS, 4); SA = sr(SRD_A, 4); DBG = sr(SRD_DBG, 4)

SCALE_LOG2E = (128 ** -0.5) * math.log2(math.e)
def f32(x):
    import struct
    return "0x%08x" % struct.unpack("<I", struct.pack("<f", x))[0]
NEGBIG = f32(-1e30)

def wq(ks, t, half=None):
    b = (ks * 2 + t) * 8
    return ar(b, 8) if half is None else ar(b + 4 * half, 4)
def wk(ks, t, half=None):
    b = 128 + (ks * 2 + t) * 8
    return ar(b, 8) if half is None else ar(b + 4 * half, 4)
def wv(ks, t, half=None):
    b = 128 + (ks * 2 + t) * 8
    return vr(b, 8) if half is None else vr(b + 4 * half, 4)

def unpk(x):
    import re
    if not isinstance(x, str) or not x.startswith("v_pk_"):
        return [x]
    ins = Ins(x)
    mod = lambda nm, d: [int(c) for c in re.search(nm + r":\[([01,]+)\]", ins.mods).group(1).split(",")] if re.search(nm + r":\[", ins.mods) else d
    n = len(ins.ops) - 1
    lo, hi = mod(r"op_sel", [0] * n), mod("op_sel_hi", [1] * n)
    if "op_sel:" not in ins.mods:
        lo = [0] * n
    ng = mod("neg_lo", [0] * n)
    base = [re.match(r"([vs])\[(\d+):", o).groups() for o in ins.ops]
    out = []
    for h, sel in enumerate((lo, hi)):
        src = [("-" if ng[i] else "") + base[i+1][0] + str(int(base[i+1][1]) + sel[i]) for i in range(n)]
        out.append(f"{ins.op.replace('v_pk_', 'v_')} v{int(base[0][1]) + h}, " + ", ".join(src))
    return out

V_L16 = 0
V_LANE = 1

class Gen:
    def __init__(self, fast=True, stop=None, stamps=False, opt=None):
        self.opt = opt or {}
        self.LH = L_H
        self.pend = []
        self.mk = 0
        self.k = K()
        self.fast = fast
        self.loc = "" if fast else " sc1"
        self.stop = stop
        self.abort = "L_abort"
        self.stamps = stamps

    def srd(self, ptr, nbytes):
        k = self.k
        k(f"""s_mov_b32 s{SRD_A}, s{ptr}
              s_mov_b32 s{SRD_A+1}, s{ptr+1}
              s_mov_b32 s{SRD_A+2}, {nbytes}
              s_mov_b32 s{SRD_A+3}, 0x20000""")

    def budget(self, retry):
        self.k(f"""s_sub_u32 s{S_BUD}, s{S_BUD}, 1
                   s_cmp_gt_i32 s{S_BUD}, 0
                   s_cbranch_scc1 {retry}
                   s_branch {self.abort}""")

    def spend(self, inc=None, cnt=None):
        if self.stamps and inc:
            self.k(f"s_add_u32 s{cnt}, s{cnt}, {inc}")
        self.k(f"""s_sub_u32 s{S_BUD}, s{S_BUD}, 1
                   s_cbranch_scc1 {self.abort}""")

    def wsum(self, x, t):
        k = self.k
        for r in (8, 4, 2, 1):
            k(f"v_add_f32_dpp v{x}, v{x}, v{x} row_ror:{r} row_mask:0xf bank_mask:0xf")
        k(f"""v_mov_b32 v{t}, v{x}
              v_permlane16_swap_b32 v{x}, v{t}
              v_add_f32 v{x}, v{x}, v{t}
              v_mov_b32 v{t}, v{x}
              v_permlane32_swap_b32 v{x}, v{t}
              v_add_f32 v{x}, v{x}, v{t}""")

    def unpack8(self, dst, src):
        k = self.k
        for q in range(4):
            k(f"v_lshlrev_b32 v{dst+2*q}, 16, v{src+q}")
            k(f"v_and_b32 v{dst+2*q+1}, 0xffff0000, v{src+q}")

    def pack8(self, dst, src):
        for q in range(4):
            self.k(f"v_cvt_pk_bf16_f32 v{dst+q}, v{src+2*q}, v{src+2*q+1}")

    def round1(self, x):
        self.k(f"""v_cvt_pk_bf16_f32 v{x}, v{x}, v{x}
                   v_and_b32 v{x}, 0xffff0000, v{x}""")

    def layernorm(self, x, ypk, tmp):
        k = self.k
        d = tmp; s = tmp + 8; q = tmp + 10; t = tmp + 12
        c = S_T + 22
        k(f"v_readfirstlane_b32 s{c}, v{x}")
        for j in range(0, 8, 2):
            k(f"v_pk_add_f32 {vr(d+j,2)}, {vr(x+j,2)}, {sr(c,2)} op_sel_hi:[1,0] neg_lo:[0,1] neg_hi:[0,1]")
        k(f"""v_pk_add_f32 {vr(s,2)}, {vr(d,2)}, {vr(d+2,2)}
              v_pk_mul_f32 {vr(q,2)}, {vr(d,2)}, {vr(d,2)}
              v_pk_add_f32 {vr(t,2)}, {vr(d+4,2)}, {vr(d+6,2)}
              v_pk_fma_f32 {vr(q,2)}, {vr(d+2,2)}, {vr(d+2,2)}, {vr(q,2)}
              v_pk_add_f32 {vr(s,2)}, {vr(s,2)}, {vr(t,2)}
              v_pk_fma_f32 {vr(q,2)}, {vr(d+4,2)}, {vr(d+4,2)}, {vr(q,2)}
              v_add_f32 v{s}, v{s}, v{s+1}
              v_pk_fma_f32 {vr(q,2)}, {vr(d+6,2)}, {vr(d+6,2)}, {vr(q,2)}
              v_add_f32 v{q}, v{q}, v{q+1}""")
        k(f"""v_permlane32_swap_b32 v{s}, v{q}
              v_add_f32 v{s}, v{s}, v{q}""")
        for r in (8, 4, 2, 1):
            k(f"v_add_f32_dpp v{s}, v{s}, v{s} row_ror:{r} row_mask:0xf bank_mask:0xf")
        k(f"""v_mov_b32 v{q}, v{s}
              v_permlane16_swap_b32 v{s}, v{q}
              v_add_f32 v{s}, v{s}, v{q}
              v_mul_f32 v{s}, {f32(1.0/512)}, v{s}
              v_mov_b32 v{q}, v{s}
              v_permlane32_swap_b32 v{s}, v{q}
              v_fma_f32 v{q}, -v{s}, v{s}, v{q}
              v_add_f32 v{s}, s{c}, v{s}
              v_max_f32 v{q}, 0, v{q}
              v_cvt_pk_bf16_f32 v{q}, v{s}, v{q}
              v_lshlrev_b32 v{s}, 16, v{q}
              v_and_b32 v{q}, 0xffff0000, v{q}
              v_add_f32 v{q}, {f32(1e-5)}, v{q}""")
        self.round1(q)
        k(f"v_sqrt_f32 v{q}, v{q}")
        for j in range(0, 8, 2):
            k(f"v_pk_add_f32 {vr(d+j,2)}, {vr(x+j,2)}, {vr(s,2)} op_sel_hi:[1,0] neg_lo:[0,1] neg_hi:[0,1]")
        self.round1(q)
        k(f"v_rcp_f32 v{q}, v{q}")
        self.pack8(ypk, d)
        self.unpack8(d, ypk)
        for j in range(0, 8, 2):
            k(f"v_pk_mul_f32 {vr(d+j,2)}, {vr(d+j,2)}, {vr(q,2)} op_sel_hi:[1,0]")
        self.pack8(ypk, d)

    def add8(self, x, y):
        for j in range(0, 8, 2):
            self.k(f"v_pk_add_f32 {vr(x+j,2)}, {vr(x+j,2)}, {vr(y+j,2)}")

    def arrive(self):
        k = self.k
        D = k.newlabel("L_ar")
        k(f"""s_barrier
              s_cmp_lg_u32 s{S_W}, 0
              s_cbranch_scc1 {D}
              v_mov_b32 v8, 128
              v_mov_b32 v9, s{S_CNT}
              s_mov_b64 exec, 1
              buffer_atomic_add v9, v8, {DBG}, 0 offen
              s_mov_b64 exec, -1""")
        k.label(D)
        k(f"s_mov_b32 s{S_CNT}, 0")
        self.ev(1, va=10)

    def wait_all(self):
        k = self.k
        L = k.newlabel("L_gb"); D = k.newlabel("L_gbd")
        k(f"""v_mov_b32 v123, {L_MISC}
              s_cmp_lg_u32 s{S_W}, 0
              s_cbranch_scc1 {D}
              v_mov_b32 v124, 128""")
        k.label(L)
        k(f"""buffer_load_dword v125, v124, {DBG}, 0 offen sc1
              s_waitcnt vmcnt(0)
              v_readfirstlane_b32 s{S_T}, v125
              ds_write_b32 v123, v125
              s_bitcmp1_b32 s{S_T}, 8
              s_cbranch_scc1 {D}
              s_sleep 4""")
        self.budget(L)
        k.label(D)
        k(f"""s_waitcnt lgkmcnt(0)
              s_barrier
              ds_read_b32 v125, v123
              s_waitcnt lgkmcnt(0)
              v_readfirstlane_b32 s{S_T}, v125
              s_barrier
              s_lshr_b32 s{S_T}, s{S_T}, 16
              s_andn2_b32 s{S_T}, s{S_T}, s{S_SLOW}
              s_cbranch_scc1 L_spread""")

    def page(self, dst, off, seg=S_SEG, head=True):
        k = self.k
        k(f"s_lshl_b32 s{dst}, s{seg}, 13")
        if head:
            k(f"s_lshl2_add_u32 s{dst}, s{S_H}, s{dst}")
        k(f"s_add_u32 s{dst}, s{dst}, {PG_OFF + off}")

    def word_wait(self, s_off, s_val, va=125, sleep=0, quick=False):
        k = self.k
        L, D = k.newlabel("L_ww"), k.newlabel("L_wwd")
        if quick:
            k(f"""s_buffer_load_dword s{s_val}, {WS}, s{s_off} glc
                  s_waitcnt lgkmcnt(0)
                  s_cmp_lg_u32 s{s_val}, 0
                  s_cbranch_scc1 {D}""")
        k.label(L)
        if sleep:
            k(f"s_sleep {sleep}")
        k(f"buffer_load_dword v{va}, off, {WS}, s{s_off} sc1")
        self.spend()
        k(f"""s_waitcnt vmcnt(0)
              v_readfirstlane_b32 s{s_val}, v{va}
              s_cmp_eq_u32 s{s_val}, 0
              s_cbranch_scc1 {L}""")
        k.label(D)

    def stamp(self, name):
        pts = self.opt.get("pts", [0, 1, 2, 3, 4, 5, 6, 7])
        if self.stamps > 1 and name in pts:
            i = pts.index(name)
            self.k(f"s_memtime s[{84+2*i}:{85+2*i}]")

    def ev(self, tag, va=126, clk="s_memrealtime"):
        if not self.stamps:
            return
        k = self.k
        D = k.newlabel("L_ps")
        k(f"""s_cmp_lg_u32 s{S_W}, 0
              s_cbranch_scc1 {D}
              {clk} s[82:83]
              s_or_b32 s100, s{S_SEG}, {tag << 8}
              s_waitcnt lgkmcnt(0)
              s_mov_b64 exec, 1
              v_mov_b32 v{va}, s82
              v_mov_b32 v{va+1}, s100
              buffer_store_dwordx2 {vr(va,2)}, off, {WS}, s{S_EV}
              s_mov_b64 exec, -1
              s_add_u32 s{S_EV}, s{S_EV}, 8""")
        k.label(D)

    def mark(self, tag):
        if self.stamps != 1 or tag not in self.opt.get("marks", ()):
            return
        i = len(self.pend); assert i < 6
        self.pend.append(tag)
        self.k(f"{'s_memtime' if self.opt.get('mt') else 's_memrealtime'} s[{88+2*i}:{89+2*i}]")

    def flush(self, va=126):
        if not self.pend:
            return
        k = self.k
        D = k.newlabel("L_fl")
        k(f"""s_cmp_lg_u32 s{S_W}, 0
              s_cbranch_scc1 {D}
              s_waitcnt lgkmcnt(0)
              s_mov_b64 exec, 1""")
        for i, tag in enumerate(self.pend):
            k(f"""s_or_b32 s100, s{S_SEG}, {tag << 8}
                  v_mov_b32 v{va}, s{88+2*i}
                  v_mov_b32 v{va+1}, s100
                  buffer_store_dwordx2 {vr(va,2)}, off, {WS}, s{S_EV}
                  s_add_u32 s{S_EV}, s{S_EV}, 8""")
        k("s_mov_b64 exec, -1")
        k.label(D)
        self.pend = []

    def prologue(self):
        k = self.k
        k(f"""s_cmp_ge_u32 s2, 256
              s_cbranch_scc1 L_abort
              s_load_dwordx16 s[16:31], s[0:1], 0
              s_load_dwordx8 s[32:39], s[0:1], 64
              s_load_dwordx4 s[40:43], s[0:1], 96
              s_load_dwordx2 s[44:45], s[0:1], 112
              v_lshrrev_b32 v2, 6, v0
              v_and_b32 v{V_LANE}, 63, v0
              v_readfirstlane_b32 s{S_W}, v2
              v_lshlrev_b32 v{V_L16}, 4, v{V_LANE}
              s_getreg_b32 s{S_G}, hwreg(HW_REG_XCC_ID)
              s_and_b32 s{S_G}, s{S_G}, 7
              s_lshl_b32 s{S_G}, s{S_G}, 2
              s_lshr_b32 s{S_G}, {sum(g << (4*x) for x, g in enumerate(self.opt.get("map", (0, 6, 2, 4, 1, 7, 3, 5))))}, s{S_G}
              s_and_b32 s{S_G}, s{S_G}, 7
              s_mov_b32 s{S_BUD}, 100000
              s_mov_b32 s{S_C}, {f32(SCALE_LOG2E)}
              s_waitcnt lgkmcnt(0)
              s_mov_b32 s{SRD_WS}, s{P_WS}
              s_mov_b32 s{SRD_WS+1}, s{P_WS+1}
              s_mov_b32 s{SRD_WS+2}, {WS_SIZE}
              s_mov_b32 s{SRD_WS+3}, 0x20000
              s_mov_b32 s{SRD_DBG}, s{P_DBG}
              s_mov_b32 s{SRD_DBG+1}, s{P_DBG+1}
              s_mov_b32 s{SRD_DBG+2}, 256
              s_mov_b32 s{SRD_DBG+3}, 0x20000""")
        T = k.newlabel("L_tk")
        k(f"""s_cmp_lg_u32 s{S_W}, 0
              s_cbranch_scc1 {T}
              s_lshl_b32 s{S_T}, s{S_G}, 2
              v_mov_b32 v14, s{S_T}
              v_mov_b32 v15, 1
              s_mov_b64 exec, 1
              buffer_atomic_add v15, v14, {DBG}, 0 offen sc0
              s_mov_b64 exec, -1""")
        k.label(T)
        self.init_ws()
        T = k.newlabel("L_tk")
        k(f"""s_cmp_lg_u32 s{S_W}, 0
              s_cbranch_scc1 {T}
              s_mov_b64 exec, 1
              v_mov_b32 v4, {L_MISC}
              ds_write_b32 v4, v15
              s_mov_b64 exec, -1
              s_waitcnt lgkmcnt(0)""")
        k.label(T)
        k(f"""s_barrier
              v_mov_b32 v4, {L_MISC}
              ds_read_b32 v3, v4
              s_waitcnt lgkmcnt(0)
              v_readfirstlane_b32 s{S_H}, v3
              s_mov_b32 s{S_SLOW}, 0
              s_cmp_ge_u32 s{S_H}, 32
              s_cselect_b32 s{S_CNT}, 0x10001, 1
              s_and_b32 s{S_H}, s{S_H}, 31
              s_lshl_b32 s{S_LW}, s{S_W}, 10
              s_cmp_eq_u32 s{S_W}, 0
              s_cselect_b32 s{S_OOB}, 0, 0x80000000
              s_mov_b32 s{S_ONE}, 0x3f803f80
              s_mov_b32 s{S_ONE+1}, 0x3f803f80
              s_mov_b32 s{S_SEG}, 0""")
        if self.opt.get("mix", 1):
            k(f"""s_bfe_u32 s{S_T}, s{S_G}, 0x10001
                  s_and_b32 s{S_T+1}, s{S_G}, 1
                  s_add_u32 s{S_T+2}, s{S_T}, 6
                  s_sub_u32 s{S_T+3}, 5, s{S_T+1}
                  s_cmp_ge_u32 s{S_H}, 16
                  s_cselect_b32 s{S_T+2}, s{S_T+2}, s{S_T+3}
                  s_cselect_b32 s{S_T+1}, s{S_T+1}, s{S_T}
                  s_and_b32 s{S_T+3}, s{S_H}, 15
                  s_lshl4_add_u32 s{S_T+1}, s{S_T+1}, s{S_T+3}
                  s_cmp_ge_u32 s{S_G}, 4
                  s_cselect_b32 s{S_G}, s{S_T+2}, s{S_G}
                  s_cselect_b32 s{S_H}, s{S_T+1}, s{S_H}""")
        if self.stamps:
            k(f"""s_lshl_b32 s{S_EV}, s{S_G}, 5
                  s_add_u32 s{S_EV}, s{S_EV}, s{S_H}
                  s_lshl_b32 s{S_EV}, s{S_EV}, 12
                  s_add_u32 s{S_EV}, s{S_EV}, {STAMP_OFF + MB}""")

    def init_ws(self):
        k = self.k
        self.srd(P_X, 2048 * 1024)
        k(f"""s_lshl_b32 s{S_T}, s2, 3
              s_lshl_b32 s{S_T+3}, s{S_W}, 1
              s_add_u32 s{S_T}, s{S_T}, s{S_T+3}
              s_lshl_b32 s{S_T+3}, s{S_T}, 10
              buffer_load_dwordx4 v[24:27], v{V_L16}, {SA}, s{S_T+3} offen
              buffer_load_dwordx4 v[28:31], v{V_L16}, {SA}, s{S_T+3} offen offset:1024""")
        k(f"""s_lshl_b32 s{S_T}, s2, 12
              s_lshl_b32 s{S_T+1}, s{S_W}, 10
              s_add_u32 s{S_T}, s{S_T}, s{S_T+1}
              v_add_u32 v2, s{S_T}, v{V_L16}
              v_mov_b32 v4, -1
              v_mov_b32 v5, -1
              v_mov_b32 v6, -1
              v_mov_b32 v7, -1
              v_mov_b32 v8, 0
              v_mov_b32 v9, 0
              v_mov_b32 v10, 0
              v_mov_b32 v11, 0""")
        k(f"""v_cmp_gt_u32 vcc, {512*KB}, v2
              v_mov_b32 v3, {PC_OFF[0] - 512*KB}
              v_mov_b32 v12, {MEM_OFF[0] + 8*KB}
              v_cndmask_b32 v3, v3, v12, vcc
              v_add_u32 v3, v3, v2""")
        for c in range(3):
            k(f"s_mov_b32 s{S_T}, {c*MB}")
            k(f"buffer_store_dwordx4 v[4:7], v3, {WS}, s{S_T} offen sc1")
        for i in range(2):
            k(f"s_mov_b32 s{S_T}, {X1_OFF[0] + i*MB}")
            k(f"buffer_store_dwordx4 v[4:7], v2, {WS}, s{S_T} offen sc1")
        k(f"""v_add_u32 v3, {MEMX_OFF + 8*KB - 512*KB}, v2
              v_mov_b32 v12, 0x80000000
              v_cndmask_b32 v3, v3, v12, vcc
              buffer_store_dwordx4 v[4:7], v3, {WS}, 0 offen sc1
              v_cmp_gt_u32 vcc, {NPAGES*2*KB}, v2
              v_lshrrev_b32 v3, 11, v2
              v_lshlrev_b32 v3, 13, v3
              v_and_b32 v13, 0x7ff, v2
              v_add_u32 v3, v3, v13
              v_add_u32 v3, {PG_OFF}, v3
              v_cndmask_b32 v3, v12, v3, vcc
              buffer_store_dwordx4 v[8:11], v3, {WS}, 0 offen sc1
              v_add_u32 v3, {HPS_OFF - 256*KB}, v2
              v_lshrrev_b32 v13, 16, v2
              v_cmp_eq_u32 vcc, 4, v13
              v_cndmask_b32 v3, v12, v3, vcc
              buffer_store_dwordx4 v[4:7], v3, {WS}, 0 offen sc1""")
        k("s_waitcnt vmcnt(8)")
        assert H_OFF[0] == 0
        for i in range(2):
            self.unpack8(32, 24 + 4 * i)
            self.layernorm(32, 40 + 4 * i, 48)
            k(f"buffer_store_dwordx4 {vr(40+4*i,4)}, v{V_L16}, {WS}, s{S_T+3} offen offset:{1024*i} sc1")
        D = k.newlabel("L_m0")
        self.srd(P_MEM0, 8192)
        k(f"""s_cmp_ge_u32 s2, 2
              s_cbranch_scc1 {D}
              s_lshl_b32 s{S_T}, s2, 2
              s_add_u32 s{S_T}, s{S_T}, s{S_W}          ; ks
              v_bfe_u32 v2, v{V_LANE}, 2, 2
              v_and_b32 v3, 1, v{V_LANE}
              v_lshl_add_u32 v2, v2, 1, v3               ; m
              v_lshlrev_b32 v2, 10, v2
              v_lshrrev_b32 v3, 4, v{V_LANE}
              v_lshl_add_u32 v2, v3, 5, v2               ; + ga*32
              v_and_b32 v3, 2, v{V_LANE}
              v_lshl_add_u32 v2, v3, 1, v2               ; + hi*4
              s_lshl_b32 s{S_T+1}, s{S_T}, 7             ; ks*128""")
        for q in range(4):
            k(f"buffer_load_dword v{32+q}, v2, {SA}, s{S_T+1} offen offset:{8*q}")
        self.mfrag_voff(2, 3)
        k(f"""s_and_b32 s{S_T+1}, s{S_T}, 1
              s_lshl_b32 s{S_T+1}, s{S_T+1}, 8
              s_and_b32 s{S_T+2}, s{S_T}, 2
              s_lshl_b32 s{S_T+2}, s{S_T+2}, 6
              s_add_u32 s{S_T+1}, s{S_T+1}, s{S_T+2}
              s_and_b32 s{S_T+2}, s{S_T}, 4
              s_lshl_b32 s{S_T+2}, s{S_T+2}, 10
              s_add_u32 s{S_T+1}, s{S_T+1}, s{S_T+2}
              s_waitcnt vmcnt(0)""")
        for off in (MEM_OFF[0], MEM_OFF[1], MEMX_OFF):
            k(f"s_add_u32 s{S_T+2}, s{S_T+1}, {off}")
            k(f"buffer_store_dwordx4 v[32:35], v2, {WS}, s{S_T+2} offen sc1")
        k.label(D)

    def mfrag_voff(self, dst, t):
        self.k(f"""v_lshrrev_b32 v{dst}, 3, v{V_LANE}
                   v_lshlrev_b32 v{dst}, 9, v{dst}
                   v_and_b32 v{t}, 7, v{V_LANE}
                   v_lshl_add_u32 v{dst}, v{t}, 4, v{dst}""")

    def load_weights(self, qkv, wo, base=2):
        chain_wo = wo == 'chain'
        k = self.k
        NB = 7
        TB = 24
        k(f"""v_and_b32 v{base+0}, 15, v{V_LANE}
              v_lshlrev_b32 v{base+0}, 2, v{base+0}                    ; c*4
              v_lshrrev_b32 v{base+1}, 4, v{V_LANE}
              v_lshl_add_u32 v{base+2}, v{base+1}, 16, v{base+0}              ; g*8 rows*8192 + c*4
              v_lshl_add_u32 v{base+3}, v{base+1}, {12 if chain_wo else 13}, v{base+0}   ; g*(4|8) rows*1024 + c*4
              s_lshl_b32 s{S_T+2}, s{S_H}, 8
              s_lshl_b32 s{S_T+1}, s{S_W}, 6
              s_add_u32 s{S_T+2}, s{S_T+2}, s{S_T+1}     ; h*256 + w*64
              s_lshl_b32 s{S_T+3}, s{S_H}, 17
              s_add_u32 s{S_T+3}, s{S_T+3}, s{S_T+1}     ; h*128KB + w*64
              s_lshl_b32 s{S_T+4}, s{S_W}, 15
              v_add_u32 v{base+4}, s{S_T+4}, v{V_L16}
              s_mov_b32 s{S_T+5}, 0x05040100
              s_mov_b32 s{S_T+6}, 0x07060302
              s_lshl_b32 s{S_T+7}, s{S_W}, 19
              s_cmp_lt_u32 s{S_G}, 3
              s_cselect_b32 s{S_T+7}, s{S_T+7}, 0""")
        groups = []
        for m, ptr in (("k", P_WK), ("v", P_WV), ("q", P_WQ)) if qkv else ():
            for kk in range(16):
                groups.append((m, ptr, kk, None))
        for u in range(4 if wo else 0):
            for kk in range(4):
                groups.append(("o", P_WO, kk, u))
        def issue(i):
            m, ptr, kk, u = groups[i]
            b = TB + (i % NB) * 8
            if i == 0 or groups[i - 1][0] != m:
                self.srd(ptr, 4 * MB)
            for j in range(8):
                if m != "o":
                    if j == 0:
                        k(f"s_xor_b32 s{S_T}, s{S_T+7}, {32*kk*8192}")
                        k(f"s_add_u32 s{S_T}, s{S_T}, s{S_T+2}")
                    else:
                        k(f"s_add_u32 s{S_T}, s{S_T}, 8192")
                    k(f"buffer_load_dword v{b+j}, v{base+2}, {SA}, s{S_T} offen")
                else:
                    if j % 4 == 0:
                        k(f"s_add_u32 s{S_T}, s{S_T+3}, {(32*kk+(4*j if chain_wo else j))*1024 + 256*u}")
                    k(f"buffer_load_dword v{b+j}, v{base+3}, {SA}, s{S_T} offen offset:{(j%4)*1024}")
        def consume(i):
            m, ptr, kk, u = groups[i]
            b = TB + (i % NB) * 8
            if m == "o" and chain_wo:
                for hf in range(2):
                    k(f"ds_write_b128 v{base+4}, {vr(b+4*hf,4)} offset:{((u*4+kk)*2+hf)*1024}")
                k("s_waitcnt lgkmcnt(0)")
                return
            for t in range(2):
                for q in range(4):
                    sel = f"s{S_T+5+t}"
                    if m == "v":
                        d = 128 + ((kk >> 1) * 2 + t) * 8 + 4 * (kk & 1) + q
                        k(f"v_perm_b32 v{d}, v{b+2*q+1}, v{b+2*q}, {sel}")
                    else:
                        k(f"v_perm_b32 v{80+4*t+q}, v{b+2*q+1}, v{b+2*q}, {sel}")
            if m in "qk":
                for t in range(2):
                    for q in range(4):
                        d = (128 if m == "k" else 0) + ((kk >> 1) * 2 + t) * 8 + 4 * (kk & 1) + q
                        k(f"v_accvgpr_write_b32 a{d}, v{80+4*t+q}")
            if m == "o":
                for t in range(2):
                    k(f"ds_write_b128 v{base+4}, {vr(80+4*t,4)} offset:{((u*2+t)*4+kk)*1024}")
                k("s_waitcnt lgkmcnt(0)")
        n = len(groups)
        for i in range(NB):
            issue(i)
        for i in range(n):
            left = min(n - 1 - i, NB - 1)
            k(f"s_waitcnt vmcnt({left*8})")
            consume(i)
            if i + NB < n:
                issue(i + NB)
            if i == 0 and qkv:
                self.arrive()

    def qkv_base(self, dst, which):
        self.k(f"""s_lshl_b32 s{dst}, s{S_SEG}, 5
                   s_add_u32 s{dst}, s{dst}, s{S_H}
                   s_mul_i32 s{dst}, s{dst}, {24*KB}
                   s_add_u32 s{dst}, s{dst}, {QKV_OFF[which] if isinstance(which, int) else which}""")

    def t1_dma(self, s_h, quarters, voff=None, reg=0, sb=S_LW):
        voff = voff or (self.THD, self.THD)
        out = []
        for qi in quarters:
            for u in range(2):
                out.append(f"s_add_u32 m0, s{sb}, {self.LH + reg*32*KB + qi*8192 + u*4096 - qi*256}")
                out.append(f"buffer_load_dwordx4 v{voff[u]}, {WS}, s{s_h+u} offen offset:{qi*256} sc1 lds")
        return out

    def t1_src(self, dst, seg, hreg):
        self.k(f"""s_lshl_b32 s{dst}, s{seg}, 15
                   s_add_u32 s{dst}, s{dst}, {H_OFF[hreg]}
                   s_add_u32 s{dst+1}, s{dst}, {16*KB}""")

    def flag_store(self, s_off, loc):
        self.k(f"""s_or_b32 s{s_off}, s{s_off}, s{S_OOB}
                   buffer_store_dword v{self.TOB}, off, {WS}, s{s_off}{loc}""")

    def t1(self, which, s_h, voff=None, pre=0, nxt=None, s_flag=None, extra=(), x_flag=None, qloc=False, s_keep=0, rot=False):
        k = self.k
        ACC = 24; RING = (72, 80, 108)
        aq = lambda t, u: ACC + (t * 2 + u) * 4
        ak = lambda t, u: ACC + 16 + (t * 2 + u) * 4
        av = lambda t, u: ACC + 32 + (t * 2 + u) * 4
        first, later = ((0, 1), (2, 3)) if rot else ((0, 1, 2), (3,))
        if not pre:
            for x in self.t1_dma(s_h, first, voff):
                k(x)
        self.qkv_base(S_T + 2, which)
        k(f"""s_add_u32 s{S_T+5}, s{S_T+2}, s{S_LW}      ; K u0
              s_add_u32 s{S_T+6}, s{S_T+5}, 4096         ; K u1
              s_add_u32 s{S_T+7}, s{S_T+5}, {16*KB}      ; Q u0
              s_add_u32 s{S_T+8}, s{S_T+5}, {20*KB}      ; Q u1
              s_add_u32 s{S_T+9}, s{S_T+5}, s{S_LW}
              s_add_u32 s{S_T+9}, s{S_T+9}, {8*KB}       ; V""")
        if rot:
            rd = lambda kk: [f"ds_read_b128 {vr(RING[kk%3]+4*u,4)}, v{self.THR+(kk&7)} offset:{(kk>>3)*16384+u*4096}" for u in range(2)]
        else:
            rd = lambda kk: [f"ds_read_b128 {vr(RING[kk%3]+4*u,4)}, v{self.THR+(kk&3)} offset:{(kk>>2)*8192+u*4096}" for u in range(2)]
        k(f"s_waitcnt vmcnt({(0 if rot else 4) + pre})")
        k("s_barrier")
        self.mark(self.mk + 0)
        for x in rd(0) + rd(1):
            k(x)
        for x in self.t1_dma(s_h, later, voff):
            k(x)
        for x in extra:
            k(x)
        ne = len(extra); nl = 2 * len(later)
        side = []
        for kk in range(16):
            b = RING[kk % 3]
            n = kk + 2
            last_q = (n == 8) if rot else (n == 12)
            if last_q:
                k(f"s_waitcnt vmcnt({1 if (s_flag and not rot) else 0})")
                k("s_barrier")
                if x_flag:
                    self.flag_store(x_flag, " sc1")
                if s_flag and rot:
                    self.flag_store(s_flag, " sc1")
            elif not rot and n in (4, 8):
                k(f"s_waitcnt vmcnt({(2 if n == 4 else 0) + pre + nl + ne})")
                k("s_barrier")
            if kk == 7 and s_flag and not rot:
                assert not extra
                k(f"s_waitcnt vmcnt({nl + s_keep})")
                k("s_barrier")
                self.flag_store(s_flag, " sc1")
            if kk == 12 and nxt:
                k("s_barrier")
                side = list(nxt)
            k(f"s_waitcnt lgkmcnt({2 if kk < 15 else 0})")
            ks, hf = kk >> 1, kk & 1
            fill = rd(n) if n < 16 else []
            i = 0
            for t in range(2):
                for u in range(2):
                    h = vr(b + 4 * u, 4)
                    for acc, w, tr in ((ak, wk, True), (av, wv, False), (aq, wq, True)):
                        d = vr(acc(t, u), 4)
                        c = "0" if kk == 0 else d
                        a_, b_ = (w(ks, t, hf), h) if tr else (h, w(ks, t, hf))
                        k(f"v_mfma_f32_16x16x32_bf16 {d}, {a_}, {b_}, {c}")
                        i += 1
                        if fill and i % 2 == 1:
                            k(fill.pop(0))
                        elif side:
                            k(side.pop(0))
        assert not side
        self.mark(self.mk + 3)
        if which == 0:
            k(f"""s_lshl_b32 s{S_T}, s{S_SEG}, 5
                  s_add_u32 s{S_T}, s{S_T}, s{S_H}
                  s_lshl_b32 s{S_T}, s{S_T}, 12
                  s_add_u32 s{S_T}, s{S_T}, s{S_LW}
                  s_add_u32 s{S_T}, s{S_T}, {KVM_OFF[0]}
                  v_mov_b64 v[120:121], -1
                  v_mov_b64 v[122:123], -1
                  buffer_store_dwordx4 v[120:123], v{V_L16}, {WS}, s{S_T} offen sc1""")
        for i, (acc, so) in enumerate(((ak, S_T + 5), (aq, S_T + 7))):
            for u in range(2):
                p = RING[2 * i] + u * 4
                for r in range(4):
                    k(f"v_cvt_pk_bf16_f32 v{p+r}, v{acc(0,u)+r}, v{acc(1,u)+r}")
                k(f"buffer_store_dwordx4 {vr(p,4)}, v{V_L16}, {WS}, s{so+u} offen{'' if (i == 1 and qloc) else ' sc1'}")
            if i == 0:
                for t in range(2):
                    p = RING[1] + t * 4
                    for u in range(2):
                        k(f"v_cvt_pk_bf16_f32 v{p+2*u}, v{av(t,u)}, v{av(t,u)+1}")
                        k(f"v_cvt_pk_bf16_f32 v{p+2*u+1}, v{av(t,u)+2}, v{av(t,u)+3}")
                    k(f"buffer_store_dwordx4 {vr(p,4)}, v{V_L16}, {WS}, s{S_T+9} offen offset:{t*1024} sc1")

    def t1b(self, which, s_h, landed=False, reg=0, s_flag=None, voff=None, nxt=(), early=True, sb=S_LW, peek=None, lead=()):
        k = self.k
        HB = 104; ND = 3
        aq = lambda t, u: 88 + (t * 2 + u) * 4
        ak = lambda t, u: 24 + (t * 2 + u) * 4
        av = lambda t, u: 40 + (t * 2 + u) * 4
        big = self.LH != L_H
        if not landed:
            for x in self.t1_dma(s_h, (0, 1, 2, 3) if big else (0, 1, 2), voff, reg, sb):
                k(x)
        np_ = 0
        pk0 = []
        if peek and landed:
            pk0 = [x.strip() for x in peek[0].split("\n")]
        elif peek:
            k(peek[0]); np_ = 1
        n0_ = len(k.lines)
        self.qkv_base(S_T + 2, which)
        k(f"""s_add_u32 s{S_T+5}, s{S_T+2}, s{S_LW}      ; K u0
              s_add_u32 s{S_T+6}, s{S_T+5}, 4096         ; K u1
              s_add_u32 s{S_T+7}, s{S_T+5}, {16*KB}      ; Q u0
              s_add_u32 s{S_T+8}, s{S_T+5}, {20*KB}      ; Q u1
              s_add_u32 s{S_T+9}, s{S_T+5}, s{S_LW}
              s_add_u32 s{S_T+9}, s{S_T+9}, {8*KB}       ; V""")
        addr = list(lead) + k.lines[n0_:]; del k.lines[n0_:]
        rd = lambda n: [f"ds_read_b128 {vr(HB+(n%ND)*8+4*u,4)}, v{self.THR+(n&3)} offset:{reg*32*KB+((n&15)>>2)*8192+u*4096}" for u in range(2)]
        if not landed:
            k(f"s_waitcnt vmcnt({(6 if big else 4) + np_})")
            k("s_barrier")
        self.mark(self.mk + 0)
        for x in rd(0) + rd(1):
            k(x)
        if not landed and not big:
            for x in self.t1_dma(s_h, (3,), voff, reg):
                k(x)
        first = []
        if which < 2:
            first += [f"s_lshl_b32 s{S_T}, s{S_SEG}, 5\ns_add_u32 s{S_T}, s{S_T}, s{S_H}\ns_lshl_b32 s{S_T}, s{S_T}, 12",
                      f"s_add_u32 s{S_T}, s{S_T}, s{S_LW}\ns_add_u32 s{S_T}, s{S_T}, {KVM_OFF[which]}"]
            first += [f"v_mov_b64 v[72:73], -1\nv_mov_b64 v[74:75], -1"]
            first += [f"buffer_store_dwordx4 v[72:75], v{V_L16}, {WS}, s{S_T} offen sc1"]
            if which:
                first += [f"s_add_u32 s{S_T}, s{S_T}, {KVM_OFF[2] - KVM_OFF[1]}", first[-1]]
        first = ((first + [""] * 6)[:max(6, len(first))] + list(nxt)) if peek else list(nxt) + first
        look = list(peek[1]) if peek else []
        side = []
        P = 56
        for u in range(2):
            for r in range(4):
                side.append(f"v_cvt_pk_bf16_f32 v{P+4*u+r}, v{ak(0,u)+r}, v{ak(1,u)+r}")
            side.append(f"buffer_store_dwordx4 {vr(P+4*u,4)}, v{V_L16}, {WS}, s{S_T+5+u} offen sc1")
        for t in range(2):
            p = P + 8 + t * 4
            for u in range(2):
                side.append(f"v_cvt_pk_bf16_f32 v{p+2*u}, v{av(t,u)}, v{av(t,u)+1}")
                side.append(f"v_cvt_pk_bf16_f32 v{p+2*u+1}, v{av(t,u)+2}, v{av(t,u)+3}")
            side.append(f"buffer_store_dwordx4 {vr(p,4)}, v{V_L16}, {WS}, s{S_T+9} offen offset:{t*1024} sc1")
        if peek:
            side += [""] * self.opt.get("pk2", 4) + [x.strip() for x in peek[0].split("\n")]
        for n in range(32):
            kk = n & 15
            b = HB + (n % ND) * 8
            m = n + 2
            if m in (4, 8, 12) and (not landed or (m == 12 and s_flag)):
                k(f"s_waitcnt vmcnt({(12 - m) // 2 + np_})" if m < 12 else "s_waitcnt vmcnt(0) lgkmcnt(0)" if peek else "s_waitcnt vmcnt(0)")
                k("s_barrier")
                if m == 12 and s_flag:
                    self.flag_store(s_flag, " sc1")
                if m == 12 and peek:
                    k(peek[2])
            if n in (9, 11, 16):
                self.mark(self.mk + {9: 1, 11: 2, 16: 3}[n])
            if not (peek and m == 12):
                k(f"s_waitcnt lgkmcnt({2 if n < 31 else 0})")
            ks, hf = kk >> 1, kk & 1
            fill = rd(m) if m < 32 else []
            i = 0
            cur = first if 10 <= n < 16 else (side if n > 16 else look if n == 9 else pk0 if n == self.opt.get("pkat", 5) else addr if n < 4 else [])
            for t in range(2):
                for u in range(2):
                    h = vr(b + 4 * u, 4)
                    for acc, w, tr in (((ak, wk, True), (av, wv, False)) if n < 16 else ((aq, wq, True),)):
                        d = vr(acc(t, u), 4)
                        c = "0" if kk == 0 else d
                        a_, b_ = (w(ks, t, hf), h) if tr else (h, w(ks, t, hf))
                        k(f"v_mfma_f32_16x16x32_bf16 {d}, {a_}, {b_}, {c}")
                        i += 1
                        if fill and i % 2 == 1:
                            k(fill.pop(0))
                        elif cur and (n < 16 or not cur[0].startswith("v_")):
                            k(cur.pop(0))
                        if n > 16 or (n == 16 and i > 2):
                            for _ in range(2):
                                if side and side[0].startswith("v_"):
                                    k(side.pop(0))
        assert not first and not side and not look and not addr, (len(first), len(side))
        self.mark(self.mk + 4)
        for u in range(2):
            for r in range(4):
                k(f"v_cvt_pk_bf16_f32 v{HB+4*u+r}, v{aq(0,u)+r}, v{aq(1,u)+r}")
        for u in range(2):
            k(f"buffer_store_dwordx4 {vr(HB+4*u,4)}, v{V_L16}, {WS}, s{S_T+7+u} offen sc1")
        if early:
            self.page(S_T + 3, F_KV[which])
            self.flag_set(S_T + 3, " sc1", keep=3 if peek else 2)
        else:
            k(f"s_waitcnt vmcnt({7 if peek else 6})")
            k("s_barrier")
        self.mark(self.mk + 5)
        self.flush()

    def make_sel(self, dst, t):
        k = self.k
        k(f"""v_and_b32 v{t}, 15, v{V_LANE}
              v_and_b32 v{t+1}, 1, v{V_LANE}
              v_lshlrev_b32 v{t+1}, 4, v{t+1}
              v_mov_b32 v{t+2}, 0x3f80
              v_lshlrev_b32 v{t+2}, v{t+1}, v{t+2}
              v_lshrrev_b32 v{t}, 1, v{t}""")
        for q in range(4):
            k(f"v_cmp_eq_u32 vcc, {q}, v{t}")
            k(f"v_cndmask_b32 v{dst+q}, 0, v{t+2}, vcc")

    def softmax(self, S, P, t, fill=None, half=False):
        k = self.k
        fill = list(fill or [])
        def f(n=1):
            for _ in range(n):
                if fill:
                    k(fill.pop(0))
        if half:
            k(f"""v_max3_f32 v{t}, v{S}, v{S+1}, v{S+2}
                  v_max3_f32 v{t+1}, v{S+3}, v{S+10}, v{S+11}""")
        else:
            k(f"""v_max3_f32 v{t}, v{S}, v{S+1}, v{S+2}
                  v_max3_f32 v{t+1}, v{S+3}, v{S+4}, v{S+5}
                  v_max3_f32 v{t}, v{S+6}, v{S+7}, v{t}
                  v_max3_f32 v{t+1}, v{S+10}, v{S+11}, v{t+1}""")
        k(f"""v_max_f32 v{t}, v{t}, v{t+1}
              v_max_f32 v{t+1}, v{t}, v{t+1}""")
        f()
        k(f"""v_permlane16_swap_b32 v{t}, v{t+1}
              v_max_f32 v{t}, v{t}, v{t+1}
              v_max_f32 v{t+1}, v{t}, v{t+1}""")
        f()
        k(f"""v_permlane32_swap_b32 v{t}, v{t+1}
              v_max_f32 v{t}, v{t}, v{t+1}
              v_mul_f32 v{t}, s{S_C}, v{t}""")
        order = [0, 1, 2, 3, 10, 11] if half else [0, 1, 2, 3, 4, 5, 6, 7, 10, 11]
        k(f"v_fma_f32 v{S+order[0]}, v{S+order[0]}, s{S_C}, -v{t}")
        for n, i in enumerate(order):
            if n + 1 < len(order):
                j = order[n + 1]
                k(f"v_fma_f32 v{S+j}, v{S+j}, s{S_C}, -v{t}")
            k(f"v_exp_f32 v{S+i}, v{S+i}")
        for q in range(2 if half else 4):
            k(f"v_cvt_pk_bf16_f32 v{P+q}, v{S+2*q}, v{S+2*q+1}")
        k(f"v_cvt_pk_bf16_f32 v{P+4}, v{S+10}, v{S+11}")
        f(len(fill))

    def chain(self, c):
        k = self.k
        opt = self.opt
        IDX, IDX2, QKW, QKR0, QKR1, OW, OR, PST, MST, WOB, OB, MV = 2, 3, 4, 5, 6, 7, 8, 9, 10, 11, 55, 13
        MX, CK = 12, 123
        SEL, TCH, STS = 18, 22, 23
        M, KX, VX, QK, VA, T = 24, 56, 88, 96, 112, 120
        sMEM, sPC, sRD, sKV, sKVM, sRST, sM2, sU, sNAN, sW2, sFAIL, sPG, sOK, sREC, sFK, sFKB = (S_T + i for i in range(8, 24))
        sMX, sMXB = S_A, S_B
        sKF, sOK2, sJ = 18, 19, 20
        sPUB, sFK1 = 54, 55
        reg = min(c, 1)
        k(f"""v_and_b32 v{T}, 15, v{V_LANE}          ; c
              v_lshrrev_b32 v{T+1}, 4, v{V_LANE}     ; g
              v_and_b32 v{T+2}, 2, v{V_LANE}
              v_cmp_eq_u32 vcc, 0, v{T+2}
              v_mov_b32 v{IDX}, 0xeeee
              v_mov_b32 v{T+3}, 0x4444
              v_cndmask_b32 v{IDX}, v{IDX}, v{T+3}, vcc
              v_and_b32 v{T+2}, 1, v{V_LANE}
              v_cmp_eq_u32 vcc, 0, v{T+2}
              v_mov_b32 v{IDX2}, 0xdddd
              v_mov_b32 v{T+3}, 0x8888
              v_cndmask_b32 v{IDX2}, v{IDX2}, v{T+3}, vcc""")
        k(f"""v_lshrrev_b32 v{T+2}, 1, v{T}           ; b
              v_bfe_u32 v{T+3}, v{T}, 2, 1
              v_xor_b32 v{T+3}, v{T+3}, v{T+2}
              v_lshlrev_b32 v{QKW}, 7, v{T+3}
              v_and_b32 v{T+3}, 1, v{T}
              v_lshl_add_u32 v{QKW}, v{T+3}, 6, v{QKW}
              v_xor_b32 v{T+3}, v{T+1}, v{T+2}
              v_and_b32 v{T+3}, 3, v{T+3}
              v_lshl_add_u32 v{QKW}, v{T+3}, 4, v{QKW}
              s_lshl_b32 s{S_T}, s{S_W}, 10
              s_add_u32 s{S_T}, s{S_T}, {L_QK}
              v_add_u32 v{QKW}, s{S_T}, v{QKW}""")
        for hh, R in ((0, QKR0), (1, QKR1)):
            k(f"""v_lshlrev_b32 v{T+2}, 1, v{T+1}
                  v_add_u32 v{T+2}, {hh}, v{T+2}          ; b
                  v_and_b32 v{T+3}, 1, v{T+1}
                  v_xor_b32 v{T+3}, v{T+3}, v{T+2}
                  v_lshlrev_b32 v{R}, 7, v{T+3}
                  v_bfe_u32 v{T+3}, v{T}, 3, 1
                  v_lshl_add_u32 v{R}, v{T+3}, 6, v{R}
                  v_xor_b32 v{T+3}, v{T}, v{T+2}
                  v_and_b32 v{T+3}, 3, v{T+3}
                  v_lshl_add_u32 v{R}, v{T+3}, 4, v{R}
                  v_bfe_u32 v{T+3}, v{T}, 2, 1
                  v_lshl_add_u32 v{R}, v{T+3}, 3, v{R}
                  v_add_u32 v{R}, {L_QK}, v{R}""")
        k(f"""v_lshlrev_b32 v{OW}, 7, v{T+1}
              v_lshrrev_b32 v{T+2}, 1, v{T}
              v_lshl_add_u32 v{OR}, v{T+2}, 4, v{OW}
              v_add_u32 v{OR}, {L_O}, v{OR}
              v_lshrrev_b32 v{T+2}, 2, v{T}
              v_lshl_add_u32 v{OW}, v{T+2}, 5, v{OW}
              v_and_b32 v{T+2}, 1, v{T}
              v_lshl_add_u32 v{OW}, v{T+2}, 4, v{OW}
              v_and_b32 v{T+2}, 2, v{T}
              v_cmp_eq_u32 vcc, 0, v{T+2}
              s_lshl_b32 s{S_T}, s{S_W}, 9
              v_mov_b32 v{T+2}, 2048
              v_mov_b32 v{T+3}, s{S_T}
              v_cndmask_b32 v{T+2}, v{T+2}, v{T+3}, vcc
              v_add_u32 v{OW}, v{T+2}, v{OW}
              v_add_u32 v{OW}, {L_O}, v{OW}""")
        k(f"""v_lshrrev_b32 v{T+2}, 3, v{V_LANE}
              v_lshlrev_b32 v{PST}, 11, v{T+2}
              v_and_b32 v{T+2}, 7, v{V_LANE}
              v_lshl_add_u32 v{PST}, v{T+2}, 3, v{PST}
              s_lshl_b32 s{S_T}, s{S_W}, 14
              s_lshl_b32 s{S_T+1}, s{S_H}, 6
              s_add_u32 s{S_T}, s{S_T}, s{S_T+1}
              v_add_u32 v{PST}, s{S_T}, v{PST}""")
        k(f"""s_lshl_b32 s{sU}, s{S_W}, 5
              s_add_u32 s{sU}, s{sU}, s{S_H}
              s_bfe_u32 s{S_T}, s{sU}, 0x10003
              s_lshl_b32 s{S_T}, s{S_T}, 11              ; ((U>>3)&1)*4 lines*512
              s_and_b32 s{S_T+1}, s{sU}, 1
              s_lshl_b32 s{S_T+1}, s{S_T+1}, 10          ; (U&1)*2 lines
              s_add_u32 s{S_T}, s{S_T}, s{S_T+1}
              s_bfe_u32 s{S_T+1}, s{sU}, 0x10002
              s_lshl_b32 s{S_T+1}, s{S_T+1}, 9
              s_add_u32 s{S_T}, s{S_T}, s{S_T+1}
              s_bfe_u32 s{S_T+1}, s{sU}, 0x10001
              s_lshl_b32 s{S_T+1}, s{S_T+1}, 6
              s_add_u32 s{S_T}, s{S_T}, s{S_T+1}
              s_bfe_u32 s{S_T+1}, s{sU}, 0x10004
              s_lshl_b32 s{S_T+1}, s{S_T+1}, 8
              s_add_u32 s{S_T}, s{S_T}, s{S_T+1}
              s_bfe_u32 s{S_T+1}, s{sU}, 0x10005
              s_lshl_b32 s{S_T+1}, s{S_T+1}, 7
              s_add_u32 s{S_T}, s{S_T}, s{S_T+1}
              s_bfe_u32 s{S_T+1}, s{sU}, 0x10006
              s_lshl_b32 s{S_T+1}, s{S_T+1}, 12
              s_add_u32 s{S_T}, s{S_T}, s{S_T+1}
              v_and_b32 v{T+2}, 3, v{T}
              v_lshlrev_b32 v{MST}, 2, v{T+2}
              v_bfe_u32 v{T+2}, v{T}, 3, 1
              v_lshl_add_u32 v{MST}, v{T+2}, 4, v{MST}
              v_and_b32 v{T+2}, 1, v{T+1}
              v_lshl_add_u32 v{MST}, v{T+2}, 5, v{MST}
              v_add_u32 v{MST}, s{S_T}, v{MST}
              v_and_b32 v{T+3}, 36, v{V_LANE}
              v_mov_b32 v{T+2}, 0x80000000
              v_cmp_eq_u32 vcc, 0, v{T+3}
              v_cndmask_b32 v{MST}, v{T+2}, v{MST}, vcc
              s_lshl_b32 s{S_T}, s{S_W}, 15
              v_add_u32 v{WOB}, s{S_T}, v{V_L16}
              s_lshl_b32 s{sU}, s{sU}, 11
              s_lshl_b32 s{sW2}, s{S_W}, 11
              s_mov_b32 s{sNAN}, 0xffc00000
              s_mov_b32 s{sFAIL}, 0""")
        self.mfrag_voff(MV, T + 2)
        self.make_sel(SEL, T + 2)
        k(f"""s_and_b32 s{S_T}, s{S_W}, 1
              s_lshl_b32 s{S_T}, s{S_T}, 8
              s_and_b32 s{S_T+1}, s{S_W}, 2
              s_lshl_b32 s{S_T+1}, s{S_T+1}, 6
              s_add_u32 s{S_T}, s{S_T}, s{S_T+1}
              v_add_u32 v{MV}, s{S_T}, v{MV}""")
        k(f"""s_add_u32 s{S_T}, s{S_LW}, {L_MB}
              v_add_u32 v{MX}, s{S_T}, v{V_L16}
              v_mov_b64 v[14:15], {sr(S_ONE,2)}
              v_mov_b64 v[16:17], {sr(S_ONE,2)}""")
        k(f"""v_add_u32 v{TCH}, {MEM_OFF[c] + 2*8192}, v{MST}
              s_lshl_b32 s{sKF}, s{S_H}, 2
              s_add_u32 s{sKF}, s{sKF}, {PG_OFF + 8192 + F_KV[reg]}
              v_mov_b32 v1, s{S_C}
              s_mov_b32 s{sPC}, {PC_OFF[c]}
              s_add_u32 s{sRD}, s{sU}, {PC_OFF[c]}
              s_add_u32 s{sRST}, s{sU}, {PC_OFF[c] + 256*KB}
              s_mov_b32 s{sMX}, 0x40000000
              s_mov_b32 s{S_SEG}, 0""")
        sMK, sSCN = S_A, S_B
        if c == 2:
            k(f"""v_lshrrev_b32 v{T}, 2, v{V_L16}
                  v_add_u32 v{T}, {PG_OFF + (1+LOOK)*8192 + F_RKU - 128}, v{T}
                  v_or_b32 v{T}, s{S_OOB}, v{T}
                  s_mov_b64 vcc, -1
                  s_mov_b32 vcc_lo, 0
                  v_cndmask_b32 v{TCH}, v{TCH}, v{T}, vcc
                  s_or_b32 s{S_T}, s{S_OOB}, {PG_OFF + 8192 + F_J}
                  v_writelane_b32 v{TCH}, s{S_T}, 4
                  s_or_b32 s{S_T}, s{S_H}, s{S_W}
                  s_mov_b32 s{S_T}, {PG_OFF + F_RM}
                  s_cmov_b32 s{S_T}, 0x80000000
                  v_writelane_b32 v{TCH}, s{S_T}, 5
                  s_mov_b32 s{sMK}, 0
                  s_mov_b32 s{sSCN}, 0""")
        def keys_wait(seg, va):
            L_ = k.newlabel("L_ckk")
            self.page(S_T + 3, F_RKU, seg=seg, head=False)
            k(f"""v_lshrrev_b32 v{va+1}, 2, v{V_L16}
                  v_and_b32 v{va+1}, 127, v{va+1}""")
            k.label(L_)
            k(f"""s_sleep {opt.get("slu", 1)}
                  buffer_load_dword v{va}, v{va+1}, {WS}, s{S_T+3} offen sc1""")
            self.spend()
            k(f"""s_waitcnt vmcnt(0)
                  v_cmp_eq_u32 vcc, 0, v{va}
                  s_cbranch_vccnz {L_}""")
        dma = [f"s_add_u32 m0, s{sW2}, {L_KX}",
               f"s_add_u32 s{S_T+1}, s{sKV}, {8*KB}",
               f"buffer_load_dwordx4 v{V_L16}, {WS}, s{sKV} offen sc1 lds",
               f"buffer_load_dwordx4 v{V_L16}, {WS}, s{sKV} offen offset:1024 sc1 lds",
               f"s_add_u32 m0, s{sW2}, {L_VX}",
               f"s_add_u32 s{sKV}, s{sKV}, {32*24*KB}",
               f"buffer_load_dwordx4 v{V_L16}, {WS}, s{S_T+1} offen sc1 lds",
               f"buffer_load_dwordx4 v{V_L16}, {WS}, s{S_T+1} offen offset:1024 sc1 lds"]
        def kv_read(extra=None, pos=0):
            k(f"v_add_u32 v{OB}, {L_KX}, v{V_L16}")
            for i in range(8):
                if extra and i == pos:
                    k(extra)
                k(f"ds_read_b128 {vr(KX+4*i,4)}, v{OB} offset:{((i&1)*4+(i>>1))*1024}")
            k(f"v_add_u32 v{CK}, s{sW2}, v{OB}")
            for t in range(2):
                k(f"ds_read_b128 {vr(VX+4*t,4)}, v{CK} offset:{L_VX-L_KX+t*1024}")
        def zero(b, n):
            for i in range(0, n, 2):
                k(f"v_mov_b64 {vr(b+i,2)}, 0")
        def mload(hf):
            return f"buffer_load_dwordx4 {vr(M+16*hf,4)}, v{MV}, {WS}, s{sM2 if hf else sMEM} offen sc1"
        chk2 = [f"v_max3_u32 v{CK}, v{M}, v{M+1}, v{M+2}", f"v_max3_u32 v{CK}, v{M+3}, v{M+16}, v{CK}",
                f"v_max3_u32 v{CK}, v{M+17}, v{M+18}, v{CK}", f"v_max_u32 v{CK}, v{M+19}, v{CK}",
                f"v_cmp_le_u32 vcc, s{sNAN}, v{CK}"]
        mwrite = lambda hf: f"ds_write_b128 v{MX}, {vr(M+16*hf,4)} offset:{hf*4096}"
        mread = lambda hf, i: f"ds_read_b128 {vr(M+16*hf+4*i,4)}, v{T+i-1} offset:{hf*4096}"
        LEAD, LEADB, JS = (k.newlabel(x) for x in ("L_cld", "L_clb", "L_cjs"))
        START, KVW, KVB, JW, JUMP = (k.newlabel(x) for x in ("L_cst", "L_ckw", "L_ckb", "L_cjw", "L_cjump"))
        first = reg
        if opt.get("pcwarm", 1) and not self.loc:
            for i, r_ in enumerate((sRD, sRST)):
                for j in range(2):
                    k(f"buffer_load_dwordx4 {vr(KX+8*i+4*j,4)}, v{V_L16}, {WS}, s{r_} offen offset:{j*1024}")
            k("s_waitcnt vmcnt(0)")
        SW = k.newlabel("L_csw")
        WO_ = 3072 - 512
        k.label(START)
        k(f"""s_cmp_lg_u32 s{S_W}, 0
              s_cbranch_scc1 {SW}""")
        if c == 2:
            keys_wait(sSCN, T)
            self.wmax_u32(T, T + 1)
            k(f"""v_readfirstlane_b32 s{S_T+5}, v{T}
                  s_max_u32 s{sMK}, s{sMK}, s{S_T+5}
                  s_add_u32 s{sSCN}, s{sSCN}, 1
                  s_andn2_b32 s{S_SEG}, 0x7ff, s{sMK}
                  s_lshr_b32 s{S_SEG}, s{S_SEG}, 5
                  s_add_u32 s{S_T+5}, s{S_SEG}, {LOOK}
                  s_min_u32 s{S_T+5}, s{S_T+5}, 63
                  s_cmp_le_u32 s{sSCN}, s{S_T+5}
                  s_cbranch_scc1 {START}
                  v_mov_b32 v{T}, 0
                  v_mov_b32 v{T+1}, s{sMK}
                  ds_write_b32 v{OR}, v{T} offset:{WO_}
                  ds_write_b32 v{OR}, v{T+1} offset:{WO_ + 512}""")
        self.ev(40 + c, va=T + 2)
        self.page(S_T + 3, F_KV[first])
        self.word_wait(S_T + 3, S_T + 5, va=T + 2, sleep=1)
        k.label(SW)
        k("""s_waitcnt lgkmcnt(0)
             s_barrier""")
        if c == 2:
            k(f"""ds_read_b32 v{T}, v{OR} offset:{WO_ + 512}
                  s_waitcnt lgkmcnt(0)
                  v_readfirstlane_b32 s{sMK}, v{T}
                  s_andn2_b32 s{S_SEG}, 0x7ff, s{sMK}
                  s_lshr_b32 s{S_SEG}, s{S_SEG}, 5""")
        self.qkv_base(S_T, first)
        k(f"s_add_u32 s{sKV}, s{S_T}, s{sW2}")
        for d in dma:
            k(d)
        k(f"""s_lshl_b32 s{sPG}, s{S_SEG}, 13
              s_add_u32 s{S_T}, s{sPG}, {MEM_OFF[c] + 8192}
              buffer_load_dword v{STS}, v{MST}, {WS}, s{S_T} offen sc1
              s_add_u32 s{sMEM}, s{sPG}, {MEMX_OFF if c == 2 else MEM_OFF[c]}
              s_add_u32 s{sM2}, s{sMEM}, 4096
              s_lshl_b32 s{sKVM}, s{S_SEG}, 5
              s_add_u32 s{sKVM}, s{sKVM}, s{S_H}
              s_lshl_b32 s{sKVM}, s{sKVM}, 12
              s_lshl_b32 s{S_T}, s{S_W}, 10
              s_add_u32 s{sKVM}, s{sKVM}, s{S_T}
              s_add_u32 s{sKVM}, s{sKVM}, {KVM_OFF[c]}
              s_mov_b32 s{sPUB}, 0x80000000
              s_mov_b32 s{sREC}, 0
              s_mov_b32 s{sOK2}, 0
              s_cmp_eq_u32 s{S_SEG}, 63
              s_cselect_b32 s{sOK}, 1, s{S_W}
              s_cmp_eq_u32 s{sOK}, 0
              s_cselect_b32 s{sOK}, 1, 0""")
        q_ = lambda t: QK + 8 * t
        k_ = lambda t: QK + 8 * t + 4
        sq = lambda ks, t: f"v_smfmac_f32_16x16x64_bf16 {vr(q_(t),4)}, {vr(M+4*ks,4)}, {wq(ks,t)}, v{IDX}"
        sk = lambda ks, t: f"v_smfmac_f32_16x16x64_bf16 {vr(k_(t),4)}, {vr(M+4*ks,4)}, {wk(ks,t)}, v{IDX}"
        sv = lambda ks, t: f"v_smfmac_f32_16x16x64_bf16 {vr(VA+4*t,4)}, {vr(M+4*ks,4)}, {wv(ks,t)}, v{IDX}"
        zero(QK, 24)
        if c == 2:
            HL, HD = k.newlabel("L_chp"), k.newlabel("L_chd")
            A_ = KX
            k(f"""v_lshrrev_b32 v{A_}, 8, v{V_L16}
                  v_lshlrev_b32 v{A_}, 5, v{A_}
                  v_bfe_u32 v{A_+1}, v{V_L16}, 5, 1
                  v_lshl_add_u32 v{A_}, v{A_+1}, 2, v{A_}
                  s_lshl_b32 s{S_T}, s{S_W}, 7
                  s_add_u32 s{S_T}, s{S_T}, {L_MB}
                  v_add_u32 v{A_}, s{S_T}, v{A_}
                  v_xor_b32 v{A_+1}, 128, v{A_}
                  v_xor_b32 v{A_+2}, 256, v{A_}
                  v_xor_b32 v{A_+3}, 384, v{A_}
                  s_andn2_b32 s{S_T}, 31, s{sMK}
                  s_lshr_b32 s{S_T+1}, s{S_T}, 4
                  s_lshl_b32 s{S_T+2}, s{S_T+1}, 12
                  s_and_b32 s{S_T+3}, s{S_T}, 15
                  s_lshl4_add_u32 s{S_T+2}, s{S_T+3}, s{S_T+2}
                  s_add_u32 s{S_T+2}, s{S_T+2}, s{S_LW}
                  s_add_u32 s{S_T+2}, s{S_T+2}, {L_KX}
                  v_bfe_u32 v{A_+4}, v{V_L16}, 6, 2
                  v_lshlrev_b32 v{A_+4}, 8, v{A_+4}
                  v_bfe_u32 v{A_+5}, v{V_L16}, 4, 2
                  v_lshl_add_u32 v{A_+4}, v{A_+5}, 2, v{A_+4}
                  v_add_u32 v{A_+4}, s{S_T+2}, v{A_+4}
                  s_lshr_b32 s{S_T+2}, s{S_T+3}, 2
                  s_lshl_b32 s{S_T+2}, s{S_T+2}, 8
                  s_lshl3_add_u32 s{S_T+2}, s{S_T+1}, s{S_T+2}
                  s_and_b32 s{S_T+3}, s{S_T}, 3
                  s_lshl1_add_u32 s{S_T+2}, s{S_T+3}, s{S_T+2}
                  s_add_u32 s{S_T+2}, s{S_T+2}, s{sW2}
                  s_add_u32 s{S_T+2}, s{S_T+2}, {L_VX}
                  v_and_b32 v{A_+5}, 255, v{V_L16}
                  v_add_u32 v{A_+5}, s{S_T+2}, v{A_+5}
                  s_cmp_lg_u32 s{S_W}, 0
                  s_cbranch_scc1 {HD}
                  s_lshl_b32 s{S_T+3}, s{S_SEG}, 10
                  s_add_u32 s{S_T+3}, s{S_T+3}, {HPS_OFF}""")
            k.label(HL)
            k(f"buffer_load_dwordx4 {vr(T,4)}, v{V_L16}, {WS}, s{S_T+3} offen sc1")
            self.spend()
            k(f"""s_waitcnt vmcnt(0)
                  v_max3_u32 v{T+4}, v{T}, v{T+1}, v{T+2}
                  v_max_u32 v{T+4}, v{T+3}, v{T+4}
                  v_cmp_eq_u32 vcc, -1, v{T+4}
                  s_cbranch_vccnz {HL}
                  ds_write_b128 v{MX}, {vr(T,4)}""")
            k.label(HD)
            k("""s_waitcnt vmcnt(0) lgkmcnt(0)
                 s_barrier""")
            for i in range(8):
                for hq in range(2):
                    o_ = (i >> 2) * 128 + 4 * hq
                    k(f"ds_read2_b32 {vr(M+4*i+2*hq,2)}, v{A_+(i&3)} offset0:{o_} offset1:{o_+2}")
                if i == 3:
                    k("s_waitcnt lgkmcnt(4)")
            for i in range(8):
                k(f"s_waitcnt lgkmcnt({min(14 - 2*i, 12)})")
                for x in (sk(i, 0), sv(i, 0), sk(i, 1), sv(i, 1)):
                    k(x)
            for a_ in (k_(0), VA, k_(1), VA + 4):
                k(f"v_add_f32 v{a_}, v{a_}, v{a_+2}")
            k(f"""v_cvt_pk_bf16_f32 v{T}, v{k_(0)}, v{k_(1)}
                  v_cvt_pk_bf16_f32 v{T+1}, v{VA}, v{VA+4}
                  ds_write_b32 v{A_+4}, v{T}
                  ds_write_b16 v{A_+5}, v{T+1}
                  ds_write_b16_d16_hi v{A_+5}, v{T+1} offset:1024""")
            zero(QK, 24)
        k("""s_waitcnt vmcnt(0) lgkmcnt(0)
             s_barrier""")
        kv_read()
        LOOP, PA, PAB, END, GO = (k.newlabel(x) for x in ("L_chain", "L_cpa", "L_cpab", "L_cend", "L_cgo"))
        RP, RB, PB, PBB, BACK = (k.newlabel(x) for x in ("L_crp", "L_crb", "L_cpb", "L_cpbb", "L_cback"))
        qk4 = lambda ks: [sq(ks, 0), sk(ks, 0), sq(ks, 1), sk(ks, 1)]
        vlist = [(ks, t) for ks in range(8) for t in range(2)]
        def vs(n):
            for _ in range(n):
                if vlist:
                    k(sv(*vlist.pop(0)))
        def weave(mm, other):
            other = list(other)
            for o in mm:
                k(o)
                if other:
                    k(other.pop(0))
            for o in other:
                k(o)
        ONES = 14
        PT_ = M + 28
        pub = [f"v_add_u32 v{PT_}, s{S_LW}, v{QKR0}", f"v_add_u32 v{PT_+2}, s{S_LW}, v{QKR1}",
               f"ds_read_b64_tr_b16 {vr(PT_,2)}, v{PT_}", f"ds_read_b64_tr_b16 {vr(PT_+2,2)}, v{PT_+2}",
               f"v_mov_b32_dpp v{T+4}, v{T+6} quad_perm:[2,3,2,3] row_mask:0xf bank_mask:0xf",
               f"v_mov_b32_dpp v{T+5}, v{T+7} quad_perm:[2,3,2,3] row_mask:0xf bank_mask:0xf",
               f"s_mov_b32 vcc_lo, 0xcccccccc", f"s_mov_b32 vcc_hi, 0xcccccccc", None]
        pub += [f"v_cndmask_b32 v{T+4+i}, v{T+4+i}, v{PT_+i}, vcc" for i in range(4)]
        pub += [f"buffer_store_dwordx4 {vr(T+4,4)}, v{V_L16}, {WS}, s{sPUB} offen sc1"]
        XT = T
        def xaddr():
            for i in range(1, 4):
                k(f"v_xor_b32 v{XT+i-1}, {i*1024}, v{MX}")
        xaddr()
        pipe = opt.get("pipe", 1)
        def chk(hf):
            b = M + 16 * hf
            return [f"v_max3_u32 v{CK}, v{b}, v{b+1}, v{b+2}", f"v_max_u32 v{CK}, v{b+3}, v{CK}", f"v_cmp_le_u32 vcc, s{sNAN}, v{CK}"]
        mpos = opt.get("mpos", (3, 7))
        for _ in mpos:
            k(mload(0))
        k.label(LOOP)
        self.stamp(0)
        k.label(PA)
        k(mload(0))
        self.spend(0x10000, sFAIL)
        k(f"s_waitcnt vmcnt({len(mpos)})")
        for x in chk(0):
            k(x)
        k(f"s_cbranch_vccnz {PA}")
        k.label(GO)
        self.stamp(1)
        k(mwrite(0))
        m1 = opt.get("m1", 0)
        weave(qk4(0), [""] * m1 + [mload(1)])
        k("""s_waitcnt lgkmcnt(0)
             s_barrier""")
        self.stamp("xa")
        V2 = lambda n: [sv(*vlist.pop(0)) for _ in range(n)]
        k(mread(0, 1))
        weave(V2(2), [mread(0, 2), mread(0, 3)])
        k("s_waitcnt lgkmcnt(2)")
        va, vb = opt.get("va", 0), opt.get("vb", 1)
        weave(qk4(1) + V2(va), [dma[0], dma[1], f"s_cmp_lt_u32 s{sOK2}, s{sOK}\ns_cbranch_scc1 {KVW}\n{KVB}:"])
        k("s_waitcnt vmcnt(0) lgkmcnt(1)")
        self.stamp("xb")
        c1 = chk(1)
        weave(qk4(2) + V2(vb), [mwrite(1) + "\n" + c1[0]] + c1[1:])
        k(f"s_cbranch_vccnz {PB}")
        k.label(BACK)
        k("""s_waitcnt lgkmcnt(0)
             s_barrier""")
        self.stamp("xc")
        if c == 1:
            k(f"buffer_store_dword v{M+30}, v{MST}, {WS}, s{sMX} offen sc1")
        if c == 2:
            k(f"ds_read_b32 v{CK}, v{OR} offset:{WO_}")
        packt = lambda t: [x for a_, d_ in ((q_(t), T + 2 * t), (k_(t), T + 2 * t + 1)) for x in
                           (f"v_add_f32 v{a_}, v{a_}, v{a_+2}", f"v_add_f32 v{a_+1}, v{a_+1}, v{a_+3}",
                            f"v_cvt_pk_bf16_f32 v{d_}, v{a_}, v{a_+1}")]
        mm = qk4(3) + qk4(4) + [f(ks, t) for t in range(2) for ks in (5, 6, 7) for f in (sq, sk)] + V2(2)
        n0 = 8
        far = {"a": [dma[2]], "b": [dma[3], dma[4]], "c": [dma[6], dma[5]], "d": [dma[7]], "p": [pub[-1]],
               "t": [f"buffer_load_dword v{STS}, v{TCH}, {WS}, s{sPG} offen sc1"], "-": []}
        side = {1: [mread(1, 1)], 3: [mread(1, 2)], 5: [mread(1, 3)]}
        for i_, x in enumerate(opt.get("ford", "pabcdt")):
            side[2 * i_] = list(far[x])
        if "t" not in opt.get("ford", "t") and c == 2:
            side[12] = far["t"]
        if c == 2:
            side.setdefault(n0 + 1, []).append(f"v_readfirstlane_b32 s{S_T+2}, v{CK}")
            side.setdefault(n0 + 3, []).append(f"s_cmp_lg_u32 s{S_T+2}, 0\ns_cbranch_scc1 {JUMP}")
        waits = {n0: 2, n0 + 2: 1, n0 + 4: 0}
        for i_, x in enumerate(packt(0)):
            side.setdefault(n0 + 8 + i_, []).append(x)
        for n, o in enumerate(mm):
            if n in waits:
                k(f"s_waitcnt lgkmcnt({waits[n]})")
            k(o)
            for x in side.get(n, []):
                k(x)
        self.stamp("back")
        for x in packt(1):
            k(x)
        k(f"ds_write_b128 v{QKW}, {vr(T,4)}")
        vend = list(vlist)
        weave(V2(opt.get("vd", 4)),
              [f"s_mov_b32 s{sPUB}, s{sKVM}\ns_add_u32 s{sKVM}, s{sKVM}, {32*4*KB}\nv_mov_b32 v{T+5}, 0",
               f"s_cmp_eq_u32 s{S_SEG}, 63\ns_cbranch_scc1 {END}"])
        self.stamp("w0")
        k("s_waitcnt lgkmcnt(0)")
        self.stamp("w1")
        k("s_barrier")
        self.stamp(2)
        F = QK
        tr = [f"ds_read_b64_tr_b16 {vr(F+4*kk+2*hh,2)}, v{(QKR0, QKR1)[hh]} offset:{kk*1024}" for kk in range(4) for hh in range(2)]
        S = M
        slots = [KX, KX + 8, KX + 16, KX + 24, F, F + 8, M + 16, M + 24]
        def wo_reads(u):
            return [f"ds_read_b128 {vr(slots[(u&1)*4+kk]+4*hf,4)}, v{WOB} offset:{((u*4+kk)*2+hf)*1024}"
                    for kk in range(4) for hf in range(2)]
        st_ = wo_reads(0) + wo_reads(1)
        nv3 = opt.get("v3", 4)
        lq = []
        def ld(x):
            k(x); lq.append(x)
        def lwait(x):
            k(f"s_waitcnt lgkmcnt({len(lq) - 1 - lq.index(x)})")
        for x in tr[:6 - nv3]:
            ld(x)
        for x in tr[6 - nv3:6]:
            vs(1); ld(x)
        shadow = [tr[6], tr[7], st_[12]] + [st_[i] for i in (0, 1, 8, 2, 3, 9, 4, 5, 10, 6, 7, 11, 13, 14, 15)]
        for kk in range(4):
            lwait(tr[2 * kk + 1])
            f = vr(F + 4 * kk, 4)
            for a_, d_ in ((vr(KX + 8 * kk, 4), S), (vr(KX + 8 * kk + 4, 4), S + 4), (f, S + 8)):
                k(f"v_mfma_f32_16x16x32_bf16 {vr(d_,4)}, {a_}, {f}, {'0' if kk == 0 else vr(d_,4)}")
                ld(shadow.pop(0))
        assert len(vlist) <= 3
        while vlist:
            vs(1)
            if len(shadow) > 2:
                ld(shadow.pop(0))
        self.stamp(3)
        P = T
        t0 = T + 6
        VM, VM1 = T + 6, M + 12
        O = VA; Lr = S + 8
        sub = lambda i: f"v_pk_add_f32 {vr(S+i,2)}, {vr(S+i,2)}, {vr(t0,2)} op_sel_hi:[1,0] neg_lo:[0,1] neg_hi:[0,1]"
        mul = lambda i: f"v_pk_mul_f32 {vr(S+i,2)}, {vr(S+i,2)}, v[0:1] op_sel:[0,1]"
        ex = lambda i: f"v_exp_f32 v{S+i}, v{S+i}"
        sh = lambda: shadow.pop(0) if shadow else ""
        k(f"""v_max3_f32 v{t0}, v{S}, v{S+1}, v{S+2}
              v_max3_f32 v{t0+1}, v{S+3}, v{S+4}, v{S+5}
              v_max3_f32 v{t0}, v{S+6}, v{S+7}, v{t0}
              v_max3_f32 v{t0+1}, v{S+10}, v{S+11}, v{t0+1}
              v_max_f32 v{t0}, v{t0}, v{t0+1}
              v_max_f32 v{t0+1}, v{t0}, v{t0+1}
              {mul(10)}
              {mul(0)}
              v_permlane16_swap_b32 v{t0}, v{t0+1}
              v_max_f32 v{t0}, v{t0}, v{t0+1}
              v_max_f32 v{t0+1}, v{t0}, v{t0+1}
              {mul(2)}
              {mul(4)}
              v_permlane32_swap_b32 v{t0}, v{t0+1}
              v_max_f32 v{t0}, v{t0}, v{t0+1}
              v_mul_f32 v{t0}, v1, v{t0}
              {mul(6)}
              {sub(10)}
              v_pk_add_f32 {vr(VA,2)}, {vr(VA,2)}, {vr(VA+2,2)}
              v_pk_add_f32 {vr(VA+4,2)}, {vr(VA+4,2)}, {vr(VA+6,2)}
              {sub(0)}
              {sub(2)}
              {sub(4)}
              {sub(6)}
              {ex(10)}
              {ex(11)}
              v_cvt_pk_bf16_f32 v{VM}, v{VA}, v{VA+1}
              v_cvt_pk_bf16_f32 v{P+4}, v{S+10}, v{S+11}
              v_cvt_pk_bf16_f32 v{VM+1}, v{VA+4}, v{VA+5}
              v_cvt_pk_bf16_f32 v{VM1}, v{VA+4}, v{VA+5}
              v_mfma_f32_16x16x16_bf16 {vr(Lr,4)}, {vr(ONES,2)}, {vr(P+4,2)}, 0
              {sh()}
              {ex(0)}
              v_mfma_f32_16x16x16_bf16 {vr(O,4)}, {vr(VM,2)}, {vr(P+4,2)}, 0
              {sh()}
              {ex(1)}
              v_mfma_f32_16x16x16_bf16 {vr(O+4,4)}, {vr(VM1,2)}, {vr(P+4,2)}, 0
              {sh()}
              {ex(2)}""")
        for i in range(3, 8):
            k(ex(i))
            if i & 1:
                k(f"v_cvt_pk_bf16_f32 v{P+(i>>1)-1}, v{S+i-3}, v{S+i-2}")
        k(f"v_cvt_pk_bf16_f32 v{P+3}, v{S+6}, v{S+7}")
        for nm in opt.get("fw", ()):
            k(f"s_waitcnt vmcnt({nm})")
            self.stamp("f%d" % nm)
        self.stamp(4)
        k(f"""s_add_u32 s{sPG}, s{sPG}, 8192
              s_add_u32 s{S_SEG}, s{S_SEG}, 1
              v_mfma_f32_16x16x32_bf16 {vr(Lr,4)}, {vr(ONES,4)}, {vr(P,4)}, {vr(Lr,4)}
              {sh()}
              v_mfma_f32_16x16x32_bf16 {vr(O,4)}, {vr(VX,4)}, {vr(P,4)}, {vr(O,4)}
              ds_read_b128 {vr(VX,4)}, v{WOB} offset:{16*1024}
              v_mfma_f32_16x16x32_bf16 {vr(O+4,4)}, {vr(VX+4,4)}, {vr(P,4)}, {vr(O+4,4)}
              ds_read_b128 {vr(VX+4,4)}, v{WOB} offset:{17*1024}
              v_rcp_f32 v{Lr}, v{Lr}""")
        assert not shadow
        acc = [VA, VA + 4, T, VA]
        k(f"""v_mov_b64 {vr(S,2)}, -1
              v_mov_b64 {vr(S+2,2)}, -1
              s_add_u32 s{sMEM}, s{sPG}, {MEM_OFF[c]}
              s_add_u32 s{sM2}, s{sMEM}, 4096""")
        for e in range(0, 8, 2):
            k(f"v_pk_mul_f32 {vr(O+e,2)}, {vr(O+e,2)}, {vr(Lr,2)} op_sel_hi:[1,0]")
        for r in range(4):
            k(f"v_cvt_pk_bf16_f32 v{T+r}, v{O+r}, v{O+4+r}")
        k(f"ds_write_b128 v{OW}, {vr(T,4)}")
        k(f"""buffer_store_dwordx4 {vr(S,4)}, v{V_L16}, {WS}, s{sRST} offen{self.loc}
              buffer_store_dwordx4 {vr(S,4)}, v{V_L16}, {WS}, s{sRST} offen offset:1024{self.loc}""")
        zero(VA, 8)
        k("s_waitcnt lgkmcnt(0)")
        k("s_barrier")
        self.stamp(5)
        OA = M
        lq[:] = []
        ord_ = [f"ds_read_b128 {vr(OA+4*kk,4)}, v{OR} offset:{kk*512}" for kk in range(4)]
        for x in ord_:
            ld(x)
        zero(T, 4)
        where = slots + [VX] + slots[:7]
        stream = [f"ds_read_b128 {vr(where[i]+4*hf,4)}, v{WOB} offset:{(i*2+hf)*1024}" for i in range(9, 16) for hf in range(2)]
        def wo_out(u):
            a = acc[u]
            return [f"v_cvt_pk_bf16_f32 v{a}, v{a}, v{a+1}", f"v_cvt_pk_bf16_f32 v{a+1}, v{a+2}, v{a+3}",
                    f"buffer_store_dwordx2 {vr(a,2)}, v{PST}, {WS}, s{S_T+u if u else sPC} offen{self.loc}"]
        oth = {0: [f"s_add_u32 s{S_T+1}, s{sPC}, {64*KB}"], 1: [f"s_add_u32 s{S_T+2}, s{sPC}, {128*KB}"],
               2: [f"s_add_u32 s{S_T+3}, s{sPC}, {192*KB}"]}
        if c == 1:
            oth[3] = [f"s_add_u32 s{sMX}, s{sPG}, {MEMX_OFF}"]
        for u in range(3):
            o_ = wo_out(u)
            oth[4 * u + 5] = o_[:1]
            oth[4 * u + 6] = o_[1:]
        oth[7] = [f"v_mov_b64 {vr(VA,2)}, 0"]
        oth[8] = [f"v_mov_b64 {vr(VA+2,2)}, 0"]
        oth[11] = pub[:1]
        oth[12] = pub[1:2]
        tail_ld = {13: pub[2], 14: pub[3]}
        todo = list(stream)
        dbl = opt.get("wdbl", (8, 10))
        for i in range(16):
            if i < 4:
                lwait(ord_[i])
            if i >= 9:
                lwait(stream[2 * (i - 9) + 1])
            if i == 15:
                k(f"s_add_u32 s{S_T}, s{sKF}, s{sPG}")
            k(f"v_smfmac_f32_16x16x64_bf16 {vr(acc[i>>2],4)}, {vr(OA+4*(i&3),4)}, {vr(where[i],8)}, v{IDX2}")
            self.stamp("o%d" % i)
            for _ in range(2 if i in dbl else 1):
                if todo:
                    ld(todo.pop(0))
            if i in tail_ld:
                ld(tail_ld[i])
            for x in oth.get(i, []):
                k(x)
        zero(VA + 4, 4)
        k(f"s_xor_b32 s{sPC}, s{sPC}, {256*KB}")
        for x in pub[4:8] + wo_out(3) + ["s_waitcnt lgkmcnt(0)", f"s_buffer_load_dword s{sOK2}, {WS}, s{S_T}"]:
            k(x)
        self.stamp(6)
        RS = (M + 8, M + 20); RA = M + 4; RT = M + 28
        def rloads(R):
            for i in range(2):
                k(f"buffer_load_dwordx4 {vr(R+4*i,4)}, v{V_L16}, {WS}, s{sRD} offen offset:{i*1024} sc1")
        def reduce(R, fill=()):
            k(f"s_waitcnt vmcnt({3 if opt.get('two') else 1})")
            self.stamp("r2")
            k(f"v_mfma_f32_16x16x32_bf16 {vr(RA,4)}, {vr(SEL,4)}, {vr(R,4)}, 0")
            k(f"s_waitcnt vmcnt({2 if opt.get('two') else 0})")
            k(f"v_mfma_f32_16x16x32_bf16 {vr(RA,4)}, {vr(SEL,4)}, {vr(R+4,4)}, {vr(RA,4)}")
            for x in fill:
                k(x)
            k(f"""v_cmp_u_f32 vcc, v{RA}, v{RA}
                  v_add_f32_dpp v{RT}, v{RA}, v{RA} row_ror:8 row_mask:0xf bank_mask:0x3
                  v_add_f32_dpp v{RT+1}, v{RA+1}, v{RA+1} row_ror:8 row_mask:0xf bank_mask:0x3
                  v_add_f32_dpp v{RT}, v{RA+2}, v{RA+2} row_ror:8 row_mask:0xf bank_mask:0xc
                  v_add_f32_dpp v{RT+1}, v{RA+3}, v{RA+3} row_ror:8 row_mask:0xf bank_mask:0xc
                  v_add_f32_dpp v{RT}, v{RT}, v{RT} row_shl:4 row_mask:0xf bank_mask:0x5
                  v_add_f32_dpp v{RT+1}, v{RT+1}, v{RT+1} row_shl:4 row_mask:0xf bank_mask:0x5""")
        kvr = [f"ds_read_b128 {vr(KX+4*i,4)}, v{OB} offset:{((i&1)*4+(i>>1))*1024}" for i in range(8)]
        kvr += [f"ds_read_b128 {vr(VX+4*t,4)}, v{CK} offset:{L_VX-L_KX+t*1024}" for t in range(2)]
        work = pub[9:13] + [f"v_mov_b64 {vr(QK+i,2)}, 0" for i in range(0, 20, 2)] \
            + [f"v_add_u32 v{OB}, {L_KX}, v{V_L16}", f"v_add_u32 v{CK}, s{sW2}, v{OB}"]
        for x in work:
            k(x)
        xaddr()
        two = opt.get("two", 0)
        RG = k.newlabel("L_crg")
        e0, e1, e2 = opt.get("ea", (2, 1, 0))
        k(f"""s_cmp_lt_u32 s{S_W}, 2
              s_waitcnt vmcnt({e0})
              s_cbranch_scc1 {RG}
              s_cmp_eq_u32 s{S_W}, 2
              s_waitcnt vmcnt({e1})
              s_cbranch_scc1 {RG}
              s_waitcnt vmcnt({e2})""")
        k.label(RG)
        self.stamp("ea")
        rloads(RS[0])
        blate = opt.get("blate", 1)
        if not blate:
            k("s_barrier")
        kp = opt.get("kvpos", 0)
        for i, x in enumerate(kvr[:kp]):
            if two and i == two:
                rloads(RS[1])
            k(x)
        k(f"""s_cmp_ge_u32 s{S_SEG}, 63
              s_cselect_b32 s{sOK}, 0, 1""")
        if c == 2:
            k(f"""v_readlane_b32 s{S_T}, v{STS}, 5
                  v_readlane_b32 s{sJ}, v{STS}, 4
                  v_add_u32 v{STS}, -1, v{STS}
                  v_cmp_le_u32 vcc, s{sMK}, v{STS}
                  s_cmp_gt_u32 s{S_SEG}, {63 - LOOK}
                  s_cselect_b32 s{sREC}, 0, vcc_hi
                  s_cmp_gt_u32 s{sJ}, s{sMK}
                  s_cselect_b32 s{sREC}, 1, s{sREC}
                  s_cmp_lg_u32 s{sREC}, 0
                  s_cselect_b32 s{sOK}, 2, s{sOK}
                  s_cmp_gt_u32 s{S_T}, s{sMK}
                  s_cbranch_scc1 {LEAD}""")
            k.label(LEADB)
        k(f"""s_cmp_eq_u32 s{S_W}, 0
              s_cselect_b32 s{sOK}, s{sOK}, 0""")
        OKR = k.newlabel("L_cok")
        reduce(RS[0])
        k(f"s_cbranch_vccnz {RP}")
        k.label(OKR)
        k(f"""v_cvt_pk_bf16_f32 v{RT+2}, v{RT}, v{RT+1}
              buffer_store_dword v{RT+2}, v{MST}, {WS}, s{sMEM} offen{self.loc}
              s_mov_b32 s{sRST}, s{sRD}
              s_xor_b32 s{sRD}, s{sRD}, {256*KB}""")
        self.stamp(7)
        if blate:
            k("s_barrier")
        for i, x in enumerate(kvr):
            if i in mpos:
                k(mload(0))
            k(x)
        if opt.get("mack"):
            k(f"s_waitcnt vmcnt({2 if pipe else 0})")
        if self.stamps > 1:
            NX = k.newlabel("L_cnx")
            k(f"""s_and_b32 s{S_T}, s{S_SEG}, 7
                  s_cmp_lg_u32 s{S_T}, 7
                  s_cbranch_scc1 {NX}""")
            if c == opt.get("stc", 0):
                self.dump_stamps(8, sFAIL, M + 4)
            k.label(NX)
        if self.stamps:
            NE = k.newlabel("L_cne")
            k(f"""s_and_b32 s{S_T}, s{S_SEG}, 7
                  s_cmp_lg_u32 s{S_T}, 1
                  s_cbranch_scc1 {NE}""")
            self.ev(50 + c, va=M + 4)
            self.ev(56 + c, va=M + 4, clk="s_memtime")
            k.label(NE)
        k(f"s_branch {LOOP}")
        for hf, lab, back in ((1, PB, BACK),):
            k.label(lab)
            k(mload(hf))
            self.spend(1 if hf else 0x10000, sFAIL)
            k("s_waitcnt vmcnt(0)")
            for x in chk(hf):
                k(x)
            k(f"""s_cbranch_vccnz {lab}
                  {mwrite(1)}
                  s_branch {back}""")
        k.label(RP)
        st_, self.stamps = self.stamps, min(self.stamps, 1)
        for i in (0, 1) if two else (0,):
            rloads(RS[i])
            self.spend(0x100, sFAIL)
            reduce(RS[1 - i if two else 0])
            k(f"s_cbranch_vccz {OKR}")
        k(f"s_branch {RP}")
        self.stamps = st_
        k.label(KVW)
        if c == 2:
            k(f"""s_cmp_eq_u32 s{sREC}, 0
                  s_cbranch_scc1 {JW}
                  s_andn2_b32 s{sSCN}, 0x7ff, s{sJ}
                  s_lshr_b32 s{sSCN}, s{sSCN}, 5
                  s_cmp_gt_u32 s{sJ}, s{sMK}
                  s_cbranch_scc1 {JS}
                  s_add_u32 s{sSCN}, s{S_SEG}, {LOOK}""")
            keys_wait(sSCN, M + 20)
            k(f"""v_cmp_lt_u32 vcc, s{sMK}, v{M+20}
                  s_cbranch_vccz {JW}""")
            k.label(JS)
            k(f"""ds_write_b32 v{OR}, v{IDX} offset:{WO_}
                  s_waitcnt lgkmcnt(0)
                  s_branch {KVB}""")
            k.label(LEAD)
            k(f"""v_mov_b32 v{STS}, s{S_T}
                  s_add_u32 s{S_T}, s{sPG}, {PG_OFF + 8192 + F_J}
                  buffer_store_dword v{STS}, off, {WS}, s{S_T}{self.loc}
                  s_waitcnt vmcnt(0)
                  s_branch {LEADB}""")
            k.label(JW)
            k(f"""s_cmp_lg_u32 s{sOK2}, 0
                  s_cbranch_scc1 {KVB}""")
        k(f"s_add_u32 s{S_T+3}, s{sKF}, s{sPG}")
        self.ev(44, va=M + 20)
        self.word_wait(S_T + 3, sOK, va=STS, sleep=opt.get("slk", 1))
        self.ev(45, va=M + 20)
        k(f"s_branch {KVB}")
        if c == 2:
            k.label(JUMP)
            k(f"""s_waitcnt vmcnt(0) lgkmcnt(0)
                  s_barrier
                  s_branch {START}""")
        k.label(END)
        for x in vend[2:]:
            k(sv(*x))
        k(f"""s_waitcnt lgkmcnt(0)
              v_pk_add_f32 {vr(VA,2)}, {vr(VA,2)}, {vr(VA+2,2)}
              v_pk_add_f32 {vr(VA+4,2)}, {vr(VA+4,2)}, {vr(VA+6,2)}
              v_cvt_pk_bf16_f32 v{VM}, v{VA}, v{VA+1}
              v_cvt_pk_bf16_f32 v{VM+1}, v{VA+4}, v{VA+5}""")
        for x in pub:
            k(x or "s_waitcnt lgkmcnt(0)")
        k(f"s_mov_b32 s{S_SEG}, 64")
        self.ev(50 + c, va=M + 4)
        k("s_waitcnt vmcnt(0)")
        k("s_barrier")
        k.fence()
        k(f"v_lshrrev_b32 v{V_LANE}, 4, v{V_L16}")

    def dump_stamps(self, n, extra=None, va=36):
        k = self.k
        k(f"""s_waitcnt lgkmcnt(0)
              s_lshl_b32 s{S_T}, s{S_SEG}, 5
              s_add_u32 s{S_T}, s{S_T}, s{S_H}
              s_lshl_b32 s{S_T}, s{S_T}, 2
              s_add_u32 s{S_T}, s{S_T}, s{S_W}
              s_lshl_b32 s{S_T}, s{S_T}, 6
              s_add_u32 s{S_T}, s{S_T}, {STAMP_OFF}
              v_mov_b32 v{va}, 0""")
        for i in range(n):
            k(f"v_writelane_b32 v{va}, s{84+2*i}, {i}")
        if extra is not None:
            k(f"v_writelane_b32 v{va}, s{extra}, 8")
            k(f"s_mov_b32 s{extra}, 0")
        k(f"""v_lshrrev_b32 v{va+1}, 2, v{V_L16}
              s_mov_b64 exec, 0xffff
              buffer_store_dword v{va}, v{va+1}, {WS}, s{S_T} offen
              s_mov_b64 exec, -1""")

    def proj_consts(self):
        k = self.k
        self.THR, self.TOB, self.TWO, self.THD, self.TRW, self.TRL = 4, 17, 18, 20, 21, 22
        T = 120
        k(f"""v_and_b32 v{T}, 15, v{V_LANE}
              v_lshrrev_b32 v{T+1}, 4, v{V_LANE}
              v_mov_b32 v{self.TOB}, 1
              s_lshl_b32 s{S_T}, s{S_W}, 15
              v_add_u32 v{self.TWO}, s{S_T}, v{V_L16}
              s_lshl_b32 s{S_T}, s{S_W}, 2
              v_add_u32 v{T+5}, s{S_T}, v{T+1}            ; row 4w+g
              v_xor_b32 v{T+6}, v{T+5}, v{T}
              v_lshlrev_b32 v{T+6}, 4, v{T+6}
              v_lshl_add_u32 v{self.THD}, v{T+5}, 10, v{T+6}""")
        for kq in range(4):
            k(f"""v_add_u32 v{T+5}, {4*kq}, v{T+1}
                  v_xor_b32 v{T+5}, v{T+5}, v{T}
                  v_lshlrev_b32 v{T+5}, 4, v{T+5}
                  v_lshl_add_u32 v{T+5}, v{T}, 8, v{T+5}
                  v_add_u32 v{self.THR+kq}, {self.LH}, v{T+5}""")
        k(f"""v_lshlrev_b32 v{self.TRW}, 5, v{T}
              v_and_b32 v{T+5}, 1, v{T+1}
              v_lshl_add_u32 v{self.TRW}, v{T+5}, 4, v{self.TRW}
              s_lshl_b32 s{S_T}, s{S_W}, 9
              v_lshrrev_b32 v{T+5}, 1, v{T+1}
              v_lshl_add_u32 v{self.TRW}, v{T+5}, 11, v{self.TRW}
              s_add_u32 s{S_T}, s{S_T}, {L_ROW}
              v_add_u32 v{self.TRW}, s{S_T}, v{self.TRW}
              v_lshlrev_b32 v{self.TRL}, 4, v{T}
              v_lshl_add_u32 v{self.TRL}, v{T+1}, 10, v{self.TRL}
              s_lshl_b32 s{S_T}, s{S_W}, 8
              v_add_u32 v{self.TRL}, s{S_T}, v{self.TRL}""")

    def flag_set(self, s_off, loc, keep=0):
        self.k(f"""s_waitcnt vmcnt({keep})
                   s_barrier""")
        self.flag_store(s_off, loc)

    def flags_wait32(self, s_off, one=False, sleep=0):
        k = self.k
        L, D, F = k.newlabel("L_fw"), k.newlabel("L_fd"), k.newlabel("L_ff")
        if one:
            k(f"""s_cmp_lg_u32 s{S_W}, 0
                  s_cbranch_scc1 {D}""")
        k(f"""v_and_b32 v124, 31, v{V_LANE}
              v_lshlrev_b32 v124, 2, v124""")
        if sleep:
            k(f"s_branch {F}")
        k.label(L)
        if sleep:
            k(f"s_sleep {sleep}")
            k.label(F)
        k(f"buffer_load_dword v125, v124, {WS}, s{s_off} offen sc1")
        self.spend()
        k(f"""s_waitcnt vmcnt(0)
              v_cmp_eq_u32 vcc, 0, v125
              s_cbranch_vccnz {L}""")
        if one:
            k.label(D)
            k("s_barrier")

    def reduce32(self, s_base, natural):
        k = self.k
        D = 24; SEL = 56; A = 60
        for i in range(8):
            k(f"s_add_u32 s{S_T+7}, s{s_base}, {i*4096}")
            k(f"buffer_load_dwordx4 {vr(D+4*i,4)}, v{self.TRL}, {WS}, s{S_T+7} offen sc1")
        self.make_sel(SEL, 64)
        for i in range(8):
            k(f"s_waitcnt vmcnt({7-i})")
            k(f"v_mfma_f32_16x16x32_bf16 {vr(A,4)}, {vr(SEL,4)}, {vr(D+4*i,4)}, {'0' if i == 0 else vr(A,4)}")
        if natural:
            k(f"ds_write_b128 v{self.TRW}, {vr(A,4)}")
        else:
            k(f"ds_write2_b64 v{self.TRW}, {vr(A,2)}, {vr(A+2,2)} offset0:0 offset1:64")
        k(f"""s_waitcnt lgkmcnt(0)
              s_barrier""")

    def one_lane_store(self, v, s_off, fl):
        self.k(f"""s_mov_b64 exec, 1
                   buffer_store_dword v{v}, off, {WS}, s{s_off}{fl}
                   s_mov_b64 exec, -1""")

    def wmax_u32(self, x, t):
        k = self.k
        for r in (8, 4, 2, 1):
            k(f"v_max_u32_dpp v{x}, v{x}, v{x} row_ror:{r} row_mask:0xf bank_mask:0xf")
        k(f"""v_mov_b32 v{t}, v{x}
              v_permlane16_swap_b32 v{x}, v{t}
              v_max_u32 v{x}, v{x}, v{t}
              v_mov_b32 v{t}, v{x}
              v_permlane32_swap_b32 v{x}, v{t}
              v_max_u32 v{x}, v{x}, v{t}""")

    def load_gate_up(self):
        k = self.k
        k(f"""v_and_b32 v33, 15, v{V_LANE}
              v_lshrrev_b32 v34, 4, v{V_LANE}
              s_min_u32 s{S_T+4}, s{S_H}, 27
              s_lshl_b32 s{S_T+4}, s{S_T+4}, 7            ; 64 cols * 2B
              s_mul_i32 s{S_T+3}, s{S_W}, {128*3584}
              s_add_u32 s{S_T+4}, s{S_T+4}, s{S_T+3}
              v_mul_u32_u24 v36, {32*3584}, v34
              v_and_b32 v35, 7, v33
              v_lshl_add_u32 v36, v35, 4, v36
              v_add_u32 v36, s{S_T+4}, v36                ; byte offset inside gate / up
              v_cmp_gt_u32 vcc, 8, v33
              v_mov_b32 v38, s{P_WU}
              v_mov_b32 v39, s{P_WU+1}
              v_mov_b32 v40, s{P_WG}
              v_mov_b32 v41, s{P_WG+1}
              v_cndmask_b32 v38, v38, v40, vcc
              v_cndmask_b32 v39, v39, v41, vcc
              v_add_co_u32 v38, vcc, v38, v36
              v_addc_co_u32 v39, vcc, 0, v39, vcc
              s_lshl_b32 s{S_T}, s{S_W}, 15
              v_add_u32 v37, s{S_T}, v{V_L16}""")
        for half in range(2):
            for i in range(16):
                k(f"global_load_dwordx4 {vr(44+4*i,4)}, v[38:39], off")
                k(f"v_add_co_u32 v38, vcc, 3584, v38")
                k(f"v_addc_co_u32 v39, vcc, 0, v39, vcc")
            for i in range(16):
                k(f"s_waitcnt vmcnt({15-i})")
                k(f"ds_write_b128 v37, {vr(44+4*i,4)} offset:{(16*half+i)*1024}")
                if i % 8 == 7:
                    k("s_waitcnt lgkmcnt(0)")

    def moe(self, layer, sKEY):
        k = self.k
        sROW = S_T + 8
        LD = 24
        X, YP, TM = 96, 104, 108
        XB, AF, ACC, MK, G = 88, 124, 116, 12, 108
        A0, A1, A2 = 8, 9, 10
        k(f"""s_and_b32 s{sROW}, s{sKEY}, 0x7ff
              s_sub_u32 s{sROW}, 2047, s{sROW}""")
        k(f"s_lshl_b32 s{S_T}, s{sROW}, 10")
        k(f"""s_add_u32 s{S_T+2}, s{S_T}, {X1_OFF[layer]}
              buffer_load_dwordx4 {vr(XB,4)}, v{V_L16}, {WS}, s{S_T+2} offen sc1""")
        self.srd(P_WD, 1792 * 1024)
        k(f"""v_and_b32 v{A1}, 15, v{V_LANE}
              v_lshrrev_b32 v{A2}, 4, v{V_LANE}
              v_lshlrev_b32 v{A0}, 14, v{A2}
              v_lshl_add_u32 v{A0}, v{A1}, 4, v{A0}
              s_lshl_b32 s{S_T+3}, s{S_H}, 16
              s_lshl_b32 s{S_T+4}, s{S_W}, 8
              s_add_u32 s{S_T+3}, s{S_T+3}, s{S_T+4}""")
        for i in range(16):
            if i % 4 == 0 and i > 0:
                k(f"s_add_u32 s{S_T+3}, s{S_T+3}, 4096")
            k(f"buffer_load_dwordx4 {vr(LD+i*4,4)}, v{A0}, {SA}, s{S_T+3} offen offset:{(i%4)*1024}")
        k(f"""v_and_b32 v{AF}, 1, v{V_LANE}
              v_lshlrev_b32 v{AF}, 4, v{AF}
              v_mov_b32 v{AF+1}, 0xffff
              v_lshlrev_b32 v{AF+1}, v{AF}, v{AF+1}
              v_lshrrev_b32 v{AF}, 1, v{A1}""")
        for q in range(4):
            k(f"v_cmp_eq_u32 vcc, {q}, v{AF}")
            k(f"v_cndmask_b32 v{MK+q}, 0, v{AF+1}, vcc")
        k("s_waitcnt vmcnt(16)")
        if layer == 0:
            XL, XD = k.newlabel("L_mx"), k.newlabel("L_mxd")
            k.label(XL)
            k(f"""v_max3_u32 v{AF}, v{XB}, v{XB+1}, v{XB+2}
                  v_max_u32 v{AF}, v{XB+3}, v{AF}
                  v_cmp_eq_u32 vcc, -1, v{AF}
                  s_cbranch_vccz {XD}
                  buffer_load_dwordx4 {vr(XB,4)}, v{V_L16}, {WS}, s{S_T+2} offen sc1""")
            self.spend()
            k(f"""s_waitcnt vmcnt(0)
                  s_branch {XL}""")
            k.label(XD)
        self.unpack8(X, XB)
        self.layernorm(X, YP, TM)
        TAB = L_MOE
        k(f"""s_mov_b32 s{S_T+2}, 0x01000100
              s_mov_b32 s{S_T+3}, 0x03020302""")
        for q in range(4):
            k(f"v_perm_b32 v{XB+2*q}, v{YP+q}, v{YP+q}, s{S_T+2}")
            k(f"v_perm_b32 v{XB+1+2*q}, v{YP+q}, v{YP+q}, s{S_T+3}")
        k(f"""v_lshlrev_b32 v{A0}, 5, v{V_LANE}
              s_lshl_b32 s{S_T+2}, s{S_W}, 11
              s_add_u32 s{S_T+2}, s{S_T+2}, {TAB}
              v_add_u32 v{A0}, s{S_T+2}, v{A0}
              ds_write_b128 v{A0}, {vr(XB,4)}
              ds_write_b128 v{A0}, {vr(XB+4,4)} offset:16
              s_lshl_b32 s{S_T+3}, s{S_W}, 9
              s_add_u32 s{S_T+3}, s{S_T+2}, s{S_T+3}
              v_lshlrev_b32 v{A0}, 7, v{A2}
              v_add_u32 v{A0}, s{S_T+3}, v{A0}
              s_waitcnt lgkmcnt(0)""")
        gread = lambda i: k(f"ds_read_b128 {vr(G+4*(i&1),4)}, v{self.TWO} offset:{i*1024}")
        gread(0)
        for i in range(32):
            if i % 8 == 0:
                k(f"""ds_read_b128 {vr(XB,4)}, v{A0} offset:{i*4}
                      ds_read_b128 {vr(XB+4,4)}, v{A0} offset:{i*4+16}""")
            if i + 1 < 32:
                gread(i + 1)
            k(f"s_waitcnt lgkmcnt({1 if i + 1 < 32 else 0})")
            for q in range(4):
                k(f"v_and_b32 v{AF+q}, v{MK+q}, v{XB+i%8}")
            k(f"v_mfma_f32_16x16x32_bf16 {vr(ACC,4)}, {vr(AF,4)}, {vr(G+4*(i&1),4)}, {'0' if i == 0 else vr(ACC,4)}")
        RED = L_MOE + 8 * KB
        k(f"""v_lshlrev_b32 v{A0}, 5, v{A1}
              v_and_b32 v{AF}, 1, v{A2}
              v_lshl_add_u32 v{A0}, v{AF}, 4, v{A0}
              v_lshrrev_b32 v{AF}, 1, v{A2}
              v_lshl_add_u32 v{A0}, v{AF}, 11, v{A0}
              s_lshl_b32 s{S_T+4}, s{S_W}, 9
              s_add_u32 s{S_T+4}, s{S_T+4}, {RED}
              v_add_u32 v{A0}, s{S_T+4}, v{A0}
              ds_write_b128 v{A0}, {vr(ACC,4)}
              v_lshlrev_b32 v{A0}, 2, v{V_LANE}
              v_add_u32 v{A0}, {RED}, v{A0}
              s_waitcnt lgkmcnt(0)
              s_barrier""")
        for w in range(4):
            k(f"ds_read2st64_b32 {vr(XB+2*w,2)}, v{A0} offset0:{2*w} offset1:{2*w+1}")
        k("s_waitcnt lgkmcnt(0)")
        k(f"""v_pk_add_f32 {vr(XB,2)}, {vr(XB,2)}, {vr(XB+2,2)}
              v_pk_add_f32 {vr(XB+4,2)}, {vr(XB+4,2)}, {vr(XB+6,2)}
              v_pk_add_f32 {vr(XB,2)}, {vr(XB,2)}, {vr(XB+4,2)}""")
        self.round1(XB)
        self.round1(XB + 1)
        k(f"""v_mul_f32 v{XB+2}, {f32(-math.log2(math.e))}, v{XB}
              v_exp_f32 v{XB+2}, v{XB+2}
              v_add_f32 v{XB+2}, 1.0, v{XB+2}
              v_rcp_f32 v{XB+2}, v{XB+2}
              v_mul_f32 v{XB}, v{XB}, v{XB+2}""")
        self.round1(XB)
        k(f"""v_mul_f32 v{XB}, v{XB}, v{XB+1}
              v_cvt_pk_bf16_f32 v{XB}, v{XB}, v{XB}
              v_lshlrev_b32 v{A0}, 2, v{V_LANE}
              v_add_u32 v{A0}, s{S_T+2}, v{A0}
              ds_write_b32 v{A0}, v{XB}
              v_lshlrev_b32 v{A0}, 6, v{A2}
              v_add_u32 v{A0}, s{S_T+2}, v{A0}
              s_waitcnt lgkmcnt(0)
              ds_read_b128 {vr(XB,4)}, v{A0}
              ds_read_b128 {vr(XB+4,4)}, v{A0} offset:16
              ds_read_b128 {vr(G,4)}, v{A0} offset:32
              ds_read_b128 {vr(G+4,4)}, v{A0} offset:48
              s_waitcnt vmcnt(0) lgkmcnt(0)""")
        for i in range(16):
            for q in range(4):
                k(f"v_and_b32 v{AF+q}, v{MK+q}, v{(XB if i < 8 else G)+i%8}")
            k(f"v_mfma_f32_16x16x32_bf16 {vr(ACC,4)}, {vr(AF,4)}, {vr(LD+i*4,4)}, {'0' if i == 0 else vr(ACC,4)}")
        k(f"""v_lshlrev_b32 v{A0}, 4, v{A1}
              v_and_b32 v{AF}, 1, v{A2}
              v_lshl_add_u32 v{A0}, v{AF}, 3, v{A0}
              v_and_b32 v{AF}, 2, v{A2}
              v_lshl_add_u32 v{A0}, v{AF}, 30, v{A0}
              s_lshl_b32 s{S_T+9}, s{S_SEG}, 15
              s_add_u32 s{S_T+9}, s{S_T+9}, {MOE_OFF}
              s_lshl_b32 s{S_T+3}, s{S_H}, 10
              s_lshl_b32 s{S_T+4}, s{S_W}, 8
              s_add_u32 s{S_T+3}, s{S_T+3}, s{S_T+4}
              s_add_u32 s{S_T+3}, s{S_T+3}, s{S_T+9}
              v_cvt_pk_bf16_f32 v24, v{ACC}, v{ACC+1}
              v_cvt_pk_bf16_f32 v25, v{ACC+2}, v{ACC+3}
              buffer_store_dwordx2 v[24:25], v{A0}, {WS}, s{S_T+3} offen{self.loc}""")
        self.page(S_T + 3, F_M)
        self.flag_set(S_T + 3, self.loc)
        D = k.newlabel("L_moed")
        if layer == 1:
            k(f"""s_cmp_lg_u32 s{S_H}, 0
                  s_cbranch_scc1 {D}""")
        self.page(S_T + 3, F_M, head=False)
        self.flags_wait32(S_T + 3)
        self.reduce32(S_T + 9, True)
        k(f"""s_cmp_lg_u32 s{S_W}, 0
              s_cbranch_scc1 {D}""")
        A, PK, Y, TM = 24, 40, 48, 56
        k(f"""v_lshlrev_b32 v{TM}, 5, v{V_LANE}
              v_add_u32 v{TM}, {L_ROW}, v{TM}
              ds_read_b128 {vr(A,4)}, v{TM}
              ds_read_b128 {vr(A+4,4)}, v{TM} offset:16
              s_and_b32 s{S_T+3}, s{sKEY}, 0xffff0000
              s_xor_b32 s{S_T+4}, s{S_T+3}, 0x80000000
              s_xor_b32 s{S_T+5}, s{S_T+3}, 0xffff0000
              s_cmp_lt_i32 s{S_T+3}, 0
              s_cselect_b32 s{S_T+3}, s{S_T+4}, s{S_T+5}
              v_mov_b32 v{TM}, s{S_T+3}
              v_mul_f32 v{TM}, {f32(-math.log2(math.e))}, v{TM}
              v_exp_f32 v{TM}, v{TM}
              v_add_f32 v{TM}, 1.0, v{TM}
              v_rcp_f32 v{TM}, v{TM}""")
        self.round1(TM)
        self.unpack8(Y, YP)
        k("s_waitcnt lgkmcnt(0)")
        self.pack8(PK, A)
        self.unpack8(A, PK)
        for j in range(8):
            k(f"v_mul_f32 v{A+j}, v{A+j}, v{TM}")
        self.pack8(PK, A)
        self.unpack8(A, PK)
        for j in range(8):
            k(f"v_add_f32 v{A+j}, v{A+j}, v{Y+j}")
        self.pack8(PK, A)
        self.unpack8(A, PK)
        for j in range(8):
            k(f"v_add_f32 v{X+j}, v{X+j}, v{A+j}")
        self.pack8(80, X)
        if layer == 0:
            self.unpack8(X, 80)
            self.layernorm(X, 84, TM + 2)
            k(f"""s_lshl_b32 s{S_T+2}, s{S_SEG}, 10
                  s_add_u32 s{S_T+2}, s{S_T+2}, {X2P_OFF}
                  s_add_u32 s{S_T+3}, s{S_T+2}, {HPS_OFF - X2P_OFF}
                  s_cmp_eq_u32 s{S_H}, 0
                  s_cselect_b32 s{S_T+3}, s{S_T+3}, 0x80000000
                  s_add_u32 s{S_T+1}, s{S_T}, {HP_OFF}
                  buffer_store_dwordx4 v[84:87], v{V_L16}, {WS}, s{S_T+3} offen sc1
                  buffer_store_dwordx4 v[80:83], v{V_L16}, {WS}, s{S_T+2} offen sc1
                  buffer_store_dwordx4 v[84:87], v{V_L16}, {WS}, s{S_T+1} offen sc1""")
        else:
            self.srd(P_OUT, 2048 * 1024)
            k(f"buffer_store_dwordx4 v[80:83], v{V_L16}, {SA}, s{S_T} offen sc1")
        k.label(D)

    def a_plan(self):
        o = self.opt
        n1, n2, up = o.get("n1", 4), o.get("n2", 6), o.get("up", 6)
        p0 = self.P0 = o.get("p0", 14)
        own = [list(range(0, p0, 2)), list(range(1, p0, 2)), list(range(p0 + n1 + n2, p0 + n1 + n2 + up))]
        pat = o.get("pat", (0, 1, 2))
        for i, x in enumerate(range(p0 + n1 + n2 + up, 64)):
            own[pat[i % len(pat)]].append(x)
        return n1, n2, up, [sum(1 << x for x in w) for w in own]

    def pop_next(self, dst, mask):
        self.k(f"""s_ff1_i32_b64 s{dst}, {sr(mask,2)}
                   s_bitset0_b64 {sr(mask,2)}, s{dst}
                   s_min_u32 s{dst}, s{dst}, 127""")

    def spec(self):
        o = self.opt
        return o.get("delta", 10), o.get("th", 28), o.get("kb", 5)

    def words_wait64(self, s_off, t, sleep):
        k = self.k
        L = k.newlabel("L_fp")
        k.label(L)
        k(f"""s_sleep {sleep}
              buffer_load_dword v{t+1}, v{t}, {WS}, s{s_off} offen sc1""")
        self.spend()
        k(f"""s_waitcnt vmcnt(0)
              v_cmp_eq_u32 vcc, 0, v{t+1}
              s_cbranch_vccnz {L}""")

    def todo_mask(self, sTODO, t):
        self.k(f"""v_cmp_le_u32 vcc, s{S_T+5}, v{V_LANE}
                   v_cndmask_b32 v{t}, 1, 2, vcc
                   v_cmp_ne_u32 {sr(sTODO,2)}, v{t}, v{t+1}""")

    def role_moe(self):
        k = self.k
        o = self.opt
        sMAX, sKEY = 54, 55
        self.proj_consts()
        _, _, UP, own = self.a_plan()
        JD, MINL, MAXL = o.get("jd", 2), o.get("minl", 15), o.get("maxl", 30)
        sNA, sSC = S_A, S_B
        sH, sN, sF, sDEBT, sOWN, sKA, sGR = S_T + 12, S_T + 14, S_T + 16, S_T + 17, S_T + 18, S_T + 20, S_T + 21
        sR, sPT, sALT, sFR, sPF = 84, 86, 87, 18, 19
        t = 20
        sQ = 22
        PR, NR = k.newlabel("L_mp"), k.newlabel("L_mr")
        L, AL, AL2, NF, NJ, FN, T1P, LK, P_, BC, WR_, L2, GOT, EN = (k.newlabel("L_mo") for _ in range(14))
        k(f"""s_mov_b32 s{sMAX}, 0
              s_mov_b32 s{sSC}, 0
              s_mov_b32 s{S_CNT}, {UP}
              s_mov_b32 s{sF}, 0x80000000
              s_mov_b32 s{sDEBT}, 0
              s_mov_b32 s{sGR}, -1
              s_mov_b32 s{sPT}, 0
              s_mov_b32 s{sPF}, 0
              s_mov_b32 s{sOWN}, {own[2] & 0xffffffff}
              s_mov_b32 s{sOWN+1}, {own[2] >> 32}
              v_and_b32 v23, 15, v{V_LANE}
              v_lshlrev_b32 v23, 3, v23
              v_lshrrev_b32 v16, 4, v{V_LANE}
              v_lshl_add_u32 v23, v16, 13, v23
              v_mov_b32 v19, {L_MISC}
              v_lshl_add_u32 v16, v16, 2, v19""")
        kload = f"buffer_load_dwordx2 v[124:125], v23, {WS}, s{sKA} offen sc1"
        self.pop_next(sNA, sOWN)
        self.t1_src(sN, sNA, 0)
        k.label(AL)
        k(f"""s_cmp_lg_u32 s{sPF}, 0
              s_cbranch_scc1 {AL2}""")
        for x in self.t1_dma(sN, (0, 1, 2)):
            k(x)
        k(f"""s_mov_b32 s{sPF}, 1
              s_waitcnt vmcnt(0)""")
        k.label(AL2)
        k(f"""s_mov_b32 s{S_SEG}, s{sNA}
              s_mov_b64 {sr(sH,2)}, {sr(sN,2)}""")
        self.pop_next(sNA, sOWN)
        self.t1_src(sN, sNA, 0)
        self.page(sKA, F_RKM, seg=sSC, head=False)
        self.t1(0, sH, pre=8, s_flag=sF, nxt=self.t1_dma(sN, (0, 1, 2)) + [kload])
        self.ev(17)
        self.page(sF, F_KV[0])
        k(f"""s_sub_u32 s{S_CNT}, s{S_CNT}, 1
              s_cmp_gt_i32 s{S_CNT}, 0
              s_cbranch_scc1 {AL2}
              s_mov_b32 s{sALT}, 3
              s_mov_b32 s{sFR}, 0
              s_waitcnt vmcnt(7)
              s_branch {LK}""")
        k.label(L)
        k(f"""s_mov_b32 s{sKEY}, s{sQ}
              s_mov_b32 s{sQ}, s{sQ+1}
              s_mov_b32 s{sQ+1}, s{sQ+2}
              s_mov_b32 s{sQ+2}, -1
              s_cmp_lg_u32 s{sKEY}, -1
              s_cbranch_scc1 {PR}
              s_sub_u32 s{S_T}, s{sNA}, s{sSC}
              s_cmp_gt_i32 s{sGR}, 0
              s_cselect_b32 s{S_T+1}, 6, {MINL}
              s_cmp_lg_u32 s{sPT}, 0
              s_cselect_b32 s{S_T+1}, {o.get("minl2", 9)}, s{S_T+1}
              s_cmp_lt_i32 s{S_T}, s{S_T+1}
              s_cbranch_scc1 {AL}
              s_cmp_lt_i32 s{S_T}, {MAXL}
              s_cselect_b32 s{sALT}, s{sFR}, 0
              s_cmp_ge_u32 s{sSC}, {o.get("tnow", 8)}
              s_cselect_b32 s{S_T}, 1, s{sFR}
              s_and_b32 s{S_T}, s{S_T}, s{sPT}
              s_cselect_b32 s{sALT}, 2, s{sALT}
              s_mul_i32 s{S_T}, s{sALT}, s{sFR}
              s_cmp_lg_u32 s{S_T}, 0
              s_cbranch_scc1 {FN}
              s_mov_b32 s{sFR}, 0
              s_lshr_b32 s{S_T}, s{sF}, 31
              s_or_b32 s{S_T}, s{S_T}, s{sALT}
              s_cbranch_scc1 {L2}""")
        self.flag_set(sF, " sc1")
        k(f"s_mov_b32 s{sF}, 0x80000000")
        k.label(L2)
        k(f"""s_cmp_lg_u32 s{S_W}, 0
              s_cbranch_scc1 {BC}""")
        self.page(sKA, F_RKM, seg=sSC, head=False)
        k.label(P_)
        k(kload)
        self.spend()
        k("s_waitcnt vmcnt(0)")
        k.label(LK)
        k(f"""v_min_u32 v123, v124, v125
              v_max_u32 v125, v124, v125
              v_cmp_eq_u32 vcc, 0, v123
              v_cndmask_b32 v125, v125, -1, vcc
              s_and_b32 s{S_T}, vcc_lo, 0xffff
              s_cbranch_scc0 {GOT}
              s_cmp_lg_u32 s{sALT}, 0
              s_cbranch_scc1 {GOT}
              s_mov_b32 s{sFR}, 1
              s_sleep {o.get("slm", 2)}
              s_branch {P_}""")
        k.label(GOT)
        for r in (8, 4, 2, 1):
            k(f"v_max_u32_dpp v125, v125, v125 row_ror:{r} row_mask:0xf bank_mask:0xf")
        k.label(BC)
        self.spend()
        k(f"""v_mov_b32 v124, s{sFR}
              s_barrier
              s_cmp_lg_u32 s{S_W}, 0
              s_cbranch_scc1 {WR_}
              ds_write_b32 v16, v125
              ds_write_b32 v19, v124 offset:16
              s_waitcnt lgkmcnt(0)""")
        k.label(WR_)
        k(f"""s_barrier
              ds_read_b128 v[120:123], v19
              ds_read_b32 v124, v19 offset:16
              s_waitcnt lgkmcnt(0)
              v_readfirstlane_b32 s{sKEY}, v120
              v_readfirstlane_b32 s{sQ}, v121
              v_readfirstlane_b32 s{sQ+1}, v122
              v_readfirstlane_b32 s{sQ+2}, v123
              v_readfirstlane_b32 s{sFR}, v124
              s_cmp_lg_u32 s{sKEY}, -1
              s_cbranch_scc1 {PR}
              {FN}:
              s_mov_b32 s{sQ}, -1
              s_cmp_eq_u32 s{sALT}, 1
              s_cbranch_scc1 {AL}
              s_cmp_eq_u32 s{sALT}, 2
              s_cbranch_scc1 {T1P}
              s_branch {L}""")
        k.label(PR)
        k(f"""s_sub_u32 s{sDEBT}, s{sDEBT}, 1
              s_max_i32 s{sDEBT}, s{sDEBT}, 0
              s_sub_u32 s{sGR}, s{sGR}, 1
              s_min_u32 s{S_T+5}, s{sDEBT}, {LOOK}
              s_cmp_lt_u32 s{sSC}, {o.get("early", 5)}
              s_cselect_b32 s{S_T+5}, {LOOK}, s{S_T+5}
              s_cmp_le_u32 s{sKEY}, s{sMAX}
              s_cbranch_scc1 {NR}
              s_mov_b32 s{sGR}, s{S_T+5}
              s_mov_b32 s{sMAX}, s{sKEY}
              s_mov_b32 s{sPT}, 0
              s_or_b32 s{S_T+5}, s{S_H}, s{S_W}
              s_cbranch_scc1 {NR}
              v_mov_b32 v120, s{sMAX}
              v_lshlrev_b32 v121, 13, v{V_LANE}
              s_mov_b32 s{S_T+5}, {PG_OFF + F_RM}
              buffer_store_dword v120, v121, {WS}, s{S_T+5} offen sc1
              {NR}:
              s_cmp_lg_u32 s{sSC}, 63
              s_cbranch_scc1 {NF}
              s_min_i32 s{sGR}, s{sGR}, 0
              s_or_b32 s{S_T+5}, s{S_H}, s{S_W}
              s_cbranch_scc1 {NF}
              s_mov_b32 s{S_T+3}, {PG_OFF + 65*8192 + F_DEC}
              v_lshlrev_b32 v120, 2, v{V_LANE}""")
        self.words_wait64(S_T + 3, 120, 0)
        k(f"""s_andn2_b32 s{S_T+6}, 0x7ff, s{sMAX}
              v_lshl_or_b32 v121, s{S_T+6}, 8, v121""")
        for w in range(6):
            k(f"""s_add_u32 s{S_T+3}, s{S_T+3}, 8192
                  buffer_store_dword v121, v120, {WS}, s{S_T+3} offen sc1""")
        k.label(NF)
        k(f"""s_add_u32 s{sSC}, s{sSC}, 1
              s_cmp_gt_i32 s{sGR}, 0
              s_cmov_b32 s{sFR}, 0
              s_cbranch_scc1 {L}
              s_cmp_lg_u32 s{sGR}, 0
              s_cbranch_scc1 {NJ}""")
        k(f"""s_andn2_b32 s{S_SEG}, 0x7ff, s{sMAX}
              s_lshr_b32 s{S_SEG}, s{S_SEG}, 5
              s_add_u32 s{sDEBT}, s{sDEBT}, {JD}
              s_mov_b32 s{sPT}, 1
              s_mov_b32 s{sPF}, 0
              s_mov_b32 s{sFR}, 0
              s_waitcnt vmcnt(8)
              s_barrier""")
        self.ev(30)
        self.moe(0, sMAX)
        self.ev(31)
        k("s_barrier")
        k.label(NJ)
        k(f"""s_mov_b32 s{sGR}, -1
              s_cmp_lt_u32 s{sSC}, 64
              s_cbranch_scc1 {L}
              s_cmp_eq_u32 s{sPT}, 0
              s_cbranch_scc1 {EN}""")
        k.label(T1P)
        k(f"""s_andn2_b32 s{S_SEG}, 0x7ff, s{sMAX}
              s_lshr_b32 s{S_SEG}, s{S_SEG}, 5
              s_andn2_b32 s{S_T}, 31, s{sMAX}
              v_lshrrev_b32 v2, 10, v{self.THD}
              v_add_u32 v3, 16, v2
              v_add_u32 v8, {HP_OFF - H_OFF[1]}, v{self.THD}
              v_cmp_eq_u32 vcc, s{S_T}, v2
              v_cndmask_b32 v2, v{self.THD}, v8, vcc
              v_cmp_eq_u32 vcc, s{S_T}, v3
              v_cndmask_b32 v3, v{self.THD}, v8, vcc
              s_waitcnt vmcnt(0)""")
        self.page(S_T + 3, F_HX, head=False)
        self.flags_wait32(S_T + 3, one=True, sleep=2)
        self.flag_store(sF, " sc1")
        self.t1_src(S_T + 10, S_SEG, 1)
        self.t1b(2, S_T + 10, voff=(2, 3), early=False)
        self.ev(32)
        for x in self.t1_dma(sN, (0, 1, 2)):
            k(x)
        self.page(S_T + 3, F_Q[2])
        self.flag_set(S_T + 3, " sc1")
        k(f"""s_mov_b32 s{sF}, 0x80000000
              s_mov_b32 s{sPT}, 0
              s_mov_b32 s{sPF}, 1
              s_mov_b32 s{sFR}, 0
              s_cmp_lt_u32 s{sSC}, 64
              s_cbranch_scc1 {L}""")
        k.label(EN)
        k(f"s_mov_b32 s{S_SEG}, 64")
        W = k.newlabel("L_mw")
        k(f"""s_and_b32 s{S_T+5}, s{sMAX}, 0x7ff
              s_sub_u32 s{S_T+5}, 2047, s{S_T+5}
              s_lshr_b32 s{S_T+5}, s{S_T+5}, 5""")
        k(f"""s_cmp_lg_u32 s{S_W}, 0
              s_cbranch_scc1 {W}
              s_mov_b32 s{S_T+3}, {PG_OFF + 65*8192 + F_DEC}
              v_lshlrev_b32 v2, 2, v{V_LANE}""")
        self.words_wait64(S_T + 3, 2, 2)
        self.todo_mask(sR, 2)
        k(f"""s_lshl_b32 s{S_T}, s{S_H}, 1
              s_lshr_b64 {sr(t,2)}, {sr(sR,2)}, s{S_T}
              v_lshrrev_b32 v2, 5, v{V_LANE}
              v_lshrrev_b32 v3, v2, s{t}
              v_and_b32 v3, 1, v3
              v_mul_u32_u24 v3, {F_RK[1] - F_RK[2]}, v3
              v_lshlrev_b32 v2, 13, v2
              v_sub_u32 v2, v2, v3
              v_and_b32 v3, 31, v{V_LANE}
              v_lshl_add_u32 v2, v3, 2, v2
              v_add_u32 v2, {F_RK[1]}, v2
              s_lshl_b32 s{S_T+3}, s{S_H}, 14
              s_add_u32 s{S_T+3}, s{S_T+3}, {PG_OFF}""")
        self.words_wait64(S_T + 3, 2, 1)
        self.wmax_u32(3, 2)
        self.page(S_T + 3, F_FIN)
        k(f"buffer_store_dword v3, off, {WS}, s{S_T+3}{self.loc}")
        k.label(W)
        k("s_barrier")
        self.page(S_T + 3, F_FIN, head=False)
        self.flags_wait32(S_T + 3, sleep=1)
        self.wmax_u32(125, 124)
        k(f"v_readfirstlane_b32 s{sKEY}, v125")
        self.ev(33)
        self.moe(1, sKEY)
        self.ev(34)

    def role_proj(self):
        k = self.k
        self.LH = 64 * KB
        self.proj_consts()
        own = self.a_plan()[3]
        MAXL, MINL = self.opt.get("pmaxl", 44), self.opt.get("pminl", 12)
        sCUR, sNA = 54, 55
        sH, sN, sF, sOWN, sLB, sNB, sNXT = S_T + 10, S_T + 12, S_T + 14, S_T + 16, S_T + 18, S_T + 19, S_T + 20
        allq = (0, 1, 2, 3)
        FA, FV, VA_ = 23, 76, 19
        sPC_ = S_T + 21
        k(f"""s_sub_u32 s{sCUR}, s{S_G}, 4
              s_cmp_eq_u32 s{sCUR}, 0
              s_mov_b32 s{sOWN}, {own[1] & 0xffffffff}
              s_mov_b32 s{sOWN+1}, {own[1] >> 32}
              s_cmov_b32 s{sOWN}, {own[0] & 0xffffffff}
              s_cmov_b32 s{sOWN+1}, {own[0] >> 32}
              s_mov_b32 s{sF}, 0x80000000
              s_mov_b32 s{S_CNT}, {self.opt.get("pup", 7)}
              s_mov_b32 s{sLB}, s{S_LW}
              s_xor_b32 s{sNB}, s{sLB}, {32*KB}
              v_and_b32 v{FA}, 31, v{V_LANE}
              v_lshlrev_b32 v{FA}, 2, v{FA}
              v_mov_b32 v{VA_}, s{S_LW}
              v_mov_b32 v16, 0""")
        self.pop_next(sNA, sOWN)
        self.t1_src(sN, sNA, 0)
        for x in self.t1_dma(sN, allq, sb=sNB):
            k(x)
        k("""s_waitcnt vmcnt(0)
             s_barrier""")
        def peek():
            return (f"""s_lshl_b32 s{S_T}, s{sCUR}, 13
                        s_add_u32 s{S_T}, s{S_T}, {PG_OFF + F_HX}
                        s_or_b32 s{S_T}, s{S_T}, s{S_OOB}
                        buffer_load_dword v{FV}, v{FA}, {WS}, s{S_T} offen sc1""",
                    ["s_waitcnt vmcnt(0)", f"v_cmp_eq_u32 vcc, 0, v{FV}", f"v_mov_b32 v{FV}, vcc_lo", f"ds_write_b32 v{VA_}, v{FV}"],
                    f"ds_read_b32 v{FV}, v16")
        def choose(after_a):
            out = [f"v_readfirstlane_b32 s{S_T+1}, v{FV}",
                   f"s_sub_u32 s{S_T+3}, s{sNA}, s{sCUR}\ns_cmp_lt_i32 s{S_T+3}, {MAXL}\ns_cselect_b32 s{sNXT}, 2, 0"]
            if after_a:
                out.append(f"s_cmp_gt_i32 s{S_CNT}, 0\ns_cselect_b32 s{sNXT}, s{sNXT}, 0")
            out += [f"s_cmp_eq_u32 s{S_T+1}, 0\ns_cselect_b32 s{sNXT}, 1, s{sNXT}",
                    f"s_cmp_lt_i32 s{S_T+3}, {MINL}\ns_cselect_b32 s{sNXT}, 2, s{sNXT}\ns_add_u32 s{S_T+1}, s{sCUR}, {H_OFF[1] >> 15}",
                    f"s_cmp_eq_u32 s{sNXT}, 1\ns_cselect_b32 s{sN}, s{S_T+1}, s{sNA}\ns_lshl_b32 s{sN}, s{sN}, 15",
                    f"s_cmp_eq_u32 s{sNXT}, 0\ns_cselect_b32 s{sN}, 0x80000000, s{sN}\ns_add_u32 s{sN+1}, s{sN}, {16*KB}"]
            return out + self.t1_dma(sN, allq, sb=sNB)
        def flip():
            k(f"""s_mov_b32 s{sNB}, s{sLB}
                  s_xor_b32 s{sLB}, s{sLB}, {32*KB}""")
            for i in range(4):
                k(f"v_xor_b32 v{self.THR+i}, {32*KB}, v{self.THR+i}")
        LA_, LC, DSP, EN, W3, RDY = (k.newlabel("L_p") for _ in range(6))
        self.mk = 24
        k.label(LA_)
        flip()
        n0_ = len(k.lines)
        k(f"""s_mov_b32 s{S_SEG}, s{sNA}
              s_mov_b32 s{sPC_}, 0
              s_sub_u32 s{S_CNT}, s{S_CNT}, 1""")
        self.pop_next(sNA, sOWN)
        lead = k.lines[n0_:]; del k.lines[n0_:]
        self.t1b(0, None, landed=True, s_flag=sF, nxt=choose(True), early=False, peek=peek(), lead=lead)
        self.ev(17)
        self.page(sF, F_KV[0])
        k(f"""s_cmp_ge_u32 s{S_SEG}, 2
              s_cbranch_scc1 {DSP}""")
        self.flag_set(sF, " sc1")
        k.label(DSP)
        k(f"""s_cmp_eq_u32 s{sNXT}, 2
              s_cbranch_scc1 {LA_}
              s_mov_b32 s{S_CNT}, 0
              s_mov_b32 s{S_SEG}, s{sCUR}
              s_add_u32 s{sCUR}, s{sCUR}, 2
              s_cmp_eq_u32 s{sNXT}, 1
              s_cbranch_scc1 {LC}
              s_cmp_lg_u32 s{sPC_}, 0
              s_waitcnt vmcnt(3)
              s_cbranch_scc1 {W3}
              s_waitcnt vmcnt(2)
              {W3}:""")
        for x in peek()[1][1:]:
            k(x)
        self.t1_src(sH, S_SEG, 1)
        k(f"""s_waitcnt lgkmcnt(0)
              s_barrier
              {peek()[2]}
              s_waitcnt lgkmcnt(0)
              v_cmp_eq_u32 vcc, 0, v{FV}
              s_cbranch_vccnz {RDY}""")
        self.flag_set(sF, " sc1")
        k(f"""s_mov_b32 s{sF}, 0x80000000
              s_mov_b32 s{S_CNT}, 1
              s_cmp_ge_u32 s{S_SEG}, 64
              s_cbranch_scc1 {EN}""")
        self.page(S_T + 3, F_HX, head=False)
        self.flags_wait32(S_T + 3, one=True, sleep=self.opt.get("slp", 2))
        k.label(RDY)
        self.ev(13)
        self.t1b(1, sH, s_flag=sF, nxt=choose(self.opt.get("calm2", 1)), sb=sLB, peek=peek())
        k(f"s_mov_b32 s{sPC_}, 1")
        self.ev(14)
        self.page(sF, F_Q[1])
        k(f"s_branch {DSP}")
        k.label(LC)
        flip()
        self.t1b(1, None, landed=True, s_flag=sF, nxt=choose(self.opt.get("calm", 1)), peek=peek())
        k(f"s_mov_b32 s{sPC_}, 1")
        self.ev(16)
        self.page(sF, F_Q[1])
        k(f"s_branch {DSP}")
        k.label(EN)
        self.mk = 0
        self.LH = L_H

    def chain_helps(self):
        k = self.k
        n1, n2 = self.a_plan()[:2]
        sH, sN, sF = S_T + 12, S_T + 14, S_T + 16
        T = 120
        D, L = k.newlabel("L_chd"), k.newlabel("L_chl")
        self.THR, self.THD, self.TOB = 4, 20, 17
        k(f"""s_cmp_eq_u32 s{S_G}, 0
              s_cbranch_scc1 {D}
              v_and_b32 v{T}, 15, v{V_LANE}
              v_lshrrev_b32 v{T+1}, 4, v{V_LANE}
              v_mov_b32 v{self.TOB}, 1
              s_lshl_b32 s{S_T}, s{S_W}, 2
              v_add_u32 v{T+5}, s{S_T}, v{T+1}            ; row 4w+g
              v_xor_b32 v{T+6}, v{T+5}, v{T}
              v_lshlrev_b32 v{T+6}, 4, v{T+6}
              v_lshl_add_u32 v{self.THD}, v{T+5}, 10, v{T+6}""")
        for i in range(8):
            k(f"""s_lshl_b32 s{S_T}, s{S_W}, 1
                  s_xor_b32 s{S_T}, s{S_T}, {i}
                  s_and_b32 s{S_T+1}, s{S_T}, 3
                  s_lshl_b32 s{S_T+1}, s{S_T+1}, 2
                  s_lshr_b32 s{S_T}, s{S_T}, 2
                  s_lshl_b32 s{S_T}, s{S_T}, 13
                  s_add_u32 s{S_T}, s{S_T}, {L_H}
                  v_add_u32 v{T+5}, s{S_T+1}, v{T+1}
                  v_xor_b32 v{T+5}, v{T+5}, v{T}
                  v_lshlrev_b32 v{T+5}, 4, v{T+5}
                  v_lshl_add_u32 v{T+5}, v{T}, 8, v{T+5}
                  v_add_u32 v{self.THR+i}, s{S_T}, v{T+5}""")
        k(f"""s_cmp_eq_u32 s{S_G}, 1
              s_cselect_b32 s{S_SEG}, {self.P0}, {self.P0 + n1}
              s_cselect_b32 s{S_CNT}, {n1}, {n2}
              s_mov_b32 s{sF}, 0x80000000""")
        self.t1_src(sN, S_SEG, 0)
        for x in self.t1_dma(sN, (0, 1)):
            k(x)
        k("s_waitcnt vmcnt(0)")
        k.label(L)
        k(f"""s_mov_b64 {sr(sH,2)}, {sr(sN,2)}
              s_add_u32 s{sN}, s{sN}, {32*KB}
              s_add_u32 s{sN+1}, s{sN+1}, {32*KB}""")
        self.t1(0, sH, pre=7, s_flag=sF, nxt=self.t1_dma(sN, (0, 1)), rot=True)
        self.page(sF, F_KV[0])
        k(f"""s_add_u32 s{S_SEG}, s{S_SEG}, 1
              s_sub_u32 s{S_CNT}, s{S_CNT}, 1
              s_cmp_gt_u32 s{S_CNT}, 0
              s_cbranch_scc1 {L}""")
        self.flag_set(sF, " sc1")
        self.ev(18)
        k.label(D)

    def warm(self):
        k = self.k
        k(f"""s_and_b32 s{S_T}, s{S_G}, 1
              s_lshl_b32 s{S_T}, s{S_T}, 12
              s_add_u32 s{S_T}, s{S_T}, s{S_LW}
              s_and_b32 s{S_T+1}, s{S_H}, 15
              s_lshl_b32 s{S_T+1}, s{S_T+1}, 13
              s_add_u32 s{S_T}, s{S_T}, s{S_T+1}""")
        n = 0
        for ptr in (P_WK, P_WV, P_WQ):
            self.srd(ptr, 4 * MB)
            for i in range(32):
                if n >= self.opt.get("wdepth", 10):
                    k(f"s_waitcnt vmcnt({self.opt.get('wdepth', 10) - 1})")
                k(f"""s_add_u32 s{S_T+1}, s{S_T}, {i*16*8192}
                      buffer_load_dwordx4 v[24:27], v{V_L16}, {SA}, s{S_T+1} offen""")
                n += 1
                if n == self.opt.get("wdepth", 10) + 1:
                    self.arrive()

    def load_wo2(self):
        k = self.k
        self.srd(P_WO, 4 * MB)
        k(f"""v_and_b32 v2, 15, v{V_LANE}
              v_lshlrev_b32 v2, 4, v2
              v_lshrrev_b32 v3, 4, v{V_LANE}
              v_lshl_add_u32 v2, v3, 13, v2
              s_and_b32 s{S_T}, s{S_H}, 15
              s_lshl_b32 s{S_T}, s{S_T}, 18
              s_lshl_b32 s{S_T+1}, s{S_W}, 8
              s_add_u32 s{S_T}, s{S_T}, s{S_T+1}
              s_mov_b32 s{S_T+5}, 0x05040100
              s_mov_b32 s{S_T+6}, 0x07060302""")
        NB = 6
        def issue(g):
            b = 24 + (g % NB) * 32
            for j in range(8):
                if j % 4 == 0:
                    k(f"s_add_u32 s{S_T+1}, s{S_T}, {(32*g+j)*1024}")
                k(f"buffer_load_dwordx4 {vr(b+4*j,4)}, v2, {SA}, s{S_T+1} offen offset:{(j%4)*1024}")
        for g in range(NB):
            issue(g)
        for g in range(8):
            b = 24 + (g % NB) * 32
            k(f"s_waitcnt vmcnt({min(7-g, NB-1)*8})")
            for t in range(8):
                for q in range(4):
                    k(f"v_perm_b32 v{216+q}, v{b+4*(2*q+1)+(t>>1)}, v{b+4*(2*q)+(t>>1)}, s{S_T+5+(t&1)}")
                for q in range(4):
                    k(f"v_accvgpr_write_b32 a{(g*8+t)*4+q}, v{216+q}")
            if g + NB < 8:
                issue(g + NB)
            if g == 0:
                self.arrive()

    def role_att(self, steady):
        k = self.k
        opt = self.opt
        DL, TH, KB_ = self.spec()
        NW = 6
        over = self.loc == "" and opt.get("over", 1)
        PTX = 0 if opt.get("pt1") else 512 * KB
        sWK, sSEL = 54, 55
        sCNT, sBUF, sHD, sPT, sNQ, sNK, sLATE, sDF, sCUR, sMAXK, sFM, sNX = (S_T + i for i in range(10, 22))
        sTODO, sKO, sCW, sX = 84, 86, 87, S_A
        R_, sPS, sMODE, sST, sRB = 18, 26, 27, 32, 34
        sBN, sD, sVB, sHAD = 35, 36, 37, 38
        DEC = PG_OFF + 65 * 8192 + F_DEC
        OUT = DBG
        OX, ROWS = 128 * KB, 144 * KB
        RK, OW_, OB_, PT_, RW_, RL_ = 2, 3, 4, 5, 6, 7
        TX0, TX1 = 8, 12
        L4, FL, ST, SA_, DF, KA = 16, 17, 18, 19, 20, 21
        Q, KK, F, V, VM, S = 24, 40, 72, 88, 120, 128
        P, Lr, ONES, SEL, O = 140, 148, 152, 156, 24
        B, ACC, PK = 24, 160, 24
        XI, WR, KEY, TT = 224, 228, 236, 238
        CN, RR_, GK, VR, VW, VT, VO, KR = 22, 23, 246, 245, 247, 248, 253, 254
        KY = 242
        VOTE = ROWS + 8 * KB
        T = TT
        self.make_sel(SEL, TT)
        self.srd(P_WR, 1024)
        k(f"""buffer_load_dwordx4 {vr(XI,4)}, v{V_L16}, {SA}, 0 offen
              v_and_b32 v{T}, 15, v{V_LANE}
              v_lshrrev_b32 v{T+1}, 4, v{V_LANE}
              v_lshlrev_b32 v{T+2}, 2, v{T+1}
              v_mov_b32 v{T+3}, {NEGBIG}
              s_and_b32 s{S_T}, s{S_W}, 1
              s_lshl_b32 s{S_T}, s{S_T}, 4
              v_add_u32 v{T+4}, s{S_T}, v{T}""")
        for u in range(2):
            for r in range(4):
                k(f"v_add_u32 v{T+5}, {16*u+r}, v{T+2}")
                k(f"v_cmp_gt_u32 vcc, v{T+5}, v{T+4}")
                k(f"v_cndmask_b32 v{(TX0,TX1)[u]+r}, 0, v{T+3}, vcc")
        CV = ONES
        k(f"""v_mov_b32 v{CV}, s{S_C}
              v_mov_b32 v{P+5}, 0
              v_mov_b32 v{P+6}, 0
              s_lshl_b32 s{S_T}, s{S_W}, 12
              s_add_u32 s{S_T}, s{S_T}, {OX}
              v_add_u32 v{OW_}, s{S_T}, v{V_L16}
              v_add_u32 v{OB_}, {OX}, v{V_L16}
              s_lshl_b32 s{S_T}, s{S_W}, 8
              v_lshlrev_b32 v{RL_}, 4, v{T}
              v_add_u32 v{RL_}, s{S_T}, v{RL_}
              v_lshl_add_u32 v{PT_}, v{T+1}, 16, v{RL_}
              v_lshlrev_b32 v{RW_}, 1, v{RL_}
              v_lshl_add_u32 v{RL_}, v{T+1}, 10, v{RL_}
              v_and_b32 v{T+5}, 1, v{T+1}
              v_lshl_add_u32 v{RW_}, v{T+5}, 4, v{RW_}
              v_lshrrev_b32 v{T+5}, 1, v{T+1}
              v_lshl_add_u32 v{RW_}, v{T+5}, 12, v{RW_}
              v_add_u32 v{RW_}, {ROWS}, v{RW_}
              v_lshlrev_b32 v{L4}, 2, v{V_LANE}
              v_lshlrev_b32 v{KA}, 3, v{T}
              s_and_b32 s{sHD}, s{S_H}, 15
              s_lshl_b32 s{S_T}, s{sHD}, 10
              v_add_u32 v{PT_}, s{S_T}, v{PT_}
              s_lshl_b32 s{S_T}, s{sHD}, 15
              v_add_u32 v{RL_}, s{S_T}, v{RL_}
              s_lshl_b32 s{sPT}, s{sWK}, 20
              s_add_u32 s{sPT}, s{sPT}, {PT_OFF}
              s_lshl_b32 s{sCW}, s{sWK}, 13
              s_add_u32 s{sCW}, s{sCW}, {PG_OFF + F_CW}
              s_lshl4_add_u32 s{sCUR}, s{sHD}, s{sCW}
              s_lshl2_add_u32 s{sCUR}, s{S_W}, s{sCUR}
              s_lshl_b32 s{sHD}, s{sHD}, 1
              s_lshr_b32 s{S_T}, s{S_W}, 1
              s_add_u32 s{sHD}, s{sHD}, s{S_T}
              s_mov_b32 s{sCNT}, 0
              s_mov_b32 s{sBUF}, 0
              s_mov_b32 s{sDF}, 0x80000000
              s_mov_b32 s{sMAXK}, 0
              s_mov_b32 s{sVB}, 0
              s_mov_b64 {sr(sHAD,2)}, 0
              s_sub_u32 s{sD}, s{sWK}, {2 + DL}
              s_and_b32 s{sD}, s{sD}, 3
              s_mov_b32 s{SRD_DBG}, s{P_OUT}
              s_mov_b32 s{SRD_DBG+1}, s{P_OUT+1}
              s_mov_b32 s{SRD_DBG+2}, {2048*1024}
              s_mov_b32 s{SRD_DBG+3}, 0x20000
              v_add_u32 v{KA}, {PG_OFF + F_RK[0]}, v{KA}
              v_mov_b32 v{KY+2}, v{KA}
              s_and_b32 s{S_T}, s{S_LW}, 2048
              s_add_u32 s{S_T}, s{S_T}, {ROWS}
              v_lshlrev_b32 v{RR_}, 5, v{V_LANE}
              v_add_u32 v{RR_}, s{S_T}, v{RR_}
              v_and_b32 v{VO}, 32, v{V_L16}
              v_lshrrev_b32 v{VR}, 2, v{VO}
              v_add_u32 v{VO}, v{VO}, v{VR}
              v_sub_u32 v{VO}, v{V_L16}, v{VO}
              v_add_u32 v{VO}, 8, v{VO}                     ; v_m of a lane: (lane & ~2)*16 + (lane & 2 ? 0 : 8)
              v_mov_b32 v{KR}, 0x80000000
              s_mov_b32 s{S_T}, {F_RK[0]}
              v_writelane_b32 v{KR}, s{S_T}, 0
              s_mov_b32 s{S_T}, {F_RKU}
              v_writelane_b32 v{KR}, s{S_T}, 1
              s_mov_b32 s{S_T}, {F_RKM}
              v_writelane_b32 v{KR}, s{S_T}, 2
              v_mov_b32 v{VR}, {VOTE}
              s_lshl_b32 s{S_T}, s{S_W}, 2
              v_add_u32 v{VW}, s{S_T}, v{VR}
              s_waitcnt vmcnt(0)""")
        self.unpack8(WR, XI)
        TH_ = 255
        k(f"v_mul_f32 v{TH_}, v{WR}, v{WR}")
        for j in range(1, 8):
            k(f"v_fma_f32 v{TH_}, v{WR+j}, v{WR+j}, v{TH_}")
        self.wsum(TH_, TT)
        k(f"""v_sqrt_f32 v{TH_}, v{TH_}
              v_sub_u32 v{TT}, {63 + KB_}, v{V_LANE}
              v_cvt_f32_u32 v{TT}, v{TT}
              v_log_f32 v{TT}, v{TT}
              v_mov_b32 v{TT+1}, {f32(opt.get("za", 1.95))}
              v_fmac_f32 v{TT+1}, {f32(opt.get("zb", 0.32) * math.log(2))}, v{TT}
              v_mul_f32 v{TH_}, v{TH_}, v{TT+1}
              v_or_b32 v{TH_}, 0x80000000, v{TH_}""")

        def capture(fn, *a):
            n0 = len(k.lines); fn(*a); out = k.lines[n0:]; del k.lines[n0:]; return out
        def hpage(dst, off, seg):
            k(f"""s_lshl_b32 s{dst}, s{seg}, 13
                  s_lshl2_add_u32 s{dst}, s{sHD}, s{dst}
                  s_add_u32 s{dst}, s{dst}, {PG_OFF + off}""")
        def spin(v, reload, cmp):
            A_, B_ = k.newlabel("L_aw"), k.newlabel("L_awd")
            k.label(A_)
            k(f"""{cmp}
                  s_cbranch_vccz {B_}
                  {reload}""")
            self.spend()
            k(f"""s_waitcnt vmcnt(0)
                  s_branch {A_}""")
            k.label(B_)
        GL = " glc" if opt.get("glc") else ""
        stubs = []
        st_load = f"buffer_load_dword v{ST}, v{SA_}, {WS}, 0 offen sc1"
        def plan_next(layer, s_rec=None, vec=False):
            out = capture(plan_next_, layer, s_rec)
            for x in out:
                if not (vec and x.startswith("s_buffer_load")):
                    k(x)
        def plan_next_(layer, s_rec):
            k(f"""s_lshl_b32 s{S_T}, s{sNX}, 5
                  s_add_u32 s{S_T}, s{S_T}, s{sHD}
                  s_mul_i32 s{sNQ}, s{S_T}, {24*KB}
                  s_lshl_b32 s{sNK}, s{S_T}, 12""")
            if layer == 0:
                hpage(S_T + 3, F_Q[0], sNX)
                k(f"""s_buffer_load_dword s{sST}, {WS}, s{S_T+3}{GL}
                      s_mov_b32 s{sST+1}, 1
                      s_add_u32 s{sNQ}, s{sNQ}, {QKV_OFF[0]}
                      s_add_u32 s{sNK}, s{sNK}, {KVM_OFF[0]}
                      v_mov_b32 v{SA_}, s{S_T+3}""")
            else:
                hpage(S_T + 3, F_Q[1], sNX)
                k(f"""s_cmp_lt_u32 s{sNX}, s{s_rec}
                      s_cselect_b32 s{S_T+1}, 0, {KVM_OFF[2] - KVM_OFF[1]}
                      s_mov_b32 s{S_T+4}, s{S_T+3}
                      s_buffer_load_dword s{sST+1}, {WS}, s{S_T+4}{GL}
                      s_add_u32 s{sNK}, s{sNK}, s{S_T+1}
                      s_add_u32 s{sNK}, s{sNK}, {KVM_OFF[1]}
                      s_cmp_eq_u32 s{sNX}, s{s_rec}
                      s_cselect_b32 s{S_T+1}, {QKV_OFF[2] - QKV_OFF[1]}, 0
                      s_cselect_b32 s{S_T+2}, {F_Q[2] - F_Q[1]}, 0
                      s_add_u32 s{S_T+3}, s{S_T+3}, s{S_T+2}
                      s_buffer_load_dword s{sST}, {WS}, s{S_T+3}{GL}
                      s_add_u32 s{sNQ}, s{sNQ}, s{S_T+1}
                      s_add_u32 s{sNQ}, s{sNQ}, {QKV_OFF[1]}
                      v_mov_b32 v{SA_}, s{S_T+3}
                      v_writelane_b32 v{SA_}, s{S_T+4}, 1""")
        NT = " nt" if opt.get("nt") else ""
        LP = opt.get("lp", "sc1")
        def fetch_ops(q, kv):
            out = [f"s_and_b32 s{S_T+1}, s{S_W}, 1", f"s_mul_i32 s{S_T+2}, s{S_T+1}, {12*KB}",
                   f"s_add_u32 s{q}, s{q}, s{S_T+2}", f"s_lshl_b32 s{S_T+1}, s{S_T+1}, 11", f"s_add_u32 s{kv}, s{kv}, s{S_T+1}",
                   f"s_and_b32 s{S_T+3}, s{S_LW}, 2048", f"s_lshl_b32 s{S_T+3}, s{S_T+3}, 4",
                   f"s_xor_b32 s{S_T+4}, s{sBUF}, {64*KB}", f"s_add_u32 s{S_T+3}, s{S_T+3}, s{S_T+4}",
                   f"s_add_u32 s{S_T+2}, s{S_T+2}, s{S_T+3}", f"s_add_u32 s{S_T+1}, s{S_T+1}, s{S_T+3}"]
            for i in range(3):
                out.append(f"s_add_u32 m0, s{S_T+2}, {i*4096}")
                if i:
                    out.append(f"s_add_u32 s{q}, s{q}, 4096")
                out += [f"buffer_load_dwordx4 v{V_L16}, {WS}, s{q} offen offset:{c*1024} sc1{NT} lds" for c in range(4)]
            out.append(f"s_add_u32 m0, s{S_T+1}, {24*KB}")
            out += [f"buffer_load_dwordx4 v{V_L16}, {WS}, s{kv} offen offset:{c*1024} {LP} lds" for c in range(2)]
            return out
        sLAY, sNS = S_B, S_CNT
        pub = [f"buffer_store_dword v{DF}, off, {WS}, s{sDF} sc1", f"s_mov_b32 s{sDF}, 0x80000000"]
        def flush_pub():
            k("s_waitcnt vmcnt(0)")
            for x in pub:
                k(x)
        def look():
            for kk in range(4):
                k(f"buffer_load_dwordx4 {vr(F+4*kk,4)}, v{V_L16}, {WS}, s{sFM} offen offset:{kk*1024} {LP}")
            for i in range(4):
                k(f"buffer_load_dwordx2 {vr(VM+2*i,2)}, v{VO}, {WS}, s{sFM} offen offset:{i*1024} {LP}")
        key_load = f"buffer_load_dwordx2 {vr(KY,2)}, v{KY+2}, {WS}, 0 offen sc1"
        def keys_issue(t):
            k(f"""v_lshrrev_b32 v{KY+2}, 4, v{V_LANE}
                  s_sub_u32 s{t}, s{sNX}, {KB_ + 3}
                  v_add_u32 v{KY+2}, s{t}, v{KY+2}
                  v_max_i32 v{KY+2}, 0, v{KY+2}
                  v_lshl_add_u32 v{KY+2}, v{KY+2}, 13, v{KA}
                  {key_load}""")
        def fcheck():
            out = []
            for kk in range(4):
                f = F + 4 * kk
                out.append(f"v_max3_u32 v{TT}, v{f}, v{f+1}, v{TT if kk else f+2}")
                out.append(f"v_max3_u32 v{TT}, v{f+2}, v{f+3}, v{TT}")
            return out
        def vcheck():
            for i in range(4):
                k(f"v_max3_u32 v{TT}, v{VM+2*i}, v{VM+2*i+1}, v{TT}")
            k(f"v_cmp_eq_u32 vcc, -1, v{TT}")
        def check(w, n=1):
            fc = fcheck()
            for kk in range(4):
                if w:
                    k(f"s_waitcnt vmcnt({7+n-kk})")
                k(f"v_mfma_f32_16x16x32_bf16 {vr(S+8,4)}, {vr(F+4*kk,4)}, {vr(Q+4*kk,4)}, {'0' if kk == 0 else vr(S+8,4)}")
                k(fc.pop(0)); k(fc.pop(0))
            if w:
                k(f"s_waitcnt vmcnt({n})")
            vcheck()
        def chain_wait(cond):
            A_, B_ = k.newlabel("L_ac"), k.newlabel("L_acb")
            k(f"s_cbranch_{cond} {A_}")
            k.label(B_)
            def stub():
                k.label(A_)
                look()
                self.spend()
                check(True, 0)
                k(f"""s_cbranch_vccnz {A_}
                      s_branch {B_}""")
            stubs.append(stub)
        def pre(direct=False):
            k(f"""s_xor_b32 s{sBUF}, s{sBUF}, {64*KB}
                  s_and_b32 s{S_T}, s{S_LW}, 2048
                  s_lshl_b32 s{S_T}, s{S_T}, 4
                  s_add_u32 s{S_T}, s{S_T}, s{sBUF}
                  v_add_u32 v{RK}, s{S_T}, v{V_L16}
                  v_add_u32 v{TT+1}, s{S_T}, v{VO}
                  s_and_b32 s{S_T}, s{S_LW}, 1024
                  s_lshl_b32 s{S_T}, s{S_T}, 2
                  v_add_u32 v{TT}, s{S_T}, v{RK}
                  s_mov_b32 s{sFM}, s{sNK}
                  s_mov_b32 s{sNS}, s{sNX}""")
            for kk in range(4):
                k(f"ds_read_b128 {vr(Q+4*kk,4)}, v{TT} offset:{16*KB + kk*1024}")
                k(f"ds_read_b128 {vr(KK+4*kk,4)}, v{RK} offset:{kk*1024}")
                k(f"ds_read_b128 {vr(KK+16+4*kk,4)}, v{RK} offset:{4096 + kk*1024}")
            late = [f"ds_read_b128 {vr(F+4*i,4)}, v{RK} offset:{24*KB + i*1024}" for i in range(4)]
            late += [f"ds_read_b64 {vr(VM+2*i,2)}, v{TT+1} offset:{24*KB + i*1024}" for i in range(4)]
            if direct:
                late = []
                look()
            late += [f"ds_read_b128 {vr(V+4*i,4)}, v{RK} offset:{8*KB + i*1024}" for i in range(8)]
            for kk in range(4):
                k(f"s_waitcnt lgkmcnt({9 - 3*kk + 2*kk})")
                q = vr(Q + 4 * kk, 4)
                k(f"v_mfma_f32_16x16x32_bf16 {vr(S,4)}, {vr(KK+4*kk,4)}, {q}, {vr(TX0,4) if kk == 0 else vr(S,4)}")
                k(late.pop(0))
                k(f"v_mfma_f32_16x16x32_bf16 {vr(S+4,4)}, {vr(KK+16+4*kk,4)}, {q}, {vr(TX1,4) if kk == 0 else vr(S+4,4)}")
                k(late.pop(0))
            if direct:
                return
            k("s_waitcnt lgkmcnt(4)")
            for kk in range(4):
                k(f"v_mfma_f32_16x16x32_bf16 {vr(S+8,4)}, {vr(F+4*kk,4)}, {vr(Q+4*kk,4)}, {'0' if kk == 0 else vr(S+8,4)}")
                k(late.pop(0)); k(late.pop(0))
        poll = f"buffer_load_dword v{FL}, v{L4}, {WS}, s{sCW} offen sc1"
        pcmp = f"v_cmp_gt_u32 vcc, s{sCNT}, v{FL}"
        def rloads(RD):
            out = [f"s_xor_b32 s{sRB}, s{sPT}, {PTX}"]
            for i in range(8):
                if i:
                    out.append(f"s_add_u32 s{sRB}, s{sRB}, 4096")
                out.append(f"buffer_load_dwordx4 {vr(RD+4*i,4)}, v{RL_}, {WS}, s{sRB} offen sc1")
            return out
        RD2 = 192
        def skip_test(t):
            return [f"s_bfe_u32 s{S_T}, s{sCNT}, 0x10002", f"v_lshrrev_b32 v{t}, s{S_T}, v{FL}", f"v_and_b32 v{t}, 1, v{t}",
                    f"v_cmp_ne_u32 vcc, 0, v{t}"]
        def post(fetch=False, tail=None, skip=None):
            t = TT
            pk = lambda op, i, o, m="": f"v_pk_{op}_f32 {vr(S+i,2)}, {vr(S+i,2)}, {vr(o,2)} op_sel_hi:[1,0]{m}"
            pa = opt.get("pollat", 1)
            k(f"""{poll if fetch and pa == 0 else ""}
                  v_max3_f32 v{t}, v{S}, v{S+1}, v{S+2}
                  v_max3_f32 v{t+1}, v{S+3}, v{S+4}, v{S+5}
                  v_max3_f32 v{t}, v{S+6}, v{S+7}, v{t}
                  v_max3_f32 v{t+1}, v{S+10}, v{S+11}, v{t+1}
                  v_max_f32 v{t}, v{t}, v{t+1}
                  v_max_f32 v{t+1}, v{t}, v{t+1}
                  {pk("mul", 0, CV)}
                  {pk("mul", 2, CV)}
                  v_permlane16_swap_b32 v{t}, v{t+1}
                  v_max_f32 v{t}, v{t}, v{t+1}
                  v_max_f32 v{t+1}, v{t}, v{t+1}
                  {pk("mul", 4, CV)}
                  {pk("mul", 6, CV)}
                  v_permlane32_swap_b32 v{t}, v{t+1}
                  v_max_f32 v{t}, v{t}, v{t+1}
                  v_mul_f32 v{t}, v{CV}, v{t}
                  {pk("mul", 10, CV)}
                  {poll if fetch and pa == 1 else ""}""")
            for i in (0, 2, 4, 6, 10):
                k(pk("add", i, t, " neg_lo:[0,1] neg_hi:[0,1]"))
            for i in (0, 1, 2, 3, 4, 5, 6, 7, 10, 11):
                k(f"v_exp_f32 v{S+i}, v{S+i}")
            k(f"""{poll if fetch and pa == 2 else ""}
                  v_pk_add_f32 {vr(Lr,2)}, {vr(S,2)}, {vr(S+2,2)}
                  v_pk_add_f32 {vr(Lr+2,2)}, {vr(S+4,2)}, {vr(S+6,2)}
                  v_pk_add_f32 {vr(Lr,2)}, {vr(Lr,2)}, {vr(S+10,2)}
                  v_pk_add_f32 {vr(Lr,2)}, {vr(Lr,2)}, {vr(Lr+2,2)}
                  v_add_f32 v{Lr+2}, v{Lr}, v{Lr+1}
                  v_add_f32 v{Lr+3}, v{Lr}, v{Lr+1}
                  v_permlane16_swap_b32 v{Lr+2}, v{Lr+3}
                  v_add_f32 v{Lr}, v{Lr+2}, v{Lr+3}
                  v_add_f32 v{Lr+1}, v{Lr+2}, v{Lr+3}
                  v_permlane32_swap_b32 v{Lr}, v{Lr+1}
                  v_add_f32 v{Lr}, v{Lr}, v{Lr+1}
                  v_rcp_f32 v{Lr}, v{Lr}""")
            nrm = [pk("mul", i, Lr) for i in (10, 0, 2, 4, 6)]
            nrm += [f"v_cvt_pk_bf16_f32 v{P+4}, v{S+10}, v{S+11}", f"v_cvt_pk_bf16_f32 v{P+7}, v{S+10}, v{S+11}"]
            cvp = [f"v_cvt_pk_bf16_f32 v{P+q}, v{S+2*q}, v{S+2*q+1}" for q in range(4)]
            rl = []
            if fetch:
                RT_, BK = k.newlabel("L_ap"), k.newlabel("L_apb")
                k(f"""s_waitcnt vmcnt(0)
                      {pcmp}""")
                for x in nrm[:5]:
                    k(x)
                nrm = nrm[5:]
                k(f"s_cbranch_vccnz {RT_}")
                k.label(BK)
                def stub():
                    k.label(RT_)
                    spin(FL, poll, pcmp)
                    k(f"s_branch {BK}")
                stubs.append(stub)
                self.mark(37)
                rl = rloads(RD2)
                k(rl.pop(0)); k(rl.pop(0))
                if skip:
                    for x in skip_test(TT) + nrm + cvp:
                        k(x)
                    nrm = []; cvp = []
                    k(f"""s_cbranch_vccnz {skip}
                          s_add_u32 s{sD}, s{sD}, 4""")
            for x in nrm:
                k(x)
            fin = lambda i: [f"v_cvt_pk_bf16_f32 v{F+4*i+r}, v{O+8*i+r}, v{O+8*i+4+r}" for r in range(4)]
            owr = lambda i: f"ds_write_b128 v{OW_}, {vr(F+4*i,4)} offset:{i*1024}"
            for i in range(8):
                k(f"v_mfma_f32_16x16x16_bf16 {vr(O+4*i,4)}, {vr(VM+2*(i>>1),2)}, {vr(P+4+2*(i&1),2)}, 0")
                if rl:
                    k(rl.pop(0))
                if cvp:
                    k(cvp.pop(0))
            for i in range(8):
                k(f"v_mfma_f32_16x16x32_bf16 {vr(O+4*i,4)}, {vr(V+4*i,4)}, {vr(P,4)}, {vr(O+4*i,4)}")
                if i in (5, 7):
                    k(owr((i - 5) // 2))
                elif rl:
                    k(rl.pop(0))
                if i >= 3:
                    for x in fin((i - 3) // 2)[2 * ((i - 3) & 1):][:2]:
                        k(x)
            for x in fin(2)[2:] + [owr(2)] + rl + fin(3) + [owr(3)]:
                k(x)
            if tail:
                k(tail)
            k("""s_waitcnt lgkmcnt(0)
                 s_barrier""")
        def pop_todo(n):
            for _ in range(n):
                k(f"""s_ff1_i32_b64 s{sNX}, {sr(sTODO,2)}
                      s_bitset0_b64 {sr(sTODO,2)}, s{sNX}""")
            k(f"s_min_u32 s{sNX}, s{sNX}, 64")
        DLAST = opt.get("dlast", 62)
        def no_more():
            k(f"""v_subrev_u32 v{VT}, s{sD}, v{V_LANE}
                  v_and_b32 v{VT}, 0x80000003, v{VT}
                  v_cmp_eq_u32 vcc, 0, v{VT}
                  v_lshlrev_b32 v{VT}, 2, v{V_LANE}
                  v_mov_b32 v{VT+1}, 0x40000000
                  v_cndmask_b32 v{VT}, v{VT+1}, v{VT}, vcc
                  v_mov_b32 v{VT+1}, 3
                  s_or_b32 s{S_T+3}, s{sHD}, s{S_W}
                  s_mov_b32 s{S_T+3}, {DEC}
                  s_cmov_b32 s{S_T+3}, 0x80000000
                  buffer_store_dword v{VT+1}, v{VT}, {WS}, s{S_T+3} offen sc1""")
        def plan_after_d():
            F_, J_ = k.newlabel("L_ae"), k.newlabel("L_af")
            k(f"""s_cmp_lg_u32 s{sKO}, {F_RK[1]}
                  s_cbranch_scc1 {F_}
                  s_mov_b32 s{sNX}, s{sBN}
                  s_mov_b32 s{sX}, 0""")
            plan_next(0)
            k(f"s_branch {J_}")
            k.label(F_)
            pop_todo(1)
            k(f"s_lshr_b32 s{S_T+5}, s{sSEL}, 5")
            plan_next(1, S_T + 5)
            k.label(J_)
        def plan_after_b(vec=False):
            NB_, J_ = k.newlabel("L_ab"), k.newlabel("L_aj")
            NM_ = k.newlabel("L_am")
            k(f"""s_add_u32 s{sBN}, s{sNS}, 4
                  s_cmp_lt_u32 s{sNS}, {KB_}
                  s_cbranch_scc1 {NB_}
                  s_cmp_ge_u32 s{sNS}, {DLAST}
                  s_cbranch_scc1 {NM_}""")
            def stub():
                k.label(NM_)
                no_more()
                k(f"s_branch {NB_}")
            stubs.append(stub)
            spin(KY, f"s_sleep {opt.get('slt', 4)}\n" + key_load, f"v_min_u32 v{TT+1}, v{KY}, v{KY+1}\nv_cmp_eq_u32 vcc, 0, v{TT+1}")
            k(f"v_max_u32 v{KY}, v{KY}, v{KY+1}")
            self.wmax_u32(KY, KY + 1)
            k(f"""v_readfirstlane_b32 s{S_T}, v{KY}
                  v_readlane_b32 s{S_T+1}, v{TH_}, s{sNS}
                  s_max_u32 s{sMAXK}, s{sMAXK}, s{S_T}
                  s_cmp_lt_u32 s{sNS}, {DL}
                  s_cbranch_scc1 {NB_}
                  s_mov_b32 s{sNX}, s{sD}
                  s_and_b32 s{sSEL}, s{sMAXK}, 0x7ff
                  s_sub_u32 s{sSEL}, 2047, s{sSEL}
                  s_cmp_lt_u32 s{sMAXK}, s{S_T+1}
                  s_cselect_b32 s{sSEL}, 4095, s{sSEL}
                  s_lshr_b32 s{S_T+5}, s{sSEL}, 5
                  s_mov_b32 s{sX}, 1""")
            plan_next(1, S_T + 5, vec)
            k(f"s_branch {J_}")
            k.label(NB_)
            k(f"""s_mov_b32 s{sNX}, s{sBN}
                  s_mov_b32 s{sX}, 0""")
            plan_next(0, None, vec)
            k.label(J_)
        def exch1(vote=0, keep=0):
            k(f"""s_add_u32 s{sCNT}, s{sCNT}, 4
                  s_bfe_u32 s{S_T}, s{sCNT}, 0x10002
                  s_bitset0_b32 s{sVB}, s{S_T}
                  s_lshl_b32 s{S_T}, {vote}, s{S_T}
                  s_or_b32 s{sVB}, s{sVB}, s{S_T}
                  s_or_b32 s{S_T}, s{sVB}, s{sCNT}
                  v_mov_b32 v{CN}, s{S_T}
                  s_xor_b32 s{sPT}, s{sPT}, {PTX}
                  s_waitcnt vmcnt({keep}) lgkmcnt(0)
                  buffer_store_dword v{CN}, off, {WS}, s{sCUR}{self.loc}""")
            for x in pub if opt.get("pub0") else ():
                k(x)
            self.mark(36)
        def reduce_items(RD, RA):
            out = []
            for i in range(8):
                d = vr(RA + 4 * (i >> 2), 4)
                out.append(("wv", "RD%d" % i))
                out.append(f"v_mfma_f32_16x16x32_bf16 {d}, {vr(SEL,4)}, {vr(RD+4*i,4)}, {'0' if i % 4 == 0 else d}")
                if i == 6:
                    out.append(f"ds_write_b128 v{RW_}, {vr(RA,4)}")
            out.append(("gap", 2))
            out.append(f"ds_write_b128 v{RW_}, {vr(RA+4,4)} offset:2048")
            return out
        def reduce_now(RD, RA, nmid=0):
            i = 0
            for x in reduce_items(RD, RA):
                if isinstance(x, str):
                    k(x)
                elif x[0] == "wv":
                    k(f"s_waitcnt vmcnt({7 - i + nmid})"); i += 1
            k(f"""s_waitcnt lgkmcnt(0)
                  s_barrier""")
            for x in () if opt.get("pub0") else pub:
                k(x)
            self.mark(38)
        def exch2(mid=None, nmid=0):
            WL = k.newlabel("L_aq")
            k.label(WL)
            k(poll)
            self.spend()
            k(f"""s_waitcnt vmcnt(0)
                  {pcmp}
                  s_cbranch_vccnz {WL}""")
            self.mark(37)
            for x in rloads(160):
                k(x)
            if mid:
                mid()
            reduce_now(160, 192, nmid)
        def row(layer, odd, regs, seg):
            A, PKr, Y, TM, X = regs
            if layer and odd:
                return [], [("mark", "xi")], []
            rd_ = [f"ds_read_b128 {vr(A,4)}, v{RR_}", ("t", "A", f"ds_read_b128 {vr(A+4,4)}, v{RR_} offset:16")]
            out = capture(self.unpack8, X, XI)
            if layer:
                NG_, BK = k.newlabel("L_ag"), k.newlabel("L_agb")
                out.append(f"v_readfirstlane_b32 s{R_+4}, v{GK}")
                out.append(f"s_cmp_eq_u32 s{R_+4}, 0\ns_cbranch_scc1 {NG_}\n{BK}:")
                def stub():
                    k.label(NG_)
                    hpage(R_ + 3, F_RK[1], seg)
                    self.word_wait(R_ + 3, R_ + 4, va=GK)
                    k(f"s_branch {BK}")
                stubs.append(stub)
            out.append(("mark", "xi"))
            out += [f"s_lshl_b32 s{R_}, s{seg}, 5", f"s_add_u32 s{R_}, s{R_}, s{sHD}", f"s_lshl_b32 s{R_+1}, s{R_}, 10",
                    f"s_add_u32 s{R_+2}, s{R_+1}, {X1_OFF[layer] if layer or odd else X2_OFF}", ("mark", "early")]
            def body():
                self.pack8(PKr, A)
                self.unpack8(A, PKr)
                self.add8(X, A)
                self.pack8(PKr, X)
                if layer or odd:
                    k(f"buffer_store_dwordx4 {vr(PKr,4)}, v{V_L16}, {WS}, s{R_+2} offen sc1")
                self.unpack8(X, PKr)
                self.layernorm(X, PKr + 4, TM)
                self.unpack8(Y, PKr + 4)
                if not odd:
                    self.add8(X, Y)
                    self.pack8(A, X)
                    if layer == 0:
                        k(f"buffer_store_dwordx4 {vr(A,4)}, v{V_L16}, {WS}, s{R_+2} offen sc1")
                        self.unpack8(X, A)
                        self.layernorm(X, A + 4, TM)
                        k(f"""s_add_u32 s{R_+2}, s{R_+1}, {H_OFF[1]}
                              buffer_store_dwordx4 {vr(A+4,4)}, v{V_L16}, {WS}, s{R_+2} offen sc1
                              v_mov_b32 v{DF}, 1""")
                        hpage(sDF, F_HX, seg)
                        return
                    k(f"buffer_store_dwordx4 {vr(A,4)}, v{V_L16}, {OUT}, s{R_+1} offen sc1")
                k(f"v_pk_mul_f32 {vr(KEY,2)}, {vr(Y,2)}, {vr(WR,2)}")
                for j in range(2, 8, 2):
                    k(f"v_pk_fma_f32 {vr(KEY,2)}, {vr(Y+j,2)}, {vr(WR+j,2)}, {vr(KEY,2)}")
                k(f"v_add_f32 v{KEY}, v{KEY}, v{KEY+1}")
                self.wsum(KEY, KEY + 1)
                self.round1(KEY)
                k(f"""v_ashrrev_i32 v{KEY+1}, 31, v{KEY}
                      v_or_b32 v{KEY+1}, 0x80000000, v{KEY+1}
                      v_xor_b32 v{KEY}, v{KEY}, v{KEY+1}
                      v_and_b32 v{KEY}, 0xffff0000, v{KEY}
                      s_sub_u32 s{R_+2}, {2047 + 2048}, s{R_}
                      v_or_b32 v{DF}, s{R_+2}, v{KEY}""")
                if layer == 0:
                    hpage(R_ + 2, 0, seg)
                    k(f"buffer_store_dword v{DF}, v{KR}, {WS}, s{R_+2} offen sc1")
                else:
                    hpage(sDF, 0, seg)
                    k(f"s_add_u32 s{sDF}, s{sDF}, s{sKO}")
            return rd_, out, [("wl", "A")] + capture(body)

        FINAL, T3, NXB, LATE, DRAIN, ROWS_, RD_, GOB, SLOW, SLB, FIN2, PL, PC, T3E, T3X = (k.newlabel("L_aa") for _ in range(15))
        if opt.get("ptwarm", 1) and not self.loc:
            for _ in range(2):
                for x in rloads(160):
                    k(x.replace(" sc1", ""))
                k(f"s_xor_b32 s{sPT}, s{sPT}, {PTX}")
        k(f"""s_cmp_lt_u32 s{sWK}, 2
              s_cbranch_scc1 {FINAL}
              s_sub_u32 s{sNX}, s{sWK}, 2
              s_mov_b32 s{sX}, 0
              s_mov_b32 s{sKO}, {F_RK[1]}""")
        plan_next(0)
        k(f"s_branch {SLOW}")

        bread = lambda u: [("t", "B%d%d" % (u, g), f"ds_read_b128 {vr(B+u*32+4*g,4)}, v{OB_} offset:{((g>>2)*2+u)*4096 + (g&3)*1024}") for g in range(8)]
        def head():
            h = R_ + 5
            return [("need", "xi"),
                    f"s_lshl_b32 s{h}, s{S_SEG}, 5", f"s_add_u32 s{h}, s{h}, s{sHD}", f"s_lshl_b32 s{h+1}, s{h}, 10",
                    f"s_lshl_b32 s{h+2}, s{S_SEG}, 10", f"s_add_u32 s{h+2}, s{h+2}, {X2P_OFF - X2_OFF}",
                    f"s_cmp_eq_u32 s{h}, s{sSEL}\ns_cselect_b32 s{h+2}, s{h+2}, s{h+1}",
                    f"s_add_u32 s{h+2}, s{h+2}, {X2_OFF}",
                    f"s_mov_b32 s{SRD_A+2}, {WS_SIZE}",
                    f"""s_cmp_eq_u32 s{sLAY}, 0
                        s_cselect_b32 s{h+2}, s{h+1}, s{h+2}
                        s_cselect_b64 {sr(SRD_A,2)}, {sr(P_X,2)}, {sr(P_WS,2)}
                        s_cmov_b32 s{SRD_A+2}, {2048*1024}""",
                    f"buffer_load_dwordx4 {vr(XI,4)}, v{V_L16}, {SA}, s{h+2} offen sc1",
                    f"s_lshr_b32 s{h+1}, s{sSEL}, 5",
                    f"s_cmp_lt_u32 s{S_SEG}, s{h+1}\ns_cselect_b32 s{h+1}, 1, 2",
                    f"v_mov_b32 v{VT+4}, s{h+1}",
                    f"s_lshl2_add_u32 s{h+2}, s{S_SEG}, {DEC}",
                    f"s_lshl_b32 s{h+1}, s{sHD}, 16", f"s_add_u32 s{h+1}, s{h+1}, s{sLAY}", f"s_add_u32 s{h+1}, s{h+1}, s{sKO}",
                    f"s_cmp_eq_u32 s{h+1}, {F_RK[1] + 1}\ns_cselect_b32 s{h+2}, s{h+2}, 0x80000000",
                    f"buffer_store_dword v{VT+4}, off, {WS}, s{h+2} sc1",
                    f"s_bitcmp1_b64 {sr(sHAD,2)}, s{S_SEG}\ns_cselect_b32 s{h+1}, {F_RK[1] - F_RK[0]}, 0"] \
                + capture(hpage, h, F_RK[0], S_SEG) \
                + [f"s_add_u32 s{h}, s{h}, s{h+1}", f"buffer_load_dword v{GK}, off, {WS}, s{h} sc1"] + capture(keys_issue, h)
        def pack(u):
            out = []
            for r in range(4):
                for p in range(4):
                    a_ = ACC + u * 32 + p * 8
                    out.append(f"v_cvt_pk_bf16_f32 v{PK+u*16+r*4+p}, v{a_+r}, v{a_+4+r}")
                out.append(f"s_add_u32 s{S_T+6}, s{sPT}, {(16*u+r)*16*KB}")
                out.append(f"buffer_store_dwordx4 {vr(PK+u*16+r*4,4)}, v{PT_}, {WS}, s{S_T+6} offen{self.loc}")
            return out
        GAP = opt.get("gap", 4)
        vote_rd = [f"ds_read_b128 {vr(VT,4)}, v{VR}", ("gap", 6), "s_waitcnt lgkmcnt(0)",
                   f"v_or3_b32 v{VT}, v{VT}, v{VT+1}, v{VT+2}", f"v_or_b32 v{VT}, v{VT}, v{VT+3}", ("gap", 1),
                   f"v_readfirstlane_b32 s{sLATE}, v{VT}"]
        def t3(pend):
            vm = ["RD%d" % i for i in range(8)] if pend else ["old"]
            lg = []
            seen = set()
            def emit(x):
                tag = None
                if not isinstance(x, str):
                    if x[0] == "mark":
                        seen.add(x[1]); return 0
                    if x[0] in ("wv", "wl"):
                        q_ = vm if x[0] == "wv" else lg
                        n = len(q_) - 1 - max(i for i, t in enumerate(q_) if t == x[1])
                        k(f"s_waitcnt {'vmcnt' if x[0] == 'wv' else 'lgkmcnt'}({min(n, 63 if x[0] == 'wv' else 15)})")
                        return 1
                    tag, x = x[1], x[2]
                c = 0
                for ln in x.split("\n"):
                    ln = ln.strip()
                    k(ln)
                    if ln.startswith("buffer"):
                        vm.append("copy" if ln.endswith("lds") else tag); c += 2
                    elif ln.startswith("ds_"):
                        lg.append(tag); c += 2
                    elif ln.startswith("v_mfma"):
                        c += 2
                    elif not ln.endswith(":"):
                        c += 1
                return c
            self.mark(34)
            n_start = len(k.lines)
            b0 = bread(0)
            for x in b0[:2]:
                emit(x)
            fo = fetch_ops(S_T + 8, S_T + 9)
            k(f"""s_min_u32 s{S_T}, s{sST}, s{sST+1}
                  s_cmp_lt_u32 s{sNX}, 64
                  s_cselect_b32 s{S_T}, s{S_T}, 0
                  s_cmp_eq_u32 s{S_T}, 0
                  s_cselect_b32 s{sLATE}, 0x80000000, 0
                  v_mov_b32 v{VT}, s{sLATE}
                  s_or_b32 s{S_T+8}, s{sNQ}, s{sLATE}
                  s_or_b32 s{S_T+9}, s{sNK}, s{sLATE}
                  s_cmp_lt_u32 s{sX}, s{sLAY}
                  s_cselect_b32 s{S_T+9}, 0x80000000, s{S_T+9}""")
            for _ in range(4):
                k(fo.pop(0))
            if pend:
                qx = [("at", opt.get("redat", 6))]
                for x in reduce_items(RD2, S):
                    qx += [x, ("gap", 1)] if isinstance(x, str) and x.startswith("v_mfma") else [x]
                r0, early, r1 = row(pend[0], pend[1], (96, 104, 112, 120, 88), sPS)
                qx += [("gap", 4), ("need", "W"), "s_waitcnt lgkmcnt(0)\ns_barrier"] + r0 + [("mark", "bar")] + ([] if opt.get("pub0") else pub) + [("gap", 4)] + r1
            else:
                early = []
                qx = [("mark", "xi"), ("need", "b1"), ("gap", 4), "s_waitcnt lgkmcnt(0)\ns_barrier", ("mark", "bar"),
                      ("at", opt.get("pubat", 36)), ("wv", "old")] + pub
            if opt.get("unpk", 1):
                qx = [y for x in qx for y in unpk(x)]
            pk0 = pack(0)
            cv0 = [x for x in pk0 if x.startswith("v_")]
            st0 = [y for x in pk0 if not x.startswith("v_") for y in ((x, ("gap", opt.get("stgap", 3))) if x.startswith("buffer") else (x,))]
            queues = [fo, b0[2:] + [f"ds_write_b32 v{VW}, v{VT}", ("mark", "W")] + bread(1) + [("mark", "b1")], [("need", "bar")] + list(vote_rd),
                      early + head(), [("at", 66)] + cv0 + [("at", opt.get("stat", 92))] + st0, qx]
            order = [5, 0, 1, 2, 3, 4]
            def kind_of(x):
                x = x if isinstance(x, str) else (x[2] if x[0] == "t" else "s_")
                return "m" if x.startswith("v_mfma") else "v" if x.startswith("v_") else "x" if x.startswith(("ds_", "buffer")) else "s"
            def stalls(x):
                x = x if isinstance(x, str) else (x[2] if x[0] == "t" else None)
                if x is None:
                    return False
                c = Ins(x.split("\n")[0].strip())
                d = 1 if k.lines[-1].startswith("v_mfma") else 0
                for ln in reversed(k.lines[-4:]):
                    if ln.endswith(":"):
                        continue
                    if need(Ins(ln), c) > d:
                        return True
                    d += 1
                return False
            hold = [0] * len(queues)
            b1_before_bar = False
            cost = lambda x: 0 if not isinstance(x, str) and x[0] != "t" else 1.3
            for m in range(128):
                u, g, t = m >> 6, (m >> 3) & 7, m & 7
                if t == 0 and ("bar" not in seen or not b1_before_bar):
                    emit(("wl", "B%d%d" % (u, g)))
                if m in (32, 64, 96):
                    self.mark(39 + m // 32)
                d = vr(ACC + u * 32 + t * 4, 4)
                k(f"v_mfma_f32_16x16x32_bf16 {d}, {vr(B+u*32+4*g,4)}, {ar((g*8+t)*4,4)}, {'0' if g == 0 else d}")
                left = sum(kind_of(x) == "v" for q_ in queues for x in q_)
                bud = 3 if left <= 2 * (opt.get("rowend", 116) - m) or "bar" not in seen else 4
                n = 0
                def pick(kinds):
                    for qi in order:
                        q_ = queues[qi]
                        while q_ and not isinstance(q_[0], str) and q_[0][0] in ("at", "gap", "need", "mark") and hold[qi] <= m:
                            kind, val = q_[0]
                            if kind == "need" and val not in seen:
                                break
                            if kind == "at": hold[qi] = val
                            if kind == "gap": hold[qi] = m + val
                            if kind == "mark": seen.add(val)
                            q_.pop(0)
                        if q_ and hold[qi] <= m and not (not isinstance(q_[0], str) and q_[0][0] == "need") \
                                and kind_of(q_[0]) in kinds and not stalls(q_[0]):
                            x = q_.pop(0)
                            if isinstance(x, str) and x.endswith("lds"):
                                hold[qi] = m + GAP
                            emit(x)
                            return kind_of(x), (x.count("\n") + 1 if isinstance(x, str) else 1)
                    return None
                if "b1" in seen and not any(isinstance(l_, str) and l_ == "s_barrier" for l_ in k.lines[n_start:]):
                    b1_before_bar = True
                if "bar" in seen:
                    order = [0, 1, 2, 3, 5, 4] if m < 84 else [0, 1, 2, 3, 4, 5]
                r_ = pick("x") or pick("s")
                n = r_[1] if r_ else 1
                while n < bud:
                    r_ = pick("vsm")
                    if not r_:
                        break
                    if r_[0] == "m":
                        r_ = pick("x") or pick("s")
                        n = r_[1] if r_ else 1
                        continue
                    n += r_[1]
                if m == 63:
                    assert "b1" in seen and "bar" in seen
                if "bar" in seen and pend and not (pend[0] and pend[1]):
                    assert "early" in seen
            assert not any(queues[:4]), [len(q_) for q_ in queues]
            self.t3left = getattr(self, "t3left", []) + [(pend, len(queues[4]), len(queues[5]))]
            self.mark(35)
            pk1 = queues[4] + pack(1)
            while pk1 or qx:
                for q_ in (pk1, qx):
                    if q_:
                        x = q_.pop(0)
                        if isinstance(x, str) or x[0] not in ("at", "gap"):
                            emit(x)
            k(f"""s_cmp_lg_u32 s{sLATE}, 0
                  s_cbranch_scc1 {LATE}""")
            emit(("wv", "copy"))
        p00 = list(self.pend)
        V1 = k.newlabel("L_av")
        k.label(T3X)
        k(f"""s_bitcmp1_b32 s{S_W}, 0
              s_cbranch_scc1 {V1}""")
        for i in range(2):
            if i:
                k.label(V1)
            self.pend = list(p00)
            t3((1, i))
            if self.stamps and i == 0:
                k(f"s_mov_b32 s101, s{S_SEG}\ns_mov_b32 s{S_SEG}, s{sPS}")
                self.ev(22, va=240)
                k(f"s_mov_b32 s{S_SEG}, s101")
            k(f"s_branch {T3E}")
        k.label(T3)
        self.pend = list(p00)
        t3(None)
        k.label(T3E)
        DB = k.newlabel("L_ao")
        k(f"""s_barrier
              s_cmp_lt_u32 s{sX}, s{sLAY}
              s_cbranch_scc1 {DB}""")
        pre()
        k(f"""s_cmp_eq_u32 s{sX}, 0
              s_cbranch_scc1 {NXB}""")
        p0 = list(self.pend)
        LATE2, SKIP = k.newlabel("L_al"), k.newlabel("L_ak")
        for x in fcheck():
            k(x)
        k("s_waitcnt lgkmcnt(8)")
        vcheck()
        k(f"""s_cmp_lg_u64 vcc, 0
              s_cselect_b32 s{sMODE}, 1, 0
              s_andn2_b32 s{S_T+1}, s{sMODE}, s{sLAY}""")
        exch1(f"s{S_T+1}")
        plan_after_d()
        k(f"s_and_b32 s{sMODE}, s{sMODE}, s{sLAY}")
        chain_wait("scc1")
        BD = k.newlabel("L_ah")
        post(True, skip=SKIP, tail=f"""s_cmp_eq_u32 s{sLAY}, 0
                                       s_cbranch_scc1 {BD}""")
        p2 = list(self.pend)
        self.flush(va=240)
        k(f"""s_mov_b32 s{sPS}, s{S_SEG}
              s_mov_b32 s{S_SEG}, s{sNS}
              s_branch {T3X}""")
        k.label(BD)
        self.pend = p2
        reduce_now(RD2, 160)
        k(f"""s_mov_b32 s{sMODE}, 1
              s_branch {ROWS_}""")
        k.label(DB)
        self.pend = list(p0)
        pre(True)
        exch1(keep=8)
        k(f"""s_mov_b32 s{sPS}, s{S_SEG}
              s_mov_b32 s{sMODE}, 3""")
        self.flush(va=240)
        k(f"s_branch {SLB}")
        k.label(NXB)
        self.pend = list(p0)
        exch1()
        exch2(mid=look, nmid=8)
        k(f"""s_mov_b32 s{sMODE}, 0
              s_branch {ROWS_}""")
        k.label(LATE)
        self.pend = list(p0)
        k(f"""s_add_u32 s{S_T}, s{sX}, s{sKO}
              s_cmp_lg_u32 s{S_T}, {F_RK[1] + 1}
              s_cbranch_scc1 {LATE2}""")
        exch1(1)
        plan_after_d()
        k(f"s_branch {SKIP}")
        k.label(LATE2)
        self.pend = list(p0)
        exch1()
        k.label(SKIP)
        exch2()
        k(f"s_mov_b32 s{sMODE}, 2")
        k.label(ROWS_)
        RV = [k.newlabel("L_ar") for _ in range(3)]
        k(f"""s_cmp_lg_u32 s{sLAY}, 0
              s_cbranch_scc1 {RV[2]}
              s_bitcmp1_b32 s{S_W}, 0
              s_cbranch_scc1 {RV[1]}""")
        for i in range(3):
            k.label(RV[i])
            if i == 2:
                k(f"""s_bitcmp1_b32 s{S_W}, 0
                      s_cbranch_scc1 {RD_}""")
            for x in sum(row(i >> 1, i & 1, (160, 168, 176, 184, 200), S_SEG), []):
                if isinstance(x, str):
                    k(x)
                elif x[0] == "t":
                    k(x[2])
                elif x[0] == "wl":
                    k("s_waitcnt lgkmcnt(0)")
            if i < 2:
                k(f"s_branch {RD_}")
        k.label(RD_)
        self.flush(va=240)
        if self.stamps:
            E1, E2 = k.newlabel("L_ev"), k.newlabel("L_ev")
            k(f"s_cmp_lg_u32 s{sLAY}, 0\ns_cbranch_scc1 {E1}")
            self.ev(12, va=240)
            k(f"s_branch {E2}")
            k.label(E1)
            self.ev(22, va=240)
            k.label(E2)
        GOD = k.newlabel("L_ad")
        k(f"""s_cmp_eq_u32 s{sMODE}, 1
              s_cbranch_scc1 {GOD}
              s_cmp_eq_u32 s{sMODE}, 0
              s_cbranch_scc1 {GOB}
              s_cmp_ge_u32 s{sNX}, 64
              s_cbranch_scc1 {FIN2}""")
        k.label(SLOW)
        flush_pub()
        k(f"""v_mov_b32 v{ST}, 0
              s_mov_b32 s{sMODE}, 0""")
        spin(ST, st_load, f"v_cmp_eq_u32 vcc, 0, v{ST}")
        k(f"""s_mov_b32 s{S_T+8}, s{sNQ}
              s_mov_b32 s{S_T+9}, s{sNK}""")
        for x in fetch_ops(S_T + 8, S_T + 9):
            k(x)
        keys_issue(S_T)
        k(f"""s_waitcnt vmcnt(0) lgkmcnt(0)
              s_barrier""")
        self.ev(20, va=240)
        pre()
        k(f"""s_waitcnt lgkmcnt(0)
              s_cmp_eq_u32 s{sX}, 0
              s_cbranch_scc1 {SLB}""")
        plan_after_d()
        for x in fcheck():
            k(x)
        vcheck()
        chain_wait("vccnz")
        post()
        k.label(GOD)
        k(f"""s_mov_b32 s{S_SEG}, s{sNS}
              s_mov_b32 s{sLAY}, 1
              s_branch {T3}""")
        k.label(GOB)
        flush_pub()
        k.label(SLB)
        k(f"""s_mov_b32 s{S_SEG}, s{sNS}
              s_mov_b32 s{sLAY}, 0""")
        plan_after_b(True)
        k(st_load)
        k("s_waitcnt vmcnt(2)")
        self.ev(15, va=240)
        check(False)
        k(f"s_cbranch_vccz {PC}")
        k.label(PL)
        if opt.get("sll"):
            k(f"s_sleep {opt['sll']}")
        look()
        k(st_load)
        self.spend()
        check(True)
        k(f"s_cbranch_vccnz {PL}")
        k.label(PC)
        self.ev(10, va=240)
        NP = k.newlabel("L_ai")
        rl_ = f"""v_readlane_b32 s{sST}, v{ST}, 0
                  v_readlane_b32 s{sST+1}, v{ST}, 1"""
        k(f"""s_cmp_lg_u32 s{sMODE}, 3
              s_cbranch_scc1 {NP}""")
        mk_, self.opt["marks"] = self.opt.get("marks", ()), ()
        post(True, tail=rl_)
        self.opt["marks"] = mk_
        k(f"s_branch {T3X}")
        k.label(NP)
        post(tail="s_waitcnt vmcnt(0)\n" + rl_)
        k(f"s_branch {T3}")
        k.label(FIN2)
        DONE = k.newlabel("L_az")
        k(f"""s_cmp_lg_u32 s{sKO}, {F_RK[1]}
              s_cbranch_scc1 {DONE}""")
        NN = k.newlabel("L_an")
        k(f"""s_cmp_ge_u32 s{sBN}, {DLAST + 4}
              s_cbranch_scc1 {FINAL}""")
        no_more()
        k.label(FINAL)
        flush_pub()
        self.ev(14, va=240)
        k(f"""v_lshlrev_b32 v{TT}, 2, v{V_LANE}
              v_add_u32 v{VT}, {VOTE + 64}, v{TT}
              s_cmp_lg_u32 s{S_W}, 0
              s_cbranch_scc1 {NN}
              s_lshl_b32 s{S_T+3}, s{sWK}, 13
              s_add_u32 s{S_T+3}, s{S_T+3}, {DEC + 8192}""")
        self.words_wait64(S_T + 3, TT, 1)
        k(f"""ds_write_b32 v{VT}, v{TT+1}
              s_waitcnt lgkmcnt(0)""")
        k.label(NN)
        k(f"""s_barrier
              ds_read_b32 v{TT+1}, v{VT}
              s_mov_b32 s{sKO}, {F_RK[2]}
              s_mov_b32 s{sX}, 1
              s_waitcnt lgkmcnt(0)
              v_readfirstlane_b32 s{sSEL}, v{TT+1}
              v_and_b32 v{TT+1}, 255, v{TT+1}
              s_lshr_b32 s{sSEL}, s{sSEL}, 8
              s_lshr_b32 s{S_T+5}, s{sSEL}, 5
              v_cmp_ne_u32 {sr(sHAD,2)}, 3, v{TT+1}""")
        self.todo_mask(sTODO, TT)
        k(f"""s_bcnt1_i32_b64 s{S_T}, {sr(sTODO,2)}
              v_mbcnt_lo_u32_b32 v{TT}, s{sTODO}, 0
              v_mbcnt_hi_u32_b32 v{TT}, s{sTODO+1}, v{TT}
              s_mul_i32 s{S_T}, s{S_T}, {opt.get("share", 14)}
              s_add_u32 s{S_T}, s{S_T}, {opt.get("shr", 48)}
              s_lshr_b32 s{S_T}, s{S_T}, 7
              s_lshl_b32 s{S_T}, s{S_T}, 1
              v_cmp_gt_u32 vcc, s{S_T}, v{TT}
              v_and_b32 v{TT+1}, 1, v{TT}
              v_and_b32 v{TT}, 3, v{TT}
              v_add_u32 v{TT}, 2, v{TT}
              v_cndmask_b32 v{TT}, v{TT}, v{TT+1}, vcc
              v_cmp_eq_u32 vcc, s{sWK}, v{TT}
              s_and_b64 {sr(sTODO,2)}, {sr(sTODO,2)}, vcc""")
        pop_todo(1)
        plan_next(1, S_T + 5)
        k(f"""s_cmp_lt_u32 s{sNX}, 64
              s_cbranch_scc1 {SLOW}""")
        k.label(DONE)
        flush_pub()
        self.ev(23, va=240)
        k("s_endpgm")
        for st in stubs:
            st()

    def both(self, fn, name):
        self.k(f"""s_cmp_lg_u32 s{S_SLOW}, 0
                   s_cbranch_scc1 {name}""")
        fn()
        self.later.append((fn, name))

    def program(self):
        k = self.k
        self.later = []
        self.prologue()
        self.ev(0)
        LCH, LM, LA, LA2, C1, C2 = (k.newlabel(x) for x in ("L_rch", "L_rm", "L_ra", "L_rb", "L_rc1", "L_rc2"))
        k.label("L_roles")
        if self.opt.get("xdelay"):
            X = k.newlabel("L_x")
            k(f"""s_lshl_b32 s{S_T}, 1, s{S_G}
                  s_and_b32 s{S_T}, s{S_T}, {self.opt["xdelay"][0]}
                  s_cbranch_scc0 {X}
                  s_waitcnt vmcnt(0)""")
            self.arrive()
            for _ in range(self.opt["xdelay"][1]):
                k("s_sleep 32")
            k.label(X)
        k(f"""s_cmp_ge_u32 s{S_G}, 6
              s_cbranch_scc1 {LA}""")
        self.load_weights(True, None)
        self.ev(2)
        k(f"""s_cmp_lt_u32 s{S_G}, 3
              s_cbranch_scc1 {LCH}
              s_cmp_eq_u32 s{S_G}, 3
              s_cbranch_scc1 {LM}""")
        self.wait_all()
        self.ev(3)
        self.role_proj()
        k("s_endpgm")
        k.label(LM)
        self.load_gate_up()
        self.wait_all()
        self.ev(3)
        def moe():
            self.role_moe()
            k("s_endpgm")
        self.both(moe, "L_wm")
        k.label("L_abort")
        k("s_endpgm")
        k.label("L_spread")
        k(f"""s_mov_b32 s{S_SLOW}, -1
              s_lshr_b32 s{S_G}, s2, 5
              s_and_b32 s{S_H}, s2, 31""")
        if self.stamps:
            k(f"""s_lshl_b32 s{S_EV}, s2, 12
                  s_add_u32 s{S_EV}, s{S_EV}, {STAMP_OFF + MB}""")
            self.ev(0)
        k("s_branch L_roles")
        k.label(LA)
        if self.opt.get("warm", 1):
            self.warm()
        k.label(LA2)
        self.ev(2)
        self.load_wo2()
        self.wait_all()
        self.ev(3)
        k(f"""s_max_u32 s54, s{S_G}, 5
              s_sub_u32 s54, s54, 5
              s_lshl_b32 s54, s54, 1
              s_lshr_b32 s{S_T}, s{S_H}, 4
              s_add_u32 s54, s54, s{S_T}""")
        def att():
            self.role_att(None)
            k("s_endpgm")
        self.both(att, "L_wa")
        k.label(LCH)
        self.load_weights(False, "chain")
        self.wait_all()
        self.ev(3)
        self.chain_helps()
        def chains():
            C1, C2 = k.newlabel("L_rc1"), k.newlabel("L_rc2")
            k(f"""s_cmp_eq_u32 s{S_G}, 1
                  s_cbranch_scc1 {C1}
                  s_cmp_eq_u32 s{S_G}, 2
                  s_cbranch_scc1 {C2}""")
            self.chain(0)
            k(f"""s_mov_b32 s{S_CNT}, 0
                  s_branch {LA2}""")
            k.label(C1)
            self.chain(1)
            k("s_endpgm")
            k.label(C2)
            self.chain(2)
            k("s_endpgm")
        self.both(chains, "L_wc")
        self.loc = " sc1"
        self.abort = "L_abort2"
        k.label("L_abort2")
        k("s_endpgm")
        for fn, name in reversed(self.later):
            k.label(name)
            k.fence()
            if self.opt.get("noslow"):
                k("s_endpgm")
            else:
                fn()

HEADER = open(__file__.rsplit("/", 1)[0] + "/header.txt").read() if "/" in __file__ else open("header.txt").read()

def build(**kw):
    g = Gen(**kw)
    g.program()
    print("t3 leftovers", getattr(g, "t3left", None), file=sys.stderr)
    body = g.k.finalize()
    return (HEADER + f"; @launch grid=(256,1,1) block=(256,1,1) lds={LDS_SIZE}\n"
        + f""".amdgcn_target "amdgcn-amd-amdhsa--gfx950"
.text
.globl {NAME}_kernel
.p2align 8
.type {NAME}_kernel,@function
{NAME}_kernel:
""" + body + f""".section .rodata,"a"
.p2align 6
.amdhsa_kernel {NAME}_kernel
  .amdhsa_next_free_vgpr 512
  .amdhsa_next_free_sgpr 102
  .amdhsa_accum_offset 256
  .amdhsa_group_segment_fixed_size 0
  .amdhsa_kernarg_size 120
  .amdhsa_user_sgpr_count 2
  .amdhsa_user_sgpr_kernarg_segment_ptr 1
  .amdhsa_system_sgpr_workgroup_id_x 1
  .amdhsa_float_denorm_mode_32 3
.end_amdhsa_kernel
""")

if __name__ == "__main__":
    import argparse
    ap = argparse.ArgumentParser()
    ap.add_argument("-o", default=f"/code/{NAME}.s")
    ap.add_argument("--stop", default=None)
    ap.add_argument("--stamps", type=int, default=0)
    ap.add_argument("--slow", action="store_true")
    ap.add_argument("--opt", default="{}")
    a = ap.parse_args()
    stop = None
    if a.stop:
        l, p = a.stop.split(":"); stop = (int(l), p)
    open(a.o, "w").write(build(fast=not a.slow, stop=stop, stamps=a.stamps, opt=eval(a.opt)))
```

```python
import sys, math
from asmlib import K, vr, ar, sr, Ins, need
from layout import *

NAME = "interleave_layers__memory_aug_recurrent_mem_tr__moe_arch_mod__prompt"

SRD_A = 4
SRD_WS = 8
SRD_DBG = 12
P_X, P_MEM0, P_WQ, P_WK, P_WV, P_WO = 16, 18, 20, 22, 24, 26
P_WR, P_WG, P_WU, P_WD, P_OUT, P_DBG, P_WS = 32, 34, 36, 38, 40, 42, 44
S_W, S_H, S_G, S_BUD = 46, 47, 48, 49
S_SLOW = 3
S_LW = 50
S_SEG, S_OOB, S_CNT = 51, 52, 53
S_T = 56
S_C = 80
S_EV = 81
S_ONE = 28
S_A, S_B = 30, 31
LOOK = 2
WS = sr(SRD_WS, 4); SA = sr(SRD_A, 4); DBG = sr(SRD_DBG, 4)

SCALE_LOG2E = (128 ** -0.5) * math.log2(math.e)
def f32(x):
    import struct
    return "0x%08x" % struct.unpack("<I", struct.pack("<f", x))[0]
NEGBIG = f32(-1e30)

def wq(ks, t, half=None):
    b = (ks * 2 + t) * 8
    return ar(b, 8) if half is None else ar(b + 4 * half, 4)
def wk(ks, t, half=None):
    b = 128 + (ks * 2 + t) * 8
    return ar(b, 8) if half is None else ar(b + 4 * half, 4)
def wv(ks, t, half=None):
    b = 128 + (ks * 2 + t) * 8
    return vr(b, 8) if half is None else vr(b + 4 * half, 4)

def unpk(x):
    import re
    if not isinstance(x, str) or not x.startswith("v_pk_"):
        return [x]
    ins = Ins(x)
    mod = lambda nm, d: [int(c) for c in re.search(nm + r":\[([01,]+)\]", ins.mods).group(1).split(",")] if re.search(nm + r":\[", ins.mods) else d
    n = len(ins.ops) - 1
    lo, hi = mod(r"op_sel", [0] * n), mod("op_sel_hi", [1] * n)
    if "op_sel:" not in ins.mods:
        lo = [0] * n
    ng = mod("neg_lo", [0] * n)
    base = [re.match(r"([vs])\[(\d+):", o).groups() for o in ins.ops]
    out = []
    for h, sel in enumerate((lo, hi)):
        src = [("-" if ng[i] else "") + base[i+1][0] + str(int(base[i+1][1]) + sel[i]) for i in range(n)]
        out.append(f"{ins.op.replace('v_pk_', 'v_')} v{int(base[0][1]) + h}, " + ", ".join(src))
    return out

V_L16 = 0
V_LANE = 1

class Gen:
    def __init__(self, fast=True, stop=None, stamps=False, opt=None):
        self.opt = opt or {}
        self.LH = L_H
        self.pend = []
        self.mk = 0
        self.k = K()
        self.fast = fast
        self.loc = "" if fast else " sc1"
        self.stop = stop
        self.abort = "L_abort"
        self.stamps = stamps

    def srd(self, ptr, nbytes):
        k = self.k
        k(f"""s_mov_b32 s{SRD_A}, s{ptr}
              s_mov_b32 s{SRD_A+1}, s{ptr+1}
              s_mov_b32 s{SRD_A+2}, {nbytes}
              s_mov_b32 s{SRD_A+3}, 0x20000""")

    def budget(self, retry):
        self.k(f"""s_sub_u32 s{S_BUD}, s{S_BUD}, 1
                   s_cmp_gt_i32 s{S_BUD}, 0
                   s_cbranch_scc1 {retry}
                   s_branch {self.abort}""")

    def spend(self, inc=None, cnt=None):
        if self.stamps and inc:
            self.k(f"s_add_u32 s{cnt}, s{cnt}, {inc}")
        self.k(f"""s_sub_u32 s{S_BUD}, s{S_BUD}, 1
                   s_cbranch_scc1 {self.abort}""")

    def wsum(self, x, t):
        k = self.k
        for r in (8, 4, 2, 1):
            k(f"v_add_f32_dpp v{x}, v{x}, v{x} row_ror:{r} row_mask:0xf bank_mask:0xf")
        k(f"""v_mov_b32 v{t}, v{x}
              v_permlane16_swap_b32 v{x}, v{t}
              v_add_f32 v{x}, v{x}, v{t}
              v_mov_b32 v{t}, v{x}
              v_permlane32_swap_b32 v{x}, v{t}
              v_add_f32 v{x}, v{x}, v{t}""")

    def unpack8(self, dst, src):
        k = self.k
        for q in range(4):
            k(f"v_lshlrev_b32 v{dst+2*q}, 16, v{src+q}")
            k(f"v_and_b32 v{dst+2*q+1}, 0xffff0000, v{src+q}")

    def pack8(self, dst, src):
        for q in range(4):
            self.k(f"v_cvt_pk_bf16_f32 v{dst+q}, v{src+2*q}, v{src+2*q+1}")

    def round1(self, x):
        self.k(f"""v_cvt_pk_bf16_f32 v{x}, v{x}, v{x}
                   v_and_b32 v{x}, 0xffff0000, v{x}""")

    def layernorm(self, x, ypk, tmp):
        k = self.k
        d = tmp; s = tmp + 8; q = tmp + 10; t = tmp + 12
        c = S_T + 22
        k(f"v_readfirstlane_b32 s{c}, v{x}")
        for j in range(0, 8, 2):
            k(f"v_pk_add_f32 {vr(d+j,2)}, {vr(x+j,2)}, {sr(c,2)} op_sel_hi:[1,0] neg_lo:[0,1] neg_hi:[0,1]")
        k(f"""v_pk_add_f32 {vr(s,2)}, {vr(d,2)}, {vr(d+2,2)}
              v_pk_mul_f32 {vr(q,2)}, {vr(d,2)}, {vr(d,2)}
              v_pk_add_f32 {vr(t,2)}, {vr(d+4,2)}, {vr(d+6,2)}
              v_pk_fma_f32 {vr(q,2)}, {vr(d+2,2)}, {vr(d+2,2)}, {vr(q,2)}
              v_pk_add_f32 {vr(s,2)}, {vr(s,2)}, {vr(t,2)}
              v_pk_fma_f32 {vr(q,2)}, {vr(d+4,2)}, {vr(d+4,2)}, {vr(q,2)}
              v_add_f32 v{s}, v{s}, v{s+1}
              v_pk_fma_f32 {vr(q,2)}, {vr(d+6,2)}, {vr(d+6,2)}, {vr(q,2)}
              v_add_f32 v{q}, v{q}, v{q+1}""")
        k(f"""v_permlane32_swap_b32 v{s}, v{q}
              v_add_f32 v{s}, v{s}, v{q}""")
        for r in (8, 4, 2, 1):
            k(f"v_add_f32_dpp v{s}, v{s}, v{s} row_ror:{r} row_mask:0xf bank_mask:0xf")
        k(f"""v_mov_b32 v{q}, v{s}
              v_permlane16_swap_b32 v{s}, v{q}
              v_add_f32 v{s}, v{s}, v{q}
              v_mul_f32 v{s}, {f32(1.0/512)}, v{s}
              v_mov_b32 v{q}, v{s}
              v_permlane32_swap_b32 v{s}, v{q}
              v_fma_f32 v{q}, -v{s}, v{s}, v{q}
              v_add_f32 v{s}, s{c}, v{s}
              v_max_f32 v{q}, 0, v{q}
              v_cvt_pk_bf16_f32 v{q}, v{s}, v{q}
              v_lshlrev_b32 v{s}, 16, v{q}
              v_and_b32 v{q}, 0xffff0000, v{q}
              v_add_f32 v{q}, {f32(1e-5)}, v{q}""")
        self.round1(q)
        k(f"v_sqrt_f32 v{q}, v{q}")
        for j in range(0, 8, 2):
            k(f"v_pk_add_f32 {vr(d+j,2)}, {vr(x+j,2)}, {vr(s,2)} op_sel_hi:[1,0] neg_lo:[0,1] neg_hi:[0,1]")
        self.round1(q)
        k(f"v_rcp_f32 v{q}, v{q}")
        self.pack8(ypk, d)
        self.unpack8(d, ypk)
        for j in range(0, 8, 2):
            k(f"v_pk_mul_f32 {vr(d+j,2)}, {vr(d+j,2)}, {vr(q,2)} op_sel_hi:[1,0]")
        self.pack8(ypk, d)

    def add8(self, x, y):
        for j in range(0, 8, 2):
            self.k(f"v_pk_add_f32 {vr(x+j,2)}, {vr(x+j,2)}, {vr(y+j,2)}")

    def arrive(self):
        k = self.k
        D = k.newlabel("L_ar")
        k(f"""s_barrier
              s_cmp_lg_u32 s{S_W}, 0
              s_cbranch_scc1 {D}
              v_mov_b32 v8, 128
              v_mov_b32 v9, s{S_CNT}
              s_mov_b64 exec, 1
              buffer_atomic_add v9, v8, {DBG}, 0 offen
              s_mov_b64 exec, -1""")
        k.label(D)
        k(f"s_mov_b32 s{S_CNT}, 0")
        self.ev(1, va=10)

    def wait_all(self):
        k = self.k
        L = k.newlabel("L_gb"); D = k.newlabel("L_gbd")
        k(f"""v_mov_b32 v123, {L_MISC}
              s_cmp_lg_u32 s{S_W}, 0
              s_cbranch_scc1 {D}
              v_mov_b32 v124, 128""")
        k.label(L)
        k(f"""buffer_load_dword v125, v124, {DBG}, 0 offen sc1
              s_waitcnt vmcnt(0)
              v_readfirstlane_b32 s{S_T}, v125
              ds_write_b32 v123, v125
              s_bitcmp1_b32 s{S_T}, 8
              s_cbranch_scc1 {D}
              s_sleep 4""")
        self.budget(L)
        k.label(D)
        k(f"""s_waitcnt lgkmcnt(0)
              s_barrier
              ds_read_b32 v125, v123
              s_waitcnt lgkmcnt(0)
              v_readfirstlane_b32 s{S_T}, v125
              s_barrier
              s_lshr_b32 s{S_T}, s{S_T}, 16
              s_andn2_b32 s{S_T}, s{S_T}, s{S_SLOW}
              s_cbranch_scc1 L_spread""")

    def page(self, dst, off, seg=S_SEG, head=True):
        k = self.k
        k(f"s_lshl_b32 s{dst}, s{seg}, 13")
        if head:
            k(f"s_lshl2_add_u32 s{dst}, s{S_H}, s{dst}")
        k(f"s_add_u32 s{dst}, s{dst}, {PG_OFF + off}")

    def word_wait(self, s_off, s_val, va=125, sleep=0, quick=False):
        k = self.k
        L, D = k.newlabel("L_ww"), k.newlabel("L_wwd")
        if quick:
            k(f"""s_buffer_load_dword s{s_val}, {WS}, s{s_off} glc
                  s_waitcnt lgkmcnt(0)
                  s_cmp_lg_u32 s{s_val}, 0
                  s_cbranch_scc1 {D}""")
        k.label(L)
        if sleep:
            k(f"s_sleep {sleep}")
        k(f"buffer_load_dword v{va}, off, {WS}, s{s_off} sc1")
        self.spend()
        k(f"""s_waitcnt vmcnt(0)
              v_readfirstlane_b32 s{s_val}, v{va}
              s_cmp_eq_u32 s{s_val}, 0
              s_cbranch_scc1 {L}""")
        k.label(D)

    def stamp(self, name):
        pts = self.opt.get("pts", [0, 1, 2, 3, 4, 5, 6, 7])
        if self.stamps > 1 and name in pts:
            i = pts.index(name)
            self.k(f"s_memtime s[{84+2*i}:{85+2*i}]")

    def ev(self, tag, va=126, clk="s_memrealtime"):
        if not self.stamps:
            return
        k = self.k
        D = k.newlabel("L_ps")
        k(f"""s_cmp_lg_u32 s{S_W}, 0
              s_cbranch_scc1 {D}
              {clk} s[82:83]
              s_or_b32 s100, s{S_SEG}, {tag << 8}
              s_waitcnt lgkmcnt(0)
              s_mov_b64 exec, 1
              v_mov_b32 v{va}, s82
              v_mov_b32 v{va+1}, s100
              buffer_store_dwordx2 {vr(va,2)}, off, {WS}, s{S_EV}
              s_mov_b64 exec, -1
              s_add_u32 s{S_EV}, s{S_EV}, 8""")
        k.label(D)

    def mark(self, tag):
        if self.stamps != 1 or tag not in self.opt.get("marks", ()):
            return
        i = len(self.pend); assert i < 6
        self.pend.append(tag)
        self.k(f"{'s_memtime' if self.opt.get('mt') else 's_memrealtime'} s[{88+2*i}:{89+2*i}]")

    def flush(self, va=126):
        if not self.pend:
            return
        k = self.k
        D = k.newlabel("L_fl")
        k(f"""s_cmp_lg_u32 s{S_W}, 0
              s_cbranch_scc1 {D}
              s_waitcnt lgkmcnt(0)
              s_mov_b64 exec, 1""")
        for i, tag in enumerate(self.pend):
            k(f"""s_or_b32 s100, s{S_SEG}, {tag << 8}
                  v_mov_b32 v{va}, s{88+2*i}
                  v_mov_b32 v{va+1}, s100
                  buffer_store_dwordx2 {vr(va,2)}, off, {WS}, s{S_EV}
                  s_add_u32 s{S_EV}, s{S_EV}, 8""")
        k("s_mov_b64 exec, -1")
        k.label(D)
        self.pend = []

    def prologue(self):
        k = self.k
        k(f"""s_cmp_ge_u32 s2, 256
              s_cbranch_scc1 L_abort
              s_load_dwordx16 s[16:31], s[0:1], 0
              s_load_dwordx8 s[32:39], s[0:1], 64
              s_load_dwordx4 s[40:43], s[0:1], 96
              s_load_dwordx2 s[44:45], s[0:1], 112
              v_lshrrev_b32 v2, 6, v0
              v_and_b32 v{V_LANE}, 63, v0
              v_readfirstlane_b32 s{S_W}, v2
              v_lshlrev_b32 v{V_L16}, 4, v{V_LANE}
              s_getreg_b32 s{S_G}, hwreg(HW_REG_XCC_ID)
              s_and_b32 s{S_G}, s{S_G}, 7
              s_lshl_b32 s{S_G}, s{S_G}, 2
              s_lshr_b32 s{S_G}, {sum(g << (4*x) for x, g in enumerate(self.opt.get("map", (0, 6, 2, 4, 1, 7, 3, 5))))}, s{S_G}
              s_and_b32 s{S_G}, s{S_G}, 7
              s_mov_b32 s{S_BUD}, 100000
              s_mov_b32 s{S_C}, {f32(SCALE_LOG2E)}
              s_waitcnt lgkmcnt(0)
              s_mov_b32 s{SRD_WS}, s{P_WS}
              s_mov_b32 s{SRD_WS+1}, s{P_WS+1}
              s_mov_b32 s{SRD_WS+2}, {WS_SIZE}
              s_mov_b32 s{SRD_WS+3}, 0x20000
              s_mov_b32 s{SRD_DBG}, s{P_DBG}
              s_mov_b32 s{SRD_DBG+1}, s{P_DBG+1}
              s_mov_b32 s{SRD_DBG+2}, 256
              s_mov_b32 s{SRD_DBG+3}, 0x20000""")
        T = k.newlabel("L_tk")
        k(f"""s_cmp_lg_u32 s{S_W}, 0
              s_cbranch_scc1 {T}
              s_lshl_b32 s{S_T}, s{S_G}, 2
              v_mov_b32 v14, s{S_T}
              v_mov_b32 v15, 1
              s_mov_b64 exec, 1
              buffer_atomic_add v15, v14, {DBG}, 0 offen sc0
              s_mov_b64 exec, -1""")
        k.label(T)
        self.init_ws()
        T = k.newlabel("L_tk")
        k(f"""s_cmp_lg_u32 s{S_W}, 0
              s_cbranch_scc1 {T}
              s_mov_b64 exec, 1
              v_mov_b32 v4, {L_MISC}
              ds_write_b32 v4, v15
              s_mov_b64 exec, -1
              s_waitcnt lgkmcnt(0)""")
        k.label(T)
        k(f"""s_barrier
              v_mov_b32 v4, {L_MISC}
              ds_read_b32 v3, v4
              s_waitcnt lgkmcnt(0)
              v_readfirstlane_b32 s{S_H}, v3
              s_mov_b32 s{S_SLOW}, 0
              s_cmp_ge_u32 s{S_H}, 32
              s_cselect_b32 s{S_CNT}, 0x10001, 1
              s_and_b32 s{S_H}, s{S_H}, 31
              s_lshl_b32 s{S_LW}, s{S_W}, 10
              s_cmp_eq_u32 s{S_W}, 0
              s_cselect_b32 s{S_OOB}, 0, 0x80000000
              s_mov_b32 s{S_ONE}, 0x3f803f80
              s_mov_b32 s{S_ONE+1}, 0x3f803f80
              s_mov_b32 s{S_SEG}, 0""")
        if self.opt.get("mix", 1):
            k(f"""s_bfe_u32 s{S_T}, s{S_G}, 0x10001
                  s_and_b32 s{S_T+1}, s{S_G}, 1
                  s_add_u32 s{S_T+2}, s{S_T}, 6
                  s_sub_u32 s{S_T+3}, 5, s{S_T+1}
                  s_cmp_ge_u32 s{S_H}, 16
                  s_cselect_b32 s{S_T+2}, s{S_T+2}, s{S_T+3}
                  s_cselect_b32 s{S_T+1}, s{S_T+1}, s{S_T}
                  s_and_b32 s{S_T+3}, s{S_H}, 15
                  s_lshl4_add_u32 s{S_T+1}, s{S_T+1}, s{S_T+3}
                  s_cmp_ge_u32 s{S_G}, 4
                  s_cselect_b32 s{S_G}, s{S_T+2}, s{S_G}
                  s_cselect_b32 s{S_H}, s{S_T+1}, s{S_H}""")
        if self.stamps:
            k(f"""s_lshl_b32 s{S_EV}, s{S_G}, 5
                  s_add_u32 s{S_EV}, s{S_EV}, s{S_H}
                  s_lshl_b32 s{S_EV}, s{S_EV}, 12
                  s_add_u32 s{S_EV}, s{S_EV}, {STAMP_OFF + MB}""")

    def init_ws(self):
        k = self.k
        self.srd(P_X, 2048 * 1024)
        k(f"""s_lshl_b32 s{S_T}, s2, 3
              s_lshl_b32 s{S_T+3}, s{S_W}, 1
              s_add_u32 s{S_T}, s{S_T}, s{S_T+3}
              s_lshl_b32 s{S_T+3}, s{S_T}, 10
              buffer_load_dwordx4 v[24:27], v{V_L16}, {SA}, s{S_T+3} offen
              buffer_load_dwordx4 v[28:31], v{V_L16}, {SA}, s{S_T+3} offen offset:1024""")
        k(f"""s_lshl_b32 s{S_T}, s2, 12
              s_lshl_b32 s{S_T+1}, s{S_W}, 10
              s_add_u32 s{S_T}, s{S_T}, s{S_T+1}
              v_add_u32 v2, s{S_T}, v{V_L16}
              v_mov_b32 v4, -1
              v_mov_b32 v5, -1
              v_mov_b32 v6, -1
              v_mov_b32 v7, -1
              v_mov_b32 v8, 0
              v_mov_b32 v9, 0
              v_mov_b32 v10, 0
              v_mov_b32 v11, 0""")
        k(f"""v_cmp_gt_u32 vcc, {512*KB}, v2
              v_mov_b32 v3, {PC_OFF[0] - 512*KB}
              v_mov_b32 v12, {MEM_OFF[0] + 8*KB}
              v_cndmask_b32 v3, v3, v12, vcc
              v_add_u32 v3, v3, v2""")
        for c in range(3):
            k(f"s_mov_b32 s{S_T}, {c*MB}")
            k(f"buffer_store_dwordx4 v[4:7], v3, {WS}, s{S_T} offen sc1")
        for i in range(2):
            k(f"s_mov_b32 s{S_T}, {X1_OFF[0] + i*MB}")
            k(f"buffer_store_dwordx4 v[4:7], v2, {WS}, s{S_T} offen sc1")
        k(f"""v_add_u32 v3, {MEMX_OFF + 8*KB - 512*KB}, v2
              v_mov_b32 v12, 0x80000000
              v_cndmask_b32 v3, v3, v12, vcc
              buffer_store_dwordx4 v[4:7], v3, {WS}, 0 offen sc1
              v_cmp_gt_u32 vcc, {NPAGES*2*KB}, v2
              v_lshrrev_b32 v3, 11, v2
              v_lshlrev_b32 v3, 13, v3
              v_and_b32 v13, 0x7ff, v2
              v_add_u32 v3, v3, v13
              v_add_u32 v3, {PG_OFF}, v3
              v_cndmask_b32 v3, v12, v3, vcc
              buffer_store_dwordx4 v[8:11], v3, {WS}, 0 offen sc1
              v_add_u32 v3, {HPS_OFF - 256*KB}, v2
              v_lshrrev_b32 v13, 16, v2
              v_cmp_eq_u32 vcc, 4, v13
              v_cndmask_b32 v3, v12, v3, vcc
              buffer_store_dwordx4 v[4:7], v3, {WS}, 0 offen sc1""")
        k("s_waitcnt vmcnt(8)")
        assert H_OFF[0] == 0
        for i in range(2):
            self.unpack8(32, 24 + 4 * i)
            self.layernorm(32, 40 + 4 * i, 48)
            k(f"buffer_store_dwordx4 {vr(40+4*i,4)}, v{V_L16}, {WS}, s{S_T+3} offen offset:{1024*i} sc1")
        D = k.newlabel("L_m0")
        self.srd(P_MEM0, 8192)
        k(f"""s_cmp_ge_u32 s2, 2
              s_cbranch_scc1 {D}
              s_lshl_b32 s{S_T}, s2, 2
              s_add_u32 s{S_T}, s{S_T}, s{S_W}          ; ks
              v_bfe_u32 v2, v{V_LANE}, 2, 2
              v_and_b32 v3, 1, v{V_LANE}
              v_lshl_add_u32 v2, v2, 1, v3               ; m
              v_lshlrev_b32 v2, 10, v2
              v_lshrrev_b32 v3, 4, v{V_LANE}
              v_lshl_add_u32 v2, v3, 5, v2               ; + ga*32
              v_and_b32 v3, 2, v{V_LANE}
              v_lshl_add_u32 v2, v3, 1, v2               ; + hi*4
              s_lshl_b32 s{S_T+1}, s{S_T}, 7             ; ks*128""")
        for q in range(4):
            k(f"buffer_load_dword v{32+q}, v2, {SA}, s{S_T+1} offen offset:{8*q}")
        self.mfrag_voff(2, 3)
        k(f"""s_and_b32 s{S_T+1}, s{S_T}, 1
              s_lshl_b32 s{S_T+1}, s{S_T+1}, 8
              s_and_b32 s{S_T+2}, s{S_T}, 2
              s_lshl_b32 s{S_T+2}, s{S_T+2}, 6
              s_add_u32 s{S_T+1}, s{S_T+1}, s{S_T+2}
              s_and_b32 s{S_T+2}, s{S_T}, 4
              s_lshl_b32 s{S_T+2}, s{S_T+2}, 10
              s_add_u32 s{S_T+1}, s{S_T+1}, s{S_T+2}
              s_waitcnt vmcnt(0)""")
        for off in (MEM_OFF[0], MEM_OFF[1], MEMX_OFF):
            k(f"s_add_u32 s{S_T+2}, s{S_T+1}, {off}")
            k(f"buffer_store_dwordx4 v[32:35], v2, {WS}, s{S_T+2} offen sc1")
        k.label(D)

    def mfrag_voff(self, dst, t):
        self.k(f"""v_lshrrev_b32 v{dst}, 3, v{V_LANE}
                   v_lshlrev_b32 v{dst}, 9, v{dst}
                   v_and_b32 v{t}, 7, v{V_LANE}
                   v_lshl_add_u32 v{dst}, v{t}, 4, v{dst}""")

    def load_weights(self, qkv, wo, base=2):
        chain_wo = wo == 'chain'
        k = self.k
        NB = 7
        TB = 24
        k(f"""v_and_b32 v{base+0}, 15, v{V_LANE}
              v_lshlrev_b32 v{base+0}, 2, v{base+0}                    ; c*4
              v_lshrrev_b32 v{base+1}, 4, v{V_LANE}
              v_lshl_add_u32 v{base+2}, v{base+1}, 16, v{base+0}              ; g*8 rows*8192 + c*4
              v_lshl_add_u32 v{base+3}, v{base+1}, {12 if chain_wo else 13}, v{base+0}   ; g*(4|8) rows*1024 + c*4
              s_lshl_b32 s{S_T+2}, s{S_H}, 8
              s_lshl_b32 s{S_T+1}, s{S_W}, 6
              s_add_u32 s{S_T+2}, s{S_T+2}, s{S_T+1}     ; h*256 + w*64
              s_lshl_b32 s{S_T+3}, s{S_H}, 17
              s_add_u32 s{S_T+3}, s{S_T+3}, s{S_T+1}     ; h*128KB + w*64
              s_lshl_b32 s{S_T+4}, s{S_W}, 15
              v_add_u32 v{base+4}, s{S_T+4}, v{V_L16}
              s_mov_b32 s{S_T+5}, 0x05040100
              s_mov_b32 s{S_T+6}, 0x07060302
              s_lshl_b32 s{S_T+7}, s{S_W}, 19
              s_cmp_lt_u32 s{S_G}, 3
              s_cselect_b32 s{S_T+7}, s{S_T+7}, 0""")
        groups = []
        for m, ptr in (("k", P_WK), ("v", P_WV), ("q", P_WQ)) if qkv else ():
            for kk in range(16):
                groups.append((m, ptr, kk, None))
        for u in range(4 if wo else 0):
            for kk in range(4):
                groups.append(("o", P_WO, kk, u))
        def issue(i):
            m, ptr, kk, u = groups[i]
            b = TB + (i % NB) * 8
            if i == 0 or groups[i - 1][0] != m:
                self.srd(ptr, 4 * MB)
            for j in range(8):
                if m != "o":
                    if j == 0:
                        k(f"s_xor_b32 s{S_T}, s{S_T+7}, {32*kk*8192}")
                        k(f"s_add_u32 s{S_T}, s{S_T}, s{S_T+2}")
                    else:
                        k(f"s_add_u32 s{S_T}, s{S_T}, 8192")
                    k(f"buffer_load_dword v{b+j}, v{base+2}, {SA}, s{S_T} offen")
                else:
                    if j % 4 == 0:
                        k(f"s_add_u32 s{S_T}, s{S_T+3}, {(32*kk+(4*j if chain_wo else j))*1024 + 256*u}")
                    k(f"buffer_load_dword v{b+j}, v{base+3}, {SA}, s{S_T} offen offset:{(j%4)*1024}")
        def consume(i):
            m, ptr, kk, u = groups[i]
            b = TB + (i % NB) * 8
            if m == "o" and chain_wo:
                for hf in range(2):
                    k(f"ds_write_b128 v{base+4}, {vr(b+4*hf,4)} offset:{((u*4+kk)*2+hf)*1024}")
                k("s_waitcnt lgkmcnt(0)")
                return
            for t in range(2):
                for q in range(4):
                    sel = f"s{S_T+5+t}"
                    if m == "v":
                        d = 128 + ((kk >> 1) * 2 + t) * 8 + 4 * (kk & 1) + q
                        k(f"v_perm_b32 v{d}, v{b+2*q+1}, v{b+2*q}, {sel}")
                    else:
                        k(f"v_perm_b32 v{80+4*t+q}, v{b+2*q+1}, v{b+2*q}, {sel}")
            if m in "qk":
                for t in range(2):
                    for q in range(4):
                        d = (128 if m == "k" else 0) + ((kk >> 1) * 2 + t) * 8 + 4 * (kk & 1) + q
                        k(f"v_accvgpr_write_b32 a{d}, v{80+4*t+q}")
            if m == "o":
                for t in range(2):
                    k(f"ds_write_b128 v{base+4}, {vr(80+4*t,4)} offset:{((u*2+t)*4+kk)*1024}")
                k("s_waitcnt lgkmcnt(0)")
        n = len(groups)
        for i in range(NB):
            issue(i)
        for i in range(n):
            left = min(n - 1 - i, NB - 1)
            k(f"s_waitcnt vmcnt({left*8})")
            consume(i)
            if i + NB < n:
                issue(i + NB)
            if i == 0 and qkv:
                self.arrive()

    def qkv_base(self, dst, which):
        self.k(f"""s_lshl_b32 s{dst}, s{S_SEG}, 5
                   s_add_u32 s{dst}, s{dst}, s{S_H}
                   s_mul_i32 s{dst}, s{dst}, {24*KB}
                   s_add_u32 s{dst}, s{dst}, {QKV_OFF[which] if isinstance(which, int) else which}""")

    def t1_dma(self, s_h, quarters, voff=None, reg=0, sb=S_LW):
        voff = voff or (self.THD, self.THD)
        out = []
        for qi in quarters:
            for u in range(2):
                out.append(f"s_add_u32 m0, s{sb}, {self.LH + reg*32*KB + qi*8192 + u*4096 - qi*256}")
                out.append(f"buffer_load_dwordx4 v{voff[u]}, {WS}, s{s_h+u} offen offset:{qi*256} sc1 lds")
        return out

    def t1_src(self, dst, seg, hreg):
        self.k(f"""s_lshl_b32 s{dst}, s{seg}, 15
                   s_add_u32 s{dst}, s{dst}, {H_OFF[hreg]}
                   s_add_u32 s{dst+1}, s{dst}, {16*KB}""")

    def flag_store(self, s_off, loc):
        self.k(f"""s_or_b32 s{s_off}, s{s_off}, s{S_OOB}
                   buffer_store_dword v{self.TOB}, off, {WS}, s{s_off}{loc}""")

    def t1(self, which, s_h, voff=None, pre=0, nxt=None, s_flag=None, extra=(), x_flag=None, qloc=False, s_keep=0, rot=False):
        k = self.k
        ACC = 24; RING = (72, 80, 108)
        aq = lambda t, u: ACC + (t * 2 + u) * 4
        ak = lambda t, u: ACC + 16 + (t * 2 + u) * 4
        av = lambda t, u: ACC + 32 + (t * 2 + u) * 4
        first, later = ((0, 1), (2, 3)) if rot else ((0, 1, 2), (3,))
        if not pre:
            for x in self.t1_dma(s_h, first, voff):
                k(x)
        self.qkv_base(S_T + 2, which)
        k(f"""s_add_u32 s{S_T+5}, s{S_T+2}, s{S_LW}      ; K u0
              s_add_u32 s{S_T+6}, s{S_T+5}, 4096         ; K u1
              s_add_u32 s{S_T+7}, s{S_T+5}, {16*KB}      ; Q u0
              s_add_u32 s{S_T+8}, s{S_T+5}, {20*KB}      ; Q u1
              s_add_u32 s{S_T+9}, s{S_T+5}, s{S_LW}
              s_add_u32 s{S_T+9}, s{S_T+9}, {8*KB}       ; V""")
        if rot:
            rd = lambda kk: [f"ds_read_b128 {vr(RING[kk%3]+4*u,4)}, v{self.THR+(kk&7)} offset:{(kk>>3)*16384+u*4096}" for u in range(2)]
        else:
            rd = lambda kk: [f"ds_read_b128 {vr(RING[kk%3]+4*u,4)}, v{self.THR+(kk&3)} offset:{(kk>>2)*8192+u*4096}" for u in range(2)]
        k(f"s_waitcnt vmcnt({(0 if rot else 4) + pre})")
        k("s_barrier")
        self.mark(self.mk + 0)
        for x in rd(0) + rd(1):
            k(x)
        for x in self.t1_dma(s_h, later, voff):
            k(x)
        for x in extra:
            k(x)
        ne = len(extra); nl = 2 * len(later)
        side = []
        for kk in range(16):
            b = RING[kk % 3]
            n = kk + 2
            last_q = (n == 8) if rot else (n == 12)
            if last_q:
                k(f"s_waitcnt vmcnt({1 if (s_flag and not rot) else 0})")
                k("s_barrier")
                if x_flag:
                    self.flag_store(x_flag, " sc1")
                if s_flag and rot:
                    self.flag_store(s_flag, " sc1")
            elif not rot and n in (4, 8):
                k(f"s_waitcnt vmcnt({(2 if n == 4 else 0) + pre + nl + ne})")
                k("s_barrier")
            if kk == 7 and s_flag and not rot:
                assert not extra
                k(f"s_waitcnt vmcnt({nl + s_keep})")
                k("s_barrier")
                self.flag_store(s_flag, " sc1")
            if kk == 12 and nxt:
                k("s_barrier")
                side = list(nxt)
            k(f"s_waitcnt lgkmcnt({2 if kk < 15 else 0})")
            ks, hf = kk >> 1, kk & 1
            fill = rd(n) if n < 16 else []
            i = 0
            for t in range(2):
                for u in range(2):
                    h = vr(b + 4 * u, 4)
                    for acc, w, tr in ((ak, wk, True), (av, wv, False), (aq, wq, True)):
                        d = vr(acc(t, u), 4)
                        c = "0" if kk == 0 else d
                        a_, b_ = (w(ks, t, hf), h) if tr else (h, w(ks, t, hf))
                        k(f"v_mfma_f32_16x16x32_bf16 {d}, {a_}, {b_}, {c}")
                        i += 1
                        if fill and i % 2 == 1:
                            k(fill.pop(0))
                        elif side:
                            k(side.pop(0))
        assert not side
        self.mark(self.mk + 3)
        if which == 0:
            k(f"""s_lshl_b32 s{S_T}, s{S_SEG}, 5
                  s_add_u32 s{S_T}, s{S_T}, s{S_H}
                  s_lshl_b32 s{S_T}, s{S_T}, 12
                  s_add_u32 s{S_T}, s{S_T}, s{S_LW}
                  s_add_u32 s{S_T}, s{S_T}, {KVM_OFF[0]}
                  v_mov_b64 v[120:121], -1
                  v_mov_b64 v[122:123], -1
                  buffer_store_dwordx4 v[120:123], v{V_L16}, {WS}, s{S_T} offen sc1""")
        for i, (acc, so) in enumerate(((ak, S_T + 5), (aq, S_T + 7))):
            for u in range(2):
                p = RING[2 * i] + u * 4
                for r in range(4):
                    k(f"v_cvt_pk_bf16_f32 v{p+r}, v{acc(0,u)+r}, v{acc(1,u)+r}")
                k(f"buffer_store_dwordx4 {vr(p,4)}, v{V_L16}, {WS}, s{so+u} offen{'' if (i == 1 and qloc) else ' sc1'}")
            if i == 0:
                for t in range(2):
                    p = RING[1] + t * 4
                    for u in range(2):
                        k(f"v_cvt_pk_bf16_f32 v{p+2*u}, v{av(t,u)}, v{av(t,u)+1}")
                        k(f"v_cvt_pk_bf16_f32 v{p+2*u+1}, v{av(t,u)+2}, v{av(t,u)+3}")
                    k(f"buffer_store_dwordx4 {vr(p,4)}, v{V_L16}, {WS}, s{S_T+9} offen offset:{t*1024} sc1")

    def t1b(self, which, s_h, landed=False, reg=0, s_flag=None, voff=None, nxt=(), early=True, sb=S_LW, peek=None, lead=()):
        k = self.k
        HB = 104; ND = 3
        aq = lambda t, u: 88 + (t * 2 + u) * 4
        ak = lambda t, u: 24 + (t * 2 + u) * 4
        av = lambda t, u: 40 + (t * 2 + u) * 4
        big = self.LH != L_H
        if not landed:
            for x in self.t1_dma(s_h, (0, 1, 2, 3) if big else (0, 1, 2), voff, reg, sb):
                k(x)
        np_ = 0
        pk0 = []
        if peek and landed:
            pk0 = [x.strip() for x in peek[0].split("\n")]
        elif peek:
            k(peek[0]); np_ = 1
        n0_ = len(k.lines)
        self.qkv_base(S_T + 2, which)
        k(f"""s_add_u32 s{S_T+5}, s{S_T+2}, s{S_LW}      ; K u0
              s_add_u32 s{S_T+6}, s{S_T+5}, 4096         ; K u1
              s_add_u32 s{S_T+7}, s{S_T+5}, {16*KB}      ; Q u0
              s_add_u32 s{S_T+8}, s{S_T+5}, {20*KB}      ; Q u1
              s_add_u32 s{S_T+9}, s{S_T+5}, s{S_LW}
              s_add_u32 s{S_T+9}, s{S_T+9}, {8*KB}       ; V""")
        addr = list(lead) + k.lines[n0_:]; del k.lines[n0_:]
        rd = lambda n: [f"ds_read_b128 {vr(HB+(n%ND)*8+4*u,4)}, v{self.THR+(n&3)} offset:{reg*32*KB+((n&15)>>2)*8192+u*4096}" for u in range(2)]
        if not landed:
            k(f"s_waitcnt vmcnt({(6 if big else 4) + np_})")
            k("s_barrier")
        self.mark(self.mk + 0)
        for x in rd(0) + rd(1):
            k(x)
        if not landed and not big:
            for x in self.t1_dma(s_h, (3,), voff, reg):
                k(x)
        first = []
        if which < 2:
            first += [f"s_lshl_b32 s{S_T}, s{S_SEG}, 5\ns_add_u32 s{S_T}, s{S_T}, s{S_H}\ns_lshl_b32 s{S_T}, s{S_T}, 12",
                      f"s_add_u32 s{S_T}, s{S_T}, s{S_LW}\ns_add_u32 s{S_T}, s{S_T}, {KVM_OFF[which]}"]
            first += [f"v_mov_b64 v[72:73], -1\nv_mov_b64 v[74:75], -1"]
            first += [f"buffer_store_dwordx4 v[72:75], v{V_L16}, {WS}, s{S_T} offen sc1"]
            if which:
                first += [f"s_add_u32 s{S_T}, s{S_T}, {KVM_OFF[2] - KVM_OFF[1]}", first[-1]]
        first = ((first + [""] * 6)[:max(6, len(first))] + list(nxt)) if peek else list(nxt) + first
        look = list(peek[1]) if peek else []
        side = []
        P = 56
        for u in range(2):
            for r in range(4):
                side.append(f"v_cvt_pk_bf16_f32 v{P+4*u+r}, v{ak(0,u)+r}, v{ak(1,u)+r}")
            side.append(f"buffer_store_dwordx4 {vr(P+4*u,4)}, v{V_L16}, {WS}, s{S_T+5+u} offen sc1")
        for t in range(2):
            p = P + 8 + t * 4
            for u in range(2):
                side.append(f"v_cvt_pk_bf16_f32 v{p+2*u}, v{av(t,u)}, v{av(t,u)+1}")
                side.append(f"v_cvt_pk_bf16_f32 v{p+2*u+1}, v{av(t,u)+2}, v{av(t,u)+3}")
            side.append(f"buffer_store_dwordx4 {vr(p,4)}, v{V_L16}, {WS}, s{S_T+9} offen offset:{t*1024} sc1")
        if peek:
            side += [""] * self.opt.get("pk2", 4) + [x.strip() for x in peek[0].split("\n")]
        for n in range(32):
            kk = n & 15
            b = HB + (n % ND) * 8
            m = n + 2
            if m in (4, 8, 12) and (not landed or (m == 12 and s_flag)):
                k(f"s_waitcnt vmcnt({(12 - m) // 2 + np_})" if m < 12 else "s_waitcnt vmcnt(0) lgkmcnt(0)" if peek else "s_waitcnt vmcnt(0)")
                k("s_barrier")
                if m == 12 and s_flag:
                    self.flag_store(s_flag, " sc1")
                if m == 12 and peek:
                    k(peek[2])
            if n in (9, 11, 16):
                self.mark(self.mk + {9: 1, 11: 2, 16: 3}[n])
            if not (peek and m == 12):
                k(f"s_waitcnt lgkmcnt({2 if n < 31 else 0})")
            ks, hf = kk >> 1, kk & 1
            fill = rd(m) if m < 32 else []
            i = 0
            cur = first if 10 <= n < 16 else (side if n > 16 else look if n == 9 else pk0 if n == self.opt.get("pkat", 5) else addr if n < 4 else [])
            for t in range(2):
                for u in range(2):
                    h = vr(b + 4 * u, 4)
                    for acc, w, tr in (((ak, wk, True), (av, wv, False)) if n < 16 else ((aq, wq, True),)):
                        d = vr(acc(t, u), 4)
                        c = "0" if kk == 0 else d
                        a_, b_ = (w(ks, t, hf), h) if tr else (h, w(ks, t, hf))
                        k(f"v_mfma_f32_16x16x32_bf16 {d}, {a_}, {b_}, {c}")
                        i += 1
                        if fill and i % 2 == 1:
                            k(fill.pop(0))
                        elif cur and (n < 16 or not cur[0].startswith("v_")):
                            k(cur.pop(0))
                        if n > 16 or (n == 16 and i > 2):
                            for _ in range(2):
                                if side and side[0].startswith("v_"):
                                    k(side.pop(0))
        assert not first and not side and not look and not addr, (len(first), len(side))
        self.mark(self.mk + 4)
        for u in range(2):
            for r in range(4):
                k(f"v_cvt_pk_bf16_f32 v{HB+4*u+r}, v{aq(0,u)+r}, v{aq(1,u)+r}")
        for u in range(2):
            k(f"buffer_store_dwordx4 {vr(HB+4*u,4)}, v{V_L16}, {WS}, s{S_T+7+u} offen sc1")
        if early:
            self.page(S_T + 3, F_KV[which])
            self.flag_set(S_T + 3, " sc1", keep=3 if peek else 2)
        else:
            k(f"s_waitcnt vmcnt({7 if peek else 6})")
            k("s_barrier")
        self.mark(self.mk + 5)
        self.flush()

    def make_sel(self, dst, t):
        k = self.k
        k(f"""v_and_b32 v{t}, 15, v{V_LANE}
              v_and_b32 v{t+1}, 1, v{V_LANE}
              v_lshlrev_b32 v{t+1}, 4, v{t+1}
              v_mov_b32 v{t+2}, 0x3f80
              v_lshlrev_b32 v{t+2}, v{t+1}, v{t+2}
              v_lshrrev_b32 v{t}, 1, v{t}""")
        for q in range(4):
            k(f"v_cmp_eq_u32 vcc, {q}, v{t}")
            k(f"v_cndmask_b32 v{dst+q}, 0, v{t+2}, vcc")

    def softmax(self, S, P, t, fill=None, half=False):
        k = self.k
        fill = list(fill or [])
        def f(n=1):
            for _ in range(n):
                if fill:
                    k(fill.pop(0))
        if half:
            k(f"""v_max3_f32 v{t}, v{S}, v{S+1}, v{S+2}
                  v_max3_f32 v{t+1}, v{S+3}, v{S+10}, v{S+11}""")
        else:
            k(f"""v_max3_f32 v{t}, v{S}, v{S+1}, v{S+2}
                  v_max3_f32 v{t+1}, v{S+3}, v{S+4}, v{S+5}
                  v_max3_f32 v{t}, v{S+6}, v{S+7}, v{t}
                  v_max3_f32 v{t+1}, v{S+10}, v{S+11}, v{t+1}""")
        k(f"""v_max_f32 v{t}, v{t}, v{t+1}
              v_max_f32 v{t+1}, v{t}, v{t+1}""")
        f()
        k(f"""v_permlane16_swap_b32 v{t}, v{t+1}
              v_max_f32 v{t}, v{t}, v{t+1}
              v_max_f32 v{t+1}, v{t}, v{t+1}""")
        f()
        k(f"""v_permlane32_swap_b32 v{t}, v{t+1}
              v_max_f32 v{t}, v{t}, v{t+1}
              v_mul_f32 v{t}, s{S_C}, v{t}""")
        order = [0, 1, 2, 3, 10, 11] if half else [0, 1, 2, 3, 4, 5, 6, 7, 10, 11]
        k(f"v_fma_f32 v{S+order[0]}, v{S+order[0]}, s{S_C}, -v{t}")
        for n, i in enumerate(order):
            if n + 1 < len(order):
                j = order[n + 1]
                k(f"v_fma_f32 v{S+j}, v{S+j}, s{S_C}, -v{t}")
            k(f"v_exp_f32 v{S+i}, v{S+i}")
        for q in range(2 if half else 4):
            k(f"v_cvt_pk_bf16_f32 v{P+q}, v{S+2*q}, v{S+2*q+1}")
        k(f"v_cvt_pk_bf16_f32 v{P+4}, v{S+10}, v{S+11}")
        f(len(fill))

    def chain(self, c):
        k = self.k
        opt = self.opt
        IDX, IDX2, QKW, QKR0, QKR1, OW, OR, PST, MST, WOB, OB, MV = 2, 3, 4, 5, 6, 7, 8, 9, 10, 11, 55, 13
        MX, CK = 12, 123
        SEL, TCH, STS = 18, 22, 23
        M, KX, VX, QK, VA, T = 24, 56, 88, 96, 112, 120
        sMEM, sPC, sRD, sKV, sKVM, sRST, sM2, sU, sNAN, sW2, sFAIL, sPG, sOK, sREC, sFK, sFKB = (S_T + i for i in range(8, 24))
        sMX, sMXB = S_A, S_B
        sKF, sOK2, sJ = 18, 19, 20
        sPUB, sFK1 = 54, 55
        reg = min(c, 1)
        k(f"""v_and_b32 v{T}, 15, v{V_LANE}          ; c
              v_lshrrev_b32 v{T+1}, 4, v{V_LANE}     ; g
              v_and_b32 v{T+2}, 2, v{V_LANE}
              v_cmp_eq_u32 vcc, 0, v{T+2}
              v_mov_b32 v{IDX}, 0xeeee
              v_mov_b32 v{T+3}, 0x4444
              v_cndmask_b32 v{IDX}, v{IDX}, v{T+3}, vcc
              v_and_b32 v{T+2}, 1, v{V_LANE}
              v_cmp_eq_u32 vcc, 0, v{T+2}
              v_mov_b32 v{IDX2}, 0xdddd
              v_mov_b32 v{T+3}, 0x8888
              v_cndmask_b32 v{IDX2}, v{IDX2}, v{T+3}, vcc""")
        k(f"""v_lshrrev_b32 v{T+2}, 1, v{T}           ; b
              v_bfe_u32 v{T+3}, v{T}, 2, 1
              v_xor_b32 v{T+3}, v{T+3}, v{T+2}
              v_lshlrev_b32 v{QKW}, 7, v{T+3}
              v_and_b32 v{T+3}, 1, v{T}
              v_lshl_add_u32 v{QKW}, v{T+3}, 6, v{QKW}
              v_xor_b32 v{T+3}, v{T+1}, v{T+2}
              v_and_b32 v{T+3}, 3, v{T+3}
              v_lshl_add_u32 v{QKW}, v{T+3}, 4, v{QKW}
              s_lshl_b32 s{S_T}, s{S_W}, 10
              s_add_u32 s{S_T}, s{S_T}, {L_QK}
              v_add_u32 v{QKW}, s{S_T}, v{QKW}""")
        for hh, R in ((0, QKR0), (1, QKR1)):
            k(f"""v_lshlrev_b32 v{T+2}, 1, v{T+1}
                  v_add_u32 v{T+2}, {hh}, v{T+2}          ; b
                  v_and_b32 v{T+3}, 1, v{T+1}
                  v_xor_b32 v{T+3}, v{T+3}, v{T+2}
                  v_lshlrev_b32 v{R}, 7, v{T+3}
                  v_bfe_u32 v{T+3}, v{T}, 3, 1
                  v_lshl_add_u32 v{R}, v{T+3}, 6, v{R}
                  v_xor_b32 v{T+3}, v{T}, v{T+2}
                  v_and_b32 v{T+3}, 3, v{T+3}
                  v_lshl_add_u32 v{R}, v{T+3}, 4, v{R}
                  v_bfe_u32 v{T+3}, v{T}, 2, 1
                  v_lshl_add_u32 v{R}, v{T+3}, 3, v{R}
                  v_add_u32 v{R}, {L_QK}, v{R}""")
        k(f"""v_lshlrev_b32 v{OW}, 7, v{T+1}
              v_lshrrev_b32 v{T+2}, 1, v{T}
              v_lshl_add_u32 v{OR}, v{T+2}, 4, v{OW}
              v_add_u32 v{OR}, {L_O}, v{OR}
              v_lshrrev_b32 v{T+2}, 2, v{T}
              v_lshl_add_u32 v{OW}, v{T+2}, 5, v{OW}
              v_and_b32 v{T+2}, 1, v{T}
              v_lshl_add_u32 v{OW}, v{T+2}, 4, v{OW}
              v_and_b32 v{T+2}, 2, v{T}
              v_cmp_eq_u32 vcc, 0, v{T+2}
              s_lshl_b32 s{S_T}, s{S_W}, 9
              v_mov_b32 v{T+2}, 2048
              v_mov_b32 v{T+3}, s{S_T}
              v_cndmask_b32 v{T+2}, v{T+2}, v{T+3}, vcc
              v_add_u32 v{OW}, v{T+2}, v{OW}
              v_add_u32 v{OW}, {L_O}, v{OW}""")
        k(f"""v_lshrrev_b32 v{T+2}, 3, v{V_LANE}
              v_lshlrev_b32 v{PST}, 11, v{T+2}
              v_and_b32 v{T+2}, 7, v{V_LANE}
              v_lshl_add_u32 v{PST}, v{T+2}, 3, v{PST}
              s_lshl_b32 s{S_T}, s{S_W}, 14
              s_lshl_b32 s{S_T+1}, s{S_H}, 6
              s_add_u32 s{S_T}, s{S_T}, s{S_T+1}
              v_add_u32 v{PST}, s{S_T}, v{PST}""")
        k(f"""s_lshl_b32 s{sU}, s{S_W}, 5
              s_add_u32 s{sU}, s{sU}, s{S_H}
              s_bfe_u32 s{S_T}, s{sU}, 0x10003
              s_lshl_b32 s{S_T}, s{S_T}, 11              ; ((U>>3)&1)*4 lines*512
              s_and_b32 s{S_T+1}, s{sU}, 1
              s_lshl_b32 s{S_T+1}, s{S_T+1}, 10          ; (U&1)*2 lines
              s_add_u32 s{S_T}, s{S_T}, s{S_T+1}
              s_bfe_u32 s{S_T+1}, s{sU}, 0x10002
              s_lshl_b32 s{S_T+1}, s{S_T+1}, 9
              s_add_u32 s{S_T}, s{S_T}, s{S_T+1}
              s_bfe_u32 s{S_T+1}, s{sU}, 0x10001
              s_lshl_b32 s{S_T+1}, s{S_T+1}, 6
              s_add_u32 s{S_T}, s{S_T}, s{S_T+1}
              s_bfe_u32 s{S_T+1}, s{sU}, 0x10004
              s_lshl_b32 s{S_T+1}, s{S_T+1}, 8
              s_add_u32 s{S_T}, s{S_T}, s{S_T+1}
              s_bfe_u32 s{S_T+1}, s{sU}, 0x10005
              s_lshl_b32 s{S_T+1}, s{S_T+1}, 7
              s_add_u32 s{S_T}, s{S_T}, s{S_T+1}
              s_bfe_u32 s{S_T+1}, s{sU}, 0x10006
              s_lshl_b32 s{S_T+1}, s{S_T+1}, 12
              s_add_u32 s{S_T}, s{S_T}, s{S_T+1}
              v_and_b32 v{T+2}, 3, v{T}
              v_lshlrev_b32 v{MST}, 2, v{T+2}
              v_bfe_u32 v{T+2}, v{T}, 3, 1
              v_lshl_add_u32 v{MST}, v{T+2}, 4, v{MST}
              v_and_b32 v{T+2}, 1, v{T+1}
              v_lshl_add_u32 v{MST}, v{T+2}, 5, v{MST}
              v_add_u32 v{MST}, s{S_T}, v{MST}
              v_and_b32 v{T+3}, 36, v{V_LANE}
              v_mov_b32 v{T+2}, 0x80000000
              v_cmp_eq_u32 vcc, 0, v{T+3}
              v_cndmask_b32 v{MST}, v{T+2}, v{MST}, vcc
              s_lshl_b32 s{S_T}, s{S_W}, 15
              v_add_u32 v{WOB}, s{S_T}, v{V_L16}
              s_lshl_b32 s{sU}, s{sU}, 11
              s_lshl_b32 s{sW2}, s{S_W}, 11
              s_mov_b32 s{sNAN}, 0xffc00000
              s_mov_b32 s{sFAIL}, 0""")
        self.mfrag_voff(MV, T + 2)
        self.make_sel(SEL, T + 2)
        k(f"""s_and_b32 s{S_T}, s{S_W}, 1
              s_lshl_b32 s{S_T}, s{S_T}, 8
              s_and_b32 s{S_T+1}, s{S_W}, 2
              s_lshl_b32 s{S_T+1}, s{S_T+1}, 6
              s_add_u32 s{S_T}, s{S_T}, s{S_T+1}
              v_add_u32 v{MV}, s{S_T}, v{MV}""")
        k(f"""s_add_u32 s{S_T}, s{S_LW}, {L_MB}
              v_add_u32 v{MX}, s{S_T}, v{V_L16}
              v_mov_b64 v[14:15], {sr(S_ONE,2)}
              v_mov_b64 v[16:17], {sr(S_ONE,2)}""")
        k(f"""v_add_u32 v{TCH}, {MEM_OFF[c] + 2*8192}, v{MST}
              s_lshl_b32 s{sKF}, s{S_H}, 2
              s_add_u32 s{sKF}, s{sKF}, {PG_OFF + 8192 + F_KV[reg]}
              v_mov_b32 v1, s{S_C}
              s_mov_b32 s{sPC}, {PC_OFF[c]}
              s_add_u32 s{sRD}, s{sU}, {PC_OFF[c]}
              s_add_u32 s{sRST}, s{sU}, {PC_OFF[c] + 256*KB}
              s_mov_b32 s{sMX}, 0x40000000
              s_mov_b32 s{S_SEG}, 0""")
        sMK, sSCN = S_A, S_B
        if c == 2:
            k(f"""v_lshrrev_b32 v{T}, 2, v{V_L16}
                  v_add_u32 v{T}, {PG_OFF + (1+LOOK)*8192 + F_RKU - 128}, v{T}
                  v_or_b32 v{T}, s{S_OOB}, v{T}
                  s_mov_b64 vcc, -1
                  s_mov_b32 vcc_lo, 0
                  v_cndmask_b32 v{TCH}, v{TCH}, v{T}, vcc
                  s_or_b32 s{S_T}, s{S_OOB}, {PG_OFF + 8192 + F_J}
                  v_writelane_b32 v{TCH}, s{S_T}, 4
                  s_or_b32 s{S_T}, s{S_H}, s{S_W}
                  s_mov_b32 s{S_T}, {PG_OFF + F_RM}
                  s_cmov_b32 s{S_T}, 0x80000000
                  v_writelane_b32 v{TCH}, s{S_T}, 5
                  s_mov_b32 s{sMK}, 0
                  s_mov_b32 s{sSCN}, 0""")
        def keys_wait(seg, va):
            L_ = k.newlabel("L_ckk")
            self.page(S_T + 3, F_RKU, seg=seg, head=False)
            k(f"""v_lshrrev_b32 v{va+1}, 2, v{V_L16}
                  v_and_b32 v{va+1}, 127, v{va+1}""")
            k.label(L_)
            k(f"""s_sleep {opt.get("slu", 1)}
                  buffer_load_dword v{va}, v{va+1}, {WS}, s{S_T+3} offen sc1""")
            self.spend()
            k(f"""s_waitcnt vmcnt(0)
                  v_cmp_eq_u32 vcc, 0, v{va}
                  s_cbranch_vccnz {L_}""")
        dma = [f"s_add_u32 m0, s{sW2}, {L_KX}",
               f"s_add_u32 s{S_T+1}, s{sKV}, {8*KB}",
               f"buffer_load_dwordx4 v{V_L16}, {WS}, s{sKV} offen sc1 lds",
               f"buffer_load_dwordx4 v{V_L16}, {WS}, s{sKV} offen offset:1024 sc1 lds",
               f"s_add_u32 m0, s{sW2}, {L_VX}",
               f"s_add_u32 s{sKV}, s{sKV}, {32*24*KB}",
               f"buffer_load_dwordx4 v{V_L16}, {WS}, s{S_T+1} offen sc1 lds",
               f"buffer_load_dwordx4 v{V_L16}, {WS}, s{S_T+1} offen offset:1024 sc1 lds"]
        def kv_read(extra=None, pos=0):
            k(f"v_add_u32 v{OB}, {L_KX}, v{V_L16}")
            for i in range(8):
                if extra and i == pos:
                    k(extra)
                k(f"ds_read_b128 {vr(KX+4*i,4)}, v{OB} offset:{((i&1)*4+(i>>1))*1024}")
            k(f"v_add_u32 v{CK}, s{sW2}, v{OB}")
            for t in range(2):
                k(f"ds_read_b128 {vr(VX+4*t,4)}, v{CK} offset:{L_VX-L_KX+t*1024}")
        def zero(b, n):
            for i in range(0, n, 2):
                k(f"v_mov_b64 {vr(b+i,2)}, 0")
        def mload(hf):
            return f"buffer_load_dwordx4 {vr(M+16*hf,4)}, v{MV}, {WS}, s{sM2 if hf else sMEM} offen sc1"
        chk2 = [f"v_max3_u32 v{CK}, v{M}, v{M+1}, v{M+2}", f"v_max3_u32 v{CK}, v{M+3}, v{M+16}, v{CK}",
                f"v_max3_u32 v{CK}, v{M+17}, v{M+18}, v{CK}", f"v_max_u32 v{CK}, v{M+19}, v{CK}",
                f"v_cmp_le_u32 vcc, s{sNAN}, v{CK}"]
        mwrite = lambda hf: f"ds_write_b128 v{MX}, {vr(M+16*hf,4)} offset:{hf*4096}"
        mread = lambda hf, i: f"ds_read_b128 {vr(M+16*hf+4*i,4)}, v{T+i-1} offset:{hf*4096}"
        LEAD, LEADB, JS = (k.newlabel(x) for x in ("L_cld", "L_clb", "L_cjs"))
        START, KVW, KVB, JW, JUMP = (k.newlabel(x) for x in ("L_cst", "L_ckw", "L_ckb", "L_cjw", "L_cjump"))
        first = reg
        if opt.get("pcwarm", 1) and not self.loc:
            for i, r_ in enumerate((sRD, sRST)):
                for j in range(2):
                    k(f"buffer_load_dwordx4 {vr(KX+8*i+4*j,4)}, v{V_L16}, {WS}, s{r_} offen offset:{j*1024}")
            k("s_waitcnt vmcnt(0)")
        SW = k.newlabel("L_csw")
        WO_ = 3072 - 512
        k.label(START)
        k(f"""s_cmp_lg_u32 s{S_W}, 0
              s_cbranch_scc1 {SW}""")
        if c == 2:
            keys_wait(sSCN, T)
            self.wmax_u32(T, T + 1)
            k(f"""v_readfirstlane_b32 s{S_T+5}, v{T}
                  s_max_u32 s{sMK}, s{sMK}, s{S_T+5}
                  s_add_u32 s{sSCN}, s{sSCN}, 1
                  s_andn2_b32 s{S_SEG}, 0x7ff, s{sMK}
                  s_lshr_b32 s{S_SEG}, s{S_SEG}, 5
                  s_add_u32 s{S_T+5}, s{S_SEG}, {LOOK}
                  s_min_u32 s{S_T+5}, s{S_T+5}, 63
                  s_cmp_le_u32 s{sSCN}, s{S_T+5}
                  s_cbranch_scc1 {START}
                  v_mov_b32 v{T}, 0
                  v_mov_b32 v{T+1}, s{sMK}
                  ds_write_b32 v{OR}, v{T} offset:{WO_}
                  ds_write_b32 v{OR}, v{T+1} offset:{WO_ + 512}""")
        self.ev(40 + c, va=T + 2)
        self.page(S_T + 3, F_KV[first])
        self.word_wait(S_T + 3, S_T + 5, va=T + 2, sleep=1)
        k.label(SW)
        k("""s_waitcnt lgkmcnt(0)
             s_barrier""")
        if c == 2:
            k(f"""ds_read_b32 v{T}, v{OR} offset:{WO_ + 512}
                  s_waitcnt lgkmcnt(0)
                  v_readfirstlane_b32 s{sMK}, v{T}
                  s_andn2_b32 s{S_SEG}, 0x7ff, s{sMK}
                  s_lshr_b32 s{S_SEG}, s{S_SEG}, 5""")
        self.qkv_base(S_T, first)
        k(f"s_add_u32 s{sKV}, s{S_T}, s{sW2}")
        for d in dma:
            k(d)
        k(f"""s_lshl_b32 s{sPG}, s{S_SEG}, 13
              s_add_u32 s{S_T}, s{sPG}, {MEM_OFF[c] + 8192}
              buffer_load_dword v{STS}, v{MST}, {WS}, s{S_T} offen sc1
              s_add_u32 s{sMEM}, s{sPG}, {MEMX_OFF if c == 2 else MEM_OFF[c]}
              s_add_u32 s{sM2}, s{sMEM}, 4096
              s_lshl_b32 s{sKVM}, s{S_SEG}, 5
              s_add_u32 s{sKVM}, s{sKVM}, s{S_H}
              s_lshl_b32 s{sKVM}, s{sKVM}, 12
              s_lshl_b32 s{S_T}, s{S_W}, 10
              s_add_u32 s{sKVM}, s{sKVM}, s{S_T}
              s_add_u32 s{sKVM}, s{sKVM}, {KVM_OFF[c]}
              s_mov_b32 s{sPUB}, 0x80000000
              s_mov_b32 s{sREC}, 0
              s_mov_b32 s{sOK2}, 0
              s_cmp_eq_u32 s{S_SEG}, 63
              s_cselect_b32 s{sOK}, 1, s{S_W}
              s_cmp_eq_u32 s{sOK}, 0
              s_cselect_b32 s{sOK}, 1, 0""")
        q_ = lambda t: QK + 8 * t
        k_ = lambda t: QK + 8 * t + 4
        sq = lambda ks, t: f"v_smfmac_f32_16x16x64_bf16 {vr(q_(t),4)}, {vr(M+4*ks,4)}, {wq(ks,t)}, v{IDX}"
        sk = lambda ks, t: f"v_smfmac_f32_16x16x64_bf16 {vr(k_(t),4)}, {vr(M+4*ks,4)}, {wk(ks,t)}, v{IDX}"
        sv = lambda ks, t: f"v_smfmac_f32_16x16x64_bf16 {vr(VA+4*t,4)}, {vr(M+4*ks,4)}, {wv(ks,t)}, v{IDX}"
        zero(QK, 24)
        if c == 2:
            HL, HD = k.newlabel("L_chp"), k.newlabel("L_chd")
            A_ = KX
            k(f"""v_lshrrev_b32 v{A_}, 8, v{V_L16}
                  v_lshlrev_b32 v{A_}, 5, v{A_}
                  v_bfe_u32 v{A_+1}, v{V_L16}, 5, 1
                  v_lshl_add_u32 v{A_}, v{A_+1}, 2, v{A_}
                  s_lshl_b32 s{S_T}, s{S_W}, 7
                  s_add_u32 s{S_T}, s{S_T}, {L_MB}
                  v_add_u32 v{A_}, s{S_T}, v{A_}
                  v_xor_b32 v{A_+1}, 128, v{A_}
                  v_xor_b32 v{A_+2}, 256, v{A_}
                  v_xor_b32 v{A_+3}, 384, v{A_}
                  s_andn2_b32 s{S_T}, 31, s{sMK}
                  s_lshr_b32 s{S_T+1}, s{S_T}, 4
                  s_lshl_b32 s{S_T+2}, s{S_T+1}, 12
                  s_and_b32 s{S_T+3}, s{S_T}, 15
                  s_lshl4_add_u32 s{S_T+2}, s{S_T+3}, s{S_T+2}
                  s_add_u32 s{S_T+2}, s{S_T+2}, s{S_LW}
                  s_add_u32 s{S_T+2}, s{S_T+2}, {L_KX}
                  v_bfe_u32 v{A_+4}, v{V_L16}, 6, 2
                  v_lshlrev_b32 v{A_+4}, 8, v{A_+4}
                  v_bfe_u32 v{A_+5}, v{V_L16}, 4, 2
                  v_lshl_add_u32 v{A_+4}, v{A_+5}, 2, v{A_+4}
                  v_add_u32 v{A_+4}, s{S_T+2}, v{A_+4}
                  s_lshr_b32 s{S_T+2}, s{S_T+3}, 2
                  s_lshl_b32 s{S_T+2}, s{S_T+2}, 8
                  s_lshl3_add_u32 s{S_T+2}, s{S_T+1}, s{S_T+2}
                  s_and_b32 s{S_T+3}, s{S_T}, 3
                  s_lshl1_add_u32 s{S_T+2}, s{S_T+3}, s{S_T+2}
                  s_add_u32 s{S_T+2}, s{S_T+2}, s{sW2}
                  s_add_u32 s{S_T+2}, s{S_T+2}, {L_VX}
                  v_and_b32 v{A_+5}, 255, v{V_L16}
                  v_add_u32 v{A_+5}, s{S_T+2}, v{A_+5}
                  s_cmp_lg_u32 s{S_W}, 0
                  s_cbranch_scc1 {HD}
                  s_lshl_b32 s{S_T+3}, s{S_SEG}, 10
                  s_add_u32 s{S_T+3}, s{S_T+3}, {HPS_OFF}""")
            k.label(HL)
            k(f"buffer_load_dwordx4 {vr(T,4)}, v{V_L16}, {WS}, s{S_T+3} offen sc1")
            self.spend()
            k(f"""s_waitcnt vmcnt(0)
                  v_max3_u32 v{T+4}, v{T}, v{T+1}, v{T+2}
                  v_max_u32 v{T+4}, v{T+3}, v{T+4}
                  v_cmp_eq_u32 vcc, -1, v{T+4}
                  s_cbranch_vccnz {HL}
                  ds_write_b128 v{MX}, {vr(T,4)}""")
            k.label(HD)
            k("""s_waitcnt vmcnt(0) lgkmcnt(0)
                 s_barrier""")
            for i in range(8):
                for hq in range(2):
                    o_ = (i >> 2) * 128 + 4 * hq
                    k(f"ds_read2_b32 {vr(M+4*i+2*hq,2)}, v{A_+(i&3)} offset0:{o_} offset1:{o_+2}")
                if i == 3:
                    k("s_waitcnt lgkmcnt(4)")
            for i in range(8):
                k(f"s_waitcnt lgkmcnt({min(14 - 2*i, 12)})")
                for x in (sk(i, 0), sv(i, 0), sk(i, 1), sv(i, 1)):
                    k(x)
            for a_ in (k_(0), VA, k_(1), VA + 4):
                k(f"v_add_f32 v{a_}, v{a_}, v{a_+2}")
            k(f"""v_cvt_pk_bf16_f32 v{T}, v{k_(0)}, v{k_(1)}
                  v_cvt_pk_bf16_f32 v{T+1}, v{VA}, v{VA+4}
                  ds_write_b32 v{A_+4}, v{T}
                  ds_write_b16 v{A_+5}, v{T+1}
                  ds_write_b16_d16_hi v{A_+5}, v{T+1} offset:1024""")
            zero(QK, 24)
        k("""s_waitcnt vmcnt(0) lgkmcnt(0)
             s_barrier""")
        kv_read()
        LOOP, PA, PAB, END, GO = (k.newlabel(x) for x in ("L_chain", "L_cpa", "L_cpab", "L_cend", "L_cgo"))
        RP, RB, PB, PBB, BACK = (k.newlabel(x) for x in ("L_crp", "L_crb", "L_cpb", "L_cpbb", "L_cback"))
        qk4 = lambda ks: [sq(ks, 0), sk(ks, 0), sq(ks, 1), sk(ks, 1)]
        vlist = [(ks, t) for ks in range(8) for t in range(2)]
        def vs(n):
            for _ in range(n):
                if vlist:
                    k(sv(*vlist.pop(0)))
        def weave(mm, other):
            other = list(other)
            for o in mm:
                k(o)
                if other:
                    k(other.pop(0))
            for o in other:
                k(o)
        ONES = 14
        PT_ = M + 28
        pub = [f"v_add_u32 v{PT_}, s{S_LW}, v{QKR0}", f"v_add_u32 v{PT_+2}, s{S_LW}, v{QKR1}",
               f"ds_read_b64_tr_b16 {vr(PT_,2)}, v{PT_}", f"ds_read_b64_tr_b16 {vr(PT_+2,2)}, v{PT_+2}",
               f"v_mov_b32_dpp v{T+4}, v{T+6} quad_perm:[2,3,2,3] row_mask:0xf bank_mask:0xf",
               f"v_mov_b32_dpp v{T+5}, v{T+7} quad_perm:[2,3,2,3] row_mask:0xf bank_mask:0xf",
               f"s_mov_b32 vcc_lo, 0xcccccccc", f"s_mov_b32 vcc_hi, 0xcccccccc", None]
        pub += [f"v_cndmask_b32 v{T+4+i}, v{T+4+i}, v{PT_+i}, vcc" for i in range(4)]
        pub += [f"buffer_store_dwordx4 {vr(T+4,4)}, v{V_L16}, {WS}, s{sPUB} offen sc1"]
        XT = T
        def xaddr():
            for i in range(1, 4):
                k(f"v_xor_b32 v{XT+i-1}, {i*1024}, v{MX}")
        xaddr()
        pipe = opt.get("pipe", 1)
        def chk(hf):
            b = M + 16 * hf
            return [f"v_max3_u32 v{CK}, v{b}, v{b+1}, v{b+2}", f"v_max_u32 v{CK}, v{b+3}, v{CK}", f"v_cmp_le_u32 vcc, s{sNAN}, v{CK}"]
        mpos = opt.get("mpos", (3, 7))
        for _ in mpos:
            k(mload(0))
        k.label(LOOP)
        self.stamp(0)
        k.label(PA)
        k(mload(0))
        self.spend(0x10000, sFAIL)
        k(f"s_waitcnt vmcnt({len(mpos)})")
        for x in chk(0):
            k(x)
        if opt.get("spec", 1):
            k(mwrite(0))
        k(f"s_cbranch_vccnz {PA}")
        k.label(GO)
        self.stamp(1)
        if not opt.get("spec", 1):
            k(mwrite(0))
        m1 = opt.get("m1", 0)
        nb = opt.get("nb", 2)
        weave(qk4(0)[:nb], [""] * m1 + [mload(1)])
        k("""s_waitcnt lgkmcnt(0)
             s_barrier""")
        self.stamp("xa")
        V2 = lambda n: [sv(*vlist.pop(0)) for _ in range(n)]
        k(mread(0, 1))
        weave(qk4(0)[nb:] + V2(2), [mread(0, 2), mread(0, 3)])
        k("s_waitcnt lgkmcnt(2)")
        va, vb = opt.get("va", 0), opt.get("vb", 1)
        weave(qk4(1) + V2(va), [dma[0], dma[1], f"s_cmp_lt_u32 s{sOK2}, s{sOK}\ns_cbranch_scc1 {KVW}\n{KVB}:"])
        k("s_waitcnt vmcnt(0) lgkmcnt(1)")
        self.stamp("xb")
        c1 = chk(1)
        weave(qk4(2) + V2(vb), [mwrite(1) + "\n" + c1[0]] + c1[1:])
        k(f"s_cbranch_vccnz {PB}")
        k.label(BACK)
        k("""s_waitcnt lgkmcnt(0)
             s_barrier""")
        self.stamp("xc")
        packt = lambda t: [x for a_, d_ in ((q_(t), T + 2 * t), (k_(t), T + 2 * t + 1)) for x in
                           (f"v_add_f32 v{a_}, v{a_}, v{a_+2}", f"v_add_f32 v{a_+1}, v{a_+1}, v{a_+3}",
                            f"v_cvt_pk_bf16_f32 v{d_}, v{a_}, v{a_+1}")]
        mm = qk4(3) + qk4(4) + [f(ks, t) for t in range(2) for ks in (5, 6, 7) for f in (sq, sk)] + V2(2)
        n0 = 8
        far = {"a": [dma[2]], "b": [dma[3], dma[4]], "c": [dma[6], dma[5]], "d": [dma[7]], "p": [pub[-1]],
               "t": [f"buffer_load_dword v{STS}, v{TCH}, {WS}, s{sPG} offen sc1"], "-": []}
        side = {1: [mread(1, 1)], 3: [mread(1, 2)], 5: [mread(1, 3)]}
        far["x"] = [f"buffer_store_dword v{M+30}, v{MST}, {WS}, s{sMX} offen sc1"]
        for i_, x in enumerate(("x" if c == 1 else "") + opt.get("ford", "pabcdt")):
            side[2 * i_] = list(far[x])
        if c == 2:
            side[7] = [f"ds_read_b32 v{CK}, v{OR} offset:{WO_}"]
        if "t" not in opt.get("ford", "t") and c == 2:
            side[12] = far["t"]
        if opt.get("rstpos"):
            p_ = opt["rstpos"]
            side.setdefault(p_ - 3, []).append(f"v_mov_b64 {vr(T+4,2)}, -1")
            side.setdefault(p_ - 1, []).append(f"v_mov_b64 {vr(T+6,2)}, -1")
            side.setdefault(p_, []).insert(0, f"buffer_store_dwordx4 {vr(T+4,4)}, v{V_L16}, {WS}, s{sRST} offen{self.loc}")
            side.setdefault(p_ + 2, []).insert(0, f"buffer_store_dwordx4 {vr(T+4,4)}, v{V_L16}, {WS}, s{sRST} offen offset:1024{self.loc}")
        if c == 2:
            side.setdefault(n0 + 5, []).append(f"v_readfirstlane_b32 s{S_T+2}, v{CK}")
            side.setdefault(n0 + 7, []).append(f"s_cmp_lg_u32 s{S_T+2}, 0\ns_cbranch_scc1 {JUMP}")
        waits = {n0: 2 + (c == 2), n0 + 2: 1 + (c == 2), n0 + 4: 0}
        for i_, x in enumerate(packt(0)):
            side.setdefault(n0 + 8 + i_, []).append(x)
        for n, o in enumerate(mm):
            if n in waits:
                k(f"s_waitcnt lgkmcnt({waits[n]})")
            k(o)
            for x in side.get(n, []):
                k(x)
        self.stamp("back")
        for x in packt(1):
            k(x)
        k(f"ds_write_b128 v{QKW}, {vr(T,4)}")
        vend = list(vlist)
        weave(V2(opt.get("vd", 4)),
              [f"s_mov_b32 s{sPUB}, s{sKVM}\ns_add_u32 s{sKVM}, s{sKVM}, {32*4*KB}\nv_mov_b32 v{T+5}, 0",
               f"s_cmp_eq_u32 s{S_SEG}, 63\ns_cbranch_scc1 {END}"])
        self.stamp("w0")
        k("s_waitcnt lgkmcnt(0)")
        self.stamp("w1")
        k("s_barrier")
        self.stamp(2)
        F = QK
        tr = [f"ds_read_b64_tr_b16 {vr(F+4*kk+2*hh,2)}, v{(QKR0, QKR1)[hh]} offset:{kk*1024}" for kk in range(4) for hh in range(2)]
        S = M
        slots = [KX, KX + 8, KX + 16, KX + 24, F, F + 8, M + 16, M + 24]
        def wo_reads(u):
            return [f"ds_read_b128 {vr(slots[(u&1)*4+kk]+4*hf,4)}, v{WOB} offset:{((u*4+kk)*2+hf)*1024}"
                    for kk in range(4) for hf in range(2)]
        st_ = wo_reads(0) + wo_reads(1)
        nv3 = opt.get("v3", 4)
        lq = []
        def ld(x):
            k(x); lq.append(x)
        def lwait(x):
            k(f"s_waitcnt lgkmcnt({len(lq) - 1 - lq.index(x)})")
        for x in tr[:6 - nv3]:
            ld(x)
        for x in tr[6 - nv3:6]:
            vs(1); ld(x)
        shadow = [tr[6], tr[7], st_[12]] + [st_[i] for i in (0, 1, 8, 2, 3, 9, 4, 5, 10, 6, 7, 11, 13, 14, 15)]
        for kk in range(4):
            lwait(tr[2 * kk + 1])
            f = vr(F + 4 * kk, 4)
            for a_, d_ in ((vr(KX + 8 * kk, 4), S), (vr(KX + 8 * kk + 4, 4), S + 4), (f, S + 8)):
                k(f"v_mfma_f32_16x16x32_bf16 {vr(d_,4)}, {a_}, {f}, {'0' if kk == 0 else vr(d_,4)}")
                ld(shadow.pop(0))
        assert len(vlist) <= 3
        while vlist:
            vs(1)
            if len(shadow) > 2:
                ld(shadow.pop(0))
        self.stamp(3)
        P = T
        t0 = T + 6
        VM, VM1 = T + 6, M + 12
        O = VA; Lr = S + 8
        sub = lambda i: f"v_pk_add_f32 {vr(S+i,2)}, {vr(S+i,2)}, {vr(t0,2)} op_sel_hi:[1,0] neg_lo:[0,1] neg_hi:[0,1]"
        mul = lambda i: f"v_pk_mul_f32 {vr(S+i,2)}, {vr(S+i,2)}, v[0:1] op_sel:[0,1]"
        ex = lambda i: f"v_exp_f32 v{S+i}, v{S+i}"
        sh = lambda: shadow.pop(0) if shadow else ""
        k(f"""v_max3_f32 v{t0}, v{S}, v{S+1}, v{S+2}
              v_max3_f32 v{t0+1}, v{S+3}, v{S+4}, v{S+5}
              v_max3_f32 v{t0}, v{S+6}, v{S+7}, v{t0}
              v_max3_f32 v{t0+1}, v{S+10}, v{S+11}, v{t0+1}
              v_max_f32 v{t0}, v{t0}, v{t0+1}
              v_max_f32 v{t0+1}, v{t0}, v{t0+1}
              {mul(10)}
              {mul(0)}
              v_permlane16_swap_b32 v{t0}, v{t0+1}
              v_max_f32 v{t0}, v{t0}, v{t0+1}
              v_max_f32 v{t0+1}, v{t0}, v{t0+1}
              {mul(2)}
              {mul(4)}
              v_permlane32_swap_b32 v{t0}, v{t0+1}
              v_max_f32 v{t0}, v{t0}, v{t0+1}
              v_mul_f32 v{t0}, v1, v{t0}
              {mul(6)}
              {sub(10)}
              v_pk_add_f32 {vr(VA,2)}, {vr(VA,2)}, {vr(VA+2,2)}
              v_pk_add_f32 {vr(VA+4,2)}, {vr(VA+4,2)}, {vr(VA+6,2)}
              {sub(0)}
              {sub(2)}
              {sub(4)}
              {sub(6)}
              {ex(10)}
              {ex(11)}
              v_cvt_pk_bf16_f32 v{VM}, v{VA}, v{VA+1}
              v_cvt_pk_bf16_f32 v{P+4}, v{S+10}, v{S+11}
              v_cvt_pk_bf16_f32 v{VM+1}, v{VA+4}, v{VA+5}
              v_cvt_pk_bf16_f32 v{VM1}, v{VA+4}, v{VA+5}
              v_mfma_f32_16x16x16_bf16 {vr(Lr,4)}, {vr(ONES,2)}, {vr(P+4,2)}, 0
              {sh()}
              {ex(0)}
              v_mfma_f32_16x16x16_bf16 {vr(O,4)}, {vr(VM,2)}, {vr(P+4,2)}, 0
              {sh()}
              {ex(1)}
              v_mfma_f32_16x16x16_bf16 {vr(O+4,4)}, {vr(VM1,2)}, {vr(P+4,2)}, 0
              {sh()}
              {ex(2)}""")
        for i in range(3, 8):
            k(ex(i))
            if i & 1:
                k(f"v_cvt_pk_bf16_f32 v{P+(i>>1)-1}, v{S+i-3}, v{S+i-2}")
        k(f"v_cvt_pk_bf16_f32 v{P+3}, v{S+6}, v{S+7}")
        for nm in opt.get("fw", ()):
            k(f"s_waitcnt vmcnt({nm})")
            self.stamp("f%d" % nm)
        self.stamp(4)
        k(f"""s_add_u32 s{sPG}, s{sPG}, 8192
              s_add_u32 s{S_SEG}, s{S_SEG}, 1
              v_mfma_f32_16x16x32_bf16 {vr(Lr,4)}, {vr(ONES,4)}, {vr(P,4)}, {vr(Lr,4)}
              {sh()}
              v_mfma_f32_16x16x32_bf16 {vr(O,4)}, {vr(VX,4)}, {vr(P,4)}, {vr(O,4)}
              ds_read_b128 {vr(VX,4)}, v{WOB} offset:{16*1024}
              v_mfma_f32_16x16x32_bf16 {vr(O+4,4)}, {vr(VX+4,4)}, {vr(P,4)}, {vr(O+4,4)}
              ds_read_b128 {vr(VX+4,4)}, v{WOB} offset:{17*1024}
              v_rcp_f32 v{Lr}, v{Lr}""")
        assert not shadow
        acc = [VA, VA + 4, T, VA]
        k(f"""v_mov_b64 {vr(S,2)}, -1
              v_mov_b64 {vr(S+2,2)}, -1
              s_add_u32 s{sMEM}, s{sPG}, {MEM_OFF[c]}
              s_add_u32 s{sM2}, s{sMEM}, 4096""")
        for e in range(0, 8, 2):
            k(f"v_pk_mul_f32 {vr(O+e,2)}, {vr(O+e,2)}, {vr(Lr,2)} op_sel_hi:[1,0]")
        for r in range(4):
            k(f"v_cvt_pk_bf16_f32 v{T+r}, v{O+r}, v{O+4+r}")
        k(f"ds_write_b128 v{OW}, {vr(T,4)}")
        if not opt.get("rstpos"):
            k(f"""buffer_store_dwordx4 {vr(S,4)}, v{V_L16}, {WS}, s{sRST} offen{self.loc}
                  buffer_store_dwordx4 {vr(S,4)}, v{V_L16}, {WS}, s{sRST} offen offset:1024{self.loc}""")
        zero(VA, 8)
        k("s_waitcnt lgkmcnt(0)")
        k("s_barrier")
        self.stamp(5)
        OA = M
        lq[:] = []
        ord_ = [f"ds_read_b128 {vr(OA+4*kk,4)}, v{OR} offset:{kk*512}" for kk in range(4)]
        for x in ord_:
            ld(x)
        zero(T, 4)
        k(f"""s_add_u32 s{S_T+1}, s{sPC}, {64*KB}
              s_add_u32 s{S_T+2}, s{sPC}, {128*KB}
              s_add_u32 s{S_T+3}, s{sPC}, {192*KB}
              s_add_u32 s{S_T}, s{sKF}, s{sPG}""")
        if c == 1:
            k(f"s_add_u32 s{sMX}, s{sPG}, {MEMX_OFF}")
        alt = opt.get("alt", 0)
        seq = [0, 4, 1, 5, 2, 6, 3, 7] if alt else list(range(8))
        seq += list(range(8, 16))
        where = slots + [VX] + [slots[x] for x in seq[:7]]
        stream = [f"ds_read_b128 {vr(where[i]+4*hf,4)}, v{WOB} offset:{(i*2+hf)*1024}" for i in range(9, 16) for hf in range(2)]
        def wo_out(u):
            a = acc[u]
            return [f"v_cvt_pk_bf16_f32 v{a}, v{a}, v{a+1}", f"v_cvt_pk_bf16_f32 v{a+1}, v{a+2}, v{a+3}",
                    f"buffer_store_dwordx2 {vr(a,2)}, v{PST}, {WS}, s{S_T+u if u else sPC} offen{self.loc}"]
        oth = {}
        if alt:
            acc[3] = M + 24
            o0, o1, o2 = wo_out(0), wo_out(1), wo_out(2)
            oth = {8: o0[:2], 9: [o0[2], o1[0]], 10: [f"v_mov_b64 {vr(acc[3],2)}, 0", o1[1]], 11: [o1[2], f"v_mov_b64 {vr(acc[3]+2,2)}, 0"],
                   12: pub[:1], 13: o2[:1], 14: o2[1:2], 15: o2[2:]}
            oth[10], oth[11] = [o1[1], f"v_mov_b64 {vr(acc[3],2)}, 0", f"v_mov_b64 {vr(acc[3]+2,2)}, 0"], [o1[2], pub[1]]
            npop = opt.get("npop", {0: 1, 1: 1, 2: 1, 3: 2, 4: 1, 5: 2, 6: 1, 7: 2, 8: 1, 10: 1, 12: 1})
        else:
            for u in range(3):
                o_ = wo_out(u)
                oth[4 * u + 5] = o_[:1]
                oth[4 * u + 6] = o_[1:]
            oth[7] = [f"v_mov_b64 {vr(VA,2)}, 0"]
            oth[8] = [f"v_mov_b64 {vr(VA+2,2)}, 0"]
            oth[11] = pub[:1]
            oth[12] = pub[1:2]
            npop = {i: 2 if i in (8, 10) else 1 for i in range(12)}
        tail_ld = {13: pub[2], 14: pub[3]}
        todo = list(stream)
        for i, j_ in enumerate(seq):
            if j_ < 4:
                lwait(ord_[j_])
            if i >= 9:
                lwait(stream[2 * (i - 9) + 1])
            k(f"v_smfmac_f32_16x16x64_bf16 {vr(acc[j_>>2],4)}, {vr(OA+4*(j_&3),4)}, {vr(where[j_],8)}, v{IDX2}")
            self.stamp("o%d" % i)
            for _ in range(npop.get(i, 0)):
                assert (14 - len(todo)) // 2 <= i
                ld(todo.pop(0))
            if i in tail_ld:
                ld(tail_ld[i])
            for x in oth.get(i, []):
                k(x)
        assert not todo
        zero(VA + 4, 4)
        k(f"s_xor_b32 s{sPC}, s{sPC}, {256*KB}")
        for x in pub[4:8] + wo_out(3) + ["s_waitcnt lgkmcnt(0)", f"s_buffer_load_dword s{sOK2}, {WS}, s{S_T}"]:
            k(x)
        self.stamp(6)
        RS = (M + 8, M + 20); RA = M + 4; RT = M + 28
        def rloads(R):
            for i in range(2):
                k(f"buffer_load_dwordx4 {vr(R+4*i,4)}, v{V_L16}, {WS}, s{sRD} offen offset:{i*1024} sc1")
        def reduce(R, fill=()):
            k(f"s_waitcnt vmcnt({3 if opt.get('two', 1) else 1})")
            self.stamp("r2")
            k(f"v_mfma_f32_16x16x32_bf16 {vr(RA,4)}, {vr(SEL,4)}, {vr(R,4)}, 0")
            k(f"s_waitcnt vmcnt({2 if opt.get('two', 1) else 0})")
            k(f"v_mfma_f32_16x16x32_bf16 {vr(RA,4)}, {vr(SEL,4)}, {vr(R+4,4)}, {vr(RA,4)}")
            for x in fill:
                k(x)
            k(f"""v_cmp_u_f32 vcc, v{RA}, v{RA}
                  v_add_f32_dpp v{RT}, v{RA}, v{RA} row_ror:8 row_mask:0xf bank_mask:0x3
                  v_add_f32_dpp v{RT+1}, v{RA+1}, v{RA+1} row_ror:8 row_mask:0xf bank_mask:0x3
                  v_add_f32_dpp v{RT}, v{RA+2}, v{RA+2} row_ror:8 row_mask:0xf bank_mask:0xc
                  v_add_f32_dpp v{RT+1}, v{RA+3}, v{RA+3} row_ror:8 row_mask:0xf bank_mask:0xc
                  v_add_f32_dpp v{RT}, v{RT}, v{RT} row_shl:4 row_mask:0xf bank_mask:0x5
                  v_add_f32_dpp v{RT+1}, v{RT+1}, v{RT+1} row_shl:4 row_mask:0xf bank_mask:0x5""")
        kvr = [f"ds_read_b128 {vr(KX+4*i,4)}, v{OB} offset:{((i&1)*4+(i>>1))*1024}" for i in range(8)]
        kvr += [f"ds_read_b128 {vr(VX+4*t,4)}, v{CK} offset:{L_VX-L_KX+t*1024}" for t in range(2)]
        work = pub[9:13] + [f"v_mov_b64 {vr(QK+i,2)}, 0" for i in range(0, 20, 2)] \
            + [f"v_add_u32 v{OB}, {L_KX}, v{V_L16}", f"v_add_u32 v{CK}, s{sW2}, v{OB}"]
        two = opt.get("two", 1)
        nw = opt.get("nw", 4)
        for x in work[:nw]:
            k(x)
        RG = k.newlabel("L_crg")
        e0, e1, e2 = opt.get("ea", (3, 1, 0))
        k(f"""s_cmp_lt_u32 s{S_W}, 2
              s_waitcnt vmcnt({e0})
              s_cbranch_scc1 {RG}
              s_cmp_eq_u32 s{S_W}, 2
              s_waitcnt vmcnt({e1})
              s_cbranch_scc1 {RG}
              s_waitcnt vmcnt({e2})""")
        k.label(RG)
        self.stamp("ea")
        rloads(RS[0])
        for x in work[nw:]:
            k(x)
        xaddr()
        blate = opt.get("blate", 1)
        if not blate:
            k("s_barrier")
        kp = opt.get("kvpos", 0)
        for i, x in enumerate(kvr[:kp]):
            if two and i == two:
                rloads(RS[1])
            k(x)
        if two:
            if two > 1:
                k(f"s_sleep {two - 1}")
            rloads(RS[1])
        k(f"""s_cmp_ge_u32 s{S_SEG}, 63
              s_cselect_b32 s{sOK}, 0, 1""")
        if c == 2:
            k(f"""v_readlane_b32 s{S_T}, v{STS}, 5
                  v_readlane_b32 s{sJ}, v{STS}, 4
                  v_add_u32 v{STS}, -1, v{STS}
                  v_cmp_le_u32 vcc, s{sMK}, v{STS}
                  s_cmp_gt_u32 s{S_SEG}, {63 - LOOK}
                  s_cselect_b32 s{sREC}, 0, vcc_hi
                  s_cmp_gt_u32 s{sJ}, s{sMK}
                  s_cselect_b32 s{sREC}, 1, s{sREC}
                  s_cmp_lg_u32 s{sREC}, 0
                  s_cselect_b32 s{sOK}, 2, s{sOK}
                  s_cmp_gt_u32 s{S_T}, s{sMK}
                  s_cbranch_scc1 {LEAD}""")
            k.label(LEADB)
        k(f"""s_cmp_eq_u32 s{S_W}, 0
              s_cselect_b32 s{sOK}, s{sOK}, 0""")
        OKR = k.newlabel("L_cok")
        reduce(RS[0])
        k(f"s_cbranch_vccnz {RP}")
        k.label(OKR)
        k(f"""v_cvt_pk_bf16_f32 v{RT+2}, v{RT}, v{RT+1}
              buffer_store_dword v{RT+2}, v{MST}, {WS}, s{sMEM} offen{self.loc}
              s_mov_b32 s{sRST}, s{sRD}
              s_xor_b32 s{sRD}, s{sRD}, {256*KB}""")
        self.stamp(7)
        if blate:
            k("s_barrier")
        for i, x in enumerate(kvr):
            if i in mpos:
                k(mload(0))
            k(x)
        if opt.get("mack"):
            k(f"s_waitcnt vmcnt({2 if pipe else 0})")
        if self.stamps > 1:
            NX = k.newlabel("L_cnx")
            k(f"""s_and_b32 s{S_T}, s{S_SEG}, 7
                  s_cmp_lg_u32 s{S_T}, 7
                  s_cbranch_scc1 {NX}""")
            if c == opt.get("stc", 0):
                self.dump_stamps(8, sFAIL, M + 4)
            k.label(NX)
        if self.stamps:
            NE = k.newlabel("L_cne")
            k(f"""s_and_b32 s{S_T}, s{S_SEG}, 7
                  s_cmp_lg_u32 s{S_T}, 1
                  s_cbranch_scc1 {NE}""")
            self.ev(50 + c, va=M + 4)
            self.ev(56 + c, va=M + 4, clk="s_memtime")
            k.label(NE)
        k(f"s_branch {LOOP}")
        for hf, lab, back in ((1, PB, BACK),):
            k.label(lab)
            k(mload(hf))
            self.spend(1 if hf else 0x10000, sFAIL)
            k("s_waitcnt vmcnt(0)")
            for x in chk(hf):
                k(x)
            k(f"""s_cbranch_vccnz {lab}
                  {mwrite(1)}
                  s_branch {back}""")
        k.label(RP)
        st_, self.stamps = self.stamps, min(self.stamps, 1)
        for i in (0, 1) if two else (0,):
            rloads(RS[i])
            self.spend(0x100, sFAIL)
            reduce(RS[1 - i if two else 0])
            k(f"s_cbranch_vccz {OKR}")
        k(f"s_branch {RP}")
        self.stamps = st_
        k.label(KVW)
        if c == 2:
            k(f"""s_cmp_eq_u32 s{sREC}, 0
                  s_cbranch_scc1 {JW}
                  s_andn2_b32 s{sSCN}, 0x7ff, s{sJ}
                  s_lshr_b32 s{sSCN}, s{sSCN}, 5
                  s_cmp_gt_u32 s{sJ}, s{sMK}
                  s_cbranch_scc1 {JS}
                  s_add_u32 s{sSCN}, s{S_SEG}, {LOOK}""")
            keys_wait(sSCN, M + 20)
            k(f"""v_cmp_lt_u32 vcc, s{sMK}, v{M+20}
                  s_cbranch_vccz {JW}""")
            k.label(JS)
            k(f"""ds_write_b32 v{OR}, v{IDX} offset:{WO_}
                  s_waitcnt lgkmcnt(0)
                  s_branch {KVB}""")
            k.label(LEAD)
            k(f"""v_mov_b32 v{STS}, s{S_T}
                  s_add_u32 s{S_T}, s{sPG}, {PG_OFF + 8192 + F_J}
                  buffer_store_dword v{STS}, off, {WS}, s{S_T}{self.loc}
                  s_waitcnt vmcnt(0)
                  s_branch {LEADB}""")
            k.label(JW)
            k(f"""s_cmp_lg_u32 s{sOK2}, 0
                  s_cbranch_scc1 {KVB}""")
        k(f"s_add_u32 s{S_T+3}, s{sKF}, s{sPG}")
        self.ev(44, va=M + 20)
        self.word_wait(S_T + 3, sOK, va=STS, sleep=opt.get("slk", 1))
        self.ev(45, va=M + 20)
        k(f"s_branch {KVB}")
        if c == 2:
            k.label(JUMP)
            k(f"""s_waitcnt vmcnt(0) lgkmcnt(0)
                  s_barrier
                  s_branch {START}""")
        k.label(END)
        for x in vend[2:]:
            k(sv(*x))
        k(f"""s_waitcnt lgkmcnt(0)
              v_pk_add_f32 {vr(VA,2)}, {vr(VA,2)}, {vr(VA+2,2)}
              v_pk_add_f32 {vr(VA+4,2)}, {vr(VA+4,2)}, {vr(VA+6,2)}
              v_cvt_pk_bf16_f32 v{VM}, v{VA}, v{VA+1}
              v_cvt_pk_bf16_f32 v{VM+1}, v{VA+4}, v{VA+5}""")
        for x in pub:
            k(x or "s_waitcnt lgkmcnt(0)")
        k(f"s_mov_b32 s{S_SEG}, 64")
        self.ev(50 + c, va=M + 4)
        k("s_waitcnt vmcnt(0)")
        k("s_barrier")
        k.fence()
        k(f"v_lshrrev_b32 v{V_LANE}, 4, v{V_L16}")

    def dump_stamps(self, n, extra=None, va=36):
        k = self.k
        k(f"""s_waitcnt lgkmcnt(0)
              s_lshl_b32 s{S_T}, s{S_SEG}, 5
              s_add_u32 s{S_T}, s{S_T}, s{S_H}
              s_lshl_b32 s{S_T}, s{S_T}, 2
              s_add_u32 s{S_T}, s{S_T}, s{S_W}
              s_lshl_b32 s{S_T}, s{S_T}, 6
              s_add_u32 s{S_T}, s{S_T}, {STAMP_OFF}
              v_mov_b32 v{va}, 0""")
        for i in range(n):
            k(f"v_writelane_b32 v{va}, s{84+2*i}, {i}")
        if extra is not None:
            k(f"v_writelane_b32 v{va}, s{extra}, 8")
            k(f"s_mov_b32 s{extra}, 0")
        k(f"""v_lshrrev_b32 v{va+1}, 2, v{V_L16}
              s_mov_b64 exec, 0xffff
              buffer_store_dword v{va}, v{va+1}, {WS}, s{S_T} offen
              s_mov_b64 exec, -1""")

    def proj_consts(self):
        k = self.k
        self.THR, self.TOB, self.TWO, self.THD, self.TRW, self.TRL = 4, 17, 18, 20, 21, 22
        T = 120
        k(f"""v_and_b32 v{T}, 15, v{V_LANE}
              v_lshrrev_b32 v{T+1}, 4, v{V_LANE}
              v_mov_b32 v{self.TOB}, 1
              s_lshl_b32 s{S_T}, s{S_W}, 15
              v_add_u32 v{self.TWO}, s{S_T}, v{V_L16}
              s_lshl_b32 s{S_T}, s{S_W}, 2
              v_add_u32 v{T+5}, s{S_T}, v{T+1}            ; row 4w+g
              v_xor_b32 v{T+6}, v{T+5}, v{T}
              v_lshlrev_b32 v{T+6}, 4, v{T+6}
              v_lshl_add_u32 v{self.THD}, v{T+5}, 10, v{T+6}""")
        for kq in range(4):
            k(f"""v_add_u32 v{T+5}, {4*kq}, v{T+1}
                  v_xor_b32 v{T+5}, v{T+5}, v{T}
                  v_lshlrev_b32 v{T+5}, 4, v{T+5}
                  v_lshl_add_u32 v{T+5}, v{T}, 8, v{T+5}
                  v_add_u32 v{self.THR+kq}, {self.LH}, v{T+5}""")
        k(f"""v_lshlrev_b32 v{self.TRW}, 5, v{T}
              v_and_b32 v{T+5}, 1, v{T+1}
              v_lshl_add_u32 v{self.TRW}, v{T+5}, 4, v{self.TRW}
              s_lshl_b32 s{S_T}, s{S_W}, 9
              v_lshrrev_b32 v{T+5}, 1, v{T+1}
              v_lshl_add_u32 v{self.TRW}, v{T+5}, 11, v{self.TRW}
              s_add_u32 s{S_T}, s{S_T}, {L_ROW}
              v_add_u32 v{self.TRW}, s{S_T}, v{self.TRW}
              v_lshlrev_b32 v{self.TRL}, 4, v{T}
              v_lshl_add_u32 v{self.TRL}, v{T+1}, 10, v{self.TRL}
              s_lshl_b32 s{S_T}, s{S_W}, 8
              v_add_u32 v{self.TRL}, s{S_T}, v{self.TRL}""")

    def flag_set(self, s_off, loc, keep=0):
        self.k(f"""s_waitcnt vmcnt({keep})
                   s_barrier""")
        self.flag_store(s_off, loc)

    def flags_wait32(self, s_off, one=False, sleep=0):
        k = self.k
        L, D, F = k.newlabel("L_fw"), k.newlabel("L_fd"), k.newlabel("L_ff")
        if one:
            k(f"""s_cmp_lg_u32 s{S_W}, 0
                  s_cbranch_scc1 {D}""")
        k(f"""v_and_b32 v124, 31, v{V_LANE}
              v_lshlrev_b32 v124, 2, v124""")
        if sleep:
            k(f"s_branch {F}")
        k.label(L)
        if sleep:
            k(f"s_sleep {sleep}")
            k.label(F)
        k(f"buffer_load_dword v125, v124, {WS}, s{s_off} offen sc1")
        self.spend()
        k(f"""s_waitcnt vmcnt(0)
              v_cmp_eq_u32 vcc, 0, v125
              s_cbranch_vccnz {L}""")
        if one:
            k.label(D)
            k("s_barrier")

    def reduce32(self, s_base, natural):
        k = self.k
        D = 24; SEL = 56; A = 60
        for i in range(8):
            k(f"s_add_u32 s{S_T+7}, s{s_base}, {i*4096}")
            k(f"buffer_load_dwordx4 {vr(D+4*i,4)}, v{self.TRL}, {WS}, s{S_T+7} offen sc1")
        self.make_sel(SEL, 64)
        for i in range(8):
            k(f"s_waitcnt vmcnt({7-i})")
            k(f"v_mfma_f32_16x16x32_bf16 {vr(A,4)}, {vr(SEL,4)}, {vr(D+4*i,4)}, {'0' if i == 0 else vr(A,4)}")
        if natural:
            k(f"ds_write_b128 v{self.TRW}, {vr(A,4)}")
        else:
            k(f"ds_write2_b64 v{self.TRW}, {vr(A,2)}, {vr(A+2,2)} offset0:0 offset1:64")
        k(f"""s_waitcnt lgkmcnt(0)
              s_barrier""")

    def one_lane_store(self, v, s_off, fl):
        self.k(f"""s_mov_b64 exec, 1
                   buffer_store_dword v{v}, off, {WS}, s{s_off}{fl}
                   s_mov_b64 exec, -1""")

    def wmax_u32(self, x, t):
        k = self.k
        for r in (8, 4, 2, 1):
            k(f"v_max_u32_dpp v{x}, v{x}, v{x} row_ror:{r} row_mask:0xf bank_mask:0xf")
        k(f"""v_mov_b32 v{t}, v{x}
              v_permlane16_swap_b32 v{x}, v{t}
              v_max_u32 v{x}, v{x}, v{t}
              v_mov_b32 v{t}, v{x}
              v_permlane32_swap_b32 v{x}, v{t}
              v_max_u32 v{x}, v{x}, v{t}""")

    def load_gate_up(self):
        k = self.k
        k(f"""v_and_b32 v33, 15, v{V_LANE}
              v_lshrrev_b32 v34, 4, v{V_LANE}
              s_min_u32 s{S_T+4}, s{S_H}, 27
              s_lshl_b32 s{S_T+4}, s{S_T+4}, 7            ; 64 cols * 2B
              s_mul_i32 s{S_T+3}, s{S_W}, {128*3584}
              s_add_u32 s{S_T+4}, s{S_T+4}, s{S_T+3}
              v_mul_u32_u24 v36, {32*3584}, v34
              v_and_b32 v35, 7, v33
              v_lshl_add_u32 v36, v35, 4, v36
              v_add_u32 v36, s{S_T+4}, v36                ; byte offset inside gate / up
              v_cmp_gt_u32 vcc, 8, v33
              v_mov_b32 v38, s{P_WU}
              v_mov_b32 v39, s{P_WU+1}
              v_mov_b32 v40, s{P_WG}
              v_mov_b32 v41, s{P_WG+1}
              v_cndmask_b32 v38, v38, v40, vcc
              v_cndmask_b32 v39, v39, v41, vcc
              v_add_co_u32 v38, vcc, v38, v36
              v_addc_co_u32 v39, vcc, 0, v39, vcc
              s_lshl_b32 s{S_T}, s{S_W}, 15
              v_add_u32 v37, s{S_T}, v{V_L16}""")
        for half in range(2):
            for i in range(16):
                k(f"global_load_dwordx4 {vr(44+4*i,4)}, v[38:39], off")
                k(f"v_add_co_u32 v38, vcc, 3584, v38")
                k(f"v_addc_co_u32 v39, vcc, 0, v39, vcc")
            for i in range(16):
                k(f"s_waitcnt vmcnt({15-i})")
                k(f"ds_write_b128 v37, {vr(44+4*i,4)} offset:{(16*half+i)*1024}")
                if i % 8 == 7:
                    k("s_waitcnt lgkmcnt(0)")

    def moe_pre(self, layer):
        k = self.k
        LD, AF, MK = 24, 124, 12
        A1, A2, A3 = 9, 10, 11
        k(f"""v_and_b32 v{A1}, 15, v{V_LANE}
              v_lshrrev_b32 v{A2}, 4, v{V_LANE}
              v_and_b32 v{AF}, 1, v{V_LANE}
              v_lshlrev_b32 v{AF}, 4, v{AF}
              v_mov_b32 v{AF+1}, 0xffff
              v_lshlrev_b32 v{AF+1}, v{AF}, v{AF+1}
              v_lshrrev_b32 v{AF}, 2, v{A1}
              v_cmp_eq_u32 vcc, 0, v{AF}
              v_cndmask_b32 v{MK}, 0, v{AF+1}, vcc
              v_cmp_eq_u32 vcc, 1, v{AF}
              v_cndmask_b32 v{MK+1}, 0, v{AF+1}, vcc
              v_and_b32 v{AF}, 2, v{V_LANE}
              v_cmp_eq_u32 vcc, 0, v{AF}
              v_mov_b32 v{MK+2}, 0xeeee
              v_mov_b32 v{AF}, 0x4444
              v_cndmask_b32 v{MK+2}, v{MK+2}, v{AF}, vcc
              v_lshlrev_b32 v{A3}, 14, v{A2}
              v_lshl_add_u32 v{A3}, v{A1}, 4, v{A3}
              s_lshl_b32 s{S_T+9}, s{S_SEG}, 15
              s_add_u32 s{S_T+9}, s{S_T+9}, {MOE_OFF}
              s_lshl_b32 s{S_T+6}, s{S_H}, 10
              s_add_u32 s{S_T+6}, s{S_T+6}, s{S_T+9}
              s_lshl_b32 s{S_T+7}, s{S_H}, 16
              s_lshl_b32 s{S_T+4}, s{S_W}, 8
              s_add_u32 s{S_T+7}, s{S_T+7}, s{S_T+4}""")
        self.srd(P_WD, 1792 * 1024)
        out = []
        for i in range(16):
            out.append((f"s_add_u32 s{S_T+7}, s{S_T+7}, 4096\n" if i % 4 == 0 and i else "")
                       + f"buffer_load_dwordx4 {vr(LD+i*4,4)}, v{A3}, {SA}, s{S_T+7} offen offset:{(i%4)*1024}")
        if not self.loc:
            out.append(f"buffer_load_dword v{MK+3}, v{V_L16}, {WS}, s{S_T+6} offen")
        if layer:
            for x in out:
                k(x)
            for i in range(32):
                k(f"ds_read_b128 {ar(4*i,4)}, v{self.TWO} offset:{i*1024}")
        return out

    def moe(self, layer, sKEY):
        k = self.k
        sROW = S_T + 8
        LD = 24
        X, YP, TM = 96, 104, 108
        XB, AF, ACC, MK, G = 88, 124, 116, 12, 108
        A0, A1, A2 = 8, 9, 10
        k(f"""s_andn2_b32 s{sROW}, 0x7ff, s{sKEY}
              s_lshl_b32 s{S_T}, s{sROW}, 10
              s_add_u32 s{S_T+2}, s{S_T}, {X1_OFF[layer]}
              buffer_load_dwordx4 {vr(XB,4)}, v{V_L16}, {WS}, s{S_T+2} offen sc1""")
        dl = [] if layer else self.moe_pre(0)
        TAB = L_MOE
        k(f"""s_lshl_b32 s{S_T+1}, s{S_W}, 11
              s_add_u32 s{S_T+1}, s{S_T+1}, {TAB}
              v_add_u32 v{A0}, s{S_T+1}, v{V_L16}
              v_and_b32 v2, 1, v{A2}
              v_lshrrev_b32 v3, 1, v{A2}
              v_lshlrev_b32 v2, 7, v2
              v_lshl_add_u32 v2, v3, 10, v2
              s_lshl_b32 s{S_T+3}, s{S_W}, 8
              s_add_u32 s{S_T+3}, s{S_T+1}, s{S_T+3}
              v_add_u32 v2, s{S_T+3}, v2                    ; rows 128w + 64(g&1) + (g>>1) + 2n
              s_mov_b32 s{S_T+4}, 0x01000100
              s_mov_b32 s{S_T+5}, 0x03020302
              s_waitcnt vmcnt(0)""")
        if layer == 0:
            XL, XD = k.newlabel("L_mx"), k.newlabel("L_mxd")
            k.label(XL)
            k(f"""v_max3_u32 v{AF}, v{XB}, v{XB+1}, v{XB+2}
                  v_max_u32 v{AF}, v{XB+3}, v{AF}
                  v_cmp_eq_u32 vcc, -1, v{AF}
                  s_cbranch_vccz {XD}
                  buffer_load_dwordx4 {vr(XB,4)}, v{V_L16}, {WS}, s{S_T+2} offen sc1""")
            self.spend()
            k(f"""s_waitcnt vmcnt(0)
                  s_branch {XL}""")
            k.label(XD)
            for x in dl[:4]:
                k(x)
            dl = dl[4:]
        self.mark(44)
        self.unpack8(X, XB)
        self.layernorm(X, YP, TM)
        for q in range(4):
            k(f"v_perm_b32 v{XB+q}, v{YP+q}, v{YP+q}, s{S_T+4}")
        k(f"ds_write_b128 v{A0}, {vr(XB,4)}")
        for q in range(4):
            k(f"v_perm_b32 v{XB+4+q}, v{YP+q}, v{YP+q}, s{S_T+5}")
        k(f"""ds_write_b128 v{A0}, {vr(XB+4,4)} offset:1024
              s_mov_b32 s{S_T+2}, s{S_T+1}""")
        def diag(af, t0, t1):
            return [f"v_and_b32 v{af}, v{MK}, v{t0}", f"v_and_b32 v{af+1}, v{MK+1}, v{t0}",
                    f"v_and_b32 v{af+2}, v{MK}, v{t1}", f"v_and_b32 v{af+3}, v{MK+1}, v{t1}"]
        self.mark(45)
        if layer:
            TB_ = 128
            for b in range(4):
                k(f"ds_read_b128 {vr(TB_+4*b,4)}, v2 offset:{16*b}")
                k(f"ds_read_b128 {vr(TB_+16+4*b,4)}, v2 offset:{64+16*b}")
            k(f"""v_mov_b64 {vr(ACC,2)}, 0
                  v_mov_b64 {vr(ACC+2,2)}, 0
                  s_waitcnt lgkmcnt(6)""")
            for x in diag(120, TB_, TB_ + 16):
                k(x)
            for n in range(16):
                if n + 1 < 16:
                    if (n + 1) % 4 == 0:
                        k(f"s_waitcnt lgkmcnt({6 - 2*((n+1)//4)})")
                    nx = diag(120 + 4 * ((n + 1) & 1), TB_ + n + 1, TB_ + 17 + n)
                    k(nx[0]); k(nx[1])
                k(f"v_smfmac_f32_16x16x64_bf16 {vr(ACC,4)}, {vr(120+4*(n&1),4)}, {ar(8*n,8)}, v{MK+2}")
                if n + 1 < 16:
                    k(nx[2]); k(nx[3])
        else:
            ring = [G, LD + 40, LD + 48, LD + 56]
            gread = lambda n: [f"ds_read_b128 {vr(ring[n&3]+4*hf,4)}, v{self.TWO} offset:{(2*n+hf)*1024}" for hf in range(2)]
            tread = lambda b: [f"ds_read_b128 {vr(XB,4)}, v2 offset:{16*b}", f"ds_read_b128 {vr(XB+4,4)}, v2 offset:{64+16*b}"]
            lq = []
            def ld(xs):
                for x in xs:
                    k(x); lq.append(x)
            def lw(x):
                k(f"s_waitcnt lgkmcnt({min(15, len(lq) - 1 - max(i for i, y in enumerate(lq) if y == x))})")
            ld(tread(0) + gread(0) + gread(1) + gread(2) + gread(3))
            k(f"""v_mov_b64 {vr(ACC,2)}, 0
                  v_mov_b64 {vr(ACC+2,2)}, 0""")
            early, late = dl[:6] + dl[12:], dl[6:12]
            for n in range(16):
                if n % 4 == 0:
                    lw(tread(n // 4)[1])
                for x in diag(120 + 4 * (n & 1), XB + n % 4, XB + 4 + n % 4):
                    k(x)
                if n % 4 == 3 and n < 15:
                    ld(tread(n // 4 + 1))
                lw(gread(n)[1])
                k(f"v_smfmac_f32_16x16x64_bf16 {vr(ACC,4)}, {vr(120+4*(n&1),4)}, {vr(ring[n&3],8)}, v{MK+2}")
                if n + 4 < 16:
                    ld(gread(n + 4))
                if early:
                    k(early.pop(0))
                if n >= 13:
                    k(late.pop(0)); k(late.pop(0))
            assert not early and not late
        self.mark(46)
        RED = L_MOE + 8 * KB
        k(f"""v_lshlrev_b32 v{A0}, 5, v{A1}
              v_and_b32 v{AF}, 1, v{A2}
              v_lshl_add_u32 v{A0}, v{AF}, 4, v{A0}
              v_lshrrev_b32 v{AF}, 1, v{A2}
              v_lshl_add_u32 v{A0}, v{AF}, 11, v{A0}
              s_lshl_b32 s{S_T+4}, s{S_W}, 9
              s_add_u32 s{S_T+4}, s{S_T+4}, {RED}
              v_add_u32 v{A0}, s{S_T+4}, v{A0}
              ds_write_b128 v{A0}, {vr(ACC,4)}
              v_lshlrev_b32 v{A0}, 2, v{V_LANE}
              v_add_u32 v{A0}, {RED}, v{A0}
              v_and_b32 v2, 1, v{V_LANE}
              v_lshrrev_b32 v3, 1, v{V_LANE}
              v_lshlrev_b32 v3, 2, v3
              v_lshl_add_u32 v2, v2, 7, v3
              v_add_u32 v2, s{S_T+2}, v2
              v_lshlrev_b32 v3, 6, v{A2}
              v_add_u32 v3, s{S_T+2}, v3                    ; rows 32(g&1) + (g>>1) + 2n
              s_waitcnt lgkmcnt(0)
              s_barrier""")
        for w in range(4):
            k(f"ds_read2st64_b32 {vr(XB+2*w,2)}, v{A0} offset0:{2*w} offset1:{2*w+1}")
        k("s_waitcnt lgkmcnt(0)")
        k(f"""v_pk_add_f32 {vr(XB,2)}, {vr(XB,2)}, {vr(XB+2,2)}
              v_pk_add_f32 {vr(XB+4,2)}, {vr(XB+4,2)}, {vr(XB+6,2)}
              v_pk_add_f32 {vr(XB,2)}, {vr(XB,2)}, {vr(XB+4,2)}""")
        self.round1(XB)
        self.round1(XB + 1)
        k(f"""v_mul_f32 v{XB+2}, {f32(-math.log2(math.e))}, v{XB}
              v_exp_f32 v{XB+2}, v{XB+2}
              v_add_f32 v{XB+2}, 1.0, v{XB+2}
              v_rcp_f32 v{XB+2}, v{XB+2}
              v_mul_f32 v{XB}, v{XB}, v{XB+2}""")
        self.round1(XB)
        k(f"""v_mul_f32 v{XB}, v{XB}, v{XB+1}
              v_cvt_pk_bf16_f32 v{XB}, v{XB}, v{XB}
              ds_write_b32 v2, v{XB}
              ds_read_b128 {vr(XB,4)}, v3
              ds_read_b128 {vr(G,4)}, v3 offset:32
              ds_read_b128 {vr(XB+4,4)}, v3 offset:16
              ds_read_b128 {vr(G+4,4)}, v3 offset:48
              v_mov_b64 {vr(ACC,2)}, 0
              v_mov_b64 {vr(ACC+2,2)}, 0
              s_waitcnt vmcnt(0) lgkmcnt(0)""")
        for x in diag(120, XB, G):
            k(x)
        for n in range(8):
            if n + 1 < 8:
                nx = diag(120 + 4 * ((n + 1) & 1), XB + n + 1, G + n + 1)
                k(nx[0]); k(nx[1])
            k(f"v_smfmac_f32_16x16x64_bf16 {vr(ACC,4)}, {vr(120+4*(n&1),4)}, {vr(LD+8*n,8)}, v{MK+2}")
            if n + 1 < 8:
                k(nx[2]); k(nx[3])
        self.mark(47)
        k(f"""v_lshlrev_b32 v{A0}, 4, v{A1}
              v_and_b32 v{AF}, 1, v{A2}
              v_lshl_add_u32 v{A0}, v{AF}, 3, v{A0}
              v_and_b32 v{AF}, 2, v{A2}
              v_lshl_add_u32 v{A0}, v{AF}, 30, v{A0}
              s_lshl_b32 s{S_T+4}, s{S_W}, 8
              s_add_u32 s{S_T+3}, s{S_T+6}, s{S_T+4}
              v_cvt_pk_bf16_f32 v24, v{ACC}, v{ACC+1}
              v_cvt_pk_bf16_f32 v25, v{ACC+2}, v{ACC+3}
              buffer_store_dwordx2 v[24:25], v{A0}, {WS}, s{S_T+3} offen{self.loc}""")
        self.page(S_T + 3, F_M)
        self.flag_set(S_T + 3, self.loc)
        D = k.newlabel("L_moed")
        if layer == 1:
            k(f"""s_cmp_lg_u32 s{S_H}, 0
                  s_cbranch_scc1 {D}""")
        self.page(S_T + 3, F_M, head=False)
        self.flags_wait32(S_T + 3)
        self.mark(48)
        self.reduce32(S_T + 9, True)
        self.mark(49)
        k(f"""s_cmp_lg_u32 s{S_W}, 0
              s_cbranch_scc1 {D}""")
        A, PK, Y, TM = 24, 40, 48, 56
        k(f"""v_lshlrev_b32 v{TM}, 5, v{V_LANE}
              v_add_u32 v{TM}, {L_ROW}, v{TM}
              ds_read_b128 {vr(A,4)}, v{TM}
              ds_read_b128 {vr(A+4,4)}, v{TM} offset:16
              s_and_b32 s{S_T+3}, s{sKEY}, 0xffff0000
              s_xor_b32 s{S_T+4}, s{S_T+3}, 0x80000000
              s_xor_b32 s{S_T+5}, s{S_T+3}, 0xffff0000
              s_cmp_lt_i32 s{S_T+3}, 0
              s_cselect_b32 s{S_T+3}, s{S_T+4}, s{S_T+5}
              v_mov_b32 v{TM}, s{S_T+3}
              v_mul_f32 v{TM}, {f32(-math.log2(math.e))}, v{TM}
              v_exp_f32 v{TM}, v{TM}
              v_add_f32 v{TM}, 1.0, v{TM}
              v_rcp_f32 v{TM}, v{TM}""")
        self.round1(TM)
        self.unpack8(Y, YP)
        k("s_waitcnt lgkmcnt(0)")
        self.pack8(PK, A)
        self.unpack8(A, PK)
        for j in range(0, 8, 2):
            k(f"v_pk_mul_f32 {vr(A+j,2)}, {vr(A+j,2)}, {vr(TM,2)} op_sel_hi:[1,0]")
        self.pack8(PK, A)
        self.unpack8(A, PK)
        self.add8(A, Y)
        self.pack8(PK, A)
        self.unpack8(A, PK)
        self.add8(X, A)
        self.pack8(160 if layer else 80, X)
        if layer == 0:
            self.unpack8(X, 80)
            self.layernorm(X, 84, TM + 2)
            k(f"""s_lshl_b32 s{S_T+2}, s{S_SEG}, 10
                  s_add_u32 s{S_T+2}, s{S_T+2}, {X2P_OFF}
                  s_add_u32 s{S_T+3}, s{S_T+2}, {HPS_OFF - X2P_OFF}
                  s_cmp_eq_u32 s{S_H}, 0
                  s_cselect_b32 s{S_T+3}, s{S_T+3}, 0x80000000
                  s_add_u32 s{S_T+1}, s{S_T}, {HP_OFF}
                  buffer_store_dwordx4 v[84:87], v{V_L16}, {WS}, s{S_T+3} offen sc1
                  buffer_store_dwordx4 v[80:83], v{V_L16}, {WS}, s{S_T+2} offen sc1
                  buffer_store_dwordx4 v[84:87], v{V_L16}, {WS}, s{S_T+1} offen sc1""")
        k.label(D)

    def a_plan(self):
        o = self.opt
        n1, n2, up = o.get("n1", 4), o.get("n2", 5), o.get("up", 6)
        p0 = self.P0 = o.get("p0", 14)
        own = [list(range(0, p0, 2)), list(range(1, p0, 2)), list(range(p0 + n1 + n2, p0 + n1 + n2 + up))]
        pat = o.get("pat", (0, 1, 2))
        for i, x in enumerate(range(p0 + n1 + n2 + up, 64)):
            own[pat[i % len(pat)]].append(x)
        return n1, n2, up, [sum(1 << x for x in w) for w in own]

    def pop_next(self, dst, mask):
        self.k(f"""s_ff1_i32_b64 s{dst}, {sr(mask,2)}
                   s_bitset0_b64 {sr(mask,2)}, s{dst}
                   s_min_u32 s{dst}, s{dst}, 127""")

    def spec(self):
        o = self.opt
        return o.get("delta", 10), o.get("th", 28), o.get("kb", 5)

    def words_wait64(self, s_off, t, sleep):
        k = self.k
        L = k.newlabel("L_fp")
        k.label(L)
        k(f"""s_sleep {sleep}
              buffer_load_dword v{t+1}, v{t}, {WS}, s{s_off} offen sc1""")
        self.spend()
        k(f"""s_waitcnt vmcnt(0)
              v_cmp_eq_u32 vcc, 0, v{t+1}
              s_cbranch_vccnz {L}""")

    def todo_mask(self, sTODO, t):
        self.k(f"""v_cmp_le_u32 vcc, s{S_T+5}, v{V_LANE}
                   v_cndmask_b32 v{t}, 1, 2, vcc
                   v_cmp_ne_u32 {sr(sTODO,2)}, v{t}, v{t+1}""")

    def role_moe(self):
        k = self.k
        o = self.opt
        sMAX, sKEY = 54, 55
        self.proj_consts()
        _, _, UP, own = self.a_plan()
        JD, MINL, MAXL = o.get("jd", 2), o.get("minl", 15), o.get("maxl", 30)
        sNA, sSC = S_A, S_B
        sH, sN, sF, sDEBT, sOWN, sKA, sGR = S_T + 12, S_T + 14, S_T + 16, S_T + 17, S_T + 18, S_T + 20, S_T + 21
        sR, sPT, sALT, sFR, sPF = 84, 86, 87, 18, 19
        t = 20
        sQ = 22
        PR, NR = k.newlabel("L_mp"), k.newlabel("L_mr")
        L, AL, AL2, NF, NJ, FN, T1P, LK, P_, BC, WR_, L2, GOT, EN = (k.newlabel("L_mo") for _ in range(14))
        k(f"""s_mov_b32 s{sMAX}, 0
              s_mov_b32 s{sSC}, 0
              s_mov_b32 s{S_CNT}, {UP}
              s_mov_b32 s{sF}, 0x80000000
              s_mov_b32 s{sDEBT}, 0
              s_mov_b32 s{sGR}, -1
              s_mov_b32 s{sPT}, 0
              s_mov_b32 s{sPF}, 0
              s_mov_b32 s{sOWN}, {own[2] & 0xffffffff}
              s_mov_b32 s{sOWN+1}, {own[2] >> 32}
              v_and_b32 v23, 15, v{V_LANE}
              v_lshlrev_b32 v23, 3, v23
              v_lshrrev_b32 v16, 4, v{V_LANE}
              v_lshl_add_u32 v23, v16, 13, v23
              v_mov_b32 v19, {L_MISC}
              v_lshl_add_u32 v16, v16, 2, v19""")
        sBIG = 25
        for x in self.moe_pre(0)[:16]:
            k(x)
        self.srd(P_WR, 1024)
        k(f"""buffer_load_dwordx4 v[88:91], v{V_L16}, {SA}, 0 offen
              s_waitcnt vmcnt(0)""")
        self.unpack8(96, 88)
        k("v_mul_f32 v88, v96, v96")
        for j in range(1, 8):
            k(f"v_fma_f32 v88, v{96+j}, v{96+j}, v88")
        self.wsum(88, 89)
        k(f"""v_sqrt_f32 v88, v88
              v_mul_f32 v88, {f32(o.get("zbig", 2.8))}, v88
              v_readfirstlane_b32 s{sBIG}, v88
              s_bitset1_b32 s{sBIG}, 31""")
        kload = f"buffer_load_dwordx2 v[124:125], v23, {WS}, s{sKA} offen sc1"
        self.pop_next(sNA, sOWN)
        self.t1_src(sN, sNA, 0)
        k.label(AL)
        k(f"""s_cmp_lg_u32 s{sPF}, 0
              s_cbranch_scc1 {AL2}""")
        for x in self.t1_dma(sN, (0, 1, 2)):
            k(x)
        k(f"""s_mov_b32 s{sPF}, 1
              s_waitcnt vmcnt(0)""")
        k.label(AL2)
        k(f"""s_mov_b32 s{S_SEG}, s{sNA}
              s_mov_b64 {sr(sH,2)}, {sr(sN,2)}""")
        self.pop_next(sNA, sOWN)
        self.t1_src(sN, sNA, 0)
        self.page(sKA, F_RKM, seg=sSC, head=False)
        self.t1(0, sH, pre=8, s_flag=sF, nxt=self.t1_dma(sN, (0, 1, 2)) + [kload])
        self.ev(17)
        self.page(sF, F_KV[0])
        k(f"""s_sub_u32 s{S_CNT}, s{S_CNT}, 1
              s_cmp_gt_i32 s{S_CNT}, {o.get("upq", 3)}
              s_cbranch_scc1 {AL2}
              s_cmp_gt_i32 s{S_CNT}, 0
              s_cselect_b32 s{sALT}, 1, 3
              s_mov_b32 s{sFR}, 0
              s_waitcnt vmcnt(7)
              s_branch {LK}""")
        k.label(L)
        k(f"""s_mov_b32 s{sKEY}, s{sQ}
              s_mov_b32 s{sQ}, s{sQ+1}
              s_mov_b32 s{sQ+1}, s{sQ+2}
              s_mov_b32 s{sQ+2}, -1
              s_cmp_lg_u32 s{sKEY}, -1
              s_cbranch_scc1 {PR}
              s_sub_u32 s{S_T}, s{sNA}, s{sSC}
              s_cmp_gt_i32 s{sGR}, 0
              s_cselect_b32 s{S_T+1}, 6, {MINL}
              s_cmp_lg_u32 s{sPT}, 0
              s_cselect_b32 s{S_T+1}, {o.get("minl2", 9)}, s{S_T+1}
              s_cmp_lt_i32 s{S_T}, s{S_T+1}
              s_cbranch_scc1 {AL}
              s_cmp_lt_i32 s{S_T}, {MAXL}
              s_cselect_b32 s{sALT}, s{sFR}, 0
              s_cmp_ge_u32 s{sSC}, {o.get("tnow", 8)}
              s_cselect_b32 s{S_T}, 1, s{sFR}
              s_and_b32 s{S_T}, s{S_T}, s{sPT}
              s_cselect_b32 s{sALT}, 2, s{sALT}
              s_mul_i32 s{S_T}, s{sALT}, s{sFR}
              s_cmp_lg_u32 s{S_T}, 0
              s_cbranch_scc1 {FN}
              s_mov_b32 s{sFR}, 0
              s_lshr_b32 s{S_T}, s{sF}, 31
              s_or_b32 s{S_T}, s{S_T}, s{sALT}
              s_cbranch_scc1 {L2}""")
        self.flag_set(sF, " sc1")
        k(f"s_mov_b32 s{sF}, 0x80000000")
        k.label(L2)
        k(f"""s_cmp_lg_u32 s{S_W}, 0
              s_cbranch_scc1 {BC}""")
        self.page(sKA, F_RKM, seg=sSC, head=False)
        k.label(P_)
        k(kload)
        self.spend()
        k("s_waitcnt vmcnt(0)")
        k.label(LK)
        k(f"""v_min_u32 v123, v124, v125
              v_max_u32 v125, v124, v125
              v_cmp_eq_u32 vcc, 0, v123
              v_cndmask_b32 v125, v125, -1, vcc
              s_and_b32 s{S_T}, vcc_lo, 0xffff
              s_cbranch_scc0 {GOT}
              s_cmp_lg_u32 s{sALT}, 0
              s_cbranch_scc1 {GOT}
              s_mov_b32 s{sFR}, 1
              s_sleep {o.get("slm", 2)}
              s_branch {P_}""")
        k.label(GOT)
        for r in (8, 4, 2, 1):
            k(f"v_max_u32_dpp v125, v125, v125 row_ror:{r} row_mask:0xf bank_mask:0xf")
        k.label(BC)
        self.spend()
        k(f"""v_mov_b32 v124, s{sFR}
              s_barrier
              s_cmp_lg_u32 s{S_W}, 0
              s_cbranch_scc1 {WR_}
              ds_write_b32 v16, v125
              ds_write_b32 v19, v124 offset:16
              s_waitcnt lgkmcnt(0)""")
        k.label(WR_)
        k(f"""s_barrier
              ds_read_b128 v[120:123], v19
              ds_read_b32 v124, v19 offset:16
              s_waitcnt lgkmcnt(0)
              v_readfirstlane_b32 s{sKEY}, v120
              v_readfirstlane_b32 s{sQ}, v121
              v_readfirstlane_b32 s{sQ+1}, v122
              v_readfirstlane_b32 s{sQ+2}, v123
              v_readfirstlane_b32 s{sFR}, v124
              s_cmp_lg_u32 s{sKEY}, -1
              s_cbranch_scc1 {PR}
              {FN}:
              s_mov_b32 s{sQ}, -1
              s_cmp_eq_u32 s{sALT}, 1
              s_cbranch_scc1 {AL}
              s_cmp_eq_u32 s{sALT}, 2
              s_cbranch_scc1 {T1P}
              s_branch {L}""")
        k.label(PR)
        k(f"""s_mov_b32 s{S_CNT}, 0
              s_sub_u32 s{sDEBT}, s{sDEBT}, 1
              s_max_i32 s{sDEBT}, s{sDEBT}, 0
              s_sub_u32 s{sGR}, s{sGR}, 1
              s_min_u32 s{S_T+5}, s{sDEBT}, {LOOK}
              s_cmp_lt_u32 s{sSC}, {o.get("early", 5)}
              s_cselect_b32 s{S_T+4}, s{sBIG}, 0
              s_cmp_lt_u32 s{sKEY}, s{S_T+4}
              s_cselect_b32 s{S_T+5}, {LOOK}, s{S_T+5}
              s_cmp_le_u32 s{sKEY}, s{sMAX}
              s_cbranch_scc1 {NR}
              s_mov_b32 s{sGR}, s{S_T+5}
              s_mov_b32 s{sMAX}, s{sKEY}
              s_mov_b32 s{sPT}, 0
              s_or_b32 s{S_T+5}, s{S_H}, s{S_W}
              s_cbranch_scc1 {NR}
              v_mov_b32 v120, s{sMAX}
              v_lshlrev_b32 v121, 13, v{V_LANE}
              s_mov_b32 s{S_T+5}, {PG_OFF + F_RM}
              buffer_store_dword v120, v121, {WS}, s{S_T+5} offen sc1
              {NR}:
              s_cmp_lg_u32 s{sSC}, 63
              s_cbranch_scc1 {NF}
              s_min_i32 s{sGR}, s{sGR}, 0
              s_or_b32 s{S_T+5}, s{S_H}, s{S_W}
              s_cbranch_scc1 {NF}
              s_mov_b32 s{S_T+3}, {PG_OFF + 65*8192 + F_DEC}
              v_lshlrev_b32 v120, 2, v{V_LANE}""")
        self.words_wait64(S_T + 3, 120, 0)
        k(f"""s_andn2_b32 s{S_T+6}, 0x7ff, s{sMAX}
              v_lshl_or_b32 v121, s{S_T+6}, 8, v121""")
        for w in range(6):
            k(f"""s_add_u32 s{S_T+3}, s{S_T+3}, 8192
                  buffer_store_dword v121, v120, {WS}, s{S_T+3} offen sc1""")
        k.label(NF)
        k(f"""s_add_u32 s{sSC}, s{sSC}, 1
              s_cmp_gt_i32 s{sGR}, 0
              s_cmov_b32 s{sFR}, 0
              s_cbranch_scc1 {L}
              s_cmp_lg_u32 s{sGR}, 0
              s_cbranch_scc1 {NJ}""")
        k(f"""s_andn2_b32 s{S_SEG}, 0x7ff, s{sMAX}
              s_lshr_b32 s{S_SEG}, s{S_SEG}, 5
              s_add_u32 s{sDEBT}, s{sDEBT}, {JD}
              s_mov_b32 s{sPT}, 1
              s_mov_b32 s{sPF}, 0
              s_mov_b32 s{sFR}, 0
              s_waitcnt vmcnt(8)
              s_barrier""")
        self.ev(30)
        self.moe(0, sMAX)
        self.flush()
        self.ev(31)
        k("s_barrier")
        k.label(NJ)
        k(f"""s_mov_b32 s{sGR}, -1
              s_cmp_lt_u32 s{sSC}, 64
              s_cbranch_scc1 {L}
              s_cmp_eq_u32 s{sPT}, 0
              s_cbranch_scc1 {EN}""")
        k.label(T1P)
        k(f"""s_andn2_b32 s{S_SEG}, 0x7ff, s{sMAX}
              s_lshr_b32 s{S_SEG}, s{S_SEG}, 5
              s_andn2_b32 s{S_T}, 31, s{sMAX}
              v_lshrrev_b32 v2, 10, v{self.THD}
              v_add_u32 v3, 16, v2
              v_add_u32 v8, {HP_OFF - H_OFF[1]}, v{self.THD}
              v_cmp_eq_u32 vcc, s{S_T}, v2
              v_cndmask_b32 v2, v{self.THD}, v8, vcc
              v_cmp_eq_u32 vcc, s{S_T}, v3
              v_cndmask_b32 v3, v{self.THD}, v8, vcc
              s_waitcnt vmcnt(0)""")
        self.page(S_T + 3, F_HX, head=False)
        self.flags_wait32(S_T + 3, one=True, sleep=2)
        self.flag_store(sF, " sc1")
        self.t1_src(S_T + 10, S_SEG, 1)
        self.t1b(2, S_T + 10, voff=(2, 3), early=False)
        self.ev(32)
        for x in self.t1_dma(sN, (0, 1, 2)):
            k(x)
        self.page(S_T + 3, F_Q[2])
        self.flag_set(S_T + 3, " sc1")
        k(f"""s_mov_b32 s{sF}, 0x80000000
              s_mov_b32 s{sPT}, 0
              s_mov_b32 s{sPF}, 1
              s_mov_b32 s{sFR}, 0
              s_cmp_lt_u32 s{sSC}, 64
              s_cbranch_scc1 {L}""")
        k.label(EN)
        k(f"s_mov_b32 s{S_SEG}, 64")
        self.moe_pre(1)
        W = k.newlabel("L_mw")
        k(f"""s_and_b32 s{S_T+5}, s{sMAX}, 0x7ff
              s_sub_u32 s{S_T+5}, 2047, s{S_T+5}
              s_lshr_b32 s{S_T+5}, s{S_T+5}, 5""")
        k(f"""s_cmp_lg_u32 s{S_W}, 0
              s_cbranch_scc1 {W}
              s_mov_b32 s{S_T+3}, {PG_OFF + 65*8192 + F_DEC}
              v_lshlrev_b32 v2, 2, v{V_LANE}""")
        self.words_wait64(S_T + 3, 2, 2)
        self.todo_mask(sR, 2)
        k(f"""s_lshl_b32 s{S_T}, s{S_H}, 1
              s_lshr_b64 {sr(t,2)}, {sr(sR,2)}, s{S_T}
              v_lshrrev_b32 v2, 5, v{V_LANE}
              v_lshrrev_b32 v3, v2, s{t}
              v_and_b32 v3, 1, v3
              v_mul_u32_u24 v3, {F_RK[1] - F_RK[2]}, v3
              v_lshlrev_b32 v2, 13, v2
              v_sub_u32 v2, v2, v3
              v_and_b32 v3, 31, v{V_LANE}
              v_lshl_add_u32 v2, v3, 2, v2
              v_add_u32 v2, {F_RK[1]}, v2
              s_lshl_b32 s{S_T+3}, s{S_H}, 14
              s_add_u32 s{S_T+3}, s{S_T+3}, {PG_OFF}""")
        W0, AG, CK_, ST_, WV, EX = (k.newlabel("L_mf") for _ in range(6))
        k(f"""v_mov_b32 v3, 1
              s_cmp_ge_u32 s{S_H}, 28
              s_cbranch_scc1 {W0}""")
        self.words_wait64(S_T + 3, 2, 1)
        self.wmax_u32(3, 2)
        k.label(W0)
        self.page(S_T + 3, F_FIN)
        k(f"buffer_store_dword v3, off, {WS}, s{S_T+3}{self.loc}")
        k.label(W)
        k("s_barrier")
        self.page(S_T + 3, F_FIN, head=False)
        self.flags_wait32(S_T + 3, sleep=1)
        self.wmax_u32(125, 124)
        k(f"v_readfirstlane_b32 s{sKEY}, v125")
        k.label(AG)
        self.ev(33)
        self.moe(1, sKEY)
        self.flush()
        k(f"""s_or_b32 s{S_T+5}, s{S_H}, s{S_W}
              s_cselect_b32 s{S_T+5}, 1, 0
              s_add_u32 s{S_SEG}, s{S_SEG}, 1
              s_lshl1_add_u32 s{S_T+5}, s{S_SEG}, s{S_T+5}
              s_cmp_gt_u32 s{S_T+5}, 132
              s_cbranch_scc1 {EX}
              s_cmp_eq_u32 s{S_T+5}, 132
              s_cbranch_scc1 {ST_}""")
        for x in self.moe_pre(0):
            k(x)
        k(f"""s_cmp_eq_u32 s{S_T+5}, 131
              s_cbranch_scc1 {WV}
              v_lshrrev_b32 v2, 3, v{V_LANE}
              s_lshr_b32 s{t}, s{sR+1}, 24
              v_lshrrev_b32 v3, v2, s{t}
              v_and_b32 v3, 1, v3
              v_mul_u32_u24 v3, {F_RK[1] - F_RK[2]}, v3
              v_lshlrev_b32 v2, 13, v2
              v_sub_u32 v2, v2, v3
              v_and_b32 v3, 0x70, v{V_L16}
              v_add_u32 v2, v2, v3
              v_add_u32 v2, {F_RK[1]}, v2
              s_mov_b32 s{S_T+3}, {PG_OFF + 56*8192}""")
        k.label(CK_)
        k(f"buffer_load_dwordx4 v[164:167], v2, {WS}, s{S_T+3} offen sc1")
        self.spend()
        k(f"""s_waitcnt vmcnt(0)
              v_min3_u32 v168, v164, v165, v166
              v_min_u32 v168, v167, v168
              v_cmp_eq_u32 vcc, 0, v168
              s_cbranch_vccnz {CK_}
              v_max3_u32 v168, v164, v165, v166
              v_max3_u32 v168, v167, v168, s{sKEY}
              v_cmp_lt_u32 vcc, s{sKEY}, v168
              s_mov_b32 s{S_T+3}, {PG_OFF + 65*8192 + F_FIN}
              s_cbranch_vccz {ST_}""")
        self.wmax_u32(168, 169)
        k(f"""buffer_store_dword v168, off, {WS}, s{S_T+3}{self.loc}
              s_branch {WV}""")
        k.label(ST_)
        self.srd(P_OUT, 2048 * 1024)
        k(f"""buffer_store_dwordx4 v[160:163], v{V_L16}, {SA}, s{S_T} offen sc1
              v_mov_b32 v168, s{sKEY}
              s_mov_b32 s{S_T+3}, {PG_OFF + 65*8192 + F_FIN}
              buffer_store_dword v168, off, {WS}, s{S_T+3}{self.loc}""")
        self.ev(34)
        k("s_endpgm")
        k.label(WV)
        k(f"s_mov_b32 s{S_T+3}, {PG_OFF + 65*8192 + F_FIN}")
        self.word_wait(S_T + 3, S_T + 5, va=2, sleep=1)
        k(f"""s_cmp_eq_u32 s{S_T+5}, s{sKEY}
              s_cbranch_scc1 {EX}
              s_mov_b32 s{sKEY}, s{S_T+5}
              s_barrier
              s_branch {AG}""")
        k.label(EX)
        k("s_waitcnt vmcnt(0)")

    def role_proj(self):
        k = self.k
        self.LH = 64 * KB
        self.proj_consts()
        own = self.a_plan()[3]
        MAXL, MINL = self.opt.get("pmaxl", 44), self.opt.get("pminl", 12)
        sCUR, sNA = 54, 55
        sH, sN, sF, sOWN, sLB, sNB, sNXT = S_T + 10, S_T + 12, S_T + 14, S_T + 16, S_T + 18, S_T + 19, S_T + 20
        allq = (0, 1, 2, 3)
        FA, FV, VA_ = 23, 76, 19
        sPC_ = S_T + 21
        k(f"""s_sub_u32 s{sCUR}, s{S_G}, 4
              s_cmp_eq_u32 s{sCUR}, 0
              s_mov_b32 s{sOWN}, {own[1] & 0xffffffff}
              s_mov_b32 s{sOWN+1}, {own[1] >> 32}
              s_cmov_b32 s{sOWN}, {own[0] & 0xffffffff}
              s_cmov_b32 s{sOWN+1}, {own[0] >> 32}
              s_mov_b32 s{sF}, 0x80000000
              s_mov_b32 s{S_CNT}, {self.opt.get("pup", 7)}
              s_mov_b32 s{sLB}, s{S_LW}
              s_xor_b32 s{sNB}, s{sLB}, {32*KB}
              v_and_b32 v{FA}, 31, v{V_LANE}
              v_lshlrev_b32 v{FA}, 2, v{FA}
              v_mov_b32 v{VA_}, s{S_LW}
              v_mov_b32 v16, 0""")
        self.pop_next(sNA, sOWN)
        self.t1_src(sN, sNA, 0)
        for x in self.t1_dma(sN, allq, sb=sNB):
            k(x)
        k("""s_waitcnt vmcnt(0)
             s_barrier""")
        def peek():
            return (f"""s_lshl_b32 s{S_T}, s{sCUR}, 13
                        s_add_u32 s{S_T}, s{S_T}, {PG_OFF + F_HX}
                        s_or_b32 s{S_T}, s{S_T}, s{S_OOB}
                        buffer_load_dword v{FV}, v{FA}, {WS}, s{S_T} offen sc1""",
                    ["s_waitcnt vmcnt(0)", f"v_cmp_eq_u32 vcc, 0, v{FV}", f"v_mov_b32 v{FV}, vcc_lo", f"ds_write_b32 v{VA_}, v{FV}"],
                    f"ds_read_b32 v{FV}, v16")
        def choose(after_a):
            out = [f"v_readfirstlane_b32 s{S_T+1}, v{FV}",
                   f"s_sub_u32 s{S_T+3}, s{sNA}, s{sCUR}\ns_cmp_lt_i32 s{S_T+3}, {MAXL}\ns_cselect_b32 s{sNXT}, 2, 0"]
            if after_a:
                out.append(f"s_cmp_gt_i32 s{S_CNT}, 0\ns_cselect_b32 s{sNXT}, s{sNXT}, 0")
            out += [f"s_cmp_eq_u32 s{S_T+1}, 0\ns_cselect_b32 s{sNXT}, 1, s{sNXT}",
                    f"s_cmp_lt_i32 s{S_T+3}, {MINL}\ns_cselect_b32 s{sNXT}, 2, s{sNXT}\ns_add_u32 s{S_T+1}, s{sCUR}, {H_OFF[1] >> 15}",
                    f"s_cmp_eq_u32 s{sNXT}, 1\ns_cselect_b32 s{sN}, s{S_T+1}, s{sNA}\ns_lshl_b32 s{sN}, s{sN}, 15",
                    f"s_cmp_eq_u32 s{sNXT}, 0\ns_cselect_b32 s{sN}, 0x80000000, s{sN}\ns_add_u32 s{sN+1}, s{sN}, {16*KB}"]
            return out + self.t1_dma(sN, allq, sb=sNB)
        def flip():
            k(f"""s_mov_b32 s{sNB}, s{sLB}
                  s_xor_b32 s{sLB}, s{sLB}, {32*KB}""")
            for i in range(4):
                k(f"v_xor_b32 v{self.THR+i}, {32*KB}, v{self.THR+i}")
        LA_, LC, DSP, EN, W3, RDY = (k.newlabel("L_p") for _ in range(6))
        self.mk = 24
        k.label(LA_)
        flip()
        n0_ = len(k.lines)
        k(f"""s_mov_b32 s{S_SEG}, s{sNA}
              s_mov_b32 s{sPC_}, 0
              s_sub_u32 s{S_CNT}, s{S_CNT}, 1""")
        self.pop_next(sNA, sOWN)
        lead = k.lines[n0_:]; del k.lines[n0_:]
        self.t1b(0, None, landed=True, s_flag=sF, nxt=choose(True), early=False, peek=peek(), lead=lead)
        self.ev(17)
        self.page(sF, F_KV[0])
        k(f"""s_cmp_ge_u32 s{S_SEG}, 2
              s_cbranch_scc1 {DSP}""")
        self.flag_set(sF, " sc1")
        k.label(DSP)
        k(f"""s_cmp_eq_u32 s{sNXT}, 2
              s_cbranch_scc1 {LA_}
              s_mov_b32 s{S_CNT}, 0
              s_mov_b32 s{S_SEG}, s{sCUR}
              s_add_u32 s{sCUR}, s{sCUR}, 2
              s_cmp_eq_u32 s{sNXT}, 1
              s_cbranch_scc1 {LC}
              s_cmp_lg_u32 s{sPC_}, 0
              s_waitcnt vmcnt(3)
              s_cbranch_scc1 {W3}
              s_waitcnt vmcnt(2)
              {W3}:""")
        for x in peek()[1][1:]:
            k(x)
        self.t1_src(sH, S_SEG, 1)
        k(f"""s_waitcnt lgkmcnt(0)
              s_barrier
              {peek()[2]}
              s_waitcnt lgkmcnt(0)
              v_cmp_eq_u32 vcc, 0, v{FV}
              s_cbranch_vccnz {RDY}""")
        self.flag_set(sF, " sc1")
        k(f"""s_mov_b32 s{sF}, 0x80000000
              s_mov_b32 s{S_CNT}, 1
              s_cmp_ge_u32 s{S_SEG}, 64
              s_cbranch_scc1 {EN}""")
        self.page(S_T + 3, F_HX, head=False)
        self.flags_wait32(S_T + 3, one=True, sleep=self.opt.get("slp", 2))
        k.label(RDY)
        self.ev(13)
        self.t1b(1, sH, s_flag=sF, nxt=choose(self.opt.get("calm2", 1)), sb=sLB, peek=peek())
        k(f"s_mov_b32 s{sPC_}, 1")
        self.ev(14)
        self.page(sF, F_Q[1])
        k(f"s_branch {DSP}")
        k.label(LC)
        flip()
        self.t1b(1, None, landed=True, s_flag=sF, nxt=choose(self.opt.get("calm", 1)), peek=peek())
        k(f"s_mov_b32 s{sPC_}, 1")
        self.ev(16)
        self.page(sF, F_Q[1])
        k(f"s_branch {DSP}")
        k.label(EN)
        self.mk = 0
        self.LH = L_H

    def chain_helps(self):
        k = self.k
        n1, n2 = self.a_plan()[:2]
        sH, sN, sF = S_T + 12, S_T + 14, S_T + 16
        T = 120
        D, L = k.newlabel("L_chd"), k.newlabel("L_chl")
        self.THR, self.THD, self.TOB = 4, 20, 17
        k(f"""s_cmp_eq_u32 s{S_G}, 0
              s_cbranch_scc1 {D}
              v_and_b32 v{T}, 15, v{V_LANE}
              v_lshrrev_b32 v{T+1}, 4, v{V_LANE}
              v_mov_b32 v{self.TOB}, 1
              s_lshl_b32 s{S_T}, s{S_W}, 2
              v_add_u32 v{T+5}, s{S_T}, v{T+1}            ; row 4w+g
              v_xor_b32 v{T+6}, v{T+5}, v{T}
              v_lshlrev_b32 v{T+6}, 4, v{T+6}
              v_lshl_add_u32 v{self.THD}, v{T+5}, 10, v{T+6}""")
        for i in range(8):
            k(f"""s_lshl_b32 s{S_T}, s{S_W}, 1
                  s_xor_b32 s{S_T}, s{S_T}, {i}
                  s_and_b32 s{S_T+1}, s{S_T}, 3
                  s_lshl_b32 s{S_T+1}, s{S_T+1}, 2
                  s_lshr_b32 s{S_T}, s{S_T}, 2
                  s_lshl_b32 s{S_T}, s{S_T}, 13
                  s_add_u32 s{S_T}, s{S_T}, {L_H}
                  v_add_u32 v{T+5}, s{S_T+1}, v{T+1}
                  v_xor_b32 v{T+5}, v{T+5}, v{T}
                  v_lshlrev_b32 v{T+5}, 4, v{T+5}
                  v_lshl_add_u32 v{T+5}, v{T}, 8, v{T+5}
                  v_add_u32 v{self.THR+i}, s{S_T}, v{T+5}""")
        k(f"""s_cmp_eq_u32 s{S_G}, 1
              s_cselect_b32 s{S_SEG}, {self.P0}, {self.P0 + n1}
              s_cselect_b32 s{S_CNT}, {n1}, {n2}
              s_mov_b32 s{sF}, 0x80000000""")
        self.t1_src(sN, S_SEG, 0)
        for x in self.t1_dma(sN, (0, 1)):
            k(x)
        k("s_waitcnt vmcnt(0)")
        k.label(L)
        k(f"""s_mov_b64 {sr(sH,2)}, {sr(sN,2)}
              s_add_u32 s{sN}, s{sN}, {32*KB}
              s_add_u32 s{sN+1}, s{sN+1}, {32*KB}""")
        self.t1(0, sH, pre=7, s_flag=sF, nxt=self.t1_dma(sN, (0, 1)), rot=True)
        self.page(sF, F_KV[0])
        k(f"""s_add_u32 s{S_SEG}, s{S_SEG}, 1
              s_sub_u32 s{S_CNT}, s{S_CNT}, 1
              s_cmp_gt_u32 s{S_CNT}, 0
              s_cbranch_scc1 {L}""")
        self.flag_set(sF, " sc1")
        self.ev(18)
        k.label(D)

    def warm(self):
        k = self.k
        k(f"""s_and_b32 s{S_T}, s{S_G}, 1
              s_lshl_b32 s{S_T}, s{S_T}, 12
              s_add_u32 s{S_T}, s{S_T}, s{S_LW}
              s_and_b32 s{S_T+1}, s{S_H}, 15
              s_lshl_b32 s{S_T+1}, s{S_T+1}, 13
              s_add_u32 s{S_T}, s{S_T}, s{S_T+1}""")
        n = 0
        for ptr in (P_WK, P_WV, P_WQ):
            self.srd(ptr, 4 * MB)
            for i in range(32):
                if n >= self.opt.get("wdepth", 10):
                    k(f"s_waitcnt vmcnt({self.opt.get('wdepth', 10) - 1})")
                k(f"""s_add_u32 s{S_T+1}, s{S_T}, {i*16*8192}
                      buffer_load_dwordx4 v[24:27], v{V_L16}, {SA}, s{S_T+1} offen""")
                n += 1
                if n == self.opt.get("wdepth", 10) + 1:
                    self.arrive()

    def load_wo2(self):
        k = self.k
        self.srd(P_WO, 4 * MB)
        k(f"""v_and_b32 v2, 15, v{V_LANE}
              v_lshlrev_b32 v2, 4, v2
              v_lshrrev_b32 v3, 4, v{V_LANE}
              v_lshl_add_u32 v2, v3, 13, v2
              s_and_b32 s{S_T}, s{S_H}, 15
              s_lshl_b32 s{S_T}, s{S_T}, 18
              s_lshl_b32 s{S_T+1}, s{S_W}, 8
              s_add_u32 s{S_T}, s{S_T}, s{S_T+1}
              s_mov_b32 s{S_T+5}, 0x05040100
              s_mov_b32 s{S_T+6}, 0x07060302""")
        NB = 6
        def issue(g):
            b = 24 + (g % NB) * 32
            for j in range(8):
                if j % 4 == 0:
                    k(f"s_add_u32 s{S_T+1}, s{S_T}, {(32*g+j)*1024}")
                k(f"buffer_load_dwordx4 {vr(b+4*j,4)}, v2, {SA}, s{S_T+1} offen offset:{(j%4)*1024}")
        for g in range(NB):
            issue(g)
        for g in range(8):
            b = 24 + (g % NB) * 32
            k(f"s_waitcnt vmcnt({min(7-g, NB-1)*8})")
            for t in range(8):
                for q in range(4):
                    k(f"v_perm_b32 v{216+q}, v{b+4*(2*q+1)+(t>>1)}, v{b+4*(2*q)+(t>>1)}, s{S_T+5+(t&1)}")
                for q in range(4):
                    k(f"v_accvgpr_write_b32 a{(g*8+t)*4+q}, v{216+q}")
            if g + NB < 8:
                issue(g + NB)
            if g == 0:
                self.arrive()

    def role_att(self, steady):
        k = self.k
        opt = self.opt
        DL, TH, KB_ = self.spec()
        NW = 6
        over = self.loc == "" and opt.get("over", 1)
        PTX = 0 if opt.get("pt1") else 512 * KB
        sWK, sSEL = 54, 55
        sCNT, sBUF, sHD, sPT, sNQ, sNK, sLATE, sDF, sCUR, sMAXK, sFM, sNX = (S_T + i for i in range(10, 22))
        sTODO, sKO, sCW, sX = 84, 86, 87, S_A
        R_, sPS, sMODE, sST, sRB = 18, 26, 27, 32, 34
        sBN, sD, sVB, sHAD = 35, 36, 37, 38
        sLAG = 42
        gmask = sum(1 << x for x in range(DL, 64) if x >> 2 not in opt.get("dskip", ()))
        DEC = PG_OFF + 65 * 8192 + F_DEC
        OUT = DBG
        OX, ROWS = 128 * KB, 144 * KB
        RK, OW_, OB_, PT_, RW_, RL_ = 2, 3, 4, 5, 6, 7
        TX0, TX1 = 8, 12
        L4, FL, ST, SA_, DF, KA = 16, 17, 18, 19, 20, 21
        Q, KK, F, V, VM, S = 24, 40, 72, 88, 120, 128
        P, Lr, ONES, SEL, O = 140, 148, 152, 156, 24
        B, ACC, PK = 24, 160, 24
        XI, WR, KEY, TT = 224, 228, 236, 238
        CN, RR_, GK, VR, VW, VT, VO, KR = 22, 23, 246, 245, 247, 248, 253, 254
        KY = 242
        VOTE = ROWS + 8 * KB
        T = TT
        self.make_sel(SEL, TT)
        self.srd(P_WR, 1024)
        k(f"""buffer_load_dwordx4 {vr(XI,4)}, v{V_L16}, {SA}, 0 offen
              v_and_b32 v{T}, 15, v{V_LANE}
              v_lshrrev_b32 v{T+1}, 4, v{V_LANE}
              v_lshlrev_b32 v{T+2}, 2, v{T+1}
              v_mov_b32 v{T+3}, {NEGBIG}
              s_and_b32 s{S_T}, s{S_W}, 1
              s_lshl_b32 s{S_T}, s{S_T}, 4
              v_add_u32 v{T+4}, s{S_T}, v{T}""")
        for u in range(2):
            for r in range(4):
                k(f"v_add_u32 v{T+5}, {16*u+r}, v{T+2}")
                k(f"v_cmp_gt_u32 vcc, v{T+5}, v{T+4}")
                k(f"v_cndmask_b32 v{(TX0,TX1)[u]+r}, 0, v{T+3}, vcc")
        CV = ONES
        k(f"""v_mov_b32 v{CV}, s{S_C}
              v_mov_b32 v{P+5}, 0
              v_mov_b32 v{P+6}, 0
              s_lshl_b32 s{S_T}, s{S_W}, 12
              s_add_u32 s{S_T}, s{S_T}, {OX}
              v_add_u32 v{OW_}, s{S_T}, v{V_L16}
              v_add_u32 v{OB_}, {OX}, v{V_L16}
              s_lshl_b32 s{S_T}, s{S_W}, 8
              v_lshlrev_b32 v{RL_}, 4, v{T}
              v_add_u32 v{RL_}, s{S_T}, v{RL_}
              v_lshl_add_u32 v{PT_}, v{T+1}, 16, v{RL_}
              v_lshlrev_b32 v{RW_}, 1, v{RL_}
              v_lshl_add_u32 v{RL_}, v{T+1}, 10, v{RL_}
              v_and_b32 v{T+5}, 1, v{T+1}
              v_lshl_add_u32 v{RW_}, v{T+5}, 4, v{RW_}
              v_lshrrev_b32 v{T+5}, 1, v{T+1}
              v_lshl_add_u32 v{RW_}, v{T+5}, 12, v{RW_}
              v_add_u32 v{RW_}, {ROWS}, v{RW_}
              v_lshlrev_b32 v{L4}, 2, v{V_LANE}
              v_lshlrev_b32 v{KA}, 3, v{T}
              s_and_b32 s{sHD}, s{S_H}, 15
              s_lshl_b32 s{S_T}, s{sHD}, 10
              v_add_u32 v{PT_}, s{S_T}, v{PT_}
              s_lshl_b32 s{S_T}, s{sHD}, 15
              v_add_u32 v{RL_}, s{S_T}, v{RL_}
              s_lshl_b32 s{sPT}, s{sWK}, 20
              s_add_u32 s{sPT}, s{sPT}, {PT_OFF}
              s_lshl_b32 s{sCW}, s{sWK}, 13
              s_add_u32 s{sCW}, s{sCW}, {PG_OFF + F_CW}
              s_lshl4_add_u32 s{sCUR}, s{sHD}, s{sCW}
              s_lshl2_add_u32 s{sCUR}, s{S_W}, s{sCUR}
              s_lshl_b32 s{sHD}, s{sHD}, 1
              s_lshr_b32 s{S_T}, s{S_W}, 1
              s_add_u32 s{sHD}, s{sHD}, s{S_T}
              s_mov_b32 s{sCNT}, 0
              s_mov_b32 s{sBUF}, 0
              s_mov_b32 s{sDF}, 0x80000000
              s_mov_b32 s{sMAXK}, 0
              s_mov_b32 s{sVB}, 0
              s_mov_b32 s{sLAG}, {gmask & 0xffffffff}
              s_mov_b32 s{sLAG+1}, {gmask >> 32}
              s_mov_b64 {sr(sHAD,2)}, 0
              s_sub_u32 s{sD}, s{sWK}, {2 + DL}
              s_and_b32 s{sD}, s{sD}, 3
              s_mov_b32 s{SRD_DBG}, s{P_OUT}
              s_mov_b32 s{SRD_DBG+1}, s{P_OUT+1}
              s_mov_b32 s{SRD_DBG+2}, {2048*1024}
              s_mov_b32 s{SRD_DBG+3}, 0x20000
              v_add_u32 v{KA}, {PG_OFF + F_RK[0]}, v{KA}
              v_mov_b32 v{KY+2}, v{KA}
              s_and_b32 s{S_T}, s{S_LW}, 2048
              s_add_u32 s{S_T}, s{S_T}, {ROWS}
              v_lshlrev_b32 v{RR_}, 5, v{V_LANE}
              v_add_u32 v{RR_}, s{S_T}, v{RR_}
              v_and_b32 v{VO}, 32, v{V_L16}
              v_lshrrev_b32 v{VR}, 2, v{VO}
              v_add_u32 v{VO}, v{VO}, v{VR}
              v_sub_u32 v{VO}, v{V_L16}, v{VO}
              v_add_u32 v{VO}, 8, v{VO}                     ; v_m of a lane: (lane & ~2)*16 + (lane & 2 ? 0 : 8)
              v_mov_b32 v{KR}, 0x80000000
              s_mov_b32 s{S_T}, {F_RK[0]}
              v_writelane_b32 v{KR}, s{S_T}, 0
              s_mov_b32 s{S_T}, {F_RKU}
              v_writelane_b32 v{KR}, s{S_T}, 1
              s_mov_b32 s{S_T}, {F_RKM}
              v_writelane_b32 v{KR}, s{S_T}, 2
              v_mov_b32 v{VR}, {VOTE}
              s_lshl_b32 s{S_T}, s{S_W}, 2
              v_add_u32 v{VW}, s{S_T}, v{VR}
              s_waitcnt vmcnt(0)""")
        self.unpack8(WR, XI)
        TH_ = 255
        k(f"v_mul_f32 v{TH_}, v{WR}, v{WR}")
        for j in range(1, 8):
            k(f"v_fma_f32 v{TH_}, v{WR+j}, v{WR+j}, v{TH_}")
        self.wsum(TH_, TT)
        k(f"""v_sqrt_f32 v{TH_}, v{TH_}
              v_sub_u32 v{TT}, {63 + KB_}, v{V_LANE}
              v_cvt_f32_u32 v{TT}, v{TT}
              v_log_f32 v{TT}, v{TT}
              v_mov_b32 v{TT+1}, {f32(opt.get("za", 1.95))}
              v_fmac_f32 v{TT+1}, {f32(opt.get("zb", 0.32) * math.log(2))}, v{TT}
              v_mul_f32 v{TH_}, v{TH_}, v{TT+1}
              v_or_b32 v{TH_}, 0x80000000, v{TH_}""")

        def capture(fn, *a):
            n0 = len(k.lines); fn(*a); out = k.lines[n0:]; del k.lines[n0:]; return out
        def hpage(dst, off, seg):
            k(f"""s_lshl_b32 s{dst}, s{seg}, 13
                  s_lshl2_add_u32 s{dst}, s{sHD}, s{dst}
                  s_add_u32 s{dst}, s{dst}, {PG_OFF + off}""")
        def spin(v, reload, cmp):
            A_, B_ = k.newlabel("L_aw"), k.newlabel("L_awd")
            k.label(A_)
            k(f"""{cmp}
                  s_cbranch_vccz {B_}
                  {reload}""")
            self.spend()
            k(f"""s_waitcnt vmcnt(0)
                  s_branch {A_}""")
            k.label(B_)
        GL = " glc" if opt.get("glc") else ""
        stubs = []
        st_load = f"buffer_load_dword v{ST}, v{SA_}, {WS}, 0 offen sc1"
        def plan_next(layer, s_rec=None, vec=False):
            out = capture(plan_next_, layer, s_rec)
            for x in out:
                if not (vec and x.startswith("s_buffer_load")):
                    k(x)
        def plan_next_(layer, s_rec):
            k(f"""s_lshl_b32 s{S_T}, s{sNX}, 5
                  s_add_u32 s{S_T}, s{S_T}, s{sHD}
                  s_mul_i32 s{sNQ}, s{S_T}, {24*KB}
                  s_lshl_b32 s{sNK}, s{S_T}, 12""")
            if layer == 0:
                hpage(S_T + 3, F_Q[0], sNX)
                k(f"""s_buffer_load_dword s{sST}, {WS}, s{S_T+3}{GL}
                      s_mov_b32 s{sST+1}, 1
                      s_add_u32 s{sNQ}, s{sNQ}, {QKV_OFF[0]}
                      s_add_u32 s{sNK}, s{sNK}, {KVM_OFF[0]}
                      v_mov_b32 v{SA_}, s{S_T+3}""")
            else:
                hpage(S_T + 3, F_Q[1], sNX)
                k(f"""s_cmp_lt_u32 s{sNX}, s{s_rec}
                      s_cselect_b32 s{S_T+1}, 0, {KVM_OFF[2] - KVM_OFF[1]}
                      s_mov_b32 s{S_T+4}, s{S_T+3}
                      s_buffer_load_dword s{sST+1}, {WS}, s{S_T+4}{GL}
                      s_add_u32 s{sNK}, s{sNK}, s{S_T+1}
                      s_add_u32 s{sNK}, s{sNK}, {KVM_OFF[1]}
                      s_cmp_eq_u32 s{sNX}, s{s_rec}
                      s_cselect_b32 s{S_T+1}, {QKV_OFF[2] - QKV_OFF[1]}, 0
                      s_cselect_b32 s{S_T+2}, {F_Q[2] - F_Q[1]}, 0
                      s_add_u32 s{S_T+3}, s{S_T+3}, s{S_T+2}
                      s_buffer_load_dword s{sST}, {WS}, s{S_T+3}{GL}
                      s_add_u32 s{sNQ}, s{sNQ}, s{S_T+1}
                      s_add_u32 s{sNQ}, s{sNQ}, {QKV_OFF[1]}
                      v_mov_b32 v{SA_}, s{S_T+3}
                      v_writelane_b32 v{SA_}, s{S_T+4}, 1""")
        NT = " nt" if opt.get("nt") else ""
        LP = opt.get("lp", "sc1")
        def fetch_ops(q, kv):
            out = [f"s_and_b32 s{S_T+1}, s{S_W}, 1", f"s_mul_i32 s{S_T+2}, s{S_T+1}, {12*KB}",
                   f"s_add_u32 s{q}, s{q}, s{S_T+2}", f"s_lshl_b32 s{S_T+1}, s{S_T+1}, 11", f"s_add_u32 s{kv}, s{kv}, s{S_T+1}",
                   f"s_and_b32 s{S_T+3}, s{S_LW}, 2048", f"s_lshl_b32 s{S_T+3}, s{S_T+3}, 4",
                   f"s_xor_b32 s{S_T+4}, s{sBUF}, {64*KB}", f"s_add_u32 s{S_T+3}, s{S_T+3}, s{S_T+4}",
                   f"s_add_u32 s{S_T+2}, s{S_T+2}, s{S_T+3}", f"s_add_u32 s{S_T+1}, s{S_T+1}, s{S_T+3}"]
            for i in range(3):
                out.append(f"s_add_u32 m0, s{S_T+2}, {i*4096}")
                if i:
                    out.append(f"s_add_u32 s{q}, s{q}, 4096")
                out += [f"buffer_load_dwordx4 v{V_L16}, {WS}, s{q} offen offset:{c*1024} sc1{NT} lds" for c in range(4)]
            out.append(f"s_add_u32 m0, s{S_T+1}, {24*KB}")
            out += [f"buffer_load_dwordx4 v{V_L16}, {WS}, s{kv} offen offset:{c*1024} {LP} lds" for c in range(2)]
            return out
        sLAY, sNS = S_B, S_CNT
        pub = [f"buffer_store_dword v{DF}, off, {WS}, s{sDF} sc1", f"s_mov_b32 s{sDF}, 0x80000000"]
        def flush_pub():
            k("s_waitcnt vmcnt(0)")
            for x in pub:
                k(x)
        def look():
            for kk in range(4):
                k(f"buffer_load_dwordx4 {vr(F+4*kk,4)}, v{V_L16}, {WS}, s{sFM} offen offset:{kk*1024} {LP}")
            for i in range(4):
                k(f"buffer_load_dwordx2 {vr(VM+2*i,2)}, v{VO}, {WS}, s{sFM} offen offset:{i*1024} {LP}")
        key_load = f"buffer_load_dwordx2 {vr(KY,2)}, v{KY+2}, {WS}, 0 offen sc1"
        def keys_issue(t):
            k(f"""v_lshrrev_b32 v{KY+2}, 4, v{V_LANE}
                  s_sub_u32 s{t}, s{sNX}, {KB_ + 3}
                  v_add_u32 v{KY+2}, s{t}, v{KY+2}
                  v_max_i32 v{KY+2}, 0, v{KY+2}
                  v_lshl_add_u32 v{KY+2}, v{KY+2}, 13, v{KA}
                  {key_load}""")
        def fcheck():
            out = []
            for kk in range(4):
                f = F + 4 * kk
                out.append(f"v_max3_u32 v{TT}, v{f}, v{f+1}, v{TT if kk else f+2}")
                out.append(f"v_max3_u32 v{TT}, v{f+2}, v{f+3}, v{TT}")
            return out
        def vcheck():
            for i in range(4):
                k(f"v_max3_u32 v{TT}, v{VM+2*i}, v{VM+2*i+1}, v{TT}")
            k(f"v_cmp_eq_u32 vcc, -1, v{TT}")
        def check(w, n=1):
            fc = fcheck()
            for kk in range(4):
                if w:
                    k(f"s_waitcnt vmcnt({7+n-kk})")
                k(f"v_mfma_f32_16x16x32_bf16 {vr(S+8,4)}, {vr(F+4*kk,4)}, {vr(Q+4*kk,4)}, {'0' if kk == 0 else vr(S+8,4)}")
                k(fc.pop(0)); k(fc.pop(0))
            if w:
                k(f"s_waitcnt vmcnt({n})")
            vcheck()
        def chain_wait(cond):
            A_, B_ = k.newlabel("L_ac"), k.newlabel("L_acb")
            k(f"s_cbranch_{cond} {A_}")
            k.label(B_)
            def stub():
                k.label(A_)
                for x in pub:
                    k(x)
                look()
                self.spend()
                check(True, 0)
                k(f"""s_cbranch_vccnz {A_}
                      s_branch {B_}""")
            stubs.append(stub)
        def pre(direct=False):
            k(f"""s_xor_b32 s{sBUF}, s{sBUF}, {64*KB}
                  s_and_b32 s{S_T}, s{S_LW}, 2048
                  s_lshl_b32 s{S_T}, s{S_T}, 4
                  s_add_u32 s{S_T}, s{S_T}, s{sBUF}
                  v_add_u32 v{RK}, s{S_T}, v{V_L16}
                  v_add_u32 v{TT+1}, s{S_T}, v{VO}
                  s_and_b32 s{S_T}, s{S_LW}, 1024
                  s_lshl_b32 s{S_T}, s{S_T}, 2
                  v_add_u32 v{TT}, s{S_T}, v{RK}
                  s_mov_b32 s{sFM}, s{sNK}
                  s_mov_b32 s{sNS}, s{sNX}""")
            for kk in range(4):
                k(f"ds_read_b128 {vr(Q+4*kk,4)}, v{TT} offset:{16*KB + kk*1024}")
                k(f"ds_read_b128 {vr(KK+4*kk,4)}, v{RK} offset:{kk*1024}")
                k(f"ds_read_b128 {vr(KK+16+4*kk,4)}, v{RK} offset:{4096 + kk*1024}")
            late = [f"ds_read_b128 {vr(F+4*i,4)}, v{RK} offset:{24*KB + i*1024}" for i in range(4)]
            late += [f"ds_read_b64 {vr(VM+2*i,2)}, v{TT+1} offset:{24*KB + i*1024}" for i in range(4)]
            if direct:
                late = []
                look()
            late += [f"ds_read_b128 {vr(V+4*i,4)}, v{RK} offset:{8*KB + i*1024}" for i in range(8)]
            for kk in range(4):
                k(f"s_waitcnt lgkmcnt({9 - 3*kk + 2*kk})")
                q = vr(Q + 4 * kk, 4)
                k(f"v_mfma_f32_16x16x32_bf16 {vr(S,4)}, {vr(KK+4*kk,4)}, {q}, {vr(TX0,4) if kk == 0 else vr(S,4)}")
                k(late.pop(0))
                k(f"v_mfma_f32_16x16x32_bf16 {vr(S+4,4)}, {vr(KK+16+4*kk,4)}, {q}, {vr(TX1,4) if kk == 0 else vr(S+4,4)}")
                k(late.pop(0))
            if direct:
                return
            k("s_waitcnt lgkmcnt(4)")
            for kk in range(4):
                k(f"v_mfma_f32_16x16x32_bf16 {vr(S+8,4)}, {vr(F+4*kk,4)}, {vr(Q+4*kk,4)}, {'0' if kk == 0 else vr(S+8,4)}")
                k(late.pop(0)); k(late.pop(0))
        poll = f"buffer_load_dword v{FL}, v{L4}, {WS}, s{sCW} offen sc1"
        pcmp = f"v_cmp_gt_u32 vcc, s{sCNT}, v{FL}"
        def rloads(RD):
            out = [f"s_xor_b32 s{sRB}, s{sPT}, {PTX}"]
            for i in range(8):
                if i:
                    out.append(f"s_add_u32 s{sRB}, s{sRB}, 4096")
                out.append(f"buffer_load_dwordx4 {vr(RD+4*i,4)}, v{RL_}, {WS}, s{sRB} offen sc1")
            return out
        RD2 = 192
        def skip_test(t):
            return [f"s_bfe_u32 s{S_T}, s{sCNT}, 0x10002", f"v_lshrrev_b32 v{t}, s{S_T}, v{FL}", f"v_and_b32 v{t}, 1, v{t}",
                    f"v_cmp_ne_u32 vcc, 0, v{t}"]
        def post(fetch=False, tail=None, skip=None):
            t = TT
            pk = lambda op, i, o, m="": f"v_pk_{op}_f32 {vr(S+i,2)}, {vr(S+i,2)}, {vr(o,2)} op_sel_hi:[1,0]{m}"
            pa = opt.get("pollat", 1)
            k(f"""{poll if fetch and pa == 0 else ""}
                  v_max3_f32 v{t}, v{S}, v{S+1}, v{S+2}
                  v_max3_f32 v{t+1}, v{S+3}, v{S+4}, v{S+5}
                  v_max3_f32 v{t}, v{S+6}, v{S+7}, v{t}
                  v_max3_f32 v{t+1}, v{S+10}, v{S+11}, v{t+1}
                  v_max_f32 v{t}, v{t}, v{t+1}
                  v_max_f32 v{t+1}, v{t}, v{t+1}
                  {pk("mul", 0, CV)}
                  {pk("mul", 2, CV)}
                  v_permlane16_swap_b32 v{t}, v{t+1}
                  v_max_f32 v{t}, v{t}, v{t+1}
                  v_max_f32 v{t+1}, v{t}, v{t+1}
                  {pk("mul", 4, CV)}
                  {pk("mul", 6, CV)}
                  v_permlane32_swap_b32 v{t}, v{t+1}
                  v_max_f32 v{t}, v{t}, v{t+1}
                  v_mul_f32 v{t}, v{CV}, v{t}
                  {pk("mul", 10, CV)}
                  {poll if fetch and pa == 1 else ""}""")
            for i in (0, 2, 4, 6, 10):
                k(pk("add", i, t, " neg_lo:[0,1] neg_hi:[0,1]"))
            for i in (0, 1, 2, 3, 4, 5, 6, 7, 10, 11):
                k(f"v_exp_f32 v{S+i}, v{S+i}")
            k(f"""{poll if fetch and pa == 2 else ""}
                  v_pk_add_f32 {vr(Lr,2)}, {vr(S,2)}, {vr(S+2,2)}
                  v_pk_add_f32 {vr(Lr+2,2)}, {vr(S+4,2)}, {vr(S+6,2)}
                  v_pk_add_f32 {vr(Lr,2)}, {vr(Lr,2)}, {vr(S+10,2)}
                  v_pk_add_f32 {vr(Lr,2)}, {vr(Lr,2)}, {vr(Lr+2,2)}
                  v_add_f32 v{Lr+2}, v{Lr}, v{Lr+1}
                  v_add_f32 v{Lr+3}, v{Lr}, v{Lr+1}
                  v_permlane16_swap_b32 v{Lr+2}, v{Lr+3}
                  v_add_f32 v{Lr}, v{Lr+2}, v{Lr+3}
                  v_add_f32 v{Lr+1}, v{Lr+2}, v{Lr+3}
                  v_permlane32_swap_b32 v{Lr}, v{Lr+1}
                  v_add_f32 v{Lr}, v{Lr}, v{Lr+1}
                  v_rcp_f32 v{Lr}, v{Lr}""")
            nrm = [pk("mul", i, Lr) for i in (10, 0, 2, 4, 6)]
            nrm += [f"v_cvt_pk_bf16_f32 v{P+4}, v{S+10}, v{S+11}", f"v_cvt_pk_bf16_f32 v{P+7}, v{S+10}, v{S+11}"]
            cvp = [f"v_cvt_pk_bf16_f32 v{P+q}, v{S+2*q}, v{S+2*q+1}" for q in range(4)]
            rl = []
            if fetch:
                RT_, BK = k.newlabel("L_ap"), k.newlabel("L_apb")
                k(f"""s_waitcnt vmcnt(0)
                      {pcmp}""")
                for x in nrm[:5]:
                    k(x)
                nrm = nrm[5:]
                k(f"s_cbranch_vccnz {RT_}")
                k.label(BK)
                def stub():
                    k.label(RT_)
                    spin(FL, poll, pcmp)
                    k(f"s_branch {BK}")
                stubs.append(stub)
                self.mark(37)
                rl = rloads(RD2)
                k(rl.pop(0)); k(rl.pop(0))
                if skip:
                    for x in skip_test(TT) + nrm + cvp:
                        k(x)
                    nrm = []; cvp = []
                    k(f"""s_cbranch_vccnz {skip}
                          s_add_u32 s{sD}, s{sD}, 4""")
            for x in nrm:
                k(x)
            fin = lambda i: [f"v_cvt_pk_bf16_f32 v{F+4*i+r}, v{O+8*i+r}, v{O+8*i+4+r}" for r in range(4)]
            owr = lambda i: f"ds_write_b128 v{OW_}, {vr(F+4*i,4)} offset:{i*1024}"
            for i in range(8):
                k(f"v_mfma_f32_16x16x16_bf16 {vr(O+4*i,4)}, {vr(VM+2*(i>>1),2)}, {vr(P+4+2*(i&1),2)}, 0")
                if rl:
                    k(rl.pop(0))
                if cvp:
                    k(cvp.pop(0))
            for i in range(8):
                k(f"v_mfma_f32_16x16x32_bf16 {vr(O+4*i,4)}, {vr(V+4*i,4)}, {vr(P,4)}, {vr(O+4*i,4)}")
                if i in (5, 7):
                    k(owr((i - 5) // 2))
                elif rl:
                    k(rl.pop(0))
                if i >= 3:
                    for x in fin((i - 3) // 2)[2 * ((i - 3) & 1):][:2]:
                        k(x)
            for x in fin(2)[2:] + [owr(2)] + rl + fin(3) + [owr(3)]:
                k(x)
            if tail:
                k(tail)
            k("""s_waitcnt lgkmcnt(0)
                 s_barrier""")
        def pop_todo(n):
            for _ in range(n):
                k(f"""s_ff1_i32_b64 s{sNX}, {sr(sTODO,2)}
                      s_bitset0_b64 {sr(sTODO,2)}, s{sNX}""")
            k(f"s_min_u32 s{sNX}, s{sNX}, 64")
        DLAST = opt.get("dlast", 62)
        def no_more():
            k(f"""v_subrev_u32 v{VT}, s{sD}, v{V_LANE}
                  v_and_b32 v{VT}, 0x80000003, v{VT}
                  v_cmp_eq_u32 vcc, 0, v{VT}
                  v_lshlrev_b32 v{VT}, 2, v{V_LANE}
                  v_mov_b32 v{VT+1}, 0x40000000
                  v_cndmask_b32 v{VT}, v{VT+1}, v{VT}, vcc
                  v_mov_b32 v{VT+1}, 3
                  s_or_b32 s{S_T+3}, s{sHD}, s{S_W}
                  s_mov_b32 s{S_T+3}, {DEC}
                  s_cmov_b32 s{S_T+3}, 0x80000000
                  buffer_store_dword v{VT+1}, v{VT}, {WS}, s{S_T+3} offen sc1""")
        def plan_after_d():
            F_, J_ = k.newlabel("L_ae"), k.newlabel("L_af")
            k(f"""s_cmp_lg_u32 s{sKO}, {F_RK[1]}
                  s_cbranch_scc1 {F_}
                  s_mov_b32 s{sNX}, s{sBN}
                  s_mov_b32 s{sX}, 0""")
            plan_next(0)
            k(f"s_branch {J_}")
            k.label(F_)
            pop_todo(1)
            k(f"s_lshr_b32 s{S_T+5}, s{sSEL}, 5")
            plan_next(1, S_T + 5)
            k.label(J_)
        def plan_after_b(vec=False):
            NB_, J_ = k.newlabel("L_ab"), k.newlabel("L_aj")
            NM_ = k.newlabel("L_am")
            k(f"""s_add_u32 s{sBN}, s{sNS}, 4
                  s_cmp_lt_u32 s{sNS}, {KB_}
                  s_cbranch_scc1 {NB_}
                  s_cmp_ge_u32 s{sNS}, {DLAST}
                  s_cbranch_scc1 {NM_}""")
            def stub():
                k.label(NM_)
                no_more()
                k(f"s_branch {NB_}")
            stubs.append(stub)
            spin(KY, f"s_sleep {opt.get('slt', 4)}\n" + key_load, f"v_min_u32 v{TT+1}, v{KY}, v{KY+1}\nv_cmp_eq_u32 vcc, 0, v{TT+1}")
            k(f"v_max_u32 v{KY}, v{KY}, v{KY+1}")
            self.wmax_u32(KY, KY + 1)
            k(f"""v_readfirstlane_b32 s{S_T}, v{KY}
                  v_readlane_b32 s{S_T+1}, v{TH_}, s{sNS}
                  s_max_u32 s{sMAXK}, s{sMAXK}, s{S_T}
                  s_bitcmp0_b64 {sr(sLAG,2)}, s{sNS}
                  s_cbranch_scc1 {NB_}
                  s_mov_b32 s{sNX}, s{sD}
                  s_and_b32 s{sSEL}, s{sMAXK}, 0x7ff
                  s_sub_u32 s{sSEL}, 2047, s{sSEL}
                  s_cmp_lt_u32 s{sMAXK}, s{S_T+1}
                  s_cselect_b32 s{sSEL}, 4095, s{sSEL}
                  s_lshr_b32 s{S_T+5}, s{sSEL}, 5
                  s_mov_b32 s{sX}, 1""")
            plan_next(1, S_T + 5, vec)
            k(f"s_branch {J_}")
            k.label(NB_)
            k(f"""s_mov_b32 s{sNX}, s{sBN}
                  s_mov_b32 s{sX}, 0""")
            plan_next(0, None, vec)
            k.label(J_)
        def exch1(vote=0, keep=0):
            k(f"""s_add_u32 s{sCNT}, s{sCNT}, 4
                  s_bfe_u32 s{S_T}, s{sCNT}, 0x10002
                  s_bitset0_b32 s{sVB}, s{S_T}
                  s_lshl_b32 s{S_T}, {vote}, s{S_T}
                  s_or_b32 s{sVB}, s{sVB}, s{S_T}
                  s_or_b32 s{S_T}, s{sVB}, s{sCNT}
                  v_mov_b32 v{CN}, s{S_T}
                  s_xor_b32 s{sPT}, s{sPT}, {PTX}
                  s_waitcnt vmcnt({keep}) lgkmcnt(0)
                  buffer_store_dword v{CN}, off, {WS}, s{sCUR}{self.loc}""")
            for x in pub if opt.get("pub0") else ():
                k(x)
            self.mark(36)
        def reduce_items(RD, RA):
            out = []
            for i in range(8):
                d = vr(RA + 4 * (i >> 2), 4)
                out.append(("wv", "RD%d" % i))
                out.append(f"v_mfma_f32_16x16x32_bf16 {d}, {vr(SEL,4)}, {vr(RD+4*i,4)}, {'0' if i % 4 == 0 else d}")
                if i == 6:
                    out.append(f"ds_write_b128 v{RW_}, {vr(RA,4)}")
            out.append(("gap", 2))
            out.append(f"ds_write_b128 v{RW_}, {vr(RA+4,4)} offset:2048")
            return out
        def reduce_now(RD, RA, nmid=0):
            i = 0
            for x in reduce_items(RD, RA):
                if isinstance(x, str):
                    k(x)
                elif x[0] == "wv":
                    k(f"s_waitcnt vmcnt({7 - i + nmid})"); i += 1
            k(f"""s_waitcnt lgkmcnt(0)
                  s_barrier""")
            for x in () if opt.get("pub0") else pub:
                k(x)
            self.mark(38)
        def exch2(mid=None, nmid=0):
            WL = k.newlabel("L_aq")
            k.label(WL)
            k(poll)
            self.spend()
            k(f"""s_waitcnt vmcnt(0)
                  {pcmp}
                  s_cbranch_vccnz {WL}""")
            self.mark(37)
            for x in rloads(160):
                k(x)
            if mid:
                mid()
            reduce_now(160, 192, nmid)
        def row(layer, odd, regs, seg):
            A, PKr, Y, TM, X = regs
            if layer and odd:
                return [], [("mark", "xi")], []
            rd_ = [f"ds_read_b128 {vr(A,4)}, v{RR_}", ("t", "A", f"ds_read_b128 {vr(A+4,4)}, v{RR_} offset:16")]
            out = capture(self.unpack8, X, XI)
            if layer:
                NG_, BK = k.newlabel("L_ag"), k.newlabel("L_agb")
                out.append(f"v_readfirstlane_b32 s{R_+4}, v{GK}")
                out.append(f"s_cmp_eq_u32 s{R_+4}, 0\ns_cbranch_scc1 {NG_}\n{BK}:")
                def stub():
                    k.label(NG_)
                    hpage(R_ + 3, F_RK[1], seg)
                    self.word_wait(R_ + 3, R_ + 4, va=GK)
                    k(f"s_branch {BK}")
                stubs.append(stub)
            out.append(("mark", "xi"))
            out += [f"s_lshl_b32 s{R_}, s{seg}, 5", f"s_add_u32 s{R_}, s{R_}, s{sHD}", f"s_lshl_b32 s{R_+1}, s{R_}, 10",
                    f"s_add_u32 s{R_+2}, s{R_+1}, {X1_OFF[layer] if layer or odd else X2_OFF}", ("mark", "early")]
            def body():
                self.pack8(PKr, A)
                self.unpack8(A, PKr)
                self.add8(X, A)
                self.pack8(PKr, X)
                if layer or odd:
                    k(f"buffer_store_dwordx4 {vr(PKr,4)}, v{V_L16}, {WS}, s{R_+2} offen sc1")
                self.unpack8(X, PKr)
                self.layernorm(X, PKr + 4, TM)
                self.unpack8(Y, PKr + 4)
                if not odd:
                    self.add8(X, Y)
                    self.pack8(A, X)
                    if layer == 0:
                        k(f"buffer_store_dwordx4 {vr(A,4)}, v{V_L16}, {WS}, s{R_+2} offen sc1")
                        self.unpack8(X, A)
                        self.layernorm(X, A + 4, TM)
                        k(f"""s_add_u32 s{R_+2}, s{R_+1}, {H_OFF[1]}
                              buffer_store_dwordx4 {vr(A+4,4)}, v{V_L16}, {WS}, s{R_+2} offen sc1
                              v_mov_b32 v{DF}, 1""")
                        hpage(sDF, F_HX, seg)
                        return
                    k(f"buffer_store_dwordx4 {vr(A,4)}, v{V_L16}, {OUT}, s{R_+1} offen sc1")
                k(f"v_pk_mul_f32 {vr(KEY,2)}, {vr(Y,2)}, {vr(WR,2)}")
                for j in range(2, 8, 2):
                    k(f"v_pk_fma_f32 {vr(KEY,2)}, {vr(Y+j,2)}, {vr(WR+j,2)}, {vr(KEY,2)}")
                k(f"v_add_f32 v{KEY}, v{KEY}, v{KEY+1}")
                self.wsum(KEY, KEY + 1)
                self.round1(KEY)
                k(f"""v_ashrrev_i32 v{KEY+1}, 31, v{KEY}
                      v_or_b32 v{KEY+1}, 0x80000000, v{KEY+1}
                      v_xor_b32 v{KEY}, v{KEY}, v{KEY+1}
                      v_and_b32 v{KEY}, 0xffff0000, v{KEY}
                      s_sub_u32 s{R_+2}, {2047 + 2048}, s{R_}
                      v_or_b32 v{DF}, s{R_+2}, v{KEY}""")
                if layer == 0:
                    hpage(R_ + 2, 0, seg)
                    k(f"buffer_store_dword v{DF}, v{KR}, {WS}, s{R_+2} offen sc1")
                else:
                    hpage(sDF, 0, seg)
                    k(f"s_add_u32 s{sDF}, s{sDF}, s{sKO}")
            return rd_, out, [("wl", "A")] + capture(body)

        FINAL, T3, NXB, LATE, DRAIN, ROWS_, RD_, GOB, SLOW, SLB, FIN2, PL, PC, T3E, T3X = (k.newlabel("L_aa") for _ in range(15))
        if opt.get("ptwarm", 1) and not self.loc:
            for _ in range(2):
                for x in rloads(160):
                    k(x.replace(" sc1", ""))
                k(f"s_xor_b32 s{sPT}, s{sPT}, {PTX}")
        k(f"""s_cmp_lt_u32 s{sWK}, 2
              s_cbranch_scc1 {FINAL}
              s_sub_u32 s{sNX}, s{sWK}, 2
              s_mov_b32 s{sX}, 0
              s_mov_b32 s{sKO}, {F_RK[1]}""")
        plan_next(0)
        k(f"s_branch {SLOW}")

        bread = lambda u: [("t", "B%d%d" % (u, g), f"ds_read_b128 {vr(B+u*32+4*g,4)}, v{OB_} offset:{((g>>2)*2+u)*4096 + (g&3)*1024}") for g in range(8)]
        def head():
            h = R_ + 5
            return [("need", "xi"),
                    f"s_lshl_b32 s{h}, s{S_SEG}, 5", f"s_add_u32 s{h}, s{h}, s{sHD}", f"s_lshl_b32 s{h+1}, s{h}, 10",
                    f"s_lshl_b32 s{h+2}, s{S_SEG}, 10", f"s_add_u32 s{h+2}, s{h+2}, {X2P_OFF - X2_OFF}",
                    f"s_cmp_eq_u32 s{h}, s{sSEL}\ns_cselect_b32 s{h+2}, s{h+2}, s{h+1}",
                    f"s_add_u32 s{h+2}, s{h+2}, {X2_OFF}",
                    f"s_mov_b32 s{SRD_A+2}, {WS_SIZE}",
                    f"""s_cmp_eq_u32 s{sLAY}, 0
                        s_cselect_b32 s{h+2}, s{h+1}, s{h+2}
                        s_cselect_b64 {sr(SRD_A,2)}, {sr(P_X,2)}, {sr(P_WS,2)}
                        s_cmov_b32 s{SRD_A+2}, {2048*1024}""",
                    f"buffer_load_dwordx4 {vr(XI,4)}, v{V_L16}, {SA}, s{h+2} offen sc1",
                    f"s_lshr_b32 s{h+1}, s{sSEL}, 5",
                    f"s_cmp_lt_u32 s{S_SEG}, s{h+1}\ns_cselect_b32 s{h+1}, 1, 2",
                    f"v_mov_b32 v{VT+4}, s{h+1}",
                    f"s_lshl2_add_u32 s{h+2}, s{S_SEG}, {DEC}",
                    f"s_lshl_b32 s{h+1}, s{sHD}, 16", f"s_add_u32 s{h+1}, s{h+1}, s{sLAY}", f"s_add_u32 s{h+1}, s{h+1}, s{sKO}",
                    f"s_cmp_eq_u32 s{h+1}, {F_RK[1] + 1}\ns_cselect_b32 s{h+2}, s{h+2}, 0x80000000",
                    f"buffer_store_dword v{VT+4}, off, {WS}, s{h+2} sc1",
                    f"s_bitcmp1_b64 {sr(sHAD,2)}, s{S_SEG}\ns_cselect_b32 s{h+1}, {F_RK[1] - F_RK[0]}, 0"] \
                + capture(hpage, h, F_RK[0], S_SEG) \
                + [f"s_add_u32 s{h}, s{h}, s{h+1}", f"buffer_load_dword v{GK}, off, {WS}, s{h} sc1"] + capture(keys_issue, h)
        def pack(u):
            out = []
            for r in range(4):
                for p in range(4):
                    a_ = ACC + u * 32 + p * 8
                    out.append(f"v_cvt_pk_bf16_f32 v{PK+u*16+r*4+p}, v{a_+r}, v{a_+4+r}")
                out.append(f"s_add_u32 s{S_T+6}, s{sPT}, {(16*u+r)*16*KB}")
                out.append(f"buffer_store_dwordx4 {vr(PK+u*16+r*4,4)}, v{PT_}, {WS}, s{S_T+6} offen{self.loc}")
            return out
        GAP = opt.get("gap", 4)
        vote_rd = [f"ds_read_b128 {vr(VT,4)}, v{VR}", ("gap", 6), "s_waitcnt lgkmcnt(0)",
                   f"v_or3_b32 v{VT}, v{VT}, v{VT+1}, v{VT+2}", f"v_or_b32 v{VT}, v{VT}, v{VT+3}", ("gap", 1),
                   f"v_readfirstlane_b32 s{sLATE}, v{VT}"]
        def t3(pend):
            vm = ["RD%d" % i for i in range(8)] if pend and pend[0] else ["old"]
            lg = []
            seen = set()
            def emit(x):
                tag = None
                if not isinstance(x, str):
                    if x[0] == "mark":
                        seen.add(x[1]); return 0
                    if x[0] in ("wv", "wl"):
                        q_ = vm if x[0] == "wv" else lg
                        n = len(q_) - 1 - max(i for i, t in enumerate(q_) if t == x[1])
                        k(f"s_waitcnt {'vmcnt' if x[0] == 'wv' else 'lgkmcnt'}({min(n, 63 if x[0] == 'wv' else 15)})")
                        return 1
                    tag, x = x[1], x[2]
                c = 0
                for ln in x.split("\n"):
                    ln = ln.strip()
                    k(ln)
                    if ln.startswith("buffer"):
                        vm.append("copy" if ln.endswith("lds") else tag); c += 2
                    elif ln.startswith("ds_"):
                        lg.append(tag); c += 2
                    elif ln.startswith("v_mfma"):
                        c += 2
                    elif not ln.endswith(":"):
                        c += 1
                return c
            self.mark(34)
            n_start = len(k.lines)
            b0 = bread(0)
            for x in b0[:2]:
                emit(x)
            fo = fetch_ops(S_T + 8, S_T + 9)
            k(f"""s_min_u32 s{S_T}, s{sST}, s{sST+1}
                  s_cmp_lt_u32 s{sNX}, 64
                  s_cselect_b32 s{S_T}, s{S_T}, 0
                  s_cmp_eq_u32 s{S_T}, 0
                  s_cselect_b32 s{sLATE}, 0x80000000, 0
                  v_mov_b32 v{VT}, s{sLATE}
                  s_or_b32 s{S_T+8}, s{sNQ}, s{sLATE}
                  s_or_b32 s{S_T+9}, s{sNK}, s{sLATE}
                  s_cmp_lt_u32 s{sX}, s{sLAY}
                  s_cselect_b32 s{S_T+9}, 0x80000000, s{S_T+9}""")
            for _ in range(4):
                k(fo.pop(0))
            vq = [("need", "bar")] + list(vote_rd)
            if pend and not pend[0]:
                r0, early, r1 = row(0, pend[1], (96, 104, 112, 120, 88), sPS)
                for x in r0:
                    emit(x)
                ih = max(i_ for i_, x in enumerate(r1) if isinstance(x, str) and x.startswith("buffer_store"))
                r1[ih] = ("t", "H", r1[ih])
                qx = early + r1 + ([] if pend[1] else [("gap", opt.get("hgap", 40)), ("wv", "H")] + pub)
                early = []
                vq = [("need", "b1"), ("gap", 4), "s_waitcnt lgkmcnt(0)\ns_barrier", ("mark", "bar")] + list(vote_rd)
            elif pend:
                qx = [("at", opt.get("redat", 6))]
                for x in reduce_items(RD2, S):
                    qx += [x, ("gap", 1)] if isinstance(x, str) and x.startswith("v_mfma") else [x]
                r0, early, r1 = row(pend[0], pend[1], (96, 104, 112, 120, 88), sPS)
                qx += [("gap", 4), ("need", "W"), "s_waitcnt lgkmcnt(0)\ns_barrier"] + r0 + [("mark", "bar")] + ([] if opt.get("pub0") else pub) + [("gap", 4)] + r1
            else:
                early = []
                qx = [("mark", "xi"), ("need", "b1"), ("gap", 4), "s_waitcnt lgkmcnt(0)\ns_barrier", ("mark", "bar"),
                      ("at", opt.get("pubat", 36)), ("wv", "old")] + pub
            if opt.get("unpk", 1):
                qx = [y for x in qx for y in unpk(x)]
            pk0 = pack(0)
            cv0 = [x for x in pk0 if x.startswith("v_")]
            st0 = [y for x in pk0 if not x.startswith("v_") for y in ((x, ("gap", opt.get("stgap", 3))) if x.startswith("buffer") else (x,))]
            queues = [fo, b0[2:] + [f"ds_write_b32 v{VW}, v{VT}", ("mark", "W")] + bread(1) + [("mark", "b1")], vq,
                      early + head(), [("at", 66)] + cv0 + [("at", opt.get("stat", 92))] + st0, qx]
            order = [5, 0, 1, 2, 3, 4]
            def kind_of(x):
                x = x if isinstance(x, str) else (x[2] if x[0] == "t" else "s_")
                return "m" if x.startswith("v_mfma") else "v" if x.startswith("v_") else "x" if x.startswith(("ds_", "buffer")) else "s"
            def stalls(x):
                x = x if isinstance(x, str) else (x[2] if x[0] == "t" else None)
                if x is None:
                    return False
                c = Ins(x.split("\n")[0].strip())
                d = 1 if k.lines[-1].startswith("v_mfma") else 0
                for ln in reversed(k.lines[-4:]):
                    if ln.endswith(":"):
                        continue
                    if need(Ins(ln), c) > d:
                        return True
                    d += 1
                return False
            hold = [0] * len(queues)
            b1_before_bar = False
            cost = lambda x: 0 if not isinstance(x, str) and x[0] != "t" else 1.3
            TM_ = opt.get("tmaj", 2)
            pk1 = pack(1)
            cv1 = []
            if TM_:
                for p in range(3):
                    cv1 += [("at", 128 - 8 * TM_ + 2 * TM_ * (p + 1) + 1)] + [pk1[6 * r + p] for r in range(4)]
                pk1 = [x for i_, x in enumerate(pk1) if i_ % 6 > 2]
            queues.append(cv1); hold.append(0)
            for m in range(128):
                u, g, t = m >> 6, (m >> 3) & 7, m & 7
                if m >= 128 - 8 * TM_:
                    assert b1_before_bar
                    m_ = m - (128 - 8 * TM_)
                    t, g = 2 * (m_ // (2 * TM_)) + (m_ & 1), 8 - TM_ + (m_ % (2 * TM_)) // 2
                if t == 0 and ("bar" not in seen or not b1_before_bar):
                    emit(("wl", "B%d%d" % (u, g)))
                if m in (32, 64, 96):
                    self.mark(39 + m // 32)
                d = vr(ACC + u * 32 + t * 4, 4)
                k(f"v_mfma_f32_16x16x32_bf16 {d}, {vr(B+u*32+4*g,4)}, {ar((g*8+t)*4,4)}, {'0' if g == 0 else d}")
                left = sum(kind_of(x) == "v" for q_ in queues for x in q_)
                bud = 3 if left <= 2 * (opt.get("rowend", 116) - m) or "bar" not in seen else 4
                if pend and not pend[0]:
                    bud = opt.get("bbud", 4) if any(kind_of(x) == "v" for x in qx) else 3
                n = 0
                def pick(kinds):
                    for qi in order:
                        q_ = queues[qi]
                        while q_ and not isinstance(q_[0], str) and q_[0][0] in ("at", "gap", "need", "mark") and hold[qi] <= m:
                            kind, val = q_[0]
                            if kind == "need" and val not in seen:
                                break
                            if kind == "at": hold[qi] = val
                            if kind == "gap": hold[qi] = m + val
                            if kind == "mark": seen.add(val)
                            q_.pop(0)
                        if q_ and hold[qi] <= m and not (not isinstance(q_[0], str) and q_[0][0] == "need") \
                                and kind_of(q_[0]) in kinds and not stalls(q_[0]):
                            x = q_.pop(0)
                            if isinstance(x, str) and x.endswith("lds"):
                                hold[qi] = m + GAP
                            emit(x)
                            return kind_of(x), (x.count("\n") + 1 if isinstance(x, str) else 1)
                    return None
                if "b1" in seen and not any(isinstance(l_, str) and l_ == "s_barrier" for l_ in k.lines[n_start:]):
                    b1_before_bar = True
                if pend and not pend[0]:
                    order = [0, 1, 5, 2, 3, 4, 6]
                elif "bar" in seen:
                    order = [0, 1, 2, 3, 5, 4] if m < 84 else [0, 1, 2, 3, 4, 6, 5]
                r_ = pick("x") or pick("s")
                n = r_[1] if r_ else 1
                while n < bud:
                    r_ = pick("vsm")
                    if not r_:
                        break
                    if r_[0] == "m":
                        r_ = pick("x") or pick("s")
                        n = r_[1] if r_ else 1
                        continue
                    n += r_[1]
                if m == 63:
                    assert "b1" in seen and "bar" in seen
                if "bar" in seen and pend and not (pend[0] and pend[1]):
                    assert "early" in seen
            assert not any(queues[:4]), [len(q_) for q_ in queues]
            self.t3left = getattr(self, "t3left", []) + [(pend, len(queues[4]), len(queues[5]))]
            self.mark(35)
            pk1 = queues[4] + queues[6] + pk1
            if ("wv", "H") in qx:
                i_ = qx.index(("wv", "H"))
                assert i_ < 2
                pk1 += qx[i_:]
                del qx[:]
            while pk1 or qx:
                for q_ in (pk1, qx):
                    if q_:
                        x = q_.pop(0)
                        if isinstance(x, str) or x[0] not in ("at", "gap"):
                            emit(x)
            k(f"""s_cmp_lg_u32 s{sLATE}, 0
                  s_cbranch_scc1 {LATE}""")
            emit(("wv", "copy"))
        p00 = list(self.pend)
        V1 = k.newlabel("L_av")
        k.label(T3X)
        k(f"""s_bitcmp1_b32 s{S_W}, 0
              s_cbranch_scc1 {V1}""")
        for i in range(2):
            if i:
                k.label(V1)
            self.pend = list(p00)
            t3((1, i))
            if self.stamps and i == 0:
                k(f"s_mov_b32 s101, s{S_SEG}\ns_mov_b32 s{S_SEG}, s{sPS}")
                self.ev(22, va=240)
                k(f"s_mov_b32 s{S_SEG}, s101")
            k(f"s_branch {T3E}")
        T3B, V2_ = k.newlabel("L_av"), k.newlabel("L_av")
        if opt.get("brow", 0):
            k.label(T3B)
            k(f"""s_bitcmp1_b32 s{S_W}, 0
                  s_cbranch_scc1 {V2_}""")
            for i in range(2):
                if i:
                    k.label(V2_)
                self.pend = list(p00)
                t3((0, i))
                k(f"s_branch {T3E}")
        k.label(T3)
        self.pend = list(p00)
        t3(None)
        k.label(T3E)
        DB = k.newlabel("L_ao")
        k(f"""s_barrier
              s_cmp_lt_u32 s{sX}, s{sLAY}
              s_cbranch_scc1 {DB}""")
        pre()
        k(f"""s_cmp_eq_u32 s{sX}, 0
              s_cbranch_scc1 {NXB}""")
        p0 = list(self.pend)
        LATE2, SKIP = k.newlabel("L_al"), k.newlabel("L_ak")
        for x in fcheck():
            k(x)
        k("s_waitcnt lgkmcnt(8)")
        vcheck()
        k(f"""s_cmp_lg_u64 vcc, 0
              s_cselect_b32 s{sMODE}, 1, 0
              s_andn2_b32 s{S_T+1}, s{sMODE}, s{sLAY}""")
        exch1(f"s{S_T+1}")
        plan_after_d()
        k(f"s_and_b32 s{sMODE}, s{sMODE}, s{sLAY}")
        chain_wait("scc1")
        BD = k.newlabel("L_ah")
        post(True, skip=SKIP, tail=f"""s_cmp_eq_u32 s{sLAY}, 0
                                       s_cbranch_scc1 {BD}""")
        p2 = list(self.pend)
        self.flush(va=240)
        k(f"""s_mov_b32 s{sPS}, s{S_SEG}
              s_mov_b32 s{S_SEG}, s{sNS}
              s_branch {T3X}""")
        k.label(BD)
        self.pend = p2
        reduce_now(RD2, 160)
        if opt.get("brow", 0):
            self.flush(va=240)
            self.ev(12, va=240)
            k(f"""s_mov_b32 s{sPS}, s{S_SEG}
                  s_mov_b32 s{S_SEG}, s{sNS}
                  s_mov_b32 s{sLAY}, 1
                  s_branch {T3B}""")
        else:
            k(f"""s_mov_b32 s{sMODE}, 1
                  s_branch {ROWS_}""")
        k.label(DB)
        self.pend = list(p0)
        pre(True)
        exch1(keep=8)
        k(f"""s_mov_b32 s{sPS}, s{S_SEG}
              s_mov_b32 s{sMODE}, 3""")
        self.flush(va=240)
        k(f"s_branch {SLB}")
        k.label(NXB)
        self.pend = list(p0)
        exch1()
        exch2(mid=look, nmid=8)
        k(f"""s_mov_b32 s{sMODE}, 0
              s_branch {ROWS_}""")
        k.label(LATE)
        self.pend = list(p0)
        k(f"""s_add_u32 s{S_T}, s{sX}, s{sKO}
              s_cmp_lg_u32 s{S_T}, {F_RK[1] + 1}
              s_cbranch_scc1 {LATE2}""")
        exch1(1)
        plan_after_d()
        k(f"s_branch {SKIP}")
        k.label(LATE2)
        self.pend = list(p0)
        exch1()
        k.label(SKIP)
        exch2()
        k(f"s_mov_b32 s{sMODE}, 2")
        k.label(ROWS_)
        RV = [k.newlabel("L_ar") for _ in range(3)]
        k(f"""s_cmp_lg_u32 s{sLAY}, 0
              s_cbranch_scc1 {RV[2]}
              s_bitcmp1_b32 s{S_W}, 0
              s_cbranch_scc1 {RV[1]}""")
        for i in range(3):
            k.label(RV[i])
            if i == 2:
                k(f"""s_bitcmp1_b32 s{S_W}, 0
                      s_cbranch_scc1 {RD_}""")
            for x in sum(row(i >> 1, i & 1, (160, 168, 176, 184, 200), S_SEG), []):
                if isinstance(x, str):
                    k(x)
                elif x[0] == "t":
                    k(x[2])
                elif x[0] == "wl":
                    k("s_waitcnt lgkmcnt(0)")
            if i < 2:
                k(f"s_branch {RD_}")
        k.label(RD_)
        self.flush(va=240)
        if self.stamps:
            E1, E2 = k.newlabel("L_ev"), k.newlabel("L_ev")
            k(f"s_cmp_lg_u32 s{sLAY}, 0\ns_cbranch_scc1 {E1}")
            self.ev(12, va=240)
            k(f"s_branch {E2}")
            k.label(E1)
            self.ev(22, va=240)
            k.label(E2)
        GOD = k.newlabel("L_ad")
        k(f"""s_cmp_eq_u32 s{sMODE}, 1
              s_cbranch_scc1 {GOD}
              s_cmp_eq_u32 s{sMODE}, 0
              s_cbranch_scc1 {GOB}
              s_cmp_ge_u32 s{sNX}, 64
              s_cbranch_scc1 {FIN2}""")
        k.label(SLOW)
        flush_pub()
        k(f"""v_mov_b32 v{ST}, 0
              s_mov_b32 s{sMODE}, 0""")
        spin(ST, st_load, f"v_cmp_eq_u32 vcc, 0, v{ST}")
        k(f"""s_mov_b32 s{S_T+8}, s{sNQ}
              s_mov_b32 s{S_T+9}, s{sNK}""")
        for x in fetch_ops(S_T + 8, S_T + 9):
            k(x)
        keys_issue(S_T)
        k(f"""s_waitcnt vmcnt(0) lgkmcnt(0)
              s_barrier""")
        self.ev(20, va=240)
        pre()
        k(f"""s_waitcnt lgkmcnt(0)
              s_cmp_eq_u32 s{sX}, 0
              s_cbranch_scc1 {SLB}""")
        plan_after_d()
        for x in fcheck():
            k(x)
        vcheck()
        chain_wait("vccnz")
        post()
        k.label(GOD)
        k(f"""s_mov_b32 s{S_SEG}, s{sNS}
              s_mov_b32 s{sLAY}, 1
              s_branch {T3}""")
        k.label(GOB)
        flush_pub()
        k.label(SLB)
        k(f"""s_mov_b32 s{S_SEG}, s{sNS}
              s_mov_b32 s{sLAY}, 0""")
        plan_after_b(True)
        k(st_load)
        k("s_waitcnt vmcnt(2)")
        self.ev(15, va=240)
        check(False)
        k(f"s_cbranch_vccz {PC}")
        k.label(PL)
        if opt.get("sll"):
            k(f"s_sleep {opt['sll']}")
        look()
        k(st_load)
        self.spend()
        check(True)
        k(f"s_cbranch_vccnz {PL}")
        k.label(PC)
        self.ev(10, va=240)
        NP = k.newlabel("L_ai")
        rl_ = f"""v_readlane_b32 s{sST}, v{ST}, 0
                  v_readlane_b32 s{sST+1}, v{ST}, 1"""
        k(f"""s_cmp_lg_u32 s{sMODE}, 3
              s_cbranch_scc1 {NP}""")
        mk_, self.opt["marks"] = self.opt.get("marks", ()), ()
        post(True, tail=rl_)
        self.opt["marks"] = mk_
        k(f"s_branch {T3X}")
        k.label(NP)
        post(tail="s_waitcnt vmcnt(0)\n" + rl_)
        k(f"s_branch {T3}")
        k.label(FIN2)
        DONE = k.newlabel("L_az")
        k(f"""s_cmp_lg_u32 s{sKO}, {F_RK[1]}
              s_cbranch_scc1 {DONE}""")
        NN = k.newlabel("L_an")
        k(f"""s_cmp_ge_u32 s{sBN}, {DLAST + 4}
              s_cbranch_scc1 {FINAL}""")
        no_more()
        k.label(FINAL)
        flush_pub()
        self.ev(14, va=240)
        k(f"""v_lshlrev_b32 v{TT}, 2, v{V_LANE}
              v_add_u32 v{VT}, {VOTE + 64}, v{TT}
              s_cmp_lg_u32 s{S_W}, 0
              s_cbranch_scc1 {NN}
              s_lshl_b32 s{S_T+3}, s{sWK}, 13
              s_add_u32 s{S_T+3}, s{S_T+3}, {DEC + 8192}""")
        self.words_wait64(S_T + 3, TT, 1)
        k(f"""ds_write_b32 v{VT}, v{TT+1}
              s_waitcnt lgkmcnt(0)""")
        k.label(NN)
        k(f"""s_barrier
              ds_read_b32 v{TT+1}, v{VT}
              s_mov_b32 s{sKO}, {F_RK[2]}
              s_mov_b32 s{sX}, 1
              s_waitcnt lgkmcnt(0)
              v_readfirstlane_b32 s{sSEL}, v{TT+1}
              v_and_b32 v{TT+1}, 255, v{TT+1}
              s_lshr_b32 s{sSEL}, s{sSEL}, 8
              s_lshr_b32 s{S_T+5}, s{sSEL}, 5
              v_cmp_ne_u32 {sr(sHAD,2)}, 3, v{TT+1}""")
        self.todo_mask(sTODO, TT)
        k(f"""s_bcnt1_i32_b64 s{S_T}, {sr(sTODO,2)}
              v_mbcnt_lo_u32_b32 v{TT}, s{sTODO}, 0
              v_mbcnt_hi_u32_b32 v{TT}, s{sTODO+1}, v{TT}
              s_mul_i32 s{S_T}, s{S_T}, {opt.get("share", 14)}
              s_add_u32 s{S_T}, s{S_T}, {opt.get("shr", 48)}
              s_lshr_b32 s{S_T}, s{S_T}, 7
              s_lshl_b32 s{S_T}, s{S_T}, 1
              v_cmp_gt_u32 vcc, s{S_T}, v{TT}
              v_and_b32 v{TT+1}, 1, v{TT}
              v_and_b32 v{TT}, 3, v{TT}
              v_add_u32 v{TT}, 2, v{TT}
              v_cndmask_b32 v{TT}, v{TT}, v{TT+1}, vcc
              v_cmp_eq_u32 vcc, s{sWK}, v{TT}
              s_and_b64 {sr(sTODO,2)}, {sr(sTODO,2)}, vcc""")
        pop_todo(1)
        plan_next(1, S_T + 5)
        k(f"""s_cmp_lt_u32 s{sNX}, 64
              s_cbranch_scc1 {SLOW}""")
        k.label(DONE)
        flush_pub()
        self.ev(23, va=240)
        k("s_endpgm")
        for st in stubs:
            st()

    def both(self, fn, name):
        self.k(f"""s_cmp_lg_u32 s{S_SLOW}, 0
                   s_cbranch_scc1 {name}""")
        fn()
        self.later.append((fn, name))

    def program(self):
        k = self.k
        self.later = []
        self.prologue()
        self.ev(0)
        LCH, LM, LA, LA2, C1, C2 = (k.newlabel(x) for x in ("L_rch", "L_rm", "L_ra", "L_rb", "L_rc1", "L_rc2"))
        k.label("L_roles")
        if self.opt.get("xdelay"):
            X = k.newlabel("L_x")
            k(f"""s_lshl_b32 s{S_T}, 1, s{S_G}
                  s_and_b32 s{S_T}, s{S_T}, {self.opt["xdelay"][0]}
                  s_cbranch_scc0 {X}
                  s_waitcnt vmcnt(0)""")
            self.arrive()
            for _ in range(self.opt["xdelay"][1]):
                k("s_sleep 32")
            k.label(X)
        k(f"""s_cmp_ge_u32 s{S_G}, 6
              s_cbranch_scc1 {LA}""")
        self.load_weights(True, None)
        self.ev(2)
        k(f"""s_cmp_lt_u32 s{S_G}, 3
              s_cbranch_scc1 {LCH}
              s_cmp_eq_u32 s{S_G}, 3
              s_cbranch_scc1 {LM}""")
        self.wait_all()
        self.ev(3)
        self.role_proj()
        k("s_endpgm")
        k.label(LM)
        self.load_gate_up()
        self.wait_all()
        self.ev(3)
        def moe():
            self.role_moe()
            k("s_endpgm")
        self.both(moe, "L_wm")
        k.label("L_abort")
        k("s_endpgm")
        k.label("L_spread")
        k(f"""s_mov_b32 s{S_SLOW}, -1
              s_lshr_b32 s{S_G}, s2, 5
              s_and_b32 s{S_H}, s2, 31""")
        if self.stamps:
            k(f"""s_lshl_b32 s{S_EV}, s2, 12
                  s_add_u32 s{S_EV}, s{S_EV}, {STAMP_OFF + MB}""")
            self.ev(0)
        k("s_branch L_roles")
        k.label(LA)
        if self.opt.get("warm", 1):
            self.warm()
        k.label(LA2)
        self.ev(2)
        self.load_wo2()
        self.wait_all()
        self.ev(3)
        k(f"""s_max_u32 s54, s{S_G}, 5
              s_sub_u32 s54, s54, 5
              s_lshl_b32 s54, s54, 1
              s_lshr_b32 s{S_T}, s{S_H}, 4
              s_add_u32 s54, s54, s{S_T}""")
        def att():
            self.role_att(None)
            k("s_endpgm")
        self.both(att, "L_wa")
        k.label(LCH)
        self.load_weights(False, "chain")
        self.wait_all()
        self.ev(3)
        self.chain_helps()
        def chains():
            C1, C2 = k.newlabel("L_rc1"), k.newlabel("L_rc2")
            k(f"""s_cmp_eq_u32 s{S_G}, 1
                  s_cbranch_scc1 {C1}
                  s_cmp_eq_u32 s{S_G}, 2
                  s_cbranch_scc1 {C2}""")
            self.chain(0)
            k(f"""s_mov_b32 s{S_CNT}, 0
                  s_branch {LA2}""")
            k.label(C1)
            self.chain(1)
            k("s_endpgm")
            k.label(C2)
            self.chain(2)
            k("s_endpgm")
        self.both(chains, "L_wc")
        self.loc = " sc1"
        self.abort = "L_abort2"
        k.label("L_abort2")
        k("s_endpgm")
        for fn, name in reversed(self.later):
            k.label(name)
            k.fence()
            if self.opt.get("noslow"):
                k("s_endpgm")
            else:
                fn()

HEADER = open(__file__.rsplit("/", 1)[0] + "/header.txt").read() if "/" in __file__ else open("header.txt").read()

def build(**kw):
    g = Gen(**kw)
    g.program()
    print("t3 leftovers", getattr(g, "t3left", None), file=sys.stderr)
    body = g.k.finalize()
    return (HEADER + f"; @launch grid=(256,1,1) block=(256,1,1) lds={LDS_SIZE}\n"
        + f""".amdgcn_target "amdgcn-amd-amdhsa--gfx950"
.text
.globl {NAME}_kernel
.p2align 8
.type {NAME}_kernel,@function
{NAME}_kernel:
""" + body + f""".section .rodata,"a"
.p2align 6
.amdhsa_kernel {NAME}_kernel
  .amdhsa_next_free_vgpr 512
  .amdhsa_next_free_sgpr 102
  .amdhsa_accum_offset 256
  .amdhsa_group_segment_fixed_size 0
  .amdhsa_kernarg_size 120
  .amdhsa_user_sgpr_count 2
  .amdhsa_user_sgpr_kernarg_segment_ptr 1
  .amdhsa_system_sgpr_workgroup_id_x 1
  .amdhsa_float_denorm_mode_32 3
.end_amdhsa_kernel
""")

if __name__ == "__main__":
    import argparse
    ap = argparse.ArgumentParser()
    ap.add_argument("-o", default=f"/code/{NAME}.s")
    ap.add_argument("--stop", default=None)
    ap.add_argument("--stamps", type=int, default=0)
    ap.add_argument("--slow", action="store_true")
    ap.add_argument("--opt", default="{}")
    a = ap.parse_args()
    stop = None
    if a.stop:
        l, p = a.stop.split(":"); stop = (int(l), p)
    open(a.o, "w").write(build(fast=not a.slow, stop=stop, stamps=a.stamps, opt=eval(a.opt)))
```

```python
import sys, math
from asmlib import K, vr, ar, sr, Ins, need
from layout import *

NAME = "interleave_layers__memory_aug_recurrent_mem_tr__moe_arch_mod__prompt"

SRD_A = 4
SRD_WS = 8
SRD_DBG = 12
P_X, P_MEM0, P_WQ, P_WK, P_WV, P_WO = 16, 18, 20, 22, 24, 26
P_WR, P_WG, P_WU, P_WD, P_OUT, P_DBG, P_WS = 32, 34, 36, 38, 40, 42, 44
S_W, S_H, S_G, S_BUD = 46, 47, 48, 49
S_SLOW = 3
S_LW = 50
S_SEG, S_OOB, S_CNT = 51, 52, 53
S_T = 56
S_C = 80
S_EV = 81
S_ONE = 28
S_A, S_B = 30, 31
LOOK = 2
WS = sr(SRD_WS, 4); SA = sr(SRD_A, 4); DBG = sr(SRD_DBG, 4)

SCALE_LOG2E = (128 ** -0.5) * math.log2(math.e)
def f32(x):
    import struct
    return "0x%08x" % struct.unpack("<I", struct.pack("<f", x))[0]
NEGBIG = f32(-1e30)

def wq(ks, t, half=None):
    b = (ks * 2 + t) * 8
    return ar(b, 8) if half is None else ar(b + 4 * half, 4)
def wk(ks, t, half=None):
    b = 128 + (ks * 2 + t) * 8
    return ar(b, 8) if half is None else ar(b + 4 * half, 4)
def wv(ks, t, half=None):
    b = 128 + (ks * 2 + t) * 8
    return vr(b, 8) if half is None else vr(b + 4 * half, 4)

def unpk(x):
    import re
    if not isinstance(x, str) or not x.startswith("v_pk_"):
        return [x]
    ins = Ins(x)
    mod = lambda nm, d: [int(c) for c in re.search(nm + r":\[([01,]+)\]", ins.mods).group(1).split(",")] if re.search(nm + r":\[", ins.mods) else d
    n = len(ins.ops) - 1
    lo, hi = mod(r"op_sel", [0] * n), mod("op_sel_hi", [1] * n)
    if "op_sel:" not in ins.mods:
        lo = [0] * n
    ng = mod("neg_lo", [0] * n)
    base = [re.match(r"([vs])\[(\d+):", o).groups() for o in ins.ops]
    out = []
    for h, sel in enumerate((lo, hi)):
        src = [("-" if ng[i] else "") + base[i+1][0] + str(int(base[i+1][1]) + sel[i]) for i in range(n)]
        out.append(f"{ins.op.replace('v_pk_', 'v_')} v{int(base[0][1]) + h}, " + ", ".join(src))
    return out

V_L16 = 0
V_LANE = 1

class Gen:
    def __init__(self, fast=True, stop=None, stamps=False, opt=None):
        self.opt = opt or {}
        self.LH = L_H
        self.pend = []
        self.mk = 0
        self.k = K()
        self.fast = fast
        self.loc = "" if fast else " sc1"
        self.stop = stop
        self.abort = "L_abort"
        self.stamps = stamps

    def srd(self, ptr, nbytes):
        k = self.k
        k(f"""s_mov_b32 s{SRD_A}, s{ptr}
              s_mov_b32 s{SRD_A+1}, s{ptr+1}
              s_mov_b32 s{SRD_A+2}, {nbytes}
              s_mov_b32 s{SRD_A+3}, 0x20000""")

    def budget(self, retry):
        self.k(f"""s_sub_u32 s{S_BUD}, s{S_BUD}, 1
                   s_cmp_gt_i32 s{S_BUD}, 0
                   s_cbranch_scc1 {retry}
                   s_branch {self.abort}""")

    def spend(self, inc=None, cnt=None):
        if self.stamps and inc:
            self.k(f"s_add_u32 s{cnt}, s{cnt}, {inc}")
        self.k(f"""s_sub_u32 s{S_BUD}, s{S_BUD}, 1
                   s_cbranch_scc1 {self.abort}""")

    def wsum(self, x, t):
        k = self.k
        for r in (8, 4, 2, 1):
            k(f"v_add_f32_dpp v{x}, v{x}, v{x} row_ror:{r} row_mask:0xf bank_mask:0xf")
        k(f"""v_mov_b32 v{t}, v{x}
              v_permlane16_swap_b32 v{x}, v{t}
              v_add_f32 v{x}, v{x}, v{t}
              v_mov_b32 v{t}, v{x}
              v_permlane32_swap_b32 v{x}, v{t}
              v_add_f32 v{x}, v{x}, v{t}""")

    def unpack8(self, dst, src):
        k = self.k
        for q in range(4):
            k(f"v_lshlrev_b32 v{dst+2*q}, 16, v{src+q}")
            k(f"v_and_b32 v{dst+2*q+1}, 0xffff0000, v{src+q}")

    def pack8(self, dst, src):
        for q in range(4):
            self.k(f"v_cvt_pk_bf16_f32 v{dst+q}, v{src+2*q}, v{src+2*q+1}")

    def round1(self, x):
        self.k(f"""v_cvt_pk_bf16_f32 v{x}, v{x}, v{x}
                   v_and_b32 v{x}, 0xffff0000, v{x}""")

    def layernorm(self, x, ypk, tmp):
        k = self.k
        d = tmp; s = tmp + 8; q = tmp + 10; t = tmp + 12
        c = S_T + 22
        k(f"v_readfirstlane_b32 s{c}, v{x}")
        for j in range(0, 8, 2):
            k(f"v_pk_add_f32 {vr(d+j,2)}, {vr(x+j,2)}, {sr(c,2)} op_sel_hi:[1,0] neg_lo:[0,1] neg_hi:[0,1]")
        k(f"""v_pk_add_f32 {vr(s,2)}, {vr(d,2)}, {vr(d+2,2)}
              v_pk_mul_f32 {vr(q,2)}, {vr(d,2)}, {vr(d,2)}
              v_pk_add_f32 {vr(t,2)}, {vr(d+4,2)}, {vr(d+6,2)}
              v_pk_fma_f32 {vr(q,2)}, {vr(d+2,2)}, {vr(d+2,2)}, {vr(q,2)}
              v_pk_add_f32 {vr(s,2)}, {vr(s,2)}, {vr(t,2)}
              v_pk_fma_f32 {vr(q,2)}, {vr(d+4,2)}, {vr(d+4,2)}, {vr(q,2)}
              v_add_f32 v{s}, v{s}, v{s+1}
              v_pk_fma_f32 {vr(q,2)}, {vr(d+6,2)}, {vr(d+6,2)}, {vr(q,2)}
              v_add_f32 v{q}, v{q}, v{q+1}""")
        k(f"""v_permlane32_swap_b32 v{s}, v{q}
              v_add_f32 v{s}, v{s}, v{q}""")
        for r in (8, 4, 2, 1):
            k(f"v_add_f32_dpp v{s}, v{s}, v{s} row_ror:{r} row_mask:0xf bank_mask:0xf")
        k(f"""v_mov_b32 v{q}, v{s}
              v_permlane16_swap_b32 v{s}, v{q}
              v_add_f32 v{s}, v{s}, v{q}
              v_mul_f32 v{s}, {f32(1.0/512)}, v{s}
              v_mov_b32 v{q}, v{s}
              v_permlane32_swap_b32 v{s}, v{q}
              v_fma_f32 v{q}, -v{s}, v{s}, v{q}
              v_add_f32 v{s}, s{c}, v{s}
              v_max_f32 v{q}, 0, v{q}
              v_cvt_pk_bf16_f32 v{q}, v{s}, v{q}
              v_lshlrev_b32 v{s}, 16, v{q}
              v_and_b32 v{q}, 0xffff0000, v{q}
              v_add_f32 v{q}, {f32(1e-5)}, v{q}""")
        self.round1(q)
        k(f"v_sqrt_f32 v{q}, v{q}")
        for j in range(0, 8, 2):
            k(f"v_pk_add_f32 {vr(d+j,2)}, {vr(x+j,2)}, {vr(s,2)} op_sel_hi:[1,0] neg_lo:[0,1] neg_hi:[0,1]")
        self.round1(q)
        k(f"v_rcp_f32 v{q}, v{q}")
        self.pack8(ypk, d)
        self.unpack8(d, ypk)
        for j in range(0, 8, 2):
            k(f"v_pk_mul_f32 {vr(d+j,2)}, {vr(d+j,2)}, {vr(q,2)} op_sel_hi:[1,0]")
        self.pack8(ypk, d)

    def add8(self, x, y):
        for j in range(0, 8, 2):
            self.k(f"v_pk_add_f32 {vr(x+j,2)}, {vr(x+j,2)}, {vr(y+j,2)}")

    def arrive(self):
        k = self.k
        D = k.newlabel("L_ar")
        k(f"""s_barrier
              s_cmp_lg_u32 s{S_W}, 0
              s_cbranch_scc1 {D}
              v_mov_b32 v8, 128
              v_mov_b32 v9, s{S_CNT}
              s_mov_b64 exec, 1
              buffer_atomic_add v9, v8, {DBG}, 0 offen
              s_mov_b64 exec, -1""")
        k.label(D)
        k(f"s_mov_b32 s{S_CNT}, 0")
        self.ev(1, va=10)

    def wait_all(self, quick=False):
        k = self.k
        L = k.newlabel("L_gb"); D = k.newlabel("L_gbd")
        k(f"""v_mov_b32 v123, {L_MISC}
              s_cmp_lg_u32 s{S_W}, 0
              s_cbranch_scc1 {D}
              v_mov_b32 v124, 128""")
        if quick:
            k(f"""s_buffer_load_dword s{S_T}, {DBG}, 128
                  s_waitcnt lgkmcnt(0)
                  v_mov_b32 v125, s{S_T}
                  ds_write_b32 v123, v125
                  s_bitcmp1_b32 s{S_T}, 8
                  s_cbranch_scc1 {D}""")
        k.label(L)
        k(f"""buffer_load_dword v125, v124, {DBG}, 0 offen sc1
              s_waitcnt vmcnt(0)
              v_readfirstlane_b32 s{S_T}, v125
              ds_write_b32 v123, v125
              s_bitcmp1_b32 s{S_T}, 8
              s_cbranch_scc1 {D}
              s_sleep 4""")
        self.budget(L)
        k.label(D)
        k(f"""s_waitcnt lgkmcnt(0)
              s_barrier
              ds_read_b32 v125, v123
              s_waitcnt lgkmcnt(0)
              v_readfirstlane_b32 s{S_T}, v125
              s_barrier
              s_lshr_b32 s{S_T}, s{S_T}, 16
              s_andn2_b32 s{S_T}, s{S_T}, s{S_SLOW}
              s_cbranch_scc1 L_spread""")

    def page(self, dst, off, seg=S_SEG, head=True):
        k = self.k
        k(f"s_lshl_b32 s{dst}, s{seg}, 13")
        if head:
            k(f"s_lshl2_add_u32 s{dst}, s{S_H}, s{dst}")
        k(f"s_add_u32 s{dst}, s{dst}, {PG_OFF + off}")

    def word_wait(self, s_off, s_val, va=125, sleep=0, quick=False):
        k = self.k
        L, D = k.newlabel("L_ww"), k.newlabel("L_wwd")
        if quick:
            k(f"""s_buffer_load_dword s{s_val}, {WS}, s{s_off}
                  s_waitcnt lgkmcnt(0)
                  s_cmp_lg_u32 s{s_val}, 0
                  s_cbranch_scc1 {D}""")
        k.label(L)
        if sleep:
            k(f"s_sleep {sleep}")
        k(f"buffer_load_dword v{va}, off, {WS}, s{s_off} sc1")
        self.spend()
        k(f"""s_waitcnt vmcnt(0)
              v_readfirstlane_b32 s{s_val}, v{va}
              s_cmp_eq_u32 s{s_val}, 0
              s_cbranch_scc1 {L}""")
        k.label(D)

    def stamp(self, name):
        pts = self.opt.get("pts", [0, 1, 2, 3, 4, 5, 6, 7])
        if self.stamps > 1 and name in pts:
            i = pts.index(name)
            self.k(f"s_memtime s[{84+2*i}:{85+2*i}]")

    def ev(self, tag, va=126, clk="s_memrealtime"):
        if not self.stamps:
            return
        k = self.k
        D = k.newlabel("L_ps")
        k(f"""s_cmp_lg_u32 s{S_W}, 0
              s_cbranch_scc1 {D}
              {clk} s[82:83]
              s_or_b32 s100, s{S_SEG}, {tag << 8}
              s_waitcnt lgkmcnt(0)
              s_mov_b64 exec, 1
              v_mov_b32 v{va}, s82
              v_mov_b32 v{va+1}, s100
              buffer_store_dwordx2 {vr(va,2)}, off, {WS}, s{S_EV}
              s_mov_b64 exec, -1
              s_add_u32 s{S_EV}, s{S_EV}, 8""")
        k.label(D)

    def mark(self, tag):
        if self.stamps != 1 or tag not in self.opt.get("marks", ()):
            return
        i = len(self.pend); assert i < 6
        self.pend.append(tag)
        self.k(f"{'s_memtime' if self.opt.get('mt') else 's_memrealtime'} s[{88+2*i}:{89+2*i}]")

    def flush(self, va=126):
        if not self.pend:
            return
        k = self.k
        D = k.newlabel("L_fl")
        k(f"""s_cmp_lg_u32 s{S_W}, 0
              s_cbranch_scc1 {D}
              s_waitcnt lgkmcnt(0)
              s_mov_b64 exec, 1""")
        for i, tag in enumerate(self.pend):
            k(f"""s_or_b32 s100, s{S_SEG}, {tag << 8}
                  v_mov_b32 v{va}, s{88+2*i}
                  v_mov_b32 v{va+1}, s100
                  buffer_store_dwordx2 {vr(va,2)}, off, {WS}, s{S_EV}
                  s_add_u32 s{S_EV}, s{S_EV}, 8""")
        k("s_mov_b64 exec, -1")
        k.label(D)
        self.pend = []

    def prologue(self):
        k = self.k
        k(f"""s_cmp_ge_u32 s2, 256
              s_cbranch_scc1 L_abort
              s_load_dwordx16 s[16:31], s[0:1], 0
              s_load_dwordx8 s[32:39], s[0:1], 64
              s_load_dwordx4 s[40:43], s[0:1], 96
              s_load_dwordx2 s[44:45], s[0:1], 112
              v_lshrrev_b32 v2, 6, v0
              v_and_b32 v{V_LANE}, 63, v0
              v_readfirstlane_b32 s{S_W}, v2
              v_lshlrev_b32 v{V_L16}, 4, v{V_LANE}
              s_getreg_b32 s{S_G}, hwreg(HW_REG_XCC_ID)
              s_and_b32 s{S_G}, s{S_G}, {self.opt.get("xmask", 7)}
              s_mov_b32 s{S_BUD}, 100000
              s_mov_b32 s{S_C}, {f32(SCALE_LOG2E)}
              s_waitcnt lgkmcnt(0)
              s_mov_b32 s{SRD_WS}, s{P_WS}
              s_mov_b32 s{SRD_WS+1}, s{P_WS+1}
              s_mov_b32 s{SRD_WS+2}, {WS_SIZE}
              s_mov_b32 s{SRD_WS+3}, 0x20000
              s_mov_b32 s{SRD_DBG}, s{P_DBG}
              s_mov_b32 s{SRD_DBG+1}, s{P_DBG+1}
              s_mov_b32 s{SRD_DBG+2}, 256
              s_mov_b32 s{SRD_DBG+3}, 0x20000""")
        T = k.newlabel("L_tk")
        k(f"""s_cmp_lg_u32 s{S_W}, 0
              s_cbranch_scc1 {T}
              s_lshl_b32 s{S_T}, s{S_G}, 2
              v_mov_b32 v14, s{S_T}
              v_mov_b32 v15, 1
              s_or_b32 s{S_T}, s{S_G}, 8
              v_mov_b32 v16, s{S_T}
              v_mov_b32 v17, 0
              s_mov_b64 exec, 1
              buffer_atomic_cmpswap v[16:17], off, {DBG}, 0 offset:192 sc0
              buffer_atomic_add v15, v14, {DBG}, 0 offen sc0
              s_mov_b64 exec, -1""")
        k.label(T)
        self.init_ws()
        T = k.newlabel("L_tk")
        k(f"""s_cmp_lg_u32 s{S_W}, 0
              s_cbranch_scc1 {T}
              s_mov_b64 exec, 1
              v_mov_b32 v4, {L_MISC}
              ds_write2_b32 v4, v15, v16 offset1:1
              s_mov_b64 exec, -1
              s_waitcnt lgkmcnt(0)""")
        k.label(T)
        k(f"""s_barrier
              v_mov_b32 v4, {L_MISC}
              ds_read_b64 v[2:3], v4
              s_waitcnt lgkmcnt(0)
              v_readfirstlane_b32 s{S_H}, v2
              v_readfirstlane_b32 s{S_T}, v3
              s_cmp_eq_u32 s{S_T}, 0
              s_cselect_b32 s{S_T}, s{S_G}, s{S_T}
              s_and_b32 s{S_T}, s{S_T}, {self.opt.get("first", 7)}
              s_xor_b32 s{S_G}, s{S_G}, s{S_T}
              s_lshl_b32 s{S_G}, s{S_G}, 2
              s_lshr_b32 s{S_G}, {sum(g << (4*x) for x, g in enumerate(self.opt.get("map", (0, 6, 2, 4, 1, 7, 3, 5))))}, s{S_G}
              s_and_b32 s{S_G}, s{S_G}, 7
              s_mov_b32 s{S_SLOW}, 0
              s_cmp_ge_u32 s{S_H}, 32
              s_cselect_b32 s{S_CNT}, 0x10001, 1
              s_and_b32 s{S_H}, s{S_H}, 31
              s_lshl_b32 s{S_LW}, s{S_W}, 10
              s_cmp_eq_u32 s{S_W}, 0
              s_cselect_b32 s{S_OOB}, 0, 0x80000000
              s_mov_b32 s{S_ONE}, 0x3f803f80
              s_mov_b32 s{S_ONE+1}, 0x3f803f80
              s_mov_b32 s{S_SEG}, 0""")
        if self.opt.get("mix", 1):
            k(f"""s_bfe_u32 s{S_T}, s{S_G}, 0x10001
                  s_and_b32 s{S_T+1}, s{S_G}, 1
                  s_add_u32 s{S_T+2}, s{S_T}, 6
                  s_sub_u32 s{S_T+3}, 5, s{S_T+1}
                  s_cmp_ge_u32 s{S_H}, 16
                  s_cselect_b32 s{S_T+2}, s{S_T+2}, s{S_T+3}
                  s_cselect_b32 s{S_T+1}, s{S_T+1}, s{S_T}
                  s_and_b32 s{S_T+3}, s{S_H}, 15
                  s_lshl4_add_u32 s{S_T+1}, s{S_T+1}, s{S_T+3}
                  s_cmp_ge_u32 s{S_G}, 4
                  s_cselect_b32 s{S_G}, s{S_T+2}, s{S_G}
                  s_cselect_b32 s{S_H}, s{S_T+1}, s{S_H}""")
        if self.stamps:
            k(f"""s_lshl_b32 s{S_EV}, s{S_G}, 5
                  s_add_u32 s{S_EV}, s{S_EV}, s{S_H}
                  s_lshl_b32 s{S_EV}, s{S_EV}, 12
                  s_add_u32 s{S_EV}, s{S_EV}, {STAMP_OFF + MB}""")

    def init_ws(self):
        k = self.k
        self.srd(P_X, 2048 * 1024)
        k(f"""s_lshl_b32 s{S_T}, s2, 3
              s_lshl_b32 s{S_T+3}, s{S_W}, 1
              s_add_u32 s{S_T}, s{S_T}, s{S_T+3}
              s_lshl_b32 s{S_T+3}, s{S_T}, 10
              buffer_load_dwordx4 v[24:27], v{V_L16}, {SA}, s{S_T+3} offen
              buffer_load_dwordx4 v[28:31], v{V_L16}, {SA}, s{S_T+3} offen offset:1024""")
        k(f"""s_lshl_b32 s{S_T}, s2, 12
              s_lshl_b32 s{S_T+1}, s{S_W}, 10
              s_add_u32 s{S_T}, s{S_T}, s{S_T+1}
              v_add_u32 v2, s{S_T}, v{V_L16}
              v_mov_b32 v4, -1
              v_mov_b32 v5, -1
              v_mov_b32 v6, -1
              v_mov_b32 v7, -1
              v_mov_b32 v8, 0
              v_mov_b32 v9, 0
              v_mov_b32 v10, 0
              v_mov_b32 v11, 0""")
        k(f"""v_cmp_gt_u32 vcc, {512*KB}, v2
              v_mov_b32 v3, {PC_OFF[0] - 512*KB}
              v_mov_b32 v12, {MEM_OFF[0] + 8*KB}
              v_cndmask_b32 v3, v3, v12, vcc
              v_add_u32 v3, v3, v2""")
        for c in range(3):
            k(f"s_mov_b32 s{S_T}, {c*MB}")
            k(f"buffer_store_dwordx4 v[4:7], v3, {WS}, s{S_T} offen sc1")
        for i in range(2):
            k(f"s_mov_b32 s{S_T}, {X1_OFF[0] + i*MB}")
            k(f"buffer_store_dwordx4 v[4:7], v2, {WS}, s{S_T} offen sc1")
        k(f"""v_add_u32 v3, {MEMX_OFF + 8*KB - 512*KB}, v2
              v_mov_b32 v12, 0x80000000
              v_cndmask_b32 v3, v3, v12, vcc
              buffer_store_dwordx4 v[4:7], v3, {WS}, 0 offen sc1
              v_cmp_gt_u32 vcc, {NPAGES*2*KB}, v2
              v_lshrrev_b32 v3, 11, v2
              v_lshlrev_b32 v3, 13, v3
              v_and_b32 v13, 0x7ff, v2
              v_add_u32 v3, v3, v13
              v_add_u32 v3, {PG_OFF}, v3
              v_cndmask_b32 v3, v12, v3, vcc
              buffer_store_dwordx4 v[8:11], v3, {WS}, 0 offen sc1
              v_add_u32 v3, {HPS_OFF - 256*KB}, v2
              v_lshrrev_b32 v13, 16, v2
              v_cmp_eq_u32 vcc, 4, v13
              v_cndmask_b32 v3, v12, v3, vcc
              buffer_store_dwordx4 v[4:7], v3, {WS}, 0 offen sc1""")
        k("s_waitcnt vmcnt(8)")
        assert H_OFF[0] == 0
        for i in range(2):
            self.unpack8(32, 24 + 4 * i)
            self.layernorm(32, 40 + 4 * i, 48)
            k(f"buffer_store_dwordx4 {vr(40+4*i,4)}, v{V_L16}, {WS}, s{S_T+3} offen offset:{1024*i} sc1")
        D = k.newlabel("L_m0")
        self.srd(P_MEM0, 8192)
        k(f"""s_cmp_ge_u32 s2, 2
              s_cbranch_scc1 {D}
              s_lshl_b32 s{S_T}, s2, 2
              s_add_u32 s{S_T}, s{S_T}, s{S_W}          ; ks
              v_bfe_u32 v2, v{V_LANE}, 2, 2
              v_and_b32 v3, 1, v{V_LANE}
              v_lshl_add_u32 v2, v2, 1, v3               ; m
              v_lshlrev_b32 v2, 10, v2
              v_lshrrev_b32 v3, 4, v{V_LANE}
              v_lshl_add_u32 v2, v3, 5, v2               ; + ga*32
              v_and_b32 v3, 2, v{V_LANE}
              v_lshl_add_u32 v2, v3, 1, v2               ; + hi*4
              s_lshl_b32 s{S_T+1}, s{S_T}, 7             ; ks*128""")
        for q in range(4):
            k(f"buffer_load_dword v{32+q}, v2, {SA}, s{S_T+1} offen offset:{8*q}")
        self.mfrag_voff(2, 3)
        k(f"""s_and_b32 s{S_T+1}, s{S_T}, 1
              s_lshl_b32 s{S_T+1}, s{S_T+1}, 8
              s_and_b32 s{S_T+2}, s{S_T}, 2
              s_lshl_b32 s{S_T+2}, s{S_T+2}, 6
              s_add_u32 s{S_T+1}, s{S_T+1}, s{S_T+2}
              s_and_b32 s{S_T+2}, s{S_T}, 4
              s_lshl_b32 s{S_T+2}, s{S_T+2}, 10
              s_add_u32 s{S_T+1}, s{S_T+1}, s{S_T+2}
              s_waitcnt vmcnt(0)""")
        for off in (MEM_OFF[0], MEM_OFF[1], MEMX_OFF):
            k(f"s_add_u32 s{S_T+2}, s{S_T+1}, {off}")
            k(f"buffer_store_dwordx4 v[32:35], v2, {WS}, s{S_T+2} offen sc1")
        k.label(D)

    def mfrag_voff(self, dst, t):
        self.k(f"""v_lshrrev_b32 v{dst}, 3, v{V_LANE}
                   v_lshlrev_b32 v{dst}, 9, v{dst}
                   v_and_b32 v{t}, 7, v{V_LANE}
                   v_lshl_add_u32 v{dst}, v{t}, 4, v{dst}""")

    def load_qkv(self):
        k = self.k
        GA, RE, RO, TE, TO = 2, 3, 4, 5, 6
        sB, sL, sR, sG = S_T + 2, S_T + 3, S_T + 7, S_T + 4
        k(f"""v_lshrrev_b32 v{GA}, 2, v{V_LANE}
              v_lshrrev_b32 v{RE}, 5, v{V_LANE}
              v_xor_b32 v{GA}, v{GA}, v{RE}                  ; place p holds row p ^ (p >> 3 & 1)
              v_lshlrev_b32 v{GA}, 13, v{GA}
              v_and_b32 v{RE}, 3, v{V_LANE}
              v_lshl_add_u32 v{GA}, v{RE}, 4, v{GA}
              v_and_b32 v{RE}, 15, v{V_LANE}
              v_lshlrev_b32 v{RE}, 2, v{RE}
              v_lshrrev_b32 v{RO}, 4, v{V_LANE}
              v_lshl_add_u32 v{RE}, v{RO}, 9, v{RE}
              v_and_b32 v{RO}, 1, v{RO}
              v_lshl_add_u32 v{RE}, v{RO}, 6, v{RE}
              s_lshl_b32 s{sL}, s{S_W}, 15
              s_cmp_lt_u32 s{S_G}, 3
              s_cselect_b32 s{sR}, s{S_W}, 0
              s_lshl_b32 s{S_T}, s{sR}, 12
              s_add_u32 s{S_T}, s{sL}, s{S_T}
              v_add_u32 v{RE}, s{S_T}, v{RE}
              v_xor_b32 v{RO}, 64, v{RE}
              s_lshl_b32 s{sB}, s{S_H}, 8
              s_lshl_b32 s{S_T}, s{S_W}, 6
              s_add_u32 s{sB}, s{sB}, s{S_T}
              s_mov_b32 s{S_T+5}, 0x05040100
              s_mov_b32 s{S_T+6}, 0x07060302""")
        mats = (("k", P_WK), ("v", P_WV), ("q", P_WQ))
        def issue(n):
            if n % 16 == 0:
                self.srd(mats[n // 16][1], 4 * MB)
            kk = n % 16
            k(f"""s_xor_b32 m0, s{sL}, {kk * 2048}
                  s_xor_b32 s{sG}, s{sB}, {kk * 32 * 8192}
                  buffer_load_dwordx4 v{GA}, {SA}, s{sG} offen lds
                  s_add_u32 m0, m0, 1024
                  s_add_u32 s{sG}, s{sG}, {16 * 8192}
                  buffer_load_dwordx4 v{GA}, {SA}, s{sG} offen lds""")
        def reads(n):
            kk = n % 16; b = 96 + 8 * (n & 1)
            k(f"""v_xor_b32 v{TE}, {kk * 2048}, v{RE}
                  v_xor_b32 v{TO}, {kk * 2048}, v{RO}
                  ds_read2_b32 {vr(b,2)}, v{TE} offset1:32
                  ds_read2_b32 {vr(b+4,2)}, v{TO} offset1:32
                  ds_read2_b32 {vr(b+2,2)}, v{TE} offset0:64 offset1:96
                  ds_read2_b32 {vr(b+6,2)}, v{TO} offset0:64 offset1:96""")
        for n in range(16):
            issue(n)
        k("s_waitcnt vmcnt(30)")
        self.arrive()
        for n in range(48):
            m = mats[n // 16][0]; kk = n % 16; b = 96 + 8 * (n & 1)
            if n == 40:
                NW, J_ = k.newlabel("L_lw"), k.newlabel("L_lj")
                self.load_wo(0, skip=f"""s_cmp_ge_u32 s{S_G}, 3
                                         s_cbranch_scc1 {NW}""")
                k(f"""s_waitcnt vmcnt(16)
                      s_branch {J_}
                      {NW}:
                      s_waitcnt vmcnt(0)
                      {J_}:""")
            elif n % 8 == 0:
                k("s_waitcnt vmcnt(16)")
            if n % 8 == 0:
                reads(n)
            if n % 8 < 7:
                reads(n + 1)
            k(f"s_waitcnt lgkmcnt({4 if n % 8 < 7 else 0})")
            if n % 8 == 7 and n + 9 < 48:
                for x in range(n + 9, n + 17):
                    issue(x)
            for t in range(2):
                for q in range(4):
                    d = (0 if m == "q" else 128) + ((kk >> 1) * 2 + t) * 8 + 4 * (kk & 1) + q
                    k(f"v_perm_b32 v{d if m == 'v' else 112+4*t+q}, v{b+4+q}, v{b+q}, s{S_T+5+t}")
            if m != "v":
                for t in range(2):
                    for q in range(4):
                        d = (0 if m == "q" else 128) + ((kk >> 1) * 2 + t) * 8 + 4 * (kk & 1) + q
                        k(f"v_accvgpr_write_b32 a{d}, v{112+4*t+q}")

    def wo_slot(self, dst, c, g, t):
        self.k(f"""v_and_b32 v{dst}, 1, v{g}
                   v_xor_b32 v{dst}, v{dst}, v{c}
                   v_and_b32 v{dst}, 3, v{dst}
                   v_lshrrev_b32 v{t}, 2, v{c}
                   v_lshl_add_u32 v{dst}, v{dst}, 2, v{t}
                   v_lshl_add_u32 v{dst}, v{g}, 4, v{dst}
                   v_lshlrev_b32 v{dst}, 4, v{dst}""")

    def load_wo(self, part, extra=0, skip=""):
        k = self.k
        GA, WE, WO_ = 92, 93, 94
        NB = 4
        if part == 0:
            self.srd(P_WO, 4 * MB)
            k(f"""v_and_b32 v{GA}, 3, v{V_LANE}
                  v_lshlrev_b32 v{WE}, 4, v{GA}
                  v_bfe_u32 v{WO_}, v{V_LANE}, 2, 2
                  v_lshl_add_u32 v{GA}, v{WO_}, 12, v{WE}
                  v_lshl_add_u32 v{WE}, v{WO_}, 8, v{WE}
                  v_and_b32 v{WO_}, 1, v{WO_}
                  v_lshl_add_u32 v{WE}, v{WO_}, 6, v{WE}
                  v_lshrrev_b32 v{WO_}, 4, v{V_LANE}
                  v_lshl_add_u32 v{GA}, v{WO_}, 8, v{GA}
                  v_lshl_add_u32 v{WE}, v{WO_}, 13, v{WE}
                  s_lshl_b32 s{S_T}, s{S_W}, 15
                  v_add_u32 v{WE}, s{S_T}, v{WE}
                  v_xor_b32 v{WO_}, 64, v{WE}
                  s_lshl_b32 s{S_T}, s{S_H}, 17
                  s_lshl_b32 s{S_T+1}, s{S_W}, 6
                  s_add_u32 s{S_T}, s{S_T}, s{S_T+1}
                  v_add_u32 v{GA}, s{S_T}, v{GA}
                  {skip}""")
        def issue(i):
            k(f"s_mov_b32 s{S_T}, {i * 16 * 1024}")
            for j in range(4):
                k(f"buffer_load_dwordx4 {vr(24+16*(i%NB)+4*j,4)}, v{GA}, {SA}, s{S_T} offen offset:{j*1024}")
        for i in range(NB if part == 0 else 0):
            issue(i)
        for i in {0: (), 1: range(8), 2: range(8 - NB), 3: range(8 - NB, 8)}[part]:
            b = 24 + 16 * (i % NB)
            k(f"s_waitcnt vmcnt({min(7 - i, NB - 1) * 4 + extra})")
            for x in range(4):
                for y in range(x + 1, 4):
                    k(f"v_swap_b32 v{b+4*x+y}, v{b+4*y+x}")
            for q in range(4):
                k(f"ds_write_b128 v{WO_ if q & 1 else WE}, {vr(b+4*q,4)} offset:{i*1024 + (q>>1)*128}")
            if i + NB < 8:
                k("s_waitcnt lgkmcnt(0)")
                issue(i + NB)

    def qkv_base(self, dst, which):
        self.k(f"""s_lshl_b32 s{dst}, s{S_SEG}, 5
                   s_add_u32 s{dst}, s{dst}, s{S_H}
                   s_mul_i32 s{dst}, s{dst}, {24*KB}
                   s_add_u32 s{dst}, s{dst}, {QKV_OFF[which] if isinstance(which, int) else which}""")

    def t1_dma(self, s_h, quarters, voff=None, reg=0, sb=S_LW):
        voff = voff or (self.THD, self.THD)
        out = []
        for qi in quarters:
            for u in range(2):
                out.append(f"s_add_u32 m0, s{sb}, {self.LH + reg*32*KB + qi*8192 + u*4096 - qi*256}")
                out.append(f"buffer_load_dwordx4 v{voff[u]}, {WS}, s{s_h+u} offen offset:{qi*256} sc1 lds")
        return out

    def t1_src(self, dst, seg, hreg):
        self.k(f"""s_lshl_b32 s{dst}, s{seg}, 15
                   s_add_u32 s{dst}, s{dst}, {H_OFF[hreg]}
                   s_add_u32 s{dst+1}, s{dst}, {16*KB}""")

    def flag_store(self, s_off, loc):
        self.k(f"""s_or_b32 s{s_off}, s{s_off}, s{S_OOB}
                   buffer_store_dword v{self.TOB}, off, {WS}, s{s_off}{loc}""")

    def t1(self, which, s_h, voff=None, pre=0, nxt=None, s_flag=None, extra=(), x_flag=None, qloc=False, s_keep=0, rot=False):
        k = self.k
        ACC = 24; RING = (72, 80, 108)
        aq = lambda t, u: ACC + (t * 2 + u) * 4
        ak = lambda t, u: ACC + 16 + (t * 2 + u) * 4
        av = lambda t, u: ACC + 32 + (t * 2 + u) * 4
        first, later = ((0, 1), (2, 3)) if rot else ((0, 1, 2), (3,))
        if not pre:
            for x in self.t1_dma(s_h, first, voff):
                k(x)
        self.qkv_base(S_T + 2, which)
        k(f"""s_add_u32 s{S_T+5}, s{S_T+2}, s{S_LW}      ; K u0
              s_add_u32 s{S_T+6}, s{S_T+5}, 4096         ; K u1
              s_add_u32 s{S_T+7}, s{S_T+5}, {16*KB}      ; Q u0
              s_add_u32 s{S_T+8}, s{S_T+5}, {20*KB}      ; Q u1
              s_add_u32 s{S_T+9}, s{S_T+5}, s{S_LW}
              s_add_u32 s{S_T+9}, s{S_T+9}, {8*KB}       ; V""")
        if rot:
            rd = lambda kk: [f"ds_read_b128 {vr(RING[kk%3]+4*u,4)}, v{self.THR+(kk&7)} offset:{(kk>>3)*16384+u*4096}" for u in range(2)]
        else:
            rd = lambda kk: [f"ds_read_b128 {vr(RING[kk%3]+4*u,4)}, v{self.THR+(kk&3)} offset:{(kk>>2)*8192+u*4096}" for u in range(2)]
        k(f"s_waitcnt vmcnt({(0 if rot else 4) + pre})")
        k("s_barrier")
        self.mark(self.mk + 0)
        for x in rd(0) + rd(1):
            k(x)
        for x in self.t1_dma(s_h, later, voff):
            k(x)
        for x in extra:
            k(x)
        ne = len(extra); nl = 2 * len(later)
        side = []
        for kk in range(16):
            b = RING[kk % 3]
            n = kk + 2
            last_q = (n == 8) if rot else (n == 12)
            if last_q:
                k(f"s_waitcnt vmcnt({1 if (s_flag and not rot) else 0})")
                k("s_barrier")
                if x_flag:
                    self.flag_store(x_flag, " sc1")
                if s_flag and rot:
                    self.flag_store(s_flag, " sc1")
            elif not rot and n in (4, 8):
                k(f"s_waitcnt vmcnt({(2 if n == 4 else 0) + pre + nl + ne})")
                k("s_barrier")
            if kk == 7 and s_flag and not rot:
                assert not extra
                k(f"s_waitcnt vmcnt({nl + s_keep})")
                k("s_barrier")
                self.flag_store(s_flag, " sc1")
            if kk == 12 and nxt:
                k("s_barrier")
                side = list(nxt)
            k(f"s_waitcnt lgkmcnt({2 if kk < 15 else 0})")
            ks, hf = kk >> 1, kk & 1
            fill = rd(n) if n < 16 else []
            i = 0
            for t in range(2):
                for u in range(2):
                    h = vr(b + 4 * u, 4)
                    for acc, w, tr in ((ak, wk, True), (av, wv, False), (aq, wq, True)):
                        d = vr(acc(t, u), 4)
                        c = "0" if kk == 0 else d
                        a_, b_ = (w(ks, t, hf), h) if tr else (h, w(ks, t, hf))
                        k(f"v_mfma_f32_16x16x32_bf16 {d}, {a_}, {b_}, {c}")
                        i += 1
                        if fill and i % 2 == 1:
                            k(fill.pop(0))
                        elif side:
                            k(side.pop(0))
        assert not side
        self.mark(self.mk + 3)
        if which == 0:
            k(f"""s_lshl_b32 s{S_T}, s{S_SEG}, 5
                  s_add_u32 s{S_T}, s{S_T}, s{S_H}
                  s_lshl_b32 s{S_T}, s{S_T}, 12
                  s_add_u32 s{S_T}, s{S_T}, s{S_LW}
                  s_add_u32 s{S_T}, s{S_T}, {KVM_OFF[0]}
                  v_mov_b64 v[120:121], -1
                  v_mov_b64 v[122:123], -1
                  buffer_store_dwordx4 v[120:123], v{V_L16}, {WS}, s{S_T} offen sc1""")
        for i, (acc, so) in enumerate(((ak, S_T + 5), (aq, S_T + 7))):
            for u in range(2):
                p = RING[2 * i] + u * 4
                for r in range(4):
                    k(f"v_cvt_pk_bf16_f32 v{p+r}, v{acc(0,u)+r}, v{acc(1,u)+r}")
                k(f"buffer_store_dwordx4 {vr(p,4)}, v{V_L16}, {WS}, s{so+u} offen{'' if (i == 1 and qloc) else ' sc1'}")
            if i == 0:
                for t in range(2):
                    p = RING[1] + t * 4
                    for u in range(2):
                        k(f"v_cvt_pk_bf16_f32 v{p+2*u}, v{av(t,u)}, v{av(t,u)+1}")
                        k(f"v_cvt_pk_bf16_f32 v{p+2*u+1}, v{av(t,u)+2}, v{av(t,u)+3}")
                    k(f"buffer_store_dwordx4 {vr(p,4)}, v{V_L16}, {WS}, s{S_T+9} offen offset:{t*1024} sc1")

    def t1b(self, which, s_h, landed=False, reg=0, s_flag=None, voff=None, nxt=(), early=True, sb=S_LW, peek=None, lead=()):
        k = self.k
        HB = 104; ND = 3
        aq = lambda t, u: 88 + (t * 2 + u) * 4
        ak = lambda t, u: 24 + (t * 2 + u) * 4
        av = lambda t, u: 40 + (t * 2 + u) * 4
        big = self.LH != L_H
        if not landed:
            for x in self.t1_dma(s_h, (0, 1, 2, 3) if big else (0, 1, 2), voff, reg, sb):
                k(x)
        np_ = 0
        pk0 = []
        if peek and landed:
            pk0 = [x.strip() for x in peek[0].split("\n")]
        elif peek:
            k(peek[0]); np_ = 1
        n0_ = len(k.lines)
        self.qkv_base(S_T + 2, which)
        k(f"""s_add_u32 s{S_T+5}, s{S_T+2}, s{S_LW}      ; K u0
              s_add_u32 s{S_T+6}, s{S_T+5}, 4096         ; K u1
              s_add_u32 s{S_T+7}, s{S_T+5}, {16*KB}      ; Q u0
              s_add_u32 s{S_T+8}, s{S_T+5}, {20*KB}      ; Q u1
              s_add_u32 s{S_T+9}, s{S_T+5}, s{S_LW}
              s_add_u32 s{S_T+9}, s{S_T+9}, {8*KB}       ; V""")
        addr = list(lead) + k.lines[n0_:]; del k.lines[n0_:]
        rd = lambda n: [f"ds_read_b128 {vr(HB+(n%ND)*8+4*u,4)}, v{self.THR+(n&3)} offset:{reg*32*KB+((n&15)>>2)*8192+u*4096}" for u in range(2)]
        if not landed:
            k(f"s_waitcnt vmcnt({(6 if big else 4) + np_})")
            k("s_barrier")
        self.mark(self.mk + 0)
        for x in rd(0) + rd(1):
            k(x)
        if not landed and not big:
            for x in self.t1_dma(s_h, (3,), voff, reg):
                k(x)
        first = []
        if which < 2:
            first += [f"s_lshl_b32 s{S_T}, s{S_SEG}, 5\ns_add_u32 s{S_T}, s{S_T}, s{S_H}\ns_lshl_b32 s{S_T}, s{S_T}, 12",
                      f"s_add_u32 s{S_T}, s{S_T}, s{S_LW}\ns_add_u32 s{S_T}, s{S_T}, {KVM_OFF[which]}"]
            first += [f"v_mov_b64 v[72:73], -1\nv_mov_b64 v[74:75], -1"]
            first += [f"buffer_store_dwordx4 v[72:75], v{V_L16}, {WS}, s{S_T} offen sc1"]
            if which:
                first += [f"s_add_u32 s{S_T}, s{S_T}, {KVM_OFF[2] - KVM_OFF[1]}", first[-1]]
        first = ((first + [""] * 6)[:max(6, len(first))] + list(nxt)) if peek else list(nxt) + first
        look = list(peek[1]) if peek else []
        side = []
        P = 56
        for u in range(2):
            for r in range(4):
                side.append(f"v_cvt_pk_bf16_f32 v{P+4*u+r}, v{ak(0,u)+r}, v{ak(1,u)+r}")
            side.append(f"buffer_store_dwordx4 {vr(P+4*u,4)}, v{V_L16}, {WS}, s{S_T+5+u} offen sc1")
        for t in range(2):
            p = P + 8 + t * 4
            for u in range(2):
                side.append(f"v_cvt_pk_bf16_f32 v{p+2*u}, v{av(t,u)}, v{av(t,u)+1}")
                side.append(f"v_cvt_pk_bf16_f32 v{p+2*u+1}, v{av(t,u)+2}, v{av(t,u)+3}")
            side.append(f"buffer_store_dwordx4 {vr(p,4)}, v{V_L16}, {WS}, s{S_T+9} offen offset:{t*1024} sc1")
        if peek:
            side += [""] * self.opt.get("pk2", 4) + [x.strip() for x in peek[0].split("\n")]
        for n in range(32):
            kk = n & 15
            b = HB + (n % ND) * 8
            m = n + 2
            if m in (4, 8, 12) and (not landed or (m == 12 and s_flag)):
                k(f"s_waitcnt vmcnt({(12 - m) // 2 + np_})" if m < 12 else "s_waitcnt vmcnt(0) lgkmcnt(0)" if peek else "s_waitcnt vmcnt(0)")
                k("s_barrier")
                if m == 12 and s_flag:
                    self.flag_store(s_flag, " sc1")
                if m == 12 and peek:
                    k(peek[2])
            if n in (9, 11, 16):
                self.mark(self.mk + {9: 1, 11: 2, 16: 3}[n])
            if not (peek and m == 12):
                k(f"s_waitcnt lgkmcnt({2 if n < 31 else 0})")
            ks, hf = kk >> 1, kk & 1
            fill = rd(m) if m < 32 else []
            i = 0
            cur = first if 10 <= n < 16 else (side if n > 16 else look if n == 9 else pk0 if n == self.opt.get("pkat", 5) else addr if n < 4 else [])
            for t in range(2):
                for u in range(2):
                    h = vr(b + 4 * u, 4)
                    for acc, w, tr in (((ak, wk, True), (av, wv, False)) if n < 16 else ((aq, wq, True),)):
                        d = vr(acc(t, u), 4)
                        c = "0" if kk == 0 else d
                        a_, b_ = (w(ks, t, hf), h) if tr else (h, w(ks, t, hf))
                        k(f"v_mfma_f32_16x16x32_bf16 {d}, {a_}, {b_}, {c}")
                        i += 1
                        if fill and i % 2 == 1:
                            k(fill.pop(0))
                        elif cur and (n < 16 or not cur[0].startswith("v_")):
                            k(cur.pop(0))
                        if n > 16 or (n == 16 and i > 2):
                            for _ in range(2):
                                if side and side[0].startswith("v_"):
                                    k(side.pop(0))
        assert not first and not side and not look and not addr, (len(first), len(side))
        self.mark(self.mk + 4)
        for u in range(2):
            for r in range(4):
                k(f"v_cvt_pk_bf16_f32 v{HB+4*u+r}, v{aq(0,u)+r}, v{aq(1,u)+r}")
        for u in range(2):
            k(f"buffer_store_dwordx4 {vr(HB+4*u,4)}, v{V_L16}, {WS}, s{S_T+7+u} offen sc1")
        if early:
            self.page(S_T + 3, F_KV[which])
            self.flag_set(S_T + 3, " sc1", keep=3 if peek else 2)
        else:
            k(f"s_waitcnt vmcnt({7 if peek else 6})")
            k("s_barrier")
        self.mark(self.mk + 5)
        self.flush()

    def make_sel(self, dst, t):
        k = self.k
        k(f"""v_and_b32 v{t}, 15, v{V_LANE}
              v_and_b32 v{t+1}, 1, v{V_LANE}
              v_lshlrev_b32 v{t+1}, 4, v{t+1}
              v_mov_b32 v{t+2}, 0x3f80
              v_lshlrev_b32 v{t+2}, v{t+1}, v{t+2}
              v_lshrrev_b32 v{t}, 1, v{t}""")
        for q in range(4):
            k(f"v_cmp_eq_u32 vcc, {q}, v{t}")
            k(f"v_cndmask_b32 v{dst+q}, 0, v{t+2}, vcc")

    def softmax(self, S, P, t, fill=None, half=False):
        k = self.k
        fill = list(fill or [])
        def f(n=1):
            for _ in range(n):
                if fill:
                    k(fill.pop(0))
        if half:
            k(f"""v_max3_f32 v{t}, v{S}, v{S+1}, v{S+2}
                  v_max3_f32 v{t+1}, v{S+3}, v{S+10}, v{S+11}""")
        else:
            k(f"""v_max3_f32 v{t}, v{S}, v{S+1}, v{S+2}
                  v_max3_f32 v{t+1}, v{S+3}, v{S+4}, v{S+5}
                  v_max3_f32 v{t}, v{S+6}, v{S+7}, v{t}
                  v_max3_f32 v{t+1}, v{S+10}, v{S+11}, v{t+1}""")
        k(f"""v_max_f32 v{t}, v{t}, v{t+1}
              v_max_f32 v{t+1}, v{t}, v{t+1}""")
        f()
        k(f"""v_permlane16_swap_b32 v{t}, v{t+1}
              v_max_f32 v{t}, v{t}, v{t+1}
              v_max_f32 v{t+1}, v{t}, v{t+1}""")
        f()
        k(f"""v_permlane32_swap_b32 v{t}, v{t+1}
              v_max_f32 v{t}, v{t}, v{t+1}
              v_mul_f32 v{t}, s{S_C}, v{t}""")
        order = [0, 1, 2, 3, 10, 11] if half else [0, 1, 2, 3, 4, 5, 6, 7, 10, 11]
        k(f"v_fma_f32 v{S+order[0]}, v{S+order[0]}, s{S_C}, -v{t}")
        for n, i in enumerate(order):
            if n + 1 < len(order):
                j = order[n + 1]
                k(f"v_fma_f32 v{S+j}, v{S+j}, s{S_C}, -v{t}")
            k(f"v_exp_f32 v{S+i}, v{S+i}")
        for q in range(2 if half else 4):
            k(f"v_cvt_pk_bf16_f32 v{P+q}, v{S+2*q}, v{S+2*q+1}")
        k(f"v_cvt_pk_bf16_f32 v{P+4}, v{S+10}, v{S+11}")
        f(len(fill))

    def chain(self, c):
        k = self.k
        opt = self.opt
        IDX, IDX2, QKW, QKR0, QKR1, OW, OR, PST, MST, WOB, OB, MV = 2, 3, 4, 5, 6, 7, 8, 9, 10, 11, 55, 13
        MX, CK = 12, 123
        SEL, TCH, STS = 18, 22, 23
        M, KX, VX, QK, VA, T = 24, 56, 88, 96, 112, 120
        sMEM, sPC, sRD, sKV, sKVM, sRST, sM2, sU, sNAN, sW2, sFAIL, sPG, sOK, sREC, sFK, sFKB = (S_T + i for i in range(8, 24))
        sMX, sMXB = S_A, S_B
        sKF, sOK2, sJ = 18, 19, 20
        sPUB, sFK1 = 54, 55
        reg = min(c, 1)
        k(f"""v_and_b32 v{T}, 15, v{V_LANE}          ; c
              v_lshrrev_b32 v{T+1}, 4, v{V_LANE}     ; g
              v_and_b32 v{T+2}, 2, v{V_LANE}
              v_cmp_eq_u32 vcc, 0, v{T+2}
              v_mov_b32 v{IDX}, 0xeeee
              v_mov_b32 v{T+3}, 0x4444
              v_cndmask_b32 v{IDX}, v{IDX}, v{T+3}, vcc
              v_and_b32 v{T+2}, 1, v{V_LANE}
              v_cmp_eq_u32 vcc, 0, v{T+2}
              v_mov_b32 v{IDX2}, 0xdddd
              v_mov_b32 v{T+3}, 0x8888
              v_cndmask_b32 v{IDX2}, v{IDX2}, v{T+3}, vcc""")
        k(f"""v_lshrrev_b32 v{T+2}, 1, v{T}           ; b
              v_bfe_u32 v{T+3}, v{T}, 2, 1
              v_xor_b32 v{T+3}, v{T+3}, v{T+2}
              v_lshlrev_b32 v{QKW}, 7, v{T+3}
              v_and_b32 v{T+3}, 1, v{T}
              v_lshl_add_u32 v{QKW}, v{T+3}, 6, v{QKW}
              v_xor_b32 v{T+3}, v{T+1}, v{T+2}
              v_and_b32 v{T+3}, 3, v{T+3}
              v_lshl_add_u32 v{QKW}, v{T+3}, 4, v{QKW}
              s_lshl_b32 s{S_T}, s{S_W}, 10
              s_add_u32 s{S_T}, s{S_T}, {L_QK}
              v_add_u32 v{QKW}, s{S_T}, v{QKW}""")
        for hh, R in ((0, QKR0), (1, QKR1)):
            k(f"""v_lshlrev_b32 v{T+2}, 1, v{T+1}
                  v_add_u32 v{T+2}, {hh}, v{T+2}          ; b
                  v_and_b32 v{T+3}, 1, v{T+1}
                  v_xor_b32 v{T+3}, v{T+3}, v{T+2}
                  v_lshlrev_b32 v{R}, 7, v{T+3}
                  v_bfe_u32 v{T+3}, v{T}, 3, 1
                  v_lshl_add_u32 v{R}, v{T+3}, 6, v{R}
                  v_xor_b32 v{T+3}, v{T}, v{T+2}
                  v_and_b32 v{T+3}, 3, v{T+3}
                  v_lshl_add_u32 v{R}, v{T+3}, 4, v{R}
                  v_bfe_u32 v{T+3}, v{T}, 2, 1
                  v_lshl_add_u32 v{R}, v{T+3}, 3, v{R}
                  v_add_u32 v{R}, {L_QK}, v{R}""")
        k(f"""v_lshlrev_b32 v{OW}, 7, v{T+1}
              v_lshrrev_b32 v{T+2}, 1, v{T}
              v_lshl_add_u32 v{OR}, v{T+2}, 4, v{OW}
              v_add_u32 v{OR}, {L_O}, v{OR}
              v_lshrrev_b32 v{T+2}, 2, v{T}
              v_lshl_add_u32 v{OW}, v{T+2}, 5, v{OW}
              v_and_b32 v{T+2}, 1, v{T}
              v_lshl_add_u32 v{OW}, v{T+2}, 4, v{OW}
              v_and_b32 v{T+2}, 2, v{T}
              v_cmp_eq_u32 vcc, 0, v{T+2}
              s_lshl_b32 s{S_T}, s{S_W}, 9
              v_mov_b32 v{T+2}, 2048
              v_mov_b32 v{T+3}, s{S_T}
              v_cndmask_b32 v{T+2}, v{T+2}, v{T+3}, vcc
              v_add_u32 v{OW}, v{T+2}, v{OW}
              v_add_u32 v{OW}, {L_O}, v{OW}""")
        k(f"""v_lshrrev_b32 v{T+2}, 3, v{V_LANE}
              v_lshlrev_b32 v{PST}, 11, v{T+2}
              v_and_b32 v{T+2}, 7, v{V_LANE}
              v_lshl_add_u32 v{PST}, v{T+2}, 3, v{PST}
              s_lshl_b32 s{S_T}, s{S_W}, 14
              s_lshl_b32 s{S_T+1}, s{S_H}, 6
              s_add_u32 s{S_T}, s{S_T}, s{S_T+1}
              v_add_u32 v{PST}, s{S_T}, v{PST}""")
        k(f"""s_lshl_b32 s{sU}, s{S_W}, 5
              s_add_u32 s{sU}, s{sU}, s{S_H}
              s_bfe_u32 s{S_T}, s{sU}, 0x10003
              s_lshl_b32 s{S_T}, s{S_T}, 11              ; ((U>>3)&1)*4 lines*512
              s_and_b32 s{S_T+1}, s{sU}, 1
              s_lshl_b32 s{S_T+1}, s{S_T+1}, 10          ; (U&1)*2 lines
              s_add_u32 s{S_T}, s{S_T}, s{S_T+1}
              s_bfe_u32 s{S_T+1}, s{sU}, 0x10002
              s_lshl_b32 s{S_T+1}, s{S_T+1}, 9
              s_add_u32 s{S_T}, s{S_T}, s{S_T+1}
              s_bfe_u32 s{S_T+1}, s{sU}, 0x10001
              s_lshl_b32 s{S_T+1}, s{S_T+1}, 6
              s_add_u32 s{S_T}, s{S_T}, s{S_T+1}
              s_bfe_u32 s{S_T+1}, s{sU}, 0x10004
              s_lshl_b32 s{S_T+1}, s{S_T+1}, 8
              s_add_u32 s{S_T}, s{S_T}, s{S_T+1}
              s_bfe_u32 s{S_T+1}, s{sU}, 0x10005
              s_lshl_b32 s{S_T+1}, s{S_T+1}, 7
              s_add_u32 s{S_T}, s{S_T}, s{S_T+1}
              s_bfe_u32 s{S_T+1}, s{sU}, 0x10006
              s_lshl_b32 s{S_T+1}, s{S_T+1}, 12
              s_add_u32 s{S_T}, s{S_T}, s{S_T+1}
              v_and_b32 v{T+2}, 3, v{T}
              v_lshlrev_b32 v{MST}, 2, v{T+2}
              v_bfe_u32 v{T+2}, v{T}, 3, 1
              v_lshl_add_u32 v{MST}, v{T+2}, 4, v{MST}
              v_and_b32 v{T+2}, 1, v{T+1}
              v_lshl_add_u32 v{MST}, v{T+2}, 5, v{MST}
              v_add_u32 v{MST}, s{S_T}, v{MST}
              v_and_b32 v{T+3}, 36, v{V_LANE}
              v_mov_b32 v{T+2}, 0x80000000
              v_cmp_eq_u32 vcc, 0, v{T+3}
              v_cndmask_b32 v{MST}, v{T+2}, v{MST}, vcc
              s_lshl_b32 s{sU}, s{sU}, 11
              s_lshl_b32 s{sW2}, s{S_W}, 11
              s_mov_b32 s{sNAN}, 0xffc00000
              s_mov_b32 s{sFAIL}, 0""")
        self.wo_slot(WOB, T, T + 1, T + 2)
        k(f"""s_lshl_b32 s{S_T}, s{S_W}, 15
              v_add_u32 v{WOB}, s{S_T}, v{WOB}""")
        self.mfrag_voff(MV, T + 2)
        self.make_sel(SEL, T + 2)
        k(f"""s_and_b32 s{S_T}, s{S_W}, 1
              s_lshl_b32 s{S_T}, s{S_T}, 8
              s_and_b32 s{S_T+1}, s{S_W}, 2
              s_lshl_b32 s{S_T+1}, s{S_T+1}, 6
              s_add_u32 s{S_T}, s{S_T}, s{S_T+1}
              v_add_u32 v{MV}, s{S_T}, v{MV}""")
        k(f"""s_add_u32 s{S_T}, s{S_LW}, {L_MB}
              v_add_u32 v{MX}, s{S_T}, v{V_L16}
              v_mov_b64 v[14:15], {sr(S_ONE,2)}
              v_mov_b64 v[16:17], {sr(S_ONE,2)}""")
        k(f"""v_add_u32 v{TCH}, {MEM_OFF[c] + 2*8192}, v{MST}
              s_lshl_b32 s{sKF}, s{S_H}, 2
              s_add_u32 s{sKF}, s{sKF}, {PG_OFF + 8192 + F_KV[reg]}
              v_mov_b32 v1, s{S_C}
              s_mov_b32 s{sPC}, {PC_OFF[c]}
              s_add_u32 s{sRD}, s{sU}, {PC_OFF[c]}
              s_add_u32 s{sRST}, s{sU}, {PC_OFF[c] + 256*KB}
              s_mov_b32 s{sMX}, 0x40000000
              s_mov_b32 s{S_SEG}, 0""")
        sMK, sSCN = S_A, S_B
        if c == 2:
            k(f"""v_lshrrev_b32 v{T}, 2, v{V_L16}
                  v_add_u32 v{T}, {PG_OFF + (1+LOOK)*8192 + F_RKU - 128}, v{T}
                  v_or_b32 v{T}, s{S_OOB}, v{T}
                  s_mov_b64 vcc, -1
                  s_mov_b32 vcc_lo, 0
                  v_cndmask_b32 v{TCH}, v{TCH}, v{T}, vcc
                  s_or_b32 s{S_T}, s{S_OOB}, {PG_OFF + 8192 + F_J}
                  v_writelane_b32 v{TCH}, s{S_T}, 4
                  s_or_b32 s{S_T}, s{S_H}, s{S_W}
                  s_mov_b32 s{S_T}, {PG_OFF + F_RM}
                  s_cmov_b32 s{S_T}, 0x80000000
                  v_writelane_b32 v{TCH}, s{S_T}, 5
                  s_mov_b32 s{sMK}, 0
                  s_mov_b32 s{sSCN}, 0""")
        def keys_wait(seg, va):
            L_ = k.newlabel("L_ckk")
            self.page(S_T + 3, F_RKU, seg=seg, head=False)
            k(f"""v_lshrrev_b32 v{va+1}, 2, v{V_L16}
                  v_and_b32 v{va+1}, 127, v{va+1}""")
            k.label(L_)
            k(f"""s_sleep {opt.get("slu", 1)}
                  buffer_load_dword v{va}, v{va+1}, {WS}, s{S_T+3} offen sc1""")
            self.spend()
            k(f"""s_waitcnt vmcnt(0)
                  v_cmp_eq_u32 vcc, 0, v{va}
                  s_cbranch_vccnz {L_}""")
        dma = [f"s_add_u32 m0, s{sW2}, {L_KX}",
               f"s_add_u32 s{S_T+1}, s{sKV}, {8*KB}",
               f"buffer_load_dwordx4 v{V_L16}, {WS}, s{sKV} offen sc1 lds",
               f"buffer_load_dwordx4 v{V_L16}, {WS}, s{sKV} offen offset:1024 sc1 lds",
               f"s_add_u32 m0, s{sW2}, {L_VX}",
               f"s_add_u32 s{sKV}, s{sKV}, {32*24*KB}",
               f"buffer_load_dwordx4 v{V_L16}, {WS}, s{S_T+1} offen sc1 lds",
               f"buffer_load_dwordx4 v{V_L16}, {WS}, s{S_T+1} offen offset:1024 sc1 lds"]
        def kv_read(extra=None, pos=0):
            k(f"v_add_u32 v{OB}, {L_KX}, v{V_L16}")
            for i in range(8):
                if extra and i == pos:
                    k(extra)
                k(f"ds_read_b128 {vr(KX+4*i,4)}, v{OB} offset:{((i&1)*4+(i>>1))*1024}")
            k(f"v_add_u32 v{CK}, s{sW2}, v{OB}")
            for t in range(2):
                k(f"ds_read_b128 {vr(VX+4*t,4)}, v{CK} offset:{L_VX-L_KX+t*1024}")
        def zero(b, n):
            for i in range(0, n, 2):
                k(f"v_mov_b64 {vr(b+i,2)}, 0")
        def mload(hf):
            return f"buffer_load_dwordx4 {vr(M+16*hf,4)}, v{MV}, {WS}, s{sM2 if hf else sMEM} offen sc1"
        chk2 = [f"v_max3_u32 v{CK}, v{M}, v{M+1}, v{M+2}", f"v_max3_u32 v{CK}, v{M+3}, v{M+16}, v{CK}",
                f"v_max3_u32 v{CK}, v{M+17}, v{M+18}, v{CK}", f"v_max_u32 v{CK}, v{M+19}, v{CK}",
                f"v_cmp_le_u32 vcc, s{sNAN}, v{CK}"]
        mwrite = lambda hf: f"ds_write_b128 v{MX}, {vr(M+16*hf,4)} offset:{hf*4096}"
        mread = lambda hf, i: f"ds_read_b128 {vr(M+16*hf+4*i,4)}, v{T+i-1} offset:{hf*4096}"
        LEAD, LEADB, JS = (k.newlabel(x) for x in ("L_cld", "L_clb", "L_cjs"))
        START, KVW, KVB, JW, JUMP = (k.newlabel(x) for x in ("L_cst", "L_ckw", "L_ckb", "L_cjw", "L_cjump"))
        first = reg
        if opt.get("pcwarm", 1) and not self.loc:
            for i, r_ in enumerate((sRD, sRST)):
                for j in range(2):
                    k(f"buffer_load_dwordx4 v[88:91], v{V_L16}, {WS}, s{r_} offen offset:{j*1024}")
            if c:
                k("s_waitcnt vmcnt(0)")
        SW = k.newlabel("L_csw")
        WO_ = 3072 - 512
        k.label(START)
        k(f"""s_cmp_lg_u32 s{S_W}, 0
              s_cbranch_scc1 {SW}""")
        if c == 2:
            keys_wait(sSCN, T)
            self.wmax_u32(T, T + 1)
            k(f"""v_readfirstlane_b32 s{S_T+5}, v{T}
                  s_max_u32 s{sMK}, s{sMK}, s{S_T+5}
                  s_add_u32 s{sSCN}, s{sSCN}, 1
                  s_andn2_b32 s{S_SEG}, 0x7ff, s{sMK}
                  s_lshr_b32 s{S_SEG}, s{S_SEG}, 5
                  s_add_u32 s{S_T+5}, s{S_SEG}, {LOOK}
                  s_min_u32 s{S_T+5}, s{S_T+5}, 63
                  s_cmp_le_u32 s{sSCN}, s{S_T+5}
                  s_cbranch_scc1 {START}
                  v_mov_b32 v{T}, 0
                  v_mov_b32 v{T+1}, s{sMK}
                  ds_write_b32 v{OR}, v{T} offset:{WO_}
                  ds_write_b32 v{OR}, v{T+1} offset:{WO_ + 512}""")
        self.ev(40 + c, va=T + 2)
        self.page(S_T + 3, F_KV[first])
        self.word_wait(S_T + 3, S_T + 5, va=T + 2, sleep=1, quick=c == 0)
        k.label(SW)
        k("""s_waitcnt lgkmcnt(0)
             s_barrier""")
        if c == 2:
            k(f"""ds_read_b32 v{T}, v{OR} offset:{WO_ + 512}
                  s_waitcnt lgkmcnt(0)
                  v_readfirstlane_b32 s{sMK}, v{T}
                  s_andn2_b32 s{S_SEG}, 0x7ff, s{sMK}
                  s_lshr_b32 s{S_SEG}, s{S_SEG}, 5""")
        self.qkv_base(S_T, first)
        k(f"s_add_u32 s{sKV}, s{S_T}, s{sW2}")
        for d in dma:
            k(d)
        k(f"""s_lshl_b32 s{sPG}, s{S_SEG}, 13
              s_add_u32 s{S_T}, s{sPG}, {MEM_OFF[c] + 8192}
              buffer_load_dword v{STS}, v{MST}, {WS}, s{S_T} offen sc1
              s_add_u32 s{sMEM}, s{sPG}, {MEMX_OFF if c == 2 else MEM_OFF[c]}
              s_add_u32 s{sM2}, s{sMEM}, 4096
              s_lshl_b32 s{sKVM}, s{S_SEG}, 5
              s_add_u32 s{sKVM}, s{sKVM}, s{S_H}
              s_lshl_b32 s{sKVM}, s{sKVM}, 12
              s_lshl_b32 s{S_T}, s{S_W}, 10
              s_add_u32 s{sKVM}, s{sKVM}, s{S_T}
              s_add_u32 s{sKVM}, s{sKVM}, {KVM_OFF[c]}
              s_mov_b32 s{sPUB}, 0x80000000
              s_mov_b32 s{sREC}, 0
              s_mov_b32 s{sOK2}, 0
              s_cmp_eq_u32 s{S_SEG}, 63
              s_cselect_b32 s{sOK}, 1, s{S_W}
              s_cmp_eq_u32 s{sOK}, 0
              s_cselect_b32 s{sOK}, 1, 0""")
        q_ = lambda t: QK + 8 * t
        k_ = lambda t: QK + 8 * t + 4
        sq = lambda ks, t: f"v_smfmac_f32_16x16x64_bf16 {vr(q_(t),4)}, {vr(M+4*ks,4)}, {wq(ks,t)}, v{IDX}"
        sk = lambda ks, t: f"v_smfmac_f32_16x16x64_bf16 {vr(k_(t),4)}, {vr(M+4*ks,4)}, {wk(ks,t)}, v{IDX}"
        sv = lambda ks, t: f"v_smfmac_f32_16x16x64_bf16 {vr(VA+4*t,4)}, {vr(M+4*ks,4)}, {wv(ks,t)}, v{IDX}"
        zero(QK, 24)
        if c == 2:
            HL, HD = k.newlabel("L_chp"), k.newlabel("L_chd")
            A_ = KX
            k(f"""v_lshrrev_b32 v{A_}, 8, v{V_L16}
                  v_lshlrev_b32 v{A_}, 5, v{A_}
                  v_bfe_u32 v{A_+1}, v{V_L16}, 5, 1
                  v_lshl_add_u32 v{A_}, v{A_+1}, 2, v{A_}
                  s_lshl_b32 s{S_T}, s{S_W}, 7
                  s_add_u32 s{S_T}, s{S_T}, {L_MB}
                  v_add_u32 v{A_}, s{S_T}, v{A_}
                  v_xor_b32 v{A_+1}, 128, v{A_}
                  v_xor_b32 v{A_+2}, 256, v{A_}
                  v_xor_b32 v{A_+3}, 384, v{A_}
                  s_andn2_b32 s{S_T}, 31, s{sMK}
                  s_lshr_b32 s{S_T+1}, s{S_T}, 4
                  s_lshl_b32 s{S_T+2}, s{S_T+1}, 12
                  s_and_b32 s{S_T+3}, s{S_T}, 15
                  s_lshl4_add_u32 s{S_T+2}, s{S_T+3}, s{S_T+2}
                  s_add_u32 s{S_T+2}, s{S_T+2}, s{S_LW}
                  s_add_u32 s{S_T+2}, s{S_T+2}, {L_KX}
                  v_bfe_u32 v{A_+4}, v{V_L16}, 6, 2
                  v_lshlrev_b32 v{A_+4}, 8, v{A_+4}
                  v_bfe_u32 v{A_+5}, v{V_L16}, 4, 2
                  v_lshl_add_u32 v{A_+4}, v{A_+5}, 2, v{A_+4}
                  v_add_u32 v{A_+4}, s{S_T+2}, v{A_+4}
                  s_lshr_b32 s{S_T+2}, s{S_T+3}, 2
                  s_lshl_b32 s{S_T+2}, s{S_T+2}, 8
                  s_lshl3_add_u32 s{S_T+2}, s{S_T+1}, s{S_T+2}
                  s_and_b32 s{S_T+3}, s{S_T}, 3
                  s_lshl1_add_u32 s{S_T+2}, s{S_T+3}, s{S_T+2}
                  s_add_u32 s{S_T+2}, s{S_T+2}, s{sW2}
                  s_add_u32 s{S_T+2}, s{S_T+2}, {L_VX}
                  v_and_b32 v{A_+5}, 255, v{V_L16}
                  v_add_u32 v{A_+5}, s{S_T+2}, v{A_+5}
                  s_cmp_lg_u32 s{S_W}, 0
                  s_cbranch_scc1 {HD}
                  s_lshl_b32 s{S_T+3}, s{S_SEG}, 10
                  s_add_u32 s{S_T+3}, s{S_T+3}, {HPS_OFF}""")
            k.label(HL)
            k(f"buffer_load_dwordx4 {vr(T,4)}, v{V_L16}, {WS}, s{S_T+3} offen sc1")
            self.spend()
            k(f"""s_waitcnt vmcnt(0)
                  v_max3_u32 v{T+4}, v{T}, v{T+1}, v{T+2}
                  v_max_u32 v{T+4}, v{T+3}, v{T+4}
                  v_cmp_eq_u32 vcc, -1, v{T+4}
                  s_cbranch_vccnz {HL}
                  ds_write_b128 v{MX}, {vr(T,4)}""")
            k.label(HD)
            k("""s_waitcnt vmcnt(0) lgkmcnt(0)
                 s_barrier""")
            for i in range(8):
                for hq in range(2):
                    o_ = (i >> 2) * 128 + 4 * hq
                    k(f"ds_read2_b32 {vr(M+4*i+2*hq,2)}, v{A_+(i&3)} offset0:{o_} offset1:{o_+2}")
                if i == 3:
                    k("s_waitcnt lgkmcnt(4)")
            for i in range(8):
                k(f"s_waitcnt lgkmcnt({min(14 - 2*i, 12)})")
                for x in (sk(i, 0), sv(i, 0), sk(i, 1), sv(i, 1)):
                    k(x)
            for a_ in (k_(0), VA, k_(1), VA + 4):
                k(f"v_add_f32 v{a_}, v{a_}, v{a_+2}")
            k(f"""v_cvt_pk_bf16_f32 v{T}, v{k_(0)}, v{k_(1)}
                  v_cvt_pk_bf16_f32 v{T+1}, v{VA}, v{VA+4}
                  ds_write_b32 v{A_+4}, v{T}
                  ds_write_b16 v{A_+5}, v{T+1}
                  ds_write_b16_d16_hi v{A_+5}, v{T+1} offset:1024""")
            zero(QK, 24)
        if c == 0:
            k(f"""buffer_load_dwordx4 v[88:91], v{MV}, {WS}, s{sMEM} offen
                  buffer_load_dwordx4 v[88:91], v{MV}, {WS}, s{sM2} offen""")
            self.load_wo(3, extra=7)
            k(f"s_buffer_load_dword s{sOK2}, {WS}, s{sKF}")
        k("""s_waitcnt vmcnt(0) lgkmcnt(0)
             s_barrier""")
        self.ev(43, va=T)
        kv_read()
        LOOP, PA, PAB, END, GO = (k.newlabel(x) for x in ("L_chain", "L_cpa", "L_cpab", "L_cend", "L_cgo"))
        RP, RB, PB, PBB, BACK = (k.newlabel(x) for x in ("L_crp", "L_crb", "L_cpb", "L_cpbb", "L_cback"))
        qk4 = lambda ks: [sq(ks, 0), sk(ks, 0), sq(ks, 1), sk(ks, 1)]
        vlist = [(ks, t) for ks in range(8) for t in range(2)]
        def vs(n):
            for _ in range(n):
                if vlist:
                    k(sv(*vlist.pop(0)))
        def weave(mm, other):
            other = list(other)
            for o in mm:
                k(o)
                if other:
                    k(other.pop(0))
            for o in other:
                k(o)
        ONES = 14
        PT_ = M + 28
        pub = [f"v_add_u32 v{PT_}, s{S_LW}, v{QKR0}", f"v_add_u32 v{PT_+2}, s{S_LW}, v{QKR1}",
               f"ds_read_b64_tr_b16 {vr(PT_,2)}, v{PT_}", f"ds_read_b64_tr_b16 {vr(PT_+2,2)}, v{PT_+2}",
               f"v_mov_b32_dpp v{T+4}, v{T+6} quad_perm:[2,3,2,3] row_mask:0xf bank_mask:0xf",
               f"v_mov_b32_dpp v{T+5}, v{T+7} quad_perm:[2,3,2,3] row_mask:0xf bank_mask:0xf",
               f"s_mov_b32 vcc_lo, 0xcccccccc", f"s_mov_b32 vcc_hi, 0xcccccccc", None]
        pub += [f"v_cndmask_b32 v{T+4+i}, v{T+4+i}, v{PT_+i}, vcc" for i in range(4)]
        pub += [f"buffer_store_dwordx4 {vr(T+4,4)}, v{V_L16}, {WS}, s{sPUB} offen sc1"]
        XT = T
        def xaddr():
            for i in range(1, 4):
                k(f"v_xor_b32 v{XT+i-1}, {i*1024}, v{MX}")
        xaddr()
        pipe = opt.get("pipe", 1)
        def chk(hf):
            b = M + 16 * hf
            return [f"v_max3_u32 v{CK}, v{b}, v{b+1}, v{b+2}", f"v_max_u32 v{CK}, v{b+3}, v{CK}", f"v_cmp_le_u32 vcc, s{sNAN}, v{CK}"]
        mpos = opt.get("mpos", (3, 7))
        for _ in mpos:
            k(mload(0))
        k.label(LOOP)
        self.stamp(0)
        k.label(PA)
        k(mload(0))
        self.spend(0x10000, sFAIL)
        k(f"s_waitcnt vmcnt({len(mpos)})")
        for x in chk(0):
            k(x)
        if opt.get("spec", 1):
            k(mwrite(0))
        k(f"s_cbranch_vccnz {PA}")
        k.label(GO)
        self.stamp(1)
        if not opt.get("spec", 1):
            k(mwrite(0))
        m1 = opt.get("m1", 0)
        nb = opt.get("nb", 2)
        weave(qk4(0)[:nb], [""] * m1 + [mload(1)])
        k("""s_waitcnt lgkmcnt(0)
             s_barrier""")
        self.stamp("xa")
        V2 = lambda n: [sv(*vlist.pop(0)) for _ in range(n)]
        k(mread(0, 1))
        weave(qk4(0)[nb:] + V2(2), [mread(0, 2), mread(0, 3)])
        k("s_waitcnt lgkmcnt(2)")
        va, vb = opt.get("va", 0), opt.get("vb", 1)
        weave(qk4(1) + V2(va), [dma[0], dma[1], f"s_cmp_lt_u32 s{sOK2}, s{sOK}\ns_cbranch_scc1 {KVW}\n{KVB}:"])
        k("s_waitcnt vmcnt(0) lgkmcnt(1)")
        self.stamp("xb")
        c1 = chk(1)
        weave(qk4(2) + V2(vb), [mwrite(1) + "\n" + c1[0]] + c1[1:])
        k(f"s_cbranch_vccnz {PB}")
        k.label(BACK)
        k("""s_waitcnt lgkmcnt(0)
             s_barrier""")
        self.stamp("xc")
        packt = lambda t: [x for a_, d_ in ((q_(t), T + 2 * t), (k_(t), T + 2 * t + 1)) for x in
                           (f"v_add_f32 v{a_}, v{a_}, v{a_+2}", f"v_add_f32 v{a_+1}, v{a_+1}, v{a_+3}",
                            f"v_cvt_pk_bf16_f32 v{d_}, v{a_}, v{a_+1}")]
        mm = qk4(3) + qk4(4) + [f(ks, t) for t in range(2) for ks in (5, 6, 7) for f in (sq, sk)] + V2(2)
        n0 = 8
        far = {"a": [dma[2]], "b": [dma[3], dma[4]], "c": [dma[6], dma[5]], "d": [dma[7]], "p": [pub[-1]],
               "t": [f"buffer_load_dword v{STS}, v{TCH}, {WS}, s{sPG} offen sc1"], "-": []}
        side = {1: [mread(1, 1)], 3: [mread(1, 2)], 5: [mread(1, 3)]}
        far["x"] = [f"buffer_store_dword v{M+30}, v{MST}, {WS}, s{sMX} offen sc1"]
        for i_, x in enumerate(("x" if c == 1 else "") + opt.get("ford", "pabcdt")):
            side[2 * i_] = list(far[x])
        if c == 2:
            side[7] = [f"ds_read_b32 v{CK}, v{OR} offset:{WO_}"]
        if "t" not in opt.get("ford", "t") and c == 2:
            side[12] = far["t"]
        if opt.get("rstpos"):
            p_ = opt["rstpos"]
            side.setdefault(p_ - 3, []).append(f"v_mov_b64 {vr(T+4,2)}, -1")
            side.setdefault(p_ - 1, []).append(f"v_mov_b64 {vr(T+6,2)}, -1")
            side.setdefault(p_, []).insert(0, f"buffer_store_dwordx4 {vr(T+4,4)}, v{V_L16}, {WS}, s{sRST} offen{self.loc}")
            side.setdefault(p_ + 2, []).insert(0, f"buffer_store_dwordx4 {vr(T+4,4)}, v{V_L16}, {WS}, s{sRST} offen offset:1024{self.loc}")
        if c == 2:
            side.setdefault(n0 + 5, []).append(f"v_readfirstlane_b32 s{S_T+2}, v{CK}")
            side.setdefault(n0 + 7, []).append(f"s_cmp_lg_u32 s{S_T+2}, 0\ns_cbranch_scc1 {JUMP}")
        waits = {n0: 2 + (c == 2), n0 + 2: 1 + (c == 2), n0 + 4: 0}
        for i_, x in enumerate(packt(0)):
            side.setdefault(n0 + 8 + i_, []).append(x)
        for n, o in enumerate(mm):
            if n in waits:
                k(f"s_waitcnt lgkmcnt({waits[n]})")
            k(o)
            for x in side.get(n, []):
                k(x)
        self.stamp("back")
        for x in packt(1):
            k(x)
        k(f"ds_write_b128 v{QKW}, {vr(T,4)}")
        vend = list(vlist)
        weave(V2(opt.get("vd", 4)),
              [f"s_mov_b32 s{sPUB}, s{sKVM}\ns_add_u32 s{sKVM}, s{sKVM}, {32*4*KB}\nv_mov_b32 v{T+5}, 0",
               f"s_cmp_eq_u32 s{S_SEG}, 63\ns_cbranch_scc1 {END}"])
        self.stamp("w0")
        k("s_waitcnt lgkmcnt(0)")
        self.stamp("w1")
        k("s_barrier")
        self.stamp(2)
        F = QK
        tr = [f"ds_read_b64_tr_b16 {vr(F+4*kk+2*hh,2)}, v{(QKR0, QKR1)[hh]} offset:{kk*1024}" for kk in range(4) for hh in range(2)]
        S = M
        slots = [KX, KX + 8, KX + 16, KX + 24, F, F + 8, M + 16, M + 24]
        def wo_reads(u):
            return [f"ds_read_b128 {vr(slots[(u&1)*4+kk]+4*hf,4)}, v{WOB} offset:{((u*4+kk)*2+hf)*1024}"
                    for kk in range(4) for hf in range(2)]
        st_ = wo_reads(0) + wo_reads(1)
        nv3 = opt.get("v3", 4)
        lq = []
        def ld(x):
            k(x); lq.append(x)
        def lwait(x):
            k(f"s_waitcnt lgkmcnt({len(lq) - 1 - lq.index(x)})")
        for x in tr[:6 - nv3]:
            ld(x)
        for x in tr[6 - nv3:6]:
            vs(1); ld(x)
        shadow = [tr[6], tr[7], st_[12]] + [st_[i] for i in (0, 1, 8, 2, 3, 9, 4, 5, 10, 6, 7, 11, 13, 14, 15)]
        for kk in range(4):
            lwait(tr[2 * kk + 1])
            f = vr(F + 4 * kk, 4)
            for a_, d_ in ((vr(KX + 8 * kk, 4), S), (vr(KX + 8 * kk + 4, 4), S + 4), (f, S + 8)):
                k(f"v_mfma_f32_16x16x32_bf16 {vr(d_,4)}, {a_}, {f}, {'0' if kk == 0 else vr(d_,4)}")
                ld(shadow.pop(0))
        assert len(vlist) <= 3
        while vlist:
            vs(1)
            if len(shadow) > 2:
                ld(shadow.pop(0))
        self.stamp(3)
        P = T
        t0 = T + 6
        VM, VM1 = T + 6, M + 12
        O = VA; Lr = S + 8
        sub = lambda i: f"v_pk_add_f32 {vr(S+i,2)}, {vr(S+i,2)}, {vr(t0,2)} op_sel_hi:[1,0] neg_lo:[0,1] neg_hi:[0,1]"
        mul = lambda i: f"v_pk_mul_f32 {vr(S+i,2)}, {vr(S+i,2)}, v[0:1] op_sel:[0,1]"
        ex = lambda i: f"v_exp_f32 v{S+i}, v{S+i}"
        sh = lambda: shadow.pop(0) if shadow else ""
        k(f"""v_max3_f32 v{t0}, v{S}, v{S+1}, v{S+2}
              v_max3_f32 v{t0+1}, v{S+3}, v{S+4}, v{S+5}
              v_max3_f32 v{t0}, v{S+6}, v{S+7}, v{t0}
              v_max3_f32 v{t0+1}, v{S+10}, v{S+11}, v{t0+1}
              v_max_f32 v{t0}, v{t0}, v{t0+1}
              v_max_f32 v{t0+1}, v{t0}, v{t0+1}
              {mul(10)}
              {mul(0)}
              v_permlane16_swap_b32 v{t0}, v{t0+1}
              v_max_f32 v{t0}, v{t0}, v{t0+1}
              v_max_f32 v{t0+1}, v{t0}, v{t0+1}
              {mul(2)}
              {mul(4)}
              v_permlane32_swap_b32 v{t0}, v{t0+1}
              v_max_f32 v{t0}, v{t0}, v{t0+1}
              v_mul_f32 v{t0}, v1, v{t0}
              {mul(6)}
              {sub(10)}
              v_pk_add_f32 {vr(VA,2)}, {vr(VA,2)}, {vr(VA+2,2)}
              v_pk_add_f32 {vr(VA+4,2)}, {vr(VA+4,2)}, {vr(VA+6,2)}
              {sub(0)}
              {sub(2)}
              {sub(4)}
              {sub(6)}
              {ex(10)}
              {ex(11)}
              v_cvt_pk_bf16_f32 v{VM}, v{VA}, v{VA+1}
              v_cvt_pk_bf16_f32 v{P+4}, v{S+10}, v{S+11}
              v_cvt_pk_bf16_f32 v{VM+1}, v{VA+4}, v{VA+5}
              v_cvt_pk_bf16_f32 v{VM1}, v{VA+4}, v{VA+5}
              v_mfma_f32_16x16x16_bf16 {vr(Lr,4)}, {vr(ONES,2)}, {vr(P+4,2)}, 0
              {sh()}
              {ex(0)}
              v_mfma_f32_16x16x16_bf16 {vr(O,4)}, {vr(VM,2)}, {vr(P+4,2)}, 0
              {sh()}
              {ex(1)}
              v_mfma_f32_16x16x16_bf16 {vr(O+4,4)}, {vr(VM1,2)}, {vr(P+4,2)}, 0
              {sh()}
              {ex(2)}""")
        for i in range(3, 8):
            k(ex(i))
            if i & 1:
                k(f"v_cvt_pk_bf16_f32 v{P+(i>>1)-1}, v{S+i-3}, v{S+i-2}")
        k(f"v_cvt_pk_bf16_f32 v{P+3}, v{S+6}, v{S+7}")
        for nm in opt.get("fw", ()):
            k(f"s_waitcnt vmcnt({nm})")
            self.stamp("f%d" % nm)
        self.stamp(4)
        k(f"""s_add_u32 s{sPG}, s{sPG}, 8192
              s_add_u32 s{S_SEG}, s{S_SEG}, 1
              v_mfma_f32_16x16x32_bf16 {vr(Lr,4)}, {vr(ONES,4)}, {vr(P,4)}, {vr(Lr,4)}
              {sh()}
              v_mfma_f32_16x16x32_bf16 {vr(O,4)}, {vr(VX,4)}, {vr(P,4)}, {vr(O,4)}
              ds_read_b128 {vr(VX,4)}, v{WOB} offset:{16*1024}
              v_mfma_f32_16x16x32_bf16 {vr(O+4,4)}, {vr(VX+4,4)}, {vr(P,4)}, {vr(O+4,4)}
              ds_read_b128 {vr(VX+4,4)}, v{WOB} offset:{17*1024}
              v_rcp_f32 v{Lr}, v{Lr}""")
        assert not shadow
        acc = [VA, VA + 4, T, VA]
        k(f"""v_mov_b64 {vr(S,2)}, -1
              v_mov_b64 {vr(S+2,2)}, -1
              s_add_u32 s{sMEM}, s{sPG}, {MEM_OFF[c]}
              s_add_u32 s{sM2}, s{sMEM}, 4096""")
        for e in range(0, 8, 2):
            k(f"v_pk_mul_f32 {vr(O+e,2)}, {vr(O+e,2)}, {vr(Lr,2)} op_sel_hi:[1,0]")
        for r in range(4):
            k(f"v_cvt_pk_bf16_f32 v{T+r}, v{O+r}, v{O+4+r}")
        k(f"ds_write_b128 v{OW}, {vr(T,4)}")
        if not opt.get("rstpos"):
            k(f"""buffer_store_dwordx4 {vr(S,4)}, v{V_L16}, {WS}, s{sRST} offen{self.loc}
                  buffer_store_dwordx4 {vr(S,4)}, v{V_L16}, {WS}, s{sRST} offen offset:1024{self.loc}""")
        zero(VA, 8)
        k("s_waitcnt lgkmcnt(0)")
        k("s_barrier")
        self.stamp(5)
        OA = M
        lq[:] = []
        ord_ = [f"ds_read_b128 {vr(OA+4*kk,4)}, v{OR} offset:{kk*512}" for kk in range(4)]
        for x in ord_:
            ld(x)
        zero(T, 4)
        k(f"""s_add_u32 s{S_T+1}, s{sPC}, {64*KB}
              s_add_u32 s{S_T+2}, s{sPC}, {128*KB}
              s_add_u32 s{S_T+3}, s{sPC}, {192*KB}
              s_add_u32 s{S_T}, s{sKF}, s{sPG}""")
        if c == 1:
            k(f"s_add_u32 s{sMX}, s{sPG}, {MEMX_OFF}")
        alt = opt.get("alt", 0)
        seq = [0, 4, 1, 5, 2, 6, 3, 7] if alt else list(range(8))
        seq += list(range(8, 16))
        where = slots + [VX] + [slots[x] for x in seq[:7]]
        stream = [f"ds_read_b128 {vr(where[i]+4*hf,4)}, v{WOB} offset:{(i*2+hf)*1024}" for i in range(9, 16) for hf in range(2)]
        def wo_out(u):
            a = acc[u]
            return [f"v_cvt_pk_bf16_f32 v{a}, v{a}, v{a+1}", f"v_cvt_pk_bf16_f32 v{a+1}, v{a+2}, v{a+3}",
                    f"buffer_store_dwordx2 {vr(a,2)}, v{PST}, {WS}, s{S_T+u if u else sPC} offen{self.loc}"]
        oth = {}
        if alt:
            acc[3] = M + 24
            o0, o1, o2 = wo_out(0), wo_out(1), wo_out(2)
            oth = {8: o0[:2], 9: [o0[2], o1[0]], 10: [f"v_mov_b64 {vr(acc[3],2)}, 0", o1[1]], 11: [o1[2], f"v_mov_b64 {vr(acc[3]+2,2)}, 0"],
                   12: pub[:1], 13: o2[:1], 14: o2[1:2], 15: o2[2:]}
            oth[10], oth[11] = [o1[1], f"v_mov_b64 {vr(acc[3],2)}, 0", f"v_mov_b64 {vr(acc[3]+2,2)}, 0"], [o1[2], pub[1]]
            npop = opt.get("npop", {0: 1, 1: 1, 2: 1, 3: 2, 4: 1, 5: 2, 6: 1, 7: 2, 8: 1, 10: 1, 12: 1})
        else:
            for u in range(3):
                o_ = wo_out(u)
                oth[4 * u + 5] = o_[:1]
                oth[4 * u + 6] = o_[1:]
            oth[7] = [f"v_mov_b64 {vr(VA,2)}, 0"]
            oth[8] = [f"v_mov_b64 {vr(VA+2,2)}, 0"]
            oth[11] = pub[:1]
            oth[12] = pub[1:2]
            npop = {i: 2 if i in (8, 10) else 1 for i in range(12)}
        tail_ld = {13: pub[2], 14: pub[3]}
        todo = list(stream)
        for i, j_ in enumerate(seq):
            if j_ < 4:
                lwait(ord_[j_])
            if i >= 9:
                lwait(stream[2 * (i - 9) + 1])
            k(f"v_smfmac_f32_16x16x64_bf16 {vr(acc[j_>>2],4)}, {vr(OA+4*(j_&3),4)}, {vr(where[j_],8)}, v{IDX2}")
            self.stamp("o%d" % i)
            for _ in range(npop.get(i, 0)):
                assert (14 - len(todo)) // 2 <= i
                ld(todo.pop(0))
            if i in tail_ld:
                ld(tail_ld[i])
            for x in oth.get(i, []):
                k(x)
        assert not todo
        zero(VA + 4, 4)
        k(f"s_xor_b32 s{sPC}, s{sPC}, {256*KB}")
        for x in pub[4:8] + wo_out(3) + ["s_waitcnt lgkmcnt(0)", f"s_buffer_load_dword s{sOK2}, {WS}, s{S_T}"]:
            k(x)
        self.stamp(6)
        RS = (M + 8, M + 20); RA = M + 4; RT = M + 28
        def rloads(R):
            for i in range(2):
                k(f"buffer_load_dwordx4 {vr(R+4*i,4)}, v{V_L16}, {WS}, s{sRD} offen offset:{i*1024} sc1")
        def reduce(R, fill=()):
            k(f"s_waitcnt vmcnt({3 if opt.get('two', 1) else 1})")
            self.stamp("r2")
            k(f"v_mfma_f32_16x16x32_bf16 {vr(RA,4)}, {vr(SEL,4)}, {vr(R,4)}, 0")
            k(f"s_waitcnt vmcnt({2 if opt.get('two', 1) else 0})")
            k(f"v_mfma_f32_16x16x32_bf16 {vr(RA,4)}, {vr(SEL,4)}, {vr(R+4,4)}, {vr(RA,4)}")
            for x in fill:
                k(x)
            k(f"""v_cmp_u_f32 vcc, v{RA}, v{RA}
                  v_add_f32_dpp v{RT}, v{RA}, v{RA} row_ror:8 row_mask:0xf bank_mask:0x3
                  v_add_f32_dpp v{RT+1}, v{RA+1}, v{RA+1} row_ror:8 row_mask:0xf bank_mask:0x3
                  v_add_f32_dpp v{RT}, v{RA+2}, v{RA+2} row_ror:8 row_mask:0xf bank_mask:0xc
                  v_add_f32_dpp v{RT+1}, v{RA+3}, v{RA+3} row_ror:8 row_mask:0xf bank_mask:0xc
                  v_add_f32_dpp v{RT}, v{RT}, v{RT} row_shl:4 row_mask:0xf bank_mask:0x5
                  v_add_f32_dpp v{RT+1}, v{RT+1}, v{RT+1} row_shl:4 row_mask:0xf bank_mask:0x5""")
        kvr = [f"ds_read_b128 {vr(KX+4*i,4)}, v{OB} offset:{((i&1)*4+(i>>1))*1024}" for i in range(8)]
        kvr += [f"ds_read_b128 {vr(VX+4*t,4)}, v{CK} offset:{L_VX-L_KX+t*1024}" for t in range(2)]
        work = pub[9:13] + [f"v_mov_b64 {vr(QK+i,2)}, 0" for i in range(0, 20, 2)] \
            + [f"v_add_u32 v{OB}, {L_KX}, v{V_L16}", f"v_add_u32 v{CK}, s{sW2}, v{OB}"]
        two = opt.get("two", 1)
        nw = opt.get("nw", 4)
        for x in work[:nw]:
            k(x)
        RG = k.newlabel("L_crg")
        e0, e1, e2 = opt.get("ea", (3, 1, 0))
        k(f"""s_cmp_lt_u32 s{S_W}, 2
              s_waitcnt vmcnt({e0})
              s_cbranch_scc1 {RG}
              s_cmp_eq_u32 s{S_W}, 2
              s_waitcnt vmcnt({e1})
              s_cbranch_scc1 {RG}
              s_waitcnt vmcnt({e2})""")
        k.label(RG)
        self.stamp("ea")
        rloads(RS[0])
        for x in work[nw:]:
            k(x)
        xaddr()
        blate = opt.get("blate", 1)
        if not blate:
            k("s_barrier")
        kp = opt.get("kvpos", 0)
        for i, x in enumerate(kvr[:kp]):
            if two and i == two:
                rloads(RS[1])
            k(x)
        if two:
            if two > 1:
                k(f"s_sleep {two - 1}")
            rloads(RS[1])
        k(f"""s_cmp_ge_u32 s{S_SEG}, 63
              s_cselect_b32 s{sOK}, 0, 1""")
        if c == 2:
            k(f"""v_readlane_b32 s{S_T}, v{STS}, 5
                  v_readlane_b32 s{sJ}, v{STS}, 4
                  v_add_u32 v{STS}, -1, v{STS}
                  v_cmp_le_u32 vcc, s{sMK}, v{STS}
                  s_cmp_gt_u32 s{S_SEG}, {63 - LOOK}
                  s_cselect_b32 s{sREC}, 0, vcc_hi
                  s_cmp_gt_u32 s{sJ}, s{sMK}
                  s_cselect_b32 s{sREC}, 1, s{sREC}
                  s_cmp_lg_u32 s{sREC}, 0
                  s_cselect_b32 s{sOK}, 2, s{sOK}
                  s_cmp_gt_u32 s{S_T}, s{sMK}
                  s_cbranch_scc1 {LEAD}""")
            k.label(LEADB)
        k(f"""s_cmp_eq_u32 s{S_W}, 0
              s_cselect_b32 s{sOK}, s{sOK}, 0""")
        OKR = k.newlabel("L_cok")
        reduce(RS[0])
        k(f"s_cbranch_vccnz {RP}")
        k.label(OKR)
        k(f"""v_cvt_pk_bf16_f32 v{RT+2}, v{RT}, v{RT+1}
              buffer_store_dword v{RT+2}, v{MST}, {WS}, s{sMEM} offen{self.loc}
              s_mov_b32 s{sRST}, s{sRD}
              s_xor_b32 s{sRD}, s{sRD}, {256*KB}""")
        self.stamp(7)
        if blate:
            k("s_barrier")
        for i, x in enumerate(kvr):
            if i in mpos:
                k(mload(0))
            k(x)
        if opt.get("mack"):
            k(f"s_waitcnt vmcnt({2 if pipe else 0})")
        if self.stamps > 1:
            NX = k.newlabel("L_cnx")
            k(f"""s_and_b32 s{S_T}, s{S_SEG}, 7
                  s_cmp_lg_u32 s{S_T}, 7
                  s_cbranch_scc1 {NX}""")
            if c == opt.get("stc", 0):
                self.dump_stamps(8, sFAIL, M + 4)
            k.label(NX)
        if self.stamps:
            NE = k.newlabel("L_cne")
            k(f"""s_and_b32 s{S_T}, s{S_SEG}, 7
                  s_cmp_lg_u32 s{S_T}, 1
                  s_cbranch_scc1 {NE}""")
            self.ev(50 + c, va=M + 4)
            self.ev(56 + c, va=M + 4, clk="s_memtime")
            k.label(NE)
        k(f"s_branch {LOOP}")
        for hf, lab, back in ((1, PB, BACK),):
            k.label(lab)
            k(mload(hf))
            self.spend(1 if hf else 0x10000, sFAIL)
            k("s_waitcnt vmcnt(0)")
            for x in chk(hf):
                k(x)
            k(f"""s_cbranch_vccnz {lab}
                  {mwrite(1)}
                  s_branch {back}""")
        k.label(RP)
        st_, self.stamps = self.stamps, min(self.stamps, 1)
        for i in (0, 1) if two else (0,):
            rloads(RS[i])
            self.spend(0x100, sFAIL)
            reduce(RS[1 - i if two else 0])
            k(f"s_cbranch_vccz {OKR}")
        k(f"s_branch {RP}")
        self.stamps = st_
        k.label(KVW)
        if c == 2:
            k(f"""s_cmp_eq_u32 s{sREC}, 0
                  s_cbranch_scc1 {JW}
                  s_andn2_b32 s{sSCN}, 0x7ff, s{sJ}
                  s_lshr_b32 s{sSCN}, s{sSCN}, 5
                  s_cmp_gt_u32 s{sJ}, s{sMK}
                  s_cbranch_scc1 {JS}
                  s_add_u32 s{sSCN}, s{S_SEG}, {LOOK}""")
            keys_wait(sSCN, M + 20)
            k(f"""v_cmp_lt_u32 vcc, s{sMK}, v{M+20}
                  s_cbranch_vccz {JW}""")
            k.label(JS)
            k(f"""ds_write_b32 v{OR}, v{IDX} offset:{WO_}
                  s_waitcnt lgkmcnt(0)
                  s_branch {KVB}""")
            k.label(LEAD)
            k(f"""v_mov_b32 v{STS}, s{S_T}
                  s_add_u32 s{S_T}, s{sPG}, {PG_OFF + 8192 + F_J}
                  buffer_store_dword v{STS}, off, {WS}, s{S_T}{self.loc}
                  s_waitcnt vmcnt(0)
                  s_branch {LEADB}""")
            k.label(JW)
            k(f"""s_cmp_lg_u32 s{sOK2}, 0
                  s_cbranch_scc1 {KVB}""")
        k(f"s_add_u32 s{S_T+3}, s{sKF}, s{sPG}")
        self.ev(44, va=M + 20)
        self.word_wait(S_T + 3, sOK, va=STS, sleep=opt.get("slk", 1))
        self.ev(45, va=M + 20)
        k(f"s_branch {KVB}")
        if c == 2:
            k.label(JUMP)
            k(f"""s_waitcnt vmcnt(0) lgkmcnt(0)
                  s_barrier
                  s_branch {START}""")
        k.label(END)
        for x in vend[2:]:
            k(sv(*x))
        k(f"""s_waitcnt lgkmcnt(0)
              v_pk_add_f32 {vr(VA,2)}, {vr(VA,2)}, {vr(VA+2,2)}
              v_pk_add_f32 {vr(VA+4,2)}, {vr(VA+4,2)}, {vr(VA+6,2)}
              v_cvt_pk_bf16_f32 v{VM}, v{VA}, v{VA+1}
              v_cvt_pk_bf16_f32 v{VM+1}, v{VA+4}, v{VA+5}""")
        for x in pub:
            k(x or "s_waitcnt lgkmcnt(0)")
        k(f"s_mov_b32 s{S_SEG}, 64")
        self.ev(50 + c, va=M + 4)
        k("s_waitcnt vmcnt(0)")
        k("s_barrier")
        k.fence()
        k(f"v_lshrrev_b32 v{V_LANE}, 4, v{V_L16}")

    def dump_stamps(self, n, extra=None, va=36):
        k = self.k
        k(f"""s_waitcnt lgkmcnt(0)
              s_lshl_b32 s{S_T}, s{S_SEG}, 5
              s_add_u32 s{S_T}, s{S_T}, s{S_H}
              s_lshl_b32 s{S_T}, s{S_T}, 2
              s_add_u32 s{S_T}, s{S_T}, s{S_W}
              s_lshl_b32 s{S_T}, s{S_T}, 6
              s_add_u32 s{S_T}, s{S_T}, {STAMP_OFF}
              v_mov_b32 v{va}, 0""")
        for i in range(n):
            k(f"v_writelane_b32 v{va}, s{84+2*i}, {i}")
        if extra is not None:
            k(f"v_writelane_b32 v{va}, s{extra}, 8")
            k(f"s_mov_b32 s{extra}, 0")
        k(f"""v_lshrrev_b32 v{va+1}, 2, v{V_L16}
              s_mov_b64 exec, 0xffff
              buffer_store_dword v{va}, v{va+1}, {WS}, s{S_T} offen
              s_mov_b64 exec, -1""")

    def proj_consts(self):
        k = self.k
        self.THR, self.TOB, self.TWO, self.THD, self.TRW, self.TRL = 4, 17, 18, 20, 21, 22
        T = 120
        k(f"""v_and_b32 v{T}, 15, v{V_LANE}
              v_lshrrev_b32 v{T+1}, 4, v{V_LANE}
              v_mov_b32 v{self.TOB}, 1
              s_lshl_b32 s{S_T}, s{S_W}, 15
              v_add_u32 v{self.TWO}, s{S_T}, v{V_L16}
              s_lshl_b32 s{S_T}, s{S_W}, 2
              v_add_u32 v{T+5}, s{S_T}, v{T+1}            ; row 4w+g
              v_xor_b32 v{T+6}, v{T+5}, v{T}
              v_lshlrev_b32 v{T+6}, 4, v{T+6}
              v_lshl_add_u32 v{self.THD}, v{T+5}, 10, v{T+6}""")
        for kq in range(4):
            k(f"""v_add_u32 v{T+5}, {4*kq}, v{T+1}
                  v_xor_b32 v{T+5}, v{T+5}, v{T}
                  v_lshlrev_b32 v{T+5}, 4, v{T+5}
                  v_lshl_add_u32 v{T+5}, v{T}, 8, v{T+5}
                  v_add_u32 v{self.THR+kq}, {self.LH}, v{T+5}""")
        k(f"""v_lshlrev_b32 v{self.TRW}, 5, v{T}
              v_and_b32 v{T+5}, 1, v{T+1}
              v_lshl_add_u32 v{self.TRW}, v{T+5}, 4, v{self.TRW}
              s_lshl_b32 s{S_T}, s{S_W}, 9
              v_lshrrev_b32 v{T+5}, 1, v{T+1}
              v_lshl_add_u32 v{self.TRW}, v{T+5}, 11, v{self.TRW}
              s_add_u32 s{S_T}, s{S_T}, {L_ROW}
              v_add_u32 v{self.TRW}, s{S_T}, v{self.TRW}
              v_lshlrev_b32 v{self.TRL}, 4, v{T}
              v_lshl_add_u32 v{self.TRL}, v{T+1}, 10, v{self.TRL}
              s_lshl_b32 s{S_T}, s{S_W}, 8
              v_add_u32 v{self.TRL}, s{S_T}, v{self.TRL}""")

    def flag_set(self, s_off, loc, keep=0):
        self.k(f"""s_waitcnt vmcnt({keep})
                   s_barrier""")
        self.flag_store(s_off, loc)

    def flags_wait32(self, s_off, one=False, sleep=0):
        k = self.k
        L, D, F = k.newlabel("L_fw"), k.newlabel("L_fd"), k.newlabel("L_ff")
        if one:
            k(f"""s_cmp_lg_u32 s{S_W}, 0
                  s_cbranch_scc1 {D}""")
        k(f"""v_and_b32 v124, 31, v{V_LANE}
              v_lshlrev_b32 v124, 2, v124""")
        if sleep:
            k(f"s_branch {F}")
        k.label(L)
        if sleep:
            k(f"s_sleep {sleep}")
            k.label(F)
        k(f"buffer_load_dword v125, v124, {WS}, s{s_off} offen sc1")
        self.spend()
        k(f"""s_waitcnt vmcnt(0)
              v_cmp_eq_u32 vcc, 0, v125
              s_cbranch_vccnz {L}""")
        if one:
            k.label(D)
            k("s_barrier")

    def reduce32(self, s_base, natural):
        k = self.k
        D = 24; SEL = 56; A = 60
        for i in range(8):
            k(f"s_add_u32 s{S_T+7}, s{s_base}, {i*4096}")
            k(f"buffer_load_dwordx4 {vr(D+4*i,4)}, v{self.TRL}, {WS}, s{S_T+7} offen sc1")
        self.make_sel(SEL, 64)
        for i in range(8):
            k(f"s_waitcnt vmcnt({7-i})")
            k(f"v_mfma_f32_16x16x32_bf16 {vr(A,4)}, {vr(SEL,4)}, {vr(D+4*i,4)}, {'0' if i == 0 else vr(A,4)}")
        if natural:
            k(f"ds_write_b128 v{self.TRW}, {vr(A,4)}")
        else:
            k(f"ds_write2_b64 v{self.TRW}, {vr(A,2)}, {vr(A+2,2)} offset0:0 offset1:64")
        k(f"""s_waitcnt lgkmcnt(0)
              s_barrier""")

    def one_lane_store(self, v, s_off, fl):
        self.k(f"""s_mov_b64 exec, 1
                   buffer_store_dword v{v}, off, {WS}, s{s_off}{fl}
                   s_mov_b64 exec, -1""")

    def wmax_u32(self, x, t):
        k = self.k
        for r in (8, 4, 2, 1):
            k(f"v_max_u32_dpp v{x}, v{x}, v{x} row_ror:{r} row_mask:0xf bank_mask:0xf")
        k(f"""v_mov_b32 v{t}, v{x}
              v_permlane16_swap_b32 v{x}, v{t}
              v_max_u32 v{x}, v{x}, v{t}
              v_mov_b32 v{t}, v{x}
              v_permlane32_swap_b32 v{x}, v{t}
              v_max_u32 v{x}, v{x}, v{t}""")

    def load_gate_up(self):
        k = self.k
        k(f"""v_and_b32 v33, 15, v{V_LANE}
              v_lshrrev_b32 v34, 4, v{V_LANE}
              s_min_u32 s{S_T+4}, s{S_H}, 27
              s_lshl_b32 s{S_T+4}, s{S_T+4}, 7            ; 64 cols * 2B
              s_mul_i32 s{S_T+3}, s{S_W}, {128*3584}
              s_add_u32 s{S_T+4}, s{S_T+4}, s{S_T+3}
              v_mul_u32_u24 v36, {32*3584}, v34
              v_and_b32 v35, 7, v33
              v_lshl_add_u32 v36, v35, 4, v36
              v_add_u32 v36, s{S_T+4}, v36                ; byte offset inside gate / up
              v_cmp_gt_u32 vcc, 8, v33
              v_mov_b32 v38, s{P_WU}
              v_mov_b32 v39, s{P_WU+1}
              v_mov_b32 v40, s{P_WG}
              v_mov_b32 v41, s{P_WG+1}
              v_cndmask_b32 v38, v38, v40, vcc
              v_cndmask_b32 v39, v39, v41, vcc
              v_add_co_u32 v38, vcc, v38, v36
              v_addc_co_u32 v39, vcc, 0, v39, vcc
              s_lshl_b32 s{S_T}, s{S_W}, 15
              v_add_u32 v37, s{S_T}, v{V_L16}""")
        for half in range(2):
            for i in range(16):
                k(f"global_load_dwordx4 {vr(44+4*i,4)}, v[38:39], off")
                k(f"v_add_co_u32 v38, vcc, 3584, v38")
                k(f"v_addc_co_u32 v39, vcc, 0, v39, vcc")
            for i in range(16):
                k(f"s_waitcnt vmcnt({15-i})")
                k(f"ds_write_b128 v37, {vr(44+4*i,4)} offset:{(16*half+i)*1024}")
                if i % 8 == 7:
                    k("s_waitcnt lgkmcnt(0)")

    def moe_pre(self, layer):
        k = self.k
        LD, AF, MK = 24, 124, 12
        A1, A2, A3 = 9, 10, 11
        k(f"""v_and_b32 v{A1}, 15, v{V_LANE}
              v_lshrrev_b32 v{A2}, 4, v{V_LANE}
              v_and_b32 v{AF}, 1, v{V_LANE}
              v_lshlrev_b32 v{AF}, 4, v{AF}
              v_mov_b32 v{AF+1}, 0xffff
              v_lshlrev_b32 v{AF+1}, v{AF}, v{AF+1}
              v_lshrrev_b32 v{AF}, 2, v{A1}
              v_cmp_eq_u32 vcc, 0, v{AF}
              v_cndmask_b32 v{MK}, 0, v{AF+1}, vcc
              v_cmp_eq_u32 vcc, 1, v{AF}
              v_cndmask_b32 v{MK+1}, 0, v{AF+1}, vcc
              v_and_b32 v{AF}, 2, v{V_LANE}
              v_cmp_eq_u32 vcc, 0, v{AF}
              v_mov_b32 v{MK+2}, 0xeeee
              v_mov_b32 v{AF}, 0x4444
              v_cndmask_b32 v{MK+2}, v{MK+2}, v{AF}, vcc
              v_lshlrev_b32 v{A3}, 14, v{A2}
              v_lshl_add_u32 v{A3}, v{A1}, 4, v{A3}
              s_lshl_b32 s{S_T+9}, s{S_SEG}, 15
              s_add_u32 s{S_T+9}, s{S_T+9}, {MOE_OFF}
              s_lshl_b32 s{S_T+6}, s{S_H}, 10
              s_add_u32 s{S_T+6}, s{S_T+6}, s{S_T+9}
              s_lshl_b32 s{S_T+7}, s{S_H}, 16
              s_lshl_b32 s{S_T+4}, s{S_W}, 8
              s_add_u32 s{S_T+7}, s{S_T+7}, s{S_T+4}""")
        self.srd(P_WD, 1792 * 1024)
        out = []
        for i in range(16):
            out.append((f"s_add_u32 s{S_T+7}, s{S_T+7}, 4096\n" if i % 4 == 0 and i else "")
                       + f"buffer_load_dwordx4 {vr(LD+i*4,4)}, v{A3}, {SA}, s{S_T+7} offen offset:{(i%4)*1024}")
        if not self.loc:
            out.append(f"buffer_load_dword v{MK+3}, v{V_L16}, {WS}, s{S_T+6} offen")
        if layer:
            for x in out:
                k(x)
            for i in range(32):
                k(f"ds_read_b128 {ar(4*i,4)}, v{self.TWO} offset:{i*1024}")
        return out

    def moe(self, layer, sKEY):
        k = self.k
        sROW = S_T + 8
        LD = 24
        X, YP, TM = 96, 104, 108
        XB, AF, ACC, MK, G = 88, 124, 116, 12, 108
        A0, A1, A2 = 8, 9, 10
        k(f"""s_andn2_b32 s{sROW}, 0x7ff, s{sKEY}
              s_lshl_b32 s{S_T}, s{sROW}, 10
              s_add_u32 s{S_T+2}, s{S_T}, {X1_OFF[layer]}
              buffer_load_dwordx4 {vr(XB,4)}, v{V_L16}, {WS}, s{S_T+2} offen sc1""")
        dl = [] if layer else self.moe_pre(0)
        TAB = L_MOE
        k(f"""s_lshl_b32 s{S_T+1}, s{S_W}, 11
              s_add_u32 s{S_T+1}, s{S_T+1}, {TAB}
              v_add_u32 v{A0}, s{S_T+1}, v{V_L16}
              v_and_b32 v2, 1, v{A2}
              v_lshrrev_b32 v3, 1, v{A2}
              v_lshlrev_b32 v2, 7, v2
              v_lshl_add_u32 v2, v3, 10, v2
              s_lshl_b32 s{S_T+3}, s{S_W}, 8
              s_add_u32 s{S_T+3}, s{S_T+1}, s{S_T+3}
              v_add_u32 v2, s{S_T+3}, v2                    ; rows 128w + 64(g&1) + (g>>1) + 2n
              s_mov_b32 s{S_T+4}, 0x01000100
              s_mov_b32 s{S_T+5}, 0x03020302
              s_waitcnt vmcnt(0)""")
        if layer == 0:
            XL, XD = k.newlabel("L_mx"), k.newlabel("L_mxd")
            k.label(XL)
            k(f"""v_max3_u32 v{AF}, v{XB}, v{XB+1}, v{XB+2}
                  v_max_u32 v{AF}, v{XB+3}, v{AF}
                  v_cmp_eq_u32 vcc, -1, v{AF}
                  s_cbranch_vccz {XD}
                  buffer_load_dwordx4 {vr(XB,4)}, v{V_L16}, {WS}, s{S_T+2} offen sc1""")
            self.spend()
            k(f"""s_waitcnt vmcnt(0)
                  s_branch {XL}""")
            k.label(XD)
            for x in dl[:4]:
                k(x)
            dl = dl[4:]
        self.mark(44)
        self.unpack8(X, XB)
        self.layernorm(X, YP, TM)
        for q in range(4):
            k(f"v_perm_b32 v{XB+q}, v{YP+q}, v{YP+q}, s{S_T+4}")
        k(f"ds_write_b128 v{A0}, {vr(XB,4)}")
        for q in range(4):
            k(f"v_perm_b32 v{XB+4+q}, v{YP+q}, v{YP+q}, s{S_T+5}")
        k(f"""ds_write_b128 v{A0}, {vr(XB+4,4)} offset:1024
              s_mov_b32 s{S_T+2}, s{S_T+1}""")
        def diag(af, t0, t1):
            return [f"v_and_b32 v{af}, v{MK}, v{t0}", f"v_and_b32 v{af+1}, v{MK+1}, v{t0}",
                    f"v_and_b32 v{af+2}, v{MK}, v{t1}", f"v_and_b32 v{af+3}, v{MK+1}, v{t1}"]
        self.mark(45)
        if layer:
            TB_ = 128
            for b in range(4):
                k(f"ds_read_b128 {vr(TB_+4*b,4)}, v2 offset:{16*b}")
                k(f"ds_read_b128 {vr(TB_+16+4*b,4)}, v2 offset:{64+16*b}")
            k(f"""v_mov_b64 {vr(ACC,2)}, 0
                  v_mov_b64 {vr(ACC+2,2)}, 0
                  s_waitcnt lgkmcnt(6)""")
            for x in diag(120, TB_, TB_ + 16):
                k(x)
            for n in range(16):
                if n + 1 < 16:
                    if (n + 1) % 4 == 0:
                        k(f"s_waitcnt lgkmcnt({6 - 2*((n+1)//4)})")
                    nx = diag(120 + 4 * ((n + 1) & 1), TB_ + n + 1, TB_ + 17 + n)
                    k(nx[0]); k(nx[1])
                k(f"v_smfmac_f32_16x16x64_bf16 {vr(ACC,4)}, {vr(120+4*(n&1),4)}, {ar(8*n,8)}, v{MK+2}")
                if n + 1 < 16:
                    k(nx[2]); k(nx[3])
        else:
            ring = [G, LD + 40, LD + 48, LD + 56]
            gread = lambda n: [f"ds_read_b128 {vr(ring[n&3]+4*hf,4)}, v{self.TWO} offset:{(2*n+hf)*1024}" for hf in range(2)]
            tread = lambda b: [f"ds_read_b128 {vr(XB,4)}, v2 offset:{16*b}", f"ds_read_b128 {vr(XB+4,4)}, v2 offset:{64+16*b}"]
            lq = []
            def ld(xs):
                for x in xs:
                    k(x); lq.append(x)
            def lw(x):
                k(f"s_waitcnt lgkmcnt({min(15, len(lq) - 1 - max(i for i, y in enumerate(lq) if y == x))})")
            ld(tread(0) + gread(0) + gread(1) + gread(2) + gread(3))
            k(f"""v_mov_b64 {vr(ACC,2)}, 0
                  v_mov_b64 {vr(ACC+2,2)}, 0""")
            early, late = dl[:6] + dl[12:], dl[6:12]
            for n in range(16):
                if n % 4 == 0:
                    lw(tread(n // 4)[1])
                for x in diag(120 + 4 * (n & 1), XB + n % 4, XB + 4 + n % 4):
                    k(x)
                if n % 4 == 3 and n < 15:
                    ld(tread(n // 4 + 1))
                lw(gread(n)[1])
                k(f"v_smfmac_f32_16x16x64_bf16 {vr(ACC,4)}, {vr(120+4*(n&1),4)}, {vr(ring[n&3],8)}, v{MK+2}")
                if n + 4 < 16:
                    ld(gread(n + 4))
                if early:
                    k(early.pop(0))
                if n >= 13:
                    k(late.pop(0)); k(late.pop(0))
            assert not early and not late
        self.mark(46)
        RED = L_MOE + 8 * KB
        k(f"""v_lshlrev_b32 v{A0}, 5, v{A1}
              v_and_b32 v{AF}, 1, v{A2}
              v_lshl_add_u32 v{A0}, v{AF}, 4, v{A0}
              v_lshrrev_b32 v{AF}, 1, v{A2}
              v_lshl_add_u32 v{A0}, v{AF}, 11, v{A0}
              s_lshl_b32 s{S_T+4}, s{S_W}, 9
              s_add_u32 s{S_T+4}, s{S_T+4}, {RED}
              v_add_u32 v{A0}, s{S_T+4}, v{A0}
              ds_write_b128 v{A0}, {vr(ACC,4)}
              v_lshlrev_b32 v{A0}, 2, v{V_LANE}
              v_add_u32 v{A0}, {RED}, v{A0}
              v_and_b32 v2, 1, v{V_LANE}
              v_lshrrev_b32 v3, 1, v{V_LANE}
              v_lshlrev_b32 v3, 2, v3
              v_lshl_add_u32 v2, v2, 7, v3
              v_add_u32 v2, s{S_T+2}, v2
              v_lshlrev_b32 v3, 6, v{A2}
              v_add_u32 v3, s{S_T+2}, v3                    ; rows 32(g&1) + (g>>1) + 2n
              s_waitcnt lgkmcnt(0)
              s_barrier""")
        for w in range(4):
            k(f"ds_read2st64_b32 {vr(XB+2*w,2)}, v{A0} offset0:{2*w} offset1:{2*w+1}")
        k("s_waitcnt lgkmcnt(0)")
        k(f"""v_pk_add_f32 {vr(XB,2)}, {vr(XB,2)}, {vr(XB+2,2)}
              v_pk_add_f32 {vr(XB+4,2)}, {vr(XB+4,2)}, {vr(XB+6,2)}
              v_pk_add_f32 {vr(XB,2)}, {vr(XB,2)}, {vr(XB+4,2)}""")
        self.round1(XB)
        self.round1(XB + 1)
        k(f"""v_mul_f32 v{XB+2}, {f32(-math.log2(math.e))}, v{XB}
              v_exp_f32 v{XB+2}, v{XB+2}
              v_add_f32 v{XB+2}, 1.0, v{XB+2}
              v_rcp_f32 v{XB+2}, v{XB+2}
              v_mul_f32 v{XB}, v{XB}, v{XB+2}""")
        self.round1(XB)
        k(f"""v_mul_f32 v{XB}, v{XB}, v{XB+1}
              v_cvt_pk_bf16_f32 v{XB}, v{XB}, v{XB}
              ds_write_b32 v2, v{XB}
              ds_read_b128 {vr(XB,4)}, v3
              ds_read_b128 {vr(G,4)}, v3 offset:32
              ds_read_b128 {vr(XB+4,4)}, v3 offset:16
              ds_read_b128 {vr(G+4,4)}, v3 offset:48
              v_mov_b64 {vr(ACC,2)}, 0
              v_mov_b64 {vr(ACC+2,2)}, 0
              s_waitcnt vmcnt(0) lgkmcnt(0)""")
        for x in diag(120, XB, G):
            k(x)
        for n in range(8):
            if n + 1 < 8:
                nx = diag(120 + 4 * ((n + 1) & 1), XB + n + 1, G + n + 1)
                k(nx[0]); k(nx[1])
            k(f"v_smfmac_f32_16x16x64_bf16 {vr(ACC,4)}, {vr(120+4*(n&1),4)}, {vr(LD+8*n,8)}, v{MK+2}")
            if n + 1 < 8:
                k(nx[2]); k(nx[3])
        self.mark(47)
        k(f"""v_lshlrev_b32 v{A0}, 4, v{A1}
              v_and_b32 v{AF}, 1, v{A2}
              v_lshl_add_u32 v{A0}, v{AF}, 3, v{A0}
              v_and_b32 v{AF}, 2, v{A2}
              v_lshl_add_u32 v{A0}, v{AF}, 30, v{A0}
              s_lshl_b32 s{S_T+4}, s{S_W}, 8
              s_add_u32 s{S_T+3}, s{S_T+6}, s{S_T+4}
              v_cvt_pk_bf16_f32 v24, v{ACC}, v{ACC+1}
              v_cvt_pk_bf16_f32 v25, v{ACC+2}, v{ACC+3}
              buffer_store_dwordx2 v[24:25], v{A0}, {WS}, s{S_T+3} offen{self.loc}""")
        self.page(S_T + 3, F_M)
        self.flag_set(S_T + 3, self.loc)
        D = k.newlabel("L_moed")
        if layer == 1:
            k(f"""s_cmp_lg_u32 s{S_H}, 0
                  s_cbranch_scc1 {D}""")
        self.page(S_T + 3, F_M, head=False)
        self.flags_wait32(S_T + 3)
        self.mark(48)
        self.reduce32(S_T + 9, True)
        self.mark(49)
        k(f"""s_cmp_lg_u32 s{S_W}, 0
              s_cbranch_scc1 {D}""")
        A, PK, Y, TM = 24, 40, 48, 56
        k(f"""v_lshlrev_b32 v{TM}, 5, v{V_LANE}
              v_add_u32 v{TM}, {L_ROW}, v{TM}
              ds_read_b128 {vr(A,4)}, v{TM}
              ds_read_b128 {vr(A+4,4)}, v{TM} offset:16
              s_and_b32 s{S_T+3}, s{sKEY}, 0xffff0000
              s_xor_b32 s{S_T+4}, s{S_T+3}, 0x80000000
              s_xor_b32 s{S_T+5}, s{S_T+3}, 0xffff0000
              s_cmp_lt_i32 s{S_T+3}, 0
              s_cselect_b32 s{S_T+3}, s{S_T+4}, s{S_T+5}
              v_mov_b32 v{TM}, s{S_T+3}
              v_mul_f32 v{TM}, {f32(-math.log2(math.e))}, v{TM}
              v_exp_f32 v{TM}, v{TM}
              v_add_f32 v{TM}, 1.0, v{TM}
              v_rcp_f32 v{TM}, v{TM}""")
        self.round1(TM)
        self.unpack8(Y, YP)
        k("s_waitcnt lgkmcnt(0)")
        self.pack8(PK, A)
        self.unpack8(A, PK)
        for j in range(0, 8, 2):
            k(f"v_pk_mul_f32 {vr(A+j,2)}, {vr(A+j,2)}, {vr(TM,2)} op_sel_hi:[1,0]")
        self.pack8(PK, A)
        self.unpack8(A, PK)
        self.add8(A, Y)
        self.pack8(PK, A)
        self.unpack8(A, PK)
        self.add8(X, A)
        self.pack8(160 if layer else 80, X)
        if layer == 0:
            self.unpack8(X, 80)
            self.layernorm(X, 84, TM + 2)
            k(f"""s_lshl_b32 s{S_T+2}, s{S_SEG}, 10
                  s_add_u32 s{S_T+2}, s{S_T+2}, {X2P_OFF}
                  s_add_u32 s{S_T+3}, s{S_T+2}, {HPS_OFF - X2P_OFF}
                  s_cmp_eq_u32 s{S_H}, 0
                  s_cselect_b32 s{S_T+3}, s{S_T+3}, 0x80000000
                  s_add_u32 s{S_T+1}, s{S_T}, {HP_OFF}
                  buffer_store_dwordx4 v[84:87], v{V_L16}, {WS}, s{S_T+3} offen sc1
                  buffer_store_dwordx4 v[80:83], v{V_L16}, {WS}, s{S_T+2} offen sc1
                  buffer_store_dwordx4 v[84:87], v{V_L16}, {WS}, s{S_T+1} offen sc1""")
        k.label(D)

    def a_plan(self):
        o = self.opt
        n1, n2, up = o.get("n1", 3), o.get("n2", 5), o.get("up", 6)
        p0 = self.P0 = o.get("p0", 14)
        own = [list(range(0, p0, 2)), list(range(1, p0, 2)), list(range(p0 + n1 + n2, p0 + n1 + n2 + up))]
        pat = o.get("pat", (0, 2, 1, 2))
        for i, x in enumerate(range(p0 + n1 + n2 + up, 64)):
            own[pat[i % len(pat)]].append(x)
        return n1, n2, up, [sum(1 << x for x in w) for w in own]

    def pop_next(self, dst, mask):
        self.k(f"""s_ff1_i32_b64 s{dst}, {sr(mask,2)}
                   s_bitset0_b64 {sr(mask,2)}, s{dst}
                   s_min_u32 s{dst}, s{dst}, 127""")

    def spec(self):
        o = self.opt
        return o.get("delta", 10), o.get("th", 28), o.get("kb", 5)

    def words_wait64(self, s_off, t, sleep):
        k = self.k
        L = k.newlabel("L_fp")
        k.label(L)
        k(f"""s_sleep {sleep}
              buffer_load_dword v{t+1}, v{t}, {WS}, s{s_off} offen sc1""")
        self.spend()
        k(f"""s_waitcnt vmcnt(0)
              v_cmp_eq_u32 vcc, 0, v{t+1}
              s_cbranch_vccnz {L}""")

    def todo_mask(self, sTODO, t):
        self.k(f"""v_cmp_le_u32 vcc, s{S_T+5}, v{V_LANE}
                   v_cndmask_b32 v{t}, 1, 2, vcc
                   v_cmp_ne_u32 {sr(sTODO,2)}, v{t}, v{t+1}""")

    def role_moe(self):
        k = self.k
        o = self.opt
        sMAX, sKEY = 54, 55
        self.proj_consts()
        _, _, UP, own = self.a_plan()
        JD, MINL, MAXL = o.get("jd", 2), o.get("minl", 15), o.get("maxl", 30)
        sNA, sSC = S_A, S_B
        sH, sN, sF, sDEBT, sOWN, sKA, sGR = S_T + 12, S_T + 14, S_T + 16, S_T + 17, S_T + 18, S_T + 20, S_T + 21
        sR, sPT, sALT, sFR, sPF = 84, 86, 87, 18, 19
        t = 20
        sQ = 22
        PR, NR = k.newlabel("L_mp"), k.newlabel("L_mr")
        L, AL, AL2, NF, NJ, FN, T1P, LK, P_, BC, WR_, L2, GOT, EN = (k.newlabel("L_mo") for _ in range(14))
        k(f"""s_mov_b32 s{sMAX}, 0
              s_mov_b32 s{sSC}, 0
              s_mov_b32 s{S_CNT}, {UP}
              s_mov_b32 s{sF}, 0x80000000
              s_mov_b32 s{sDEBT}, 0
              s_mov_b32 s{sGR}, -1
              s_mov_b32 s{sPT}, 0
              s_mov_b32 s{sPF}, 0
              s_mov_b32 s{sOWN}, {own[2] & 0xffffffff}
              s_mov_b32 s{sOWN+1}, {own[2] >> 32}
              v_and_b32 v23, 15, v{V_LANE}
              v_lshlrev_b32 v23, 3, v23
              v_lshrrev_b32 v16, 4, v{V_LANE}
              v_lshl_add_u32 v23, v16, 13, v23
              v_mov_b32 v19, {L_MISC}
              v_lshl_add_u32 v16, v16, 2, v19""")
        sBIG = 25
        for x in self.moe_pre(0)[:16]:
            k(x)
        self.srd(P_WR, 1024)
        k(f"""buffer_load_dwordx4 v[88:91], v{V_L16}, {SA}, 0 offen
              s_waitcnt vmcnt(0)""")
        self.unpack8(96, 88)
        k("v_mul_f32 v88, v96, v96")
        for j in range(1, 8):
            k(f"v_fma_f32 v88, v{96+j}, v{96+j}, v88")
        self.wsum(88, 89)
        k(f"""v_sqrt_f32 v88, v88
              v_mul_f32 v88, {f32(o.get("zbig", 2.8))}, v88
              v_readfirstlane_b32 s{sBIG}, v88
              s_bitset1_b32 s{sBIG}, 31""")
        kload = f"buffer_load_dwordx2 v[124:125], v23, {WS}, s{sKA} offen sc1"
        self.pop_next(sNA, sOWN)
        self.t1_src(sN, sNA, 0)
        k.label(AL)
        k(f"""s_cmp_lg_u32 s{sPF}, 0
              s_cbranch_scc1 {AL2}""")
        for x in self.t1_dma(sN, (0, 1, 2)):
            k(x)
        k(f"""s_mov_b32 s{sPF}, 1
              s_waitcnt vmcnt(0)""")
        k.label(AL2)
        k(f"""s_mov_b32 s{S_SEG}, s{sNA}
              s_mov_b64 {sr(sH,2)}, {sr(sN,2)}""")
        self.pop_next(sNA, sOWN)
        self.t1_src(sN, sNA, 0)
        self.page(sKA, F_RKM, seg=sSC, head=False)
        self.t1(0, sH, pre=8, s_flag=sF, nxt=self.t1_dma(sN, (0, 1, 2)) + [kload])
        self.ev(17)
        self.page(sF, F_KV[0])
        k(f"""s_sub_u32 s{S_CNT}, s{S_CNT}, 1
              s_cmp_gt_i32 s{S_CNT}, {o.get("upq", 3)}
              s_cbranch_scc1 {AL2}
              s_cmp_gt_i32 s{S_CNT}, 0
              s_cselect_b32 s{sALT}, 1, 3
              s_mov_b32 s{sFR}, 0
              s_waitcnt vmcnt(7)
              s_branch {LK}""")
        k.label(L)
        k(f"""s_mov_b32 s{sKEY}, s{sQ}
              s_mov_b32 s{sQ}, s{sQ+1}
              s_mov_b32 s{sQ+1}, s{sQ+2}
              s_mov_b32 s{sQ+2}, -1
              s_cmp_lg_u32 s{sKEY}, -1
              s_cbranch_scc1 {PR}
              s_sub_u32 s{S_T}, s{sNA}, s{sSC}
              s_cmp_gt_i32 s{sGR}, 0
              s_cselect_b32 s{S_T+1}, 6, {MINL}
              s_cmp_lg_u32 s{sPT}, 0
              s_cselect_b32 s{S_T+1}, {o.get("minl2", 9)}, s{S_T+1}
              s_cmp_lt_i32 s{S_T}, s{S_T+1}
              s_cbranch_scc1 {AL}
              s_cmp_lt_i32 s{S_T}, {MAXL}
              s_cselect_b32 s{sALT}, s{sFR}, 0
              s_cmp_ge_u32 s{sSC}, {o.get("tnow", 8)}
              s_cselect_b32 s{S_T}, 1, s{sFR}
              s_and_b32 s{S_T}, s{S_T}, s{sPT}
              s_cselect_b32 s{sALT}, 2, s{sALT}
              s_mul_i32 s{S_T}, s{sALT}, s{sFR}
              s_cmp_lg_u32 s{S_T}, 0
              s_cbranch_scc1 {FN}
              s_mov_b32 s{sFR}, 0
              s_lshr_b32 s{S_T}, s{sF}, 31
              s_or_b32 s{S_T}, s{S_T}, s{sALT}
              s_cbranch_scc1 {L2}""")
        self.flag_set(sF, " sc1")
        k(f"s_mov_b32 s{sF}, 0x80000000")
        k.label(L2)
        k(f"""s_cmp_lg_u32 s{S_W}, 0
              s_cbranch_scc1 {BC}""")
        self.page(sKA, F_RKM, seg=sSC, head=False)
        k.label(P_)
        k(kload)
        self.spend()
        k("s_waitcnt vmcnt(0)")
        k.label(LK)
        k(f"""v_min_u32 v123, v124, v125
              v_max_u32 v125, v124, v125
              v_cmp_eq_u32 vcc, 0, v123
              v_cndmask_b32 v125, v125, -1, vcc
              s_and_b32 s{S_T}, vcc_lo, 0xffff
              s_cbranch_scc0 {GOT}
              s_cmp_lg_u32 s{sALT}, 0
              s_cbranch_scc1 {GOT}
              s_mov_b32 s{sFR}, 1
              s_sleep {o.get("slm", 2)}
              s_branch {P_}""")
        k.label(GOT)
        for r in (8, 4, 2, 1):
            k(f"v_max_u32_dpp v125, v125, v125 row_ror:{r} row_mask:0xf bank_mask:0xf")
        k.label(BC)
        self.spend()
        k(f"""v_mov_b32 v124, s{sFR}
              s_barrier
              s_cmp_lg_u32 s{S_W}, 0
              s_cbranch_scc1 {WR_}
              ds_write_b32 v16, v125
              ds_write_b32 v19, v124 offset:16
              s_waitcnt lgkmcnt(0)""")
        k.label(WR_)
        k(f"""s_barrier
              ds_read_b128 v[120:123], v19
              ds_read_b32 v124, v19 offset:16
              s_waitcnt lgkmcnt(0)
              v_readfirstlane_b32 s{sKEY}, v120
              v_readfirstlane_b32 s{sQ}, v121
              v_readfirstlane_b32 s{sQ+1}, v122
              v_readfirstlane_b32 s{sQ+2}, v123
              v_readfirstlane_b32 s{sFR}, v124
              s_cmp_lg_u32 s{sKEY}, -1
              s_cbranch_scc1 {PR}
              {FN}:
              s_mov_b32 s{sQ}, -1
              s_cmp_eq_u32 s{sALT}, 1
              s_cbranch_scc1 {AL}
              s_cmp_eq_u32 s{sALT}, 2
              s_cbranch_scc1 {T1P}
              s_branch {L}""")
        k.label(PR)
        k(f"""s_mov_b32 s{S_CNT}, 0
              s_sub_u32 s{sDEBT}, s{sDEBT}, 1
              s_max_i32 s{sDEBT}, s{sDEBT}, 0
              s_sub_u32 s{sGR}, s{sGR}, 1
              s_min_u32 s{S_T+5}, s{sDEBT}, {LOOK}
              s_cmp_lt_u32 s{sSC}, {o.get("early", 5)}
              s_cselect_b32 s{S_T+4}, s{sBIG}, 0
              s_cmp_lt_u32 s{sKEY}, s{S_T+4}
              s_cselect_b32 s{S_T+5}, {LOOK}, s{S_T+5}
              s_cmp_le_u32 s{sKEY}, s{sMAX}
              s_cbranch_scc1 {NR}
              s_mov_b32 s{sGR}, s{S_T+5}
              s_mov_b32 s{sMAX}, s{sKEY}
              s_mov_b32 s{sPT}, 0
              s_or_b32 s{S_T+5}, s{S_H}, s{S_W}
              s_cbranch_scc1 {NR}
              v_mov_b32 v120, s{sMAX}
              v_lshlrev_b32 v121, 13, v{V_LANE}
              s_mov_b32 s{S_T+5}, {PG_OFF + F_RM}
              buffer_store_dword v120, v121, {WS}, s{S_T+5} offen sc1
              {NR}:
              s_cmp_lg_u32 s{sSC}, 63
              s_cbranch_scc1 {NF}
              s_min_i32 s{sGR}, s{sGR}, 0
              s_or_b32 s{S_T+5}, s{S_H}, s{S_W}
              s_cbranch_scc1 {NF}
              s_mov_b32 s{S_T+3}, {PG_OFF + 65*8192 + F_DEC}
              v_lshlrev_b32 v120, 2, v{V_LANE}""")
        self.words_wait64(S_T + 3, 120, 0)
        k(f"""s_andn2_b32 s{S_T+6}, 0x7ff, s{sMAX}
              v_lshl_or_b32 v121, s{S_T+6}, 8, v121""")
        for w in range(6):
            k(f"""s_add_u32 s{S_T+3}, s{S_T+3}, 8192
                  buffer_store_dword v121, v120, {WS}, s{S_T+3} offen sc1""")
        k.label(NF)
        k(f"""s_add_u32 s{sSC}, s{sSC}, 1
              s_cmp_gt_i32 s{sGR}, 0
              s_cmov_b32 s{sFR}, 0
              s_cbranch_scc1 {L}
              s_cmp_lg_u32 s{sGR}, 0
              s_cbranch_scc1 {NJ}""")
        k(f"""s_andn2_b32 s{S_SEG}, 0x7ff, s{sMAX}
              s_lshr_b32 s{S_SEG}, s{S_SEG}, 5
              s_add_u32 s{sDEBT}, s{sDEBT}, {JD}
              s_mov_b32 s{sPT}, 1
              s_mov_b32 s{sPF}, 0
              s_mov_b32 s{sFR}, 0
              s_waitcnt vmcnt(8)
              s_barrier""")
        self.ev(30)
        self.moe(0, sMAX)
        self.flush()
        self.ev(31)
        k("s_barrier")
        k.label(NJ)
        k(f"""s_mov_b32 s{sGR}, -1
              s_cmp_lt_u32 s{sSC}, 64
              s_cbranch_scc1 {L}
              s_cmp_eq_u32 s{sPT}, 0
              s_cbranch_scc1 {EN}""")
        k.label(T1P)
        k(f"""s_andn2_b32 s{S_SEG}, 0x7ff, s{sMAX}
              s_lshr_b32 s{S_SEG}, s{S_SEG}, 5
              s_andn2_b32 s{S_T}, 31, s{sMAX}
              v_lshrrev_b32 v2, 10, v{self.THD}
              v_add_u32 v3, 16, v2
              v_add_u32 v8, {HP_OFF - H_OFF[1]}, v{self.THD}
              v_cmp_eq_u32 vcc, s{S_T}, v2
              v_cndmask_b32 v2, v{self.THD}, v8, vcc
              v_cmp_eq_u32 vcc, s{S_T}, v3
              v_cndmask_b32 v3, v{self.THD}, v8, vcc
              s_waitcnt vmcnt(0)""")
        self.page(S_T + 3, F_HX, head=False)
        self.flags_wait32(S_T + 3, one=True, sleep=2)
        self.flag_store(sF, " sc1")
        self.t1_src(S_T + 10, S_SEG, 1)
        self.t1b(2, S_T + 10, voff=(2, 3), early=False)
        self.ev(32)
        for x in self.t1_dma(sN, (0, 1, 2)):
            k(x)
        self.page(S_T + 3, F_Q[2])
        self.flag_set(S_T + 3, " sc1")
        k(f"""s_mov_b32 s{sF}, 0x80000000
              s_mov_b32 s{sPT}, 0
              s_mov_b32 s{sPF}, 1
              s_mov_b32 s{sFR}, 0
              s_cmp_lt_u32 s{sSC}, 64
              s_cbranch_scc1 {L}""")
        k.label(EN)
        k(f"s_mov_b32 s{S_SEG}, 64")
        self.moe_pre(1)
        W = k.newlabel("L_mw")
        k(f"""s_and_b32 s{S_T+5}, s{sMAX}, 0x7ff
              s_sub_u32 s{S_T+5}, 2047, s{S_T+5}
              s_lshr_b32 s{S_T+5}, s{S_T+5}, 5""")
        k(f"""s_cmp_lg_u32 s{S_W}, 0
              s_cbranch_scc1 {W}
              s_mov_b32 s{S_T+3}, {PG_OFF + 65*8192 + F_DEC}
              v_lshlrev_b32 v2, 2, v{V_LANE}""")
        self.words_wait64(S_T + 3, 2, 2)
        self.todo_mask(sR, 2)
        k(f"""s_lshl_b32 s{S_T}, s{S_H}, 1
              s_lshr_b64 {sr(t,2)}, {sr(sR,2)}, s{S_T}
              v_lshrrev_b32 v2, 5, v{V_LANE}
              v_lshrrev_b32 v3, v2, s{t}
              v_and_b32 v3, 1, v3
              v_mul_u32_u24 v3, {F_RK[1] - F_RK[2]}, v3
              v_lshlrev_b32 v2, 13, v2
              v_sub_u32 v2, v2, v3
              v_and_b32 v3, 31, v{V_LANE}
              v_lshl_add_u32 v2, v3, 2, v2
              v_add_u32 v2, {F_RK[1]}, v2
              s_lshl_b32 s{S_T+3}, s{S_H}, 14
              s_add_u32 s{S_T+3}, s{S_T+3}, {PG_OFF}""")
        W0, AG, CK_, ST_, WV, EX = (k.newlabel("L_mf") for _ in range(6))
        k(f"""v_mov_b32 v3, 1
              s_cmp_ge_u32 s{S_H}, 28
              s_cbranch_scc1 {W0}""")
        self.words_wait64(S_T + 3, 2, 1)
        self.wmax_u32(3, 2)
        k.label(W0)
        self.page(S_T + 3, F_FIN)
        k(f"buffer_store_dword v3, off, {WS}, s{S_T+3}{self.loc}")
        k.label(W)
        k("s_barrier")
        self.page(S_T + 3, F_FIN, head=False)
        self.flags_wait32(S_T + 3, sleep=1)
        self.wmax_u32(125, 124)
        k(f"v_readfirstlane_b32 s{sKEY}, v125")
        k.label(AG)
        self.ev(33)
        self.moe(1, sKEY)
        self.flush()
        k(f"""s_or_b32 s{S_T+5}, s{S_H}, s{S_W}
              s_cselect_b32 s{S_T+5}, 1, 0
              s_add_u32 s{S_SEG}, s{S_SEG}, 1
              s_lshl1_add_u32 s{S_T+5}, s{S_SEG}, s{S_T+5}
              s_cmp_gt_u32 s{S_T+5}, 132
              s_cbranch_scc1 {EX}
              s_cmp_eq_u32 s{S_T+5}, 132
              s_cbranch_scc1 {ST_}""")
        for x in self.moe_pre(0):
            k(x)
        k(f"""s_cmp_eq_u32 s{S_T+5}, 131
              s_cbranch_scc1 {WV}
              v_lshrrev_b32 v2, 3, v{V_LANE}
              s_lshr_b32 s{t}, s{sR+1}, 24
              v_lshrrev_b32 v3, v2, s{t}
              v_and_b32 v3, 1, v3
              v_mul_u32_u24 v3, {F_RK[1] - F_RK[2]}, v3
              v_lshlrev_b32 v2, 13, v2
              v_sub_u32 v2, v2, v3
              v_and_b32 v3, 0x70, v{V_L16}
              v_add_u32 v2, v2, v3
              v_add_u32 v2, {F_RK[1]}, v2
              s_mov_b32 s{S_T+3}, {PG_OFF + 56*8192}""")
        k.label(CK_)
        k(f"buffer_load_dwordx4 v[164:167], v2, {WS}, s{S_T+3} offen sc1")
        self.spend()
        k(f"""s_waitcnt vmcnt(0)
              v_min3_u32 v168, v164, v165, v166
              v_min_u32 v168, v167, v168
              v_cmp_eq_u32 vcc, 0, v168
              s_cbranch_vccnz {CK_}
              v_max3_u32 v168, v164, v165, v166
              v_max3_u32 v168, v167, v168, s{sKEY}
              v_cmp_lt_u32 vcc, s{sKEY}, v168
              s_mov_b32 s{S_T+3}, {PG_OFF + 65*8192 + F_FIN}
              s_cbranch_vccz {ST_}""")
        self.wmax_u32(168, 169)
        k(f"""buffer_store_dword v168, off, {WS}, s{S_T+3}{self.loc}
              s_branch {WV}""")
        k.label(ST_)
        self.srd(P_OUT, 2048 * 1024)
        k(f"""buffer_store_dwordx4 v[160:163], v{V_L16}, {SA}, s{S_T} offen sc1
              v_mov_b32 v168, s{sKEY}
              s_mov_b32 s{S_T+3}, {PG_OFF + 65*8192 + F_FIN}
              buffer_store_dword v168, off, {WS}, s{S_T+3}{self.loc}""")
        self.ev(34)
        k("s_endpgm")
        k.label(WV)
        k(f"s_mov_b32 s{S_T+3}, {PG_OFF + 65*8192 + F_FIN}")
        self.word_wait(S_T + 3, S_T + 5, va=2, sleep=1)
        k(f"""s_cmp_eq_u32 s{S_T+5}, s{sKEY}
              s_cbranch_scc1 {EX}
              s_mov_b32 s{sKEY}, s{S_T+5}
              s_barrier
              s_branch {AG}""")
        k.label(EX)
        k("s_waitcnt vmcnt(0)")

    def role_proj(self):
        k = self.k
        self.LH = 64 * KB
        self.proj_consts()
        own = self.a_plan()[3]
        MAXL, MINL = self.opt.get("pmaxl", 44), self.opt.get("pminl", 12)
        sCUR, sNA = 54, 55
        sH, sN, sF, sOWN, sLB, sNB, sNXT = S_T + 10, S_T + 12, S_T + 14, S_T + 16, S_T + 18, S_T + 19, S_T + 20
        allq = (0, 1, 2, 3)
        FA, FV, VA_ = 23, 76, 19
        sPC_ = S_T + 21
        k(f"""s_sub_u32 s{sCUR}, s{S_G}, 4
              s_cmp_eq_u32 s{sCUR}, 0
              s_mov_b32 s{sOWN}, {own[1] & 0xffffffff}
              s_mov_b32 s{sOWN+1}, {own[1] >> 32}
              s_cmov_b32 s{sOWN}, {own[0] & 0xffffffff}
              s_cmov_b32 s{sOWN+1}, {own[0] >> 32}
              s_mov_b32 s{sF}, 0x80000000
              s_mov_b32 s{S_CNT}, {self.opt.get("pup", 7)}
              s_mov_b32 s{sLB}, s{S_LW}
              s_xor_b32 s{sNB}, s{sLB}, {32*KB}
              v_and_b32 v{FA}, 31, v{V_LANE}
              v_lshlrev_b32 v{FA}, 2, v{FA}
              v_mov_b32 v{VA_}, s{S_LW}
              v_mov_b32 v16, 0""")
        self.pop_next(sNA, sOWN)
        self.t1_src(sN, sNA, 0)
        for x in self.t1_dma(sN, allq, sb=sNB):
            k(x)
        k("""s_waitcnt vmcnt(0)
             s_barrier""")
        def peek():
            return (f"""s_lshl_b32 s{S_T}, s{sCUR}, 13
                        s_add_u32 s{S_T}, s{S_T}, {PG_OFF + F_HX}
                        s_or_b32 s{S_T}, s{S_T}, s{S_OOB}
                        buffer_load_dword v{FV}, v{FA}, {WS}, s{S_T} offen sc1""",
                    ["s_waitcnt vmcnt(0)", f"v_cmp_eq_u32 vcc, 0, v{FV}", f"v_mov_b32 v{FV}, vcc_lo", f"ds_write_b32 v{VA_}, v{FV}"],
                    f"ds_read_b32 v{FV}, v16")
        def choose(after_a):
            out = [f"v_readfirstlane_b32 s{S_T+1}, v{FV}",
                   f"s_sub_u32 s{S_T+3}, s{sNA}, s{sCUR}\ns_cmp_lt_i32 s{S_T+3}, {MAXL}\ns_cselect_b32 s{sNXT}, 2, 0"]
            if after_a:
                out.append(f"s_cmp_gt_i32 s{S_CNT}, 0\ns_cselect_b32 s{sNXT}, s{sNXT}, 0")
            out += [f"s_cmp_eq_u32 s{S_T+1}, 0\ns_cselect_b32 s{sNXT}, 1, s{sNXT}",
                    f"s_cmp_lt_i32 s{S_T+3}, {MINL}\ns_cselect_b32 s{sNXT}, 2, s{sNXT}\ns_add_u32 s{S_T+1}, s{sCUR}, {H_OFF[1] >> 15}",
                    f"s_cmp_eq_u32 s{sNXT}, 1\ns_cselect_b32 s{sN}, s{S_T+1}, s{sNA}\ns_lshl_b32 s{sN}, s{sN}, 15",
                    f"s_cmp_eq_u32 s{sNXT}, 0\ns_cselect_b32 s{sN}, 0x80000000, s{sN}\ns_add_u32 s{sN+1}, s{sN}, {16*KB}"]
            return out + self.t1_dma(sN, allq, sb=sNB)
        def flip():
            k(f"""s_mov_b32 s{sNB}, s{sLB}
                  s_xor_b32 s{sLB}, s{sLB}, {32*KB}""")
            for i in range(4):
                k(f"v_xor_b32 v{self.THR+i}, {32*KB}, v{self.THR+i}")
        LA_, LC, DSP, EN, W3, RDY = (k.newlabel("L_p") for _ in range(6))
        self.mk = 24
        k.label(LA_)
        flip()
        n0_ = len(k.lines)
        k(f"""s_mov_b32 s{S_SEG}, s{sNA}
              s_mov_b32 s{sPC_}, 0
              s_sub_u32 s{S_CNT}, s{S_CNT}, 1""")
        self.pop_next(sNA, sOWN)
        lead = k.lines[n0_:]; del k.lines[n0_:]
        self.t1b(0, None, landed=True, s_flag=sF, nxt=choose(True), early=False, peek=peek(), lead=lead)
        self.ev(17)
        self.page(sF, F_KV[0])
        k(f"""s_cmp_ge_u32 s{S_SEG}, 2
              s_cbranch_scc1 {DSP}""")
        self.flag_set(sF, " sc1")
        k.label(DSP)
        k(f"""s_cmp_eq_u32 s{sNXT}, 2
              s_cbranch_scc1 {LA_}
              s_mov_b32 s{S_CNT}, 0
              s_mov_b32 s{S_SEG}, s{sCUR}
              s_add_u32 s{sCUR}, s{sCUR}, 2
              s_cmp_eq_u32 s{sNXT}, 1
              s_cbranch_scc1 {LC}
              s_cmp_lg_u32 s{sPC_}, 0
              s_waitcnt vmcnt(3)
              s_cbranch_scc1 {W3}
              s_waitcnt vmcnt(2)
              {W3}:""")
        for x in peek()[1][1:]:
            k(x)
        self.t1_src(sH, S_SEG, 1)
        k(f"""s_waitcnt lgkmcnt(0)
              s_barrier
              {peek()[2]}
              s_waitcnt lgkmcnt(0)
              v_cmp_eq_u32 vcc, 0, v{FV}
              s_cbranch_vccnz {RDY}""")
        self.flag_set(sF, " sc1")
        k(f"""s_mov_b32 s{sF}, 0x80000000
              s_mov_b32 s{S_CNT}, 1
              s_cmp_ge_u32 s{S_SEG}, 64
              s_cbranch_scc1 {EN}""")
        self.page(S_T + 3, F_HX, head=False)
        self.flags_wait32(S_T + 3, one=True, sleep=self.opt.get("slp", 2))
        k.label(RDY)
        self.ev(13)
        self.t1b(1, sH, s_flag=sF, nxt=choose(self.opt.get("calm2", 1)), sb=sLB, peek=peek())
        k(f"s_mov_b32 s{sPC_}, 1")
        self.ev(14)
        self.page(sF, F_Q[1])
        k(f"s_branch {DSP}")
        k.label(LC)
        flip()
        self.t1b(1, None, landed=True, s_flag=sF, nxt=choose(self.opt.get("calm", 1)), peek=peek())
        k(f"s_mov_b32 s{sPC_}, 1")
        self.ev(16)
        self.page(sF, F_Q[1])
        k(f"s_branch {DSP}")
        k.label(EN)
        self.mk = 0
        self.LH = L_H

    def chain_helps(self):
        k = self.k
        n1, n2 = self.a_plan()[:2]
        sH, sN, sF = S_T + 12, S_T + 14, S_T + 16
        T = 120
        D, L = k.newlabel("L_chd"), k.newlabel("L_chl")
        self.THR, self.THD, self.TOB = 4, 20, 17
        k(f"""s_cmp_eq_u32 s{S_G}, 0
              s_cbranch_scc1 {D}
              v_and_b32 v{T}, 15, v{V_LANE}
              v_lshrrev_b32 v{T+1}, 4, v{V_LANE}
              v_mov_b32 v{self.TOB}, 1
              s_lshl_b32 s{S_T}, s{S_W}, 2
              v_add_u32 v{T+5}, s{S_T}, v{T+1}            ; row 4w+g
              v_xor_b32 v{T+6}, v{T+5}, v{T}
              v_lshlrev_b32 v{T+6}, 4, v{T+6}
              v_lshl_add_u32 v{self.THD}, v{T+5}, 10, v{T+6}""")
        for i in range(8):
            k(f"""s_lshl_b32 s{S_T}, s{S_W}, 1
                  s_xor_b32 s{S_T}, s{S_T}, {i}
                  s_and_b32 s{S_T+1}, s{S_T}, 3
                  s_lshl_b32 s{S_T+1}, s{S_T+1}, 2
                  s_lshr_b32 s{S_T}, s{S_T}, 2
                  s_lshl_b32 s{S_T}, s{S_T}, 13
                  s_add_u32 s{S_T}, s{S_T}, {L_H}
                  v_add_u32 v{T+5}, s{S_T+1}, v{T+1}
                  v_xor_b32 v{T+5}, v{T+5}, v{T}
                  v_lshlrev_b32 v{T+5}, 4, v{T+5}
                  v_lshl_add_u32 v{T+5}, v{T}, 8, v{T+5}
                  v_add_u32 v{self.THR+i}, s{S_T}, v{T+5}""")
        k(f"""s_cmp_eq_u32 s{S_G}, 1
              s_cselect_b32 s{S_SEG}, {self.P0}, {self.P0 + n1}
              s_cselect_b32 s{S_CNT}, {n1}, {n2}
              s_mov_b32 s{sF}, 0x80000000""")
        self.t1_src(sN, S_SEG, 0)
        for x in self.t1_dma(sN, (0, 1)):
            k(x)
        k("s_waitcnt vmcnt(0)")
        k.label(L)
        k(f"""s_mov_b64 {sr(sH,2)}, {sr(sN,2)}
              s_add_u32 s{sN}, s{sN}, {32*KB}
              s_add_u32 s{sN+1}, s{sN+1}, {32*KB}""")
        self.t1(0, sH, pre=7, s_flag=sF, nxt=self.t1_dma(sN, (0, 1)), rot=True)
        self.page(sF, F_KV[0])
        k(f"""s_add_u32 s{S_SEG}, s{S_SEG}, 1
              s_sub_u32 s{S_CNT}, s{S_CNT}, 1
              s_cmp_gt_u32 s{S_CNT}, 0
              s_cbranch_scc1 {L}""")
        self.flag_set(sF, " sc1")
        self.ev(18)
        k.label(D)

    def warm(self):
        k = self.k
        k(f"""s_and_b32 s{S_T}, s{S_G}, 1
              s_lshl_b32 s{S_T}, s{S_T}, 12
              s_add_u32 s{S_T}, s{S_T}, s{S_LW}
              s_and_b32 s{S_T+1}, s{S_H}, 15
              s_lshl_b32 s{S_T+1}, s{S_T+1}, 13
              s_add_u32 s{S_T}, s{S_T}, s{S_T+1}""")
        n = 0
        for ptr in (P_WK, P_WV, P_WQ):
            self.srd(ptr, 4 * MB)
            for i in range(32):
                if n >= self.opt.get("wdepth", 10):
                    k(f"s_waitcnt vmcnt({self.opt.get('wdepth', 10) - 1})")
                k(f"""s_add_u32 s{S_T+1}, s{S_T}, {i*16*8192}
                      buffer_load_dwordx4 v[24:27], v{V_L16}, {SA}, s{S_T+1} offen""")
                n += 1
                if n == self.opt.get("wdepth", 10) + 1:
                    self.arrive()

    def load_wo2(self):
        k = self.k
        self.srd(P_WO, 4 * MB)
        k(f"""v_and_b32 v2, 15, v{V_LANE}
              v_lshlrev_b32 v2, 4, v2
              v_lshrrev_b32 v3, 4, v{V_LANE}
              v_lshl_add_u32 v2, v3, 13, v2
              s_and_b32 s{S_T}, s{S_H}, 15
              s_lshl_b32 s{S_T}, s{S_T}, 18
              s_lshl_b32 s{S_T+1}, s{S_W}, 8
              s_add_u32 s{S_T}, s{S_T}, s{S_T+1}
              s_mov_b32 s{S_T+5}, 0x05040100
              s_mov_b32 s{S_T+6}, 0x07060302""")
        NB = 6
        def issue(g):
            b = 24 + (g % NB) * 32
            for j in range(8):
                if j % 4 == 0:
                    k(f"s_add_u32 s{S_T+1}, s{S_T}, {(32*g+j)*1024}")
                k(f"buffer_load_dwordx4 {vr(b+4*j,4)}, v2, {SA}, s{S_T+1} offen offset:{(j%4)*1024}")
        for g in range(NB):
            issue(g)
        for g in range(8):
            b = 24 + (g % NB) * 32
            k(f"s_waitcnt vmcnt({min(7-g, NB-1)*8})")
            for t in range(8):
                for q in range(4):
                    k(f"v_perm_b32 v{216+q}, v{b+4*(2*q+1)+(t>>1)}, v{b+4*(2*q)+(t>>1)}, s{S_T+5+(t&1)}")
                for q in range(4):
                    k(f"v_accvgpr_write_b32 a{(g*8+t)*4+q}, v{216+q}")
            if g + NB < 8:
                issue(g + NB)
            if g == 0:
                self.arrive()

    def role_att(self, steady):
        k = self.k
        opt = self.opt
        DL, TH, KB_ = self.spec()
        NW = 6
        over = self.loc == "" and opt.get("over", 1)
        PTX = 0 if opt.get("pt1") else 512 * KB
        sWK, sSEL = 54, 55
        sCNT, sBUF, sHD, sPT, sNQ, sNK, sLATE, sDF, sCUR, sMAXK, sFM, sNX = (S_T + i for i in range(10, 22))
        sTODO, sKO, sCW, sX = 84, 86, 87, S_A
        R_, sPS, sMODE, sST, sRB = 18, 26, 27, 32, 34
        sBN, sD, sVB, sHAD = 35, 36, 37, 38
        sLAG = 42
        gmask = sum(1 << x for x in range(DL, 64) if x >> 2 not in opt.get("dskip", ()))
        sCQ, sCK, sLQ, sLK = 28, 29, 40, 41
        DEC = PG_OFF + 65 * 8192 + F_DEC
        OUT = DBG
        OX, ROWS = 128 * KB, 144 * KB
        RK, OW_, OB_, PT_, RW_, RL_ = 2, 3, 4, 5, 6, 7
        TX0, TX1 = 8, 12
        L4, FL, ST, SA_, DF, KA = 16, 17, 18, 19, 20, 21
        Q, KK, F, V, VM, S = 24, 40, 72, 88, 120, 128
        P, Lr, ONES, SEL, O = 140, 148, 152, 156, 24
        B, ACC, PK = 24, 160, 24
        XI, WR, KEY, TT = 224, 228, 236, 238
        CN, RR_, GK, VR, VW, VT, VO, KR = 22, 23, 246, 245, 247, 248, 253, 254
        KY = 242
        VOTE = ROWS + 8 * KB
        T = TT
        self.make_sel(SEL, TT)
        self.srd(P_WR, 1024)
        k(f"""buffer_load_dwordx4 {vr(XI,4)}, v{V_L16}, {SA}, 0 offen
              v_and_b32 v{T}, 15, v{V_LANE}
              v_lshrrev_b32 v{T+1}, 4, v{V_LANE}
              v_lshlrev_b32 v{T+2}, 2, v{T+1}
              v_mov_b32 v{T+3}, {NEGBIG}
              s_and_b32 s{S_T}, s{S_W}, 1
              s_lshl_b32 s{S_T}, s{S_T}, 4
              v_add_u32 v{T+4}, s{S_T}, v{T}""")
        for u in range(2):
            for r in range(4):
                k(f"v_add_u32 v{T+5}, {16*u+r}, v{T+2}")
                k(f"v_cmp_gt_u32 vcc, v{T+5}, v{T+4}")
                k(f"v_cndmask_b32 v{(TX0,TX1)[u]+r}, 0, v{T+3}, vcc")
        CV = ONES
        k(f"""v_mov_b32 v{CV}, s{S_C}
              v_mov_b32 v{P+5}, 0
              v_mov_b32 v{P+6}, 0
              s_lshl_b32 s{S_T}, s{S_W}, 12
              s_add_u32 s{S_T}, s{S_T}, {OX}
              v_add_u32 v{OW_}, s{S_T}, v{V_L16}
              v_add_u32 v{OB_}, {OX}, v{V_L16}
              s_lshl_b32 s{S_T}, s{S_W}, 8
              v_lshlrev_b32 v{RL_}, 4, v{T}
              v_add_u32 v{RL_}, s{S_T}, v{RL_}
              v_lshl_add_u32 v{PT_}, v{T+1}, 16, v{RL_}
              v_lshlrev_b32 v{RW_}, 1, v{RL_}
              v_lshl_add_u32 v{RL_}, v{T+1}, 10, v{RL_}
              v_and_b32 v{T+5}, 1, v{T+1}
              v_lshl_add_u32 v{RW_}, v{T+5}, 4, v{RW_}
              v_lshrrev_b32 v{T+5}, 1, v{T+1}
              v_lshl_add_u32 v{RW_}, v{T+5}, 12, v{RW_}
              v_add_u32 v{RW_}, {ROWS}, v{RW_}
              v_lshlrev_b32 v{L4}, 2, v{V_LANE}
              v_lshlrev_b32 v{KA}, 3, v{T}
              s_and_b32 s{sHD}, s{S_H}, 15
              s_lshl_b32 s{S_T}, s{sHD}, 10
              v_add_u32 v{PT_}, s{S_T}, v{PT_}
              s_lshl_b32 s{S_T}, s{sHD}, 15
              v_add_u32 v{RL_}, s{S_T}, v{RL_}
              s_lshl_b32 s{sPT}, s{sWK}, 20
              s_add_u32 s{sPT}, s{sPT}, {PT_OFF}
              s_lshl_b32 s{sCW}, s{sWK}, 13
              s_add_u32 s{sCW}, s{sCW}, {PG_OFF + F_CW}
              s_lshl4_add_u32 s{sCUR}, s{sHD}, s{sCW}
              s_lshl2_add_u32 s{sCUR}, s{S_W}, s{sCUR}
              s_lshl_b32 s{sHD}, s{sHD}, 1
              s_lshr_b32 s{S_T}, s{S_W}, 1
              s_add_u32 s{sHD}, s{sHD}, s{S_T}
              s_mov_b32 s{sCNT}, 0
              s_mov_b32 s{sBUF}, 0
              s_mov_b32 s{sDF}, 0x80000000
              s_mov_b32 s{sMAXK}, 0
              s_mov_b32 s{sVB}, 0
              s_mov_b32 s{sLAG}, {gmask & 0xffffffff}
              s_mov_b32 s{sLAG+1}, {gmask >> 32}
              s_mov_b64 {sr(sHAD,2)}, 0
              s_sub_u32 s{sD}, s{sWK}, {2 + DL}
              s_and_b32 s{sD}, s{sD}, 3
              s_mov_b32 s{SRD_DBG}, s{P_OUT}
              s_mov_b32 s{SRD_DBG+1}, s{P_OUT+1}
              s_mov_b32 s{SRD_DBG+2}, {2048*1024}
              s_mov_b32 s{SRD_DBG+3}, 0x20000
              s_and_b32 s{sCK}, s{S_W}, 1
              s_mul_i32 s{sCQ}, s{sCK}, {12*KB}
              s_lshl_b32 s{sCK}, s{sCK}, 11
              s_and_b32 s{S_T}, s{S_LW}, 2048
              s_lshl_b32 s{S_T}, s{S_T}, 4
              s_add_u32 s{S_T}, s{S_T}, {64*KB}
              s_add_u32 s{sLQ}, s{S_T}, s{sCQ}
              s_add_u32 s{sLK}, s{S_T}, s{sCK}
              v_add_u32 v{KA}, {PG_OFF + F_RK[0]}, v{KA}
              v_mov_b32 v{KY+2}, v{KA}
              s_and_b32 s{S_T}, s{S_LW}, 2048
              s_add_u32 s{S_T}, s{S_T}, {ROWS}
              v_lshlrev_b32 v{RR_}, 5, v{V_LANE}
              v_add_u32 v{RR_}, s{S_T}, v{RR_}
              v_and_b32 v{VO}, 32, v{V_L16}
              v_lshrrev_b32 v{VR}, 2, v{VO}
              v_add_u32 v{VO}, v{VO}, v{VR}
              v_sub_u32 v{VO}, v{V_L16}, v{VO}
              v_add_u32 v{VO}, 8, v{VO}                     ; v_m of a lane: (lane & ~2)*16 + (lane & 2 ? 0 : 8)
              v_mov_b32 v{KR}, 0x80000000
              s_mov_b32 s{S_T}, {F_RK[0]}
              v_writelane_b32 v{KR}, s{S_T}, 0
              s_mov_b32 s{S_T}, {F_RKU}
              v_writelane_b32 v{KR}, s{S_T}, 1
              s_mov_b32 s{S_T}, {F_RKM}
              v_writelane_b32 v{KR}, s{S_T}, 2
              v_mov_b32 v{VR}, {VOTE}
              s_lshl_b32 s{S_T}, s{S_W}, 2
              v_add_u32 v{VW}, s{S_T}, v{VR}
              s_waitcnt vmcnt(0)""")
        self.unpack8(WR, XI)
        TH_ = 255
        k(f"v_mul_f32 v{TH_}, v{WR}, v{WR}")
        for j in range(1, 8):
            k(f"v_fma_f32 v{TH_}, v{WR+j}, v{WR+j}, v{TH_}")
        self.wsum(TH_, TT)
        k(f"""v_sqrt_f32 v{TH_}, v{TH_}
              v_sub_u32 v{TT}, {63 + KB_}, v{V_LANE}
              v_cvt_f32_u32 v{TT}, v{TT}
              v_log_f32 v{TT}, v{TT}
              v_mov_b32 v{TT+1}, {f32(opt.get("za", 1.95))}
              v_fmac_f32 v{TT+1}, {f32(opt.get("zb", 0.32) * math.log(2))}, v{TT}
              v_mul_f32 v{TH_}, v{TH_}, v{TT+1}
              v_or_b32 v{TH_}, 0x80000000, v{TH_}""")

        def capture(fn, *a):
            n0 = len(k.lines); fn(*a); out = k.lines[n0:]; del k.lines[n0:]; return out
        def hpage(dst, off, seg):
            k(f"""s_lshl_b32 s{dst}, s{seg}, 13
                  s_lshl2_add_u32 s{dst}, s{sHD}, s{dst}
                  s_add_u32 s{dst}, s{dst}, {PG_OFF + off}""")
        def spin(v, reload, cmp):
            A_, B_ = k.newlabel("L_aw"), k.newlabel("L_awd")
            k.label(A_)
            k(f"""{cmp}
                  s_cbranch_vccz {B_}
                  {reload}""")
            self.spend()
            k(f"""s_waitcnt vmcnt(0)
                  s_branch {A_}""")
            k.label(B_)
        GL = " glc" if opt.get("glc") else ""
        stubs = []
        st_load = f"buffer_load_dword v{ST}, v{SA_}, {WS}, 0 offen sc1"
        def plan_next(layer, s_rec=None, vec=False):
            out = capture(plan_next_, layer, s_rec)
            for x in out:
                if not (vec and x.startswith("s_buffer_load")):
                    k(x)
        def plan_next_(layer, s_rec):
            k(f"""s_lshl_b32 s{S_T}, s{sNX}, 5
                  s_add_u32 s{S_T}, s{S_T}, s{sHD}
                  s_mul_i32 s{sNQ}, s{S_T}, {24*KB}
                  s_lshl_b32 s{sNK}, s{S_T}, 12""")
            if layer == 0:
                hpage(S_T + 3, F_Q[0], sNX)
                k(f"""s_buffer_load_dword s{sST}, {WS}, s{S_T+3}{GL}
                      s_mov_b32 s{sST+1}, 1
                      s_add_u32 s{sNQ}, s{sNQ}, {QKV_OFF[0]}
                      s_add_u32 s{sNK}, s{sNK}, {KVM_OFF[0]}
                      v_mov_b32 v{SA_}, s{S_T+3}""")
            else:
                hpage(S_T + 3, F_Q[1], sNX)
                k(f"""s_cmp_lt_u32 s{sNX}, s{s_rec}
                      s_cselect_b32 s{S_T+1}, 0, {KVM_OFF[2] - KVM_OFF[1]}
                      s_mov_b32 s{S_T+4}, s{S_T+3}
                      s_buffer_load_dword s{sST+1}, {WS}, s{S_T+4}{GL}
                      s_add_u32 s{sNK}, s{sNK}, s{S_T+1}
                      s_add_u32 s{sNK}, s{sNK}, {KVM_OFF[1]}
                      s_cmp_eq_u32 s{sNX}, s{s_rec}
                      s_cselect_b32 s{S_T+1}, {QKV_OFF[2] - QKV_OFF[1]}, 0
                      s_cselect_b32 s{S_T+2}, {F_Q[2] - F_Q[1]}, 0
                      s_add_u32 s{S_T+3}, s{S_T+3}, s{S_T+2}
                      s_buffer_load_dword s{sST}, {WS}, s{S_T+3}{GL}
                      s_add_u32 s{sNQ}, s{sNQ}, s{S_T+1}
                      s_add_u32 s{sNQ}, s{sNQ}, {QKV_OFF[1]}
                      v_mov_b32 v{SA_}, s{S_T+3}
                      v_writelane_b32 v{SA_}, s{S_T+4}, 1""")
        NT = " nt" if opt.get("nt") else ""
        LP = opt.get("lp", "sc1")
        def fetch_ops(q, kv):
            out = [f"s_add_u32 s{q}, s{q}, s{sCQ}", f"s_add_u32 s{kv}, s{kv}, s{sCK}",
                   f"s_xor_b32 s{S_T+2}, s{sBUF}, s{sLQ}", f"s_xor_b32 s{S_T+1}, s{sBUF}, s{sLK}"]
            for i in range(3):
                out.append(f"s_add_u32 m0, s{S_T+2}, {i*4096}")
                if i:
                    out.append(f"s_add_u32 s{q}, s{q}, 4096")
                out += [f"buffer_load_dwordx4 v{V_L16}, {WS}, s{q} offen offset:{c*1024} sc1{NT} lds" for c in range(4)]
            out.append(f"s_add_u32 m0, s{S_T+1}, {24*KB}")
            out += [f"buffer_load_dwordx4 v{V_L16}, {WS}, s{kv} offen offset:{c*1024} {LP} lds" for c in range(2)]
            return out
        sLAY, sNS = S_B, S_CNT
        pub = [f"buffer_store_dword v{DF}, off, {WS}, s{sDF} sc1", f"s_mov_b32 s{sDF}, 0x80000000"]
        def flush_pub():
            k("s_waitcnt vmcnt(0)")
            for x in pub:
                k(x)
        def look():
            for kk in range(4):
                k(f"buffer_load_dwordx4 {vr(F+4*kk,4)}, v{V_L16}, {WS}, s{sFM} offen offset:{kk*1024} {LP}")
            for i in range(4):
                k(f"buffer_load_dwordx2 {vr(VM+2*i,2)}, v{VO}, {WS}, s{sFM} offen offset:{i*1024} {LP}")
        key_load = f"buffer_load_dwordx2 {vr(KY,2)}, v{KY+2}, {WS}, 0 offen sc1"
        def keys_issue(t):
            k(f"""v_lshrrev_b32 v{KY+2}, 4, v{V_LANE}
                  s_sub_u32 s{t}, s{sNX}, {KB_ + 3}
                  v_add_u32 v{KY+2}, s{t}, v{KY+2}
                  v_max_i32 v{KY+2}, 0, v{KY+2}
                  v_lshl_add_u32 v{KY+2}, v{KY+2}, 13, v{KA}
                  {key_load}""")
        def fcheck():
            out = []
            for kk in range(4):
                f = F + 4 * kk
                out.append(f"v_max3_u32 v{TT}, v{f}, v{f+1}, v{TT if kk else f+2}")
                out.append(f"v_max3_u32 v{TT}, v{f+2}, v{f+3}, v{TT}")
            return out
        def vcheck():
            for i in range(4):
                k(f"v_max3_u32 v{TT}, v{VM+2*i}, v{VM+2*i+1}, v{TT}")
            k(f"v_cmp_eq_u32 vcc, -1, v{TT}")
        def check(w, n=1):
            fc = fcheck()
            for kk in range(4):
                if w:
                    k(f"s_waitcnt vmcnt({7+n-kk})")
                k(f"v_mfma_f32_16x16x32_bf16 {vr(S+8,4)}, {vr(F+4*kk,4)}, {vr(Q+4*kk,4)}, {'0' if kk == 0 else vr(S+8,4)}")
                k(fc.pop(0)); k(fc.pop(0))
            if w:
                k(f"s_waitcnt vmcnt({n})")
            vcheck()
        def chain_wait(cond):
            A_, B_ = k.newlabel("L_ac"), k.newlabel("L_acb")
            k(f"s_cbranch_{cond} {A_}")
            k.label(B_)
            def stub():
                k.label(A_)
                for x in pub:
                    k(x)
                look()
                self.spend()
                check(True, 0)
                k(f"""s_cbranch_vccnz {A_}
                      s_branch {B_}""")
            stubs.append(stub)
        def pre(direct=False):
            k(f"""s_xor_b32 s{sBUF}, s{sBUF}, {64*KB}
                  s_and_b32 s{S_T}, s{S_LW}, 2048
                  s_lshl_b32 s{S_T}, s{S_T}, 4
                  s_add_u32 s{S_T}, s{S_T}, s{sBUF}
                  v_add_u32 v{RK}, s{S_T}, v{V_L16}
                  v_add_u32 v{TT+1}, s{S_T}, v{VO}
                  s_and_b32 s{S_T}, s{S_LW}, 1024
                  s_lshl_b32 s{S_T}, s{S_T}, 2
                  v_add_u32 v{TT}, s{S_T}, v{RK}
                  s_mov_b32 s{sFM}, s{sNK}
                  s_mov_b32 s{sNS}, s{sNX}""")
            for kk in range(4):
                k(f"ds_read_b128 {vr(Q+4*kk,4)}, v{TT} offset:{16*KB + kk*1024}")
                k(f"ds_read_b128 {vr(KK+4*kk,4)}, v{RK} offset:{kk*1024}")
                k(f"ds_read_b128 {vr(KK+16+4*kk,4)}, v{RK} offset:{4096 + kk*1024}")
            late = [f"ds_read_b128 {vr(F+4*i,4)}, v{RK} offset:{24*KB + i*1024}" for i in range(4)]
            late += [f"ds_read_b64 {vr(VM+2*i,2)}, v{TT+1} offset:{24*KB + i*1024}" for i in range(4)]
            if direct:
                late = []
                look()
            late += [f"ds_read_b128 {vr(V+4*i,4)}, v{RK} offset:{8*KB + i*1024}" for i in range(8)]
            for kk in range(4):
                k(f"s_waitcnt lgkmcnt({9 - 3*kk + 2*kk})")
                q = vr(Q + 4 * kk, 4)
                k(f"v_mfma_f32_16x16x32_bf16 {vr(S,4)}, {vr(KK+4*kk,4)}, {q}, {vr(TX0,4) if kk == 0 else vr(S,4)}")
                k(late.pop(0))
                k(f"v_mfma_f32_16x16x32_bf16 {vr(S+4,4)}, {vr(KK+16+4*kk,4)}, {q}, {vr(TX1,4) if kk == 0 else vr(S+4,4)}")
                k(late.pop(0))
            if direct:
                return
            k("s_waitcnt lgkmcnt(4)")
            for kk in range(4):
                k(f"v_mfma_f32_16x16x32_bf16 {vr(S+8,4)}, {vr(F+4*kk,4)}, {vr(Q+4*kk,4)}, {'0' if kk == 0 else vr(S+8,4)}")
                k(late.pop(0)); k(late.pop(0))
        poll = f"buffer_load_dword v{FL}, v{L4}, {WS}, s{sCW} offen sc1"
        pcmp = f"v_cmp_gt_u32 vcc, s{sCNT}, v{FL}"
        def rloads(RD):
            out = [f"s_xor_b32 s{sRB}, s{sPT}, {PTX}"]
            for i in range(8):
                if i:
                    out.append(f"s_add_u32 s{sRB}, s{sRB}, 4096")
                out.append(f"buffer_load_dwordx4 {vr(RD+4*i,4)}, v{RL_}, {WS}, s{sRB} offen sc1")
            return out
        RD2 = 192
        def skip_test(t):
            return [f"s_bfe_u32 s{S_T}, s{sCNT}, 0x10002", f"v_lshrrev_b32 v{t}, s{S_T}, v{FL}", f"v_and_b32 v{t}, 1, v{t}",
                    f"v_cmp_ne_u32 vcc, 0, v{t}"]
        def post(fetch=False, tail=None, skip=None):
            t = TT
            pk = lambda op, i, o, m="": f"v_pk_{op}_f32 {vr(S+i,2)}, {vr(S+i,2)}, {vr(o,2)} op_sel_hi:[1,0]{m}"
            pa = opt.get("pollat", 1)
            k(f"""{poll if fetch and pa == 0 else ""}
                  v_max3_f32 v{t}, v{S}, v{S+1}, v{S+2}
                  v_max3_f32 v{t+1}, v{S+3}, v{S+4}, v{S+5}
                  v_max3_f32 v{t}, v{S+6}, v{S+7}, v{t}
                  v_max3_f32 v{t+1}, v{S+10}, v{S+11}, v{t+1}
                  v_max_f32 v{t}, v{t}, v{t+1}
                  v_max_f32 v{t+1}, v{t}, v{t+1}
                  {pk("mul", 0, CV)}
                  {pk("mul", 2, CV)}
                  v_permlane16_swap_b32 v{t}, v{t+1}
                  v_max_f32 v{t}, v{t}, v{t+1}
                  v_max_f32 v{t+1}, v{t}, v{t+1}
                  {pk("mul", 4, CV)}
                  {pk("mul", 6, CV)}
                  v_permlane32_swap_b32 v{t}, v{t+1}
                  v_max_f32 v{t}, v{t}, v{t+1}
                  v_mul_f32 v{t}, v{CV}, v{t}
                  {pk("mul", 10, CV)}
                  {poll if fetch and pa == 1 else ""}""")
            for i in (0, 2, 4, 6, 10):
                k(pk("add", i, t, " neg_lo:[0,1] neg_hi:[0,1]"))
            for i in (0, 1, 2, 3, 4, 5, 6, 7, 10, 11):
                k(f"v_exp_f32 v{S+i}, v{S+i}")
            k(f"""{poll if fetch and pa == 2 else ""}
                  v_pk_add_f32 {vr(Lr,2)}, {vr(S,2)}, {vr(S+2,2)}
                  v_pk_add_f32 {vr(Lr+2,2)}, {vr(S+4,2)}, {vr(S+6,2)}
                  v_pk_add_f32 {vr(Lr,2)}, {vr(Lr,2)}, {vr(S+10,2)}
                  v_pk_add_f32 {vr(Lr,2)}, {vr(Lr,2)}, {vr(Lr+2,2)}
                  v_add_f32 v{Lr+2}, v{Lr}, v{Lr+1}
                  v_add_f32 v{Lr+3}, v{Lr}, v{Lr+1}
                  v_permlane16_swap_b32 v{Lr+2}, v{Lr+3}
                  v_add_f32 v{Lr}, v{Lr+2}, v{Lr+3}
                  v_add_f32 v{Lr+1}, v{Lr+2}, v{Lr+3}
                  v_permlane32_swap_b32 v{Lr}, v{Lr+1}
                  v_add_f32 v{Lr}, v{Lr}, v{Lr+1}
                  v_rcp_f32 v{Lr}, v{Lr}""")
            nrm = [pk("mul", i, Lr) for i in (10, 0, 2, 4, 6)]
            nrm += [f"v_cvt_pk_bf16_f32 v{P+4}, v{S+10}, v{S+11}", f"v_cvt_pk_bf16_f32 v{P+7}, v{S+10}, v{S+11}"]
            cvp = [f"v_cvt_pk_bf16_f32 v{P+q}, v{S+2*q}, v{S+2*q+1}" for q in range(4)]
            rl = []
            if fetch:
                RT_, BK = k.newlabel("L_ap"), k.newlabel("L_apb")
                k(f"""s_waitcnt vmcnt(0)
                      {pcmp}""")
                for x in nrm[:5]:
                    k(x)
                nrm = nrm[5:]
                k(f"s_cbranch_vccnz {RT_}")
                k.label(BK)
                def stub():
                    k.label(RT_)
                    spin(FL, poll, pcmp)
                    k(f"s_branch {BK}")
                stubs.append(stub)
                self.mark(37)
                rl = rloads(RD2)
                k(rl.pop(0)); k(rl.pop(0))
                if skip:
                    for x in skip_test(TT) + nrm + cvp:
                        k(x)
                    nrm = []; cvp = []
                    k(f"""s_cbranch_vccnz {skip}
                          s_add_u32 s{sD}, s{sD}, 4""")
            for x in nrm:
                k(x)
            fin = lambda i: [f"v_cvt_pk_bf16_f32 v{F+4*i+r}, v{O+8*i+r}, v{O+8*i+4+r}" for r in range(4)]
            owr = lambda i: f"ds_write_b128 v{OW_}, {vr(F+4*i,4)} offset:{i*1024}"
            for i in range(8):
                k(f"v_mfma_f32_16x16x16_bf16 {vr(O+4*i,4)}, {vr(VM+2*(i>>1),2)}, {vr(P+4+2*(i&1),2)}, 0")
                if rl:
                    k(rl.pop(0))
                if cvp:
                    k(cvp.pop(0))
            for i in range(8):
                k(f"v_mfma_f32_16x16x32_bf16 {vr(O+4*i,4)}, {vr(V+4*i,4)}, {vr(P,4)}, {vr(O+4*i,4)}")
                if i in (5, 7):
                    k(owr((i - 5) // 2))
                elif rl:
                    k(rl.pop(0))
                if i >= 3:
                    for x in fin((i - 3) // 2)[2 * ((i - 3) & 1):][:2]:
                        k(x)
            for x in fin(2)[2:] + [owr(2)] + rl + fin(3) + [owr(3)]:
                k(x)
            if tail:
                k(tail)
            k("""s_waitcnt lgkmcnt(0)
                 s_barrier""")
        def pop_todo(n):
            for _ in range(n):
                k(f"""s_ff1_i32_b64 s{sNX}, {sr(sTODO,2)}
                      s_bitset0_b64 {sr(sTODO,2)}, s{sNX}""")
            k(f"s_min_u32 s{sNX}, s{sNX}, 64")
        DLAST = opt.get("dlast", 62)
        def no_more():
            k(f"""v_subrev_u32 v{VT}, s{sD}, v{V_LANE}
                  v_and_b32 v{VT}, 0x80000003, v{VT}
                  v_cmp_eq_u32 vcc, 0, v{VT}
                  v_lshlrev_b32 v{VT}, 2, v{V_LANE}
                  v_mov_b32 v{VT+1}, 0x40000000
                  v_cndmask_b32 v{VT}, v{VT+1}, v{VT}, vcc
                  v_mov_b32 v{VT+1}, 3
                  s_or_b32 s{S_T+3}, s{sHD}, s{S_W}
                  s_mov_b32 s{S_T+3}, {DEC}
                  s_cmov_b32 s{S_T+3}, 0x80000000
                  buffer_store_dword v{VT+1}, v{VT}, {WS}, s{S_T+3} offen sc1""")
        def plan_after_d():
            F_, J_ = k.newlabel("L_ae"), k.newlabel("L_af")
            k(f"""s_cmp_lg_u32 s{sKO}, {F_RK[1]}
                  s_cbranch_scc1 {F_}
                  s_mov_b32 s{sNX}, s{sBN}
                  s_mov_b32 s{sX}, 0""")
            plan_next(0)
            k(f"s_branch {J_}")
            k.label(F_)
            pop_todo(1)
            k(f"s_lshr_b32 s{S_T+5}, s{sSEL}, 5")
            plan_next(1, S_T + 5)
            k.label(J_)
        def plan_after_b(vec=False):
            NB_, J_ = k.newlabel("L_ab"), k.newlabel("L_aj")
            NM_ = k.newlabel("L_am")
            k(f"""s_add_u32 s{sBN}, s{sNS}, 4
                  s_cmp_lt_u32 s{sNS}, {KB_}
                  s_cbranch_scc1 {NB_}
                  s_cmp_ge_u32 s{sNS}, {DLAST}
                  s_cbranch_scc1 {NM_}""")
            def stub():
                k.label(NM_)
                no_more()
                k(f"s_branch {NB_}")
            stubs.append(stub)
            spin(KY, f"s_sleep {opt.get('slt', 4)}\n" + key_load, f"v_min_u32 v{TT+1}, v{KY}, v{KY+1}\nv_cmp_eq_u32 vcc, 0, v{TT+1}")
            k(f"v_max_u32 v{KY}, v{KY}, v{KY+1}")
            self.wmax_u32(KY, KY + 1)
            k(f"""v_readfirstlane_b32 s{S_T}, v{KY}
                  v_readlane_b32 s{S_T+1}, v{TH_}, s{sNS}
                  s_max_u32 s{sMAXK}, s{sMAXK}, s{S_T}
                  s_bitcmp0_b64 {sr(sLAG,2)}, s{sNS}
                  s_cbranch_scc1 {NB_}
                  s_mov_b32 s{sNX}, s{sD}
                  s_and_b32 s{sSEL}, s{sMAXK}, 0x7ff
                  s_sub_u32 s{sSEL}, 2047, s{sSEL}
                  s_cmp_lt_u32 s{sMAXK}, s{S_T+1}
                  s_cselect_b32 s{sSEL}, 4095, s{sSEL}
                  s_lshr_b32 s{S_T+5}, s{sSEL}, 5
                  s_mov_b32 s{sX}, 1""")
            plan_next(1, S_T + 5, vec)
            k(f"s_branch {J_}")
            k.label(NB_)
            k(f"""s_mov_b32 s{sNX}, s{sBN}
                  s_mov_b32 s{sX}, 0""")
            plan_next(0, None, vec)
            k.label(J_)
        def exch1(vote=0, keep=0):
            k(f"""s_add_u32 s{sCNT}, s{sCNT}, 4
                  s_bfe_u32 s{S_T}, s{sCNT}, 0x10002
                  s_bitset0_b32 s{sVB}, s{S_T}
                  s_lshl_b32 s{S_T}, {vote}, s{S_T}
                  s_or_b32 s{sVB}, s{sVB}, s{S_T}
                  s_or_b32 s{S_T}, s{sVB}, s{sCNT}
                  v_mov_b32 v{CN}, s{S_T}
                  s_xor_b32 s{sPT}, s{sPT}, {PTX}
                  s_waitcnt vmcnt({keep}) lgkmcnt(0)
                  buffer_store_dword v{CN}, off, {WS}, s{sCUR}{self.loc}""")
            for x in pub if opt.get("pub0") else ():
                k(x)
            self.mark(36)
        def reduce_items(RD, RA):
            out = []
            for i in range(8):
                d = vr(RA + 4 * (i >> 2), 4)
                out.append(("wv", "RD%d" % i))
                out.append(f"v_mfma_f32_16x16x32_bf16 {d}, {vr(SEL,4)}, {vr(RD+4*i,4)}, {'0' if i % 4 == 0 else d}")
                if i == 6:
                    out.append(f"ds_write_b128 v{RW_}, {vr(RA,4)}")
            out.append(("gap", 2))
            out.append(f"ds_write_b128 v{RW_}, {vr(RA+4,4)} offset:2048")
            return out
        def reduce_now(RD, RA, nmid=0):
            i = 0
            for x in reduce_items(RD, RA):
                if isinstance(x, str):
                    k(x)
                elif x[0] == "wv":
                    k(f"s_waitcnt vmcnt({7 - i + nmid})"); i += 1
            k(f"""s_waitcnt lgkmcnt(0)
                  s_barrier""")
            for x in () if opt.get("pub0") else pub:
                k(x)
            self.mark(38)
        def exch2(mid=None, nmid=0):
            WL = k.newlabel("L_aq")
            k.label(WL)
            k(poll)
            self.spend()
            k(f"""s_waitcnt vmcnt(0)
                  {pcmp}
                  s_cbranch_vccnz {WL}""")
            self.mark(37)
            for x in rloads(160):
                k(x)
            if mid:
                mid()
            reduce_now(160, 192, nmid)
        def row(layer, odd, regs, seg):
            A, PKr, Y, TM, X = regs
            if layer and odd:
                return [], [("mark", "xi")], []
            rd_ = [f"ds_read_b128 {vr(A,4)}, v{RR_}", ("t", "A", f"ds_read_b128 {vr(A+4,4)}, v{RR_} offset:16")]
            out = capture(self.unpack8, X, XI)
            if layer:
                NG_, BK = k.newlabel("L_ag"), k.newlabel("L_agb")
                out.append(f"v_readfirstlane_b32 s{R_+4}, v{GK}")
                out.append(f"s_cmp_eq_u32 s{R_+4}, 0\ns_cbranch_scc1 {NG_}\n{BK}:")
                def stub():
                    k.label(NG_)
                    hpage(R_ + 3, F_RK[1], seg)
                    self.word_wait(R_ + 3, R_ + 4, va=GK)
                    k(f"s_branch {BK}")
                stubs.append(stub)
            out.append(("mark", "xi"))
            out += [f"s_lshl_b32 s{R_}, s{seg}, 5", f"s_add_u32 s{R_}, s{R_}, s{sHD}", f"s_lshl_b32 s{R_+1}, s{R_}, 10",
                    f"s_add_u32 s{R_+2}, s{R_+1}, {X1_OFF[layer] if layer or odd else X2_OFF}", ("mark", "early")]
            def body():
                self.pack8(PKr, A)
                self.unpack8(A, PKr)
                self.add8(X, A)
                self.pack8(PKr, X)
                if layer or odd:
                    k(f"buffer_store_dwordx4 {vr(PKr,4)}, v{V_L16}, {WS}, s{R_+2} offen sc1")
                self.unpack8(X, PKr)
                self.layernorm(X, PKr + 4, TM)
                self.unpack8(Y, PKr + 4)
                if not odd:
                    self.add8(X, Y)
                    self.pack8(A, X)
                    if layer == 0:
                        k(f"buffer_store_dwordx4 {vr(A,4)}, v{V_L16}, {WS}, s{R_+2} offen sc1")
                        self.unpack8(X, A)
                        self.layernorm(X, A + 4, TM)
                        k(f"""s_add_u32 s{R_+2}, s{R_+1}, {H_OFF[1]}
                              buffer_store_dwordx4 {vr(A+4,4)}, v{V_L16}, {WS}, s{R_+2} offen sc1
                              v_mov_b32 v{DF}, 1""")
                        hpage(sDF, F_HX, seg)
                        return
                    k(f"buffer_store_dwordx4 {vr(A,4)}, v{V_L16}, {OUT}, s{R_+1} offen sc1")
                k(f"v_pk_mul_f32 {vr(KEY,2)}, {vr(Y,2)}, {vr(WR,2)}")
                for j in range(2, 8, 2):
                    k(f"v_pk_fma_f32 {vr(KEY,2)}, {vr(Y+j,2)}, {vr(WR+j,2)}, {vr(KEY,2)}")
                k(f"v_add_f32 v{KEY}, v{KEY}, v{KEY+1}")
                self.wsum(KEY, KEY + 1)
                self.round1(KEY)
                k(f"""v_ashrrev_i32 v{KEY+1}, 31, v{KEY}
                      v_or_b32 v{KEY+1}, 0x80000000, v{KEY+1}
                      v_xor_b32 v{KEY}, v{KEY}, v{KEY+1}
                      v_and_b32 v{KEY}, 0xffff0000, v{KEY}
                      s_sub_u32 s{R_+2}, {2047 + 2048}, s{R_}
                      v_or_b32 v{DF}, s{R_+2}, v{KEY}""")
                if layer == 0:
                    hpage(R_ + 2, 0, seg)
                    k(f"buffer_store_dword v{DF}, v{KR}, {WS}, s{R_+2} offen sc1")
                else:
                    hpage(sDF, 0, seg)
                    k(f"s_add_u32 s{sDF}, s{sDF}, s{sKO}")
            return rd_, out, [("wl", "A")] + capture(body)

        FINAL, T3, NXB, LATE, DRAIN, ROWS_, RD_, GOB, SLOW, SLB, FIN2, PL, PC, T3E, T3X = (k.newlabel("L_aa") for _ in range(15))
        if opt.get("ptwarm", 1) and not self.loc:
            for _ in range(2):
                for x in rloads(160):
                    k(x.replace(" sc1", ""))
                k(f"s_xor_b32 s{sPT}, s{sPT}, {PTX}")
        k(f"""s_cmp_lt_u32 s{sWK}, 2
              s_cbranch_scc1 {FINAL}
              s_sub_u32 s{sNX}, s{sWK}, 2
              s_mov_b32 s{sX}, 0
              s_mov_b32 s{sKO}, {F_RK[1]}""")
        plan_next(0)
        k(f"s_branch {SLOW}")

        bread = lambda u: [("t", "B%d%d" % (u, g), f"ds_read_b128 {vr(B+u*32+4*g,4)}, v{OB_} offset:{((g>>2)*2+u)*4096 + (g&3)*1024}") for g in range(8)]
        def head():
            h = R_ + 5
            return [("need", "xi"),
                    f"s_lshl_b32 s{h}, s{S_SEG}, 5", f"s_add_u32 s{h}, s{h}, s{sHD}", f"s_lshl_b32 s{h+1}, s{h}, 10",
                    f"s_lshl_b32 s{h+2}, s{S_SEG}, 10", f"s_add_u32 s{h+2}, s{h+2}, {X2P_OFF - X2_OFF}",
                    f"s_cmp_eq_u32 s{h}, s{sSEL}\ns_cselect_b32 s{h+2}, s{h+2}, s{h+1}",
                    f"s_add_u32 s{h+2}, s{h+2}, {X2_OFF}",
                    f"s_mov_b32 s{SRD_A+2}, {WS_SIZE}",
                    f"""s_cmp_eq_u32 s{sLAY}, 0
                        s_cselect_b32 s{h+2}, s{h+1}, s{h+2}
                        s_cselect_b64 {sr(SRD_A,2)}, {sr(P_X,2)}, {sr(P_WS,2)}
                        s_cmov_b32 s{SRD_A+2}, {2048*1024}""",
                    f"buffer_load_dwordx4 {vr(XI,4)}, v{V_L16}, {SA}, s{h+2} offen sc1",
                    f"s_lshr_b32 s{h+1}, s{sSEL}, 5",
                    f"s_cmp_lt_u32 s{S_SEG}, s{h+1}\ns_cselect_b32 s{h+1}, 1, 2",
                    f"v_mov_b32 v{VT+4}, s{h+1}",
                    f"s_lshl2_add_u32 s{h+2}, s{S_SEG}, {DEC}",
                    f"s_lshl_b32 s{h+1}, s{sHD}, 16", f"s_add_u32 s{h+1}, s{h+1}, s{sLAY}", f"s_add_u32 s{h+1}, s{h+1}, s{sKO}",
                    f"s_cmp_eq_u32 s{h+1}, {F_RK[1] + 1}\ns_cselect_b32 s{h+2}, s{h+2}, 0x80000000",
                    f"buffer_store_dword v{VT+4}, off, {WS}, s{h+2} sc1",
                    f"s_bitcmp1_b64 {sr(sHAD,2)}, s{S_SEG}\ns_cselect_b32 s{h+1}, {F_RK[1] - F_RK[0]}, 0"] \
                + capture(hpage, h, F_RK[0], S_SEG) \
                + [f"s_add_u32 s{h}, s{h}, s{h+1}", f"buffer_load_dword v{GK}, off, {WS}, s{h} sc1"] + capture(keys_issue, h)
        def pack(u):
            out = []
            for r in range(4):
                for p in range(4):
                    a_ = ACC + u * 32 + p * 8
                    out.append(f"v_cvt_pk_bf16_f32 v{PK+u*16+r*4+p}, v{a_+r}, v{a_+4+r}")
                out.append(f"s_add_u32 s{S_T+6}, s{sPT}, {(16*u+r)*16*KB}")
                out.append(f"buffer_store_dwordx4 {vr(PK+u*16+r*4,4)}, v{PT_}, {WS}, s{S_T+6} offen{self.loc}")
            return out
        GAP = opt.get("gap", 4)
        vote_rd = [f"ds_read_b128 {vr(VT,4)}, v{VR}", ("gap", 6), "s_waitcnt lgkmcnt(0)",
                   f"v_or3_b32 v{VT}, v{VT}, v{VT+1}, v{VT+2}", f"v_or_b32 v{VT}, v{VT}, v{VT+3}", ("gap", 1),
                   f"v_readfirstlane_b32 s{sLATE}, v{VT}"]
        BR2 = opt.get("brow", 2) == 2
        def t3(pend):
            vm = ["RD%d" % i for i in range(8)] if pend and (pend[0] or BR2) else ["old"]
            lg = []
            seen = set()
            def emit(x):
                tag = None
                if not isinstance(x, str):
                    if x[0] == "mark":
                        seen.add(x[1]); return 0
                    if x[0] in ("wv", "wl"):
                        q_ = vm if x[0] == "wv" else lg
                        n = len(q_) - 1 - max(i for i, t in enumerate(q_) if t == x[1])
                        k(f"s_waitcnt {'vmcnt' if x[0] == 'wv' else 'lgkmcnt'}({min(n, 63 if x[0] == 'wv' else 15)})")
                        return 1
                    tag, x = x[1], x[2]
                c = 0
                for ln in x.split("\n"):
                    ln = ln.strip()
                    k(ln)
                    if ln.startswith("buffer"):
                        vm.append("copy" if ln.endswith("lds") else tag); c += 2
                    elif ln.startswith("ds_"):
                        lg.append(tag); c += 2
                    elif ln.startswith("v_mfma"):
                        c += 2
                    elif not ln.endswith(":"):
                        c += 1
                return c
            self.mark(34)
            n_start = len(k.lines)
            b0 = bread(0)
            for x in b0[:2]:
                emit(x)
            fo = fetch_ops(S_T + 8, S_T + 9)
            k(f"""s_min_u32 s{S_T}, s{sST}, s{sST+1}
                  s_cmp_lt_u32 s{sNX}, 64
                  s_cselect_b32 s{S_T}, s{S_T}, 0
                  s_cmp_eq_u32 s{S_T}, 0
                  s_cselect_b32 s{sLATE}, 0x80000000, 0
                  v_mov_b32 v{VT}, s{sLATE}
                  s_or_b32 s{S_T+8}, s{sNQ}, s{sLATE}
                  s_or_b32 s{S_T+9}, s{sNK}, s{sLATE}
                  s_cmp_lt_u32 s{sX}, s{sLAY}
                  s_cselect_b32 s{S_T+9}, 0x80000000, s{S_T+9}""")
            for _ in range(5):
                k(fo.pop(0))
            vq = [("need", "bar")] + list(vote_rd)
            if pend and not pend[0] and not BR2:
                r0, early, r1 = row(0, pend[1], (96, 104, 112, 120, 88), sPS)
                for x in r0:
                    emit(x)
                ih = max(i_ for i_, x in enumerate(r1) if isinstance(x, str) and x.startswith("buffer_store"))
                r1[ih] = ("t", "H", r1[ih])
                qx = early + r1 + ([] if pend[1] else [("gap", opt.get("hgap", 40)), ("wv", "H")] + pub)
                early = []
                vq = [("need", "b1"), ("gap", 4), "s_waitcnt lgkmcnt(0)\ns_barrier", ("mark", "bar")] + list(vote_rd)
            elif pend:
                qx = [("at", opt.get("redat", 6))]
                for x in reduce_items(RD2, S):
                    qx += [x, ("gap", 1)] if isinstance(x, str) and x.startswith("v_mfma") else [x]
                r0, early, r1 = row(pend[0], pend[1], (96, 104, 112, 120, 88), sPS)
                qx += [("gap", 4), ("need", "W"), "s_waitcnt lgkmcnt(0)\ns_barrier"] + r0 + [("mark", "bar")] + ([] if opt.get("pub0") else pub) + [("gap", 4)] + r1
                if pend == (0, 0):
                    ih = max(i_ for i_, x in enumerate(qx) if isinstance(x, str) and x.startswith("buffer_store"))
                    qx[ih] = ("t", "H", qx[ih])
                    qx += [("gap", opt.get("hgap", 40)), ("wv", "H")] + pub
            else:
                early = []
                qx = [("mark", "xi"), ("need", "b1"), ("gap", 4), "s_waitcnt lgkmcnt(0)\ns_barrier", ("mark", "bar"),
                      ("at", opt.get("pubat", 36)), ("wv", "old")] + pub
            gap = GAP
            if pend and not pend[0]:
                del fo[-3:]
                if opt.get("fsplit") is not None:
                    ix = [i_ for i_, x in enumerate(fo) if x.endswith("lds")][opt["fsplit"]]
                    fo.insert(ix, ("at", opt.get("fodd", 100)) if pend[1] else ("need", "Hs"))
                    if not pend[1]:
                        ih = [i_ for i_, x in enumerate(qx) if not isinstance(x, str) and x[:2] == ("t", "H")][0]
                        qx.insert(ih + 1, ("mark", "Hs"))
                    gap = opt.get("fgap", 3)
            if opt.get("unpk", 1):
                qx = [y for x in qx for y in unpk(x)]
            pk0 = pack(0)
            cv0 = [x for x in pk0 if x.startswith("v_")]
            st0 = [y for x in pk0 if not x.startswith("v_") for y in ((x, ("gap", opt.get("stgap", 3))) if x.startswith("buffer") else (x,))]
            queues = [fo, b0[2:] + [f"ds_write_b32 v{VW}, v{VT}", ("mark", "W")] + bread(1) + [("mark", "b1")], vq,
                      early + head(), [("at", 66)] + cv0 + [("at", opt.get("stat", 92))] + st0, qx]
            order = [5, 0, 1, 2, 3, 4]
            def kind_of(x):
                x = x if isinstance(x, str) else (x[2] if x[0] == "t" else "s_")
                return "m" if x.startswith("v_mfma") else "v" if x.startswith("v_") else "x" if x.startswith(("ds_", "buffer")) else "s"
            def stalls(x):
                x = x if isinstance(x, str) else (x[2] if x[0] == "t" else None)
                if x is None:
                    return False
                c = Ins(x.split("\n")[0].strip())
                d = 1 if k.lines[-1].startswith("v_mfma") else 0
                for ln in reversed(k.lines[-4:]):
                    if ln.endswith(":"):
                        continue
                    if need(Ins(ln), c) > d:
                        return True
                    d += 1
                return False
            hold = [0] * len(queues)
            b1_before_bar = False
            cost = lambda x: 0 if not isinstance(x, str) and x[0] != "t" else 1.3
            TM_ = opt.get("tmaj", 2)
            pk1 = pack(1)
            cv1 = []
            if TM_:
                for p in range(3):
                    cv1 += [("at", 128 - 8 * TM_ + 2 * TM_ * (p + 1) + 1)] + [pk1[6 * r + p] for r in range(4)]
                pk1 = [x for i_, x in enumerate(pk1) if i_ % 6 > 2]
            queues.append(cv1); hold.append(0)
            for m in range(128):
                u, g, t = m >> 6, (m >> 3) & 7, m & 7
                if m >= 128 - 8 * TM_:
                    assert b1_before_bar
                    m_ = m - (128 - 8 * TM_)
                    t, g = 2 * (m_ // (2 * TM_)) + (m_ & 1), 8 - TM_ + (m_ % (2 * TM_)) // 2
                if t == 0 and ("bar" not in seen or not b1_before_bar):
                    emit(("wl", "B%d%d" % (u, g)))
                if m in (32, 64, 96):
                    self.mark(39 + m // 32)
                d = vr(ACC + u * 32 + t * 4, 4)
                k(f"v_mfma_f32_16x16x32_bf16 {d}, {vr(B+u*32+4*g,4)}, {ar((g*8+t)*4,4)}, {'0' if g == 0 else d}")
                left = sum(kind_of(x) == "v" for q_ in queues for x in q_)
                bud = 3 if left <= 2 * (opt.get("rowend", 116) - m) or "bar" not in seen else 4
                if pend and not pend[0] and (not BR2 or "bar" in seen):
                    bud = opt.get("bbud", 6) if any(kind_of(x) == "v" for x in qx) else 3
                n = 0
                def pick(kinds):
                    for qi in order:
                        q_ = queues[qi]
                        while q_ and not isinstance(q_[0], str) and q_[0][0] in ("at", "gap", "need", "mark") and hold[qi] <= m:
                            kind, val = q_[0]
                            if kind == "need" and val not in seen:
                                break
                            if kind == "at": hold[qi] = val
                            if kind == "gap": hold[qi] = m + val
                            if kind == "mark": seen.add(val)
                            q_.pop(0)
                        if q_ and hold[qi] <= m and not (not isinstance(q_[0], str) and q_[0][0] == "need") \
                                and kind_of(q_[0]) in kinds and not stalls(q_[0]):
                            x = q_.pop(0)
                            if isinstance(x, str) and x.endswith("lds"):
                                hold[qi] = m + gap
                            emit(x)
                            tx = x if isinstance(x, str) else x[2] if x[0] == "t" else ""
                            if kind_of(x) == "x" and opt.get("xc", 1):
                                return "x", 2 if tx.startswith(("ds_read", "ds_write_b32")) else 3
                            return kind_of(x), (x.count("\n") + 1 if isinstance(x, str) else 1)
                    return None
                if "b1" in seen and not any(isinstance(l_, str) and l_ == "s_barrier" for l_ in k.lines[n_start:]):
                    b1_before_bar = True
                if pend and not pend[0] and (not BR2 or "bar" in seen):
                    order = [0, 1, 5, 2, 3, 4, 6]
                elif "bar" in seen:
                    order = [0, 1, 2, 3, 5, 4] if m < 84 else [0, 1, 2, 3, 4, 6, 5]
                r_ = pick("x") or pick("s")
                n = r_[1] if r_ else 1
                while n < bud:
                    r_ = pick("vsm")
                    if not r_:
                        break
                    if r_[0] == "m":
                        r_ = pick("x") or pick("s")
                        n = r_[1] if r_ else 1
                        continue
                    n += r_[1]
                if m == 63:
                    assert "b1" in seen and "bar" in seen
                if "bar" in seen and pend and not (pend[0] and pend[1]):
                    assert "early" in seen
            assert not any(queues[:4]), [len(q_) for q_ in queues]
            self.t3left = getattr(self, "t3left", []) + [(pend, len(queues[4]), len(queues[5]))]
            self.mark(35)
            pk1 = queues[4] + queues[6] + pk1
            if ("wv", "H") in qx:
                i_ = qx.index(("wv", "H"))
                assert i_ < 2
                if not opt.get("hlate"):
                    pk1 += qx[i_:]
                del qx[:]
            while pk1 or qx:
                for q_ in (pk1, qx):
                    if q_:
                        x = q_.pop(0)
                        if isinstance(x, str) or x[0] not in ("at", "gap"):
                            emit(x)
            k(f"""s_cmp_lg_u32 s{sLATE}, 0
                  s_cbranch_scc1 {LATE}""")
            emit(("wv", "copy"))
        p00 = list(self.pend)
        V1 = k.newlabel("L_av")
        k.label(T3X)
        k(f"""s_bitcmp1_b32 s{S_W}, 0
              s_cbranch_scc1 {V1}""")
        for i in range(2):
            if i:
                k.label(V1)
            self.pend = list(p00)
            t3((1, i))
            if self.stamps and i == 0:
                k(f"s_mov_b32 s101, s{S_SEG}\ns_mov_b32 s{S_SEG}, s{sPS}")
                self.ev(22, va=240)
                k(f"s_mov_b32 s{S_SEG}, s101")
            k(f"s_branch {T3E}")
        T3B, V2_ = k.newlabel("L_av"), k.newlabel("L_av")
        if opt.get("brow", 2):
            k.label(T3B)
            k(f"""s_bitcmp1_b32 s{S_W}, 0
                  s_cbranch_scc1 {V2_}""")
            for i in range(2):
                if i:
                    k.label(V2_)
                self.pend = list(p00)
                t3((0, i))
                k(f"s_branch {T3E}")
        k.label(T3)
        self.pend = list(p00)
        t3(None)
        k.label(T3E)
        DB = k.newlabel("L_ao")
        k(f"""s_barrier
              s_cmp_lt_u32 s{sX}, s{sLAY}
              s_cbranch_scc1 {DB}""")
        pre()
        k(f"""s_cmp_eq_u32 s{sX}, 0
              s_cbranch_scc1 {NXB}""")
        p0 = list(self.pend)
        LATE2, SKIP = k.newlabel("L_al"), k.newlabel("L_ak")
        for x in fcheck():
            k(x)
        k("s_waitcnt lgkmcnt(8)")
        vcheck()
        k(f"""s_cmp_lg_u64 vcc, 0
              s_cselect_b32 s{sMODE}, 1, 0
              s_andn2_b32 s{S_T+1}, s{sMODE}, s{sLAY}""")
        exch1(f"s{S_T+1}")
        plan_after_d()
        k(f"s_and_b32 s{sMODE}, s{sMODE}, s{sLAY}")
        chain_wait("scc1")
        BD = k.newlabel("L_ah")
        post(True, skip=SKIP, tail=f"""s_cmp_eq_u32 s{sLAY}, 0
                                       s_cbranch_scc1 {BD}""")
        p2 = list(self.pend)
        self.flush(va=240)
        k(f"""s_mov_b32 s{sPS}, s{S_SEG}
              s_mov_b32 s{S_SEG}, s{sNS}
              s_branch {T3X}""")
        k.label(BD)
        self.pend = p2
        if BR2:
            k("""s_waitcnt lgkmcnt(0)
                 s_barrier""")
        else:
            reduce_now(RD2, 160)
        if opt.get("brow", 2):
            self.flush(va=240)
            self.ev(12, va=240)
            k(f"""s_mov_b32 s{sPS}, s{S_SEG}
                  s_mov_b32 s{S_SEG}, s{sNS}
                  s_mov_b32 s{sLAY}, 1
                  s_branch {T3B}""")
        else:
            k(f"""s_mov_b32 s{sMODE}, 1
                  s_branch {ROWS_}""")
        k.label(DB)
        self.pend = list(p0)
        pre(True)
        exch1(keep=8)
        if opt.get("hlate"):
            for x in pub:
                k(x)
        k(f"""s_mov_b32 s{sPS}, s{S_SEG}
              s_mov_b32 s{sMODE}, 3""")
        self.flush(va=240)
        k(f"s_branch {SLB}")
        k.label(NXB)
        self.pend = list(p0)
        exch1()
        exch2(mid=look, nmid=8)
        k(f"""s_mov_b32 s{sMODE}, 0
              s_branch {ROWS_}""")
        k.label(LATE)
        self.pend = list(p0)
        k(f"""s_add_u32 s{S_T}, s{sX}, s{sKO}
              s_cmp_lg_u32 s{S_T}, {F_RK[1] + 1}
              s_cbranch_scc1 {LATE2}""")
        exch1(1)
        plan_after_d()
        k(f"s_branch {SKIP}")
        k.label(LATE2)
        self.pend = list(p0)
        exch1()
        k.label(SKIP)
        exch2()
        k(f"s_mov_b32 s{sMODE}, 2")
        k.label(ROWS_)
        RV = [k.newlabel("L_ar") for _ in range(3)]
        k(f"""s_cmp_lg_u32 s{sLAY}, 0
              s_cbranch_scc1 {RV[2]}
              s_bitcmp1_b32 s{S_W}, 0
              s_cbranch_scc1 {RV[1]}""")
        for i in range(3):
            k.label(RV[i])
            if i == 2:
                k(f"""s_bitcmp1_b32 s{S_W}, 0
                      s_cbranch_scc1 {RD_}""")
            for x in sum(row(i >> 1, i & 1, (160, 168, 176, 184, 200), S_SEG), []):
                if isinstance(x, str):
                    k(x)
                elif x[0] == "t":
                    k(x[2])
                elif x[0] == "wl":
                    k("s_waitcnt lgkmcnt(0)")
            if i < 2:
                k(f"s_branch {RD_}")
        k.label(RD_)
        self.flush(va=240)
        if self.stamps:
            E1, E2 = k.newlabel("L_ev"), k.newlabel("L_ev")
            k(f"s_cmp_lg_u32 s{sLAY}, 0\ns_cbranch_scc1 {E1}")
            self.ev(12, va=240)
            k(f"s_branch {E2}")
            k.label(E1)
            self.ev(22, va=240)
            k.label(E2)
        GOD = k.newlabel("L_ad")
        k(f"""s_cmp_eq_u32 s{sMODE}, 1
              s_cbranch_scc1 {GOD}
              s_cmp_eq_u32 s{sMODE}, 0
              s_cbranch_scc1 {GOB}
              s_cmp_ge_u32 s{sNX}, 64
              s_cbranch_scc1 {FIN2}""")
        k.label(SLOW)
        flush_pub()
        k(f"""v_mov_b32 v{ST}, 0
              s_mov_b32 s{sMODE}, 0""")
        spin(ST, st_load, f"v_cmp_eq_u32 vcc, 0, v{ST}")
        k(f"""s_mov_b32 s{S_T+8}, s{sNQ}
              s_mov_b32 s{S_T+9}, s{sNK}""")
        for x in fetch_ops(S_T + 8, S_T + 9):
            k(x)
        keys_issue(S_T)
        k(f"""s_waitcnt vmcnt(0) lgkmcnt(0)
              s_barrier""")
        self.ev(20, va=240)
        pre()
        k(f"""s_waitcnt lgkmcnt(0)
              s_cmp_eq_u32 s{sX}, 0
              s_cbranch_scc1 {SLB}""")
        plan_after_d()
        for x in fcheck():
            k(x)
        vcheck()
        chain_wait("vccnz")
        post()
        k.label(GOD)
        k(f"""s_mov_b32 s{S_SEG}, s{sNS}
              s_mov_b32 s{sLAY}, 1
              s_branch {T3}""")
        k.label(GOB)
        flush_pub()
        k.label(SLB)
        k(f"""s_mov_b32 s{S_SEG}, s{sNS}
              s_mov_b32 s{sLAY}, 0""")
        plan_after_b(True)
        k(st_load)
        k(f"s_waitcnt vmcnt({3 if opt.get('hlate') else 2})")
        self.ev(15, va=240)
        check(False)
        k(f"s_cbranch_vccz {PC}")
        k.label(PL)
        if opt.get("sll"):
            k(f"s_sleep {opt['sll']}")
        look()
        k(st_load)
        self.spend()
        check(True)
        k(f"s_cbranch_vccnz {PL}")
        k.label(PC)
        self.ev(10, va=240)
        NP = k.newlabel("L_ai")
        rl_ = f"""v_readlane_b32 s{sST}, v{ST}, 0
                  v_readlane_b32 s{sST+1}, v{ST}, 1"""
        k(f"""s_cmp_lg_u32 s{sMODE}, 3
              s_cbranch_scc1 {NP}""")
        mk_, self.opt["marks"] = self.opt.get("marks", ()), ()
        post(True, tail=rl_)
        self.opt["marks"] = mk_
        k(f"s_branch {T3X}")
        k.label(NP)
        post(tail="s_waitcnt vmcnt(0)\n" + rl_)
        k(f"s_branch {T3}")
        k.label(FIN2)
        DONE = k.newlabel("L_az")
        k(f"""s_cmp_lg_u32 s{sKO}, {F_RK[1]}
              s_cbranch_scc1 {DONE}""")
        NN = k.newlabel("L_an")
        k(f"""s_cmp_ge_u32 s{sBN}, {DLAST + 4}
              s_cbranch_scc1 {FINAL}""")
        no_more()
        k.label(FINAL)
        flush_pub()
        self.ev(14, va=240)
        k(f"""v_lshlrev_b32 v{TT}, 2, v{V_LANE}
              v_add_u32 v{VT}, {VOTE + 64}, v{TT}
              s_cmp_lg_u32 s{S_W}, 0
              s_cbranch_scc1 {NN}
              s_lshl_b32 s{S_T+3}, s{sWK}, 13
              s_add_u32 s{S_T+3}, s{S_T+3}, {DEC + 8192}""")
        self.words_wait64(S_T + 3, TT, 1)
        k(f"""ds_write_b32 v{VT}, v{TT+1}
              s_waitcnt lgkmcnt(0)""")
        k.label(NN)
        k(f"""s_barrier
              ds_read_b32 v{TT+1}, v{VT}
              s_mov_b32 s{sKO}, {F_RK[2]}
              s_mov_b32 s{sX}, 1
              s_waitcnt lgkmcnt(0)
              v_readfirstlane_b32 s{sSEL}, v{TT+1}
              v_and_b32 v{TT+1}, 255, v{TT+1}
              s_lshr_b32 s{sSEL}, s{sSEL}, 8
              s_lshr_b32 s{S_T+5}, s{sSEL}, 5
              v_cmp_ne_u32 {sr(sHAD,2)}, 3, v{TT+1}""")
        self.todo_mask(sTODO, TT)
        k(f"""s_bcnt1_i32_b64 s{S_T}, {sr(sTODO,2)}
              v_mbcnt_lo_u32_b32 v{TT}, s{sTODO}, 0
              v_mbcnt_hi_u32_b32 v{TT}, s{sTODO+1}, v{TT}
              s_mul_i32 s{S_T}, s{S_T}, {opt.get("share", 12)}
              s_add_u32 s{S_T}, s{S_T}, {opt.get("shr", 48)}
              s_lshr_b32 s{S_T}, s{S_T}, 7
              s_lshl_b32 s{S_T}, s{S_T}, 1
              v_cmp_gt_u32 vcc, s{S_T}, v{TT}
              v_and_b32 v{TT+1}, 1, v{TT}
              v_and_b32 v{TT}, 3, v{TT}
              v_add_u32 v{TT}, 2, v{TT}
              v_cndmask_b32 v{TT}, v{TT}, v{TT+1}, vcc
              v_cmp_eq_u32 vcc, s{sWK}, v{TT}
              s_and_b64 {sr(sTODO,2)}, {sr(sTODO,2)}, vcc""")
        pop_todo(1)
        plan_next(1, S_T + 5)
        k(f"""s_cmp_lt_u32 s{sNX}, 64
              s_cbranch_scc1 {SLOW}""")
        k.label(DONE)
        flush_pub()
        self.ev(23, va=240)
        k("s_endpgm")
        for st in stubs:
            st()

    def both(self, fn, name):
        self.k(f"""s_cmp_lg_u32 s{S_SLOW}, 0
                   s_cbranch_scc1 {name}""")
        fn()
        self.later.append((fn, name))

    def program(self):
        k = self.k
        self.later = []
        self.prologue()
        self.ev(0)
        LCH, LM, LA, LA2, C1, C2 = (k.newlabel(x) for x in ("L_rch", "L_rm", "L_ra", "L_rb", "L_rc1", "L_rc2"))
        k.label("L_roles")
        if self.opt.get("hold", 6):
            X = k.newlabel("L_x")
            k(f"""s_lshl_b32 s{S_T}, 1, s{S_G}
                  s_and_b32 s{S_T}, s{S_T}, {self.opt.get("hold", 6)}
                  s_cbranch_scc0 {X}
                  s_waitcnt vmcnt(0)""")
            self.arrive()
            self.wait_all()
            k.label(X)
        if self.opt.get("xdelay"):
            X = k.newlabel("L_x")
            k(f"""s_lshl_b32 s{S_T}, 1, s{S_G}
                  s_and_b32 s{S_T}, s{S_T}, {self.opt["xdelay"][0]}
                  s_cbranch_scc0 {X}
                  s_waitcnt vmcnt(0)""")
            self.arrive()
            for _ in range(self.opt["xdelay"][1]):
                k("s_sleep 32")
            k.label(X)
        k(f"""s_cmp_ge_u32 s{S_G}, 6
              s_cbranch_scc1 {LA}""")
        self.load_qkv()
        self.ev(2)
        k(f"""s_cmp_lt_u32 s{S_G}, 3
              s_cbranch_scc1 {LCH}
              s_cmp_eq_u32 s{S_G}, 3
              s_cbranch_scc1 {LM}""")
        self.wait_all()
        self.ev(3)
        self.role_proj()
        k("s_endpgm")
        k.label(LM)
        self.load_gate_up()
        self.wait_all()
        self.ev(3)
        def moe():
            self.role_moe()
            k("s_endpgm")
        self.both(moe, "L_wm")
        k.label("L_abort")
        k("s_endpgm")
        k.label("L_spread")
        k(f"""s_mov_b32 s{S_SLOW}, -1
              s_lshr_b32 s{S_G}, s2, 5
              s_and_b32 s{S_H}, s2, 31""")
        if self.stamps:
            k(f"""s_lshl_b32 s{S_EV}, s2, 12
                  s_add_u32 s{S_EV}, s{S_EV}, {STAMP_OFF + MB}""")
            self.ev(0)
        k("s_branch L_roles")
        k.label(LA)
        if self.opt.get("warm", 1):
            self.warm()
        if self.opt.get("tawait", 0):
            self.wait_all()
            k(f"""s_bfe_u32 s{S_T+3}, s{S_H}, 0x10004
                  s_lshl_b32 s{S_T+3}, s{S_T+3}, 13
                  s_add_u32 s{S_T+3}, s{S_T+3}, {PG_OFF + F_KV[0]}""")
            self.flags_wait32(S_T + 3, one=True, sleep=4)
        k.label(LA2)
        self.ev(2)
        self.load_wo2()
        self.wait_all()
        self.ev(3)
        k(f"""s_max_u32 s54, s{S_G}, 5
              s_sub_u32 s54, s54, 5
              s_lshl_b32 s54, s54, 1
              s_lshr_b32 s{S_T}, s{S_H}, 4
              s_add_u32 s54, s54, s{S_T}""")
        def att():
            self.role_att(None)
            k("s_endpgm")
        self.both(att, "L_wa")
        k.label(LCH)
        S0 = k.newlabel("L_rs")
        self.load_wo(2)
        k(f"""s_cmp_eq_u32 s{S_G}, 0
              s_cbranch_scc1 {S0}""")
        self.load_wo(3)
        k.label(S0)
        self.wait_all(True)
        self.ev(3)
        self.chain_helps()
        def chains():
            C1, C2 = k.newlabel("L_rc1"), k.newlabel("L_rc2")
            k(f"""s_cmp_eq_u32 s{S_G}, 1
                  s_cbranch_scc1 {C1}
                  s_cmp_eq_u32 s{S_G}, 2
                  s_cbranch_scc1 {C2}""")
            self.chain(0)
            k(f"""s_mov_b32 s{S_CNT}, 0
                  s_branch {LA2}""")
            k.label(C1)
            self.chain(1)
            k("s_endpgm")
            k.label(C2)
            self.chain(2)
            k("s_endpgm")
        self.both(chains, "L_wc")
        self.loc = " sc1"
        self.abort = "L_abort2"
        k.label("L_abort2")
        k("s_endpgm")
        for fn, name in reversed(self.later):
            k.label(name)
            k.fence()
            if self.opt.get("noslow"):
                k("s_endpgm")
            else:
                fn()

HEADER = open(__file__.rsplit("/", 1)[0] + "/header.txt").read() if "/" in __file__ else open("header.txt").read()

def build(**kw):
    g = Gen(**kw)
    g.program()
    print("t3 leftovers", getattr(g, "t3left", None), file=sys.stderr)
    body = g.k.finalize()
    return (HEADER + f"; @launch grid=(256,1,1) block=(256,1,1) lds={LDS_SIZE}\n"
        + f""".amdgcn_target "amdgcn-amd-amdhsa--gfx950"
.text
.globl {NAME}_kernel
.p2align 8
.type {NAME}_kernel,@function
{NAME}_kernel:
""" + body + f""".section .rodata,"a"
.p2align 6
.amdhsa_kernel {NAME}_kernel
  .amdhsa_next_free_vgpr 512
  .amdhsa_next_free_sgpr 102
  .amdhsa_accum_offset 256
  .amdhsa_group_segment_fixed_size 0
  .amdhsa_kernarg_size 120
  .amdhsa_user_sgpr_count 2
  .amdhsa_user_sgpr_kernarg_segment_ptr 1
  .amdhsa_system_sgpr_workgroup_id_x 1
  .amdhsa_float_denorm_mode_32 3
.end_amdhsa_kernel
""")

if __name__ == "__main__":
    import argparse
    ap = argparse.ArgumentParser()
    ap.add_argument("-o", default=f"/code/{NAME}.s")
    ap.add_argument("--stop", default=None)
    ap.add_argument("--stamps", type=int, default=0)
    ap.add_argument("--slow", action="store_true")
    ap.add_argument("--opt", default="{}")
    a = ap.parse_args()
    stop = None
    if a.stop:
        l, p = a.stop.split(":"); stop = (int(l), p)
    open(a.o, "w").write(build(fast=not a.slow, stop=stop, stamps=a.stamps, opt=eval(a.opt)))
```

```python
import sys, math
from asmlib import K, vr, ar, sr, Ins, need
from layout import *

NAME = "interleave_layers__memory_aug_recurrent_mem_tr__moe_arch_mod__prompt"

SRD_A = 4
SRD_WS = 8
SRD_DBG = 12
P_X, P_MEM0, P_WQ, P_WK, P_WV, P_WO = 16, 18, 20, 22, 24, 26
P_WR, P_WG, P_WU, P_WD, P_OUT, P_DBG, P_WS = 32, 34, 36, 38, 40, 42, 44
S_W, S_H, S_G, S_BUD = 46, 47, 48, 49
S_SLOW = 3
S_LW = 50
S_SEG, S_OOB, S_CNT = 51, 52, 53
S_T = 56
S_C = 80
S_EV = 81
S_ONE = 28
S_A, S_B = 30, 31
LOOK = 2
WS = sr(SRD_WS, 4); SA = sr(SRD_A, 4); DBG = sr(SRD_DBG, 4)

SCALE_LOG2E = (128 ** -0.5) * math.log2(math.e)
def f32(x):
    import struct
    return "0x%08x" % struct.unpack("<I", struct.pack("<f", x))[0]
NEGBIG = f32(-1e30)

def wq(ks, t, half=None):
    b = (ks * 2 + t) * 8
    return ar(b, 8) if half is None else ar(b + 4 * half, 4)
def wk(ks, t, half=None):
    b = 128 + (ks * 2 + t) * 8
    return ar(b, 8) if half is None else ar(b + 4 * half, 4)
def wv(ks, t, half=None):
    b = 128 + (ks * 2 + t) * 8
    return vr(b, 8) if half is None else vr(b + 4 * half, 4)

def unpk(x):
    import re
    if not isinstance(x, str) or not x.startswith("v_pk_"):
        return [x]
    ins = Ins(x)
    mod = lambda nm, d: [int(c) for c in re.search(nm + r":\[([01,]+)\]", ins.mods).group(1).split(",")] if re.search(nm + r":\[", ins.mods) else d
    n = len(ins.ops) - 1
    lo, hi = mod(r"op_sel", [0] * n), mod("op_sel_hi", [1] * n)
    if "op_sel:" not in ins.mods:
        lo = [0] * n
    ng = mod("neg_lo", [0] * n)
    base = [re.match(r"([vs])\[(\d+):", o).groups() for o in ins.ops]
    out = []
    for h, sel in enumerate((lo, hi)):
        src = [("-" if ng[i] else "") + base[i+1][0] + str(int(base[i+1][1]) + sel[i]) for i in range(n)]
        out.append(f"{ins.op.replace('v_pk_', 'v_')} v{int(base[0][1]) + h}, " + ", ".join(src))
    return out

V_L16 = 0
V_LANE = 1

class Gen:
    def __init__(self, fast=True, stop=None, stamps=False, opt=None):
        self.opt = opt or {}
        self.LH = L_H
        self.pend = []
        self.mk = 0
        self.k = K()
        self.fast = fast
        self.loc = "" if fast else " sc1"
        self.stop = stop
        self.abort = "L_abort"
        self.stamps = stamps

    def srd(self, ptr, nbytes):
        k = self.k
        k(f"""s_mov_b32 s{SRD_A}, s{ptr}
              s_mov_b32 s{SRD_A+1}, s{ptr+1}
              s_mov_b32 s{SRD_A+2}, {nbytes}
              s_mov_b32 s{SRD_A+3}, 0x20000""")

    def budget(self, retry):
        self.k(f"""s_sub_u32 s{S_BUD}, s{S_BUD}, 1
                   s_cmp_gt_i32 s{S_BUD}, 0
                   s_cbranch_scc1 {retry}
                   s_branch {self.abort}""")

    def spend(self, inc=None, cnt=None):
        if self.stamps and inc:
            self.k(f"s_add_u32 s{cnt}, s{cnt}, {inc}")
        self.k(f"""s_sub_u32 s{S_BUD}, s{S_BUD}, 1
                   s_cbranch_scc1 {self.abort}""")

    def wsum(self, x, t):
        k = self.k
        for r in (8, 4, 2, 1):
            k(f"v_add_f32_dpp v{x}, v{x}, v{x} row_ror:{r} row_mask:0xf bank_mask:0xf")
        k(f"""v_mov_b32 v{t}, v{x}
              v_permlane16_swap_b32 v{x}, v{t}
              v_add_f32 v{x}, v{x}, v{t}
              v_mov_b32 v{t}, v{x}
              v_permlane32_swap_b32 v{x}, v{t}
              v_add_f32 v{x}, v{x}, v{t}""")

    def unpack8(self, dst, src):
        k = self.k
        for q in range(4):
            k(f"v_lshlrev_b32 v{dst+2*q}, 16, v{src+q}")
            k(f"v_and_b32 v{dst+2*q+1}, 0xffff0000, v{src+q}")

    def pack8(self, dst, src):
        for q in range(4):
            self.k(f"v_cvt_pk_bf16_f32 v{dst+q}, v{src+2*q}, v{src+2*q+1}")

    def round1(self, x):
        self.k(f"""v_cvt_pk_bf16_f32 v{x}, v{x}, v{x}
                   v_and_b32 v{x}, 0xffff0000, v{x}""")

    def layernorm(self, x, ypk, tmp):
        k = self.k
        d = tmp; s = tmp + 8; q = tmp + 10; t = tmp + 12
        c = S_T + 22
        k(f"v_readfirstlane_b32 s{c}, v{x}")
        for j in range(0, 8, 2):
            k(f"v_pk_add_f32 {vr(d+j,2)}, {vr(x+j,2)}, {sr(c,2)} op_sel_hi:[1,0] neg_lo:[0,1] neg_hi:[0,1]")
        k(f"""v_pk_add_f32 {vr(s,2)}, {vr(d,2)}, {vr(d+2,2)}
              v_pk_mul_f32 {vr(q,2)}, {vr(d,2)}, {vr(d,2)}
              v_pk_add_f32 {vr(t,2)}, {vr(d+4,2)}, {vr(d+6,2)}
              v_pk_fma_f32 {vr(q,2)}, {vr(d+2,2)}, {vr(d+2,2)}, {vr(q,2)}
              v_pk_add_f32 {vr(s,2)}, {vr(s,2)}, {vr(t,2)}
              v_pk_fma_f32 {vr(q,2)}, {vr(d+4,2)}, {vr(d+4,2)}, {vr(q,2)}
              v_add_f32 v{s}, v{s}, v{s+1}
              v_pk_fma_f32 {vr(q,2)}, {vr(d+6,2)}, {vr(d+6,2)}, {vr(q,2)}
              v_add_f32 v{q}, v{q}, v{q+1}""")
        k(f"""v_permlane32_swap_b32 v{s}, v{q}
              v_add_f32 v{s}, v{s}, v{q}""")
        for r in (8, 4, 2, 1):
            k(f"v_add_f32_dpp v{s}, v{s}, v{s} row_ror:{r} row_mask:0xf bank_mask:0xf")
        k(f"""v_mov_b32 v{q}, v{s}
              v_permlane16_swap_b32 v{s}, v{q}
              v_add_f32 v{s}, v{s}, v{q}
              v_mul_f32 v{s}, {f32(1.0/512)}, v{s}
              v_mov_b32 v{q}, v{s}
              v_permlane32_swap_b32 v{s}, v{q}
              v_fma_f32 v{q}, -v{s}, v{s}, v{q}
              v_add_f32 v{s}, s{c}, v{s}
              v_max_f32 v{q}, 0, v{q}
              v_cvt_pk_bf16_f32 v{q}, v{s}, v{q}
              v_lshlrev_b32 v{s}, 16, v{q}
              v_and_b32 v{q}, 0xffff0000, v{q}
              v_add_f32 v{q}, {f32(1e-5)}, v{q}""")
        self.round1(q)
        k(f"v_sqrt_f32 v{q}, v{q}")
        for j in range(0, 8, 2):
            k(f"v_pk_add_f32 {vr(d+j,2)}, {vr(x+j,2)}, {vr(s,2)} op_sel_hi:[1,0] neg_lo:[0,1] neg_hi:[0,1]")
        self.round1(q)
        k(f"v_rcp_f32 v{q}, v{q}")
        self.pack8(ypk, d)
        self.unpack8(d, ypk)
        for j in range(0, 8, 2):
            k(f"v_pk_mul_f32 {vr(d+j,2)}, {vr(d+j,2)}, {vr(q,2)} op_sel_hi:[1,0]")
        self.pack8(ypk, d)

    def add8(self, x, y):
        for j in range(0, 8, 2):
            self.k(f"v_pk_add_f32 {vr(x+j,2)}, {vr(x+j,2)}, {vr(y+j,2)}")

    def arrive(self):
        k = self.k
        D = k.newlabel("L_ar")
        k(f"""s_barrier
              s_cmp_lg_u32 s{S_W}, 0
              s_cbranch_scc1 {D}
              v_mov_b32 v8, 128
              v_mov_b32 v9, s{S_CNT}
              s_mov_b64 exec, 1
              buffer_atomic_add v9, v8, {DBG}, 0 offen
              s_mov_b64 exec, -1""")
        k.label(D)
        k(f"s_mov_b32 s{S_CNT}, 0")
        self.ev(1, va=10)

    def wait_all(self, quick=False):
        k = self.k
        L = k.newlabel("L_gb"); D = k.newlabel("L_gbd")
        k(f"""v_mov_b32 v123, {L_MISC}
              s_cmp_lg_u32 s{S_W}, 0
              s_cbranch_scc1 {D}
              v_mov_b32 v124, 128""")
        if quick:
            k(f"""s_buffer_load_dword s{S_T}, {DBG}, 128
                  s_waitcnt lgkmcnt(0)
                  v_mov_b32 v125, s{S_T}
                  ds_write_b32 v123, v125
                  s_bitcmp1_b32 s{S_T}, 8
                  s_cbranch_scc1 {D}""")
        k.label(L)
        k(f"""buffer_load_dword v125, v124, {DBG}, 0 offen sc1
              s_waitcnt vmcnt(0)
              v_readfirstlane_b32 s{S_T}, v125
              ds_write_b32 v123, v125
              s_bitcmp1_b32 s{S_T}, 8
              s_cbranch_scc1 {D}
              s_sleep 4""")
        self.budget(L)
        k.label(D)
        k(f"""s_waitcnt lgkmcnt(0)
              s_barrier
              ds_read_b32 v125, v123
              s_waitcnt lgkmcnt(0)
              v_readfirstlane_b32 s{S_T}, v125
              s_barrier
              s_lshr_b32 s{S_T}, s{S_T}, 16
              s_andn2_b32 s{S_T}, s{S_T}, s{S_SLOW}
              s_cbranch_scc1 L_spread""")

    def page(self, dst, off, seg=S_SEG, head=True):
        k = self.k
        k(f"s_lshl_b32 s{dst}, s{seg}, 13")
        if head:
            k(f"s_lshl2_add_u32 s{dst}, s{S_H}, s{dst}")
        k(f"s_add_u32 s{dst}, s{dst}, {PG_OFF + off}")

    def word_wait(self, s_off, s_val, va=125, sleep=0, quick=False):
        k = self.k
        L, D = k.newlabel("L_ww"), k.newlabel("L_wwd")
        if quick:
            k(f"""s_buffer_load_dword s{s_val}, {WS}, s{s_off}
                  s_waitcnt lgkmcnt(0)
                  s_cmp_lg_u32 s{s_val}, 0
                  s_cbranch_scc1 {D}""")
        k.label(L)
        if sleep:
            k(f"s_sleep {sleep}")
        k(f"buffer_load_dword v{va}, off, {WS}, s{s_off} sc1")
        self.spend()
        k(f"""s_waitcnt vmcnt(0)
              v_readfirstlane_b32 s{s_val}, v{va}
              s_cmp_eq_u32 s{s_val}, 0
              s_cbranch_scc1 {L}""")
        k.label(D)

    def stamp(self, name):
        pts = self.opt.get("pts", [0, 1, 2, 3, 4, 5, 6, 7])
        if self.stamps > 1 and name in pts:
            i = pts.index(name)
            self.k(f"s_memtime s[{84+2*i}:{85+2*i}]")

    def ev(self, tag, va=126, clk="s_memrealtime"):
        if not self.stamps:
            return
        k = self.k
        D = k.newlabel("L_ps")
        k(f"""s_cmp_lg_u32 s{S_W}, 0
              s_cbranch_scc1 {D}
              {clk} s[82:83]
              s_or_b32 s100, s{S_SEG}, {tag << 8}
              s_waitcnt lgkmcnt(0)
              s_mov_b64 exec, 1
              v_mov_b32 v{va}, s82
              v_mov_b32 v{va+1}, s100
              buffer_store_dwordx2 {vr(va,2)}, off, {WS}, s{S_EV}
              s_mov_b64 exec, -1
              s_add_u32 s{S_EV}, s{S_EV}, 8""")
        k.label(D)

    def mark(self, tag):
        if self.stamps != 1 or tag not in self.opt.get("marks", ()):
            return
        i = len(self.pend); assert i < 6
        self.pend.append(tag)
        self.k(f"{'s_memtime' if self.opt.get('mt') else 's_memrealtime'} s[{88+2*i}:{89+2*i}]")

    def flush(self, va=126):
        if not self.pend:
            return
        k = self.k
        D = k.newlabel("L_fl")
        k(f"""s_cmp_lg_u32 s{S_W}, 0
              s_cbranch_scc1 {D}
              s_waitcnt lgkmcnt(0)
              s_mov_b64 exec, 1""")
        for i, tag in enumerate(self.pend):
            k(f"""s_or_b32 s100, s{S_SEG}, {tag << 8}
                  v_mov_b32 v{va}, s{88+2*i}
                  v_mov_b32 v{va+1}, s100
                  buffer_store_dwordx2 {vr(va,2)}, off, {WS}, s{S_EV}
                  s_add_u32 s{S_EV}, s{S_EV}, 8""")
        k("s_mov_b64 exec, -1")
        k.label(D)
        self.pend = []

    def prologue(self):
        k = self.k
        k(f"""s_cmp_ge_u32 s2, 256
              s_cbranch_scc1 L_abort
              s_load_dwordx16 s[16:31], s[0:1], 0
              s_load_dwordx8 s[32:39], s[0:1], 64
              s_load_dwordx4 s[40:43], s[0:1], 96
              s_load_dwordx2 s[44:45], s[0:1], 112
              v_lshrrev_b32 v2, 6, v0
              v_and_b32 v{V_LANE}, 63, v0
              v_readfirstlane_b32 s{S_W}, v2
              v_lshlrev_b32 v{V_L16}, 4, v{V_LANE}
              s_getreg_b32 s{S_G}, hwreg(HW_REG_XCC_ID)
              s_and_b32 s{S_G}, s{S_G}, {self.opt.get("xmask", 7)}
              s_mov_b32 s{S_BUD}, 100000
              s_mov_b32 s{S_C}, {f32(SCALE_LOG2E)}
              s_waitcnt lgkmcnt(0)
              s_mov_b32 s{SRD_WS}, s{P_WS}
              s_mov_b32 s{SRD_WS+1}, s{P_WS+1}
              s_mov_b32 s{SRD_WS+2}, {WS_SIZE}
              s_mov_b32 s{SRD_WS+3}, 0x20000
              s_mov_b32 s{SRD_DBG}, s{P_DBG}
              s_mov_b32 s{SRD_DBG+1}, s{P_DBG+1}
              s_mov_b32 s{SRD_DBG+2}, 256
              s_mov_b32 s{SRD_DBG+3}, 0x20000""")
        T = k.newlabel("L_tk")
        k(f"""s_cmp_lg_u32 s{S_W}, 0
              s_cbranch_scc1 {T}
              s_lshl_b32 s{S_T}, s{S_G}, 2
              v_mov_b32 v14, s{S_T}
              v_mov_b32 v15, 1
              s_or_b32 s{S_T}, s{S_G}, 8
              v_mov_b32 v16, s{S_T}
              v_mov_b32 v17, 0
              s_mov_b64 exec, 1
              buffer_atomic_cmpswap v[16:17], off, {DBG}, 0 offset:192 sc0
              buffer_atomic_add v15, v14, {DBG}, 0 offen sc0
              s_mov_b64 exec, -1""")
        k.label(T)
        self.init_ws()
        T = k.newlabel("L_tk")
        k(f"""s_cmp_lg_u32 s{S_W}, 0
              s_cbranch_scc1 {T}
              s_mov_b64 exec, 1
              v_mov_b32 v4, {L_MISC}
              ds_write2_b32 v4, v15, v16 offset1:1
              s_mov_b64 exec, -1
              s_waitcnt lgkmcnt(0)""")
        k.label(T)
        k(f"""s_barrier
              v_mov_b32 v4, {L_MISC}
              ds_read_b64 v[2:3], v4
              s_waitcnt lgkmcnt(0)
              v_readfirstlane_b32 s{S_H}, v2
              v_readfirstlane_b32 s{S_T}, v3
              s_cmp_eq_u32 s{S_T}, 0
              s_cselect_b32 s{S_T}, s{S_G}, s{S_T}
              s_and_b32 s{S_T}, s{S_T}, {self.opt.get("first", 7)}
              s_xor_b32 s{S_G}, s{S_G}, s{S_T}
              s_lshl_b32 s{S_G}, s{S_G}, 2
              s_lshr_b32 s{S_G}, {sum(g << (4*x) for x, g in enumerate(self.opt.get("map", (0, 6, 2, 4, 1, 7, 3, 5))))}, s{S_G}
              s_and_b32 s{S_G}, s{S_G}, 7
              s_mov_b32 s{S_SLOW}, 0
              s_cmp_ge_u32 s{S_H}, 32
              s_cselect_b32 s{S_CNT}, 0x10001, 1
              s_and_b32 s{S_H}, s{S_H}, 31
              s_lshl_b32 s{S_LW}, s{S_W}, 10
              s_cmp_eq_u32 s{S_W}, 0
              s_cselect_b32 s{S_OOB}, 0, 0x80000000
              s_mov_b32 s{S_ONE}, 0x3f803f80
              s_mov_b32 s{S_ONE+1}, 0x3f803f80
              s_mov_b32 s{S_SEG}, 0""")
        if self.opt.get("mix", 1):
            k(f"""s_bfe_u32 s{S_T}, s{S_G}, 0x10001
                  s_and_b32 s{S_T+1}, s{S_G}, 1
                  s_add_u32 s{S_T+2}, s{S_T}, 6
                  s_sub_u32 s{S_T+3}, 5, s{S_T+1}
                  s_cmp_ge_u32 s{S_H}, 16
                  s_cselect_b32 s{S_T+2}, s{S_T+2}, s{S_T+3}
                  s_cselect_b32 s{S_T+1}, s{S_T+1}, s{S_T}
                  s_and_b32 s{S_T+3}, s{S_H}, 15
                  s_lshl4_add_u32 s{S_T+1}, s{S_T+1}, s{S_T+3}
                  s_cmp_ge_u32 s{S_G}, 4
                  s_cselect_b32 s{S_G}, s{S_T+2}, s{S_G}
                  s_cselect_b32 s{S_H}, s{S_T+1}, s{S_H}""")
        if self.stamps:
            k(f"""s_lshl_b32 s{S_EV}, s{S_G}, 5
                  s_add_u32 s{S_EV}, s{S_EV}, s{S_H}
                  s_lshl_b32 s{S_EV}, s{S_EV}, 12
                  s_add_u32 s{S_EV}, s{S_EV}, {STAMP_OFF + MB}""")

    def init_ws(self):
        k = self.k
        self.srd(P_X, 2048 * 1024)
        k(f"""s_lshl_b32 s{S_T}, s2, 3
              s_lshl_b32 s{S_T+3}, s{S_W}, 1
              s_add_u32 s{S_T}, s{S_T}, s{S_T+3}
              s_lshl_b32 s{S_T+3}, s{S_T}, 10
              buffer_load_dwordx4 v[24:27], v{V_L16}, {SA}, s{S_T+3} offen
              buffer_load_dwordx4 v[28:31], v{V_L16}, {SA}, s{S_T+3} offen offset:1024""")
        k(f"""s_lshl_b32 s{S_T}, s2, 12
              s_lshl_b32 s{S_T+1}, s{S_W}, 10
              s_add_u32 s{S_T}, s{S_T}, s{S_T+1}
              v_add_u32 v2, s{S_T}, v{V_L16}
              v_mov_b32 v4, -1
              v_mov_b32 v5, -1
              v_mov_b32 v6, -1
              v_mov_b32 v7, -1
              v_mov_b32 v8, 0
              v_mov_b32 v9, 0
              v_mov_b32 v10, 0
              v_mov_b32 v11, 0""")
        k(f"""v_cmp_gt_u32 vcc, {512*KB}, v2
              v_mov_b32 v3, {PC_OFF[0] - 512*KB}
              v_mov_b32 v12, {MEM_OFF[0] + 8*KB}
              v_cndmask_b32 v3, v3, v12, vcc
              v_add_u32 v3, v3, v2""")
        for c in range(3):
            k(f"s_mov_b32 s{S_T}, {c*MB}")
            k(f"buffer_store_dwordx4 v[4:7], v3, {WS}, s{S_T} offen sc1")
        for i in range(2):
            k(f"s_mov_b32 s{S_T}, {X1_OFF[0] + i*MB}")
            k(f"buffer_store_dwordx4 v[4:7], v2, {WS}, s{S_T} offen sc1")
        k(f"""v_add_u32 v3, {MEMX_OFF + 8*KB - 512*KB}, v2
              v_mov_b32 v12, 0x80000000
              v_cndmask_b32 v3, v3, v12, vcc
              buffer_store_dwordx4 v[4:7], v3, {WS}, 0 offen sc1
              v_cmp_gt_u32 vcc, {NPAGES*2*KB}, v2
              v_lshrrev_b32 v3, 11, v2
              v_lshlrev_b32 v3, 13, v3
              v_and_b32 v13, 0x7ff, v2
              v_add_u32 v3, v3, v13
              v_add_u32 v3, {PG_OFF}, v3
              v_cndmask_b32 v3, v12, v3, vcc
              buffer_store_dwordx4 v[8:11], v3, {WS}, 0 offen sc1
              v_add_u32 v3, {HPS_OFF - 256*KB}, v2
              v_lshrrev_b32 v13, 16, v2
              v_cmp_eq_u32 vcc, 4, v13
              v_cndmask_b32 v3, v12, v3, vcc
              buffer_store_dwordx4 v[4:7], v3, {WS}, 0 offen sc1""")
        k("s_waitcnt vmcnt(8)")
        assert H_OFF[0] == 0
        for i in range(2):
            self.unpack8(32, 24 + 4 * i)
            self.layernorm(32, 40 + 4 * i, 48)
            k(f"buffer_store_dwordx4 {vr(40+4*i,4)}, v{V_L16}, {WS}, s{S_T+3} offen offset:{1024*i} sc1")
        D = k.newlabel("L_m0")
        self.srd(P_MEM0, 8192)
        k(f"""s_cmp_ge_u32 s2, 2
              s_cbranch_scc1 {D}
              s_lshl_b32 s{S_T}, s2, 2
              s_add_u32 s{S_T}, s{S_T}, s{S_W}          ; ks
              v_bfe_u32 v2, v{V_LANE}, 2, 2
              v_and_b32 v3, 1, v{V_LANE}
              v_lshl_add_u32 v2, v2, 1, v3               ; m
              v_lshlrev_b32 v2, 10, v2
              v_lshrrev_b32 v3, 4, v{V_LANE}
              v_lshl_add_u32 v2, v3, 5, v2               ; + ga*32
              v_and_b32 v3, 2, v{V_LANE}
              v_lshl_add_u32 v2, v3, 1, v2               ; + hi*4
              s_lshl_b32 s{S_T+1}, s{S_T}, 7             ; ks*128""")
        for q in range(4):
            k(f"buffer_load_dword v{32+q}, v2, {SA}, s{S_T+1} offen offset:{8*q}")
        self.mfrag_voff(2, 3)
        k(f"""s_and_b32 s{S_T+1}, s{S_T}, 1
              s_lshl_b32 s{S_T+1}, s{S_T+1}, 8
              s_and_b32 s{S_T+2}, s{S_T}, 2
              s_lshl_b32 s{S_T+2}, s{S_T+2}, 6
              s_add_u32 s{S_T+1}, s{S_T+1}, s{S_T+2}
              s_and_b32 s{S_T+2}, s{S_T}, 4
              s_lshl_b32 s{S_T+2}, s{S_T+2}, 10
              s_add_u32 s{S_T+1}, s{S_T+1}, s{S_T+2}
              s_waitcnt vmcnt(0)""")
        for off in (MEM_OFF[0], MEM_OFF[1], MEMX_OFF):
            k(f"s_add_u32 s{S_T+2}, s{S_T+1}, {off}")
            k(f"buffer_store_dwordx4 v[32:35], v2, {WS}, s{S_T+2} offen sc1")
        k.label(D)

    def mfrag_voff(self, dst, t):
        self.k(f"""v_lshrrev_b32 v{dst}, 3, v{V_LANE}
                   v_lshlrev_b32 v{dst}, 9, v{dst}
                   v_and_b32 v{t}, 7, v{V_LANE}
                   v_lshl_add_u32 v{dst}, v{t}, 4, v{dst}""")

    def load_qkv(self):
        k = self.k
        GA, RE, RO, TE, TO = 2, 3, 4, 5, 6
        sB, sL, sR, sG = S_T + 2, S_T + 3, S_T + 7, S_T + 4
        k(f"""v_lshrrev_b32 v{GA}, 2, v{V_LANE}
              v_lshrrev_b32 v{RE}, 5, v{V_LANE}
              v_xor_b32 v{GA}, v{GA}, v{RE}                  ; place p holds row p ^ (p >> 3 & 1)
              v_lshlrev_b32 v{GA}, 13, v{GA}
              v_and_b32 v{RE}, 3, v{V_LANE}
              v_lshl_add_u32 v{GA}, v{RE}, 4, v{GA}
              v_and_b32 v{RE}, 15, v{V_LANE}
              v_lshlrev_b32 v{RE}, 2, v{RE}
              v_lshrrev_b32 v{RO}, 4, v{V_LANE}
              v_lshl_add_u32 v{RE}, v{RO}, 9, v{RE}
              v_and_b32 v{RO}, 1, v{RO}
              v_lshl_add_u32 v{RE}, v{RO}, 6, v{RE}
              s_lshl_b32 s{sL}, s{S_W}, 15
              s_cmp_lt_u32 s{S_G}, 3
              s_cselect_b32 s{sR}, s{S_W}, 0
              s_lshl_b32 s{S_T}, s{sR}, 12
              s_add_u32 s{S_T}, s{sL}, s{S_T}
              v_add_u32 v{RE}, s{S_T}, v{RE}
              v_xor_b32 v{RO}, 64, v{RE}
              s_lshl_b32 s{sB}, s{S_H}, 8
              s_lshl_b32 s{S_T}, s{S_W}, 6
              s_add_u32 s{sB}, s{sB}, s{S_T}
              s_mov_b32 s{S_T+5}, 0x05040100
              s_mov_b32 s{S_T+6}, 0x07060302""")
        mats = (("k", P_WK), ("v", P_WV), ("q", P_WQ))
        def issue(n):
            if n % 16 == 0:
                self.srd(mats[n // 16][1], 4 * MB)
            kk = n % 16
            k(f"""s_xor_b32 m0, s{sL}, {kk * 2048}
                  s_xor_b32 s{sG}, s{sB}, {kk * 32 * 8192}
                  buffer_load_dwordx4 v{GA}, {SA}, s{sG} offen lds
                  s_add_u32 m0, m0, 1024
                  s_add_u32 s{sG}, s{sG}, {16 * 8192}
                  buffer_load_dwordx4 v{GA}, {SA}, s{sG} offen lds""")
        def reads(n):
            kk = n % 16; b = 96 + 8 * (n & 1)
            k(f"""v_xor_b32 v{TE}, {kk * 2048}, v{RE}
                  v_xor_b32 v{TO}, {kk * 2048}, v{RO}
                  ds_read2_b32 {vr(b,2)}, v{TE} offset1:32
                  ds_read2_b32 {vr(b+4,2)}, v{TO} offset1:32
                  ds_read2_b32 {vr(b+2,2)}, v{TE} offset0:64 offset1:96
                  ds_read2_b32 {vr(b+6,2)}, v{TO} offset0:64 offset1:96""")
        for n in range(16):
            issue(n)
        k("s_waitcnt vmcnt(30)")
        self.arrive()
        for n in range(48):
            m = mats[n // 16][0]; kk = n % 16; b = 96 + 8 * (n & 1)
            if n == 40:
                NW, J_ = k.newlabel("L_lw"), k.newlabel("L_lj")
                self.load_wo(0, skip=f"""s_cmp_ge_u32 s{S_G}, 3
                                         s_cbranch_scc1 {NW}""")
                k(f"""s_waitcnt vmcnt(16)
                      s_branch {J_}
                      {NW}:
                      s_waitcnt vmcnt(0)
                      {J_}:""")
            elif n % 8 == 0:
                k("s_waitcnt vmcnt(16)")
            if n % 8 == 0:
                reads(n)
            if n % 8 < 7:
                reads(n + 1)
            k(f"s_waitcnt lgkmcnt({4 if n % 8 < 7 else 0})")
            if n % 8 == 7 and n + 9 < 48:
                for x in range(n + 9, n + 17):
                    issue(x)
            for t in range(2):
                for q in range(4):
                    d = (0 if m == "q" else 128) + ((kk >> 1) * 2 + t) * 8 + 4 * (kk & 1) + q
                    k(f"v_perm_b32 v{d if m == 'v' else 112+4*t+q}, v{b+4+q}, v{b+q}, s{S_T+5+t}")
            if m != "v":
                for t in range(2):
                    for q in range(4):
                        d = (0 if m == "q" else 128) + ((kk >> 1) * 2 + t) * 8 + 4 * (kk & 1) + q
                        k(f"v_accvgpr_write_b32 a{d}, v{112+4*t+q}")

    def wo_slot(self, dst, c, g, t):
        self.k(f"""v_and_b32 v{dst}, 1, v{g}
                   v_xor_b32 v{dst}, v{dst}, v{c}
                   v_and_b32 v{dst}, 3, v{dst}
                   v_lshrrev_b32 v{t}, 2, v{c}
                   v_lshl_add_u32 v{dst}, v{dst}, 2, v{t}
                   v_lshl_add_u32 v{dst}, v{g}, 4, v{dst}
                   v_lshlrev_b32 v{dst}, 4, v{dst}""")

    def load_wo(self, part, extra=0, skip=""):
        k = self.k
        GA, WE, WO_ = 92, 93, 94
        NB = 4
        if part == 0:
            self.srd(P_WO, 4 * MB)
            k(f"""v_and_b32 v{GA}, 3, v{V_LANE}
                  v_lshlrev_b32 v{WE}, 4, v{GA}
                  v_bfe_u32 v{WO_}, v{V_LANE}, 2, 2
                  v_lshl_add_u32 v{GA}, v{WO_}, 12, v{WE}
                  v_lshl_add_u32 v{WE}, v{WO_}, 8, v{WE}
                  v_and_b32 v{WO_}, 1, v{WO_}
                  v_lshl_add_u32 v{WE}, v{WO_}, 6, v{WE}
                  v_lshrrev_b32 v{WO_}, 4, v{V_LANE}
                  v_lshl_add_u32 v{GA}, v{WO_}, 8, v{GA}
                  v_lshl_add_u32 v{WE}, v{WO_}, 13, v{WE}
                  s_lshl_b32 s{S_T}, s{S_W}, 15
                  v_add_u32 v{WE}, s{S_T}, v{WE}
                  v_xor_b32 v{WO_}, 64, v{WE}
                  s_lshl_b32 s{S_T}, s{S_H}, 17
                  s_lshl_b32 s{S_T+1}, s{S_W}, 6
                  s_add_u32 s{S_T}, s{S_T}, s{S_T+1}
                  v_add_u32 v{GA}, s{S_T}, v{GA}
                  {skip}""")
        def issue(i):
            k(f"s_mov_b32 s{S_T}, {i * 16 * 1024}")
            for j in range(4):
                k(f"buffer_load_dwordx4 {vr(24+16*(i%NB)+4*j,4)}, v{GA}, {SA}, s{S_T} offen offset:{j*1024}")
        for i in range(NB if part == 0 else 0):
            issue(i)
        for i in {0: (), 1: range(8), 2: range(8 - NB), 3: range(8 - NB, 8)}[part]:
            b = 24 + 16 * (i % NB)
            k(f"s_waitcnt vmcnt({min(7 - i, NB - 1) * 4 + extra})")
            for x in range(4):
                for y in range(x + 1, 4):
                    k(f"v_swap_b32 v{b+4*x+y}, v{b+4*y+x}")
            for q in range(4):
                k(f"ds_write_b128 v{WO_ if q & 1 else WE}, {vr(b+4*q,4)} offset:{i*1024 + (q>>1)*128}")
            if i + NB < 8:
                k("s_waitcnt lgkmcnt(0)")
                issue(i + NB)

    def qkv_base(self, dst, which):
        self.k(f"""s_lshl_b32 s{dst}, s{S_SEG}, 5
                   s_add_u32 s{dst}, s{dst}, s{S_H}
                   s_mul_i32 s{dst}, s{dst}, {24*KB}
                   s_add_u32 s{dst}, s{dst}, {QKV_OFF[which] if isinstance(which, int) else which}""")

    def t1_dma(self, s_h, quarters, voff=None, reg=0, sb=S_LW):
        voff = voff or (self.THD, self.THD)
        out = []
        for qi in quarters:
            for u in range(2):
                out.append(f"s_add_u32 m0, s{sb}, {self.LH + reg*32*KB + qi*8192 + u*4096 - qi*256}")
                out.append(f"buffer_load_dwordx4 v{voff[u]}, {WS}, s{s_h+u} offen offset:{qi*256} sc1 lds")
        return out

    def t1_src(self, dst, seg, hreg):
        self.k(f"""s_lshl_b32 s{dst}, s{seg}, 15
                   s_add_u32 s{dst}, s{dst}, {H_OFF[hreg]}
                   s_add_u32 s{dst+1}, s{dst}, {16*KB}""")

    def flag_store(self, s_off, loc):
        self.k(f"""s_or_b32 s{s_off}, s{s_off}, s{S_OOB}
                   buffer_store_dword v{self.TOB}, off, {WS}, s{s_off}{loc}""")

    def t1(self, which, s_h, voff=None, pre=0, nxt=None, s_flag=None, extra=(), x_flag=None, qloc=False, s_keep=0, rot=False):
        k = self.k
        ACC = 24; RING = (72, 80, 108)
        aq = lambda t, u: ACC + (t * 2 + u) * 4
        ak = lambda t, u: ACC + 16 + (t * 2 + u) * 4
        av = lambda t, u: ACC + 32 + (t * 2 + u) * 4
        first, later = ((0, 1), (2, 3)) if rot else ((0, 1, 2), (3,))
        if not pre:
            for x in self.t1_dma(s_h, first, voff):
                k(x)
        self.qkv_base(S_T + 2, which)
        k(f"""s_add_u32 s{S_T+5}, s{S_T+2}, s{S_LW}      ; K u0
              s_add_u32 s{S_T+6}, s{S_T+5}, 4096         ; K u1
              s_add_u32 s{S_T+7}, s{S_T+5}, {16*KB}      ; Q u0
              s_add_u32 s{S_T+8}, s{S_T+5}, {20*KB}      ; Q u1
              s_add_u32 s{S_T+9}, s{S_T+5}, s{S_LW}
              s_add_u32 s{S_T+9}, s{S_T+9}, {8*KB}       ; V""")
        if rot:
            rd = lambda kk: [f"ds_read_b128 {vr(RING[kk%3]+4*u,4)}, v{self.THR+(kk&7)} offset:{(kk>>3)*16384+u*4096}" for u in range(2)]
        else:
            rd = lambda kk: [f"ds_read_b128 {vr(RING[kk%3]+4*u,4)}, v{self.THR+(kk&3)} offset:{(kk>>2)*8192+u*4096}" for u in range(2)]
        k(f"s_waitcnt vmcnt({(0 if rot else 4) + pre})")
        k("s_barrier")
        self.mark(self.mk + 0)
        for x in rd(0) + rd(1):
            k(x)
        for x in self.t1_dma(s_h, later, voff):
            k(x)
        for x in extra:
            k(x)
        ne = len(extra); nl = 2 * len(later)
        side = []
        for kk in range(16):
            b = RING[kk % 3]
            n = kk + 2
            last_q = (n == 8) if rot else (n == 12)
            if last_q:
                k(f"s_waitcnt vmcnt({1 if (s_flag and not rot) else 0})")
                k("s_barrier")
                if x_flag:
                    self.flag_store(x_flag, " sc1")
                if s_flag and rot:
                    self.flag_store(s_flag, " sc1")
            elif not rot and n in (4, 8):
                k(f"s_waitcnt vmcnt({(2 if n == 4 else 0) + pre + nl + ne})")
                k("s_barrier")
            if kk == 7 and s_flag and not rot:
                assert not extra
                k(f"s_waitcnt vmcnt({nl + s_keep})")
                k("s_barrier")
                self.flag_store(s_flag, " sc1")
            if kk == 12 and nxt:
                k("s_barrier")
                side = list(nxt)
            k(f"s_waitcnt lgkmcnt({2 if kk < 15 else 0})")
            ks, hf = kk >> 1, kk & 1
            fill = rd(n) if n < 16 else []
            i = 0
            for t in range(2):
                for u in range(2):
                    h = vr(b + 4 * u, 4)
                    for acc, w, tr in ((ak, wk, True), (av, wv, False), (aq, wq, True)):
                        d = vr(acc(t, u), 4)
                        c = "0" if kk == 0 else d
                        a_, b_ = (w(ks, t, hf), h) if tr else (h, w(ks, t, hf))
                        k(f"v_mfma_f32_16x16x32_bf16 {d}, {a_}, {b_}, {c}")
                        i += 1
                        if fill and i % 2 == 1:
                            k(fill.pop(0))
                        elif side:
                            k(side.pop(0))
        assert not side
        self.mark(self.mk + 3)
        if which == 0:
            k(f"""s_lshl_b32 s{S_T}, s{S_SEG}, 5
                  s_add_u32 s{S_T}, s{S_T}, s{S_H}
                  s_lshl_b32 s{S_T}, s{S_T}, 12
                  s_add_u32 s{S_T}, s{S_T}, s{S_LW}
                  s_add_u32 s{S_T}, s{S_T}, {KVM_OFF[0]}
                  v_mov_b64 v[120:121], -1
                  v_mov_b64 v[122:123], -1
                  buffer_store_dwordx4 v[120:123], v{V_L16}, {WS}, s{S_T} offen sc1""")
        for i, (acc, so) in enumerate(((ak, S_T + 5), (aq, S_T + 7))):
            for u in range(2):
                p = RING[2 * i] + u * 4
                for r in range(4):
                    k(f"v_cvt_pk_bf16_f32 v{p+r}, v{acc(0,u)+r}, v{acc(1,u)+r}")
                k(f"buffer_store_dwordx4 {vr(p,4)}, v{V_L16}, {WS}, s{so+u} offen{'' if (i == 1 and qloc) else ' sc1'}")
            if i == 0:
                for t in range(2):
                    p = RING[1] + t * 4
                    for u in range(2):
                        k(f"v_cvt_pk_bf16_f32 v{p+2*u}, v{av(t,u)}, v{av(t,u)+1}")
                        k(f"v_cvt_pk_bf16_f32 v{p+2*u+1}, v{av(t,u)+2}, v{av(t,u)+3}")
                    k(f"buffer_store_dwordx4 {vr(p,4)}, v{V_L16}, {WS}, s{S_T+9} offen offset:{t*1024} sc1")

    def t1b(self, which, s_h, landed=False, reg=0, s_flag=None, voff=None, nxt=(), early=True, sb=S_LW, peek=None, lead=()):
        k = self.k
        HB = 104; ND = 3
        aq = lambda t, u: 88 + (t * 2 + u) * 4
        ak = lambda t, u: 24 + (t * 2 + u) * 4
        av = lambda t, u: 40 + (t * 2 + u) * 4
        big = self.LH != L_H
        if not landed:
            for x in self.t1_dma(s_h, (0, 1, 2, 3) if big else (0, 1, 2), voff, reg, sb):
                k(x)
        np_ = 0
        pk0 = []
        if peek and landed:
            pk0 = [x.strip() for x in peek[0].split("\n")]
        elif peek:
            k(peek[0]); np_ = 1
        n0_ = len(k.lines)
        self.qkv_base(S_T + 2, which)
        k(f"""s_add_u32 s{S_T+5}, s{S_T+2}, s{S_LW}      ; K u0
              s_add_u32 s{S_T+6}, s{S_T+5}, 4096         ; K u1
              s_add_u32 s{S_T+7}, s{S_T+5}, {16*KB}      ; Q u0
              s_add_u32 s{S_T+8}, s{S_T+5}, {20*KB}      ; Q u1
              s_add_u32 s{S_T+9}, s{S_T+5}, s{S_LW}
              s_add_u32 s{S_T+9}, s{S_T+9}, {8*KB}       ; V""")
        addr = list(lead) + k.lines[n0_:]; del k.lines[n0_:]
        rd = lambda n: [f"ds_read_b128 {vr(HB+(n%ND)*8+4*u,4)}, v{self.THR+(n&3)} offset:{reg*32*KB+((n&15)>>2)*8192+u*4096}" for u in range(2)]
        if not landed:
            k(f"s_waitcnt vmcnt({(6 if big else 4) + np_})")
            k("s_barrier")
        self.mark(self.mk + 0)
        for x in rd(0) + rd(1):
            k(x)
        if not landed and not big:
            for x in self.t1_dma(s_h, (3,), voff, reg):
                k(x)
        first = []
        if which < 2:
            first += [f"s_lshl_b32 s{S_T}, s{S_SEG}, 5\ns_add_u32 s{S_T}, s{S_T}, s{S_H}\ns_lshl_b32 s{S_T}, s{S_T}, 12",
                      f"s_add_u32 s{S_T}, s{S_T}, s{S_LW}\ns_add_u32 s{S_T}, s{S_T}, {KVM_OFF[which]}"]
            first += [f"v_mov_b64 v[72:73], -1\nv_mov_b64 v[74:75], -1"]
            first += [f"buffer_store_dwordx4 v[72:75], v{V_L16}, {WS}, s{S_T} offen sc1"]
            if which:
                first += [f"s_add_u32 s{S_T}, s{S_T}, {KVM_OFF[2] - KVM_OFF[1]}", first[-1]]
        first = ((first + [""] * 6)[:max(6, len(first))] + list(nxt)) if peek else list(nxt) + first
        look = list(peek[1]) if peek else []
        side = []
        P = 56
        for u in range(2):
            for r in range(4):
                side.append(f"v_cvt_pk_bf16_f32 v{P+4*u+r}, v{ak(0,u)+r}, v{ak(1,u)+r}")
            side.append(f"buffer_store_dwordx4 {vr(P+4*u,4)}, v{V_L16}, {WS}, s{S_T+5+u} offen sc1")
        for t in range(2):
            p = P + 8 + t * 4
            for u in range(2):
                side.append(f"v_cvt_pk_bf16_f32 v{p+2*u}, v{av(t,u)}, v{av(t,u)+1}")
                side.append(f"v_cvt_pk_bf16_f32 v{p+2*u+1}, v{av(t,u)+2}, v{av(t,u)+3}")
            side.append(f"buffer_store_dwordx4 {vr(p,4)}, v{V_L16}, {WS}, s{S_T+9} offen offset:{t*1024} sc1")
        if peek:
            side += [""] * self.opt.get("pk2", 4) + [x.strip() for x in peek[0].split("\n")]
        for n in range(32):
            kk = n & 15
            b = HB + (n % ND) * 8
            m = n + 2
            if m in (4, 8, 12) and (not landed or (m == 12 and s_flag)):
                k(f"s_waitcnt vmcnt({(12 - m) // 2 + np_})" if m < 12 else "s_waitcnt vmcnt(0) lgkmcnt(0)" if peek else "s_waitcnt vmcnt(0)")
                k("s_barrier")
                if m == 12 and s_flag:
                    self.flag_store(s_flag, " sc1")
                if m == 12 and peek:
                    k(peek[2])
            if n in (9, 11, 16):
                self.mark(self.mk + {9: 1, 11: 2, 16: 3}[n])
            if not (peek and m == 12):
                k(f"s_waitcnt lgkmcnt({2 if n < 31 else 0})")
            ks, hf = kk >> 1, kk & 1
            fill = rd(m) if m < 32 else []
            i = 0
            cur = first if 10 <= n < 16 else (side if n > 16 else look if n == 9 else pk0 if n == self.opt.get("pkat", 5) else addr if n < 4 else [])
            for t in range(2):
                for u in range(2):
                    h = vr(b + 4 * u, 4)
                    for acc, w, tr in (((ak, wk, True), (av, wv, False)) if n < 16 else ((aq, wq, True),)):
                        d = vr(acc(t, u), 4)
                        c = "0" if kk == 0 else d
                        a_, b_ = (w(ks, t, hf), h) if tr else (h, w(ks, t, hf))
                        k(f"v_mfma_f32_16x16x32_bf16 {d}, {a_}, {b_}, {c}")
                        i += 1
                        if fill and i % 2 == 1:
                            k(fill.pop(0))
                        elif cur and (n < 16 or not cur[0].startswith("v_")):
                            k(cur.pop(0))
                        if n > 16 or (n == 16 and i > 2):
                            for _ in range(2):
                                if side and side[0].startswith("v_"):
                                    k(side.pop(0))
        assert not first and not side and not look and not addr, (len(first), len(side))
        self.mark(self.mk + 4)
        for u in range(2):
            for r in range(4):
                k(f"v_cvt_pk_bf16_f32 v{HB+4*u+r}, v{aq(0,u)+r}, v{aq(1,u)+r}")
        for u in range(2):
            k(f"buffer_store_dwordx4 {vr(HB+4*u,4)}, v{V_L16}, {WS}, s{S_T+7+u} offen sc1")
        if early:
            self.page(S_T + 3, F_KV[which])
            self.flag_set(S_T + 3, " sc1", keep=3 if peek else 2)
        else:
            k(f"s_waitcnt vmcnt({7 if peek else 6})")
            k("s_barrier")
        self.mark(self.mk + 5)
        self.flush()

    def make_sel(self, dst, t):
        k = self.k
        k(f"""v_and_b32 v{t}, 15, v{V_LANE}
              v_and_b32 v{t+1}, 1, v{V_LANE}
              v_lshlrev_b32 v{t+1}, 4, v{t+1}
              v_mov_b32 v{t+2}, 0x3f80
              v_lshlrev_b32 v{t+2}, v{t+1}, v{t+2}
              v_lshrrev_b32 v{t}, 1, v{t}""")
        for q in range(4):
            k(f"v_cmp_eq_u32 vcc, {q}, v{t}")
            k(f"v_cndmask_b32 v{dst+q}, 0, v{t+2}, vcc")

    def softmax(self, S, P, t, fill=None, half=False):
        k = self.k
        fill = list(fill or [])
        def f(n=1):
            for _ in range(n):
                if fill:
                    k(fill.pop(0))
        if half:
            k(f"""v_max3_f32 v{t}, v{S}, v{S+1}, v{S+2}
                  v_max3_f32 v{t+1}, v{S+3}, v{S+10}, v{S+11}""")
        else:
            k(f"""v_max3_f32 v{t}, v{S}, v{S+1}, v{S+2}
                  v_max3_f32 v{t+1}, v{S+3}, v{S+4}, v{S+5}
                  v_max3_f32 v{t}, v{S+6}, v{S+7}, v{t}
                  v_max3_f32 v{t+1}, v{S+10}, v{S+11}, v{t+1}""")
        k(f"""v_max_f32 v{t}, v{t}, v{t+1}
              v_max_f32 v{t+1}, v{t}, v{t+1}""")
        f()
        k(f"""v_permlane16_swap_b32 v{t}, v{t+1}
              v_max_f32 v{t}, v{t}, v{t+1}
              v_max_f32 v{t+1}, v{t}, v{t+1}""")
        f()
        k(f"""v_permlane32_swap_b32 v{t}, v{t+1}
              v_max_f32 v{t}, v{t}, v{t+1}
              v_mul_f32 v{t}, s{S_C}, v{t}""")
        order = [0, 1, 2, 3, 10, 11] if half else [0, 1, 2, 3, 4, 5, 6, 7, 10, 11]
        k(f"v_fma_f32 v{S+order[0]}, v{S+order[0]}, s{S_C}, -v{t}")
        for n, i in enumerate(order):
            if n + 1 < len(order):
                j = order[n + 1]
                k(f"v_fma_f32 v{S+j}, v{S+j}, s{S_C}, -v{t}")
            k(f"v_exp_f32 v{S+i}, v{S+i}")
        for q in range(2 if half else 4):
            k(f"v_cvt_pk_bf16_f32 v{P+q}, v{S+2*q}, v{S+2*q+1}")
        k(f"v_cvt_pk_bf16_f32 v{P+4}, v{S+10}, v{S+11}")
        f(len(fill))

    def chain(self, c):
        k = self.k
        opt = self.opt
        IDX, IDX2, QKW, QKR0, QKR1, OW, OR, PST, MST, WOB, OB, MV = 2, 3, 4, 5, 6, 7, 8, 9, 10, 11, 55, 13
        MX, CK = 12, 123
        SEL, TCH, STS = 18, 22, 23
        M, KX, VX, QK, VA, T = 24, 56, 88, 96, 112, 120
        sMEM, sPC, sRD, sKV, sKVM, sRST, sM2, sU, sNAN, sW2, sFAIL, sPG, sOK, sREC, sFK, sFKB = (S_T + i for i in range(8, 24))
        sMX, sMXB = S_A, S_B
        sKF, sOK2, sJ, sO = 18, 19, 20, 21
        sPUB, sFK1 = 54, 55
        reg = min(c, 1)
        k(f"""v_and_b32 v{T}, 15, v{V_LANE}          ; c
              v_lshrrev_b32 v{T+1}, 4, v{V_LANE}     ; g
              v_and_b32 v{T+2}, 2, v{V_LANE}
              v_cmp_eq_u32 vcc, 0, v{T+2}
              v_mov_b32 v{IDX}, 0xeeee
              v_mov_b32 v{T+3}, 0x4444
              v_cndmask_b32 v{IDX}, v{IDX}, v{T+3}, vcc
              v_and_b32 v{T+2}, 1, v{V_LANE}
              v_cmp_eq_u32 vcc, 0, v{T+2}
              v_mov_b32 v{IDX2}, 0xdddd
              v_mov_b32 v{T+3}, 0x8888
              v_cndmask_b32 v{IDX2}, v{IDX2}, v{T+3}, vcc""")
        k(f"""v_lshrrev_b32 v{T+2}, 1, v{T}           ; b
              v_bfe_u32 v{T+3}, v{T}, 2, 1
              v_xor_b32 v{T+3}, v{T+3}, v{T+2}
              v_lshlrev_b32 v{QKW}, 7, v{T+3}
              v_and_b32 v{T+3}, 1, v{T}
              v_lshl_add_u32 v{QKW}, v{T+3}, 6, v{QKW}
              v_xor_b32 v{T+3}, v{T+1}, v{T+2}
              v_and_b32 v{T+3}, 3, v{T+3}
              v_lshl_add_u32 v{QKW}, v{T+3}, 4, v{QKW}
              s_lshl_b32 s{S_T}, s{S_W}, 10
              s_add_u32 s{S_T}, s{S_T}, {L_QK}
              v_add_u32 v{QKW}, s{S_T}, v{QKW}""")
        for hh, R in ((0, QKR0), (1, QKR1)):
            k(f"""v_lshlrev_b32 v{T+2}, 1, v{T+1}
                  v_add_u32 v{T+2}, {hh}, v{T+2}          ; b
                  v_and_b32 v{T+3}, 1, v{T+1}
                  v_xor_b32 v{T+3}, v{T+3}, v{T+2}
                  v_lshlrev_b32 v{R}, 7, v{T+3}
                  v_bfe_u32 v{T+3}, v{T}, 3, 1
                  v_lshl_add_u32 v{R}, v{T+3}, 6, v{R}
                  v_xor_b32 v{T+3}, v{T}, v{T+2}
                  v_and_b32 v{T+3}, 3, v{T+3}
                  v_lshl_add_u32 v{R}, v{T+3}, 4, v{R}
                  v_bfe_u32 v{T+3}, v{T}, 2, 1
                  v_lshl_add_u32 v{R}, v{T+3}, 3, v{R}
                  v_add_u32 v{R}, {L_QK}, v{R}""")
        k(f"""v_lshlrev_b32 v{OW}, 7, v{T+1}
              v_lshrrev_b32 v{T+2}, 1, v{T}
              v_lshl_add_u32 v{OR}, v{T+2}, 4, v{OW}
              v_add_u32 v{OR}, {L_O}, v{OR}
              v_lshrrev_b32 v{T+2}, 2, v{T}
              v_lshl_add_u32 v{OW}, v{T+2}, 5, v{OW}
              v_and_b32 v{T+2}, 1, v{T}
              v_lshl_add_u32 v{OW}, v{T+2}, 4, v{OW}
              v_and_b32 v{T+2}, 2, v{T}
              v_cmp_eq_u32 vcc, 0, v{T+2}
              s_lshl_b32 s{S_T}, s{S_W}, 9
              v_mov_b32 v{T+2}, 2048
              v_mov_b32 v{T+3}, s{S_T}
              v_cndmask_b32 v{T+2}, v{T+2}, v{T+3}, vcc
              v_add_u32 v{OW}, v{T+2}, v{OW}
              v_add_u32 v{OW}, {L_O}, v{OW}""")
        k(f"""v_lshrrev_b32 v{T+2}, 3, v{V_LANE}
              v_lshlrev_b32 v{PST}, 11, v{T+2}
              v_and_b32 v{T+2}, 7, v{V_LANE}
              v_lshl_add_u32 v{PST}, v{T+2}, 3, v{PST}
              s_lshl_b32 s{S_T}, s{S_W}, 14
              s_lshl_b32 s{S_T+1}, s{S_H}, 6
              s_add_u32 s{S_T}, s{S_T}, s{S_T+1}
              v_add_u32 v{PST}, s{S_T}, v{PST}""")
        k(f"""s_lshl_b32 s{sU}, s{S_W}, 5
              s_add_u32 s{sU}, s{sU}, s{S_H}
              s_bfe_u32 s{S_T}, s{sU}, 0x10003
              s_lshl_b32 s{S_T}, s{S_T}, 11              ; ((U>>3)&1)*4 lines*512
              s_and_b32 s{S_T+1}, s{sU}, 1
              s_lshl_b32 s{S_T+1}, s{S_T+1}, 10          ; (U&1)*2 lines
              s_add_u32 s{S_T}, s{S_T}, s{S_T+1}
              s_bfe_u32 s{S_T+1}, s{sU}, 0x10002
              s_lshl_b32 s{S_T+1}, s{S_T+1}, 9
              s_add_u32 s{S_T}, s{S_T}, s{S_T+1}
              s_bfe_u32 s{S_T+1}, s{sU}, 0x10001
              s_lshl_b32 s{S_T+1}, s{S_T+1}, 6
              s_add_u32 s{S_T}, s{S_T}, s{S_T+1}
              s_bfe_u32 s{S_T+1}, s{sU}, 0x10004
              s_lshl_b32 s{S_T+1}, s{S_T+1}, 8
              s_add_u32 s{S_T}, s{S_T}, s{S_T+1}
              s_bfe_u32 s{S_T+1}, s{sU}, 0x10005
              s_lshl_b32 s{S_T+1}, s{S_T+1}, 7
              s_add_u32 s{S_T}, s{S_T}, s{S_T+1}
              s_bfe_u32 s{S_T+1}, s{sU}, 0x10006
              s_lshl_b32 s{S_T+1}, s{S_T+1}, 12
              s_add_u32 s{S_T}, s{S_T}, s{S_T+1}
              v_and_b32 v{T+2}, 3, v{T}
              v_lshlrev_b32 v{MST}, 2, v{T+2}
              v_bfe_u32 v{T+2}, v{T}, 3, 1
              v_lshl_add_u32 v{MST}, v{T+2}, 4, v{MST}
              v_and_b32 v{T+2}, 1, v{T+1}
              v_lshl_add_u32 v{MST}, v{T+2}, 5, v{MST}
              v_add_u32 v{MST}, s{S_T}, v{MST}
              v_and_b32 v{T+3}, 36, v{V_LANE}
              v_mov_b32 v{T+2}, 0x80000000
              v_cmp_eq_u32 vcc, 0, v{T+3}
              v_cndmask_b32 v{MST}, v{T+2}, v{MST}, vcc
              s_lshl_b32 s{sU}, s{sU}, 11
              s_lshl_b32 s{sW2}, s{S_W}, 11
              s_mov_b32 s{sNAN}, 0xffc00000
              s_mov_b32 s{sFAIL}, 0""")
        self.wo_slot(WOB, T, T + 1, T + 2)
        k(f"""s_lshl_b32 s{S_T}, s{S_W}, 15
              v_add_u32 v{WOB}, s{S_T}, v{WOB}""")
        self.mfrag_voff(MV, T + 2)
        self.make_sel(SEL, T + 2)
        k(f"""s_and_b32 s{S_T}, s{S_W}, 1
              s_lshl_b32 s{S_T}, s{S_T}, 8
              s_and_b32 s{S_T+1}, s{S_W}, 2
              s_lshl_b32 s{S_T+1}, s{S_T+1}, 6
              s_add_u32 s{S_T}, s{S_T}, s{S_T+1}
              v_add_u32 v{MV}, s{S_T}, v{MV}""")
        k(f"""s_add_u32 s{S_T}, s{S_LW}, {L_MB}
              v_add_u32 v{MX}, s{S_T}, v{V_L16}
              v_mov_b64 v[14:15], {sr(S_ONE,2)}
              v_mov_b64 v[16:17], {sr(S_ONE,2)}""")
        k(f"""v_add_u32 v{TCH}, {MEM_OFF[c] + 2*8192}, v{MST}
              s_lshl_b32 s{sKF}, s{S_H}, 2
              s_add_u32 s{sKF}, s{sKF}, {PG_OFF + 8192 + F_KV[reg]}
              v_mov_b32 v1, s{S_C}
              s_mov_b32 s{sPC}, {PC_OFF[c]}
              s_add_u32 s{sRD}, s{sU}, {PC_OFF[c]}
              s_add_u32 s{sRST}, s{sU}, {PC_OFF[c] + 256*KB}
              s_mov_b32 s{sMX}, 0x40000000
              s_mov_b32 s{S_SEG}, 0""")
        sMK, sSCN = S_A, S_B
        if c == 2:
            k(f"""v_lshrrev_b32 v{T}, 2, v{V_L16}
                  v_add_u32 v{T}, {PG_OFF + (1+LOOK)*8192 + F_RKU - 128}, v{T}
                  v_or_b32 v{T}, s{S_OOB}, v{T}
                  s_mov_b64 vcc, -1
                  s_mov_b32 vcc_lo, 0
                  v_cndmask_b32 v{TCH}, v{TCH}, v{T}, vcc
                  s_or_b32 s{S_T}, s{S_OOB}, {PG_OFF + 8192 + F_J}
                  v_writelane_b32 v{TCH}, s{S_T}, 4
                  s_or_b32 s{S_T}, s{S_H}, s{S_W}
                  s_mov_b32 s{S_T}, {PG_OFF + F_RM}
                  s_cmov_b32 s{S_T}, 0x80000000
                  v_writelane_b32 v{TCH}, s{S_T}, 5
                  s_mov_b32 s{sMK}, 0
                  s_mov_b32 s{sSCN}, 0""")
        def keys_wait(seg, va, hi=None):
            L_ = k.newlabel("L_ckk")
            self.page(S_T + 3, F_RKU, seg=seg, head=False)
            k(f"""v_lshrrev_b32 v{va+1}, 2, v{V_L16}
                  v_and_b32 v{va+1}, 127, v{va+1}""")
            if hi:
                k(f"""v_lshrrev_b32 v{va}, 9, v{V_L16}
                      v_mul_u32_u24 v{va}, s{hi}, v{va}
                      v_add_u32 v{va+1}, v{va}, v{va+1}""")
            k.label(L_)
            k(f"""s_sleep {opt.get("slu", 1)}
                  buffer_load_dword v{va}, v{va+1}, {WS}, s{S_T+3} offen sc1""")
            self.spend()
            k(f"""s_waitcnt vmcnt(0)
                  v_cmp_eq_u32 vcc, 0, v{va}
                  s_cbranch_vccnz {L_}""")
        dma = [f"s_add_u32 m0, s{sW2}, {L_KX}",
               f"s_add_u32 s{S_T+1}, s{sKV}, {8*KB}",
               f"buffer_load_dwordx4 v{V_L16}, {WS}, s{sKV} offen sc1 lds",
               f"buffer_load_dwordx4 v{V_L16}, {WS}, s{sKV} offen offset:1024 sc1 lds",
               f"s_add_u32 m0, s{sW2}, {L_VX}",
               f"s_add_u32 s{sKV}, s{sKV}, {32*24*KB}",
               f"buffer_load_dwordx4 v{V_L16}, {WS}, s{S_T+1} offen sc1 lds",
               f"buffer_load_dwordx4 v{V_L16}, {WS}, s{S_T+1} offen offset:1024 sc1 lds"]
        def kv_read(extra=None, pos=0):
            k(f"v_add_u32 v{OB}, {L_KX}, v{V_L16}")
            for i in range(8):
                if extra and i == pos:
                    k(extra)
                k(f"ds_read_b128 {vr(KX+4*i,4)}, v{OB} offset:{((i&1)*4+(i>>1))*1024}")
            k(f"v_add_u32 v{CK}, s{sW2}, v{OB}")
            for t in range(2):
                k(f"ds_read_b128 {vr(VX+4*t,4)}, v{CK} offset:{L_VX-L_KX+t*1024}")
        def zero(b, n):
            for i in range(0, n, 2):
                k(f"v_mov_b64 {vr(b+i,2)}, 0")
        def mload(hf):
            return f"buffer_load_dwordx4 {vr(M+16*hf,4)}, v{MV}, {WS}, s{sM2 if hf else sMEM} offen sc1"
        chk2 = [f"v_max3_u32 v{CK}, v{M}, v{M+1}, v{M+2}", f"v_max3_u32 v{CK}, v{M+3}, v{M+16}, v{CK}",
                f"v_max3_u32 v{CK}, v{M+17}, v{M+18}, v{CK}", f"v_max_u32 v{CK}, v{M+19}, v{CK}",
                f"v_cmp_le_u32 vcc, s{sNAN}, v{CK}"]
        mwrite = lambda hf: f"ds_write_b128 v{MX}, {vr(M+16*hf,4)} offset:{hf*4096}"
        mread = lambda hf, i: f"ds_read_b128 {vr(M+16*hf+4*i,4)}, v{T+i-1} offset:{hf*4096}"
        LEAD, LEADB, JS = (k.newlabel(x) for x in ("L_cld", "L_clb", "L_cjs"))
        START, KVW, KVB, JW, JUMP = (k.newlabel(x) for x in ("L_cst", "L_ckw", "L_ckb", "L_cjw", "L_cjump"))
        first = reg
        if opt.get("pcwarm", 1) and not self.loc:
            for i, r_ in enumerate((sRD, sRST)):
                for j in range(2):
                    k(f"buffer_load_dwordx4 v[88:91], v{V_L16}, {WS}, s{r_} offen offset:{j*1024}")
            if c:
                k("s_waitcnt vmcnt(0)")
        SW = k.newlabel("L_csw")
        WO_ = 3072 - 512
        k.label(START)
        k(f"""s_cmp_lg_u32 s{S_W}, 0
              s_cbranch_scc1 {SW}""")
        if c == 2:
            k(f"""s_andn2_b32 s{S_T+5}, 0x7ff, s{sMK}
                  s_lshr_b32 s{S_T+5}, s{S_T+5}, 5
                  s_add_u32 s{S_T+5}, s{S_T+5}, {LOOK}
                  s_add_u32 s{S_T+4}, s{sSCN}, 1
                  s_min_u32 s{S_T+4}, s{S_T+4}, 63
                  s_cmp_gt_u32 s{S_T+4}, s{S_T+5}
                  s_cselect_b32 s{S_T+4}, s{sSCN}, s{S_T+4}
                  s_sub_u32 s{S_T+5}, s{S_T+4}, s{sSCN}
                  s_lshl_b32 s{S_T+5}, s{S_T+5}, 13""")
            keys_wait(sSCN, T, S_T + 5)
            self.wmax_u32(T, T + 1)
            k(f"""v_readfirstlane_b32 s{S_T+5}, v{T}
                  s_max_u32 s{sMK}, s{sMK}, s{S_T+5}
                  s_add_u32 s{sSCN}, s{S_T+4}, 1
                  s_andn2_b32 s{S_SEG}, 0x7ff, s{sMK}
                  s_lshr_b32 s{S_SEG}, s{S_SEG}, 5
                  s_add_u32 s{S_T+5}, s{S_SEG}, {LOOK}
                  s_min_u32 s{S_T+5}, s{S_T+5}, 63
                  s_cmp_le_u32 s{sSCN}, s{S_T+5}
                  s_cbranch_scc1 {START}
                  v_mov_b32 v{T}, 0
                  v_mov_b32 v{T+1}, s{sMK}
                  ds_write_b32 v{OR}, v{T} offset:{WO_}
                  ds_write_b32 v{OR}, v{T+1} offset:{WO_ + 512}""")
        self.ev(40 + c, va=T + 2)
        self.page(S_T + 3, F_KV[first])
        self.word_wait(S_T + 3, S_T + 5, va=T + 2, sleep=1, quick=c == 0)
        k.label(SW)
        k("""s_waitcnt lgkmcnt(0)
             s_barrier""")
        if c == 2:
            k(f"""ds_read_b32 v{T}, v{OR} offset:{WO_ + 512}
                  s_waitcnt lgkmcnt(0)
                  v_readfirstlane_b32 s{sMK}, v{T}
                  s_andn2_b32 s{S_SEG}, 0x7ff, s{sMK}
                  s_lshr_b32 s{S_SEG}, s{S_SEG}, 5""")
        self.qkv_base(S_T, first)
        k(f"s_add_u32 s{sKV}, s{S_T}, s{sW2}")
        for d in dma:
            k(d)
        k(f"""s_lshl_b32 s{sPG}, s{S_SEG}, 13
              s_add_u32 s{S_T}, s{sPG}, {MEM_OFF[c] + 8192}
              buffer_load_dword v{STS}, v{MST}, {WS}, s{S_T} offen sc1
              s_add_u32 s{sMEM}, s{sPG}, {MEMX_OFF if c == 2 else MEM_OFF[c]}
              s_add_u32 s{sM2}, s{sMEM}, 4096
              s_lshl_b32 s{sKVM}, s{S_SEG}, 5
              s_add_u32 s{sKVM}, s{sKVM}, s{S_H}
              s_lshl_b32 s{sKVM}, s{sKVM}, 12
              s_lshl_b32 s{S_T}, s{S_W}, 10
              s_add_u32 s{sKVM}, s{sKVM}, s{S_T}
              s_add_u32 s{sKVM}, s{sKVM}, {KVM_OFF[c]}
              s_mov_b32 s{sPUB}, 0x80000000
              s_mov_b32 s{sREC}, 0
              s_add_u32 s{S_T}, s{sKF}, s{sPG}
              s_buffer_load_dword s{sOK2}, {WS}, s{S_T}
              s_cmp_eq_u32 s{S_SEG}, 63
              s_cselect_b32 s{sOK}, 1, s{S_W}
              s_cmp_eq_u32 s{sOK}, 0
              s_cselect_b32 s{sOK}, 1, 0""")
        q_ = lambda t: QK + 8 * t
        k_ = lambda t: QK + 8 * t + 4
        sq = lambda ks, t: f"v_smfmac_f32_16x16x64_bf16 {vr(q_(t),4)}, {vr(M+4*ks,4)}, {wq(ks,t)}, v{IDX}"
        sk = lambda ks, t: f"v_smfmac_f32_16x16x64_bf16 {vr(k_(t),4)}, {vr(M+4*ks,4)}, {wk(ks,t)}, v{IDX}"
        sv = lambda ks, t: f"v_smfmac_f32_16x16x64_bf16 {vr(VA+4*t,4)}, {vr(M+4*ks,4)}, {wv(ks,t)}, v{IDX}"
        zero(QK, 24)
        if c == 2:
            HL, HD = k.newlabel("L_chp"), k.newlabel("L_chd")
            A_ = KX
            k(f"""v_lshrrev_b32 v{A_}, 8, v{V_L16}
                  v_lshlrev_b32 v{A_}, 5, v{A_}
                  v_bfe_u32 v{A_+1}, v{V_L16}, 5, 1
                  v_lshl_add_u32 v{A_}, v{A_+1}, 2, v{A_}
                  s_lshl_b32 s{S_T}, s{S_W}, 7
                  s_add_u32 s{S_T}, s{S_T}, {L_MB}
                  v_add_u32 v{A_}, s{S_T}, v{A_}
                  v_xor_b32 v{A_+1}, 128, v{A_}
                  v_xor_b32 v{A_+2}, 256, v{A_}
                  v_xor_b32 v{A_+3}, 384, v{A_}
                  s_andn2_b32 s{S_T}, 31, s{sMK}
                  s_lshr_b32 s{S_T+1}, s{S_T}, 4
                  s_lshl_b32 s{S_T+2}, s{S_T+1}, 12
                  s_and_b32 s{S_T+3}, s{S_T}, 15
                  s_lshl4_add_u32 s{S_T+2}, s{S_T+3}, s{S_T+2}
                  s_add_u32 s{S_T+2}, s{S_T+2}, s{S_LW}
                  s_add_u32 s{S_T+2}, s{S_T+2}, {L_KX}
                  v_bfe_u32 v{A_+4}, v{V_L16}, 6, 2
                  v_lshlrev_b32 v{A_+4}, 8, v{A_+4}
                  v_bfe_u32 v{A_+5}, v{V_L16}, 4, 2
                  v_lshl_add_u32 v{A_+4}, v{A_+5}, 2, v{A_+4}
                  v_add_u32 v{A_+4}, s{S_T+2}, v{A_+4}
                  s_lshr_b32 s{S_T+2}, s{S_T+3}, 2
                  s_lshl_b32 s{S_T+2}, s{S_T+2}, 8
                  s_lshl3_add_u32 s{S_T+2}, s{S_T+1}, s{S_T+2}
                  s_and_b32 s{S_T+3}, s{S_T}, 3
                  s_lshl1_add_u32 s{S_T+2}, s{S_T+3}, s{S_T+2}
                  s_add_u32 s{S_T+2}, s{S_T+2}, s{sW2}
                  s_add_u32 s{S_T+2}, s{S_T+2}, {L_VX}
                  v_and_b32 v{A_+5}, 255, v{V_L16}
                  v_add_u32 v{A_+5}, s{S_T+2}, v{A_+5}
                  s_cmp_lg_u32 s{S_W}, 0
                  s_cbranch_scc1 {HD}
                  s_lshl_b32 s{S_T+3}, s{S_SEG}, 10
                  s_add_u32 s{S_T+3}, s{S_T+3}, {HPS_OFF}""")
            k.label(HL)
            k(f"buffer_load_dwordx4 {vr(T,4)}, v{V_L16}, {WS}, s{S_T+3} offen sc1")
            self.spend()
            k(f"""s_waitcnt vmcnt(0)
                  v_max3_u32 v{T+4}, v{T}, v{T+1}, v{T+2}
                  v_max_u32 v{T+4}, v{T+3}, v{T+4}
                  v_cmp_eq_u32 vcc, -1, v{T+4}
                  s_cbranch_vccnz {HL}
                  ds_write_b128 v{MX}, {vr(T,4)}""")
            k.label(HD)
            k("""s_waitcnt vmcnt(0) lgkmcnt(0)
                 s_barrier""")
            for i in range(8):
                for hq in range(2):
                    o_ = (i >> 2) * 128 + 4 * hq
                    k(f"ds_read2_b32 {vr(M+4*i+2*hq,2)}, v{A_+(i&3)} offset0:{o_} offset1:{o_+2}")
                if i == 3:
                    k("s_waitcnt lgkmcnt(4)")
            for i in range(8):
                k(f"s_waitcnt lgkmcnt({min(14 - 2*i, 12)})")
                for x in (sk(i, 0), sv(i, 0), sk(i, 1), sv(i, 1)):
                    k(x)
            for a_ in (k_(0), VA, k_(1), VA + 4):
                k(f"v_add_f32 v{a_}, v{a_}, v{a_+2}")
            k(f"""v_cvt_pk_bf16_f32 v{T}, v{k_(0)}, v{k_(1)}
                  v_cvt_pk_bf16_f32 v{T+1}, v{VA}, v{VA+4}
                  ds_write_b32 v{A_+4}, v{T}
                  ds_write_b16 v{A_+5}, v{T+1}
                  ds_write_b16_d16_hi v{A_+5}, v{T+1} offset:1024""")
            zero(QK, 24)
        if c == 0:
            k(f"""buffer_load_dwordx4 v[88:91], v{MV}, {WS}, s{sMEM} offen
                  buffer_load_dwordx4 v[88:91], v{MV}, {WS}, s{sM2} offen""")
            self.load_wo(3, extra=7)
        k("""s_waitcnt vmcnt(0) lgkmcnt(0)
             s_barrier""")
        self.ev(43, va=T)
        kv_read()
        LOOP, PA, PAB, END, GO = (k.newlabel(x) for x in ("L_chain", "L_cpa", "L_cpab", "L_cend", "L_cgo"))
        RP, RB, PB, PBB, BACK = (k.newlabel(x) for x in ("L_crp", "L_crb", "L_cpb", "L_cpbb", "L_cback"))
        qk4 = lambda ks: [sq(ks, 0), sk(ks, 0), sq(ks, 1), sk(ks, 1)]
        vlist = [(ks, t) for ks in range(8) for t in range(2)]
        def vs(n):
            for _ in range(n):
                if vlist:
                    k(sv(*vlist.pop(0)))
        def weave(mm, other):
            other = list(other)
            for o in mm:
                k(o)
                if other:
                    k(other.pop(0))
            for o in other:
                k(o)
        ONES = 14
        PT_ = M + 28
        pub = [f"v_add_u32 v{PT_}, s{S_LW}, v{QKR0}", f"v_add_u32 v{PT_+2}, s{S_LW}, v{QKR1}",
               f"ds_read_b64_tr_b16 {vr(PT_,2)}, v{PT_}", f"ds_read_b64_tr_b16 {vr(PT_+2,2)}, v{PT_+2}",
               f"v_mov_b32_dpp v{T+4}, v{T+6} quad_perm:[2,3,2,3] row_mask:0xf bank_mask:0xf",
               f"v_mov_b32_dpp v{T+5}, v{T+7} quad_perm:[2,3,2,3] row_mask:0xf bank_mask:0xf",
               f"s_mov_b32 vcc_lo, 0xcccccccc", f"s_mov_b32 vcc_hi, 0xcccccccc", None]
        pub += [f"v_cndmask_b32 v{T+4+i}, v{T+4+i}, v{PT_+i}, vcc" for i in range(4)]
        pub += [f"buffer_store_dwordx4 {vr(T+4,4)}, v{V_L16}, {WS}, s{sPUB} offen sc1"]
        XT = T
        def xaddr():
            for i in range(1, 4):
                k(f"v_xor_b32 v{XT+i-1}, {i*1024}, v{MX}")
        xaddr()
        pipe = opt.get("pipe", 1)
        def chk(hf):
            b = M + 16 * hf
            return [f"v_max3_u32 v{CK}, v{b}, v{b+1}, v{b+2}", f"v_max_u32 v{CK}, v{b+3}, v{CK}", f"v_cmp_le_u32 vcc, s{sNAN}, v{CK}"]
        mpos = opt.get("mpos", (3, 7))
        for _ in mpos:
            k(mload(0))
        if opt.get("align"):
            k(f".p2align {opt['align']}")
        k.label(LOOP)
        self.stamp(0)
        k.label(PA)
        k(mload(0))
        self.spend(0x10000, sFAIL)
        k(f"s_waitcnt vmcnt({len(mpos)})")
        for x in chk(0):
            k(x)
        if opt.get("spec", 1):
            k(mwrite(0))
        k(f"s_cbranch_vccnz {PA}")
        k.label(GO)
        self.stamp(1)
        if not opt.get("spec", 1):
            k(mwrite(0))
        m1 = opt.get("m1", 0)
        nb = opt.get("nb", 2)
        weave(qk4(0)[:nb], [""] * m1 + [mload(1)])
        k("""s_waitcnt lgkmcnt(0)
             s_barrier""")
        self.stamp("xa")
        V2 = lambda n: [sv(*vlist.pop(0)) for _ in range(n)]
        k(mread(0, 1))
        weave(qk4(0)[nb:] + V2(2), [mread(0, 2), mread(0, 3)])
        k("s_waitcnt lgkmcnt(2)")
        va, vb = opt.get("va", 0), opt.get("vb", 1)
        weave(qk4(1) + V2(va), [dma[0], dma[1], f"s_cmp_lt_u32 s{sOK2}, s{sOK}\ns_cbranch_scc1 {KVW}\n{KVB}:"])
        k("s_waitcnt vmcnt(0) lgkmcnt(1)")
        self.stamp("xb")
        c1 = chk(1)
        weave(qk4(2) + V2(vb), [mwrite(1) + "\n" + c1[0]] + c1[1:])
        k(f"s_cbranch_vccnz {PB}")
        k.label(BACK)
        k("""s_waitcnt lgkmcnt(0)
             s_barrier""")
        self.stamp("xc")
        packt = lambda t: [x for a_, d_ in ((q_(t), T + 2 * t), (k_(t), T + 2 * t + 1)) for x in
                           (f"v_add_f32 v{a_}, v{a_}, v{a_+2}", f"v_add_f32 v{a_+1}, v{a_+1}, v{a_+3}",
                            f"v_cvt_pk_bf16_f32 v{d_}, v{a_}, v{a_+1}")]
        mm = qk4(3) + qk4(4) + [f(ks, t) for t in range(2) for ks in (5, 6, 7) for f in (sq, sk)] + V2(2)
        n0 = 8
        far = {"a": [dma[2]], "b": [dma[3], dma[4]], "c": [dma[6], dma[5]], "d": [dma[7]], "p": [pub[-1]],
               "t": [f"buffer_load_dword v{STS}, v{TCH}, {WS}, s{sPG} offen sc1"], "-": []}
        side = {1: [mread(1, 1)], 3: [mread(1, 2)], 5: [mread(1, 3)]}
        far["x"] = [f"buffer_store_dword v{M+30}, v{MST}, {WS}, s{sMX} offen sc1"]
        for i_, x in enumerate(("x" if c == 1 else "") + opt.get("ford", "pabcdt")):
            side[2 * i_] = list(far[x])
        if c == 2:
            side[7] = [f"ds_read_b32 v{CK}, v{OR} offset:{WO_}"]
        if "t" not in opt.get("ford", "t") and c == 2:
            side[12] = far["t"]
        if opt.get("rstpos"):
            p_ = opt["rstpos"]
            side.setdefault(p_ - 3, []).append(f"v_mov_b64 {vr(T+4,2)}, -1")
            side.setdefault(p_ - 1, []).append(f"v_mov_b64 {vr(T+6,2)}, -1")
            side.setdefault(p_, []).insert(0, f"buffer_store_dwordx4 {vr(T+4,4)}, v{V_L16}, {WS}, s{sRST} offen{self.loc}")
            side.setdefault(p_ + 2, []).insert(0, f"buffer_store_dwordx4 {vr(T+4,4)}, v{V_L16}, {WS}, s{sRST} offen offset:1024{self.loc}")
        if c == 2:
            side.setdefault(n0 + 5, []).append(f"v_readfirstlane_b32 s{S_T+2}, v{CK}")
            side.setdefault(n0 + 7, []).append(f"s_cmp_lg_u32 s{S_T+2}, 0\ns_cbranch_scc1 {JUMP}")
        waits = {n0: 2 + (c == 2), n0 + 2: 1 + (c == 2), n0 + 4: 0}
        for i_, x in enumerate(packt(0)):
            side.setdefault(n0 + 8 + i_, []).append(x)
        for n, o in enumerate(mm):
            if n in waits:
                k(f"s_waitcnt lgkmcnt({waits[n]})")
            k(o)
            for x in side.get(n, []):
                k(x)
        self.stamp("back")
        for x in packt(1):
            k(x)
        k(f"ds_write_b128 v{QKW}, {vr(T,4)}")
        vend = list(vlist)
        weave(V2(opt.get("vd", 4)),
              [f"s_mov_b32 s{sPUB}, s{sKVM}\ns_add_u32 s{sKVM}, s{sKVM}, {32*4*KB}\nv_mov_b32 v{T+5}, 0",
               f"s_cmp_eq_u32 s{S_SEG}, 63\ns_cbranch_scc1 {END}"])
        self.stamp("w0")
        k("s_waitcnt lgkmcnt(0)")
        self.stamp("w1")
        k("s_barrier")
        self.stamp(2)
        F = QK
        tr = [f"ds_read_b64_tr_b16 {vr(F+4*kk+2*hh,2)}, v{(QKR0, QKR1)[hh]} offset:{kk*1024}" for kk in range(4) for hh in range(2)]
        S = M
        slots = [KX, KX + 8, KX + 16, KX + 24, F, F + 8, M + 16, M + 24]
        def wo_reads(u):
            return [f"ds_read_b128 {vr(slots[(u&1)*4+kk]+4*hf,4)}, v{WOB} offset:{((u*4+kk)*2+hf)*1024}"
                    for kk in range(4) for hf in range(2)]
        st_ = wo_reads(0) + wo_reads(1)
        nv3 = opt.get("v3", 4)
        lq = []
        def ld(x):
            k(x); lq.append(x)
        def lwait(x):
            k(f"s_waitcnt lgkmcnt({len(lq) - 1 - lq.index(x)})")
        for x in tr[:6 - nv3]:
            ld(x)
        for x in tr[6 - nv3:6]:
            vs(1); ld(x)
        shadow = [tr[6], tr[7], st_[12]] + [st_[i] for i in (0, 1, 8, 2, 3, 9, 4, 5, 10, 6, 7, 11, 13, 14, 15)]
        for kk in range(4):
            lwait(tr[2 * kk + 1])
            f = vr(F + 4 * kk, 4)
            for a_, d_ in ((vr(KX + 8 * kk, 4), S), (vr(KX + 8 * kk + 4, 4), S + 4), (f, S + 8)):
                k(f"v_mfma_f32_16x16x32_bf16 {vr(d_,4)}, {a_}, {f}, {'0' if kk == 0 else vr(d_,4)}")
                ld(shadow.pop(0))
        assert len(vlist) <= 3
        while vlist:
            vs(1)
            if len(shadow) > 2:
                ld(shadow.pop(0))
        self.stamp(3)
        P = T
        t0 = T + 6
        VM, VM1 = T + 6, M + 12
        O = VA; Lr = S + 8
        sub = lambda i: f"v_pk_add_f32 {vr(S+i,2)}, {vr(S+i,2)}, {vr(t0,2)} op_sel_hi:[1,0] neg_lo:[0,1] neg_hi:[0,1]"
        mul = lambda i: f"v_pk_mul_f32 {vr(S+i,2)}, {vr(S+i,2)}, v[0:1] op_sel:[0,1]"
        ex = lambda i: f"v_exp_f32 v{S+i}, v{S+i}"
        sh = lambda: shadow.pop(0) if shadow else ""
        k(f"""v_max3_f32 v{t0}, v{S}, v{S+1}, v{S+2}
              v_max3_f32 v{t0+1}, v{S+3}, v{S+4}, v{S+5}
              v_max3_f32 v{t0}, v{S+6}, v{S+7}, v{t0}
              v_max3_f32 v{t0+1}, v{S+10}, v{S+11}, v{t0+1}
              v_max_f32 v{t0}, v{t0}, v{t0+1}
              v_max_f32 v{t0+1}, v{t0}, v{t0+1}
              {mul(10)}
              {mul(0)}
              v_permlane16_swap_b32 v{t0}, v{t0+1}
              v_max_f32 v{t0}, v{t0}, v{t0+1}
              v_max_f32 v{t0+1}, v{t0}, v{t0+1}
              {mul(2)}
              {mul(4)}
              v_permlane32_swap_b32 v{t0}, v{t0+1}
              v_max_f32 v{t0}, v{t0}, v{t0+1}
              v_mul_f32 v{t0}, v1, v{t0}
              {mul(6)}
              {sub(10)}
              v_pk_add_f32 {vr(VA,2)}, {vr(VA,2)}, {vr(VA+2,2)}
              v_pk_add_f32 {vr(VA+4,2)}, {vr(VA+4,2)}, {vr(VA+6,2)}
              {sub(0)}
              {sub(2)}
              {sub(4)}
              {sub(6)}
              {ex(10)}
              {ex(11)}
              v_cvt_pk_bf16_f32 v{VM}, v{VA}, v{VA+1}
              v_cvt_pk_bf16_f32 v{P+4}, v{S+10}, v{S+11}
              v_cvt_pk_bf16_f32 v{VM+1}, v{VA+4}, v{VA+5}
              v_cvt_pk_bf16_f32 v{VM1}, v{VA+4}, v{VA+5}
              v_mfma_f32_16x16x16_bf16 {vr(Lr,4)}, {vr(ONES,2)}, {vr(P+4,2)}, 0
              {sh()}
              {ex(0)}
              v_mfma_f32_16x16x16_bf16 {vr(O,4)}, {vr(VM,2)}, {vr(P+4,2)}, 0
              {sh()}
              {ex(1)}
              v_mfma_f32_16x16x16_bf16 {vr(O+4,4)}, {vr(VM1,2)}, {vr(P+4,2)}, 0
              {sh()}
              {ex(2)}""")
        for i in range(3, 8):
            k(ex(i))
            if i & 1:
                k(f"v_cvt_pk_bf16_f32 v{P+(i>>1)-1}, v{S+i-3}, v{S+i-2}")
        k(f"v_cvt_pk_bf16_f32 v{P+3}, v{S+6}, v{S+7}")
        for nm in opt.get("fw", ()):
            k(f"s_waitcnt vmcnt({nm})")
            self.stamp("f%d" % nm)
        self.stamp(4)
        k(f"""s_add_u32 s{sPG}, s{sPG}, 8192
              s_add_u32 s{S_SEG}, s{S_SEG}, 1
              v_mfma_f32_16x16x32_bf16 {vr(Lr,4)}, {vr(ONES,4)}, {vr(P,4)}, {vr(Lr,4)}
              {sh()}
              v_mfma_f32_16x16x32_bf16 {vr(O,4)}, {vr(VX,4)}, {vr(P,4)}, {vr(O,4)}
              ds_read_b128 {vr(VX,4)}, v{WOB} offset:{16*1024}
              v_mfma_f32_16x16x32_bf16 {vr(O+4,4)}, {vr(VX+4,4)}, {vr(P,4)}, {vr(O+4,4)}
              ds_read_b128 {vr(VX+4,4)}, v{WOB} offset:{17*1024}
              v_rcp_f32 v{Lr}, v{Lr}""")
        assert not shadow
        acc = [VA, VA + 4, T, VA]
        k(f"""v_mov_b64 {vr(S,2)}, -1
              v_mov_b64 {vr(S+2,2)}, -1
              s_add_u32 s{sMEM}, s{sPG}, {MEM_OFF[c]}
              s_add_u32 s{sM2}, s{sMEM}, 4096""")
        for e in range(0, 8, 2):
            k(f"v_pk_mul_f32 {vr(O+e,2)}, {vr(O+e,2)}, {vr(Lr,2)} op_sel_hi:[1,0]")
        for r in range(4):
            k(f"v_cvt_pk_bf16_f32 v{T+r}, v{O+r}, v{O+4+r}")
        k(f"ds_write_b128 v{OW}, {vr(T,4)}")
        if not opt.get("rstpos"):
            k(f"""buffer_store_dwordx4 {vr(S,4)}, v{V_L16}, {WS}, s{sRST} offen{self.loc}
                  buffer_store_dwordx4 {vr(S,4)}, v{V_L16}, {WS}, s{sRST} offen offset:1024{self.loc}""")
        zero(VA, 8)
        k("s_waitcnt lgkmcnt(0)")
        k("s_barrier")
        self.stamp(5)
        OA = M
        lq[:] = []
        ord_ = [f"ds_read_b128 {vr(OA+4*kk,4)}, v{OR} offset:{kk*512}" for kk in range(4)]
        for x in ord_:
            ld(x)
        zero(T, 4)
        k(f"""s_add_u32 s{S_T+1}, s{sPC}, {64*KB}
              s_add_u32 s{S_T+2}, s{sPC}, {128*KB}
              s_add_u32 s{S_T+3}, s{sPC}, {192*KB}
              s_add_u32 s{S_T}, s{sKF}, s{sPG}""")
        if c == 1:
            k(f"s_add_u32 s{sMX}, s{sPG}, {MEMX_OFF}")
        alt = opt.get("alt", 0)
        seq = [0, 4, 1, 5, 2, 6, 3, 7] if alt else list(range(8))
        seq += list(range(8, 16))
        where = slots + [VX] + [slots[x] for x in seq[:7]]
        stream = [f"ds_read_b128 {vr(where[i]+4*hf,4)}, v{WOB} offset:{(i*2+hf)*1024}" for i in range(9, 16) for hf in range(2)]
        def wo_out(u):
            a = acc[u]
            return [f"v_cvt_pk_bf16_f32 v{a}, v{a}, v{a+1}", f"v_cvt_pk_bf16_f32 v{a+1}, v{a+2}, v{a+3}",
                    f"buffer_store_dwordx2 {vr(a,2)}, v{PST}, {WS}, s{S_T+u if u else sPC} offen{self.loc}"]
        oth = {}
        if alt:
            acc[3] = M + 24
            o0, o1, o2 = wo_out(0), wo_out(1), wo_out(2)
            oth = {8: o0[:2], 9: [o0[2], o1[0]], 10: [f"v_mov_b64 {vr(acc[3],2)}, 0", o1[1]], 11: [o1[2], f"v_mov_b64 {vr(acc[3]+2,2)}, 0"],
                   12: pub[:1], 13: o2[:1], 14: o2[1:2], 15: o2[2:]}
            oth[10], oth[11] = [o1[1], f"v_mov_b64 {vr(acc[3],2)}, 0", f"v_mov_b64 {vr(acc[3]+2,2)}, 0"], [o1[2], pub[1]]
            npop = opt.get("npop", {0: 1, 1: 1, 2: 1, 3: 2, 4: 1, 5: 2, 6: 1, 7: 2, 8: 1, 10: 1, 12: 1})
        else:
            for u in range(3):
                o_ = wo_out(u)
                oth[4 * u + 5] = o_[:1]
                oth[4 * u + 6] = o_[1:]
            oth[7] = [f"v_mov_b64 {vr(VA,2)}, 0"]
            oth[8] = [f"v_mov_b64 {vr(VA+2,2)}, 0"]
            oth[11] = pub[:1]
            oth[12] = pub[1:2]
            npop = {i: 2 if i in (8, 10) else 1 for i in range(12)}
        tail_ld = {13: pub[2], 14: pub[3]}
        todo = list(stream)
        for i, j_ in enumerate(seq):
            if j_ < 4:
                lwait(ord_[j_])
            if i >= 9:
                lwait(stream[2 * (i - 9) + 1])
            k(f"v_smfmac_f32_16x16x64_bf16 {vr(acc[j_>>2],4)}, {vr(OA+4*(j_&3),4)}, {vr(where[j_],8)}, v{IDX2}")
            self.stamp("o%d" % i)
            for _ in range(npop.get(i, 0)):
                assert (14 - len(todo)) // 2 <= i
                ld(todo.pop(0))
            if i in tail_ld:
                ld(tail_ld[i])
            for x in oth.get(i, []):
                k(x)
        assert not todo
        zero(VA + 4, 4)
        k(f"s_xor_b32 s{sPC}, s{sPC}, {256*KB}")
        for x in pub[4:8] + wo_out(3) + ["s_waitcnt lgkmcnt(0)", f"s_buffer_load_dword s{sOK2}, {WS}, s{S_T}"]:
            k(x)
        self.stamp(6)
        RS = (M + 8, M + 20); RA = M + 4; RT = M + 28
        def rloads(R):
            for i in range(2):
                k(f"buffer_load_dwordx4 {vr(R+4*i,4)}, v{V_L16}, {WS}, s{sRD} offen offset:{i*1024} sc1")
        def reduce(R, fill=()):
            k(f"s_waitcnt vmcnt({3 if opt.get('two', 1) else 1})")
            self.stamp("r2")
            k(f"v_mfma_f32_16x16x32_bf16 {vr(RA,4)}, {vr(SEL,4)}, {vr(R,4)}, 0")
            k(f"s_waitcnt vmcnt({2 if opt.get('two', 1) else 0})")
            k(f"v_mfma_f32_16x16x32_bf16 {vr(RA,4)}, {vr(SEL,4)}, {vr(R+4,4)}, {vr(RA,4)}")
            for x in fill:
                k(x)
            k(f"""v_cmp_u_f32 vcc, v{RA}, v{RA}
                  v_add_f32_dpp v{RT}, v{RA}, v{RA} row_ror:8 row_mask:0xf bank_mask:0x3
                  v_add_f32_dpp v{RT+1}, v{RA+1}, v{RA+1} row_ror:8 row_mask:0xf bank_mask:0x3
                  v_add_f32_dpp v{RT}, v{RA+2}, v{RA+2} row_ror:8 row_mask:0xf bank_mask:0xc
                  v_add_f32_dpp v{RT+1}, v{RA+3}, v{RA+3} row_ror:8 row_mask:0xf bank_mask:0xc
                  v_add_f32_dpp v{RT}, v{RT}, v{RT} row_shl:4 row_mask:0xf bank_mask:0x5
                  v_add_f32_dpp v{RT+1}, v{RT+1}, v{RT+1} row_shl:4 row_mask:0xf bank_mask:0x5""")
        kvr = [f"ds_read_b128 {vr(KX+4*i,4)}, v{OB} offset:{((i&1)*4+(i>>1))*1024}" for i in range(8)]
        kvr += [f"ds_read_b128 {vr(VX+4*t,4)}, v{CK} offset:{L_VX-L_KX+t*1024}" for t in range(2)]
        work = pub[9:13] + [f"v_mov_b64 {vr(QK+i,2)}, 0" for i in range(0, 20, 2)] \
            + [f"v_add_u32 v{OB}, {L_KX}, v{V_L16}", f"v_add_u32 v{CK}, s{sW2}, v{OB}"]
        two = opt.get("two", 1)
        nw = opt.get("nw", 4)
        for x in work[:nw]:
            k(x)
        RG = k.newlabel("L_crg")
        e0, e1, e2 = opt.get("ea", (3, 1, 0))
        k(f"""s_cmp_lt_u32 s{S_W}, 2
              s_waitcnt vmcnt({e0})
              s_cbranch_scc1 {RG}
              s_cmp_eq_u32 s{S_W}, 2
              s_waitcnt vmcnt({e1})
              s_cbranch_scc1 {RG}
              s_waitcnt vmcnt({e2})""")
        k.label(RG)
        self.stamp("ea")
        rloads(RS[0])
        for x in work[nw:]:
            k(x)
        xaddr()
        blate = opt.get("blate", 1)
        if not blate:
            k("s_barrier")
        kp = opt.get("kvpos", 0)
        for i, x in enumerate(kvr[:kp]):
            if two and i == two:
                rloads(RS[1])
            k(x)
        if two:
            if two > 1:
                k(f"s_sleep {two - 1}")
            rloads(RS[1])
        k(f"""s_cmp_ge_u32 s{S_SEG}, 63
              s_cselect_b32 s{sOK}, 0, 1""")
        if c == 2:
            k(f"""v_readlane_b32 s{S_T}, v{STS}, 5
                  v_readlane_b32 s{sJ}, v{STS}, 4
                  v_add_u32 v{STS}, -1, v{STS}
                  v_cmp_le_u32 vcc, s{sMK}, v{STS}
                  s_cmp_gt_u32 s{S_SEG}, {63 - LOOK}
                  s_cselect_b32 s{sREC}, 0, vcc_hi
                  s_cmp_gt_u32 s{sJ}, s{sMK}
                  s_cselect_b32 s{sREC}, 1, s{sREC}
                  s_cmp_lg_u32 s{sREC}, 0
                  s_cselect_b32 s{sOK}, 2, s{sOK}
                  s_cmp_gt_u32 s{S_T}, s{sMK}
                  s_cbranch_scc1 {LEAD}""")
            k.label(LEADB)
        k(f"""s_cmp_eq_u32 s{S_W}, 0
              s_cselect_b32 s{sOK}, s{sOK}, 0""")
        OKR = k.newlabel("L_cok")
        reduce(RS[0])
        k(f"s_cbranch_vccnz {RP}")
        k.label(OKR)
        k(f"""v_cvt_pk_bf16_f32 v{RT+2}, v{RT}, v{RT+1}
              buffer_store_dword v{RT+2}, v{MST}, {WS}, s{sMEM} offen{self.loc}
              s_mov_b32 s{sRST}, s{sRD}
              s_xor_b32 s{sRD}, s{sRD}, {256*KB}""")
        self.stamp(7)
        if blate:
            k("s_barrier")
        for i, x in enumerate(kvr):
            if i in mpos:
                k(mload(0))
            k(x)
        if opt.get("mack"):
            k(f"s_waitcnt vmcnt({2 if pipe else 0})")
        if self.stamps > 1:
            NX = k.newlabel("L_cnx")
            k(f"""s_and_b32 s{S_T}, s{S_SEG}, 7
                  s_cmp_lg_u32 s{S_T}, 7
                  s_cbranch_scc1 {NX}""")
            if c == opt.get("stc", 0):
                self.dump_stamps(8, sFAIL, M + 4)
            k.label(NX)
        if self.stamps:
            NE = k.newlabel("L_cne")
            k(f"""s_and_b32 s{S_T}, s{S_SEG}, 7
                  s_cmp_lg_u32 s{S_T}, 1
                  s_cbranch_scc1 {NE}""")
            self.ev(50 + c, va=M + 4)
            self.ev(56 + c, va=M + 4, clk="s_memtime")
            k.label(NE)
        k(f"s_branch {LOOP}")
        for hf, lab, back in ((1, PB, BACK),):
            k.label(lab)
            k(mload(hf))
            self.spend(1 if hf else 0x10000, sFAIL)
            k("s_waitcnt vmcnt(0)")
            for x in chk(hf):
                k(x)
            k(f"""s_cbranch_vccnz {lab}
                  {mwrite(1)}
                  s_branch {back}""")
        k.label(RP)
        st_, self.stamps = self.stamps, min(self.stamps, 1)
        for i in (0, 1) if two else (0,):
            rloads(RS[i])
            self.spend(0x100, sFAIL)
            reduce(RS[1 - i if two else 0])
            k(f"s_cbranch_vccz {OKR}")
        k(f"s_branch {RP}")
        self.stamps = st_
        k.label(KVW)
        if c == 2:
            k(f"""s_cmp_eq_u32 s{sREC}, 0
                  s_cbranch_scc1 {JW}
                  s_cmp_gt_u32 s{sJ}, s{sMK}
                  s_cbranch_scc1 {JS}
                  s_add_u32 s{sSCN}, s{S_SEG}, {LOOK}""")
            keys_wait(sSCN, M + 20)
            k(f"""v_cmp_lt_u32 vcc, s{sMK}, v{M+20}
                  s_cbranch_vccz {JW}""")
            self.wmax_u32(M + 20, M + 21)
            k(f"v_readfirstlane_b32 s{sJ}, v{M+20}")
            k.label(JS)
            k(f"""s_mov_b32 s{sMK}, s{sJ}
                  s_andn2_b32 s{sSCN}, 0x7ff, s{sJ}
                  s_lshr_b32 s{sSCN}, s{sSCN}, 5
                  s_add_u32 s{sSCN}, s{sSCN}, 1
                  s_min_u32 s{sSCN}, s{sSCN}, 63
                  ds_write_b32 v{OR}, v{IDX} offset:{WO_}
                  s_waitcnt lgkmcnt(0)
                  s_branch {KVB}""")
            k.label(LEAD)
            k(f"""v_mov_b32 v{STS}, s{S_T}
                  s_add_u32 s{S_T}, s{sPG}, {PG_OFF + 8192 + F_J}
                  buffer_store_dword v{STS}, off, {WS}, s{S_T}{self.loc}
                  s_waitcnt vmcnt(0)
                  s_branch {LEADB}""")
            k.label(JW)
            k(f"""s_cmp_lg_u32 s{sOK2}, 0
                  s_cbranch_scc1 {KVB}""")
        k(f"s_add_u32 s{S_T+3}, s{sKF}, s{sPG}")
        self.ev(44, va=M + 20)
        self.word_wait(S_T + 3, sOK, va=STS, sleep=opt.get("slk", 1))
        self.ev(45, va=M + 20)
        k(f"s_branch {KVB}")
        if c == 2:
            k.label(JUMP)
            k(f"""s_waitcnt vmcnt(0) lgkmcnt(0)
                  s_barrier
                  s_branch {START}""")
        k.label(END)
        for x in vend[2:]:
            k(sv(*x))
        k(f"""s_waitcnt lgkmcnt(0)
              v_pk_add_f32 {vr(VA,2)}, {vr(VA,2)}, {vr(VA+2,2)}
              v_pk_add_f32 {vr(VA+4,2)}, {vr(VA+4,2)}, {vr(VA+6,2)}
              v_cvt_pk_bf16_f32 v{VM}, v{VA}, v{VA+1}
              v_cvt_pk_bf16_f32 v{VM+1}, v{VA+4}, v{VA+5}""")
        for x in pub:
            k(x or "s_waitcnt lgkmcnt(0)")
        k(f"s_mov_b32 s{S_SEG}, 64")
        self.ev(50 + c, va=M + 4)
        k("s_waitcnt vmcnt(0)")
        k("s_barrier")
        k.fence()
        k(f"v_lshrrev_b32 v{V_LANE}, 4, v{V_L16}")

    def dump_stamps(self, n, extra=None, va=36):
        k = self.k
        k(f"""s_waitcnt lgkmcnt(0)
              s_lshl_b32 s{S_T}, s{S_SEG}, 5
              s_add_u32 s{S_T}, s{S_T}, s{S_H}
              s_lshl_b32 s{S_T}, s{S_T}, 2
              s_add_u32 s{S_T}, s{S_T}, s{S_W}
              s_lshl_b32 s{S_T}, s{S_T}, 6
              s_add_u32 s{S_T}, s{S_T}, {STAMP_OFF}
              v_mov_b32 v{va}, 0""")
        for i in range(n):
            k(f"v_writelane_b32 v{va}, s{84+2*i}, {i}")
        if extra is not None:
            k(f"v_writelane_b32 v{va}, s{extra}, 8")
            k(f"s_mov_b32 s{extra}, 0")
        k(f"""v_lshrrev_b32 v{va+1}, 2, v{V_L16}
              s_mov_b64 exec, 0xffff
              buffer_store_dword v{va}, v{va+1}, {WS}, s{S_T} offen
              s_mov_b64 exec, -1""")

    def proj_consts(self):
        k = self.k
        self.THR, self.TOB, self.TWO, self.THD, self.TRW, self.TRL = 4, 17, 18, 20, 21, 22
        T = 120
        k(f"""v_and_b32 v{T}, 15, v{V_LANE}
              v_lshrrev_b32 v{T+1}, 4, v{V_LANE}
              v_mov_b32 v{self.TOB}, 1
              s_lshl_b32 s{S_T}, s{S_W}, 15
              v_add_u32 v{self.TWO}, s{S_T}, v{V_L16}
              s_lshl_b32 s{S_T}, s{S_W}, 2
              v_add_u32 v{T+5}, s{S_T}, v{T+1}            ; row 4w+g
              v_xor_b32 v{T+6}, v{T+5}, v{T}
              v_lshlrev_b32 v{T+6}, 4, v{T+6}
              v_lshl_add_u32 v{self.THD}, v{T+5}, 10, v{T+6}""")
        for kq in range(4):
            k(f"""v_add_u32 v{T+5}, {4*kq}, v{T+1}
                  v_xor_b32 v{T+5}, v{T+5}, v{T}
                  v_lshlrev_b32 v{T+5}, 4, v{T+5}
                  v_lshl_add_u32 v{T+5}, v{T}, 8, v{T+5}
                  v_add_u32 v{self.THR+kq}, {self.LH}, v{T+5}""")
        k(f"""v_lshlrev_b32 v{self.TRW}, 5, v{T}
              v_and_b32 v{T+5}, 1, v{T+1}
              v_lshl_add_u32 v{self.TRW}, v{T+5}, 4, v{self.TRW}
              s_lshl_b32 s{S_T}, s{S_W}, 9
              v_lshrrev_b32 v{T+5}, 1, v{T+1}
              v_lshl_add_u32 v{self.TRW}, v{T+5}, 11, v{self.TRW}
              s_add_u32 s{S_T}, s{S_T}, {L_ROW}
              v_add_u32 v{self.TRW}, s{S_T}, v{self.TRW}
              v_lshlrev_b32 v{self.TRL}, 4, v{T}
              v_lshl_add_u32 v{self.TRL}, v{T+1}, 10, v{self.TRL}
              s_lshl_b32 s{S_T}, s{S_W}, 8
              v_add_u32 v{self.TRL}, s{S_T}, v{self.TRL}""")

    def flag_set(self, s_off, loc, keep=0):
        self.k(f"""s_waitcnt vmcnt({keep})
                   s_barrier""")
        self.flag_store(s_off, loc)

    def flags_wait32(self, s_off, one=False, sleep=0):
        k = self.k
        L, D, F = k.newlabel("L_fw"), k.newlabel("L_fd"), k.newlabel("L_ff")
        if one:
            k(f"""s_cmp_lg_u32 s{S_W}, 0
                  s_cbranch_scc1 {D}""")
        k(f"""v_and_b32 v124, 31, v{V_LANE}
              v_lshlrev_b32 v124, 2, v124""")
        if sleep:
            k(f"s_branch {F}")
        k.label(L)
        if sleep:
            k(f"s_sleep {sleep}")
            k.label(F)
        k(f"buffer_load_dword v125, v124, {WS}, s{s_off} offen sc1")
        self.spend()
        k(f"""s_waitcnt vmcnt(0)
              v_cmp_eq_u32 vcc, 0, v125
              s_cbranch_vccnz {L}""")
        if one:
            k.label(D)
            k("s_barrier")

    def reduce32(self, s_base, natural, o=0):
        k = self.k
        D = 24 + o; SEL = 56 + o; A = 60 + o
        for i in range(8):
            k(f"s_add_u32 s{S_T+7}, s{s_base}, {i*4096}")
            k(f"buffer_load_dwordx4 {vr(D+4*i,4)}, v{self.TRL}, {WS}, s{S_T+7} offen sc1")
        self.make_sel(SEL, 64 + o)
        for i in range(8):
            k(f"s_waitcnt vmcnt({7-i})")
            k(f"v_mfma_f32_16x16x32_bf16 {vr(A,4)}, {vr(SEL,4)}, {vr(D+4*i,4)}, {'0' if i == 0 else vr(A,4)}")
        if natural:
            k(f"ds_write_b128 v{self.TRW}, {vr(A,4)}")
        else:
            k(f"ds_write2_b64 v{self.TRW}, {vr(A,2)}, {vr(A+2,2)} offset0:0 offset1:64")
        k(f"""s_waitcnt lgkmcnt(0)
              s_barrier""")

    def one_lane_store(self, v, s_off, fl):
        self.k(f"""s_mov_b64 exec, 1
                   buffer_store_dword v{v}, off, {WS}, s{s_off}{fl}
                   s_mov_b64 exec, -1""")

    def wmax_u32(self, x, t):
        k = self.k
        for r in (8, 4, 2, 1):
            k(f"v_max_u32_dpp v{x}, v{x}, v{x} row_ror:{r} row_mask:0xf bank_mask:0xf")
        k(f"""v_mov_b32 v{t}, v{x}
              v_permlane16_swap_b32 v{x}, v{t}
              v_max_u32 v{x}, v{x}, v{t}
              v_mov_b32 v{t}, v{x}
              v_permlane32_swap_b32 v{x}, v{t}
              v_max_u32 v{x}, v{x}, v{t}""")

    def load_gate_up(self):
        k = self.k
        k(f"""v_and_b32 v33, 15, v{V_LANE}
              v_lshrrev_b32 v34, 4, v{V_LANE}
              s_min_u32 s{S_T+4}, s{S_H}, 27
              s_lshl_b32 s{S_T+4}, s{S_T+4}, 7            ; 64 cols * 2B
              s_mul_i32 s{S_T+3}, s{S_W}, {128*3584}
              s_add_u32 s{S_T+4}, s{S_T+4}, s{S_T+3}
              v_mul_u32_u24 v36, {32*3584}, v34
              v_and_b32 v35, 7, v33
              v_lshl_add_u32 v36, v35, 4, v36
              v_add_u32 v36, s{S_T+4}, v36                ; byte offset inside gate / up
              v_cmp_gt_u32 vcc, 8, v33
              v_mov_b32 v38, s{P_WU}
              v_mov_b32 v39, s{P_WU+1}
              v_mov_b32 v40, s{P_WG}
              v_mov_b32 v41, s{P_WG+1}
              v_cndmask_b32 v38, v38, v40, vcc
              v_cndmask_b32 v39, v39, v41, vcc
              v_add_co_u32 v38, vcc, v38, v36
              v_addc_co_u32 v39, vcc, 0, v39, vcc
              s_lshl_b32 s{S_T}, s{S_W}, 15
              v_add_u32 v37, s{S_T}, v{V_L16}""")
        for half in range(2):
            for i in range(16):
                k(f"global_load_dwordx4 {vr(44+4*i,4)}, v[38:39], off")
                k(f"v_add_co_u32 v38, vcc, 3584, v38")
                k(f"v_addc_co_u32 v39, vcc, 0, v39, vcc")
            for i in range(16):
                k(f"s_waitcnt vmcnt({15-i})")
                k(f"ds_write_b128 v37, {vr(44+4*i,4)} offset:{(16*half+i)*1024}")
                if i % 8 == 7:
                    k("s_waitcnt lgkmcnt(0)")

    def moe_pre(self, layer):
        k = self.k
        LD, AF, MK = 24, 124, 12
        A1, A2, A3 = 9, 10, 11
        k(f"""v_and_b32 v{A1}, 15, v{V_LANE}
              v_lshrrev_b32 v{A2}, 4, v{V_LANE}
              v_and_b32 v{AF}, 1, v{V_LANE}
              v_lshlrev_b32 v{AF}, 4, v{AF}
              v_mov_b32 v{AF+1}, 0xffff
              v_lshlrev_b32 v{AF+1}, v{AF}, v{AF+1}
              v_lshrrev_b32 v{AF}, 2, v{A1}
              v_cmp_eq_u32 vcc, 0, v{AF}
              v_cndmask_b32 v{MK}, 0, v{AF+1}, vcc
              v_cmp_eq_u32 vcc, 1, v{AF}
              v_cndmask_b32 v{MK+1}, 0, v{AF+1}, vcc
              v_and_b32 v{AF}, 2, v{V_LANE}
              v_cmp_eq_u32 vcc, 0, v{AF}
              v_mov_b32 v{MK+2}, 0xeeee
              v_mov_b32 v{AF}, 0x4444
              v_cndmask_b32 v{MK+2}, v{MK+2}, v{AF}, vcc
              v_lshlrev_b32 v{A3}, 14, v{A2}
              v_lshl_add_u32 v{A3}, v{A1}, 4, v{A3}
              s_lshl_b32 s{S_T+9}, s{S_SEG}, 15
              s_add_u32 s{S_T+9}, s{S_T+9}, {MOE_OFF}
              s_lshl_b32 s{S_T+6}, s{S_H}, 10
              s_add_u32 s{S_T+6}, s{S_T+6}, s{S_T+9}
              s_lshl_b32 s{S_T+7}, s{S_H}, 16
              s_lshl_b32 s{S_T+4}, s{S_W}, 8
              s_add_u32 s{S_T+7}, s{S_T+7}, s{S_T+4}""")
        self.srd(P_WD, 1792 * 1024)
        out = []
        for i in range(16):
            out.append((f"s_add_u32 s{S_T+7}, s{S_T+7}, 4096\n" if i % 4 == 0 and i else "")
                       + f"buffer_load_dwordx4 {vr(LD+i*4,4)}, v{A3}, {SA}, s{S_T+7} offen offset:{(i%4)*1024}")
        if not self.loc:
            out.append(f"buffer_load_dword v{MK+3}, v{V_L16}, {WS}, s{S_T+6} offen")
        if layer:
            for x in out:
                k(x)
            for i in range(32):
                k(f"ds_read_b128 {ar(4*i,4)}, v{self.TWO} offset:{i*1024}")
        return out

    def moe(self, layer, sKEY):
        k = self.k
        sROW = S_T + 8
        LD = 24
        X, YP, TM = 96, 104, 108
        XB, AF, ACC, MK, G = 88, 124, 116, 12, 108
        A0, A1, A2 = 8, 9, 10
        k(f"""s_andn2_b32 s{sROW}, 0x7ff, s{sKEY}
              s_lshl_b32 s{S_T}, s{sROW}, 10
              s_add_u32 s{S_T+2}, s{S_T}, {X1_OFF[layer]}
              buffer_load_dwordx4 {vr(XB,4)}, v{V_L16}, {WS}, s{S_T+2} offen sc1""")
        dl = [] if layer else self.moe_pre(0)
        TAB = L_MOE
        k(f"""s_lshl_b32 s{S_T+1}, s{S_W}, 11
              s_add_u32 s{S_T+1}, s{S_T+1}, {TAB}
              v_add_u32 v{A0}, s{S_T+1}, v{V_L16}
              v_and_b32 v2, 1, v{A2}
              v_lshrrev_b32 v3, 1, v{A2}
              v_lshlrev_b32 v2, 7, v2
              v_lshl_add_u32 v2, v3, 10, v2
              s_lshl_b32 s{S_T+3}, s{S_W}, 8
              s_add_u32 s{S_T+3}, s{S_T+1}, s{S_T+3}
              v_add_u32 v2, s{S_T+3}, v2                    ; rows 128w + 64(g&1) + (g>>1) + 2n
              s_mov_b32 s{S_T+4}, 0x01000100
              s_mov_b32 s{S_T+5}, 0x03020302
              s_waitcnt vmcnt(0)""")
        if layer == 0:
            XL, XD = k.newlabel("L_mx"), k.newlabel("L_mxd")
            k.label(XL)
            k(f"""v_max3_u32 v{AF}, v{XB}, v{XB+1}, v{XB+2}
                  v_max_u32 v{AF}, v{XB+3}, v{AF}
                  v_cmp_eq_u32 vcc, -1, v{AF}
                  s_cbranch_vccz {XD}
                  buffer_load_dwordx4 {vr(XB,4)}, v{V_L16}, {WS}, s{S_T+2} offen sc1""")
            self.spend()
            k(f"""s_waitcnt vmcnt(0)
                  s_branch {XL}""")
            k.label(XD)
            for x in dl[:4]:
                k(x)
            dl = dl[4:]
        self.mark(44)
        self.unpack8(X, XB)
        self.layernorm(X, YP, TM)
        for q in range(4):
            k(f"v_perm_b32 v{XB+q}, v{YP+q}, v{YP+q}, s{S_T+4}")
        k(f"ds_write_b128 v{A0}, {vr(XB,4)}")
        for q in range(4):
            k(f"v_perm_b32 v{XB+4+q}, v{YP+q}, v{YP+q}, s{S_T+5}")
        k(f"""ds_write_b128 v{A0}, {vr(XB+4,4)} offset:1024
              s_mov_b32 s{S_T+2}, s{S_T+1}""")
        def diag(af, t0, t1):
            return [f"v_and_b32 v{af}, v{MK}, v{t0}", f"v_and_b32 v{af+1}, v{MK+1}, v{t0}",
                    f"v_and_b32 v{af+2}, v{MK}, v{t1}", f"v_and_b32 v{af+3}, v{MK+1}, v{t1}"]
        self.mark(45)
        if layer:
            TB_ = 128
            for b in range(4):
                k(f"ds_read_b128 {vr(TB_+4*b,4)}, v2 offset:{16*b}")
                k(f"ds_read_b128 {vr(TB_+16+4*b,4)}, v2 offset:{64+16*b}")
            k(f"""v_mov_b64 {vr(ACC,2)}, 0
                  v_mov_b64 {vr(ACC+2,2)}, 0
                  s_waitcnt lgkmcnt(6)""")
            for x in diag(120, TB_, TB_ + 16):
                k(x)
            for n in range(16):
                if n + 1 < 16:
                    if (n + 1) % 4 == 0:
                        k(f"s_waitcnt lgkmcnt({6 - 2*((n+1)//4)})")
                    nx = diag(120 + 4 * ((n + 1) & 1), TB_ + n + 1, TB_ + 17 + n)
                    k(nx[0]); k(nx[1])
                k(f"v_smfmac_f32_16x16x64_bf16 {vr(ACC,4)}, {vr(120+4*(n&1),4)}, {ar(8*n,8)}, v{MK+2}")
                if n + 1 < 16:
                    k(nx[2]); k(nx[3])
        else:
            ring = [G, LD + 40, LD + 48, LD + 56]
            gread = lambda n: [f"ds_read_b128 {vr(ring[n&3]+4*hf,4)}, v{self.TWO} offset:{(2*n+hf)*1024}" for hf in range(2)]
            tread = lambda b: [f"ds_read_b128 {vr(XB,4)}, v2 offset:{16*b}", f"ds_read_b128 {vr(XB+4,4)}, v2 offset:{64+16*b}"]
            lq = []
            def ld(xs):
                for x in xs:
                    k(x); lq.append(x)
            def lw(x):
                k(f"s_waitcnt lgkmcnt({min(15, len(lq) - 1 - max(i for i, y in enumerate(lq) if y == x))})")
            ld(tread(0) + gread(0) + gread(1) + gread(2) + gread(3))
            k(f"""v_mov_b64 {vr(ACC,2)}, 0
                  v_mov_b64 {vr(ACC+2,2)}, 0""")
            early, late = dl[:6] + dl[12:], dl[6:12]
            for n in range(16):
                if n % 4 == 0:
                    lw(tread(n // 4)[1])
                for x in diag(120 + 4 * (n & 1), XB + n % 4, XB + 4 + n % 4):
                    k(x)
                if n % 4 == 3 and n < 15:
                    ld(tread(n // 4 + 1))
                lw(gread(n)[1])
                k(f"v_smfmac_f32_16x16x64_bf16 {vr(ACC,4)}, {vr(120+4*(n&1),4)}, {vr(ring[n&3],8)}, v{MK+2}")
                if n + 4 < 16:
                    ld(gread(n + 4))
                if early:
                    k(early.pop(0))
                if n >= 13:
                    k(late.pop(0)); k(late.pop(0))
            assert not early and not late
        self.mark(46)
        RED = L_MOE + 8 * KB
        k(f"""v_lshlrev_b32 v{A0}, 5, v{A1}
              v_and_b32 v{AF}, 1, v{A2}
              v_lshl_add_u32 v{A0}, v{AF}, 4, v{A0}
              v_lshrrev_b32 v{AF}, 1, v{A2}
              v_lshl_add_u32 v{A0}, v{AF}, 11, v{A0}
              s_lshl_b32 s{S_T+4}, s{S_W}, 9
              s_add_u32 s{S_T+4}, s{S_T+4}, {RED}
              v_add_u32 v{A0}, s{S_T+4}, v{A0}
              ds_write_b128 v{A0}, {vr(ACC,4)}
              v_lshlrev_b32 v{A0}, 2, v{V_LANE}
              v_add_u32 v{A0}, {RED}, v{A0}
              v_and_b32 v2, 1, v{V_LANE}
              v_lshrrev_b32 v3, 1, v{V_LANE}
              v_lshlrev_b32 v3, 2, v3
              v_lshl_add_u32 v2, v2, 7, v3
              v_add_u32 v2, s{S_T+2}, v2
              v_lshlrev_b32 v3, 6, v{A2}
              v_add_u32 v3, s{S_T+2}, v3                    ; rows 32(g&1) + (g>>1) + 2n
              s_waitcnt lgkmcnt(0)
              s_barrier""")
        for w in range(4):
            k(f"ds_read2st64_b32 {vr(XB+2*w,2)}, v{A0} offset0:{2*w} offset1:{2*w+1}")
        k("s_waitcnt lgkmcnt(0)")
        k(f"""v_pk_add_f32 {vr(XB,2)}, {vr(XB,2)}, {vr(XB+2,2)}
              v_pk_add_f32 {vr(XB+4,2)}, {vr(XB+4,2)}, {vr(XB+6,2)}
              v_pk_add_f32 {vr(XB,2)}, {vr(XB,2)}, {vr(XB+4,2)}""")
        self.round1(XB)
        self.round1(XB + 1)
        k(f"""v_mul_f32 v{XB+2}, {f32(-math.log2(math.e))}, v{XB}
              v_exp_f32 v{XB+2}, v{XB+2}
              v_add_f32 v{XB+2}, 1.0, v{XB+2}
              v_rcp_f32 v{XB+2}, v{XB+2}
              v_mul_f32 v{XB}, v{XB}, v{XB+2}""")
        self.round1(XB)
        k(f"""v_mul_f32 v{XB}, v{XB}, v{XB+1}
              v_cvt_pk_bf16_f32 v{XB}, v{XB}, v{XB}
              ds_write_b32 v2, v{XB}
              ds_read_b128 {vr(XB,4)}, v3
              ds_read_b128 {vr(G,4)}, v3 offset:32
              ds_read_b128 {vr(XB+4,4)}, v3 offset:16
              ds_read_b128 {vr(G+4,4)}, v3 offset:48
              v_mov_b64 {vr(ACC,2)}, 0
              v_mov_b64 {vr(ACC+2,2)}, 0
              s_waitcnt vmcnt(0) lgkmcnt(0)""")
        for x in diag(120, XB, G):
            k(x)
        for n in range(8):
            if n + 1 < 8:
                nx = diag(120 + 4 * ((n + 1) & 1), XB + n + 1, G + n + 1)
                k(nx[0]); k(nx[1])
            k(f"v_smfmac_f32_16x16x64_bf16 {vr(ACC,4)}, {vr(120+4*(n&1),4)}, {vr(LD+8*n,8)}, v{MK+2}")
            if n + 1 < 8:
                k(nx[2]); k(nx[3])
        self.mark(47)
        k(f"""v_lshlrev_b32 v{A0}, 4, v{A1}
              v_and_b32 v{AF}, 1, v{A2}
              v_lshl_add_u32 v{A0}, v{AF}, 3, v{A0}
              v_and_b32 v{AF}, 2, v{A2}
              v_lshl_add_u32 v{A0}, v{AF}, 30, v{A0}
              s_lshl_b32 s{S_T+4}, s{S_W}, 8
              s_add_u32 s{S_T+3}, s{S_T+6}, s{S_T+4}
              v_cvt_pk_bf16_f32 v{XB}, v{ACC}, v{ACC+1}
              v_cvt_pk_bf16_f32 v{XB+1}, v{ACC+2}, v{ACC+3}
              buffer_store_dwordx2 {vr(XB,2)}, v{A0}, {WS}, s{S_T+3} offen{self.loc}""")
        self.page(S_T + 3, F_M)
        self.flag_set(S_T + 3, self.loc)
        D = k.newlabel("L_moed")
        if layer == 1:
            k(f"""s_cmp_lg_u32 s{S_H}, 0
                  s_cbranch_scc1 {D}""")
        self.page(S_T + 3, F_M, head=False)
        self.flags_wait32(S_T + 3)
        self.mark(48)
        o_ = 144 if layer else 0
        self.reduce32(S_T + 9, True, o_)
        self.mark(49)
        k(f"""s_cmp_lg_u32 s{S_W}, 0
              s_cbranch_scc1 {D}""")
        A, PK, Y, TM = 24 + o_, 40 + o_, 48 + o_, 56 + o_
        k(f"""v_lshlrev_b32 v{TM}, 5, v{V_LANE}
              v_add_u32 v{TM}, {L_ROW}, v{TM}
              ds_read_b128 {vr(A,4)}, v{TM}
              ds_read_b128 {vr(A+4,4)}, v{TM} offset:16
              s_and_b32 s{S_T+3}, s{sKEY}, 0xffff0000
              s_xor_b32 s{S_T+4}, s{S_T+3}, 0x80000000
              s_xor_b32 s{S_T+5}, s{S_T+3}, 0xffff0000
              s_cmp_lt_i32 s{S_T+3}, 0
              s_cselect_b32 s{S_T+3}, s{S_T+4}, s{S_T+5}
              v_mov_b32 v{TM}, s{S_T+3}
              v_mul_f32 v{TM}, {f32(-math.log2(math.e))}, v{TM}
              v_exp_f32 v{TM}, v{TM}
              v_add_f32 v{TM}, 1.0, v{TM}
              v_rcp_f32 v{TM}, v{TM}""")
        self.round1(TM)
        self.unpack8(Y, YP)
        k("s_waitcnt lgkmcnt(0)")
        self.pack8(PK, A)
        self.unpack8(A, PK)
        for j in range(0, 8, 2):
            k(f"v_pk_mul_f32 {vr(A+j,2)}, {vr(A+j,2)}, {vr(TM,2)} op_sel_hi:[1,0]")
        self.pack8(PK, A)
        self.unpack8(A, PK)
        self.add8(A, Y)
        self.pack8(PK, A)
        self.unpack8(A, PK)
        self.add8(X, A)
        self.pack8(160 if layer else 80, X)
        if layer == 0:
            self.unpack8(X, 80)
            self.layernorm(X, 84, TM + 2)
            k(f"""s_lshl_b32 s{S_T+2}, s{S_SEG}, 10
                  s_add_u32 s{S_T+2}, s{S_T+2}, {X2P_OFF}
                  s_add_u32 s{S_T+3}, s{S_T+2}, {HPS_OFF - X2P_OFF}
                  s_cmp_eq_u32 s{S_H}, 0
                  s_cselect_b32 s{S_T+3}, s{S_T+3}, 0x80000000
                  s_add_u32 s{S_T+1}, s{S_T}, {HP_OFF}
                  buffer_store_dwordx4 v[84:87], v{V_L16}, {WS}, s{S_T+3} offen sc1
                  buffer_store_dwordx4 v[80:83], v{V_L16}, {WS}, s{S_T+2} offen sc1
                  buffer_store_dwordx4 v[84:87], v{V_L16}, {WS}, s{S_T+1} offen sc1""")
        k.label(D)

    def a_plan(self):
        o = self.opt
        n1, n2, up = o.get("n1", 3), o.get("n2", 5), o.get("up", 6)
        p0 = self.P0 = o.get("p0", 14)
        own = [list(range(0, p0, 2)), list(range(1, p0, 2)), list(range(p0 + n1 + n2, p0 + n1 + n2 + up))]
        pat = o.get("pat", (0, 2, 1, 2))
        for i, x in enumerate(range(p0 + n1 + n2 + up, 64)):
            own[pat[i % len(pat)]].append(x)
        return n1, n2, up, [sum(1 << x for x in w) for w in own]

    def pop_next(self, dst, mask):
        self.k(f"""s_ff1_i32_b64 s{dst}, {sr(mask,2)}
                   s_bitset0_b64 {sr(mask,2)}, s{dst}
                   s_min_u32 s{dst}, s{dst}, 127""")

    def spec(self):
        o = self.opt
        return o.get("delta", 10), o.get("th", 28), o.get("kb", 5)

    def words_wait64(self, s_off, t, sleep):
        k = self.k
        L = k.newlabel("L_fp")
        k.label(L)
        k(f"""s_sleep {sleep}
              buffer_load_dword v{t+1}, v{t}, {WS}, s{s_off} offen sc1""")
        self.spend()
        k(f"""s_waitcnt vmcnt(0)
              v_cmp_eq_u32 vcc, 0, v{t+1}
              s_cbranch_vccnz {L}""")

    def todo_mask(self, sTODO, t):
        self.k(f"""v_cmp_le_u32 vcc, s{S_T+5}, v{V_LANE}
                   v_cndmask_b32 v{t}, 1, 2, vcc
                   v_cmp_ne_u32 {sr(sTODO,2)}, v{t}, v{t+1}""")

    def role_moe(self):
        k = self.k
        o = self.opt
        sMAX, sKEY = 54, 55
        self.proj_consts()
        _, _, UP, own = self.a_plan()
        JD, MINL, MAXL = o.get("jd", 2), o.get("minl", 20), o.get("maxl", 30)
        sNA, sSC = S_A, S_B
        sH, sN, sF, sDEBT, sOWN, sKA, sGR = S_T + 12, S_T + 14, S_T + 16, S_T + 17, S_T + 18, S_T + 20, S_T + 21
        sR, sPT, sALT, sFR, sPF = 84, 86, 87, 18, 19
        t = 20
        sQ = 22
        PR, NR, DG = k.newlabel("L_mp"), k.newlabel("L_mr"), k.newlabel("L_mg")
        L, AL, AL2, NF, NJ, FN, T1P, LK, P_, BC, WR_, L2, GOT, EN = (k.newlabel("L_mo") for _ in range(14))
        k(f"""s_mov_b32 s{sMAX}, 0
              s_mov_b32 s{sSC}, 0
              s_mov_b32 s{S_CNT}, {UP}
              s_mov_b32 s{sF}, 0x80000000
              s_mov_b32 s{sDEBT}, 0
              s_mov_b32 s{sGR}, -1
              s_mov_b32 s{sPT}, 0
              s_mov_b32 s{sPF}, 0
              s_mov_b32 s{sOWN}, {own[2] & 0xffffffff}
              s_mov_b32 s{sOWN+1}, {own[2] >> 32}
              v_and_b32 v23, 15, v{V_LANE}
              v_lshlrev_b32 v23, 3, v23
              v_lshrrev_b32 v16, 4, v{V_LANE}
              v_lshl_add_u32 v23, v16, 13, v23
              v_mov_b32 v19, {L_MISC}
              v_lshl_add_u32 v16, v16, 2, v19""")
        sBIG = 25
        for x in self.moe_pre(0)[:16]:
            k(x)
        self.srd(P_WR, 1024)
        k(f"""buffer_load_dwordx4 v[88:91], v{V_L16}, {SA}, 0 offen
              s_waitcnt vmcnt(0)""")
        self.unpack8(96, 88)
        k("v_mul_f32 v88, v96, v96")
        for j in range(1, 8):
            k(f"v_fma_f32 v88, v{96+j}, v{96+j}, v88")
        self.wsum(88, 89)
        k(f"""v_sqrt_f32 v88, v88
              v_mul_f32 v88, {f32(o.get("zbig", 2.8))}, v88
              v_readfirstlane_b32 s{sBIG}, v88
              s_bitset1_b32 s{sBIG}, 31""")
        kload = f"buffer_load_dwordx2 v[124:125], v23, {WS}, s{sKA} offen sc1"
        self.pop_next(sNA, sOWN)
        self.t1_src(sN, sNA, 0)
        k.label(AL)
        k(f"""s_cmp_lg_u32 s{sPF}, 0
              s_cbranch_scc1 {AL2}""")
        for x in self.t1_dma(sN, (0, 1, 2)):
            k(x)
        k(f"""s_mov_b32 s{sPF}, 1
              s_waitcnt vmcnt(0)""")
        k.label(AL2)
        k(f"""s_mov_b32 s{S_SEG}, s{sNA}
              s_mov_b64 {sr(sH,2)}, {sr(sN,2)}""")
        self.pop_next(sNA, sOWN)
        self.t1_src(sN, sNA, 0)
        self.page(sKA, F_RKM, seg=sSC, head=False)
        self.t1(0, sH, pre=8, s_flag=sF, nxt=self.t1_dma(sN, (0, 1, 2)) + [kload])
        self.ev(17)
        self.page(sF, F_KV[0])
        k(f"""s_sub_u32 s{S_CNT}, s{S_CNT}, 1
              s_cmp_gt_i32 s{S_CNT}, {o.get("upq", 3)}
              s_cbranch_scc1 {AL2}
              s_cmp_gt_i32 s{S_CNT}, 0
              s_cselect_b32 s{sALT}, 1, 3
              s_mov_b32 s{sFR}, 0
              s_waitcnt vmcnt(7)
              s_branch {LK}""")
        k.label(L)
        k(f"""s_mov_b32 s{sKEY}, s{sQ}
              s_mov_b32 s{sQ}, s{sQ+1}
              s_mov_b32 s{sQ+1}, s{sQ+2}
              s_mov_b32 s{sQ+2}, -1
              v_mov_b32 v3, 0
              s_cmp_lg_u32 s{sKEY}, -1
              s_cbranch_scc1 {PR}
              s_sub_u32 s{S_T}, s{sNA}, s{sSC}
              s_cmp_gt_i32 s{sGR}, 0
              s_cselect_b32 s{S_T+1}, 6, {MINL}
              s_cmp_lg_u32 s{sPT}, 0
              s_cselect_b32 s{S_T+1}, {o.get("minl2", 9)}, s{S_T+1}
              s_cmp_lt_i32 s{S_T}, s{S_T+1}
              s_cbranch_scc1 {AL}
              s_cmp_lt_i32 s{S_T}, {MAXL}
              s_cselect_b32 s{sALT}, s{sFR}, 0
              s_cmp_ge_u32 s{sSC}, {o.get("tnow", 8)}
              s_cselect_b32 s{S_T}, 1, s{sFR}
              s_and_b32 s{S_T}, s{S_T}, s{sPT}
              s_cselect_b32 s{sALT}, 2, s{sALT}
              s_mul_i32 s{S_T}, s{sALT}, s{sFR}
              s_cmp_lg_u32 s{S_T}, 0
              s_cbranch_scc1 {FN}
              s_mov_b32 s{sFR}, 0
              s_lshr_b32 s{S_T}, s{sF}, 31
              s_or_b32 s{S_T}, s{S_T}, s{sALT}
              s_cbranch_scc1 {L2}""")
        self.flag_set(sF, " sc1")
        k(f"s_mov_b32 s{sF}, 0x80000000")
        k.label(L2)
        k(f"""s_cmp_lg_u32 s{S_W}, 0
              s_cbranch_scc1 {BC}""")
        self.page(sKA, F_RKM, seg=sSC, head=False)
        k(f"""s_lshl_b32 s{S_T+1}, s{S_H}, 8
              s_add_u32 s{S_T+1}, s{S_T+1}, s{sSC}
              s_cmp_eq_u32 s{S_T+1}, 63
              s_mov_b32 s{S_T+1}, 0x80000000
              s_cmov_b32 s{S_T+1}, {PG_OFF + 65*8192 + F_DEC}
              v_lshlrev_b32 v2, 2, v{V_LANE}""")
        k.label(P_)
        k(kload)
        k(f"buffer_load_dword v3, v2, {WS}, s{S_T+1} offen sc1")
        self.spend()
        k("s_waitcnt vmcnt(0)")
        k.label(LK)
        k(f"""v_min_u32 v123, v124, v125
              v_max_u32 v125, v124, v125
              v_cmp_eq_u32 vcc, 0, v123
              v_cndmask_b32 v125, v125, -1, vcc
              s_and_b32 s{S_T}, vcc_lo, 0xffff
              s_cbranch_scc0 {GOT}
              s_cmp_lg_u32 s{sALT}, 0
              s_cbranch_scc1 {GOT}
              s_mov_b32 s{sFR}, 1
              s_sleep {o.get("slm", 2)}
              s_branch {P_}""")
        k.label(GOT)
        for r in (8, 4, 2, 1):
            k(f"v_max_u32_dpp v125, v125, v125 row_ror:{r} row_mask:0xf bank_mask:0xf")
        k.label(BC)
        self.spend()
        k(f"""v_mov_b32 v124, s{sFR}
              s_barrier
              s_cmp_lg_u32 s{S_W}, 0
              s_cbranch_scc1 {WR_}
              ds_write_b32 v16, v125
              ds_write_b32 v19, v124 offset:16
              s_waitcnt lgkmcnt(0)""")
        k.label(WR_)
        k(f"""s_barrier
              ds_read_b128 v[120:123], v19
              ds_read_b32 v124, v19 offset:16
              s_waitcnt lgkmcnt(0)
              v_readfirstlane_b32 s{sKEY}, v120
              v_readfirstlane_b32 s{sQ}, v121
              v_readfirstlane_b32 s{sQ+1}, v122
              v_readfirstlane_b32 s{sQ+2}, v123
              v_readfirstlane_b32 s{sFR}, v124
              s_cmp_lg_u32 s{sKEY}, -1
              s_cbranch_scc1 {PR}
              {FN}:
              s_mov_b32 s{sQ}, -1
              s_cmp_eq_u32 s{sALT}, 1
              s_cbranch_scc1 {AL}
              s_cmp_eq_u32 s{sALT}, 2
              s_cbranch_scc1 {T1P}
              s_branch {L}""")
        k.label(PR)
        k(f"""s_mov_b32 s{S_CNT}, 0
              s_sub_u32 s{sDEBT}, s{sDEBT}, 1
              s_max_i32 s{sDEBT}, s{sDEBT}, 0
              s_sub_u32 s{sGR}, s{sGR}, 1
              s_min_u32 s{S_T+5}, s{sDEBT}, {LOOK}
              s_cmp_lt_u32 s{sSC}, {o.get("early", 5)}
              s_cselect_b32 s{S_T+4}, s{sBIG}, 0
              s_cmp_lt_u32 s{sKEY}, s{S_T+4}
              s_cselect_b32 s{S_T+5}, {LOOK}, s{S_T+5}
              s_cmp_le_u32 s{sKEY}, s{sMAX}
              s_cbranch_scc1 {NR}
              s_mov_b32 s{sGR}, s{S_T+5}
              s_mov_b32 s{sMAX}, s{sKEY}
              s_mov_b32 s{sPT}, 0
              s_or_b32 s{S_T+5}, s{S_H}, s{S_W}
              s_cbranch_scc1 {NR}
              v_mov_b32 v120, s{sMAX}
              v_lshlrev_b32 v121, 13, v{V_LANE}
              s_mov_b32 s{S_T+5}, {PG_OFF + F_RM}
              buffer_store_dword v120, v121, {WS}, s{S_T+5} offen sc1
              {NR}:
              s_cmp_lg_u32 s{sSC}, 63
              s_cbranch_scc1 {NF}
              s_min_i32 s{sGR}, s{sGR}, 0
              s_or_b32 s{S_T+5}, s{S_H}, s{S_W}
              s_cbranch_scc1 {NF}
              s_mov_b32 s{S_T+3}, {PG_OFF + 65*8192 + F_DEC}
              v_lshlrev_b32 v120, 2, v{V_LANE}
              v_mov_b32 v121, v3
              v_cmp_eq_u32 vcc, 0, v3
              s_cbranch_vccz {DG}""")
        self.words_wait64(S_T + 3, 120, 0)
        k.label(DG)
        k(f"""s_andn2_b32 s{S_T+6}, 0x7ff, s{sMAX}
              v_lshl_or_b32 v121, s{S_T+6}, 8, v121""")
        for w in range(6):
            k(f"""s_add_u32 s{S_T+3}, s{S_T+3}, 8192
                  buffer_store_dword v121, v120, {WS}, s{S_T+3} offen sc1""")
        k.label(NF)
        k(f"""s_add_u32 s{sSC}, s{sSC}, 1
              s_cmp_gt_i32 s{sGR}, 0
              s_cmov_b32 s{sFR}, 0
              s_cbranch_scc1 {L}
              s_cmp_lg_u32 s{sGR}, 0
              s_cbranch_scc1 {NJ}""")
        k(f"""s_andn2_b32 s{S_SEG}, 0x7ff, s{sMAX}
              s_lshr_b32 s{S_SEG}, s{S_SEG}, 5
              s_add_u32 s{sDEBT}, s{sDEBT}, {JD}
              s_mov_b32 s{sPT}, 1
              s_mov_b32 s{sPF}, 0
              s_mov_b32 s{sFR}, 0
              s_waitcnt vmcnt(8)
              s_barrier""")
        self.ev(30)
        self.moe(0, sMAX)
        self.flush()
        self.ev(31)
        k("s_barrier")
        k.label(NJ)
        k(f"""s_mov_b32 s{sGR}, -1
              s_cmp_lt_u32 s{sSC}, 64
              s_cbranch_scc1 {L}
              s_cmp_eq_u32 s{sPT}, 0
              s_cbranch_scc1 {EN}""")
        k.label(T1P)
        k(f"""s_andn2_b32 s{S_SEG}, 0x7ff, s{sMAX}
              s_lshr_b32 s{S_SEG}, s{S_SEG}, 5
              s_andn2_b32 s{S_T}, 31, s{sMAX}
              v_lshrrev_b32 v2, 10, v{self.THD}
              v_add_u32 v3, 16, v2
              v_add_u32 v8, {HP_OFF - H_OFF[1]}, v{self.THD}
              v_cmp_eq_u32 vcc, s{S_T}, v2
              v_cndmask_b32 v2, v{self.THD}, v8, vcc
              v_cmp_eq_u32 vcc, s{S_T}, v3
              v_cndmask_b32 v3, v{self.THD}, v8, vcc
              s_waitcnt vmcnt(0)""")
        self.page(S_T + 3, F_HX, head=False)
        self.flags_wait32(S_T + 3, one=True, sleep=2)
        self.flag_store(sF, " sc1")
        self.t1_src(S_T + 10, S_SEG, 1)
        self.t1b(2, S_T + 10, voff=(2, 3), early=False)
        self.ev(32)
        for x in self.t1_dma(sN, (0, 1, 2)):
            k(x)
        self.page(S_T + 3, F_Q[2])
        self.flag_set(S_T + 3, " sc1")
        k(f"""s_mov_b32 s{sF}, 0x80000000
              s_mov_b32 s{sPT}, 0
              s_mov_b32 s{sPF}, 1
              s_mov_b32 s{sFR}, 0
              s_cmp_lt_u32 s{sSC}, 64
              s_cbranch_scc1 {L}""")
        k.label(EN)
        NS = 6
        LD_, AG, EX, LP, WB, PO = (k.newlabel("L_mf") for _ in range(6))
        k(f"""s_mov_b32 s{S_SEG}, 64
              s_cmp_eq_u32 s{S_H}, 31
              s_cbranch_scc1 {LD_}""")
        self.moe_pre(1)
        for n in range(1, NS if not self.loc else 0):
            k(f"""s_add_u32 s{S_T+3}, s{S_T+6}, {n*32*KB}
                  buffer_load_dword v15, v{V_L16}, {WS}, s{S_T+3} offen""")
        k.label(AG)
        k(f"""s_lshl_b32 s{S_T+3}, s{S_SEG}, 13
              s_lshl_b32 s{S_T+5}, s{S_W}, 7
              s_add_u32 s{S_T+3}, s{S_T+3}, s{S_T+5}
              s_add_u32 s{S_T+3}, s{S_T+3}, {PG_OFF + F_FIN}""")
        self.word_wait(S_T + 3, sKEY, va=2, sleep=1)
        k(f"""s_cmp_eq_u32 s{sKEY}, 1
              s_cbranch_scc1 {EX}
              s_barrier""")
        self.ev(33)
        self.moe(1, sKEY)
        self.flush()
        k(f"""s_add_u32 s{S_SEG}, s{S_SEG}, 1
              s_add_u32 s{S_T+6}, s{S_T+6}, {32*KB}
              s_add_u32 s{S_T+9}, s{S_T+9}, {32*KB}
              s_branch {AG}""")
        k.label(EX)
        self.srd(P_OUT, 2048 * 1024)
        k(f"""s_or_b32 s{S_T+5}, s{S_H}, s{S_W}
              s_cselect_b32 s{S_T}, 0x80000000, s{S_T}
              buffer_store_dwordx4 v[160:163], v{V_L16}, {SA}, s{S_T} offen sc1""")
        self.ev(34)
        k("""s_waitcnt vmcnt(0)
             s_endpgm""")
        k.label(LD_)
        sL, sC = S_T + 10, S_T + 11
        k(f"""s_cmp_lg_u32 s{S_W}, 0
              s_cbranch_scc1 {PO}
              v_mov_b64 v[24:25], 0
              v_mov_b64 v[26:27], 0""")
        for n in range(NS):
            k(f"""s_mov_b32 s{S_T}, {MOE_OFF + (64 + n) * 32 * KB + 31 * KB}
                  buffer_store_dwordx4 v[24:27], v{V_L16}, {WS}, s{S_T} offen{self.loc}""")
        k(f"""s_andn2_b32 s{S_T+5}, 0x7ff, s{sMAX}
              s_lshr_b32 s{S_T+5}, s{S_T+5}, 5
              s_mov_b32 s{S_T+3}, {PG_OFF + 65*8192 + F_DEC}
              v_lshlrev_b32 v2, 2, v{V_LANE}""")
        self.words_wait64(S_T + 3, 2, 2)
        self.todo_mask(sR, 2)
        for n in range(NS):
            k(f"""s_mov_b32 s{S_T}, {PG_OFF + (64 + n) * 8192 + F_M + 31 * 4}
                  buffer_store_dword v{self.TOB}, off, {WS}, s{S_T}{self.loc}""")
        k(f"""v_lshrrev_b32 v2, 3, v{V_LANE}
              v_and_b32 v3, 0x70, v{V_L16}
              v_lshl_add_u32 v3, v2, 13, v3""")
        for i in range(8):
            k(f"""s_lshr_b64 {sr(t,2)}, {sr(sR,2)}, {8*i}
                  v_lshrrev_b32 v{60+i}, v2, s{t}
                  v_and_b32 v{60+i}, 1, v{60+i}
                  v_mul_u32_u24 v{60+i}, {F_RK[1] - F_RK[2]}, v{60+i}
                  v_sub_u32 v{60+i}, v3, v{60+i}
                  v_add_u32 v{60+i}, {PG_OFF + F_RK[1] + i*8*8192}, v{60+i}""")
        k(f"""v_and_b32 v68, 3, v{V_LANE}
              v_lshlrev_b32 v68, 7, v68
              v_add_u32 v68, {PG_OFF + F_FIN}, v68
              v_and_b32 v69, 31, v{V_LANE}
              v_lshlrev_b32 v69, 2, v69
              v_add_u32 v69, {PG_OFF + F_M - 8192}, v69
              s_mov_b32 s{sL}, 0
              s_mov_b32 s{sC}, {64 * 8192}""")
        LS, LJ = k.newlabel("L_ms"), k.newlabel("L_mj")
        k(f"""v_mov_b32 v57, 0
              s_mov_b32 s{S_T+2}, 1""")
        k.label(LP)
        self.spend()
        k(f"""s_mov_b32 s{S_T+1}, 0
              s_cmp_lg_u32 s{S_T+2}, 0
              s_cbranch_scc1 {LS}
              buffer_load_dwordx4 v[52:55], v67, {WS}, 0 offen sc1
              buffer_load_dword v70, v69, {WS}, s{sC} offen sc1
              s_branch {LJ}""")
        k.label(LS)
        for i in range(8):
            k(f"buffer_load_dwordx4 {vr(24+4*i,4)}, v{60+i}, {WS}, 0 offen sc1")
        k(f"buffer_load_dword v70, v69, {WS}, s{sC} offen sc1")
        for i in range(8):
            b = 24 + 4 * i
            if i == 7:
                k(f"s_mov_b32 s{S_T+2}, s{S_T+1}")
                k.label(LJ)
            k(f"""s_waitcnt vmcnt({8 - i})
                  v_min3_u32 v56, v{b}, v{b+1}, v{b+2}
                  v_max3_u32 v57, v{b}, v{b+1}, v57
                  v_min_u32 v56, v{b+3}, v56
                  v_max3_u32 v57, v{b+2}, v{b+3}, v57
                  v_cmp_eq_u32 vcc, 0, v56
                  s_bcnt1_i32_b64 s{S_T}, vcc
                  s_add_u32 s{S_T+1}, s{S_T+1}, s{S_T}""")
        self.wmax_u32(57, 58)
        k(f"""v_readfirstlane_b32 s{sKEY}, v57
              s_cmp_lg_u32 s{sKEY}, s{sL}
              s_cbranch_scc1 {WB}
              s_cmp_lg_u32 s{S_T+1}, 0
              s_cbranch_scc1 {LP}
              v_mov_b32 v57, 1
              buffer_store_dword v57, v68, {WS}, s{sC} offen{self.loc}""")
        k.label(PO)
        k("""s_waitcnt vmcnt(0)
             s_endpgm""")
        k.label(WB)
        k(f"""s_waitcnt vmcnt(0)
              v_cmp_eq_u32 vcc, 0, v70
              s_cmp_eq_u32 s{sL}, 0
              s_cselect_b32 s{S_T}, 0, vcc_lo                 ; the update before is still under way
              s_cmp_gt_u32 s{S_T+1}, {8 * o.get("miss", 14)}
              s_cselect_b32 s{S_T}, 1, s{S_T}
              s_cmp_ge_u32 s{sC}, {(64 + NS - 1) * 8192}
              s_cselect_b32 s{S_T}, 1, s{S_T}
              s_cmp_eq_u32 s{S_T+1}, 0
              s_cselect_b32 s{S_T}, 0, s{S_T}
              s_cmp_lg_u32 s{S_T}, 0
              s_cbranch_scc1 {LP}
              buffer_store_dword v57, v68, {WS}, s{sC} offen{self.loc}
              s_mov_b32 s{sL}, s{sKEY}
              s_add_u32 s{sC}, s{sC}, 8192
              s_branch {LP}""")

    def role_proj(self):
        k = self.k
        self.LH = 64 * KB
        self.proj_consts()
        own = self.a_plan()[3]
        MAXL, MINL = self.opt.get("pmaxl", 44), self.opt.get("pminl", 12)
        sCUR, sNA = 54, 55
        sH, sN, sF, sOWN, sLB, sNB, sNXT = S_T + 10, S_T + 12, S_T + 14, S_T + 16, S_T + 18, S_T + 19, S_T + 20
        allq = (0, 1, 2, 3)
        FA, FV, VA_ = 23, 76, 19
        sPC_ = S_T + 21
        k(f"""s_sub_u32 s{sCUR}, s{S_G}, 4
              s_cmp_eq_u32 s{sCUR}, 0
              s_mov_b32 s{sOWN}, {own[1] & 0xffffffff}
              s_mov_b32 s{sOWN+1}, {own[1] >> 32}
              s_cmov_b32 s{sOWN}, {own[0] & 0xffffffff}
              s_cmov_b32 s{sOWN+1}, {own[0] >> 32}
              s_mov_b32 s{sF}, 0x80000000
              s_mov_b32 s{S_CNT}, {self.opt.get("pup", 7)}
              s_mov_b32 s{sLB}, s{S_LW}
              s_xor_b32 s{sNB}, s{sLB}, {32*KB}
              v_and_b32 v{FA}, 31, v{V_LANE}
              v_lshlrev_b32 v{FA}, 2, v{FA}
              v_mov_b32 v{VA_}, s{S_LW}
              v_mov_b32 v16, 0""")
        self.pop_next(sNA, sOWN)
        self.t1_src(sN, sNA, 0)
        for x in self.t1_dma(sN, allq, sb=sNB):
            k(x)
        k("""s_waitcnt vmcnt(0)
             s_barrier""")
        def peek():
            return (f"""s_lshl_b32 s{S_T}, s{sCUR}, 13
                        s_add_u32 s{S_T}, s{S_T}, {PG_OFF + F_HX}
                        s_or_b32 s{S_T}, s{S_T}, s{S_OOB}
                        buffer_load_dword v{FV}, v{FA}, {WS}, s{S_T} offen sc1""",
                    ["s_waitcnt vmcnt(0)", f"v_cmp_eq_u32 vcc, 0, v{FV}", f"v_mov_b32 v{FV}, vcc_lo", f"ds_write_b32 v{VA_}, v{FV}"],
                    f"ds_read_b32 v{FV}, v16")
        def choose(after_a):
            out = [f"v_readfirstlane_b32 s{S_T+1}, v{FV}",
                   f"s_sub_u32 s{S_T+3}, s{sNA}, s{sCUR}\ns_cmp_lt_i32 s{S_T+3}, {MAXL}\ns_cselect_b32 s{sNXT}, 2, 0"]
            if after_a:
                out.append(f"s_cmp_gt_i32 s{S_CNT}, 0\ns_cselect_b32 s{sNXT}, s{sNXT}, 0")
            out += [f"s_cmp_eq_u32 s{S_T+1}, 0\ns_cselect_b32 s{sNXT}, 1, s{sNXT}",
                    f"s_cmp_lt_i32 s{S_T+3}, {MINL}\ns_cselect_b32 s{sNXT}, 2, s{sNXT}\ns_add_u32 s{S_T+1}, s{sCUR}, {H_OFF[1] >> 15}",
                    f"s_cmp_eq_u32 s{sNXT}, 1\ns_cselect_b32 s{sN}, s{S_T+1}, s{sNA}\ns_lshl_b32 s{sN}, s{sN}, 15",
                    f"s_cmp_eq_u32 s{sNXT}, 0\ns_cselect_b32 s{sN}, 0x80000000, s{sN}\ns_add_u32 s{sN+1}, s{sN}, {16*KB}"]
            return out + self.t1_dma(sN, allq, sb=sNB)
        def flip():
            k(f"""s_mov_b32 s{sNB}, s{sLB}
                  s_xor_b32 s{sLB}, s{sLB}, {32*KB}""")
            for i in range(4):
                k(f"v_xor_b32 v{self.THR+i}, {32*KB}, v{self.THR+i}")
        LA_, LC, DSP, EN, W3, RDY = (k.newlabel("L_p") for _ in range(6))
        self.mk = 24
        k.label(LA_)
        flip()
        n0_ = len(k.lines)
        k(f"""s_mov_b32 s{S_SEG}, s{sNA}
              s_mov_b32 s{sPC_}, 0
              s_sub_u32 s{S_CNT}, s{S_CNT}, 1""")
        self.pop_next(sNA, sOWN)
        lead = k.lines[n0_:]; del k.lines[n0_:]
        self.t1b(0, None, landed=True, s_flag=sF, nxt=choose(True), early=False, peek=peek(), lead=lead)
        self.ev(17)
        self.page(sF, F_KV[0])
        k(f"""s_cmp_ge_u32 s{S_SEG}, 2
              s_cbranch_scc1 {DSP}""")
        self.flag_set(sF, " sc1")
        k.label(DSP)
        k(f"""s_cmp_eq_u32 s{sNXT}, 2
              s_cbranch_scc1 {LA_}
              s_mov_b32 s{S_CNT}, 0
              s_mov_b32 s{S_SEG}, s{sCUR}
              s_add_u32 s{sCUR}, s{sCUR}, 2
              s_cmp_eq_u32 s{sNXT}, 1
              s_cbranch_scc1 {LC}
              s_cmp_lg_u32 s{sPC_}, 0
              s_waitcnt vmcnt(3)
              s_cbranch_scc1 {W3}
              s_waitcnt vmcnt(2)
              {W3}:""")
        for x in peek()[1][1:]:
            k(x)
        self.t1_src(sH, S_SEG, 1)
        k(f"""s_waitcnt lgkmcnt(0)
              s_barrier
              {peek()[2]}
              s_waitcnt lgkmcnt(0)
              v_cmp_eq_u32 vcc, 0, v{FV}
              s_cbranch_vccnz {RDY}""")
        self.flag_set(sF, " sc1")
        k(f"""s_mov_b32 s{sF}, 0x80000000
              s_mov_b32 s{S_CNT}, 1
              s_cmp_ge_u32 s{S_SEG}, 64
              s_cbranch_scc1 {EN}""")
        self.page(S_T + 3, F_HX, head=False)
        self.flags_wait32(S_T + 3, one=True, sleep=self.opt.get("slp", 2))
        k.label(RDY)
        self.ev(13)
        self.t1b(1, sH, s_flag=sF, nxt=choose(self.opt.get("calm2", 1)), sb=sLB, peek=peek())
        k(f"s_mov_b32 s{sPC_}, 1")
        self.ev(14)
        self.page(sF, F_Q[1])
        k(f"s_branch {DSP}")
        k.label(LC)
        flip()
        self.t1b(1, None, landed=True, s_flag=sF, nxt=choose(self.opt.get("calm", 1)), peek=peek())
        k(f"s_mov_b32 s{sPC_}, 1")
        self.ev(16)
        self.page(sF, F_Q[1])
        k(f"s_branch {DSP}")
        k.label(EN)
        self.mk = 0
        self.LH = L_H

    def chain_helps(self):
        k = self.k
        n1, n2 = self.a_plan()[:2]
        sH, sN, sF = S_T + 12, S_T + 14, S_T + 16
        T = 120
        D, L = k.newlabel("L_chd"), k.newlabel("L_chl")
        self.THR, self.THD, self.TOB = 4, 20, 17
        k(f"""s_cmp_eq_u32 s{S_G}, 0
              s_cbranch_scc1 {D}
              v_and_b32 v{T}, 15, v{V_LANE}
              v_lshrrev_b32 v{T+1}, 4, v{V_LANE}
              v_mov_b32 v{self.TOB}, 1
              s_lshl_b32 s{S_T}, s{S_W}, 2
              v_add_u32 v{T+5}, s{S_T}, v{T+1}            ; row 4w+g
              v_xor_b32 v{T+6}, v{T+5}, v{T}
              v_lshlrev_b32 v{T+6}, 4, v{T+6}
              v_lshl_add_u32 v{self.THD}, v{T+5}, 10, v{T+6}""")
        for i in range(8):
            k(f"""s_lshl_b32 s{S_T}, s{S_W}, 1
                  s_xor_b32 s{S_T}, s{S_T}, {i}
                  s_and_b32 s{S_T+1}, s{S_T}, 3
                  s_lshl_b32 s{S_T+1}, s{S_T+1}, 2
                  s_lshr_b32 s{S_T}, s{S_T}, 2
                  s_lshl_b32 s{S_T}, s{S_T}, 13
                  s_add_u32 s{S_T}, s{S_T}, {L_H}
                  v_add_u32 v{T+5}, s{S_T+1}, v{T+1}
                  v_xor_b32 v{T+5}, v{T+5}, v{T}
                  v_lshlrev_b32 v{T+5}, 4, v{T+5}
                  v_lshl_add_u32 v{T+5}, v{T}, 8, v{T+5}
                  v_add_u32 v{self.THR+i}, s{S_T}, v{T+5}""")
        k(f"""s_cmp_eq_u32 s{S_G}, 1
              s_cselect_b32 s{S_SEG}, {self.P0}, {self.P0 + n1}
              s_cselect_b32 s{S_CNT}, {n1}, {n2}
              s_mov_b32 s{sF}, 0x80000000""")
        self.t1_src(sN, S_SEG, 0)
        for x in self.t1_dma(sN, (0, 1)):
            k(x)
        k("s_waitcnt vmcnt(0)")
        k.label(L)
        k(f"""s_mov_b64 {sr(sH,2)}, {sr(sN,2)}
              s_add_u32 s{sN}, s{sN}, {32*KB}
              s_add_u32 s{sN+1}, s{sN+1}, {32*KB}""")
        self.t1(0, sH, pre=7, s_flag=sF, nxt=self.t1_dma(sN, (0, 1)), rot=True)
        self.page(sF, F_KV[0])
        k(f"""s_add_u32 s{S_SEG}, s{S_SEG}, 1
              s_sub_u32 s{S_CNT}, s{S_CNT}, 1
              s_cmp_gt_u32 s{S_CNT}, 0
              s_cbranch_scc1 {L}""")
        self.flag_set(sF, " sc1")
        self.ev(18)
        k.label(D)

    def warm(self):
        k = self.k
        k(f"""s_and_b32 s{S_T}, s{S_G}, 1
              s_lshl_b32 s{S_T}, s{S_T}, 12
              s_add_u32 s{S_T}, s{S_T}, s{S_LW}
              s_and_b32 s{S_T+1}, s{S_H}, 15
              s_lshl_b32 s{S_T+1}, s{S_T+1}, 13
              s_add_u32 s{S_T}, s{S_T}, s{S_T+1}""")
        n = 0
        for ptr in (P_WK, P_WV, P_WQ):
            self.srd(ptr, 4 * MB)
            for i in range(32):
                if n >= self.opt.get("wdepth", 10):
                    k(f"s_waitcnt vmcnt({self.opt.get('wdepth', 10) - 1})")
                k(f"""s_add_u32 s{S_T+1}, s{S_T}, {i*16*8192}
                      buffer_load_dwordx4 v[24:27], v{V_L16}, {SA}, s{S_T+1} offen""")
                n += 1
                if n == self.opt.get("wdepth", 10) + 1:
                    self.arrive()

    def load_wo2(self):
        k = self.k
        self.srd(P_WO, 4 * MB)
        k(f"""v_and_b32 v2, 15, v{V_LANE}
              v_lshlrev_b32 v2, 4, v2
              v_lshrrev_b32 v3, 4, v{V_LANE}
              v_lshl_add_u32 v2, v3, 13, v2
              s_and_b32 s{S_T}, s{S_H}, 15
              s_lshl_b32 s{S_T}, s{S_T}, 18
              s_lshl_b32 s{S_T+1}, s{S_W}, 8
              s_add_u32 s{S_T}, s{S_T}, s{S_T+1}
              s_mov_b32 s{S_T+5}, 0x05040100
              s_mov_b32 s{S_T+6}, 0x07060302""")
        NB = 6
        def issue(g):
            b = 24 + (g % NB) * 32
            for j in range(8):
                if j % 4 == 0:
                    k(f"s_add_u32 s{S_T+1}, s{S_T}, {(32*g+j)*1024}")
                k(f"buffer_load_dwordx4 {vr(b+4*j,4)}, v2, {SA}, s{S_T+1} offen offset:{(j%4)*1024}")
        for g in range(NB):
            issue(g)
        for g in range(8):
            b = 24 + (g % NB) * 32
            k(f"s_waitcnt vmcnt({min(7-g, NB-1)*8})")
            for t in range(8):
                for q in range(4):
                    k(f"v_perm_b32 v{216+q}, v{b+4*(2*q+1)+(t>>1)}, v{b+4*(2*q)+(t>>1)}, s{S_T+5+(t&1)}")
                for q in range(4):
                    k(f"v_accvgpr_write_b32 a{(g*8+t)*4+q}, v{216+q}")
            if g + NB < 8:
                issue(g + NB)
            if g == 0:
                self.arrive()

    def role_att(self, steady):
        k = self.k
        opt = self.opt
        DL, TH, KB_ = self.spec()
        NW = 6
        over = self.loc == "" and opt.get("over", 1)
        PTX = 0 if opt.get("pt1") else 512 * KB
        sWK, sSEL = 54, 55
        sCNT, sBUF, sHD, sPT, sNQ, sNK, sLATE, sDF, sCUR, sMAXK, sFM, sNX = (S_T + i for i in range(10, 22))
        sTODO, sKO, sCW, sX = 84, 86, 87, S_A
        R_, sPS, sMODE, sST, sRB = 18, 26, 27, 32, 34
        sBN, sD, sVB, sHAD = 35, 36, 37, 38
        sLAG = 42
        gmask = sum(1 << x for x in range(DL, 64) if x >> 2 not in opt.get("dskip", ()))
        sCQ, sCK, sLQ, sLK = 28, 29, 40, 41
        DEC = PG_OFF + 65 * 8192 + F_DEC
        OUT = DBG
        OX, ROWS = 128 * KB, 144 * KB
        RK, OW_, OB_, PT_, RW_, RL_ = 2, 3, 4, 5, 6, 7
        TX0, TX1 = 8, 12
        L4, FL, ST, SA_, DF, KA = 16, 17, 18, 19, 20, 21
        Q, KK, F, V, VM, S = 24, 40, 72, 88, 120, 128
        P, Lr, ONES, SEL, O = 140, 148, 152, 156, 24
        B, ACC, PK = 24, 160, 24
        XI, WR, KEY, TT = 224, 228, 236, 238
        CN, RR_, GK, VR, VW, VT, VO, KR = 22, 23, 246, 245, 247, 248, 253, 254
        KY = 242
        VOTE = ROWS + 8 * KB
        T = TT
        self.make_sel(SEL, TT)
        self.srd(P_WR, 1024)
        k(f"""buffer_load_dwordx4 {vr(XI,4)}, v{V_L16}, {SA}, 0 offen
              v_and_b32 v{T}, 15, v{V_LANE}
              v_lshrrev_b32 v{T+1}, 4, v{V_LANE}
              v_lshlrev_b32 v{T+2}, 2, v{T+1}
              v_mov_b32 v{T+3}, {NEGBIG}
              s_and_b32 s{S_T}, s{S_W}, 1
              s_lshl_b32 s{S_T}, s{S_T}, 4
              v_add_u32 v{T+4}, s{S_T}, v{T}""")
        for u in range(2):
            for r in range(4):
                k(f"v_add_u32 v{T+5}, {16*u+r}, v{T+2}")
                k(f"v_cmp_gt_u32 vcc, v{T+5}, v{T+4}")
                k(f"v_cndmask_b32 v{(TX0,TX1)[u]+r}, 0, v{T+3}, vcc")
        CV = ONES
        k(f"""v_mov_b32 v{CV}, s{S_C}
              v_mov_b32 v{P+5}, 0
              v_mov_b32 v{P+6}, 0
              s_lshl_b32 s{S_T}, s{S_W}, 12
              s_add_u32 s{S_T}, s{S_T}, {OX}
              v_add_u32 v{OW_}, s{S_T}, v{V_L16}
              v_add_u32 v{OB_}, {OX}, v{V_L16}
              s_lshl_b32 s{S_T}, s{S_W}, 8
              v_lshlrev_b32 v{RL_}, 4, v{T}
              v_add_u32 v{RL_}, s{S_T}, v{RL_}
              v_lshl_add_u32 v{PT_}, v{T+1}, 16, v{RL_}
              v_lshlrev_b32 v{RW_}, 1, v{RL_}
              v_lshl_add_u32 v{RL_}, v{T+1}, 10, v{RL_}
              v_and_b32 v{T+5}, 1, v{T+1}
              v_lshl_add_u32 v{RW_}, v{T+5}, 4, v{RW_}
              v_lshrrev_b32 v{T+5}, 1, v{T+1}
              v_lshl_add_u32 v{RW_}, v{T+5}, 12, v{RW_}
              v_add_u32 v{RW_}, {ROWS}, v{RW_}
              v_lshlrev_b32 v{L4}, 2, v{V_LANE}
              v_lshlrev_b32 v{KA}, 3, v{T}
              s_and_b32 s{sHD}, s{S_H}, 15
              s_lshl_b32 s{S_T}, s{sHD}, 10
              v_add_u32 v{PT_}, s{S_T}, v{PT_}
              s_lshl_b32 s{S_T}, s{sHD}, 15
              v_add_u32 v{RL_}, s{S_T}, v{RL_}
              s_lshl_b32 s{sPT}, s{sWK}, 20
              s_add_u32 s{sPT}, s{sPT}, {PT_OFF}
              s_lshl_b32 s{sCW}, s{sWK}, 13
              s_add_u32 s{sCW}, s{sCW}, {PG_OFF + F_CW}
              s_lshl4_add_u32 s{sCUR}, s{sHD}, s{sCW}
              s_lshl2_add_u32 s{sCUR}, s{S_W}, s{sCUR}
              s_lshl_b32 s{sHD}, s{sHD}, 1
              s_lshr_b32 s{S_T}, s{S_W}, 1
              s_add_u32 s{sHD}, s{sHD}, s{S_T}
              s_mov_b32 s{sCNT}, 0
              s_mov_b32 s{sBUF}, 0
              s_mov_b32 s{sDF}, 0x80000000
              s_mov_b32 s{sMAXK}, 0
              s_mov_b32 s{sVB}, 0
              s_mov_b32 s{sLAG}, {gmask & 0xffffffff}
              s_mov_b32 s{sLAG+1}, {gmask >> 32}
              s_mov_b64 {sr(sHAD,2)}, 0
              s_sub_u32 s{sD}, s{sWK}, {2 + DL}
              s_and_b32 s{sD}, s{sD}, 3
              s_mov_b32 s{SRD_DBG}, s{P_OUT}
              s_mov_b32 s{SRD_DBG+1}, s{P_OUT+1}
              s_mov_b32 s{SRD_DBG+2}, {2048*1024}
              s_mov_b32 s{SRD_DBG+3}, 0x20000
              s_and_b32 s{sCK}, s{S_W}, 1
              s_mul_i32 s{sCQ}, s{sCK}, {12*KB}
              s_lshl_b32 s{sCK}, s{sCK}, 11
              s_and_b32 s{S_T}, s{S_LW}, 2048
              s_lshl_b32 s{S_T}, s{S_T}, 4
              s_add_u32 s{S_T}, s{S_T}, {64*KB}
              s_add_u32 s{sLQ}, s{S_T}, s{sCQ}
              s_add_u32 s{sLK}, s{S_T}, s{sCK}
              v_add_u32 v{KA}, {PG_OFF + F_RK[0]}, v{KA}
              v_mov_b32 v{KY+2}, v{KA}
              s_and_b32 s{S_T}, s{S_LW}, 2048
              s_add_u32 s{S_T}, s{S_T}, {ROWS}
              v_lshlrev_b32 v{RR_}, 5, v{V_LANE}
              v_add_u32 v{RR_}, s{S_T}, v{RR_}
              v_and_b32 v{VO}, 32, v{V_L16}
              v_lshrrev_b32 v{VR}, 2, v{VO}
              v_add_u32 v{VO}, v{VO}, v{VR}
              v_sub_u32 v{VO}, v{V_L16}, v{VO}
              v_add_u32 v{VO}, 8, v{VO}                     ; v_m of a lane: (lane & ~2)*16 + (lane & 2 ? 0 : 8)
              v_mov_b32 v{KR}, 0x80000000
              s_mov_b32 s{S_T}, {F_RK[0]}
              v_writelane_b32 v{KR}, s{S_T}, 0
              s_mov_b32 s{S_T}, {F_RKU}
              v_writelane_b32 v{KR}, s{S_T}, 1
              s_mov_b32 s{S_T}, {F_RKM}
              v_writelane_b32 v{KR}, s{S_T}, 2
              v_mov_b32 v{VR}, {VOTE}
              s_lshl_b32 s{S_T}, s{S_W}, 2
              v_add_u32 v{VW}, s{S_T}, v{VR}
              s_waitcnt vmcnt(0)""")
        self.unpack8(WR, XI)
        TH_ = 255
        k(f"v_mul_f32 v{TH_}, v{WR}, v{WR}")
        for j in range(1, 8):
            k(f"v_fma_f32 v{TH_}, v{WR+j}, v{WR+j}, v{TH_}")
        self.wsum(TH_, TT)
        k(f"""v_sqrt_f32 v{TH_}, v{TH_}
              v_sub_u32 v{TT}, {63 + KB_}, v{V_LANE}
              v_cvt_f32_u32 v{TT}, v{TT}
              v_log_f32 v{TT}, v{TT}
              v_mov_b32 v{TT+1}, {f32(opt.get("za", 1.95))}
              v_fmac_f32 v{TT+1}, {f32(opt.get("zb", 0.32) * math.log(2))}, v{TT}
              v_mul_f32 v{TH_}, v{TH_}, v{TT+1}
              v_or_b32 v{TH_}, 0x80000000, v{TH_}""")

        def capture(fn, *a):
            n0 = len(k.lines); fn(*a); out = k.lines[n0:]; del k.lines[n0:]; return out
        def hpage(dst, off, seg):
            k(f"""s_lshl_b32 s{dst}, s{seg}, 13
                  s_lshl2_add_u32 s{dst}, s{sHD}, s{dst}
                  s_add_u32 s{dst}, s{dst}, {PG_OFF + off}""")
        def spin(v, reload, cmp):
            A_, B_ = k.newlabel("L_aw"), k.newlabel("L_awd")
            k.label(A_)
            k(f"""{cmp}
                  s_cbranch_vccz {B_}
                  {reload}""")
            self.spend()
            k(f"""s_waitcnt vmcnt(0)
                  s_branch {A_}""")
            k.label(B_)
        GL = " glc" if opt.get("glc") else ""
        stubs = []
        st_load = f"buffer_load_dword v{ST}, v{SA_}, {WS}, 0 offen sc1"
        def plan_next(layer, s_rec=None, vec=False):
            out = capture(plan_next_, layer, s_rec)
            for x in out:
                if not (vec and x.startswith("s_buffer_load")):
                    k(x)
        def plan_next_(layer, s_rec):
            k(f"""s_lshl_b32 s{S_T}, s{sNX}, 5
                  s_add_u32 s{S_T}, s{S_T}, s{sHD}
                  s_mul_i32 s{sNQ}, s{S_T}, {24*KB}
                  s_lshl_b32 s{sNK}, s{S_T}, 12""")
            if layer == 0:
                hpage(S_T + 3, F_Q[0], sNX)
                k(f"""s_buffer_load_dword s{sST}, {WS}, s{S_T+3}{GL}
                      s_mov_b32 s{sST+1}, 1
                      s_add_u32 s{sNQ}, s{sNQ}, {QKV_OFF[0]}
                      s_add_u32 s{sNK}, s{sNK}, {KVM_OFF[0]}
                      v_mov_b32 v{SA_}, s{S_T+3}""")
            else:
                hpage(S_T + 3, F_Q[1], sNX)
                k(f"""s_cmp_lt_u32 s{sNX}, s{s_rec}
                      s_cselect_b32 s{S_T+1}, 0, {KVM_OFF[2] - KVM_OFF[1]}
                      s_mov_b32 s{S_T+4}, s{S_T+3}
                      s_buffer_load_dword s{sST+1}, {WS}, s{S_T+4}{GL}
                      s_add_u32 s{sNK}, s{sNK}, s{S_T+1}
                      s_add_u32 s{sNK}, s{sNK}, {KVM_OFF[1]}
                      s_cmp_eq_u32 s{sNX}, s{s_rec}
                      s_cselect_b32 s{S_T+1}, {QKV_OFF[2] - QKV_OFF[1]}, 0
                      s_cselect_b32 s{S_T+2}, {F_Q[2] - F_Q[1]}, 0
                      s_add_u32 s{S_T+3}, s{S_T+3}, s{S_T+2}
                      s_buffer_load_dword s{sST}, {WS}, s{S_T+3}{GL}
                      s_add_u32 s{sNQ}, s{sNQ}, s{S_T+1}
                      s_add_u32 s{sNQ}, s{sNQ}, {QKV_OFF[1]}
                      v_mov_b32 v{SA_}, s{S_T+3}
                      v_writelane_b32 v{SA_}, s{S_T+4}, 1""")
        NT = " nt" if opt.get("nt") else ""
        LP = opt.get("lp", "sc1")
        def fetch_ops(q, kv):
            out = [f"s_add_u32 s{q}, s{q}, s{sCQ}", f"s_add_u32 s{kv}, s{kv}, s{sCK}",
                   f"s_xor_b32 s{S_T+2}, s{sBUF}, s{sLQ}", f"s_xor_b32 s{S_T+1}, s{sBUF}, s{sLK}"]
            for i in range(3):
                out.append(f"s_add_u32 m0, s{S_T+2}, {i*4096}")
                if i:
                    out.append(f"s_add_u32 s{q}, s{q}, 4096")
                out += [f"buffer_load_dwordx4 v{V_L16}, {WS}, s{q} offen offset:{c*1024} sc1{NT} lds" for c in range(4)]
            out.append(f"s_add_u32 m0, s{S_T+1}, {24*KB}")
            out += [f"buffer_load_dwordx4 v{V_L16}, {WS}, s{kv} offen offset:{c*1024} {LP} lds" for c in range(2)]
            return out
        sLAY, sNS = S_B, S_CNT
        pub = [f"buffer_store_dword v{DF}, off, {WS}, s{sDF} sc1", f"s_mov_b32 s{sDF}, 0x80000000"]
        def flush_pub():
            k("s_waitcnt vmcnt(0)")
            for x in pub:
                k(x)
        L4_ = 1
        NL_ = 4 if L4_ else 8
        def look():
            for kk in range(4):
                k(f"buffer_load_dwordx4 {vr(F+4*kk,4)}, v{V_L16}, {WS}, s{sFM} offen offset:{kk*1024} {LP}")
            for i in range(0 if L4_ else 4):
                k(f"buffer_load_dwordx2 {vr(VM+2*i,2)}, v{VO}, {WS}, s{sFM} offen offset:{i*1024} {LP}")
        key_load = f"buffer_load_dwordx2 {vr(KY,2)}, v{KY+2}, {WS}, 0 offen sc1"
        def keys_issue(t):
            k(f"""v_lshrrev_b32 v{KY+2}, 4, v{V_LANE}
                  s_sub_u32 s{t}, s{sNX}, {KB_ + 3}
                  v_add_u32 v{KY+2}, s{t}, v{KY+2}
                  v_max_i32 v{KY+2}, 0, v{KY+2}
                  v_lshl_add_u32 v{KY+2}, v{KY+2}, 13, v{KA}
                  {key_load}""")
        def fcheck():
            out = []
            for kk in range(4):
                f = F + 4 * kk
                out.append(f"v_max3_u32 v{TT}, v{f}, v{f+1}, v{TT if kk else f+2}")
                out.append(f"v_max3_u32 v{TT}, v{f+2}, v{f+3}, v{TT}")
            return out
        def vcheck():
            for i in range(4):
                k(f"v_max3_u32 v{TT}, v{VM+2*i}, v{VM+2*i+1}, v{TT}")
            k(f"v_cmp_eq_u32 vcc, -1, v{TT}")
        def check(w, n=1, extra=()):
            fc = fcheck()
            if L4_:
                k("""s_mov_b32 vcc_lo, 0x33333333
                     s_mov_b32 vcc_hi, 0x33333333""")
            for kk in range(4):
                if w:
                    k(f"s_waitcnt vmcnt({NL_-1+n-kk})")
                k(f"v_mfma_f32_16x16x32_bf16 {vr(S+8,4)}, {vr(F+4*kk,4)}, {vr(Q+4*kk,4)}, {'0' if kk == 0 else vr(S+8,4)}")
                if extra:
                    k(extra.pop(0))
                k(fc.pop(0)); k(fc.pop(0))
                for j in range(2 if L4_ else 0):
                    k(f"v_cndmask_b32_dpp v{VM+2*kk+j}, v{F+4*kk+j}, v{F+4*kk+2+j}, vcc quad_perm:[0,1,0,1] row_mask:0xf bank_mask:0xf")
            if L4_:
                k(f"v_cmp_eq_u32 vcc, -1, v{TT}")
                return
            if w:
                k(f"s_waitcnt vmcnt({n})")
            vcheck()
        def chain_wait(cond):
            A_, B_ = k.newlabel("L_ac"), k.newlabel("L_acb")
            k(f"s_cbranch_{cond} {A_}")
            k.label(B_)
            def stub():
                k.label(A_)
                for x in pub:
                    k(x)
                look()
                self.spend()
                check(True, 0)
                k(f"""s_cbranch_vccnz {A_}
                      s_branch {B_}""")
            stubs.append(stub)
        def pre(direct=False):
            k(f"""s_xor_b32 s{sBUF}, s{sBUF}, {64*KB}
                  s_and_b32 s{S_T}, s{S_LW}, 2048
                  s_lshl_b32 s{S_T}, s{S_T}, 4
                  s_add_u32 s{S_T}, s{S_T}, s{sBUF}
                  v_add_u32 v{RK}, s{S_T}, v{V_L16}
                  s_and_b32 s{S_T}, s{S_LW}, 1024
                  s_lshl_b32 s{S_T}, s{S_T}, 2
                  v_add_u32 v{TT}, s{S_T}, v{RK}
                  s_mov_b32 s{sFM}, s{sNK}
                  s_mov_b32 s{sNS}, s{sNX}""")
            for kk in range(4):
                k(f"ds_read_b128 {vr(Q+4*kk,4)}, v{TT} offset:{16*KB + kk*1024}")
                k(f"ds_read_b128 {vr(KK+4*kk,4)}, v{RK} offset:{kk*1024}")
                k(f"ds_read_b128 {vr(KK+16+4*kk,4)}, v{RK} offset:{4096 + kk*1024}")
            late = [f"ds_read_b128 {vr(F+4*i,4)}, v{RK} offset:{24*KB + i*1024}" for i in range(4)]
            if direct:
                late = []
                look()
            late += [f"ds_read_b128 {vr(V+4*i,4)}, v{RK} offset:{8*KB + i*1024}" for i in range(8)]
            for kk in range(4):
                k(f"s_waitcnt lgkmcnt({9 - 3*kk + 2*kk})")
                q = vr(Q + 4 * kk, 4)
                k(f"v_mfma_f32_16x16x32_bf16 {vr(S,4)}, {vr(KK+4*kk,4)}, {q}, {vr(TX0,4) if kk == 0 else vr(S,4)}")
                k(late.pop(0))
                k(f"v_mfma_f32_16x16x32_bf16 {vr(S+4,4)}, {vr(KK+16+4*kk,4)}, {q}, {vr(TX1,4) if kk == 0 else vr(S+4,4)}")
                k(late.pop(0))
            if direct:
                return
            k("s_waitcnt lgkmcnt(4)")
            check(False, extra=late)
        poll = f"buffer_load_dword v{FL}, v{L4}, {WS}, s{sCW} offen sc1"
        pcmp = f"v_cmp_gt_u32 vcc, s{sCNT}, v{FL}"
        def rloads(RD):
            out = [f"s_xor_b32 s{sRB}, s{sPT}, {PTX}"]
            for i in range(8):
                if i:
                    out.append(f"s_add_u32 s{sRB}, s{sRB}, 4096")
                out.append(f"buffer_load_dwordx4 {vr(RD+4*i,4)}, v{RL_}, {WS}, s{sRB} offen sc1")
            return out
        RD2 = 192
        def skip_test(t):
            return [f"s_bfe_u32 s{S_T}, s{sCNT}, 0x10002", f"v_lshrrev_b32 v{t}, s{S_T}, v{FL}", f"v_and_b32 v{t}, 1, v{t}",
                    f"v_cmp_ne_u32 vcc, 0, v{t}"]
        def post(fetch=False, tail=None, skip=None):
            t = TT
            pk = lambda op, i, o, m="": f"v_pk_{op}_f32 {vr(S+i,2)}, {vr(S+i,2)}, {vr(o,2)} op_sel_hi:[1,0]{m}"
            pa = opt.get("pollat", 1)
            k(f"""{poll if fetch and pa == 0 else ""}
                  v_max3_f32 v{t}, v{S}, v{S+1}, v{S+2}
                  v_max3_f32 v{t+1}, v{S+3}, v{S+4}, v{S+5}
                  v_max3_f32 v{t}, v{S+6}, v{S+7}, v{t}
                  v_max3_f32 v{t+1}, v{S+10}, v{S+11}, v{t+1}
                  v_max_f32 v{t}, v{t}, v{t+1}
                  v_max_f32 v{t+1}, v{t}, v{t+1}
                  {pk("mul", 0, CV)}
                  {pk("mul", 2, CV)}
                  v_permlane16_swap_b32 v{t}, v{t+1}
                  v_max_f32 v{t}, v{t}, v{t+1}
                  v_max_f32 v{t+1}, v{t}, v{t+1}
                  {pk("mul", 4, CV)}
                  {pk("mul", 6, CV)}
                  v_permlane32_swap_b32 v{t}, v{t+1}
                  v_max_f32 v{t}, v{t}, v{t+1}
                  v_mul_f32 v{t}, v{CV}, v{t}
                  {pk("mul", 10, CV)}
                  {poll if fetch and pa == 1 else ""}""")
            for i in (0, 2, 4, 6, 10):
                k(pk("add", i, t, " neg_lo:[0,1] neg_hi:[0,1]"))
            for i in (0, 1, 2, 3, 4, 5, 6, 7, 10, 11):
                k(f"v_exp_f32 v{S+i}, v{S+i}")
            k(f"""{poll if fetch and pa == 2 else ""}
                  v_pk_add_f32 {vr(Lr,2)}, {vr(S,2)}, {vr(S+2,2)}
                  v_pk_add_f32 {vr(Lr+2,2)}, {vr(S+4,2)}, {vr(S+6,2)}
                  v_pk_add_f32 {vr(Lr,2)}, {vr(Lr,2)}, {vr(S+10,2)}
                  v_pk_add_f32 {vr(Lr,2)}, {vr(Lr,2)}, {vr(Lr+2,2)}
                  v_add_f32 v{Lr+2}, v{Lr}, v{Lr+1}
                  v_add_f32 v{Lr+3}, v{Lr}, v{Lr+1}
                  v_permlane16_swap_b32 v{Lr+2}, v{Lr+3}
                  v_add_f32 v{Lr}, v{Lr+2}, v{Lr+3}
                  v_add_f32 v{Lr+1}, v{Lr+2}, v{Lr+3}
                  v_permlane32_swap_b32 v{Lr}, v{Lr+1}
                  v_add_f32 v{Lr}, v{Lr}, v{Lr+1}
                  v_rcp_f32 v{Lr}, v{Lr}""")
            nrm = [pk("mul", i, Lr) for i in (10, 0, 2, 4, 6)]
            nrm += [f"v_cvt_pk_bf16_f32 v{P+4}, v{S+10}, v{S+11}", f"v_cvt_pk_bf16_f32 v{P+7}, v{S+10}, v{S+11}"]
            cvp = [f"v_cvt_pk_bf16_f32 v{P+q}, v{S+2*q}, v{S+2*q+1}" for q in range(4)]
            rl = []
            if fetch:
                RT_, BK = k.newlabel("L_ap"), k.newlabel("L_apb")
                k(f"""s_waitcnt vmcnt(0)
                      {pcmp}""")
                for x in nrm[:5]:
                    k(x)
                nrm = nrm[5:]
                k(f"s_cbranch_vccnz {RT_}")
                k.label(BK)
                def stub():
                    k.label(RT_)
                    spin(FL, poll, pcmp)
                    k(f"s_branch {BK}")
                stubs.append(stub)
                self.mark(37)
                rl = rloads(RD2)
                k(rl.pop(0)); k(rl.pop(0))
                if skip:
                    for x in skip_test(TT) + nrm + cvp:
                        k(x)
                    nrm = []; cvp = []
                    k(f"""s_cbranch_vccnz {skip}
                          s_add_u32 s{sD}, s{sD}, 4""")
            for x in nrm:
                k(x)
            fin = lambda i: [f"v_cvt_pk_bf16_f32 v{F+4*i+r}, v{O+8*i+r}, v{O+8*i+4+r}" for r in range(4)]
            owr = lambda i: f"ds_write_b128 v{OW_}, {vr(F+4*i,4)} offset:{i*1024}"
            for i in range(8):
                k(f"v_mfma_f32_16x16x16_bf16 {vr(O+4*i,4)}, {vr(VM+2*(i>>1),2)}, {vr(P+4+2*(i&1),2)}, 0")
                if rl:
                    k(rl.pop(0))
                if cvp:
                    k(cvp.pop(0))
            for i in range(8):
                k(f"v_mfma_f32_16x16x32_bf16 {vr(O+4*i,4)}, {vr(V+4*i,4)}, {vr(P,4)}, {vr(O+4*i,4)}")
                if i in (5, 7):
                    k(owr((i - 5) // 2))
                elif rl:
                    k(rl.pop(0))
                if i >= 3:
                    for x in fin((i - 3) // 2)[2 * ((i - 3) & 1):][:2]:
                        k(x)
            for x in fin(2)[2:] + [owr(2)] + rl + fin(3) + [owr(3)]:
                k(x)
            if tail:
                k(tail)
            k("""s_waitcnt lgkmcnt(0)
                 s_barrier""")
        def pop_todo(n):
            for _ in range(n):
                k(f"""s_ff1_i32_b64 s{sNX}, {sr(sTODO,2)}
                      s_bitset0_b64 {sr(sTODO,2)}, s{sNX}""")
            k(f"s_min_u32 s{sNX}, s{sNX}, 64")
        DLAST = opt.get("dlast", 62)
        def no_more():
            k(f"""v_subrev_u32 v{VT}, s{sD}, v{V_LANE}
                  v_and_b32 v{VT}, 0x80000003, v{VT}
                  v_cmp_eq_u32 vcc, 0, v{VT}
                  v_lshlrev_b32 v{VT}, 2, v{V_LANE}
                  v_mov_b32 v{VT+1}, 0x40000000
                  v_cndmask_b32 v{VT}, v{VT+1}, v{VT}, vcc
                  v_mov_b32 v{VT+1}, 3
                  s_or_b32 s{S_T+3}, s{sHD}, s{S_W}
                  s_mov_b32 s{S_T+3}, {DEC}
                  s_cmov_b32 s{S_T+3}, 0x80000000
                  buffer_store_dword v{VT+1}, v{VT}, {WS}, s{S_T+3} offen sc1""")
        def plan_after_d():
            F_, J_ = k.newlabel("L_ae"), k.newlabel("L_af")
            k(f"""s_cmp_lg_u32 s{sKO}, {F_RK[1]}
                  s_cbranch_scc1 {F_}
                  s_mov_b32 s{sNX}, s{sBN}
                  s_mov_b32 s{sX}, 0""")
            plan_next(0)
            k(f"s_branch {J_}")
            k.label(F_)
            pop_todo(1)
            k(f"s_lshr_b32 s{S_T+5}, s{sSEL}, 5")
            plan_next(1, S_T + 5)
            k.label(J_)
        def plan_after_b(vec=False):
            NB_, J_ = k.newlabel("L_ab"), k.newlabel("L_aj")
            NM_ = k.newlabel("L_am")
            k(f"""s_add_u32 s{sBN}, s{sNS}, 4
                  s_cmp_lt_u32 s{sNS}, {KB_}
                  s_cbranch_scc1 {NB_}
                  s_cmp_ge_u32 s{sNS}, {DLAST}
                  s_cbranch_scc1 {NM_}""")
            def stub():
                k.label(NM_)
                no_more()
                k(f"s_branch {NB_}")
            stubs.append(stub)
            spin(KY, f"s_sleep {opt.get('slt', 4)}\n" + key_load, f"v_min_u32 v{TT+1}, v{KY}, v{KY+1}\nv_cmp_eq_u32 vcc, 0, v{TT+1}")
            k(f"v_max_u32 v{KY}, v{KY}, v{KY+1}")
            self.wmax_u32(KY, KY + 1)
            k(f"""v_readfirstlane_b32 s{S_T}, v{KY}
                  v_readlane_b32 s{S_T+1}, v{TH_}, s{sNS}
                  s_max_u32 s{sMAXK}, s{sMAXK}, s{S_T}
                  s_bitcmp0_b64 {sr(sLAG,2)}, s{sNS}
                  s_cbranch_scc1 {NB_}
                  s_mov_b32 s{sNX}, s{sD}
                  s_and_b32 s{sSEL}, s{sMAXK}, 0x7ff
                  s_sub_u32 s{sSEL}, 2047, s{sSEL}
                  s_cmp_lt_u32 s{sMAXK}, s{S_T+1}
                  s_cselect_b32 s{sSEL}, 4095, s{sSEL}
                  s_lshr_b32 s{S_T+5}, s{sSEL}, 5
                  s_mov_b32 s{sX}, 1""")
            plan_next(1, S_T + 5, vec)
            k(f"s_branch {J_}")
            k.label(NB_)
            k(f"""s_mov_b32 s{sNX}, s{sBN}
                  s_mov_b32 s{sX}, 0""")
            plan_next(0, None, vec)
            k.label(J_)
        def exch1(vote=0, keep=0):
            k(f"""s_add_u32 s{sCNT}, s{sCNT}, 4
                  s_bfe_u32 s{S_T}, s{sCNT}, 0x10002
                  s_bitset0_b32 s{sVB}, s{S_T}
                  s_lshl_b32 s{S_T}, {vote}, s{S_T}
                  s_or_b32 s{sVB}, s{sVB}, s{S_T}
                  s_or_b32 s{S_T}, s{sVB}, s{sCNT}
                  v_mov_b32 v{CN}, s{S_T}
                  s_xor_b32 s{sPT}, s{sPT}, {PTX}
                  s_waitcnt vmcnt({keep}) lgkmcnt(0)
                  buffer_store_dword v{CN}, off, {WS}, s{sCUR}{self.loc}""")
            for x in pub if opt.get("pub0") else ():
                k(x)
            self.mark(36)
        def reduce_items(RD, RA):
            out = []
            for i in range(8):
                d = vr(RA + 4 * (i >> 2), 4)
                out.append(("wv", "RD%d" % i))
                out.append(f"v_mfma_f32_16x16x32_bf16 {d}, {vr(SEL,4)}, {vr(RD+4*i,4)}, {'0' if i % 4 == 0 else d}")
                if i == 6:
                    out.append(f"ds_write_b128 v{RW_}, {vr(RA,4)}")
            out.append(("gap", 2))
            out.append(f"ds_write_b128 v{RW_}, {vr(RA+4,4)} offset:2048")
            return out
        def reduce_now(RD, RA, nmid=0):
            i = 0
            for x in reduce_items(RD, RA):
                if isinstance(x, str):
                    k(x)
                elif x[0] == "wv":
                    k(f"s_waitcnt vmcnt({7 - i + nmid})"); i += 1
            k(f"""s_waitcnt lgkmcnt(0)
                  s_barrier""")
            for x in () if opt.get("pub0") else pub:
                k(x)
            self.mark(38)
        def exch2(mid=None, nmid=0):
            WL = k.newlabel("L_aq")
            k.label(WL)
            k(poll)
            self.spend()
            k(f"""s_waitcnt vmcnt(0)
                  {pcmp}
                  s_cbranch_vccnz {WL}""")
            self.mark(37)
            for x in rloads(160):
                k(x)
            if mid:
                mid()
            reduce_now(160, 192, nmid)
        def row(layer, odd, regs, seg):
            A, PKr, Y, TM, X = regs
            if layer and odd:
                return [], [("mark", "xi")], []
            rd_ = [f"ds_read_b128 {vr(A,4)}, v{RR_}", ("t", "A", f"ds_read_b128 {vr(A+4,4)}, v{RR_} offset:16")]
            out = capture(self.unpack8, X, XI)
            if layer:
                NG_, BK = k.newlabel("L_ag"), k.newlabel("L_agb")
                out.append(f"v_readfirstlane_b32 s{R_+4}, v{GK}")
                out.append(f"s_cmp_eq_u32 s{R_+4}, 0\ns_cbranch_scc1 {NG_}\n{BK}:")
                def stub():
                    k.label(NG_)
                    hpage(R_ + 3, F_RK[1], seg)
                    self.word_wait(R_ + 3, R_ + 4, va=GK)
                    k(f"s_branch {BK}")
                stubs.append(stub)
            out.append(("mark", "xi"))
            out += [f"s_lshl_b32 s{R_}, s{seg}, 5", f"s_add_u32 s{R_}, s{R_}, s{sHD}", f"s_lshl_b32 s{R_+1}, s{R_}, 10",
                    f"s_add_u32 s{R_+2}, s{R_+1}, {X1_OFF[layer] if layer or odd else X2_OFF}", ("mark", "early")]
            def body():
                self.pack8(PKr, A)
                self.unpack8(A, PKr)
                self.add8(X, A)
                self.pack8(PKr, X)
                if layer or odd:
                    k(f"buffer_store_dwordx4 {vr(PKr,4)}, v{V_L16}, {WS}, s{R_+2} offen sc1")
                self.unpack8(X, PKr)
                self.layernorm(X, PKr + 4, TM)
                self.unpack8(Y, PKr + 4)
                if not odd:
                    self.add8(X, Y)
                    self.pack8(A, X)
                    if layer == 0:
                        k(f"buffer_store_dwordx4 {vr(A,4)}, v{V_L16}, {WS}, s{R_+2} offen sc1")
                        self.unpack8(X, A)
                        self.layernorm(X, A + 4, TM)
                        k(f"""s_add_u32 s{R_+2}, s{R_+1}, {H_OFF[1]}
                              buffer_store_dwordx4 {vr(A+4,4)}, v{V_L16}, {WS}, s{R_+2} offen sc1
                              v_mov_b32 v{DF}, 1""")
                        hpage(sDF, F_HX, seg)
                        return
                    k(f"buffer_store_dwordx4 {vr(A,4)}, v{V_L16}, {OUT}, s{R_+1} offen sc1")
                k(f"v_pk_mul_f32 {vr(KEY,2)}, {vr(Y,2)}, {vr(WR,2)}")
                for j in range(2, 8, 2):
                    k(f"v_pk_fma_f32 {vr(KEY,2)}, {vr(Y+j,2)}, {vr(WR+j,2)}, {vr(KEY,2)}")
                k(f"v_add_f32 v{KEY}, v{KEY}, v{KEY+1}")
                self.wsum(KEY, KEY + 1)
                self.round1(KEY)
                k(f"""v_ashrrev_i32 v{KEY+1}, 31, v{KEY}
                      v_or_b32 v{KEY+1}, 0x80000000, v{KEY+1}
                      v_xor_b32 v{KEY}, v{KEY}, v{KEY+1}
                      v_and_b32 v{KEY}, 0xffff0000, v{KEY}
                      s_sub_u32 s{R_+2}, {2047 + 2048}, s{R_}
                      v_or_b32 v{DF}, s{R_+2}, v{KEY}""")
                if layer == 0:
                    hpage(R_ + 2, 0, seg)
                    k(f"buffer_store_dword v{DF}, v{KR}, {WS}, s{R_+2} offen sc1")
                else:
                    hpage(sDF, 0, seg)
                    k(f"s_add_u32 s{sDF}, s{sDF}, s{sKO}")
            return rd_, out, [("wl", "A")] + capture(body)

        FINAL, T3, NXB, LATE, DRAIN, ROWS_, RD_, GOB, SLOW, SLB, FIN2, PL, PC, T3E, T3X = (k.newlabel("L_aa") for _ in range(15))
        if opt.get("ptwarm", 1) and not self.loc:
            for _ in range(2):
                for x in rloads(160):
                    k(x.replace(" sc1", ""))
                k(f"s_xor_b32 s{sPT}, s{sPT}, {PTX}")
        k(f"""s_cmp_lt_u32 s{sWK}, 2
              s_cbranch_scc1 {FINAL}
              s_sub_u32 s{sNX}, s{sWK}, 2
              s_mov_b32 s{sX}, 0
              s_mov_b32 s{sKO}, {F_RK[1]}""")
        plan_next(0)
        k(f"s_branch {SLOW}")

        bread = lambda u: [("t", "B%d%d" % (u, g), f"ds_read_b128 {vr(B+u*32+4*g,4)}, v{OB_} offset:{((g>>2)*2+u)*4096 + (g&3)*1024}") for g in range(8)]
        def head():
            h = R_ + 5
            return [("need", "xi"),
                    f"s_lshl_b32 s{h}, s{S_SEG}, 5", f"s_add_u32 s{h}, s{h}, s{sHD}", f"s_lshl_b32 s{h+1}, s{h}, 10",
                    f"s_lshl_b32 s{h+2}, s{S_SEG}, 10", f"s_add_u32 s{h+2}, s{h+2}, {X2P_OFF - X2_OFF}",
                    f"s_cmp_eq_u32 s{h}, s{sSEL}\ns_cselect_b32 s{h+2}, s{h+2}, s{h+1}",
                    f"s_add_u32 s{h+2}, s{h+2}, {X2_OFF}",
                    f"s_mov_b32 s{SRD_A+2}, {WS_SIZE}",
                    f"""s_cmp_eq_u32 s{sLAY}, 0
                        s_cselect_b32 s{h+2}, s{h+1}, s{h+2}
                        s_cselect_b64 {sr(SRD_A,2)}, {sr(P_X,2)}, {sr(P_WS,2)}
                        s_cmov_b32 s{SRD_A+2}, {2048*1024}""",
                    f"buffer_load_dwordx4 {vr(XI,4)}, v{V_L16}, {SA}, s{h+2} offen sc1",
                    f"s_lshr_b32 s{h+1}, s{sSEL}, 5",
                    f"s_cmp_lt_u32 s{S_SEG}, s{h+1}\ns_cselect_b32 s{h+1}, 1, 2",
                    f"v_mov_b32 v{VT+4}, s{h+1}",
                    f"s_lshl2_add_u32 s{h+2}, s{S_SEG}, {DEC}",
                    f"s_lshl_b32 s{h+1}, s{sHD}, 16", f"s_add_u32 s{h+1}, s{h+1}, s{sLAY}", f"s_add_u32 s{h+1}, s{h+1}, s{sKO}",
                    f"s_cmp_eq_u32 s{h+1}, {F_RK[1] + 1}\ns_cselect_b32 s{h+2}, s{h+2}, 0x80000000",
                    f"buffer_store_dword v{VT+4}, off, {WS}, s{h+2} sc1",
                    f"s_bitcmp1_b64 {sr(sHAD,2)}, s{S_SEG}\ns_cselect_b32 s{h+1}, {F_RK[1] - F_RK[0]}, 0"] \
                + capture(hpage, h, F_RK[0], S_SEG) \
                + [f"s_add_u32 s{h}, s{h}, s{h+1}", f"buffer_load_dword v{GK}, off, {WS}, s{h} sc1"] + capture(keys_issue, h)
        def pack(u):
            out = []
            for r in range(4):
                for p in range(4):
                    a_ = ACC + u * 32 + p * 8
                    out.append(f"v_cvt_pk_bf16_f32 v{PK+u*16+r*4+p}, v{a_+r}, v{a_+4+r}")
                out.append(f"s_add_u32 s{S_T+6}, s{sPT}, {(16*u+r)*16*KB}")
                out.append(f"buffer_store_dwordx4 {vr(PK+u*16+r*4,4)}, v{PT_}, {WS}, s{S_T+6} offen{self.loc}")
            return out
        GAP = opt.get("gap", 4)
        vote_rd = [f"ds_read_b128 {vr(VT,4)}, v{VR}", ("gap", 6), "s_waitcnt lgkmcnt(0)",
                   f"v_or3_b32 v{VT}, v{VT}, v{VT+1}, v{VT+2}", f"v_or_b32 v{VT}, v{VT}, v{VT+3}", ("gap", 1),
                   f"v_readfirstlane_b32 s{sLATE}, v{VT}"]
        BR2 = opt.get("brow", 2) == 2
        def t3(pend):
            vm = ["RD%d" % i for i in range(8)] if pend and (pend[0] or BR2) else ["old"]
            lg = []
            seen = set()
            def emit(x):
                tag = None
                if not isinstance(x, str):
                    if x[0] == "mark":
                        seen.add(x[1]); return 0
                    if x[0] in ("wv", "wl"):
                        q_ = vm if x[0] == "wv" else lg
                        n = len(q_) - 1 - max(i for i, t in enumerate(q_) if t == x[1])
                        k(f"s_waitcnt {'vmcnt' if x[0] == 'wv' else 'lgkmcnt'}({min(n, 63 if x[0] == 'wv' else 15)})")
                        return 1
                    tag, x = x[1], x[2]
                c = 0
                for ln in x.split("\n"):
                    ln = ln.strip()
                    k(ln)
                    if ln.startswith("buffer"):
                        vm.append("copy" if ln.endswith("lds") else tag); c += 2
                    elif ln.startswith("ds_"):
                        lg.append(tag); c += 2
                    elif ln.startswith("v_mfma"):
                        c += 2
                    elif not ln.endswith(":"):
                        c += 1
                return c
            self.mark(34)
            n_start = len(k.lines)
            b0 = bread(0)
            for x in b0[:2]:
                emit(x)
            fo = fetch_ops(S_T + 8, S_T + 9)
            k(f"""s_min_u32 s{S_T}, s{sST}, s{sST+1}
                  s_cmp_lt_u32 s{sNX}, 64
                  s_cselect_b32 s{S_T}, s{S_T}, 0
                  s_cmp_eq_u32 s{S_T}, 0
                  s_cselect_b32 s{sLATE}, 0x80000000, 0
                  v_mov_b32 v{VT}, s{sLATE}
                  s_or_b32 s{S_T+8}, s{sNQ}, s{sLATE}
                  s_or_b32 s{S_T+9}, s{sNK}, s{sLATE}
                  s_cmp_lt_u32 s{sX}, s{sLAY}
                  s_cselect_b32 s{S_T+9}, 0x80000000, s{S_T+9}""")
            for _ in range(5):
                k(fo.pop(0))
            vq = [("need", "bar")] + list(vote_rd)
            if pend and not pend[0] and not BR2:
                r0, early, r1 = row(0, pend[1], (96, 104, 112, 120, 88), sPS)
                for x in r0:
                    emit(x)
                ih = max(i_ for i_, x in enumerate(r1) if isinstance(x, str) and x.startswith("buffer_store"))
                r1[ih] = ("t", "H", r1[ih])
                qx = early + r1 + ([] if pend[1] else [("gap", opt.get("hgap", 40)), ("wv", "H")] + pub)
                early = []
                vq = [("need", "b1"), ("gap", 4), "s_waitcnt lgkmcnt(0)\ns_barrier", ("mark", "bar")] + list(vote_rd)
            elif pend:
                qx = [("at", opt.get("redat", 6))]
                for x in reduce_items(RD2, S):
                    qx += [x, ("gap", 1)] if isinstance(x, str) and x.startswith("v_mfma") else [x]
                r0, early, r1 = row(pend[0], pend[1], (96, 104, 112, 120, 88), sPS)
                qx += [("gap", 4), ("need", "W"), "s_waitcnt lgkmcnt(0)\ns_barrier"] + r0 + [("mark", "bar")] + ([] if opt.get("pub0") else pub) + [("gap", 4)] + r1
                if pend == (0, 0):
                    ih = max(i_ for i_, x in enumerate(qx) if isinstance(x, str) and x.startswith("buffer_store"))
                    qx[ih] = ("t", "H", qx[ih])
                    qx += [("gap", opt.get("hgap", 40)), ("wv", "H")] + pub
            else:
                early = []
                qx = [("mark", "xi"), ("need", "b1"), ("gap", 4), "s_waitcnt lgkmcnt(0)\ns_barrier", ("mark", "bar"),
                      ("at", opt.get("pubat", 36)), ("wv", "old")] + pub
            gap = GAP
            if pend and not pend[0]:
                del fo[-3:]
                if opt.get("fsplit") is not None:
                    ix = [i_ for i_, x in enumerate(fo) if x.endswith("lds")][opt["fsplit"]]
                    fo.insert(ix, ("at", opt.get("fodd", 100)) if pend[1] else ("need", "Hs"))
                    if not pend[1]:
                        ih = [i_ for i_, x in enumerate(qx) if not isinstance(x, str) and x[:2] == ("t", "H")][0]
                        qx.insert(ih + 1, ("mark", "Hs"))
                    gap = opt.get("fgap", 3)
            if opt.get("unpk", 1):
                qx = [y for x in qx for y in unpk(x)]
            pk0 = pack(0)
            cv0 = [x for x in pk0 if x.startswith("v_")]
            st0 = [y for x in pk0 if not x.startswith("v_") for y in ((x, ("gap", opt.get("stgap", 3))) if x.startswith("buffer") else (x,))]
            queues = [fo, b0[2:] + [f"ds_write_b32 v{VW}, v{VT}", ("mark", "W")] + bread(1) + [("mark", "b1")], vq,
                      early + head(), [("at", 66)] + cv0 + [("at", opt.get("stat", 92))] + st0, qx]
            order = [5, 0, 1, 2, 3, 4]
            def kind_of(x):
                x = x if isinstance(x, str) else (x[2] if x[0] == "t" else "s_")
                return "m" if x.startswith("v_mfma") else "v" if x.startswith("v_") else "x" if x.startswith(("ds_", "buffer")) else "s"
            def stalls(x):
                x = x if isinstance(x, str) else (x[2] if x[0] == "t" else None)
                if x is None:
                    return False
                c = Ins(x.split("\n")[0].strip())
                d = 1 if k.lines[-1].startswith("v_mfma") else 0
                for ln in reversed(k.lines[-4:]):
                    if ln.endswith(":"):
                        continue
                    if need(Ins(ln), c) > d:
                        return True
                    d += 1
                return False
            hold = [0] * len(queues)
            b1_before_bar = False
            cost = lambda x: 0 if not isinstance(x, str) and x[0] != "t" else 1.3
            TM_ = opt.get("tmaj", 2)
            pk1 = pack(1)
            cv1 = []
            if TM_:
                for p in range(3):
                    cv1 += [("at", 128 - 8 * TM_ + 2 * TM_ * (p + 1) + 1)] + [pk1[6 * r + p] for r in range(4)]
                pk1 = [x for i_, x in enumerate(pk1) if i_ % 6 > 2]
            queues.append(cv1); hold.append(0)
            for m in range(128):
                u, g, t = m >> 6, (m >> 3) & 7, m & 7
                if m >= 128 - 8 * TM_:
                    assert b1_before_bar
                    m_ = m - (128 - 8 * TM_)
                    t, g = 2 * (m_ // (2 * TM_)) + (m_ & 1), 8 - TM_ + (m_ % (2 * TM_)) // 2
                if t == 0 and ("bar" not in seen or not b1_before_bar):
                    emit(("wl", "B%d%d" % (u, g)))
                if m in (32, 64, 96):
                    self.mark(39 + m // 32)
                d = vr(ACC + u * 32 + t * 4, 4)
                k(f"v_mfma_f32_16x16x32_bf16 {d}, {vr(B+u*32+4*g,4)}, {ar((g*8+t)*4,4)}, {'0' if g == 0 else d}")
                left = sum(kind_of(x) == "v" for q_ in queues for x in q_)
                bud = 3 if left <= 2 * (opt.get("rowend", 116) - m) or "bar" not in seen else 4
                if pend and not pend[0] and (not BR2 or "bar" in seen):
                    bud = opt.get("bbud", 6) if any(kind_of(x) == "v" for x in qx) else 3
                n = 0
                def pick(kinds):
                    for qi in order:
                        q_ = queues[qi]
                        while q_ and not isinstance(q_[0], str) and q_[0][0] in ("at", "gap", "need", "mark") and hold[qi] <= m:
                            kind, val = q_[0]
                            if kind == "need" and val not in seen:
                                break
                            if kind == "at": hold[qi] = val
                            if kind == "gap": hold[qi] = m + val
                            if kind == "mark": seen.add(val)
                            q_.pop(0)
                        if q_ and hold[qi] <= m and not (not isinstance(q_[0], str) and q_[0][0] == "need") \
                                and kind_of(q_[0]) in kinds and not stalls(q_[0]):
                            x = q_.pop(0)
                            if isinstance(x, str) and x.endswith("lds"):
                                hold[qi] = m + gap
                            emit(x)
                            tx = x if isinstance(x, str) else x[2] if x[0] == "t" else ""
                            if kind_of(x) == "x" and opt.get("xc", 1):
                                return "x", 2 if tx.startswith(("ds_read", "ds_write_b32")) else 3
                            return kind_of(x), (x.count("\n") + 1 if isinstance(x, str) else 1)
                    return None
                if "b1" in seen and not any(isinstance(l_, str) and l_ == "s_barrier" for l_ in k.lines[n_start:]):
                    b1_before_bar = True
                if pend and not pend[0] and (not BR2 or "bar" in seen):
                    order = [0, 1, 5, 2, 3, 4, 6]
                elif "bar" in seen:
                    order = [0, 1, 2, 3, 5, 4] if m < 84 else [0, 1, 2, 3, 4, 6, 5]
                r_ = pick("x") or pick("s")
                n = r_[1] if r_ else 1
                while n < bud:
                    r_ = pick("vsm")
                    if not r_:
                        break
                    if r_[0] == "m":
                        r_ = pick("x") or pick("s")
                        n = r_[1] if r_ else 1
                        continue
                    n += r_[1]
                if m == 63:
                    assert "b1" in seen and "bar" in seen
                if "bar" in seen and pend and not (pend[0] and pend[1]):
                    assert "early" in seen
            assert not any(queues[:4]), [len(q_) for q_ in queues]
            self.t3left = getattr(self, "t3left", []) + [(pend, len(queues[4]), len(queues[5]))]
            self.mark(35)
            pk1 = queues[4] + queues[6] + pk1
            if ("wv", "H") in qx:
                i_ = qx.index(("wv", "H"))
                assert i_ < 2
                if not opt.get("hlate"):
                    pk1 += qx[i_:]
                del qx[:]
            while pk1 or qx:
                for q_ in (pk1, qx):
                    if q_:
                        x = q_.pop(0)
                        if isinstance(x, str) or x[0] not in ("at", "gap"):
                            emit(x)
            k(f"""s_cmp_lg_u32 s{sLATE}, 0
                  s_cbranch_scc1 {LATE}""")
            emit(("wv", "copy"))
        p00 = list(self.pend)
        V1 = k.newlabel("L_av")
        k.label(T3X)
        k(f"""s_bitcmp1_b32 s{S_W}, 0
              s_cbranch_scc1 {V1}""")
        for i in range(2):
            if i:
                k.label(V1)
            self.pend = list(p00)
            t3((1, i))
            if self.stamps and i == 0:
                k(f"s_mov_b32 s101, s{S_SEG}\ns_mov_b32 s{S_SEG}, s{sPS}")
                self.ev(22, va=240)
                k(f"s_mov_b32 s{S_SEG}, s101")
            k(f"s_branch {T3E}")
        T3B, V2_ = k.newlabel("L_av"), k.newlabel("L_av")
        if opt.get("brow", 2):
            k.label(T3B)
            k(f"""s_bitcmp1_b32 s{S_W}, 0
                  s_cbranch_scc1 {V2_}""")
            for i in range(2):
                if i:
                    k.label(V2_)
                self.pend = list(p00)
                t3((0, i))
                k(f"s_branch {T3E}")
        k.label(T3)
        self.pend = list(p00)
        t3(None)
        k.label(T3E)
        DB = k.newlabel("L_ao")
        k(f"""s_barrier
              s_cmp_lt_u32 s{sX}, s{sLAY}
              s_cbranch_scc1 {DB}""")
        pre()
        k(f"""s_cmp_eq_u32 s{sX}, 0
              s_cbranch_scc1 {NXB}""")
        p0 = list(self.pend)
        LATE2, SKIP = k.newlabel("L_al"), k.newlabel("L_ak")
        k(f"""s_cmp_lg_u64 vcc, 0
              s_cselect_b32 s{sMODE}, 1, 0
              s_andn2_b32 s{S_T+1}, s{sMODE}, s{sLAY}""")
        exch1(f"s{S_T+1}")
        plan_after_d()
        WT, WTB, SLD = (k.newlabel("L_a4") for _ in range(3))
        k(f"""s_cmp_ge_u32 s{sNS}, {opt.get("wdrain", 60)}
              s_cbranch_scc1 {WT}""")
        k.label(WTB)
        pw = list(self.pend)
        def stub():
            k.label(WT)
            k(f"""v_mov_b32 v{VT}, s{sMODE}
                  ds_write_b32 v{VW}, v{VT} offset:16
                  s_waitcnt lgkmcnt(0)
                  s_barrier
                  ds_read_b128 {vr(VT,4)}, v{VR} offset:16
                  s_waitcnt lgkmcnt(0)
                  v_or3_b32 v{VT}, v{VT}, v{VT+1}, v{VT+2}
                  v_or_b32 v{VT}, v{VT}, v{VT+3}
                  v_cmp_ne_u32 vcc, 0, v{VT}
                  s_cbranch_vccz {WTB}""")
            self.pend = list(pw)
            exch2()
            self.pend = []
            k(f"""s_mov_b32 s{sMODE}, 4
                  s_branch {ROWS_}""")
        stubs.append(stub)
        k(f"s_and_b32 s{sMODE}, s{sMODE}, s{sLAY}")
        chain_wait("scc1")
        BD = k.newlabel("L_ah")
        post(True, skip=SKIP, tail=f"""s_cmp_eq_u32 s{sLAY}, 0
                                       s_cbranch_scc1 {BD}""")
        p2 = list(self.pend)
        self.flush(va=240)
        k(f"""s_mov_b32 s{sPS}, s{S_SEG}
              s_mov_b32 s{S_SEG}, s{sNS}
              s_branch {T3X}""")
        k.label(BD)
        self.pend = p2
        NL, NLB = k.newlabel("L_a1"), k.newlabel("L_a2")
        k(f"""s_cmp_ge_u32 s{sBN}, 64
              s_cbranch_scc1 {NL}""")
        k.label(NLB)
        def stub():
            k.label(NL)
            no_more()
            k(f"s_branch {NLB}")
        stubs.append(stub)
        if BR2:
            k("""s_waitcnt lgkmcnt(0)
                 s_barrier""")
        else:
            reduce_now(RD2, 160)
        if opt.get("brow", 2):
            self.flush(va=240)
            self.ev(12, va=240)
            k(f"""s_mov_b32 s{sPS}, s{S_SEG}
                  s_mov_b32 s{S_SEG}, s{sNS}
                  s_mov_b32 s{sLAY}, 1
                  s_branch {T3B}""")
        else:
            k(f"""s_mov_b32 s{sMODE}, 1
                  s_branch {ROWS_}""")
        k.label(DB)
        self.pend = list(p0)
        pre(True)
        exch1(keep=NL_)
        if opt.get("hlate"):
            for x in pub:
                k(x)
        k(f"""s_mov_b32 s{sPS}, s{S_SEG}
              s_mov_b32 s{sMODE}, 3""")
        self.flush(va=240)
        k(f"s_branch {SLB}")
        k.label(NXB)
        self.pend = list(p0)
        exch1()
        exch2(mid=look, nmid=NL_)
        k(f"""s_mov_b32 s{sMODE}, 0
              s_branch {ROWS_}""")
        k.label(LATE)
        self.pend = list(p0)
        k(f"""s_add_u32 s{S_T}, s{sX}, s{sKO}
              s_cmp_lg_u32 s{S_T}, {F_RK[1] + 1}
              s_cbranch_scc1 {LATE2}""")
        exch1(1)
        plan_after_d()
        k(f"s_branch {SKIP}")
        k.label(LATE2)
        self.pend = list(p0)
        exch1()
        if opt.get("lpub", 1):
            for x in pub:
                k(x)
        k.label(SKIP)
        exch2()
        k(f"s_mov_b32 s{sMODE}, 2")
        k.label(ROWS_)
        RV = [k.newlabel("L_ar") for _ in range(3)]
        k(f"""s_cmp_lg_u32 s{sLAY}, 0
              s_cbranch_scc1 {RV[2]}
              s_bitcmp1_b32 s{S_W}, 0
              s_cbranch_scc1 {RV[1]}""")
        for i in range(3):
            k.label(RV[i])
            if i == 2:
                k(f"""s_bitcmp1_b32 s{S_W}, 0
                      s_cbranch_scc1 {RD_}""")
            for x in sum(row(i >> 1, i & 1, (160, 168, 176, 184, 200), S_SEG), []):
                if isinstance(x, str):
                    k(x)
                elif x[0] == "t":
                    k(x[2])
                elif x[0] == "wl":
                    k("s_waitcnt lgkmcnt(0)")
            if i < 2:
                k(f"s_branch {RD_}")
        k.label(RD_)
        self.flush(va=240)
        if self.stamps:
            E1, E2 = k.newlabel("L_ev"), k.newlabel("L_ev")
            k(f"s_cmp_lg_u32 s{sLAY}, 0\ns_cbranch_scc1 {E1}")
            self.ev(12, va=240)
            k(f"s_branch {E2}")
            k.label(E1)
            self.ev(22, va=240)
            k.label(E2)
        GOD = k.newlabel("L_ad")
        k(f"""s_cmp_eq_u32 s{sMODE}, 1
              s_cbranch_scc1 {GOD}
              s_cmp_eq_u32 s{sMODE}, 0
              s_cbranch_scc1 {GOB}
              s_cmp_eq_u32 s{sMODE}, 4
              s_cbranch_scc1 {SLD}
              s_cmp_ge_u32 s{sNX}, 64
              s_cbranch_scc1 {FIN2}""")
        k.label(SLOW)
        flush_pub()
        k(f"""v_mov_b32 v{ST}, 0
              s_mov_b32 s{sMODE}, 0""")
        spin(ST, st_load, f"v_cmp_eq_u32 vcc, 0, v{ST}")
        SLOW2 = k.newlabel("L_a3")
        k.label(SLOW2)
        k(f"""s_mov_b32 s{S_T+8}, s{sNQ}
              s_mov_b32 s{S_T+9}, s{sNK}""")
        for x in fetch_ops(S_T + 8, S_T + 9):
            k(x)
        keys_issue(S_T)
        k(f"""s_waitcnt vmcnt(0) lgkmcnt(0)
              s_barrier""")
        self.ev(20, va=240)
        pre()
        k(f"""s_waitcnt lgkmcnt(0)
              s_cmp_eq_u32 s{sX}, 0
              s_cbranch_scc1 {SLB}""")
        plan_after_d()
        k.label(SLD)
        flush_pub()
        for x in fcheck():
            k(x)
        k(f"v_cmp_eq_u32 vcc, -1, v{TT}")
        chain_wait("vccnz")
        post()
        k.label(GOD)
        k(f"""s_mov_b32 s{S_SEG}, s{sNS}
              s_mov_b32 s{sLAY}, 1
              s_branch {T3}""")
        k.label(GOB)
        flush_pub()
        k.label(SLB)
        k(f"""s_mov_b32 s{S_SEG}, s{sNS}
              s_mov_b32 s{sLAY}, 0""")
        plan_after_b(True)
        k(st_load)
        k(f"s_waitcnt vmcnt({3 if opt.get('hlate') else 2})")
        self.ev(15, va=240)
        check(False)
        k(f"s_cbranch_vccz {PC}")
        k.label(PL)
        if opt.get("sll"):
            k(f"s_sleep {opt['sll']}")
        look()
        k(st_load)
        self.spend()
        check(True)
        k(f"s_cbranch_vccnz {PL}")
        k.label(PC)
        self.ev(10, va=240)
        NP = k.newlabel("L_ai")
        rl_ = f"""v_readlane_b32 s{sST}, v{ST}, 0
                  v_readlane_b32 s{sST+1}, v{ST}, 1"""
        k(f"""s_cmp_lg_u32 s{sMODE}, 3
              s_cbranch_scc1 {NP}""")
        mk_, self.opt["marks"] = self.opt.get("marks", ()), ()
        post(True, tail=rl_)
        self.opt["marks"] = mk_
        k(f"s_branch {T3X}")
        k.label(NP)
        post(tail="s_waitcnt vmcnt(0)\n" + rl_)
        k(f"s_branch {T3}")
        k.label(FIN2)
        DONE = k.newlabel("L_az")
        k(f"""s_cmp_lg_u32 s{sKO}, {F_RK[1]}
              s_cbranch_scc1 {DONE}""")
        NN = k.newlabel("L_an")
        k(f"""s_cmp_ge_u32 s{sBN}, {DLAST + 4}
              s_cbranch_scc1 {FINAL}""")
        no_more()
        k.label(FINAL)
        flush_pub()
        self.ev(14, va=240)
        k(f"""v_lshlrev_b32 v{TT}, 2, v{V_LANE}
              v_add_u32 v{VT}, {VOTE + 64}, v{TT}
              s_cmp_lg_u32 s{S_W}, 0
              s_cbranch_scc1 {NN}
              s_lshl_b32 s{S_T+3}, s{sWK}, 13
              s_add_u32 s{S_T+3}, s{S_T+3}, {DEC + 8192}""")
        self.words_wait64(S_T + 3, TT, 1)
        k(f"""ds_write_b32 v{VT}, v{TT+1}
              s_waitcnt lgkmcnt(0)""")
        k.label(NN)
        k(f"""s_barrier
              ds_read_b32 v{TT+1}, v{VT}
              s_mov_b32 s{sKO}, {F_RK[2]}
              s_mov_b32 s{sX}, 1
              s_waitcnt lgkmcnt(0)
              v_readfirstlane_b32 s{sSEL}, v{TT+1}
              v_and_b32 v{TT+1}, 255, v{TT+1}
              s_lshr_b32 s{sSEL}, s{sSEL}, 8
              s_lshr_b32 s{S_T+5}, s{sSEL}, 5
              v_cmp_ne_u32 {sr(sHAD,2)}, 3, v{TT+1}""")
        self.todo_mask(sTODO, TT)
        k(f"""s_bcnt1_i32_b64 s{S_T}, {sr(sTODO,2)}
              v_mbcnt_lo_u32_b32 v{TT}, s{sTODO}, 0
              v_mbcnt_hi_u32_b32 v{TT}, s{sTODO+1}, v{TT}
              s_mul_i32 s{S_T}, s{S_T}, {opt.get("share", 12)}
              s_add_u32 s{S_T}, s{S_T}, {opt.get("shr", 48)}
              s_lshr_b32 s{S_T}, s{S_T}, 7
              s_lshl_b32 s{S_T}, s{S_T}, 1
              v_cmp_gt_u32 vcc, s{S_T}, v{TT}
              v_and_b32 v{TT+1}, 1, v{TT}
              v_and_b32 v{TT}, 3, v{TT}
              v_add_u32 v{TT}, 2, v{TT}
              v_cndmask_b32 v{TT}, v{TT}, v{TT+1}, vcc
              v_cmp_eq_u32 vcc, s{sWK}, v{TT}
              s_and_b64 {sr(sTODO,2)}, {sr(sTODO,2)}, vcc""")
        pop_todo(1)
        plan_next(1, S_T + 5)
        k(f"""s_cmp_ge_u32 s{sNX}, 64
              s_cbranch_scc1 {DONE}
              s_cmp_eq_u32 s{sNX}, s{S_T+5}
              s_cbranch_scc1 {SLOW}
              s_mov_b32 s{sMODE}, 0
              s_bitcmp1_b64 {sr(sHAD,2)}, s{sNX}
              s_cbranch_scc1 {SLOW2}
              s_branch {SLOW}""")
        k.label(DONE)
        flush_pub()
        self.ev(23, va=240)
        k("s_endpgm")
        for st in stubs:
            st()

    def both(self, fn, name):
        self.k(f"""s_cmp_lg_u32 s{S_SLOW}, 0
                   s_cbranch_scc1 {name}""")
        fn()
        self.later.append((fn, name))

    def program(self):
        k = self.k
        self.later = []
        self.prologue()
        self.ev(0)
        LCH, LM, LA, LA2, C1, C2 = (k.newlabel(x) for x in ("L_rch", "L_rm", "L_ra", "L_rb", "L_rc1", "L_rc2"))
        k.label("L_roles")
        if self.opt.get("hold", 6):
            X = k.newlabel("L_x")
            k(f"""s_lshl_b32 s{S_T}, 1, s{S_G}
                  s_and_b32 s{S_T}, s{S_T}, {self.opt.get("hold", 6)}
                  s_cbranch_scc0 {X}
                  s_waitcnt vmcnt(0)""")
            self.arrive()
            self.wait_all()
            k.label(X)
        if self.opt.get("xdelay"):
            X = k.newlabel("L_x")
            k(f"""s_lshl_b32 s{S_T}, 1, s{S_G}
                  s_and_b32 s{S_T}, s{S_T}, {self.opt["xdelay"][0]}
                  s_cbranch_scc0 {X}
                  s_waitcnt vmcnt(0)""")
            self.arrive()
            for _ in range(self.opt["xdelay"][1]):
                k("s_sleep 32")
            k.label(X)
        k(f"""s_cmp_ge_u32 s{S_G}, 6
              s_cbranch_scc1 {LA}""")
        self.load_qkv()
        self.ev(2)
        k(f"""s_cmp_lt_u32 s{S_G}, 3
              s_cbranch_scc1 {LCH}
              s_cmp_eq_u32 s{S_G}, 3
              s_cbranch_scc1 {LM}""")
        self.wait_all()
        self.ev(3)
        self.role_proj()
        k("s_endpgm")
        k.label(LM)
        self.load_gate_up()
        self.wait_all()
        self.ev(3)
        def moe():
            self.role_moe()
            k("s_endpgm")
        self.both(moe, "L_wm")
        k.label("L_abort")
        k("s_endpgm")
        k.label("L_spread")
        k(f"""s_mov_b32 s{S_SLOW}, -1
              s_lshr_b32 s{S_G}, s2, 5
              s_and_b32 s{S_H}, s2, 31""")
        if self.stamps:
            k(f"""s_lshl_b32 s{S_EV}, s2, 12
                  s_add_u32 s{S_EV}, s{S_EV}, {STAMP_OFF + MB}""")
            self.ev(0)
        k("s_branch L_roles")
        k.label(LA)
        if self.opt.get("warm", 1):
            self.warm()
        if self.opt.get("tawait", 0):
            self.wait_all()
            k(f"""s_bfe_u32 s{S_T+3}, s{S_H}, 0x10004
                  s_lshl_b32 s{S_T+3}, s{S_T+3}, 13
                  s_add_u32 s{S_T+3}, s{S_T+3}, {PG_OFF + F_KV[0]}""")
            self.flags_wait32(S_T + 3, one=True, sleep=4)
        k.label(LA2)
        self.ev(2)
        self.load_wo2()
        self.wait_all()
        self.ev(3)
        k(f"""s_max_u32 s54, s{S_G}, 5
              s_sub_u32 s54, s54, 5
              s_lshl_b32 s54, s54, 1
              s_lshr_b32 s{S_T}, s{S_H}, 4
              s_add_u32 s54, s54, s{S_T}""")
        def att():
            self.role_att(None)
            k("s_endpgm")
        self.both(att, "L_wa")
        k.label(LCH)
        S0 = k.newlabel("L_rs")
        self.load_wo(2)
        k(f"""s_cmp_eq_u32 s{S_G}, 0
              s_cbranch_scc1 {S0}""")
        self.load_wo(3)
        k.label(S0)
        self.wait_all(True)
        self.ev(3)
        self.chain_helps()
        def chains():
            C1, C2 = k.newlabel("L_rc1"), k.newlabel("L_rc2")
            k(f"""s_cmp_eq_u32 s{S_G}, 1
                  s_cbranch_scc1 {C1}
                  s_cmp_eq_u32 s{S_G}, 2
                  s_cbranch_scc1 {C2}""")
            self.chain(0)
            k(f"""s_mov_b32 s{S_CNT}, 0
                  s_branch {LA2}""")
            k.label(C1)
            self.chain(1)
            k("s_endpgm")
            k.label(C2)
            self.chain(2)
            k("s_endpgm")
        self.both(chains, "L_wc")
        self.loc = " sc1"
        self.abort = "L_abort2"
        k.label("L_abort2")
        k("s_endpgm")
        for fn, name in reversed(self.later):
            k.label(name)
            k.fence()
            if self.opt.get("noslow"):
                k("s_endpgm")
            else:
                fn()

HEADER = open(__file__.rsplit("/", 1)[0] + "/header.txt").read() if "/" in __file__ else open("header.txt").read()

def build(**kw):
    g = Gen(**kw)
    g.program()
    print("t3 leftovers", getattr(g, "t3left", None), file=sys.stderr)
    body = g.k.finalize()
    return (HEADER + f"; @launch grid=(256,1,1) block=(256,1,1) lds={LDS_SIZE}\n"
        + f""".amdgcn_target "amdgcn-amd-amdhsa--gfx950"
.text
.globl {NAME}_kernel
.p2align 8
.type {NAME}_kernel,@function
{NAME}_kernel:
""" + body + f""".section .rodata,"a"
.p2align 6
.amdhsa_kernel {NAME}_kernel
  .amdhsa_next_free_vgpr 512
  .amdhsa_next_free_sgpr 102
  .amdhsa_accum_offset 256
  .amdhsa_group_segment_fixed_size 0
  .amdhsa_kernarg_size 120
  .amdhsa_user_sgpr_count 2
  .amdhsa_user_sgpr_kernarg_segment_ptr 1
  .amdhsa_system_sgpr_workgroup_id_x 1
  .amdhsa_float_denorm_mode_32 3
.end_amdhsa_kernel
""")

if __name__ == "__main__":
    import argparse
    ap = argparse.ArgumentParser()
    ap.add_argument("-o", default=f"/code/{NAME}.s")
    ap.add_argument("--stop", default=None)
    ap.add_argument("--stamps", type=int, default=0)
    ap.add_argument("--slow", action="store_true")
    ap.add_argument("--opt", default="{}")
    a = ap.parse_args()
    stop = None
    if a.stop:
        l, p = a.stop.split(":"); stop = (int(l), p)
    open(a.o, "w").write(build(fast=not a.slow, stop=stop, stamps=a.stamps, opt=eval(a.opt)))
```

```python
import sys, math
from asmlib import K, vr, ar, sr, Ins, need
from layout import *

NAME = "interleave_layers__memory_aug_recurrent_mem_tr__moe_arch_mod__prompt"

SRD_A = 4
SRD_WS = 8
SRD_DBG = 12
P_X, P_MEM0, P_WQ, P_WK, P_WV, P_WO = 16, 18, 20, 22, 24, 26
P_WR, P_WG, P_WU, P_WD, P_OUT, P_DBG, P_WS = 32, 34, 36, 38, 40, 42, 44
S_W, S_H, S_G, S_BUD = 46, 47, 48, 49
S_SLOW = 3
S_LW = 50
S_SEG, S_OOB, S_CNT = 51, 52, 53
S_T = 56
S_C = 80
S_EV = 81
S_ONE = 28
S_A, S_B = 30, 31
LOOK = 2
WS = sr(SRD_WS, 4); SA = sr(SRD_A, 4); DBG = sr(SRD_DBG, 4)

SCALE_LOG2E = (128 ** -0.5) * math.log2(math.e)
def f32(x):
    import struct
    return "0x%08x" % struct.unpack("<I", struct.pack("<f", x))[0]
NEGBIG = f32(-1e30)

def wq(ks, t, half=None):
    b = (ks * 2 + t) * 8
    return ar(b, 8) if half is None else ar(b + 4 * half, 4)
def wk(ks, t, half=None):
    b = 128 + (ks * 2 + t) * 8
    return ar(b, 8) if half is None else ar(b + 4 * half, 4)
def wv(ks, t, half=None):
    b = 128 + (ks * 2 + t) * 8
    return vr(b, 8) if half is None else vr(b + 4 * half, 4)

def unpk(x):
    import re
    if not isinstance(x, str) or not x.startswith("v_pk_"):
        return [x]
    ins = Ins(x)
    mod = lambda nm, d: [int(c) for c in re.search(nm + r":\[([01,]+)\]", ins.mods).group(1).split(",")] if re.search(nm + r":\[", ins.mods) else d
    n = len(ins.ops) - 1
    lo, hi = mod(r"op_sel", [0] * n), mod("op_sel_hi", [1] * n)
    if "op_sel:" not in ins.mods:
        lo = [0] * n
    ng = mod("neg_lo", [0] * n)
    base = [re.match(r"([vs])\[(\d+):", o).groups() for o in ins.ops]
    out = []
    for h, sel in enumerate((lo, hi)):
        src = [("-" if ng[i] else "") + base[i+1][0] + str(int(base[i+1][1]) + sel[i]) for i in range(n)]
        out.append(f"{ins.op.replace('v_pk_', 'v_')} v{int(base[0][1]) + h}, " + ", ".join(src))
    return out

V_L16 = 0
V_LANE = 1

class Gen:
    def __init__(self, fast=True, stop=None, stamps=False, opt=None):
        self.opt = opt or {}
        self.LH = L_H
        self.pend = []
        self.mk = 0
        self.k = K()
        self.fast = fast
        self.loc = "" if fast else " sc1"
        self.stop = stop
        self.abort = "L_abort"
        self.stamps = stamps

    def srd(self, ptr, nbytes):
        k = self.k
        k(f"""s_mov_b32 s{SRD_A}, s{ptr}
              s_mov_b32 s{SRD_A+1}, s{ptr+1}
              s_mov_b32 s{SRD_A+2}, {nbytes}
              s_mov_b32 s{SRD_A+3}, 0x20000""")

    def budget(self, retry):
        self.k(f"""s_sub_u32 s{S_BUD}, s{S_BUD}, 1
                   s_cmp_gt_i32 s{S_BUD}, 0
                   s_cbranch_scc1 {retry}
                   s_branch {self.abort}""")

    def spend(self, inc=None, cnt=None):
        if self.stamps and inc:
            self.k(f"s_add_u32 s{cnt}, s{cnt}, {inc}")
        self.k(f"""s_sub_u32 s{S_BUD}, s{S_BUD}, 1
                   s_cbranch_scc1 {self.abort}""")

    def wsum(self, x, t):
        k = self.k
        for r in (8, 4, 2, 1):
            k(f"v_add_f32_dpp v{x}, v{x}, v{x} row_ror:{r} row_mask:0xf bank_mask:0xf")
        k(f"""v_mov_b32 v{t}, v{x}
              v_permlane16_swap_b32 v{x}, v{t}
              v_add_f32 v{x}, v{x}, v{t}
              v_mov_b32 v{t}, v{x}
              v_permlane32_swap_b32 v{x}, v{t}
              v_add_f32 v{x}, v{x}, v{t}""")

    def unpack8(self, dst, src):
        k = self.k
        for q in range(4):
            k(f"v_lshlrev_b32 v{dst+2*q}, 16, v{src+q}")
            k(f"v_and_b32 v{dst+2*q+1}, 0xffff0000, v{src+q}")

    def pack8(self, dst, src):
        for q in range(4):
            self.k(f"v_cvt_pk_bf16_f32 v{dst+q}, v{src+2*q}, v{src+2*q+1}")

    def round1(self, x):
        self.k(f"""v_cvt_pk_bf16_f32 v{x}, v{x}, v{x}
                   v_and_b32 v{x}, 0xffff0000, v{x}""")

    def layernorm(self, x, ypk, tmp):
        k = self.k
        d = tmp; s = tmp + 8; q = tmp + 10; t = tmp + 12
        c = S_T + 22
        k(f"v_readfirstlane_b32 s{c}, v{x}")
        for j in range(0, 8, 2):
            k(f"v_pk_add_f32 {vr(d+j,2)}, {vr(x+j,2)}, {sr(c,2)} op_sel_hi:[1,0] neg_lo:[0,1] neg_hi:[0,1]")
        k(f"""v_pk_add_f32 {vr(s,2)}, {vr(d,2)}, {vr(d+2,2)}
              v_pk_mul_f32 {vr(q,2)}, {vr(d,2)}, {vr(d,2)}
              v_pk_add_f32 {vr(t,2)}, {vr(d+4,2)}, {vr(d+6,2)}
              v_pk_fma_f32 {vr(q,2)}, {vr(d+2,2)}, {vr(d+2,2)}, {vr(q,2)}
              v_pk_add_f32 {vr(s,2)}, {vr(s,2)}, {vr(t,2)}
              v_pk_fma_f32 {vr(q,2)}, {vr(d+4,2)}, {vr(d+4,2)}, {vr(q,2)}
              v_add_f32 v{s}, v{s}, v{s+1}
              v_pk_fma_f32 {vr(q,2)}, {vr(d+6,2)}, {vr(d+6,2)}, {vr(q,2)}
              v_add_f32 v{q}, v{q}, v{q+1}""")
        k(f"""v_permlane32_swap_b32 v{s}, v{q}
              v_add_f32 v{s}, v{s}, v{q}""")
        for r in (8, 4, 2, 1):
            k(f"v_add_f32_dpp v{s}, v{s}, v{s} row_ror:{r} row_mask:0xf bank_mask:0xf")
        k(f"""v_mov_b32 v{q}, v{s}
              v_permlane16_swap_b32 v{s}, v{q}
              v_add_f32 v{s}, v{s}, v{q}
              v_mul_f32 v{s}, {f32(1.0/512)}, v{s}
              v_mov_b32 v{q}, v{s}
              v_permlane32_swap_b32 v{s}, v{q}
              v_fma_f32 v{q}, -v{s}, v{s}, v{q}
              v_add_f32 v{s}, s{c}, v{s}
              v_max_f32 v{q}, 0, v{q}
              v_cvt_pk_bf16_f32 v{q}, v{s}, v{q}
              v_lshlrev_b32 v{s}, 16, v{q}
              v_and_b32 v{q}, 0xffff0000, v{q}
              v_add_f32 v{q}, {f32(1e-5)}, v{q}""")
        self.round1(q)
        k(f"v_sqrt_f32 v{q}, v{q}")
        for j in range(0, 8, 2):
            k(f"v_pk_add_f32 {vr(d+j,2)}, {vr(x+j,2)}, {vr(s,2)} op_sel_hi:[1,0] neg_lo:[0,1] neg_hi:[0,1]")
        self.round1(q)
        k(f"v_rcp_f32 v{q}, v{q}")
        self.pack8(ypk, d)
        self.unpack8(d, ypk)
        for j in range(0, 8, 2):
            k(f"v_pk_mul_f32 {vr(d+j,2)}, {vr(d+j,2)}, {vr(q,2)} op_sel_hi:[1,0]")
        self.pack8(ypk, d)

    def add8(self, x, y):
        for j in range(0, 8, 2):
            self.k(f"v_pk_add_f32 {vr(x+j,2)}, {vr(x+j,2)}, {vr(y+j,2)}")

    def arrive(self):
        k = self.k
        D = k.newlabel("L_ar")
        k(f"""s_barrier
              s_cmp_lg_u32 s{S_W}, 0
              s_cbranch_scc1 {D}
              v_mov_b32 v8, 240
              v_mov_b32 v9, s{S_CNT}
              s_mov_b64 exec, 1
              buffer_atomic_add v9, v8, {DBG}, 0 offen
              s_mov_b64 exec, -1""")
        k.label(D)
        k(f"s_mov_b32 s{S_CNT}, 0")
        self.ev(1, va=10)

    def wait_all(self, quick=False):
        k = self.k
        L = k.newlabel("L_gb"); D = k.newlabel("L_gbd")
        k(f"""v_mov_b32 v123, {L_MISC}
              s_cmp_lg_u32 s{S_W}, 0
              s_cbranch_scc1 {D}
              v_mov_b32 v124, 240""")
        if quick:
            k(f"""s_buffer_load_dword s{S_T}, {DBG}, 240
                  s_waitcnt lgkmcnt(0)
                  v_mov_b32 v125, s{S_T}
                  ds_write_b32 v123, v125
                  s_bitcmp1_b32 s{S_T}, 8
                  s_cbranch_scc1 {D}""")
        k.label(L)
        k(f"""buffer_load_dword v125, v124, {DBG}, 0 offen sc1
              s_waitcnt vmcnt(0)
              v_readfirstlane_b32 s{S_T}, v125
              ds_write_b32 v123, v125
              s_bitcmp1_b32 s{S_T}, 8
              s_cbranch_scc1 {D}
              s_sleep 4""")
        self.budget(L)
        k.label(D)
        k(f"""s_waitcnt lgkmcnt(0)
              s_barrier
              ds_read_b32 v125, v123
              s_waitcnt lgkmcnt(0)
              v_readfirstlane_b32 s{S_T}, v125
              s_barrier
              s_lshr_b32 s{S_T}, s{S_T}, 16
              s_andn2_b32 s{S_T}, s{S_T}, s{S_SLOW}
              s_cbranch_scc1 L_spread""")

    def page(self, dst, off, seg=S_SEG, head=True):
        k = self.k
        k(f"s_lshl_b32 s{dst}, s{seg}, 13")
        if head:
            k(f"s_lshl2_add_u32 s{dst}, s{S_H}, s{dst}")
        k(f"s_add_u32 s{dst}, s{dst}, {PG_OFF + off}")

    def word_wait(self, s_off, s_val, va=125, sleep=0, quick=False):
        k = self.k
        L, D = k.newlabel("L_ww"), k.newlabel("L_wwd")
        if quick:
            k(f"""s_buffer_load_dword s{s_val}, {WS}, s{s_off}
                  s_waitcnt lgkmcnt(0)
                  s_cmp_lg_u32 s{s_val}, 0
                  s_cbranch_scc1 {D}""")
        k.label(L)
        if sleep:
            k(f"s_sleep {sleep}")
        k(f"buffer_load_dword v{va}, off, {WS}, s{s_off} sc1")
        self.spend()
        k(f"""s_waitcnt vmcnt(0)
              v_readfirstlane_b32 s{s_val}, v{va}
              s_cmp_eq_u32 s{s_val}, 0
              s_cbranch_scc1 {L}""")
        k.label(D)

    def stamp(self, name):
        pts = self.opt.get("pts", [0, 1, 2, 3, 4, 5, 6, 7])
        if self.stamps > 1 and name in pts:
            i = pts.index(name)
            self.k(f"s_memtime s[{84+2*i}:{85+2*i}]")

    def ev(self, tag, va=126, clk="s_memrealtime"):
        if not self.stamps:
            return
        k = self.k
        D = k.newlabel("L_ps")
        k(f"""s_cmp_lg_u32 s{S_W}, 0
              s_cbranch_scc1 {D}
              {clk} s[82:83]
              s_or_b32 s100, s{S_SEG}, {tag << 8}
              s_waitcnt lgkmcnt(0)
              s_mov_b64 exec, 1
              v_mov_b32 v{va}, s82
              v_mov_b32 v{va+1}, s100
              buffer_store_dwordx2 {vr(va,2)}, off, {WS}, s{S_EV}
              s_mov_b64 exec, -1
              s_add_u32 s{S_EV}, s{S_EV}, 8""")
        k.label(D)

    def mark(self, tag):
        if self.stamps != 1 or tag not in self.opt.get("marks", ()):
            return
        i = len(self.pend); assert i < 6
        self.pend.append(tag)
        self.k(f"{'s_memtime' if self.opt.get('mt') else 's_memrealtime'} s[{88+2*i}:{89+2*i}]")

    def flush(self, va=126):
        if not self.pend:
            return
        k = self.k
        D = k.newlabel("L_fl")
        k(f"""s_cmp_lg_u32 s{S_W}, 0
              s_cbranch_scc1 {D}
              s_waitcnt lgkmcnt(0)
              s_mov_b64 exec, 1""")
        for i, tag in enumerate(self.pend):
            k(f"""s_or_b32 s100, s{S_SEG}, {tag << 8}
                  v_mov_b32 v{va}, s{88+2*i}
                  v_mov_b32 v{va+1}, s100
                  buffer_store_dwordx2 {vr(va,2)}, off, {WS}, s{S_EV}
                  s_add_u32 s{S_EV}, s{S_EV}, 8""")
        k("s_mov_b64 exec, -1")
        k.label(D)
        self.pend = []

    def prologue(self):
        k = self.k
        k(f"""s_cmp_ge_u32 s2, 256
              s_cbranch_scc1 L_abort
              {"s_memrealtime s[98:99]" if self.stamps else ""}
              s_load_dwordx16 s[16:31], s[0:1], 0
              s_load_dwordx8 s[32:39], s[0:1], 64
              s_load_dwordx4 s[40:43], s[0:1], 96
              s_load_dwordx2 s[44:45], s[0:1], 112
              v_lshrrev_b32 v2, 6, v0
              v_and_b32 v{V_LANE}, 63, v0
              v_readfirstlane_b32 s{S_W}, v2
              v_lshlrev_b32 v{V_L16}, 4, v{V_LANE}
              s_getreg_b32 s{S_G}, hwreg(HW_REG_XCC_ID)
              s_and_b32 s{S_G}, s{S_G}, {self.opt.get("xmask", 7)}
              s_lshl_b32 s{S_G}, s{S_G}, 2
              s_lshr_b32 s{S_G}, {sum(g << (4*x) for x, g in enumerate(self.opt.get("map", (0, 6, 2, 4, 1, 7, 3, 5))))}, s{S_G}
              s_and_b32 s{S_G}, s{S_G}, 7
              s_mov_b32 s{S_BUD}, 100000
              s_mov_b32 s{S_C}, {f32(SCALE_LOG2E)}
              s_waitcnt lgkmcnt(0)
              s_mov_b32 s{SRD_WS}, s{P_WS}
              s_mov_b32 s{SRD_WS+1}, s{P_WS+1}
              s_mov_b32 s{SRD_WS+2}, {WS_SIZE}
              s_mov_b32 s{SRD_WS+3}, 0x20000
              s_mov_b32 s{SRD_DBG}, s{P_DBG}
              s_mov_b32 s{SRD_DBG+1}, s{P_DBG+1}
              s_mov_b32 s{SRD_DBG+2}, 256
              s_mov_b32 s{SRD_DBG+3}, 0x20000""")
        T = k.newlabel("L_tk")
        k(f"""s_lshl_b32 s{S_T}, s{S_G}, 2
              s_lshr_b32 s{S_T}, {sum(g << (4*x) for x, g in enumerate(self.opt.get("tw", (0, 12, 13, 14, 2, 4, 8, 10))))}, s{S_T}
              s_and_b32 s{S_T}, s{S_T}, 15
              s_lshl_b32 s{S_T}, s{S_T}, 4
              v_mov_b32 v14, s{S_T}
              v_mov_b32 v15, 1
              s_cmp_lg_u32 s{S_W}, 0
              s_cbranch_scc1 {T}
              s_cmp_ge_u32 s{S_T}, 192                       ; groups that are needed later ask later
              s_cbranch_scc1 {T}
              s_mov_b64 exec, 1
              buffer_atomic_add v15, v14, {DBG}, 0 offen sc0
              s_mov_b64 exec, -1""")
        k.label(T)
        self.init_ws()
        T = k.newlabel("L_tk")
        k(f"""s_cmp_lg_u32 s{S_W}, 0
              s_cbranch_scc1 {T}
              s_mov_b64 exec, 1
              s_sub_u32 s{S_T}, s{S_G}, 1
              s_cmp_gt_u32 s{S_T}, 2
              s_cbranch_scc1 {T}x
              s_waitcnt vmcnt(8)
              buffer_atomic_add v15, v14, {DBG}, 0 offen sc0
              s_waitcnt vmcnt(0)
              {T}x:
              v_mov_b32 v14, {L_MISC}
              s_waitcnt vmcnt(10)
              ds_write_b32 v14, v15
              s_mov_b64 exec, -1
              s_waitcnt lgkmcnt(0)""")
        k.label(T)
        k(f"""s_barrier
              v_mov_b32 v14, {L_MISC}
              ds_read_b32 v2, v14
              s_waitcnt lgkmcnt(0)
              v_readfirstlane_b32 s{S_H}, v2
              s_mov_b32 s{S_SLOW}, 0
              s_cmp_ge_u32 s{S_H}, 32
              s_cselect_b32 s{S_CNT}, 0x10001, 1
              s_and_b32 s{S_H}, s{S_H}, 31
              s_lshl_b32 s{S_LW}, s{S_W}, 10
              s_cmp_eq_u32 s{S_W}, 0
              s_cselect_b32 s{S_OOB}, 0, 0x80000000
              s_mov_b32 s{S_ONE}, 0x3f803f80
              s_mov_b32 s{S_ONE+1}, 0x3f803f80
              s_mov_b32 s{S_SEG}, 0""")
        if self.opt.get("mix", 1):
            k(f"""s_bfe_u32 s{S_T}, s{S_G}, 0x10001
                  s_and_b32 s{S_T+1}, s{S_G}, 1
                  s_add_u32 s{S_T+2}, s{S_T}, 6
                  s_sub_u32 s{S_T+3}, 5, s{S_T+1}
                  s_cmp_ge_u32 s{S_H}, 16
                  s_cselect_b32 s{S_T+2}, s{S_T+2}, s{S_T+3}
                  s_cselect_b32 s{S_T+1}, s{S_T+1}, s{S_T}
                  s_and_b32 s{S_T+3}, s{S_H}, 15
                  s_lshl4_add_u32 s{S_T+1}, s{S_T+1}, s{S_T+3}
                  s_cmp_ge_u32 s{S_G}, 4
                  s_cselect_b32 s{S_G}, s{S_T+2}, s{S_G}
                  s_cselect_b32 s{S_H}, s{S_T+1}, s{S_H}""")
        if self.stamps:
            k(f"""s_lshl_b32 s{S_EV}, s{S_G}, 5
                  s_add_u32 s{S_EV}, s{S_EV}, s{S_H}
                  s_lshl_b32 s{S_EV}, s{S_EV}, 12
                  s_add_u32 s{S_EV}, s{S_EV}, {STAMP_OFF + MB}""")

    def init_ws(self):
        k = self.k
        D = k.newlabel("L_m0")
        self.srd(P_MEM0, 8192)
        k(f"""s_cmp_ge_u32 s2, 2
              s_cbranch_scc1 {D}
              s_lshl_b32 s{S_T}, s2, 2
              s_add_u32 s{S_T}, s{S_T}, s{S_W}          ; ks
              v_bfe_u32 v2, v{V_LANE}, 2, 2
              v_and_b32 v3, 1, v{V_LANE}
              v_lshl_add_u32 v2, v2, 1, v3               ; m
              v_lshlrev_b32 v2, 10, v2
              v_lshrrev_b32 v3, 4, v{V_LANE}
              v_lshl_add_u32 v2, v3, 5, v2               ; + ga*32
              v_and_b32 v3, 2, v{V_LANE}
              v_lshl_add_u32 v2, v3, 1, v2               ; + hi*4
              s_lshl_b32 s{S_T+1}, s{S_T}, 7             ; ks*128""")
        for q in range(4):
            k(f"buffer_load_dword v{64+q}, v2, {SA}, s{S_T+1} offen offset:{8*q}")
        k.label(D)
        self.srd(P_X, 2048 * 1024)
        k(f"""s_lshl_b32 s{S_T}, s2, 3
              s_lshl_b32 s{S_T+9}, s{S_W}, 1
              s_add_u32 s{S_T}, s{S_T}, s{S_T+9}
              s_lshl_b32 s{S_T+9}, s{S_T}, 10
              buffer_load_dwordx4 v[24:27], v{V_L16}, {SA}, s{S_T+9} offen
              buffer_load_dwordx4 v[28:31], v{V_L16}, {SA}, s{S_T+9} offen offset:1024""")
        k(f"""s_lshl_b32 s{S_T}, s2, 12
              s_lshl_b32 s{S_T+1}, s{S_W}, 10
              s_add_u32 s{S_T}, s{S_T}, s{S_T+1}
              v_add_u32 v2, s{S_T}, v{V_L16}
              v_mov_b32 v4, -1
              v_mov_b32 v5, -1
              v_mov_b32 v6, -1
              v_mov_b32 v7, -1
              v_mov_b32 v8, 0
              v_mov_b32 v9, 0
              v_mov_b32 v10, 0
              v_mov_b32 v11, 0""")
        k(f"""v_cmp_gt_u32 vcc, {512*KB}, v2
              v_mov_b32 v3, {PC_OFF[0] - 512*KB}
              v_mov_b32 v12, {MEM_OFF[0] + 8*KB}
              v_cndmask_b32 v3, v3, v12, vcc
              v_add_u32 v3, v3, v2""")
        for c in range(3):
            k(f"s_mov_b32 s{S_T}, {c*MB}")
            k(f"buffer_store_dwordx4 v[4:7], v3, {WS}, s{S_T} offen sc1")
        for i in range(2):
            k(f"s_mov_b32 s{S_T}, {X1_OFF[0] + i*MB}")
            k(f"buffer_store_dwordx4 v[4:7], v2, {WS}, s{S_T} offen sc1")
        k(f"""v_add_u32 v3, {MEMX_OFF + 8*KB - 512*KB}, v2
              v_mov_b32 v12, 0x80000000
              v_cndmask_b32 v3, v3, v12, vcc
              buffer_store_dwordx4 v[4:7], v3, {WS}, 0 offen sc1
              v_cmp_gt_u32 vcc, {NPAGES*2*KB}, v2
              v_lshrrev_b32 v3, 11, v2
              v_lshlrev_b32 v3, 13, v3
              v_and_b32 v13, 0x7ff, v2
              v_add_u32 v3, v3, v13
              v_add_u32 v3, {PG_OFF}, v3
              v_cndmask_b32 v3, v12, v3, vcc
              buffer_store_dwordx4 v[8:11], v3, {WS}, 0 offen sc1
              v_add_u32 v3, {HPS_OFF - 256*KB}, v2
              v_lshrrev_b32 v13, 16, v2
              v_cmp_eq_u32 vcc, 4, v13
              v_cndmask_b32 v3, v12, v3, vcc
              buffer_store_dwordx4 v[4:7], v3, {WS}, 0 offen sc1""")

    def init_rows(self, younger):
        k = self.k
        D = k.newlabel("L_m0")
        t = S_T + 10
        k(f"""s_cmp_eq_u32 s{S_CNT}, 0
              s_cbranch_scc1 {D}
              s_waitcnt vmcnt({8 + younger})""")
        assert H_OFF[0] == 0
        for i in range(2):
            self.unpack8(32, 24 + 4 * i)
            self.layernorm(32, 40 + 4 * i, 48)
            k(f"buffer_store_dwordx4 {vr(40+4*i,4)}, v{V_L16}, {WS}, s{S_T+9} offen offset:{1024*i} sc1")
        k(f"""s_cmp_ge_u32 s2, 2
              s_cbranch_scc1 {D}""")
        self.mfrag_voff(12, 13)
        k(f"""s_lshl_b32 s{t}, s2, 2
              s_add_u32 s{t}, s{t}, s{S_W}          ; ks
              s_and_b32 s{t+1}, s{t}, 1
              s_lshl_b32 s{t+1}, s{t+1}, 8
              s_and_b32 s{t+2}, s{t}, 2
              s_lshl_b32 s{t+2}, s{t+2}, 6
              s_add_u32 s{t+1}, s{t+1}, s{t+2}
              s_and_b32 s{t+2}, s{t}, 4
              s_lshl_b32 s{t+2}, s{t+2}, 10
              s_add_u32 s{t+1}, s{t+1}, s{t+2}""")
        for off in (MEM_OFF[0], MEM_OFF[1], MEMX_OFF):
            k(f"s_add_u32 s{t+2}, s{t+1}, {off}")
            k(f"buffer_store_dwordx4 v[64:67], v12, {WS}, s{t+2} offen sc1")
        k.label(D)

    def mfrag_voff(self, dst, t):
        self.k(f"""v_lshrrev_b32 v{dst}, 3, v{V_LANE}
                   v_lshlrev_b32 v{dst}, 9, v{dst}
                   v_and_b32 v{t}, 7, v{V_LANE}
                   v_lshl_add_u32 v{dst}, v{t}, 4, v{dst}""")

    def load_qkv(self):
        k = self.k
        GA, RE, RO, TE, TO = 2, 3, 4, 5, 6
        sB, sL, sR, sG = S_T + 2, S_T + 3, S_T + 7, S_T + 4
        k(f"""v_lshrrev_b32 v{GA}, 2, v{V_LANE}
              v_lshrrev_b32 v{RE}, 5, v{V_LANE}
              v_xor_b32 v{GA}, v{GA}, v{RE}                  ; place p holds row p ^ (p >> 3 & 1)
              v_lshlrev_b32 v{GA}, 13, v{GA}
              v_and_b32 v{RE}, 3, v{V_LANE}
              v_lshl_add_u32 v{GA}, v{RE}, 4, v{GA}
              v_and_b32 v{RE}, 15, v{V_LANE}
              v_lshlrev_b32 v{RE}, 2, v{RE}
              v_lshrrev_b32 v{RO}, 4, v{V_LANE}
              v_lshl_add_u32 v{RE}, v{RO}, 9, v{RE}
              v_and_b32 v{RO}, 1, v{RO}
              v_lshl_add_u32 v{RE}, v{RO}, 6, v{RE}
              s_lshl_b32 s{sL}, s{S_W}, 15
              s_cmp_lt_u32 s{S_G}, 3
              s_cselect_b32 s{sR}, s{S_W}, 0
              s_lshl_b32 s{S_T}, s{sR}, 12
              s_add_u32 s{S_T}, s{sL}, s{S_T}
              v_add_u32 v{RE}, s{S_T}, v{RE}
              v_xor_b32 v{RO}, 64, v{RE}
              s_lshl_b32 s{sB}, s{S_H}, 8
              s_lshl_b32 s{S_T}, s{S_W}, 6
              s_add_u32 s{sB}, s{sB}, s{S_T}
              s_mov_b32 s{S_T+5}, 0x05040100
              s_mov_b32 s{S_T+6}, 0x07060302""")
        mats = (("k", P_WK), ("v", P_WV), ("q", P_WQ))
        def issue(n):
            if n % 16 == 0:
                self.srd(mats[n // 16][1], 4 * MB)
            kk = n % 16
            k(f"""s_xor_b32 m0, s{sL}, {kk * 2048}
                  s_xor_b32 s{sG}, s{sB}, {kk * 32 * 8192}
                  buffer_load_dwordx4 v{GA}, {SA}, s{sG} offen lds
                  s_add_u32 m0, m0, 1024
                  s_add_u32 s{sG}, s{sG}, {16 * 8192}
                  buffer_load_dwordx4 v{GA}, {SA}, s{sG} offen lds""")
        def reads(n):
            kk = n % 16; b = 96 + 8 * (n & 1)
            k(f"""v_xor_b32 v{TE}, {kk * 2048}, v{RE}
                  v_xor_b32 v{TO}, {kk * 2048}, v{RO}
                  ds_read2_b32 {vr(b,2)}, v{TE} offset1:32
                  ds_read2_b32 {vr(b+4,2)}, v{TO} offset1:32
                  ds_read2_b32 {vr(b+2,2)}, v{TE} offset0:64 offset1:96
                  ds_read2_b32 {vr(b+6,2)}, v{TO} offset0:64 offset1:96""")
        for n in range(16):
            issue(n)
        self.init_rows(32)
        for n in range(48):
            m = mats[n // 16][0]; kk = n % 16; b = 96 + 8 * (n & 1)
            if n == 40:
                NW, J_ = k.newlabel("L_lw"), k.newlabel("L_lj")
                self.load_wo(0, skip=f"""s_cmp_ge_u32 s{S_G}, 3
                                         s_cbranch_scc1 {NW}""")
                k(f"""s_waitcnt vmcnt(16)
                      s_branch {J_}
                      {NW}:
                      s_waitcnt vmcnt(0)
                      {J_}:""")
            elif n % 8 == 0:
                k("s_waitcnt vmcnt(16)")
            if n == 8:
                self.arrive()
            if n % 8 == 0:
                reads(n)
            if n % 8 < 7:
                reads(n + 1)
            k(f"s_waitcnt lgkmcnt({4 if n % 8 < 7 else 0})")
            if n % 8 == 7 and n + 9 < 48:
                for x in range(n + 9, n + 17):
                    issue(x)
            for t in range(2):
                for q in range(4):
                    d = (0 if m == "q" else 128) + ((kk >> 1) * 2 + t) * 8 + 4 * (kk & 1) + q
                    k(f"v_perm_b32 v{d if m == 'v' else 112+4*t+q}, v{b+4+q}, v{b+q}, s{S_T+5+t}")
            if m != "v":
                for t in range(2):
                    for q in range(4):
                        d = (0 if m == "q" else 128) + ((kk >> 1) * 2 + t) * 8 + 4 * (kk & 1) + q
                        k(f"v_accvgpr_write_b32 a{d}, v{112+4*t+q}")

    def wo_slot(self, dst, c, g, t):
        self.k(f"""v_and_b32 v{dst}, 1, v{g}
                   v_xor_b32 v{dst}, v{dst}, v{c}
                   v_and_b32 v{dst}, 3, v{dst}
                   v_lshrrev_b32 v{t}, 2, v{c}
                   v_lshl_add_u32 v{dst}, v{dst}, 2, v{t}
                   v_lshl_add_u32 v{dst}, v{g}, 4, v{dst}
                   v_lshlrev_b32 v{dst}, 4, v{dst}""")

    def load_wo(self, part, extra=0, skip=""):
        k = self.k
        GA, WE, WO_ = 92, 93, 94
        NB = 4
        if part == 0:
            self.srd(P_WO, 4 * MB)
            k(f"""v_and_b32 v{GA}, 3, v{V_LANE}
                  v_lshlrev_b32 v{WE}, 4, v{GA}
                  v_bfe_u32 v{WO_}, v{V_LANE}, 2, 2
                  v_lshl_add_u32 v{GA}, v{WO_}, 12, v{WE}
                  v_lshl_add_u32 v{WE}, v{WO_}, 8, v{WE}
                  v_and_b32 v{WO_}, 1, v{WO_}
                  v_lshl_add_u32 v{WE}, v{WO_}, 6, v{WE}
                  v_lshrrev_b32 v{WO_}, 4, v{V_LANE}
                  v_lshl_add_u32 v{GA}, v{WO_}, 8, v{GA}
                  v_lshl_add_u32 v{WE}, v{WO_}, 13, v{WE}
                  s_lshl_b32 s{S_T}, s{S_W}, 15
                  v_add_u32 v{WE}, s{S_T}, v{WE}
                  v_xor_b32 v{WO_}, 64, v{WE}
                  s_lshl_b32 s{S_T}, s{S_H}, 17
                  s_lshl_b32 s{S_T+1}, s{S_W}, 6
                  s_add_u32 s{S_T}, s{S_T}, s{S_T+1}
                  v_add_u32 v{GA}, s{S_T}, v{GA}
                  {skip}""")
        def issue(i):
            k(f"s_mov_b32 s{S_T}, {i * 16 * 1024}")
            for j in range(4):
                k(f"buffer_load_dwordx4 {vr(24+16*(i%NB)+4*j,4)}, v{GA}, {SA}, s{S_T} offen offset:{j*1024}")
        for i in range(NB if part == 0 else 0):
            issue(i)
        for i in {0: (), 1: range(8), 2: range(8 - NB), 3: range(8 - NB, 8)}[part]:
            b = 24 + 16 * (i % NB)
            k(f"s_waitcnt vmcnt({min(7 - i, NB - 1) * 4 + extra})")
            for x in range(4):
                for y in range(x + 1, 4):
                    k(f"v_swap_b32 v{b+4*x+y}, v{b+4*y+x}")
            for q in range(4):
                k(f"ds_write_b128 v{WO_ if q & 1 else WE}, {vr(b+4*q,4)} offset:{i*1024 + (q>>1)*128}")
            if i + NB < 8:
                k("s_waitcnt lgkmcnt(0)")
                issue(i + NB)

    def qkv_base(self, dst, which):
        self.k(f"""s_lshl_b32 s{dst}, s{S_SEG}, 5
                   s_add_u32 s{dst}, s{dst}, s{S_H}
                   s_mul_i32 s{dst}, s{dst}, {24*KB}
                   s_add_u32 s{dst}, s{dst}, {QKV_OFF[which] if isinstance(which, int) else which}""")

    def t1_dma(self, s_h, quarters, voff=None, reg=0, sb=S_LW):
        voff = voff or (self.THD, self.THD)
        out = []
        for qi in quarters:
            for u in range(2):
                out.append(f"s_add_u32 m0, s{sb}, {self.LH + reg*32*KB + qi*8192 + u*4096 - qi*256}")
                out.append(f"buffer_load_dwordx4 v{voff[u]}, {WS}, s{s_h+u} offen offset:{qi*256} sc1 lds")
        return out

    def t1_src(self, dst, seg, hreg):
        self.k(f"""s_lshl_b32 s{dst}, s{seg}, 15
                   s_add_u32 s{dst}, s{dst}, {H_OFF[hreg]}
                   s_add_u32 s{dst+1}, s{dst}, {16*KB}""")

    def flag_store(self, s_off, loc):
        self.k(f"""s_or_b32 s{s_off}, s{s_off}, s{S_OOB}
                   buffer_store_dword v{self.TOB}, off, {WS}, s{s_off}{loc}""")

    def t1(self, which, s_h, voff=None, pre=0, nxt=None, s_flag=None, extra=(), x_flag=None, qloc=False, s_keep=0, rot=False):
        k = self.k
        ACC = 24; RING = (72, 80, 108)
        aq = lambda t, u: ACC + (t * 2 + u) * 4
        ak = lambda t, u: ACC + 16 + (t * 2 + u) * 4
        av = lambda t, u: ACC + 32 + (t * 2 + u) * 4
        first, later = ((0, 1), (2, 3)) if rot else ((0, 1, 2), (3,))
        if not pre:
            for x in self.t1_dma(s_h, first, voff):
                k(x)
        self.qkv_base(S_T + 2, which)
        k(f"""s_add_u32 s{S_T+5}, s{S_T+2}, s{S_LW}      ; K u0
              s_add_u32 s{S_T+6}, s{S_T+5}, 4096         ; K u1
              s_add_u32 s{S_T+7}, s{S_T+5}, {16*KB}      ; Q u0
              s_add_u32 s{S_T+8}, s{S_T+5}, {20*KB}      ; Q u1
              s_add_u32 s{S_T+9}, s{S_T+5}, s{S_LW}
              s_add_u32 s{S_T+9}, s{S_T+9}, {8*KB}       ; V""")
        if rot:
            rd = lambda kk: [f"ds_read_b128 {vr(RING[kk%3]+4*u,4)}, v{self.THR+(kk&7)} offset:{(kk>>3)*16384+u*4096}" for u in range(2)]
        else:
            rd = lambda kk: [f"ds_read_b128 {vr(RING[kk%3]+4*u,4)}, v{self.THR+(kk&3)} offset:{(kk>>2)*8192+u*4096}" for u in range(2)]
        k(f"s_waitcnt vmcnt({(0 if rot else 4) + pre})")
        k("s_barrier")
        self.mark(self.mk + 0)
        for x in rd(0) + rd(1):
            k(x)
        for x in self.t1_dma(s_h, later, voff):
            k(x)
        for x in extra:
            k(x)
        ne = len(extra); nl = 2 * len(later)
        side = []
        for kk in range(16):
            b = RING[kk % 3]
            n = kk + 2
            last_q = (n == 8) if rot else (n == 12)
            if last_q:
                k(f"s_waitcnt vmcnt({1 if (s_flag and not rot) else 0})")
                k("s_barrier")
                if x_flag:
                    self.flag_store(x_flag, " sc1")
                if s_flag and rot:
                    self.flag_store(s_flag, " sc1")
            elif not rot and n in (4, 8):
                k(f"s_waitcnt vmcnt({(2 if n == 4 else 0) + pre + nl + ne})")
                k("s_barrier")
            if kk == 7 and s_flag and not rot:
                assert not extra
                k(f"s_waitcnt vmcnt({nl + s_keep})")
                k("s_barrier")
                self.flag_store(s_flag, " sc1")
            if kk == 12 and nxt:
                k("s_barrier")
                side = list(nxt)
            k(f"s_waitcnt lgkmcnt({2 if kk < 15 else 0})")
            ks, hf = kk >> 1, kk & 1
            fill = rd(n) if n < 16 else []
            i = 0
            for t in range(2):
                for u in range(2):
                    h = vr(b + 4 * u, 4)
                    for acc, w, tr in ((ak, wk, True), (av, wv, False), (aq, wq, True)):
                        d = vr(acc(t, u), 4)
                        c = "0" if kk == 0 else d
                        a_, b_ = (w(ks, t, hf), h) if tr else (h, w(ks, t, hf))
                        k(f"v_mfma_f32_16x16x32_bf16 {d}, {a_}, {b_}, {c}")
                        i += 1
                        if fill and i % 2 == 1:
                            k(fill.pop(0))
                        elif side:
                            k(side.pop(0))
        assert not side
        self.mark(self.mk + 3)
        if which == 0:
            k(f"""s_lshl_b32 s{S_T}, s{S_SEG}, 5
                  s_add_u32 s{S_T}, s{S_T}, s{S_H}
                  s_lshl_b32 s{S_T}, s{S_T}, 12
                  s_add_u32 s{S_T}, s{S_T}, s{S_LW}
                  s_add_u32 s{S_T}, s{S_T}, {KVM_OFF[0]}
                  v_mov_b64 v[120:121], -1
                  v_mov_b64 v[122:123], -1
                  buffer_store_dwordx4 v[120:123], v{V_L16}, {WS}, s{S_T} offen sc1""")
        for i, (acc, so) in enumerate(((ak, S_T + 5), (aq, S_T + 7))):
            for u in range(2):
                p = RING[2 * i] + u * 4
                for r in range(4):
                    k(f"v_cvt_pk_bf16_f32 v{p+r}, v{acc(0,u)+r}, v{acc(1,u)+r}")
                k(f"buffer_store_dwordx4 {vr(p,4)}, v{V_L16}, {WS}, s{so+u} offen{'' if (i == 1 and qloc) else ' sc1'}")
            if i == 0:
                for t in range(2):
                    p = RING[1] + t * 4
                    for u in range(2):
                        k(f"v_cvt_pk_bf16_f32 v{p+2*u}, v{av(t,u)}, v{av(t,u)+1}")
                        k(f"v_cvt_pk_bf16_f32 v{p+2*u+1}, v{av(t,u)+2}, v{av(t,u)+3}")
                    k(f"buffer_store_dwordx4 {vr(p,4)}, v{V_L16}, {WS}, s{S_T+9} offen offset:{t*1024} sc1")

    def t1b(self, which, s_h, landed=False, reg=0, s_flag=None, voff=None, nxt=(), early=True, sb=S_LW, peek=None, lead=()):
        k = self.k
        HB = 104; ND = 3
        aq = lambda t, u: 88 + (t * 2 + u) * 4
        ak = lambda t, u: 24 + (t * 2 + u) * 4
        av = lambda t, u: 40 + (t * 2 + u) * 4
        big = self.LH != L_H
        if not landed:
            for x in self.t1_dma(s_h, (0, 1, 2, 3) if big else (0, 1, 2), voff, reg, sb):
                k(x)
        np_ = 0
        pk0 = []
        if peek and landed:
            pk0 = [x.strip() for x in peek[0].split("\n")]
        elif peek:
            k(peek[0]); np_ = 1
        n0_ = len(k.lines)
        self.qkv_base(S_T + 2, which)
        k(f"""s_add_u32 s{S_T+5}, s{S_T+2}, s{S_LW}      ; K u0
              s_add_u32 s{S_T+6}, s{S_T+5}, 4096         ; K u1
              s_add_u32 s{S_T+7}, s{S_T+5}, {16*KB}      ; Q u0
              s_add_u32 s{S_T+8}, s{S_T+5}, {20*KB}      ; Q u1
              s_add_u32 s{S_T+9}, s{S_T+5}, s{S_LW}
              s_add_u32 s{S_T+9}, s{S_T+9}, {8*KB}       ; V""")
        addr = list(lead) + k.lines[n0_:]; del k.lines[n0_:]
        rd = lambda n: [f"ds_read_b128 {vr(HB+(n%ND)*8+4*u,4)}, v{self.THR+(n&3)} offset:{reg*32*KB+((n&15)>>2)*8192+u*4096}" for u in range(2)]
        if not landed:
            k(f"s_waitcnt vmcnt({(6 if big else 4) + np_})")
            k("s_barrier")
        self.mark(self.mk + 0)
        for x in rd(0) + rd(1):
            k(x)
        if not landed and not big:
            for x in self.t1_dma(s_h, (3,), voff, reg):
                k(x)
        first = []
        if which < 2:
            first += [f"s_lshl_b32 s{S_T}, s{S_SEG}, 5\ns_add_u32 s{S_T}, s{S_T}, s{S_H}\ns_lshl_b32 s{S_T}, s{S_T}, 12",
                      f"s_add_u32 s{S_T}, s{S_T}, s{S_LW}\ns_add_u32 s{S_T}, s{S_T}, {KVM_OFF[which]}"]
            first += [f"v_mov_b64 v[72:73], -1\nv_mov_b64 v[74:75], -1"]
            first += [f"buffer_store_dwordx4 v[72:75], v{V_L16}, {WS}, s{S_T} offen sc1"]
            if which:
                first += [f"s_add_u32 s{S_T}, s{S_T}, {KVM_OFF[2] - KVM_OFF[1]}", first[-1]]
        first = ((first + [""] * 6)[:max(6, len(first))] + list(nxt)) if peek else list(nxt) + first
        look = list(peek[1]) if peek else []
        side = []
        P = 56
        for u in range(2):
            for r in range(4):
                side.append(f"v_cvt_pk_bf16_f32 v{P+4*u+r}, v{ak(0,u)+r}, v{ak(1,u)+r}")
            side.append(f"buffer_store_dwordx4 {vr(P+4*u,4)}, v{V_L16}, {WS}, s{S_T+5+u} offen sc1")
        for t in range(2):
            p = P + 8 + t * 4
            for u in range(2):
                side.append(f"v_cvt_pk_bf16_f32 v{p+2*u}, v{av(t,u)}, v{av(t,u)+1}")
                side.append(f"v_cvt_pk_bf16_f32 v{p+2*u+1}, v{av(t,u)+2}, v{av(t,u)+3}")
            side.append(f"buffer_store_dwordx4 {vr(p,4)}, v{V_L16}, {WS}, s{S_T+9} offen offset:{t*1024} sc1")
        if peek:
            side += [""] * self.opt.get("pk2", 4) + [x.strip() for x in peek[0].split("\n")]
        for n in range(32):
            kk = n & 15
            b = HB + (n % ND) * 8
            m = n + 2
            if m in (4, 8, 12) and (not landed or (m == 12 and s_flag)):
                k(f"s_waitcnt vmcnt({(12 - m) // 2 + np_})" if m < 12 else "s_waitcnt vmcnt(0) lgkmcnt(0)" if peek else "s_waitcnt vmcnt(0)")
                k("s_barrier")
                if m == 12 and s_flag:
                    self.flag_store(s_flag, " sc1")
                if m == 12 and peek:
                    k(peek[2])
            if n in (9, 11, 16):
                self.mark(self.mk + {9: 1, 11: 2, 16: 3}[n])
            if not (peek and m == 12):
                k(f"s_waitcnt lgkmcnt({2 if n < 31 else 0})")
            ks, hf = kk >> 1, kk & 1
            fill = rd(m) if m < 32 else []
            i = 0
            cur = first if 10 <= n < 16 else (side if n > 16 else look if n == 9 else pk0 if n == self.opt.get("pkat", 5) else addr if n < 4 else [])
            for t in range(2):
                for u in range(2):
                    h = vr(b + 4 * u, 4)
                    for acc, w, tr in (((ak, wk, True), (av, wv, False)) if n < 16 else ((aq, wq, True),)):
                        d = vr(acc(t, u), 4)
                        c = "0" if kk == 0 else d
                        a_, b_ = (w(ks, t, hf), h) if tr else (h, w(ks, t, hf))
                        k(f"v_mfma_f32_16x16x32_bf16 {d}, {a_}, {b_}, {c}")
                        i += 1
                        if fill and i % 2 == 1:
                            k(fill.pop(0))
                        elif cur and (n < 16 or not cur[0].startswith("v_")):
                            k(cur.pop(0))
                        if n > 16 or (n == 16 and i > 2):
                            for _ in range(2):
                                if side and side[0].startswith("v_"):
                                    k(side.pop(0))
        assert not first and not side and not look and not addr, (len(first), len(side))
        self.mark(self.mk + 4)
        for u in range(2):
            for r in range(4):
                k(f"v_cvt_pk_bf16_f32 v{HB+4*u+r}, v{aq(0,u)+r}, v{aq(1,u)+r}")
        for u in range(2):
            k(f"buffer_store_dwordx4 {vr(HB+4*u,4)}, v{V_L16}, {WS}, s{S_T+7+u} offen sc1")
        if early:
            self.page(S_T + 3, F_KV[which])
            self.flag_set(S_T + 3, " sc1", keep=3 if peek else 2)
        else:
            k(f"s_waitcnt vmcnt({7 if peek else 6})")
            k("s_barrier")
        self.mark(self.mk + 5)
        self.flush()

    def make_sel(self, dst, t):
        k = self.k
        k(f"""v_and_b32 v{t}, 15, v{V_LANE}
              v_and_b32 v{t+1}, 1, v{V_LANE}
              v_lshlrev_b32 v{t+1}, 4, v{t+1}
              v_mov_b32 v{t+2}, 0x3f80
              v_lshlrev_b32 v{t+2}, v{t+1}, v{t+2}
              v_lshrrev_b32 v{t}, 1, v{t}""")
        for q in range(4):
            k(f"v_cmp_eq_u32 vcc, {q}, v{t}")
            k(f"v_cndmask_b32 v{dst+q}, 0, v{t+2}, vcc")

    def softmax(self, S, P, t, fill=None, half=False):
        k = self.k
        fill = list(fill or [])
        def f(n=1):
            for _ in range(n):
                if fill:
                    k(fill.pop(0))
        if half:
            k(f"""v_max3_f32 v{t}, v{S}, v{S+1}, v{S+2}
                  v_max3_f32 v{t+1}, v{S+3}, v{S+10}, v{S+11}""")
        else:
            k(f"""v_max3_f32 v{t}, v{S}, v{S+1}, v{S+2}
                  v_max3_f32 v{t+1}, v{S+3}, v{S+4}, v{S+5}
                  v_max3_f32 v{t}, v{S+6}, v{S+7}, v{t}
                  v_max3_f32 v{t+1}, v{S+10}, v{S+11}, v{t+1}""")
        k(f"""v_max_f32 v{t}, v{t}, v{t+1}
              v_max_f32 v{t+1}, v{t}, v{t+1}""")
        f()
        k(f"""v_permlane16_swap_b32 v{t}, v{t+1}
              v_max_f32 v{t}, v{t}, v{t+1}
              v_max_f32 v{t+1}, v{t}, v{t+1}""")
        f()
        k(f"""v_permlane32_swap_b32 v{t}, v{t+1}
              v_max_f32 v{t}, v{t}, v{t+1}
              v_mul_f32 v{t}, s{S_C}, v{t}""")
        order = [0, 1, 2, 3, 10, 11] if half else [0, 1, 2, 3, 4, 5, 6, 7, 10, 11]
        k(f"v_fma_f32 v{S+order[0]}, v{S+order[0]}, s{S_C}, -v{t}")
        for n, i in enumerate(order):
            if n + 1 < len(order):
                j = order[n + 1]
                k(f"v_fma_f32 v{S+j}, v{S+j}, s{S_C}, -v{t}")
            k(f"v_exp_f32 v{S+i}, v{S+i}")
        for q in range(2 if half else 4):
            k(f"v_cvt_pk_bf16_f32 v{P+q}, v{S+2*q}, v{S+2*q+1}")
        k(f"v_cvt_pk_bf16_f32 v{P+4}, v{S+10}, v{S+11}")
        f(len(fill))

    def chain(self, c):
        k = self.k
        opt = self.opt
        IDX, IDX2, QKW, QKR0, QKR1, OW, OR, PST, MST, WOB, OB, MV = 2, 3, 4, 5, 6, 7, 8, 9, 10, 11, 55, 13
        MX, CK = 12, 123
        SEL, TCH, STS = 18, 22, 23
        M, KX, VX, QK, VA, T = 24, 56, 88, 96, 112, 120
        sMEM, sPC, sRD, sKV, sKVM, sRST, sM2, sU, sNAN, sW2, sFAIL, sPG, sOK, sREC, sFK, sFKB = (S_T + i for i in range(8, 24))
        sMX, sMXB = S_A, S_B
        sKF, sOK2, sJ, sO = 18, 19, 20, 21
        sPUB, sFK1 = 54, 55
        reg = min(c, 1)
        k(f"""v_and_b32 v{T}, 15, v{V_LANE}          ; c
              v_lshrrev_b32 v{T+1}, 4, v{V_LANE}     ; g
              v_and_b32 v{T+2}, 2, v{V_LANE}
              v_cmp_eq_u32 vcc, 0, v{T+2}
              v_mov_b32 v{IDX}, 0xeeee
              v_mov_b32 v{T+3}, 0x4444
              v_cndmask_b32 v{IDX}, v{IDX}, v{T+3}, vcc
              v_and_b32 v{T+2}, 1, v{V_LANE}
              v_cmp_eq_u32 vcc, 0, v{T+2}
              v_mov_b32 v{IDX2}, 0xdddd
              v_mov_b32 v{T+3}, 0x8888
              v_cndmask_b32 v{IDX2}, v{IDX2}, v{T+3}, vcc""")
        k(f"""v_lshrrev_b32 v{T+2}, 1, v{T}           ; b
              v_bfe_u32 v{T+3}, v{T}, 2, 1
              v_xor_b32 v{T+3}, v{T+3}, v{T+2}
              v_lshlrev_b32 v{QKW}, 7, v{T+3}
              v_and_b32 v{T+3}, 1, v{T}
              v_lshl_add_u32 v{QKW}, v{T+3}, 6, v{QKW}
              v_xor_b32 v{T+3}, v{T+1}, v{T+2}
              v_and_b32 v{T+3}, 3, v{T+3}
              v_lshl_add_u32 v{QKW}, v{T+3}, 4, v{QKW}
              s_lshl_b32 s{S_T}, s{S_W}, 10
              s_add_u32 s{S_T}, s{S_T}, {L_QK}
              v_add_u32 v{QKW}, s{S_T}, v{QKW}""")
        for hh, R in ((0, QKR0), (1, QKR1)):
            k(f"""v_lshlrev_b32 v{T+2}, 1, v{T+1}
                  v_add_u32 v{T+2}, {hh}, v{T+2}          ; b
                  v_and_b32 v{T+3}, 1, v{T+1}
                  v_xor_b32 v{T+3}, v{T+3}, v{T+2}
                  v_lshlrev_b32 v{R}, 7, v{T+3}
                  v_bfe_u32 v{T+3}, v{T}, 3, 1
                  v_lshl_add_u32 v{R}, v{T+3}, 6, v{R}
                  v_xor_b32 v{T+3}, v{T}, v{T+2}
                  v_and_b32 v{T+3}, 3, v{T+3}
                  v_lshl_add_u32 v{R}, v{T+3}, 4, v{R}
                  v_bfe_u32 v{T+3}, v{T}, 2, 1
                  v_lshl_add_u32 v{R}, v{T+3}, 3, v{R}
                  v_add_u32 v{R}, {L_QK}, v{R}""")
        k(f"""v_lshlrev_b32 v{OW}, 7, v{T+1}
              v_lshrrev_b32 v{T+2}, 1, v{T}
              v_lshl_add_u32 v{OR}, v{T+2}, 4, v{OW}
              v_add_u32 v{OR}, {L_O}, v{OR}
              v_lshrrev_b32 v{T+2}, 2, v{T}
              v_lshl_add_u32 v{OW}, v{T+2}, 5, v{OW}
              v_and_b32 v{T+2}, 1, v{T}
              v_lshl_add_u32 v{OW}, v{T+2}, 4, v{OW}
              v_and_b32 v{T+2}, 2, v{T}
              v_cmp_eq_u32 vcc, 0, v{T+2}
              s_lshl_b32 s{S_T}, s{S_W}, 9
              v_mov_b32 v{T+2}, 2048
              v_mov_b32 v{T+3}, s{S_T}
              v_cndmask_b32 v{T+2}, v{T+2}, v{T+3}, vcc
              v_add_u32 v{OW}, v{T+2}, v{OW}
              v_add_u32 v{OW}, {L_O}, v{OW}""")
        k(f"""v_lshrrev_b32 v{T+2}, 3, v{V_LANE}
              v_lshlrev_b32 v{PST}, 11, v{T+2}
              v_and_b32 v{T+2}, 7, v{V_LANE}
              v_lshl_add_u32 v{PST}, v{T+2}, 3, v{PST}
              s_lshl_b32 s{S_T}, s{S_W}, 14
              s_lshl_b32 s{S_T+1}, s{S_H}, 6
              s_add_u32 s{S_T}, s{S_T}, s{S_T+1}
              v_add_u32 v{PST}, s{S_T}, v{PST}""")
        k(f"""s_lshl_b32 s{sU}, s{S_W}, 5
              s_add_u32 s{sU}, s{sU}, s{S_H}
              s_bfe_u32 s{S_T}, s{sU}, 0x10003
              s_lshl_b32 s{S_T}, s{S_T}, 11              ; ((U>>3)&1)*4 lines*512
              s_and_b32 s{S_T+1}, s{sU}, 1
              s_lshl_b32 s{S_T+1}, s{S_T+1}, 10          ; (U&1)*2 lines
              s_add_u32 s{S_T}, s{S_T}, s{S_T+1}
              s_bfe_u32 s{S_T+1}, s{sU}, 0x10002
              s_lshl_b32 s{S_T+1}, s{S_T+1}, 9
              s_add_u32 s{S_T}, s{S_T}, s{S_T+1}
              s_bfe_u32 s{S_T+1}, s{sU}, 0x10001
              s_lshl_b32 s{S_T+1}, s{S_T+1}, 6
              s_add_u32 s{S_T}, s{S_T}, s{S_T+1}
              s_bfe_u32 s{S_T+1}, s{sU}, 0x10004
              s_lshl_b32 s{S_T+1}, s{S_T+1}, 8
              s_add_u32 s{S_T}, s{S_T}, s{S_T+1}
              s_bfe_u32 s{S_T+1}, s{sU}, 0x10005
              s_lshl_b32 s{S_T+1}, s{S_T+1}, 7
              s_add_u32 s{S_T}, s{S_T}, s{S_T+1}
              s_bfe_u32 s{S_T+1}, s{sU}, 0x10006
              s_lshl_b32 s{S_T+1}, s{S_T+1}, 12
              s_add_u32 s{S_T}, s{S_T}, s{S_T+1}
              v_and_b32 v{T+2}, 3, v{T}
              v_lshlrev_b32 v{MST}, 2, v{T+2}
              v_bfe_u32 v{T+2}, v{T}, 3, 1
              v_lshl_add_u32 v{MST}, v{T+2}, 4, v{MST}
              v_and_b32 v{T+2}, 1, v{T+1}
              v_lshl_add_u32 v{MST}, v{T+2}, 5, v{MST}
              v_add_u32 v{MST}, s{S_T}, v{MST}
              v_and_b32 v{T+3}, 36, v{V_LANE}
              v_mov_b32 v{T+2}, 0x80000000
              v_cmp_eq_u32 vcc, 0, v{T+3}
              v_cndmask_b32 v{MST}, v{T+2}, v{MST}, vcc
              s_lshl_b32 s{sU}, s{sU}, 11
              s_lshl_b32 s{sW2}, s{S_W}, 11
              s_mov_b32 s{sNAN}, 0xffc00000
              s_mov_b32 s{sFAIL}, 0""")
        self.wo_slot(WOB, T, T + 1, T + 2)
        k(f"""s_lshl_b32 s{S_T}, s{S_W}, 15
              v_add_u32 v{WOB}, s{S_T}, v{WOB}""")
        self.mfrag_voff(MV, T + 2)
        self.make_sel(SEL, T + 2)
        k(f"""s_and_b32 s{S_T}, s{S_W}, 1
              s_lshl_b32 s{S_T}, s{S_T}, 8
              s_and_b32 s{S_T+1}, s{S_W}, 2
              s_lshl_b32 s{S_T+1}, s{S_T+1}, 6
              s_add_u32 s{S_T}, s{S_T}, s{S_T+1}
              v_add_u32 v{MV}, s{S_T}, v{MV}""")
        k(f"""s_add_u32 s{S_T}, s{S_LW}, {L_MB}
              v_add_u32 v{MX}, s{S_T}, v{V_L16}
              v_mov_b64 v[14:15], {sr(S_ONE,2)}
              v_mov_b64 v[16:17], {sr(S_ONE,2)}""")
        k(f"""v_add_u32 v{TCH}, {MEM_OFF[c] + 2*8192}, v{MST}
              s_lshl_b32 s{sKF}, s{S_H}, 2
              s_add_u32 s{sKF}, s{sKF}, {PG_OFF + 8192 + F_KV[reg]}
              v_mov_b32 v1, s{S_C}
              s_mov_b32 s{sPC}, {PC_OFF[c]}
              s_add_u32 s{sRD}, s{sU}, {PC_OFF[c]}
              s_add_u32 s{sRST}, s{sU}, {PC_OFF[c] + 256*KB}
              s_mov_b32 s{sMX}, 0x40000000
              s_mov_b32 s{S_SEG}, 0""")
        sMK, sSCN = S_A, S_B
        if c == 2:
            k(f"""v_lshrrev_b32 v{T}, 2, v{V_L16}
                  v_add_u32 v{T}, {PG_OFF + (1+LOOK)*8192 + F_RKU - 128}, v{T}
                  v_or_b32 v{T}, s{S_OOB}, v{T}
                  s_mov_b64 vcc, -1
                  s_mov_b32 vcc_lo, 0
                  v_cndmask_b32 v{TCH}, v{TCH}, v{T}, vcc
                  s_or_b32 s{S_T}, s{S_OOB}, {PG_OFF + 8192 + F_J}
                  v_writelane_b32 v{TCH}, s{S_T}, 4
                  s_or_b32 s{S_T}, s{S_H}, s{S_W}
                  s_mov_b32 s{S_T}, {PG_OFF + F_RM}
                  s_cmov_b32 s{S_T}, 0x80000000
                  v_writelane_b32 v{TCH}, s{S_T}, 5
                  s_mov_b32 s{sMK}, 0
                  s_mov_b32 s{sSCN}, 0""")
        def keys_wait(seg, va, hi=None):
            L_ = k.newlabel("L_ckk")
            self.page(S_T + 3, F_RKU, seg=seg, head=False)
            k(f"""v_lshrrev_b32 v{va+1}, 2, v{V_L16}
                  v_and_b32 v{va+1}, 127, v{va+1}""")
            if hi:
                k(f"""v_lshrrev_b32 v{va}, 9, v{V_L16}
                      v_mul_u32_u24 v{va}, s{hi}, v{va}
                      v_add_u32 v{va+1}, v{va}, v{va+1}""")
            k.label(L_)
            k(f"""s_sleep {opt.get("slu", 1)}
                  buffer_load_dword v{va}, v{va+1}, {WS}, s{S_T+3} offen sc1""")
            self.spend()
            k(f"""s_waitcnt vmcnt(0)
                  v_cmp_eq_u32 vcc, 0, v{va}
                  s_cbranch_vccnz {L_}""")
        dma = [f"s_add_u32 m0, s{sW2}, {L_KX}",
               f"s_add_u32 s{S_T+1}, s{sKV}, {8*KB}",
               f"buffer_load_dwordx4 v{V_L16}, {WS}, s{sKV} offen sc1 lds",
               f"buffer_load_dwordx4 v{V_L16}, {WS}, s{sKV} offen offset:1024 sc1 lds",
               f"s_add_u32 m0, s{sW2}, {L_VX}",
               f"s_add_u32 s{sKV}, s{sKV}, {32*24*KB}",
               f"buffer_load_dwordx4 v{V_L16}, {WS}, s{S_T+1} offen sc1 lds",
               f"buffer_load_dwordx4 v{V_L16}, {WS}, s{S_T+1} offen offset:1024 sc1 lds"]
        def kv_read(extra=None, pos=0):
            k(f"v_add_u32 v{OB}, {L_KX}, v{V_L16}")
            for i in range(8):
                if extra and i == pos:
                    k(extra)
                k(f"ds_read_b128 {vr(KX+4*i,4)}, v{OB} offset:{((i&1)*4+(i>>1))*1024}")
            k(f"v_add_u32 v{CK}, s{sW2}, v{OB}")
            for t in range(2):
                k(f"ds_read_b128 {vr(VX+4*t,4)}, v{CK} offset:{L_VX-L_KX+t*1024}")
        def zero(b, n):
            for i in range(0, n, 2):
                k(f"v_mov_b64 {vr(b+i,2)}, 0")
        def mload(hf):
            return f"buffer_load_dwordx4 {vr(M+16*hf,4)}, v{MV}, {WS}, s{sM2 if hf else sMEM} offen sc1"
        chk2 = [f"v_max3_u32 v{CK}, v{M}, v{M+1}, v{M+2}", f"v_max3_u32 v{CK}, v{M+3}, v{M+16}, v{CK}",
                f"v_max3_u32 v{CK}, v{M+17}, v{M+18}, v{CK}", f"v_max_u32 v{CK}, v{M+19}, v{CK}",
                f"v_cmp_le_u32 vcc, s{sNAN}, v{CK}"]
        mwrite = lambda hf: f"ds_write_b128 v{MX}, {vr(M+16*hf,4)} offset:{hf*4096}"
        mread = lambda hf, i: f"ds_read_b128 {vr(M+16*hf+4*i,4)}, v{T+i-1} offset:{hf*4096}"
        LEAD, LEADB, JS = (k.newlabel(x) for x in ("L_cld", "L_clb", "L_cjs"))
        START, KVW, KVB, JW, JUMP = (k.newlabel(x) for x in ("L_cst", "L_ckw", "L_ckb", "L_cjw", "L_cjump"))
        first = reg
        if opt.get("pcwarm", 1) and not self.loc:
            for i, r_ in enumerate((sRD, sRST)):
                for j in range(2):
                    k(f"buffer_load_dwordx4 v[88:91], v{V_L16}, {WS}, s{r_} offen offset:{j*1024}")
            if c:
                k("s_waitcnt vmcnt(0)")
        SW = k.newlabel("L_csw")
        WO_ = 3072 - 512
        k.label(START)
        k(f"""s_cmp_lg_u32 s{S_W}, 0
              s_cbranch_scc1 {SW}""")
        if c == 2:
            k(f"""s_andn2_b32 s{S_T+5}, 0x7ff, s{sMK}
                  s_lshr_b32 s{S_T+5}, s{S_T+5}, 5
                  s_add_u32 s{S_T+5}, s{S_T+5}, {LOOK}
                  s_add_u32 s{S_T+4}, s{sSCN}, 1
                  s_min_u32 s{S_T+4}, s{S_T+4}, 63
                  s_cmp_gt_u32 s{S_T+4}, s{S_T+5}
                  s_cselect_b32 s{S_T+4}, s{sSCN}, s{S_T+4}
                  s_sub_u32 s{S_T+5}, s{S_T+4}, s{sSCN}
                  s_lshl_b32 s{S_T+5}, s{S_T+5}, 13""")
            keys_wait(sSCN, T, S_T + 5)
            self.wmax_u32(T, T + 1)
            k(f"""v_readfirstlane_b32 s{S_T+5}, v{T}
                  s_max_u32 s{sMK}, s{sMK}, s{S_T+5}
                  s_add_u32 s{sSCN}, s{S_T+4}, 1
                  s_andn2_b32 s{S_SEG}, 0x7ff, s{sMK}
                  s_lshr_b32 s{S_SEG}, s{S_SEG}, 5
                  s_add_u32 s{S_T+5}, s{S_SEG}, {LOOK}
                  s_min_u32 s{S_T+5}, s{S_T+5}, 63
                  s_cmp_le_u32 s{sSCN}, s{S_T+5}
                  s_cbranch_scc1 {START}
                  v_mov_b32 v{T}, 0
                  v_mov_b32 v{T+1}, s{sMK}
                  ds_write_b32 v{OR}, v{T} offset:{WO_}
                  ds_write_b32 v{OR}, v{T+1} offset:{WO_ + 512}""")
        self.ev(40 + c, va=T + 2)
        self.page(S_T + 3, F_KV[first])
        self.word_wait(S_T + 3, S_T + 5, va=T + 2, sleep=1, quick=c == 0)
        k.label(SW)
        k("""s_waitcnt lgkmcnt(0)
             s_barrier""")
        if c == 2:
            k(f"""ds_read_b32 v{T}, v{OR} offset:{WO_ + 512}
                  s_waitcnt lgkmcnt(0)
                  v_readfirstlane_b32 s{sMK}, v{T}
                  s_andn2_b32 s{S_SEG}, 0x7ff, s{sMK}
                  s_lshr_b32 s{S_SEG}, s{S_SEG}, 5""")
        self.qkv_base(S_T, first)
        k(f"s_add_u32 s{sKV}, s{S_T}, s{sW2}")
        for d in dma:
            k(d)
        k(f"""s_lshl_b32 s{sPG}, s{S_SEG}, 13
              s_add_u32 s{S_T}, s{sPG}, {MEM_OFF[c] + 8192}
              buffer_load_dword v{STS}, v{MST}, {WS}, s{S_T} offen sc1
              s_add_u32 s{sMEM}, s{sPG}, {MEMX_OFF if c == 2 else MEM_OFF[c]}
              s_add_u32 s{sM2}, s{sMEM}, 4096
              s_lshl_b32 s{sKVM}, s{S_SEG}, 5
              s_add_u32 s{sKVM}, s{sKVM}, s{S_H}
              s_lshl_b32 s{sKVM}, s{sKVM}, 12
              s_lshl_b32 s{S_T}, s{S_W}, 10
              s_add_u32 s{sKVM}, s{sKVM}, s{S_T}
              s_add_u32 s{sKVM}, s{sKVM}, {KVM_OFF[c]}
              s_mov_b32 s{sPUB}, 0x80000000
              s_mov_b32 s{sREC}, 0
              s_add_u32 s{S_T}, s{sKF}, s{sPG}
              s_buffer_load_dword s{sOK2}, {WS}, s{S_T}
              s_cmp_eq_u32 s{S_SEG}, 63
              s_cselect_b32 s{sOK}, 1, s{S_W}
              s_cmp_eq_u32 s{sOK}, 0
              s_cselect_b32 s{sOK}, 1, 0""")
        q_ = lambda t: QK + 8 * t
        k_ = lambda t: QK + 8 * t + 4
        sq = lambda ks, t: f"v_smfmac_f32_16x16x64_bf16 {vr(q_(t),4)}, {vr(M+4*ks,4)}, {wq(ks,t)}, v{IDX}"
        sk = lambda ks, t: f"v_smfmac_f32_16x16x64_bf16 {vr(k_(t),4)}, {vr(M+4*ks,4)}, {wk(ks,t)}, v{IDX}"
        sv = lambda ks, t: f"v_smfmac_f32_16x16x64_bf16 {vr(VA+4*t,4)}, {vr(M+4*ks,4)}, {wv(ks,t)}, v{IDX}"
        zero(QK, 24)
        if c == 2:
            HL, HD = k.newlabel("L_chp"), k.newlabel("L_chd")
            A_ = KX
            k(f"""v_lshrrev_b32 v{A_}, 8, v{V_L16}
                  v_lshlrev_b32 v{A_}, 5, v{A_}
                  v_bfe_u32 v{A_+1}, v{V_L16}, 5, 1
                  v_lshl_add_u32 v{A_}, v{A_+1}, 2, v{A_}
                  s_lshl_b32 s{S_T}, s{S_W}, 7
                  s_add_u32 s{S_T}, s{S_T}, {L_MB}
                  v_add_u32 v{A_}, s{S_T}, v{A_}
                  v_xor_b32 v{A_+1}, 128, v{A_}
                  v_xor_b32 v{A_+2}, 256, v{A_}
                  v_xor_b32 v{A_+3}, 384, v{A_}
                  s_andn2_b32 s{S_T}, 31, s{sMK}
                  s_lshr_b32 s{S_T+1}, s{S_T}, 4
                  s_lshl_b32 s{S_T+2}, s{S_T+1}, 12
                  s_and_b32 s{S_T+3}, s{S_T}, 15
                  s_lshl4_add_u32 s{S_T+2}, s{S_T+3}, s{S_T+2}
                  s_add_u32 s{S_T+2}, s{S_T+2}, s{S_LW}
                  s_add_u32 s{S_T+2}, s{S_T+2}, {L_KX}
                  v_bfe_u32 v{A_+4}, v{V_L16}, 6, 2
                  v_lshlrev_b32 v{A_+4}, 8, v{A_+4}
                  v_bfe_u32 v{A_+5}, v{V_L16}, 4, 2
                  v_lshl_add_u32 v{A_+4}, v{A_+5}, 2, v{A_+4}
                  v_add_u32 v{A_+4}, s{S_T+2}, v{A_+4}
                  s_lshr_b32 s{S_T+2}, s{S_T+3}, 2
                  s_lshl_b32 s{S_T+2}, s{S_T+2}, 8
                  s_lshl3_add_u32 s{S_T+2}, s{S_T+1}, s{S_T+2}
                  s_and_b32 s{S_T+3}, s{S_T}, 3
                  s_lshl1_add_u32 s{S_T+2}, s{S_T+3}, s{S_T+2}
                  s_add_u32 s{S_T+2}, s{S_T+2}, s{sW2}
                  s_add_u32 s{S_T+2}, s{S_T+2}, {L_VX}
                  v_and_b32 v{A_+5}, 255, v{V_L16}
                  v_add_u32 v{A_+5}, s{S_T+2}, v{A_+5}
                  s_cmp_lg_u32 s{S_W}, 0
                  s_cbranch_scc1 {HD}
                  s_lshl_b32 s{S_T+3}, s{S_SEG}, 10
                  s_add_u32 s{S_T+3}, s{S_T+3}, {HPS_OFF}""")
            k.label(HL)
            k(f"buffer_load_dwordx4 {vr(T,4)}, v{V_L16}, {WS}, s{S_T+3} offen sc1")
            self.spend()
            k(f"""s_waitcnt vmcnt(0)
                  v_max3_u32 v{T+4}, v{T}, v{T+1}, v{T+2}
                  v_max_u32 v{T+4}, v{T+3}, v{T+4}
                  v_cmp_eq_u32 vcc, -1, v{T+4}
                  s_cbranch_vccnz {HL}
                  ds_write_b128 v{MX}, {vr(T,4)}""")
            k.label(HD)
            k("""s_waitcnt vmcnt(0) lgkmcnt(0)
                 s_barrier""")
            for i in range(8):
                for hq in range(2):
                    o_ = (i >> 2) * 128 + 4 * hq
                    k(f"ds_read2_b32 {vr(M+4*i+2*hq,2)}, v{A_+(i&3)} offset0:{o_} offset1:{o_+2}")
                if i == 3:
                    k("s_waitcnt lgkmcnt(4)")
            for i in range(8):
                k(f"s_waitcnt lgkmcnt({min(14 - 2*i, 12)})")
                for x in (sk(i, 0), sv(i, 0), sk(i, 1), sv(i, 1)):
                    k(x)
            for a_ in (k_(0), VA, k_(1), VA + 4):
                k(f"v_add_f32 v{a_}, v{a_}, v{a_+2}")
            k(f"""v_cvt_pk_bf16_f32 v{T}, v{k_(0)}, v{k_(1)}
                  v_cvt_pk_bf16_f32 v{T+1}, v{VA}, v{VA+4}
                  ds_write_b32 v{A_+4}, v{T}
                  ds_write_b16 v{A_+5}, v{T+1}
                  ds_write_b16_d16_hi v{A_+5}, v{T+1} offset:1024""")
            zero(QK, 24)
        if c == 0:
            k(f"""buffer_load_dwordx4 v[88:91], v{MV}, {WS}, s{sMEM} offen
                  buffer_load_dwordx4 v[88:91], v{MV}, {WS}, s{sM2} offen""")
            self.load_wo(3, extra=7)
        k("""s_waitcnt vmcnt(0) lgkmcnt(0)
             s_barrier""")
        self.ev(43, va=T)
        kv_read()
        LOOP, PA, PAB, END, GO = (k.newlabel(x) for x in ("L_chain", "L_cpa", "L_cpab", "L_cend", "L_cgo"))
        RP, RB, PB, PBB, BACK = (k.newlabel(x) for x in ("L_crp", "L_crb", "L_cpb", "L_cpbb", "L_cback"))
        qk4 = lambda ks: [sq(ks, 0), sk(ks, 0), sq(ks, 1), sk(ks, 1)]
        vlist = [(ks, t) for ks in range(8) for t in range(2)]
        def vs(n):
            for _ in range(n):
                if vlist:
                    k(sv(*vlist.pop(0)))
        def weave(mm, other):
            other = list(other)
            for o in mm:
                k(o)
                if other:
                    k(other.pop(0))
            for o in other:
                k(o)
        ONES = 14
        PT_ = M + 28
        pub = [f"v_add_u32 v{PT_}, s{S_LW}, v{QKR0}", f"v_add_u32 v{PT_+2}, s{S_LW}, v{QKR1}",
               f"ds_read_b64_tr_b16 {vr(PT_,2)}, v{PT_}", f"ds_read_b64_tr_b16 {vr(PT_+2,2)}, v{PT_+2}",
               f"v_mov_b32_dpp v{T+4}, v{T+6} quad_perm:[2,3,2,3] row_mask:0xf bank_mask:0xf",
               f"v_mov_b32_dpp v{T+5}, v{T+7} quad_perm:[2,3,2,3] row_mask:0xf bank_mask:0xf",
               f"s_mov_b32 vcc_lo, 0xcccccccc", f"s_mov_b32 vcc_hi, 0xcccccccc", None]
        pub += [f"v_cndmask_b32 v{T+4+i}, v{T+4+i}, v{PT_+i}, vcc" for i in range(4)]
        pub += [f"buffer_store_dwordx4 {vr(T+4,4)}, v{V_L16}, {WS}, s{sPUB} offen sc1"]
        XT = T
        def xaddr():
            for i in range(1, 4):
                k(f"v_xor_b32 v{XT+i-1}, {i*1024}, v{MX}")
        xaddr()
        pipe = opt.get("pipe", 1)
        def chk(hf):
            b = M + 16 * hf
            return [f"v_max3_u32 v{CK}, v{b}, v{b+1}, v{b+2}", f"v_max_u32 v{CK}, v{b+3}, v{CK}", f"v_cmp_le_u32 vcc, s{sNAN}, v{CK}"]
        mpos = opt.get("mpos", (3, 7))
        for _ in mpos:
            k(mload(0))
        if opt.get("align"):
            k(f".p2align {opt['align']}")
        k.label(LOOP)
        self.stamp(0)
        k.label(PA)
        k(mload(0))
        self.spend(0x10000, sFAIL)
        k(f"s_waitcnt vmcnt({len(mpos)})")
        for x in chk(0):
            k(x)
        if opt.get("spec", 1):
            k(mwrite(0))
        k(f"s_cbranch_vccnz {PA}")
        k.label(GO)
        self.stamp(1)
        if not opt.get("spec", 1):
            k(mwrite(0))
        m1 = opt.get("m1", 0)
        nb = opt.get("nb", 2)
        weave(qk4(0)[:nb], [""] * m1 + [mload(1)])
        k("""s_waitcnt lgkmcnt(0)
             s_barrier""")
        self.stamp("xa")
        V2 = lambda n: [sv(*vlist.pop(0)) for _ in range(n)]
        k(mread(0, 1))
        weave(qk4(0)[nb:] + V2(2), [mread(0, 2), mread(0, 3)])
        k("s_waitcnt lgkmcnt(2)")
        va, vb = opt.get("va", 0), opt.get("vb", 1)
        weave(qk4(1) + V2(va), [dma[0], dma[1], f"s_cmp_lt_u32 s{sOK2}, s{sOK}\ns_cbranch_scc1 {KVW}\n{KVB}:"])
        k("s_waitcnt vmcnt(0) lgkmcnt(1)")
        self.stamp("xb")
        c1 = chk(1)
        weave(qk4(2) + V2(vb), [mwrite(1) + "\n" + c1[0]] + c1[1:])
        k(f"s_cbranch_vccnz {PB}")
        k.label(BACK)
        k("""s_waitcnt lgkmcnt(0)
             s_barrier""")
        self.stamp("xc")
        packt = lambda t: [x for a_, d_ in ((q_(t), T + 2 * t), (k_(t), T + 2 * t + 1)) for x in
                           (f"v_add_f32 v{a_}, v{a_}, v{a_+2}", f"v_add_f32 v{a_+1}, v{a_+1}, v{a_+3}",
                            f"v_cvt_pk_bf16_f32 v{d_}, v{a_}, v{a_+1}")]
        mm = qk4(3) + qk4(4) + [f(ks, t) for t in range(2) for ks in (5, 6, 7) for f in (sq, sk)] + V2(2)
        n0 = 8
        far = {"a": [dma[2]], "b": [dma[3], dma[4]], "c": [dma[6], dma[5]], "d": [dma[7]], "p": [pub[-1]],
               "t": [f"buffer_load_dword v{STS}, v{TCH}, {WS}, s{sPG} offen sc1"], "-": []}
        side = {1: [mread(1, 1)], 3: [mread(1, 2)], 5: [mread(1, 3)]}
        far["x"] = [f"buffer_store_dword v{M+30}, v{MST}, {WS}, s{sMX} offen sc1"]
        for i_, x in enumerate(("x" if c == 1 else "") + opt.get("ford", "pabcdt")):
            side[2 * i_] = list(far[x])
        if c == 2:
            side[7] = [f"ds_read_b32 v{CK}, v{OR} offset:{WO_}"]
        if "t" not in opt.get("ford", "t") and c == 2:
            side[12] = far["t"]
        if opt.get("rstpos"):
            p_ = opt["rstpos"]
            side.setdefault(p_ - 3, []).append(f"v_mov_b64 {vr(T+4,2)}, -1")
            side.setdefault(p_ - 1, []).append(f"v_mov_b64 {vr(T+6,2)}, -1")
            side.setdefault(p_, []).insert(0, f"buffer_store_dwordx4 {vr(T+4,4)}, v{V_L16}, {WS}, s{sRST} offen{self.loc}")
            side.setdefault(p_ + 2, []).insert(0, f"buffer_store_dwordx4 {vr(T+4,4)}, v{V_L16}, {WS}, s{sRST} offen offset:1024{self.loc}")
        if c == 2:
            side.setdefault(n0 + 5, []).append(f"v_readfirstlane_b32 s{S_T+2}, v{CK}")
            side.setdefault(n0 + 7, []).append(f"s_cmp_lg_u32 s{S_T+2}, 0\ns_cbranch_scc1 {JUMP}")
        waits = {n0: 2 + (c == 2), n0 + 2: 1 + (c == 2), n0 + 4: 0}
        for i_, x in enumerate(packt(0)):
            side.setdefault(n0 + 8 + i_, []).append(x)
        for n, o in enumerate(mm):
            if n in waits:
                k(f"s_waitcnt lgkmcnt({waits[n]})")
            k(o)
            for x in side.get(n, []):
                k(x)
        self.stamp("back")
        for x in packt(1):
            k(x)
        k(f"ds_write_b128 v{QKW}, {vr(T,4)}")
        vend = list(vlist)
        weave(V2(opt.get("vd", 4)),
              [f"s_mov_b32 s{sPUB}, s{sKVM}\ns_add_u32 s{sKVM}, s{sKVM}, {32*4*KB}\nv_mov_b32 v{T+5}, 0",
               f"s_cmp_eq_u32 s{S_SEG}, 63\ns_cbranch_scc1 {END}"])
        self.stamp("w0")
        k("s_waitcnt lgkmcnt(0)")
        self.stamp("w1")
        k("s_barrier")
        self.stamp(2)
        F = QK
        tr = [f"ds_read_b64_tr_b16 {vr(F+4*kk+2*hh,2)}, v{(QKR0, QKR1)[hh]} offset:{kk*1024}" for kk in range(4) for hh in range(2)]
        S = M
        slots = [KX, KX + 8, KX + 16, KX + 24, F, F + 8, M + 16, M + 24]
        def wo_reads(u):
            return [f"ds_read_b128 {vr(slots[(u&1)*4+kk]+4*hf,4)}, v{WOB} offset:{((u*4+kk)*2+hf)*1024}"
                    for kk in range(4) for hf in range(2)]
        st_ = wo_reads(0) + wo_reads(1)
        nv3 = opt.get("v3", 4)
        lq = []
        def ld(x):
            k(x); lq.append(x)
        def lwait(x):
            k(f"s_waitcnt lgkmcnt({len(lq) - 1 - lq.index(x)})")
        for x in tr[:6 - nv3]:
            ld(x)
        for x in tr[6 - nv3:6]:
            vs(1); ld(x)
        shadow = [tr[6], tr[7], st_[12]] + [st_[i] for i in (0, 1, 8, 2, 3, 9, 4, 5, 10, 6, 7, 11, 13, 14, 15)]
        for kk in range(4):
            lwait(tr[2 * kk + 1])
            f = vr(F + 4 * kk, 4)
            for a_, d_ in ((vr(KX + 8 * kk, 4), S), (vr(KX + 8 * kk + 4, 4), S + 4), (f, S + 8)):
                k(f"v_mfma_f32_16x16x32_bf16 {vr(d_,4)}, {a_}, {f}, {'0' if kk == 0 else vr(d_,4)}")
                ld(shadow.pop(0))
        assert len(vlist) <= 3
        while vlist:
            vs(1)
            if len(shadow) > 2:
                ld(shadow.pop(0))
        self.stamp(3)
        P = T
        t0 = T + 6
        VM, VM1 = T + 6, M + 12
        O = VA; Lr = S + 8
        sub = lambda i: f"v_pk_add_f32 {vr(S+i,2)}, {vr(S+i,2)}, {vr(t0,2)} op_sel_hi:[1,0] neg_lo:[0,1] neg_hi:[0,1]"
        mul = lambda i: f"v_pk_mul_f32 {vr(S+i,2)}, {vr(S+i,2)}, v[0:1] op_sel:[0,1]"
        ex = lambda i: f"v_exp_f32 v{S+i}, v{S+i}"
        sh = lambda: shadow.pop(0) if shadow else ""
        k(f"""v_max3_f32 v{t0}, v{S}, v{S+1}, v{S+2}
              v_max3_f32 v{t0+1}, v{S+3}, v{S+4}, v{S+5}
              v_max3_f32 v{t0}, v{S+6}, v{S+7}, v{t0}
              v_max3_f32 v{t0+1}, v{S+10}, v{S+11}, v{t0+1}
              v_max_f32 v{t0}, v{t0}, v{t0+1}
              v_max_f32 v{t0+1}, v{t0}, v{t0+1}
              {mul(10)}
              {mul(0)}
              v_permlane16_swap_b32 v{t0}, v{t0+1}
              v_max_f32 v{t0}, v{t0}, v{t0+1}
              v_max_f32 v{t0+1}, v{t0}, v{t0+1}
              {mul(2)}
              {mul(4)}
              v_permlane32_swap_b32 v{t0}, v{t0+1}
              v_max_f32 v{t0}, v{t0}, v{t0+1}
              v_mul_f32 v{t0}, v1, v{t0}
              {mul(6)}
              {sub(10)}
              v_pk_add_f32 {vr(VA,2)}, {vr(VA,2)}, {vr(VA+2,2)}
              v_pk_add_f32 {vr(VA+4,2)}, {vr(VA+4,2)}, {vr(VA+6,2)}
              {sub(0)}
              {sub(2)}
              {sub(4)}
              {sub(6)}
              {ex(10)}
              {ex(11)}
              v_cvt_pk_bf16_f32 v{VM}, v{VA}, v{VA+1}
              v_cvt_pk_bf16_f32 v{P+4}, v{S+10}, v{S+11}
              v_cvt_pk_bf16_f32 v{VM+1}, v{VA+4}, v{VA+5}
              v_cvt_pk_bf16_f32 v{VM1}, v{VA+4}, v{VA+5}
              v_mfma_f32_16x16x16_bf16 {vr(Lr,4)}, {vr(ONES,2)}, {vr(P+4,2)}, 0
              {sh()}
              {ex(0)}
              v_mfma_f32_16x16x16_bf16 {vr(O,4)}, {vr(VM,2)}, {vr(P+4,2)}, 0
              {sh()}
              {ex(1)}
              v_mfma_f32_16x16x16_bf16 {vr(O+4,4)}, {vr(VM1,2)}, {vr(P+4,2)}, 0
              {sh()}
              {ex(2)}""")
        for i in range(3, 8):
            k(ex(i))
            if i & 1:
                k(f"v_cvt_pk_bf16_f32 v{P+(i>>1)-1}, v{S+i-3}, v{S+i-2}")
        k(f"v_cvt_pk_bf16_f32 v{P+3}, v{S+6}, v{S+7}")
        for nm in opt.get("fw", ()):
            k(f"s_waitcnt vmcnt({nm})")
            self.stamp("f%d" % nm)
        self.stamp(4)
        k(f"""s_add_u32 s{sPG}, s{sPG}, 8192
              s_add_u32 s{S_SEG}, s{S_SEG}, 1
              v_mfma_f32_16x16x32_bf16 {vr(Lr,4)}, {vr(ONES,4)}, {vr(P,4)}, {vr(Lr,4)}
              {sh()}
              v_mfma_f32_16x16x32_bf16 {vr(O,4)}, {vr(VX,4)}, {vr(P,4)}, {vr(O,4)}
              ds_read_b128 {vr(VX,4)}, v{WOB} offset:{16*1024}
              v_mfma_f32_16x16x32_bf16 {vr(O+4,4)}, {vr(VX+4,4)}, {vr(P,4)}, {vr(O+4,4)}
              ds_read_b128 {vr(VX+4,4)}, v{WOB} offset:{17*1024}
              v_rcp_f32 v{Lr}, v{Lr}""")
        assert not shadow
        acc = [VA, VA + 4, T, VA]
        k(f"""v_mov_b64 {vr(S,2)}, -1
              v_mov_b64 {vr(S+2,2)}, -1
              s_add_u32 s{sMEM}, s{sPG}, {MEM_OFF[c]}
              s_add_u32 s{sM2}, s{sMEM}, 4096""")
        for e in range(0, 8, 2):
            k(f"v_pk_mul_f32 {vr(O+e,2)}, {vr(O+e,2)}, {vr(Lr,2)} op_sel_hi:[1,0]")
        for r in range(4):
            k(f"v_cvt_pk_bf16_f32 v{T+r}, v{O+r}, v{O+4+r}")
        k(f"ds_write_b128 v{OW}, {vr(T,4)}")
        if not opt.get("rstpos"):
            k(f"""buffer_store_dwordx4 {vr(S,4)}, v{V_L16}, {WS}, s{sRST} offen{self.loc}
                  buffer_store_dwordx4 {vr(S,4)}, v{V_L16}, {WS}, s{sRST} offen offset:1024{self.loc}""")
        zero(VA, 8)
        k("s_waitcnt lgkmcnt(0)")
        k("s_barrier")
        self.stamp(5)
        OA = M
        lq[:] = []
        ord_ = [f"ds_read_b128 {vr(OA+4*kk,4)}, v{OR} offset:{kk*512}" for kk in range(4)]
        for x in ord_:
            ld(x)
        zero(T, 4)
        k(f"""s_add_u32 s{S_T+1}, s{sPC}, {64*KB}
              s_add_u32 s{S_T+2}, s{sPC}, {128*KB}
              s_add_u32 s{S_T+3}, s{sPC}, {192*KB}
              s_add_u32 s{S_T}, s{sKF}, s{sPG}""")
        if c == 1:
            k(f"s_add_u32 s{sMX}, s{sPG}, {MEMX_OFF}")
        alt = opt.get("alt", 0)
        seq = [0, 4, 1, 5, 2, 6, 3, 7] if alt else list(range(8))
        seq += list(range(8, 16))
        where = slots + [VX] + [slots[x] for x in seq[:7]]
        stream = [f"ds_read_b128 {vr(where[i]+4*hf,4)}, v{WOB} offset:{(i*2+hf)*1024}" for i in range(9, 16) for hf in range(2)]
        def wo_out(u):
            a = acc[u]
            return [f"v_cvt_pk_bf16_f32 v{a}, v{a}, v{a+1}", f"v_cvt_pk_bf16_f32 v{a+1}, v{a+2}, v{a+3}",
                    f"buffer_store_dwordx2 {vr(a,2)}, v{PST}, {WS}, s{S_T+u if u else sPC} offen{self.loc}"]
        oth = {}
        if alt:
            acc[3] = M + 24
            o0, o1, o2 = wo_out(0), wo_out(1), wo_out(2)
            oth = {8: o0[:2], 9: [o0[2], o1[0]], 10: [f"v_mov_b64 {vr(acc[3],2)}, 0", o1[1]], 11: [o1[2], f"v_mov_b64 {vr(acc[3]+2,2)}, 0"],
                   12: pub[:1], 13: o2[:1], 14: o2[1:2], 15: o2[2:]}
            oth[10], oth[11] = [o1[1], f"v_mov_b64 {vr(acc[3],2)}, 0", f"v_mov_b64 {vr(acc[3]+2,2)}, 0"], [o1[2], pub[1]]
            npop = opt.get("npop", {0: 1, 1: 1, 2: 1, 3: 2, 4: 1, 5: 2, 6: 1, 7: 2, 8: 1, 10: 1, 12: 1})
        else:
            for u in range(3):
                o_ = wo_out(u)
                oth[4 * u + 5] = o_[:1]
                oth[4 * u + 6] = o_[1:]
            oth[7] = [f"v_mov_b64 {vr(VA,2)}, 0"]
            oth[8] = [f"v_mov_b64 {vr(VA+2,2)}, 0"]
            oth[11] = pub[:1]
            oth[12] = pub[1:2]
            npop = {i: 2 if i in (8, 10) else 1 for i in range(12)}
        tail_ld = {13: pub[2], 14: pub[3]}
        todo = list(stream)
        for i, j_ in enumerate(seq):
            if j_ < 4:
                lwait(ord_[j_])
            if i >= 9:
                lwait(stream[2 * (i - 9) + 1])
            k(f"v_smfmac_f32_16x16x64_bf16 {vr(acc[j_>>2],4)}, {vr(OA+4*(j_&3),4)}, {vr(where[j_],8)}, v{IDX2}")
            self.stamp("o%d" % i)
            for _ in range(npop.get(i, 0)):
                assert (14 - len(todo)) // 2 <= i
                ld(todo.pop(0))
            if i in tail_ld:
                ld(tail_ld[i])
            for x in oth.get(i, []):
                k(x)
        assert not todo
        zero(VA + 4, 4)
        k(f"s_xor_b32 s{sPC}, s{sPC}, {256*KB}")
        for x in pub[4:8] + wo_out(3) + ["s_waitcnt lgkmcnt(0)", f"s_buffer_load_dword s{sOK2}, {WS}, s{S_T}"]:
            k(x)
        self.stamp(6)
        RS = (M + 8, M + 20); RA = M + 4; RT = M + 28
        def rloads(R):
            for i in range(2):
                k(f"buffer_load_dwordx4 {vr(R+4*i,4)}, v{V_L16}, {WS}, s{sRD} offen offset:{i*1024} sc1")
        def reduce(R, fill=()):
            k(f"s_waitcnt vmcnt({3 if opt.get('two', 1) else 1})")
            self.stamp("r2")
            k(f"v_mfma_f32_16x16x32_bf16 {vr(RA,4)}, {vr(SEL,4)}, {vr(R,4)}, 0")
            k(f"s_waitcnt vmcnt({2 if opt.get('two', 1) else 0})")
            k(f"v_mfma_f32_16x16x32_bf16 {vr(RA,4)}, {vr(SEL,4)}, {vr(R+4,4)}, {vr(RA,4)}")
            for x in fill:
                k(x)
            k(f"""v_cmp_u_f32 vcc, v{RA}, v{RA}
                  v_add_f32_dpp v{RT}, v{RA}, v{RA} row_ror:8 row_mask:0xf bank_mask:0x3
                  v_add_f32_dpp v{RT+1}, v{RA+1}, v{RA+1} row_ror:8 row_mask:0xf bank_mask:0x3
                  v_add_f32_dpp v{RT}, v{RA+2}, v{RA+2} row_ror:8 row_mask:0xf bank_mask:0xc
                  v_add_f32_dpp v{RT+1}, v{RA+3}, v{RA+3} row_ror:8 row_mask:0xf bank_mask:0xc
                  v_add_f32_dpp v{RT}, v{RT}, v{RT} row_shl:4 row_mask:0xf bank_mask:0x5
                  v_add_f32_dpp v{RT+1}, v{RT+1}, v{RT+1} row_shl:4 row_mask:0xf bank_mask:0x5""")
        kvr = [f"ds_read_b128 {vr(KX+4*i,4)}, v{OB} offset:{((i&1)*4+(i>>1))*1024}" for i in range(8)]
        kvr += [f"ds_read_b128 {vr(VX+4*t,4)}, v{CK} offset:{L_VX-L_KX+t*1024}" for t in range(2)]
        work = pub[9:13] + [f"v_mov_b64 {vr(QK+i,2)}, 0" for i in range(0, 20, 2)] \
            + [f"v_add_u32 v{OB}, {L_KX}, v{V_L16}", f"v_add_u32 v{CK}, s{sW2}, v{OB}"]
        two = opt.get("two", 1)
        nw = opt.get("nw", 4)
        for x in work[:nw]:
            k(x)
        RG = k.newlabel("L_crg")
        e0, e1, e2 = opt.get("ea", (3, 1, 0))
        k(f"""s_cmp_lt_u32 s{S_W}, 2
              s_waitcnt vmcnt({e0})
              s_cbranch_scc1 {RG}
              s_cmp_eq_u32 s{S_W}, 2
              s_waitcnt vmcnt({e1})
              s_cbranch_scc1 {RG}
              s_waitcnt vmcnt({e2})""")
        k.label(RG)
        self.stamp("ea")
        rloads(RS[0])
        for x in work[nw:]:
            k(x)
        xaddr()
        blate = opt.get("blate", 1)
        if not blate:
            k("s_barrier")
        kp = opt.get("kvpos", 0)
        for i, x in enumerate(kvr[:kp]):
            if two and i == two:
                rloads(RS[1])
            k(x)
        if two:
            if two > 1:
                k(f"s_sleep {two - 1}")
            rloads(RS[1])
        k(f"""s_cmp_ge_u32 s{S_SEG}, 63
              s_cselect_b32 s{sOK}, 0, 1""")
        if c == 2:
            k(f"""v_readlane_b32 s{S_T}, v{STS}, 5
                  v_readlane_b32 s{sJ}, v{STS}, 4
                  v_add_u32 v{STS}, -1, v{STS}
                  v_cmp_le_u32 vcc, s{sMK}, v{STS}
                  s_cmp_gt_u32 s{S_SEG}, {63 - LOOK}
                  s_cselect_b32 s{sREC}, 0, vcc_hi
                  s_cmp_gt_u32 s{sJ}, s{sMK}
                  s_cselect_b32 s{sREC}, 1, s{sREC}
                  s_cmp_lg_u32 s{sREC}, 0
                  s_cselect_b32 s{sOK}, 2, s{sOK}
                  s_cmp_gt_u32 s{S_T}, s{sMK}
                  s_cbranch_scc1 {LEAD}""")
            k.label(LEADB)
        k(f"""s_cmp_eq_u32 s{S_W}, 0
              s_cselect_b32 s{sOK}, s{sOK}, 0""")
        OKR = k.newlabel("L_cok")
        reduce(RS[0])
        k(f"s_cbranch_vccnz {RP}")
        k.label(OKR)
        k(f"""v_cvt_pk_bf16_f32 v{RT+2}, v{RT}, v{RT+1}
              buffer_store_dword v{RT+2}, v{MST}, {WS}, s{sMEM} offen{self.loc}
              s_mov_b32 s{sRST}, s{sRD}
              s_xor_b32 s{sRD}, s{sRD}, {256*KB}""")
        self.stamp(7)
        if blate:
            k("s_barrier")
        for i, x in enumerate(kvr):
            if i in mpos:
                k(mload(0))
            k(x)
        if opt.get("mack"):
            k(f"s_waitcnt vmcnt({2 if pipe else 0})")
        if self.stamps > 1:
            NX = k.newlabel("L_cnx")
            k(f"""s_and_b32 s{S_T}, s{S_SEG}, 7
                  s_cmp_lg_u32 s{S_T}, 7
                  s_cbranch_scc1 {NX}""")
            if c == opt.get("stc", 0):
                self.dump_stamps(8, sFAIL, M + 4)
            k.label(NX)
        if self.stamps:
            NE = k.newlabel("L_cne")
            k(f"""s_and_b32 s{S_T}, s{S_SEG}, 7
                  s_cmp_lg_u32 s{S_T}, 1
                  s_cbranch_scc1 {NE}""")
            self.ev(50 + c, va=M + 4)
            self.ev(56 + c, va=M + 4, clk="s_memtime")
            k.label(NE)
        k(f"s_branch {LOOP}")
        for hf, lab, back in ((1, PB, BACK),):
            k.label(lab)
            k(mload(hf))
            self.spend(1 if hf else 0x10000, sFAIL)
            k("s_waitcnt vmcnt(0)")
            for x in chk(hf):
                k(x)
            k(f"""s_cbranch_vccnz {lab}
                  {mwrite(1)}
                  s_branch {back}""")
        k.label(RP)
        st_, self.stamps = self.stamps, min(self.stamps, 1)
        for i in (0, 1) if two else (0,):
            rloads(RS[i])
            self.spend(0x100, sFAIL)
            reduce(RS[1 - i if two else 0])
            k(f"s_cbranch_vccz {OKR}")
        k(f"s_branch {RP}")
        self.stamps = st_
        k.label(KVW)
        if c == 2:
            k(f"""s_cmp_eq_u32 s{sREC}, 0
                  s_cbranch_scc1 {JW}
                  s_cmp_gt_u32 s{sJ}, s{sMK}
                  s_cbranch_scc1 {JS}
                  s_add_u32 s{sSCN}, s{S_SEG}, {LOOK}""")
            keys_wait(sSCN, M + 20)
            k(f"""v_cmp_lt_u32 vcc, s{sMK}, v{M+20}
                  s_cbranch_vccz {JW}""")
            self.wmax_u32(M + 20, M + 21)
            k(f"v_readfirstlane_b32 s{sJ}, v{M+20}")
            k.label(JS)
            k(f"""s_mov_b32 s{sMK}, s{sJ}
                  s_andn2_b32 s{sSCN}, 0x7ff, s{sJ}
                  s_lshr_b32 s{sSCN}, s{sSCN}, 5
                  s_add_u32 s{sSCN}, s{sSCN}, 1
                  s_min_u32 s{sSCN}, s{sSCN}, 63
                  ds_write_b32 v{OR}, v{IDX} offset:{WO_}
                  s_waitcnt lgkmcnt(0)
                  s_branch {KVB}""")
            k.label(LEAD)
            k(f"""v_mov_b32 v{STS}, s{S_T}
                  s_add_u32 s{S_T}, s{sPG}, {PG_OFF + 8192 + F_J}
                  buffer_store_dword v{STS}, off, {WS}, s{S_T}{self.loc}
                  s_waitcnt vmcnt(0)
                  s_branch {LEADB}""")
            k.label(JW)
            k(f"""s_cmp_lg_u32 s{sOK2}, 0
                  s_cbranch_scc1 {KVB}""")
        k(f"s_add_u32 s{S_T+3}, s{sKF}, s{sPG}")
        self.ev(44, va=M + 20)
        self.word_wait(S_T + 3, sOK, va=STS, sleep=opt.get("slk", 1))
        self.ev(45, va=M + 20)
        k(f"s_branch {KVB}")
        if c == 2:
            k.label(JUMP)
            k(f"""s_waitcnt vmcnt(0) lgkmcnt(0)
                  s_barrier
                  s_branch {START}""")
        k.label(END)
        for x in vend[2:]:
            k(sv(*x))
        k(f"""s_waitcnt lgkmcnt(0)
              v_pk_add_f32 {vr(VA,2)}, {vr(VA,2)}, {vr(VA+2,2)}
              v_pk_add_f32 {vr(VA+4,2)}, {vr(VA+4,2)}, {vr(VA+6,2)}
              v_cvt_pk_bf16_f32 v{VM}, v{VA}, v{VA+1}
              v_cvt_pk_bf16_f32 v{VM+1}, v{VA+4}, v{VA+5}""")
        for x in pub:
            k(x or "s_waitcnt lgkmcnt(0)")
        k(f"s_mov_b32 s{S_SEG}, 64")
        self.ev(50 + c, va=M + 4)
        k("s_waitcnt vmcnt(0)")
        k("s_barrier")
        k.fence()
        k(f"v_lshrrev_b32 v{V_LANE}, 4, v{V_L16}")

    def dump_stamps(self, n, extra=None, va=36):
        k = self.k
        k(f"""s_waitcnt lgkmcnt(0)
              s_lshl_b32 s{S_T}, s{S_SEG}, 5
              s_add_u32 s{S_T}, s{S_T}, s{S_H}
              s_lshl_b32 s{S_T}, s{S_T}, 2
              s_add_u32 s{S_T}, s{S_T}, s{S_W}
              s_lshl_b32 s{S_T}, s{S_T}, 6
              s_add_u32 s{S_T}, s{S_T}, {STAMP_OFF}
              v_mov_b32 v{va}, 0""")
        for i in range(n):
            k(f"v_writelane_b32 v{va}, s{84+2*i}, {i}")
        if extra is not None:
            k(f"v_writelane_b32 v{va}, s{extra}, 8")
            k(f"s_mov_b32 s{extra}, 0")
        k(f"""v_lshrrev_b32 v{va+1}, 2, v{V_L16}
              s_mov_b64 exec, 0xffff
              buffer_store_dword v{va}, v{va+1}, {WS}, s{S_T} offen
              s_mov_b64 exec, -1""")

    def proj_consts(self):
        k = self.k
        self.THR, self.TOB, self.TWO, self.THD, self.TRW, self.TRL = 4, 17, 18, 20, 21, 22
        T = 120
        k(f"""v_and_b32 v{T}, 15, v{V_LANE}
              v_lshrrev_b32 v{T+1}, 4, v{V_LANE}
              v_mov_b32 v{self.TOB}, 1
              s_lshl_b32 s{S_T}, s{S_W}, 15
              v_add_u32 v{self.TWO}, s{S_T}, v{V_L16}
              s_lshl_b32 s{S_T}, s{S_W}, 2
              v_add_u32 v{T+5}, s{S_T}, v{T+1}            ; row 4w+g
              v_xor_b32 v{T+6}, v{T+5}, v{T}
              v_lshlrev_b32 v{T+6}, 4, v{T+6}
              v_lshl_add_u32 v{self.THD}, v{T+5}, 10, v{T+6}""")
        for kq in range(4):
            k(f"""v_add_u32 v{T+5}, {4*kq}, v{T+1}
                  v_xor_b32 v{T+5}, v{T+5}, v{T}
                  v_lshlrev_b32 v{T+5}, 4, v{T+5}
                  v_lshl_add_u32 v{T+5}, v{T}, 8, v{T+5}
                  v_add_u32 v{self.THR+kq}, {self.LH}, v{T+5}""")
        k(f"""v_lshlrev_b32 v{self.TRW}, 5, v{T}
              v_and_b32 v{T+5}, 1, v{T+1}
              v_lshl_add_u32 v{self.TRW}, v{T+5}, 4, v{self.TRW}
              s_lshl_b32 s{S_T}, s{S_W}, 9
              v_lshrrev_b32 v{T+5}, 1, v{T+1}
              v_lshl_add_u32 v{self.TRW}, v{T+5}, 11, v{self.TRW}
              s_add_u32 s{S_T}, s{S_T}, {L_ROW}
              v_add_u32 v{self.TRW}, s{S_T}, v{self.TRW}
              v_lshlrev_b32 v{self.TRL}, 4, v{T}
              v_lshl_add_u32 v{self.TRL}, v{T+1}, 10, v{self.TRL}
              s_lshl_b32 s{S_T}, s{S_W}, 8
              v_add_u32 v{self.TRL}, s{S_T}, v{self.TRL}""")

    def flag_set(self, s_off, loc, keep=0):
        self.k(f"""s_waitcnt vmcnt({keep})
                   s_barrier""")
        self.flag_store(s_off, loc)

    def flags_wait32(self, s_off, one=False, sleep=0):
        k = self.k
        L, D, F = k.newlabel("L_fw"), k.newlabel("L_fd"), k.newlabel("L_ff")
        if one:
            k(f"""s_cmp_lg_u32 s{S_W}, 0
                  s_cbranch_scc1 {D}""")
        k(f"""v_and_b32 v124, 31, v{V_LANE}
              v_lshlrev_b32 v124, 2, v124""")
        if sleep:
            k(f"s_branch {F}")
        k.label(L)
        if sleep:
            k(f"s_sleep {sleep}")
            k.label(F)
        k(f"buffer_load_dword v125, v124, {WS}, s{s_off} offen sc1")
        self.spend()
        k(f"""s_waitcnt vmcnt(0)
              v_cmp_eq_u32 vcc, 0, v125
              s_cbranch_vccnz {L}""")
        if one:
            k.label(D)
            k("s_barrier")

    def reduce32(self, s_base, natural, o=0):
        k = self.k
        D = 24 + o; SEL = 56 + o; A = 60 + o
        for i in range(8):
            k(f"s_add_u32 s{S_T+7}, s{s_base}, {i*4096}")
            k(f"buffer_load_dwordx4 {vr(D+4*i,4)}, v{self.TRL}, {WS}, s{S_T+7} offen sc1")
        self.make_sel(SEL, 64 + o)
        for i in range(8):
            k(f"s_waitcnt vmcnt({7-i})")
            k(f"v_mfma_f32_16x16x32_bf16 {vr(A,4)}, {vr(SEL,4)}, {vr(D+4*i,4)}, {'0' if i == 0 else vr(A,4)}")
        if natural:
            k(f"ds_write_b128 v{self.TRW}, {vr(A,4)}")
        else:
            k(f"ds_write2_b64 v{self.TRW}, {vr(A,2)}, {vr(A+2,2)} offset0:0 offset1:64")
        k(f"""s_waitcnt lgkmcnt(0)
              s_barrier""")

    def one_lane_store(self, v, s_off, fl):
        self.k(f"""s_mov_b64 exec, 1
                   buffer_store_dword v{v}, off, {WS}, s{s_off}{fl}
                   s_mov_b64 exec, -1""")

    def wmax_u32(self, x, t):
        k = self.k
        for r in (8, 4, 2, 1):
            k(f"v_max_u32_dpp v{x}, v{x}, v{x} row_ror:{r} row_mask:0xf bank_mask:0xf")
        k(f"""v_mov_b32 v{t}, v{x}
              v_permlane16_swap_b32 v{x}, v{t}
              v_max_u32 v{x}, v{x}, v{t}
              v_mov_b32 v{t}, v{x}
              v_permlane32_swap_b32 v{x}, v{t}
              v_max_u32 v{x}, v{x}, v{t}""")

    def load_gate_up(self):
        k = self.k
        k(f"""v_and_b32 v33, 15, v{V_LANE}
              v_lshrrev_b32 v34, 4, v{V_LANE}
              s_min_u32 s{S_T+4}, s{S_H}, 27
              s_lshl_b32 s{S_T+4}, s{S_T+4}, 7            ; 64 cols * 2B
              s_mul_i32 s{S_T+3}, s{S_W}, {128*3584}
              s_add_u32 s{S_T+4}, s{S_T+4}, s{S_T+3}
              v_mul_u32_u24 v36, {32*3584}, v34
              v_and_b32 v35, 7, v33
              v_lshl_add_u32 v36, v35, 4, v36
              v_add_u32 v36, s{S_T+4}, v36                ; byte offset inside gate / up
              v_cmp_gt_u32 vcc, 8, v33
              v_mov_b32 v38, s{P_WU}
              v_mov_b32 v39, s{P_WU+1}
              v_mov_b32 v40, s{P_WG}
              v_mov_b32 v41, s{P_WG+1}
              v_cndmask_b32 v38, v38, v40, vcc
              v_cndmask_b32 v39, v39, v41, vcc
              v_add_co_u32 v38, vcc, v38, v36
              v_addc_co_u32 v39, vcc, 0, v39, vcc
              s_lshl_b32 s{S_T}, s{S_W}, 15
              v_add_u32 v37, s{S_T}, v{V_L16}""")
        for half in range(2):
            for i in range(16):
                k(f"global_load_dwordx4 {vr(44+4*i,4)}, v[38:39], off")
                k(f"v_add_co_u32 v38, vcc, 3584, v38")
                k(f"v_addc_co_u32 v39, vcc, 0, v39, vcc")
            for i in range(16):
                k(f"s_waitcnt vmcnt({15-i})")
                k(f"ds_write_b128 v37, {vr(44+4*i,4)} offset:{(16*half+i)*1024}")
                if i % 8 == 7:
                    k("s_waitcnt lgkmcnt(0)")

    def moe_pre(self, layer):
        k = self.k
        LD, AF, MK = 24, 124, 12
        A1, A2, A3 = 9, 10, 11
        k(f"""v_and_b32 v{A1}, 15, v{V_LANE}
              v_lshrrev_b32 v{A2}, 4, v{V_LANE}
              v_and_b32 v{AF}, 1, v{V_LANE}
              v_lshlrev_b32 v{AF}, 4, v{AF}
              v_mov_b32 v{AF+1}, 0xffff
              v_lshlrev_b32 v{AF+1}, v{AF}, v{AF+1}
              v_lshrrev_b32 v{AF}, 2, v{A1}
              v_cmp_eq_u32 vcc, 0, v{AF}
              v_cndmask_b32 v{MK}, 0, v{AF+1}, vcc
              v_cmp_eq_u32 vcc, 1, v{AF}
              v_cndmask_b32 v{MK+1}, 0, v{AF+1}, vcc
              v_and_b32 v{AF}, 2, v{V_LANE}
              v_cmp_eq_u32 vcc, 0, v{AF}
              v_mov_b32 v{MK+2}, 0xeeee
              v_mov_b32 v{AF}, 0x4444
              v_cndmask_b32 v{MK+2}, v{MK+2}, v{AF}, vcc
              v_lshlrev_b32 v{A3}, 14, v{A2}
              v_lshl_add_u32 v{A3}, v{A1}, 4, v{A3}
              s_lshl_b32 s{S_T+9}, s{S_SEG}, 15
              s_add_u32 s{S_T+9}, s{S_T+9}, {MOE_OFF}
              s_lshl_b32 s{S_T+6}, s{S_H}, 10
              s_add_u32 s{S_T+6}, s{S_T+6}, s{S_T+9}
              s_lshl_b32 s{S_T+7}, s{S_H}, 16
              s_lshl_b32 s{S_T+4}, s{S_W}, 8
              s_add_u32 s{S_T+7}, s{S_T+7}, s{S_T+4}""")
        self.srd(P_WD, 1792 * 1024)
        out = []
        for i in range(16):
            out.append((f"s_add_u32 s{S_T+7}, s{S_T+7}, 4096\n" if i % 4 == 0 and i else "")
                       + f"buffer_load_dwordx4 {vr(LD+i*4,4)}, v{A3}, {SA}, s{S_T+7} offen offset:{(i%4)*1024}")
        if not self.loc:
            out.append(f"buffer_load_dword v{MK+3}, v{V_L16}, {WS}, s{S_T+6} offen")
        if layer:
            for x in out:
                k(x)
            for i in range(32):
                k(f"ds_read_b128 {ar(4*i,4)}, v{self.TWO} offset:{i*1024}")
        return out

    def moe(self, layer, sKEY):
        k = self.k
        sROW = S_T + 8
        LD = 24
        X, YP, TM = 96, 104, 108
        XB, AF, ACC, MK, G = 88, 124, 116, 12, 108
        A0, A1, A2 = 8, 9, 10
        k(f"""s_andn2_b32 s{sROW}, 0x7ff, s{sKEY}
              s_lshl_b32 s{S_T}, s{sROW}, 10
              s_add_u32 s{S_T+2}, s{S_T}, {X1_OFF[layer]}
              buffer_load_dwordx4 {vr(XB,4)}, v{V_L16}, {WS}, s{S_T+2} offen sc1""")
        dl = [] if layer else self.moe_pre(0)
        TAB = L_MOE
        k(f"""s_lshl_b32 s{S_T+1}, s{S_W}, 11
              s_add_u32 s{S_T+1}, s{S_T+1}, {TAB}
              v_add_u32 v{A0}, s{S_T+1}, v{V_L16}
              v_and_b32 v2, 1, v{A2}
              v_lshrrev_b32 v3, 1, v{A2}
              v_lshlrev_b32 v2, 7, v2
              v_lshl_add_u32 v2, v3, 10, v2
              s_lshl_b32 s{S_T+3}, s{S_W}, 8
              s_add_u32 s{S_T+3}, s{S_T+1}, s{S_T+3}
              v_add_u32 v2, s{S_T+3}, v2                    ; rows 128w + 64(g&1) + (g>>1) + 2n
              s_mov_b32 s{S_T+4}, 0x01000100
              s_mov_b32 s{S_T+5}, 0x03020302
              s_waitcnt vmcnt(0)""")
        if layer == 0:
            XL, XD = k.newlabel("L_mx"), k.newlabel("L_mxd")
            k.label(XL)
            k(f"""v_max3_u32 v{AF}, v{XB}, v{XB+1}, v{XB+2}
                  v_max_u32 v{AF}, v{XB+3}, v{AF}
                  v_cmp_eq_u32 vcc, -1, v{AF}
                  s_cbranch_vccz {XD}
                  buffer_load_dwordx4 {vr(XB,4)}, v{V_L16}, {WS}, s{S_T+2} offen sc1""")
            self.spend()
            k(f"""s_waitcnt vmcnt(0)
                  s_branch {XL}""")
            k.label(XD)
            for x in dl[:4]:
                k(x)
            dl = dl[4:]
        self.mark(44)
        self.unpack8(X, XB)
        self.layernorm(X, YP, TM)
        for q in range(4):
            k(f"v_perm_b32 v{XB+q}, v{YP+q}, v{YP+q}, s{S_T+4}")
        k(f"ds_write_b128 v{A0}, {vr(XB,4)}")
        for q in range(4):
            k(f"v_perm_b32 v{XB+4+q}, v{YP+q}, v{YP+q}, s{S_T+5}")
        k(f"""ds_write_b128 v{A0}, {vr(XB+4,4)} offset:1024
              s_mov_b32 s{S_T+2}, s{S_T+1}""")
        def diag(af, t0, t1):
            return [f"v_and_b32 v{af}, v{MK}, v{t0}", f"v_and_b32 v{af+1}, v{MK+1}, v{t0}",
                    f"v_and_b32 v{af+2}, v{MK}, v{t1}", f"v_and_b32 v{af+3}, v{MK+1}, v{t1}"]
        self.mark(45)
        if layer:
            TB_ = 128
            for b in range(4):
                k(f"ds_read_b128 {vr(TB_+4*b,4)}, v2 offset:{16*b}")
                k(f"ds_read_b128 {vr(TB_+16+4*b,4)}, v2 offset:{64+16*b}")
            k(f"""v_mov_b64 {vr(ACC,2)}, 0
                  v_mov_b64 {vr(ACC+2,2)}, 0
                  s_waitcnt lgkmcnt(6)""")
            for x in diag(120, TB_, TB_ + 16):
                k(x)
            for n in range(16):
                if n + 1 < 16:
                    if (n + 1) % 4 == 0:
                        k(f"s_waitcnt lgkmcnt({6 - 2*((n+1)//4)})")
                    nx = diag(120 + 4 * ((n + 1) & 1), TB_ + n + 1, TB_ + 17 + n)
                    k(nx[0]); k(nx[1])
                k(f"v_smfmac_f32_16x16x64_bf16 {vr(ACC,4)}, {vr(120+4*(n&1),4)}, {ar(8*n,8)}, v{MK+2}")
                if n + 1 < 16:
                    k(nx[2]); k(nx[3])
        else:
            ring = [G, LD + 40, LD + 48, LD + 56]
            gread = lambda n: [f"ds_read_b128 {vr(ring[n&3]+4*hf,4)}, v{self.TWO} offset:{(2*n+hf)*1024}" for hf in range(2)]
            tread = lambda b: [f"ds_read_b128 {vr(XB,4)}, v2 offset:{16*b}", f"ds_read_b128 {vr(XB+4,4)}, v2 offset:{64+16*b}"]
            lq = []
            def ld(xs):
                for x in xs:
                    k(x); lq.append(x)
            def lw(x):
                k(f"s_waitcnt lgkmcnt({min(15, len(lq) - 1 - max(i for i, y in enumerate(lq) if y == x))})")
            ld(tread(0) + gread(0) + gread(1) + gread(2) + gread(3))
            k(f"""v_mov_b64 {vr(ACC,2)}, 0
                  v_mov_b64 {vr(ACC+2,2)}, 0""")
            early, late = dl[:6] + dl[12:], dl[6:12]
            for n in range(16):
                if n % 4 == 0:
                    lw(tread(n // 4)[1])
                for x in diag(120 + 4 * (n & 1), XB + n % 4, XB + 4 + n % 4):
                    k(x)
                if n % 4 == 3 and n < 15:
                    ld(tread(n // 4 + 1))
                lw(gread(n)[1])
                k(f"v_smfmac_f32_16x16x64_bf16 {vr(ACC,4)}, {vr(120+4*(n&1),4)}, {vr(ring[n&3],8)}, v{MK+2}")
                if n + 4 < 16:
                    ld(gread(n + 4))
                if early:
                    k(early.pop(0))
                if n >= 13:
                    k(late.pop(0)); k(late.pop(0))
            assert not early and not late
        self.mark(46)
        RED = L_MOE + 8 * KB
        k(f"""v_lshlrev_b32 v{A0}, 5, v{A1}
              v_and_b32 v{AF}, 1, v{A2}
              v_lshl_add_u32 v{A0}, v{AF}, 4, v{A0}
              v_lshrrev_b32 v{AF}, 1, v{A2}
              v_lshl_add_u32 v{A0}, v{AF}, 11, v{A0}
              s_lshl_b32 s{S_T+4}, s{S_W}, 9
              s_add_u32 s{S_T+4}, s{S_T+4}, {RED}
              v_add_u32 v{A0}, s{S_T+4}, v{A0}
              ds_write_b128 v{A0}, {vr(ACC,4)}
              v_lshlrev_b32 v{A0}, 2, v{V_LANE}
              v_add_u32 v{A0}, {RED}, v{A0}
              v_and_b32 v2, 1, v{V_LANE}
              v_lshrrev_b32 v3, 1, v{V_LANE}
              v_lshlrev_b32 v3, 2, v3
              v_lshl_add_u32 v2, v2, 7, v3
              v_add_u32 v2, s{S_T+2}, v2
              v_lshlrev_b32 v3, 6, v{A2}
              v_add_u32 v3, s{S_T+2}, v3                    ; rows 32(g&1) + (g>>1) + 2n
              s_waitcnt lgkmcnt(0)
              s_barrier""")
        for w in range(4):
            k(f"ds_read2st64_b32 {vr(XB+2*w,2)}, v{A0} offset0:{2*w} offset1:{2*w+1}")
        k("s_waitcnt lgkmcnt(0)")
        k(f"""v_pk_add_f32 {vr(XB,2)}, {vr(XB,2)}, {vr(XB+2,2)}
              v_pk_add_f32 {vr(XB+4,2)}, {vr(XB+4,2)}, {vr(XB+6,2)}
              v_pk_add_f32 {vr(XB,2)}, {vr(XB,2)}, {vr(XB+4,2)}""")
        self.round1(XB)
        self.round1(XB + 1)
        k(f"""v_mul_f32 v{XB+2}, {f32(-math.log2(math.e))}, v{XB}
              v_exp_f32 v{XB+2}, v{XB+2}
              v_add_f32 v{XB+2}, 1.0, v{XB+2}
              v_rcp_f32 v{XB+2}, v{XB+2}
              v_mul_f32 v{XB}, v{XB}, v{XB+2}""")
        self.round1(XB)
        k(f"""v_mul_f32 v{XB}, v{XB}, v{XB+1}
              v_cvt_pk_bf16_f32 v{XB}, v{XB}, v{XB}
              ds_write_b32 v2, v{XB}
              ds_read_b128 {vr(XB,4)}, v3
              ds_read_b128 {vr(G,4)}, v3 offset:32
              ds_read_b128 {vr(XB+4,4)}, v3 offset:16
              ds_read_b128 {vr(G+4,4)}, v3 offset:48
              v_mov_b64 {vr(ACC,2)}, 0
              v_mov_b64 {vr(ACC+2,2)}, 0
              s_waitcnt vmcnt(0) lgkmcnt(0)""")
        for x in diag(120, XB, G):
            k(x)
        for n in range(8):
            if n + 1 < 8:
                nx = diag(120 + 4 * ((n + 1) & 1), XB + n + 1, G + n + 1)
                k(nx[0]); k(nx[1])
            k(f"v_smfmac_f32_16x16x64_bf16 {vr(ACC,4)}, {vr(120+4*(n&1),4)}, {vr(LD+8*n,8)}, v{MK+2}")
            if n + 1 < 8:
                k(nx[2]); k(nx[3])
        self.mark(47)
        k(f"""v_lshlrev_b32 v{A0}, 4, v{A1}
              v_and_b32 v{AF}, 1, v{A2}
              v_lshl_add_u32 v{A0}, v{AF}, 3, v{A0}
              v_and_b32 v{AF}, 2, v{A2}
              v_lshl_add_u32 v{A0}, v{AF}, 30, v{A0}
              s_lshl_b32 s{S_T+4}, s{S_W}, 8
              s_add_u32 s{S_T+3}, s{S_T+6}, s{S_T+4}
              v_cvt_pk_bf16_f32 v{XB}, v{ACC}, v{ACC+1}
              v_cvt_pk_bf16_f32 v{XB+1}, v{ACC+2}, v{ACC+3}
              buffer_store_dwordx2 {vr(XB,2)}, v{A0}, {WS}, s{S_T+3} offen{self.loc}""")
        self.page(S_T + 3, F_M)
        self.flag_set(S_T + 3, self.loc)
        D = k.newlabel("L_moed")
        if layer == 1:
            k(f"""s_cmp_lg_u32 s{S_H}, 0
                  s_cbranch_scc1 {D}""")
        self.page(S_T + 3, F_M, head=False)
        self.flags_wait32(S_T + 3)
        self.mark(48)
        o_ = 144 if layer else 0
        self.reduce32(S_T + 9, True, o_)
        self.mark(49)
        k(f"""s_cmp_lg_u32 s{S_W}, 0
              s_cbranch_scc1 {D}""")
        A, PK, Y, TM = 24 + o_, 40 + o_, 48 + o_, 56 + o_
        k(f"""v_lshlrev_b32 v{TM}, 5, v{V_LANE}
              v_add_u32 v{TM}, {L_ROW}, v{TM}
              ds_read_b128 {vr(A,4)}, v{TM}
              ds_read_b128 {vr(A+4,4)}, v{TM} offset:16
              s_and_b32 s{S_T+3}, s{sKEY}, 0xffff0000
              s_xor_b32 s{S_T+4}, s{S_T+3}, 0x80000000
              s_xor_b32 s{S_T+5}, s{S_T+3}, 0xffff0000
              s_cmp_lt_i32 s{S_T+3}, 0
              s_cselect_b32 s{S_T+3}, s{S_T+4}, s{S_T+5}
              v_mov_b32 v{TM}, s{S_T+3}
              v_mul_f32 v{TM}, {f32(-math.log2(math.e))}, v{TM}
              v_exp_f32 v{TM}, v{TM}
              v_add_f32 v{TM}, 1.0, v{TM}
              v_rcp_f32 v{TM}, v{TM}""")
        self.round1(TM)
        self.unpack8(Y, YP)
        k("s_waitcnt lgkmcnt(0)")
        self.pack8(PK, A)
        self.unpack8(A, PK)
        for j in range(0, 8, 2):
            k(f"v_pk_mul_f32 {vr(A+j,2)}, {vr(A+j,2)}, {vr(TM,2)} op_sel_hi:[1,0]")
        self.pack8(PK, A)
        self.unpack8(A, PK)
        self.add8(A, Y)
        self.pack8(PK, A)
        self.unpack8(A, PK)
        self.add8(X, A)
        self.pack8(160 if layer else 80, X)
        if layer == 0:
            self.unpack8(X, 80)
            self.layernorm(X, 84, TM + 2)
            k(f"""s_lshl_b32 s{S_T+2}, s{S_SEG}, 10
                  s_add_u32 s{S_T+2}, s{S_T+2}, {X2P_OFF}
                  s_add_u32 s{S_T+3}, s{S_T+2}, {HPS_OFF - X2P_OFF}
                  s_cmp_eq_u32 s{S_H}, 0
                  s_cselect_b32 s{S_T+3}, s{S_T+3}, 0x80000000
                  s_add_u32 s{S_T+1}, s{S_T}, {HP_OFF}
                  buffer_store_dwordx4 v[84:87], v{V_L16}, {WS}, s{S_T+3} offen sc1
                  buffer_store_dwordx4 v[80:83], v{V_L16}, {WS}, s{S_T+2} offen sc1
                  buffer_store_dwordx4 v[84:87], v{V_L16}, {WS}, s{S_T+1} offen sc1""")
        k.label(D)

    def a_plan(self):
        o = self.opt
        n1, n2, up = o.get("n1", 3), o.get("n2", 5), o.get("up", 6)
        p0 = self.P0 = o.get("p0", 14)
        own = [list(range(0, p0, 2)), list(range(1, p0, 2)), list(range(p0 + n1 + n2, p0 + n1 + n2 + up))]
        pat = o.get("pat", (0, 2, 1, 2))
        for i, x in enumerate(range(p0 + n1 + n2 + up, 64)):
            own[pat[i % len(pat)]].append(x)
        return n1, n2, up, [sum(1 << x for x in w) for w in own]

    def pop_next(self, dst, mask):
        self.k(f"""s_ff1_i32_b64 s{dst}, {sr(mask,2)}
                   s_bitset0_b64 {sr(mask,2)}, s{dst}
                   s_min_u32 s{dst}, s{dst}, 127""")

    def spec(self):
        o = self.opt
        return o.get("delta", 10), o.get("th", 28), o.get("kb", 4)

    def words_wait64(self, s_off, t, sleep):
        k = self.k
        L = k.newlabel("L_fp")
        k.label(L)
        k(f"""s_sleep {sleep}
              buffer_load_dword v{t+1}, v{t}, {WS}, s{s_off} offen sc1""")
        self.spend()
        k(f"""s_waitcnt vmcnt(0)
              v_cmp_eq_u32 vcc, 0, v{t+1}
              s_cbranch_vccnz {L}""")

    def todo_mask(self, sTODO, t):
        self.k(f"""v_cmp_le_u32 vcc, s{S_T+5}, v{V_LANE}
                   v_cndmask_b32 v{t}, 1, 2, vcc
                   v_cmp_ne_u32 {sr(sTODO,2)}, v{t}, v{t+1}""")

    def role_moe(self):
        k = self.k
        o = self.opt
        sMAX, sKEY = 54, 55
        self.proj_consts()
        _, _, UP, own = self.a_plan()
        JD, MINL, MAXL = o.get("jd", 2), o.get("minl", 20), o.get("maxl", 30)
        sNA, sSC = S_A, S_B
        sH, sN, sF, sDEBT, sOWN, sKA, sGR = S_T + 12, S_T + 14, S_T + 16, S_T + 17, S_T + 18, S_T + 20, S_T + 21
        sR, sPT, sALT, sFR, sPF = 84, 86, 87, 18, 19
        t = 20
        sQ = 22
        PR, NR, DG = k.newlabel("L_mp"), k.newlabel("L_mr"), k.newlabel("L_mg")
        L, AL, AL2, NF, NJ, FN, T1P, LK, P_, BC, WR_, L2, GOT, EN = (k.newlabel("L_mo") for _ in range(14))
        k(f"""s_mov_b32 s{sMAX}, 0
              s_mov_b32 s{sSC}, 0
              s_mov_b32 s{S_CNT}, {UP}
              s_mov_b32 s{sF}, 0x80000000
              s_mov_b32 s{sDEBT}, 0
              s_mov_b32 s{sGR}, -1
              s_mov_b32 s{sPT}, 0
              s_mov_b32 s{sPF}, 0
              s_mov_b32 s{sOWN}, {own[2] & 0xffffffff}
              s_mov_b32 s{sOWN+1}, {own[2] >> 32}
              v_and_b32 v23, 15, v{V_LANE}
              v_lshlrev_b32 v23, 3, v23
              v_lshrrev_b32 v16, 4, v{V_LANE}
              v_lshl_add_u32 v23, v16, 13, v23
              v_mov_b32 v19, {L_MISC}
              v_lshl_add_u32 v16, v16, 2, v19""")
        sBIG = 25
        for x in self.moe_pre(0)[:16]:
            k(x)
        self.srd(P_WR, 1024)
        k(f"""buffer_load_dwordx4 v[88:91], v{V_L16}, {SA}, 0 offen
              s_waitcnt vmcnt(0)""")
        self.unpack8(96, 88)
        k("v_mul_f32 v88, v96, v96")
        for j in range(1, 8):
            k(f"v_fma_f32 v88, v{96+j}, v{96+j}, v88")
        self.wsum(88, 89)
        k(f"""v_sqrt_f32 v88, v88
              v_mul_f32 v88, {f32(o.get("zbig", 2.8))}, v88
              v_readfirstlane_b32 s{sBIG}, v88
              s_bitset1_b32 s{sBIG}, 31""")
        kload = f"buffer_load_dwordx2 v[124:125], v23, {WS}, s{sKA} offen sc1"
        self.pop_next(sNA, sOWN)
        self.t1_src(sN, sNA, 0)
        k.label(AL)
        k(f"""s_cmp_lg_u32 s{sPF}, 0
              s_cbranch_scc1 {AL2}""")
        for x in self.t1_dma(sN, (0, 1, 2)):
            k(x)
        k(f"""s_mov_b32 s{sPF}, 1
              s_waitcnt vmcnt(0)""")
        k.label(AL2)
        k(f"""s_mov_b32 s{S_SEG}, s{sNA}
              s_mov_b64 {sr(sH,2)}, {sr(sN,2)}""")
        self.pop_next(sNA, sOWN)
        self.t1_src(sN, sNA, 0)
        self.page(sKA, F_RKM, seg=sSC, head=False)
        self.t1(0, sH, pre=8, s_flag=sF, nxt=self.t1_dma(sN, (0, 1, 2)) + [kload])
        self.ev(17)
        self.page(sF, F_KV[0])
        k(f"""s_sub_u32 s{S_CNT}, s{S_CNT}, 1
              s_cmp_gt_i32 s{S_CNT}, {o.get("upq", 3)}
              s_cbranch_scc1 {AL2}
              s_cmp_gt_i32 s{S_CNT}, 0
              s_cselect_b32 s{sALT}, 1, 3
              s_mov_b32 s{sFR}, 0
              s_waitcnt vmcnt(7)
              s_branch {LK}""")
        k.label(L)
        k(f"""s_mov_b32 s{sKEY}, s{sQ}
              s_mov_b32 s{sQ}, s{sQ+1}
              s_mov_b32 s{sQ+1}, s{sQ+2}
              s_mov_b32 s{sQ+2}, -1
              v_mov_b32 v3, 0
              s_cmp_lg_u32 s{sKEY}, -1
              s_cbranch_scc1 {PR}
              s_sub_u32 s{S_T}, s{sNA}, s{sSC}
              s_cmp_gt_i32 s{sGR}, 0
              s_cselect_b32 s{S_T+1}, 6, {MINL}
              s_cmp_lg_u32 s{sPT}, 0
              s_cselect_b32 s{S_T+1}, {o.get("minl2", 9)}, s{S_T+1}
              s_cmp_lt_i32 s{S_T}, s{S_T+1}
              s_cbranch_scc1 {AL}
              s_cmp_lt_i32 s{S_T}, {MAXL}
              s_cselect_b32 s{sALT}, s{sFR}, 0
              s_cmp_ge_u32 s{sSC}, {o.get("tnow", 8)}
              s_cselect_b32 s{S_T}, 1, s{sFR}
              s_and_b32 s{S_T}, s{S_T}, s{sPT}
              s_cselect_b32 s{sALT}, 2, s{sALT}
              s_mul_i32 s{S_T}, s{sALT}, s{sFR}
              s_cmp_lg_u32 s{S_T}, 0
              s_cbranch_scc1 {FN}
              s_mov_b32 s{sFR}, 0
              s_lshr_b32 s{S_T}, s{sF}, 31
              s_or_b32 s{S_T}, s{S_T}, s{sALT}
              s_cbranch_scc1 {L2}""")
        self.flag_set(sF, " sc1")
        k(f"s_mov_b32 s{sF}, 0x80000000")
        k.label(L2)
        k(f"""s_cmp_lg_u32 s{S_W}, 0
              s_cbranch_scc1 {BC}""")
        self.page(sKA, F_RKM, seg=sSC, head=False)
        k(f"""s_lshl_b32 s{S_T+1}, s{S_H}, 8
              s_add_u32 s{S_T+1}, s{S_T+1}, s{sSC}
              s_cmp_eq_u32 s{S_T+1}, 63
              s_mov_b32 s{S_T+1}, 0x80000000
              s_cmov_b32 s{S_T+1}, {PG_OFF + 65*8192 + F_DEC}
              v_lshlrev_b32 v2, 2, v{V_LANE}""")
        k.label(P_)
        k(kload)
        k(f"buffer_load_dword v3, v2, {WS}, s{S_T+1} offen sc1")
        self.spend()
        k("s_waitcnt vmcnt(0)")
        k.label(LK)
        k(f"""v_min_u32 v123, v124, v125
              v_max_u32 v125, v124, v125
              v_cmp_eq_u32 vcc, 0, v123
              v_cndmask_b32 v125, v125, -1, vcc
              s_and_b32 s{S_T}, vcc_lo, 0xffff
              s_cbranch_scc0 {GOT}
              s_cmp_lg_u32 s{sALT}, 0
              s_cbranch_scc1 {GOT}
              s_mov_b32 s{sFR}, 1
              s_sleep {o.get("slm", 2)}
              s_branch {P_}""")
        k.label(GOT)
        for r in (8, 4, 2, 1):
            k(f"v_max_u32_dpp v125, v125, v125 row_ror:{r} row_mask:0xf bank_mask:0xf")
        k.label(BC)
        self.spend()
        k(f"""v_mov_b32 v124, s{sFR}
              s_barrier
              s_cmp_lg_u32 s{S_W}, 0
              s_cbranch_scc1 {WR_}
              ds_write_b32 v16, v125
              ds_write_b32 v19, v124 offset:16
              s_waitcnt lgkmcnt(0)""")
        k.label(WR_)
        k(f"""s_barrier
              ds_read_b128 v[120:123], v19
              ds_read_b32 v124, v19 offset:16
              s_waitcnt lgkmcnt(0)
              v_readfirstlane_b32 s{sKEY}, v120
              v_readfirstlane_b32 s{sQ}, v121
              v_readfirstlane_b32 s{sQ+1}, v122
              v_readfirstlane_b32 s{sQ+2}, v123
              v_readfirstlane_b32 s{sFR}, v124
              s_cmp_lg_u32 s{sKEY}, -1
              s_cbranch_scc1 {PR}
              {FN}:
              s_mov_b32 s{sQ}, -1
              s_cmp_eq_u32 s{sALT}, 1
              s_cbranch_scc1 {AL}
              s_cmp_eq_u32 s{sALT}, 2
              s_cbranch_scc1 {T1P}
              s_branch {L}""")
        k.label(PR)
        k(f"""s_mov_b32 s{S_CNT}, 0
              s_sub_u32 s{sDEBT}, s{sDEBT}, 1
              s_max_i32 s{sDEBT}, s{sDEBT}, 0
              s_sub_u32 s{sGR}, s{sGR}, 1
              s_min_u32 s{S_T+5}, s{sDEBT}, {LOOK}
              s_cmp_lt_u32 s{sSC}, {o.get("early", 5)}
              s_cselect_b32 s{S_T+4}, s{sBIG}, 0
              s_cmp_lt_u32 s{sKEY}, s{S_T+4}
              s_cselect_b32 s{S_T+5}, {LOOK}, s{S_T+5}
              s_cmp_le_u32 s{sKEY}, s{sMAX}
              s_cbranch_scc1 {NR}
              s_mov_b32 s{sGR}, s{S_T+5}
              s_mov_b32 s{sMAX}, s{sKEY}
              s_mov_b32 s{sPT}, 0
              s_or_b32 s{S_T+5}, s{S_H}, s{S_W}
              s_cbranch_scc1 {NR}
              v_mov_b32 v120, s{sMAX}
              v_lshlrev_b32 v121, 13, v{V_LANE}
              s_mov_b32 s{S_T+5}, {PG_OFF + F_RM}
              buffer_store_dword v120, v121, {WS}, s{S_T+5} offen sc1
              {NR}:
              s_cmp_lg_u32 s{sSC}, 63
              s_cbranch_scc1 {NF}
              s_min_i32 s{sGR}, s{sGR}, 0
              s_or_b32 s{S_T+5}, s{S_H}, s{S_W}
              s_cbranch_scc1 {NF}
              s_mov_b32 s{S_T+3}, {PG_OFF + 65*8192 + F_DEC}
              v_lshlrev_b32 v120, 2, v{V_LANE}
              v_mov_b32 v121, v3
              v_cmp_eq_u32 vcc, 0, v3
              s_cbranch_vccz {DG}""")
        self.words_wait64(S_T + 3, 120, 0)
        k.label(DG)
        k(f"""s_andn2_b32 s{S_T+6}, 0x7ff, s{sMAX}
              v_lshl_or_b32 v121, s{S_T+6}, 8, v121""")
        for w in range(6):
            k(f"""s_add_u32 s{S_T+3}, s{S_T+3}, 8192
                  buffer_store_dword v121, v120, {WS}, s{S_T+3} offen sc1""")
        k.label(NF)
        k(f"""s_add_u32 s{sSC}, s{sSC}, 1
              s_cmp_gt_i32 s{sGR}, 0
              s_cmov_b32 s{sFR}, 0
              s_cbranch_scc1 {L}
              s_cmp_lg_u32 s{sGR}, 0
              s_cbranch_scc1 {NJ}""")
        k(f"""s_andn2_b32 s{S_SEG}, 0x7ff, s{sMAX}
              s_lshr_b32 s{S_SEG}, s{S_SEG}, 5
              s_add_u32 s{sDEBT}, s{sDEBT}, {JD}
              s_mov_b32 s{sPT}, 1
              s_mov_b32 s{sPF}, 0
              s_mov_b32 s{sFR}, 0
              s_waitcnt vmcnt(8)
              s_barrier""")
        self.ev(30)
        self.moe(0, sMAX)
        self.flush()
        self.ev(31)
        k("s_barrier")
        k.label(NJ)
        k(f"""s_mov_b32 s{sGR}, -1
              s_cmp_lt_u32 s{sSC}, 64
              s_cbranch_scc1 {L}
              s_cmp_eq_u32 s{sPT}, 0
              s_cbranch_scc1 {EN}""")
        k.label(T1P)
        k(f"""s_andn2_b32 s{S_SEG}, 0x7ff, s{sMAX}
              s_lshr_b32 s{S_SEG}, s{S_SEG}, 5
              s_andn2_b32 s{S_T}, 31, s{sMAX}
              v_lshrrev_b32 v2, 10, v{self.THD}
              v_add_u32 v3, 16, v2
              v_add_u32 v8, {HP_OFF - H_OFF[1]}, v{self.THD}
              v_cmp_eq_u32 vcc, s{S_T}, v2
              v_cndmask_b32 v2, v{self.THD}, v8, vcc
              v_cmp_eq_u32 vcc, s{S_T}, v3
              v_cndmask_b32 v3, v{self.THD}, v8, vcc
              s_waitcnt vmcnt(0)""")
        self.page(S_T + 3, F_HX, head=False)
        self.flags_wait32(S_T + 3, one=True, sleep=2)
        self.flag_store(sF, " sc1")
        self.t1_src(S_T + 10, S_SEG, 1)
        self.t1b(2, S_T + 10, voff=(2, 3), early=False)
        self.ev(32)
        for x in self.t1_dma(sN, (0, 1, 2)):
            k(x)
        self.page(S_T + 3, F_Q[2])
        self.flag_set(S_T + 3, " sc1")
        k(f"""s_mov_b32 s{sF}, 0x80000000
              s_mov_b32 s{sPT}, 0
              s_mov_b32 s{sPF}, 1
              s_mov_b32 s{sFR}, 0
              s_cmp_lt_u32 s{sSC}, 64
              s_cbranch_scc1 {L}""")
        k.label(EN)
        NS = 6
        LD_, AG, EX, LP, WB, PO = (k.newlabel("L_mf") for _ in range(6))
        k(f"""s_mov_b32 s{S_SEG}, 64
              s_cmp_eq_u32 s{S_H}, 31
              s_cbranch_scc1 {LD_}""")
        self.moe_pre(1)
        for n in range(1, NS if not self.loc else 0):
            k(f"""s_add_u32 s{S_T+3}, s{S_T+6}, {n*32*KB}
                  buffer_load_dword v15, v{V_L16}, {WS}, s{S_T+3} offen""")
        k.label(AG)
        k(f"""s_lshl_b32 s{S_T+3}, s{S_SEG}, 13
              s_lshl_b32 s{S_T+5}, s{S_W}, 7
              s_add_u32 s{S_T+3}, s{S_T+3}, s{S_T+5}
              s_add_u32 s{S_T+3}, s{S_T+3}, {PG_OFF + F_FIN}""")
        self.word_wait(S_T + 3, sKEY, va=2, sleep=1)
        k(f"""s_cmp_eq_u32 s{sKEY}, 1
              s_cbranch_scc1 {EX}
              s_barrier""")
        self.ev(33)
        self.moe(1, sKEY)
        self.flush()
        k(f"""s_add_u32 s{S_SEG}, s{S_SEG}, 1
              s_add_u32 s{S_T+6}, s{S_T+6}, {32*KB}
              s_add_u32 s{S_T+9}, s{S_T+9}, {32*KB}
              s_branch {AG}""")
        k.label(EX)
        self.srd(P_OUT, 2048 * 1024)
        k(f"""s_or_b32 s{S_T+5}, s{S_H}, s{S_W}
              s_cselect_b32 s{S_T}, 0x80000000, s{S_T}
              buffer_store_dwordx4 v[160:163], v{V_L16}, {SA}, s{S_T} offen sc1""")
        self.ev(34)
        k("""s_waitcnt vmcnt(0)
             s_endpgm""")
        k.label(LD_)
        sL, sC = S_T + 10, S_T + 11
        k(f"""s_cmp_lg_u32 s{S_W}, 0
              s_cbranch_scc1 {PO}
              v_mov_b64 v[24:25], 0
              v_mov_b64 v[26:27], 0""")
        for n in range(NS):
            k(f"""s_mov_b32 s{S_T}, {MOE_OFF + (64 + n) * 32 * KB + 31 * KB}
                  buffer_store_dwordx4 v[24:27], v{V_L16}, {WS}, s{S_T} offen{self.loc}""")
        k(f"""s_andn2_b32 s{S_T+5}, 0x7ff, s{sMAX}
              s_lshr_b32 s{S_T+5}, s{S_T+5}, 5
              s_mov_b32 s{S_T+3}, {PG_OFF + 65*8192 + F_DEC}
              v_lshlrev_b32 v2, 2, v{V_LANE}""")
        self.words_wait64(S_T + 3, 2, 2)
        self.todo_mask(sR, 2)
        for n in range(NS):
            k(f"""s_mov_b32 s{S_T}, {PG_OFF + (64 + n) * 8192 + F_M + 31 * 4}
                  buffer_store_dword v{self.TOB}, off, {WS}, s{S_T}{self.loc}""")
        k(f"""v_lshrrev_b32 v2, 3, v{V_LANE}
              v_and_b32 v3, 0x70, v{V_L16}
              v_lshl_add_u32 v3, v2, 13, v3""")
        for i in range(8):
            k(f"""s_lshr_b64 {sr(t,2)}, {sr(sR,2)}, {8*i}
                  v_lshrrev_b32 v{60+i}, v2, s{t}
                  v_and_b32 v{60+i}, 1, v{60+i}
                  v_mul_u32_u24 v{60+i}, {F_RK[1] - F_RK[2]}, v{60+i}
                  v_sub_u32 v{60+i}, v3, v{60+i}
                  v_add_u32 v{60+i}, {PG_OFF + F_RK[1] + i*8*8192}, v{60+i}""")
        k(f"""v_and_b32 v68, 3, v{V_LANE}
              v_lshlrev_b32 v68, 7, v68
              v_add_u32 v68, {PG_OFF + F_FIN}, v68
              v_and_b32 v69, 31, v{V_LANE}
              v_lshlrev_b32 v69, 2, v69
              v_add_u32 v69, {PG_OFF + F_M - 8192}, v69
              s_mov_b32 s{sL}, 0
              s_mov_b32 s{sC}, {64 * 8192}""")
        LS, LJ = k.newlabel("L_ms"), k.newlabel("L_mj")
        k(f"""v_mov_b32 v57, 0
              s_mov_b32 s{S_T+2}, 1""")
        k.label(LP)
        self.spend()
        k(f"""s_mov_b32 s{S_T+1}, 0
              s_cmp_lg_u32 s{S_T+2}, 0
              s_cbranch_scc1 {LS}
              buffer_load_dwordx4 v[52:55], v67, {WS}, 0 offen sc1
              buffer_load_dword v70, v69, {WS}, s{sC} offen sc1
              s_branch {LJ}""")
        k.label(LS)
        for i in range(8):
            k(f"buffer_load_dwordx4 {vr(24+4*i,4)}, v{60+i}, {WS}, 0 offen sc1")
        k(f"buffer_load_dword v70, v69, {WS}, s{sC} offen sc1")
        for i in range(8):
            b = 24 + 4 * i
            if i == 7:
                k(f"s_mov_b32 s{S_T+2}, s{S_T+1}")
                k.label(LJ)
            k(f"""s_waitcnt vmcnt({8 - i})
                  v_min3_u32 v56, v{b}, v{b+1}, v{b+2}
                  v_max3_u32 v57, v{b}, v{b+1}, v57
                  v_min_u32 v56, v{b+3}, v56
                  v_max3_u32 v57, v{b+2}, v{b+3}, v57
                  v_cmp_eq_u32 vcc, 0, v56
                  s_bcnt1_i32_b64 s{S_T}, vcc
                  s_add_u32 s{S_T+1}, s{S_T+1}, s{S_T}""")
        self.wmax_u32(57, 58)
        k(f"""v_readfirstlane_b32 s{sKEY}, v57
              s_cmp_lg_u32 s{sKEY}, s{sL}
              s_cbranch_scc1 {WB}
              s_cmp_lg_u32 s{S_T+1}, 0
              s_cbranch_scc1 {LP}
              v_mov_b32 v57, 1
              buffer_store_dword v57, v68, {WS}, s{sC} offen{self.loc}""")
        k.label(PO)
        k("""s_waitcnt vmcnt(0)
             s_endpgm""")
        k.label(WB)
        k(f"""s_waitcnt vmcnt(0)
              v_cmp_eq_u32 vcc, 0, v70
              s_cmp_eq_u32 s{sL}, 0
              s_cselect_b32 s{S_T}, 0, vcc_lo                 ; the update before is still under way
              s_cmp_gt_u32 s{S_T+1}, {8 * o.get("miss", 14)}
              s_cselect_b32 s{S_T}, 1, s{S_T}
              s_cmp_ge_u32 s{sC}, {(64 + NS - 1) * 8192}
              s_cselect_b32 s{S_T}, 1, s{S_T}
              s_cmp_eq_u32 s{S_T+1}, 0
              s_cselect_b32 s{S_T}, 0, s{S_T}
              s_cmp_lg_u32 s{S_T}, 0
              s_cbranch_scc1 {LP}
              buffer_store_dword v57, v68, {WS}, s{sC} offen{self.loc}
              s_mov_b32 s{sL}, s{sKEY}
              s_add_u32 s{sC}, s{sC}, 8192
              s_branch {LP}""")

    def role_proj(self):
        k = self.k
        self.LH = 64 * KB
        self.proj_consts()
        own = self.a_plan()[3]
        MAXL, MINL = self.opt.get("pmaxl", 44), self.opt.get("pminl", 12)
        sCUR, sNA = 54, 55
        sH, sN, sF, sOWN, sLB, sNB, sNXT = S_T + 10, S_T + 12, S_T + 14, S_T + 16, S_T + 18, S_T + 19, S_T + 20
        allq = (0, 1, 2, 3)
        FA, FV, VA_ = 23, 76, 19
        sPC_ = S_T + 21
        k(f"""s_sub_u32 s{sCUR}, s{S_G}, 4
              s_cmp_eq_u32 s{sCUR}, 0
              s_mov_b32 s{sOWN}, {own[1] & 0xffffffff}
              s_mov_b32 s{sOWN+1}, {own[1] >> 32}
              s_cmov_b32 s{sOWN}, {own[0] & 0xffffffff}
              s_cmov_b32 s{sOWN+1}, {own[0] >> 32}
              s_mov_b32 s{sF}, 0x80000000
              s_mov_b32 s{S_CNT}, {self.opt.get("pup", 7)}
              s_mov_b32 s{sLB}, s{S_LW}
              s_xor_b32 s{sNB}, s{sLB}, {32*KB}
              v_and_b32 v{FA}, 31, v{V_LANE}
              v_lshlrev_b32 v{FA}, 2, v{FA}
              v_mov_b32 v{VA_}, s{S_LW}
              v_mov_b32 v16, 0""")
        self.pop_next(sNA, sOWN)
        self.t1_src(sN, sNA, 0)
        for x in self.t1_dma(sN, allq, sb=sNB):
            k(x)
        k("""s_waitcnt vmcnt(0)
             s_barrier""")
        def peek():
            return (f"""s_lshl_b32 s{S_T}, s{sCUR}, 13
                        s_add_u32 s{S_T}, s{S_T}, {PG_OFF + F_HX}
                        s_or_b32 s{S_T}, s{S_T}, s{S_OOB}
                        buffer_load_dword v{FV}, v{FA}, {WS}, s{S_T} offen sc1""",
                    ["s_waitcnt vmcnt(0)", f"v_cmp_eq_u32 vcc, 0, v{FV}", f"v_mov_b32 v{FV}, vcc_lo", f"ds_write_b32 v{VA_}, v{FV}"],
                    f"ds_read_b32 v{FV}, v16")
        def choose(after_a):
            out = [f"v_readfirstlane_b32 s{S_T+1}, v{FV}",
                   f"s_sub_u32 s{S_T+3}, s{sNA}, s{sCUR}\ns_cmp_lt_i32 s{S_T+3}, {MAXL}\ns_cselect_b32 s{sNXT}, 2, 0"]
            if after_a:
                out.append(f"s_cmp_gt_i32 s{S_CNT}, 0\ns_cselect_b32 s{sNXT}, s{sNXT}, 0")
            out += [f"s_cmp_eq_u32 s{S_T+1}, 0\ns_cselect_b32 s{sNXT}, 1, s{sNXT}",
                    f"s_cmp_lt_i32 s{S_T+3}, {MINL}\ns_cselect_b32 s{sNXT}, 2, s{sNXT}\ns_add_u32 s{S_T+1}, s{sCUR}, {H_OFF[1] >> 15}",
                    f"s_cmp_eq_u32 s{sNXT}, 1\ns_cselect_b32 s{sN}, s{S_T+1}, s{sNA}\ns_lshl_b32 s{sN}, s{sN}, 15",
                    f"s_cmp_eq_u32 s{sNXT}, 0\ns_cselect_b32 s{sN}, 0x80000000, s{sN}\ns_add_u32 s{sN+1}, s{sN}, {16*KB}"]
            return out + self.t1_dma(sN, allq, sb=sNB)
        def flip():
            k(f"""s_mov_b32 s{sNB}, s{sLB}
                  s_xor_b32 s{sLB}, s{sLB}, {32*KB}""")
            for i in range(4):
                k(f"v_xor_b32 v{self.THR+i}, {32*KB}, v{self.THR+i}")
        LA_, LC, DSP, EN, W3, RDY = (k.newlabel("L_p") for _ in range(6))
        self.mk = 24
        k.label(LA_)
        flip()
        n0_ = len(k.lines)
        k(f"""s_mov_b32 s{S_SEG}, s{sNA}
              s_mov_b32 s{sPC_}, 0
              s_sub_u32 s{S_CNT}, s{S_CNT}, 1""")
        self.pop_next(sNA, sOWN)
        lead = k.lines[n0_:]; del k.lines[n0_:]
        self.t1b(0, None, landed=True, s_flag=sF, nxt=choose(True), early=False, peek=peek(), lead=lead)
        self.ev(17)
        self.page(sF, F_KV[0])
        k(f"""s_cmp_ge_u32 s{S_SEG}, 2
              s_cbranch_scc1 {DSP}""")
        self.flag_set(sF, " sc1")
        k.label(DSP)
        k(f"""s_cmp_eq_u32 s{sNXT}, 2
              s_cbranch_scc1 {LA_}
              s_mov_b32 s{S_CNT}, 0
              s_mov_b32 s{S_SEG}, s{sCUR}
              s_add_u32 s{sCUR}, s{sCUR}, 2
              s_cmp_eq_u32 s{sNXT}, 1
              s_cbranch_scc1 {LC}
              s_cmp_lg_u32 s{sPC_}, 0
              s_waitcnt vmcnt(3)
              s_cbranch_scc1 {W3}
              s_waitcnt vmcnt(2)
              {W3}:""")
        for x in peek()[1][1:]:
            k(x)
        self.t1_src(sH, S_SEG, 1)
        k(f"""s_waitcnt lgkmcnt(0)
              s_barrier
              {peek()[2]}
              s_waitcnt lgkmcnt(0)
              v_cmp_eq_u32 vcc, 0, v{FV}
              s_cbranch_vccnz {RDY}""")
        self.flag_set(sF, " sc1")
        k(f"""s_mov_b32 s{sF}, 0x80000000
              s_mov_b32 s{S_CNT}, 1
              s_cmp_ge_u32 s{S_SEG}, 64
              s_cbranch_scc1 {EN}""")
        self.page(S_T + 3, F_HX, head=False)
        self.flags_wait32(S_T + 3, one=True, sleep=self.opt.get("slp", 2))
        k.label(RDY)
        self.ev(13)
        self.t1b(1, sH, s_flag=sF, nxt=choose(self.opt.get("calm2", 1)), sb=sLB, peek=peek())
        k(f"s_mov_b32 s{sPC_}, 1")
        self.ev(14)
        self.page(sF, F_Q[1])
        k(f"s_branch {DSP}")
        k.label(LC)
        flip()
        self.t1b(1, None, landed=True, s_flag=sF, nxt=choose(self.opt.get("calm", 1)), peek=peek())
        k(f"s_mov_b32 s{sPC_}, 1")
        self.ev(16)
        self.page(sF, F_Q[1])
        k(f"s_branch {DSP}")
        k.label(EN)
        self.mk = 0
        self.LH = L_H

    def chain_helps(self):
        k = self.k
        n1, n2 = self.a_plan()[:2]
        sH, sN, sF = S_T + 12, S_T + 14, S_T + 16
        T = 120
        D, L = k.newlabel("L_chd"), k.newlabel("L_chl")
        self.THR, self.THD, self.TOB = 4, 20, 17
        k(f"""s_cmp_eq_u32 s{S_G}, 0
              s_cbranch_scc1 {D}
              v_and_b32 v{T}, 15, v{V_LANE}
              v_lshrrev_b32 v{T+1}, 4, v{V_LANE}
              v_mov_b32 v{self.TOB}, 1
              s_lshl_b32 s{S_T}, s{S_W}, 2
              v_add_u32 v{T+5}, s{S_T}, v{T+1}            ; row 4w+g
              v_xor_b32 v{T+6}, v{T+5}, v{T}
              v_lshlrev_b32 v{T+6}, 4, v{T+6}
              v_lshl_add_u32 v{self.THD}, v{T+5}, 10, v{T+6}""")
        for i in range(8):
            k(f"""s_lshl_b32 s{S_T}, s{S_W}, 1
                  s_xor_b32 s{S_T}, s{S_T}, {i}
                  s_and_b32 s{S_T+1}, s{S_T}, 3
                  s_lshl_b32 s{S_T+1}, s{S_T+1}, 2
                  s_lshr_b32 s{S_T}, s{S_T}, 2
                  s_lshl_b32 s{S_T}, s{S_T}, 13
                  s_add_u32 s{S_T}, s{S_T}, {L_H}
                  v_add_u32 v{T+5}, s{S_T+1}, v{T+1}
                  v_xor_b32 v{T+5}, v{T+5}, v{T}
                  v_lshlrev_b32 v{T+5}, 4, v{T+5}
                  v_lshl_add_u32 v{T+5}, v{T}, 8, v{T+5}
                  v_add_u32 v{self.THR+i}, s{S_T}, v{T+5}""")
        k(f"""s_cmp_eq_u32 s{S_G}, 1
              s_cselect_b32 s{S_SEG}, {self.P0}, {self.P0 + n1}
              s_cselect_b32 s{S_CNT}, {n1}, {n2}
              s_mov_b32 s{sF}, 0x80000000""")
        self.t1_src(sN, S_SEG, 0)
        for x in self.t1_dma(sN, (0, 1)):
            k(x)
        k("s_waitcnt vmcnt(0)")
        k.label(L)
        k(f"""s_mov_b64 {sr(sH,2)}, {sr(sN,2)}
              s_add_u32 s{sN}, s{sN}, {32*KB}
              s_add_u32 s{sN+1}, s{sN+1}, {32*KB}""")
        self.t1(0, sH, pre=7, s_flag=sF, nxt=self.t1_dma(sN, (0, 1)), rot=True)
        self.page(sF, F_KV[0])
        k(f"""s_add_u32 s{S_SEG}, s{S_SEG}, 1
              s_sub_u32 s{S_CNT}, s{S_CNT}, 1
              s_cmp_gt_u32 s{S_CNT}, 0
              s_cbranch_scc1 {L}""")
        self.flag_set(sF, " sc1")
        self.ev(18)
        k.label(D)

    def warm(self):
        k = self.k
        k(f"""s_and_b32 s{S_T}, s{S_G}, 1
              s_lshl_b32 s{S_T}, s{S_T}, 12
              s_add_u32 s{S_T}, s{S_T}, s{S_LW}
              s_and_b32 s{S_T+1}, s{S_H}, 15
              s_lshl_b32 s{S_T+1}, s{S_T+1}, 13
              s_add_u32 s{S_T}, s{S_T}, s{S_T+1}""")
        n = 0
        for ptr in (P_WK, P_WV, P_WQ):
            self.srd(ptr, 4 * MB)
            for i in range(32):
                if n >= self.opt.get("wdepth", 10):
                    k(f"s_waitcnt vmcnt({self.opt.get('wdepth', 10) - 1})")
                k(f"""s_add_u32 s{S_T+1}, s{S_T}, {i*16*8192}
                      buffer_load_dwordx4 v[72:75], v{V_L16}, {SA}, s{S_T+1} offen""")
                n += 1
                if n == self.opt.get("wdepth", 10):
                    self.init_rows(n)
                if n == 2 * self.opt.get("wdepth", 10) + 1:
                    self.arrive()

    def load_wo2(self):
        k = self.k
        self.srd(P_WO, 4 * MB)
        k(f"""v_and_b32 v2, 15, v{V_LANE}
              v_lshlrev_b32 v2, 4, v2
              v_lshrrev_b32 v3, 4, v{V_LANE}
              v_lshl_add_u32 v2, v3, 13, v2
              s_and_b32 s{S_T}, s{S_H}, 15
              s_lshl_b32 s{S_T}, s{S_T}, 18
              s_lshl_b32 s{S_T+1}, s{S_W}, 8
              s_add_u32 s{S_T}, s{S_T}, s{S_T+1}
              s_mov_b32 s{S_T+5}, 0x05040100
              s_mov_b32 s{S_T+6}, 0x07060302""")
        NB = 6
        def issue(g):
            b = 24 + (g % NB) * 32
            for j in range(8):
                if j % 4 == 0:
                    k(f"s_add_u32 s{S_T+1}, s{S_T}, {(32*g+j)*1024}")
                k(f"buffer_load_dwordx4 {vr(b+4*j,4)}, v2, {SA}, s{S_T+1} offen offset:{(j%4)*1024}")
        for g in range(NB):
            issue(g)
        for g in range(8):
            b = 24 + (g % NB) * 32
            k(f"s_waitcnt vmcnt({min(7-g, NB-1)*8})")
            for t in range(8):
                for q in range(4):
                    k(f"v_perm_b32 v{216+q}, v{b+4*(2*q+1)+(t>>1)}, v{b+4*(2*q)+(t>>1)}, s{S_T+5+(t&1)}")
                for q in range(4):
                    k(f"v_accvgpr_write_b32 a{(g*8+t)*4+q}, v{216+q}")
            if g + NB < 8:
                issue(g + NB)
            if g == 0:
                self.arrive()

    def role_att(self, steady):
        k = self.k
        opt = self.opt
        DL, TH, KB_ = self.spec()
        NW = 6
        over = self.loc == "" and opt.get("over", 1)
        PTX = 0 if opt.get("pt1") else 512 * KB
        sWK, sSEL = 54, 55
        sCNT, sBUF, sHD, sPT, sNQ, sNK, sLATE, sDF, sCUR, sMAXK, sFM, sNX = (S_T + i for i in range(10, 22))
        sTODO, sKO, sCW, sX = 84, 86, 87, S_A
        R_, sPS, sMODE, sST, sRB = 18, 26, 27, 32, 34
        sBN, sD, sVB, sHAD = 35, 36, 37, 38
        sLAG = 42
        gmask = sum(1 << x for x in range(DL, 64) if x >> 2 not in opt.get("dskip", ()))
        sCQ, sCK, sLQ, sLK = 28, 29, 40, 41
        DEC = PG_OFF + 65 * 8192 + F_DEC
        OUT = DBG
        OX, ROWS = 128 * KB, 144 * KB
        RK, OW_, OB_, PT_, RW_, RL_ = 2, 3, 4, 5, 6, 7
        TX0, TX1 = 8, 12
        L4, FL, ST, SA_, DF, KA = 16, 17, 18, 19, 20, 21
        Q, KK, F, V, VM, S = 24, 40, 72, 88, 120, 128
        P, Lr, ONES, SEL, O = 140, 148, 152, 156, 24
        B, ACC, PK = 24, 160, 24
        XI, WR, KEY, TT = 224, 228, 236, 238
        CN, RR_, GK, VR, VW, VT, VO, KR = 22, 23, 246, 245, 247, 248, 253, 254
        KY = 242
        VOTE = ROWS + 8 * KB
        T = TT
        self.make_sel(SEL, TT)
        self.srd(P_WR, 1024)
        k(f"""buffer_load_dwordx4 {vr(XI,4)}, v{V_L16}, {SA}, 0 offen
              v_and_b32 v{T}, 15, v{V_LANE}
              v_lshrrev_b32 v{T+1}, 4, v{V_LANE}
              v_lshlrev_b32 v{T+2}, 2, v{T+1}
              v_mov_b32 v{T+3}, {NEGBIG}
              s_and_b32 s{S_T}, s{S_W}, 1
              s_lshl_b32 s{S_T}, s{S_T}, 4
              v_add_u32 v{T+4}, s{S_T}, v{T}""")
        for u in range(2):
            for r in range(4):
                k(f"v_add_u32 v{T+5}, {16*u+r}, v{T+2}")
                k(f"v_cmp_gt_u32 vcc, v{T+5}, v{T+4}")
                k(f"v_cndmask_b32 v{(TX0,TX1)[u]+r}, 0, v{T+3}, vcc")
        CV = ONES
        k(f"""v_mov_b32 v{CV}, s{S_C}
              v_mov_b32 v{P+5}, 0
              v_mov_b32 v{P+6}, 0
              s_lshl_b32 s{S_T}, s{S_W}, 12
              s_add_u32 s{S_T}, s{S_T}, {OX}
              v_add_u32 v{OW_}, s{S_T}, v{V_L16}
              v_add_u32 v{OB_}, {OX}, v{V_L16}
              s_lshl_b32 s{S_T}, s{S_W}, 8
              v_lshlrev_b32 v{RL_}, 4, v{T}
              v_add_u32 v{RL_}, s{S_T}, v{RL_}
              v_lshl_add_u32 v{PT_}, v{T+1}, 16, v{RL_}
              v_lshlrev_b32 v{RW_}, 1, v{RL_}
              v_lshl_add_u32 v{RL_}, v{T+1}, 10, v{RL_}
              v_and_b32 v{T+5}, 1, v{T+1}
              v_lshl_add_u32 v{RW_}, v{T+5}, 4, v{RW_}
              v_lshrrev_b32 v{T+5}, 1, v{T+1}
              v_lshl_add_u32 v{RW_}, v{T+5}, 12, v{RW_}
              v_add_u32 v{RW_}, {ROWS}, v{RW_}
              v_lshlrev_b32 v{L4}, 2, v{V_LANE}
              v_lshlrev_b32 v{KA}, 3, v{T}
              s_and_b32 s{sHD}, s{S_H}, 15
              s_lshl_b32 s{S_T}, s{sHD}, 10
              v_add_u32 v{PT_}, s{S_T}, v{PT_}
              s_lshl_b32 s{S_T}, s{sHD}, 15
              v_add_u32 v{RL_}, s{S_T}, v{RL_}
              s_lshl_b32 s{sPT}, s{sWK}, 20
              s_add_u32 s{sPT}, s{sPT}, {PT_OFF}
              s_lshl_b32 s{sCW}, s{sWK}, 13
              s_add_u32 s{sCW}, s{sCW}, {PG_OFF + F_CW}
              s_lshl4_add_u32 s{sCUR}, s{sHD}, s{sCW}
              s_lshl2_add_u32 s{sCUR}, s{S_W}, s{sCUR}
              s_lshl_b32 s{sHD}, s{sHD}, 1
              s_lshr_b32 s{S_T}, s{S_W}, 1
              s_add_u32 s{sHD}, s{sHD}, s{S_T}
              s_mov_b32 s{sCNT}, 0
              s_mov_b32 s{sBUF}, 0
              s_mov_b32 s{sDF}, 0x80000000
              s_mov_b32 s{sMAXK}, 0
              s_mov_b32 s{sVB}, 0
              s_mov_b32 s{sLAG}, {gmask & 0xffffffff}
              s_mov_b32 s{sLAG+1}, {gmask >> 32}
              s_mov_b64 {sr(sHAD,2)}, 0
              s_sub_u32 s{sD}, s{sWK}, {2 + DL}
              s_and_b32 s{sD}, s{sD}, 3
              s_mov_b32 s{SRD_DBG}, s{P_OUT}
              s_mov_b32 s{SRD_DBG+1}, s{P_OUT+1}
              s_mov_b32 s{SRD_DBG+2}, {2048*1024}
              s_mov_b32 s{SRD_DBG+3}, 0x20000
              s_and_b32 s{sCK}, s{S_W}, 1
              s_mul_i32 s{sCQ}, s{sCK}, {12*KB}
              s_lshl_b32 s{sCK}, s{sCK}, 11
              s_and_b32 s{S_T}, s{S_LW}, 2048
              s_lshl_b32 s{S_T}, s{S_T}, 4
              s_add_u32 s{S_T}, s{S_T}, {64*KB}
              s_add_u32 s{sLQ}, s{S_T}, s{sCQ}
              s_add_u32 s{sLK}, s{S_T}, s{sCK}
              v_add_u32 v{KA}, {PG_OFF + F_RK[0]}, v{KA}
              v_mov_b32 v{KY+2}, v{KA}
              s_and_b32 s{S_T}, s{S_LW}, 2048
              s_add_u32 s{S_T}, s{S_T}, {ROWS}
              v_lshlrev_b32 v{RR_}, 5, v{V_LANE}
              v_add_u32 v{RR_}, s{S_T}, v{RR_}
              v_and_b32 v{VO}, 32, v{V_L16}
              v_lshrrev_b32 v{VR}, 2, v{VO}
              v_add_u32 v{VO}, v{VO}, v{VR}
              v_sub_u32 v{VO}, v{V_L16}, v{VO}
              v_add_u32 v{VO}, 8, v{VO}                     ; v_m of a lane: (lane & ~2)*16 + (lane & 2 ? 0 : 8)
              v_mov_b32 v{KR}, 0x80000000
              s_mov_b32 s{S_T}, {F_RK[0]}
              v_writelane_b32 v{KR}, s{S_T}, 0
              s_mov_b32 s{S_T}, {F_RKU}
              v_writelane_b32 v{KR}, s{S_T}, 1
              s_mov_b32 s{S_T}, {F_RKM}
              v_writelane_b32 v{KR}, s{S_T}, 2
              v_mov_b32 v{VR}, {VOTE}
              s_lshl_b32 s{S_T}, s{S_W}, 2
              v_add_u32 v{VW}, s{S_T}, v{VR}
              s_waitcnt vmcnt(0)""")
        self.unpack8(WR, XI)
        TH_ = 255
        k(f"v_mul_f32 v{TH_}, v{WR}, v{WR}")
        for j in range(1, 8):
            k(f"v_fma_f32 v{TH_}, v{WR+j}, v{WR+j}, v{TH_}")
        self.wsum(TH_, TT)
        k(f"""v_sqrt_f32 v{TH_}, v{TH_}
              v_sub_u32 v{TT}, {63 + KB_}, v{V_LANE}
              v_cvt_f32_u32 v{TT}, v{TT}
              v_log_f32 v{TT}, v{TT}
              v_mov_b32 v{TT+1}, {f32(opt.get("za", 1.95))}
              v_fmac_f32 v{TT+1}, {f32(opt.get("zb", 0.32) * math.log(2))}, v{TT}
              v_mul_f32 v{TH_}, v{TH_}, v{TT+1}
              v_or_b32 v{TH_}, 0x80000000, v{TH_}""")

        def capture(fn, *a):
            n0 = len(k.lines); fn(*a); out = k.lines[n0:]; del k.lines[n0:]; return out
        def hpage(dst, off, seg):
            k(f"""s_lshl_b32 s{dst}, s{seg}, 13
                  s_lshl2_add_u32 s{dst}, s{sHD}, s{dst}
                  s_add_u32 s{dst}, s{dst}, {PG_OFF + off}""")
        def spin(v, reload, cmp):
            A_, B_ = k.newlabel("L_aw"), k.newlabel("L_awd")
            k.label(A_)
            k(f"""{cmp}
                  s_cbranch_vccz {B_}
                  {reload}""")
            self.spend()
            k(f"""s_waitcnt vmcnt(0)
                  s_branch {A_}""")
            k.label(B_)
        GL = " glc" if opt.get("glc") else ""
        stubs = []
        st_load = f"buffer_load_dword v{ST}, v{SA_}, {WS}, 0 offen sc1"
        def plan_next(layer, s_rec=None, vec=False):
            out = capture(plan_next_, layer, s_rec)
            for x in out:
                if not (vec and x.startswith("s_buffer_load")):
                    k(x)
        def plan_next_(layer, s_rec):
            k(f"""s_lshl_b32 s{S_T}, s{sNX}, 5
                  s_add_u32 s{S_T}, s{S_T}, s{sHD}
                  s_mul_i32 s{sNQ}, s{S_T}, {24*KB}
                  s_lshl_b32 s{sNK}, s{S_T}, 12""")
            if layer == 0:
                hpage(S_T + 3, F_Q[0], sNX)
                k(f"""s_buffer_load_dword s{sST}, {WS}, s{S_T+3}{GL}
                      s_mov_b32 s{sST+1}, 1
                      s_add_u32 s{sNQ}, s{sNQ}, {QKV_OFF[0]}
                      s_add_u32 s{sNK}, s{sNK}, {KVM_OFF[0]}
                      v_mov_b32 v{SA_}, s{S_T+3}""")
            else:
                hpage(S_T + 3, F_Q[1], sNX)
                k(f"""s_cmp_lt_u32 s{sNX}, s{s_rec}
                      s_cselect_b32 s{S_T+1}, 0, {KVM_OFF[2] - KVM_OFF[1]}
                      s_mov_b32 s{S_T+4}, s{S_T+3}
                      s_buffer_load_dword s{sST+1}, {WS}, s{S_T+4}{GL}
                      s_add_u32 s{sNK}, s{sNK}, s{S_T+1}
                      s_add_u32 s{sNK}, s{sNK}, {KVM_OFF[1]}
                      s_cmp_eq_u32 s{sNX}, s{s_rec}
                      s_cselect_b32 s{S_T+1}, {QKV_OFF[2] - QKV_OFF[1]}, 0
                      s_cselect_b32 s{S_T+2}, {F_Q[2] - F_Q[1]}, 0
                      s_add_u32 s{S_T+3}, s{S_T+3}, s{S_T+2}
                      s_buffer_load_dword s{sST}, {WS}, s{S_T+3}{GL}
                      s_add_u32 s{sNQ}, s{sNQ}, s{S_T+1}
                      s_add_u32 s{sNQ}, s{sNQ}, {QKV_OFF[1]}
                      v_mov_b32 v{SA_}, s{S_T+3}
                      v_writelane_b32 v{SA_}, s{S_T+4}, 1""")
        NT = " nt" if opt.get("nt") else ""
        LP = opt.get("lp", "sc1")
        def fetch_ops(q, kv):
            out = [f"s_add_u32 s{q}, s{q}, s{sCQ}", f"s_add_u32 s{kv}, s{kv}, s{sCK}",
                   f"s_xor_b32 s{S_T+2}, s{sBUF}, s{sLQ}", f"s_xor_b32 s{S_T+1}, s{sBUF}, s{sLK}"]
            for i in range(3):
                out.append(f"s_add_u32 m0, s{S_T+2}, {i*4096}")
                if i:
                    out.append(f"s_add_u32 s{q}, s{q}, 4096")
                out += [f"buffer_load_dwordx4 v{V_L16}, {WS}, s{q} offen offset:{c*1024} sc1{NT} lds" for c in range(4)]
            out.append(f"s_add_u32 m0, s{S_T+1}, {24*KB}")
            out += [f"buffer_load_dwordx4 v{V_L16}, {WS}, s{kv} offen offset:{c*1024} {LP} lds" for c in range(2)]
            return out
        sLAY, sNS = S_B, S_CNT
        pub = [f"buffer_store_dword v{DF}, off, {WS}, s{sDF} sc1", f"s_mov_b32 s{sDF}, 0x80000000"]
        def flush_pub():
            k("s_waitcnt vmcnt(0)")
            for x in pub:
                k(x)
        L4_ = 1
        NL_ = 4 if L4_ else 8
        def look():
            for kk in range(4):
                k(f"buffer_load_dwordx4 {vr(F+4*kk,4)}, v{V_L16}, {WS}, s{sFM} offen offset:{kk*1024} {LP}")
            for i in range(0 if L4_ else 4):
                k(f"buffer_load_dwordx2 {vr(VM+2*i,2)}, v{VO}, {WS}, s{sFM} offen offset:{i*1024} {LP}")
        key_load = f"buffer_load_dwordx2 {vr(KY,2)}, v{KY+2}, {WS}, 0 offen sc1"
        def keys_issue(t):
            k(f"""v_lshrrev_b32 v{KY+2}, 4, v{V_LANE}
                  s_sub_u32 s{t}, s{sNX}, {KB_ + 3}
                  v_add_u32 v{KY+2}, s{t}, v{KY+2}
                  v_max_i32 v{KY+2}, 0, v{KY+2}
                  v_lshl_add_u32 v{KY+2}, v{KY+2}, 13, v{KA}
                  {key_load}""")
        def fcheck():
            out = []
            for kk in range(4):
                f = F + 4 * kk
                out.append(f"v_max3_u32 v{TT}, v{f}, v{f+1}, v{TT if kk else f+2}")
                out.append(f"v_max3_u32 v{TT}, v{f+2}, v{f+3}, v{TT}")
            return out
        def vcheck():
            for i in range(4):
                k(f"v_max3_u32 v{TT}, v{VM+2*i}, v{VM+2*i+1}, v{TT}")
            k(f"v_cmp_eq_u32 vcc, -1, v{TT}")
        def check(w, n=1, extra=()):
            fc = fcheck()
            if L4_:
                k("""s_mov_b32 vcc_lo, 0x33333333
                     s_mov_b32 vcc_hi, 0x33333333""")
            for kk in range(4):
                if w:
                    k(f"s_waitcnt vmcnt({NL_-1+n-kk})")
                k(f"v_mfma_f32_16x16x32_bf16 {vr(S+8,4)}, {vr(F+4*kk,4)}, {vr(Q+4*kk,4)}, {'0' if kk == 0 else vr(S+8,4)}")
                if extra:
                    k(extra.pop(0))
                k(fc.pop(0)); k(fc.pop(0))
                for j in range(2 if L4_ else 0):
                    k(f"v_cndmask_b32_dpp v{VM+2*kk+j}, v{F+4*kk+j}, v{F+4*kk+2+j}, vcc quad_perm:[0,1,0,1] row_mask:0xf bank_mask:0xf")
            if L4_:
                k(f"v_cmp_eq_u32 vcc, -1, v{TT}")
                return
            if w:
                k(f"s_waitcnt vmcnt({n})")
            vcheck()
        def chain_wait(cond):
            A_, B_ = k.newlabel("L_ac"), k.newlabel("L_acb")
            k(f"s_cbranch_{cond} {A_}")
            k.label(B_)
            def stub():
                k.label(A_)
                for x in pub:
                    k(x)
                look()
                self.spend()
                check(True, 0)
                k(f"""s_cbranch_vccnz {A_}
                      s_branch {B_}""")
            stubs.append(stub)
        def pre(direct=False):
            k(f"""s_xor_b32 s{sBUF}, s{sBUF}, {64*KB}
                  s_and_b32 s{S_T}, s{S_LW}, 2048
                  s_lshl_b32 s{S_T}, s{S_T}, 4
                  s_add_u32 s{S_T}, s{S_T}, s{sBUF}
                  v_add_u32 v{RK}, s{S_T}, v{V_L16}
                  s_and_b32 s{S_T}, s{S_LW}, 1024
                  s_lshl_b32 s{S_T}, s{S_T}, 2
                  v_add_u32 v{TT}, s{S_T}, v{RK}
                  s_mov_b32 s{sFM}, s{sNK}
                  s_mov_b32 s{sNS}, s{sNX}""")
            for kk in range(4):
                k(f"ds_read_b128 {vr(Q+4*kk,4)}, v{TT} offset:{16*KB + kk*1024}")
                k(f"ds_read_b128 {vr(KK+4*kk,4)}, v{RK} offset:{kk*1024}")
                k(f"ds_read_b128 {vr(KK+16+4*kk,4)}, v{RK} offset:{4096 + kk*1024}")
            late = [f"ds_read_b128 {vr(F+4*i,4)}, v{RK} offset:{24*KB + i*1024}" for i in range(4)]
            if direct:
                late = []
                look()
            late += [f"ds_read_b128 {vr(V+4*i,4)}, v{RK} offset:{8*KB + i*1024}" for i in range(8)]
            for kk in range(4):
                k(f"s_waitcnt lgkmcnt({9 - 3*kk + 2*kk})")
                q = vr(Q + 4 * kk, 4)
                k(f"v_mfma_f32_16x16x32_bf16 {vr(S,4)}, {vr(KK+4*kk,4)}, {q}, {vr(TX0,4) if kk == 0 else vr(S,4)}")
                k(late.pop(0))
                k(f"v_mfma_f32_16x16x32_bf16 {vr(S+4,4)}, {vr(KK+16+4*kk,4)}, {q}, {vr(TX1,4) if kk == 0 else vr(S+4,4)}")
                k(late.pop(0))
            if direct:
                return
            k("s_waitcnt lgkmcnt(4)")
            check(False, extra=late)
        poll = f"buffer_load_dword v{FL}, v{L4}, {WS}, s{sCW} offen sc1"
        pcmp = f"v_cmp_gt_u32 vcc, s{sCNT}, v{FL}"
        def rloads(RD):
            out = [f"s_xor_b32 s{sRB}, s{sPT}, {PTX}"]
            for i in range(8):
                if i:
                    out.append(f"s_add_u32 s{sRB}, s{sRB}, 4096")
                out.append(f"buffer_load_dwordx4 {vr(RD+4*i,4)}, v{RL_}, {WS}, s{sRB} offen sc1")
            return out
        RD2 = 192
        def skip_test(t):
            return [f"s_bfe_u32 s{S_T}, s{sCNT}, 0x10002", f"v_lshrrev_b32 v{t}, s{S_T}, v{FL}", f"v_and_b32 v{t}, 1, v{t}",
                    f"v_cmp_ne_u32 vcc, 0, v{t}"]
        def post(fetch=False, tail=None, skip=None):
            t = TT
            pk = lambda op, i, o, m="": f"v_pk_{op}_f32 {vr(S+i,2)}, {vr(S+i,2)}, {vr(o,2)} op_sel_hi:[1,0]{m}"
            pa = opt.get("pollat", 1)
            k(f"""{poll if fetch and pa == 0 else ""}
                  v_max3_f32 v{t}, v{S}, v{S+1}, v{S+2}
                  v_max3_f32 v{t+1}, v{S+3}, v{S+4}, v{S+5}
                  v_max3_f32 v{t}, v{S+6}, v{S+7}, v{t}
                  v_max3_f32 v{t+1}, v{S+10}, v{S+11}, v{t+1}
                  v_max_f32 v{t}, v{t}, v{t+1}
                  v_max_f32 v{t+1}, v{t}, v{t+1}
                  {pk("mul", 0, CV)}
                  {pk("mul", 2, CV)}
                  v_permlane16_swap_b32 v{t}, v{t+1}
                  v_max_f32 v{t}, v{t}, v{t+1}
                  v_max_f32 v{t+1}, v{t}, v{t+1}
                  {pk("mul", 4, CV)}
                  {pk("mul", 6, CV)}
                  v_permlane32_swap_b32 v{t}, v{t+1}
                  v_max_f32 v{t}, v{t}, v{t+1}
                  v_mul_f32 v{t}, v{CV}, v{t}
                  {pk("mul", 10, CV)}
                  {poll if fetch and pa == 1 else ""}""")
            for i in (0, 2, 4, 6, 10):
                k(pk("add", i, t, " neg_lo:[0,1] neg_hi:[0,1]"))
            for i in (0, 1, 2, 3, 4, 5, 6, 7, 10, 11):
                k(f"v_exp_f32 v{S+i}, v{S+i}")
            k(f"""{poll if fetch and pa == 2 else ""}
                  v_pk_add_f32 {vr(Lr,2)}, {vr(S,2)}, {vr(S+2,2)}
                  v_pk_add_f32 {vr(Lr+2,2)}, {vr(S+4,2)}, {vr(S+6,2)}
                  v_pk_add_f32 {vr(Lr,2)}, {vr(Lr,2)}, {vr(S+10,2)}
                  v_pk_add_f32 {vr(Lr,2)}, {vr(Lr,2)}, {vr(Lr+2,2)}
                  v_add_f32 v{Lr+2}, v{Lr}, v{Lr+1}
                  v_add_f32 v{Lr+3}, v{Lr}, v{Lr+1}
                  v_permlane16_swap_b32 v{Lr+2}, v{Lr+3}
                  v_add_f32 v{Lr}, v{Lr+2}, v{Lr+3}
                  v_add_f32 v{Lr+1}, v{Lr+2}, v{Lr+3}
                  v_permlane32_swap_b32 v{Lr}, v{Lr+1}
                  v_add_f32 v{Lr}, v{Lr}, v{Lr+1}
                  v_rcp_f32 v{Lr}, v{Lr}""")
            nrm = [pk("mul", i, Lr) for i in (10, 0, 2, 4, 6)]
            nrm += [f"v_cvt_pk_bf16_f32 v{P+4}, v{S+10}, v{S+11}", f"v_cvt_pk_bf16_f32 v{P+7}, v{S+10}, v{S+11}"]
            cvp = [f"v_cvt_pk_bf16_f32 v{P+q}, v{S+2*q}, v{S+2*q+1}" for q in range(4)]
            rl = []
            if fetch:
                RT_, BK = k.newlabel("L_ap"), k.newlabel("L_apb")
                k(f"""s_waitcnt vmcnt(0)
                      {pcmp}""")
                for x in nrm[:5]:
                    k(x)
                nrm = nrm[5:]
                k(f"s_cbranch_vccnz {RT_}")
                k.label(BK)
                def stub():
                    k.label(RT_)
                    spin(FL, poll, pcmp)
                    k(f"s_branch {BK}")
                stubs.append(stub)
                self.mark(37)
                rl = rloads(RD2)
                k(rl.pop(0)); k(rl.pop(0))
                if skip:
                    for x in skip_test(TT) + nrm + cvp:
                        k(x)
                    nrm = []; cvp = []
                    k(f"""s_cbranch_vccnz {skip}
                          s_add_u32 s{sD}, s{sD}, 4""")
            for x in nrm:
                k(x)
            fin = lambda i: [f"v_cvt_pk_bf16_f32 v{F+4*i+r}, v{O+8*i+r}, v{O+8*i+4+r}" for r in range(4)]
            owr = lambda i: f"ds_write_b128 v{OW_}, {vr(F+4*i,4)} offset:{i*1024}"
            for i in range(8):
                k(f"v_mfma_f32_16x16x16_bf16 {vr(O+4*i,4)}, {vr(VM+2*(i>>1),2)}, {vr(P+4+2*(i&1),2)}, 0")
                if rl:
                    k(rl.pop(0))
                if cvp:
                    k(cvp.pop(0))
            for i in range(8):
                k(f"v_mfma_f32_16x16x32_bf16 {vr(O+4*i,4)}, {vr(V+4*i,4)}, {vr(P,4)}, {vr(O+4*i,4)}")
                if i in (5, 7):
                    k(owr((i - 5) // 2))
                elif rl:
                    k(rl.pop(0))
                if i >= 3:
                    for x in fin((i - 3) // 2)[2 * ((i - 3) & 1):][:2]:
                        k(x)
            for x in fin(2)[2:] + [owr(2)] + rl + fin(3) + [owr(3)]:
                k(x)
            if tail:
                k(tail)
            k("""s_waitcnt lgkmcnt(0)
                 s_barrier""")
        def pop_todo(n):
            for _ in range(n):
                k(f"""s_ff1_i32_b64 s{sNX}, {sr(sTODO,2)}
                      s_bitset0_b64 {sr(sTODO,2)}, s{sNX}""")
            k(f"s_min_u32 s{sNX}, s{sNX}, 64")
        DLAST = opt.get("dlast", 63)
        def no_more():
            k(f"""v_subrev_u32 v{VT}, s{sD}, v{V_LANE}
                  v_and_b32 v{VT}, 0x80000003, v{VT}
                  v_cmp_eq_u32 vcc, 0, v{VT}
                  v_lshlrev_b32 v{VT}, 2, v{V_LANE}
                  v_mov_b32 v{VT+1}, 0x40000000
                  v_cndmask_b32 v{VT}, v{VT+1}, v{VT}, vcc
                  v_mov_b32 v{VT+1}, 3
                  s_or_b32 s{S_T+3}, s{sHD}, s{S_W}
                  s_mov_b32 s{S_T+3}, {DEC}
                  s_cmov_b32 s{S_T+3}, 0x80000000
                  buffer_store_dword v{VT+1}, v{VT}, {WS}, s{S_T+3} offen sc1""")
        def plan_after_d():
            F_, J_ = k.newlabel("L_ae"), k.newlabel("L_af")
            k(f"""s_cmp_lg_u32 s{sKO}, {F_RK[1]}
                  s_cbranch_scc1 {F_}
                  s_mov_b32 s{sNX}, s{sBN}
                  s_mov_b32 s{sX}, 0""")
            plan_next(0)
            k(f"s_branch {J_}")
            k.label(F_)
            pop_todo(1)
            k(f"s_lshr_b32 s{S_T+5}, s{sSEL}, 5")
            plan_next(1, S_T + 5)
            k.label(J_)
        def plan_after_b(vec=False):
            NB_, J_ = k.newlabel("L_ab"), k.newlabel("L_aj")
            NM_ = k.newlabel("L_am")
            k(f"""s_add_u32 s{sBN}, s{sNS}, 4
                  s_cmp_lt_u32 s{sNS}, {KB_}
                  s_cbranch_scc1 {NB_}
                  s_cmp_ge_u32 s{sNS}, {DLAST}
                  s_cbranch_scc1 {NM_}""")
            def stub():
                k.label(NM_)
                no_more()
                k(f"s_branch {NB_}")
            stubs.append(stub)
            spin(KY, f"s_sleep {opt.get('slt', 4)}\n" + key_load, f"v_min_u32 v{TT+1}, v{KY}, v{KY+1}\nv_cmp_eq_u32 vcc, 0, v{TT+1}")
            k(f"v_max_u32 v{KY}, v{KY}, v{KY+1}")
            self.wmax_u32(KY, KY + 1)
            k(f"""v_readfirstlane_b32 s{S_T}, v{KY}
                  v_readlane_b32 s{S_T+1}, v{TH_}, s{sNS}
                  s_max_u32 s{sMAXK}, s{sMAXK}, s{S_T}
                  s_bitcmp0_b64 {sr(sLAG,2)}, s{sNS}
                  s_cbranch_scc1 {NB_}
                  s_mov_b32 s{sNX}, s{sD}
                  s_and_b32 s{sSEL}, s{sMAXK}, 0x7ff
                  s_sub_u32 s{sSEL}, 2047, s{sSEL}
                  s_cmp_lt_u32 s{sMAXK}, s{S_T+1}
                  s_cselect_b32 s{sSEL}, 4095, s{sSEL}
                  s_lshr_b32 s{S_T+5}, s{sSEL}, 5
                  s_mov_b32 s{sX}, 1""")
            plan_next(1, S_T + 5, vec)
            k(f"s_branch {J_}")
            k.label(NB_)
            k(f"""s_mov_b32 s{sNX}, s{sBN}
                  s_mov_b32 s{sX}, 0""")
            plan_next(0, None, vec)
            k.label(J_)
        def exch1(vote=0, keep=0):
            k(f"""s_add_u32 s{sCNT}, s{sCNT}, 4
                  s_bfe_u32 s{S_T}, s{sCNT}, 0x10002
                  s_bitset0_b32 s{sVB}, s{S_T}
                  s_lshl_b32 s{S_T}, {vote}, s{S_T}
                  s_or_b32 s{sVB}, s{sVB}, s{S_T}
                  s_or_b32 s{S_T}, s{sVB}, s{sCNT}
                  v_mov_b32 v{CN}, s{S_T}
                  s_xor_b32 s{sPT}, s{sPT}, {PTX}
                  s_waitcnt vmcnt({keep}) lgkmcnt(0)
                  buffer_store_dword v{CN}, off, {WS}, s{sCUR}{self.loc}""")
            for x in pub if opt.get("pub0") else ():
                k(x)
            self.mark(36)
        def reduce_items(RD, RA):
            out = []
            for i in range(8):
                d = vr(RA + 4 * (i >> 2), 4)
                out.append(("wv", "RD%d" % i))
                out.append(f"v_mfma_f32_16x16x32_bf16 {d}, {vr(SEL,4)}, {vr(RD+4*i,4)}, {'0' if i % 4 == 0 else d}")
                if i == 6:
                    out.append(f"ds_write_b128 v{RW_}, {vr(RA,4)}")
            out.append(("gap", 2))
            out.append(f"ds_write_b128 v{RW_}, {vr(RA+4,4)} offset:2048")
            return out
        def reduce_now(RD, RA, nmid=0):
            i = 0
            for x in reduce_items(RD, RA):
                if isinstance(x, str):
                    k(x)
                elif x[0] == "wv":
                    k(f"s_waitcnt vmcnt({7 - i + nmid})"); i += 1
            k(f"""s_waitcnt lgkmcnt(0)
                  s_barrier""")
            for x in () if opt.get("pub0") else pub:
                k(x)
            self.mark(38)
        def exch2(mid=None, nmid=0):
            WL = k.newlabel("L_aq")
            k.label(WL)
            k(poll)
            self.spend()
            k(f"""s_waitcnt vmcnt(0)
                  {pcmp}
                  s_cbranch_vccnz {WL}""")
            self.mark(37)
            for x in rloads(160):
                k(x)
            if mid:
                mid()
            reduce_now(160, 192, nmid)
        def row(layer, odd, regs, seg):
            A, PKr, Y, TM, X = regs
            if layer and odd:
                return [], [("mark", "xi")], []
            rd_ = [f"ds_read_b128 {vr(A,4)}, v{RR_}", ("t", "A", f"ds_read_b128 {vr(A+4,4)}, v{RR_} offset:16")]
            out = capture(self.unpack8, X, XI)
            if layer:
                NG_, BK = k.newlabel("L_ag"), k.newlabel("L_agb")
                out.append(f"v_readfirstlane_b32 s{R_+4}, v{GK}")
                out.append(f"s_cmp_eq_u32 s{R_+4}, 0\ns_cbranch_scc1 {NG_}\n{BK}:")
                def stub():
                    k.label(NG_)
                    hpage(R_ + 3, F_RK[1], seg)
                    self.word_wait(R_ + 3, R_ + 4, va=GK)
                    k(f"s_branch {BK}")
                stubs.append(stub)
            out.append(("mark", "xi"))
            out += [f"s_lshl_b32 s{R_}, s{seg}, 5", f"s_add_u32 s{R_}, s{R_}, s{sHD}", f"s_lshl_b32 s{R_+1}, s{R_}, 10",
                    f"s_add_u32 s{R_+2}, s{R_+1}, {X1_OFF[layer] if layer or odd else X2_OFF}", ("mark", "early")]
            def body():
                self.pack8(PKr, A)
                self.unpack8(A, PKr)
                self.add8(X, A)
                self.pack8(PKr, X)
                if layer or odd:
                    k(f"buffer_store_dwordx4 {vr(PKr,4)}, v{V_L16}, {WS}, s{R_+2} offen sc1")
                self.unpack8(X, PKr)
                self.layernorm(X, PKr + 4, TM)
                self.unpack8(Y, PKr + 4)
                if not odd:
                    self.add8(X, Y)
                    self.pack8(A, X)
                    if layer == 0:
                        k(f"buffer_store_dwordx4 {vr(A,4)}, v{V_L16}, {WS}, s{R_+2} offen sc1")
                        self.unpack8(X, A)
                        self.layernorm(X, A + 4, TM)
                        k(f"""s_add_u32 s{R_+2}, s{R_+1}, {H_OFF[1]}
                              buffer_store_dwordx4 {vr(A+4,4)}, v{V_L16}, {WS}, s{R_+2} offen sc1
                              v_mov_b32 v{DF}, 1""")
                        hpage(sDF, F_HX, seg)
                        return
                    k(f"buffer_store_dwordx4 {vr(A,4)}, v{V_L16}, {OUT}, s{R_+1} offen sc1")
                k(f"v_pk_mul_f32 {vr(KEY,2)}, {vr(Y,2)}, {vr(WR,2)}")
                for j in range(2, 8, 2):
                    k(f"v_pk_fma_f32 {vr(KEY,2)}, {vr(Y+j,2)}, {vr(WR+j,2)}, {vr(KEY,2)}")
                k(f"v_add_f32 v{KEY}, v{KEY}, v{KEY+1}")
                self.wsum(KEY, KEY + 1)
                self.round1(KEY)
                k(f"""v_ashrrev_i32 v{KEY+1}, 31, v{KEY}
                      v_or_b32 v{KEY+1}, 0x80000000, v{KEY+1}
                      v_xor_b32 v{KEY}, v{KEY}, v{KEY+1}
                      v_and_b32 v{KEY}, 0xffff0000, v{KEY}
                      s_sub_u32 s{R_+2}, {2047 + 2048}, s{R_}
                      v_or_b32 v{DF}, s{R_+2}, v{KEY}""")
                if layer == 0:
                    hpage(R_ + 2, 0, seg)
                    k(f"buffer_store_dword v{DF}, v{KR}, {WS}, s{R_+2} offen sc1")
                else:
                    hpage(sDF, 0, seg)
                    k(f"s_add_u32 s{sDF}, s{sDF}, s{sKO}")
            return rd_, out, [("wl", "A")] + capture(body)

        FINAL, T3, NXB, LATE, DRAIN, ROWS_, RD_, GOB, SLOW, SLB, FIN2, PL, PC, T3E, T3X = (k.newlabel("L_aa") for _ in range(15))
        if opt.get("ptwarm", 1) and not self.loc:
            for _ in range(2):
                for x in rloads(160):
                    k(x.replace(" sc1", ""))
                k(f"s_xor_b32 s{sPT}, s{sPT}, {PTX}")
        k(f"""s_cmp_lt_u32 s{sWK}, 2
              s_cbranch_scc1 {FINAL}
              s_sub_u32 s{sNX}, s{sWK}, 2
              s_mov_b32 s{sX}, 0
              s_mov_b32 s{sKO}, {F_RK[1]}""")
        plan_next(0)
        k(f"s_branch {SLOW}")

        bread = lambda u: [("t", "B%d%d" % (u, g), f"ds_read_b128 {vr(B+u*32+4*g,4)}, v{OB_} offset:{((g>>2)*2+u)*4096 + (g&3)*1024}") for g in range(8)]
        def head():
            h = R_ + 5
            return [("need", "xi"),
                    f"s_lshl_b32 s{h}, s{S_SEG}, 5", f"s_add_u32 s{h}, s{h}, s{sHD}", f"s_lshl_b32 s{h+1}, s{h}, 10",
                    f"s_lshl_b32 s{h+2}, s{S_SEG}, 10", f"s_add_u32 s{h+2}, s{h+2}, {X2P_OFF - X2_OFF}",
                    f"s_cmp_eq_u32 s{h}, s{sSEL}\ns_cselect_b32 s{h+2}, s{h+2}, s{h+1}",
                    f"s_add_u32 s{h+2}, s{h+2}, {X2_OFF}",
                    f"s_mov_b32 s{SRD_A+2}, {WS_SIZE}",
                    f"""s_cmp_eq_u32 s{sLAY}, 0
                        s_cselect_b32 s{h+2}, s{h+1}, s{h+2}
                        s_cselect_b64 {sr(SRD_A,2)}, {sr(P_X,2)}, {sr(P_WS,2)}
                        s_cmov_b32 s{SRD_A+2}, {2048*1024}""",
                    f"buffer_load_dwordx4 {vr(XI,4)}, v{V_L16}, {SA}, s{h+2} offen sc1",
                    f"s_lshr_b32 s{h+1}, s{sSEL}, 5",
                    f"s_cmp_lt_u32 s{S_SEG}, s{h+1}\ns_cselect_b32 s{h+1}, 1, 2",
                    f"v_mov_b32 v{VT+4}, s{h+1}",
                    f"s_lshl2_add_u32 s{h+2}, s{S_SEG}, {DEC}",
                    f"s_lshl_b32 s{h+1}, s{sHD}, 16", f"s_add_u32 s{h+1}, s{h+1}, s{sLAY}", f"s_add_u32 s{h+1}, s{h+1}, s{sKO}",
                    f"s_cmp_eq_u32 s{h+1}, {F_RK[1] + 1}\ns_cselect_b32 s{h+2}, s{h+2}, 0x80000000",
                    f"buffer_store_dword v{VT+4}, off, {WS}, s{h+2} sc1",
                    f"s_bitcmp1_b64 {sr(sHAD,2)}, s{S_SEG}\ns_cselect_b32 s{h+1}, {F_RK[1] - F_RK[0]}, 0"] \
                + capture(hpage, h, F_RK[0], S_SEG) \
                + [f"s_add_u32 s{h}, s{h}, s{h+1}", f"buffer_load_dword v{GK}, off, {WS}, s{h} sc1"] + capture(keys_issue, h)
        def pack(u):
            out = []
            for r in range(4):
                for p in range(4):
                    a_ = ACC + u * 32 + p * 8
                    out.append(f"v_cvt_pk_bf16_f32 v{PK+u*16+r*4+p}, v{a_+r}, v{a_+4+r}")
                out.append(f"s_add_u32 s{S_T+6}, s{sPT}, {(16*u+r)*16*KB}")
                out.append(f"buffer_store_dwordx4 {vr(PK+u*16+r*4,4)}, v{PT_}, {WS}, s{S_T+6} offen{self.loc}")
            return out
        GAP = opt.get("gap", 4)
        vote_rd = [f"ds_read_b128 {vr(VT,4)}, v{VR}", ("gap", 6), "s_waitcnt lgkmcnt(0)",
                   f"v_or3_b32 v{VT}, v{VT}, v{VT+1}, v{VT+2}", f"v_or_b32 v{VT}, v{VT}, v{VT+3}", ("gap", 1),
                   f"v_readfirstlane_b32 s{sLATE}, v{VT}"]
        BR2 = opt.get("brow", 0) == 2
        def t3(pend):
            vm = ["RD%d" % i for i in range(8)] if pend and (pend[0] or BR2) else ["old"]
            lg = []
            seen = set()
            def emit(x):
                tag = None
                if not isinstance(x, str):
                    if x[0] == "mark":
                        seen.add(x[1]); return 0
                    if x[0] in ("wv", "wl"):
                        q_ = vm if x[0] == "wv" else lg
                        n = len(q_) - 1 - max(i for i, t in enumerate(q_) if t == x[1])
                        k(f"s_waitcnt {'vmcnt' if x[0] == 'wv' else 'lgkmcnt'}({min(n, 63 if x[0] == 'wv' else 15)})")
                        return 1
                    tag, x = x[1], x[2]
                c = 0
                for ln in x.split("\n"):
                    ln = ln.strip()
                    k(ln)
                    if ln.startswith("buffer"):
                        vm.append("copy" if ln.endswith("lds") else tag); c += 2
                    elif ln.startswith("ds_"):
                        lg.append(tag); c += 2
                    elif ln.startswith("v_mfma"):
                        c += 2
                    elif not ln.endswith(":"):
                        c += 1
                return c
            self.mark(34)
            n_start = len(k.lines)
            b0 = bread(0)
            for x in b0[:2]:
                emit(x)
            fo = fetch_ops(S_T + 8, S_T + 9)
            k(f"""s_min_u32 s{S_T}, s{sST}, s{sST+1}
                  s_cmp_lt_u32 s{sNX}, 64
                  s_cselect_b32 s{S_T}, s{S_T}, 0
                  s_cmp_eq_u32 s{S_T}, 0
                  s_cselect_b32 s{sLATE}, 0x80000000, 0
                  v_mov_b32 v{VT}, s{sLATE}
                  s_or_b32 s{S_T+8}, s{sNQ}, s{sLATE}
                  s_or_b32 s{S_T+9}, s{sNK}, s{sLATE}
                  s_cmp_lt_u32 s{sX}, s{sLAY}
                  s_cselect_b32 s{S_T+9}, 0x80000000, s{S_T+9}""")
            for _ in range(5):
                k(fo.pop(0))
            vq = [("need", "bar")] + list(vote_rd)
            if pend and not pend[0] and not BR2:
                r0, early, r1 = row(0, pend[1], (96, 104, 112, 120, 88), sPS)
                for x in r0:
                    emit(x)
                ih = max(i_ for i_, x in enumerate(r1) if isinstance(x, str) and x.startswith("buffer_store"))
                r1[ih] = ("t", "H", r1[ih])
                qx = early + r1 + ([] if pend[1] else [("gap", opt.get("hgap", 40)), ("wv", "H")] + pub)
                early = []
                vq = [("need", "b1"), ("gap", 4), "s_waitcnt lgkmcnt(0)\ns_barrier", ("mark", "bar")] + list(vote_rd)
            elif pend:
                qx = [("at", opt.get("redat", 6))]
                for x in reduce_items(RD2, S):
                    qx += [x, ("gap", 1)] if isinstance(x, str) and x.startswith("v_mfma") else [x]
                r0, early, r1 = row(pend[0], pend[1], (96, 104, 112, 120, 88), sPS)
                qx += [("gap", 4), ("need", "W"), "s_waitcnt lgkmcnt(0)\ns_barrier"] + r0 + [("mark", "bar")] + ([] if opt.get("pub0") else pub) + [("gap", 4)] + r1
                if pend == (0, 0):
                    ih = max(i_ for i_, x in enumerate(qx) if isinstance(x, str) and x.startswith("buffer_store"))
                    qx[ih] = ("t", "H", qx[ih])
                    qx += [("gap", opt.get("hgap", 40)), ("wv", "H")] + pub
            else:
                early = []
                qx = [("mark", "xi"), ("need", "b1"), ("gap", 4), "s_waitcnt lgkmcnt(0)\ns_barrier", ("mark", "bar"),
                      ("at", opt.get("pubat", 36)), ("wv", "old")] + pub
            gap = GAP
            if pend and not pend[0]:
                del fo[-3:]
                if opt.get("fsplit") is not None:
                    ix = [i_ for i_, x in enumerate(fo) if x.endswith("lds")][opt["fsplit"]]
                    fo.insert(ix, ("at", opt.get("fodd", 100)) if pend[1] else ("need", "Hs"))
                    if not pend[1]:
                        ih = [i_ for i_, x in enumerate(qx) if not isinstance(x, str) and x[:2] == ("t", "H")][0]
                        qx.insert(ih + 1, ("mark", "Hs"))
                    gap = opt.get("fgap", 3)
            if opt.get("unpk", 1):
                qx = [y for x in qx for y in unpk(x)]
            pk0 = pack(0)
            cv0 = [x for x in pk0 if x.startswith("v_")]
            st0 = [y for x in pk0 if not x.startswith("v_") for y in ((x, ("gap", opt.get("stgap", 3))) if x.startswith("buffer") else (x,))]
            queues = [fo, b0[2:] + [f"ds_write_b32 v{VW}, v{VT}", ("mark", "W")] + bread(1) + [("mark", "b1")], vq,
                      early + head(), [("at", 66)] + cv0 + [("at", opt.get("stat", 92))] + st0, qx]
            order = [5, 0, 1, 2, 3, 4]
            def kind_of(x):
                x = x if isinstance(x, str) else (x[2] if x[0] == "t" else "s_")
                return "m" if x.startswith("v_mfma") else "v" if x.startswith("v_") else "x" if x.startswith(("ds_", "buffer")) else "s"
            def stalls(x):
                x = x if isinstance(x, str) else (x[2] if x[0] == "t" else None)
                if x is None:
                    return False
                c = Ins(x.split("\n")[0].strip())
                d = 1 if k.lines[-1].startswith("v_mfma") else 0
                for ln in reversed(k.lines[-4:]):
                    if ln.endswith(":"):
                        continue
                    if need(Ins(ln), c) > d:
                        return True
                    d += 1
                return False
            hold = [0] * len(queues)
            b1_before_bar = False
            cost = lambda x: 0 if not isinstance(x, str) and x[0] != "t" else 1.3
            TM_ = opt.get("tmaj", 2)
            pk1 = pack(1)
            cv1 = []
            if TM_:
                for p in range(3):
                    cv1 += [("at", 128 - 8 * TM_ + 2 * TM_ * (p + 1) + 1)] + [pk1[6 * r + p] for r in range(4)]
                pk1 = [x for i_, x in enumerate(pk1) if i_ % 6 > 2]
            queues.append(cv1); hold.append(0)
            for m in range(128):
                u, g, t = m >> 6, (m >> 3) & 7, m & 7
                if m >= 128 - 8 * TM_:
                    assert b1_before_bar
                    m_ = m - (128 - 8 * TM_)
                    t, g = 2 * (m_ // (2 * TM_)) + (m_ & 1), 8 - TM_ + (m_ % (2 * TM_)) // 2
                if t == 0 and ("bar" not in seen or not b1_before_bar):
                    emit(("wl", "B%d%d" % (u, g)))
                if m in (32, 64, 96):
                    self.mark(39 + m // 32)
                d = vr(ACC + u * 32 + t * 4, 4)
                k(f"v_mfma_f32_16x16x32_bf16 {d}, {vr(B+u*32+4*g,4)}, {ar((g*8+t)*4,4)}, {'0' if g == 0 else d}")
                left = sum(kind_of(x) == "v" for q_ in queues for x in q_)
                bud = 3 if left <= 2 * (opt.get("rowend", 116) - m) or "bar" not in seen else 4
                if pend and not pend[0] and (not BR2 or "bar" in seen):
                    bud = opt.get("bbud", 6) if any(kind_of(x) == "v" for x in qx) else 3
                n = 0
                def pick(kinds):
                    for qi in order:
                        q_ = queues[qi]
                        while q_ and not isinstance(q_[0], str) and q_[0][0] in ("at", "gap", "need", "mark") and hold[qi] <= m:
                            kind, val = q_[0]
                            if kind == "need" and val not in seen:
                                break
                            if kind == "at": hold[qi] = val
                            if kind == "gap": hold[qi] = m + val
                            if kind == "mark": seen.add(val)
                            q_.pop(0)
                        if q_ and hold[qi] <= m and not (not isinstance(q_[0], str) and q_[0][0] == "need") \
                                and kind_of(q_[0]) in kinds and not stalls(q_[0]):
                            x = q_.pop(0)
                            if isinstance(x, str) and x.endswith("lds"):
                                hold[qi] = m + gap
                            emit(x)
                            tx = x if isinstance(x, str) else x[2] if x[0] == "t" else ""
                            if kind_of(x) == "x" and opt.get("xc", 1):
                                return "x", 2 if tx.startswith(("ds_read", "ds_write_b32")) else 3
                            return kind_of(x), (x.count("\n") + 1 if isinstance(x, str) else 1)
                    return None
                if "b1" in seen and not any(isinstance(l_, str) and l_ == "s_barrier" for l_ in k.lines[n_start:]):
                    b1_before_bar = True
                if pend and not pend[0] and (not BR2 or "bar" in seen):
                    order = [0, 1, 5, 2, 3, 4, 6]
                elif "bar" in seen:
                    order = [0, 1, 2, 3, 5, 4] if m < 84 else [0, 1, 2, 3, 4, 6, 5]
                r_ = pick("x") or pick("s")
                n = r_[1] if r_ else 1
                while n < bud:
                    r_ = pick("vsm")
                    if not r_:
                        break
                    if r_[0] == "m":
                        r_ = pick("x") or pick("s")
                        n = r_[1] if r_ else 1
                        continue
                    n += r_[1]
                if m == 63:
                    assert "b1" in seen and "bar" in seen
                if "bar" in seen and pend and not (pend[0] and pend[1]):
                    assert "early" in seen
            assert not any(queues[:4]), [len(q_) for q_ in queues]
            self.t3left = getattr(self, "t3left", []) + [(pend, len(queues[4]), len(queues[5]))]
            self.mark(35)
            pk1 = queues[4] + queues[6] + pk1
            if ("wv", "H") in qx:
                i_ = qx.index(("wv", "H"))
                assert i_ < 2
                if not opt.get("hlate"):
                    pk1 += qx[i_:]
                del qx[:]
            while pk1 or qx:
                for q_ in (pk1, qx):
                    if q_:
                        x = q_.pop(0)
                        if isinstance(x, str) or x[0] not in ("at", "gap"):
                            emit(x)
            k(f"""s_cmp_lg_u32 s{sLATE}, 0
                  s_cbranch_scc1 {LATE}""")
            emit(("wv", "copy"))
        p00 = list(self.pend)
        V1 = k.newlabel("L_av")
        k.label(T3X)
        k(f"""s_bitcmp1_b32 s{S_W}, 0
              s_cbranch_scc1 {V1}""")
        for i in range(2):
            if i:
                k.label(V1)
            self.pend = list(p00)
            t3((1, i))
            if self.stamps and i == 0:
                k(f"s_mov_b32 s101, s{S_SEG}\ns_mov_b32 s{S_SEG}, s{sPS}")
                self.ev(22, va=240)
                k(f"s_mov_b32 s{S_SEG}, s101")
            k(f"s_branch {T3E}")
        T3B, V2_ = k.newlabel("L_av"), k.newlabel("L_av")
        if opt.get("brow", 0):
            k.label(T3B)
            k(f"""s_bitcmp1_b32 s{S_W}, 0
                  s_cbranch_scc1 {V2_}""")
            for i in range(2):
                if i:
                    k.label(V2_)
                self.pend = list(p00)
                t3((0, i))
                k(f"s_branch {T3E}")
        k.label(T3)
        self.pend = list(p00)
        t3(None)
        k.label(T3E)
        DB = k.newlabel("L_ao")
        k(f"""s_barrier
              s_cmp_lt_u32 s{sX}, s{sLAY}
              s_cbranch_scc1 {DB}""")
        pre()
        k(f"""s_cmp_eq_u32 s{sX}, 0
              s_cbranch_scc1 {NXB}""")
        p0 = list(self.pend)
        LATE2, SKIP = k.newlabel("L_al"), k.newlabel("L_ak")
        k(f"""s_cmp_lg_u64 vcc, 0
              s_cselect_b32 s{sMODE}, 1, 0
              s_andn2_b32 s{S_T+1}, s{sMODE}, s{sLAY}""")
        exch1(f"s{S_T+1}")
        plan_after_d()
        WT, WTB, SLD = (k.newlabel("L_a4") for _ in range(3))
        k(f"""s_cmp_ge_u32 s{sNS}, {opt.get("wdrain", 60)}
              s_cbranch_scc1 {WT}""")
        k.label(WTB)
        pw = list(self.pend)
        def stub():
            k.label(WT)
            k(f"""v_mov_b32 v{VT}, s{sMODE}
                  ds_write_b32 v{VW}, v{VT} offset:16
                  s_waitcnt lgkmcnt(0)
                  s_barrier
                  ds_read_b128 {vr(VT,4)}, v{VR} offset:16
                  s_waitcnt lgkmcnt(0)
                  v_or3_b32 v{VT}, v{VT}, v{VT+1}, v{VT+2}
                  v_or_b32 v{VT}, v{VT}, v{VT+3}
                  v_cmp_ne_u32 vcc, 0, v{VT}
                  s_cbranch_vccz {WTB}""")
            self.pend = list(pw)
            exch2()
            self.pend = []
            k(f"""s_mov_b32 s{sMODE}, 4
                  s_branch {ROWS_}""")
        stubs.append(stub)
        k(f"s_and_b32 s{sMODE}, s{sMODE}, s{sLAY}")
        chain_wait("scc1")
        BD = k.newlabel("L_ah")
        post(True, skip=SKIP, tail=f"""s_cmp_eq_u32 s{sLAY}, 0
                                       s_cbranch_scc1 {BD}""")
        p2 = list(self.pend)
        self.flush(va=240)
        k(f"""s_mov_b32 s{sPS}, s{S_SEG}
              s_mov_b32 s{S_SEG}, s{sNS}
              s_branch {T3X}""")
        k.label(BD)
        self.pend = p2
        NL, NLB = k.newlabel("L_a1"), k.newlabel("L_a2")
        k(f"""s_cmp_ge_u32 s{sBN}, 64
              s_cbranch_scc1 {NL}""")
        k.label(NLB)
        def stub():
            k.label(NL)
            no_more()
            k(f"s_branch {NLB}")
        stubs.append(stub)
        if BR2:
            k("""s_waitcnt lgkmcnt(0)
                 s_barrier""")
        else:
            reduce_now(RD2, 160)
        if opt.get("brow", 0):
            self.flush(va=240)
            self.ev(12, va=240)
            k(f"""s_mov_b32 s{sPS}, s{S_SEG}
                  s_mov_b32 s{S_SEG}, s{sNS}
                  s_mov_b32 s{sLAY}, 1
                  s_branch {T3B}""")
        else:
            k(f"""s_mov_b32 s{sMODE}, 1
                  s_branch {ROWS_}""")
        k.label(DB)
        self.pend = list(p0)
        pre(True)
        exch1(keep=NL_)
        if opt.get("hlate"):
            for x in pub:
                k(x)
        k(f"""s_mov_b32 s{sPS}, s{S_SEG}
              s_mov_b32 s{sMODE}, 3""")
        self.flush(va=240)
        k(f"s_branch {SLB}")
        k.label(NXB)
        self.pend = list(p0)
        exch1()
        exch2(mid=look, nmid=NL_)
        k(f"""s_mov_b32 s{sMODE}, 0
              s_branch {ROWS_}""")
        k.label(LATE)
        self.pend = list(p0)
        k(f"""s_add_u32 s{S_T}, s{sX}, s{sKO}
              s_cmp_lg_u32 s{S_T}, {F_RK[1] + 1}
              s_cbranch_scc1 {LATE2}""")
        exch1(1)
        plan_after_d()
        k(f"s_branch {SKIP}")
        k.label(LATE2)
        self.pend = list(p0)
        exch1()
        if opt.get("lpub", 1):
            for x in pub:
                k(x)
        k.label(SKIP)
        exch2()
        k(f"s_mov_b32 s{sMODE}, 2")
        k.label(ROWS_)
        RV = [k.newlabel("L_ar") for _ in range(3)]
        k(f"""s_cmp_lg_u32 s{sLAY}, 0
              s_cbranch_scc1 {RV[2]}
              s_bitcmp1_b32 s{S_W}, 0
              s_cbranch_scc1 {RV[1]}""")
        for i in range(3):
            k.label(RV[i])
            if i == 2:
                k(f"""s_bitcmp1_b32 s{S_W}, 0
                      s_cbranch_scc1 {RD_}""")
            for x in sum(row(i >> 1, i & 1, (160, 168, 176, 184, 200), S_SEG), []):
                if isinstance(x, str):
                    k(x)
                elif x[0] == "t":
                    k(x[2])
                elif x[0] == "wl":
                    k("s_waitcnt lgkmcnt(0)")
            if i < 2:
                k(f"s_branch {RD_}")
        k.label(RD_)
        self.flush(va=240)
        if self.stamps:
            E1, E2 = k.newlabel("L_ev"), k.newlabel("L_ev")
            k(f"s_cmp_lg_u32 s{sLAY}, 0\ns_cbranch_scc1 {E1}")
            self.ev(12, va=240)
            k(f"s_branch {E2}")
            k.label(E1)
            self.ev(22, va=240)
            k.label(E2)
        GOD = k.newlabel("L_ad")
        k(f"""s_cmp_eq_u32 s{sMODE}, 1
              s_cbranch_scc1 {GOD}
              s_cmp_eq_u32 s{sMODE}, 0
              s_cbranch_scc1 {GOB}
              s_cmp_eq_u32 s{sMODE}, 4
              s_cbranch_scc1 {SLD}
              s_cmp_ge_u32 s{sNX}, 64
              s_cbranch_scc1 {FIN2}""")
        k.label(SLOW)
        flush_pub()
        k(f"""v_mov_b32 v{ST}, 0
              s_mov_b32 s{sMODE}, 0""")
        spin(ST, st_load, f"v_cmp_eq_u32 vcc, 0, v{ST}")
        SLOW2 = k.newlabel("L_a3")
        k.label(SLOW2)
        k(f"""s_mov_b32 s{S_T+8}, s{sNQ}
              s_mov_b32 s{S_T+9}, s{sNK}""")
        for x in fetch_ops(S_T + 8, S_T + 9):
            k(x)
        keys_issue(S_T)
        k(f"""s_waitcnt vmcnt(0) lgkmcnt(0)
              s_barrier""")
        self.ev(20, va=240)
        pre()
        k(f"""s_waitcnt lgkmcnt(0)
              s_cmp_eq_u32 s{sX}, 0
              s_cbranch_scc1 {SLB}""")
        plan_after_d()
        k.label(SLD)
        flush_pub()
        for x in fcheck():
            k(x)
        k(f"v_cmp_eq_u32 vcc, -1, v{TT}")
        chain_wait("vccnz")
        post()
        k.label(GOD)
        k(f"""s_mov_b32 s{S_SEG}, s{sNS}
              s_mov_b32 s{sLAY}, 1
              s_branch {T3}""")
        k.label(GOB)
        flush_pub()
        k.label(SLB)
        k(f"""s_mov_b32 s{S_SEG}, s{sNS}
              s_mov_b32 s{sLAY}, 0""")
        plan_after_b(True)
        k(st_load)
        k(f"s_waitcnt vmcnt({3 if opt.get('hlate') else 2})")
        self.ev(15, va=240)
        check(False)
        k(f"s_cbranch_vccz {PC}")
        k.label(PL)
        if opt.get("sll"):
            k(f"s_sleep {opt['sll']}")
        look()
        k(st_load)
        self.spend()
        check(True)
        k(f"s_cbranch_vccnz {PL}")
        k.label(PC)
        self.ev(10, va=240)
        NP = k.newlabel("L_ai")
        rl_ = f"""v_readlane_b32 s{sST}, v{ST}, 0
                  v_readlane_b32 s{sST+1}, v{ST}, 1"""
        k(f"""s_cmp_lg_u32 s{sMODE}, 3
              s_cbranch_scc1 {NP}""")
        mk_, self.opt["marks"] = self.opt.get("marks", ()), ()
        post(True, tail=rl_)
        self.opt["marks"] = mk_
        k(f"s_branch {T3X}")
        k.label(NP)
        post(tail="s_waitcnt vmcnt(0)\n" + rl_)
        k(f"s_branch {T3}")
        k.label(FIN2)
        DONE = k.newlabel("L_az")
        k(f"""s_cmp_lg_u32 s{sKO}, {F_RK[1]}
              s_cbranch_scc1 {DONE}""")
        NN = k.newlabel("L_an")
        k(f"""s_cmp_ge_u32 s{sBN}, {DLAST + 4}
              s_cbranch_scc1 {FINAL}""")
        no_more()
        k.label(FINAL)
        flush_pub()
        self.ev(14, va=240)
        k(f"""v_lshlrev_b32 v{TT}, 2, v{V_LANE}
              v_add_u32 v{VT}, {VOTE + 64}, v{TT}
              s_cmp_lg_u32 s{S_W}, 0
              s_cbranch_scc1 {NN}
              s_lshl_b32 s{S_T+3}, s{sWK}, 13
              s_add_u32 s{S_T+3}, s{S_T+3}, {DEC + 8192}""")
        self.words_wait64(S_T + 3, TT, 1)
        k(f"""ds_write_b32 v{VT}, v{TT+1}
              s_waitcnt lgkmcnt(0)""")
        k.label(NN)
        k(f"""s_barrier
              ds_read_b32 v{TT+1}, v{VT}
              s_mov_b32 s{sKO}, {F_RK[2]}
              s_mov_b32 s{sX}, 1
              s_waitcnt lgkmcnt(0)
              v_readfirstlane_b32 s{sSEL}, v{TT+1}
              v_and_b32 v{TT+1}, 255, v{TT+1}
              s_lshr_b32 s{sSEL}, s{sSEL}, 8
              s_lshr_b32 s{S_T+5}, s{sSEL}, 5
              v_cmp_ne_u32 {sr(sHAD,2)}, 3, v{TT+1}""")
        self.todo_mask(sTODO, TT)
        k(f"""s_bcnt1_i32_b64 s{S_T}, {sr(sTODO,2)}
              v_mbcnt_lo_u32_b32 v{TT}, s{sTODO}, 0
              v_mbcnt_hi_u32_b32 v{TT}, s{sTODO+1}, v{TT}
              s_mul_i32 s{S_T}, s{S_T}, {opt.get("share", 15)}
              s_add_u32 s{S_T}, s{S_T}, {opt.get("shr", 130)}
              s_lshr_b32 s{S_T}, s{S_T}, 7
              s_lshl_b32 s{S_T}, s{S_T}, 1
              v_cmp_gt_u32 vcc, s{S_T}, v{TT}
              v_and_b32 v{TT+1}, 1, v{TT}
              v_and_b32 v{TT}, 3, v{TT}
              v_add_u32 v{TT}, 2, v{TT}
              v_cndmask_b32 v{TT}, v{TT}, v{TT+1}, vcc
              v_cmp_eq_u32 vcc, s{sWK}, v{TT}
              s_and_b64 {sr(sTODO,2)}, {sr(sTODO,2)}, vcc""")
        pop_todo(1)
        plan_next(1, S_T + 5)
        k(f"""s_cmp_ge_u32 s{sNX}, 64
              s_cbranch_scc1 {DONE}
              s_cmp_eq_u32 s{sNX}, s{S_T+5}
              s_cbranch_scc1 {SLOW}
              s_mov_b32 s{sMODE}, 0
              s_bitcmp1_b64 {sr(sHAD,2)}, s{sNX}
              s_cbranch_scc1 {SLOW2}
              s_branch {SLOW}""")
        k.label(DONE)
        flush_pub()
        self.ev(23, va=240)
        k("s_endpgm")
        for st in stubs:
            st()

    def both(self, fn, name):
        self.k(f"""s_cmp_lg_u32 s{S_SLOW}, 0
                   s_cbranch_scc1 {name}""")
        fn()
        self.later.append((fn, name))

    def program(self):
        k = self.k
        self.later = []
        self.prologue()
        self.ev(4, clk="s_mov_b64 s[82:83], s[98:99] ;")
        self.ev(0)
        LCH, LM, LA, LA2, C1, C2 = (k.newlabel(x) for x in ("L_rch", "L_rm", "L_ra", "L_rb", "L_rc1", "L_rc2"))
        k.label("L_roles")
        if self.opt.get("hold", 6):
            X = k.newlabel("L_x")
            k(f"""s_lshl_b32 s{S_T}, 1, s{S_G}
                  s_and_b32 s{S_T}, s{S_T}, {self.opt.get("hold", 6)}
                  s_cbranch_scc0 {X}""")
            self.init_rows(0)
            k("s_waitcnt vmcnt(0)")
            self.arrive()
            self.wait_all()
            k.label(X)
        k(f"""s_cmp_ge_u32 s{S_G}, 6
              s_cbranch_scc1 {LA}""")
        self.load_qkv()
        self.ev(2)
        k(f"""s_cmp_lt_u32 s{S_G}, 3
              s_cbranch_scc1 {LCH}
              s_cmp_eq_u32 s{S_G}, 3
              s_cbranch_scc1 {LM}""")
        self.wait_all()
        self.ev(3)
        self.role_proj()
        k("s_endpgm")
        k.label(LM)
        self.load_gate_up()
        self.wait_all()
        self.ev(3)
        def moe():
            self.role_moe()
            k("s_endpgm")
        self.both(moe, "L_wm")
        k.label("L_abort")
        k("s_endpgm")
        k.label("L_spread")
        k(f"""s_mov_b32 s{S_SLOW}, -1
              s_lshr_b32 s{S_G}, s2, 5
              s_and_b32 s{S_H}, s2, 31""")
        if self.stamps:
            k(f"""s_lshl_b32 s{S_EV}, s2, 12
                  s_add_u32 s{S_EV}, s{S_EV}, {STAMP_OFF + MB}""")
            self.ev(0)
        k("s_branch L_roles")
        k.label(LA)
        if not self.opt.get("warm", 1):
            self.init_rows(0)
        if self.opt.get("warm", 1):
            self.warm()
        if self.opt.get("tawait", 0):
            self.wait_all()
            k(f"""s_bfe_u32 s{S_T+3}, s{S_H}, 0x10004
                  s_lshl_b32 s{S_T+3}, s{S_T+3}, 13
                  s_add_u32 s{S_T+3}, s{S_T+3}, {PG_OFF + F_KV[0]}""")
            self.flags_wait32(S_T + 3, one=True, sleep=4)
        k.label(LA2)
        self.ev(2)
        self.load_wo2()
        self.wait_all()
        self.ev(3)
        k(f"""s_max_u32 s54, s{S_G}, 5
              s_sub_u32 s54, s54, 5
              s_lshl_b32 s54, s54, 1
              s_lshr_b32 s{S_T}, s{S_H}, 4
              s_add_u32 s54, s54, s{S_T}""")
        def att():
            self.role_att(None)
            k("s_endpgm")
        self.both(att, "L_wa")
        k.label(LCH)
        S0 = k.newlabel("L_rs")
        self.load_wo(2)
        k(f"""s_cmp_eq_u32 s{S_G}, 0
              s_cbranch_scc1 {S0}""")
        self.load_wo(3)
        k.label(S0)
        self.wait_all(True)
        self.ev(3)
        self.chain_helps()
        def chains():
            C1, C2 = k.newlabel("L_rc1"), k.newlabel("L_rc2")
            k(f"""s_cmp_eq_u32 s{S_G}, 1
                  s_cbranch_scc1 {C1}
                  s_cmp_eq_u32 s{S_G}, 2
                  s_cbranch_scc1 {C2}""")
            self.chain(0)
            k(f"""s_mov_b32 s{S_CNT}, 0
                  s_branch {LA2}""")
            k.label(C1)
            self.chain(1)
            k("s_endpgm")
            k.label(C2)
            self.chain(2)
            k("s_endpgm")
        self.both(chains, "L_wc")
        self.loc = " sc1"
        self.abort = "L_abort2"
        k.label("L_abort2")
        k("s_endpgm")
        for fn, name in reversed(self.later):
            k.label(name)
            k.fence()
            if self.opt.get("noslow"):
                k("s_endpgm")
            else:
                fn()

HEADER = open(__file__.rsplit("/", 1)[0] + "/header.txt").read() if "/" in __file__ else open("header.txt").read()

def build(**kw):
    g = Gen(**kw)
    g.program()
    print("t3 leftovers", getattr(g, "t3left", None), file=sys.stderr)
    body = g.k.finalize()
    return (HEADER + f"; @launch grid=(256,1,1) block=(256,1,1) lds={LDS_SIZE}\n"
        + f""".amdgcn_target "amdgcn-amd-amdhsa--gfx950"
.text
.globl {NAME}_kernel
.p2align 8
.type {NAME}_kernel,@function
{NAME}_kernel:
""" + body + f""".section .rodata,"a"
.p2align 6
.amdhsa_kernel {NAME}_kernel
  .amdhsa_next_free_vgpr 512
  .amdhsa_next_free_sgpr 102
  .amdhsa_accum_offset 256
  .amdhsa_group_segment_fixed_size 0
  .amdhsa_kernarg_size 120
  .amdhsa_user_sgpr_count 2
  .amdhsa_user_sgpr_kernarg_segment_ptr 1
  .amdhsa_system_sgpr_workgroup_id_x 1
  .amdhsa_float_denorm_mode_32 3
.end_amdhsa_kernel
""")

if __name__ == "__main__":
    import argparse
    ap = argparse.ArgumentParser()
    ap.add_argument("-o", default=f"/code/{NAME}.s")
    ap.add_argument("--stop", default=None)
    ap.add_argument("--stamps", type=int, default=0)
    ap.add_argument("--slow", action="store_true")
    ap.add_argument("--opt", default="{}")
    a = ap.parse_args()
    stop = None
    if a.stop:
        l, p = a.stop.split(":"); stop = (int(l), p)
    open(a.o, "w").write(build(fast=not a.slow, stop=stop, stamps=a.stamps, opt=eval(a.opt)))
```

```python
import sys, math
from asmlib import K, vr, ar, sr, Ins, need
from layout import *

NAME = "interleave_layers__memory_aug_recurrent_mem_tr__moe_arch_mod__prompt"

SRD_A = 4
SRD_WS = 8
SRD_DBG = 12
P_X, P_MEM0, P_WQ, P_WK, P_WV, P_WO = 16, 18, 20, 22, 24, 26
P_WR, P_WG, P_WU, P_WD, P_OUT, P_DBG, P_WS = 32, 34, 36, 38, 40, 42, 44
S_W, S_H, S_G, S_BUD = 46, 47, 48, 49
S_SLOW = 3
S_LW = 50
S_SEG, S_OOB, S_CNT = 51, 52, 53
S_T = 56
S_C = 80
S_EV = 81
S_ONE = 28
S_A, S_B = 30, 31
LOOK = 2
WS = sr(SRD_WS, 4); SA = sr(SRD_A, 4); DBG = sr(SRD_DBG, 4)

SCALE_LOG2E = (128 ** -0.5) * math.log2(math.e)
def f32(x):
    import struct
    return "0x%08x" % struct.unpack("<I", struct.pack("<f", x))[0]
NEGBIG = f32(-1e30)

def wq(ks, t, half=None):
    b = (ks * 2 + t) * 8
    return ar(b, 8) if half is None else ar(b + 4 * half, 4)
def wk(ks, t, half=None):
    b = 128 + (ks * 2 + t) * 8
    return ar(b, 8) if half is None else ar(b + 4 * half, 4)
def wv(ks, t, half=None):
    b = 128 + (ks * 2 + t) * 8
    return vr(b, 8) if half is None else vr(b + 4 * half, 4)

def unpk(x):
    import re
    if not isinstance(x, str) or not x.startswith("v_pk_"):
        return [x]
    ins = Ins(x)
    mod = lambda nm, d: [int(c) for c in re.search(nm + r":\[([01,]+)\]", ins.mods).group(1).split(",")] if re.search(nm + r":\[", ins.mods) else d
    n = len(ins.ops) - 1
    lo, hi = mod(r"op_sel", [0] * n), mod("op_sel_hi", [1] * n)
    if "op_sel:" not in ins.mods:
        lo = [0] * n
    ng = mod("neg_lo", [0] * n)
    base = [re.match(r"([vs])\[(\d+):", o).groups() for o in ins.ops]
    out = []
    for h, sel in enumerate((lo, hi)):
        src = [("-" if ng[i] else "") + base[i+1][0] + str(int(base[i+1][1]) + sel[i]) for i in range(n)]
        out.append(f"{ins.op.replace('v_pk_', 'v_')} v{int(base[0][1]) + h}, " + ", ".join(src))
    return out

V_L16 = 0
V_LANE = 1

class Gen:
    def __init__(self, fast=True, stop=None, stamps=False, opt=None):
        self.opt = opt or {}
        self.LH = L_H
        self.pend = []
        self.mk = 0
        self.k = K()
        self.fast = fast
        self.loc = "" if fast else " sc1"
        self.stop = stop
        self.abort = "L_abort"
        self.stamps = stamps

    def srd(self, ptr, nbytes):
        k = self.k
        k(f"""s_mov_b32 s{SRD_A}, s{ptr}
              s_mov_b32 s{SRD_A+1}, s{ptr+1}
              s_mov_b32 s{SRD_A+2}, {nbytes}
              s_mov_b32 s{SRD_A+3}, 0x20000""")

    def budget(self, retry):
        self.k(f"""s_sub_u32 s{S_BUD}, s{S_BUD}, 1
                   s_cmp_gt_i32 s{S_BUD}, 0
                   s_cbranch_scc1 {retry}
                   s_branch {self.abort}""")

    def spend(self, inc=None, cnt=None):
        if self.stamps and inc:
            self.k(f"s_add_u32 s{cnt}, s{cnt}, {inc}")
        self.k(f"""s_sub_u32 s{S_BUD}, s{S_BUD}, 1
                   s_cbranch_scc1 {self.abort}""")

    def wsum(self, x, t):
        k = self.k
        for r in (8, 4, 2, 1):
            k(f"v_add_f32_dpp v{x}, v{x}, v{x} row_ror:{r} row_mask:0xf bank_mask:0xf")
        k(f"""v_mov_b32 v{t}, v{x}
              v_permlane16_swap_b32 v{x}, v{t}
              v_add_f32 v{x}, v{x}, v{t}
              v_mov_b32 v{t}, v{x}
              v_permlane32_swap_b32 v{x}, v{t}
              v_add_f32 v{x}, v{x}, v{t}""")

    def unpack8(self, dst, src):
        k = self.k
        for q in range(4):
            k(f"v_lshlrev_b32 v{dst+2*q}, 16, v{src+q}")
            k(f"v_and_b32 v{dst+2*q+1}, 0xffff0000, v{src+q}")

    def pack8(self, dst, src):
        for q in range(4):
            self.k(f"v_cvt_pk_bf16_f32 v{dst+q}, v{src+2*q}, v{src+2*q+1}")

    def round1(self, x):
        self.k(f"""v_cvt_pk_bf16_f32 v{x}, v{x}, v{x}
                   v_and_b32 v{x}, 0xffff0000, v{x}""")

    def layernorm(self, x, ypk, tmp):
        k = self.k
        d = tmp; s = tmp + 8; q = tmp + 10; t = tmp + 12
        c = S_T + 22
        k(f"v_readfirstlane_b32 s{c}, v{x}")
        for j in range(0, 8, 2):
            k(f"v_pk_add_f32 {vr(d+j,2)}, {vr(x+j,2)}, {sr(c,2)} op_sel_hi:[1,0] neg_lo:[0,1] neg_hi:[0,1]")
        k(f"""v_pk_add_f32 {vr(s,2)}, {vr(d,2)}, {vr(d+2,2)}
              v_pk_mul_f32 {vr(q,2)}, {vr(d,2)}, {vr(d,2)}
              v_pk_add_f32 {vr(t,2)}, {vr(d+4,2)}, {vr(d+6,2)}
              v_pk_fma_f32 {vr(q,2)}, {vr(d+2,2)}, {vr(d+2,2)}, {vr(q,2)}
              v_pk_add_f32 {vr(s,2)}, {vr(s,2)}, {vr(t,2)}
              v_pk_fma_f32 {vr(q,2)}, {vr(d+4,2)}, {vr(d+4,2)}, {vr(q,2)}
              v_add_f32 v{s}, v{s}, v{s+1}
              v_pk_fma_f32 {vr(q,2)}, {vr(d+6,2)}, {vr(d+6,2)}, {vr(q,2)}
              v_add_f32 v{q}, v{q}, v{q+1}""")
        k(f"""v_permlane32_swap_b32 v{s}, v{q}
              v_add_f32 v{s}, v{s}, v{q}""")
        for r in (8, 4, 2, 1):
            k(f"v_add_f32_dpp v{s}, v{s}, v{s} row_ror:{r} row_mask:0xf bank_mask:0xf")
        k(f"""v_mov_b32 v{q}, v{s}
              v_permlane16_swap_b32 v{s}, v{q}
              v_add_f32 v{s}, v{s}, v{q}
              v_mul_f32 v{s}, {f32(1.0/512)}, v{s}
              v_mov_b32 v{q}, v{s}
              v_permlane32_swap_b32 v{s}, v{q}
              v_fma_f32 v{q}, -v{s}, v{s}, v{q}
              v_add_f32 v{s}, s{c}, v{s}
              v_max_f32 v{q}, 0, v{q}
              v_cvt_pk_bf16_f32 v{q}, v{s}, v{q}
              v_lshlrev_b32 v{s}, 16, v{q}
              v_and_b32 v{q}, 0xffff0000, v{q}
              v_add_f32 v{q}, {f32(1e-5)}, v{q}""")
        self.round1(q)
        k(f"v_sqrt_f32 v{q}, v{q}")
        for j in range(0, 8, 2):
            k(f"v_pk_add_f32 {vr(d+j,2)}, {vr(x+j,2)}, {vr(s,2)} op_sel_hi:[1,0] neg_lo:[0,1] neg_hi:[0,1]")
        self.round1(q)
        k(f"v_rcp_f32 v{q}, v{q}")
        self.pack8(ypk, d)
        self.unpack8(d, ypk)
        for j in range(0, 8, 2):
            k(f"v_pk_mul_f32 {vr(d+j,2)}, {vr(d+j,2)}, {vr(q,2)} op_sel_hi:[1,0]")
        self.pack8(ypk, d)

    def add8(self, x, y):
        for j in range(0, 8, 2):
            self.k(f"v_pk_add_f32 {vr(x+j,2)}, {vr(x+j,2)}, {vr(y+j,2)}")

    def arrive(self):
        k = self.k
        D = k.newlabel("L_ar")
        k(f"""s_barrier
              s_cmp_lg_u32 s{S_W}, 0
              s_cbranch_scc1 {D}
              v_mov_b32 v8, 240
              v_mov_b32 v9, s{S_CNT}
              s_mov_b64 exec, 1
              buffer_atomic_add v9, v8, {DBG}, 0 offen
              s_mov_b64 exec, -1""")
        k.label(D)
        k(f"s_mov_b32 s{S_CNT}, 0")
        self.ev(1, va=10)

    def wait_all(self, quick=False):
        k = self.k
        L = k.newlabel("L_gb"); D = k.newlabel("L_gbd")
        k(f"""v_mov_b32 v123, {L_MISC}
              s_cmp_lg_u32 s{S_W}, 0
              s_cbranch_scc1 {D}
              v_mov_b32 v124, 240""")
        if quick:
            k(f"""s_buffer_load_dword s{S_T}, {DBG}, 240
                  s_waitcnt lgkmcnt(0)
                  v_mov_b32 v125, s{S_T}
                  ds_write_b32 v123, v125
                  s_bitcmp1_b32 s{S_T}, 8
                  s_cbranch_scc1 {D}""")
        k.label(L)
        k(f"""buffer_load_dword v125, v124, {DBG}, 0 offen sc1
              s_waitcnt vmcnt(0)
              v_readfirstlane_b32 s{S_T}, v125
              ds_write_b32 v123, v125
              s_bitcmp1_b32 s{S_T}, 8
              s_cbranch_scc1 {D}
              s_sleep 4""")
        self.budget(L)
        k.label(D)
        k(f"""s_waitcnt lgkmcnt(0)
              s_barrier
              ds_read_b32 v125, v123
              s_waitcnt lgkmcnt(0)
              v_readfirstlane_b32 s{S_T}, v125
              s_barrier
              s_lshr_b32 s{S_T}, s{S_T}, 16
              s_andn2_b32 s{S_T}, s{S_T}, s{S_SLOW}
              s_cbranch_scc1 L_spread""")

    def page(self, dst, off, seg=S_SEG, head=True):
        k = self.k
        k(f"s_lshl_b32 s{dst}, s{seg}, 13")
        if head:
            k(f"s_lshl2_add_u32 s{dst}, s{S_H}, s{dst}")
        k(f"s_add_u32 s{dst}, s{dst}, {PG_OFF + off}")

    def word_wait(self, s_off, s_val, va=125, sleep=0, quick=False):
        k = self.k
        L, D = k.newlabel("L_ww"), k.newlabel("L_wwd")
        if quick:
            k(f"""s_buffer_load_dword s{s_val}, {WS}, s{s_off}
                  s_waitcnt lgkmcnt(0)
                  s_cmp_lg_u32 s{s_val}, 0
                  s_cbranch_scc1 {D}""")
        k.label(L)
        if sleep:
            k(f"s_sleep {sleep}")
        k(f"buffer_load_dword v{va}, off, {WS}, s{s_off} sc1")
        self.spend()
        k(f"""s_waitcnt vmcnt(0)
              v_readfirstlane_b32 s{s_val}, v{va}
              s_cmp_eq_u32 s{s_val}, 0
              s_cbranch_scc1 {L}""")
        k.label(D)

    def stamp(self, name):
        pts = self.opt.get("pts", [0, 1, 2, 3, 4, 5, 6, 7])
        if self.stamps > 1 and name in pts:
            i = pts.index(name)
            self.k(f"s_memtime s[{84+2*i}:{85+2*i}]")

    def ev(self, tag, va=126, clk="s_memrealtime"):
        if not self.stamps:
            return
        k = self.k
        D = k.newlabel("L_ps")
        k(f"""s_cmp_lg_u32 s{S_W}, 0
              s_cbranch_scc1 {D}
              {clk} s[82:83]
              s_or_b32 s100, s{S_SEG}, {tag << 8}
              s_waitcnt lgkmcnt(0)
              s_mov_b64 exec, 1
              v_mov_b32 v{va}, s82
              v_mov_b32 v{va+1}, s100
              buffer_store_dwordx2 {vr(va,2)}, off, {WS}, s{S_EV}
              s_mov_b64 exec, -1
              s_add_u32 s{S_EV}, s{S_EV}, 8""")
        k.label(D)

    def mark(self, tag):
        if self.stamps != 1 or tag not in self.opt.get("marks", ()):
            return
        i = len(self.pend); assert i < 6
        self.pend.append(tag)
        self.k(f"{'s_memtime' if self.opt.get('mt') else 's_memrealtime'} s[{88+2*i}:{89+2*i}]")

    def flush(self, va=126):
        if not self.pend:
            return
        k = self.k
        D = k.newlabel("L_fl")
        k(f"""s_cmp_lg_u32 s{S_W}, 0
              s_cbranch_scc1 {D}
              s_waitcnt lgkmcnt(0)
              s_mov_b64 exec, 1""")
        for i, tag in enumerate(self.pend):
            k(f"""s_or_b32 s100, s{S_SEG}, {tag << 8}
                  v_mov_b32 v{va}, s{88+2*i}
                  v_mov_b32 v{va+1}, s100
                  buffer_store_dwordx2 {vr(va,2)}, off, {WS}, s{S_EV}
                  s_add_u32 s{S_EV}, s{S_EV}, 8""")
        k("s_mov_b64 exec, -1")
        k.label(D)
        self.pend = []

    def prologue(self):
        k = self.k
        k(f"""s_cmp_ge_u32 s2, 256
              s_cbranch_scc1 L_abort
              {"s_memrealtime s[98:99]" if self.stamps else ""}
              s_load_dwordx16 s[16:31], s[0:1], 0
              s_load_dwordx8 s[32:39], s[0:1], 64
              s_load_dwordx4 s[40:43], s[0:1], 96
              s_load_dwordx2 s[44:45], s[0:1], 112
              v_lshrrev_b32 v2, 6, v0
              v_and_b32 v{V_LANE}, 63, v0
              v_readfirstlane_b32 s{S_W}, v2
              v_lshlrev_b32 v{V_L16}, 4, v{V_LANE}
              s_getreg_b32 s{S_G}, hwreg(HW_REG_XCC_ID)
              s_and_b32 s{S_G}, s{S_G}, {self.opt.get("xmask", 7)}
              s_lshl_b32 s{S_G}, s{S_G}, 2
              s_lshr_b32 s{S_G}, {sum(g << (4*x) for x, g in enumerate(self.opt.get("map", (0, 6, 2, 4, 1, 7, 3, 5))))}, s{S_G}
              s_and_b32 s{S_G}, s{S_G}, 7
              s_mov_b32 s{S_BUD}, 100000
              s_mov_b32 s{S_C}, {f32(SCALE_LOG2E)}
              s_waitcnt lgkmcnt(0)
              s_mov_b32 s{SRD_WS}, s{P_WS}
              s_mov_b32 s{SRD_WS+1}, s{P_WS+1}
              s_mov_b32 s{SRD_WS+2}, {WS_SIZE}
              s_mov_b32 s{SRD_WS+3}, 0x20000
              s_mov_b32 s{SRD_DBG}, s{P_DBG}
              s_mov_b32 s{SRD_DBG+1}, s{P_DBG+1}
              s_mov_b32 s{SRD_DBG+2}, 256
              s_mov_b32 s{SRD_DBG+3}, 0x20000""")
        T = k.newlabel("L_tk")
        k(f"""s_lshl_b32 s{S_T}, s{S_G}, 2
              s_lshr_b32 s{S_T}, {sum(g << (4*x) for x, g in enumerate(self.opt.get("tw", (0, 12, 13, 14, 2, 4, 8, 10))))}, s{S_T}
              s_and_b32 s{S_T}, s{S_T}, 15
              s_lshl_b32 s{S_T}, s{S_T}, 4
              v_mov_b32 v14, s{S_T}
              v_mov_b32 v15, 1
              s_cmp_lg_u32 s{S_W}, 0
              s_cbranch_scc1 {T}
              s_cmp_ge_u32 s{S_T}, 192                       ; groups that are needed later ask later
              s_cbranch_scc1 {T}
              s_mov_b64 exec, 1
              buffer_atomic_add v15, v14, {DBG}, 0 offen sc0
              s_mov_b64 exec, -1""")
        k.label(T)
        self.init_ws()
        T = k.newlabel("L_tk")
        k(f"""s_cmp_lg_u32 s{S_W}, 0
              s_cbranch_scc1 {T}
              s_mov_b64 exec, 1
              s_sub_u32 s{S_T}, s{S_G}, 1
              s_cmp_gt_u32 s{S_T}, 2
              s_cbranch_scc1 {T}x
              s_waitcnt vmcnt(8)
              buffer_atomic_add v15, v14, {DBG}, 0 offen sc0
              s_waitcnt vmcnt(0)
              {T}x:
              v_mov_b32 v14, {L_MISC}
              s_waitcnt vmcnt(10)
              ds_write_b32 v14, v15
              s_mov_b64 exec, -1
              s_waitcnt lgkmcnt(0)""")
        k.label(T)
        k(f"""s_barrier
              v_mov_b32 v14, {L_MISC}
              ds_read_b32 v2, v14
              s_waitcnt lgkmcnt(0)
              v_readfirstlane_b32 s{S_H}, v2
              s_mov_b32 s{S_SLOW}, 0
              s_cmp_ge_u32 s{S_H}, 32
              s_cselect_b32 s{S_CNT}, 0x10001, 1
              s_and_b32 s{S_H}, s{S_H}, 31
              s_lshl_b32 s{S_LW}, s{S_W}, 10
              s_cmp_eq_u32 s{S_W}, 0
              s_cselect_b32 s{S_OOB}, 0, 0x80000000
              s_mov_b32 s{S_ONE}, 0x3f803f80
              s_mov_b32 s{S_ONE+1}, 0x3f803f80
              s_mov_b32 s{S_SEG}, 0""")
        if self.opt.get("mix", 1):
            k(f"""s_bfe_u32 s{S_T}, s{S_G}, 0x10001
                  s_and_b32 s{S_T+1}, s{S_G}, 1
                  s_add_u32 s{S_T+2}, s{S_T}, 6
                  s_sub_u32 s{S_T+3}, 5, s{S_T+1}
                  s_cmp_ge_u32 s{S_H}, 16
                  s_cselect_b32 s{S_T+2}, s{S_T+2}, s{S_T+3}
                  s_cselect_b32 s{S_T+1}, s{S_T+1}, s{S_T}
                  s_and_b32 s{S_T+3}, s{S_H}, 15
                  s_lshl4_add_u32 s{S_T+1}, s{S_T+1}, s{S_T+3}
                  s_cmp_ge_u32 s{S_G}, 4
                  s_cselect_b32 s{S_G}, s{S_T+2}, s{S_G}
                  s_cselect_b32 s{S_H}, s{S_T+1}, s{S_H}""")
        if self.stamps:
            k(f"""s_lshl_b32 s{S_EV}, s{S_G}, 5
                  s_add_u32 s{S_EV}, s{S_EV}, s{S_H}
                  s_lshl_b32 s{S_EV}, s{S_EV}, 12
                  s_add_u32 s{S_EV}, s{S_EV}, {STAMP_OFF + MB}""")

    def init_ws(self):
        k = self.k
        D = k.newlabel("L_m0")
        self.srd(P_MEM0, 8192)
        k(f"""s_cmp_ge_u32 s2, 2
              s_cbranch_scc1 {D}
              s_lshl_b32 s{S_T}, s2, 2
              s_add_u32 s{S_T}, s{S_T}, s{S_W}          ; ks
              v_bfe_u32 v2, v{V_LANE}, 2, 2
              v_and_b32 v3, 1, v{V_LANE}
              v_lshl_add_u32 v2, v2, 1, v3               ; m
              v_lshlrev_b32 v2, 10, v2
              v_lshrrev_b32 v3, 4, v{V_LANE}
              v_lshl_add_u32 v2, v3, 5, v2               ; + ga*32
              v_and_b32 v3, 2, v{V_LANE}
              v_lshl_add_u32 v2, v3, 1, v2               ; + hi*4
              s_lshl_b32 s{S_T+1}, s{S_T}, 7             ; ks*128""")
        for q in range(4):
            k(f"buffer_load_dword v{64+q}, v2, {SA}, s{S_T+1} offen offset:{8*q}")
        k.label(D)
        self.srd(P_X, 2048 * 1024)
        k(f"""s_lshl_b32 s{S_T}, s2, 3
              s_lshl_b32 s{S_T+9}, s{S_W}, 1
              s_add_u32 s{S_T}, s{S_T}, s{S_T+9}
              s_lshl_b32 s{S_T+9}, s{S_T}, 10
              buffer_load_dwordx4 v[24:27], v{V_L16}, {SA}, s{S_T+9} offen
              buffer_load_dwordx4 v[28:31], v{V_L16}, {SA}, s{S_T+9} offen offset:1024""")
        k(f"""s_lshl_b32 s{S_T}, s2, 12
              s_lshl_b32 s{S_T+1}, s{S_W}, 10
              s_add_u32 s{S_T}, s{S_T}, s{S_T+1}
              v_add_u32 v2, s{S_T}, v{V_L16}
              v_mov_b32 v4, -1
              v_mov_b32 v5, -1
              v_mov_b32 v6, -1
              v_mov_b32 v7, -1
              v_mov_b32 v8, 0
              v_mov_b32 v9, 0
              v_mov_b32 v10, 0
              v_mov_b32 v11, 0""")
        k(f"""v_cmp_gt_u32 vcc, {512*KB}, v2
              v_mov_b32 v3, {PC_OFF[0] - 512*KB}
              v_mov_b32 v12, {MEM_OFF[0] + 8*KB}
              v_cndmask_b32 v3, v3, v12, vcc
              v_add_u32 v3, v3, v2""")
        for c in range(3):
            k(f"s_mov_b32 s{S_T}, {c*MB}")
            k(f"buffer_store_dwordx4 v[4:7], v3, {WS}, s{S_T} offen sc1")
        for i in range(2):
            k(f"s_mov_b32 s{S_T}, {X1_OFF[0] + i*MB}")
            k(f"buffer_store_dwordx4 v[4:7], v2, {WS}, s{S_T} offen sc1")
        k(f"""v_add_u32 v3, {MEMX_OFF + 8*KB - 512*KB}, v2
              v_mov_b32 v12, 0x80000000
              v_cndmask_b32 v3, v3, v12, vcc
              buffer_store_dwordx4 v[4:7], v3, {WS}, 0 offen sc1
              v_cmp_gt_u32 vcc, {NPAGES*2*KB}, v2
              v_lshrrev_b32 v3, 11, v2
              v_lshlrev_b32 v3, 13, v3
              v_and_b32 v13, 0x7ff, v2
              v_add_u32 v3, v3, v13
              v_add_u32 v3, {PG_OFF}, v3
              v_cndmask_b32 v3, v12, v3, vcc
              buffer_store_dwordx4 v[8:11], v3, {WS}, 0 offen sc1
              v_add_u32 v3, {HPS_OFF - 256*KB}, v2
              v_lshrrev_b32 v13, 16, v2
              v_cmp_eq_u32 vcc, 4, v13
              v_cndmask_b32 v3, v12, v3, vcc
              buffer_store_dwordx4 v[4:7], v3, {WS}, 0 offen sc1""")

    def init_rows(self, younger):
        k = self.k
        D = k.newlabel("L_m0")
        t = S_T + 10
        k(f"""s_cmp_eq_u32 s{S_CNT}, 0
              s_cbranch_scc1 {D}
              s_waitcnt vmcnt({8 + younger})""")
        assert H_OFF[0] == 0
        for i in range(2):
            self.unpack8(32, 24 + 4 * i)
            self.layernorm(32, 40 + 4 * i, 48)
            k(f"buffer_store_dwordx4 {vr(40+4*i,4)}, v{V_L16}, {WS}, s{S_T+9} offen offset:{1024*i} sc1")
        k(f"""s_cmp_ge_u32 s2, 2
              s_cbranch_scc1 {D}""")
        self.mfrag_voff(12, 13)
        k(f"""s_lshl_b32 s{t}, s2, 2
              s_add_u32 s{t}, s{t}, s{S_W}          ; ks
              s_and_b32 s{t+1}, s{t}, 1
              s_lshl_b32 s{t+1}, s{t+1}, 8
              s_and_b32 s{t+2}, s{t}, 2
              s_lshl_b32 s{t+2}, s{t+2}, 6
              s_add_u32 s{t+1}, s{t+1}, s{t+2}
              s_and_b32 s{t+2}, s{t}, 4
              s_lshl_b32 s{t+2}, s{t+2}, 10
              s_add_u32 s{t+1}, s{t+1}, s{t+2}""")
        for off in (MEM_OFF[0], MEM_OFF[1], MEMX_OFF):
            k(f"s_add_u32 s{t+2}, s{t+1}, {off}")
            k(f"buffer_store_dwordx4 v[64:67], v12, {WS}, s{t+2} offen sc1")
        k.label(D)

    def mfrag_voff(self, dst, t):
        self.k(f"""v_lshrrev_b32 v{dst}, 3, v{V_LANE}
                   v_lshlrev_b32 v{dst}, 9, v{dst}
                   v_and_b32 v{t}, 7, v{V_LANE}
                   v_lshl_add_u32 v{dst}, v{t}, 4, v{dst}""")

    def load_qkv(self):
        k = self.k
        GA, RE, RO, TE, TO = 2, 3, 4, 5, 6
        sB, sL, sR, sG = S_T + 2, S_T + 3, S_T + 7, S_T + 4
        k(f"""v_lshrrev_b32 v{GA}, 2, v{V_LANE}
              v_lshrrev_b32 v{RE}, 5, v{V_LANE}
              v_xor_b32 v{GA}, v{GA}, v{RE}                  ; place p holds row p ^ (p >> 3 & 1)
              v_lshlrev_b32 v{GA}, 13, v{GA}
              v_and_b32 v{RE}, 3, v{V_LANE}
              v_lshl_add_u32 v{GA}, v{RE}, 4, v{GA}
              v_and_b32 v{RE}, 15, v{V_LANE}
              v_lshlrev_b32 v{RE}, 2, v{RE}
              v_lshrrev_b32 v{RO}, 4, v{V_LANE}
              v_lshl_add_u32 v{RE}, v{RO}, 9, v{RE}
              v_and_b32 v{RO}, 1, v{RO}
              v_lshl_add_u32 v{RE}, v{RO}, 6, v{RE}
              s_lshl_b32 s{sL}, s{S_W}, 15
              s_cmp_lt_u32 s{S_G}, 3
              s_cselect_b32 s{sR}, s{S_W}, 0
              s_lshl_b32 s{S_T}, s{sR}, 12
              s_add_u32 s{S_T}, s{sL}, s{S_T}
              v_add_u32 v{RE}, s{S_T}, v{RE}
              v_xor_b32 v{RO}, 64, v{RE}
              s_lshl_b32 s{sB}, s{S_H}, 8
              s_lshl_b32 s{S_T}, s{S_W}, 6
              s_add_u32 s{sB}, s{sB}, s{S_T}
              s_mov_b32 s{S_T+5}, 0x05040100
              s_mov_b32 s{S_T+6}, 0x07060302""")
        mats = (("k", P_WK), ("v", P_WV), ("q", P_WQ))
        def issue(n):
            if n % 16 == 0:
                self.srd(mats[n // 16][1], 4 * MB)
            kk = n % 16
            k(f"""s_xor_b32 m0, s{sL}, {kk * 2048}
                  s_xor_b32 s{sG}, s{sB}, {kk * 32 * 8192}
                  buffer_load_dwordx4 v{GA}, {SA}, s{sG} offen lds
                  s_add_u32 m0, m0, 1024
                  s_add_u32 s{sG}, s{sG}, {16 * 8192}
                  buffer_load_dwordx4 v{GA}, {SA}, s{sG} offen lds""")
        def reads(n):
            kk = n % 16; b = 96 + 8 * (n & 1)
            k(f"""v_xor_b32 v{TE}, {kk * 2048}, v{RE}
                  v_xor_b32 v{TO}, {kk * 2048}, v{RO}
                  ds_read2_b32 {vr(b,2)}, v{TE} offset1:32
                  ds_read2_b32 {vr(b+4,2)}, v{TO} offset1:32
                  ds_read2_b32 {vr(b+2,2)}, v{TE} offset0:64 offset1:96
                  ds_read2_b32 {vr(b+6,2)}, v{TO} offset0:64 offset1:96""")
        for n in range(16):
            issue(n)
        self.init_rows(32)
        for n in range(48):
            m = mats[n // 16][0]; kk = n % 16; b = 96 + 8 * (n & 1)
            if n == 40:
                NW, J_ = k.newlabel("L_lw"), k.newlabel("L_lj")
                self.load_wo(0, skip=f"""s_cmp_ge_u32 s{S_G}, 3
                                         s_cbranch_scc1 {NW}""")
                k(f"""s_waitcnt vmcnt(16)
                      s_branch {J_}
                      {NW}:
                      s_waitcnt vmcnt(0)
                      {J_}:""")
            elif n % 8 == 0:
                k("s_waitcnt vmcnt(16)")
            if n == 8:
                self.arrive()
            if n % 8 == 0:
                reads(n)
            if n % 8 < 7:
                reads(n + 1)
            k(f"s_waitcnt lgkmcnt({4 if n % 8 < 7 else 0})")
            if n % 8 == 7 and n + 9 < 48:
                for x in range(n + 9, n + 17):
                    issue(x)
            for t in range(2):
                for q in range(4):
                    d = (0 if m == "q" else 128) + ((kk >> 1) * 2 + t) * 8 + 4 * (kk & 1) + q
                    k(f"v_perm_b32 v{d if m == 'v' else 112+4*t+q}, v{b+4+q}, v{b+q}, s{S_T+5+t}")
            if m != "v":
                for t in range(2):
                    for q in range(4):
                        d = (0 if m == "q" else 128) + ((kk >> 1) * 2 + t) * 8 + 4 * (kk & 1) + q
                        k(f"v_accvgpr_write_b32 a{d}, v{112+4*t+q}")

    def wo_slot(self, dst, c, g, t):
        self.k(f"""v_and_b32 v{dst}, 1, v{g}
                   v_xor_b32 v{dst}, v{dst}, v{c}
                   v_and_b32 v{dst}, 3, v{dst}
                   v_lshrrev_b32 v{t}, 2, v{c}
                   v_lshl_add_u32 v{dst}, v{dst}, 2, v{t}
                   v_lshl_add_u32 v{dst}, v{g}, 4, v{dst}
                   v_lshlrev_b32 v{dst}, 4, v{dst}""")

    def load_wo(self, part, extra=0, skip=""):
        k = self.k
        GA, WE, WO_ = 92, 93, 94
        NB = 4
        if part == 0:
            self.srd(P_WO, 4 * MB)
            k(f"""v_and_b32 v{GA}, 3, v{V_LANE}
                  v_lshlrev_b32 v{WE}, 4, v{GA}
                  v_bfe_u32 v{WO_}, v{V_LANE}, 2, 2
                  v_lshl_add_u32 v{GA}, v{WO_}, 12, v{WE}
                  v_lshl_add_u32 v{WE}, v{WO_}, 8, v{WE}
                  v_and_b32 v{WO_}, 1, v{WO_}
                  v_lshl_add_u32 v{WE}, v{WO_}, 6, v{WE}
                  v_lshrrev_b32 v{WO_}, 4, v{V_LANE}
                  v_lshl_add_u32 v{GA}, v{WO_}, 8, v{GA}
                  v_lshl_add_u32 v{WE}, v{WO_}, 13, v{WE}
                  s_lshl_b32 s{S_T}, s{S_W}, 15
                  v_add_u32 v{WE}, s{S_T}, v{WE}
                  v_xor_b32 v{WO_}, 64, v{WE}
                  s_lshl_b32 s{S_T}, s{S_H}, 17
                  s_lshl_b32 s{S_T+1}, s{S_W}, 6
                  s_add_u32 s{S_T}, s{S_T}, s{S_T+1}
                  v_add_u32 v{GA}, s{S_T}, v{GA}
                  {skip}""")
        def issue(i):
            k(f"s_mov_b32 s{S_T}, {i * 16 * 1024}")
            for j in range(4):
                k(f"buffer_load_dwordx4 {vr(24+16*(i%NB)+4*j,4)}, v{GA}, {SA}, s{S_T} offen offset:{j*1024}")
        for i in range(NB if part == 0 else 0):
            issue(i)
        for i in {0: (), 1: range(8), 2: range(8 - NB), 3: range(8 - NB, 8)}[part]:
            b = 24 + 16 * (i % NB)
            k(f"s_waitcnt vmcnt({min(7 - i, NB - 1) * 4 + extra})")
            for x in range(4):
                for y in range(x + 1, 4):
                    k(f"v_swap_b32 v{b+4*x+y}, v{b+4*y+x}")
            for q in range(4):
                k(f"ds_write_b128 v{WO_ if q & 1 else WE}, {vr(b+4*q,4)} offset:{i*1024 + (q>>1)*128}")
            if i + NB < 8:
                k("s_waitcnt lgkmcnt(0)")
                issue(i + NB)

    def qkv_base(self, dst, which):
        self.k(f"""s_lshl_b32 s{dst}, s{S_SEG}, 5
                   s_add_u32 s{dst}, s{dst}, s{S_H}
                   s_mul_i32 s{dst}, s{dst}, {24*KB}
                   s_add_u32 s{dst}, s{dst}, {QKV_OFF[which] if isinstance(which, int) else which}""")

    def t1_dma(self, s_h, quarters, voff=None, reg=0, sb=S_LW):
        voff = voff or (self.THD, self.THD)
        out = []
        for qi in quarters:
            for u in range(2):
                out.append(f"s_add_u32 m0, s{sb}, {self.LH + reg*32*KB + qi*8192 + u*4096 - qi*256}")
                out.append(f"buffer_load_dwordx4 v{voff[u]}, {WS}, s{s_h+u} offen offset:{qi*256} sc1 lds")
        return out

    def t1_src(self, dst, seg, hreg):
        self.k(f"""s_lshl_b32 s{dst}, s{seg}, 15
                   s_add_u32 s{dst}, s{dst}, {H_OFF[hreg]}
                   s_add_u32 s{dst+1}, s{dst}, {16*KB}""")

    def flag_store(self, s_off, loc):
        self.k(f"""s_or_b32 s{s_off}, s{s_off}, s{S_OOB}
                   buffer_store_dword v{self.TOB}, off, {WS}, s{s_off}{loc}""")

    def t1(self, which, s_h, voff=None, pre=0, nxt=None, s_flag=None, extra=(), x_flag=None, qloc=False, s_keep=0, rot=False):
        k = self.k
        ACC = 24; RING = (72, 80, 108)
        aq = lambda t, u: ACC + (t * 2 + u) * 4
        ak = lambda t, u: ACC + 16 + (t * 2 + u) * 4
        av = lambda t, u: ACC + 32 + (t * 2 + u) * 4
        first, later = ((0, 1), (2, 3)) if rot else ((0, 1, 2), (3,))
        if not pre:
            for x in self.t1_dma(s_h, first, voff):
                k(x)
        self.qkv_base(S_T + 2, which)
        k(f"""s_add_u32 s{S_T+5}, s{S_T+2}, s{S_LW}      ; K u0
              s_add_u32 s{S_T+6}, s{S_T+5}, 4096         ; K u1
              s_add_u32 s{S_T+7}, s{S_T+5}, {16*KB}      ; Q u0
              s_add_u32 s{S_T+8}, s{S_T+5}, {20*KB}      ; Q u1
              s_add_u32 s{S_T+9}, s{S_T+5}, s{S_LW}
              s_add_u32 s{S_T+9}, s{S_T+9}, {8*KB}       ; V""")
        if rot:
            rd = lambda kk: [f"ds_read_b128 {vr(RING[kk%3]+4*u,4)}, v{self.THR+(kk&7)} offset:{(kk>>3)*16384+u*4096}" for u in range(2)]
        else:
            rd = lambda kk: [f"ds_read_b128 {vr(RING[kk%3]+4*u,4)}, v{self.THR+(kk&3)} offset:{(kk>>2)*8192+u*4096}" for u in range(2)]
        k(f"s_waitcnt vmcnt({(0 if rot else 4) + pre})")
        k("s_barrier")
        self.mark(self.mk + 0)
        for x in rd(0) + rd(1):
            k(x)
        for x in self.t1_dma(s_h, later, voff):
            k(x)
        for x in extra:
            k(x)
        ne = len(extra); nl = 2 * len(later)
        side = []
        for kk in range(16):
            b = RING[kk % 3]
            n = kk + 2
            last_q = (n == 8) if rot else (n == 12)
            if last_q:
                k(f"s_waitcnt vmcnt({1 if (s_flag and not rot) else 0})")
                k("s_barrier")
                if x_flag:
                    self.flag_store(x_flag, " sc1")
                if s_flag and rot:
                    self.flag_store(s_flag, " sc1")
            elif not rot and n in (4, 8):
                k(f"s_waitcnt vmcnt({(2 if n == 4 else 0) + pre + nl + ne})")
                k("s_barrier")
            if kk == 7 and s_flag and not rot:
                assert not extra
                k(f"s_waitcnt vmcnt({nl + s_keep})")
                k("s_barrier")
                self.flag_store(s_flag, " sc1")
            if kk == 12 and nxt:
                k("s_barrier")
                side = list(nxt)
            k(f"s_waitcnt lgkmcnt({2 if kk < 15 else 0})")
            ks, hf = kk >> 1, kk & 1
            fill = rd(n) if n < 16 else []
            i = 0
            for t in range(2):
                for u in range(2):
                    h = vr(b + 4 * u, 4)
                    for acc, w, tr in ((ak, wk, True), (av, wv, False), (aq, wq, True)):
                        d = vr(acc(t, u), 4)
                        c = "0" if kk == 0 else d
                        a_, b_ = (w(ks, t, hf), h) if tr else (h, w(ks, t, hf))
                        k(f"v_mfma_f32_16x16x32_bf16 {d}, {a_}, {b_}, {c}")
                        i += 1
                        if fill and i % 2 == 1:
                            k(fill.pop(0))
                        elif side:
                            k(side.pop(0))
        assert not side
        self.mark(self.mk + 3)
        if which == 0:
            k(f"""s_lshl_b32 s{S_T}, s{S_SEG}, 5
                  s_add_u32 s{S_T}, s{S_T}, s{S_H}
                  s_lshl_b32 s{S_T}, s{S_T}, 12
                  s_add_u32 s{S_T}, s{S_T}, s{S_LW}
                  s_add_u32 s{S_T}, s{S_T}, {KVM_OFF[0]}
                  v_mov_b64 v[120:121], -1
                  v_mov_b64 v[122:123], -1
                  buffer_store_dwordx4 v[120:123], v{V_L16}, {WS}, s{S_T} offen sc1""")
        for i, (acc, so) in enumerate(((ak, S_T + 5), (aq, S_T + 7))):
            for u in range(2):
                p = RING[2 * i] + u * 4
                for r in range(4):
                    k(f"v_cvt_pk_bf16_f32 v{p+r}, v{acc(0,u)+r}, v{acc(1,u)+r}")
                k(f"buffer_store_dwordx4 {vr(p,4)}, v{V_L16}, {WS}, s{so+u} offen{'' if (i == 1 and qloc) else ' sc1'}")
            if i == 0:
                for t in range(2):
                    p = RING[1] + t * 4
                    for u in range(2):
                        k(f"v_cvt_pk_bf16_f32 v{p+2*u}, v{av(t,u)}, v{av(t,u)+1}")
                        k(f"v_cvt_pk_bf16_f32 v{p+2*u+1}, v{av(t,u)+2}, v{av(t,u)+3}")
                    k(f"buffer_store_dwordx4 {vr(p,4)}, v{V_L16}, {WS}, s{S_T+9} offen offset:{t*1024} sc1")

    def t1b(self, which, s_h, landed=False, reg=0, s_flag=None, voff=None, nxt=(), early=True, sb=S_LW, peek=None, lead=()):
        k = self.k
        HB = 104; ND = 3
        aq = lambda t, u: 88 + (t * 2 + u) * 4
        ak = lambda t, u: 24 + (t * 2 + u) * 4
        av = lambda t, u: 40 + (t * 2 + u) * 4
        big = self.LH != L_H
        if not landed:
            for x in self.t1_dma(s_h, (0, 1, 2, 3) if big else (0, 1, 2), voff, reg, sb):
                k(x)
        np_ = 0
        pk0 = []
        if peek and landed:
            pk0 = [x.strip() for x in peek[0].split("\n")]
        elif peek:
            k(peek[0]); np_ = 1
        n0_ = len(k.lines)
        self.qkv_base(S_T + 2, which)
        k(f"""s_add_u32 s{S_T+5}, s{S_T+2}, s{S_LW}      ; K u0
              s_add_u32 s{S_T+6}, s{S_T+5}, 4096         ; K u1
              s_add_u32 s{S_T+7}, s{S_T+5}, {16*KB}      ; Q u0
              s_add_u32 s{S_T+8}, s{S_T+5}, {20*KB}      ; Q u1
              s_add_u32 s{S_T+9}, s{S_T+5}, s{S_LW}
              s_add_u32 s{S_T+9}, s{S_T+9}, {8*KB}       ; V""")
        addr = list(lead) + k.lines[n0_:]; del k.lines[n0_:]
        rd = lambda n: [f"ds_read_b128 {vr(HB+(n%ND)*8+4*u,4)}, v{self.THR+(n&3)} offset:{reg*32*KB+((n&15)>>2)*8192+u*4096}" for u in range(2)]
        if not landed:
            k(f"s_waitcnt vmcnt({(6 if big else 4) + np_})")
            k("s_barrier")
        self.mark(self.mk + 0)
        for x in rd(0) + rd(1):
            k(x)
        if not landed and not big:
            for x in self.t1_dma(s_h, (3,), voff, reg):
                k(x)
        first = []
        if which < 2:
            first += [f"s_lshl_b32 s{S_T}, s{S_SEG}, 5\ns_add_u32 s{S_T}, s{S_T}, s{S_H}\ns_lshl_b32 s{S_T}, s{S_T}, 12",
                      f"s_add_u32 s{S_T}, s{S_T}, s{S_LW}\ns_add_u32 s{S_T}, s{S_T}, {KVM_OFF[which]}"]
            first += [f"v_mov_b64 v[72:73], -1\nv_mov_b64 v[74:75], -1"]
            first += [f"buffer_store_dwordx4 v[72:75], v{V_L16}, {WS}, s{S_T} offen sc1"]
            if which:
                first += [f"s_add_u32 s{S_T}, s{S_T}, {KVM_OFF[2] - KVM_OFF[1]}", first[-1]]
        first = ((first + [""] * 6)[:max(6, len(first))] + list(nxt)) if peek else list(nxt) + first
        look = list(peek[1]) if peek else []
        side = []
        P = 56
        for u in range(2):
            for r in range(4):
                side.append(f"v_cvt_pk_bf16_f32 v{P+4*u+r}, v{ak(0,u)+r}, v{ak(1,u)+r}")
            side.append(f"buffer_store_dwordx4 {vr(P+4*u,4)}, v{V_L16}, {WS}, s{S_T+5+u} offen sc1")
        for t in range(2):
            p = P + 8 + t * 4
            for u in range(2):
                side.append(f"v_cvt_pk_bf16_f32 v{p+2*u}, v{av(t,u)}, v{av(t,u)+1}")
                side.append(f"v_cvt_pk_bf16_f32 v{p+2*u+1}, v{av(t,u)+2}, v{av(t,u)+3}")
            side.append(f"buffer_store_dwordx4 {vr(p,4)}, v{V_L16}, {WS}, s{S_T+9} offen offset:{t*1024} sc1")
        if peek:
            side += [""] * self.opt.get("pk2", 4) + [x.strip() for x in peek[0].split("\n")]
        for n in range(32):
            kk = n & 15
            b = HB + (n % ND) * 8
            m = n + 2
            if m in (4, 8, 12) and (not landed or (m == 12 and s_flag)):
                k(f"s_waitcnt vmcnt({(12 - m) // 2 + np_})" if m < 12 else "s_waitcnt vmcnt(0) lgkmcnt(0)" if peek else "s_waitcnt vmcnt(0)")
                k("s_barrier")
                if m == 12 and s_flag:
                    self.flag_store(s_flag, " sc1")
                if m == 12 and peek:
                    k(peek[2])
            if n in (9, 11, 16):
                self.mark(self.mk + {9: 1, 11: 2, 16: 3}[n])
            if not (peek and m == 12):
                k(f"s_waitcnt lgkmcnt({2 if n < 31 else 0})")
            ks, hf = kk >> 1, kk & 1
            fill = rd(m) if m < 32 else []
            i = 0
            cur = first if 10 <= n < 16 else (side if n > 16 else look if n == 9 else pk0 if n == self.opt.get("pkat", 5) else addr if n < 4 else [])
            for t in range(2):
                for u in range(2):
                    h = vr(b + 4 * u, 4)
                    for acc, w, tr in (((ak, wk, True), (av, wv, False)) if n < 16 else ((aq, wq, True),)):
                        d = vr(acc(t, u), 4)
                        c = "0" if kk == 0 else d
                        a_, b_ = (w(ks, t, hf), h) if tr else (h, w(ks, t, hf))
                        k(f"v_mfma_f32_16x16x32_bf16 {d}, {a_}, {b_}, {c}")
                        i += 1
                        if fill and i % 2 == 1:
                            k(fill.pop(0))
                        elif cur and (n < 16 or not cur[0].startswith("v_")):
                            k(cur.pop(0))
                        if n > 16 or (n == 16 and i > 2):
                            for _ in range(2):
                                if side and side[0].startswith("v_"):
                                    k(side.pop(0))
        assert not first and not side and not look and not addr, (len(first), len(side))
        self.mark(self.mk + 4)
        for u in range(2):
            for r in range(4):
                k(f"v_cvt_pk_bf16_f32 v{HB+4*u+r}, v{aq(0,u)+r}, v{aq(1,u)+r}")
        for u in range(2):
            k(f"buffer_store_dwordx4 {vr(HB+4*u,4)}, v{V_L16}, {WS}, s{S_T+7+u} offen sc1")
        if early:
            self.page(S_T + 3, F_KV[which])
            self.flag_set(S_T + 3, " sc1", keep=3 if peek else 2)
        else:
            k(f"s_waitcnt vmcnt({7 if peek else 6})")
            k("s_barrier")
        self.mark(self.mk + 5)
        self.flush()

    def make_sel(self, dst, t):
        k = self.k
        k(f"""v_and_b32 v{t}, 15, v{V_LANE}
              v_and_b32 v{t+1}, 1, v{V_LANE}
              v_lshlrev_b32 v{t+1}, 4, v{t+1}
              v_mov_b32 v{t+2}, 0x3f80
              v_lshlrev_b32 v{t+2}, v{t+1}, v{t+2}
              v_lshrrev_b32 v{t}, 1, v{t}""")
        for q in range(4):
            k(f"v_cmp_eq_u32 vcc, {q}, v{t}")
            k(f"v_cndmask_b32 v{dst+q}, 0, v{t+2}, vcc")

    def softmax(self, S, P, t, fill=None, half=False):
        k = self.k
        fill = list(fill or [])
        def f(n=1):
            for _ in range(n):
                if fill:
                    k(fill.pop(0))
        if half:
            k(f"""v_max3_f32 v{t}, v{S}, v{S+1}, v{S+2}
                  v_max3_f32 v{t+1}, v{S+3}, v{S+10}, v{S+11}""")
        else:
            k(f"""v_max3_f32 v{t}, v{S}, v{S+1}, v{S+2}
                  v_max3_f32 v{t+1}, v{S+3}, v{S+4}, v{S+5}
                  v_max3_f32 v{t}, v{S+6}, v{S+7}, v{t}
                  v_max3_f32 v{t+1}, v{S+10}, v{S+11}, v{t+1}""")
        k(f"""v_max_f32 v{t}, v{t}, v{t+1}
              v_max_f32 v{t+1}, v{t}, v{t+1}""")
        f()
        k(f"""v_permlane16_swap_b32 v{t}, v{t+1}
              v_max_f32 v{t}, v{t}, v{t+1}
              v_max_f32 v{t+1}, v{t}, v{t+1}""")
        f()
        k(f"""v_permlane32_swap_b32 v{t}, v{t+1}
              v_max_f32 v{t}, v{t}, v{t+1}
              v_mul_f32 v{t}, s{S_C}, v{t}""")
        order = [0, 1, 2, 3, 10, 11] if half else [0, 1, 2, 3, 4, 5, 6, 7, 10, 11]
        k(f"v_fma_f32 v{S+order[0]}, v{S+order[0]}, s{S_C}, -v{t}")
        for n, i in enumerate(order):
            if n + 1 < len(order):
                j = order[n + 1]
                k(f"v_fma_f32 v{S+j}, v{S+j}, s{S_C}, -v{t}")
            k(f"v_exp_f32 v{S+i}, v{S+i}")
        for q in range(2 if half else 4):
            k(f"v_cvt_pk_bf16_f32 v{P+q}, v{S+2*q}, v{S+2*q+1}")
        k(f"v_cvt_pk_bf16_f32 v{P+4}, v{S+10}, v{S+11}")
        f(len(fill))

    def chain(self, c):
        k = self.k
        opt = self.opt
        IDX, IDX2, QKW, QKR0, QKR1, OW, OR, PST, MST, WOB, OB, MV = 2, 3, 4, 5, 6, 7, 8, 9, 10, 11, 55, 13
        MX, CK = 12, 123
        SEL, TCH, STS = 18, 22, 23
        M, KX, VX, QK, VA, T = 24, 56, 88, 96, 112, 120
        sMEM, sPC, sRD, sKV, sKVM, sRST, sM2, sU, sNAN, sW2, sFAIL, sPG, sOK, sREC, sFK, sFKB = (S_T + i for i in range(8, 24))
        sMX, sMXB = S_A, S_B
        sKF, sOK2, sJ, sO = 18, 19, 20, 21
        sPUB, sFK1 = 54, 55
        reg = min(c, 1)
        k(f"""v_and_b32 v{T}, 15, v{V_LANE}          ; c
              v_lshrrev_b32 v{T+1}, 4, v{V_LANE}     ; g
              v_and_b32 v{T+2}, 2, v{V_LANE}
              v_cmp_eq_u32 vcc, 0, v{T+2}
              v_mov_b32 v{IDX}, 0xeeee
              v_mov_b32 v{T+3}, 0x4444
              v_cndmask_b32 v{IDX}, v{IDX}, v{T+3}, vcc
              v_and_b32 v{T+2}, 1, v{V_LANE}
              v_cmp_eq_u32 vcc, 0, v{T+2}
              v_mov_b32 v{IDX2}, 0xdddd
              v_mov_b32 v{T+3}, 0x8888
              v_cndmask_b32 v{IDX2}, v{IDX2}, v{T+3}, vcc""")
        k(f"""v_lshrrev_b32 v{T+2}, 1, v{T}           ; b
              v_bfe_u32 v{T+3}, v{T}, 2, 1
              v_xor_b32 v{T+3}, v{T+3}, v{T+2}
              v_lshlrev_b32 v{QKW}, 7, v{T+3}
              v_and_b32 v{T+3}, 1, v{T}
              v_lshl_add_u32 v{QKW}, v{T+3}, 6, v{QKW}
              v_xor_b32 v{T+3}, v{T+1}, v{T+2}
              v_and_b32 v{T+3}, 3, v{T+3}
              v_lshl_add_u32 v{QKW}, v{T+3}, 4, v{QKW}
              s_lshl_b32 s{S_T}, s{S_W}, 10
              s_add_u32 s{S_T}, s{S_T}, {L_QK}
              v_add_u32 v{QKW}, s{S_T}, v{QKW}""")
        for hh, R in ((0, QKR0), (1, QKR1)):
            k(f"""v_lshlrev_b32 v{T+2}, 1, v{T+1}
                  v_add_u32 v{T+2}, {hh}, v{T+2}          ; b
                  v_and_b32 v{T+3}, 1, v{T+1}
                  v_xor_b32 v{T+3}, v{T+3}, v{T+2}
                  v_lshlrev_b32 v{R}, 7, v{T+3}
                  v_bfe_u32 v{T+3}, v{T}, 3, 1
                  v_lshl_add_u32 v{R}, v{T+3}, 6, v{R}
                  v_xor_b32 v{T+3}, v{T}, v{T+2}
                  v_and_b32 v{T+3}, 3, v{T+3}
                  v_lshl_add_u32 v{R}, v{T+3}, 4, v{R}
                  v_bfe_u32 v{T+3}, v{T}, 2, 1
                  v_lshl_add_u32 v{R}, v{T+3}, 3, v{R}
                  v_add_u32 v{R}, {L_QK}, v{R}""")
        k(f"""v_lshlrev_b32 v{OW}, 7, v{T+1}
              v_lshrrev_b32 v{T+2}, 1, v{T}
              v_lshl_add_u32 v{OR}, v{T+2}, 4, v{OW}
              v_add_u32 v{OR}, {L_O}, v{OR}
              v_lshrrev_b32 v{T+2}, 2, v{T}
              v_lshl_add_u32 v{OW}, v{T+2}, 5, v{OW}
              v_and_b32 v{T+2}, 1, v{T}
              v_lshl_add_u32 v{OW}, v{T+2}, 4, v{OW}
              v_and_b32 v{T+2}, 2, v{T}
              v_cmp_eq_u32 vcc, 0, v{T+2}
              s_lshl_b32 s{S_T}, s{S_W}, 9
              v_mov_b32 v{T+2}, 2048
              v_mov_b32 v{T+3}, s{S_T}
              v_cndmask_b32 v{T+2}, v{T+2}, v{T+3}, vcc
              v_add_u32 v{OW}, v{T+2}, v{OW}
              v_add_u32 v{OW}, {L_O}, v{OW}""")
        k(f"""v_lshrrev_b32 v{T+2}, 3, v{V_LANE}
              v_lshlrev_b32 v{PST}, 11, v{T+2}
              v_and_b32 v{T+2}, 7, v{V_LANE}
              v_lshl_add_u32 v{PST}, v{T+2}, 3, v{PST}
              s_lshl_b32 s{S_T}, s{S_W}, 14
              s_lshl_b32 s{S_T+1}, s{S_H}, 6
              s_add_u32 s{S_T}, s{S_T}, s{S_T+1}
              v_add_u32 v{PST}, s{S_T}, v{PST}""")
        k(f"""s_lshl_b32 s{sU}, s{S_W}, 5
              s_add_u32 s{sU}, s{sU}, s{S_H}
              s_bfe_u32 s{S_T}, s{sU}, 0x10003
              s_lshl_b32 s{S_T}, s{S_T}, 11              ; ((U>>3)&1)*4 lines*512
              s_and_b32 s{S_T+1}, s{sU}, 1
              s_lshl_b32 s{S_T+1}, s{S_T+1}, 10          ; (U&1)*2 lines
              s_add_u32 s{S_T}, s{S_T}, s{S_T+1}
              s_bfe_u32 s{S_T+1}, s{sU}, 0x10002
              s_lshl_b32 s{S_T+1}, s{S_T+1}, 9
              s_add_u32 s{S_T}, s{S_T}, s{S_T+1}
              s_bfe_u32 s{S_T+1}, s{sU}, 0x10001
              s_lshl_b32 s{S_T+1}, s{S_T+1}, 6
              s_add_u32 s{S_T}, s{S_T}, s{S_T+1}
              s_bfe_u32 s{S_T+1}, s{sU}, 0x10004
              s_lshl_b32 s{S_T+1}, s{S_T+1}, 8
              s_add_u32 s{S_T}, s{S_T}, s{S_T+1}
              s_bfe_u32 s{S_T+1}, s{sU}, 0x10005
              s_lshl_b32 s{S_T+1}, s{S_T+1}, 7
              s_add_u32 s{S_T}, s{S_T}, s{S_T+1}
              s_bfe_u32 s{S_T+1}, s{sU}, 0x10006
              s_lshl_b32 s{S_T+1}, s{S_T+1}, 12
              s_add_u32 s{S_T}, s{S_T}, s{S_T+1}
              v_and_b32 v{T+2}, 3, v{T}
              v_lshlrev_b32 v{MST}, 2, v{T+2}
              v_bfe_u32 v{T+2}, v{T}, 3, 1
              v_lshl_add_u32 v{MST}, v{T+2}, 4, v{MST}
              v_and_b32 v{T+2}, 1, v{T+1}
              v_lshl_add_u32 v{MST}, v{T+2}, 5, v{MST}
              v_add_u32 v{MST}, s{S_T}, v{MST}
              v_and_b32 v{T+3}, 36, v{V_LANE}
              v_mov_b32 v{T+2}, 0x80000000
              v_cmp_eq_u32 vcc, 0, v{T+3}
              v_cndmask_b32 v{MST}, v{T+2}, v{MST}, vcc
              s_lshl_b32 s{sU}, s{sU}, 11
              s_lshl_b32 s{sW2}, s{S_W}, 11
              s_mov_b32 s{sNAN}, 0xffc00000
              s_mov_b32 s{sFAIL}, 0""")
        self.wo_slot(WOB, T, T + 1, T + 2)
        k(f"""s_lshl_b32 s{S_T}, s{S_W}, 15
              v_add_u32 v{WOB}, s{S_T}, v{WOB}""")
        self.mfrag_voff(MV, T + 2)
        self.make_sel(SEL, T + 2)
        k(f"""s_and_b32 s{S_T}, s{S_W}, 1
              s_lshl_b32 s{S_T}, s{S_T}, 8
              s_and_b32 s{S_T+1}, s{S_W}, 2
              s_lshl_b32 s{S_T+1}, s{S_T+1}, 6
              s_add_u32 s{S_T}, s{S_T}, s{S_T+1}
              v_add_u32 v{MV}, s{S_T}, v{MV}""")
        k(f"""s_add_u32 s{S_T}, s{S_LW}, {L_MB}
              v_add_u32 v{MX}, s{S_T}, v{V_L16}
              v_mov_b64 v[14:15], {sr(S_ONE,2)}
              v_mov_b64 v[16:17], {sr(S_ONE,2)}""")
        k(f"""v_add_u32 v{TCH}, {MEM_OFF[c] + 2*8192}, v{MST}
              s_lshl_b32 s{sKF}, s{S_H}, 2
              s_add_u32 s{sKF}, s{sKF}, {PG_OFF + 8192 + F_KV[reg]}
              v_mov_b32 v1, s{S_C}
              s_mov_b32 s{sPC}, {PC_OFF[c]}
              s_add_u32 s{sRD}, s{sU}, {PC_OFF[c]}
              s_add_u32 s{sRST}, s{sU}, {PC_OFF[c] + 256*KB}
              s_mov_b32 s{sMX}, 0x40000000
              s_mov_b32 s{S_SEG}, 0""")
        sMK, sSCN = S_A, S_B
        if c == 2:
            k(f"""v_lshrrev_b32 v{T}, 2, v{V_L16}
                  v_add_u32 v{T}, {PG_OFF + (1+LOOK)*8192 + F_RKU - 128}, v{T}
                  v_or_b32 v{T}, s{S_OOB}, v{T}
                  s_mov_b64 vcc, -1
                  s_mov_b32 vcc_lo, 0
                  v_cndmask_b32 v{TCH}, v{TCH}, v{T}, vcc
                  s_or_b32 s{S_T}, s{S_OOB}, {PG_OFF + 8192 + F_J}
                  v_writelane_b32 v{TCH}, s{S_T}, 4
                  s_or_b32 s{S_T}, s{S_H}, s{S_W}
                  s_mov_b32 s{S_T}, {PG_OFF + F_RM}
                  s_cmov_b32 s{S_T}, 0x80000000
                  v_writelane_b32 v{TCH}, s{S_T}, 5
                  s_mov_b32 s{sMK}, 0
                  s_mov_b32 s{sSCN}, 0""")
        def keys_wait(seg, va, hi=None):
            L_ = k.newlabel("L_ckk")
            self.page(S_T + 3, F_RKU, seg=seg, head=False)
            k(f"""v_lshrrev_b32 v{va+1}, 2, v{V_L16}
                  v_and_b32 v{va+1}, 127, v{va+1}""")
            if hi:
                k(f"""v_lshrrev_b32 v{va}, 9, v{V_L16}
                      v_mul_u32_u24 v{va}, s{hi}, v{va}
                      v_add_u32 v{va+1}, v{va}, v{va+1}""")
            k.label(L_)
            k(f"""s_sleep {opt.get("slu", 1)}
                  buffer_load_dword v{va}, v{va+1}, {WS}, s{S_T+3} offen sc1""")
            self.spend()
            k(f"""s_waitcnt vmcnt(0)
                  v_cmp_eq_u32 vcc, 0, v{va}
                  s_cbranch_vccnz {L_}""")
        dma = [f"s_add_u32 m0, s{sW2}, {L_KX}",
               f"s_add_u32 s{S_T+1}, s{sKV}, {8*KB}",
               f"buffer_load_dwordx4 v{V_L16}, {WS}, s{sKV} offen sc1 lds",
               f"buffer_load_dwordx4 v{V_L16}, {WS}, s{sKV} offen offset:1024 sc1 lds",
               f"s_add_u32 m0, s{sW2}, {L_VX}",
               f"s_add_u32 s{sKV}, s{sKV}, {32*24*KB}",
               f"buffer_load_dwordx4 v{V_L16}, {WS}, s{S_T+1} offen sc1 lds",
               f"buffer_load_dwordx4 v{V_L16}, {WS}, s{S_T+1} offen offset:1024 sc1 lds"]
        def kv_read(extra=None, pos=0):
            k(f"v_add_u32 v{OB}, {L_KX}, v{V_L16}")
            for i in range(8):
                if extra and i == pos:
                    k(extra)
                k(f"ds_read_b128 {vr(KX+4*i,4)}, v{OB} offset:{((i&1)*4+(i>>1))*1024}")
            k(f"v_add_u32 v{CK}, s{sW2}, v{OB}")
            for t in range(2):
                k(f"ds_read_b128 {vr(VX+4*t,4)}, v{CK} offset:{L_VX-L_KX+t*1024}")
        def zero(b, n):
            for i in range(0, n, 2):
                k(f"v_mov_b64 {vr(b+i,2)}, 0")
        def mload(hf):
            return f"buffer_load_dwordx4 {vr(M+16*hf,4)}, v{MV}, {WS}, s{sM2 if hf else sMEM} offen sc1"
        chk2 = [f"v_max3_u32 v{CK}, v{M}, v{M+1}, v{M+2}", f"v_max3_u32 v{CK}, v{M+3}, v{M+16}, v{CK}",
                f"v_max3_u32 v{CK}, v{M+17}, v{M+18}, v{CK}", f"v_max_u32 v{CK}, v{M+19}, v{CK}",
                f"v_cmp_le_u32 vcc, s{sNAN}, v{CK}"]
        mwrite = lambda hf: f"ds_write_b128 v{MX}, {vr(M+16*hf,4)} offset:{hf*4096}"
        mread = lambda hf, i: f"ds_read_b128 {vr(M+16*hf+4*i,4)}, v{T+i-1} offset:{hf*4096}"
        LEAD, LEADB, JS = (k.newlabel(x) for x in ("L_cld", "L_clb", "L_cjs"))
        START, KVW, KVB, JW, JUMP = (k.newlabel(x) for x in ("L_cst", "L_ckw", "L_ckb", "L_cjw", "L_cjump"))
        first = reg
        if opt.get("pcwarm", 1) and not self.loc:
            for i, r_ in enumerate((sRD, sRST)):
                for j in range(2):
                    k(f"buffer_load_dwordx4 v[88:91], v{V_L16}, {WS}, s{r_} offen offset:{j*1024}")
            if c:
                k("s_waitcnt vmcnt(0)")
        SW = k.newlabel("L_csw")
        WO_ = 3072 - 512
        k.label(START)
        k(f"""s_cmp_lg_u32 s{S_W}, 0
              s_cbranch_scc1 {SW}""")
        if c == 2:
            k(f"""s_andn2_b32 s{S_T+5}, 0x7ff, s{sMK}
                  s_lshr_b32 s{S_T+5}, s{S_T+5}, 5
                  s_add_u32 s{S_T+5}, s{S_T+5}, {LOOK}
                  s_add_u32 s{S_T+4}, s{sSCN}, 1
                  s_min_u32 s{S_T+4}, s{S_T+4}, 63
                  s_cmp_gt_u32 s{S_T+4}, s{S_T+5}
                  s_cselect_b32 s{S_T+4}, s{sSCN}, s{S_T+4}
                  s_sub_u32 s{S_T+5}, s{S_T+4}, s{sSCN}
                  s_lshl_b32 s{S_T+5}, s{S_T+5}, 13""")
            keys_wait(sSCN, T, S_T + 5)
            self.wmax_u32(T, T + 1)
            k(f"""v_readfirstlane_b32 s{S_T+5}, v{T}
                  s_max_u32 s{sMK}, s{sMK}, s{S_T+5}
                  s_add_u32 s{sSCN}, s{S_T+4}, 1
                  s_andn2_b32 s{S_SEG}, 0x7ff, s{sMK}
                  s_lshr_b32 s{S_SEG}, s{S_SEG}, 5
                  s_add_u32 s{S_T+5}, s{S_SEG}, {LOOK}
                  s_min_u32 s{S_T+5}, s{S_T+5}, 63
                  s_cmp_le_u32 s{sSCN}, s{S_T+5}
                  s_cbranch_scc1 {START}
                  v_mov_b32 v{T}, 0
                  v_mov_b32 v{T+1}, s{sMK}
                  ds_write_b32 v{OR}, v{T} offset:{WO_}
                  ds_write_b32 v{OR}, v{T+1} offset:{WO_ + 512}""")
        self.ev(40 + c, va=T + 2)
        self.page(S_T + 3, F_KV[first])
        self.word_wait(S_T + 3, S_T + 5, va=T + 2, sleep=1, quick=c == 0)
        k.label(SW)
        k("""s_waitcnt lgkmcnt(0)
             s_barrier""")
        if c == 2:
            k(f"""ds_read_b32 v{T}, v{OR} offset:{WO_ + 512}
                  s_waitcnt lgkmcnt(0)
                  v_readfirstlane_b32 s{sMK}, v{T}
                  s_andn2_b32 s{S_SEG}, 0x7ff, s{sMK}
                  s_lshr_b32 s{S_SEG}, s{S_SEG}, 5""")
        self.qkv_base(S_T, first)
        k(f"s_add_u32 s{sKV}, s{S_T}, s{sW2}")
        for d in dma:
            k(d)
        k(f"""s_lshl_b32 s{sPG}, s{S_SEG}, 13
              s_add_u32 s{S_T}, s{sPG}, {MEM_OFF[c] + 8192}
              buffer_load_dword v{STS}, v{MST}, {WS}, s{S_T} offen sc1
              s_add_u32 s{sMEM}, s{sPG}, {MEMX_OFF if c == 2 else MEM_OFF[c]}
              s_add_u32 s{sM2}, s{sMEM}, 4096
              s_lshl_b32 s{sKVM}, s{S_SEG}, 5
              s_add_u32 s{sKVM}, s{sKVM}, s{S_H}
              s_lshl_b32 s{sKVM}, s{sKVM}, 12
              s_lshl_b32 s{S_T}, s{S_W}, 10
              s_add_u32 s{sKVM}, s{sKVM}, s{S_T}
              s_add_u32 s{sKVM}, s{sKVM}, {KVM_OFF[c]}
              s_mov_b32 s{sPUB}, 0x80000000
              s_mov_b32 s{sREC}, 0
              s_add_u32 s{S_T}, s{sKF}, s{sPG}
              s_buffer_load_dword s{sOK2}, {WS}, s{S_T}
              s_cmp_eq_u32 s{S_SEG}, 63
              s_cselect_b32 s{sOK}, 1, s{S_W}
              s_cmp_eq_u32 s{sOK}, 0
              s_cselect_b32 s{sOK}, 1, 0""")
        q_ = lambda t: QK + 8 * t
        k_ = lambda t: QK + 8 * t + 4
        sq = lambda ks, t: f"v_smfmac_f32_16x16x64_bf16 {vr(q_(t),4)}, {vr(M+4*ks,4)}, {wq(ks,t)}, v{IDX}"
        sk = lambda ks, t: f"v_smfmac_f32_16x16x64_bf16 {vr(k_(t),4)}, {vr(M+4*ks,4)}, {wk(ks,t)}, v{IDX}"
        sv = lambda ks, t: f"v_smfmac_f32_16x16x64_bf16 {vr(VA+4*t,4)}, {vr(M+4*ks,4)}, {wv(ks,t)}, v{IDX}"
        zero(QK, 24)
        if c == 2:
            HL, HD = k.newlabel("L_chp"), k.newlabel("L_chd")
            A_ = KX
            k(f"""v_lshrrev_b32 v{A_}, 8, v{V_L16}
                  v_lshlrev_b32 v{A_}, 5, v{A_}
                  v_bfe_u32 v{A_+1}, v{V_L16}, 5, 1
                  v_lshl_add_u32 v{A_}, v{A_+1}, 2, v{A_}
                  s_lshl_b32 s{S_T}, s{S_W}, 7
                  s_add_u32 s{S_T}, s{S_T}, {L_MB}
                  v_add_u32 v{A_}, s{S_T}, v{A_}
                  v_xor_b32 v{A_+1}, 128, v{A_}
                  v_xor_b32 v{A_+2}, 256, v{A_}
                  v_xor_b32 v{A_+3}, 384, v{A_}
                  s_andn2_b32 s{S_T}, 31, s{sMK}
                  s_lshr_b32 s{S_T+1}, s{S_T}, 4
                  s_lshl_b32 s{S_T+2}, s{S_T+1}, 12
                  s_and_b32 s{S_T+3}, s{S_T}, 15
                  s_lshl4_add_u32 s{S_T+2}, s{S_T+3}, s{S_T+2}
                  s_add_u32 s{S_T+2}, s{S_T+2}, s{S_LW}
                  s_add_u32 s{S_T+2}, s{S_T+2}, {L_KX}
                  v_bfe_u32 v{A_+4}, v{V_L16}, 6, 2
                  v_lshlrev_b32 v{A_+4}, 8, v{A_+4}
                  v_bfe_u32 v{A_+5}, v{V_L16}, 4, 2
                  v_lshl_add_u32 v{A_+4}, v{A_+5}, 2, v{A_+4}
                  v_add_u32 v{A_+4}, s{S_T+2}, v{A_+4}
                  s_lshr_b32 s{S_T+2}, s{S_T+3}, 2
                  s_lshl_b32 s{S_T+2}, s{S_T+2}, 8
                  s_lshl3_add_u32 s{S_T+2}, s{S_T+1}, s{S_T+2}
                  s_and_b32 s{S_T+3}, s{S_T}, 3
                  s_lshl1_add_u32 s{S_T+2}, s{S_T+3}, s{S_T+2}
                  s_add_u32 s{S_T+2}, s{S_T+2}, s{sW2}
                  s_add_u32 s{S_T+2}, s{S_T+2}, {L_VX}
                  v_and_b32 v{A_+5}, 255, v{V_L16}
                  v_add_u32 v{A_+5}, s{S_T+2}, v{A_+5}
                  s_cmp_lg_u32 s{S_W}, 0
                  s_cbranch_scc1 {HD}
                  s_lshl_b32 s{S_T+3}, s{S_SEG}, 10
                  s_add_u32 s{S_T+3}, s{S_T+3}, {HPS_OFF}""")
            k.label(HL)
            k(f"buffer_load_dwordx4 {vr(T,4)}, v{V_L16}, {WS}, s{S_T+3} offen sc1")
            self.spend()
            k(f"""s_waitcnt vmcnt(0)
                  v_max3_u32 v{T+4}, v{T}, v{T+1}, v{T+2}
                  v_max_u32 v{T+4}, v{T+3}, v{T+4}
                  v_cmp_eq_u32 vcc, -1, v{T+4}
                  s_cbranch_vccnz {HL}
                  ds_write_b128 v{MX}, {vr(T,4)}""")
            k.label(HD)
            k("""s_waitcnt vmcnt(0) lgkmcnt(0)
                 s_barrier""")
            for i in range(8):
                for hq in range(2):
                    o_ = (i >> 2) * 128 + 4 * hq
                    k(f"ds_read2_b32 {vr(M+4*i+2*hq,2)}, v{A_+(i&3)} offset0:{o_} offset1:{o_+2}")
                if i == 3:
                    k("s_waitcnt lgkmcnt(4)")
            for i in range(8):
                k(f"s_waitcnt lgkmcnt({min(14 - 2*i, 12)})")
                for x in (sk(i, 0), sv(i, 0), sk(i, 1), sv(i, 1)):
                    k(x)
            for a_ in (k_(0), VA, k_(1), VA + 4):
                k(f"v_add_f32 v{a_}, v{a_}, v{a_+2}")
            k(f"""v_cvt_pk_bf16_f32 v{T}, v{k_(0)}, v{k_(1)}
                  v_cvt_pk_bf16_f32 v{T+1}, v{VA}, v{VA+4}
                  ds_write_b32 v{A_+4}, v{T}
                  ds_write_b16 v{A_+5}, v{T+1}
                  ds_write_b16_d16_hi v{A_+5}, v{T+1} offset:1024""")
            zero(QK, 24)
        if c == 0:
            k(f"""buffer_load_dwordx4 v[88:91], v{MV}, {WS}, s{sMEM} offen
                  buffer_load_dwordx4 v[88:91], v{MV}, {WS}, s{sM2} offen""")
            self.load_wo(3, extra=7)
        k("""s_waitcnt vmcnt(0) lgkmcnt(0)
             s_barrier""")
        self.ev(43, va=T)
        kv_read()
        LOOP, PA, PAB, END, GO = (k.newlabel(x) for x in ("L_chain", "L_cpa", "L_cpab", "L_cend", "L_cgo"))
        RP, RB, PB, PBB, BACK = (k.newlabel(x) for x in ("L_crp", "L_crb", "L_cpb", "L_cpbb", "L_cback"))
        qk4 = lambda ks: [sq(ks, 0), sk(ks, 0), sq(ks, 1), sk(ks, 1)]
        vlist = [(ks, t) for ks in range(8) for t in range(2)]
        def vs(n):
            for _ in range(n):
                if vlist:
                    k(sv(*vlist.pop(0)))
        def weave(mm, other):
            other = list(other)
            for o in mm:
                k(o)
                if other:
                    k(other.pop(0))
            for o in other:
                k(o)
        ONES = 14
        PT_ = M + 28
        pub = [f"v_add_u32 v{PT_}, s{S_LW}, v{QKR0}", f"v_add_u32 v{PT_+2}, s{S_LW}, v{QKR1}",
               f"ds_read_b64_tr_b16 {vr(PT_,2)}, v{PT_}", f"ds_read_b64_tr_b16 {vr(PT_+2,2)}, v{PT_+2}",
               f"v_mov_b32_dpp v{T+4}, v{T+6} quad_perm:[2,3,2,3] row_mask:0xf bank_mask:0xf",
               f"v_mov_b32_dpp v{T+5}, v{T+7} quad_perm:[2,3,2,3] row_mask:0xf bank_mask:0xf",
               f"s_mov_b32 vcc_lo, 0xcccccccc", f"s_mov_b32 vcc_hi, 0xcccccccc", None]
        pub += [f"v_cndmask_b32 v{T+4+i}, v{T+4+i}, v{PT_+i}, vcc" for i in range(4)]
        pub += [f"buffer_store_dwordx4 {vr(T+4,4)}, v{V_L16}, {WS}, s{sPUB} offen sc1"]
        XT = T
        def xaddr():
            for i in range(1, 4):
                k(f"v_xor_b32 v{XT+i-1}, {i*1024}, v{MX}")
        xaddr()
        pipe = opt.get("pipe", 1)
        def chk(hf):
            b = M + 16 * hf
            return [f"v_max3_u32 v{CK}, v{b}, v{b+1}, v{b+2}", f"v_max_u32 v{CK}, v{b+3}, v{CK}", f"v_cmp_le_u32 vcc, s{sNAN}, v{CK}"]
        mpos = opt.get("mpos", (3, 7))
        for _ in mpos:
            k(mload(0))
        if opt.get("align"):
            k(f".p2align {opt['align']}")
        k.label(LOOP)
        self.stamp(0)
        k.label(PA)
        k(mload(0))
        self.spend(0x10000, sFAIL)
        k(f"s_waitcnt vmcnt({len(mpos)})")
        for x in chk(0):
            k(x)
        if opt.get("spec", 1):
            k(mwrite(0))
        k(f"s_cbranch_vccnz {PA}")
        k.label(GO)
        self.stamp(1)
        if not opt.get("spec", 1):
            k(mwrite(0))
        m1 = opt.get("m1", 0)
        nb = opt.get("nb", 2)
        weave(qk4(0)[:nb], [""] * m1 + [mload(1)])
        k("""s_waitcnt lgkmcnt(0)
             s_barrier""")
        self.stamp("xa")
        V2 = lambda n: [sv(*vlist.pop(0)) for _ in range(n)]
        k(mread(0, 1))
        weave(qk4(0)[nb:] + V2(2), [mread(0, 2), mread(0, 3)])
        k("s_waitcnt lgkmcnt(2)")
        va, vb = opt.get("va", 0), opt.get("vb", 1)
        weave(qk4(1) + V2(va), [dma[0], dma[1], f"s_cmp_lt_u32 s{sOK2}, s{sOK}\ns_cbranch_scc1 {KVW}\n{KVB}:"])
        k("s_waitcnt vmcnt(0) lgkmcnt(1)")
        self.stamp("xb")
        c1 = chk(1)
        weave(qk4(2) + V2(vb), [mwrite(1) + "\n" + c1[0]] + c1[1:])
        k(f"s_cbranch_vccnz {PB}")
        k.label(BACK)
        k("""s_waitcnt lgkmcnt(0)
             s_barrier""")
        self.stamp("xc")
        packt = lambda t: [x for a_, d_ in ((q_(t), T + 2 * t), (k_(t), T + 2 * t + 1)) for x in
                           (f"v_add_f32 v{a_}, v{a_}, v{a_+2}", f"v_add_f32 v{a_+1}, v{a_+1}, v{a_+3}",
                            f"v_cvt_pk_bf16_f32 v{d_}, v{a_}, v{a_+1}")]
        mm = qk4(3) + qk4(4) + [f(ks, t) for t in range(2) for ks in (5, 6, 7) for f in (sq, sk)] + V2(2)
        n0 = 8
        far = {"a": [dma[2]], "b": [dma[3], dma[4]], "c": [dma[6], dma[5]], "d": [dma[7]], "p": [pub[-1]],
               "t": [f"buffer_load_dword v{STS}, v{TCH}, {WS}, s{sPG} offen sc1"], "-": []}
        side = {1: [mread(1, 1)], 3: [mread(1, 2)], 5: [mread(1, 3)]}
        far["x"] = [f"buffer_store_dword v{M+30}, v{MST}, {WS}, s{sMX} offen sc1"]
        for i_, x in enumerate(("x" if c == 1 else "") + opt.get("ford", "pabcdt")):
            side[2 * i_] = list(far[x])
        if c == 2:
            side[7] = [f"ds_read_b32 v{CK}, v{OR} offset:{WO_}"]
        if "t" not in opt.get("ford", "t") and c == 2:
            side[12] = far["t"]
        if opt.get("rstpos"):
            p_ = opt["rstpos"]
            side.setdefault(p_ - 3, []).append(f"v_mov_b64 {vr(T+4,2)}, -1")
            side.setdefault(p_ - 1, []).append(f"v_mov_b64 {vr(T+6,2)}, -1")
            side.setdefault(p_, []).insert(0, f"buffer_store_dwordx4 {vr(T+4,4)}, v{V_L16}, {WS}, s{sRST} offen{self.loc}")
            side.setdefault(p_ + 2, []).insert(0, f"buffer_store_dwordx4 {vr(T+4,4)}, v{V_L16}, {WS}, s{sRST} offen offset:1024{self.loc}")
        if c == 2:
            side.setdefault(n0 + 5, []).append(f"v_readfirstlane_b32 s{S_T+2}, v{CK}")
            side.setdefault(n0 + 7, []).append(f"s_cmp_lg_u32 s{S_T+2}, 0\ns_cbranch_scc1 {JUMP}")
        waits = {n0: 2 + (c == 2), n0 + 2: 1 + (c == 2), n0 + 4: 0}
        for i_, x in enumerate(packt(0)):
            side.setdefault(n0 + 8 + i_, []).append(x)
        for n, o in enumerate(mm):
            if n in waits:
                k(f"s_waitcnt lgkmcnt({waits[n]})")
            k(o)
            for x in side.get(n, []):
                k(x)
        self.stamp("back")
        for x in packt(1):
            k(x)
        k(f"ds_write_b128 v{QKW}, {vr(T,4)}")
        vend = list(vlist)
        weave(V2(opt.get("vd", 4)),
              [f"s_mov_b32 s{sPUB}, s{sKVM}\ns_add_u32 s{sKVM}, s{sKVM}, {32*4*KB}\nv_mov_b32 v{T+5}, 0",
               f"s_cmp_eq_u32 s{S_SEG}, 63\ns_cbranch_scc1 {END}"])
        self.stamp("w0")
        k("s_waitcnt lgkmcnt(0)")
        self.stamp("w1")
        k("s_barrier")
        self.stamp(2)
        F = QK
        tr = [f"ds_read_b64_tr_b16 {vr(F+4*kk+2*hh,2)}, v{(QKR0, QKR1)[hh]} offset:{kk*1024}" for kk in range(4) for hh in range(2)]
        S = M
        slots = [KX, KX + 8, KX + 16, KX + 24, F, F + 8, M + 16, M + 24]
        def wo_reads(u):
            return [f"ds_read_b128 {vr(slots[(u&1)*4+kk]+4*hf,4)}, v{WOB} offset:{((u*4+kk)*2+hf)*1024}"
                    for kk in range(4) for hf in range(2)]
        st_ = wo_reads(0) + wo_reads(1)
        nv3 = opt.get("v3", 4)
        lq = []
        def ld(x):
            k(x); lq.append(x)
        def lwait(x):
            k(f"s_waitcnt lgkmcnt({len(lq) - 1 - lq.index(x)})")
        for x in tr[:6 - nv3]:
            ld(x)
        for x in tr[6 - nv3:6]:
            vs(1); ld(x)
        shadow = [tr[6], tr[7], st_[12]] + [st_[i] for i in (0, 1, 8, 2, 3, 9, 4, 5, 10, 6, 7, 11, 13, 14, 15)]
        for kk in range(4):
            lwait(tr[2 * kk + 1])
            f = vr(F + 4 * kk, 4)
            for a_, d_ in ((vr(KX + 8 * kk, 4), S), (vr(KX + 8 * kk + 4, 4), S + 4), (f, S + 8)):
                k(f"v_mfma_f32_16x16x32_bf16 {vr(d_,4)}, {a_}, {f}, {'0' if kk == 0 else vr(d_,4)}")
                ld(shadow.pop(0))
        assert len(vlist) <= 3
        while vlist:
            vs(1)
            if len(shadow) > 2:
                ld(shadow.pop(0))
        self.stamp(3)
        P = T
        t0 = T + 6
        VM, VM1 = T + 6, M + 12
        O = VA; Lr = S + 8
        sub = lambda i: f"v_pk_add_f32 {vr(S+i,2)}, {vr(S+i,2)}, {vr(t0,2)} op_sel_hi:[1,0] neg_lo:[0,1] neg_hi:[0,1]"
        mul = lambda i: f"v_pk_mul_f32 {vr(S+i,2)}, {vr(S+i,2)}, v[0:1] op_sel:[0,1]"
        ex = lambda i: f"v_exp_f32 v{S+i}, v{S+i}"
        sh = lambda: shadow.pop(0) if shadow else ""
        k(f"""v_max3_f32 v{t0}, v{S}, v{S+1}, v{S+2}
              v_max3_f32 v{t0+1}, v{S+3}, v{S+4}, v{S+5}
              v_max3_f32 v{t0}, v{S+6}, v{S+7}, v{t0}
              v_max3_f32 v{t0+1}, v{S+10}, v{S+11}, v{t0+1}
              v_max_f32 v{t0}, v{t0}, v{t0+1}
              v_max_f32 v{t0+1}, v{t0}, v{t0+1}
              {mul(10)}
              {mul(0)}
              v_permlane16_swap_b32 v{t0}, v{t0+1}
              v_max_f32 v{t0}, v{t0}, v{t0+1}
              v_max_f32 v{t0+1}, v{t0}, v{t0+1}
              {mul(2)}
              {mul(4)}
              v_permlane32_swap_b32 v{t0}, v{t0+1}
              v_max_f32 v{t0}, v{t0}, v{t0+1}
              v_mul_f32 v{t0}, v1, v{t0}
              {mul(6)}
              {sub(10)}
              v_pk_add_f32 {vr(VA,2)}, {vr(VA,2)}, {vr(VA+2,2)}
              v_pk_add_f32 {vr(VA+4,2)}, {vr(VA+4,2)}, {vr(VA+6,2)}
              {sub(0)}
              {sub(2)}
              {sub(4)}
              {sub(6)}
              {ex(10)}
              {ex(11)}
              v_cvt_pk_bf16_f32 v{VM}, v{VA}, v{VA+1}
              v_cvt_pk_bf16_f32 v{P+4}, v{S+10}, v{S+11}
              v_cvt_pk_bf16_f32 v{VM+1}, v{VA+4}, v{VA+5}
              v_cvt_pk_bf16_f32 v{VM1}, v{VA+4}, v{VA+5}
              v_mfma_f32_16x16x16_bf16 {vr(Lr,4)}, {vr(ONES,2)}, {vr(P+4,2)}, 0
              {sh()}
              {ex(0)}
              v_mfma_f32_16x16x16_bf16 {vr(O,4)}, {vr(VM,2)}, {vr(P+4,2)}, 0
              {sh()}
              {ex(1)}
              v_mfma_f32_16x16x16_bf16 {vr(O+4,4)}, {vr(VM1,2)}, {vr(P+4,2)}, 0
              {sh()}
              {ex(2)}""")
        for i in range(3, 8):
            k(ex(i))
            if i & 1:
                k(f"v_cvt_pk_bf16_f32 v{P+(i>>1)-1}, v{S+i-3}, v{S+i-2}")
        k(f"v_cvt_pk_bf16_f32 v{P+3}, v{S+6}, v{S+7}")
        for nm in opt.get("fw", ()):
            k(f"s_waitcnt vmcnt({nm})")
            self.stamp("f%d" % nm)
        self.stamp(4)
        k(f"""s_add_u32 s{sPG}, s{sPG}, 8192
              s_add_u32 s{S_SEG}, s{S_SEG}, 1
              v_mfma_f32_16x16x32_bf16 {vr(Lr,4)}, {vr(ONES,4)}, {vr(P,4)}, {vr(Lr,4)}
              {sh()}
              v_mfma_f32_16x16x32_bf16 {vr(O,4)}, {vr(VX,4)}, {vr(P,4)}, {vr(O,4)}
              ds_read_b128 {vr(VX,4)}, v{WOB} offset:{16*1024}
              v_mfma_f32_16x16x32_bf16 {vr(O+4,4)}, {vr(VX+4,4)}, {vr(P,4)}, {vr(O+4,4)}
              ds_read_b128 {vr(VX+4,4)}, v{WOB} offset:{17*1024}
              v_rcp_f32 v{Lr}, v{Lr}""")
        assert not shadow
        acc = [VA, VA + 4, T, VA]
        k(f"""v_mov_b64 {vr(S,2)}, -1
              v_mov_b64 {vr(S+2,2)}, -1
              s_add_u32 s{sMEM}, s{sPG}, {MEM_OFF[c]}
              s_add_u32 s{sM2}, s{sMEM}, 4096""")
        for e in range(0, 8, 2):
            k(f"v_pk_mul_f32 {vr(O+e,2)}, {vr(O+e,2)}, {vr(Lr,2)} op_sel_hi:[1,0]")
        for r in range(4):
            k(f"v_cvt_pk_bf16_f32 v{T+r}, v{O+r}, v{O+4+r}")
        k(f"ds_write_b128 v{OW}, {vr(T,4)}")
        if not opt.get("rstpos"):
            k(f"""buffer_store_dwordx4 {vr(S,4)}, v{V_L16}, {WS}, s{sRST} offen{self.loc}
                  buffer_store_dwordx4 {vr(S,4)}, v{V_L16}, {WS}, s{sRST} offen offset:1024{self.loc}""")
        zero(VA, 8)
        k("s_waitcnt lgkmcnt(0)")
        k("s_barrier")
        self.stamp(5)
        OA = M
        lq[:] = []
        ord_ = [f"ds_read_b128 {vr(OA+4*kk,4)}, v{OR} offset:{kk*512}" for kk in range(4)]
        for x in ord_:
            ld(x)
        zero(T, 4)
        k(f"""s_add_u32 s{S_T+1}, s{sPC}, {64*KB}
              s_add_u32 s{S_T+2}, s{sPC}, {128*KB}
              s_add_u32 s{S_T+3}, s{sPC}, {192*KB}
              s_add_u32 s{S_T}, s{sKF}, s{sPG}""")
        if c == 1:
            k(f"s_add_u32 s{sMX}, s{sPG}, {MEMX_OFF}")
        alt = opt.get("alt", 0)
        seq = [0, 4, 1, 5, 2, 6, 3, 7] if alt else list(range(8))
        seq += list(range(8, 16))
        where = slots + [VX] + [slots[x] for x in seq[:7]]
        stream = [f"ds_read_b128 {vr(where[i]+4*hf,4)}, v{WOB} offset:{(i*2+hf)*1024}" for i in range(9, 16) for hf in range(2)]
        def wo_out(u):
            a = acc[u]
            return [f"v_cvt_pk_bf16_f32 v{a}, v{a}, v{a+1}", f"v_cvt_pk_bf16_f32 v{a+1}, v{a+2}, v{a+3}",
                    f"buffer_store_dwordx2 {vr(a,2)}, v{PST}, {WS}, s{S_T+u if u else sPC} offen{self.loc}"]
        oth = {}
        if alt:
            acc[3] = M + 24
            o0, o1, o2 = wo_out(0), wo_out(1), wo_out(2)
            oth = {8: o0[:2], 9: [o0[2], o1[0]], 10: [f"v_mov_b64 {vr(acc[3],2)}, 0", o1[1]], 11: [o1[2], f"v_mov_b64 {vr(acc[3]+2,2)}, 0"],
                   12: pub[:1], 13: o2[:1], 14: o2[1:2], 15: o2[2:]}
            oth[10], oth[11] = [o1[1], f"v_mov_b64 {vr(acc[3],2)}, 0", f"v_mov_b64 {vr(acc[3]+2,2)}, 0"], [o1[2], pub[1]]
            npop = opt.get("npop", {0: 1, 1: 1, 2: 1, 3: 2, 4: 1, 5: 2, 6: 1, 7: 2, 8: 1, 10: 1, 12: 1})
        else:
            for u in range(3):
                o_ = wo_out(u)
                oth[4 * u + 5] = o_[:1]
                oth[4 * u + 6] = o_[1:]
            oth[7] = [f"v_mov_b64 {vr(VA,2)}, 0"]
            oth[8] = [f"v_mov_b64 {vr(VA+2,2)}, 0"]
            oth[11] = pub[:1]
            oth[12] = pub[1:2]
            npop = {i: 2 if i in (8, 10) else 1 for i in range(12)}
        tail_ld = {13: pub[2], 14: pub[3]}
        todo = list(stream)
        for i, j_ in enumerate(seq):
            if j_ < 4:
                lwait(ord_[j_])
            if i >= 9:
                lwait(stream[2 * (i - 9) + 1])
            k(f"v_smfmac_f32_16x16x64_bf16 {vr(acc[j_>>2],4)}, {vr(OA+4*(j_&3),4)}, {vr(where[j_],8)}, v{IDX2}")
            self.stamp("o%d" % i)
            for _ in range(npop.get(i, 0)):
                assert (14 - len(todo)) // 2 <= i
                ld(todo.pop(0))
            if i in tail_ld:
                ld(tail_ld[i])
            for x in oth.get(i, []):
                k(x)
        assert not todo
        zero(VA + 4, 4)
        k(f"s_xor_b32 s{sPC}, s{sPC}, {256*KB}")
        for x in pub[4:8] + wo_out(3) + ["s_waitcnt lgkmcnt(0)", f"s_buffer_load_dword s{sOK2}, {WS}, s{S_T}"]:
            k(x)
        self.stamp(6)
        RS = (M + 8, M + 20); RA = M + 4; RT = M + 28
        def rloads(R):
            for i in range(2):
                k(f"buffer_load_dwordx4 {vr(R+4*i,4)}, v{V_L16}, {WS}, s{sRD} offen offset:{i*1024} sc1")
        def reduce(R, fill=()):
            k(f"s_waitcnt vmcnt({3 if opt.get('two', 1) else 1})")
            self.stamp("r2")
            k(f"v_mfma_f32_16x16x32_bf16 {vr(RA,4)}, {vr(SEL,4)}, {vr(R,4)}, 0")
            k(f"s_waitcnt vmcnt({2 if opt.get('two', 1) else 0})")
            k(f"v_mfma_f32_16x16x32_bf16 {vr(RA,4)}, {vr(SEL,4)}, {vr(R+4,4)}, {vr(RA,4)}")
            for x in fill:
                k(x)
            k(f"""v_cmp_u_f32 vcc, v{RA}, v{RA}
                  v_add_f32_dpp v{RT}, v{RA}, v{RA} row_ror:8 row_mask:0xf bank_mask:0x3
                  v_add_f32_dpp v{RT+1}, v{RA+1}, v{RA+1} row_ror:8 row_mask:0xf bank_mask:0x3
                  v_add_f32_dpp v{RT}, v{RA+2}, v{RA+2} row_ror:8 row_mask:0xf bank_mask:0xc
                  v_add_f32_dpp v{RT+1}, v{RA+3}, v{RA+3} row_ror:8 row_mask:0xf bank_mask:0xc
                  v_add_f32_dpp v{RT}, v{RT}, v{RT} row_shl:4 row_mask:0xf bank_mask:0x5
                  v_add_f32_dpp v{RT+1}, v{RT+1}, v{RT+1} row_shl:4 row_mask:0xf bank_mask:0x5""")
        kvr = [f"ds_read_b128 {vr(KX+4*i,4)}, v{OB} offset:{((i&1)*4+(i>>1))*1024}" for i in range(8)]
        kvr += [f"ds_read_b128 {vr(VX+4*t,4)}, v{CK} offset:{L_VX-L_KX+t*1024}" for t in range(2)]
        work = pub[9:13] + [f"v_mov_b64 {vr(QK+i,2)}, 0" for i in range(0, 20, 2)] \
            + [f"v_add_u32 v{OB}, {L_KX}, v{V_L16}", f"v_add_u32 v{CK}, s{sW2}, v{OB}"]
        two = opt.get("two", 1)
        nw = opt.get("nw", 4)
        for x in work[:nw]:
            k(x)
        RG = k.newlabel("L_crg")
        e0, e1, e2 = opt.get("ea", (3, 1, 0))
        k(f"""s_cmp_lt_u32 s{S_W}, 2
              s_waitcnt vmcnt({e0})
              s_cbranch_scc1 {RG}
              s_cmp_eq_u32 s{S_W}, 2
              s_waitcnt vmcnt({e1})
              s_cbranch_scc1 {RG}
              s_waitcnt vmcnt({e2})""")
        k.label(RG)
        self.stamp("ea")
        rloads(RS[0])
        for x in work[nw:]:
            k(x)
        xaddr()
        blate = opt.get("blate", 1)
        if not blate:
            k("s_barrier")
        kp = opt.get("kvpos", 0)
        for i, x in enumerate(kvr[:kp]):
            if two and i == two:
                rloads(RS[1])
            k(x)
        if two:
            if two > 1:
                k(f"s_sleep {two - 1}")
            rloads(RS[1])
        k(f"""s_cmp_ge_u32 s{S_SEG}, 63
              s_cselect_b32 s{sOK}, 0, 1""")
        if c == 2:
            k(f"""v_readlane_b32 s{S_T}, v{STS}, 5
                  v_readlane_b32 s{sJ}, v{STS}, 4
                  v_add_u32 v{STS}, -1, v{STS}
                  v_cmp_le_u32 vcc, s{sMK}, v{STS}
                  s_cmp_gt_u32 s{S_SEG}, {63 - LOOK}
                  s_cselect_b32 s{sREC}, 0, vcc_hi
                  s_cmp_gt_u32 s{sJ}, s{sMK}
                  s_cselect_b32 s{sREC}, 1, s{sREC}
                  s_cmp_lg_u32 s{sREC}, 0
                  s_cselect_b32 s{sOK}, 2, s{sOK}
                  s_cmp_gt_u32 s{S_T}, s{sMK}
                  s_cbranch_scc1 {LEAD}""")
            k.label(LEADB)
        k(f"""s_cmp_eq_u32 s{S_W}, 0
              s_cselect_b32 s{sOK}, s{sOK}, 0""")
        OKR = k.newlabel("L_cok")
        reduce(RS[0])
        k(f"s_cbranch_vccnz {RP}")
        k.label(OKR)
        k(f"""v_cvt_pk_bf16_f32 v{RT+2}, v{RT}, v{RT+1}
              buffer_store_dword v{RT+2}, v{MST}, {WS}, s{sMEM} offen{self.loc}
              s_mov_b32 s{sRST}, s{sRD}
              s_xor_b32 s{sRD}, s{sRD}, {256*KB}""")
        self.stamp(7)
        if blate:
            k("s_barrier")
        for i, x in enumerate(kvr):
            if i in mpos:
                k(mload(0))
            k(x)
        if opt.get("mack"):
            k(f"s_waitcnt vmcnt({2 if pipe else 0})")
        if self.stamps > 1:
            NX = k.newlabel("L_cnx")
            k(f"""s_and_b32 s{S_T}, s{S_SEG}, 7
                  s_cmp_lg_u32 s{S_T}, 7
                  s_cbranch_scc1 {NX}""")
            if c == opt.get("stc", 0):
                self.dump_stamps(8, sFAIL, M + 4)
            k.label(NX)
        if self.stamps:
            NE = k.newlabel("L_cne")
            k(f"""s_and_b32 s{S_T}, s{S_SEG}, 7
                  s_cmp_lg_u32 s{S_T}, 1
                  s_cbranch_scc1 {NE}""")
            self.ev(50 + c, va=M + 4)
            self.ev(56 + c, va=M + 4, clk="s_memtime")
            k.label(NE)
        k(f"s_branch {LOOP}")
        for hf, lab, back in ((1, PB, BACK),):
            k.label(lab)
            k(mload(hf))
            self.spend(1 if hf else 0x10000, sFAIL)
            k("s_waitcnt vmcnt(0)")
            for x in chk(hf):
                k(x)
            k(f"""s_cbranch_vccnz {lab}
                  {mwrite(1)}
                  s_branch {back}""")
        k.label(RP)
        st_, self.stamps = self.stamps, min(self.stamps, 1)
        for i in (0, 1) if two else (0,):
            rloads(RS[i])
            self.spend(0x100, sFAIL)
            reduce(RS[1 - i if two else 0])
            k(f"s_cbranch_vccz {OKR}")
        k(f"s_branch {RP}")
        self.stamps = st_
        k.label(KVW)
        if c == 2:
            k(f"""s_cmp_eq_u32 s{sREC}, 0
                  s_cbranch_scc1 {JW}
                  s_cmp_gt_u32 s{sJ}, s{sMK}
                  s_cbranch_scc1 {JS}
                  s_add_u32 s{sSCN}, s{S_SEG}, {LOOK}""")
            keys_wait(sSCN, M + 20)
            k(f"""v_cmp_lt_u32 vcc, s{sMK}, v{M+20}
                  s_cbranch_vccz {JW}""")
            self.wmax_u32(M + 20, M + 21)
            k(f"v_readfirstlane_b32 s{sJ}, v{M+20}")
            k.label(JS)
            k(f"""s_mov_b32 s{sMK}, s{sJ}
                  s_andn2_b32 s{sSCN}, 0x7ff, s{sJ}
                  s_lshr_b32 s{sSCN}, s{sSCN}, 5
                  s_add_u32 s{sSCN}, s{sSCN}, 1
                  s_min_u32 s{sSCN}, s{sSCN}, 63
                  ds_write_b32 v{OR}, v{IDX} offset:{WO_}
                  s_waitcnt lgkmcnt(0)
                  s_branch {KVB}""")
            k.label(LEAD)
            k(f"""v_mov_b32 v{STS}, s{S_T}
                  s_add_u32 s{S_T}, s{sPG}, {PG_OFF + 8192 + F_J}
                  buffer_store_dword v{STS}, off, {WS}, s{S_T}{self.loc}
                  s_waitcnt vmcnt(0)
                  s_branch {LEADB}""")
            k.label(JW)
            k(f"""s_cmp_lg_u32 s{sOK2}, 0
                  s_cbranch_scc1 {KVB}""")
        k(f"s_add_u32 s{S_T+3}, s{sKF}, s{sPG}")
        self.ev(44, va=M + 20)
        self.word_wait(S_T + 3, sOK, va=STS, sleep=opt.get("slk", 1))
        self.ev(45, va=M + 20)
        k(f"s_branch {KVB}")
        if c == 2:
            k.label(JUMP)
            k(f"""s_waitcnt vmcnt(0) lgkmcnt(0)
                  s_barrier
                  s_branch {START}""")
        k.label(END)
        for x in vend[2:]:
            k(sv(*x))
        k(f"""s_waitcnt lgkmcnt(0)
              v_pk_add_f32 {vr(VA,2)}, {vr(VA,2)}, {vr(VA+2,2)}
              v_pk_add_f32 {vr(VA+4,2)}, {vr(VA+4,2)}, {vr(VA+6,2)}
              v_cvt_pk_bf16_f32 v{VM}, v{VA}, v{VA+1}
              v_cvt_pk_bf16_f32 v{VM+1}, v{VA+4}, v{VA+5}""")
        for x in pub:
            k(x or "s_waitcnt lgkmcnt(0)")
        k(f"s_mov_b32 s{S_SEG}, 64")
        self.ev(50 + c, va=M + 4)
        k("s_waitcnt vmcnt(0)")
        k("s_barrier")
        k.fence()
        k(f"v_lshrrev_b32 v{V_LANE}, 4, v{V_L16}")

    def dump_stamps(self, n, extra=None, va=36):
        k = self.k
        k(f"""s_waitcnt lgkmcnt(0)
              s_lshl_b32 s{S_T}, s{S_SEG}, 5
              s_add_u32 s{S_T}, s{S_T}, s{S_H}
              s_lshl_b32 s{S_T}, s{S_T}, 2
              s_add_u32 s{S_T}, s{S_T}, s{S_W}
              s_lshl_b32 s{S_T}, s{S_T}, 6
              s_add_u32 s{S_T}, s{S_T}, {STAMP_OFF}
              v_mov_b32 v{va}, 0""")
        for i in range(n):
            k(f"v_writelane_b32 v{va}, s{84+2*i}, {i}")
        if extra is not None:
            k(f"v_writelane_b32 v{va}, s{extra}, 8")
            k(f"s_mov_b32 s{extra}, 0")
        k(f"""v_lshrrev_b32 v{va+1}, 2, v{V_L16}
              s_mov_b64 exec, 0xffff
              buffer_store_dword v{va}, v{va+1}, {WS}, s{S_T} offen
              s_mov_b64 exec, -1""")

    def proj_consts(self):
        k = self.k
        self.THR, self.TOB, self.TWO, self.THD, self.TRW, self.TRL = 4, 17, 18, 20, 21, 22
        T = 120
        k(f"""v_and_b32 v{T}, 15, v{V_LANE}
              v_lshrrev_b32 v{T+1}, 4, v{V_LANE}
              v_mov_b32 v{self.TOB}, 1
              s_lshl_b32 s{S_T}, s{S_W}, 15
              v_add_u32 v{self.TWO}, s{S_T}, v{V_L16}
              s_lshl_b32 s{S_T}, s{S_W}, 2
              v_add_u32 v{T+5}, s{S_T}, v{T+1}            ; row 4w+g
              v_xor_b32 v{T+6}, v{T+5}, v{T}
              v_lshlrev_b32 v{T+6}, 4, v{T+6}
              v_lshl_add_u32 v{self.THD}, v{T+5}, 10, v{T+6}""")
        for kq in range(4):
            k(f"""v_add_u32 v{T+5}, {4*kq}, v{T+1}
                  v_xor_b32 v{T+5}, v{T+5}, v{T}
                  v_lshlrev_b32 v{T+5}, 4, v{T+5}
                  v_lshl_add_u32 v{T+5}, v{T}, 8, v{T+5}
                  v_add_u32 v{self.THR+kq}, {self.LH}, v{T+5}""")
        k(f"""v_lshlrev_b32 v{self.TRW}, 5, v{T}
              v_and_b32 v{T+5}, 1, v{T+1}
              v_lshl_add_u32 v{self.TRW}, v{T+5}, 4, v{self.TRW}
              s_lshl_b32 s{S_T}, s{S_W}, 9
              v_lshrrev_b32 v{T+5}, 1, v{T+1}
              v_lshl_add_u32 v{self.TRW}, v{T+5}, 11, v{self.TRW}
              s_add_u32 s{S_T}, s{S_T}, {L_ROW}
              v_add_u32 v{self.TRW}, s{S_T}, v{self.TRW}
              v_lshlrev_b32 v{self.TRL}, 4, v{T}
              v_lshl_add_u32 v{self.TRL}, v{T+1}, 10, v{self.TRL}
              s_lshl_b32 s{S_T}, s{S_W}, 8
              v_add_u32 v{self.TRL}, s{S_T}, v{self.TRL}""")

    def flag_set(self, s_off, loc, keep=0):
        self.k(f"""s_waitcnt vmcnt({keep})
                   s_barrier""")
        self.flag_store(s_off, loc)

    def flags_wait32(self, s_off, one=False, sleep=0):
        k = self.k
        L, D, F = k.newlabel("L_fw"), k.newlabel("L_fd"), k.newlabel("L_ff")
        if one:
            k(f"""s_cmp_lg_u32 s{S_W}, 0
                  s_cbranch_scc1 {D}""")
        k(f"""v_and_b32 v124, 31, v{V_LANE}
              v_lshlrev_b32 v124, 2, v124""")
        if sleep:
            k(f"s_branch {F}")
        k.label(L)
        if sleep:
            k(f"s_sleep {sleep}")
            k.label(F)
        k(f"buffer_load_dword v125, v124, {WS}, s{s_off} offen sc1")
        self.spend()
        k(f"""s_waitcnt vmcnt(0)
              v_cmp_eq_u32 vcc, 0, v125
              s_cbranch_vccnz {L}""")
        if one:
            k.label(D)
            k("s_barrier")

    def reduce32(self, s_base, natural, o=0):
        k = self.k
        D = 24 + o; SEL = 56 + o; A = 60 + o
        for i in range(8):
            k(f"s_add_u32 s{S_T+7}, s{s_base}, {i*4096}")
            k(f"buffer_load_dwordx4 {vr(D+4*i,4)}, v{self.TRL}, {WS}, s{S_T+7} offen sc1")
        self.make_sel(SEL, 64 + o)
        for i in range(8):
            k(f"s_waitcnt vmcnt({7-i})")
            k(f"v_mfma_f32_16x16x32_bf16 {vr(A,4)}, {vr(SEL,4)}, {vr(D+4*i,4)}, {'0' if i == 0 else vr(A,4)}")
        if natural:
            k(f"ds_write_b128 v{self.TRW}, {vr(A,4)}")
        else:
            k(f"ds_write2_b64 v{self.TRW}, {vr(A,2)}, {vr(A+2,2)} offset0:0 offset1:64")
        k(f"""s_waitcnt lgkmcnt(0)
              s_barrier""")

    def one_lane_store(self, v, s_off, fl):
        self.k(f"""s_mov_b64 exec, 1
                   buffer_store_dword v{v}, off, {WS}, s{s_off}{fl}
                   s_mov_b64 exec, -1""")

    def wmax_u32(self, x, t):
        k = self.k
        for r in (8, 4, 2, 1):
            k(f"v_max_u32_dpp v{x}, v{x}, v{x} row_ror:{r} row_mask:0xf bank_mask:0xf")
        k(f"""v_mov_b32 v{t}, v{x}
              v_permlane16_swap_b32 v{x}, v{t}
              v_max_u32 v{x}, v{x}, v{t}
              v_mov_b32 v{t}, v{x}
              v_permlane32_swap_b32 v{x}, v{t}
              v_max_u32 v{x}, v{x}, v{t}""")

    def load_gate_up(self):
        k = self.k
        k(f"""v_and_b32 v33, 15, v{V_LANE}
              v_lshrrev_b32 v34, 4, v{V_LANE}
              s_min_u32 s{S_T+4}, s{S_H}, 27
              s_lshl_b32 s{S_T+4}, s{S_T+4}, 7            ; 64 cols * 2B
              s_mul_i32 s{S_T+3}, s{S_W}, {128*3584}
              s_add_u32 s{S_T+4}, s{S_T+4}, s{S_T+3}
              v_mul_u32_u24 v36, {32*3584}, v34
              v_and_b32 v35, 7, v33
              v_lshl_add_u32 v36, v35, 4, v36
              v_add_u32 v36, s{S_T+4}, v36                ; byte offset inside gate / up
              v_cmp_gt_u32 vcc, 8, v33
              v_mov_b32 v38, s{P_WU}
              v_mov_b32 v39, s{P_WU+1}
              v_mov_b32 v40, s{P_WG}
              v_mov_b32 v41, s{P_WG+1}
              v_cndmask_b32 v38, v38, v40, vcc
              v_cndmask_b32 v39, v39, v41, vcc
              v_add_co_u32 v38, vcc, v38, v36
              v_addc_co_u32 v39, vcc, 0, v39, vcc
              s_lshl_b32 s{S_T}, s{S_W}, 15
              v_add_u32 v37, s{S_T}, v{V_L16}""")
        for half in range(2):
            for i in range(16):
                k(f"global_load_dwordx4 {vr(44+4*i,4)}, v[38:39], off")
                k(f"v_add_co_u32 v38, vcc, 3584, v38")
                k(f"v_addc_co_u32 v39, vcc, 0, v39, vcc")
            for i in range(16):
                k(f"s_waitcnt vmcnt({15-i})")
                k(f"ds_write_b128 v37, {vr(44+4*i,4)} offset:{(16*half+i)*1024}")
                if i % 8 == 7:
                    k("s_waitcnt lgkmcnt(0)")

    def moe_pre(self, layer):
        k = self.k
        LD, AF, MK = 24, 124, 12
        A1, A2, A3 = 9, 10, 11
        k(f"""v_and_b32 v{A1}, 15, v{V_LANE}
              v_lshrrev_b32 v{A2}, 4, v{V_LANE}
              v_and_b32 v{AF}, 1, v{V_LANE}
              v_lshlrev_b32 v{AF}, 4, v{AF}
              v_mov_b32 v{AF+1}, 0xffff
              v_lshlrev_b32 v{AF+1}, v{AF}, v{AF+1}
              v_lshrrev_b32 v{AF}, 2, v{A1}
              v_cmp_eq_u32 vcc, 0, v{AF}
              v_cndmask_b32 v{MK}, 0, v{AF+1}, vcc
              v_cmp_eq_u32 vcc, 1, v{AF}
              v_cndmask_b32 v{MK+1}, 0, v{AF+1}, vcc
              v_and_b32 v{AF}, 2, v{V_LANE}
              v_cmp_eq_u32 vcc, 0, v{AF}
              v_mov_b32 v{MK+2}, 0xeeee
              v_mov_b32 v{AF}, 0x4444
              v_cndmask_b32 v{MK+2}, v{MK+2}, v{AF}, vcc
              v_lshlrev_b32 v{A3}, 14, v{A2}
              v_lshl_add_u32 v{A3}, v{A1}, 4, v{A3}
              s_lshl_b32 s{S_T+9}, s{S_SEG}, 15
              s_add_u32 s{S_T+9}, s{S_T+9}, {MOE_OFF}
              s_lshl_b32 s{S_T+6}, s{S_H}, 10
              s_add_u32 s{S_T+6}, s{S_T+6}, s{S_T+9}
              s_lshl_b32 s{S_T+7}, s{S_H}, 16
              s_lshl_b32 s{S_T+4}, s{S_W}, 8
              s_add_u32 s{S_T+7}, s{S_T+7}, s{S_T+4}""")
        self.srd(P_WD, 1792 * 1024)
        out = []
        for i in range(16):
            out.append((f"s_add_u32 s{S_T+7}, s{S_T+7}, 4096\n" if i % 4 == 0 and i else "")
                       + f"buffer_load_dwordx4 {vr(LD+i*4,4)}, v{A3}, {SA}, s{S_T+7} offen offset:{(i%4)*1024}")
        if not self.loc:
            out.append(f"buffer_load_dword v{MK+3}, v{V_L16}, {WS}, s{S_T+6} offen")
        if layer:
            for x in out:
                k(x)
            for i in range(32):
                k(f"ds_read_b128 {ar(4*i,4)}, v{self.TWO} offset:{i*1024}")
        return out

    def moe(self, layer, sKEY):
        k = self.k
        sROW = S_T + 8
        LD = 24
        X, YP, TM = 96, 104, 108
        XB, AF, ACC, MK, G = 88, 124, 116, 12, 108
        A0, A1, A2 = 8, 9, 10
        k(f"""s_andn2_b32 s{sROW}, 0x7ff, s{sKEY}
              s_lshl_b32 s{S_T}, s{sROW}, 10
              s_add_u32 s{S_T+2}, s{S_T}, {X1_OFF[layer]}
              buffer_load_dwordx4 {vr(XB,4)}, v{V_L16}, {WS}, s{S_T+2} offen sc1""")
        dl = [] if layer else self.moe_pre(0)
        TAB = L_MOE
        k(f"""s_lshl_b32 s{S_T+1}, s{S_W}, 11
              s_add_u32 s{S_T+1}, s{S_T+1}, {TAB}
              v_add_u32 v{A0}, s{S_T+1}, v{V_L16}
              v_and_b32 v2, 1, v{A2}
              v_lshrrev_b32 v3, 1, v{A2}
              v_lshlrev_b32 v2, 7, v2
              v_lshl_add_u32 v2, v3, 10, v2
              s_lshl_b32 s{S_T+3}, s{S_W}, 8
              s_add_u32 s{S_T+3}, s{S_T+1}, s{S_T+3}
              v_add_u32 v2, s{S_T+3}, v2                    ; rows 128w + 64(g&1) + (g>>1) + 2n
              s_mov_b32 s{S_T+4}, 0x01000100
              s_mov_b32 s{S_T+5}, 0x03020302
              s_waitcnt vmcnt(0)""")
        if layer == 0:
            XL, XD = k.newlabel("L_mx"), k.newlabel("L_mxd")
            k.label(XL)
            k(f"""v_max3_u32 v{AF}, v{XB}, v{XB+1}, v{XB+2}
                  v_max_u32 v{AF}, v{XB+3}, v{AF}
                  v_cmp_eq_u32 vcc, -1, v{AF}
                  s_cbranch_vccz {XD}
                  buffer_load_dwordx4 {vr(XB,4)}, v{V_L16}, {WS}, s{S_T+2} offen sc1""")
            self.spend()
            k(f"""s_waitcnt vmcnt(0)
                  s_branch {XL}""")
            k.label(XD)
            for x in dl[:4]:
                k(x)
            dl = dl[4:]
        self.mark(44)
        self.unpack8(X, XB)
        self.layernorm(X, YP, TM)
        for q in range(4):
            k(f"v_perm_b32 v{XB+q}, v{YP+q}, v{YP+q}, s{S_T+4}")
        k(f"ds_write_b128 v{A0}, {vr(XB,4)}")
        for q in range(4):
            k(f"v_perm_b32 v{XB+4+q}, v{YP+q}, v{YP+q}, s{S_T+5}")
        k(f"""ds_write_b128 v{A0}, {vr(XB+4,4)} offset:1024
              s_mov_b32 s{S_T+2}, s{S_T+1}""")
        def diag(af, t0, t1):
            return [f"v_and_b32 v{af}, v{MK}, v{t0}", f"v_and_b32 v{af+1}, v{MK+1}, v{t0}",
                    f"v_and_b32 v{af+2}, v{MK}, v{t1}", f"v_and_b32 v{af+3}, v{MK+1}, v{t1}"]
        self.mark(45)
        if layer:
            TB_ = 128
            for b in range(4):
                k(f"ds_read_b128 {vr(TB_+4*b,4)}, v2 offset:{16*b}")
                k(f"ds_read_b128 {vr(TB_+16+4*b,4)}, v2 offset:{64+16*b}")
            k(f"""v_mov_b64 {vr(ACC,2)}, 0
                  v_mov_b64 {vr(ACC+2,2)}, 0
                  s_waitcnt lgkmcnt(6)""")
            for x in diag(120, TB_, TB_ + 16):
                k(x)
            for n in range(16):
                if n + 1 < 16:
                    if (n + 1) % 4 == 0:
                        k(f"s_waitcnt lgkmcnt({6 - 2*((n+1)//4)})")
                    nx = diag(120 + 4 * ((n + 1) & 1), TB_ + n + 1, TB_ + 17 + n)
                    k(nx[0]); k(nx[1])
                k(f"v_smfmac_f32_16x16x64_bf16 {vr(ACC,4)}, {vr(120+4*(n&1),4)}, {ar(8*n,8)}, v{MK+2}")
                if n + 1 < 16:
                    k(nx[2]); k(nx[3])
        else:
            ring = [G, LD + 40, LD + 48, LD + 56]
            gread = lambda n: [f"ds_read_b128 {vr(ring[n&3]+4*hf,4)}, v{self.TWO} offset:{(2*n+hf)*1024}" for hf in range(2)]
            tread = lambda b: [f"ds_read_b128 {vr(XB,4)}, v2 offset:{16*b}", f"ds_read_b128 {vr(XB+4,4)}, v2 offset:{64+16*b}"]
            lq = []
            def ld(xs):
                for x in xs:
                    k(x); lq.append(x)
            def lw(x):
                k(f"s_waitcnt lgkmcnt({min(15, len(lq) - 1 - max(i for i, y in enumerate(lq) if y == x))})")
            ld(tread(0) + gread(0) + gread(1) + gread(2) + gread(3))
            k(f"""v_mov_b64 {vr(ACC,2)}, 0
                  v_mov_b64 {vr(ACC+2,2)}, 0""")
            early, late = dl[:6] + dl[12:], dl[6:12]
            for n in range(16):
                if n % 4 == 0:
                    lw(tread(n // 4)[1])
                for x in diag(120 + 4 * (n & 1), XB + n % 4, XB + 4 + n % 4):
                    k(x)
                if n % 4 == 3 and n < 15:
                    ld(tread(n // 4 + 1))
                lw(gread(n)[1])
                k(f"v_smfmac_f32_16x16x64_bf16 {vr(ACC,4)}, {vr(120+4*(n&1),4)}, {vr(ring[n&3],8)}, v{MK+2}")
                if n + 4 < 16:
                    ld(gread(n + 4))
                if early:
                    k(early.pop(0))
                if n >= 13:
                    k(late.pop(0)); k(late.pop(0))
            assert not early and not late
        self.mark(46)
        RED = L_MOE + 8 * KB
        k(f"""v_lshlrev_b32 v{A0}, 5, v{A1}
              v_and_b32 v{AF}, 1, v{A2}
              v_lshl_add_u32 v{A0}, v{AF}, 4, v{A0}
              v_lshrrev_b32 v{AF}, 1, v{A2}
              v_lshl_add_u32 v{A0}, v{AF}, 11, v{A0}
              s_lshl_b32 s{S_T+4}, s{S_W}, 9
              s_add_u32 s{S_T+4}, s{S_T+4}, {RED}
              v_add_u32 v{A0}, s{S_T+4}, v{A0}
              ds_write_b128 v{A0}, {vr(ACC,4)}
              v_lshlrev_b32 v{A0}, 2, v{V_LANE}
              v_add_u32 v{A0}, {RED}, v{A0}
              v_and_b32 v2, 1, v{V_LANE}
              v_lshrrev_b32 v3, 1, v{V_LANE}
              v_lshlrev_b32 v3, 2, v3
              v_lshl_add_u32 v2, v2, 7, v3
              v_add_u32 v2, s{S_T+2}, v2
              v_lshlrev_b32 v3, 6, v{A2}
              v_add_u32 v3, s{S_T+2}, v3                    ; rows 32(g&1) + (g>>1) + 2n
              s_waitcnt lgkmcnt(0)
              s_barrier""")
        for w in range(4):
            k(f"ds_read2st64_b32 {vr(XB+2*w,2)}, v{A0} offset0:{2*w} offset1:{2*w+1}")
        k("s_waitcnt lgkmcnt(0)")
        k(f"""v_pk_add_f32 {vr(XB,2)}, {vr(XB,2)}, {vr(XB+2,2)}
              v_pk_add_f32 {vr(XB+4,2)}, {vr(XB+4,2)}, {vr(XB+6,2)}
              v_pk_add_f32 {vr(XB,2)}, {vr(XB,2)}, {vr(XB+4,2)}""")
        self.round1(XB)
        self.round1(XB + 1)
        k(f"""v_mul_f32 v{XB+2}, {f32(-math.log2(math.e))}, v{XB}
              v_exp_f32 v{XB+2}, v{XB+2}
              v_add_f32 v{XB+2}, 1.0, v{XB+2}
              v_rcp_f32 v{XB+2}, v{XB+2}
              v_mul_f32 v{XB}, v{XB}, v{XB+2}""")
        self.round1(XB)
        k(f"""v_mul_f32 v{XB}, v{XB}, v{XB+1}
              v_cvt_pk_bf16_f32 v{XB}, v{XB}, v{XB}
              ds_write_b32 v2, v{XB}
              ds_read_b128 {vr(XB,4)}, v3
              ds_read_b128 {vr(G,4)}, v3 offset:32
              ds_read_b128 {vr(XB+4,4)}, v3 offset:16
              ds_read_b128 {vr(G+4,4)}, v3 offset:48
              v_mov_b64 {vr(ACC,2)}, 0
              v_mov_b64 {vr(ACC+2,2)}, 0
              s_waitcnt vmcnt(0) lgkmcnt(0)""")
        for x in diag(120, XB, G):
            k(x)
        for n in range(8):
            if n + 1 < 8:
                nx = diag(120 + 4 * ((n + 1) & 1), XB + n + 1, G + n + 1)
                k(nx[0]); k(nx[1])
            k(f"v_smfmac_f32_16x16x64_bf16 {vr(ACC,4)}, {vr(120+4*(n&1),4)}, {vr(LD+8*n,8)}, v{MK+2}")
            if n + 1 < 8:
                k(nx[2]); k(nx[3])
        self.mark(47)
        k(f"""v_lshlrev_b32 v{A0}, 4, v{A1}
              v_and_b32 v{AF}, 1, v{A2}
              v_lshl_add_u32 v{A0}, v{AF}, 3, v{A0}
              v_and_b32 v{AF}, 2, v{A2}
              v_lshl_add_u32 v{A0}, v{AF}, 30, v{A0}
              s_lshl_b32 s{S_T+4}, s{S_W}, 8
              s_add_u32 s{S_T+3}, s{S_T+6}, s{S_T+4}
              v_cvt_pk_bf16_f32 v{XB}, v{ACC}, v{ACC+1}
              v_cvt_pk_bf16_f32 v{XB+1}, v{ACC+2}, v{ACC+3}
              buffer_store_dwordx2 {vr(XB,2)}, v{A0}, {WS}, s{S_T+3} offen{self.loc}""")
        self.page(S_T + 3, F_M)
        self.flag_set(S_T + 3, self.loc)
        D = k.newlabel("L_moed")
        if layer == 1:
            k(f"""s_cmp_lg_u32 s{S_H}, 0
                  s_cbranch_scc1 {D}""")
        self.page(S_T + 3, F_M, head=False)
        self.flags_wait32(S_T + 3)
        self.mark(48)
        o_ = 144 if layer else 0
        self.reduce32(S_T + 9, True, o_)
        self.mark(49)
        k(f"""s_cmp_lg_u32 s{S_W}, 0
              s_cbranch_scc1 {D}""")
        A, PK, Y, TM = 24 + o_, 40 + o_, 48 + o_, 56 + o_
        k(f"""v_lshlrev_b32 v{TM}, 5, v{V_LANE}
              v_add_u32 v{TM}, {L_ROW}, v{TM}
              ds_read_b128 {vr(A,4)}, v{TM}
              ds_read_b128 {vr(A+4,4)}, v{TM} offset:16
              s_and_b32 s{S_T+3}, s{sKEY}, 0xffff0000
              s_xor_b32 s{S_T+4}, s{S_T+3}, 0x80000000
              s_xor_b32 s{S_T+5}, s{S_T+3}, 0xffff0000
              s_cmp_lt_i32 s{S_T+3}, 0
              s_cselect_b32 s{S_T+3}, s{S_T+4}, s{S_T+5}
              v_mov_b32 v{TM}, s{S_T+3}
              v_mul_f32 v{TM}, {f32(-math.log2(math.e))}, v{TM}
              v_exp_f32 v{TM}, v{TM}
              v_add_f32 v{TM}, 1.0, v{TM}
              v_rcp_f32 v{TM}, v{TM}""")
        self.round1(TM)
        self.unpack8(Y, YP)
        k("s_waitcnt lgkmcnt(0)")
        self.pack8(PK, A)
        self.unpack8(A, PK)
        for j in range(0, 8, 2):
            k(f"v_pk_mul_f32 {vr(A+j,2)}, {vr(A+j,2)}, {vr(TM,2)} op_sel_hi:[1,0]")
        self.pack8(PK, A)
        self.unpack8(A, PK)
        self.add8(A, Y)
        self.pack8(PK, A)
        self.unpack8(A, PK)
        self.add8(X, A)
        self.pack8(160 if layer else 80, X)
        if layer == 0:
            self.unpack8(X, 80)
            self.layernorm(X, 84, TM + 2)
            k(f"""s_lshl_b32 s{S_T+2}, s{S_SEG}, 10
                  s_add_u32 s{S_T+2}, s{S_T+2}, {X2P_OFF}
                  s_add_u32 s{S_T+3}, s{S_T+2}, {HPS_OFF - X2P_OFF}
                  s_cmp_eq_u32 s{S_H}, 0
                  s_cselect_b32 s{S_T+3}, s{S_T+3}, 0x80000000
                  s_add_u32 s{S_T+1}, s{S_T}, {HP_OFF}
                  buffer_store_dwordx4 v[84:87], v{V_L16}, {WS}, s{S_T+3} offen sc1
                  buffer_store_dwordx4 v[80:83], v{V_L16}, {WS}, s{S_T+2} offen sc1
                  buffer_store_dwordx4 v[84:87], v{V_L16}, {WS}, s{S_T+1} offen sc1""")
        k.label(D)

    def a_plan(self):
        o = self.opt
        n1, n2, up = o.get("n1", 3), o.get("n2", 5), o.get("up", 6)
        p0 = self.P0 = o.get("p0", 14)
        own = [list(range(0, p0, 2)), list(range(1, p0, 2)), list(range(p0 + n1 + n2, p0 + n1 + n2 + up))]
        pat = o.get("pat", (0, 2, 1, 2))
        for i, x in enumerate(range(p0 + n1 + n2 + up, 64)):
            own[pat[i % len(pat)]].append(x)
        return n1, n2, up, [sum(1 << x for x in w) for w in own]

    def pop_next(self, dst, mask):
        self.k(f"""s_ff1_i32_b64 s{dst}, {sr(mask,2)}
                   s_bitset0_b64 {sr(mask,2)}, s{dst}
                   s_min_u32 s{dst}, s{dst}, 127""")

    def spec(self):
        o = self.opt
        return o.get("delta", 10), o.get("th", 28), o.get("kb", 4)

    def words_wait64(self, s_off, t, sleep):
        k = self.k
        L = k.newlabel("L_fp")
        k.label(L)
        k(f"""s_sleep {sleep}
              buffer_load_dword v{t+1}, v{t}, {WS}, s{s_off} offen sc1""")
        self.spend()
        k(f"""s_waitcnt vmcnt(0)
              v_cmp_eq_u32 vcc, 0, v{t+1}
              s_cbranch_vccnz {L}""")

    def todo_mask(self, sTODO, t):
        self.k(f"""v_cmp_le_u32 vcc, s{S_T+5}, v{V_LANE}
                   v_cndmask_b32 v{t}, 1, 2, vcc
                   v_cmp_ne_u32 {sr(sTODO,2)}, v{t}, v{t+1}""")

    def role_moe(self):
        k = self.k
        o = self.opt
        sMAX, sKEY = 54, 55
        self.proj_consts()
        _, _, UP, own = self.a_plan()
        JD, MINL, MAXL = o.get("jd", 2), o.get("minl", 20), o.get("maxl", 30)
        sNA, sSC = S_A, S_B
        sH, sN, sF, sDEBT, sOWN, sKA, sGR = S_T + 12, S_T + 14, S_T + 16, S_T + 17, S_T + 18, S_T + 20, S_T + 21
        sR, sPT, sALT, sFR, sPF = 84, 86, 87, 18, 19
        t = 20
        sQ = 22
        PR, NR, DG = k.newlabel("L_mp"), k.newlabel("L_mr"), k.newlabel("L_mg")
        L, AL, AL2, NF, NJ, FN, T1P, LK, P_, BC, WR_, L2, GOT, EN = (k.newlabel("L_mo") for _ in range(14))
        k(f"""s_mov_b32 s{sMAX}, 0
              s_mov_b32 s{sSC}, 0
              s_mov_b32 s{S_CNT}, {UP}
              s_mov_b32 s{sF}, 0x80000000
              s_mov_b32 s{sDEBT}, 0
              s_mov_b32 s{sGR}, -1
              s_mov_b32 s{sPT}, 0
              s_mov_b32 s{sPF}, 0
              s_mov_b32 s{sOWN}, {own[2] & 0xffffffff}
              s_mov_b32 s{sOWN+1}, {own[2] >> 32}
              v_and_b32 v23, 15, v{V_LANE}
              v_lshlrev_b32 v23, 3, v23
              v_lshrrev_b32 v16, 4, v{V_LANE}
              v_lshl_add_u32 v23, v16, 13, v23
              v_mov_b32 v19, {L_MISC}
              v_lshl_add_u32 v16, v16, 2, v19""")
        sBIG = 25
        for x in self.moe_pre(0)[:16]:
            k(x)
        self.srd(P_WR, 1024)
        k(f"""buffer_load_dwordx4 v[88:91], v{V_L16}, {SA}, 0 offen
              s_waitcnt vmcnt(0)""")
        self.unpack8(96, 88)
        k("v_mul_f32 v88, v96, v96")
        for j in range(1, 8):
            k(f"v_fma_f32 v88, v{96+j}, v{96+j}, v88")
        self.wsum(88, 89)
        k(f"""v_sqrt_f32 v88, v88
              v_mul_f32 v88, {f32(o.get("zbig", 2.8))}, v88
              v_readfirstlane_b32 s{sBIG}, v88
              s_bitset1_b32 s{sBIG}, 31""")
        kload = f"buffer_load_dwordx2 v[124:125], v23, {WS}, s{sKA} offen sc1"
        self.pop_next(sNA, sOWN)
        self.t1_src(sN, sNA, 0)
        k.label(AL)
        k(f"""s_cmp_lg_u32 s{sPF}, 0
              s_cbranch_scc1 {AL2}""")
        for x in self.t1_dma(sN, (0, 1, 2)):
            k(x)
        k(f"""s_mov_b32 s{sPF}, 1
              s_waitcnt vmcnt(0)""")
        k.label(AL2)
        k(f"""s_mov_b32 s{S_SEG}, s{sNA}
              s_mov_b64 {sr(sH,2)}, {sr(sN,2)}""")
        self.pop_next(sNA, sOWN)
        self.t1_src(sN, sNA, 0)
        self.page(sKA, F_RKM, seg=sSC, head=False)
        self.t1(0, sH, pre=8, s_flag=sF, nxt=self.t1_dma(sN, (0, 1, 2)) + [kload])
        self.ev(17)
        self.page(sF, F_KV[0])
        k(f"""s_sub_u32 s{S_CNT}, s{S_CNT}, 1
              s_cmp_gt_i32 s{S_CNT}, {o.get("upq", 3)}
              s_cbranch_scc1 {AL2}
              s_cmp_gt_i32 s{S_CNT}, 0
              s_cselect_b32 s{sALT}, 1, 3
              s_mov_b32 s{sFR}, 0
              s_waitcnt vmcnt(7)
              s_branch {LK}""")
        k.label(L)
        k(f"""s_mov_b32 s{sKEY}, s{sQ}
              s_mov_b32 s{sQ}, s{sQ+1}
              s_mov_b32 s{sQ+1}, s{sQ+2}
              s_mov_b32 s{sQ+2}, -1
              v_mov_b32 v3, 0
              s_cmp_lg_u32 s{sKEY}, -1
              s_cbranch_scc1 {PR}
              s_sub_u32 s{S_T}, s{sNA}, s{sSC}
              s_cmp_gt_i32 s{sGR}, 0
              s_cselect_b32 s{S_T+1}, 6, {MINL}
              s_cmp_lg_u32 s{sPT}, 0
              s_cselect_b32 s{S_T+1}, {o.get("minl2", 9)}, s{S_T+1}
              s_cmp_lt_i32 s{S_T}, s{S_T+1}
              s_cbranch_scc1 {AL}
              s_cmp_lt_i32 s{S_T}, {MAXL}
              s_cselect_b32 s{sALT}, s{sFR}, 0
              s_cmp_ge_u32 s{sSC}, {o.get("tnow", 8)}
              s_cselect_b32 s{S_T}, 1, s{sFR}
              s_and_b32 s{S_T}, s{S_T}, s{sPT}
              s_cselect_b32 s{sALT}, 2, s{sALT}
              s_mul_i32 s{S_T}, s{sALT}, s{sFR}
              s_cmp_lg_u32 s{S_T}, 0
              s_cbranch_scc1 {FN}
              s_mov_b32 s{sFR}, 0
              s_lshr_b32 s{S_T}, s{sF}, 31
              s_or_b32 s{S_T}, s{S_T}, s{sALT}
              s_cbranch_scc1 {L2}""")
        self.flag_set(sF, " sc1")
        k(f"s_mov_b32 s{sF}, 0x80000000")
        k.label(L2)
        k(f"""s_cmp_lg_u32 s{S_W}, 0
              s_cbranch_scc1 {BC}""")
        self.page(sKA, F_RKM, seg=sSC, head=False)
        k(f"""s_lshl_b32 s{S_T+1}, s{S_H}, 8
              s_add_u32 s{S_T+1}, s{S_T+1}, s{sSC}
              s_cmp_eq_u32 s{S_T+1}, 63
              s_mov_b32 s{S_T+1}, 0x80000000
              s_cmov_b32 s{S_T+1}, {PG_OFF + 65*8192 + F_DEC}
              v_lshlrev_b32 v2, 2, v{V_LANE}""")
        k.label(P_)
        k(kload)
        k(f"buffer_load_dword v3, v2, {WS}, s{S_T+1} offen sc1")
        self.spend()
        k("s_waitcnt vmcnt(0)")
        k.label(LK)
        k(f"""v_min_u32 v123, v124, v125
              v_max_u32 v125, v124, v125
              v_cmp_eq_u32 vcc, 0, v123
              v_cndmask_b32 v125, v125, -1, vcc
              s_and_b32 s{S_T}, vcc_lo, 0xffff
              s_cbranch_scc0 {GOT}
              s_cmp_lg_u32 s{sALT}, 0
              s_cbranch_scc1 {GOT}
              s_mov_b32 s{sFR}, 1
              s_sleep {o.get("slm", 2)}
              s_branch {P_}""")
        k.label(GOT)
        for r in (8, 4, 2, 1):
            k(f"v_max_u32_dpp v125, v125, v125 row_ror:{r} row_mask:0xf bank_mask:0xf")
        k.label(BC)
        self.spend()
        k(f"""v_mov_b32 v124, s{sFR}
              s_barrier
              s_cmp_lg_u32 s{S_W}, 0
              s_cbranch_scc1 {WR_}
              ds_write_b32 v16, v125
              ds_write_b32 v19, v124 offset:16
              s_waitcnt lgkmcnt(0)""")
        k.label(WR_)
        k(f"""s_barrier
              ds_read_b128 v[120:123], v19
              ds_read_b32 v124, v19 offset:16
              s_waitcnt lgkmcnt(0)
              v_readfirstlane_b32 s{sKEY}, v120
              v_readfirstlane_b32 s{sQ}, v121
              v_readfirstlane_b32 s{sQ+1}, v122
              v_readfirstlane_b32 s{sQ+2}, v123
              v_readfirstlane_b32 s{sFR}, v124
              s_cmp_lg_u32 s{sKEY}, -1
              s_cbranch_scc1 {PR}
              {FN}:
              s_mov_b32 s{sQ}, -1
              s_cmp_eq_u32 s{sALT}, 1
              s_cbranch_scc1 {AL}
              s_cmp_eq_u32 s{sALT}, 2
              s_cbranch_scc1 {T1P}
              s_branch {L}""")
        k.label(PR)
        k(f"""s_mov_b32 s{S_CNT}, 0
              s_sub_u32 s{sDEBT}, s{sDEBT}, 1
              s_max_i32 s{sDEBT}, s{sDEBT}, 0
              s_sub_u32 s{sGR}, s{sGR}, 1
              s_min_u32 s{S_T+5}, s{sDEBT}, {LOOK}
              s_cmp_lt_u32 s{sSC}, {o.get("early", 5)}
              s_cselect_b32 s{S_T+4}, s{sBIG}, 0
              s_cmp_lt_u32 s{sKEY}, s{S_T+4}
              s_cselect_b32 s{S_T+5}, {LOOK}, s{S_T+5}
              s_cmp_le_u32 s{sKEY}, s{sMAX}
              s_cbranch_scc1 {NR}
              s_mov_b32 s{sGR}, s{S_T+5}
              s_mov_b32 s{sMAX}, s{sKEY}
              s_mov_b32 s{sPT}, 0
              s_or_b32 s{S_T+5}, s{S_H}, s{S_W}
              s_cbranch_scc1 {NR}
              v_mov_b32 v120, s{sMAX}
              v_lshlrev_b32 v121, 13, v{V_LANE}
              s_mov_b32 s{S_T+5}, {PG_OFF + F_RM}
              buffer_store_dword v120, v121, {WS}, s{S_T+5} offen sc1
              {NR}:
              s_cmp_lg_u32 s{sSC}, 63
              s_cbranch_scc1 {NF}
              s_min_i32 s{sGR}, s{sGR}, 0
              s_or_b32 s{S_T+5}, s{S_H}, s{S_W}
              s_cbranch_scc1 {NF}
              s_mov_b32 s{S_T+3}, {PG_OFF + 65*8192 + F_DEC}
              v_lshlrev_b32 v120, 2, v{V_LANE}
              v_mov_b32 v121, v3
              v_cmp_eq_u32 vcc, 0, v3
              s_cbranch_vccz {DG}""")
        self.words_wait64(S_T + 3, 120, 0)
        k.label(DG)
        k(f"""s_andn2_b32 s{S_T+6}, 0x7ff, s{sMAX}
              v_lshl_or_b32 v121, s{S_T+6}, 8, v121""")
        for w in range(6):
            k(f"""s_add_u32 s{S_T+3}, s{S_T+3}, 8192
                  buffer_store_dword v121, v120, {WS}, s{S_T+3} offen sc1""")
        k.label(NF)
        k(f"""s_add_u32 s{sSC}, s{sSC}, 1
              s_cmp_gt_i32 s{sGR}, 0
              s_cmov_b32 s{sFR}, 0
              s_cbranch_scc1 {L}
              s_cmp_lg_u32 s{sGR}, 0
              s_cbranch_scc1 {NJ}""")
        k(f"""s_andn2_b32 s{S_SEG}, 0x7ff, s{sMAX}
              s_lshr_b32 s{S_SEG}, s{S_SEG}, 5
              s_add_u32 s{sDEBT}, s{sDEBT}, {JD}
              s_mov_b32 s{sPT}, 1
              s_mov_b32 s{sPF}, 0
              s_mov_b32 s{sFR}, 0
              s_waitcnt vmcnt(8)
              s_barrier""")
        self.ev(30)
        self.moe(0, sMAX)
        self.flush()
        self.ev(31)
        k("s_barrier")
        k.label(NJ)
        k(f"""s_mov_b32 s{sGR}, -1
              s_cmp_lt_u32 s{sSC}, 64
              s_cbranch_scc1 {L}
              s_cmp_eq_u32 s{sPT}, 0
              s_cbranch_scc1 {EN}""")
        k.label(T1P)
        k(f"""s_andn2_b32 s{S_SEG}, 0x7ff, s{sMAX}
              s_lshr_b32 s{S_SEG}, s{S_SEG}, 5
              s_andn2_b32 s{S_T}, 31, s{sMAX}
              v_lshrrev_b32 v2, 10, v{self.THD}
              v_add_u32 v3, 16, v2
              v_add_u32 v8, {HP_OFF - H_OFF[1]}, v{self.THD}
              v_cmp_eq_u32 vcc, s{S_T}, v2
              v_cndmask_b32 v2, v{self.THD}, v8, vcc
              v_cmp_eq_u32 vcc, s{S_T}, v3
              v_cndmask_b32 v3, v{self.THD}, v8, vcc
              s_waitcnt vmcnt(0)""")
        self.page(S_T + 3, F_HX, head=False)
        self.flags_wait32(S_T + 3, one=True, sleep=2)
        self.flag_store(sF, " sc1")
        self.t1_src(S_T + 10, S_SEG, 1)
        self.t1b(2, S_T + 10, voff=(2, 3), early=False)
        self.ev(32)
        for x in self.t1_dma(sN, (0, 1, 2)):
            k(x)
        self.page(S_T + 3, F_Q[2])
        self.flag_set(S_T + 3, " sc1")
        k(f"""s_mov_b32 s{sF}, 0x80000000
              s_mov_b32 s{sPT}, 0
              s_mov_b32 s{sPF}, 1
              s_mov_b32 s{sFR}, 0
              s_cmp_lt_u32 s{sSC}, 64
              s_cbranch_scc1 {L}""")
        k.label(EN)
        NS = 6
        LD_, AG, EX, LP, WB, PO = (k.newlabel("L_mf") for _ in range(6))
        k(f"""s_mov_b32 s{S_SEG}, 64
              s_cmp_eq_u32 s{S_H}, 31
              s_cbranch_scc1 {LD_}""")
        self.moe_pre(1)
        for n in range(1, NS if not self.loc else 0):
            k(f"""s_add_u32 s{S_T+3}, s{S_T+6}, {n*32*KB}
                  buffer_load_dword v15, v{V_L16}, {WS}, s{S_T+3} offen""")
        k.label(AG)
        k(f"""s_lshl_b32 s{S_T+3}, s{S_SEG}, 13
              s_lshl_b32 s{S_T+5}, s{S_W}, 7
              s_add_u32 s{S_T+3}, s{S_T+3}, s{S_T+5}
              s_add_u32 s{S_T+3}, s{S_T+3}, {PG_OFF + F_FIN}""")
        self.word_wait(S_T + 3, sKEY, va=2, sleep=1)
        k(f"""s_cmp_eq_u32 s{sKEY}, 1
              s_cbranch_scc1 {EX}
              s_barrier""")
        self.ev(33)
        self.moe(1, sKEY)
        self.flush()
        k(f"""s_add_u32 s{S_SEG}, s{S_SEG}, 1
              s_add_u32 s{S_T+6}, s{S_T+6}, {32*KB}
              s_add_u32 s{S_T+9}, s{S_T+9}, {32*KB}
              s_branch {AG}""")
        k.label(EX)
        self.srd(P_OUT, 2048 * 1024)
        k(f"""s_or_b32 s{S_T+5}, s{S_H}, s{S_W}
              s_cselect_b32 s{S_T}, 0x80000000, s{S_T}
              buffer_store_dwordx4 v[160:163], v{V_L16}, {SA}, s{S_T} offen sc1""")
        self.ev(34)
        k("""s_waitcnt vmcnt(0)
             s_endpgm""")
        k.label(LD_)
        sL, sC = S_T + 10, S_T + 11
        k(f"""s_cmp_lg_u32 s{S_W}, 0
              s_cbranch_scc1 {PO}
              v_mov_b64 v[24:25], 0
              v_mov_b64 v[26:27], 0""")
        for n in range(NS):
            k(f"""s_mov_b32 s{S_T}, {MOE_OFF + (64 + n) * 32 * KB + 31 * KB}
                  buffer_store_dwordx4 v[24:27], v{V_L16}, {WS}, s{S_T} offen{self.loc}""")
        k(f"""s_andn2_b32 s{S_T+5}, 0x7ff, s{sMAX}
              s_lshr_b32 s{S_T+5}, s{S_T+5}, 5
              s_mov_b32 s{S_T+3}, {PG_OFF + 65*8192 + F_DEC}
              v_lshlrev_b32 v2, 2, v{V_LANE}""")
        self.words_wait64(S_T + 3, 2, 2)
        self.todo_mask(sR, 2)
        for n in range(NS):
            k(f"""s_mov_b32 s{S_T}, {PG_OFF + (64 + n) * 8192 + F_M + 31 * 4}
                  buffer_store_dword v{self.TOB}, off, {WS}, s{S_T}{self.loc}""")
        k(f"""v_lshrrev_b32 v2, 3, v{V_LANE}
              v_and_b32 v3, 0x70, v{V_L16}
              v_lshl_add_u32 v3, v2, 13, v3""")
        for i in range(8):
            k(f"""s_lshr_b64 {sr(t,2)}, {sr(sR,2)}, {8*i}
                  v_lshrrev_b32 v{60+i}, v2, s{t}
                  v_and_b32 v{60+i}, 1, v{60+i}
                  v_mul_u32_u24 v{60+i}, {F_RK[1] - F_RK[2]}, v{60+i}
                  v_sub_u32 v{60+i}, v3, v{60+i}
                  v_add_u32 v{60+i}, {PG_OFF + F_RK[1] + i*8*8192}, v{60+i}""")
        k(f"""v_and_b32 v68, 3, v{V_LANE}
              v_lshlrev_b32 v68, 7, v68
              v_add_u32 v68, {PG_OFF + F_FIN}, v68
              v_and_b32 v69, 31, v{V_LANE}
              v_lshlrev_b32 v69, 2, v69
              v_add_u32 v69, {PG_OFF + F_M - 8192}, v69
              s_mov_b32 s{sL}, 0
              s_mov_b32 s{sC}, {64 * 8192}""")
        LS, LJ = k.newlabel("L_ms"), k.newlabel("L_mj")
        k(f"""v_mov_b32 v57, 0
              s_mov_b32 s{S_T+2}, 1""")
        k.label(LP)
        self.spend()
        k(f"""s_mov_b32 s{S_T+1}, 0
              s_cmp_lg_u32 s{S_T+2}, 0
              s_cbranch_scc1 {LS}
              buffer_load_dwordx4 v[52:55], v67, {WS}, 0 offen sc1
              buffer_load_dword v70, v69, {WS}, s{sC} offen sc1
              s_branch {LJ}""")
        k.label(LS)
        for i in range(8):
            k(f"buffer_load_dwordx4 {vr(24+4*i,4)}, v{60+i}, {WS}, 0 offen sc1")
        k(f"buffer_load_dword v70, v69, {WS}, s{sC} offen sc1")
        for i in range(8):
            b = 24 + 4 * i
            if i == 7:
                k(f"s_mov_b32 s{S_T+2}, s{S_T+1}")
                k.label(LJ)
            k(f"""s_waitcnt vmcnt({8 - i})
                  v_min3_u32 v56, v{b}, v{b+1}, v{b+2}
                  v_max3_u32 v57, v{b}, v{b+1}, v57
                  v_min_u32 v56, v{b+3}, v56
                  v_max3_u32 v57, v{b+2}, v{b+3}, v57
                  v_cmp_eq_u32 vcc, 0, v56
                  s_bcnt1_i32_b64 s{S_T}, vcc
                  s_add_u32 s{S_T+1}, s{S_T+1}, s{S_T}""")
        self.wmax_u32(57, 58)
        k(f"""v_readfirstlane_b32 s{sKEY}, v57
              s_cmp_lg_u32 s{sKEY}, s{sL}
              s_cbranch_scc1 {WB}
              s_cmp_lg_u32 s{S_T+1}, 0
              s_cbranch_scc1 {LP}
              v_mov_b32 v57, 1
              buffer_store_dword v57, v68, {WS}, s{sC} offen{self.loc}""")
        k.label(PO)
        k("""s_waitcnt vmcnt(0)
             s_endpgm""")
        k.label(WB)
        k(f"""s_waitcnt vmcnt(0)
              v_cmp_eq_u32 vcc, 0, v70
              s_cmp_eq_u32 s{sL}, 0
              s_cselect_b32 s{S_T}, 0, vcc_lo                 ; the update before is still under way
              s_cmp_gt_u32 s{S_T+1}, {8 * o.get("miss", 14)}
              s_cselect_b32 s{S_T}, 1, s{S_T}
              s_cmp_ge_u32 s{sC}, {(64 + NS - 1) * 8192}
              s_cselect_b32 s{S_T}, 1, s{S_T}
              s_cmp_eq_u32 s{S_T+1}, 0
              s_cselect_b32 s{S_T}, 0, s{S_T}
              s_cmp_lg_u32 s{S_T}, 0
              s_cbranch_scc1 {LP}
              buffer_store_dword v57, v68, {WS}, s{sC} offen{self.loc}
              s_mov_b32 s{sL}, s{sKEY}
              s_add_u32 s{sC}, s{sC}, 8192
              s_branch {LP}""")

    def role_proj(self):
        k = self.k
        self.LH = 64 * KB
        self.proj_consts()
        own = self.a_plan()[3]
        MAXL, MINL = self.opt.get("pmaxl", 44), self.opt.get("pminl", 12)
        sCUR, sNA = 54, 55
        sH, sN, sF, sOWN, sLB, sNB, sNXT = S_T + 10, S_T + 12, S_T + 14, S_T + 16, S_T + 18, S_T + 19, S_T + 20
        allq = (0, 1, 2, 3)
        FA, FV, VA_ = 23, 76, 19
        sPC_ = S_T + 21
        k(f"""s_sub_u32 s{sCUR}, s{S_G}, 4
              s_cmp_eq_u32 s{sCUR}, 0
              s_mov_b32 s{sOWN}, {own[1] & 0xffffffff}
              s_mov_b32 s{sOWN+1}, {own[1] >> 32}
              s_cmov_b32 s{sOWN}, {own[0] & 0xffffffff}
              s_cmov_b32 s{sOWN+1}, {own[0] >> 32}
              s_mov_b32 s{sF}, 0x80000000
              s_mov_b32 s{S_CNT}, {self.opt.get("pup", 7)}
              s_mov_b32 s{sLB}, s{S_LW}
              s_xor_b32 s{sNB}, s{sLB}, {32*KB}
              v_and_b32 v{FA}, 31, v{V_LANE}
              v_lshlrev_b32 v{FA}, 2, v{FA}
              v_mov_b32 v{VA_}, s{S_LW}
              v_mov_b32 v16, 0""")
        self.pop_next(sNA, sOWN)
        self.t1_src(sN, sNA, 0)
        for x in self.t1_dma(sN, allq, sb=sNB):
            k(x)
        k("""s_waitcnt vmcnt(0)
             s_barrier""")
        def peek():
            return (f"""s_lshl_b32 s{S_T}, s{sCUR}, 13
                        s_add_u32 s{S_T}, s{S_T}, {PG_OFF + F_HX}
                        s_or_b32 s{S_T}, s{S_T}, s{S_OOB}
                        buffer_load_dword v{FV}, v{FA}, {WS}, s{S_T} offen sc1""",
                    ["s_waitcnt vmcnt(0)", f"v_cmp_eq_u32 vcc, 0, v{FV}", f"v_mov_b32 v{FV}, vcc_lo", f"ds_write_b32 v{VA_}, v{FV}"],
                    f"ds_read_b32 v{FV}, v16")
        def choose(after_a):
            out = [f"v_readfirstlane_b32 s{S_T+1}, v{FV}",
                   f"s_sub_u32 s{S_T+3}, s{sNA}, s{sCUR}\ns_cmp_lt_i32 s{S_T+3}, {MAXL}\ns_cselect_b32 s{sNXT}, 2, 0"]
            if after_a:
                out.append(f"s_cmp_gt_i32 s{S_CNT}, 0\ns_cselect_b32 s{sNXT}, s{sNXT}, 0")
            out += [f"s_cmp_eq_u32 s{S_T+1}, 0\ns_cselect_b32 s{sNXT}, 1, s{sNXT}",
                    f"s_cmp_lt_i32 s{S_T+3}, {MINL}\ns_cselect_b32 s{sNXT}, 2, s{sNXT}\ns_add_u32 s{S_T+1}, s{sCUR}, {H_OFF[1] >> 15}",
                    f"s_cmp_eq_u32 s{sNXT}, 1\ns_cselect_b32 s{sN}, s{S_T+1}, s{sNA}\ns_lshl_b32 s{sN}, s{sN}, 15",
                    f"s_cmp_eq_u32 s{sNXT}, 0\ns_cselect_b32 s{sN}, 0x80000000, s{sN}\ns_add_u32 s{sN+1}, s{sN}, {16*KB}"]
            return out + self.t1_dma(sN, allq, sb=sNB)
        def flip():
            k(f"""s_mov_b32 s{sNB}, s{sLB}
                  s_xor_b32 s{sLB}, s{sLB}, {32*KB}""")
            for i in range(4):
                k(f"v_xor_b32 v{self.THR+i}, {32*KB}, v{self.THR+i}")
        LA_, LC, DSP, EN, W3, RDY = (k.newlabel("L_p") for _ in range(6))
        self.mk = 24
        k.label(LA_)
        flip()
        n0_ = len(k.lines)
        k(f"""s_mov_b32 s{S_SEG}, s{sNA}
              s_mov_b32 s{sPC_}, 0
              s_sub_u32 s{S_CNT}, s{S_CNT}, 1""")
        self.pop_next(sNA, sOWN)
        lead = k.lines[n0_:]; del k.lines[n0_:]
        self.t1b(0, None, landed=True, s_flag=sF, nxt=choose(True), early=False, peek=peek(), lead=lead)
        self.ev(17)
        self.page(sF, F_KV[0])
        k(f"""s_cmp_ge_u32 s{S_SEG}, 2
              s_cbranch_scc1 {DSP}""")
        self.flag_set(sF, " sc1")
        k.label(DSP)
        k(f"""s_cmp_eq_u32 s{sNXT}, 2
              s_cbranch_scc1 {LA_}
              s_mov_b32 s{S_CNT}, 0
              s_mov_b32 s{S_SEG}, s{sCUR}
              s_add_u32 s{sCUR}, s{sCUR}, 2
              s_cmp_eq_u32 s{sNXT}, 1
              s_cbranch_scc1 {LC}
              s_cmp_lg_u32 s{sPC_}, 0
              s_waitcnt vmcnt(3)
              s_cbranch_scc1 {W3}
              s_waitcnt vmcnt(2)
              {W3}:""")
        for x in peek()[1][1:]:
            k(x)
        self.t1_src(sH, S_SEG, 1)
        k(f"""s_waitcnt lgkmcnt(0)
              s_barrier
              {peek()[2]}
              s_waitcnt lgkmcnt(0)
              v_cmp_eq_u32 vcc, 0, v{FV}
              s_cbranch_vccnz {RDY}""")
        self.flag_set(sF, " sc1")
        k(f"""s_mov_b32 s{sF}, 0x80000000
              s_mov_b32 s{S_CNT}, 1
              s_cmp_ge_u32 s{S_SEG}, 64
              s_cbranch_scc1 {EN}""")
        self.page(S_T + 3, F_HX, head=False)
        self.flags_wait32(S_T + 3, one=True, sleep=self.opt.get("slp", 2))
        k.label(RDY)
        self.ev(13)
        self.t1b(1, sH, s_flag=sF, nxt=choose(self.opt.get("calm2", 1)), sb=sLB, peek=peek())
        k(f"s_mov_b32 s{sPC_}, 1")
        self.ev(14)
        self.page(sF, F_Q[1])
        k(f"s_branch {DSP}")
        k.label(LC)
        flip()
        self.t1b(1, None, landed=True, s_flag=sF, nxt=choose(self.opt.get("calm", 1)), peek=peek())
        k(f"s_mov_b32 s{sPC_}, 1")
        self.ev(16)
        self.page(sF, F_Q[1])
        k(f"s_branch {DSP}")
        k.label(EN)
        self.mk = 0
        self.LH = L_H

    def chain_helps(self):
        k = self.k
        n1, n2 = self.a_plan()[:2]
        sH, sN, sF = S_T + 12, S_T + 14, S_T + 16
        T = 120
        D, L = k.newlabel("L_chd"), k.newlabel("L_chl")
        self.THR, self.THD, self.TOB = 4, 20, 17
        k(f"""s_cmp_eq_u32 s{S_G}, 0
              s_cbranch_scc1 {D}
              v_and_b32 v{T}, 15, v{V_LANE}
              v_lshrrev_b32 v{T+1}, 4, v{V_LANE}
              v_mov_b32 v{self.TOB}, 1
              s_lshl_b32 s{S_T}, s{S_W}, 2
              v_add_u32 v{T+5}, s{S_T}, v{T+1}            ; row 4w+g
              v_xor_b32 v{T+6}, v{T+5}, v{T}
              v_lshlrev_b32 v{T+6}, 4, v{T+6}
              v_lshl_add_u32 v{self.THD}, v{T+5}, 10, v{T+6}""")
        for i in range(8):
            k(f"""s_lshl_b32 s{S_T}, s{S_W}, 1
                  s_xor_b32 s{S_T}, s{S_T}, {i}
                  s_and_b32 s{S_T+1}, s{S_T}, 3
                  s_lshl_b32 s{S_T+1}, s{S_T+1}, 2
                  s_lshr_b32 s{S_T}, s{S_T}, 2
                  s_lshl_b32 s{S_T}, s{S_T}, 13
                  s_add_u32 s{S_T}, s{S_T}, {L_H}
                  v_add_u32 v{T+5}, s{S_T+1}, v{T+1}
                  v_xor_b32 v{T+5}, v{T+5}, v{T}
                  v_lshlrev_b32 v{T+5}, 4, v{T+5}
                  v_lshl_add_u32 v{T+5}, v{T}, 8, v{T+5}
                  v_add_u32 v{self.THR+i}, s{S_T}, v{T+5}""")
        k(f"""s_cmp_eq_u32 s{S_G}, 1
              s_cselect_b32 s{S_SEG}, {self.P0}, {self.P0 + n1}
              s_cselect_b32 s{S_CNT}, {n1}, {n2}
              s_mov_b32 s{sF}, 0x80000000""")
        self.t1_src(sN, S_SEG, 0)
        for x in self.t1_dma(sN, (0, 1)):
            k(x)
        k("s_waitcnt vmcnt(0)")
        k.label(L)
        k(f"""s_mov_b64 {sr(sH,2)}, {sr(sN,2)}
              s_add_u32 s{sN}, s{sN}, {32*KB}
              s_add_u32 s{sN+1}, s{sN+1}, {32*KB}""")
        self.t1(0, sH, pre=7, s_flag=sF, nxt=self.t1_dma(sN, (0, 1)), rot=True)
        self.page(sF, F_KV[0])
        k(f"""s_add_u32 s{S_SEG}, s{S_SEG}, 1
              s_sub_u32 s{S_CNT}, s{S_CNT}, 1
              s_cmp_gt_u32 s{S_CNT}, 0
              s_cbranch_scc1 {L}""")
        self.flag_set(sF, " sc1")
        self.ev(18)
        k.label(D)

    def warm(self):
        k = self.k
        k(f"""s_and_b32 s{S_T}, s{S_G}, 1
              s_lshl_b32 s{S_T}, s{S_T}, 12
              s_add_u32 s{S_T}, s{S_T}, s{S_LW}
              s_and_b32 s{S_T+1}, s{S_H}, 15
              s_lshl_b32 s{S_T+1}, s{S_T+1}, 13
              s_add_u32 s{S_T}, s{S_T}, s{S_T+1}""")
        n = 0
        for ptr in (P_WK, P_WV, P_WQ):
            self.srd(ptr, 4 * MB)
            for i in range(32):
                if n >= self.opt.get("wdepth", 10):
                    k(f"s_waitcnt vmcnt({self.opt.get('wdepth', 10) - 1})")
                k(f"""s_add_u32 s{S_T+1}, s{S_T}, {i*16*8192}
                      buffer_load_dwordx4 v[72:75], v{V_L16}, {SA}, s{S_T+1} offen""")
                n += 1
                if n == self.opt.get("wdepth", 10):
                    self.init_rows(n)
                if n == 2 * self.opt.get("wdepth", 10) + 1:
                    self.arrive()

    def load_wo2(self):
        k = self.k
        self.srd(P_WO, 4 * MB)
        k(f"""v_and_b32 v2, 15, v{V_LANE}
              v_lshlrev_b32 v2, 4, v2
              v_lshrrev_b32 v3, 4, v{V_LANE}
              v_lshl_add_u32 v2, v3, 13, v2
              s_and_b32 s{S_T}, s{S_H}, 15
              s_lshl_b32 s{S_T}, s{S_T}, 18
              s_lshl_b32 s{S_T+1}, s{S_W}, 8
              s_add_u32 s{S_T}, s{S_T}, s{S_T+1}
              s_mov_b32 s{S_T+5}, 0x05040100
              s_mov_b32 s{S_T+6}, 0x07060302""")
        NB = 6
        def issue(g):
            b = 24 + (g % NB) * 32
            for j in range(8):
                if j % 4 == 0:
                    k(f"s_add_u32 s{S_T+1}, s{S_T}, {(32*g+j)*1024}")
                k(f"buffer_load_dwordx4 {vr(b+4*j,4)}, v2, {SA}, s{S_T+1} offen offset:{(j%4)*1024}")
        for g in range(NB):
            issue(g)
        for g in range(8):
            b = 24 + (g % NB) * 32
            k(f"s_waitcnt vmcnt({min(7-g, NB-1)*8})")
            for t in range(8):
                for q in range(4):
                    k(f"v_perm_b32 v{216+q}, v{b+4*(2*q+1)+(t>>1)}, v{b+4*(2*q)+(t>>1)}, s{S_T+5+(t&1)}")
                for q in range(4):
                    k(f"v_accvgpr_write_b32 a{(g*8+t)*4+q}, v{216+q}")
            if g + NB < 8:
                issue(g + NB)
            if g == 0:
                self.arrive()

    def role_att(self, steady):
        k = self.k
        opt = self.opt
        DL, TH, KB_ = self.spec()
        NW = 6
        over = self.loc == "" and opt.get("over", 1)
        PTX = 0 if opt.get("pt1") else 512 * KB
        sWK, sSEL = 54, 55
        sCNT, sBUF, sHD, sPT, sNQ, sNK, sLATE, sDF, sCUR, sMAXK, sFM, sNX = (S_T + i for i in range(10, 22))
        sTODO, sKO, sCW, sX = 84, 86, 87, S_A
        R_, sPS, sMODE, sST, sRB = 18, 26, 27, 32, 34
        sBN, sD, sVB, sHAD = 35, 36, 37, 38
        sLAG = 42
        gmask = sum(1 << x for x in range(DL, 64) if x >> 2 not in opt.get("dskip", ()))
        sCQ, sCK, sLQ, sLK = 28, 29, 40, 41
        DEC = PG_OFF + 65 * 8192 + F_DEC
        OUT = DBG
        OX, ROWS = 128 * KB, 144 * KB
        RK, OW_, OB_, PT_, RW_, RL_ = 2, 3, 4, 5, 6, 7
        TX0, TX1 = 8, 12
        L4, FL, ST, SA_, DF, KA = 16, 17, 18, 19, 20, 21
        Q, KK, F, V, VM, S = 24, 40, 72, 88, 120, 128
        P, Lr, ONES, SEL, O = 140, 148, 152, 156, 24
        B, ACC, PK = 24, 160, 24
        XI, WR, KEY, TT = 224, 228, 236, 238
        CN, RR_, GK, VR, VW, VT, VO, KR = 22, 23, 246, 245, 247, 248, 253, 254
        KY = 242
        VOTE = ROWS + 8 * KB
        T = TT
        self.make_sel(SEL, TT)
        self.srd(P_WR, 1024)
        k(f"""buffer_load_dwordx4 {vr(XI,4)}, v{V_L16}, {SA}, 0 offen
              v_and_b32 v{T}, 15, v{V_LANE}
              v_lshrrev_b32 v{T+1}, 4, v{V_LANE}
              v_lshlrev_b32 v{T+2}, 2, v{T+1}
              v_mov_b32 v{T+3}, {NEGBIG}
              s_and_b32 s{S_T}, s{S_W}, 1
              s_lshl_b32 s{S_T}, s{S_T}, 4
              v_add_u32 v{T+4}, s{S_T}, v{T}""")
        for u in range(2):
            for r in range(4):
                k(f"v_add_u32 v{T+5}, {16*u+r}, v{T+2}")
                k(f"v_cmp_gt_u32 vcc, v{T+5}, v{T+4}")
                k(f"v_cndmask_b32 v{(TX0,TX1)[u]+r}, 0, v{T+3}, vcc")
        CV = ONES
        k(f"""v_mov_b32 v{CV}, s{S_C}
              v_mov_b32 v{P+5}, 0
              v_mov_b32 v{P+6}, 0
              s_lshl_b32 s{S_T}, s{S_W}, 12
              s_add_u32 s{S_T}, s{S_T}, {OX}
              v_add_u32 v{OW_}, s{S_T}, v{V_L16}
              v_add_u32 v{OB_}, {OX}, v{V_L16}
              s_lshl_b32 s{S_T}, s{S_W}, 8
              v_lshlrev_b32 v{RL_}, 4, v{T}
              v_add_u32 v{RL_}, s{S_T}, v{RL_}
              v_lshl_add_u32 v{PT_}, v{T+1}, 16, v{RL_}
              v_lshlrev_b32 v{RW_}, 1, v{RL_}
              v_lshl_add_u32 v{RL_}, v{T+1}, 10, v{RL_}
              v_and_b32 v{T+5}, 1, v{T+1}
              v_lshl_add_u32 v{RW_}, v{T+5}, 4, v{RW_}
              v_lshrrev_b32 v{T+5}, 1, v{T+1}
              v_lshl_add_u32 v{RW_}, v{T+5}, 12, v{RW_}
              v_add_u32 v{RW_}, {ROWS}, v{RW_}
              v_lshlrev_b32 v{L4}, 2, v{V_LANE}
              v_lshlrev_b32 v{KA}, 3, v{T}
              s_and_b32 s{sHD}, s{S_H}, 15
              s_lshl_b32 s{S_T}, s{sHD}, 10
              v_add_u32 v{PT_}, s{S_T}, v{PT_}
              s_lshl_b32 s{S_T}, s{sHD}, 15
              v_add_u32 v{RL_}, s{S_T}, v{RL_}
              s_lshl_b32 s{sPT}, s{sWK}, 20
              s_add_u32 s{sPT}, s{sPT}, {PT_OFF}
              s_lshl_b32 s{sCW}, s{sWK}, 13
              s_add_u32 s{sCW}, s{sCW}, {PG_OFF + F_CW}
              s_lshl4_add_u32 s{sCUR}, s{sHD}, s{sCW}
              s_lshl2_add_u32 s{sCUR}, s{S_W}, s{sCUR}
              s_lshl_b32 s{sHD}, s{sHD}, 1
              s_lshr_b32 s{S_T}, s{S_W}, 1
              s_add_u32 s{sHD}, s{sHD}, s{S_T}
              s_mov_b32 s{sCNT}, 0
              s_mov_b32 s{sBUF}, 0
              s_mov_b32 s{sDF}, 0x80000000
              s_mov_b32 s{sMAXK}, 0
              s_mov_b32 s{sVB}, 0
              s_mov_b32 s{sLAG}, {gmask & 0xffffffff}
              s_mov_b32 s{sLAG+1}, {gmask >> 32}
              s_mov_b64 {sr(sHAD,2)}, 0
              s_sub_u32 s{sD}, s{sWK}, {2 + DL}
              s_and_b32 s{sD}, s{sD}, 3
              s_mov_b32 s{SRD_DBG}, s{P_OUT}
              s_mov_b32 s{SRD_DBG+1}, s{P_OUT+1}
              s_mov_b32 s{SRD_DBG+2}, {2048*1024}
              s_mov_b32 s{SRD_DBG+3}, 0x20000
              s_and_b32 s{sCK}, s{S_W}, 1
              s_mul_i32 s{sCQ}, s{sCK}, {12*KB}
              s_lshl_b32 s{sCK}, s{sCK}, 11
              s_and_b32 s{S_T}, s{S_LW}, 2048
              s_lshl_b32 s{S_T}, s{S_T}, 4
              s_add_u32 s{S_T}, s{S_T}, {64*KB}
              s_add_u32 s{sLQ}, s{S_T}, s{sCQ}
              s_add_u32 s{sLK}, s{S_T}, s{sCK}
              v_add_u32 v{KA}, {PG_OFF + F_RK[0]}, v{KA}
              v_mov_b32 v{KY+2}, v{KA}
              s_and_b32 s{S_T}, s{S_LW}, 2048
              s_add_u32 s{S_T}, s{S_T}, {ROWS}
              v_lshlrev_b32 v{RR_}, 5, v{V_LANE}
              v_add_u32 v{RR_}, s{S_T}, v{RR_}
              v_and_b32 v{VO}, 32, v{V_L16}
              v_lshrrev_b32 v{VR}, 2, v{VO}
              v_add_u32 v{VO}, v{VO}, v{VR}
              v_sub_u32 v{VO}, v{V_L16}, v{VO}
              v_add_u32 v{VO}, 8, v{VO}                     ; v_m of a lane: (lane & ~2)*16 + (lane & 2 ? 0 : 8)
              v_mov_b32 v{KR}, 0x80000000
              s_mov_b32 s{S_T}, {F_RK[0]}
              v_writelane_b32 v{KR}, s{S_T}, 0
              s_mov_b32 s{S_T}, {F_RKU}
              v_writelane_b32 v{KR}, s{S_T}, 1
              s_mov_b32 s{S_T}, {F_RKM}
              v_writelane_b32 v{KR}, s{S_T}, 2
              v_mov_b32 v{VR}, {VOTE}
              s_lshl_b32 s{S_T}, s{S_W}, 2
              v_add_u32 v{VW}, s{S_T}, v{VR}
              s_waitcnt vmcnt(0)""")
        self.unpack8(WR, XI)
        TH_ = 255
        k(f"v_mul_f32 v{TH_}, v{WR}, v{WR}")
        for j in range(1, 8):
            k(f"v_fma_f32 v{TH_}, v{WR+j}, v{WR+j}, v{TH_}")
        self.wsum(TH_, TT)
        k(f"""v_sqrt_f32 v{TH_}, v{TH_}
              v_sub_u32 v{TT}, {63 + KB_}, v{V_LANE}
              v_cvt_f32_u32 v{TT}, v{TT}
              v_log_f32 v{TT}, v{TT}
              v_mov_b32 v{TT+1}, {f32(opt.get("za", 1.95))}
              v_fmac_f32 v{TT+1}, {f32(opt.get("zb", 0.32) * math.log(2))}, v{TT}
              v_mul_f32 v{TH_}, v{TH_}, v{TT+1}
              v_or_b32 v{TH_}, 0x80000000, v{TH_}""")

        def capture(fn, *a):
            n0 = len(k.lines); fn(*a); out = k.lines[n0:]; del k.lines[n0:]; return out
        def hpage(dst, off, seg):
            k(f"""s_lshl_b32 s{dst}, s{seg}, 13
                  s_lshl2_add_u32 s{dst}, s{sHD}, s{dst}
                  s_add_u32 s{dst}, s{dst}, {PG_OFF + off}""")
        def spin(v, reload, cmp):
            A_, B_ = k.newlabel("L_aw"), k.newlabel("L_awd")
            k.label(A_)
            k(f"""{cmp}
                  s_cbranch_vccz {B_}
                  {reload}""")
            self.spend()
            k(f"""s_waitcnt vmcnt(0)
                  s_branch {A_}""")
            k.label(B_)
        GL = " glc" if opt.get("glc") else ""
        stubs = []
        st_load = f"buffer_load_dword v{ST}, v{SA_}, {WS}, 0 offen sc1"
        def plan_next(layer, s_rec=None, vec=False):
            out = capture(plan_next_, layer, s_rec)
            for x in out:
                if not (vec and x.startswith("s_buffer_load")):
                    k(x)
        def plan_next_(layer, s_rec):
            k(f"""s_lshl_b32 s{S_T}, s{sNX}, 5
                  s_add_u32 s{S_T}, s{S_T}, s{sHD}
                  s_mul_i32 s{sNQ}, s{S_T}, {24*KB}
                  s_lshl_b32 s{sNK}, s{S_T}, 12""")
            if layer == 0:
                hpage(S_T + 3, F_Q[0], sNX)
                k(f"""s_buffer_load_dword s{sST}, {WS}, s{S_T+3}{GL}
                      s_mov_b32 s{sST+1}, 1
                      s_add_u32 s{sNQ}, s{sNQ}, {QKV_OFF[0]}
                      s_add_u32 s{sNK}, s{sNK}, {KVM_OFF[0]}
                      v_mov_b32 v{SA_}, s{S_T+3}""")
            else:
                hpage(S_T + 3, F_Q[1], sNX)
                k(f"""s_cmp_lt_u32 s{sNX}, s{s_rec}
                      s_cselect_b32 s{S_T+1}, 0, {KVM_OFF[2] - KVM_OFF[1]}
                      s_mov_b32 s{S_T+4}, s{S_T+3}
                      s_buffer_load_dword s{sST+1}, {WS}, s{S_T+4}{GL}
                      s_add_u32 s{sNK}, s{sNK}, s{S_T+1}
                      s_add_u32 s{sNK}, s{sNK}, {KVM_OFF[1]}
                      s_cmp_eq_u32 s{sNX}, s{s_rec}
                      s_cselect_b32 s{S_T+1}, {QKV_OFF[2] - QKV_OFF[1]}, 0
                      s_cselect_b32 s{S_T+2}, {F_Q[2] - F_Q[1]}, 0
                      s_add_u32 s{S_T+3}, s{S_T+3}, s{S_T+2}
                      s_buffer_load_dword s{sST}, {WS}, s{S_T+3}{GL}
                      s_add_u32 s{sNQ}, s{sNQ}, s{S_T+1}
                      s_add_u32 s{sNQ}, s{sNQ}, {QKV_OFF[1]}
                      v_mov_b32 v{SA_}, s{S_T+3}
                      v_writelane_b32 v{SA_}, s{S_T+4}, 1""")
        NT = " nt" if opt.get("nt") else ""
        LP = opt.get("lp", "sc1")
        def fetch_ops(q, kv):
            out = [f"s_add_u32 s{q}, s{q}, s{sCQ}", f"s_add_u32 s{kv}, s{kv}, s{sCK}",
                   f"s_xor_b32 s{S_T+2}, s{sBUF}, s{sLQ}", f"s_xor_b32 s{S_T+1}, s{sBUF}, s{sLK}"]
            for i in range(3):
                out.append(f"s_add_u32 m0, s{S_T+2}, {i*4096}")
                if i:
                    out.append(f"s_add_u32 s{q}, s{q}, 4096")
                out += [f"buffer_load_dwordx4 v{V_L16}, {WS}, s{q} offen offset:{c*1024} sc1{NT} lds" for c in range(4)]
            out.append(f"s_add_u32 m0, s{S_T+1}, {24*KB}")
            out += [f"buffer_load_dwordx4 v{V_L16}, {WS}, s{kv} offen offset:{c*1024} {LP} lds" for c in range(2)]
            return out
        sLAY, sNS = S_B, S_CNT
        pub = [f"buffer_store_dword v{DF}, off, {WS}, s{sDF} sc1", f"s_mov_b32 s{sDF}, 0x80000000"]
        def flush_pub():
            k("s_waitcnt vmcnt(0)")
            for x in pub:
                k(x)
        L4_ = 1
        NL_ = 4 if L4_ else 8
        def look():
            for kk in range(4):
                k(f"buffer_load_dwordx4 {vr(F+4*kk,4)}, v{V_L16}, {WS}, s{sFM} offen offset:{kk*1024} {LP}")
            for i in range(0 if L4_ else 4):
                k(f"buffer_load_dwordx2 {vr(VM+2*i,2)}, v{VO}, {WS}, s{sFM} offen offset:{i*1024} {LP}")
        key_load = f"buffer_load_dwordx2 {vr(KY,2)}, v{KY+2}, {WS}, 0 offen sc1"
        def keys_issue(t):
            k(f"""v_lshrrev_b32 v{KY+2}, 4, v{V_LANE}
                  s_sub_u32 s{t}, s{sNX}, {KB_ + 3}
                  v_add_u32 v{KY+2}, s{t}, v{KY+2}
                  v_max_i32 v{KY+2}, 0, v{KY+2}
                  v_lshl_add_u32 v{KY+2}, v{KY+2}, 13, v{KA}
                  {key_load}""")
        def fcheck():
            out = []
            for kk in range(4):
                f = F + 4 * kk
                out.append(f"v_max3_u32 v{TT}, v{f}, v{f+1}, v{TT if kk else f+2}")
                out.append(f"v_max3_u32 v{TT}, v{f+2}, v{f+3}, v{TT}")
            return out
        def vcheck():
            for i in range(4):
                k(f"v_max3_u32 v{TT}, v{VM+2*i}, v{VM+2*i+1}, v{TT}")
            k(f"v_cmp_eq_u32 vcc, -1, v{TT}")
        def check(w, n=1, extra=()):
            fc = fcheck()
            if L4_:
                k("""s_mov_b32 vcc_lo, 0x33333333
                     s_mov_b32 vcc_hi, 0x33333333""")
            for kk in range(4):
                if w:
                    k(f"s_waitcnt vmcnt({NL_-1+n-kk})")
                k(f"v_mfma_f32_16x16x32_bf16 {vr(S+8,4)}, {vr(F+4*kk,4)}, {vr(Q+4*kk,4)}, {'0' if kk == 0 else vr(S+8,4)}")
                if extra:
                    k(extra.pop(0))
                k(fc.pop(0)); k(fc.pop(0))
                for j in range(2 if L4_ else 0):
                    k(f"v_cndmask_b32_dpp v{VM+2*kk+j}, v{F+4*kk+j}, v{F+4*kk+2+j}, vcc quad_perm:[0,1,0,1] row_mask:0xf bank_mask:0xf")
            if L4_:
                k(f"v_cmp_eq_u32 vcc, -1, v{TT}")
                return
            if w:
                k(f"s_waitcnt vmcnt({n})")
            vcheck()
        def chain_wait(cond):
            A_, B_ = k.newlabel("L_ac"), k.newlabel("L_acb")
            k(f"s_cbranch_{cond} {A_}")
            k.label(B_)
            def stub():
                k.label(A_)
                for x in pub:
                    k(x)
                look()
                self.spend()
                check(True, 0)
                k(f"""s_cbranch_vccnz {A_}
                      s_branch {B_}""")
            stubs.append(stub)
        def pre(direct=False):
            k(f"""s_xor_b32 s{sBUF}, s{sBUF}, {64*KB}
                  s_and_b32 s{S_T}, s{S_LW}, 2048
                  s_lshl_b32 s{S_T}, s{S_T}, 4
                  s_add_u32 s{S_T}, s{S_T}, s{sBUF}
                  v_add_u32 v{RK}, s{S_T}, v{V_L16}
                  s_and_b32 s{S_T}, s{S_LW}, 1024
                  s_lshl_b32 s{S_T}, s{S_T}, 2
                  v_add_u32 v{TT}, s{S_T}, v{RK}
                  s_mov_b32 s{sFM}, s{sNK}
                  s_mov_b32 s{sNS}, s{sNX}""")
            for kk in range(4):
                k(f"ds_read_b128 {vr(Q+4*kk,4)}, v{TT} offset:{16*KB + kk*1024}")
                k(f"ds_read_b128 {vr(KK+4*kk,4)}, v{RK} offset:{kk*1024}")
                k(f"ds_read_b128 {vr(KK+16+4*kk,4)}, v{RK} offset:{4096 + kk*1024}")
            late = [f"ds_read_b128 {vr(F+4*i,4)}, v{RK} offset:{24*KB + i*1024}" for i in range(4)]
            if direct:
                late = []
                look()
            late += [f"ds_read_b128 {vr(V+4*i,4)}, v{RK} offset:{8*KB + i*1024}" for i in range(8)]
            for kk in range(4):
                k(f"s_waitcnt lgkmcnt({9 - 3*kk + 2*kk})")
                q = vr(Q + 4 * kk, 4)
                k(f"v_mfma_f32_16x16x32_bf16 {vr(S,4)}, {vr(KK+4*kk,4)}, {q}, {vr(TX0,4) if kk == 0 else vr(S,4)}")
                k(late.pop(0))
                k(f"v_mfma_f32_16x16x32_bf16 {vr(S+4,4)}, {vr(KK+16+4*kk,4)}, {q}, {vr(TX1,4) if kk == 0 else vr(S+4,4)}")
                k(late.pop(0))
            if direct:
                return
            k("s_waitcnt lgkmcnt(4)")
            check(False, extra=late)
        poll = f"buffer_load_dword v{FL}, v{L4}, {WS}, s{sCW} offen sc1"
        pcmp = f"v_cmp_gt_u32 vcc, s{sCNT}, v{FL}"
        def rloads(RD):
            out = [f"s_xor_b32 s{sRB}, s{sPT}, {PTX}"]
            for i in range(8):
                if i:
                    out.append(f"s_add_u32 s{sRB}, s{sRB}, 4096")
                out.append(f"buffer_load_dwordx4 {vr(RD+4*i,4)}, v{RL_}, {WS}, s{sRB} offen sc1")
            return out
        RD2 = 192
        def skip_test(t):
            return [f"s_bfe_u32 s{S_T}, s{sCNT}, 0x10002", f"v_lshrrev_b32 v{t}, s{S_T}, v{FL}", f"v_and_b32 v{t}, 1, v{t}",
                    f"v_cmp_ne_u32 vcc, 0, v{t}"]
        def post(fetch=False, tail=None, skip=None):
            t = TT
            pk = lambda op, i, o, m="": f"v_pk_{op}_f32 {vr(S+i,2)}, {vr(S+i,2)}, {vr(o,2)} op_sel_hi:[1,0]{m}"
            pa = opt.get("pollat", 1)
            k(f"""{poll if fetch and pa == 0 else ""}
                  v_max3_f32 v{t}, v{S}, v{S+1}, v{S+2}
                  v_max3_f32 v{t+1}, v{S+3}, v{S+4}, v{S+5}
                  v_max3_f32 v{t}, v{S+6}, v{S+7}, v{t}
                  v_max3_f32 v{t+1}, v{S+10}, v{S+11}, v{t+1}
                  v_max_f32 v{t}, v{t}, v{t+1}
                  v_max_f32 v{t+1}, v{t}, v{t+1}
                  {pk("mul", 0, CV)}
                  {pk("mul", 2, CV)}
                  v_permlane16_swap_b32 v{t}, v{t+1}
                  v_max_f32 v{t}, v{t}, v{t+1}
                  v_max_f32 v{t+1}, v{t}, v{t+1}
                  {pk("mul", 4, CV)}
                  {pk("mul", 6, CV)}
                  v_permlane32_swap_b32 v{t}, v{t+1}
                  v_max_f32 v{t}, v{t}, v{t+1}
                  v_mul_f32 v{t}, v{CV}, v{t}
                  {pk("mul", 10, CV)}
                  {poll if fetch and pa == 1 else ""}""")
            for i in (0, 2, 4, 6, 10):
                k(pk("add", i, t, " neg_lo:[0,1] neg_hi:[0,1]"))
            for i in (0, 1, 2, 3, 4, 5, 6, 7, 10, 11):
                k(f"v_exp_f32 v{S+i}, v{S+i}")
            k(f"""{poll if fetch and pa == 2 else ""}
                  v_pk_add_f32 {vr(Lr,2)}, {vr(S,2)}, {vr(S+2,2)}
                  v_pk_add_f32 {vr(Lr+2,2)}, {vr(S+4,2)}, {vr(S+6,2)}
                  v_pk_add_f32 {vr(Lr,2)}, {vr(Lr,2)}, {vr(S+10,2)}
                  v_pk_add_f32 {vr(Lr,2)}, {vr(Lr,2)}, {vr(Lr+2,2)}
                  v_add_f32 v{Lr+2}, v{Lr}, v{Lr+1}
                  v_add_f32 v{Lr+3}, v{Lr}, v{Lr+1}
                  v_permlane16_swap_b32 v{Lr+2}, v{Lr+3}
                  v_add_f32 v{Lr}, v{Lr+2}, v{Lr+3}
                  v_add_f32 v{Lr+1}, v{Lr+2}, v{Lr+3}
                  v_permlane32_swap_b32 v{Lr}, v{Lr+1}
                  v_add_f32 v{Lr}, v{Lr}, v{Lr+1}
                  v_rcp_f32 v{Lr}, v{Lr}""")
            nrm = [pk("mul", i, Lr) for i in (10, 0, 2, 4, 6)]
            nrm += [f"v_cvt_pk_bf16_f32 v{P+4}, v{S+10}, v{S+11}", f"v_cvt_pk_bf16_f32 v{P+7}, v{S+10}, v{S+11}"]
            cvp = [f"v_cvt_pk_bf16_f32 v{P+q}, v{S+2*q}, v{S+2*q+1}" for q in range(4)]
            rl = []
            if fetch:
                RT_, BK = k.newlabel("L_ap"), k.newlabel("L_apb")
                k(f"""s_waitcnt vmcnt(0)
                      {pcmp}""")
                for x in nrm[:5]:
                    k(x)
                nrm = nrm[5:]
                k(f"s_cbranch_vccnz {RT_}")
                k.label(BK)
                def stub():
                    k.label(RT_)
                    spin(FL, poll, pcmp)
                    k(f"s_branch {BK}")
                stubs.append(stub)
                self.mark(37)
                rl = rloads(RD2)
                k(rl.pop(0)); k(rl.pop(0))
                if skip:
                    for x in skip_test(TT) + nrm + cvp:
                        k(x)
                    nrm = []; cvp = []
                    k(f"""s_cbranch_vccnz {skip}
                          s_add_u32 s{sD}, s{sD}, 4""")
            for x in nrm:
                k(x)
            fin = lambda i: [f"v_cvt_pk_bf16_f32 v{F+4*i+r}, v{O+8*i+r}, v{O+8*i+4+r}" for r in range(4)]
            owr = lambda i: f"ds_write_b128 v{OW_}, {vr(F+4*i,4)} offset:{i*1024}"
            for i in range(8):
                k(f"v_mfma_f32_16x16x16_bf16 {vr(O+4*i,4)}, {vr(VM+2*(i>>1),2)}, {vr(P+4+2*(i&1),2)}, 0")
                if rl:
                    k(rl.pop(0))
                if cvp:
                    k(cvp.pop(0))
            for i in range(8):
                k(f"v_mfma_f32_16x16x32_bf16 {vr(O+4*i,4)}, {vr(V+4*i,4)}, {vr(P,4)}, {vr(O+4*i,4)}")
                if i in (5, 7):
                    k(owr((i - 5) // 2))
                elif rl:
                    k(rl.pop(0))
                if i >= 3:
                    for x in fin((i - 3) // 2)[2 * ((i - 3) & 1):][:2]:
                        k(x)
            for x in fin(2)[2:] + [owr(2)] + rl + fin(3) + [owr(3)]:
                k(x)
            if tail:
                k(tail)
            k("""s_waitcnt lgkmcnt(0)
                 s_barrier""")
        def pop_todo(n):
            for _ in range(n):
                k(f"""s_ff1_i32_b64 s{sNX}, {sr(sTODO,2)}
                      s_bitset0_b64 {sr(sTODO,2)}, s{sNX}""")
            k(f"s_min_u32 s{sNX}, s{sNX}, 64")
        DLAST = opt.get("dlast", 63)
        def no_more():
            k(f"""v_subrev_u32 v{VT}, s{sD}, v{V_LANE}
                  v_and_b32 v{VT}, 0x80000003, v{VT}
                  v_cmp_eq_u32 vcc, 0, v{VT}
                  v_lshlrev_b32 v{VT}, 2, v{V_LANE}
                  v_mov_b32 v{VT+1}, 0x40000000
                  v_cndmask_b32 v{VT}, v{VT+1}, v{VT}, vcc
                  v_mov_b32 v{VT+1}, 3
                  s_or_b32 s{S_T+3}, s{sHD}, s{S_W}
                  s_mov_b32 s{S_T+3}, {DEC}
                  s_cmov_b32 s{S_T+3}, 0x80000000
                  buffer_store_dword v{VT+1}, v{VT}, {WS}, s{S_T+3} offen sc1""")
        def plan_after_d():
            F_, J_ = k.newlabel("L_ae"), k.newlabel("L_af")
            k(f"""s_cmp_lg_u32 s{sKO}, {F_RK[1]}
                  s_cbranch_scc1 {F_}
                  s_mov_b32 s{sNX}, s{sBN}
                  s_mov_b32 s{sX}, 0""")
            plan_next(0)
            k(f"s_branch {J_}")
            k.label(F_)
            pop_todo(1)
            k(f"s_lshr_b32 s{S_T+5}, s{sSEL}, 5")
            plan_next(1, S_T + 5)
            k.label(J_)
        def plan_after_b(vec=False):
            NB_, J_ = k.newlabel("L_ab"), k.newlabel("L_aj")
            NM_ = k.newlabel("L_am")
            k(f"""s_add_u32 s{sBN}, s{sNS}, 4
                  s_cmp_lt_u32 s{sNS}, {KB_}
                  s_cbranch_scc1 {NB_}
                  s_cmp_ge_u32 s{sNS}, {DLAST}
                  s_cbranch_scc1 {NM_}""")
            def stub():
                k.label(NM_)
                no_more()
                k(f"s_branch {NB_}")
            stubs.append(stub)
            spin(KY, f"s_sleep {opt.get('slt', 4)}\n" + key_load, f"v_min_u32 v{TT+1}, v{KY}, v{KY+1}\nv_cmp_eq_u32 vcc, 0, v{TT+1}")
            k(f"v_max_u32 v{KY}, v{KY}, v{KY+1}")
            self.wmax_u32(KY, KY + 1)
            k(f"""v_readfirstlane_b32 s{S_T}, v{KY}
                  v_readlane_b32 s{S_T+1}, v{TH_}, s{sNS}
                  s_max_u32 s{sMAXK}, s{sMAXK}, s{S_T}
                  s_bitcmp0_b64 {sr(sLAG,2)}, s{sNS}
                  s_cbranch_scc1 {NB_}
                  s_mov_b32 s{sNX}, s{sD}
                  s_and_b32 s{sSEL}, s{sMAXK}, 0x7ff
                  s_sub_u32 s{sSEL}, 2047, s{sSEL}
                  s_cmp_lt_u32 s{sMAXK}, s{S_T+1}
                  s_cselect_b32 s{sSEL}, 4095, s{sSEL}
                  s_lshr_b32 s{S_T+5}, s{sSEL}, 5
                  s_mov_b32 s{sX}, 1""")
            plan_next(1, S_T + 5, vec)
            k(f"s_branch {J_}")
            k.label(NB_)
            k(f"""s_mov_b32 s{sNX}, s{sBN}
                  s_mov_b32 s{sX}, 0""")
            plan_next(0, None, vec)
            k.label(J_)
        def exch1(vote=0, keep=0):
            k(f"""s_add_u32 s{sCNT}, s{sCNT}, 4
                  s_bfe_u32 s{S_T}, s{sCNT}, 0x10002
                  s_bitset0_b32 s{sVB}, s{S_T}
                  s_lshl_b32 s{S_T}, {vote}, s{S_T}
                  s_or_b32 s{sVB}, s{sVB}, s{S_T}
                  s_or_b32 s{S_T}, s{sVB}, s{sCNT}
                  v_mov_b32 v{CN}, s{S_T}
                  s_xor_b32 s{sPT}, s{sPT}, {PTX}
                  s_waitcnt vmcnt({keep}) lgkmcnt(0)
                  buffer_store_dword v{CN}, off, {WS}, s{sCUR}{self.loc}""")
            for x in pub if opt.get("pub0") else ():
                k(x)
            self.mark(36)
        def reduce_items(RD, RA):
            out = []
            for i in range(8):
                d = vr(RA + 4 * (i >> 2), 4)
                out.append(("wv", "RD%d" % i))
                out.append(f"v_mfma_f32_16x16x32_bf16 {d}, {vr(SEL,4)}, {vr(RD+4*i,4)}, {'0' if i % 4 == 0 else d}")
                if i == 6:
                    out.append(f"ds_write_b128 v{RW_}, {vr(RA,4)}")
            out.append(("gap", 2))
            out.append(f"ds_write_b128 v{RW_}, {vr(RA+4,4)} offset:2048")
            return out
        def reduce_now(RD, RA, nmid=0):
            i = 0
            for x in reduce_items(RD, RA):
                if isinstance(x, str):
                    k(x)
                elif x[0] == "wv":
                    k(f"s_waitcnt vmcnt({7 - i + nmid})"); i += 1
            k(f"""s_waitcnt lgkmcnt(0)
                  s_barrier""")
            for x in () if opt.get("pub0") else pub:
                k(x)
            self.mark(38)
        def exch2(mid=None, nmid=0):
            WL = k.newlabel("L_aq")
            k.label(WL)
            k(poll)
            self.spend()
            k(f"""s_waitcnt vmcnt(0)
                  {pcmp}
                  s_cbranch_vccnz {WL}""")
            self.mark(37)
            for x in rloads(160):
                k(x)
            if mid:
                mid()
            reduce_now(160, 192, nmid)
        def row(layer, odd, regs, seg):
            A, PKr, Y, TM, X = regs
            if layer and odd:
                return [], [("mark", "xi")], []
            rd_ = [f"ds_read_b128 {vr(A,4)}, v{RR_}", ("t", "A", f"ds_read_b128 {vr(A+4,4)}, v{RR_} offset:16")]
            out = capture(self.unpack8, X, XI)
            if layer:
                NG_, BK = k.newlabel("L_ag"), k.newlabel("L_agb")
                out.append(f"v_readfirstlane_b32 s{R_+4}, v{GK}")
                out.append(f"s_cmp_eq_u32 s{R_+4}, 0\ns_cbranch_scc1 {NG_}\n{BK}:")
                def stub():
                    k.label(NG_)
                    hpage(R_ + 3, F_RK[1], seg)
                    self.word_wait(R_ + 3, R_ + 4, va=GK)
                    k(f"s_branch {BK}")
                stubs.append(stub)
            out.append(("mark", "xi"))
            out += [f"s_lshl_b32 s{R_}, s{seg}, 5", f"s_add_u32 s{R_}, s{R_}, s{sHD}", f"s_lshl_b32 s{R_+1}, s{R_}, 10",
                    f"s_add_u32 s{R_+2}, s{R_+1}, {X1_OFF[layer] if layer or odd else X2_OFF}", ("mark", "early")]
            def body():
                self.pack8(PKr, A)
                self.unpack8(A, PKr)
                self.add8(X, A)
                self.pack8(PKr, X)
                if layer or odd:
                    k(f"buffer_store_dwordx4 {vr(PKr,4)}, v{V_L16}, {WS}, s{R_+2} offen sc1")
                self.unpack8(X, PKr)
                self.layernorm(X, PKr + 4, TM)
                self.unpack8(Y, PKr + 4)
                if not odd:
                    self.add8(X, Y)
                    self.pack8(A, X)
                    if layer == 0:
                        k(f"buffer_store_dwordx4 {vr(A,4)}, v{V_L16}, {WS}, s{R_+2} offen sc1")
                        self.unpack8(X, A)
                        self.layernorm(X, A + 4, TM)
                        k(f"""s_add_u32 s{R_+2}, s{R_+1}, {H_OFF[1]}
                              buffer_store_dwordx4 {vr(A+4,4)}, v{V_L16}, {WS}, s{R_+2} offen sc1
                              v_mov_b32 v{DF}, 1""")
                        hpage(sDF, F_HX, seg)
                        return
                    k(f"buffer_store_dwordx4 {vr(A,4)}, v{V_L16}, {OUT}, s{R_+1} offen sc1")
                k(f"v_pk_mul_f32 {vr(KEY,2)}, {vr(Y,2)}, {vr(WR,2)}")
                for j in range(2, 8, 2):
                    k(f"v_pk_fma_f32 {vr(KEY,2)}, {vr(Y+j,2)}, {vr(WR+j,2)}, {vr(KEY,2)}")
                k(f"v_add_f32 v{KEY}, v{KEY}, v{KEY+1}")
                self.wsum(KEY, KEY + 1)
                self.round1(KEY)
                k(f"""v_ashrrev_i32 v{KEY+1}, 31, v{KEY}
                      v_or_b32 v{KEY+1}, 0x80000000, v{KEY+1}
                      v_xor_b32 v{KEY}, v{KEY}, v{KEY+1}
                      v_and_b32 v{KEY}, 0xffff0000, v{KEY}
                      s_sub_u32 s{R_+2}, {2047 + 2048}, s{R_}
                      v_or_b32 v{DF}, s{R_+2}, v{KEY}""")
                if layer == 0:
                    hpage(R_ + 2, 0, seg)
                    k(f"buffer_store_dword v{DF}, v{KR}, {WS}, s{R_+2} offen sc1")
                else:
                    hpage(sDF, 0, seg)
                    k(f"s_add_u32 s{sDF}, s{sDF}, s{sKO}")
            return rd_, out, [("wl", "A")] + capture(body)

        FINAL, T3, NXB, LATE, DRAIN, ROWS_, RD_, GOB, SLOW, SLB, FIN2, PL, PC, T3E, T3X = (k.newlabel("L_aa") for _ in range(15))
        if opt.get("ptwarm", 1) and not self.loc:
            for _ in range(2):
                for x in rloads(160):
                    k(x.replace(" sc1", ""))
                k(f"s_xor_b32 s{sPT}, s{sPT}, {PTX}")
        k(f"""s_cmp_lt_u32 s{sWK}, 2
              s_cbranch_scc1 {FINAL}
              s_sub_u32 s{sNX}, s{sWK}, 2
              s_mov_b32 s{sX}, 0
              s_mov_b32 s{sKO}, {F_RK[1]}""")
        plan_next(0)
        k(f"s_branch {SLOW}")

        bread = lambda u: [("t", "B%d%d" % (u, g), f"ds_read_b128 {vr(B+u*32+4*g,4)}, v{OB_} offset:{((g>>2)*2+u)*4096 + (g&3)*1024}") for g in range(8)]
        def head():
            h = R_ + 5
            return [("need", "xi"),
                    f"s_lshl_b32 s{h}, s{S_SEG}, 5", f"s_add_u32 s{h}, s{h}, s{sHD}", f"s_lshl_b32 s{h+1}, s{h}, 10",
                    f"s_lshl_b32 s{h+2}, s{S_SEG}, 10", f"s_add_u32 s{h+2}, s{h+2}, {X2P_OFF - X2_OFF}",
                    f"s_cmp_eq_u32 s{h}, s{sSEL}\ns_cselect_b32 s{h+2}, s{h+2}, s{h+1}",
                    f"s_add_u32 s{h+2}, s{h+2}, {X2_OFF}",
                    f"s_mov_b32 s{SRD_A+2}, {WS_SIZE}",
                    f"""s_cmp_eq_u32 s{sLAY}, 0
                        s_cselect_b32 s{h+2}, s{h+1}, s{h+2}
                        s_cselect_b64 {sr(SRD_A,2)}, {sr(P_X,2)}, {sr(P_WS,2)}
                        s_cmov_b32 s{SRD_A+2}, {2048*1024}""",
                    f"buffer_load_dwordx4 {vr(XI,4)}, v{V_L16}, {SA}, s{h+2} offen sc1",
                    f"s_lshr_b32 s{h+1}, s{sSEL}, 5",
                    f"s_cmp_lt_u32 s{S_SEG}, s{h+1}\ns_cselect_b32 s{h+1}, 1, 2",
                    f"v_mov_b32 v{VT+4}, s{h+1}",
                    f"s_lshl2_add_u32 s{h+2}, s{S_SEG}, {DEC}",
                    f"s_lshl_b32 s{h+1}, s{sHD}, 16", f"s_add_u32 s{h+1}, s{h+1}, s{sLAY}", f"s_add_u32 s{h+1}, s{h+1}, s{sKO}",
                    f"s_cmp_eq_u32 s{h+1}, {F_RK[1] + 1}\ns_cselect_b32 s{h+2}, s{h+2}, 0x80000000",
                    f"buffer_store_dword v{VT+4}, off, {WS}, s{h+2} sc1",
                    f"s_bitcmp1_b64 {sr(sHAD,2)}, s{S_SEG}\ns_cselect_b32 s{h+1}, {F_RK[1] - F_RK[0]}, 0"] \
                + capture(hpage, h, F_RK[0], S_SEG) \
                + [f"s_add_u32 s{h}, s{h}, s{h+1}", f"buffer_load_dword v{GK}, off, {WS}, s{h} sc1"] + capture(keys_issue, h)
        def pack(u):
            out = []
            for r in range(4):
                for p in range(4):
                    a_ = ACC + u * 32 + p * 8
                    out.append(f"v_cvt_pk_bf16_f32 v{PK+u*16+r*4+p}, v{a_+r}, v{a_+4+r}")
                out.append(f"s_add_u32 s{S_T+6}, s{sPT}, {(16*u+r)*16*KB}")
                out.append(f"buffer_store_dwordx4 {vr(PK+u*16+r*4,4)}, v{PT_}, {WS}, s{S_T+6} offen{self.loc}")
            return out
        GAP = opt.get("gap", 4)
        vote_rd = [f"ds_read_b128 {vr(VT,4)}, v{VR}", ("gap", 6), "s_waitcnt lgkmcnt(0)",
                   f"v_or3_b32 v{VT}, v{VT}, v{VT+1}, v{VT+2}", f"v_or_b32 v{VT}, v{VT}, v{VT+3}", ("gap", 1),
                   f"v_readfirstlane_b32 s{sLATE}, v{VT}"]
        BR2 = opt.get("brow", 0) == 2
        def t3(pend):
            vm = ["RD%d" % i for i in range(8)] if pend and (pend[0] or BR2) else ["old"]
            lg = []
            seen = set()
            def emit(x):
                tag = None
                if not isinstance(x, str):
                    if x[0] == "mark":
                        seen.add(x[1]); return 0
                    if x[0] in ("wv", "wl"):
                        q_ = vm if x[0] == "wv" else lg
                        n = len(q_) - 1 - max(i for i, t in enumerate(q_) if t == x[1])
                        k(f"s_waitcnt {'vmcnt' if x[0] == 'wv' else 'lgkmcnt'}({min(n, 63 if x[0] == 'wv' else 15)})")
                        return 1
                    tag, x = x[1], x[2]
                c = 0
                for ln in x.split("\n"):
                    ln = ln.strip()
                    k(ln)
                    if ln.startswith("buffer"):
                        vm.append("copy" if ln.endswith("lds") else tag); c += 2
                    elif ln.startswith("ds_"):
                        lg.append(tag); c += 2
                    elif ln.startswith("v_mfma"):
                        c += 2
                    elif not ln.endswith(":"):
                        c += 1
                return c
            self.mark(34)
            n_start = len(k.lines)
            b0 = bread(0)
            for x in b0[:2]:
                emit(x)
            fo = fetch_ops(S_T + 8, S_T + 9)
            k(f"""s_min_u32 s{S_T}, s{sST}, s{sST+1}
                  s_cmp_lt_u32 s{sNX}, 64
                  s_cselect_b32 s{S_T}, s{S_T}, 0
                  s_cmp_eq_u32 s{S_T}, 0
                  s_cselect_b32 s{sLATE}, 0x80000000, 0
                  v_mov_b32 v{VT}, s{sLATE}
                  s_or_b32 s{S_T+8}, s{sNQ}, s{sLATE}
                  s_or_b32 s{S_T+9}, s{sNK}, s{sLATE}
                  s_cmp_lt_u32 s{sX}, s{sLAY}
                  s_cselect_b32 s{S_T+9}, 0x80000000, s{S_T+9}""")
            for _ in range(5):
                k(fo.pop(0))
            vq = [("need", "bar")] + list(vote_rd)
            if pend and not pend[0] and not BR2:
                r0, early, r1 = row(0, pend[1], (96, 104, 112, 120, 88), sPS)
                for x in r0:
                    emit(x)
                ih = max(i_ for i_, x in enumerate(r1) if isinstance(x, str) and x.startswith("buffer_store"))
                r1[ih] = ("t", "H", r1[ih])
                qx = early + r1 + ([] if pend[1] else [("gap", opt.get("hgap", 40)), ("wv", "H")] + pub)
                early = []
                vq = [("need", "b1"), ("gap", 4), "s_waitcnt lgkmcnt(0)\ns_barrier", ("mark", "bar")] + list(vote_rd)
            elif pend:
                qx = [("at", opt.get("redat", 6))]
                for x in reduce_items(RD2, S):
                    qx += [x, ("gap", 1)] if isinstance(x, str) and x.startswith("v_mfma") else [x]
                r0, early, r1 = row(pend[0], pend[1], (96, 104, 112, 120, 88), sPS)
                qx += [("gap", 4), ("need", "W"), "s_waitcnt lgkmcnt(0)\ns_barrier"] + r0 + [("mark", "bar")] + ([] if opt.get("pub0") else pub) + [("gap", 4)] + r1
                if pend == (0, 0):
                    ih = max(i_ for i_, x in enumerate(qx) if isinstance(x, str) and x.startswith("buffer_store"))
                    qx[ih] = ("t", "H", qx[ih])
                    qx += [("gap", opt.get("hgap", 40)), ("wv", "H")] + pub
            else:
                early = []
                qx = [("mark", "xi"), ("need", "b1"), ("gap", 4), "s_waitcnt lgkmcnt(0)\ns_barrier", ("mark", "bar"),
                      ("at", opt.get("pubat", 36)), ("wv", "old")] + pub
            gap = GAP
            if pend and not pend[0]:
                del fo[-3:]
                if opt.get("fsplit") is not None:
                    ix = [i_ for i_, x in enumerate(fo) if x.endswith("lds")][opt["fsplit"]]
                    fo.insert(ix, ("at", opt.get("fodd", 100)) if pend[1] else ("need", "Hs"))
                    if not pend[1]:
                        ih = [i_ for i_, x in enumerate(qx) if not isinstance(x, str) and x[:2] == ("t", "H")][0]
                        qx.insert(ih + 1, ("mark", "Hs"))
                    gap = opt.get("fgap", 3)
            if opt.get("unpk", 1):
                qx = [y for x in qx for y in unpk(x)]
            pk0 = pack(0)
            cv0 = [x for x in pk0 if x.startswith("v_")]
            st0 = [y for x in pk0 if not x.startswith("v_") for y in ((x, ("gap", opt.get("stgap", 3))) if x.startswith("buffer") else (x,))]
            queues = [fo, b0[2:] + [f"ds_write_b32 v{VW}, v{VT}", ("mark", "W")] + bread(1) + [("mark", "b1")], vq,
                      early + head(), [("at", 66)] + cv0 + [("at", opt.get("stat", 92))] + st0, qx]
            order = [5, 0, 1, 2, 3, 4]
            def kind_of(x):
                x = x if isinstance(x, str) else (x[2] if x[0] == "t" else "s_")
                return "m" if x.startswith("v_mfma") else "v" if x.startswith("v_") else "x" if x.startswith(("ds_", "buffer")) else "s"
            def stalls(x):
                x = x if isinstance(x, str) else (x[2] if x[0] == "t" else None)
                if x is None:
                    return False
                c = Ins(x.split("\n")[0].strip())
                d = 1 if k.lines[-1].startswith("v_mfma") else 0
                for ln in reversed(k.lines[-4:]):
                    if ln.endswith(":"):
                        continue
                    if need(Ins(ln), c) > d:
                        return True
                    d += 1
                return False
            hold = [0] * len(queues)
            b1_before_bar = False
            cost = lambda x: 0 if not isinstance(x, str) and x[0] != "t" else 1.3
            TM_ = opt.get("tmaj", 2)
            pk1 = pack(1)
            cv1 = []
            if TM_:
                for p in range(3):
                    cv1 += [("at", 128 - 8 * TM_ + 2 * TM_ * (p + 1) + 1)] + [pk1[6 * r + p] for r in range(4)]
                pk1 = [x for i_, x in enumerate(pk1) if i_ % 6 > 2]
            queues.append(cv1); hold.append(0)
            for m in range(128):
                u, g, t = m >> 6, (m >> 3) & 7, m & 7
                if m >= 128 - 8 * TM_:
                    assert b1_before_bar
                    m_ = m - (128 - 8 * TM_)
                    t, g = 2 * (m_ // (2 * TM_)) + (m_ & 1), 8 - TM_ + (m_ % (2 * TM_)) // 2
                if t == 0 and ("bar" not in seen or not b1_before_bar):
                    emit(("wl", "B%d%d" % (u, g)))
                if m in (32, 64, 96):
                    self.mark(39 + m // 32)
                d = vr(ACC + u * 32 + t * 4, 4)
                k(f"v_mfma_f32_16x16x32_bf16 {d}, {vr(B+u*32+4*g,4)}, {ar((g*8+t)*4,4)}, {'0' if g == 0 else d}")
                left = sum(kind_of(x) == "v" for q_ in queues for x in q_)
                bud = 3 if left <= 2 * (opt.get("rowend", 116) - m) or "bar" not in seen else 4
                if pend and not pend[0] and (not BR2 or "bar" in seen):
                    bud = opt.get("bbud", 6) if any(kind_of(x) == "v" for x in qx) else 3
                n = 0
                def pick(kinds):
                    for qi in order:
                        q_ = queues[qi]
                        while q_ and not isinstance(q_[0], str) and q_[0][0] in ("at", "gap", "need", "mark") and hold[qi] <= m:
                            kind, val = q_[0]
                            if kind == "need" and val not in seen:
                                break
                            if kind == "at": hold[qi] = val
                            if kind == "gap": hold[qi] = m + val
                            if kind == "mark": seen.add(val)
                            q_.pop(0)
                        if q_ and hold[qi] <= m and not (not isinstance(q_[0], str) and q_[0][0] == "need") \
                                and kind_of(q_[0]) in kinds and not stalls(q_[0]):
                            x = q_.pop(0)
                            if isinstance(x, str) and x.endswith("lds"):
                                hold[qi] = m + gap
                            emit(x)
                            tx = x if isinstance(x, str) else x[2] if x[0] == "t" else ""
                            if kind_of(x) == "x" and opt.get("xc", 1):
                                return "x", 2 if tx.startswith(("ds_read", "ds_write_b32")) else 3
                            return kind_of(x), (x.count("\n") + 1 if isinstance(x, str) else 1)
                    return None
                if "b1" in seen and not any(isinstance(l_, str) and l_ == "s_barrier" for l_ in k.lines[n_start:]):
                    b1_before_bar = True
                if pend and not pend[0] and (not BR2 or "bar" in seen):
                    order = [0, 1, 5, 2, 3, 4, 6]
                elif "bar" in seen:
                    order = [0, 1, 2, 3, 5, 4] if m < 84 else [0, 1, 2, 3, 4, 6, 5]
                r_ = pick("x") or pick("s")
                n = r_[1] if r_ else 1
                while n < bud:
                    r_ = pick("vsm")
                    if not r_:
                        break
                    if r_[0] == "m":
                        r_ = pick("x") or pick("s")
                        n = r_[1] if r_ else 1
                        continue
                    n += r_[1]
                if m == 63:
                    assert "b1" in seen and "bar" in seen
                if "bar" in seen and pend and not (pend[0] and pend[1]):
                    assert "early" in seen
            assert not any(queues[:4]), [len(q_) for q_ in queues]
            self.t3left = getattr(self, "t3left", []) + [(pend, len(queues[4]), len(queues[5]))]
            self.mark(35)
            pk1 = queues[4] + queues[6] + pk1
            if ("wv", "H") in qx:
                i_ = qx.index(("wv", "H"))
                assert i_ < 2
                if not opt.get("hlate"):
                    pk1 += qx[i_:]
                del qx[:]
            while pk1 or qx:
                for q_ in (pk1, qx):
                    if q_:
                        x = q_.pop(0)
                        if isinstance(x, str) or x[0] not in ("at", "gap"):
                            emit(x)
            k(f"""s_cmp_lg_u32 s{sLATE}, 0
                  s_cbranch_scc1 {LATE}""")
            emit(("wv", "copy"))
        p00 = list(self.pend)
        V1 = k.newlabel("L_av")
        k.label(T3X)
        k(f"""s_bitcmp1_b32 s{S_W}, 0
              s_cbranch_scc1 {V1}""")
        for i in range(2):
            if i:
                k.label(V1)
            self.pend = list(p00)
            t3((1, i))
            if self.stamps and i == 0:
                k(f"s_mov_b32 s101, s{S_SEG}\ns_mov_b32 s{S_SEG}, s{sPS}")
                self.ev(22, va=240)
                k(f"s_mov_b32 s{S_SEG}, s101")
            k(f"s_branch {T3E}")
        T3B, V2_ = k.newlabel("L_av"), k.newlabel("L_av")
        if opt.get("brow", 0):
            k.label(T3B)
            k(f"""s_bitcmp1_b32 s{S_W}, 0
                  s_cbranch_scc1 {V2_}""")
            for i in range(2):
                if i:
                    k.label(V2_)
                self.pend = list(p00)
                t3((0, i))
                k(f"s_branch {T3E}")
        k.label(T3)
        self.pend = list(p00)
        t3(None)
        k.label(T3E)
        DB = k.newlabel("L_ao")
        k(f"""s_barrier
              s_cmp_lt_u32 s{sX}, s{sLAY}
              s_cbranch_scc1 {DB}""")
        pre()
        k(f"""s_cmp_eq_u32 s{sX}, 0
              s_cbranch_scc1 {NXB}""")
        p0 = list(self.pend)
        LATE2, SKIP = k.newlabel("L_al"), k.newlabel("L_ak")
        k(f"""s_cmp_lg_u64 vcc, 0
              s_cselect_b32 s{sMODE}, 1, 0
              s_andn2_b32 s{S_T+1}, s{sMODE}, s{sLAY}""")
        exch1(f"s{S_T+1}")
        plan_after_d()
        WT, WTB, SLD = (k.newlabel("L_a4") for _ in range(3))
        k(f"""s_cmp_ge_u32 s{sNS}, {opt.get("wdrain", 60)}
              s_cbranch_scc1 {WT}""")
        k.label(WTB)
        pw = list(self.pend)
        def stub():
            k.label(WT)
            k(f"""v_mov_b32 v{VT}, s{sMODE}
                  ds_write_b32 v{VW}, v{VT} offset:16
                  s_waitcnt lgkmcnt(0)
                  s_barrier
                  ds_read_b128 {vr(VT,4)}, v{VR} offset:16
                  s_waitcnt lgkmcnt(0)
                  v_or3_b32 v{VT}, v{VT}, v{VT+1}, v{VT+2}
                  v_or_b32 v{VT}, v{VT}, v{VT+3}
                  v_cmp_ne_u32 vcc, 0, v{VT}
                  s_cbranch_vccz {WTB}""")
            self.pend = list(pw)
            exch2()
            self.pend = []
            k(f"""s_mov_b32 s{sMODE}, 4
                  s_branch {ROWS_}""")
        stubs.append(stub)
        k(f"s_and_b32 s{sMODE}, s{sMODE}, s{sLAY}")
        chain_wait("scc1")
        BD = k.newlabel("L_ah")
        post(True, skip=SKIP, tail=f"""s_cmp_eq_u32 s{sLAY}, 0
                                       s_cbranch_scc1 {BD}""")
        p2 = list(self.pend)
        self.flush(va=240)
        k(f"""s_mov_b32 s{sPS}, s{S_SEG}
              s_mov_b32 s{S_SEG}, s{sNS}
              s_branch {T3X}""")
        k.label(BD)
        self.pend = p2
        NL, NLB = k.newlabel("L_a1"), k.newlabel("L_a2")
        k(f"""s_cmp_ge_u32 s{sBN}, 64
              s_cbranch_scc1 {NL}""")
        k.label(NLB)
        def stub():
            k.label(NL)
            no_more()
            k(f"s_branch {NLB}")
        stubs.append(stub)
        if BR2:
            k("""s_waitcnt lgkmcnt(0)
                 s_barrier""")
        else:
            reduce_now(RD2, 160)
        if opt.get("brow", 0):
            self.flush(va=240)
            self.ev(12, va=240)
            k(f"""s_mov_b32 s{sPS}, s{S_SEG}
                  s_mov_b32 s{S_SEG}, s{sNS}
                  s_mov_b32 s{sLAY}, 1
                  s_branch {T3B}""")
        else:
            k(f"""s_mov_b32 s{sMODE}, 1
                  s_branch {ROWS_}""")
        k.label(DB)
        self.pend = list(p0)
        pre(True)
        exch1(keep=NL_)
        if opt.get("hlate"):
            for x in pub:
                k(x)
        k(f"""s_mov_b32 s{sPS}, s{S_SEG}
              s_mov_b32 s{sMODE}, 3""")
        self.flush(va=240)
        k(f"s_branch {SLB}")
        k.label(NXB)
        self.pend = list(p0)
        exch1()
        exch2(mid=look, nmid=NL_)
        k(f"""s_mov_b32 s{sMODE}, 0
              s_branch {ROWS_}""")
        k.label(LATE)
        self.pend = list(p0)
        k(f"""s_add_u32 s{S_T}, s{sX}, s{sKO}
              s_cmp_lg_u32 s{S_T}, {F_RK[1] + 1}
              s_cbranch_scc1 {LATE2}""")
        exch1(1)
        plan_after_d()
        k(f"s_branch {SKIP}")
        k.label(LATE2)
        self.pend = list(p0)
        exch1()
        if opt.get("lpub", 1):
            for x in pub:
                k(x)
        k.label(SKIP)
        exch2()
        k(f"s_mov_b32 s{sMODE}, 2")
        k.label(ROWS_)
        RV = [k.newlabel("L_ar") for _ in range(3)]
        k(f"""s_cmp_lg_u32 s{sLAY}, 0
              s_cbranch_scc1 {RV[2]}
              s_bitcmp1_b32 s{S_W}, 0
              s_cbranch_scc1 {RV[1]}""")
        for i in range(3):
            k.label(RV[i])
            if i == 2:
                k(f"""s_bitcmp1_b32 s{S_W}, 0
                      s_cbranch_scc1 {RD_}""")
            for x in sum(row(i >> 1, i & 1, (160, 168, 176, 184, 200), S_SEG), []):
                if isinstance(x, str):
                    k(x)
                elif x[0] == "t":
                    k(x[2])
                elif x[0] == "wl":
                    k("s_waitcnt lgkmcnt(0)")
            if i < 2:
                k(f"s_branch {RD_}")
        k.label(RD_)
        self.flush(va=240)
        if self.stamps:
            E1, E2 = k.newlabel("L_ev"), k.newlabel("L_ev")
            k(f"s_cmp_lg_u32 s{sLAY}, 0\ns_cbranch_scc1 {E1}")
            self.ev(12, va=240)
            k(f"s_branch {E2}")
            k.label(E1)
            self.ev(22, va=240)
            k.label(E2)
        GOD = k.newlabel("L_ad")
        k(f"""s_cmp_eq_u32 s{sMODE}, 1
              s_cbranch_scc1 {GOD}
              s_cmp_eq_u32 s{sMODE}, 0
              s_cbranch_scc1 {GOB}
              s_cmp_eq_u32 s{sMODE}, 4
              s_cbranch_scc1 {SLD}
              s_cmp_ge_u32 s{sNX}, 64
              s_cbranch_scc1 {FIN2}""")
        k.label(SLOW)
        flush_pub()
        k(f"""v_mov_b32 v{ST}, 0
              s_mov_b32 s{sMODE}, 0""")
        spin(ST, st_load, f"v_cmp_eq_u32 vcc, 0, v{ST}")
        SLOW2 = k.newlabel("L_a3")
        k.label(SLOW2)
        k(f"""s_mov_b32 s{S_T+8}, s{sNQ}
              s_mov_b32 s{S_T+9}, s{sNK}""")
        for x in fetch_ops(S_T + 8, S_T + 9):
            k(x)
        keys_issue(S_T)
        k(f"""s_waitcnt vmcnt(0) lgkmcnt(0)
              s_barrier""")
        self.ev(20, va=240)
        pre()
        k(f"""s_waitcnt lgkmcnt(0)
              s_cmp_eq_u32 s{sX}, 0
              s_cbranch_scc1 {SLB}""")
        plan_after_d()
        k.label(SLD)
        flush_pub()
        for x in fcheck():
            k(x)
        k(f"v_cmp_eq_u32 vcc, -1, v{TT}")
        chain_wait("vccnz")
        post()
        k.label(GOD)
        k(f"""s_mov_b32 s{S_SEG}, s{sNS}
              s_mov_b32 s{sLAY}, 1
              s_branch {T3}""")
        k.label(GOB)
        flush_pub()
        k.label(SLB)
        k(f"""s_mov_b32 s{S_SEG}, s{sNS}
              s_mov_b32 s{sLAY}, 0""")
        plan_after_b(True)
        k(st_load)
        k(f"s_waitcnt vmcnt({3 if opt.get('hlate') else 2})")
        self.ev(15, va=240)
        check(False)
        k(f"s_cbranch_vccz {PC}")
        k.label(PL)
        if opt.get("sll"):
            k(f"s_sleep {opt['sll']}")
        look()
        k(st_load)
        self.spend()
        check(True)
        k(f"s_cbranch_vccnz {PL}")
        k.label(PC)
        self.ev(10, va=240)
        NP = k.newlabel("L_ai")
        rl_ = f"""v_readlane_b32 s{sST}, v{ST}, 0
                  v_readlane_b32 s{sST+1}, v{ST}, 1"""
        k(f"""s_cmp_lg_u32 s{sMODE}, 3
              s_cbranch_scc1 {NP}""")
        mk_, self.opt["marks"] = self.opt.get("marks", ()), ()
        post(True, tail=rl_)
        self.opt["marks"] = mk_
        k(f"s_branch {T3X}")
        k.label(NP)
        post(tail="s_waitcnt vmcnt(0)\n" + rl_)
        k(f"s_branch {T3}")
        k.label(FIN2)
        DONE = k.newlabel("L_az")
        k(f"""s_cmp_lg_u32 s{sKO}, {F_RK[1]}
              s_cbranch_scc1 {DONE}""")
        NN = k.newlabel("L_an")
        k(f"""s_cmp_ge_u32 s{sBN}, {DLAST + 4}
              s_cbranch_scc1 {FINAL}""")
        no_more()
        k.label(FINAL)
        flush_pub()
        self.ev(14, va=240)
        k(f"""v_lshlrev_b32 v{TT}, 2, v{V_LANE}
              v_add_u32 v{VT}, {VOTE + 64}, v{TT}
              s_cmp_lg_u32 s{S_W}, 0
              s_cbranch_scc1 {NN}
              s_lshl_b32 s{S_T+3}, s{sWK}, 13
              s_add_u32 s{S_T+3}, s{S_T+3}, {DEC + 8192}""")
        self.words_wait64(S_T + 3, TT, 1)
        k(f"""ds_write_b32 v{VT}, v{TT+1}
              s_waitcnt lgkmcnt(0)""")
        k.label(NN)
        k(f"""s_barrier
              ds_read_b32 v{TT+1}, v{VT}
              s_mov_b32 s{sKO}, {F_RK[2]}
              s_mov_b32 s{sX}, 1
              s_waitcnt lgkmcnt(0)
              v_readfirstlane_b32 s{sSEL}, v{TT+1}
              v_and_b32 v{TT+1}, 255, v{TT+1}
              s_lshr_b32 s{sSEL}, s{sSEL}, 8
              s_lshr_b32 s{S_T+5}, s{sSEL}, 5
              v_cmp_ne_u32 {sr(sHAD,2)}, 3, v{TT+1}""")
        self.todo_mask(sTODO, TT)
        k(f"""s_bcnt1_i32_b64 s{S_T}, {sr(sTODO,2)}
              v_mbcnt_lo_u32_b32 v{TT}, s{sTODO}, 0
              v_mbcnt_hi_u32_b32 v{TT}, s{sTODO+1}, v{TT}
              s_mul_i32 s{S_T}, s{S_T}, {opt.get("share", 15)}
              s_add_u32 s{S_T}, s{S_T}, {opt.get("shr", 130)}
              s_lshr_b32 s{S_T}, s{S_T}, 7
              s_lshl_b32 s{S_T}, s{S_T}, 1
              v_cmp_gt_u32 vcc, s{S_T}, v{TT}
              v_and_b32 v{TT+1}, 1, v{TT}
              v_and_b32 v{TT}, 3, v{TT}
              v_add_u32 v{TT}, 2, v{TT}
              v_cndmask_b32 v{TT}, v{TT}, v{TT+1}, vcc
              v_cmp_eq_u32 vcc, s{sWK}, v{TT}
              s_and_b64 {sr(sTODO,2)}, {sr(sTODO,2)}, vcc""")
        pop_todo(1)
        plan_next(1, S_T + 5)
        k(f"""s_cmp_ge_u32 s{sNX}, 64
              s_cbranch_scc1 {DONE}
              s_cmp_eq_u32 s{sNX}, s{S_T+5}
              s_cbranch_scc1 {SLOW}
              s_mov_b32 s{sMODE}, 0
              s_bitcmp1_b64 {sr(sHAD,2)}, s{sNX}
              s_cbranch_scc1 {SLOW2}
              s_branch {SLOW}""")
        k.label(DONE)
        flush_pub()
        self.ev(23, va=240)
        k("s_endpgm")
        for st in stubs:
            st()

    def both(self, fn, name):
        self.k(f"""s_cmp_lg_u32 s{S_SLOW}, 0
                   s_cbranch_scc1 {name}""")
        fn()
        self.later.append((fn, name))

    def clean(self, bit, wait=True):
        if not (self.opt.get("wb", 0) >> bit) & 1:
            return
        k = self.k
        Y = k.newlabel("L_y")
        k(f"""s_and_b32 s{S_T}, s{S_H}, 15
              s_or_b32 s{S_T}, s{S_T}, s{S_W}
              s_cbranch_scc1 {Y}
              buffer_wbl2 sc1""")
        if wait:
            k("s_waitcnt vmcnt(0)")
        k.label(Y)

    def program(self):
        k = self.k
        self.later = []
        self.prologue()
        self.ev(4, clk="s_mov_b64 s[82:83], s[98:99] ;")
        self.ev(0)
        LCH, LM, LA, LA2, C1, C2 = (k.newlabel(x) for x in ("L_rch", "L_rm", "L_ra", "L_rb", "L_rc1", "L_rc2"))
        k.label("L_roles")
        if self.opt.get("hold", 6):
            X = k.newlabel("L_x")
            k(f"""s_lshl_b32 s{S_T}, 1, s{S_G}
                  s_and_b32 s{S_T}, s{S_T}, {self.opt.get("hold", 6)}
                  s_cbranch_scc0 {X}""")
            self.init_rows(0)
            k("s_waitcnt vmcnt(0)")
            self.arrive()
            self.wait_all()
            for g, n in enumerate(self.opt.get("hd", (0, 0))):
                if n:
                    Y = k.newlabel("L_y")
                    k(f"""s_cmp_lg_u32 s{S_G}, {g + 1}
                          s_cbranch_scc1 {Y}""")
                    while n > 0:
                        k(f"s_sleep {min(n, 127)}")
                        n -= 127
                    k.label(Y)
            k.label(X)
        k(f"""s_cmp_ge_u32 s{S_G}, 6
              s_cbranch_scc1 {LA}""")
        self.load_qkv()
        self.ev(2)
        k(f"""s_cmp_lt_u32 s{S_G}, 3
              s_cbranch_scc1 {LCH}
              s_cmp_eq_u32 s{S_G}, 3
              s_cbranch_scc1 {LM}""")
        self.wait_all()
        self.ev(3)
        self.role_proj()
        self.clean(0)
        k("s_endpgm")
        k.label(LM)
        self.load_gate_up()
        self.wait_all()
        self.ev(3)
        def moe():
            self.role_moe()
            k("s_endpgm")
        self.both(moe, "L_wm")
        k.label("L_abort")
        k("s_endpgm")
        k.label("L_spread")
        k(f"""s_mov_b32 s{S_SLOW}, -1
              s_lshr_b32 s{S_G}, s2, 5
              s_and_b32 s{S_H}, s2, 31""")
        if self.stamps:
            k(f"""s_lshl_b32 s{S_EV}, s2, 12
                  s_add_u32 s{S_EV}, s{S_EV}, {STAMP_OFF + MB}""")
            self.ev(0)
        k("s_branch L_roles")
        k.label(LA)
        if not self.opt.get("warm", 1):
            self.init_rows(0)
        if self.opt.get("warm", 1):
            self.warm()
        if self.opt.get("tawait", 0):
            self.wait_all()
            k(f"""s_bfe_u32 s{S_T+3}, s{S_H}, 0x10004
                  s_lshl_b32 s{S_T+3}, s{S_T+3}, 13
                  s_add_u32 s{S_T+3}, s{S_T+3}, {PG_OFF + F_KV[0]}""")
            self.flags_wait32(S_T + 3, one=True, sleep=4)
        k.label(LA2)
        self.ev(2)
        self.load_wo2()
        self.wait_all()
        self.ev(3)
        k(f"""s_max_u32 s54, s{S_G}, 5
              s_sub_u32 s54, s54, 5
              s_lshl_b32 s54, s54, 1
              s_lshr_b32 s{S_T}, s{S_H}, 4
              s_add_u32 s54, s54, s{S_T}""")
        def att():
            self.role_att(None)
            self.clean(1)
            k("s_endpgm")
        self.both(att, "L_wa")
        k.label(LCH)
        S0 = k.newlabel("L_rs")
        self.load_wo(2)
        k(f"""s_cmp_eq_u32 s{S_G}, 0
              s_cbranch_scc1 {S0}""")
        self.load_wo(3)
        k.label(S0)
        self.wait_all(True)
        self.ev(3)
        self.chain_helps()
        def chains():
            C1, C2 = k.newlabel("L_rc1"), k.newlabel("L_rc2")
            k(f"""s_cmp_eq_u32 s{S_G}, 1
                  s_cbranch_scc1 {C1}
                  s_cmp_eq_u32 s{S_G}, 2
                  s_cbranch_scc1 {C2}""")
            self.chain(0)
            self.clean(2, False)
            k(f"""s_mov_b32 s{S_CNT}, 0
                  s_branch {LA2}""")
            k.label(C1)
            self.chain(1)
            self.clean(3)
            k("s_endpgm")
            k.label(C2)
            self.chain(2)
            self.clean(3)
            k("s_endpgm")
        self.both(chains, "L_wc")
        self.loc = " sc1"
        self.abort = "L_abort2"
        k.label("L_abort2")
        k("s_endpgm")
        for fn, name in reversed(self.later):
            k.label(name)
            k.fence()
            if self.opt.get("noslow"):
                k("s_endpgm")
            else:
                fn()

HEADER = open(__file__.rsplit("/", 1)[0] + "/header.txt").read() if "/" in __file__ else open("header.txt").read()

def build(**kw):
    g = Gen(**kw)
    g.program()
    print("t3 leftovers", getattr(g, "t3left", None), file=sys.stderr)
    body = g.k.finalize()
    return (HEADER + f"; @launch grid=(256,1,1) block=(256,1,1) lds={LDS_SIZE}\n"
        + f""".amdgcn_target "amdgcn-amd-amdhsa--gfx950"
.text
.globl {NAME}_kernel
.p2align 8
.type {NAME}_kernel,@function
{NAME}_kernel:
""" + body + f""".section .rodata,"a"
.p2align 6
.amdhsa_kernel {NAME}_kernel
  .amdhsa_next_free_vgpr 512
  .amdhsa_next_free_sgpr 102
  .amdhsa_accum_offset 256
  .amdhsa_group_segment_fixed_size 0
  .amdhsa_kernarg_size 120
  .amdhsa_user_sgpr_count 2
  .amdhsa_user_sgpr_kernarg_segment_ptr 1
  .amdhsa_system_sgpr_workgroup_id_x 1
  .amdhsa_float_denorm_mode_32 3
.end_amdhsa_kernel
""")

if __name__ == "__main__":
    import argparse
    ap = argparse.ArgumentParser()
    ap.add_argument("-o", default=f"/code/{NAME}.s")
    ap.add_argument("--stop", default=None)
    ap.add_argument("--stamps", type=int, default=0)
    ap.add_argument("--slow", action="store_true")
    ap.add_argument("--opt", default="{}")
    a = ap.parse_args()
    stop = None
    if a.stop:
        l, p = a.stop.split(":"); stop = (int(l), p)
    open(a.o, "w").write(build(fast=not a.slow, stop=stop, stamps=a.stamps, opt=eval(a.opt)))
```

```python
import sys, math
from asmlib import K, vr, ar, sr, Ins, need
from layout import *

NAME = "interleave_layers__memory_aug_recurrent_mem_tr__moe_arch_mod__prompt"

SRD_A = 4
SRD_WS = 8
SRD_DBG = 12
P_X, P_MEM0, P_WQ, P_WK, P_WV, P_WO = 16, 18, 20, 22, 24, 26
P_WR, P_WG, P_WU, P_WD, P_OUT, P_DBG, P_WS = 32, 34, 36, 38, 40, 42, 44
S_W, S_H, S_G, S_BUD = 46, 47, 48, 49
S_SLOW = 3
S_LW = 50
S_SEG, S_OOB, S_CNT = 51, 52, 53
S_T = 56
S_C = 80
S_EV = 81
S_ONE = 28
S_A, S_B = 30, 31
LOOK = 2
WS = sr(SRD_WS, 4); SA = sr(SRD_A, 4); DBG = sr(SRD_DBG, 4)

SCALE_LOG2E = (128 ** -0.5) * math.log2(math.e)
def f32(x):
    import struct
    return "0x%08x" % struct.unpack("<I", struct.pack("<f", x))[0]
NEGBIG = f32(-1e30)

def wq(ks, t, half=None):
    b = (ks * 2 + t) * 8
    return ar(b, 8) if half is None else ar(b + 4 * half, 4)
def wk(ks, t, half=None):
    b = 128 + (ks * 2 + t) * 8
    return ar(b, 8) if half is None else ar(b + 4 * half, 4)
def wv(ks, t, half=None):
    b = 128 + (ks * 2 + t) * 8
    return vr(b, 8) if half is None else vr(b + 4 * half, 4)

def unpk(x):
    import re
    if not isinstance(x, str) or not x.startswith("v_pk_"):
        return [x]
    ins = Ins(x)
    mod = lambda nm, d: [int(c) for c in re.search(nm + r":\[([01,]+)\]", ins.mods).group(1).split(",")] if re.search(nm + r":\[", ins.mods) else d
    n = len(ins.ops) - 1
    lo, hi = mod(r"op_sel", [0] * n), mod("op_sel_hi", [1] * n)
    if "op_sel:" not in ins.mods:
        lo = [0] * n
    ng = mod("neg_lo", [0] * n)
    base = [re.match(r"([vs])\[(\d+):", o).groups() for o in ins.ops]
    out = []
    for h, sel in enumerate((lo, hi)):
        src = [("-" if ng[i] else "") + base[i+1][0] + str(int(base[i+1][1]) + sel[i]) for i in range(n)]
        out.append(f"{ins.op.replace('v_pk_', 'v_')} v{int(base[0][1]) + h}, " + ", ".join(src))
    return out

V_L16 = 0
V_LANE = 1

class Gen:
    def __init__(self, fast=True, stop=None, stamps=False, opt=None):
        self.opt = opt or {}
        self.LH = L_H
        self.pend = []
        self.mk = 0
        self.k = K()
        self.fast = fast
        self.loc = "" if fast else " sc1"
        self.stop = stop
        self.abort = "L_abort"
        self.stamps = stamps

    def srd(self, ptr, nbytes):
        k = self.k
        k(f"""s_mov_b32 s{SRD_A}, s{ptr}
              s_mov_b32 s{SRD_A+1}, s{ptr+1}
              s_mov_b32 s{SRD_A+2}, {nbytes}
              s_mov_b32 s{SRD_A+3}, 0x20000""")

    def budget(self, retry):
        self.k(f"""s_sub_u32 s{S_BUD}, s{S_BUD}, 1
                   s_cmp_gt_i32 s{S_BUD}, 0
                   s_cbranch_scc1 {retry}
                   s_branch {self.abort}""")

    def spend(self, inc=None, cnt=None):
        if self.stamps and inc:
            self.k(f"s_add_u32 s{cnt}, s{cnt}, {inc}")
        self.k(f"""s_sub_u32 s{S_BUD}, s{S_BUD}, 1
                   s_cbranch_scc1 {self.abort}""")

    def wsum(self, x, t):
        k = self.k
        for r in (8, 4, 2, 1):
            k(f"v_add_f32_dpp v{x}, v{x}, v{x} row_ror:{r} row_mask:0xf bank_mask:0xf")
        k(f"""v_mov_b32 v{t}, v{x}
              v_permlane16_swap_b32 v{x}, v{t}
              v_add_f32 v{x}, v{x}, v{t}
              v_mov_b32 v{t}, v{x}
              v_permlane32_swap_b32 v{x}, v{t}
              v_add_f32 v{x}, v{x}, v{t}""")

    def unpack8(self, dst, src):
        k = self.k
        for q in range(4):
            k(f"v_lshlrev_b32 v{dst+2*q}, 16, v{src+q}")
            k(f"v_and_b32 v{dst+2*q+1}, 0xffff0000, v{src+q}")

    def pack8(self, dst, src):
        for q in range(4):
            self.k(f"v_cvt_pk_bf16_f32 v{dst+q}, v{src+2*q}, v{src+2*q+1}")

    def round1(self, x):
        self.k(f"""v_cvt_pk_bf16_f32 v{x}, v{x}, v{x}
                   v_and_b32 v{x}, 0xffff0000, v{x}""")

    def layernorm(self, x, ypk, tmp):
        k = self.k
        d = tmp; s = tmp + 8; q = tmp + 10; t = tmp + 12
        c = S_T + 22
        k(f"v_readfirstlane_b32 s{c}, v{x}")
        for j in range(0, 8, 2):
            k(f"v_pk_add_f32 {vr(d+j,2)}, {vr(x+j,2)}, {sr(c,2)} op_sel_hi:[1,0] neg_lo:[0,1] neg_hi:[0,1]")
        k(f"""v_pk_add_f32 {vr(s,2)}, {vr(d,2)}, {vr(d+2,2)}
              v_pk_mul_f32 {vr(q,2)}, {vr(d,2)}, {vr(d,2)}
              v_pk_add_f32 {vr(t,2)}, {vr(d+4,2)}, {vr(d+6,2)}
              v_pk_fma_f32 {vr(q,2)}, {vr(d+2,2)}, {vr(d+2,2)}, {vr(q,2)}
              v_pk_add_f32 {vr(s,2)}, {vr(s,2)}, {vr(t,2)}
              v_pk_fma_f32 {vr(q,2)}, {vr(d+4,2)}, {vr(d+4,2)}, {vr(q,2)}
              v_add_f32 v{s}, v{s}, v{s+1}
              v_pk_fma_f32 {vr(q,2)}, {vr(d+6,2)}, {vr(d+6,2)}, {vr(q,2)}
              v_add_f32 v{q}, v{q}, v{q+1}""")
        k(f"""v_permlane32_swap_b32 v{s}, v{q}
              v_add_f32 v{s}, v{s}, v{q}""")
        for r in (8, 4, 2, 1):
            k(f"v_add_f32_dpp v{s}, v{s}, v{s} row_ror:{r} row_mask:0xf bank_mask:0xf")
        k(f"""v_mov_b32 v{q}, v{s}
              v_permlane16_swap_b32 v{s}, v{q}
              v_add_f32 v{s}, v{s}, v{q}
              v_mul_f32 v{s}, {f32(1.0/512)}, v{s}
              v_mov_b32 v{q}, v{s}
              v_permlane32_swap_b32 v{s}, v{q}
              v_fma_f32 v{q}, -v{s}, v{s}, v{q}
              v_add_f32 v{s}, s{c}, v{s}
              v_max_f32 v{q}, 0, v{q}
              v_cvt_pk_bf16_f32 v{q}, v{s}, v{q}
              v_lshlrev_b32 v{s}, 16, v{q}
              v_and_b32 v{q}, 0xffff0000, v{q}
              v_add_f32 v{q}, {f32(1e-5)}, v{q}""")
        self.round1(q)
        k(f"v_sqrt_f32 v{q}, v{q}")
        for j in range(0, 8, 2):
            k(f"v_pk_add_f32 {vr(d+j,2)}, {vr(x+j,2)}, {vr(s,2)} op_sel_hi:[1,0] neg_lo:[0,1] neg_hi:[0,1]")
        self.round1(q)
        k(f"v_rcp_f32 v{q}, v{q}")
        self.pack8(ypk, d)
        self.unpack8(d, ypk)
        for j in range(0, 8, 2):
            k(f"v_pk_mul_f32 {vr(d+j,2)}, {vr(d+j,2)}, {vr(q,2)} op_sel_hi:[1,0]")
        self.pack8(ypk, d)

    def add8(self, x, y):
        for j in range(0, 8, 2):
            self.k(f"v_pk_add_f32 {vr(x+j,2)}, {vr(x+j,2)}, {vr(y+j,2)}")

    def arrive(self):
        k = self.k
        D = k.newlabel("L_ar")
        k(f"""s_barrier
              s_cmp_lg_u32 s{S_W}, 0
              s_cbranch_scc1 {D}
              v_mov_b32 v8, 240
              v_mov_b32 v9, s{S_CNT}
              s_mov_b64 exec, 1
              buffer_atomic_add v9, v8, {DBG}, 0 offen
              s_mov_b64 exec, -1""")
        k.label(D)
        k(f"s_mov_b32 s{S_CNT}, 0")
        self.ev(1, va=10)

    def wait_all(self, quick=False):
        k = self.k
        L = k.newlabel("L_gb"); D = k.newlabel("L_gbd")
        k(f"""v_mov_b32 v123, {L_MISC}
              s_cmp_lg_u32 s{S_W}, 0
              s_cbranch_scc1 {D}
              v_mov_b32 v124, 240""")
        if quick:
            k(f"""s_buffer_load_dword s{S_T}, {DBG}, 240
                  s_waitcnt lgkmcnt(0)
                  v_mov_b32 v125, s{S_T}
                  ds_write_b32 v123, v125
                  s_bitcmp1_b32 s{S_T}, 8
                  s_cbranch_scc1 {D}""")
        k.label(L)
        k(f"""buffer_load_dword v125, v124, {DBG}, 0 offen sc1
              s_waitcnt vmcnt(0)
              v_readfirstlane_b32 s{S_T}, v125
              ds_write_b32 v123, v125
              s_bitcmp1_b32 s{S_T}, 8
              s_cbranch_scc1 {D}
              s_sleep {self.opt.get("sla", 4)}""")
        self.budget(L)
        k.label(D)
        k(f"""s_waitcnt lgkmcnt(0)
              s_barrier
              ds_read_b32 v125, v123
              s_waitcnt lgkmcnt(0)
              v_readfirstlane_b32 s{S_T}, v125
              s_barrier
              s_lshr_b32 s{S_T}, s{S_T}, 16
              s_andn2_b32 s{S_T}, s{S_T}, s{S_SLOW}
              s_cbranch_scc1 L_spread""")

    def page(self, dst, off, seg=S_SEG, head=True):
        k = self.k
        k(f"s_lshl_b32 s{dst}, s{seg}, 13")
        if head:
            k(f"s_lshl2_add_u32 s{dst}, s{S_H}, s{dst}")
        k(f"s_add_u32 s{dst}, s{dst}, {PG_OFF + off}")

    def word_wait(self, s_off, s_val, va=125, sleep=0, quick=False):
        k = self.k
        L, D = k.newlabel("L_ww"), k.newlabel("L_wwd")
        if quick:
            k(f"""s_buffer_load_dword s{s_val}, {WS}, s{s_off}
                  s_waitcnt lgkmcnt(0)
                  s_cmp_lg_u32 s{s_val}, 0
                  s_cbranch_scc1 {D}""")
        k.label(L)
        if sleep:
            k(f"s_sleep {sleep}")
        k(f"buffer_load_dword v{va}, off, {WS}, s{s_off} sc1")
        self.spend()
        k(f"""s_waitcnt vmcnt(0)
              v_readfirstlane_b32 s{s_val}, v{va}
              s_cmp_eq_u32 s{s_val}, 0
              s_cbranch_scc1 {L}""")
        k.label(D)

    def stamp(self, name):
        pts = self.opt.get("pts", [0, 1, 2, 3, 4, 5, 6, 7])
        if self.stamps > 1 and name in pts:
            i = pts.index(name)
            self.k(f"s_memtime s[{84+2*i}:{85+2*i}]")

    def ev(self, tag, va=126, clk="s_memrealtime"):
        if not self.stamps:
            return
        k = self.k
        D = k.newlabel("L_ps")
        k(f"""s_cmp_lg_u32 s{S_W}, 0
              s_cbranch_scc1 {D}
              {clk} s[82:83]
              s_or_b32 s100, s{S_SEG}, {tag << 8}
              s_waitcnt lgkmcnt(0)
              s_mov_b64 exec, 1
              v_mov_b32 v{va}, s82
              v_mov_b32 v{va+1}, s100
              buffer_store_dwordx2 {vr(va,2)}, off, {WS}, s{S_EV}
              s_mov_b64 exec, -1
              s_add_u32 s{S_EV}, s{S_EV}, 8""")
        k.label(D)

    def mark(self, tag):
        if self.stamps != 1 or tag not in self.opt.get("marks", ()):
            return
        i = len(self.pend); assert i < 6
        self.pend.append(tag)
        self.k(f"{'s_memtime' if self.opt.get('mt') else 's_memrealtime'} s[{88+2*i}:{89+2*i}]")

    def flush(self, va=126):
        if not self.pend:
            return
        k = self.k
        D = k.newlabel("L_fl")
        k(f"""s_cmp_lg_u32 s{S_W}, 0
              s_cbranch_scc1 {D}
              s_waitcnt lgkmcnt(0)
              s_mov_b64 exec, 1""")
        for i, tag in enumerate(self.pend):
            k(f"""s_or_b32 s100, s{S_SEG}, {tag << 8}
                  v_mov_b32 v{va}, s{88+2*i}
                  v_mov_b32 v{va+1}, s100
                  buffer_store_dwordx2 {vr(va,2)}, off, {WS}, s{S_EV}
                  s_add_u32 s{S_EV}, s{S_EV}, 8""")
        k("s_mov_b64 exec, -1")
        k.label(D)
        self.pend = []

    def prologue(self):
        k = self.k
        k(f"""s_cmp_ge_u32 s2, 256
              s_cbranch_scc1 L_abort
              {"s_memrealtime s[98:99]" if self.stamps else ""}
              s_load_dwordx16 s[16:31], s[0:1], 0
              s_load_dwordx8 s[32:39], s[0:1], 64
              s_load_dwordx4 s[40:43], s[0:1], 96
              s_load_dwordx2 s[44:45], s[0:1], 112
              v_lshrrev_b32 v2, 6, v0
              v_and_b32 v{V_LANE}, 63, v0
              v_readfirstlane_b32 s{S_W}, v2
              v_lshlrev_b32 v{V_L16}, 4, v{V_LANE}
              s_getreg_b32 s{S_G}, hwreg(HW_REG_XCC_ID)
              s_and_b32 s{S_G}, s{S_G}, {self.opt.get("xmask", 7)}
              s_lshl_b32 s{S_G}, s{S_G}, 2
              s_lshr_b32 s{S_G}, {sum(g << (4*x) for x, g in enumerate(self.opt.get("map", (0, 6, 2, 4, 1, 7, 3, 5))))}, s{S_G}
              s_and_b32 s{S_G}, s{S_G}, 7
              s_mov_b32 s{S_BUD}, 100000
              s_mov_b32 s{S_C}, {f32(SCALE_LOG2E)}
              s_waitcnt lgkmcnt(0)
              s_mov_b32 s{SRD_WS}, s{P_WS}
              s_mov_b32 s{SRD_WS+1}, s{P_WS+1}
              s_mov_b32 s{SRD_WS+2}, {WS_SIZE}
              s_mov_b32 s{SRD_WS+3}, 0x20000
              s_mov_b32 s{SRD_DBG}, s{P_DBG}
              s_mov_b32 s{SRD_DBG+1}, s{P_DBG+1}
              s_mov_b32 s{SRD_DBG+2}, 256
              s_mov_b32 s{SRD_DBG+3}, 0x20000""")
        T = k.newlabel("L_tk")
        k(f"""s_lshl_b32 s{S_T}, s{S_G}, 2
              s_lshr_b32 s{S_T}, {sum(g << (4*x) for x, g in enumerate(self.opt.get("tw", (0, 12, 13, 14, 2, 4, 8, 10))))}, s{S_T}
              s_and_b32 s{S_T}, s{S_T}, 15
              s_lshl_b32 s{S_T}, s{S_T}, 4
              v_mov_b32 v14, s{S_T}
              v_mov_b32 v15, 1
              s_cmp_lg_u32 s{S_W}, 0
              s_cbranch_scc1 {T}
              s_cmp_ge_u32 s{S_T}, 192                       ; groups that are needed later ask later
              s_cbranch_scc1 {T}
              s_mov_b64 exec, 1
              buffer_atomic_add v15, v14, {DBG}, 0 offen sc0
              s_mov_b64 exec, -1""")
        k.label(T)
        self.init_ws()
        T = k.newlabel("L_tk")
        k(f"""s_cmp_lg_u32 s{S_W}, 0
              s_cbranch_scc1 {T}
              s_mov_b64 exec, 1
              s_sub_u32 s{S_T}, s{S_G}, 1
              s_cmp_gt_u32 s{S_T}, 2
              s_cbranch_scc1 {T}x
              s_waitcnt vmcnt(8)
              buffer_atomic_add v15, v14, {DBG}, 0 offen sc0
              s_waitcnt vmcnt(0)
              {T}x:
              v_mov_b32 v14, {L_MISC}
              s_waitcnt vmcnt(10)
              ds_write_b32 v14, v15
              s_mov_b64 exec, -1
              s_waitcnt lgkmcnt(0)""")
        k.label(T)
        k(f"""s_barrier
              v_mov_b32 v14, {L_MISC}
              ds_read_b32 v2, v14
              s_waitcnt lgkmcnt(0)
              v_readfirstlane_b32 s{S_H}, v2
              s_mov_b32 s{S_SLOW}, 0
              s_cmp_ge_u32 s{S_H}, 32
              s_cselect_b32 s{S_CNT}, 0x10001, 1
              s_and_b32 s{S_H}, s{S_H}, 31
              s_lshl_b32 s{S_LW}, s{S_W}, 10
              s_cmp_eq_u32 s{S_W}, 0
              s_cselect_b32 s{S_OOB}, 0, 0x80000000
              s_mov_b32 s{S_ONE}, 0x3f803f80
              s_mov_b32 s{S_ONE+1}, 0x3f803f80
              s_mov_b32 s{S_SEG}, 0""")
        if self.opt.get("mix", 1):
            k(f"""s_bfe_u32 s{S_T}, s{S_G}, 0x10001
                  s_and_b32 s{S_T+1}, s{S_G}, 1
                  s_add_u32 s{S_T+2}, s{S_T}, 6
                  s_sub_u32 s{S_T+3}, 5, s{S_T+1}
                  s_cmp_ge_u32 s{S_H}, 16
                  s_cselect_b32 s{S_T+2}, s{S_T+2}, s{S_T+3}
                  s_cselect_b32 s{S_T+1}, s{S_T+1}, s{S_T}
                  s_and_b32 s{S_T+3}, s{S_H}, 15
                  s_lshl4_add_u32 s{S_T+1}, s{S_T+1}, s{S_T+3}
                  s_cmp_ge_u32 s{S_G}, 4
                  s_cselect_b32 s{S_G}, s{S_T+2}, s{S_G}
                  s_cselect_b32 s{S_H}, s{S_T+1}, s{S_H}""")
        if self.stamps:
            k(f"""s_lshl_b32 s{S_EV}, s{S_G}, 5
                  s_add_u32 s{S_EV}, s{S_EV}, s{S_H}
                  s_lshl_b32 s{S_EV}, s{S_EV}, 12
                  s_add_u32 s{S_EV}, s{S_EV}, {STAMP_OFF + MB}""")

    def init_ws(self):
        k = self.k
        D = k.newlabel("L_m0")
        self.srd(P_MEM0, 8192)
        k(f"""s_cmp_ge_u32 s2, 2
              s_cbranch_scc1 {D}
              s_lshl_b32 s{S_T}, s2, 2
              s_add_u32 s{S_T}, s{S_T}, s{S_W}          ; ks
              v_bfe_u32 v2, v{V_LANE}, 2, 2
              v_and_b32 v3, 1, v{V_LANE}
              v_lshl_add_u32 v2, v2, 1, v3               ; m
              v_lshlrev_b32 v2, 10, v2
              v_lshrrev_b32 v3, 4, v{V_LANE}
              v_lshl_add_u32 v2, v3, 5, v2               ; + ga*32
              v_and_b32 v3, 2, v{V_LANE}
              v_lshl_add_u32 v2, v3, 1, v2               ; + hi*4
              s_lshl_b32 s{S_T+1}, s{S_T}, 7             ; ks*128""")
        for q in range(4):
            k(f"buffer_load_dword v{64+q}, v2, {SA}, s{S_T+1} offen offset:{8*q}")
        k.label(D)
        self.srd(P_X, 2048 * 1024)
        k(f"""s_lshl_b32 s{S_T}, s2, 3
              s_lshl_b32 s{S_T+9}, s{S_W}, 1
              s_add_u32 s{S_T}, s{S_T}, s{S_T+9}
              s_lshl_b32 s{S_T+9}, s{S_T}, 10
              buffer_load_dwordx4 v[24:27], v{V_L16}, {SA}, s{S_T+9} offen
              buffer_load_dwordx4 v[28:31], v{V_L16}, {SA}, s{S_T+9} offen offset:1024""")
        k(f"""s_lshl_b32 s{S_T}, s2, 12
              s_lshl_b32 s{S_T+1}, s{S_W}, 10
              s_add_u32 s{S_T}, s{S_T}, s{S_T+1}
              v_add_u32 v2, s{S_T}, v{V_L16}
              v_mov_b32 v4, -1
              v_mov_b32 v5, -1
              v_mov_b32 v6, -1
              v_mov_b32 v7, -1
              v_mov_b32 v8, 0
              v_mov_b32 v9, 0
              v_mov_b32 v10, 0
              v_mov_b32 v11, 0""")
        k(f"""v_cmp_gt_u32 vcc, {512*KB}, v2
              v_mov_b32 v3, {PC_OFF[0] - 512*KB}
              v_mov_b32 v12, {MEM_OFF[0] + 8*KB}
              v_cndmask_b32 v3, v3, v12, vcc
              v_add_u32 v3, v3, v2""")
        for c in range(3):
            k(f"s_mov_b32 s{S_T}, {c*MB}")
            k(f"buffer_store_dwordx4 v[4:7], v3, {WS}, s{S_T} offen sc1")
        for i in range(2):
            k(f"s_mov_b32 s{S_T}, {X1_OFF[0] + i*MB}")
            k(f"buffer_store_dwordx4 v[4:7], v2, {WS}, s{S_T} offen sc1")
        k(f"""v_add_u32 v3, {MEMX_OFF + 8*KB - 512*KB}, v2
              v_mov_b32 v12, 0x80000000
              v_cndmask_b32 v3, v3, v12, vcc
              buffer_store_dwordx4 v[4:7], v3, {WS}, 0 offen sc1
              v_cmp_gt_u32 vcc, {NPAGES*2*KB}, v2
              v_lshrrev_b32 v3, 11, v2
              v_lshlrev_b32 v3, 13, v3
              v_and_b32 v13, 0x7ff, v2
              v_add_u32 v3, v3, v13
              v_add_u32 v3, {PG_OFF}, v3
              v_cndmask_b32 v3, v12, v3, vcc
              buffer_store_dwordx4 v[8:11], v3, {WS}, 0 offen sc1
              v_add_u32 v3, {HPS_OFF - 256*KB}, v2
              v_lshrrev_b32 v13, 16, v2
              v_cmp_eq_u32 vcc, 4, v13
              v_cndmask_b32 v3, v12, v3, vcc
              buffer_store_dwordx4 v[4:7], v3, {WS}, 0 offen sc1""")

    def init_rows(self, younger):
        k = self.k
        D = k.newlabel("L_m0")
        t = S_T + 10
        k(f"""s_cmp_eq_u32 s{S_CNT}, 0
              s_cbranch_scc1 {D}
              s_waitcnt vmcnt({8 + younger})""")
        assert H_OFF[0] == 0
        for i in range(2):
            self.unpack8(32, 24 + 4 * i)
            self.layernorm(32, 40 + 4 * i, 48)
            k(f"buffer_store_dwordx4 {vr(40+4*i,4)}, v{V_L16}, {WS}, s{S_T+9} offen offset:{1024*i} sc1")
        k(f"""s_cmp_ge_u32 s2, 2
              s_cbranch_scc1 {D}""")
        self.mfrag_voff(12, 13)
        k(f"""s_lshl_b32 s{t}, s2, 2
              s_add_u32 s{t}, s{t}, s{S_W}          ; ks
              s_and_b32 s{t+1}, s{t}, 1
              s_lshl_b32 s{t+1}, s{t+1}, 8
              s_and_b32 s{t+2}, s{t}, 2
              s_lshl_b32 s{t+2}, s{t+2}, 6
              s_add_u32 s{t+1}, s{t+1}, s{t+2}
              s_and_b32 s{t+2}, s{t}, 4
              s_lshl_b32 s{t+2}, s{t+2}, 10
              s_add_u32 s{t+1}, s{t+1}, s{t+2}""")
        for off in (MEM_OFF[0], MEM_OFF[1], MEMX_OFF):
            k(f"s_add_u32 s{t+2}, s{t+1}, {off}")
            k(f"buffer_store_dwordx4 v[64:67], v12, {WS}, s{t+2} offen sc1")
        k.label(D)

    def mfrag_voff(self, dst, t):
        self.k(f"""v_lshrrev_b32 v{dst}, 3, v{V_LANE}
                   v_lshlrev_b32 v{dst}, 9, v{dst}
                   v_and_b32 v{t}, 7, v{V_LANE}
                   v_lshl_add_u32 v{dst}, v{t}, 4, v{dst}""")

    def load_qkv(self):
        k = self.k
        GA, RE, RO, TE, TO = 2, 3, 4, 5, 6
        sB, sL, sR, sG = S_T + 2, S_T + 3, S_T + 7, S_T + 4
        k(f"""v_lshrrev_b32 v{GA}, 2, v{V_LANE}
              v_lshrrev_b32 v{RE}, 5, v{V_LANE}
              v_xor_b32 v{GA}, v{GA}, v{RE}                  ; place p holds row p ^ (p >> 3 & 1)
              v_lshlrev_b32 v{GA}, 13, v{GA}
              v_and_b32 v{RE}, 3, v{V_LANE}
              v_lshl_add_u32 v{GA}, v{RE}, 4, v{GA}
              v_and_b32 v{RE}, 15, v{V_LANE}
              v_lshlrev_b32 v{RE}, 2, v{RE}
              v_lshrrev_b32 v{RO}, 4, v{V_LANE}
              v_lshl_add_u32 v{RE}, v{RO}, 9, v{RE}
              v_and_b32 v{RO}, 1, v{RO}
              v_lshl_add_u32 v{RE}, v{RO}, 6, v{RE}
              s_lshl_b32 s{sL}, s{S_W}, 15
              s_cmp_lt_u32 s{S_G}, 3
              s_cselect_b32 s{sR}, s{S_W}, 0
              s_lshl_b32 s{S_T}, s{sR}, 12
              s_add_u32 s{S_T}, s{sL}, s{S_T}
              v_add_u32 v{RE}, s{S_T}, v{RE}
              v_xor_b32 v{RO}, 64, v{RE}
              s_lshl_b32 s{sB}, s{S_H}, 8
              s_lshl_b32 s{S_T}, s{S_W}, 6
              s_add_u32 s{sB}, s{sB}, s{S_T}
              s_mov_b32 s{S_T+5}, 0x05040100
              s_mov_b32 s{S_T+6}, 0x07060302""")
        mats = (("k", P_WK), ("v", P_WV), ("q", P_WQ))
        def issue(n):
            if n % 16 == 0:
                self.srd(mats[n // 16][1], 4 * MB)
            kk = n % 16
            k(f"""s_xor_b32 m0, s{sL}, {kk * 2048}
                  s_xor_b32 s{sG}, s{sB}, {kk * 32 * 8192}
                  buffer_load_dwordx4 v{GA}, {SA}, s{sG} offen lds
                  s_add_u32 m0, m0, 1024
                  s_add_u32 s{sG}, s{sG}, {16 * 8192}
                  buffer_load_dwordx4 v{GA}, {SA}, s{sG} offen lds""")
        def reads(n):
            kk = n % 16; b = 96 + 8 * (n & 1)
            k(f"""v_xor_b32 v{TE}, {kk * 2048}, v{RE}
                  v_xor_b32 v{TO}, {kk * 2048}, v{RO}
                  ds_read2_b32 {vr(b,2)}, v{TE} offset1:32
                  ds_read2_b32 {vr(b+4,2)}, v{TO} offset1:32
                  ds_read2_b32 {vr(b+2,2)}, v{TE} offset0:64 offset1:96
                  ds_read2_b32 {vr(b+6,2)}, v{TO} offset0:64 offset1:96""")
        for n in range(16):
            issue(n)
        self.init_rows(32)
        for n in range(48):
            m = mats[n // 16][0]; kk = n % 16; b = 96 + 8 * (n & 1)
            if n == 40:
                NW, J_ = k.newlabel("L_lw"), k.newlabel("L_lj")
                self.load_wo(0, skip=f"""s_cmp_ge_u32 s{S_G}, 3
                                         s_cbranch_scc1 {NW}""")
                k(f"""s_waitcnt vmcnt(16)
                      s_branch {J_}
                      {NW}:
                      s_waitcnt vmcnt(0)
                      {J_}:""")
            elif n % 8 == 0:
                k("s_waitcnt vmcnt(16)")
            if n == 8:
                self.arrive()
            if n % 8 == 0:
                reads(n)
            if n % 8 < 7:
                reads(n + 1)
            k(f"s_waitcnt lgkmcnt({4 if n % 8 < 7 else 0})")
            if n % 8 == 7 and n + 9 < 48:
                for x in range(n + 9, n + 17):
                    issue(x)
            for t in range(2):
                for q in range(4):
                    d = (0 if m == "q" else 128) + ((kk >> 1) * 2 + t) * 8 + 4 * (kk & 1) + q
                    k(f"v_perm_b32 v{d if m == 'v' else 112+4*t+q}, v{b+4+q}, v{b+q}, s{S_T+5+t}")
            if m != "v":
                for t in range(2):
                    for q in range(4):
                        d = (0 if m == "q" else 128) + ((kk >> 1) * 2 + t) * 8 + 4 * (kk & 1) + q
                        k(f"v_accvgpr_write_b32 a{d}, v{112+4*t+q}")

    def wo_slot(self, dst, c, g, t):
        self.k(f"""v_and_b32 v{dst}, 1, v{g}
                   v_xor_b32 v{dst}, v{dst}, v{c}
                   v_and_b32 v{dst}, 3, v{dst}
                   v_lshrrev_b32 v{t}, 2, v{c}
                   v_lshl_add_u32 v{dst}, v{dst}, 2, v{t}
                   v_lshl_add_u32 v{dst}, v{g}, 4, v{dst}
                   v_lshlrev_b32 v{dst}, 4, v{dst}""")

    def load_wo(self, part, extra=0, skip=""):
        k = self.k
        GA, WE, WO_ = 92, 93, 94
        NB = 4
        if part == 0:
            self.srd(P_WO, 4 * MB)
            k(f"""v_and_b32 v{GA}, 3, v{V_LANE}
                  v_lshlrev_b32 v{WE}, 4, v{GA}
                  v_bfe_u32 v{WO_}, v{V_LANE}, 2, 2
                  v_lshl_add_u32 v{GA}, v{WO_}, 12, v{WE}
                  v_lshl_add_u32 v{WE}, v{WO_}, 8, v{WE}
                  v_and_b32 v{WO_}, 1, v{WO_}
                  v_lshl_add_u32 v{WE}, v{WO_}, 6, v{WE}
                  v_lshrrev_b32 v{WO_}, 4, v{V_LANE}
                  v_lshl_add_u32 v{GA}, v{WO_}, 8, v{GA}
                  v_lshl_add_u32 v{WE}, v{WO_}, 13, v{WE}
                  s_lshl_b32 s{S_T}, s{S_W}, 15
                  v_add_u32 v{WE}, s{S_T}, v{WE}
                  v_xor_b32 v{WO_}, 64, v{WE}
                  s_lshl_b32 s{S_T}, s{S_H}, 17
                  s_lshl_b32 s{S_T+1}, s{S_W}, 6
                  s_add_u32 s{S_T}, s{S_T}, s{S_T+1}
                  v_add_u32 v{GA}, s{S_T}, v{GA}
                  {skip}""")
        def issue(i):
            k(f"s_mov_b32 s{S_T}, {i * 16 * 1024}")
            for j in range(4):
                k(f"buffer_load_dwordx4 {vr(24+16*(i%NB)+4*j,4)}, v{GA}, {SA}, s{S_T} offen offset:{j*1024}")
        for i in range(NB if part == 0 else 0):
            issue(i)
        for i in {0: (), 1: range(8), 2: range(8 - NB), 3: range(8 - NB, 8)}[part]:
            b = 24 + 16 * (i % NB)
            k(f"s_waitcnt vmcnt({min(7 - i, NB - 1) * 4 + extra})")
            for x in range(4):
                for y in range(x + 1, 4):
                    k(f"v_swap_b32 v{b+4*x+y}, v{b+4*y+x}")
            for q in range(4):
                k(f"ds_write_b128 v{WO_ if q & 1 else WE}, {vr(b+4*q,4)} offset:{i*1024 + (q>>1)*128}")
            if i + NB < 8:
                k("s_waitcnt lgkmcnt(0)")
                issue(i + NB)

    def qkv_base(self, dst, which):
        self.k(f"""s_lshl_b32 s{dst}, s{S_SEG}, 5
                   s_add_u32 s{dst}, s{dst}, s{S_H}
                   s_mul_i32 s{dst}, s{dst}, {24*KB}
                   s_add_u32 s{dst}, s{dst}, {QKV_OFF[which] if isinstance(which, int) else which}""")

    def t1_dma(self, s_h, quarters, voff=None, reg=0, sb=S_LW):
        voff = voff or (self.THD, self.THD)
        out = []
        for qi in quarters:
            for u in range(2):
                out.append(f"s_add_u32 m0, s{sb}, {self.LH + reg*32*KB + qi*8192 + u*4096 - qi*256}")
                out.append(f"buffer_load_dwordx4 v{voff[u]}, {WS}, s{s_h+u} offen offset:{qi*256} sc1 lds")
        return out

    def t1_src(self, dst, seg, hreg):
        self.k(f"""s_lshl_b32 s{dst}, s{seg}, 15
                   s_add_u32 s{dst}, s{dst}, {H_OFF[hreg]}
                   s_add_u32 s{dst+1}, s{dst}, {16*KB}""")

    def flag_store(self, s_off, loc):
        self.k(f"""s_or_b32 s{s_off}, s{s_off}, s{S_OOB}
                   buffer_store_dword v{self.TOB}, off, {WS}, s{s_off}{loc}""")

    def t1(self, which, s_h, voff=None, pre=0, nxt=None, s_flag=None, extra=(), x_flag=None, qloc=False, s_keep=0, rot=False):
        k = self.k
        ACC = 24; RING = (72, 80, 108)
        aq = lambda t, u: ACC + (t * 2 + u) * 4
        ak = lambda t, u: ACC + 16 + (t * 2 + u) * 4
        av = lambda t, u: ACC + 32 + (t * 2 + u) * 4
        first, later = ((0, 1), (2, 3)) if rot else ((0, 1, 2), (3,))
        if not pre:
            for x in self.t1_dma(s_h, first, voff):
                k(x)
        self.qkv_base(S_T + 2, which)
        k(f"""s_add_u32 s{S_T+5}, s{S_T+2}, s{S_LW}      ; K u0
              s_add_u32 s{S_T+6}, s{S_T+5}, 4096         ; K u1
              s_add_u32 s{S_T+7}, s{S_T+5}, {16*KB}      ; Q u0
              s_add_u32 s{S_T+8}, s{S_T+5}, {20*KB}      ; Q u1
              s_add_u32 s{S_T+9}, s{S_T+5}, s{S_LW}
              s_add_u32 s{S_T+9}, s{S_T+9}, {8*KB}       ; V""")
        if rot:
            rd = lambda kk: [f"ds_read_b128 {vr(RING[kk%3]+4*u,4)}, v{self.THR+(kk&7)} offset:{(kk>>3)*16384+u*4096}" for u in range(2)]
        else:
            rd = lambda kk: [f"ds_read_b128 {vr(RING[kk%3]+4*u,4)}, v{self.THR+(kk&3)} offset:{(kk>>2)*8192+u*4096}" for u in range(2)]
        k(f"s_waitcnt vmcnt({(0 if rot else 4) + pre})")
        k("s_barrier")
        self.mark(self.mk + 0)
        for x in rd(0) + rd(1):
            k(x)
        for x in self.t1_dma(s_h, later, voff):
            k(x)
        for x in extra:
            k(x)
        ne = len(extra); nl = 2 * len(later)
        side = []
        for kk in range(16):
            b = RING[kk % 3]
            n = kk + 2
            last_q = (n == 8) if rot else (n == 12)
            if last_q:
                k(f"s_waitcnt vmcnt({1 if (s_flag and not rot) else 0})")
                k("s_barrier")
                if x_flag:
                    self.flag_store(x_flag, " sc1")
                if s_flag and rot:
                    self.flag_store(s_flag, " sc1")
            elif not rot and n in (4, 8):
                k(f"s_waitcnt vmcnt({(2 if n == 4 else 0) + pre + nl + ne})")
                k("s_barrier")
            if kk == 7 and s_flag and not rot:
                assert not extra
                k(f"s_waitcnt vmcnt({nl + s_keep})")
                k("s_barrier")
                self.flag_store(s_flag, " sc1")
            if kk == 12 and nxt:
                k("s_barrier")
                side = list(nxt)
            k(f"s_waitcnt lgkmcnt({2 if kk < 15 else 0})")
            ks, hf = kk >> 1, kk & 1
            fill = rd(n) if n < 16 else []
            i = 0
            for t in range(2):
                for u in range(2):
                    h = vr(b + 4 * u, 4)
                    for acc, w, tr in ((ak, wk, True), (av, wv, False), (aq, wq, True)):
                        d = vr(acc(t, u), 4)
                        c = "0" if kk == 0 else d
                        a_, b_ = (w(ks, t, hf), h) if tr else (h, w(ks, t, hf))
                        k(f"v_mfma_f32_16x16x32_bf16 {d}, {a_}, {b_}, {c}")
                        i += 1
                        if fill and i % 2 == 1:
                            k(fill.pop(0))
                        elif side:
                            k(side.pop(0))
        assert not side
        self.mark(self.mk + 3)
        if which == 0:
            k(f"""s_lshl_b32 s{S_T}, s{S_SEG}, 5
                  s_add_u32 s{S_T}, s{S_T}, s{S_H}
                  s_lshl_b32 s{S_T}, s{S_T}, 12
                  s_add_u32 s{S_T}, s{S_T}, s{S_LW}
                  s_add_u32 s{S_T}, s{S_T}, {KVM_OFF[0]}
                  v_mov_b64 v[120:121], -1
                  v_mov_b64 v[122:123], -1
                  buffer_store_dwordx4 v[120:123], v{V_L16}, {WS}, s{S_T} offen sc1""")
        for i, (acc, so) in enumerate(((ak, S_T + 5), (aq, S_T + 7))):
            for u in range(2):
                p = RING[2 * i] + u * 4
                for r in range(4):
                    k(f"v_cvt_pk_bf16_f32 v{p+r}, v{acc(0,u)+r}, v{acc(1,u)+r}")
                k(f"buffer_store_dwordx4 {vr(p,4)}, v{V_L16}, {WS}, s{so+u} offen{'' if (i == 1 and qloc) else ' sc1'}")
            if i == 0:
                for t in range(2):
                    p = RING[1] + t * 4
                    for u in range(2):
                        k(f"v_cvt_pk_bf16_f32 v{p+2*u}, v{av(t,u)}, v{av(t,u)+1}")
                        k(f"v_cvt_pk_bf16_f32 v{p+2*u+1}, v{av(t,u)+2}, v{av(t,u)+3}")
                    k(f"buffer_store_dwordx4 {vr(p,4)}, v{V_L16}, {WS}, s{S_T+9} offen offset:{t*1024} sc1")

    def t1b(self, which, s_h, landed=False, reg=0, s_flag=None, voff=None, nxt=(), early=True, sb=S_LW, peek=None, lead=()):
        k = self.k
        HB = 104; ND = 3
        aq = lambda t, u: 88 + (t * 2 + u) * 4
        ak = lambda t, u: 24 + (t * 2 + u) * 4
        av = lambda t, u: 40 + (t * 2 + u) * 4
        big = self.LH != L_H
        if not landed:
            for x in self.t1_dma(s_h, (0, 1, 2, 3) if big else (0, 1, 2), voff, reg, sb):
                k(x)
        np_ = 0
        pk0 = []
        if peek and landed:
            pk0 = [x.strip() for x in peek[0].split("\n")]
        elif peek:
            k(peek[0]); np_ = 1
        n0_ = len(k.lines)
        self.qkv_base(S_T + 2, which)
        k(f"""s_add_u32 s{S_T+5}, s{S_T+2}, s{S_LW}      ; K u0
              s_add_u32 s{S_T+6}, s{S_T+5}, 4096         ; K u1
              s_add_u32 s{S_T+7}, s{S_T+5}, {16*KB}      ; Q u0
              s_add_u32 s{S_T+8}, s{S_T+5}, {20*KB}      ; Q u1
              s_add_u32 s{S_T+9}, s{S_T+5}, s{S_LW}
              s_add_u32 s{S_T+9}, s{S_T+9}, {8*KB}       ; V""")
        addr = list(lead) + k.lines[n0_:]; del k.lines[n0_:]
        rd = lambda n: [f"ds_read_b128 {vr(HB+(n%ND)*8+4*u,4)}, v{self.THR+(n&3)} offset:{reg*32*KB+((n&15)>>2)*8192+u*4096}" for u in range(2)]
        if not landed:
            k(f"s_waitcnt vmcnt({(6 if big else 4) + np_})")
            k("s_barrier")
        self.mark(self.mk + 0)
        for x in rd(0) + rd(1):
            k(x)
        if not landed and not big:
            for x in self.t1_dma(s_h, (3,), voff, reg):
                k(x)
        first = []
        if which < 2:
            first += [f"s_lshl_b32 s{S_T}, s{S_SEG}, 5\ns_add_u32 s{S_T}, s{S_T}, s{S_H}\ns_lshl_b32 s{S_T}, s{S_T}, 12",
                      f"s_add_u32 s{S_T}, s{S_T}, s{S_LW}\ns_add_u32 s{S_T}, s{S_T}, {KVM_OFF[which]}"]
            first += [f"v_mov_b64 v[72:73], -1\nv_mov_b64 v[74:75], -1"]
            first += [f"buffer_store_dwordx4 v[72:75], v{V_L16}, {WS}, s{S_T} offen sc1"]
            if which:
                first += [f"s_add_u32 s{S_T}, s{S_T}, {KVM_OFF[2] - KVM_OFF[1]}", first[-1]]
        first = ((first + [""] * 6)[:max(6, len(first))] + list(nxt)) if peek else list(nxt) + first
        look = list(peek[1]) if peek else []
        side = []
        P = 56
        for u in range(2):
            for r in range(4):
                side.append(f"v_cvt_pk_bf16_f32 v{P+4*u+r}, v{ak(0,u)+r}, v{ak(1,u)+r}")
            side.append(f"buffer_store_dwordx4 {vr(P+4*u,4)}, v{V_L16}, {WS}, s{S_T+5+u} offen sc1")
        for t in range(2):
            p = P + 8 + t * 4
            for u in range(2):
                side.append(f"v_cvt_pk_bf16_f32 v{p+2*u}, v{av(t,u)}, v{av(t,u)+1}")
                side.append(f"v_cvt_pk_bf16_f32 v{p+2*u+1}, v{av(t,u)+2}, v{av(t,u)+3}")
            side.append(f"buffer_store_dwordx4 {vr(p,4)}, v{V_L16}, {WS}, s{S_T+9} offen offset:{t*1024} sc1")
        if peek:
            side += [""] * self.opt.get("pk2", 6) + [x.strip() for x in peek[0].split("\n")]
        for n in range(32):
            kk = n & 15
            b = HB + (n % ND) * 8
            m = n + 2
            if m in (4, 8, 12) and (not landed or (m == 12 and s_flag)):
                k(f"s_waitcnt vmcnt({(12 - m) // 2 + np_})" if m < 12 else "s_waitcnt vmcnt(0) lgkmcnt(0)" if peek else "s_waitcnt vmcnt(0)")
                k("s_barrier")
                if m == 12 and s_flag:
                    self.flag_store(s_flag, " sc1")
                if m == 12 and peek:
                    k(peek[2])
            if n in (9, 11, 16):
                self.mark(self.mk + {9: 1, 11: 2, 16: 3}[n])
            if not (peek and m == 12):
                k(f"s_waitcnt lgkmcnt({2 if n < 31 else 0})")
            ks, hf = kk >> 1, kk & 1
            fill = rd(m) if m < 32 else []
            i = 0
            cur = first if 10 <= n < 16 else (side if n > 16 else look if n == 9 else pk0 if n == self.opt.get("pkat", 4) else addr if n < 4 else [])
            for t in range(2):
                for u in range(2):
                    h = vr(b + 4 * u, 4)
                    for acc, w, tr in (((ak, wk, True), (av, wv, False)) if n < 16 else ((aq, wq, True),)):
                        d = vr(acc(t, u), 4)
                        c = "0" if kk == 0 else d
                        a_, b_ = (w(ks, t, hf), h) if tr else (h, w(ks, t, hf))
                        k(f"v_mfma_f32_16x16x32_bf16 {d}, {a_}, {b_}, {c}")
                        i += 1
                        if fill and i % 2 == 1:
                            k(fill.pop(0))
                        elif cur and (n < 16 or not cur[0].startswith("v_")):
                            k(cur.pop(0))
                        if n > 16 or (n == 16 and i > 2):
                            for _ in range(2):
                                if side and side[0].startswith("v_"):
                                    k(side.pop(0))
        assert not first and not side and not look and not addr, (len(first), len(side))
        self.mark(self.mk + 4)
        for u in range(2):
            for r in range(4):
                k(f"v_cvt_pk_bf16_f32 v{HB+4*u+r}, v{aq(0,u)+r}, v{aq(1,u)+r}")
        for u in range(2):
            k(f"buffer_store_dwordx4 {vr(HB+4*u,4)}, v{V_L16}, {WS}, s{S_T+7+u} offen sc1")
        if early:
            self.page(S_T + 3, F_KV[which])
            self.flag_set(S_T + 3, " sc1", keep=3 if peek else 2)
        else:
            k(f"s_waitcnt vmcnt({7 if peek else 6})")
            k("s_barrier")
        self.mark(self.mk + 5)
        self.flush()

    def make_sel(self, dst, t):
        k = self.k
        k(f"""v_and_b32 v{t}, 15, v{V_LANE}
              v_and_b32 v{t+1}, 1, v{V_LANE}
              v_lshlrev_b32 v{t+1}, 4, v{t+1}
              v_mov_b32 v{t+2}, 0x3f80
              v_lshlrev_b32 v{t+2}, v{t+1}, v{t+2}
              v_lshrrev_b32 v{t}, 1, v{t}""")
        for q in range(4):
            k(f"v_cmp_eq_u32 vcc, {q}, v{t}")
            k(f"v_cndmask_b32 v{dst+q}, 0, v{t+2}, vcc")

    def softmax(self, S, P, t, fill=None, half=False):
        k = self.k
        fill = list(fill or [])
        def f(n=1):
            for _ in range(n):
                if fill:
                    k(fill.pop(0))
        if half:
            k(f"""v_max3_f32 v{t}, v{S}, v{S+1}, v{S+2}
                  v_max3_f32 v{t+1}, v{S+3}, v{S+10}, v{S+11}""")
        else:
            k(f"""v_max3_f32 v{t}, v{S}, v{S+1}, v{S+2}
                  v_max3_f32 v{t+1}, v{S+3}, v{S+4}, v{S+5}
                  v_max3_f32 v{t}, v{S+6}, v{S+7}, v{t}
                  v_max3_f32 v{t+1}, v{S+10}, v{S+11}, v{t+1}""")
        k(f"""v_max_f32 v{t}, v{t}, v{t+1}
              v_max_f32 v{t+1}, v{t}, v{t+1}""")
        f()
        k(f"""v_permlane16_swap_b32 v{t}, v{t+1}
              v_max_f32 v{t}, v{t}, v{t+1}
              v_max_f32 v{t+1}, v{t}, v{t+1}""")
        f()
        k(f"""v_permlane32_swap_b32 v{t}, v{t+1}
              v_max_f32 v{t}, v{t}, v{t+1}
              v_mul_f32 v{t}, s{S_C}, v{t}""")
        order = [0, 1, 2, 3, 10, 11] if half else [0, 1, 2, 3, 4, 5, 6, 7, 10, 11]
        k(f"v_fma_f32 v{S+order[0]}, v{S+order[0]}, s{S_C}, -v{t}")
        for n, i in enumerate(order):
            if n + 1 < len(order):
                j = order[n + 1]
                k(f"v_fma_f32 v{S+j}, v{S+j}, s{S_C}, -v{t}")
            k(f"v_exp_f32 v{S+i}, v{S+i}")
        for q in range(2 if half else 4):
            k(f"v_cvt_pk_bf16_f32 v{P+q}, v{S+2*q}, v{S+2*q+1}")
        k(f"v_cvt_pk_bf16_f32 v{P+4}, v{S+10}, v{S+11}")
        f(len(fill))

    def chain(self, c):
        k = self.k
        opt = self.opt
        IDX, IDX2, QKW, QKR0, QKR1, OW, OR, PST, MST, WOB, OB, MV = 2, 3, 4, 5, 6, 7, 8, 9, 10, 11, 55, 13
        MX, CK = 12, 123
        SEL, TCH, STS = 18, 22, 23
        M, KX, VX, QK, VA, T = 24, 56, 88, 96, 112, 120
        sMEM, sPC, sRD, sKV, sKVM, sRST, sM2, sU, sNAN, sW2, sFAIL, sPG, sOK, sREC, sFK, sFKB = (S_T + i for i in range(8, 24))
        sMX, sMXB = S_A, S_B
        sKF, sOK2, sJ, sO = 18, 19, 20, 21
        sPUB, sFK1 = 54, 55
        reg = min(c, 1)
        k(f"""v_and_b32 v{T}, 15, v{V_LANE}          ; c
              v_lshrrev_b32 v{T+1}, 4, v{V_LANE}     ; g
              v_and_b32 v{T+2}, 2, v{V_LANE}
              v_cmp_eq_u32 vcc, 0, v{T+2}
              v_mov_b32 v{IDX}, 0xeeee
              v_mov_b32 v{T+3}, 0x4444
              v_cndmask_b32 v{IDX}, v{IDX}, v{T+3}, vcc
              v_and_b32 v{T+2}, 1, v{V_LANE}
              v_cmp_eq_u32 vcc, 0, v{T+2}
              v_mov_b32 v{IDX2}, 0xdddd
              v_mov_b32 v{T+3}, 0x8888
              v_cndmask_b32 v{IDX2}, v{IDX2}, v{T+3}, vcc""")
        k(f"""v_lshrrev_b32 v{T+2}, 1, v{T}           ; b
              v_bfe_u32 v{T+3}, v{T}, 2, 1
              v_xor_b32 v{T+3}, v{T+3}, v{T+2}
              v_lshlrev_b32 v{QKW}, 7, v{T+3}
              v_and_b32 v{T+3}, 1, v{T}
              v_lshl_add_u32 v{QKW}, v{T+3}, 6, v{QKW}
              v_xor_b32 v{T+3}, v{T+1}, v{T+2}
              v_and_b32 v{T+3}, 3, v{T+3}
              v_lshl_add_u32 v{QKW}, v{T+3}, 4, v{QKW}
              s_lshl_b32 s{S_T}, s{S_W}, 10
              s_add_u32 s{S_T}, s{S_T}, {L_QK}
              v_add_u32 v{QKW}, s{S_T}, v{QKW}""")
        for hh, R in ((0, QKR0), (1, QKR1)):
            k(f"""v_lshlrev_b32 v{T+2}, 1, v{T+1}
                  v_add_u32 v{T+2}, {hh}, v{T+2}          ; b
                  v_and_b32 v{T+3}, 1, v{T+1}
                  v_xor_b32 v{T+3}, v{T+3}, v{T+2}
                  v_lshlrev_b32 v{R}, 7, v{T+3}
                  v_bfe_u32 v{T+3}, v{T}, 3, 1
                  v_lshl_add_u32 v{R}, v{T+3}, 6, v{R}
                  v_xor_b32 v{T+3}, v{T}, v{T+2}
                  v_and_b32 v{T+3}, 3, v{T+3}
                  v_lshl_add_u32 v{R}, v{T+3}, 4, v{R}
                  v_bfe_u32 v{T+3}, v{T}, 2, 1
                  v_lshl_add_u32 v{R}, v{T+3}, 3, v{R}
                  v_add_u32 v{R}, {L_QK}, v{R}""")
        k(f"""v_lshlrev_b32 v{OW}, 7, v{T+1}
              v_lshrrev_b32 v{T+2}, 1, v{T}
              v_lshl_add_u32 v{OR}, v{T+2}, 4, v{OW}
              v_add_u32 v{OR}, {L_O}, v{OR}
              v_lshrrev_b32 v{T+2}, 2, v{T}
              v_lshl_add_u32 v{OW}, v{T+2}, 5, v{OW}
              v_and_b32 v{T+2}, 1, v{T}
              v_lshl_add_u32 v{OW}, v{T+2}, 4, v{OW}
              v_and_b32 v{T+2}, 2, v{T}
              v_cmp_eq_u32 vcc, 0, v{T+2}
              s_lshl_b32 s{S_T}, s{S_W}, 9
              v_mov_b32 v{T+2}, 2048
              v_mov_b32 v{T+3}, s{S_T}
              v_cndmask_b32 v{T+2}, v{T+2}, v{T+3}, vcc
              v_add_u32 v{OW}, v{T+2}, v{OW}
              v_add_u32 v{OW}, {L_O}, v{OW}""")
        k(f"""v_lshrrev_b32 v{T+2}, 3, v{V_LANE}
              v_lshlrev_b32 v{PST}, 11, v{T+2}
              v_and_b32 v{T+2}, 7, v{V_LANE}
              v_lshl_add_u32 v{PST}, v{T+2}, 3, v{PST}
              s_lshl_b32 s{S_T}, s{S_W}, 14
              s_lshl_b32 s{S_T+1}, s{S_H}, 6
              s_add_u32 s{S_T}, s{S_T}, s{S_T+1}
              v_add_u32 v{PST}, s{S_T}, v{PST}""")
        k(f"""s_lshl_b32 s{sU}, s{S_W}, 5
              s_add_u32 s{sU}, s{sU}, s{S_H}
              s_bfe_u32 s{S_T}, s{sU}, 0x10003
              s_lshl_b32 s{S_T}, s{S_T}, 11              ; ((U>>3)&1)*4 lines*512
              s_and_b32 s{S_T+1}, s{sU}, 1
              s_lshl_b32 s{S_T+1}, s{S_T+1}, 10          ; (U&1)*2 lines
              s_add_u32 s{S_T}, s{S_T}, s{S_T+1}
              s_bfe_u32 s{S_T+1}, s{sU}, 0x10002
              s_lshl_b32 s{S_T+1}, s{S_T+1}, 9
              s_add_u32 s{S_T}, s{S_T}, s{S_T+1}
              s_bfe_u32 s{S_T+1}, s{sU}, 0x10001
              s_lshl_b32 s{S_T+1}, s{S_T+1}, 6
              s_add_u32 s{S_T}, s{S_T}, s{S_T+1}
              s_bfe_u32 s{S_T+1}, s{sU}, 0x10004
              s_lshl_b32 s{S_T+1}, s{S_T+1}, 8
              s_add_u32 s{S_T}, s{S_T}, s{S_T+1}
              s_bfe_u32 s{S_T+1}, s{sU}, 0x10005
              s_lshl_b32 s{S_T+1}, s{S_T+1}, 7
              s_add_u32 s{S_T}, s{S_T}, s{S_T+1}
              s_bfe_u32 s{S_T+1}, s{sU}, 0x10006
              s_lshl_b32 s{S_T+1}, s{S_T+1}, 12
              s_add_u32 s{S_T}, s{S_T}, s{S_T+1}
              v_and_b32 v{T+2}, 3, v{T}
              v_lshlrev_b32 v{MST}, 2, v{T+2}
              v_bfe_u32 v{T+2}, v{T}, 3, 1
              v_lshl_add_u32 v{MST}, v{T+2}, 4, v{MST}
              v_and_b32 v{T+2}, 1, v{T+1}
              v_lshl_add_u32 v{MST}, v{T+2}, 5, v{MST}
              v_add_u32 v{MST}, s{S_T}, v{MST}
              v_and_b32 v{T+3}, 36, v{V_LANE}
              v_mov_b32 v{T+2}, 0x80000000
              v_cmp_eq_u32 vcc, 0, v{T+3}
              v_cndmask_b32 v{MST}, v{T+2}, v{MST}, vcc
              s_lshl_b32 s{sU}, s{sU}, 11
              s_lshl_b32 s{sW2}, s{S_W}, 11
              s_mov_b32 s{sNAN}, 0xffc00000
              s_mov_b32 s{sFAIL}, 0""")
        self.wo_slot(WOB, T, T + 1, T + 2)
        k(f"""s_lshl_b32 s{S_T}, s{S_W}, 15
              v_add_u32 v{WOB}, s{S_T}, v{WOB}""")
        self.mfrag_voff(MV, T + 2)
        self.make_sel(SEL, T + 2)
        k(f"""s_and_b32 s{S_T}, s{S_W}, 1
              s_lshl_b32 s{S_T}, s{S_T}, 8
              s_and_b32 s{S_T+1}, s{S_W}, 2
              s_lshl_b32 s{S_T+1}, s{S_T+1}, 6
              s_add_u32 s{S_T}, s{S_T}, s{S_T+1}
              v_add_u32 v{MV}, s{S_T}, v{MV}""")
        k(f"""s_add_u32 s{S_T}, s{S_LW}, {L_MB}
              v_add_u32 v{MX}, s{S_T}, v{V_L16}
              v_mov_b64 v[14:15], {sr(S_ONE,2)}
              v_mov_b64 v[16:17], {sr(S_ONE,2)}""")
        k(f"""v_add_u32 v{TCH}, {MEM_OFF[c] + 2*8192}, v{MST}
              s_lshl_b32 s{sKF}, s{S_H}, 2
              s_add_u32 s{sKF}, s{sKF}, {PG_OFF + 8192 + F_KV[reg]}
              v_mov_b32 v1, s{S_C}
              s_mov_b32 s{sPC}, {PC_OFF[c]}
              s_add_u32 s{sRD}, s{sU}, {PC_OFF[c]}
              s_add_u32 s{sRST}, s{sU}, {PC_OFF[c] + 256*KB}
              s_mov_b32 s{sMX}, 0x40000000
              s_mov_b32 s{S_SEG}, 0""")
        sMK, sSCN = S_A, S_B
        if c == 2:
            k(f"""v_lshrrev_b32 v{T}, 2, v{V_L16}
                  v_add_u32 v{T}, {PG_OFF + (1+LOOK)*8192 + F_RKU - 128}, v{T}
                  v_or_b32 v{T}, s{S_OOB}, v{T}
                  s_mov_b64 vcc, -1
                  s_mov_b32 vcc_lo, 0
                  v_cndmask_b32 v{TCH}, v{TCH}, v{T}, vcc
                  s_or_b32 s{S_T}, s{S_OOB}, {PG_OFF + 8192 + F_J}
                  v_writelane_b32 v{TCH}, s{S_T}, 4
                  s_or_b32 s{S_T}, s{S_H}, s{S_W}
                  s_mov_b32 s{S_T}, {PG_OFF + F_RM}
                  s_cmov_b32 s{S_T}, 0x80000000
                  v_writelane_b32 v{TCH}, s{S_T}, 5
                  s_mov_b32 s{sMK}, 0
                  s_mov_b32 s{sSCN}, 0""")
        def keys_wait(seg, va, hi=None):
            L_ = k.newlabel("L_ckk")
            self.page(S_T + 3, F_RKU, seg=seg, head=False)
            k(f"""v_lshrrev_b32 v{va+1}, 2, v{V_L16}
                  v_and_b32 v{va+1}, 127, v{va+1}""")
            if hi:
                k(f"""v_lshrrev_b32 v{va}, 9, v{V_L16}
                      v_mul_u32_u24 v{va}, s{hi}, v{va}
                      v_add_u32 v{va+1}, v{va}, v{va+1}""")
            k.label(L_)
            k(f"""s_sleep {opt.get("slu", 1)}
                  buffer_load_dword v{va}, v{va+1}, {WS}, s{S_T+3} offen sc1""")
            self.spend()
            k(f"""s_waitcnt vmcnt(0)
                  v_cmp_eq_u32 vcc, 0, v{va}
                  s_cbranch_vccnz {L_}""")
        dma = [f"s_add_u32 m0, s{sW2}, {L_KX}",
               f"s_add_u32 s{S_T+1}, s{sKV}, {8*KB}",
               f"buffer_load_dwordx4 v{V_L16}, {WS}, s{sKV} offen sc1 lds",
               f"buffer_load_dwordx4 v{V_L16}, {WS}, s{sKV} offen offset:1024 sc1 lds",
               f"s_add_u32 m0, s{sW2}, {L_VX}",
               f"s_add_u32 s{sKV}, s{sKV}, {32*24*KB}",
               f"buffer_load_dwordx4 v{V_L16}, {WS}, s{S_T+1} offen sc1 lds",
               f"buffer_load_dwordx4 v{V_L16}, {WS}, s{S_T+1} offen offset:1024 sc1 lds"]
        def kv_read(extra=None, pos=0):
            k(f"v_add_u32 v{OB}, {L_KX}, v{V_L16}")
            for i in range(8):
                if extra and i == pos:
                    k(extra)
                k(f"ds_read_b128 {vr(KX+4*i,4)}, v{OB} offset:{((i&1)*4+(i>>1))*1024}")
            k(f"v_add_u32 v{CK}, s{sW2}, v{OB}")
            for t in range(2):
                k(f"ds_read_b128 {vr(VX+4*t,4)}, v{CK} offset:{L_VX-L_KX+t*1024}")
        def zero(b, n):
            for i in range(0, n, 2):
                k(f"v_mov_b64 {vr(b+i,2)}, 0")
        def mload(hf):
            return f"buffer_load_dwordx4 {vr(M+16*hf,4)}, v{MV}, {WS}, s{sM2 if hf else sMEM} offen sc1"
        chk2 = [f"v_max3_u32 v{CK}, v{M}, v{M+1}, v{M+2}", f"v_max3_u32 v{CK}, v{M+3}, v{M+16}, v{CK}",
                f"v_max3_u32 v{CK}, v{M+17}, v{M+18}, v{CK}", f"v_max_u32 v{CK}, v{M+19}, v{CK}",
                f"v_cmp_le_u32 vcc, s{sNAN}, v{CK}"]
        mwrite = lambda hf: f"ds_write_b128 v{MX}, {vr(M+16*hf,4)} offset:{hf*4096}"
        mread = lambda hf, i: f"ds_read_b128 {vr(M+16*hf+4*i,4)}, v{T+i-1} offset:{hf*4096}"
        LEAD, LEADB, JS = (k.newlabel(x) for x in ("L_cld", "L_clb", "L_cjs"))
        START, KVW, KVB, JW, JUMP = (k.newlabel(x) for x in ("L_cst", "L_ckw", "L_ckb", "L_cjw", "L_cjump"))
        first = reg
        if opt.get("pcwarm", 1) and not self.loc:
            for i, r_ in enumerate((sRD, sRST)):
                for j in range(2):
                    k(f"buffer_load_dwordx4 v[88:91], v{V_L16}, {WS}, s{r_} offen offset:{j*1024}")
            if c:
                k("s_waitcnt vmcnt(0)")
        SW = k.newlabel("L_csw")
        WO_ = 3072 - 512
        k.label(START)
        k(f"""s_cmp_lg_u32 s{S_W}, 0
              s_cbranch_scc1 {SW}""")
        if c == 2:
            k(f"""s_andn2_b32 s{S_T+5}, 0x7ff, s{sMK}
                  s_lshr_b32 s{S_T+5}, s{S_T+5}, 5
                  s_add_u32 s{S_T+5}, s{S_T+5}, {LOOK}
                  s_add_u32 s{S_T+4}, s{sSCN}, 1
                  s_min_u32 s{S_T+4}, s{S_T+4}, 63
                  s_cmp_gt_u32 s{S_T+4}, s{S_T+5}
                  s_cselect_b32 s{S_T+4}, s{sSCN}, s{S_T+4}
                  s_sub_u32 s{S_T+5}, s{S_T+4}, s{sSCN}
                  s_lshl_b32 s{S_T+5}, s{S_T+5}, 13""")
            keys_wait(sSCN, T, S_T + 5)
            self.wmax_u32(T, T + 1)
            k(f"""v_readfirstlane_b32 s{S_T+5}, v{T}
                  s_max_u32 s{sMK}, s{sMK}, s{S_T+5}
                  s_add_u32 s{sSCN}, s{S_T+4}, 1
                  s_andn2_b32 s{S_SEG}, 0x7ff, s{sMK}
                  s_lshr_b32 s{S_SEG}, s{S_SEG}, 5
                  s_add_u32 s{S_T+5}, s{S_SEG}, {LOOK}
                  s_min_u32 s{S_T+5}, s{S_T+5}, 63
                  s_cmp_le_u32 s{sSCN}, s{S_T+5}
                  s_cbranch_scc1 {START}
                  v_mov_b32 v{T}, 0
                  v_mov_b32 v{T+1}, s{sMK}
                  ds_write_b32 v{OR}, v{T} offset:{WO_}
                  ds_write_b32 v{OR}, v{T+1} offset:{WO_ + 512}""")
        self.ev(40 + c, va=T + 2)
        self.page(S_T + 3, F_KV[first])
        self.word_wait(S_T + 3, S_T + 5, va=T + 2, sleep=1, quick=c == 0)
        k.label(SW)
        k("""s_waitcnt lgkmcnt(0)
             s_barrier""")
        if c == 2:
            k(f"""ds_read_b32 v{T}, v{OR} offset:{WO_ + 512}
                  s_waitcnt lgkmcnt(0)
                  v_readfirstlane_b32 s{sMK}, v{T}
                  s_andn2_b32 s{S_SEG}, 0x7ff, s{sMK}
                  s_lshr_b32 s{S_SEG}, s{S_SEG}, 5""")
        self.qkv_base(S_T, first)
        k(f"s_add_u32 s{sKV}, s{S_T}, s{sW2}")
        for d in dma:
            k(d)
        k(f"""s_lshl_b32 s{sPG}, s{S_SEG}, 13
              s_add_u32 s{S_T}, s{sPG}, {MEM_OFF[c] + 8192}
              buffer_load_dword v{STS}, v{MST}, {WS}, s{S_T} offen sc1
              s_add_u32 s{sMEM}, s{sPG}, {MEMX_OFF if c == 2 else MEM_OFF[c]}
              s_add_u32 s{sM2}, s{sMEM}, 4096
              s_lshl_b32 s{sKVM}, s{S_SEG}, 5
              s_add_u32 s{sKVM}, s{sKVM}, s{S_H}
              s_lshl_b32 s{sKVM}, s{sKVM}, 12
              s_lshl_b32 s{S_T}, s{S_W}, 10
              s_add_u32 s{sKVM}, s{sKVM}, s{S_T}
              s_add_u32 s{sKVM}, s{sKVM}, {KVM_OFF[c]}
              s_mov_b32 s{sPUB}, 0x80000000
              s_mov_b32 s{sREC}, 0
              s_add_u32 s{S_T}, s{sKF}, s{sPG}
              s_buffer_load_dword s{sOK2}, {WS}, s{S_T}
              s_cmp_eq_u32 s{S_SEG}, 63
              s_cselect_b32 s{sOK}, 1, s{S_W}
              s_cmp_eq_u32 s{sOK}, 0
              s_cselect_b32 s{sOK}, 1, 0""")
        q_ = lambda t: QK + 8 * t
        k_ = lambda t: QK + 8 * t + 4
        sq = lambda ks, t: f"v_smfmac_f32_16x16x64_bf16 {vr(q_(t),4)}, {vr(M+4*ks,4)}, {wq(ks,t)}, v{IDX}"
        sk = lambda ks, t: f"v_smfmac_f32_16x16x64_bf16 {vr(k_(t),4)}, {vr(M+4*ks,4)}, {wk(ks,t)}, v{IDX}"
        sv = lambda ks, t: f"v_smfmac_f32_16x16x64_bf16 {vr(VA+4*t,4)}, {vr(M+4*ks,4)}, {wv(ks,t)}, v{IDX}"
        zero(QK, 24)
        if c == 2:
            HL, HD = k.newlabel("L_chp"), k.newlabel("L_chd")
            A_ = KX
            k(f"""v_lshrrev_b32 v{A_}, 8, v{V_L16}
                  v_lshlrev_b32 v{A_}, 5, v{A_}
                  v_bfe_u32 v{A_+1}, v{V_L16}, 5, 1
                  v_lshl_add_u32 v{A_}, v{A_+1}, 2, v{A_}
                  s_lshl_b32 s{S_T}, s{S_W}, 7
                  s_add_u32 s{S_T}, s{S_T}, {L_MB}
                  v_add_u32 v{A_}, s{S_T}, v{A_}
                  v_xor_b32 v{A_+1}, 128, v{A_}
                  v_xor_b32 v{A_+2}, 256, v{A_}
                  v_xor_b32 v{A_+3}, 384, v{A_}
                  s_andn2_b32 s{S_T}, 31, s{sMK}
                  s_lshr_b32 s{S_T+1}, s{S_T}, 4
                  s_lshl_b32 s{S_T+2}, s{S_T+1}, 12
                  s_and_b32 s{S_T+3}, s{S_T}, 15
                  s_lshl4_add_u32 s{S_T+2}, s{S_T+3}, s{S_T+2}
                  s_add_u32 s{S_T+2}, s{S_T+2}, s{S_LW}
                  s_add_u32 s{S_T+2}, s{S_T+2}, {L_KX}
                  v_bfe_u32 v{A_+4}, v{V_L16}, 6, 2
                  v_lshlrev_b32 v{A_+4}, 8, v{A_+4}
                  v_bfe_u32 v{A_+5}, v{V_L16}, 4, 2
                  v_lshl_add_u32 v{A_+4}, v{A_+5}, 2, v{A_+4}
                  v_add_u32 v{A_+4}, s{S_T+2}, v{A_+4}
                  s_lshr_b32 s{S_T+2}, s{S_T+3}, 2
                  s_lshl_b32 s{S_T+2}, s{S_T+2}, 8
                  s_lshl3_add_u32 s{S_T+2}, s{S_T+1}, s{S_T+2}
                  s_and_b32 s{S_T+3}, s{S_T}, 3
                  s_lshl1_add_u32 s{S_T+2}, s{S_T+3}, s{S_T+2}
                  s_add_u32 s{S_T+2}, s{S_T+2}, s{sW2}
                  s_add_u32 s{S_T+2}, s{S_T+2}, {L_VX}
                  v_and_b32 v{A_+5}, 255, v{V_L16}
                  v_add_u32 v{A_+5}, s{S_T+2}, v{A_+5}
                  s_cmp_lg_u32 s{S_W}, 0
                  s_cbranch_scc1 {HD}
                  s_lshl_b32 s{S_T+3}, s{S_SEG}, 10
                  s_add_u32 s{S_T+3}, s{S_T+3}, {HPS_OFF}""")
            k.label(HL)
            k(f"buffer_load_dwordx4 {vr(T,4)}, v{V_L16}, {WS}, s{S_T+3} offen sc1")
            self.spend()
            k(f"""s_waitcnt vmcnt(0)
                  v_max3_u32 v{T+4}, v{T}, v{T+1}, v{T+2}
                  v_max_u32 v{T+4}, v{T+3}, v{T+4}
                  v_cmp_eq_u32 vcc, -1, v{T+4}
                  s_cbranch_vccnz {HL}
                  ds_write_b128 v{MX}, {vr(T,4)}""")
            k.label(HD)
            k("""s_waitcnt vmcnt(0) lgkmcnt(0)
                 s_barrier""")
            for i in range(8):
                for hq in range(2):
                    o_ = (i >> 2) * 128 + 4 * hq
                    k(f"ds_read2_b32 {vr(M+4*i+2*hq,2)}, v{A_+(i&3)} offset0:{o_} offset1:{o_+2}")
                if i == 3:
                    k("s_waitcnt lgkmcnt(4)")
            for i in range(8):
                k(f"s_waitcnt lgkmcnt({min(14 - 2*i, 12)})")
                for x in (sk(i, 0), sv(i, 0), sk(i, 1), sv(i, 1)):
                    k(x)
            for a_ in (k_(0), VA, k_(1), VA + 4):
                k(f"v_add_f32 v{a_}, v{a_}, v{a_+2}")
            k(f"""v_cvt_pk_bf16_f32 v{T}, v{k_(0)}, v{k_(1)}
                  v_cvt_pk_bf16_f32 v{T+1}, v{VA}, v{VA+4}
                  ds_write_b32 v{A_+4}, v{T}
                  ds_write_b16 v{A_+5}, v{T+1}
                  ds_write_b16_d16_hi v{A_+5}, v{T+1} offset:1024""")
            zero(QK, 24)
        if c == 0:
            k(f"""buffer_load_dwordx4 v[88:91], v{MV}, {WS}, s{sMEM} offen
                  buffer_load_dwordx4 v[88:91], v{MV}, {WS}, s{sM2} offen""")
            self.load_wo(3, extra=7)
        k("""s_waitcnt vmcnt(0) lgkmcnt(0)
             s_barrier""")
        self.ev(43, va=T)
        kv_read()
        LOOP, PA, PAB, END, GO = (k.newlabel(x) for x in ("L_chain", "L_cpa", "L_cpab", "L_cend", "L_cgo"))
        RP, RB, PB, PBB, BACK = (k.newlabel(x) for x in ("L_crp", "L_crb", "L_cpb", "L_cpbb", "L_cback"))
        qk4 = lambda ks: [sq(ks, 0), sk(ks, 0), sq(ks, 1), sk(ks, 1)]
        vlist = [(ks, t) for ks in range(8) for t in range(2)]
        def vs(n):
            for _ in range(n):
                if vlist:
                    k(sv(*vlist.pop(0)))
        def weave(mm, other):
            other = list(other)
            for o in mm:
                k(o)
                if other:
                    k(other.pop(0))
            for o in other:
                k(o)
        ONES = 14
        PT_ = M + 28
        pub = [f"v_add_u32 v{PT_}, s{S_LW}, v{QKR0}", f"v_add_u32 v{PT_+2}, s{S_LW}, v{QKR1}",
               f"ds_read_b64_tr_b16 {vr(PT_,2)}, v{PT_}", f"ds_read_b64_tr_b16 {vr(PT_+2,2)}, v{PT_+2}",
               f"v_mov_b32_dpp v{T+4}, v{T+6} quad_perm:[2,3,2,3] row_mask:0xf bank_mask:0xf",
               f"v_mov_b32_dpp v{T+5}, v{T+7} quad_perm:[2,3,2,3] row_mask:0xf bank_mask:0xf",
               f"s_mov_b32 vcc_lo, 0xcccccccc", f"s_mov_b32 vcc_hi, 0xcccccccc", None]
        pub += [f"v_cndmask_b32 v{T+4+i}, v{T+4+i}, v{PT_+i}, vcc" for i in range(4)]
        pub += [f"buffer_store_dwordx4 {vr(T+4,4)}, v{V_L16}, {WS}, s{sPUB} offen sc1"]
        XT = T
        def xaddr():
            for i in range(1, 4):
                k(f"v_xor_b32 v{XT+i-1}, {i*1024}, v{MX}")
        xaddr()
        pipe = opt.get("pipe", 1)
        def chk(hf):
            b = M + 16 * hf
            return [f"v_max3_u32 v{CK}, v{b}, v{b+1}, v{b+2}", f"v_max_u32 v{CK}, v{b+3}, v{CK}", f"v_cmp_le_u32 vcc, s{sNAN}, v{CK}"]
        mpos = opt.get("mpos", (3, 7))
        for _ in mpos:
            k(mload(0))
        if opt.get("align", 6):
            k(f".p2align {opt.get('align', 6)}")
        k.label(LOOP)
        self.stamp(0)
        k.label(PA)
        k(mload(0))
        self.spend(0x10000, sFAIL)
        k(f"s_waitcnt vmcnt({len(mpos)})")
        if opt.get("wf", 0):
            for x in chk(0)[:2] + [mwrite(0)] + chk(0)[2:]:
                k(x)
        else:
            for x in chk(0):
                k(x)
            if opt.get("spec", 1):
                k(mwrite(0))
        k(f"s_cbranch_vccnz {PA}")
        k.label(GO)
        self.stamp(1)
        if not opt.get("spec", 1):
            k(mwrite(0))
        m1 = opt.get("m1", 0)
        nb = opt.get("nb", 1)
        weave(qk4(0)[:nb], [""] * m1 + [mload(1)])
        k("""s_waitcnt lgkmcnt(0)
             s_barrier""")
        self.stamp("xa")
        V2 = lambda n: [sv(*vlist.pop(0)) for _ in range(n)]
        k(mread(0, 1))
        weave(qk4(0)[nb:] + V2(2), [mread(0, 2), mread(0, 3)])
        k("s_waitcnt lgkmcnt(2)")
        va, vb = opt.get("va", 0), opt.get("vb", 1)
        weave(qk4(1) + V2(va), [dma[0], dma[1], f"s_cmp_lt_u32 s{sOK2}, s{sOK}\ns_cbranch_scc1 {KVW}\n{KVB}:"])
        k("s_waitcnt vmcnt(0) lgkmcnt(1)")
        self.stamp("xb")
        c1 = chk(1)
        weave(qk4(2) + V2(vb), [mwrite(1) + "\n" + c1[0]] + c1[1:])
        k(f"s_cbranch_vccnz {PB}")
        k.label(BACK)
        k("""s_waitcnt lgkmcnt(0)
             s_barrier""")
        self.stamp("xc")
        packt = lambda t: [x for a_, d_ in ((q_(t), T + 2 * t), (k_(t), T + 2 * t + 1)) for x in
                           (f"v_add_f32 v{a_}, v{a_}, v{a_+2}", f"v_add_f32 v{a_+1}, v{a_+1}, v{a_+3}",
                            f"v_cvt_pk_bf16_f32 v{d_}, v{a_}, v{a_+1}")]
        mm = qk4(3) + qk4(4) + [f(ks, t) for t in range(2) for ks in (5, 6, 7) for f in (sq, sk)] + V2(2)
        n0 = 8
        far = {"a": [dma[2]], "b": [dma[3], dma[4]], "c": [dma[6], dma[5]], "d": [dma[7]], "p": [pub[-1]],
               "t": [f"buffer_load_dword v{STS}, v{TCH}, {WS}, s{sPG} offen sc1"], "-": []}
        side = {1: [mread(1, 1)], 3: [mread(1, 2)], 5: [mread(1, 3)]}
        far["x"] = [f"buffer_store_dword v{M+30}, v{MST}, {WS}, s{sMX} offen sc1"]
        for i_, x in enumerate(("x" if c == 1 else "") + opt.get("ford", "tapbcd")):
            side[2 * i_] = list(far[x])
        if c == 2:
            side[7] = [f"ds_read_b32 v{CK}, v{OR} offset:{WO_}"]
        if "t" not in opt.get("ford", "t") and c == 2:
            side[12] = far["t"]
        if opt.get("rstpos"):
            p_ = opt["rstpos"]
            side.setdefault(p_ - 3, []).append(f"v_mov_b64 {vr(T+4,2)}, -1")
            side.setdefault(p_ - 1, []).append(f"v_mov_b64 {vr(T+6,2)}, -1")
            side.setdefault(p_, []).insert(0, f"buffer_store_dwordx4 {vr(T+4,4)}, v{V_L16}, {WS}, s{sRST} offen{self.loc}")
            side.setdefault(p_ + 2, []).insert(0, f"buffer_store_dwordx4 {vr(T+4,4)}, v{V_L16}, {WS}, s{sRST} offen offset:1024{self.loc}")
        if c == 2:
            side.setdefault(n0 + 5, []).append(f"v_readfirstlane_b32 s{S_T+2}, v{CK}")
            side.setdefault(n0 + 7, []).append(f"s_cmp_lg_u32 s{S_T+2}, 0\ns_cbranch_scc1 {JUMP}")
        waits = {n0: 2 + (c == 2), n0 + 2: 1 + (c == 2), n0 + 4: 0}
        for i_, x in enumerate(packt(0)):
            side.setdefault(n0 + 8 + i_, []).append(x)
        for n, o in enumerate(mm):
            if n in waits:
                k(f"s_waitcnt lgkmcnt({waits[n]})")
            k(o)
            for x in side.get(n, []):
                k(x)
        self.stamp("back")
        for x in packt(1):
            k(x)
        k(f"ds_write_b128 v{QKW}, {vr(T,4)}")
        vend = list(vlist)
        weave(V2(opt.get("vd", 3)),
              [f"s_mov_b32 s{sPUB}, s{sKVM}\ns_add_u32 s{sKVM}, s{sKVM}, {32*4*KB}\nv_mov_b32 v{T+5}, 0",
               f"s_cmp_eq_u32 s{S_SEG}, 63\ns_cbranch_scc1 {END}"])
        self.stamp("w0")
        k("s_waitcnt lgkmcnt(0)")
        self.stamp("w1")
        k("s_barrier")
        self.stamp(2)
        F = QK
        tr = [f"ds_read_b64_tr_b16 {vr(F+4*kk+2*hh,2)}, v{(QKR0, QKR1)[hh]} offset:{kk*1024}" for kk in range(4) for hh in range(2)]
        S = M
        slots = [KX, KX + 8, KX + 16, KX + 24, F, F + 8, M + 16, M + 24]
        def wo_reads(u):
            return [f"ds_read_b128 {vr(slots[(u&1)*4+kk]+4*hf,4)}, v{WOB} offset:{((u*4+kk)*2+hf)*1024}"
                    for kk in range(4) for hf in range(2)]
        st_ = wo_reads(0) + wo_reads(1)
        nv3 = opt.get("v3", 5)
        lq = []
        def ld(x):
            k(x); lq.append(x)
        def lwait(x):
            k(f"s_waitcnt lgkmcnt({len(lq) - 1 - lq.index(x)})")
        for x in tr[:6 - nv3]:
            ld(x)
        for x in tr[6 - nv3:6]:
            vs(1); ld(x)
        shadow = [tr[6], tr[7], st_[12]] + [st_[i] for i in (0, 1, 8, 2, 3, 9, 4, 5, 10, 6, 7, 11, 13, 14, 15)]
        for kk in range(4):
            lwait(tr[2 * kk + 1])
            f = vr(F + 4 * kk, 4)
            for a_, d_ in ((vr(KX + 8 * kk, 4), S), (vr(KX + 8 * kk + 4, 4), S + 4), (f, S + 8)):
                k(f"v_mfma_f32_16x16x32_bf16 {vr(d_,4)}, {a_}, {f}, {'0' if kk == 0 else vr(d_,4)}")
                ld(shadow.pop(0))
        assert len(vlist) <= 3
        while vlist:
            vs(1)
            if len(shadow) > 2:
                ld(shadow.pop(0))
        self.stamp(3)
        P = T
        t0 = T + 6
        VM, VM1 = T + 6, M + 12
        O = VA; Lr = S + 8
        sub = lambda i: f"v_pk_add_f32 {vr(S+i,2)}, {vr(S+i,2)}, {vr(t0,2)} op_sel_hi:[1,0] neg_lo:[0,1] neg_hi:[0,1]"
        mul = lambda i: f"v_pk_mul_f32 {vr(S+i,2)}, {vr(S+i,2)}, v[0:1] op_sel:[0,1]"
        sf = opt.get("sf", 1)
        fma = lambda i: f"v_pk_fma_f32 {vr(S+i,2)}, {vr(S+i,2)}, v[0:1], {vr(t0,2)} op_sel:[0,1,0] op_sel_hi:[1,1,0] neg_lo:[0,0,1] neg_hi:[0,0,1]"
        va0, va1 = (f"v_pk_add_f32 {vr(VA+i,2)}, {vr(VA+i,2)}, {vr(VA+i+2,2)}" for i in (0, 4))
        ex = lambda i: f"v_exp_f32 v{S+i}, v{S+i}"
        sh = lambda: shadow.pop(0) if shadow else ""
        k(f"""v_max3_f32 v{t0}, v{S}, v{S+1}, v{S+2}
              v_max3_f32 v{t0+1}, v{S+3}, v{S+4}, v{S+5}
              v_max3_f32 v{t0}, v{S+6}, v{S+7}, v{t0}
              v_max3_f32 v{t0+1}, v{S+10}, v{S+11}, v{t0+1}
              v_max_f32 v{t0}, v{t0}, v{t0+1}
              v_max_f32 v{t0+1}, v{t0}, v{t0+1}
              {mul(10)}
              {mul(0)}
              v_permlane16_swap_b32 v{t0}, v{t0+1}
              v_max_f32 v{t0}, v{t0}, v{t0+1}
              v_max_f32 v{t0+1}, v{t0}, v{t0+1}
              {va0 if sf else mul(2)}
              {va1 if sf else mul(4)}
              v_permlane32_swap_b32 v{t0}, v{t0+1}
              v_max_f32 v{t0}, v{t0}, v{t0+1}
              v_mul_f32 v{t0}, v1, v{t0}
              {"" if sf else mul(6)}
              {sub(10)}
              {"" if sf else va0}
              {"" if sf else va1}
              {sub(0)}
              {fma(2) if sf else sub(2)}
              {fma(4) if sf else sub(4)}
              {fma(6) if sf else sub(6)}
              {ex(10)}
              {ex(11)}
              v_cvt_pk_bf16_f32 v{VM}, v{VA}, v{VA+1}
              v_cvt_pk_bf16_f32 v{P+4}, v{S+10}, v{S+11}
              v_cvt_pk_bf16_f32 v{VM+1}, v{VA+4}, v{VA+5}
              v_cvt_pk_bf16_f32 v{VM1}, v{VA+4}, v{VA+5}
              v_mfma_f32_16x16x16_bf16 {vr(Lr,4)}, {vr(ONES,2)}, {vr(P+4,2)}, 0
              {sh()}
              {ex(0)}
              v_mfma_f32_16x16x16_bf16 {vr(O,4)}, {vr(VM,2)}, {vr(P+4,2)}, 0
              {sh()}
              {ex(1)}
              v_mfma_f32_16x16x16_bf16 {vr(O+4,4)}, {vr(VM1,2)}, {vr(P+4,2)}, 0
              {sh()}
              {ex(2)}""")
        for i in range(3, 8):
            k(ex(i))
            if i & 1:
                k(f"v_cvt_pk_bf16_f32 v{P+(i>>1)-1}, v{S+i-3}, v{S+i-2}")
        k(f"v_cvt_pk_bf16_f32 v{P+3}, v{S+6}, v{S+7}")
        for nm in opt.get("fw", ()):
            k(f"s_waitcnt vmcnt({nm})")
            self.stamp("f%d" % nm)
        self.stamp(4)
        k(f"""s_add_u32 s{sPG}, s{sPG}, 8192
              s_add_u32 s{S_SEG}, s{S_SEG}, 1
              v_mfma_f32_16x16x32_bf16 {vr(Lr,4)}, {vr(ONES,4)}, {vr(P,4)}, {vr(Lr,4)}
              {sh()}
              v_mfma_f32_16x16x32_bf16 {vr(O,4)}, {vr(VX,4)}, {vr(P,4)}, {vr(O,4)}
              ds_read_b128 {vr(VX,4)}, v{WOB} offset:{16*1024}
              v_mfma_f32_16x16x32_bf16 {vr(O+4,4)}, {vr(VX+4,4)}, {vr(P,4)}, {vr(O+4,4)}
              ds_read_b128 {vr(VX+4,4)}, v{WOB} offset:{17*1024}
              v_rcp_f32 v{Lr}, v{Lr}""")
        assert not shadow
        acc = [VA, VA + 4, T, VA]
        k(f"""v_mov_b64 {vr(S,2)}, -1
              v_mov_b64 {vr(S+2,2)}, -1
              s_add_u32 s{sMEM}, s{sPG}, {MEM_OFF[c]}
              s_add_u32 s{sM2}, s{sMEM}, 4096""")
        for e in range(0, 8, 2):
            k(f"v_pk_mul_f32 {vr(O+e,2)}, {vr(O+e,2)}, {vr(Lr,2)} op_sel_hi:[1,0]")
        for r in range(4):
            k(f"v_cvt_pk_bf16_f32 v{T+r}, v{O+r}, v{O+4+r}")
        k(f"ds_write_b128 v{OW}, {vr(T,4)}")
        if not opt.get("rstpos"):
            k(f"""buffer_store_dwordx4 {vr(S,4)}, v{V_L16}, {WS}, s{sRST} offen{self.loc}
                  buffer_store_dwordx4 {vr(S,4)}, v{V_L16}, {WS}, s{sRST} offen offset:1024{self.loc}""")
        zero(VA, 8)
        k("s_waitcnt lgkmcnt(0)")
        k("s_barrier")
        self.stamp(5)
        OA = M
        lq[:] = []
        ord_ = [f"ds_read_b128 {vr(OA+4*kk,4)}, v{OR} offset:{kk*512}" for kk in range(4)]
        for x in ord_:
            ld(x)
        zero(T, 4)
        k(f"""s_add_u32 s{S_T+1}, s{sPC}, {64*KB}
              s_add_u32 s{S_T+2}, s{sPC}, {128*KB}
              s_add_u32 s{S_T+3}, s{sPC}, {192*KB}
              s_add_u32 s{S_T}, s{sKF}, s{sPG}""")
        if c == 1:
            k(f"s_add_u32 s{sMX}, s{sPG}, {MEMX_OFF}")
        alt = opt.get("alt", 0)
        seq = [0, 4, 1, 5, 2, 6, 3, 7] if alt else list(range(8))
        seq += list(range(8, 16))
        where = slots + [VX] + [slots[x] for x in seq[:7]]
        stream = [f"ds_read_b128 {vr(where[i]+4*hf,4)}, v{WOB} offset:{(i*2+hf)*1024}" for i in range(9, 16) for hf in range(2)]
        def wo_out(u):
            a = acc[u]
            return [f"v_cvt_pk_bf16_f32 v{a}, v{a}, v{a+1}", f"v_cvt_pk_bf16_f32 v{a+1}, v{a+2}, v{a+3}",
                    f"buffer_store_dwordx2 {vr(a,2)}, v{PST}, {WS}, s{S_T+u if u else sPC} offen{self.loc}"]
        oth = {}
        if alt:
            acc[3] = M + 24
            o0, o1, o2 = wo_out(0), wo_out(1), wo_out(2)
            oth = {8: o0[:2], 9: [o0[2], o1[0]], 10: [f"v_mov_b64 {vr(acc[3],2)}, 0", o1[1]], 11: [o1[2], f"v_mov_b64 {vr(acc[3]+2,2)}, 0"],
                   12: pub[:1], 13: o2[:1], 14: o2[1:2], 15: o2[2:]}
            oth[10], oth[11] = [o1[1], f"v_mov_b64 {vr(acc[3],2)}, 0", f"v_mov_b64 {vr(acc[3]+2,2)}, 0"], [o1[2], pub[1]]
            npop = opt.get("npop", {0: 1, 1: 1, 2: 1, 3: 2, 4: 1, 5: 2, 6: 1, 7: 2, 8: 1, 10: 1, 12: 1})
        else:
            for u in range(3):
                o_ = wo_out(u)
                oth[4 * u + 5] = o_[:1]
                oth[4 * u + 6] = o_[1:]
            oth[7] = [f"v_mov_b64 {vr(VA,2)}, 0"]
            oth[8] = [f"v_mov_b64 {vr(VA+2,2)}, 0"]
            oth[11] = pub[:1]
            oth[12] = pub[1:2]
            npop = {i: 2 if i in (8, 10) else 1 for i in range(12)}
        tail_ld = {13: pub[2], 14: pub[3]}
        todo = list(stream)
        for i, j_ in enumerate(seq):
            if j_ < 4:
                lwait(ord_[j_])
            if i >= 9:
                lwait(stream[2 * (i - 9) + 1])
            k(f"v_smfmac_f32_16x16x64_bf16 {vr(acc[j_>>2],4)}, {vr(OA+4*(j_&3),4)}, {vr(where[j_],8)}, v{IDX2}")
            self.stamp("o%d" % i)
            for _ in range(npop.get(i, 0)):
                assert (14 - len(todo)) // 2 <= i
                ld(todo.pop(0))
            if i in tail_ld:
                ld(tail_ld[i])
            for x in oth.get(i, []):
                k(x)
        assert not todo
        zero(VA + 4, 4)
        k(f"s_xor_b32 s{sPC}, s{sPC}, {256*KB}")
        for x in pub[4:8] + wo_out(3) + ["s_waitcnt lgkmcnt(0)", f"s_buffer_load_dword s{sOK2}, {WS}, s{S_T}"]:
            k(x)
        self.stamp(6)
        RS = (M + 8, M + 20); RA = M + 4; RT = M + 28
        def rloads(R):
            for i in range(2):
                k(f"buffer_load_dwordx4 {vr(R+4*i,4)}, v{V_L16}, {WS}, s{sRD} offen offset:{i*1024} sc1")
        def reduce(R, fill=()):
            k(f"s_waitcnt vmcnt({3 if opt.get('two', 1) else 1})")
            self.stamp("r2")
            k(f"v_mfma_f32_16x16x32_bf16 {vr(RA,4)}, {vr(SEL,4)}, {vr(R,4)}, 0")
            k(f"s_waitcnt vmcnt({2 if opt.get('two', 1) else 0})")
            k(f"v_mfma_f32_16x16x32_bf16 {vr(RA,4)}, {vr(SEL,4)}, {vr(R+4,4)}, {vr(RA,4)}")
            for x in fill:
                k(x)
            k(f"""v_cmp_u_f32 vcc, v{RA}, v{RA}
                  v_add_f32_dpp v{RT}, v{RA}, v{RA} row_ror:8 row_mask:0xf bank_mask:0x3
                  v_add_f32_dpp v{RT+1}, v{RA+1}, v{RA+1} row_ror:8 row_mask:0xf bank_mask:0x3
                  v_add_f32_dpp v{RT}, v{RA+2}, v{RA+2} row_ror:8 row_mask:0xf bank_mask:0xc
                  v_add_f32_dpp v{RT+1}, v{RA+3}, v{RA+3} row_ror:8 row_mask:0xf bank_mask:0xc""")
            if not opt.get("brm", 1):
                k(red2)
        red2 = f"""v_add_f32_dpp v{RT}, v{RT}, v{RT} row_shl:4 row_mask:0xf bank_mask:0x5
                   v_add_f32_dpp v{RT+1}, v{RT+1}, v{RT+1} row_shl:4 row_mask:0xf bank_mask:0x5"""
        kvr = [f"ds_read_b128 {vr(KX+4*i,4)}, v{OB} offset:{((i&1)*4+(i>>1))*1024}" for i in range(8)]
        kvr += [f"ds_read_b128 {vr(VX+4*t,4)}, v{CK} offset:{L_VX-L_KX+t*1024}" for t in range(2)]
        work = pub[9:13] + [f"v_mov_b64 {vr(QK+i,2)}, 0" for i in range(0, 20, 2)] \
            + [f"v_add_u32 v{OB}, {L_KX}, v{V_L16}", f"v_add_u32 v{CK}, s{sW2}, v{OB}"]
        two = opt.get("two", 1)
        nw = opt.get("nw", 2)
        for x in work[:nw]:
            k(x)
        RG = k.newlabel("L_crg")
        e0, e1, e2 = opt.get("ea", (3, 1, 0))
        k(f"""s_cmp_lt_u32 s{S_W}, 2
              s_waitcnt vmcnt({e0})
              s_cbranch_scc1 {RG}
              s_cmp_eq_u32 s{S_W}, 2
              s_waitcnt vmcnt({e1})
              s_cbranch_scc1 {RG}
              s_waitcnt vmcnt({e2})""")
        k.label(RG)
        self.stamp("ea")
        rloads(RS[0])
        for x in work[nw:]:
            k(x)
        xaddr()
        blate = opt.get("blate", 1)
        if not blate:
            k("s_barrier")
        kp = opt.get("kvpos", 0)
        for i, x in enumerate(kvr[:kp]):
            if two and i == two:
                rloads(RS[1])
            k(x)
        if two:
            if two > 1:
                k(f"s_sleep {two - 1}")
            rloads(RS[1])
        k(f"""s_cmp_ge_u32 s{S_SEG}, 63
              s_cselect_b32 s{sOK}, 0, 1""")
        if c == 2:
            k(f"""v_readlane_b32 s{S_T}, v{STS}, 5
                  v_readlane_b32 s{sJ}, v{STS}, 4
                  v_add_u32 v{STS}, -1, v{STS}
                  v_cmp_le_u32 vcc, s{sMK}, v{STS}
                  s_cmp_gt_u32 s{S_SEG}, {63 - LOOK}
                  s_cselect_b32 s{sREC}, 0, vcc_hi
                  s_cmp_gt_u32 s{sJ}, s{sMK}
                  s_cselect_b32 s{sREC}, 1, s{sREC}
                  s_cmp_lg_u32 s{sREC}, 0
                  s_cselect_b32 s{sOK}, 2, s{sOK}
                  s_cmp_gt_u32 s{S_T}, s{sMK}
                  s_cbranch_scc1 {LEAD}""")
            k.label(LEADB)
        k(f"""s_cmp_eq_u32 s{S_W}, 0
              s_cselect_b32 s{sOK}, s{sOK}, 0""")
        OKR = k.newlabel("L_cok")
        reduce(RS[0])
        k(f"s_cbranch_vccnz {RP}")
        k.label(OKR)
        if opt.get("brm", 1):
            k(red2)
        k(f"""v_cvt_pk_bf16_f32 v{RT+2}, v{RT}, v{RT+1}
              buffer_store_dword v{RT+2}, v{MST}, {WS}, s{sMEM} offen{self.loc}
              s_mov_b32 s{sRST}, s{sRD}
              s_xor_b32 s{sRD}, s{sRD}, {256*KB}""")
        self.stamp(7)
        if blate:
            k("s_barrier")
        for i, x in enumerate(kvr):
            if i in mpos:
                k(mload(0))
            k(x)
        if opt.get("mack"):
            k(f"s_waitcnt vmcnt({2 if pipe else 0})")
        if self.stamps > 1:
            NX = k.newlabel("L_cnx")
            k(f"""s_and_b32 s{S_T}, s{S_SEG}, 7
                  s_cmp_lg_u32 s{S_T}, 7
                  s_cbranch_scc1 {NX}""")
            if c == opt.get("stc", 0):
                self.dump_stamps(8, sFAIL, M + 4)
            k.label(NX)
        if self.stamps:
            NE = k.newlabel("L_cne")
            k(f"""s_and_b32 s{S_T}, s{S_SEG}, 7
                  s_cmp_lg_u32 s{S_T}, 1
                  s_cbranch_scc1 {NE}""")
            self.ev(50 + c, va=M + 4)
            self.ev(56 + c, va=M + 4, clk="s_memtime")
            k.label(NE)
        k(f"s_branch {LOOP}")
        for hf, lab, back in ((1, PB, BACK),):
            k.label(lab)
            k(mload(hf))
            self.spend(1 if hf else 0x10000, sFAIL)
            k("s_waitcnt vmcnt(0)")
            for x in chk(hf):
                k(x)
            k(f"""s_cbranch_vccnz {lab}
                  {mwrite(1)}
                  s_branch {back}""")
        k.label(RP)
        st_, self.stamps = self.stamps, min(self.stamps, 1)
        for i in (0, 1) if two else (0,):
            rloads(RS[i])
            self.spend(0x100, sFAIL)
            reduce(RS[1 - i if two else 0])
            k(f"s_cbranch_vccz {OKR}")
        k(f"s_branch {RP}")
        self.stamps = st_
        k.label(KVW)
        if c == 2:
            k(f"""s_cmp_eq_u32 s{sREC}, 0
                  s_cbranch_scc1 {JW}
                  s_cmp_gt_u32 s{sJ}, s{sMK}
                  s_cbranch_scc1 {JS}
                  s_add_u32 s{sSCN}, s{S_SEG}, {LOOK}""")
            keys_wait(sSCN, M + 20)
            k(f"""v_cmp_lt_u32 vcc, s{sMK}, v{M+20}
                  s_cbranch_vccz {JW}""")
            self.wmax_u32(M + 20, M + 21)
            k(f"v_readfirstlane_b32 s{sJ}, v{M+20}")
            k.label(JS)
            k(f"""s_mov_b32 s{sMK}, s{sJ}
                  s_andn2_b32 s{sSCN}, 0x7ff, s{sJ}
                  s_lshr_b32 s{sSCN}, s{sSCN}, 5
                  s_add_u32 s{sSCN}, s{sSCN}, 1
                  s_min_u32 s{sSCN}, s{sSCN}, 63
                  ds_write_b32 v{OR}, v{IDX} offset:{WO_}
                  s_waitcnt lgkmcnt(0)
                  s_branch {KVB}""")
            k.label(LEAD)
            k(f"""v_mov_b32 v{STS}, s{S_T}
                  s_add_u32 s{S_T}, s{sPG}, {PG_OFF + 8192 + F_J}
                  buffer_store_dword v{STS}, off, {WS}, s{S_T}{self.loc}
                  s_waitcnt vmcnt(0)
                  s_branch {LEADB}""")
            k.label(JW)
            k(f"""s_cmp_lg_u32 s{sOK2}, 0
                  s_cbranch_scc1 {KVB}""")
        k(f"s_add_u32 s{S_T+3}, s{sKF}, s{sPG}")
        self.ev(44, va=M + 20)
        self.word_wait(S_T + 3, sOK, va=STS, sleep=opt.get("slk", 0))
        self.ev(45, va=M + 20)
        k(f"s_branch {KVB}")
        if c == 2:
            k.label(JUMP)
            k(f"""s_waitcnt vmcnt(0) lgkmcnt(0)
                  s_barrier
                  s_branch {START}""")
        k.label(END)
        for x in vend[2:]:
            k(sv(*x))
        k(f"""s_waitcnt lgkmcnt(0)
              v_pk_add_f32 {vr(VA,2)}, {vr(VA,2)}, {vr(VA+2,2)}
              v_pk_add_f32 {vr(VA+4,2)}, {vr(VA+4,2)}, {vr(VA+6,2)}
              v_cvt_pk_bf16_f32 v{VM}, v{VA}, v{VA+1}
              v_cvt_pk_bf16_f32 v{VM+1}, v{VA+4}, v{VA+5}""")
        for x in pub:
            k(x or "s_waitcnt lgkmcnt(0)")
        k(f"s_mov_b32 s{S_SEG}, 64")
        self.ev(50 + c, va=M + 4)
        k("s_waitcnt vmcnt(0)")
        k("s_barrier")
        k.fence()
        k(f"v_lshrrev_b32 v{V_LANE}, 4, v{V_L16}")

    def dump_stamps(self, n, extra=None, va=36):
        k = self.k
        k(f"""s_waitcnt lgkmcnt(0)
              s_lshl_b32 s{S_T}, s{S_SEG}, 5
              s_add_u32 s{S_T}, s{S_T}, s{S_H}
              s_lshl_b32 s{S_T}, s{S_T}, 2
              s_add_u32 s{S_T}, s{S_T}, s{S_W}
              s_lshl_b32 s{S_T}, s{S_T}, 6
              s_add_u32 s{S_T}, s{S_T}, {STAMP_OFF}
              v_mov_b32 v{va}, 0""")
        for i in range(n):
            k(f"v_writelane_b32 v{va}, s{84+2*i}, {i}")
        if extra is not None:
            k(f"v_writelane_b32 v{va}, s{extra}, 8")
            k(f"s_mov_b32 s{extra}, 0")
        k(f"""v_lshrrev_b32 v{va+1}, 2, v{V_L16}
              s_mov_b64 exec, 0xffff
              buffer_store_dword v{va}, v{va+1}, {WS}, s{S_T} offen
              s_mov_b64 exec, -1""")

    def proj_consts(self):
        k = self.k
        self.THR, self.TOB, self.TWO, self.THD, self.TRW, self.TRL = 4, 17, 18, 20, 21, 22
        T = 120
        k(f"""v_and_b32 v{T}, 15, v{V_LANE}
              v_lshrrev_b32 v{T+1}, 4, v{V_LANE}
              v_mov_b32 v{self.TOB}, 1
              s_lshl_b32 s{S_T}, s{S_W}, 15
              v_add_u32 v{self.TWO}, s{S_T}, v{V_L16}
              s_lshl_b32 s{S_T}, s{S_W}, 2
              v_add_u32 v{T+5}, s{S_T}, v{T+1}            ; row 4w+g
              v_xor_b32 v{T+6}, v{T+5}, v{T}
              v_lshlrev_b32 v{T+6}, 4, v{T+6}
              v_lshl_add_u32 v{self.THD}, v{T+5}, 10, v{T+6}""")
        for kq in range(4):
            k(f"""v_add_u32 v{T+5}, {4*kq}, v{T+1}
                  v_xor_b32 v{T+5}, v{T+5}, v{T}
                  v_lshlrev_b32 v{T+5}, 4, v{T+5}
                  v_lshl_add_u32 v{T+5}, v{T}, 8, v{T+5}
                  v_add_u32 v{self.THR+kq}, {self.LH}, v{T+5}""")
        k(f"""v_lshlrev_b32 v{self.TRW}, 5, v{T}
              v_and_b32 v{T+5}, 1, v{T+1}
              v_lshl_add_u32 v{self.TRW}, v{T+5}, 4, v{self.TRW}
              s_lshl_b32 s{S_T}, s{S_W}, 9
              v_lshrrev_b32 v{T+5}, 1, v{T+1}
              v_lshl_add_u32 v{self.TRW}, v{T+5}, 11, v{self.TRW}
              s_add_u32 s{S_T}, s{S_T}, {L_ROW}
              v_add_u32 v{self.TRW}, s{S_T}, v{self.TRW}
              v_lshlrev_b32 v{self.TRL}, 4, v{T}
              v_lshl_add_u32 v{self.TRL}, v{T+1}, 10, v{self.TRL}
              s_lshl_b32 s{S_T}, s{S_W}, 8
              v_add_u32 v{self.TRL}, s{S_T}, v{self.TRL}""")

    def flag_set(self, s_off, loc, keep=0):
        self.k(f"""s_waitcnt vmcnt({keep})
                   s_barrier""")
        self.flag_store(s_off, loc)

    def flags_wait32(self, s_off, one=False, sleep=0):
        k = self.k
        L, D, F = k.newlabel("L_fw"), k.newlabel("L_fd"), k.newlabel("L_ff")
        if one:
            k(f"""s_cmp_lg_u32 s{S_W}, 0
                  s_cbranch_scc1 {D}""")
        k(f"""v_and_b32 v124, 31, v{V_LANE}
              v_lshlrev_b32 v124, 2, v124""")
        if sleep:
            k(f"s_branch {F}")
        k.label(L)
        if sleep:
            k(f"s_sleep {sleep}")
            k.label(F)
        k(f"buffer_load_dword v125, v124, {WS}, s{s_off} offen sc1")
        self.spend()
        k(f"""s_waitcnt vmcnt(0)
              v_cmp_eq_u32 vcc, 0, v125
              s_cbranch_vccnz {L}""")
        if one:
            k.label(D)
            k("s_barrier")

    def reduce32(self, s_base, natural, o=0):
        k = self.k
        D = 24 + o; SEL = 56 + o; A = 60 + o
        for i in range(8):
            k(f"s_add_u32 s{S_T+7}, s{s_base}, {i*4096}")
            k(f"buffer_load_dwordx4 {vr(D+4*i,4)}, v{self.TRL}, {WS}, s{S_T+7} offen sc1")
        self.make_sel(SEL, 64 + o)
        for i in range(8):
            k(f"s_waitcnt vmcnt({7-i})")
            k(f"v_mfma_f32_16x16x32_bf16 {vr(A,4)}, {vr(SEL,4)}, {vr(D+4*i,4)}, {'0' if i == 0 else vr(A,4)}")
        if natural:
            k(f"ds_write_b128 v{self.TRW}, {vr(A,4)}")
        else:
            k(f"ds_write2_b64 v{self.TRW}, {vr(A,2)}, {vr(A+2,2)} offset0:0 offset1:64")
        k(f"""s_waitcnt lgkmcnt(0)
              s_barrier""")

    def one_lane_store(self, v, s_off, fl):
        self.k(f"""s_mov_b64 exec, 1
                   buffer_store_dword v{v}, off, {WS}, s{s_off}{fl}
                   s_mov_b64 exec, -1""")

    def wmax_u32(self, x, t):
        k = self.k
        for r in (8, 4, 2, 1):
            k(f"v_max_u32_dpp v{x}, v{x}, v{x} row_ror:{r} row_mask:0xf bank_mask:0xf")
        k(f"""v_mov_b32 v{t}, v{x}
              v_permlane16_swap_b32 v{x}, v{t}
              v_max_u32 v{x}, v{x}, v{t}
              v_mov_b32 v{t}, v{x}
              v_permlane32_swap_b32 v{x}, v{t}
              v_max_u32 v{x}, v{x}, v{t}""")

    def load_gate_up(self):
        k = self.k
        k(f"""v_and_b32 v33, 15, v{V_LANE}
              v_lshrrev_b32 v34, 4, v{V_LANE}
              s_min_u32 s{S_T+4}, s{S_H}, 27
              s_lshl_b32 s{S_T+4}, s{S_T+4}, 7            ; 64 cols * 2B
              s_mul_i32 s{S_T+3}, s{S_W}, {128*3584}
              s_add_u32 s{S_T+4}, s{S_T+4}, s{S_T+3}
              v_mul_u32_u24 v36, {32*3584}, v34
              v_and_b32 v35, 7, v33
              v_lshl_add_u32 v36, v35, 4, v36
              v_add_u32 v36, s{S_T+4}, v36                ; byte offset inside gate / up
              v_cmp_gt_u32 vcc, 8, v33
              v_mov_b32 v38, s{P_WU}
              v_mov_b32 v39, s{P_WU+1}
              v_mov_b32 v40, s{P_WG}
              v_mov_b32 v41, s{P_WG+1}
              v_cndmask_b32 v38, v38, v40, vcc
              v_cndmask_b32 v39, v39, v41, vcc
              v_add_co_u32 v38, vcc, v38, v36
              v_addc_co_u32 v39, vcc, 0, v39, vcc
              s_lshl_b32 s{S_T}, s{S_W}, 15
              v_add_u32 v37, s{S_T}, v{V_L16}""")
        for half in range(2):
            for i in range(16):
                k(f"global_load_dwordx4 {vr(44+4*i,4)}, v[38:39], off")
                k(f"v_add_co_u32 v38, vcc, 3584, v38")
                k(f"v_addc_co_u32 v39, vcc, 0, v39, vcc")
            for i in range(16):
                k(f"s_waitcnt vmcnt({15-i})")
                k(f"ds_write_b128 v37, {vr(44+4*i,4)} offset:{(16*half+i)*1024}")
                if i % 8 == 7:
                    k("s_waitcnt lgkmcnt(0)")

    def moe_pre(self, layer):
        k = self.k
        LD, AF, MK = 24, 124, 12
        A1, A2, A3 = 9, 10, 11
        k(f"""v_and_b32 v{A1}, 15, v{V_LANE}
              v_lshrrev_b32 v{A2}, 4, v{V_LANE}
              v_and_b32 v{AF}, 1, v{V_LANE}
              v_lshlrev_b32 v{AF}, 4, v{AF}
              v_mov_b32 v{AF+1}, 0xffff
              v_lshlrev_b32 v{AF+1}, v{AF}, v{AF+1}
              v_lshrrev_b32 v{AF}, 2, v{A1}
              v_cmp_eq_u32 vcc, 0, v{AF}
              v_cndmask_b32 v{MK}, 0, v{AF+1}, vcc
              v_cmp_eq_u32 vcc, 1, v{AF}
              v_cndmask_b32 v{MK+1}, 0, v{AF+1}, vcc
              v_and_b32 v{AF}, 2, v{V_LANE}
              v_cmp_eq_u32 vcc, 0, v{AF}
              v_mov_b32 v{MK+2}, 0xeeee
              v_mov_b32 v{AF}, 0x4444
              v_cndmask_b32 v{MK+2}, v{MK+2}, v{AF}, vcc
              v_lshlrev_b32 v{A3}, 14, v{A2}
              v_lshl_add_u32 v{A3}, v{A1}, 4, v{A3}
              s_lshl_b32 s{S_T+9}, s{S_SEG}, 15
              s_add_u32 s{S_T+9}, s{S_T+9}, {MOE_OFF}
              s_lshl_b32 s{S_T+6}, s{S_H}, 10
              s_add_u32 s{S_T+6}, s{S_T+6}, s{S_T+9}
              s_lshl_b32 s{S_T+7}, s{S_H}, 16
              s_lshl_b32 s{S_T+4}, s{S_W}, 8
              s_add_u32 s{S_T+7}, s{S_T+7}, s{S_T+4}""")
        self.srd(P_WD, 1792 * 1024)
        out = []
        for i in range(16):
            out.append((f"s_add_u32 s{S_T+7}, s{S_T+7}, 4096\n" if i % 4 == 0 and i else "")
                       + f"buffer_load_dwordx4 {vr(LD+i*4,4)}, v{A3}, {SA}, s{S_T+7} offen offset:{(i%4)*1024}")
        if not self.loc:
            out.append(f"buffer_load_dword v{MK+3}, v{V_L16}, {WS}, s{S_T+6} offen")
        if layer:
            for x in out:
                k(x)
            for i in range(32):
                k(f"ds_read_b128 {ar(4*i,4)}, v{self.TWO} offset:{i*1024}")
        return out

    def moe(self, layer, sKEY):
        k = self.k
        sROW = S_T + 8
        LD = 24
        X, YP, TM = 96, 104, 108
        XB, AF, ACC, MK, G = 88, 124, 116, 12, 108
        A0, A1, A2 = 8, 9, 10
        k(f"""s_andn2_b32 s{sROW}, 0x7ff, s{sKEY}
              s_lshl_b32 s{S_T}, s{sROW}, 10
              s_add_u32 s{S_T+2}, s{S_T}, {X1_OFF[layer]}
              buffer_load_dwordx4 {vr(XB,4)}, v{V_L16}, {WS}, s{S_T+2} offen sc1""")
        dl = [] if layer else self.moe_pre(0)
        TAB = L_MOE
        k(f"""s_lshl_b32 s{S_T+1}, s{S_W}, 11
              s_add_u32 s{S_T+1}, s{S_T+1}, {TAB}
              v_add_u32 v{A0}, s{S_T+1}, v{V_L16}
              v_and_b32 v2, 1, v{A2}
              v_lshrrev_b32 v3, 1, v{A2}
              v_lshlrev_b32 v2, 7, v2
              v_lshl_add_u32 v2, v3, 10, v2
              s_lshl_b32 s{S_T+3}, s{S_W}, 8
              s_add_u32 s{S_T+3}, s{S_T+1}, s{S_T+3}
              v_add_u32 v2, s{S_T+3}, v2                    ; rows 128w + 64(g&1) + (g>>1) + 2n
              s_mov_b32 s{S_T+4}, 0x01000100
              s_mov_b32 s{S_T+5}, 0x03020302
              s_waitcnt vmcnt(0)""")
        if layer == 0:
            XL, XD = k.newlabel("L_mx"), k.newlabel("L_mxd")
            k.label(XL)
            k(f"""v_max3_u32 v{AF}, v{XB}, v{XB+1}, v{XB+2}
                  v_max_u32 v{AF}, v{XB+3}, v{AF}
                  v_cmp_eq_u32 vcc, -1, v{AF}
                  s_cbranch_vccz {XD}
                  buffer_load_dwordx4 {vr(XB,4)}, v{V_L16}, {WS}, s{S_T+2} offen sc1""")
            self.spend()
            k(f"""s_waitcnt vmcnt(0)
                  s_branch {XL}""")
            k.label(XD)
            for x in dl[:4]:
                k(x)
            dl = dl[4:]
        self.mark(44)
        self.unpack8(X, XB)
        self.layernorm(X, YP, TM)
        for q in range(4):
            k(f"v_perm_b32 v{XB+q}, v{YP+q}, v{YP+q}, s{S_T+4}")
        k(f"ds_write_b128 v{A0}, {vr(XB,4)}")
        for q in range(4):
            k(f"v_perm_b32 v{XB+4+q}, v{YP+q}, v{YP+q}, s{S_T+5}")
        k(f"""ds_write_b128 v{A0}, {vr(XB+4,4)} offset:1024
              s_mov_b32 s{S_T+2}, s{S_T+1}""")
        def diag(af, t0, t1):
            return [f"v_and_b32 v{af}, v{MK}, v{t0}", f"v_and_b32 v{af+1}, v{MK+1}, v{t0}",
                    f"v_and_b32 v{af+2}, v{MK}, v{t1}", f"v_and_b32 v{af+3}, v{MK+1}, v{t1}"]
        self.mark(45)
        if layer:
            TB_ = 128
            for b in range(4):
                k(f"ds_read_b128 {vr(TB_+4*b,4)}, v2 offset:{16*b}")
                k(f"ds_read_b128 {vr(TB_+16+4*b,4)}, v2 offset:{64+16*b}")
            k(f"""v_mov_b64 {vr(ACC,2)}, 0
                  v_mov_b64 {vr(ACC+2,2)}, 0
                  s_waitcnt lgkmcnt(6)""")
            for x in diag(120, TB_, TB_ + 16):
                k(x)
            for n in range(16):
                if n + 1 < 16:
                    if (n + 1) % 4 == 0:
                        k(f"s_waitcnt lgkmcnt({6 - 2*((n+1)//4)})")
                    nx = diag(120 + 4 * ((n + 1) & 1), TB_ + n + 1, TB_ + 17 + n)
                    k(nx[0]); k(nx[1])
                k(f"v_smfmac_f32_16x16x64_bf16 {vr(ACC,4)}, {vr(120+4*(n&1),4)}, {ar(8*n,8)}, v{MK+2}")
                if n + 1 < 16:
                    k(nx[2]); k(nx[3])
        else:
            ring = [G, LD + 40, LD + 48, LD + 56]
            gread = lambda n: [f"ds_read_b128 {vr(ring[n&3]+4*hf,4)}, v{self.TWO} offset:{(2*n+hf)*1024}" for hf in range(2)]
            tread = lambda b: [f"ds_read_b128 {vr(XB,4)}, v2 offset:{16*b}", f"ds_read_b128 {vr(XB+4,4)}, v2 offset:{64+16*b}"]
            lq = []
            def ld(xs):
                for x in xs:
                    k(x); lq.append(x)
            def lw(x):
                k(f"s_waitcnt lgkmcnt({min(15, len(lq) - 1 - max(i for i, y in enumerate(lq) if y == x))})")
            ld(tread(0) + gread(0) + gread(1) + gread(2) + gread(3))
            k(f"""v_mov_b64 {vr(ACC,2)}, 0
                  v_mov_b64 {vr(ACC+2,2)}, 0""")
            early, late = dl[:6] + dl[12:], dl[6:12]
            for n in range(16):
                if n % 4 == 0:
                    lw(tread(n // 4)[1])
                for x in diag(120 + 4 * (n & 1), XB + n % 4, XB + 4 + n % 4):
                    k(x)
                if n % 4 == 3 and n < 15:
                    ld(tread(n // 4 + 1))
                lw(gread(n)[1])
                k(f"v_smfmac_f32_16x16x64_bf16 {vr(ACC,4)}, {vr(120+4*(n&1),4)}, {vr(ring[n&3],8)}, v{MK+2}")
                if n + 4 < 16:
                    ld(gread(n + 4))
                if early:
                    k(early.pop(0))
                if n >= 13:
                    k(late.pop(0)); k(late.pop(0))
            assert not early and not late
        self.mark(46)
        RED = L_MOE + 8 * KB
        k(f"""v_lshlrev_b32 v{A0}, 5, v{A1}
              v_and_b32 v{AF}, 1, v{A2}
              v_lshl_add_u32 v{A0}, v{AF}, 4, v{A0}
              v_lshrrev_b32 v{AF}, 1, v{A2}
              v_lshl_add_u32 v{A0}, v{AF}, 11, v{A0}
              s_lshl_b32 s{S_T+4}, s{S_W}, 9
              s_add_u32 s{S_T+4}, s{S_T+4}, {RED}
              v_add_u32 v{A0}, s{S_T+4}, v{A0}
              ds_write_b128 v{A0}, {vr(ACC,4)}
              v_lshlrev_b32 v{A0}, 2, v{V_LANE}
              v_add_u32 v{A0}, {RED}, v{A0}
              v_and_b32 v2, 1, v{V_LANE}
              v_lshrrev_b32 v3, 1, v{V_LANE}
              v_lshlrev_b32 v3, 2, v3
              v_lshl_add_u32 v2, v2, 7, v3
              v_add_u32 v2, s{S_T+2}, v2
              v_lshlrev_b32 v3, 6, v{A2}
              v_add_u32 v3, s{S_T+2}, v3                    ; rows 32(g&1) + (g>>1) + 2n
              s_waitcnt lgkmcnt(0)
              s_barrier""")
        for w in range(4):
            k(f"ds_read2st64_b32 {vr(XB+2*w,2)}, v{A0} offset0:{2*w} offset1:{2*w+1}")
        k("s_waitcnt lgkmcnt(0)")
        k(f"""v_pk_add_f32 {vr(XB,2)}, {vr(XB,2)}, {vr(XB+2,2)}
              v_pk_add_f32 {vr(XB+4,2)}, {vr(XB+4,2)}, {vr(XB+6,2)}
              v_pk_add_f32 {vr(XB,2)}, {vr(XB,2)}, {vr(XB+4,2)}""")
        self.round1(XB)
        self.round1(XB + 1)
        k(f"""v_mul_f32 v{XB+2}, {f32(-math.log2(math.e))}, v{XB}
              v_exp_f32 v{XB+2}, v{XB+2}
              v_add_f32 v{XB+2}, 1.0, v{XB+2}
              v_rcp_f32 v{XB+2}, v{XB+2}
              v_mul_f32 v{XB}, v{XB}, v{XB+2}""")
        self.round1(XB)
        k(f"""v_mul_f32 v{XB}, v{XB}, v{XB+1}
              v_cvt_pk_bf16_f32 v{XB}, v{XB}, v{XB}
              ds_write_b32 v2, v{XB}
              ds_read_b128 {vr(XB,4)}, v3
              ds_read_b128 {vr(G,4)}, v3 offset:32
              ds_read_b128 {vr(XB+4,4)}, v3 offset:16
              ds_read_b128 {vr(G+4,4)}, v3 offset:48
              v_mov_b64 {vr(ACC,2)}, 0
              v_mov_b64 {vr(ACC+2,2)}, 0
              s_waitcnt vmcnt(0) lgkmcnt(0)""")
        for x in diag(120, XB, G):
            k(x)
        for n in range(8):
            if n + 1 < 8:
                nx = diag(120 + 4 * ((n + 1) & 1), XB + n + 1, G + n + 1)
                k(nx[0]); k(nx[1])
            k(f"v_smfmac_f32_16x16x64_bf16 {vr(ACC,4)}, {vr(120+4*(n&1),4)}, {vr(LD+8*n,8)}, v{MK+2}")
            if n + 1 < 8:
                k(nx[2]); k(nx[3])
        self.mark(47)
        k(f"""v_lshlrev_b32 v{A0}, 4, v{A1}
              v_and_b32 v{AF}, 1, v{A2}
              v_lshl_add_u32 v{A0}, v{AF}, 3, v{A0}
              v_and_b32 v{AF}, 2, v{A2}
              v_lshl_add_u32 v{A0}, v{AF}, 30, v{A0}
              s_lshl_b32 s{S_T+4}, s{S_W}, 8
              s_add_u32 s{S_T+3}, s{S_T+6}, s{S_T+4}
              v_cvt_pk_bf16_f32 v{XB}, v{ACC}, v{ACC+1}
              v_cvt_pk_bf16_f32 v{XB+1}, v{ACC+2}, v{ACC+3}
              buffer_store_dwordx2 {vr(XB,2)}, v{A0}, {WS}, s{S_T+3} offen{self.loc}""")
        self.page(S_T + 3, F_M)
        self.flag_set(S_T + 3, self.loc)
        D = k.newlabel("L_moed")
        if layer == 1:
            k(f"""s_cmp_lg_u32 s{S_H}, 0
                  s_cbranch_scc1 {D}""")
        self.page(S_T + 3, F_M, head=False)
        self.flags_wait32(S_T + 3)
        self.mark(48)
        o_ = 144 if layer else 0
        self.reduce32(S_T + 9, True, o_)
        self.mark(49)
        k(f"""s_cmp_lg_u32 s{S_W}, 0
              s_cbranch_scc1 {D}""")
        A, PK, Y, TM = 24 + o_, 40 + o_, 48 + o_, 56 + o_
        k(f"""v_lshlrev_b32 v{TM}, 5, v{V_LANE}
              v_add_u32 v{TM}, {L_ROW}, v{TM}
              ds_read_b128 {vr(A,4)}, v{TM}
              ds_read_b128 {vr(A+4,4)}, v{TM} offset:16
              s_and_b32 s{S_T+3}, s{sKEY}, 0xffff0000
              s_xor_b32 s{S_T+4}, s{S_T+3}, 0x80000000
              s_xor_b32 s{S_T+5}, s{S_T+3}, 0xffff0000
              s_cmp_lt_i32 s{S_T+3}, 0
              s_cselect_b32 s{S_T+3}, s{S_T+4}, s{S_T+5}
              v_mov_b32 v{TM}, s{S_T+3}
              v_mul_f32 v{TM}, {f32(-math.log2(math.e))}, v{TM}
              v_exp_f32 v{TM}, v{TM}
              v_add_f32 v{TM}, 1.0, v{TM}
              v_rcp_f32 v{TM}, v{TM}""")
        self.round1(TM)
        self.unpack8(Y, YP)
        k("s_waitcnt lgkmcnt(0)")
        self.pack8(PK, A)
        self.unpack8(A, PK)
        for j in range(0, 8, 2):
            k(f"v_pk_mul_f32 {vr(A+j,2)}, {vr(A+j,2)}, {vr(TM,2)} op_sel_hi:[1,0]")
        self.pack8(PK, A)
        self.unpack8(A, PK)
        self.add8(A, Y)
        self.pack8(PK, A)
        self.unpack8(A, PK)
        self.add8(X, A)
        self.pack8(160 if layer else 80, X)
        if layer == 0:
            self.unpack8(X, 80)
            self.layernorm(X, 84, TM + 2)
            k(f"""s_lshl_b32 s{S_T+2}, s{S_SEG}, 10
                  s_add_u32 s{S_T+2}, s{S_T+2}, {X2P_OFF}
                  s_add_u32 s{S_T+3}, s{S_T+2}, {HPS_OFF - X2P_OFF}
                  s_cmp_eq_u32 s{S_H}, 0
                  s_cselect_b32 s{S_T+3}, s{S_T+3}, 0x80000000
                  s_add_u32 s{S_T+1}, s{S_T}, {HP_OFF}
                  buffer_store_dwordx4 v[84:87], v{V_L16}, {WS}, s{S_T+3} offen sc1
                  buffer_store_dwordx4 v[80:83], v{V_L16}, {WS}, s{S_T+2} offen sc1
                  buffer_store_dwordx4 v[84:87], v{V_L16}, {WS}, s{S_T+1} offen sc1""")
        k.label(D)

    def a_plan(self):
        o = self.opt
        n1, n2, up = o.get("n1", 3), o.get("n2", 5), o.get("up", 6)
        p0 = self.P0 = o.get("p0", 14)
        own = [list(range(0, p0, 2)), list(range(1, p0, 2)), list(range(p0 + n1 + n2, p0 + n1 + n2 + up))]
        pat = o.get("pat", (0, 2, 1, 2))
        for i, x in enumerate(range(p0 + n1 + n2 + up, 64)):
            own[pat[i % len(pat)]].append(x)
        return n1, n2, up, [sum(1 << x for x in w) for w in own]

    def pop_next(self, dst, mask):
        self.k(f"""s_ff1_i32_b64 s{dst}, {sr(mask,2)}
                   s_bitset0_b64 {sr(mask,2)}, s{dst}
                   s_min_u32 s{dst}, s{dst}, 127""")

    def spec(self):
        o = self.opt
        return o.get("delta", 10), o.get("th", 28), o.get("kb", 4)

    def words_wait64(self, s_off, t, sleep):
        k = self.k
        L = k.newlabel("L_fp")
        k.label(L)
        k(f"""s_sleep {sleep}
              buffer_load_dword v{t+1}, v{t}, {WS}, s{s_off} offen sc1""")
        self.spend()
        k(f"""s_waitcnt vmcnt(0)
              v_cmp_eq_u32 vcc, 0, v{t+1}
              s_cbranch_vccnz {L}""")

    def todo_mask(self, sTODO, t):
        self.k(f"""v_cmp_le_u32 vcc, s{S_T+5}, v{V_LANE}
                   v_cndmask_b32 v{t}, 1, 2, vcc
                   v_cmp_ne_u32 {sr(sTODO,2)}, v{t}, v{t+1}""")

    def role_moe(self):
        k = self.k
        o = self.opt
        sMAX, sKEY = 54, 55
        self.proj_consts()
        _, _, UP, own = self.a_plan()
        JD, MINL, MAXL = o.get("jd", 2), o.get("minl", 20), o.get("maxl", 30)
        sNA, sSC = S_A, S_B
        sH, sN, sF, sDEBT, sOWN, sKA, sGR = S_T + 12, S_T + 14, S_T + 16, S_T + 17, S_T + 18, S_T + 20, S_T + 21
        sR, sPT, sALT, sFR, sPF = 84, 86, 87, 18, 19
        t = 20
        sQ = 22
        PR, NR, DG = k.newlabel("L_mp"), k.newlabel("L_mr"), k.newlabel("L_mg")
        L, AL, AL2, NF, NJ, FN, T1P, LK, P_, BC, WR_, L2, GOT, EN = (k.newlabel("L_mo") for _ in range(14))
        k(f"""s_mov_b32 s{sMAX}, 0
              s_mov_b32 s{sSC}, 0
              s_mov_b32 s{S_CNT}, {UP}
              s_mov_b32 s{sF}, 0x80000000
              s_mov_b32 s{sDEBT}, 0
              s_mov_b32 s{sGR}, -1
              s_mov_b32 s{sPT}, 0
              s_mov_b32 s{sPF}, 0
              s_mov_b32 s{sOWN}, {own[2] & 0xffffffff}
              s_mov_b32 s{sOWN+1}, {own[2] >> 32}
              v_and_b32 v23, 15, v{V_LANE}
              v_lshlrev_b32 v23, 3, v23
              v_lshrrev_b32 v16, 4, v{V_LANE}
              v_lshl_add_u32 v23, v16, 13, v23
              v_mov_b32 v19, {L_MISC}
              v_lshl_add_u32 v16, v16, 2, v19""")
        sBIG = 25
        for x in self.moe_pre(0)[:16]:
            k(x)
        self.srd(P_WR, 1024)
        k(f"""buffer_load_dwordx4 v[88:91], v{V_L16}, {SA}, 0 offen
              s_waitcnt vmcnt(0)""")
        self.unpack8(96, 88)
        k("v_mul_f32 v88, v96, v96")
        for j in range(1, 8):
            k(f"v_fma_f32 v88, v{96+j}, v{96+j}, v88")
        self.wsum(88, 89)
        k(f"""v_sqrt_f32 v88, v88
              v_mul_f32 v88, {f32(o.get("zbig", 2.8))}, v88
              v_readfirstlane_b32 s{sBIG}, v88
              s_bitset1_b32 s{sBIG}, 31""")
        kload = f"buffer_load_dwordx2 v[124:125], v23, {WS}, s{sKA} offen sc1"
        self.pop_next(sNA, sOWN)
        self.t1_src(sN, sNA, 0)
        k.label(AL)
        k(f"""s_cmp_lg_u32 s{sPF}, 0
              s_cbranch_scc1 {AL2}""")
        for x in self.t1_dma(sN, (0, 1, 2)):
            k(x)
        k(f"""s_mov_b32 s{sPF}, 1
              s_waitcnt vmcnt(0)""")
        k.label(AL2)
        k(f"""s_mov_b32 s{S_SEG}, s{sNA}
              s_mov_b64 {sr(sH,2)}, {sr(sN,2)}""")
        self.pop_next(sNA, sOWN)
        self.t1_src(sN, sNA, 0)
        self.page(sKA, F_RKM, seg=sSC, head=False)
        self.t1(0, sH, pre=8, s_flag=sF, nxt=self.t1_dma(sN, (0, 1, 2)) + [kload])
        self.ev(17)
        self.page(sF, F_KV[0])
        k(f"""s_sub_u32 s{S_CNT}, s{S_CNT}, 1
              s_cmp_gt_i32 s{S_CNT}, {o.get("upq", 3)}
              s_cbranch_scc1 {AL2}
              s_cmp_gt_i32 s{S_CNT}, 0
              s_cselect_b32 s{sALT}, 1, 3
              s_mov_b32 s{sFR}, 0
              s_waitcnt vmcnt(7)
              s_branch {LK}""")
        k.label(L)
        k(f"""s_mov_b32 s{sKEY}, s{sQ}
              s_mov_b32 s{sQ}, s{sQ+1}
              s_mov_b32 s{sQ+1}, s{sQ+2}
              s_mov_b32 s{sQ+2}, -1
              v_mov_b32 v3, 0
              s_cmp_lg_u32 s{sKEY}, -1
              s_cbranch_scc1 {PR}
              s_sub_u32 s{S_T}, s{sNA}, s{sSC}
              s_cmp_gt_i32 s{sGR}, 0
              s_cselect_b32 s{S_T+1}, 6, {MINL}
              s_cmp_lg_u32 s{sPT}, 0
              s_cselect_b32 s{S_T+1}, {o.get("minl2", 9)}, s{S_T+1}
              s_cmp_lt_i32 s{S_T}, s{S_T+1}
              s_cbranch_scc1 {AL}
              s_cmp_lt_i32 s{S_T}, {MAXL}
              s_cselect_b32 s{sALT}, s{sFR}, 0
              s_cmp_ge_u32 s{sSC}, {o.get("tnow", 8)}
              s_cselect_b32 s{S_T}, 1, s{sFR}
              s_and_b32 s{S_T}, s{S_T}, s{sPT}
              s_cselect_b32 s{sALT}, 2, s{sALT}
              s_mul_i32 s{S_T}, s{sALT}, s{sFR}
              s_cmp_lg_u32 s{S_T}, 0
              s_cbranch_scc1 {FN}
              s_mov_b32 s{sFR}, 0
              s_lshr_b32 s{S_T}, s{sF}, 31
              s_or_b32 s{S_T}, s{S_T}, s{sALT}
              s_cbranch_scc1 {L2}""")
        self.flag_set(sF, " sc1")
        k(f"s_mov_b32 s{sF}, 0x80000000")
        k.label(L2)
        k(f"""s_cmp_lg_u32 s{S_W}, 0
              s_cbranch_scc1 {BC}""")
        self.page(sKA, F_RKM, seg=sSC, head=False)
        k(f"""s_lshl_b32 s{S_T+1}, s{S_H}, 8
              s_add_u32 s{S_T+1}, s{S_T+1}, s{sSC}
              s_cmp_eq_u32 s{S_T+1}, 63
              s_mov_b32 s{S_T+1}, 0x80000000
              s_cmov_b32 s{S_T+1}, {PG_OFF + 65*8192 + F_DEC}
              v_lshlrev_b32 v2, 2, v{V_LANE}""")
        k.label(P_)
        k(kload)
        k(f"buffer_load_dword v3, v2, {WS}, s{S_T+1} offen sc1")
        self.spend()
        k("s_waitcnt vmcnt(0)")
        k.label(LK)
        k(f"""v_min_u32 v123, v124, v125
              v_max_u32 v125, v124, v125
              v_cmp_eq_u32 vcc, 0, v123
              v_cndmask_b32 v125, v125, -1, vcc
              s_and_b32 s{S_T}, vcc_lo, 0xffff
              s_cbranch_scc0 {GOT}
              s_cmp_lg_u32 s{sALT}, 0
              s_cbranch_scc1 {GOT}
              s_mov_b32 s{sFR}, 1
              s_sleep {o.get("slm", 2)}
              s_branch {P_}""")
        k.label(GOT)
        for r in (8, 4, 2, 1):
            k(f"v_max_u32_dpp v125, v125, v125 row_ror:{r} row_mask:0xf bank_mask:0xf")
        k.label(BC)
        self.spend()
        k(f"""v_mov_b32 v124, s{sFR}
              s_barrier
              s_cmp_lg_u32 s{S_W}, 0
              s_cbranch_scc1 {WR_}
              ds_write_b32 v16, v125
              ds_write_b32 v19, v124 offset:16
              s_waitcnt lgkmcnt(0)""")
        k.label(WR_)
        k(f"""s_barrier
              ds_read_b128 v[120:123], v19
              ds_read_b32 v124, v19 offset:16
              s_waitcnt lgkmcnt(0)
              v_readfirstlane_b32 s{sKEY}, v120
              v_readfirstlane_b32 s{sQ}, v121
              v_readfirstlane_b32 s{sQ+1}, v122
              v_readfirstlane_b32 s{sQ+2}, v123
              v_readfirstlane_b32 s{sFR}, v124
              s_cmp_lg_u32 s{sKEY}, -1
              s_cbranch_scc1 {PR}
              {FN}:
              s_mov_b32 s{sQ}, -1
              s_cmp_eq_u32 s{sALT}, 1
              s_cbranch_scc1 {AL}
              s_cmp_eq_u32 s{sALT}, 2
              s_cbranch_scc1 {T1P}
              s_branch {L}""")
        k.label(PR)
        k(f"""s_mov_b32 s{S_CNT}, 0
              s_sub_u32 s{sDEBT}, s{sDEBT}, 1
              s_max_i32 s{sDEBT}, s{sDEBT}, 0
              s_sub_u32 s{sGR}, s{sGR}, 1
              s_min_u32 s{S_T+5}, s{sDEBT}, {LOOK}
              s_cmp_lt_u32 s{sSC}, {o.get("early", 5)}
              s_cselect_b32 s{S_T+4}, s{sBIG}, 0
              s_cmp_lt_u32 s{sKEY}, s{S_T+4}
              s_cselect_b32 s{S_T+5}, {LOOK}, s{S_T+5}
              s_cmp_le_u32 s{sKEY}, s{sMAX}
              s_cbranch_scc1 {NR}
              s_mov_b32 s{sGR}, s{S_T+5}
              s_mov_b32 s{sMAX}, s{sKEY}
              s_mov_b32 s{sPT}, 0
              s_or_b32 s{S_T+5}, s{S_H}, s{S_W}
              s_cbranch_scc1 {NR}
              v_mov_b32 v120, s{sMAX}
              v_lshlrev_b32 v121, 13, v{V_LANE}
              s_mov_b32 s{S_T+5}, {PG_OFF + F_RM}
              buffer_store_dword v120, v121, {WS}, s{S_T+5} offen sc1
              {NR}:
              s_cmp_lg_u32 s{sSC}, 63
              s_cbranch_scc1 {NF}
              s_min_i32 s{sGR}, s{sGR}, 0
              s_or_b32 s{S_T+5}, s{S_H}, s{S_W}
              s_cbranch_scc1 {NF}
              s_mov_b32 s{S_T+3}, {PG_OFF + 65*8192 + F_DEC}
              v_lshlrev_b32 v120, 2, v{V_LANE}
              v_mov_b32 v121, v3
              v_cmp_eq_u32 vcc, 0, v3
              s_cbranch_vccz {DG}""")
        self.words_wait64(S_T + 3, 120, 0)
        k.label(DG)
        k(f"""s_andn2_b32 s{S_T+6}, 0x7ff, s{sMAX}
              v_lshl_or_b32 v121, s{S_T+6}, 8, v121""")
        for w in range(6):
            k(f"""s_add_u32 s{S_T+3}, s{S_T+3}, 8192
                  buffer_store_dword v121, v120, {WS}, s{S_T+3} offen sc1""")
        k.label(NF)
        k(f"""s_add_u32 s{sSC}, s{sSC}, 1
              s_cmp_gt_i32 s{sGR}, 0
              s_cmov_b32 s{sFR}, 0
              s_cbranch_scc1 {L}
              s_cmp_lg_u32 s{sGR}, 0
              s_cbranch_scc1 {NJ}""")
        k(f"""s_andn2_b32 s{S_SEG}, 0x7ff, s{sMAX}
              s_lshr_b32 s{S_SEG}, s{S_SEG}, 5
              s_add_u32 s{sDEBT}, s{sDEBT}, {JD}
              s_mov_b32 s{sPT}, 1
              s_mov_b32 s{sPF}, 0
              s_mov_b32 s{sFR}, 0
              s_waitcnt vmcnt(8)
              s_barrier""")
        self.ev(30)
        self.moe(0, sMAX)
        self.flush()
        self.ev(31)
        k("s_barrier")
        k.label(NJ)
        k(f"""s_mov_b32 s{sGR}, -1
              s_cmp_lt_u32 s{sSC}, 64
              s_cbranch_scc1 {L}
              s_cmp_eq_u32 s{sPT}, 0
              s_cbranch_scc1 {EN}""")
        k.label(T1P)
        k(f"""s_andn2_b32 s{S_SEG}, 0x7ff, s{sMAX}
              s_lshr_b32 s{S_SEG}, s{S_SEG}, 5
              s_andn2_b32 s{S_T}, 31, s{sMAX}
              v_lshrrev_b32 v2, 10, v{self.THD}
              v_add_u32 v3, 16, v2
              v_add_u32 v8, {HP_OFF - H_OFF[1]}, v{self.THD}
              v_cmp_eq_u32 vcc, s{S_T}, v2
              v_cndmask_b32 v2, v{self.THD}, v8, vcc
              v_cmp_eq_u32 vcc, s{S_T}, v3
              v_cndmask_b32 v3, v{self.THD}, v8, vcc
              s_waitcnt vmcnt(0)""")
        self.page(S_T + 3, F_HX, head=False)
        self.flags_wait32(S_T + 3, one=True, sleep=o.get("slg", 2))
        self.flag_store(sF, " sc1")
        self.t1_src(S_T + 10, S_SEG, 1)
        self.t1b(2, S_T + 10, voff=(2, 3), early=False)
        self.ev(32)
        for x in self.t1_dma(sN, (0, 1, 2)):
            k(x)
        self.page(S_T + 3, F_Q[2])
        self.flag_set(S_T + 3, " sc1")
        k(f"""s_mov_b32 s{sF}, 0x80000000
              s_mov_b32 s{sPT}, 0
              s_mov_b32 s{sPF}, 1
              s_mov_b32 s{sFR}, 0
              s_cmp_lt_u32 s{sSC}, 64
              s_cbranch_scc1 {L}""")
        k.label(EN)
        NS = 6
        LD_, AG, EX, LP, WB, PO = (k.newlabel("L_mf") for _ in range(6))
        k(f"""s_mov_b32 s{S_SEG}, 64
              s_cmp_eq_u32 s{S_H}, 31
              s_cbranch_scc1 {LD_}""")
        self.moe_pre(1)
        for n in range(1, NS if not self.loc else 0):
            k(f"""s_add_u32 s{S_T+3}, s{S_T+6}, {n*32*KB}
                  buffer_load_dword v15, v{V_L16}, {WS}, s{S_T+3} offen""")
        k.label(AG)
        k(f"""s_lshl_b32 s{S_T+3}, s{S_SEG}, 13
              s_lshl_b32 s{S_T+5}, s{S_W}, 7
              s_add_u32 s{S_T+3}, s{S_T+3}, s{S_T+5}
              s_add_u32 s{S_T+3}, s{S_T+3}, {PG_OFF + F_FIN}""")
        self.word_wait(S_T + 3, sKEY, va=2, sleep=o.get("slf", 1))
        k(f"""s_cmp_eq_u32 s{sKEY}, 1
              s_cbranch_scc1 {EX}
              s_barrier""")
        self.ev(33)
        self.moe(1, sKEY)
        self.flush()
        k(f"""s_add_u32 s{S_SEG}, s{S_SEG}, 1
              s_add_u32 s{S_T+6}, s{S_T+6}, {32*KB}
              s_add_u32 s{S_T+9}, s{S_T+9}, {32*KB}
              s_branch {AG}""")
        k.label(EX)
        self.srd(P_OUT, 2048 * 1024)
        k(f"""s_or_b32 s{S_T+5}, s{S_H}, s{S_W}
              s_cselect_b32 s{S_T}, 0x80000000, s{S_T}
              buffer_store_dwordx4 v[160:163], v{V_L16}, {SA}, s{S_T} offen sc1""")
        self.ev(34)
        k("""s_waitcnt vmcnt(0)
             s_endpgm""")
        k.label(LD_)
        sL, sC = S_T + 10, S_T + 11
        if self.opt.get("wb", 0) & 16:
            Y = k.newlabel("L_y")
            k(f"""s_cmp_lg_u32 s{S_W}, 1
                  s_cbranch_scc1 {Y}
                  buffer_wbl2 sc1
                  {Y}:""")
        k(f"""s_cmp_lg_u32 s{S_W}, 0
              s_cbranch_scc1 {PO}
              v_mov_b64 v[24:25], 0
              v_mov_b64 v[26:27], 0""")
        for n in range(NS):
            k(f"""s_mov_b32 s{S_T}, {MOE_OFF + (64 + n) * 32 * KB + 31 * KB}
                  buffer_store_dwordx4 v[24:27], v{V_L16}, {WS}, s{S_T} offen{self.loc}""")
        k(f"""s_andn2_b32 s{S_T+5}, 0x7ff, s{sMAX}
              s_lshr_b32 s{S_T+5}, s{S_T+5}, 5
              s_mov_b32 s{S_T+3}, {PG_OFF + 65*8192 + F_DEC}
              v_lshlrev_b32 v2, 2, v{V_LANE}""")
        self.words_wait64(S_T + 3, 2, 2)
        self.todo_mask(sR, 2)
        for n in range(NS):
            k(f"""s_mov_b32 s{S_T}, {PG_OFF + (64 + n) * 8192 + F_M + 31 * 4}
                  buffer_store_dword v{self.TOB}, off, {WS}, s{S_T}{self.loc}""")
        k(f"""v_lshrrev_b32 v2, 3, v{V_LANE}
              v_and_b32 v3, 0x70, v{V_L16}
              v_lshl_add_u32 v3, v2, 13, v3""")
        for i in range(8):
            k(f"""s_lshr_b64 {sr(t,2)}, {sr(sR,2)}, {8*i}
                  v_lshrrev_b32 v{60+i}, v2, s{t}
                  v_and_b32 v{60+i}, 1, v{60+i}
                  v_mul_u32_u24 v{60+i}, {F_RK[1] - F_RK[2]}, v{60+i}
                  v_sub_u32 v{60+i}, v3, v{60+i}
                  v_add_u32 v{60+i}, {PG_OFF + F_RK[1] + i*8*8192}, v{60+i}""")
        k(f"""v_and_b32 v68, 3, v{V_LANE}
              v_lshlrev_b32 v68, 7, v68
              v_add_u32 v68, {PG_OFF + F_FIN}, v68
              v_and_b32 v69, 31, v{V_LANE}
              v_lshlrev_b32 v69, 2, v69
              v_add_u32 v69, {PG_OFF + F_M - 8192}, v69
              s_mov_b32 s{sL}, 0
              s_mov_b32 s{sC}, {64 * 8192}""")
        LS, LJ = k.newlabel("L_ms"), k.newlabel("L_mj")
        k(f"""v_mov_b32 v57, 0
              s_mov_b32 s{S_T+2}, 1""")
        k.label(LP)
        self.spend()
        k(f"""s_mov_b32 s{S_T+1}, 0
              s_cmp_lg_u32 s{S_T+2}, 0
              s_cbranch_scc1 {LS}
              buffer_load_dwordx4 v[52:55], v67, {WS}, 0 offen sc1
              buffer_load_dword v70, v69, {WS}, s{sC} offen sc1
              s_branch {LJ}""")
        k.label(LS)
        for i in range(8):
            k(f"buffer_load_dwordx4 {vr(24+4*i,4)}, v{60+i}, {WS}, 0 offen sc1")
        k(f"buffer_load_dword v70, v69, {WS}, s{sC} offen sc1")
        for i in range(8):
            b = 24 + 4 * i
            if i == 7:
                k(f"s_mov_b32 s{S_T+2}, s{S_T+1}")
                k.label(LJ)
            k(f"""s_waitcnt vmcnt({8 - i})
                  v_min3_u32 v56, v{b}, v{b+1}, v{b+2}
                  v_max3_u32 v57, v{b}, v{b+1}, v57
                  v_min_u32 v56, v{b+3}, v56
                  v_max3_u32 v57, v{b+2}, v{b+3}, v57
                  v_cmp_eq_u32 vcc, 0, v56
                  s_bcnt1_i32_b64 s{S_T}, vcc
                  s_add_u32 s{S_T+1}, s{S_T+1}, s{S_T}""")
        self.wmax_u32(57, 58)
        k(f"""v_readfirstlane_b32 s{sKEY}, v57
              s_cmp_lg_u32 s{sKEY}, s{sL}
              s_cbranch_scc1 {WB}
              s_cmp_lg_u32 s{S_T+1}, 0
              s_cbranch_scc1 {LP}
              v_mov_b32 v57, 1
              buffer_store_dword v57, v68, {WS}, s{sC} offen{self.loc}""")
        k.label(PO)
        k("""s_waitcnt vmcnt(0)
             s_endpgm""")
        k.label(WB)
        k(f"""s_waitcnt vmcnt(0)
              v_cmp_eq_u32 vcc, 0, v70
              s_cmp_eq_u32 s{sL}, 0
              s_cselect_b32 s{S_T}, 0, vcc_lo                 ; the update before is still under way
              s_cmp_gt_u32 s{S_T+1}, {8 * o.get("miss", 14)}
              s_cselect_b32 s{S_T}, 1, s{S_T}
              s_cmp_ge_u32 s{sC}, {(64 + NS - 1) * 8192}
              s_cselect_b32 s{S_T}, 1, s{S_T}
              s_cmp_eq_u32 s{S_T+1}, 0
              s_cselect_b32 s{S_T}, 0, s{S_T}
              s_cmp_lg_u32 s{S_T}, 0
              s_cbranch_scc1 {LP}
              buffer_store_dword v57, v68, {WS}, s{sC} offen{self.loc}
              s_mov_b32 s{sL}, s{sKEY}
              s_add_u32 s{sC}, s{sC}, 8192
              s_branch {LP}""")

    def role_proj(self):
        k = self.k
        self.LH = 64 * KB
        self.proj_consts()
        own = self.a_plan()[3]
        MAXL, MINL = self.opt.get("pmaxl", 44), self.opt.get("pminl", 12)
        sCUR, sNA = 54, 55
        sH, sN, sF, sOWN, sLB, sNB, sNXT = S_T + 10, S_T + 12, S_T + 14, S_T + 16, S_T + 18, S_T + 19, S_T + 20
        allq = (0, 1, 2, 3)
        FA, FV, VA_ = 23, 76, 19
        sPC_ = S_T + 21
        k(f"""s_sub_u32 s{sCUR}, s{S_G}, 4
              s_cmp_eq_u32 s{sCUR}, 0
              s_mov_b32 s{sOWN}, {own[1] & 0xffffffff}
              s_mov_b32 s{sOWN+1}, {own[1] >> 32}
              s_cmov_b32 s{sOWN}, {own[0] & 0xffffffff}
              s_cmov_b32 s{sOWN+1}, {own[0] >> 32}
              s_mov_b32 s{sF}, 0x80000000
              s_mov_b32 s{S_CNT}, {self.opt.get("pup", 7)}
              s_mov_b32 s{sLB}, s{S_LW}
              s_xor_b32 s{sNB}, s{sLB}, {32*KB}
              v_and_b32 v{FA}, 31, v{V_LANE}
              v_lshlrev_b32 v{FA}, 2, v{FA}
              v_mov_b32 v{VA_}, s{S_LW}
              v_mov_b32 v16, 0""")
        self.pop_next(sNA, sOWN)
        self.t1_src(sN, sNA, 0)
        for x in self.t1_dma(sN, allq, sb=sNB):
            k(x)
        k("""s_waitcnt vmcnt(0)
             s_barrier""")
        def peek():
            return (f"""s_lshl_b32 s{S_T}, s{sCUR}, 13
                        s_add_u32 s{S_T}, s{S_T}, {PG_OFF + F_HX}
                        s_or_b32 s{S_T}, s{S_T}, s{S_OOB}
                        buffer_load_dword v{FV}, v{FA}, {WS}, s{S_T} offen sc1""",
                    ["s_waitcnt vmcnt(0)", f"v_cmp_eq_u32 vcc, 0, v{FV}", f"v_mov_b32 v{FV}, vcc_lo", f"ds_write_b32 v{VA_}, v{FV}"],
                    f"ds_read_b32 v{FV}, v16")
        def choose(after_a):
            out = [f"v_readfirstlane_b32 s{S_T+1}, v{FV}",
                   f"s_sub_u32 s{S_T+3}, s{sNA}, s{sCUR}\ns_cmp_lt_i32 s{S_T+3}, {MAXL}\ns_cselect_b32 s{sNXT}, 2, 0"]
            if after_a:
                out.append(f"s_cmp_gt_i32 s{S_CNT}, 0\ns_cselect_b32 s{sNXT}, s{sNXT}, 0")
            out += [f"s_cmp_eq_u32 s{S_T+1}, 0\ns_cselect_b32 s{sNXT}, 1, s{sNXT}",
                    f"s_cmp_lt_i32 s{S_T+3}, {MINL}\ns_cselect_b32 s{sNXT}, 2, s{sNXT}\ns_add_u32 s{S_T+1}, s{sCUR}, {H_OFF[1] >> 15}",
                    f"s_cmp_eq_u32 s{sNXT}, 1\ns_cselect_b32 s{sN}, s{S_T+1}, s{sNA}\ns_lshl_b32 s{sN}, s{sN}, 15",
                    f"s_cmp_eq_u32 s{sNXT}, 0\ns_cselect_b32 s{sN}, 0x80000000, s{sN}\ns_add_u32 s{sN+1}, s{sN}, {16*KB}"]
            return out + self.t1_dma(sN, allq, sb=sNB)
        def flip():
            k(f"""s_mov_b32 s{sNB}, s{sLB}
                  s_xor_b32 s{sLB}, s{sLB}, {32*KB}""")
            for i in range(4):
                k(f"v_xor_b32 v{self.THR+i}, {32*KB}, v{self.THR+i}")
        LA_, LC, DSP, EN, W3, RDY = (k.newlabel("L_p") for _ in range(6))
        self.mk = 24
        k.label(LA_)
        flip()
        n0_ = len(k.lines)
        k(f"""s_mov_b32 s{S_SEG}, s{sNA}
              s_mov_b32 s{sPC_}, 0
              s_sub_u32 s{S_CNT}, s{S_CNT}, 1""")
        self.pop_next(sNA, sOWN)
        lead = k.lines[n0_:]; del k.lines[n0_:]
        self.t1b(0, None, landed=True, s_flag=sF, nxt=choose(True), early=False, peek=peek(), lead=lead)
        self.ev(17)
        self.page(sF, F_KV[0])
        k(f"""s_cmp_ge_u32 s{S_SEG}, 2
              s_cbranch_scc1 {DSP}""")
        self.flag_set(sF, " sc1")
        k.label(DSP)
        k(f"""s_cmp_eq_u32 s{sNXT}, 2
              s_cbranch_scc1 {LA_}
              s_mov_b32 s{S_CNT}, 0
              s_mov_b32 s{S_SEG}, s{sCUR}
              s_add_u32 s{sCUR}, s{sCUR}, 2
              s_cmp_eq_u32 s{sNXT}, 1
              s_cbranch_scc1 {LC}
              s_cmp_lg_u32 s{sPC_}, 0
              s_waitcnt vmcnt(3)
              s_cbranch_scc1 {W3}
              s_waitcnt vmcnt(2)
              {W3}:""")
        for x in peek()[1][1:]:
            k(x)
        self.t1_src(sH, S_SEG, 1)
        k(f"""s_waitcnt lgkmcnt(0)
              s_barrier
              {peek()[2]}
              s_waitcnt lgkmcnt(0)
              v_cmp_eq_u32 vcc, 0, v{FV}
              s_cbranch_vccnz {RDY}""")
        self.flag_set(sF, " sc1")
        k(f"""s_mov_b32 s{sF}, 0x80000000
              s_mov_b32 s{S_CNT}, 1
              s_cmp_ge_u32 s{S_SEG}, 64
              s_cbranch_scc1 {EN}""")
        self.page(S_T + 3, F_HX, head=False)
        self.flags_wait32(S_T + 3, one=True, sleep=self.opt.get("slp", 0))
        k.label(RDY)
        self.ev(13)
        self.t1b(1, sH, s_flag=sF, nxt=choose(self.opt.get("calm2", 1)), sb=sLB, peek=peek())
        k(f"s_mov_b32 s{sPC_}, 1")
        self.ev(14)
        self.page(sF, F_Q[1])
        k(f"s_branch {DSP}")
        k.label(LC)
        flip()
        self.t1b(1, None, landed=True, s_flag=sF, nxt=choose(self.opt.get("calm", 1)), peek=peek())
        k(f"s_mov_b32 s{sPC_}, 1")
        self.ev(16)
        self.page(sF, F_Q[1])
        k(f"s_branch {DSP}")
        k.label(EN)
        self.mk = 0
        self.LH = L_H

    def chain_helps(self):
        k = self.k
        n1, n2 = self.a_plan()[:2]
        sH, sN, sF = S_T + 12, S_T + 14, S_T + 16
        T = 120
        D, L = k.newlabel("L_chd"), k.newlabel("L_chl")
        self.THR, self.THD, self.TOB = 4, 20, 17
        k(f"""s_cmp_eq_u32 s{S_G}, 0
              s_cbranch_scc1 {D}
              v_and_b32 v{T}, 15, v{V_LANE}
              v_lshrrev_b32 v{T+1}, 4, v{V_LANE}
              v_mov_b32 v{self.TOB}, 1
              s_lshl_b32 s{S_T}, s{S_W}, 2
              v_add_u32 v{T+5}, s{S_T}, v{T+1}            ; row 4w+g
              v_xor_b32 v{T+6}, v{T+5}, v{T}
              v_lshlrev_b32 v{T+6}, 4, v{T+6}
              v_lshl_add_u32 v{self.THD}, v{T+5}, 10, v{T+6}""")
        for i in range(8):
            k(f"""s_lshl_b32 s{S_T}, s{S_W}, 1
                  s_xor_b32 s{S_T}, s{S_T}, {i}
                  s_and_b32 s{S_T+1}, s{S_T}, 3
                  s_lshl_b32 s{S_T+1}, s{S_T+1}, 2
                  s_lshr_b32 s{S_T}, s{S_T}, 2
                  s_lshl_b32 s{S_T}, s{S_T}, 13
                  s_add_u32 s{S_T}, s{S_T}, {L_H}
                  v_add_u32 v{T+5}, s{S_T+1}, v{T+1}
                  v_xor_b32 v{T+5}, v{T+5}, v{T}
                  v_lshlrev_b32 v{T+5}, 4, v{T+5}
                  v_lshl_add_u32 v{T+5}, v{T}, 8, v{T+5}
                  v_add_u32 v{self.THR+i}, s{S_T}, v{T+5}""")
        k(f"""s_cmp_eq_u32 s{S_G}, 1
              s_cselect_b32 s{S_SEG}, {self.P0}, {self.P0 + n1}
              s_cselect_b32 s{S_CNT}, {n1}, {n2}
              s_mov_b32 s{sF}, 0x80000000""")
        self.t1_src(sN, S_SEG, 0)
        for x in self.t1_dma(sN, (0, 1)):
            k(x)
        k("s_waitcnt vmcnt(0)")
        k.label(L)
        k(f"""s_mov_b64 {sr(sH,2)}, {sr(sN,2)}
              s_add_u32 s{sN}, s{sN}, {32*KB}
              s_add_u32 s{sN+1}, s{sN+1}, {32*KB}""")
        self.t1(0, sH, pre=7, s_flag=sF, nxt=self.t1_dma(sN, (0, 1)), rot=True)
        self.page(sF, F_KV[0])
        k(f"""s_add_u32 s{S_SEG}, s{S_SEG}, 1
              s_sub_u32 s{S_CNT}, s{S_CNT}, 1
              s_cmp_gt_u32 s{S_CNT}, 0
              s_cbranch_scc1 {L}""")
        self.flag_set(sF, " sc1")
        self.ev(18)
        k.label(D)

    def warm(self):
        k = self.k
        k(f"""s_and_b32 s{S_T}, s{S_G}, 1
              s_lshl_b32 s{S_T}, s{S_T}, 12
              s_add_u32 s{S_T}, s{S_T}, s{S_LW}
              s_and_b32 s{S_T+1}, s{S_H}, 15
              s_lshl_b32 s{S_T+1}, s{S_T+1}, 13
              s_add_u32 s{S_T}, s{S_T}, s{S_T+1}""")
        n = 0
        for ptr in (P_WK, P_WV, P_WQ):
            self.srd(ptr, 4 * MB)
            for i in range(32):
                if n >= self.opt.get("wdepth", 8):
                    k(f"s_waitcnt vmcnt({self.opt.get('wdepth', 8) - 1})")
                k(f"""s_add_u32 s{S_T+1}, s{S_T}, {i*16*8192}
                      buffer_load_dwordx4 v[72:75], v{V_L16}, {SA}, s{S_T+1} offen""")
                n += 1
                if n == self.opt.get("wdepth", 8):
                    self.init_rows(n)
                if n == 2 * self.opt.get("wdepth", 8) + 1:
                    self.arrive()

    def load_wo2(self):
        k = self.k
        self.srd(P_WO, 4 * MB)
        k(f"""v_and_b32 v2, 15, v{V_LANE}
              v_lshlrev_b32 v2, 4, v2
              v_lshrrev_b32 v3, 4, v{V_LANE}
              v_lshl_add_u32 v2, v3, 13, v2
              s_and_b32 s{S_T}, s{S_H}, 15
              s_lshl_b32 s{S_T}, s{S_T}, 18
              s_lshl_b32 s{S_T+1}, s{S_W}, 8
              s_add_u32 s{S_T}, s{S_T}, s{S_T+1}
              s_mov_b32 s{S_T+5}, 0x05040100
              s_mov_b32 s{S_T+6}, 0x07060302""")
        NB = 6
        def issue(g):
            b = 24 + (g % NB) * 32
            for j in range(8):
                if j % 4 == 0:
                    k(f"s_add_u32 s{S_T+1}, s{S_T}, {(32*g+j)*1024}")
                k(f"buffer_load_dwordx4 {vr(b+4*j,4)}, v2, {SA}, s{S_T+1} offen offset:{(j%4)*1024}")
        for g in range(NB):
            issue(g)
        for g in range(8):
            b = 24 + (g % NB) * 32
            k(f"s_waitcnt vmcnt({min(7-g, NB-1)*8})")
            for t in range(8):
                for q in range(4):
                    k(f"v_perm_b32 v{216+q}, v{b+4*(2*q+1)+(t>>1)}, v{b+4*(2*q)+(t>>1)}, s{S_T+5+(t&1)}")
                for q in range(4):
                    k(f"v_accvgpr_write_b32 a{(g*8+t)*4+q}, v{216+q}")
            if g + NB < 8:
                issue(g + NB)
            if g == 0:
                self.arrive()

    def role_att(self, steady):
        k = self.k
        opt = self.opt
        DL, TH, KB_ = self.spec()
        NW = 6
        over = self.loc == "" and opt.get("over", 1)
        PTX = 0 if opt.get("pt1") else 512 * KB
        sWK, sSEL = 54, 55
        sCNT, sBUF, sHD, sPT, sNQ, sNK, sLATE, sDF, sCUR, sMAXK, sFM, sNX = (S_T + i for i in range(10, 22))
        sTODO, sKO, sCW, sX = 84, 86, 87, S_A
        R_, sPS, sMODE, sST, sRB = 18, 26, 27, 32, 34
        sBN, sD, sVB, sHAD = 35, 36, 37, 38
        sLAG = 42
        gmask = sum(1 << x for x in range(DL, 64) if x >> 2 not in opt.get("dskip", ()))
        sCQ, sCK, sLQ, sLK = 28, 29, 40, 41
        DEC = PG_OFF + 65 * 8192 + F_DEC
        OUT = DBG
        OX, ROWS = 128 * KB, 144 * KB
        RK, OW_, OB_, PT_, RW_, RL_ = 2, 3, 4, 5, 6, 7
        TX0, TX1 = 8, 12
        L4, FL, ST, SA_, DF, KA = 16, 17, 18, 19, 20, 21
        Q, KK, F, V, VM, S = 24, 40, 72, 88, 120, 128
        P, Lr, ONES, SEL, O = 140, 148, 152, 156, 24
        B, ACC, PK = 24, 160, 24
        XI, WR, KEY, TT = 224, 228, 236, 238
        CN, RR_, GK, VR, VW, VT, VO, KR = 22, 23, 246, 245, 247, 248, 253, 254
        KY = 242
        VOTE = ROWS + 8 * KB
        T = TT
        self.make_sel(SEL, TT)
        self.srd(P_WR, 1024)
        k(f"""buffer_load_dwordx4 {vr(XI,4)}, v{V_L16}, {SA}, 0 offen
              v_and_b32 v{T}, 15, v{V_LANE}
              v_lshrrev_b32 v{T+1}, 4, v{V_LANE}
              v_lshlrev_b32 v{T+2}, 2, v{T+1}
              v_mov_b32 v{T+3}, {NEGBIG}
              s_and_b32 s{S_T}, s{S_W}, 1
              s_lshl_b32 s{S_T}, s{S_T}, 4
              v_add_u32 v{T+4}, s{S_T}, v{T}""")
        for u in range(2):
            for r in range(4):
                k(f"v_add_u32 v{T+5}, {16*u+r}, v{T+2}")
                k(f"v_cmp_gt_u32 vcc, v{T+5}, v{T+4}")
                k(f"v_cndmask_b32 v{(TX0,TX1)[u]+r}, 0, v{T+3}, vcc")
        CV = ONES
        k(f"""v_mov_b32 v{CV}, s{S_C}
              v_mov_b32 v{P+5}, 0
              v_mov_b32 v{P+6}, 0
              s_lshl_b32 s{S_T}, s{S_W}, 12
              s_add_u32 s{S_T}, s{S_T}, {OX}
              v_add_u32 v{OW_}, s{S_T}, v{V_L16}
              v_add_u32 v{OB_}, {OX}, v{V_L16}
              s_lshl_b32 s{S_T}, s{S_W}, 8
              v_lshlrev_b32 v{RL_}, 4, v{T}
              v_add_u32 v{RL_}, s{S_T}, v{RL_}
              v_lshl_add_u32 v{PT_}, v{T+1}, 16, v{RL_}
              v_lshlrev_b32 v{RW_}, 1, v{RL_}
              v_lshl_add_u32 v{RL_}, v{T+1}, 10, v{RL_}
              v_and_b32 v{T+5}, 1, v{T+1}
              v_lshl_add_u32 v{RW_}, v{T+5}, 4, v{RW_}
              v_lshrrev_b32 v{T+5}, 1, v{T+1}
              v_lshl_add_u32 v{RW_}, v{T+5}, 12, v{RW_}
              v_add_u32 v{RW_}, {ROWS}, v{RW_}
              v_lshlrev_b32 v{L4}, 2, v{V_LANE}
              v_lshlrev_b32 v{KA}, 3, v{T}
              s_and_b32 s{sHD}, s{S_H}, 15
              s_lshl_b32 s{S_T}, s{sHD}, 10
              v_add_u32 v{PT_}, s{S_T}, v{PT_}
              s_lshl_b32 s{S_T}, s{sHD}, 15
              v_add_u32 v{RL_}, s{S_T}, v{RL_}
              s_lshl_b32 s{sPT}, s{sWK}, 20
              s_add_u32 s{sPT}, s{sPT}, {PT_OFF}
              s_lshl_b32 s{sCW}, s{sWK}, 13
              s_add_u32 s{sCW}, s{sCW}, {PG_OFF + F_CW}
              s_lshl4_add_u32 s{sCUR}, s{sHD}, s{sCW}
              s_lshl2_add_u32 s{sCUR}, s{S_W}, s{sCUR}
              s_lshl_b32 s{sHD}, s{sHD}, 1
              s_lshr_b32 s{S_T}, s{S_W}, 1
              s_add_u32 s{sHD}, s{sHD}, s{S_T}
              s_mov_b32 s{sCNT}, 0
              s_mov_b32 s{sBUF}, 0
              s_mov_b32 s{sDF}, 0x80000000
              s_mov_b32 s{sMAXK}, 0
              s_mov_b32 s{sVB}, 0
              s_mov_b32 s{sLAG}, {gmask & 0xffffffff}
              s_mov_b32 s{sLAG+1}, {gmask >> 32}
              s_mov_b64 {sr(sHAD,2)}, 0
              s_sub_u32 s{sD}, s{sWK}, {2 + DL}
              s_and_b32 s{sD}, s{sD}, 3
              s_mov_b32 s{SRD_DBG}, s{P_OUT}
              s_mov_b32 s{SRD_DBG+1}, s{P_OUT+1}
              s_mov_b32 s{SRD_DBG+2}, {2048*1024}
              s_mov_b32 s{SRD_DBG+3}, 0x20000
              s_and_b32 s{sCK}, s{S_W}, 1
              s_mul_i32 s{sCQ}, s{sCK}, {12*KB}
              s_lshl_b32 s{sCK}, s{sCK}, 11
              s_and_b32 s{S_T}, s{S_LW}, 2048
              s_lshl_b32 s{S_T}, s{S_T}, 4
              s_add_u32 s{S_T}, s{S_T}, {64*KB}
              s_add_u32 s{sLQ}, s{S_T}, s{sCQ}
              s_add_u32 s{sLK}, s{S_T}, s{sCK}
              v_add_u32 v{KA}, {PG_OFF + F_RK[0]}, v{KA}
              v_mov_b32 v{KY+2}, v{KA}
              s_and_b32 s{S_T}, s{S_LW}, 2048
              s_add_u32 s{S_T}, s{S_T}, {ROWS}
              v_lshlrev_b32 v{RR_}, 5, v{V_LANE}
              v_add_u32 v{RR_}, s{S_T}, v{RR_}
              v_and_b32 v{VO}, 32, v{V_L16}
              v_lshrrev_b32 v{VR}, 2, v{VO}
              v_add_u32 v{VO}, v{VO}, v{VR}
              v_sub_u32 v{VO}, v{V_L16}, v{VO}
              v_add_u32 v{VO}, 8, v{VO}                     ; v_m of a lane: (lane & ~2)*16 + (lane & 2 ? 0 : 8)
              v_mov_b32 v{KR}, 0x80000000
              s_mov_b32 s{S_T}, {F_RK[0]}
              v_writelane_b32 v{KR}, s{S_T}, 0
              s_mov_b32 s{S_T}, {F_RKU}
              v_writelane_b32 v{KR}, s{S_T}, 1
              s_mov_b32 s{S_T}, {F_RKM}
              v_writelane_b32 v{KR}, s{S_T}, 2
              v_mov_b32 v{VR}, {VOTE}
              s_lshl_b32 s{S_T}, s{S_W}, 2
              v_add_u32 v{VW}, s{S_T}, v{VR}
              s_waitcnt vmcnt(0)""")
        self.unpack8(WR, XI)
        TH_ = 255
        k(f"v_mul_f32 v{TH_}, v{WR}, v{WR}")
        for j in range(1, 8):
            k(f"v_fma_f32 v{TH_}, v{WR+j}, v{WR+j}, v{TH_}")
        self.wsum(TH_, TT)
        k(f"""v_sqrt_f32 v{TH_}, v{TH_}
              v_sub_u32 v{TT}, {63 + KB_}, v{V_LANE}
              v_cvt_f32_u32 v{TT}, v{TT}
              v_log_f32 v{TT}, v{TT}
              v_mov_b32 v{TT+1}, {f32(opt.get("za", 1.95))}
              v_fmac_f32 v{TT+1}, {f32(opt.get("zb", 0.32) * math.log(2))}, v{TT}
              v_mul_f32 v{TH_}, v{TH_}, v{TT+1}
              v_or_b32 v{TH_}, 0x80000000, v{TH_}""")

        def capture(fn, *a):
            n0 = len(k.lines); fn(*a); out = k.lines[n0:]; del k.lines[n0:]; return out
        def hpage(dst, off, seg):
            k(f"""s_lshl_b32 s{dst}, s{seg}, 13
                  s_lshl2_add_u32 s{dst}, s{sHD}, s{dst}
                  s_add_u32 s{dst}, s{dst}, {PG_OFF + off}""")
        def spin(v, reload, cmp):
            A_, B_ = k.newlabel("L_aw"), k.newlabel("L_awd")
            k.label(A_)
            k(f"""{cmp}
                  s_cbranch_vccz {B_}
                  {reload}""")
            self.spend()
            k(f"""s_waitcnt vmcnt(0)
                  s_branch {A_}""")
            k.label(B_)
        GL = " glc" if opt.get("glc") else ""
        stubs = []
        st_load = f"buffer_load_dword v{ST}, v{SA_}, {WS}, 0 offen sc1"
        def plan_next(layer, s_rec=None, vec=False):
            out = capture(plan_next_, layer, s_rec)
            for x in out:
                if not (vec and x.startswith("s_buffer_load")):
                    k(x)
        def plan_next_(layer, s_rec):
            k(f"""s_lshl_b32 s{S_T}, s{sNX}, 5
                  s_add_u32 s{S_T}, s{S_T}, s{sHD}
                  s_mul_i32 s{sNQ}, s{S_T}, {24*KB}
                  s_lshl_b32 s{sNK}, s{S_T}, 12""")
            if layer == 0:
                hpage(S_T + 3, F_Q[0], sNX)
                k(f"""s_buffer_load_dword s{sST}, {WS}, s{S_T+3}{GL}
                      s_mov_b32 s{sST+1}, 1
                      s_add_u32 s{sNQ}, s{sNQ}, {QKV_OFF[0]}
                      s_add_u32 s{sNK}, s{sNK}, {KVM_OFF[0]}
                      v_mov_b32 v{SA_}, s{S_T+3}""")
            else:
                hpage(S_T + 3, F_Q[1], sNX)
                k(f"""s_cmp_lt_u32 s{sNX}, s{s_rec}
                      s_cselect_b32 s{S_T+1}, 0, {KVM_OFF[2] - KVM_OFF[1]}
                      s_mov_b32 s{S_T+4}, s{S_T+3}
                      s_buffer_load_dword s{sST+1}, {WS}, s{S_T+4}{GL}
                      s_add_u32 s{sNK}, s{sNK}, s{S_T+1}
                      s_add_u32 s{sNK}, s{sNK}, {KVM_OFF[1]}
                      s_cmp_eq_u32 s{sNX}, s{s_rec}
                      s_cselect_b32 s{S_T+1}, {QKV_OFF[2] - QKV_OFF[1]}, 0
                      s_cselect_b32 s{S_T+2}, {F_Q[2] - F_Q[1]}, 0
                      s_add_u32 s{S_T+3}, s{S_T+3}, s{S_T+2}
                      s_buffer_load_dword s{sST}, {WS}, s{S_T+3}{GL}
                      s_add_u32 s{sNQ}, s{sNQ}, s{S_T+1}
                      s_add_u32 s{sNQ}, s{sNQ}, {QKV_OFF[1]}
                      v_mov_b32 v{SA_}, s{S_T+3}
                      v_writelane_b32 v{SA_}, s{S_T+4}, 1""")
        NT = " nt" if opt.get("nt") else ""
        LP = opt.get("lp", "sc1")
        def fetch_ops(q, kv):
            out = [f"s_add_u32 s{q}, s{q}, s{sCQ}", f"s_add_u32 s{kv}, s{kv}, s{sCK}",
                   f"s_xor_b32 s{S_T+2}, s{sBUF}, s{sLQ}", f"s_xor_b32 s{S_T+1}, s{sBUF}, s{sLK}"]
            for i in range(3):
                out.append(f"s_add_u32 m0, s{S_T+2}, {i*4096}")
                if i:
                    out.append(f"s_add_u32 s{q}, s{q}, 4096")
                out += [f"buffer_load_dwordx4 v{V_L16}, {WS}, s{q} offen offset:{c*1024} sc1{NT} lds" for c in range(4)]
            out.append(f"s_add_u32 m0, s{S_T+1}, {24*KB}")
            out += [f"buffer_load_dwordx4 v{V_L16}, {WS}, s{kv} offen offset:{c*1024} {LP} lds" for c in range(2)]
            return out
        sLAY, sNS = S_B, S_CNT
        pub = [f"buffer_store_dword v{DF}, off, {WS}, s{sDF} sc1", f"s_mov_b32 s{sDF}, 0x80000000"]
        def flush_pub():
            k("s_waitcnt vmcnt(0)")
            for x in pub:
                k(x)
        L4_ = 1
        NL_ = 4 if L4_ else 8
        def look():
            for kk in range(4):
                k(f"buffer_load_dwordx4 {vr(F+4*kk,4)}, v{V_L16}, {WS}, s{sFM} offen offset:{kk*1024} {LP}")
            for i in range(0 if L4_ else 4):
                k(f"buffer_load_dwordx2 {vr(VM+2*i,2)}, v{VO}, {WS}, s{sFM} offen offset:{i*1024} {LP}")
        key_load = f"buffer_load_dwordx2 {vr(KY,2)}, v{KY+2}, {WS}, 0 offen sc1"
        def keys_issue(t):
            k(f"""v_lshrrev_b32 v{KY+2}, 4, v{V_LANE}
                  s_sub_u32 s{t}, s{sNX}, {KB_ + 3}
                  v_add_u32 v{KY+2}, s{t}, v{KY+2}
                  v_max_i32 v{KY+2}, 0, v{KY+2}
                  v_lshl_add_u32 v{KY+2}, v{KY+2}, 13, v{KA}
                  {key_load}""")
        def fcheck():
            out = []
            for kk in range(4):
                f = F + 4 * kk
                out.append(f"v_max3_u32 v{TT}, v{f}, v{f+1}, v{TT if kk else f+2}")
                out.append(f"v_max3_u32 v{TT}, v{f+2}, v{f+3}, v{TT}")
            return out
        def vcheck():
            for i in range(4):
                k(f"v_max3_u32 v{TT}, v{VM+2*i}, v{VM+2*i+1}, v{TT}")
            k(f"v_cmp_eq_u32 vcc, -1, v{TT}")
        def check(w, n=1, extra=()):
            fc = fcheck()
            if L4_:
                k("""s_mov_b32 vcc_lo, 0x33333333
                     s_mov_b32 vcc_hi, 0x33333333""")
            for kk in range(4):
                if w:
                    k(f"s_waitcnt vmcnt({NL_-1+n-kk})")
                k(f"v_mfma_f32_16x16x32_bf16 {vr(S+8,4)}, {vr(F+4*kk,4)}, {vr(Q+4*kk,4)}, {'0' if kk == 0 else vr(S+8,4)}")
                if extra:
                    k(extra.pop(0))
                k(fc.pop(0)); k(fc.pop(0))
                for j in range(2 if L4_ else 0):
                    k(f"v_cndmask_b32_dpp v{VM+2*kk+j}, v{F+4*kk+j}, v{F+4*kk+2+j}, vcc quad_perm:[0,1,0,1] row_mask:0xf bank_mask:0xf")
            if L4_:
                k(f"v_cmp_eq_u32 vcc, -1, v{TT}")
                return
            if w:
                k(f"s_waitcnt vmcnt({n})")
            vcheck()
        def chain_wait(cond):
            A_, B_ = k.newlabel("L_ac"), k.newlabel("L_acb")
            k(f"s_cbranch_{cond} {A_}")
            k.label(B_)
            def stub():
                k.label(A_)
                for x in pub:
                    k(x)
                look()
                self.spend()
                check(True, 0)
                k(f"""s_cbranch_vccnz {A_}
                      s_branch {B_}""")
            stubs.append(stub)
        def pre(direct=False):
            k(f"""s_xor_b32 s{sBUF}, s{sBUF}, {64*KB}
                  s_and_b32 s{S_T}, s{S_LW}, 2048
                  s_lshl_b32 s{S_T}, s{S_T}, 4
                  s_add_u32 s{S_T}, s{S_T}, s{sBUF}
                  v_add_u32 v{RK}, s{S_T}, v{V_L16}
                  s_and_b32 s{S_T}, s{S_LW}, 1024
                  s_lshl_b32 s{S_T}, s{S_T}, 2
                  v_add_u32 v{TT}, s{S_T}, v{RK}
                  s_mov_b32 s{sFM}, s{sNK}
                  s_mov_b32 s{sNS}, s{sNX}""")
            for kk in range(4):
                k(f"ds_read_b128 {vr(Q+4*kk,4)}, v{TT} offset:{16*KB + kk*1024}")
                k(f"ds_read_b128 {vr(KK+4*kk,4)}, v{RK} offset:{kk*1024}")
                k(f"ds_read_b128 {vr(KK+16+4*kk,4)}, v{RK} offset:{4096 + kk*1024}")
            late = [f"ds_read_b128 {vr(F+4*i,4)}, v{RK} offset:{24*KB + i*1024}" for i in range(4)]
            if direct:
                late = []
                look()
            late += [f"ds_read_b128 {vr(V+4*i,4)}, v{RK} offset:{8*KB + i*1024}" for i in range(8)]
            for kk in range(4):
                k(f"s_waitcnt lgkmcnt({9 - 3*kk + 2*kk})")
                q = vr(Q + 4 * kk, 4)
                k(f"v_mfma_f32_16x16x32_bf16 {vr(S,4)}, {vr(KK+4*kk,4)}, {q}, {vr(TX0,4) if kk == 0 else vr(S,4)}")
                k(late.pop(0))
                k(f"v_mfma_f32_16x16x32_bf16 {vr(S+4,4)}, {vr(KK+16+4*kk,4)}, {q}, {vr(TX1,4) if kk == 0 else vr(S+4,4)}")
                k(late.pop(0))
            if direct:
                return
            k("s_waitcnt lgkmcnt(4)")
            check(False, extra=late)
        poll = f"buffer_load_dword v{FL}, v{L4}, {WS}, s{sCW} offen sc1"
        pcmp = f"v_cmp_gt_u32 vcc, s{sCNT}, v{FL}"
        def rloads(RD):
            out = [f"s_xor_b32 s{sRB}, s{sPT}, {PTX}"]
            for i in range(8):
                if i:
                    out.append(f"s_add_u32 s{sRB}, s{sRB}, 4096")
                out.append(f"buffer_load_dwordx4 {vr(RD+4*i,4)}, v{RL_}, {WS}, s{sRB} offen sc1")
            return out
        RD2 = 192
        def skip_test(t):
            return [f"s_bfe_u32 s{S_T}, s{sCNT}, 0x10002", f"v_lshrrev_b32 v{t}, s{S_T}, v{FL}", f"v_and_b32 v{t}, 1, v{t}",
                    f"v_cmp_ne_u32 vcc, 0, v{t}"]
        def post(fetch=False, tail=None, skip=None):
            t = TT
            pk = lambda op, i, o, m="": f"v_pk_{op}_f32 {vr(S+i,2)}, {vr(S+i,2)}, {vr(o,2)} op_sel_hi:[1,0]{m}"
            pa = opt.get("pollat", 1)
            k(f"""{poll if fetch and pa == 0 else ""}
                  v_max3_f32 v{t}, v{S}, v{S+1}, v{S+2}
                  v_max3_f32 v{t+1}, v{S+3}, v{S+4}, v{S+5}
                  v_max3_f32 v{t}, v{S+6}, v{S+7}, v{t}
                  v_max3_f32 v{t+1}, v{S+10}, v{S+11}, v{t+1}
                  v_max_f32 v{t}, v{t}, v{t+1}
                  v_max_f32 v{t+1}, v{t}, v{t+1}
                  {pk("mul", 0, CV)}
                  {pk("mul", 2, CV)}
                  v_permlane16_swap_b32 v{t}, v{t+1}
                  v_max_f32 v{t}, v{t}, v{t+1}
                  v_max_f32 v{t+1}, v{t}, v{t+1}
                  {pk("mul", 4, CV)}
                  {pk("mul", 6, CV)}
                  v_permlane32_swap_b32 v{t}, v{t+1}
                  v_max_f32 v{t}, v{t}, v{t+1}
                  v_mul_f32 v{t}, v{CV}, v{t}
                  {pk("mul", 10, CV)}
                  {poll if fetch and pa == 1 else ""}""")
            for i in (0, 2, 4, 6, 10):
                k(pk("add", i, t, " neg_lo:[0,1] neg_hi:[0,1]"))
            for i in (0, 1, 2, 3, 4, 5, 6, 7, 10, 11):
                k(f"v_exp_f32 v{S+i}, v{S+i}")
            k(f"""{poll if fetch and pa == 2 else ""}
                  v_pk_add_f32 {vr(Lr,2)}, {vr(S,2)}, {vr(S+2,2)}
                  v_pk_add_f32 {vr(Lr+2,2)}, {vr(S+4,2)}, {vr(S+6,2)}
                  v_pk_add_f32 {vr(Lr,2)}, {vr(Lr,2)}, {vr(S+10,2)}
                  v_pk_add_f32 {vr(Lr,2)}, {vr(Lr,2)}, {vr(Lr+2,2)}
                  v_add_f32 v{Lr+2}, v{Lr}, v{Lr+1}
                  v_add_f32 v{Lr+3}, v{Lr}, v{Lr+1}
                  v_permlane16_swap_b32 v{Lr+2}, v{Lr+3}
                  v_add_f32 v{Lr}, v{Lr+2}, v{Lr+3}
                  v_add_f32 v{Lr+1}, v{Lr+2}, v{Lr+3}
                  v_permlane32_swap_b32 v{Lr}, v{Lr+1}
                  v_add_f32 v{Lr}, v{Lr}, v{Lr+1}
                  v_rcp_f32 v{Lr}, v{Lr}""")
            nrm = [pk("mul", i, Lr) for i in (10, 0, 2, 4, 6)]
            nrm += [f"v_cvt_pk_bf16_f32 v{P+4}, v{S+10}, v{S+11}", f"v_cvt_pk_bf16_f32 v{P+7}, v{S+10}, v{S+11}"]
            cvp = [f"v_cvt_pk_bf16_f32 v{P+q}, v{S+2*q}, v{S+2*q+1}" for q in range(4)]
            rl = []
            if fetch:
                RT_, BK = k.newlabel("L_ap"), k.newlabel("L_apb")
                k(f"""s_waitcnt vmcnt(0)
                      {pcmp}""")
                for x in nrm[:5]:
                    k(x)
                nrm = nrm[5:]
                k(f"s_cbranch_vccnz {RT_}")
                k.label(BK)
                def stub():
                    k.label(RT_)
                    spin(FL, poll, pcmp)
                    k(f"s_branch {BK}")
                stubs.append(stub)
                self.mark(37)
                rl = rloads(RD2)
                k(rl.pop(0)); k(rl.pop(0))
                if skip:
                    for x in skip_test(TT) + nrm + cvp:
                        k(x)
                    nrm = []; cvp = []
                    k(f"""s_cbranch_vccnz {skip}
                          s_add_u32 s{sD}, s{sD}, 4""")
            for x in nrm:
                k(x)
            fin = lambda i: [f"v_cvt_pk_bf16_f32 v{F+4*i+r}, v{O+8*i+r}, v{O+8*i+4+r}" for r in range(4)]
            owr = lambda i: f"ds_write_b128 v{OW_}, {vr(F+4*i,4)} offset:{i*1024}"
            for i in range(8):
                k(f"v_mfma_f32_16x16x16_bf16 {vr(O+4*i,4)}, {vr(VM+2*(i>>1),2)}, {vr(P+4+2*(i&1),2)}, 0")
                if rl:
                    k(rl.pop(0))
                if cvp:
                    k(cvp.pop(0))
            for i in range(8):
                k(f"v_mfma_f32_16x16x32_bf16 {vr(O+4*i,4)}, {vr(V+4*i,4)}, {vr(P,4)}, {vr(O+4*i,4)}")
                if i in (5, 7):
                    k(owr((i - 5) // 2))
                elif rl:
                    k(rl.pop(0))
                if i >= 3:
                    for x in fin((i - 3) // 2)[2 * ((i - 3) & 1):][:2]:
                        k(x)
            for x in fin(2)[2:] + [owr(2)] + rl + fin(3) + [owr(3)]:
                k(x)
            if tail:
                k(tail)
            k("""s_waitcnt lgkmcnt(0)
                 s_barrier""")
        def pop_todo(n):
            for _ in range(n):
                k(f"""s_ff1_i32_b64 s{sNX}, {sr(sTODO,2)}
                      s_bitset0_b64 {sr(sTODO,2)}, s{sNX}""")
            k(f"s_min_u32 s{sNX}, s{sNX}, 64")
        DLAST = opt.get("dlast", 63)
        def no_more():
            k(f"""v_subrev_u32 v{VT}, s{sD}, v{V_LANE}
                  v_and_b32 v{VT}, 0x80000003, v{VT}
                  v_cmp_eq_u32 vcc, 0, v{VT}
                  v_lshlrev_b32 v{VT}, 2, v{V_LANE}
                  v_mov_b32 v{VT+1}, 0x40000000
                  v_cndmask_b32 v{VT}, v{VT+1}, v{VT}, vcc
                  v_mov_b32 v{VT+1}, 3
                  s_or_b32 s{S_T+3}, s{sHD}, s{S_W}
                  s_mov_b32 s{S_T+3}, {DEC}
                  s_cmov_b32 s{S_T+3}, 0x80000000
                  buffer_store_dword v{VT+1}, v{VT}, {WS}, s{S_T+3} offen sc1""")
        def plan_after_d():
            F_, J_ = k.newlabel("L_ae"), k.newlabel("L_af")
            k(f"""s_cmp_lg_u32 s{sKO}, {F_RK[1]}
                  s_cbranch_scc1 {F_}
                  s_mov_b32 s{sNX}, s{sBN}
                  s_mov_b32 s{sX}, 0""")
            plan_next(0)
            k(f"s_branch {J_}")
            k.label(F_)
            pop_todo(1)
            k(f"s_lshr_b32 s{S_T+5}, s{sSEL}, 5")
            plan_next(1, S_T + 5)
            k.label(J_)
        def plan_after_b(vec=False):
            NB_, J_ = k.newlabel("L_ab"), k.newlabel("L_aj")
            NM_ = k.newlabel("L_am")
            k(f"""s_add_u32 s{sBN}, s{sNS}, 4
                  s_cmp_lt_u32 s{sNS}, {KB_}
                  s_cbranch_scc1 {NB_}
                  s_cmp_ge_u32 s{sNS}, {DLAST}
                  s_cbranch_scc1 {NM_}""")
            def stub():
                k.label(NM_)
                no_more()
                k(f"s_branch {NB_}")
            stubs.append(stub)
            spin(KY, f"s_sleep {opt.get('slt', 4)}\n" + key_load, f"v_min_u32 v{TT+1}, v{KY}, v{KY+1}\nv_cmp_eq_u32 vcc, 0, v{TT+1}")
            k(f"v_max_u32 v{KY}, v{KY}, v{KY+1}")
            self.wmax_u32(KY, KY + 1)
            k(f"""v_readfirstlane_b32 s{S_T}, v{KY}
                  v_readlane_b32 s{S_T+1}, v{TH_}, s{sNS}
                  s_max_u32 s{sMAXK}, s{sMAXK}, s{S_T}
                  s_bitcmp0_b64 {sr(sLAG,2)}, s{sNS}
                  s_cbranch_scc1 {NB_}
                  s_mov_b32 s{sNX}, s{sD}
                  s_and_b32 s{sSEL}, s{sMAXK}, 0x7ff
                  s_sub_u32 s{sSEL}, 2047, s{sSEL}
                  s_cmp_lt_u32 s{sMAXK}, s{S_T+1}
                  s_cselect_b32 s{sSEL}, 4095, s{sSEL}
                  s_lshr_b32 s{S_T+5}, s{sSEL}, 5
                  s_mov_b32 s{sX}, 1""")
            plan_next(1, S_T + 5, vec)
            k(f"s_branch {J_}")
            k.label(NB_)
            k(f"""s_mov_b32 s{sNX}, s{sBN}
                  s_mov_b32 s{sX}, 0""")
            plan_next(0, None, vec)
            k.label(J_)
        def exch1(vote=0, keep=0):
            k(f"""s_add_u32 s{sCNT}, s{sCNT}, 4
                  s_bfe_u32 s{S_T}, s{sCNT}, 0x10002
                  s_bitset0_b32 s{sVB}, s{S_T}
                  s_lshl_b32 s{S_T}, {vote}, s{S_T}
                  s_or_b32 s{sVB}, s{sVB}, s{S_T}
                  s_or_b32 s{S_T}, s{sVB}, s{sCNT}
                  v_mov_b32 v{CN}, s{S_T}
                  s_xor_b32 s{sPT}, s{sPT}, {PTX}
                  s_waitcnt vmcnt({keep}) lgkmcnt(0)
                  buffer_store_dword v{CN}, off, {WS}, s{sCUR}{self.loc}""")
            for x in pub if opt.get("pub0") else ():
                k(x)
            self.mark(36)
        def reduce_items(RD, RA):
            out = []
            for i in range(8):
                d = vr(RA + 4 * (i >> 2), 4)
                out.append(("wv", "RD%d" % i))
                out.append(f"v_mfma_f32_16x16x32_bf16 {d}, {vr(SEL,4)}, {vr(RD+4*i,4)}, {'0' if i % 4 == 0 else d}")
                if i == 6:
                    out.append(f"ds_write_b128 v{RW_}, {vr(RA,4)}")
            out.append(("gap", 2))
            out.append(f"ds_write_b128 v{RW_}, {vr(RA+4,4)} offset:2048")
            return out
        def reduce_now(RD, RA, nmid=0):
            i = 0
            for x in reduce_items(RD, RA):
                if isinstance(x, str):
                    k(x)
                elif x[0] == "wv":
                    k(f"s_waitcnt vmcnt({7 - i + nmid})"); i += 1
            k(f"""s_waitcnt lgkmcnt(0)
                  s_barrier""")
            for x in () if opt.get("pub0") else pub:
                k(x)
            self.mark(38)
        def exch2(mid=None, nmid=0):
            WL = k.newlabel("L_aq")
            k.label(WL)
            k(poll)
            self.spend()
            k(f"""s_waitcnt vmcnt(0)
                  {pcmp}
                  s_cbranch_vccnz {WL}""")
            self.mark(37)
            for x in rloads(160):
                k(x)
            if mid:
                mid()
            reduce_now(160, 192, nmid)
        def row(layer, odd, regs, seg):
            A, PKr, Y, TM, X = regs
            if layer and odd:
                return [], [("mark", "xi")], []
            rd_ = [f"ds_read_b128 {vr(A,4)}, v{RR_}", ("t", "A", f"ds_read_b128 {vr(A+4,4)}, v{RR_} offset:16")]
            out = capture(self.unpack8, X, XI)
            if layer:
                NG_, BK = k.newlabel("L_ag"), k.newlabel("L_agb")
                out.append(f"v_readfirstlane_b32 s{R_+4}, v{GK}")
                out.append(f"s_cmp_eq_u32 s{R_+4}, 0\ns_cbranch_scc1 {NG_}\n{BK}:")
                def stub():
                    k.label(NG_)
                    hpage(R_ + 3, F_RK[1], seg)
                    self.word_wait(R_ + 3, R_ + 4, va=GK)
                    k(f"s_branch {BK}")
                stubs.append(stub)
            out.append(("mark", "xi"))
            out += [f"s_lshl_b32 s{R_}, s{seg}, 5", f"s_add_u32 s{R_}, s{R_}, s{sHD}", f"s_lshl_b32 s{R_+1}, s{R_}, 10",
                    f"s_add_u32 s{R_+2}, s{R_+1}, {X1_OFF[layer] if layer or odd else X2_OFF}", ("mark", "early")]
            def body():
                self.pack8(PKr, A)
                self.unpack8(A, PKr)
                self.add8(X, A)
                self.pack8(PKr, X)
                if layer or odd:
                    k(f"buffer_store_dwordx4 {vr(PKr,4)}, v{V_L16}, {WS}, s{R_+2} offen sc1")
                self.unpack8(X, PKr)
                self.layernorm(X, PKr + 4, TM)
                self.unpack8(Y, PKr + 4)
                if not odd:
                    self.add8(X, Y)
                    self.pack8(A, X)
                    if layer == 0:
                        k(f"buffer_store_dwordx4 {vr(A,4)}, v{V_L16}, {WS}, s{R_+2} offen sc1")
                        self.unpack8(X, A)
                        self.layernorm(X, A + 4, TM)
                        k(f"""s_add_u32 s{R_+2}, s{R_+1}, {H_OFF[1]}
                              buffer_store_dwordx4 {vr(A+4,4)}, v{V_L16}, {WS}, s{R_+2} offen sc1
                              v_mov_b32 v{DF}, 1""")
                        hpage(sDF, F_HX, seg)
                        return
                    k(f"buffer_store_dwordx4 {vr(A,4)}, v{V_L16}, {OUT}, s{R_+1} offen sc1")
                k(f"v_pk_mul_f32 {vr(KEY,2)}, {vr(Y,2)}, {vr(WR,2)}")
                for j in range(2, 8, 2):
                    k(f"v_pk_fma_f32 {vr(KEY,2)}, {vr(Y+j,2)}, {vr(WR+j,2)}, {vr(KEY,2)}")
                k(f"v_add_f32 v{KEY}, v{KEY}, v{KEY+1}")
                self.wsum(KEY, KEY + 1)
                self.round1(KEY)
                k(f"""v_ashrrev_i32 v{KEY+1}, 31, v{KEY}
                      v_or_b32 v{KEY+1}, 0x80000000, v{KEY+1}
                      v_xor_b32 v{KEY}, v{KEY}, v{KEY+1}
                      v_and_b32 v{KEY}, 0xffff0000, v{KEY}
                      s_sub_u32 s{R_+2}, {2047 + 2048}, s{R_}
                      v_or_b32 v{DF}, s{R_+2}, v{KEY}""")
                if layer == 0:
                    hpage(R_ + 2, 0, seg)
                    k(f"buffer_store_dword v{DF}, v{KR}, {WS}, s{R_+2} offen sc1")
                else:
                    hpage(sDF, 0, seg)
                    k(f"s_add_u32 s{sDF}, s{sDF}, s{sKO}")
            return rd_, out, [("wl", "A")] + capture(body)

        FINAL, T3, NXB, LATE, DRAIN, ROWS_, RD_, GOB, SLOW, SLB, FIN2, PL, PC, T3E, T3X = (k.newlabel("L_aa") for _ in range(15))
        if opt.get("ptwarm", 1) and not self.loc:
            for _ in range(2):
                for x in rloads(160):
                    k(x.replace(" sc1", ""))
                k(f"s_xor_b32 s{sPT}, s{sPT}, {PTX}")
        k(f"""s_cmp_lt_u32 s{sWK}, 2
              s_cbranch_scc1 {FINAL}
              s_sub_u32 s{sNX}, s{sWK}, 2
              s_mov_b32 s{sX}, 0
              s_mov_b32 s{sKO}, {F_RK[1]}""")
        plan_next(0)
        k(f"s_branch {SLOW}")

        bread = lambda u: [("t", "B%d%d" % (u, g), f"ds_read_b128 {vr(B+u*32+4*g,4)}, v{OB_} offset:{((g>>2)*2+u)*4096 + (g&3)*1024}") for g in range(8)]
        def head():
            h = R_ + 5
            return [("need", "xi"),
                    f"s_lshl_b32 s{h}, s{S_SEG}, 5", f"s_add_u32 s{h}, s{h}, s{sHD}", f"s_lshl_b32 s{h+1}, s{h}, 10",
                    f"s_lshl_b32 s{h+2}, s{S_SEG}, 10", f"s_add_u32 s{h+2}, s{h+2}, {X2P_OFF - X2_OFF}",
                    f"s_cmp_eq_u32 s{h}, s{sSEL}\ns_cselect_b32 s{h+2}, s{h+2}, s{h+1}",
                    f"s_add_u32 s{h+2}, s{h+2}, {X2_OFF}",
                    f"s_mov_b32 s{SRD_A+2}, {WS_SIZE}",
                    f"""s_cmp_eq_u32 s{sLAY}, 0
                        s_cselect_b32 s{h+2}, s{h+1}, s{h+2}
                        s_cselect_b64 {sr(SRD_A,2)}, {sr(P_X,2)}, {sr(P_WS,2)}
                        s_cmov_b32 s{SRD_A+2}, {2048*1024}""",
                    f"buffer_load_dwordx4 {vr(XI,4)}, v{V_L16}, {SA}, s{h+2} offen sc1",
                    f"s_lshr_b32 s{h+1}, s{sSEL}, 5",
                    f"s_cmp_lt_u32 s{S_SEG}, s{h+1}\ns_cselect_b32 s{h+1}, 1, 2",
                    f"v_mov_b32 v{VT+4}, s{h+1}",
                    f"s_lshl2_add_u32 s{h+2}, s{S_SEG}, {DEC}",
                    f"s_lshl_b32 s{h+1}, s{sHD}, 16", f"s_add_u32 s{h+1}, s{h+1}, s{sLAY}", f"s_add_u32 s{h+1}, s{h+1}, s{sKO}",
                    f"s_cmp_eq_u32 s{h+1}, {F_RK[1] + 1}\ns_cselect_b32 s{h+2}, s{h+2}, 0x80000000",
                    f"buffer_store_dword v{VT+4}, off, {WS}, s{h+2} sc1",
                    f"s_bitcmp1_b64 {sr(sHAD,2)}, s{S_SEG}\ns_cselect_b32 s{h+1}, {F_RK[1] - F_RK[0]}, 0"] \
                + capture(hpage, h, F_RK[0], S_SEG) \
                + [f"s_add_u32 s{h}, s{h}, s{h+1}", f"buffer_load_dword v{GK}, off, {WS}, s{h} sc1"] + capture(keys_issue, h)
        def pack(u):
            out = []
            for r in range(4):
                for p in range(4):
                    a_ = ACC + u * 32 + p * 8
                    out.append(f"v_cvt_pk_bf16_f32 v{PK+u*16+r*4+p}, v{a_+r}, v{a_+4+r}")
                out.append(f"s_add_u32 s{S_T+6}, s{sPT}, {(16*u+r)*16*KB}")
                out.append(f"buffer_store_dwordx4 {vr(PK+u*16+r*4,4)}, v{PT_}, {WS}, s{S_T+6} offen{self.loc}")
            return out
        GAP = opt.get("gap", 5)
        vote_rd = [f"ds_read_b128 {vr(VT,4)}, v{VR}", ("gap", 6), "s_waitcnt lgkmcnt(0)",
                   f"v_or3_b32 v{VT}, v{VT}, v{VT+1}, v{VT+2}", f"v_or_b32 v{VT}, v{VT}, v{VT+3}", ("gap", 1),
                   f"v_readfirstlane_b32 s{sLATE}, v{VT}"]
        BR2 = opt.get("brow", 0) == 2
        def t3(pend):
            vm = ["RD%d" % i for i in range(8)] if pend and (pend[0] or BR2) else ["old"]
            lg = []
            seen = set()
            def emit(x):
                tag = None
                if not isinstance(x, str):
                    if x[0] == "mark":
                        seen.add(x[1]); return 0
                    if x[0] in ("wv", "wl"):
                        q_ = vm if x[0] == "wv" else lg
                        n = len(q_) - 1 - max(i for i, t in enumerate(q_) if t == x[1])
                        k(f"s_waitcnt {'vmcnt' if x[0] == 'wv' else 'lgkmcnt'}({min(n, 63 if x[0] == 'wv' else 15)})")
                        return 1
                    tag, x = x[1], x[2]
                c = 0
                for ln in x.split("\n"):
                    ln = ln.strip()
                    k(ln)
                    if ln.startswith("buffer"):
                        vm.append("copy" if ln.endswith("lds") else tag); c += 2
                    elif ln.startswith("ds_"):
                        lg.append(tag); c += 2
                    elif ln.startswith("v_mfma"):
                        c += 2
                    elif not ln.endswith(":"):
                        c += 1
                return c
            self.mark(34)
            n_start = len(k.lines)
            b0 = bread(0)
            for x in b0[:2]:
                emit(x)
            fo = fetch_ops(S_T + 8, S_T + 9)
            k(f"""s_min_u32 s{S_T}, s{sST}, s{sST+1}
                  s_cmp_lt_u32 s{sNX}, 64
                  s_cselect_b32 s{S_T}, s{S_T}, 0
                  s_cmp_eq_u32 s{S_T}, 0
                  s_cselect_b32 s{sLATE}, 0x80000000, 0
                  v_mov_b32 v{VT}, s{sLATE}
                  s_or_b32 s{S_T+8}, s{sNQ}, s{sLATE}
                  s_or_b32 s{S_T+9}, s{sNK}, s{sLATE}
                  s_cmp_lt_u32 s{sX}, s{sLAY}
                  s_cselect_b32 s{S_T+9}, 0x80000000, s{S_T+9}""")
            for _ in range(5):
                k(fo.pop(0))
            vq = [("need", "bar")] + list(vote_rd)
            if pend and not pend[0] and not BR2:
                r0, early, r1 = row(0, pend[1], (96, 104, 112, 120, 88), sPS)
                for x in r0:
                    emit(x)
                ih = max(i_ for i_, x in enumerate(r1) if isinstance(x, str) and x.startswith("buffer_store"))
                r1[ih] = ("t", "H", r1[ih])
                qx = early + r1 + ([] if pend[1] else [("gap", opt.get("hgap", 55)), ("wv", "H")] + pub)
                early = []
                vq = [("need", "b1"), ("gap", 4), "s_waitcnt lgkmcnt(0)\ns_barrier", ("mark", "bar")] + list(vote_rd)
            elif pend:
                qx = [("at", opt.get("redat", 6))]
                for x in reduce_items(RD2, S):
                    qx += [x, ("gap", 1)] if isinstance(x, str) and x.startswith("v_mfma") else [x]
                r0, early, r1 = row(pend[0], pend[1], (96, 104, 112, 120, 88), sPS)
                qx += [("gap", 4), ("need", "W"), "s_waitcnt lgkmcnt(0)\ns_barrier"] + r0 + [("mark", "bar")] + ([] if opt.get("pub0") else pub) + [("gap", 4)] + r1
                if pend == (0, 0):
                    ih = max(i_ for i_, x in enumerate(qx) if isinstance(x, str) and x.startswith("buffer_store"))
                    qx[ih] = ("t", "H", qx[ih])
                    qx += [("gap", opt.get("hgap", 55)), ("wv", "H")] + pub
            else:
                early = []
                qx = [("mark", "xi"), ("need", "b1"), ("gap", 4), "s_waitcnt lgkmcnt(0)\ns_barrier", ("mark", "bar"),
                      ("at", opt.get("pubat", 36)), ("wv", "old")] + pub
            gap = GAP if pend else opt.get("gap0", GAP)
            if pend and not pend[0]:
                del fo[-3:]
                if opt.get("fsplit") is not None:
                    ix = [i_ for i_, x in enumerate(fo) if x.endswith("lds")][opt["fsplit"]]
                    fo.insert(ix, ("at", opt.get("fodd", 100)) if pend[1] else ("need", "Hs"))
                    if not pend[1]:
                        ih = [i_ for i_, x in enumerate(qx) if not isinstance(x, str) and x[:2] == ("t", "H")][0]
                        qx.insert(ih + 1, ("mark", "Hs"))
                    gap = opt.get("fgap", 3)
            if opt.get("unpk", 1):
                qx = [y for x in qx for y in unpk(x)]
            pk0 = pack(0)
            cv0 = [x for x in pk0 if x.startswith("v_")]
            st0 = [y for x in pk0 if not x.startswith("v_") for y in ((x, ("gap", opt.get("stgap", 4))) if x.startswith("buffer") else (x,))]
            queues = [fo, b0[2:] + [f"ds_write_b32 v{VW}, v{VT}", ("mark", "W")] + bread(1) + [("mark", "b1")], vq,
                      early + head(), [("at", 66)] + cv0 + [("at", opt.get("stat", 92))] + st0, qx]
            order = [5, 0, 1, 2, 3, 4]
            def kind_of(x):
                x = x if isinstance(x, str) else (x[2] if x[0] == "t" else "s_")
                return "m" if x.startswith("v_mfma") else "v" if x.startswith("v_") else "x" if x.startswith(("ds_", "buffer")) else "s"
            def stalls(x):
                x = x if isinstance(x, str) else (x[2] if x[0] == "t" else None)
                if x is None:
                    return False
                c = Ins(x.split("\n")[0].strip())
                d = 1 if k.lines[-1].startswith("v_mfma") else 0
                for ln in reversed(k.lines[-4:]):
                    if ln.endswith(":"):
                        continue
                    if need(Ins(ln), c) > d:
                        return True
                    d += 1
                return False
            hold = [0] * len(queues)
            b1_before_bar = False
            cost = lambda x: 0 if not isinstance(x, str) and x[0] != "t" else 1.3
            TM_ = opt.get("tmaj", 2)
            pk1 = pack(1)
            cv1 = []
            if TM_:
                for p in range(3):
                    cv1 += [("at", 128 - 8 * TM_ + 2 * TM_ * (p + 1) + 1)] + [pk1[6 * r + p] for r in range(4)]
                pk1 = [x for i_, x in enumerate(pk1) if i_ % 6 > 2]
            queues.append(cv1); hold.append(0)
            for m in range(128):
                u, g, t = m >> 6, (m >> 3) & 7, m & 7
                if m >= 128 - 8 * TM_:
                    assert b1_before_bar
                    m_ = m - (128 - 8 * TM_)
                    t, g = 2 * (m_ // (2 * TM_)) + (m_ & 1), 8 - TM_ + (m_ % (2 * TM_)) // 2
                if t == 0 and ("bar" not in seen or not b1_before_bar):
                    emit(("wl", "B%d%d" % (u, g)))
                if m in (32, 64, 96):
                    self.mark(39 + m // 32)
                d = vr(ACC + u * 32 + t * 4, 4)
                k(f"v_mfma_f32_16x16x32_bf16 {d}, {vr(B+u*32+4*g,4)}, {ar((g*8+t)*4,4)}, {'0' if g == 0 else d}")
                left = sum(kind_of(x) == "v" for q_ in queues for x in q_)
                bud = 3 if left <= 2 * (opt.get("rowend", 116) - m) or "bar" not in seen else 4
                if pend and not pend[0] and (not BR2 or "bar" in seen):
                    bud = opt.get("bbud", 6) if any(kind_of(x) == "v" for x in qx) else 3
                n = 0
                def pick(kinds):
                    for qi in order:
                        q_ = queues[qi]
                        while q_ and not isinstance(q_[0], str) and q_[0][0] in ("at", "gap", "need", "mark") and hold[qi] <= m:
                            kind, val = q_[0]
                            if kind == "need" and val not in seen:
                                break
                            if kind == "at": hold[qi] = val
                            if kind == "gap": hold[qi] = m + val
                            if kind == "mark": seen.add(val)
                            q_.pop(0)
                        if q_ and hold[qi] <= m and not (not isinstance(q_[0], str) and q_[0][0] == "need") \
                                and kind_of(q_[0]) in kinds and not stalls(q_[0]):
                            x = q_.pop(0)
                            if isinstance(x, str) and x.endswith("lds"):
                                hold[qi] = m + gap
                            emit(x)
                            tx = x if isinstance(x, str) else x[2] if x[0] == "t" else ""
                            if kind_of(x) == "x" and opt.get("xc", 1):
                                return "x", 2 if tx.startswith(("ds_read", "ds_write_b32")) else 3
                            return kind_of(x), (x.count("\n") + 1 if isinstance(x, str) else 1)
                    return None
                if "b1" in seen and not any(isinstance(l_, str) and l_ == "s_barrier" for l_ in k.lines[n_start:]):
                    b1_before_bar = True
                if pend and not pend[0] and (not BR2 or "bar" in seen):
                    order = [0, 1, 5, 2, 3, 4, 6]
                elif "bar" in seen:
                    order = [0, 1, 2, 3, 5, 4] if m < 84 else [0, 1, 2, 3, 4, 6, 5]
                r_ = pick("x") or pick("s")
                n = r_[1] if r_ else 1
                while n < bud:
                    r_ = pick("vsm")
                    if not r_:
                        break
                    if r_[0] == "m":
                        r_ = pick("x") or pick("s")
                        n = r_[1] if r_ else 1
                        continue
                    n += r_[1]
                if m == 63:
                    assert "b1" in seen and "bar" in seen
                if "bar" in seen and pend and not (pend[0] and pend[1]):
                    assert "early" in seen
            assert not any(queues[:4]), [len(q_) for q_ in queues]
            self.t3left = getattr(self, "t3left", []) + [(pend, len(queues[4]), len(queues[5]))]
            self.mark(35)
            pk1 = queues[4] + queues[6] + pk1
            if ("wv", "H") in qx:
                i_ = qx.index(("wv", "H"))
                assert i_ < 2
                if not opt.get("hlate"):
                    pk1 += qx[i_:]
                del qx[:]
            while pk1 or qx:
                for q_ in (pk1, qx):
                    if q_:
                        x = q_.pop(0)
                        if isinstance(x, str) or x[0] not in ("at", "gap"):
                            emit(x)
            k(f"""s_cmp_lg_u32 s{sLATE}, 0
                  s_cbranch_scc1 {LATE}""")
            emit(("wv", "copy"))
        p00 = list(self.pend)
        V1 = k.newlabel("L_av")
        k.label(T3X)
        k(f"""s_bitcmp1_b32 s{S_W}, 0
              s_cbranch_scc1 {V1}""")
        for i in range(2):
            if i:
                k.label(V1)
            self.pend = list(p00)
            t3((1, i))
            if self.stamps and i == 0:
                k(f"s_mov_b32 s101, s{S_SEG}\ns_mov_b32 s{S_SEG}, s{sPS}")
                self.ev(22, va=240)
                k(f"s_mov_b32 s{S_SEG}, s101")
            k(f"s_branch {T3E}")
        T3B, V2_ = k.newlabel("L_av"), k.newlabel("L_av")
        if opt.get("brow", 0):
            k.label(T3B)
            k(f"""s_bitcmp1_b32 s{S_W}, 0
                  s_cbranch_scc1 {V2_}""")
            for i in range(2):
                if i:
                    k.label(V2_)
                self.pend = list(p00)
                t3((0, i))
                k(f"s_branch {T3E}")
        k.label(T3)
        self.pend = list(p00)
        t3(None)
        k.label(T3E)
        DB = k.newlabel("L_ao")
        k(f"""s_barrier
              s_cmp_lt_u32 s{sX}, s{sLAY}
              s_cbranch_scc1 {DB}""")
        pre()
        k(f"""s_cmp_eq_u32 s{sX}, 0
              s_cbranch_scc1 {NXB}""")
        p0 = list(self.pend)
        LATE2, SKIP = k.newlabel("L_al"), k.newlabel("L_ak")
        k(f"""s_cmp_lg_u64 vcc, 0
              s_cselect_b32 s{sMODE}, 1, 0
              s_andn2_b32 s{S_T+1}, s{sMODE}, s{sLAY}""")
        exch1(f"s{S_T+1}")
        plan_after_d()
        WT, WTB, SLD = (k.newlabel("L_a4") for _ in range(3))
        k(f"""s_cmp_ge_u32 s{sNS}, {opt.get("wdrain", 60)}
              s_cbranch_scc1 {WT}""")
        k.label(WTB)
        pw = list(self.pend)
        def stub():
            k.label(WT)
            k(f"""v_mov_b32 v{VT}, s{sMODE}
                  ds_write_b32 v{VW}, v{VT} offset:16
                  s_waitcnt lgkmcnt(0)
                  s_barrier
                  ds_read_b128 {vr(VT,4)}, v{VR} offset:16
                  s_waitcnt lgkmcnt(0)
                  v_or3_b32 v{VT}, v{VT}, v{VT+1}, v{VT+2}
                  v_or_b32 v{VT}, v{VT}, v{VT+3}
                  v_cmp_ne_u32 vcc, 0, v{VT}
                  s_cbranch_vccz {WTB}""")
            self.pend = list(pw)
            exch2()
            self.pend = []
            k(f"""s_mov_b32 s{sMODE}, 4
                  s_branch {ROWS_}""")
        stubs.append(stub)
        k(f"s_and_b32 s{sMODE}, s{sMODE}, s{sLAY}")
        chain_wait("scc1")
        BD = k.newlabel("L_ah")
        post(True, skip=SKIP, tail=f"""s_cmp_eq_u32 s{sLAY}, 0
                                       s_cbranch_scc1 {BD}""")
        p2 = list(self.pend)
        self.flush(va=240)
        k(f"""s_mov_b32 s{sPS}, s{S_SEG}
              s_mov_b32 s{S_SEG}, s{sNS}
              s_branch {T3X}""")
        k.label(BD)
        self.pend = p2
        NL, NLB = k.newlabel("L_a1"), k.newlabel("L_a2")
        k(f"""s_cmp_ge_u32 s{sBN}, 64
              s_cbranch_scc1 {NL}""")
        k.label(NLB)
        def stub():
            k.label(NL)
            no_more()
            k(f"s_branch {NLB}")
        stubs.append(stub)
        if BR2:
            k("""s_waitcnt lgkmcnt(0)
                 s_barrier""")
        else:
            reduce_now(RD2, 160)
        if opt.get("brow", 0):
            self.flush(va=240)
            self.ev(12, va=240)
            k(f"""s_mov_b32 s{sPS}, s{S_SEG}
                  s_mov_b32 s{S_SEG}, s{sNS}
                  s_mov_b32 s{sLAY}, 1
                  s_branch {T3B}""")
        else:
            k(f"""s_mov_b32 s{sMODE}, 1
                  s_branch {ROWS_}""")
        k.label(DB)
        self.pend = list(p0)
        pre(True)
        exch1(keep=NL_)
        if opt.get("hlate"):
            for x in pub:
                k(x)
        k(f"""s_mov_b32 s{sPS}, s{S_SEG}
              s_mov_b32 s{sMODE}, 3""")
        self.flush(va=240)
        k(f"s_branch {SLB}")
        k.label(NXB)
        self.pend = list(p0)
        exch1()
        exch2(mid=look, nmid=NL_)
        k(f"""s_mov_b32 s{sMODE}, 0
              s_branch {ROWS_}""")
        k.label(LATE)
        self.pend = list(p0)
        k(f"""s_add_u32 s{S_T}, s{sX}, s{sKO}
              s_cmp_lg_u32 s{S_T}, {F_RK[1] + 1}
              s_cbranch_scc1 {LATE2}""")
        exch1(1)
        plan_after_d()
        k(f"s_branch {SKIP}")
        k.label(LATE2)
        self.pend = list(p0)
        exch1()
        if opt.get("lpub", 1):
            for x in pub:
                k(x)
        k.label(SKIP)
        exch2()
        k(f"s_mov_b32 s{sMODE}, 2")
        k.label(ROWS_)
        RV = [k.newlabel("L_ar") for _ in range(3)]
        k(f"""s_cmp_lg_u32 s{sLAY}, 0
              s_cbranch_scc1 {RV[2]}
              s_bitcmp1_b32 s{S_W}, 0
              s_cbranch_scc1 {RV[1]}""")
        for i in range(3):
            k.label(RV[i])
            if i == 2:
                k(f"""s_bitcmp1_b32 s{S_W}, 0
                      s_cbranch_scc1 {RD_}""")
            for x in sum(row(i >> 1, i & 1, (160, 168, 176, 184, 200), S_SEG), []):
                if isinstance(x, str):
                    k(x)
                elif x[0] == "t":
                    k(x[2])
                elif x[0] == "wl":
                    k("s_waitcnt lgkmcnt(0)")
            if i < 2:
                k(f"s_branch {RD_}")
        k.label(RD_)
        self.flush(va=240)
        if self.stamps:
            E1, E2 = k.newlabel("L_ev"), k.newlabel("L_ev")
            k(f"s_cmp_lg_u32 s{sLAY}, 0\ns_cbranch_scc1 {E1}")
            self.ev(12, va=240)
            k(f"s_branch {E2}")
            k.label(E1)
            self.ev(22, va=240)
            k.label(E2)
        GOD = k.newlabel("L_ad")
        k(f"""s_cmp_eq_u32 s{sMODE}, 1
              s_cbranch_scc1 {GOD}
              s_cmp_eq_u32 s{sMODE}, 0
              s_cbranch_scc1 {GOB}
              s_cmp_eq_u32 s{sMODE}, 4
              s_cbranch_scc1 {SLD}
              s_cmp_ge_u32 s{sNX}, 64
              s_cbranch_scc1 {FIN2}""")
        k.label(SLOW)
        flush_pub()
        k(f"""v_mov_b32 v{ST}, 0
              s_mov_b32 s{sMODE}, 0""")
        spin(ST, st_load, f"v_cmp_eq_u32 vcc, 0, v{ST}")
        SLOW2 = k.newlabel("L_a3")
        k.label(SLOW2)
        k(f"""s_mov_b32 s{S_T+8}, s{sNQ}
              s_mov_b32 s{S_T+9}, s{sNK}""")
        for x in fetch_ops(S_T + 8, S_T + 9):
            k(x)
        keys_issue(S_T)
        k(f"""s_waitcnt vmcnt(0) lgkmcnt(0)
              s_barrier""")
        self.ev(20, va=240)
        pre()
        k(f"""s_waitcnt lgkmcnt(0)
              s_cmp_eq_u32 s{sX}, 0
              s_cbranch_scc1 {SLB}""")
        plan_after_d()
        k.label(SLD)
        flush_pub()
        for x in fcheck():
            k(x)
        k(f"v_cmp_eq_u32 vcc, -1, v{TT}")
        chain_wait("vccnz")
        post()
        k.label(GOD)
        k(f"""s_mov_b32 s{S_SEG}, s{sNS}
              s_mov_b32 s{sLAY}, 1
              s_branch {T3}""")
        k.label(GOB)
        flush_pub()
        k.label(SLB)
        k(f"""s_mov_b32 s{S_SEG}, s{sNS}
              s_mov_b32 s{sLAY}, 0""")
        plan_after_b(True)
        k(st_load)
        k(f"s_waitcnt vmcnt({3 if opt.get('hlate') else 2})")
        self.ev(15, va=240)
        check(False)
        k(f"s_cbranch_vccz {PC}")
        k.label(PL)
        if opt.get("sll"):
            k(f"s_sleep {opt['sll']}")
        look()
        k(st_load)
        self.spend()
        check(True)
        k(f"s_cbranch_vccnz {PL}")
        k.label(PC)
        self.ev(10, va=240)
        NP = k.newlabel("L_ai")
        rl_ = f"""v_readlane_b32 s{sST}, v{ST}, 0
                  v_readlane_b32 s{sST+1}, v{ST}, 1"""
        k(f"""s_cmp_lg_u32 s{sMODE}, 3
              s_cbranch_scc1 {NP}""")
        mk_, self.opt["marks"] = self.opt.get("marks", ()), ()
        post(True, tail=rl_)
        self.opt["marks"] = mk_
        k(f"s_branch {T3X}")
        k.label(NP)
        post(tail="s_waitcnt vmcnt(0)\n" + rl_)
        k(f"s_branch {T3}")
        k.label(FIN2)
        DONE = k.newlabel("L_az")
        k(f"""s_cmp_lg_u32 s{sKO}, {F_RK[1]}
              s_cbranch_scc1 {DONE}""")
        NN = k.newlabel("L_an")
        k(f"""s_cmp_ge_u32 s{sBN}, {DLAST + 4}
              s_cbranch_scc1 {FINAL}""")
        no_more()
        k.label(FINAL)
        flush_pub()
        self.ev(14, va=240)
        k(f"""v_lshlrev_b32 v{TT}, 2, v{V_LANE}
              v_add_u32 v{VT}, {VOTE + 64}, v{TT}
              s_cmp_lg_u32 s{S_W}, 0
              s_cbranch_scc1 {NN}
              s_lshl_b32 s{S_T+3}, s{sWK}, 13
              s_add_u32 s{S_T+3}, s{S_T+3}, {DEC + 8192}""")
        self.words_wait64(S_T + 3, TT, 1)
        k(f"""ds_write_b32 v{VT}, v{TT+1}
              s_waitcnt lgkmcnt(0)""")
        k.label(NN)
        k(f"""s_barrier
              ds_read_b32 v{TT+1}, v{VT}
              s_mov_b32 s{sKO}, {F_RK[2]}
              s_mov_b32 s{sX}, 1
              s_waitcnt lgkmcnt(0)
              v_readfirstlane_b32 s{sSEL}, v{TT+1}
              v_and_b32 v{TT+1}, 255, v{TT+1}
              s_lshr_b32 s{sSEL}, s{sSEL}, 8
              s_lshr_b32 s{S_T+5}, s{sSEL}, 5
              v_cmp_ne_u32 {sr(sHAD,2)}, 3, v{TT+1}""")
        self.todo_mask(sTODO, TT)
        k(f"""s_bcnt1_i32_b64 s{S_T}, {sr(sTODO,2)}
              v_mbcnt_lo_u32_b32 v{TT}, s{sTODO}, 0
              v_mbcnt_hi_u32_b32 v{TT}, s{sTODO+1}, v{TT}
              s_mul_i32 s{S_T}, s{S_T}, {opt.get("share", 12)}
              s_add_u32 s{S_T}, s{S_T}, {opt.get("shr", 130)}
              s_lshr_b32 s{S_T}, s{S_T}, 7
              s_lshl_b32 s{S_T}, s{S_T}, 1
              v_cmp_gt_u32 vcc, s{S_T}, v{TT}
              v_and_b32 v{TT+1}, 1, v{TT}
              v_and_b32 v{TT}, 3, v{TT}
              v_add_u32 v{TT}, 2, v{TT}
              v_cndmask_b32 v{TT}, v{TT}, v{TT+1}, vcc
              v_cmp_eq_u32 vcc, s{sWK}, v{TT}
              s_and_b64 {sr(sTODO,2)}, {sr(sTODO,2)}, vcc""")
        pop_todo(1)
        plan_next(1, S_T + 5)
        k(f"""s_cmp_ge_u32 s{sNX}, 64
              s_cbranch_scc1 {DONE}
              s_cmp_eq_u32 s{sNX}, s{S_T+5}
              s_cbranch_scc1 {SLOW}
              s_mov_b32 s{sMODE}, 0
              s_bitcmp1_b64 {sr(sHAD,2)}, s{sNX}
              s_cbranch_scc1 {SLOW2}
              s_branch {SLOW}""")
        k.label(DONE)
        flush_pub()
        self.ev(23, va=240)
        self.clean(1)
        k("s_endpgm")
        for st in stubs:
            st()

    def both(self, fn, name):
        self.k(f"""s_cmp_lg_u32 s{S_SLOW}, 0
                   s_cbranch_scc1 {name}""")
        fn()
        self.later.append((fn, name))

    def clean(self, bit, wait=True):
        if not (self.opt.get("wb", 0) >> bit) & 1:
            return
        k = self.k
        Y = k.newlabel("L_y")
        k(f"""s_and_b32 s{S_T}, s{S_H}, 15
              s_or_b32 s{S_T}, s{S_T}, s{S_W}
              s_cbranch_scc1 {Y}
              buffer_wbl2 sc1""")
        if wait:
            k("s_waitcnt vmcnt(0)")
        k.label(Y)

    def program(self):
        k = self.k
        self.later = []
        self.prologue()
        self.ev(4, clk="s_mov_b64 s[82:83], s[98:99] ;")
        self.ev(0)
        LCH, LM, LA, LA2, C1, C2 = (k.newlabel(x) for x in ("L_rch", "L_rm", "L_ra", "L_rb", "L_rc1", "L_rc2"))
        k.label("L_roles")
        if self.opt.get("hold", 6):
            X = k.newlabel("L_x")
            k(f"""s_lshl_b32 s{S_T}, 1, s{S_G}
                  s_and_b32 s{S_T}, s{S_T}, {self.opt.get("hold", 6)}
                  s_cbranch_scc0 {X}""")
            self.init_rows(0)
            k("s_waitcnt vmcnt(0)")
            self.arrive()
            self.wait_all()
            for g, n in enumerate(self.opt.get("hd", (0, 30))):
                if n:
                    Y = k.newlabel("L_y")
                    k(f"""s_cmp_lg_u32 s{S_G}, {g + 1}
                          s_cbranch_scc1 {Y}""")
                    while n > 0:
                        k(f"s_sleep {min(n, 127)}")
                        n -= 127
                    k.label(Y)
            k.label(X)
        k(f"""s_cmp_ge_u32 s{S_G}, 6
              s_cbranch_scc1 {LA}""")
        self.load_qkv()
        self.ev(2)
        k(f"""s_cmp_lt_u32 s{S_G}, 3
              s_cbranch_scc1 {LCH}
              s_cmp_eq_u32 s{S_G}, 3
              s_cbranch_scc1 {LM}""")
        self.wait_all()
        self.ev(3)
        self.role_proj()
        self.clean(0)
        k("s_endpgm")
        k.label(LM)
        self.load_gate_up()
        self.wait_all()
        self.ev(3)
        def moe():
            self.role_moe()
            k("s_endpgm")
        self.both(moe, "L_wm")
        k.label("L_abort")
        k("s_endpgm")
        k.label("L_spread")
        k(f"""s_mov_b32 s{S_SLOW}, -1
              s_lshr_b32 s{S_G}, s2, 5
              s_and_b32 s{S_H}, s2, 31""")
        if self.stamps:
            k(f"""s_lshl_b32 s{S_EV}, s2, 12
                  s_add_u32 s{S_EV}, s{S_EV}, {STAMP_OFF + MB}""")
            self.ev(0)
        k("s_branch L_roles")
        k.label(LA)
        if not self.opt.get("warm", 1):
            self.init_rows(0)
        if self.opt.get("warm", 1):
            self.warm()
        if self.opt.get("tawait", 0):
            self.wait_all()
            k(f"""s_bfe_u32 s{S_T+3}, s{S_H}, 0x10004
                  s_lshl_b32 s{S_T+3}, s{S_T+3}, 13
                  s_add_u32 s{S_T+3}, s{S_T+3}, {PG_OFF + F_KV[0]}""")
            self.flags_wait32(S_T + 3, one=True, sleep=4)
        k.label(LA2)
        self.ev(2)
        self.load_wo2()
        self.wait_all()
        self.ev(3)
        k(f"""s_max_u32 s54, s{S_G}, 5
              s_sub_u32 s54, s54, 5
              s_lshl_b32 s54, s54, 1
              s_lshr_b32 s{S_T}, s{S_H}, 4
              s_add_u32 s54, s54, s{S_T}""")
        def att():
            self.role_att(None)
            k("s_endpgm")
        self.both(att, "L_wa")
        k.label(LCH)
        S0 = k.newlabel("L_rs")
        self.load_wo(2)
        k(f"""s_cmp_eq_u32 s{S_G}, 0
              s_cbranch_scc1 {S0}""")
        self.load_wo(3)
        k.label(S0)
        self.wait_all(True)
        self.ev(3)
        self.chain_helps()
        def chains():
            C1, C2 = k.newlabel("L_rc1"), k.newlabel("L_rc2")
            k(f"""s_cmp_eq_u32 s{S_G}, 1
                  s_cbranch_scc1 {C1}
                  s_cmp_eq_u32 s{S_G}, 2
                  s_cbranch_scc1 {C2}""")
            self.chain(0)
            self.clean(2, False)
            k(f"""s_mov_b32 s{S_CNT}, 0
                  s_branch {LA2}""")
            k.label(C1)
            self.chain(1)
            self.clean(3)
            k("s_endpgm")
            k.label(C2)
            self.chain(2)
            self.clean(3)
            k("s_endpgm")
        self.both(chains, "L_wc")
        self.loc = " sc1"
        self.abort = "L_abort2"
        k.label("L_abort2")
        k("s_endpgm")
        for fn, name in reversed(self.later):
            k.label(name)
            k.fence()
            if self.opt.get("noslow"):
                k("s_endpgm")
            else:
                fn()

HEADER = open(__file__.rsplit("/", 1)[0] + "/header.txt").read() if "/" in __file__ else open("header.txt").read()

def build(**kw):
    g = Gen(**kw)
    g.program()
    print("t3 leftovers", getattr(g, "t3left", None), file=sys.stderr)
    body = g.k.finalize()
    return (HEADER + f"; @launch grid=(256,1,1) block=(256,1,1) lds={LDS_SIZE}\n"
        + f""".amdgcn_target "amdgcn-amd-amdhsa--gfx950"
.text
.globl {NAME}_kernel
.p2align 8
.type {NAME}_kernel,@function
{NAME}_kernel:
""" + body + f""".section .rodata,"a"
.p2align 6
.amdhsa_kernel {NAME}_kernel
  .amdhsa_next_free_vgpr 512
  .amdhsa_next_free_sgpr 102
  .amdhsa_accum_offset 256
  .amdhsa_group_segment_fixed_size 0
  .amdhsa_kernarg_size 120
  .amdhsa_user_sgpr_count 2
  .amdhsa_user_sgpr_kernarg_segment_ptr 1
  .amdhsa_system_sgpr_workgroup_id_x 1
  .amdhsa_float_denorm_mode_32 3
.end_amdhsa_kernel
""")

if __name__ == "__main__":
    import argparse
    ap = argparse.ArgumentParser()
    ap.add_argument("-o", default=f"/code/{NAME}.s")
    ap.add_argument("--stop", default=None)
    ap.add_argument("--stamps", type=int, default=0)
    ap.add_argument("--slow", action="store_true")
    ap.add_argument("--opt", default="{}")
    a = ap.parse_args()
    stop = None
    if a.stop:
        l, p = a.stop.split(":"); stop = (int(l), p)
    open(a.o, "w").write(build(fast=not a.slow, stop=stop, stamps=a.stamps, opt=eval(a.opt)))
```
